```python
import torch

def _softmax(x, axis=-1):
    return torch.softmax(x, dim=axis)
def _gelu(x):
    return torch.nn.functional.gelu(x, approximate="tanh")
def _silu(x):
    return torch.nn.functional.silu(x)
def _sigmoid(x):
    return torch.sigmoid(x)
def _layernorm(x, axis=-1, eps=1e-5):
    m = x.mean(dim=axis, keepdim=True)
    v = x.var(dim=axis, keepdim=True, unbiased=False)
    return (x - m) / torch.sqrt(v + eps)
def _scatter_add(tgt, idx, src, axis=0):
    return tgt.clone().index_add_(axis, idx, src)
def _segment_sum(src, seg, n):
    out = torch.zeros((n,) + src.shape[1:], dtype=src.dtype)
    return out.index_add_(0, seg, src)
def _pad(x, pw):
    flat = tuple(v for pair in reversed(pw) for v in pair)
    return torch.nn.functional.pad(x, flat)

kernel_name = 'recurrent_scan__mha_block_cached__glu_gated_swiglu__prompt'

def setup_inputs():

    _w = (lambda a: (lambda t: t.to(torch.bfloat16) if t.is_floating_point() else t)(torch.as_tensor(a)))
    def _A_setup():
        B, Sq, D = 1, 2048, 576
        H, Sk, Dh = 32, 2048, 128
        return {
            "x": _w((lambda *s: torch.randn(*s, dtype=torch.bfloat16) * 0.05)(B, Sq, D)),
            "k_cache": _w((lambda *s: torch.randn(*s, dtype=torch.bfloat16) * 1.6)(B, H, Sk, Dh)),
            "v_cache": _w((lambda *s: torch.randn(*s, dtype=torch.bfloat16) * 1.6)(B, H, Sk, Dh)),
            "wq": _w((lambda *s: torch.randn(*s, dtype=torch.bfloat16) * 1.6)(D, H * Dh) * (D ** -0.5)),
            "wo": _w((lambda *s: torch.randn(*s, dtype=torch.bfloat16) * 1.6)(H * Dh, D) * ((H * Dh) ** -0.5)),
        }
    _A_in = _A_setup()

    def _B_setup():
        B, S, D, F = 1, 2048, 576, 4608
        return {
            "x": _w((lambda *s: torch.randn(*s, dtype=torch.bfloat16) * 0.05)(B, S, D)),
            "w1": _w((lambda *s: torch.randn(*s, dtype=torch.bfloat16) * 0.2)(D, F) * (2.0 / D) ** 0.5),
            "w3": _w((lambda *s: torch.randn(*s, dtype=torch.bfloat16) * 0.2)(D, F) * (2.0 / D) ** 0.5),
            "w2": _w((lambda *s: torch.randn(*s, dtype=torch.bfloat16) * 0.2)(F, D) * (2.0 / F) ** 0.5),
        }
    _B_in = _B_setup()

    return {
        "A_x": _A_in["x"],
        "A_k_cache": _A_in["k_cache"],
        "A_v_cache": _A_in["v_cache"],
        "A_wq": _A_in["wq"],
        "A_wo": _A_in["wo"],
        "B_x": _B_in["x"],
        "B_w1": _B_in["w1"],
        "B_w3": _B_in["w3"],
        "B_w2": _B_in["w2"],
    }

def reference(A_x, A_k_cache, A_v_cache, A_wq, A_wo, B_x, B_w1, B_w3, B_w2):
    def _A_ref(x, k_cache, v_cache, wq, wo):
        B, Sq, D = x.shape
        H, Dh = 32, 128
        q = (lambda x, *d: x.permute(*d))((x @ wq).reshape(B, Sq, H, Dh), 0, 2, 1, 3)
        scores = torch.einsum("bhqd,bhkd->bhqk", q, k_cache) * (Dh ** -0.5)
        p = _softmax(scores, axis=-1)
        o = torch.einsum("bhqk,bhkd->bhqd", p, v_cache)
        return (lambda x, *d: x.permute(*d))(o, 0, 2, 1, 3).reshape(B, Sq, H * Dh) @ wo

    def _B_ref(x, w1, w3, w2):
        gate = torch.einsum("bsd,df->bsf", x, w1)
        up = torch.einsum("bsd,df->bsf", x, w3)
        h = _silu(gate) * up
        out = torch.einsum("bsf,fd->bsd", h, w2)
        return out

    x = A_x
    xn = _layernorm(x, axis=-1)
    s = _A_ref(xn, A_k_cache, A_v_cache, A_wq, A_wo)
    g = _silu(_B_ref(xn, B_w1, B_w3, B_w2))
    return x + s * g
```

```python
import re

_REG_RE = re.compile(r'^(-|\|)?(abs\()?([vas])(\d+|\[(\d+):(\d+)\])\)?\|?$')
TRANS = ('v_exp_f32', 'v_log_f32', 'v_rcp_f32', 'v_rsq_f32', 'v_sqrt_f32', 'v_sin_f32', 'v_cos_f32')


def regs_of(tok):
    tok = tok.strip()
    if tok in ('vcc', 'exec', 'm0', 'scc'):
        return [tok]
    if tok in ('vcc_lo', 'vcc_hi'):
        return ['vcc']
    if tok in ('exec_lo', 'exec_hi'):
        return ['exec']
    m = _REG_RE.match(tok)
    if not m:
        return []
    c = m.group(3)
    if m.group(5) is not None:
        return [c + str(i) for i in range(int(m.group(5)), int(m.group(6)) + 1)]
    return [c + m.group(4)]


def split_ops(s):
    out, depth, cur = [], 0, ''
    for ch in s:
        if ch in '[(':
            depth += 1
        if ch in '])':
            depth -= 1
        if ch == ',' and depth == 0:
            out.append(cur.strip())
            cur = ''
        else:
            cur += ch
    if cur.strip():
        out.append(cur.strip())
    return out


class Ins:
    def __init__(self, text, lds=None, comment=None):
        self.text = text
        self.comment = comment
        self.lds = lds
        self.pre_vm = None
        self.pre_lgkm = None
        self.pre_nop = 0
        self.need = None
        parts = text.split(None, 1)
        self.op = op = parts[0]
        rest = parts[1] if len(parts) > 1 else ''
        ops = split_ops(rest)
        mods = ''
        if ops:
            sp = ops[-1].split(None, 1)
            if len(sp) > 1:
                ops[-1], mods = sp[0], sp[1]
        self.ops, self.mods = ops, mods
        R = [regs_of(o) for o in ops]
        flat = lambda L: [x for l in L for x in l]
        self.rd, self.wr = [], []
        self.trans = False
        self.dpp = False
        self.passes = 0
        if op.endswith(':') or op.startswith('.') or op.startswith(';'):
            self.kind = 'label'
        elif op.startswith('v_mfma'):
            self.kind = 'mfma'
            self.wr = R[0]
            self.rd = flat(R[1:])
            self.a, self.b, self.c = R[1], R[2], R[3]
            self.passes = 8 if '32x32x16' in op else 4
        elif op.startswith('ds_read'):
            self.kind = 'dsr'
            self.wr, self.rd = R[0], flat(R[1:])
        elif op.startswith('ds_write'):
            self.kind = 'dsw'
            self.rd = flat(R)
        elif op.startswith('ds_'):
            self.kind = 'dsr'
            self.wr, self.rd = R[0], flat(R[1:])
        elif op.startswith('buffer_load') and re.search(r'\blds\b', mods):
            self.kind = 'dma'
            self.rd = flat(R) + ['m0']
        elif op.startswith('buffer_load') or op.startswith('global_load'):
            self.kind = 'vld'
            self.wr, self.rd = R[0], flat(R[1:])
        elif op.startswith('buffer_store') or op.startswith('global_store'):
            self.kind = 'vst'
            self.rd = flat(R)
            self.data = R[0] if op.startswith('buffer') else R[1]
        elif op.startswith('buffer_atomic'):
            self.kind = 'vld' if 'sc0' in mods else 'vst'
            self.rd = flat(R)
            self.wr = R[0] if 'sc0' in mods else []
            self.data = R[0]
        elif op in ('buffer_wbl2', 'buffer_inv'):
            self.kind = 'vst'
            self.data = []
        elif op in ('s_waitcnt', 's_barrier', 's_nop', 's_setprio', 's_sleep', 's_endpgm', 's_branch') \
                or op.startswith('s_cbranch'):
            self.kind = 'sopp'
            if op.startswith('s_cbranch_scc'):
                self.rd = ['scc']
        elif op.startswith('s_load') or op in ('s_memtime', 's_memrealtime'):
            self.kind = 'smem'
            self.wr, self.rd = R[0], flat(R[1:])
        elif op.startswith('s_cmp') or op.startswith('s_bitcmp'):
            self.kind = 'salu'
            self.wr, self.rd = ['scc'], flat(R)
        elif op.startswith('s_'):
            self.kind = 'salu'
            self.wr, self.rd = R[0] + ['scc'], flat(R[1:])
            if 'saveexec' in op:
                self.wr.append('exec')
        elif op.startswith('v_'):
            self.kind = 'valu'
            self.wr, self.rd = list(R[0]), flat(R[1:])
            base = op.replace('_e32', '').replace('_e64', '')
            if base in TRANS:
                self.trans = True
            if 'permlane' in op:
                self.wr = flat(R)
                self.rd = flat(R)
            if base.startswith('v_fmac') or base.startswith('v_dot2c') or base.startswith('v_writelane'):
                self.rd += R[0]
            if '_co_' in op or op.startswith('v_div_scale'):
                self.wr += R[1]
                self.rd = flat(R[2:])
            if op.startswith('v_cndmask') and len(ops) == 3:
                self.rd.append('vcc')
            if op.startswith('v_cmpx'):
                self.wr.append('exec')
            if '_dpp' in op:
                self.dpp = True
                self.rd += R[0]
        else:
            raise ValueError('unknown op ' + text)

    def states(self):
        if self.kind == 'label':
            return 0
        if self.op == 's_nop':
            return int(self.ops[0], 0) + 1
        return 1


class Loop:
    def __init__(self, count, body, name):
        self.count, self.body, self.name = count, body, name
        self.exit_at = None


class Prog:
    def __init__(self):
        self.items = []
        self.stack = [self.items]
        self.nlabel = 0

    def __call__(self, text, lds=None, comment=None):
        i = Ins(text, lds, comment)
        self.stack[-1].append(i)
        return i

    def add(self, i):
        self.stack[-1].append(i)
        return i

    def label(self, name):
        return self(name + ':')

    def need(self, *tags):
        i = Ins('; need')
        i.need = list(tags)
        self.stack[-1].append(i)
        return i

    def wait_regs(self, *operands):
        i = wait_ins(*operands)
        self.stack[-1].append(i)
        return i

    def loop_begin(self, count, name):
        body = []
        lp = Loop(count, body, name)
        self.stack[-1].append(lp)
        self.stack.append(body)
        return lp

    def loop_mark_exit(self, lp):
        lp.exit_at = len(lp.body)

    def loop_end(self):
        self.stack.pop()

    def trace(self, items=None, it=0, cap=None):
        for x in (self.items if items is None else items):
            if isinstance(x, Loop):
                n = x.count if cap is None else min(x.count, cap)
                for k in range(n):
                    kk = k if k < n - 1 else x.count - 1
                    body = x.body if (k < n - 1 or x.exit_at is None) else x.body[:x.exit_at]
                    yield from self.trace(body, kk, cap)
            else:
                yield x, it

    def flat(self, items=None):
        for x in (self.items if items is None else items):
            if isinstance(x, Loop):
                yield from self.flat(x.body)
            else:
                yield x

    def auto_waits(self, verify=False):
        changes = 0
        vm = []
        lg = []
        slots = {}
        val = lambda c, it: c(it) if callable(c) else c

        def retire_vm(n):
            while len(vm) > n:
                e = vm.pop(0)
                if e['tag'] is not None:
                    s = slots[e['tag'][0]]
                    s['pend'] -= 1

        def retire_lg(n):
            while len(lg) > n:
                e = lg.pop(0)
                if e['slot'] is not None:
                    slots[e['slot']]['rpend'] -= 1

        for ins, it in self.trace():
            touched = set(ins.rd) | set(ins.wr)
            nvm, nlg = None, None
            for k, e in enumerate(vm):
                hit = bool(e['regs'] & touched)
                if ins.need is not None and e['tag'] is not None:
                    for (sl, c) in ins.need:
                        if e['tag'] == (val(sl, it), val(c, it)):
                            hit = True
                if ins.need is not None and ('all', 'all') in ins.need:
                    hit = True
                if hit:
                    nvm = len(vm) - 1 - k
            anysmem = any(e['smem'] for e in lg)
            for k, e in enumerate(lg):
                hit = bool(e['regs'] & touched)
                if ins.need is not None and ('lgkm', 'all') in ins.need:
                    hit = True
                if hit:
                    nlg = 0 if anysmem else len(lg) - 1 - k
            if nvm is not None:
                nvm = min(nvm, 63)
                if ins.pre_vm is None or ins.pre_vm > nvm:
                    assert not verify, 'vm wait missing at ' + ins.text
                    ins.pre_vm = nvm
                    changes += 1
            if nlg is not None:
                nlg = min(nlg, 15)
                if ins.pre_lgkm is None or ins.pre_lgkm > nlg:
                    assert not verify, 'lgkm wait missing at ' + ins.text
                    ins.pre_lgkm = nlg
                    changes += 1
            if ins.pre_vm is not None:
                retire_vm(ins.pre_vm)
            if ins.pre_lgkm is not None:
                retire_lg(ins.pre_lgkm)
            if ins.op == 's_waitcnt':
                m = re.search(r'vmcnt\((\d+)\)', ins.text)
                if m:
                    retire_vm(int(m.group(1)))
                m = re.search(r'lgkmcnt\((\d+)\)', ins.text)
                if m:
                    retire_lg(int(m.group(1)))
            if ins.op == 's_barrier':
                for s in slots.values():
                    if s['pend'] == 0:
                        s['vis'] = True
                    if s['rpend'] == 0:
                        s['rbar'] = True
            if ins.kind in ('dma', 'vld', 'vst'):
                tag = None
                if ins.kind == 'dma' and ins.lds is not None:
                    sl, c = val(ins.lds[0], it), val(ins.lds[1], it)
                    s = slots.setdefault(sl, dict(content=None, pend=0, vis=False, rpend=0, rbar=True))
                    if s['content'] != c:
                        if verify:
                            assert s['rbar'] and s['rpend'] == 0, \
                                'LDS WAR: DMA %s into slot %s (holding %s) it=%d: %s' % (c, sl, s['content'], it, ins.text)
                        s['content'] = c
                    s['pend'] += 1
                    s['vis'] = False
                    tag = (sl, c)
                vm.append(dict(regs=set(ins.wr), tag=tag))
            if ins.kind in ('dsr', 'dsw', 'smem'):
                sl = None
                if ins.kind == 'dsr' and ins.lds is not None:
                    sl, c = val(ins.lds[0], it), val(ins.lds[1], it)
                    s = slots.get(sl)
                    if verify:
                        assert s is not None and s['content'] == c and s['vis'], \
                            'LDS RAW: read %s from slot %s state %s it=%d: %s' % (c, sl, s, it, ins.text)
                    if s is None:
                        sl = None
                    else:
                        s['rpend'] += 1
                        s['rbar'] = False
                lg.append(dict(regs=set(ins.wr), slot=sl, smem=(ins.kind == 'smem')))
                if len(lg) > 15 and verify:
                    pass
        return changes

    def fix_hazards(self, verbose=False):
        changes = 0
        hist = []
        pos = 0
        for ins, it in self.trace(cap=3):
            extra = (1 if (ins.pre_vm is not None or ins.pre_lgkm is not None) else 0)
            pos += extra
            if ins.kind == 'label':
                continue
            need = 0
            rd, wr = set(ins.rd), set(ins.wr)
            for (p, ppos) in reversed(hist):
                dist = pos + ins.pre_nop - ppos - 1 + 0
                if pos - ppos > 24:
                    break
                req = 0
                pw = set(p.wr)
                if p.kind == 'valu':
                    vw = {r for r in pw if r[0] in 'va' and r != 'vcc'}
                    sw = {r for r in pw if r[0] == 's' or r in ('vcc', 'exec')}
                    if ins.kind == 'mfma' and vw & rd:
                        req = max(req, 2)
                    if ins.kind == 'valu' and 'permlane' in ins.op and vw & rd:
                        req = max(req, 2)
                    if ins.kind == 'valu' and ins.dpp and vw & rd:
                        req = max(req, 2)
                    if ins.kind == 'valu' and ('readlane' in ins.op or 'readfirstlane' in ins.op) and vw & rd:
                        req = max(req, 1)
                    if p.trans and ins.kind == 'valu' and not ins.trans and vw & rd:
                        req = max(req, 1)
                    if p.trans and ins.kind in ('vst', 'dsw', 'vld', 'dsr', 'dma') and vw & rd:
                        req = max(req, 1)
                    if 'sdwa' in p.op and ins.kind == 'valu' and vw & (rd | wr):
                        req = max(req, 1)
                    if ins.kind == 'valu' and sw & rd:
                        req = max(req, 4 if ('readlane' in ins.op or 'writelane' in ins.op or 'div_fmas' in ins.op) else 2)
                    if ins.kind in ('vld', 'vst', 'dma') and sw & rd:
                        req = max(req, 5)
                    if ins.kind in ('salu', 'smem') and sw & rd:
                        req = max(req, 4)
                    if 'exec' in sw and ins.kind in ('mfma',):
                        req = max(req, 4)
                    if 'exec' in sw and ins.kind == 'valu' and (ins.dpp or 'permlane' in ins.op or 'readlane' in ins.op or 'readfirstlane' in ins.op):
                        req = max(req, 5)
                if p.kind == 'mfma':
                    t = {4: (6, 8, 3), 8: (10, 12, 7)}[p.passes]
                    if ins.kind == 'mfma':
                        if pw & set(ins.c):
                            if not (ins.c == p.wr and ins.passes == p.passes):
                                req = max(req, t[0])
                        if pw & (set(ins.a) | set(ins.b)):
                            req = max(req, t[1])
                        if pw & wr and not (pw & set(ins.c)):
                            req = max(req, t[0])
                    elif ins.kind in ('valu', 'vld', 'vst', 'dsr', 'dsw', 'dma'):
                        if pw & (rd | wr):
                            req = max(req, t[1])
                        if ins.kind == 'valu' and set(p.c) & wr:
                            req = max(req, t[2])
                if p.kind == 'salu' and 'm0' in pw and ins.kind == 'dma':
                    req = max(req, 1)
                if p.kind == 'vst' and ('x4' in p.op or 'x3' in p.op) and set(p.data) & wr:
                    req = max(req, 2 if ins.kind == 'valu' else 1)
                if req > dist:
                    need = max(need, req - dist)
            if need > 0:
                if verbose:
                    print('hazard pad %d before: %s' % (need, ins.text))
                ins.pre_nop += need
                changes += 1
            pos += ins.pre_nop
            hist.append((ins, pos))
            pos += ins.states()
            if len(hist) > 40:
                hist.pop(0)
        return changes

    def finalize(self, verbose=False, check=True):
        for _ in range(10):
            if self.auto_waits() == 0:
                break
        if check:
            self.auto_waits(verify=True)
        for _ in range(10):
            if self.fix_hazards(verbose) == 0:
                break

    def text(self):
        out = []
        for ins in self.flat():
            w = []
            if ins.pre_vm is not None:
                w.append('vmcnt(%d)' % ins.pre_vm)
            if ins.pre_lgkm is not None:
                w.append('lgkmcnt(%d)' % ins.pre_lgkm)
            if w:
                out.append('    s_waitcnt ' + ' '.join(w))
            n = ins.pre_nop
            while n > 0:
                k = min(n, 16)
                out.append('    s_nop %d' % (k - 1))
                n -= k
            if ins.text.startswith('; need'):
                continue
            if ins.kind == 'label':
                out.append(ins.text)
            else:
                out.append('    ' + ins.text + (('    ; ' + ins.comment) if ins.comment else ''))
        return '\n'.join(out) + '\n'

    def stats(self, items=None):
        from collections import Counter
        c = Counter()
        for ins in self.flat(items):
            c[ins.kind] += 1
            if ins.pre_vm is not None or ins.pre_lgkm is not None:
                c['wait'] += 1
            if ins.pre_nop:
                c['nop'] += 1
        return dict(c)


def wait_ins(*operands):
    i = Ins('; need')
    i.rd = [r for o in operands for r in regs_of(o)]
    return i


def need_ins(*tags):
    i = Ins('; need')
    i.need = list(tags)
    return i


def vr(base, n=1):
    return 'v%d' % base if n == 1 else 'v[%d:%d]' % (base, base + n - 1)


def ar(base, n=1):
    return 'a%d' % base if n == 1 else 'a[%d:%d]' % (base, base + n - 1)


def sr(base, n=1):
    return 's%d' % base if n == 1 else 's[%d:%d]' % (base, base + n - 1)


def kernel_text(name, prog, vgpr, accum, sgpr=102):
    return ('.globl %s\n.p2align 8\n.type %s,@function\n%s:\n' % (name, name, name)) + prog.text()


def descriptor(name, vgpr, accum, sgpr=102):
    return ('.amdhsa_kernel %s\n'
            '  .amdhsa_next_free_vgpr %d\n'
            '  .amdhsa_next_free_sgpr %d\n'
            '  .amdhsa_accum_offset %d\n'
            '  .amdhsa_group_segment_fixed_size 0\n'
            '  .amdhsa_kernarg_size 96\n'
            '  .amdhsa_user_sgpr_count 2\n'
            '  .amdhsa_user_sgpr_kernarg_segment_ptr 1\n'
            '  .amdhsa_system_sgpr_workgroup_id_x 1\n'
            '.end_amdhsa_kernel\n') % (name, vgpr, sgpr, accum)
```

```python
import sys
from collections import deque
from dsl import *

NAME = 'recurrent_scan__mha_block_cached__glu_gated_swiglu__prompt'
WS_XN = 0
WS_O = 4 << 20
WS_H = 24 << 20
WS_P = 48 << 20
WS_T = 128 << 20

MF = 'v_mfma_f32_16x16x32_bf16'
LOG2E = 1.4426950408889634
import struct
def f2u(x):
    return struct.unpack('<I', struct.pack('<f', x))[0]


def make_srd(p, srd, ptr, off, size):
    if off is None:
        p('s_mov_b32 %s, %s' % (sr(srd), sr(ptr)))
        p('s_mov_b32 %s, %s' % (sr(srd + 1), sr(ptr + 1)))
    else:
        p('s_add_u32 %s, %s, %s' % (sr(srd), sr(ptr), off))
        p('s_addc_u32 %s, %s, 0' % (sr(srd + 1), sr(ptr + 1)))
    p('s_mov_b32 %s, %s' % (sr(srd + 2), size if isinstance(size, str) else '0x%x' % size))
    p('s_mov_b32 %s, 0x00020000' % sr(srd + 3))


def cost(ins):
    if ins.kind == 'valu':
        return 2 if ins.trans else 1
    if ins.kind in ('dsr', 'dsw'):
        return 1
    if ins.kind in ('dma', 'vld', 'vst'):
        return 2
    return 0


class Gaps:
    def __init__(self, p):
        self.p = p
        self.side = deque()
        self.scal = deque()

    def gap(self, mfma, sc=(), ld=(), va=(), cap=2):
        p = self.p
        if mfma is not None:
            p.add(mfma if isinstance(mfma, Ins) else Ins(mfma))
        sc, ld, va = list(sc), list(ld), list(va)
        used = sum(cost(x) for x in ld + va)
        pulled = False
        while self.side:
            x = self.side[0]
            c = cost(x)
            if c == 0:
                if sc or pulled:
                    break
                sc.append(self.side.popleft())
                if 'm0' in x.wr:
                    break
                continue
            if used + c > cap:
                break
            if x.kind != 'valu':
                if va:
                    break
                ld.append(self.side.popleft())
            else:
                va.append(self.side.popleft())
            used += c
            pulled = True
        for x in sc + ld + va:
            p.add(x)

    def flush(self):
        while self.side:
            self.p.add(self.side.popleft())


def gen_ln():
    p = Prog()
    p('s_cmp_ge_u32 s2, 256')
    p('s_cbranch_scc1 L_ln_end')
    p('s_load_dwordx2 s[12:13], s[0:1], 0')
    p('s_load_dwordx2 s[14:15], s[0:1], 88')
    p('v_lshrrev_b32 v1, 5, v0')
    p('s_lshl_b32 s3, s2, 3')
    p('v_add_u32 v1, s3, v1')
    p('v_and_b32 v2, 31, v0')
    p('v_lshrrev_b32 v3, 2, v2')
    p('v_and_b32 v4, 3, v2')
    p('v_mul_u32_u24 v5, 1152, v1')
    p('v_lshl_add_u32 v5, v3, 6, v5')
    p('v_lshl_add_u32 v5, v4, 3, v5')
    p('v_lshrrev_b32 v6, 4, v1')
    p('v_mul_u32_u24 v6, 18, v6')
    p('v_add_u32 v6, v6, v3')
    p('v_lshlrev_b32 v6, 10, v6')
    p('v_lshl_add_u32 v6, v4, 8, v6')
    p('v_and_b32 v7, 15, v1')
    p('v_lshl_add_u32 v6, v7, 4, v6')
    p('v_cmp_gt_u32 vcc, 8, v2')
    p('s_mov_b64 s[16:17], vcc')
    for r in range(16, 20):
        p('v_mov_b32 v%d, 0' % r)
    p('s_waitcnt lgkmcnt(0)')
    make_srd(p, 4, 12, None, 2048 * 1152)
    make_srd(p, 8, 14, None, 2048 * 1152)
    for it in range(2):
        p('buffer_load_dwordx2 v[%d:%d], v5, s[4:7], 0 offen offset:%d' % (8 + 4 * it, 9 + 4 * it, it * 512))
        p('buffer_load_dwordx2 v[%d:%d], v5, s[4:7], 0 offen offset:%d' % (10 + 4 * it, 11 + 4 * it, it * 512 + 32))
    p('s_mov_b64 exec, s[16:17]')
    p('buffer_load_dwordx2 v[16:17], v5, s[4:7], 0 offen offset:1024')
    p('buffer_load_dwordx2 v[18:19], v5, s[4:7], 0 offen offset:1056')
    p('s_mov_b64 exec, -1')
    for d in range(12):
        p('v_lshlrev_b32 v%d, 16, v%d' % (20 + 2 * d, 8 + d))
        p('v_and_b32 v%d, 0xffff0000, v%d' % (21 + 2 * d, 8 + d))

    def reduce32(x, t):
        for k in (8, 4, 2, 1):
            p('v_add_f32_dpp %s, %s, %s row_ror:%d row_mask:0xf bank_mask:0xf' % (x, x, x, k))
        p('v_mov_b32 %s, %s' % (t, x))
        p('v_permlane16_swap_b32 %s, %s' % (x, t))
        p('v_add_f32 %s, %s, %s' % (x, x, t))
    p('v_add_f32 v44, v20, v21')
    p('v_add_f32 v45, v22, v23')
    for e in range(4, 24, 2):
        p('v_add_f32 v44, v44, v%d' % (20 + e))
        p('v_add_f32 v45, v45, v%d' % (21 + e))
    p('v_add_f32 v44, v44, v45')
    reduce32('v44', 'v45')
    p('v_mul_f32 v44, 0x%x, v44' % f2u(1.0 / 576))
    p('v_mov_b32 v46, 0')
    p('v_mov_b32 v47, 0')
    for e in range(16):
        p('v_sub_f32 v48, v%d, v44' % (20 + e))
        p('v_fmac_f32 v%d, v48, v48' % (46 + e % 2))
    p('s_mov_b64 exec, s[16:17]')
    for e in range(16, 24):
        p('v_sub_f32 v48, v%d, v44' % (20 + e))
        p('v_fmac_f32 v%d, v48, v48' % (46 + e % 2))
    p('s_mov_b64 exec, -1')
    p('v_add_f32 v46, v46, v47')
    reduce32('v46', 'v45')
    p('v_mul_f32 v46, 0x%x, v46' % f2u(1.0 / 576))

    def rnd(x):
        p('v_cvt_pk_bf16_f32 %s, %s, %s' % (x, x, x))
        p('v_lshlrev_b32 %s, 16, %s' % (x, x))
    rnd('v44')
    rnd('v46')
    p('v_add_f32 v46, 0x%x, v46' % f2u(1e-5))
    rnd('v46')
    p('v_sqrt_f32 v46, v46')
    rnd('v46')
    p('v_rcp_f32 v46, v46')
    for d in range(12):
        a, b = 20 + 2 * d, 21 + 2 * d
        p('v_sub_f32 v%d, v%d, v44' % (a, a))
        p('v_sub_f32 v%d, v%d, v44' % (b, b))
        p('v_cvt_pk_bf16_f32 v%d, v%d, v%d' % (8 + d, a, b))
        p('v_lshlrev_b32 v%d, 16, v%d' % (a, 8 + d))
        p('v_and_b32 v%d, 0xffff0000, v%d' % (b, 8 + d))
        p('v_mul_f32 v%d, v%d, v46' % (a, a))
        p('v_mul_f32 v%d, v%d, v46' % (b, b))
        p('v_cvt_pk_bf16_f32 v%d, v%d, v%d' % (8 + d, a, b))
    p('s_mov_b32 s18, 8192')
    p('s_mov_b32 s19, 16384')
    p('buffer_store_dwordx4 v[8:11], v6, s[8:11], 0 offen')
    p('buffer_store_dwordx4 v[12:15], v6, s[8:11], s18 offen')
    p('s_mov_b64 exec, s[16:17]')
    p('buffer_store_dwordx4 v[16:19], v6, s[8:11], s19 offen')
    p.label('L_ln_end')
    p('s_endpgm')
    p.finalize()
    return p


S_K, S_V, S_XN, S_W1, S_W3, S_WQ, S_O, S_H = 4, 8, 12, 16, 20, 24, 28, 32
S_W = 36
S_MK = 37
S_MV = 38
S_OFFK = 39
S_OFFV = 40
S_CNT = 41
S_HD, S_QT = 42, 43
S_T0 = 44
S_WSRD = 56
S_M1 = 60
S_OFFW = 61
S_OFFX = 62
S_OFFQ = 63
S_HS = 64
S_C = 72
S_NL = 73
S_TS = 84
S_PTR = 74

V_KA = 2
V_VA = 6
V_OK = 14
V_OV = 18
V_L = 20
V_LANE = 24
V_T = 25
V_E = 32
V_NM = 40
V_S = 56
V_P = 120
V_Q = 184
A_O = 0
A_KF = 128
A_VF = 192
X0 = 72
DK, DV = 3, 2

V_L16 = 2
V_A1 = 3
V_OW = 6
V_AQ = 15
V_OQ = 19


def Sreg(kb, qb):
    return V_S + (kb * 4 + qb) * 4


def Preg(u, qb, ks):
    return V_P + (u & 1) * 32 + qb * 8 + ks * 4


def lin(base, inloop, step=4):
    return (lambda it: base + step * it) if inloop else base


def k_load(u, kb, s, inloop):
    return Ins('ds_read_b128 %s, %s offset:%d' % (ar(A_KF + kb * 16 + s * 4, 4), vr(V_KA + s), (u % 4) * 16384 + kb * 4096),
               lds=(('L', u % 4), ktag(u, inloop)))


def ktag(u, inloop):
    return (lambda it: ('K', u + 4 * it)) if inloop else ('K', u)


def vtag(u, inloop):
    return (lambda it: ('V', u + 4 * it)) if inloop else ('V', u)


def v_load(u, db, ks, j, inloop):
    return Ins('ds_read_b64_tr_b16 %s, %s offset:%d' % (
        ar(A_VF + db * 8 + ks * 4 + 2 * j, 2), vr(V_VA + db), (u % 4) * 16384 + (32 * ks + 16 * j) * 256),
        lds=(('L', 4 + u % 4), vtag(u, inloop)))


def dma_unit(kind, u, inloop, vok=V_OK, vov=V_OV):
    out = []
    if kind == 'K':
        out.append(Ins('s_add_u32 m0, %s, %d' % (sr(S_MK), (u % 4) * 16384)))
        for cc in range(4):
            out.append(Ins('buffer_load_dwordx4 %s, %s, %s offen offset:%d lds' % (
                vr(vok + cc), sr(S_K, 4), sr(S_OFFK), cc * 1024), lds=(('L', u % 4), ktag(u, inloop))))
        out.append(Ins('s_add_u32 %s, %s, 16384' % (sr(S_OFFK), sr(S_OFFK))))
    else:
        out.append(Ins('s_add_u32 m0, %s, %d' % (sr(S_MV), (u % 4) * 16384)))
        for cc in range(4):
            out.append(Ins('buffer_load_dwordx4 %s, %s, %s offen offset:%d lds' % (
                vr(vov + cc % 2), sr(S_V, 4), sr(S_OFFV), cc * 1024), lds=(('L', 4 + u % 4), vtag(u, inloop))))
        out.append(Ins('s_add_u32 %s, %s, 16384' % (sr(S_OFFV), sr(S_OFFV))))
    return out


def sm_instrs(uu, i):
    n, r = i // 4, i % 4
    kb, qb = n // 4, n % 4
    e = vr(V_E + i % 8)
    ex = Ins('v_exp_f32 %s, %s' % (e, vr(Sreg(kb, qb) + r)))
    ad = Ins('v_add_f32 %s, %s, %s' % (vr(V_L + qb), vr(V_L + qb), e))
    cv = None
    if r % 2 == 1:
        cv = Ins('v_cvt_pk_bf16_f32 %s, %s, %s' % (
            vr(Preg(uu, qb, kb // 2) + (kb % 2) * 2 + r // 2), vr(V_E + (i - 1) % 8), e))
    return ex, ad, cv


def att_slots(p, u, t0, t1, inloop, pv=True, qk=True, sm_cur=True, sm_next=True, vnext=True, dma=True,
              barrier=True):
    T0 = -40
    R = range(-128, 256)
    sc = {t: [] for t in R}
    ld = {t: [] for t in R}
    va = {t: [] for t in R}
    for t in range(0, 128, 2):
        if t >= X0:
            uu, i, on = u + 1, (t - X0) // 2, sm_next
        else:
            uu, i, on = u, (t + 128 - X0) // 2, sm_cur
        if on:
            ex, ad, cv = sm_instrs(uu, i)
            va[t].append(ex)
            va[t + 1].append(ad)
            if cv is not None:
                va[t + 1].append(cv)
    pos = [t for t in range(T0, T0 + 128) if t % 8 in (1, 4, 5)]
    n = 0
    for db in range(8):
        for ks in range(2):
            for j in range(2):
                t = pos[n]
                n += 1
                if t >= 0:
                    if pv:
                        ld[t].append(v_load(u - 1, db, ks, j, inloop))
                else:
                    if vnext:
                        ld[t + 128].append(v_load(u, db, ks, j, inloop))
        t = 8 * db - 1
        sc[t if t >= 0 else t + 128].append(wait_ins(ar(A_VF + db * 8, 8)))
    for kb in range(4):
        for s in range(4):
            t = pos[n]
            n += 1
            if qk:
                ld[t].append(k_load(u + 1, kb, s, inloop))
        sc[64 + 16 * kb - 1].append(wait_ins(ar(A_KF + kb * 16, 16)))
    if dma:
        dv = dma_unit('V', u + DV, inloop)
        dk = dma_unit('K', u + DK, inloop)
        for lst, tt in ((dv, 2), (dk, 66)):
            sc[tt].append(lst[0])
            for k in range(4):
                ld[tt + 16 * k + (4 if k == 0 else 0)].append(lst[1 + k])
            sc[tt + 16 * 3 + 1].append(lst[5])
    if barrier:
        sc[0].append(need_ins((('L', (u + 1) % 4), ktag(u + 1, inloop)), (('L', 4 + u % 4), vtag(u, inloop))))
        sc[1].append(Ins('s_barrier'))
    for t in range(t0, t1):
        if t < 64:
            if pv:
                db, qb, ks = t // 8, (t % 8) // 2, t % 2
                o = ar(A_O + (db * 4 + qb) * 4, 4)
                p('%s %s, %s, %s, %s' % (MF, o, ar(A_VF + db * 8 + ks * 4, 4), vr(Preg(u - 1, qb, ks), 4), o))
        else:
            if qk:
                tt = t - 64
                kb, qb, s = tt // 16, (tt % 16) // 4, tt % 4
                d = vr(Sreg(kb, qb), 4)
                c = vr(V_NM + qb * 4, 4) if s == 0 else d
                p('%s %s, %s, %s, %s' % (MF, d, ar(A_KF + kb * 16 + s * 4, 4), vr(V_Q + (qb * 4 + s) * 4, 4), c))
        assert len(sc[t]) <= 1 and len(ld[t]) <= 1
        for x in sc[t] + ld[t] + va[t]:
            p.add(x)


def kv_dma_setup(p, vok, vov):
    L = vr(V_LANE)
    t0, t1, t2, t3 = (vr(V_T + i) for i in range(4))
    p('v_and_b32 %s, 15, %s' % (t0, L))
    p('v_lshrrev_b32 %s, 4, %s' % (t1, L))
    p('v_lshlrev_b32 %s, 8, %s' % (t2, t1))
    p('v_add_u32 %s, %s, %s' % (t2, sr(S_MK), t2))
    p('v_xor_b32 %s, %s, %s' % (t3, t0, t1))
    p('v_lshl_add_u32 %s, %s, 4, %s' % (vr(vok), t3, t2))
    for c in range(1, 4):
        p('v_xor_b32 %s, %d, %s' % (vr(vok + c), c * 64, vr(vok)))
    p('v_lshlrev_b32 %s, 1, %s' % (t3, t1))
    p('v_xor_b32 %s, %s, %s' % (t3, t0, t3))
    p('v_lshl_add_u32 %s, %s, 4, %s' % (vr(vov), t3, t2))
    p('v_xor_b32 %s, 128, %s' % (vr(vov + 1), vr(vov)))


def attn_read_setup(p):
    L = vr(V_LANE)
    t0, t1, t2, t3 = (vr(V_T + i) for i in range(4))
    p('v_and_b32 %s, 15, %s' % (t0, L))
    p('v_lshrrev_b32 %s, 4, %s' % (t1, L))
    p('v_xor_b32 %s, %s, %s' % (t2, t0, t1))
    p('v_lshlrev_b32 %s, 4, %s' % (t2, t2))
    p('v_lshl_add_u32 %s, %s, 8, %s' % (vr(V_KA), t0, t2))
    for s in range(1, 4):
        p('v_xor_b32 %s, %d, %s' % (vr(V_KA + s), s * 64, vr(V_KA)))
    p('v_lshrrev_b32 %s, 2, %s' % (t2, L))
    p('v_and_b32 %s, 7, %s' % (t3, t2))
    p('v_lshlrev_b32 %s, 5, %s' % (t3, t3))
    p('v_lshl_add_u32 %s, %s, 8, %s' % (t3, t2, t3))
    p('v_and_b32 %s, 3, %s' % (t2, L))
    p('v_lshl_add_u32 %s, %s, 3, %s' % (t3, t2, t3))
    p('v_add_u32 %s, 0x10000, %s' % (vr(V_VA), t3))
    for d in range(1, 8):
        p('v_xor_b32 %s, %d, %s' % (vr(V_VA + d), d * 32, vr(V_VA)))


def xlane_reduce(p, op, x, t):
    p('v_mov_b32 %s, %s' % (t, x))
    p('v_permlane32_swap_b32 %s, %s' % (x, t))
    p('%s %s, %s, %s' % (op, x, x, t))
    p('v_mov_b32 %s, %s' % (t, x))
    p('v_permlane16_swap_b32 %s, %s' % (x, t))
    p('%s %s, %s, %s' % (op, x, x, t))


def attn_first(p):
    p.need((('L', 0), ('K', 0)))
    p('s_barrier')
    for kb in range(4):
        for s in range(4):
            p.add(k_load(0, kb, s, False))
    for i in range(128):
        p('v_accvgpr_write_b32 %s, 0' % ar(A_O + i))
    for qb in range(4):
        p('v_mov_b32 %s, 0' % vr(V_L + qb))
    for kb in range(4):
        for qb in range(4):
            for s in range(4):
                d = vr(Sreg(kb, qb), 4)
                p('%s %s, %s, %s, %s' % (MF, d, ar(A_KF + kb * 16 + s * 4, 4), vr(V_Q + (qb * 4 + s) * 4, 4), '0' if s == 0 else d))
    for qb in range(4):
        m = vr(V_T + qb)
        regs = [vr(Sreg(kb, qb) + r) for kb in range(4) for r in range(4)]
        p('v_max3_f32 %s, %s, %s, %s' % (m, regs[0], regs[1], regs[2]))
        for r in range(3, 15, 2):
            p('v_max3_f32 %s, %s, %s, %s' % (m, m, regs[r], regs[r + 1]))
        p('v_max_f32 %s, %s, %s' % (m, m, regs[15]))
        xlane_reduce(p, 'v_max_f32', m, vr(V_T + 4))
        for r in range(4):
            p('v_sub_f32 %s, 0, %s' % (vr(V_NM + qb * 4 + r), m))
        for x in regs:
            p('v_sub_f32 %s, %s, %s' % (x, x, m))


def attn_main(p):
    att_slots(p, -1, X0, 128, False, pv=False, qk=False, vnext=False, dma=False, barrier=False)
    att_slots(p, 0, 0, 64, False, pv=False)
    p('s_mov_b32 %s, 0' % sr(S_CNT))
    lp = p.loop_begin(8, 'att')
    p.label('L_att')
    att_slots(p, 0, 64, 128, True)
    att_slots(p, 1, 0, 128, True)
    att_slots(p, 2, 0, 128, True)
    att_slots(p, 3, 0, 64, True)
    p('s_add_u32 %s, %s, 1' % (sr(S_CNT), sr(S_CNT)))
    p('s_cmp_eq_u32 %s, 8' % sr(S_CNT))
    p('s_cbranch_scc1 L_att_tail')
    p.loop_mark_exit(lp)
    att_slots(p, 3, 64, 128, True)
    att_slots(p, 4, 0, 64, True)
    p('s_branch L_att')
    p.loop_end()
    p.label('L_att_tail')
    att_slots(p, 31, 64, 128, False, qk=False, sm_next=False, dma=False)
    att_slots(p, 32, 0, 64, False, qk=False, sm_cur=False, dma=False, barrier=False)


def attn_epilogue(p):
    L = vr(V_LANE)
    t0 = vr(V_T)
    for qb in range(4):
        l = vr(V_L + qb)
        xlane_reduce(p, 'v_add_f32', l, t0)
        p('v_rcp_f32 %s, %s' % (l, l))
    p('v_lshlrev_b32 %s, 4, %s' % (t0, L))
    p('s_lshl_b32 %s, %s, 19' % (sr(S_T0), sr(S_W)))
    for qb in range(1, 4):
        p('s_add_u32 %s, %s, 0x%x' % (sr(S_T0 + qb), sr(S_T0), qb * 0x20000))
    tmp = V_S
    n = 0
    for qb in range(4):
        for t in range(4):
            base = tmp + (n % 4) * 12
            n += 1
            for r in range(8):
                p('v_accvgpr_read_b32 %s, %s' % (vr(base + r), ar(A_O + ((2 * t + r // 4) * 4 + qb) * 4 + r % 4)))
            for r in range(8):
                p('v_mul_f32 %s, %s, %s' % (vr(base + r), vr(base + r), vr(V_L + qb)))
            for r in range(4):
                p('v_cvt_pk_bf16_f32 %s, %s, %s' % (vr(base + 8 + r), vr(base + 2 * r), vr(base + 2 * r + 1)))
            p('buffer_store_dwordx4 %s, %s, %s, %s offen offset:%d' % (
                vr(base + 8, 4), t0, sr(S_O, 4), sr(S_T0 + qb), t * 1024))


P1_SLOT = 36864
def facc(blk, qb):
    n = blk * 4 + qb
    return ('v', 40 + n * 4) if n < 54 else ('a', (n - 54) * 4)


def rg(t, n=4):
    return (vr if t[0] == 'v' else ar)(t[1], n)


A_B = 160
A_A = 136
A_QA = 0
WQ_SLOT = [7, 8, 9, 3, 6, 7, 8, 9, 3]


def wtag(c, inloop):
    return (lambda it: ('W', c + 3 * it)) if inloop else ('W', c)


def p1_dma(c, inloop):
    out = []
    for i in range(9):
        if i % 4 == 0:
            out.append(Ins('s_add_u32 m0, %s, %d' % (sr(S_M1), (c % 3) * P1_SLOT + (i // 4) * 4096)))
        out.append(Ins('buffer_load_dwordx4 %s, %s, %s offen offset:%d lds' % (
            vr(V_OW + i), sr(S_WSRD, 4), sr(S_OFFW), (i % 4) * 1024), lds=(('P', c % 3), wtag(c, inloop))))
    out.append(Ins('s_add_u32 %s, %s, %d' % (sr(S_OFFW), sr(S_OFFW), 64 * 9216)))
    return out


def xn_loads(buf, wrap=False):
    base = A_B + (buf % 3) * 32
    out = []
    for qb in range(4):
        if qb > 0:
            out.append(Ins('s_add_u32 %s, %s, %d' % (sr(S_T0 + qb), sr(S_OFFX), qb * 18 * 1024)))
        so = sr(S_OFFX) if qb == 0 else sr(S_T0 + qb)
        for ks in range(2):
            out.append(Ins('buffer_load_dwordx4 %s, %s, %s, %s offen offset:%d' % (
                ar(base + (qb * 2 + ks) * 4, 4), vr(V_L16), sr(S_XN, 4), so, ks * 1024)))
    if wrap:
        out.append(Ins('s_mov_b32 %s, 0' % sr(S_OFFX)))
    else:
        out.append(Ins('s_add_u32 %s, %s, 2048' % (sr(S_OFFX), sr(S_OFFX))))
    return out


def wq_dma(c):
    sl = WQ_SLOT[c]
    out = []
    for cc in range(4):
        out.append(Ins('s_add_u32 m0, %s, %d' % (sr(S_MK), sl * 16384 + cc * 1024)))
        out.append(Ins('buffer_load_dwordx4 %s, %s, %s offen lds' % (
            vr(V_OQ + cc % 2), sr(S_WQ, 4), sr(S_OFFQ)), lds=(('L', sl), ('Q', c))))
        out.append(Ins('s_add_u32 %s, %s, %d' % (sr(S_OFFQ), sr(S_OFFQ), 4 * 8192 if cc < 3 else (64 - 12) * 8192)))
    return out


def p1_reads(cc, blk, grp, inloop):
    mat, b = blk % 2, blk // 2
    return [Ins('ds_read_b64_tr_b16 %s, %s offset:%d' % (
        ar(A_A + (grp % 3) * 8 + ks * 4 + 2 * j, 2), vr(V_A1 + cc % 3),
        mat * 18432 + (32 * ks + 16 * j) * 288 + 32 * b), lds=(('P', cc % 3), wtag(cc, inloop)))
        for ks in range(2) for j in range(2)]


def p2_reads(cc, bq, grp):
    s, jj = bq // 2, bq % 2
    sl = WQ_SLOT[cc]
    return [Ins('ds_read_b64_tr_b16 %s, %s offset:%d' % (
        ar(A_A + (grp % 3) * 8 + ks * 4 + 2 * j, 2), vr(V_AQ + (sl // 4) * 4 + s),
        (sl % 4) * 16384 + (32 * ks + 16 * j) * 256 + 8 * jj), lds=(('L', sl), ('Q', cc)))
        for ks in range(2) for j in range(2)]


def gemm_chunk(p, g, nblk, grp0, acc, buf, reads_cur, reads_next, need_next, pre=(), post=()):
    g.side.extend(pre)
    for blk in range(nblk):
        nb = blk + 2
        if nb < nblk:
            L = reads_cur(nb, grp0 + nb)
        else:
            L = reads_next(nb - nblk, grp0 + nb) if reads_next else []
        at = (4, 5, 6, 7) if blk == nblk - 2 else (0, 2, 4, 6)
        for t in range(8):
            qb, ks = t // 2, t % 2
            a = rg(acc(blk, qb))
            m = '%s %s, %s, %s, %s' % (MF, a, ar(A_A + ((grp0 + blk) % 3) * 8 + ks * 4, 4),
                                       ar(A_B + (buf % 3) * 32 + (qb * 2 + ks) * 4, 4), a)
            sc, ld = [], []
            if L and t in at:
                ld = [L[at.index(t)]]
            if blk == nblk - 2 and t == 2:
                sc = [need_ins(('lgkm', 'all'), *need_next)]
            if blk == nblk - 2 and t == 3:
                sc = [Ins('s_barrier')]
            if t == 7:
                w = [ar(A_A + ((grp0 + blk + 1) % 3) * 8, 8)]
                if blk == nblk - 1:
                    w.append(ar(A_B + ((buf + 1) % 3) * 32, 32))
                sc = [wait_ins(*w)]
            g.gap(m, sc, ld)
            if blk == nblk - 2 and t == 3:
                g.side.extend(post)


def swiglu(blkpair_list):
    out = []
    n = 0
    for bs in blkpair_list:
        for qb in range(4):
            pk = V_E + (n % 2) * 4
            n += 1
            for bi, b in enumerate(bs):
                gt, ut = facc(2 * b, qb), facc(2 * b + 1, qb)
                hv = []
                for r in range(4):
                    ta, tb = vr(V_T + 1 + (r % 2) * 3), vr(V_T + 2 + (r % 2) * 3)
                    tc = vr(V_T + 3 + (r % 2) * 3)
                    if gt[0] == 'a':
                        out.append(Ins('v_accvgpr_read_b32 %s, %s' % (ta, ar(gt[1] + r))))
                        gs = ta
                    else:
                        gs = vr(gt[1] + r)
                    if ut[0] == 'a':
                        out.append(Ins('v_accvgpr_read_b32 %s, %s' % (tb, ar(ut[1] + r))))
                        us = tb
                    else:
                        us = vr(ut[1] + r)
                    out.append(Ins('v_mul_f32 %s, %s, %s' % (tc, sr(S_NL), gs)))
                    out.append(Ins('v_exp_f32 %s, %s' % (tc, tc)))
                    out.append(Ins('v_mul_f32 %s, %s, %s' % (tb, gs, us)))
                    out.append(Ins('v_add_f32 %s, 1.0, %s' % (tc, tc)))
                    out.append(Ins('v_rcp_f32 %s, %s' % (tc, tc)))
                    out.append(Ins('s_nop 0'))
                    out.append(Ins('v_mul_f32 %s, %s, %s' % (tb, tb, tc)))
                    hv.append(tb)
                    if r % 2 == 1:
                        out.append(Ins('v_cvt_pk_bf16_f32 %s, %s, %s' % (vr(pk + bi * 2 + r // 2), hv[-2], hv[-1])))
            if len(bs) == 2:
                out.append(Ins('buffer_store_dwordx4 %s, %s, %s, %s offen offset:%d' % (
                    vr(pk, 4), vr(V_L16), sr(S_H, 4), sr(S_HS + qb), (bs[0] // 2) * 1024)))
            else:
                out.append(Ins('buffer_store_dwordx2 %s, %s, %s, %s offen' % (
                    vr(pk, 2), vr(V_L16), sr(S_H, 4), sr(S_HS + 4 + qb))))
    return out


def gen_ka(diag=False):
    p = Prog()

    def stamp(k):
        if diag:
            p('s_memtime %s' % sr(S_TS + 2 * k, 2))
            p('s_waitcnt lgkmcnt(0)')
    p('s_cmp_ge_u32 s2, 256')
    p('s_cbranch_scc1 L_ka_end')
    stamp(0)
    p('s_load_dwordx4 s[76:79], s[0:1], 8')
    p('s_load_dwordx2 s[74:75], s[0:1], 24')
    p('s_load_dwordx4 s[80:83], s[0:1], 48')
    p('s_load_dwordx2 s[100:101], s[0:1], 88')
    L = vr(V_LANE)
    t0, t1, t2, t3, t4 = (vr(V_T + i) for i in range(5))
    p('v_and_b32 %s, 63, v0' % L)
    p('v_lshrrev_b32 v1, 6, v0')
    p('v_readfirstlane_b32 %s, v1' % sr(S_W))
    T = lambda k: sr(S_T0 + k)
    p('s_and_b32 %s, s2, 7' % T(0))
    p('s_lshl_b32 %s, %s, 2' % (T(0), T(0)))
    p('s_lshr_b32 %s, s2, 3' % T(1))
    p('s_and_b32 %s, %s, 3' % (T(1), T(1)))
    p('s_add_u32 %s, %s, %s' % (sr(S_HD), T(0), T(1)))
    p('s_lshr_b32 %s, s2, 5' % sr(S_QT))
    p('s_mov_b32 %s, 0x%x' % (sr(S_C), f2u(LOG2E / 128 ** 0.5)))
    p('s_mov_b32 %s, 0x%x' % (sr(S_NL), f2u(-LOG2E)))
    p('s_lshl_b32 %s, %s, 12' % (sr(S_MK), sr(S_W)))
    p('s_add_u32 %s, %s, 0x10000' % (sr(S_MV), sr(S_MK)))
    p('s_mov_b32 %s, 0' % sr(S_OFFK))
    p('s_mov_b32 %s, 0' % sr(S_OFFV))
    p('v_lshlrev_b32 %s, 4, %s' % (vr(V_L16), L))
    p('s_and_b32 %s, %s, 1' % (T(2), sr(S_HD)))
    p('s_lshl_b32 %s, %s, 1' % (T(2), T(2)))
    for i in range(9):
        p('v_add_u32 %s, %d, %s' % (t0, 64 * i, L))
        p('v_mul_u32_u24 %s, 3641, %s' % (t1, t0))
        p('v_lshrrev_b32 %s, 16, %s' % (t1, t1))
        p('v_mul_u32_u24 %s, 18, %s' % (t2, t1))
        p('v_sub_u32 %s, %s, %s' % (t2, t0, t2))
        p('v_add_u32 %s, %s, %s' % (t2, T(2), t2))
        p('v_subrev_u32 %s, 18, %s' % (t3, t2))
        p('v_min_u32 %s, %s, %s' % (t2, t2, t3))
        p('v_mul_u32_u24 %s, 9216, %s' % (t1, t1))
        p('v_lshl_add_u32 %s, %s, 4, %s' % (t1, t2, t1))
        p('v_subrev_u32 %s, %d, %s' % (vr(V_OW + i), (i % 4) * 1024, t1))
    p('v_lshrrev_b32 %s, 2, %s' % (t0, L))
    p('v_mul_u32_u24 %s, 288, %s' % (t1, t0))
    p('v_and_b32 %s, 3, %s' % (t2, L))
    p('v_lshl_add_u32 %s, %s, 3, %s' % (vr(V_A1), t2, t1))
    p('v_add_u32 %s, %d, %s' % (vr(V_A1 + 1), P1_SLOT, vr(V_A1)))
    p('v_add_u32 %s, %d, %s' % (vr(V_A1 + 2), 2 * P1_SLOT, vr(V_A1)))
    p('v_and_b32 %s, 15, %s' % (t0, L))
    p('v_lshrrev_b32 %s, 4, %s' % (t1, L))
    p('v_lshlrev_b32 %s, 1, %s' % (t3, t1))
    p('v_xor_b32 %s, %s, %s' % (t3, t0, t3))
    p('v_lshlrev_b32 %s, 4, %s' % (t3, t3))
    p('v_lshl_add_u32 %s, %s, 13, %s' % (vr(V_OQ), t1, t3))
    p('v_xor_b32 %s, 128, %s' % (vr(V_OQ + 1), vr(V_OQ)))
    p('s_lshl_b32 %s, %s, 17' % (sr(S_OFFQ), sr(S_W)))
    p('s_mul_i32 %s, %s, 9216' % (sr(S_M1), sr(S_W)))
    p('s_and_b32 %s, %s, 1' % (T(3), sr(S_W)))
    p('s_mul_i32 %s, %s, %d' % (sr(S_OFFW), T(3), 32 * 9216))
    p('s_mov_b32 %s, 0' % sr(S_OFFX))
    p('s_waitcnt lgkmcnt(0)')
    p('s_lshl_b32 %s, %s, 19' % (T(2), sr(S_HD)))
    make_srd(p, S_K, 76, T(2), 0x80000)
    make_srd(p, S_V, 78, T(2), 0x80000)
    p('s_lshl_b32 %s, %s, 8' % (T(2), sr(S_HD)))
    p('s_sub_u32 %s, %d, %s' % (T(3), 576 * 8192, T(2)))
    make_srd(p, S_WQ, 74, T(2), T(3))
    p('s_cmp_lt_u32 %s, 2' % sr(S_W))
    p('s_cselect_b32 %s, s80, s82' % T(4))
    p('s_cselect_b32 %s, s81, s83' % T(5))
    p('s_mul_i32 %s, %s, 288' % (T(2), sr(S_HD)))
    p('s_sub_u32 %s, %d, %s' % (T(3), 576 * 9216, T(2)))
    make_srd(p, S_WSRD, S_T0 + 4, T(2), T(3))
    p('s_lshl_b32 %s, %s, 2' % (T(2), sr(S_QT)))
    p('s_add_u32 %s, %s, %s' % (T(2), T(2), sr(S_W)))
    p('s_mul_i32 %s, %s, %d' % (T(3), T(2), 4 * 18 * 1024))
    make_srd(p, S_XN, 100, T(3), 4 * 18 * 1024)
    p('s_mul_i32 %s, %s, %d' % (T(3), T(2), 4 * 144 * 1024))
    p('s_add_u32 %s, %s, 0x%x' % (T(3), T(3), WS_H))
    make_srd(p, S_H, 100, T(3), 4 * 144 * 1024)
    p('s_lshl_b32 %s, %s, 21' % (T(3), sr(S_QT)))
    p('s_lshl_b32 %s, %s, 12' % (T(4), sr(S_HD)))
    p('s_add_u32 %s, %s, %s' % (T(3), T(3), T(4)))
    p('s_add_u32 %s, %s, 0x%x' % (T(3), T(3), WS_O))
    p('s_sub_u32 %s, 0x200000, %s' % (T(5), T(4)))
    make_srd(p, S_O, 100, T(3), T(5))
    p('s_mul_i32 %s, %s, 9' % (T(2), sr(S_HD)))
    p('s_add_u32 %s, %s, 1' % (T(2), T(2)))
    p('s_lshr_b32 %s, %s, 1' % (T(2), T(2)))
    p('s_lshl_b32 %s, %s, 10' % (sr(S_HS), T(2)))
    p('s_bitcmp1_b32 %s, 0' % sr(S_HD))
    p('s_mov_b32 %s, 4096' % T(3))
    p('s_cselect_b32 %s, %d, %s' % (T(3), -1024 + 8, T(3)))
    p('s_add_u32 %s, %s, %s' % (sr(S_HS + 4), sr(S_HS), T(3)))
    for qb in range(1, 4):
        p('s_add_u32 %s, %s, %d' % (sr(S_HS + qb), sr(S_HS), qb * 144 * 1024))
        p('s_add_u32 %s, %s, %d' % (sr(S_HS + 4 + qb), sr(S_HS + 4), qb * 144 * 1024))
    for c in range(2):
        for x in p1_dma(c, False):
            p.add(x)
        for x in xn_loads(c):
            p.add(x)
    for n in range(54 * 4):
        p('v_mov_b32 %s, 0' % vr(40 + n))
    for n in range(72):
        p('v_accvgpr_write_b32 %s, 0' % ar(n))
    p.need((('P', 0), ('W', 0)))
    p('s_barrier')
    stamp(1)
    for blk in range(2):
        for x in p1_reads(0, blk, blk, False):
            p.add(x)
    g = Gaps(p)
    p('s_mov_b32 %s, 0' % sr(S_CNT))
    p.wait_regs(ar(A_B, 32), ar(A_A, 8))
    p.loop_begin(2, 'p1')
    p.label('L_p1')
    for c in range(3):
        gemm_chunk(p, g, 18, 0, facc, c,
                   lambda blk, grp, c=c: p1_reads(c, blk, grp, True),
                   lambda blk, grp, c=c: p1_reads(c + 1, blk, grp, True),
                   [(('P', (c + 1) % 3), wtag(c + 1, True))],
                   pre=p1_dma(c + 2, True) + xn_loads(c + 2))
        assert not g.side
    p('s_add_u32 %s, %s, 1' % (sr(S_CNT), sr(S_CNT)))
    p('s_cmp_lt_u32 %s, 2' % sr(S_CNT))
    p('s_cbranch_scc1 L_p1')
    p.loop_end()
    for c in range(6, 9):
        gemm_chunk(p, g, 18, 0, facc, c,
                   lambda blk, grp, c=c: p1_reads(c, blk, grp, False),
                   (lambda blk, grp, c=c: p1_reads(c + 1, blk, grp, False)) if c < 8 else None,
                   [(('P', (c + 1) % 3), wtag(c + 1, False))] if c < 8 else [],
                   pre=(p1_dma(8, False) if c == 6 else []) + xn_loads(c + 2, wrap=(c == 6)) + wq_dma(c - 6))
    g.flush()
    stamp(2)
    p1_free = Ins('; need')
    kv_dma_setup(p, V_OW, V_OW + 4)
    for x in wq_dma(3) + wq_dma(4):
        p.add(x)
    for u in range(3):
        for x in dma_unit('K', u, False, V_OW, V_OW + 4):
            p.add(x)
        if u < 2:
            for x in dma_unit('V', u, False, V_OW, V_OW + 4):
                p.add(x)
    for x in swiglu([(0, 1), (2, 3), (4, 5), (6, 7), (8,)]):
        p.add(x)
    stamp(3)
    global V_AQ
    V_AQ = 40
    p('v_lshrrev_b32 %s, 2, %s' % (t0, L))
    p('v_and_b32 %s, 7, %s' % (t1, t0))
    p('v_lshlrev_b32 %s, 1, %s' % (t1, t1))
    p('v_and_b32 %s, 3, %s' % (t2, L))
    p('v_xor_b32 %s, %s, %s' % (t1, t1, t2))
    p('v_lshlrev_b32 %s, 4, %s' % (t1, t1))
    p('v_lshl_add_u32 %s, %s, 8, %s' % (vr(V_AQ), t0, t1))
    for s in range(1, 4):
        p('v_xor_b32 %s, %d, %s' % (vr(V_AQ + s), 64 * s, vr(V_AQ)))
    for rgn in range(1, 3):
        for s in range(4):
            p('v_add_u32 %s, 0x%x, %s' % (vr(V_AQ + rgn * 4 + s), rgn * 65536, vr(V_AQ + s)))
    for n in range(128):
        p('v_accvgpr_write_b32 %s, 0' % ar(A_QA + n))
    p.need((('L', WQ_SLOT[0]), ('Q', 0)))
    p('s_barrier')
    for blk in range(2):
        for x in p2_reads(0, blk, blk):
            p.add(x)
    qacc = lambda bq, qb: ('a', A_QA + (bq * 4 + qb) * 4)
    for c in range(9):
        gemm_chunk(p, g, 8, 8 * c, qacc, c,
                   lambda blk, grp, c=c: p2_reads(c, blk, grp),
                   (lambda blk, grp, c=c: p2_reads(c + 1, blk, grp)) if c < 8 else None,
                   [(('L', WQ_SLOT[c + 1]), ('Q', c + 1))] if c < 8 else [],
                   pre=xn_loads(c + 2) if c + 2 < 9 else [],
                   post=wq_dma(c + 5) if c + 5 < 9 else ())
    g.flush()
    stamp(4)
    n = 0
    for qb in range(4):
        for s in range(4):
            tb = V_S + (n % 4) * 8
            n += 1
            for e in range(8):
                p('v_accvgpr_read_b32 %s, %s' % (vr(tb + e), ar(A_QA + ((2 * s + e // 4) * 4 + qb) * 4 + e % 4)))
            for e in range(8):
                p('v_mul_f32 %s, %s, %s' % (vr(tb + e), sr(S_C), vr(tb + e)))
            for e in range(4):
                p('v_cvt_pk_bf16_f32 %s, %s, %s' % (vr(V_Q + (qb * 4 + s) * 4 + e), vr(tb + 2 * e), vr(tb + 2 * e + 1)))
    kv_dma_setup(p, V_OK, V_OV)
    attn_read_setup(p)
    attn_first(p)
    stamp(5)
    attn_main(p)
    stamp(6)
    attn_epilogue(p)
    if diag:
        p('s_waitcnt vmcnt(0)')
        stamp(7)
        p('s_mov_b32 %s, 0x%x' % (T(3), WS_T))
        make_srd(p, S_H, 100, T(3), 0x100000)
        p('s_lshl_b32 %s, s2, 2' % T(0))
        p('s_add_u32 %s, %s, %s' % (T(0), T(0), sr(S_W)))
        p('s_lshl_b32 %s, %s, 5' % (T(0), T(0)))
        p('v_mov_b32 v1, %s' % T(0))
        for k in range(8):
            p('v_mov_b32 v%d, %s' % (4 + k, sr(S_TS + 2 * k)))
        p('buffer_store_dwordx4 v[4:7], v1, %s, 0 offen' % sr(S_H, 4))
        p('buffer_store_dwordx4 v[8:11], v1, %s, 0 offen offset:16' % sr(S_H, 4))
    p.label('L_ka_end')
    p('s_endpgm')
    p.finalize()
    return p


KB_SLOT = 36864


def gen_kb(diag=False, nst=16):
    p = Prog()
    S_A, S_B, S_PT = 4, 8, 12
    S_W, S_M, S_OW, S_OB, S_CNT, S_NST, S_RB1 = 16, 17, 18, 19, 20, 21, 22
    T = lambda k: sr(24 + k)
    S_TS = 60
    V_L16, V_RA, V_OW, V_LANE = 2, 3, 7, 16
    t0, t1, t2, t3 = 'v17', 'v18', 'v19', 'v20'
    V_ACC = 24
    V_A = 96
    A_BF = 0

    def stamp(k):
        if diag:
            p('s_memtime %s' % sr(S_TS + 2 * k, 2))
            p('s_waitcnt lgkmcnt(0)')
    p('s_cmp_ge_u32 s2, 256')
    p('s_cbranch_scc1 L_kb_end')
    stamp(0)
    p('s_load_dwordx2 s[40:41], s[0:1], 32')
    p('s_load_dwordx2 s[42:43], s[0:1], 64')
    p('s_load_dwordx2 s[44:45], s[0:1], 88')
    L = vr(V_LANE)
    p('v_and_b32 %s, 63, v0' % L)
    p('v_lshrrev_b32 v1, 6, v0')
    p('v_readfirstlane_b32 %s, v1' % sr(S_W))
    p('s_and_b32 %s, s2, 3' % T(0))
    p('s_bfe_u32 %s, s2, 0x10002' % T(1))
    p('s_lshl_b32 %s, %s, 3' % (T(1), T(1)))
    p('s_lshr_b32 %s, s2, 5' % T(2))
    p('s_add_u32 %s, %s, %s' % (T(1), T(1), T(2)))
    p('s_bfe_u32 %s, s2, 0x20003' % T(2))
    p('v_lshlrev_b32 %s, 4, %s' % (vr(V_L16), L))
    for i in range(9):
        p('v_add_u32 %s, %d, %s' % (t0, 64 * i, L))
        p('v_mul_u32_u24 %s, 3641, %s' % (t1, t0))
        p('v_lshrrev_b32 %s, 16, %s' % (t1, t1))
        p('v_mul_u32_u24 %s, 18, %s' % (t2, t1))
        p('v_sub_u32 %s, %s, %s' % (t2, t0, t2))
        p('v_mul_u32_u24 %s, 1152, %s' % (t1, t1))
        p('v_lshl_add_u32 %s, %s, 4, %s' % (t1, t2, t1))
        p('v_subrev_u32 %s, %d, %s' % (vr(V_OW + i), (i % 4) * 1024, t1))
    p('v_lshrrev_b32 %s, 2, %s' % (t0, L))
    p('v_mul_u32_u24 %s, 288, %s' % (t1, t0))
    p('v_and_b32 %s, 3, %s' % (t2, L))
    p('v_lshl_add_u32 %s, %s, 3, %s' % (vr(V_RA), t2, t1))
    for k in range(1, 4):
        p('v_add_u32 %s, %d, %s' % (vr(V_RA + k), k * KB_SLOT, vr(V_RA)))
    p('s_mul_i32 %s, %s, 9216' % (sr(S_M), sr(S_W)))
    p('s_mul_i32 %s, %s, %d' % (sr(S_OW), sr(S_W), 32 * 1152))
    p('s_mov_b32 %s, 0' % sr(S_OB))
    p('s_and_b32 %s, %s, 1' % (T(3), T(0)))
    p('s_cmp_lt_u32 %s, 2' % T(0))
    p('s_cselect_b32 %s, 16, 18' % sr(S_NST))
    p('s_mov_b32 %s, %d' % (sr(S_RB1), 144 * 1024))
    p('s_mov_b32 %s, 0x%x' % (T(4), WS_H))
    p('s_cselect_b32 %s, %d, %s' % (sr(S_RB1), 128 * 1024, sr(S_RB1)))
    p('s_cselect_b32 %s, 0x%x, %s' % (T(4), WS_O, T(4)))
    p('s_waitcnt lgkmcnt(0)')
    p('s_cselect_b32 %s, s40, s42' % T(6))
    p('s_cselect_b32 %s, s41, s43' % T(7))
    p('s_mul_i32 %s, %s, %d' % (T(8), sr(S_NST), 128 * 1152))
    p('s_mul_i32 %s, %s, %s' % (T(9), T(8), T(3)))
    p('s_mul_i32 %s, %s, 288' % (T(10), T(2)))
    p('s_add_u32 %s, %s, %s' % (T(9), T(9), T(10)))
    p('s_sub_u32 %s, %s, %s' % (T(8), T(8), T(10)))
    make_srd(p, S_A, 24 + 6, T(9), T(8))
    p('s_lshl_b32 %s, %s, 2' % (T(8), T(1)))
    p('s_add_u32 %s, %s, %s' % (T(8), T(8), sr(S_W)))
    p('s_lshl_b32 %s, %s, 1' % (T(9), T(8)))
    p('s_mul_i32 %s, %s, %s' % (T(9), T(9), sr(S_RB1)))
    p('s_add_u32 %s, %s, %s' % (T(9), T(9), T(4)))
    p('s_lshl_b32 %s, %s, 12' % (T(10), sr(S_NST)))
    p('s_mul_i32 %s, %s, %s' % (T(11), T(10), T(3)))
    p('s_add_u32 %s, %s, %s' % (T(9), T(9), T(11)))
    p('s_add_u32 %s, %s, %s' % (T(10), T(10), sr(S_RB1)))
    make_srd(p, S_B, 44, T(9), T(10))
    p('s_lshl_b32 %s, %s, 2' % (T(9), T(1)))
    p('s_add_u32 %s, %s, %s' % (T(9), T(9), T(2)))
    p('s_lshl_b32 %s, %s, 2' % (T(9), T(9)))
    p('s_add_u32 %s, %s, %s' % (T(9), T(9), T(0)))
    p('s_lshl_b32 %s, %s, 2' % (T(9), T(9)))
    p('s_add_u32 %s, %s, %s' % (T(9), T(9), sr(S_W)))
    p('s_mul_i32 %s, %s, %d' % (T(9), T(9), 18 * 1024))
    p('s_add_u32 %s, %s, 0x%x' % (T(9), T(9), WS_P))
    make_srd(p, S_PT, 44, T(9), 18 * 1024)

    tg = lambda c, inloop: ((lambda it: ('W', c + 4 * it)) if inloop else ('W', c))

    def dma(c, inloop):
        out = []
        for i in range(9):
            if i % 4 == 0:
                out.append(Ins('s_add_u32 m0, %s, %d' % (sr(S_M), (c % 4) * KB_SLOT + (i // 4) * 4096)))
            out.append(Ins('buffer_load_dwordx4 %s, %s, %s offen offset:%d lds' % (
                vr(V_OW + i), sr(S_A, 4), sr(S_OW), (i % 4) * 1024), lds=(('P', c % 4), tg(c, inloop))))
        out.append(Ins('s_add_u32 %s, %s, %d' % (sr(S_OW), sr(S_OW), 128 * 1152)))
        return out

    def bloads(c):
        out = [Ins('s_add_u32 %s, %s, %s' % (T(0), sr(S_OB), sr(S_RB1)))]
        for rb in range(2):
            for ks in range(4):
                out.append(Ins('buffer_load_dwordx4 %s, %s, %s, %s offen offset:%d' % (
                    ar(A_BF + (c % 4) * 32 + (rb * 4 + ks) * 4, 4), vr(V_L16), sr(S_B, 4),
                    sr(S_OB) if rb == 0 else T(0), ks * 1024)))
        out.append(Ins('s_add_u32 %s, %s, 4096' % (sr(S_OB), sr(S_OB))))
        return out

    def reads(c, nb, inloop):
        return [Ins('ds_read_b64_tr_b16 %s, %s offset:%d' % (
            vr(V_A + (nb % 3) * 16 + ks * 4 + 2 * j, 2), vr(V_RA + c % 4), (32 * ks + 16 * j) * 288 + 32 * nb),
            lds=(('P', c % 4), tg(c, inloop))) for ks in range(4) for j in range(2)]

    for c in range(3):
        for x in dma(c, False) + bloads(c):
            p.add(x)
    for n in range(72):
        p('v_mov_b32 %s, 0' % vr(V_ACC + n))
    p.need((('P', 0), ('W', 0)))
    p('s_barrier')
    stamp(1)
    for nb in range(2):
        for x in reads(0, nb, False):
            p.add(x)
    p('s_mov_b32 %s, 0' % sr(S_CNT))
    p.wait_regs(ar(A_BF, 32), vr(V_A, 16))
    g = Gaps(p)

    def stage(c):
        g.side.extend(bloads(c + 3) + dma(c + 3, True))
        for nb in range(9):
            n2 = nb + 2
            Lr = reads(c, n2, True) if n2 < 9 else reads(c + 1, n2 - 9, True)
            for t in range(8):
                rb, ks = t // 4, t % 4
                a = vr(V_ACC + (nb * 2 + rb) * 4, 4)
                m = '%s %s, %s, %s, %s' % (MF, a, vr(V_A + (nb % 3) * 16 + ks * 4, 4),
                                           ar(A_BF + (c % 4) * 32 + (rb * 4 + ks) * 4, 4), a)
                sc = []
                if nb == 7:
                    ld = [] if t < 4 else [Lr[2 * (t - 4)], Lr[2 * (t - 4) + 1]]
                    if t == 2:
                        sc = [need_ins(('lgkm', 'all'), (('P', (c + 1) % 4), tg(c + 1, True)))]
                    if t == 3:
                        sc = [Ins('s_barrier')]
                else:
                    ld = [Lr[t], Lr[t + 1]] if t % 2 == 0 else []
                if t == 7:
                    w = [vr(V_A + ((nb + 1) % 3) * 16, 16)]
                    if nb == 8:
                        w.append(ar(A_BF + ((c + 1) % 4) * 32, 32))
                    sc = [wait_ins(*w)]
                g.gap(m, sc, ld)
        assert not g.side

    lp = p.loop_begin(4 if nst == 16 else 5, 'kb')
    p.label('L_kb')
    stage(0)
    stage(1)
    p('s_add_u32 %s, %s, 2' % (sr(S_CNT), sr(S_CNT)))
    p('s_cmp_ge_u32 %s, %s' % (sr(S_CNT), sr(S_NST)))
    p('s_cbranch_scc1 L_kb_done')
    if nst == 18:
        p.loop_mark_exit(lp)
    stage(2)
    stage(3)
    p('s_add_u32 %s, %s, 2' % (sr(S_CNT), sr(S_CNT)))
    p('s_cmp_lt_u32 %s, %s' % (sr(S_CNT), sr(S_NST)))
    p('s_cbranch_scc1 L_kb')
    p.loop_end()
    p.label('L_kb_done')
    p('s_nop 7')
    stamp(2)
    for n in range(18):
        if n % 4 == 0:
            p('s_mov_b32 %s, %d' % (T(n // 4), (n // 4) * 4096))
        p('buffer_store_dwordx4 %s, %s, %s, %s offen offset:%d' % (
            vr(V_ACC + n * 4, 4), vr(V_L16), sr(S_PT, 4), T(n // 4), (n % 4) * 1024))
    if diag:
        p('s_waitcnt vmcnt(0)')
        stamp(3)
        p('s_mov_b32 %s, 0x%x' % (T(3), WS_T + 0x100000))
        make_srd(p, S_B, 44, T(3), 0x100000)
        p('s_lshl_b32 %s, s2, 2' % T(0))
        p('s_add_u32 %s, %s, %s' % (T(0), T(0), sr(S_W)))
        p('s_lshl_b32 %s, %s, 5' % (T(0), T(0)))
        p('v_mov_b32 v1, %s' % T(0))
        for k in range(4):
            p('v_mov_b32 v%d, %s' % (4 + k, sr(S_TS + 2 * k)))
        p('buffer_store_dwordx4 v[4:7], v1, %s, 0 offen' % sr(S_B, 4))
    p.label('L_kb_end')
    p('s_endpgm')
    p.finalize()
    return p


def gen_kc():
    p = Prog()
    p('s_cmp_ge_u32 s2, 256')
    p('s_cbranch_scc1 L_kc_end')
    p('s_load_dwordx2 s[16:17], s[0:1], 0')
    p('s_load_dwordx2 s[18:19], s[0:1], 72')
    p('s_load_dwordx2 s[20:21], s[0:1], 88')
    p('v_and_b32 v1, 63, v0')
    p('v_lshrrev_b32 v2, 6, v0')
    p('v_readfirstlane_b32 s22, v2')
    p('s_lshr_b32 s23, s2, 2')
    p('s_and_b32 s24, s2, 3')
    p('s_mul_i32 s25, s23, %d' % (16 * 18 * 1024))
    p('s_mul_i32 s26, s24, %d' % (18 * 1024))
    p('s_add_u32 s25, s25, s26')
    p('s_mul_i32 s26, s22, 3072')
    p('s_add_u32 s25, s25, s26')
    p('s_add_u32 s25, s25, 0x%x' % WS_P)
    p('v_lshlrev_b32 v3, 4, v1')
    p('s_lshr_b32 s27, s23, 2')
    p('s_and_b32 s28, s23, 3')
    p('s_lshl_b32 s27, s27, 7')
    p('s_lshl_b32 s29, s24, 5')
    p('s_add_u32 s27, s27, s29')
    p('s_mul_i32 s27, s27, 1152')
    p('s_mul_i32 s28, s28, 288')
    p('s_add_u32 s27, s27, s28')
    p('v_and_b32 v4, 15, v1')
    p('v_mul_u32_u24 v4, 1152, v4')
    p('v_lshrrev_b32 v5, 4, v1')
    p('v_lshl_add_u32 v4, v5, 3, v4')
    for k in range(3):
        p('s_mul_i32 s30, s22, 3')
        p('s_add_u32 s30, s30, %d' % k)
        p('s_lshr_b32 s31, s30, 1')
        p('s_lshl_b32 s31, s31, 5')
        p('s_and_b32 s30, s30, 1')
        p('s_mul_i32 s30, s30, %d' % (16 * 1152))
        p('s_add_u32 s30, s30, s31')
        p('s_add_u32 s%d, s30, s27' % (32 + k))
    p('s_mov_b32 s36, 0x%x' % f2u(-LOG2E))
    p('s_waitcnt lgkmcnt(0)')
    make_srd(p, 4, 16, None, 2048 * 1152)
    make_srd(p, 8, 18, None, 2048 * 1152)
    make_srd(p, 12, 20, 's25', 13 * 18 * 1024 + 3072)
    for sp in range(4):
        p('s_mov_b32 s%d, %d' % (40 + sp, sp * 4 * 18 * 1024))
    for k in range(3):
        for sp in range(4):
            p('buffer_load_dwordx4 %s, v3, s[12:15], s%d offen offset:%d' % (vr(8 + (k * 4 + sp) * 4, 4), 40 + sp, k * 1024))
        p('buffer_load_dwordx2 %s, v4, s[4:7], s%d offen' % (vr(56 + 2 * k, 2), 32 + k))
    for k in range(3):
        b = 8 + k * 16
        for r in range(4):
            p('v_add_f32 v%d, v%d, v%d' % (b + r, b + r, b + 4 + r))
            p('v_add_f32 v%d, v%d, v%d' % (b + 8 + r, b + 8 + r, b + 12 + r))
            p('v_mul_f32 v%d, s36, v%d' % (b + 4 + r, b + 8 + r))
            p('v_exp_f32 v%d, v%d' % (b + 4 + r, b + 4 + r))
            p('v_mul_f32 v%d, v%d, v%d' % (b + r, b + r, b + 8 + r))
            p('v_add_f32 v%d, 1.0, v%d' % (b + 4 + r, b + 4 + r))
            p('v_rcp_f32 v%d, v%d' % (b + 4 + r, b + 4 + r))
            if r % 2 == 0:
                p('v_lshlrev_b32 v%d, 16, v%d' % (b + 12 + r, 56 + 2 * k + r // 2))
            else:
                p('v_and_b32 v%d, 0xffff0000, v%d' % (b + 12 + r, 56 + 2 * k + r // 2))
            p('v_fma_f32 v%d, v%d, v%d, v%d' % (b + r, b + r, b + 4 + r, b + 12 + r))
        p('v_cvt_pk_bf16_f32 v%d, v%d, v%d' % (b + 8, b, b + 1))
        p('v_cvt_pk_bf16_f32 v%d, v%d, v%d' % (b + 9, b + 2, b + 3))
        p('buffer_store_dwordx2 %s, v4, s[8:11], s%d offen' % (vr(b + 8, 2), 32 + k))
    p.label('L_kc_end')
    p('s_endpgm')
    p.finalize()
    return p


def build(diag=False):
    ln, ka, kb, kc = gen_ln(), gen_ka(diag), gen_kb(diag, 16), gen_kc()
    kb18 = gen_kb(diag, 18)
    assert kb.text() == kb18.text(), 'K_B waits differ between trip counts'
    hdr = open('cdna_kernels/%s.s.ref' % NAME).read().split('; Override launch')[0]
    out = hdr
    out += '; @launch kernel=ln_kernel grid=(256,1,1) block=(256,1,1) lds=0\n'
    out += '; @launch kernel=ka_kernel grid=(256,1,1) block=(256,1,1) lds=163840\n'
    out += '; @launch kernel=kb_kernel grid=(256,1,1) block=(256,1,1) lds=147456\n'
    out += '; @launch kernel=kc_kernel grid=(256,1,1) block=(384,1,1) lds=0\n'
    out += '.amdgcn_target "amdgcn-amd-amdhsa--gfx950"\n.text\n'
    out += kernel_text('ln_kernel', ln, 0, 0) + kernel_text('ka_kernel', ka, 0, 0)
    out += kernel_text('kb_kernel', kb, 0, 0) + kernel_text('kc_kernel', kc, 0, 0)
    out += '.section .rodata,"a"\n'
    for n, nv, acc in (('ln_kernel', 56, 56), ('ka_kernel', 512, 256), ('kb_kernel', 272, 144), ('kc_kernel', 64, 64)):
        out += '.p2align 6\n' + descriptor(n, nv, acc)
    return out


if __name__ == '__main__':
    diag = 'diag' in sys.argv[2:]
    open(sys.argv[1], 'w').write(build(diag))
```

```python
import re

_REG_RE = re.compile(r'^(-|\|)?(abs\()?([vas])(\d+|\[(\d+):(\d+)\])\)?\|?$')
TRANS = ('v_exp_f32', 'v_log_f32', 'v_rcp_f32', 'v_rsq_f32', 'v_sqrt_f32', 'v_sin_f32', 'v_cos_f32')


def regs_of(tok):
    tok = tok.strip()
    if tok in ('vcc', 'exec', 'm0', 'scc'):
        return [tok]
    if tok in ('vcc_lo', 'vcc_hi'):
        return ['vcc']
    if tok in ('exec_lo', 'exec_hi'):
        return ['exec']
    m = _REG_RE.match(tok)
    if not m:
        return []
    c = m.group(3)
    if m.group(5) is not None:
        return [c + str(i) for i in range(int(m.group(5)), int(m.group(6)) + 1)]
    return [c + m.group(4)]


def split_ops(s):
    out, depth, cur = [], 0, ''
    for ch in s:
        if ch in '[(':
            depth += 1
        if ch in '])':
            depth -= 1
        if ch == ',' and depth == 0:
            out.append(cur.strip())
            cur = ''
        else:
            cur += ch
    if cur.strip():
        out.append(cur.strip())
    return out


class Ins:
    def __init__(self, text, lds=None, comment=None):
        self.text = text
        self.comment = comment
        self.lds = lds
        self.pre_vm = None
        self.pre_lgkm = None
        self.pre_nop = 0
        self.ready = 0
        self.on_emit = None
        self.need = None
        parts = text.split(None, 1)
        self.op = op = parts[0]
        rest = parts[1] if len(parts) > 1 else ''
        ops = split_ops(rest)
        mods = ''
        if ops:
            sp = ops[-1].split(None, 1)
            if len(sp) > 1:
                ops[-1], mods = sp[0], sp[1]
        self.ops, self.mods = ops, mods
        R = [regs_of(o) for o in ops]
        flat = lambda L: [x for l in L for x in l]
        self.rd, self.wr = [], []
        self.trans = False
        self.dpp = False
        self.passes = 0
        if op.endswith(':') or op.startswith('.') or op.startswith(';'):
            self.kind = 'label'
        elif op.startswith('v_mfma'):
            self.kind = 'mfma'
            self.wr = R[0]
            self.rd = flat(R[1:])
            self.a, self.b, self.c = R[1], R[2], R[3]
            self.passes = 8 if '32x32x16' in op else 4
        elif op.startswith('ds_read'):
            self.kind = 'dsr'
            self.wr, self.rd = R[0], flat(R[1:])
        elif op.startswith('ds_write'):
            self.kind = 'dsw'
            self.rd = flat(R)
        elif op.startswith('ds_'):
            self.kind = 'dsr'
            self.wr, self.rd = R[0], flat(R[1:])
        elif op.startswith('buffer_load') and re.search(r'\blds\b', mods):
            self.kind = 'dma'
            self.rd = flat(R) + ['m0']
        elif op.startswith('buffer_load') or op.startswith('global_load'):
            self.kind = 'vld'
            self.wr, self.rd = R[0], flat(R[1:])
        elif op.startswith('buffer_store') or op.startswith('global_store'):
            self.kind = 'vst'
            self.rd = flat(R)
            self.data = R[0] if op.startswith('buffer') else R[1]
        elif op.startswith('buffer_atomic'):
            self.kind = 'vld' if 'sc0' in mods else 'vst'
            self.rd = flat(R)
            self.wr = R[0] if 'sc0' in mods else []
            self.data = R[0]
        elif op in ('buffer_wbl2', 'buffer_inv'):
            self.kind = 'vst'
            self.data = []
        elif op in ('s_waitcnt', 's_barrier', 's_nop', 's_setprio', 's_sleep', 's_endpgm', 's_branch') \
                or op.startswith('s_cbranch'):
            self.kind = 'sopp'
            if op.startswith('s_cbranch_scc'):
                self.rd = ['scc']
        elif op.startswith('s_load') or op in ('s_memtime', 's_memrealtime'):
            self.kind = 'smem'
            self.wr, self.rd = R[0], flat(R[1:])
        elif op.startswith('s_cmp') or op.startswith('s_bitcmp'):
            self.kind = 'salu'
            self.wr, self.rd = ['scc'], flat(R)
        elif op.startswith('s_'):
            self.kind = 'salu'
            self.wr, self.rd = R[0] + ['scc'], flat(R[1:])
            if 'saveexec' in op:
                self.wr.append('exec')
        elif op.startswith('v_'):
            self.kind = 'valu'
            self.wr, self.rd = list(R[0]), flat(R[1:])
            base = op.replace('_e32', '').replace('_e64', '')
            if base in TRANS:
                self.trans = True
            if 'permlane' in op:
                self.wr = flat(R)
                self.rd = flat(R)
            if base.startswith('v_fmac') or base.startswith('v_dot2c') or base.startswith('v_writelane'):
                self.rd += R[0]
            if '_co_' in op or op.startswith('v_div_scale'):
                self.wr += R[1]
                self.rd = flat(R[2:])
            if op.startswith('v_cndmask') and len(ops) == 3:
                self.rd.append('vcc')
            if op.startswith('v_cmpx'):
                self.wr.append('exec')
            if '_dpp' in op:
                self.dpp = True
                self.rd += R[0]
        else:
            raise ValueError('unknown op ' + text)

    def states(self):
        if self.kind == 'label':
            return 0
        if self.op == 's_nop':
            return int(self.ops[0], 0) + 1
        return 1


class Loop:
    def __init__(self, count, body, name):
        self.count, self.body, self.name = count, body, name
        self.exit_at = None


class Prog:
    def __init__(self):
        self.items = []
        self.stack = [self.items]
        self.nlabel = 0

    def __call__(self, text, lds=None, comment=None):
        i = Ins(text, lds, comment)
        self.stack[-1].append(i)
        return i

    def add(self, i):
        self.stack[-1].append(i)
        return i

    def raw(self, text):
        i = Ins('; raw')
        i.rawtext = text
        self.stack[-1].append(i)
        return i

    def label(self, name):
        return self(name + ':')

    def need(self, *tags):
        i = Ins('; need')
        i.need = list(tags)
        self.stack[-1].append(i)
        return i

    def wait_regs(self, *operands):
        i = wait_ins(*operands)
        self.stack[-1].append(i)
        return i

    def loop_begin(self, count, name):
        body = []
        lp = Loop(count, body, name)
        self.stack[-1].append(lp)
        self.stack.append(body)
        return lp

    def loop_mark_exit(self, lp):
        lp.exit_at = len(lp.body)

    def loop_end(self):
        self.stack.pop()

    def trace(self, items=None, it=0, cap=None):
        for x in (self.items if items is None else items):
            if isinstance(x, Loop):
                n = x.count if cap is None else min(x.count, cap)
                for k in range(n):
                    kk = k if k < n - 1 else x.count - 1
                    body = x.body if (k < n - 1 or x.exit_at is None) else x.body[:x.exit_at]
                    yield from self.trace(body, kk, cap)
            else:
                yield x, it

    def flat(self, items=None):
        for x in (self.items if items is None else items):
            if isinstance(x, Loop):
                yield from self.flat(x.body)
            else:
                yield x

    def auto_waits(self, verify=False):
        changes = 0
        vm = []
        lg = []
        regions = {}
        owner = {}
        val = lambda c, it: c(it) if callable(c) else c

        def pages(sl):
            return range(sl[0] // 1024, (sl[0] + sl[1] + 1023) // 1024)

        def retire_vm(n):
            while len(vm) > n:
                e = vm.pop(0)
                if e['tag'] is not None:
                    regions[e['tag']]['pend'] -= 1

        def retire_lg(n):
            while len(lg) > n:
                e = lg.pop(0)
                if e['tag'] is not None:
                    regions[e['tag']]['rpend'] -= 1

        for ins, it in self.trace():
            touched = set(ins.rd) | set(ins.wr)
            nvm, nlg = None, None
            needs = None
            if ins.need is not None:
                needs = [(val(sl, it), val(c, it)) for (sl, c) in ins.need]
            for k, e in enumerate(vm):
                hit = bool(e['regs'] & touched)
                if needs is not None and (e['tag'] in needs or ('all', 'all') in needs):
                    hit = True
                if hit:
                    nvm = len(vm) - 1 - k
            anysmem = any(e['smem'] for e in lg)
            for k, e in enumerate(lg):
                hit = bool(e['regs'] & touched)
                if needs is not None and ('lgkm', 'all') in needs:
                    hit = True
                if hit:
                    nlg = 0 if anysmem else len(lg) - 1 - k
            if nvm is not None:
                nvm = min(nvm, 63)
                if ins.pre_vm is None or ins.pre_vm > nvm:
                    assert not verify, 'vm wait missing at ' + ins.text
                    ins.pre_vm = nvm
                    changes += 1
            if nlg is not None:
                nlg = min(nlg, 15)
                if ins.pre_lgkm is None or ins.pre_lgkm > nlg:
                    assert not verify, 'lgkm wait missing at ' + ins.text
                    ins.pre_lgkm = nlg
                    changes += 1
            if ins.pre_vm is not None:
                retire_vm(ins.pre_vm)
            if ins.pre_lgkm is not None:
                retire_lg(ins.pre_lgkm)
            if ins.op == 's_waitcnt':
                m = re.search(r'vmcnt\((\d+)\)', ins.text)
                if m:
                    retire_vm(int(m.group(1)))
                m = re.search(r'lgkmcnt\((\d+)\)', ins.text)
                if m:
                    retire_lg(int(m.group(1)))
            if ins.op == 's_barrier':
                for s in regions.values():
                    if s['pend'] == 0:
                        s['vis'] = True
                    if s['rpend'] == 0:
                        s['rbar'] = True
            if ins.kind in ('dma', 'vld', 'vst'):
                tag = None
                if ins.kind == 'dma' and ins.lds is not None:
                    tag = (val(ins.lds[0], it), val(ins.lds[1], it))
                    if tag not in regions:
                        regions[tag] = dict(pend=0, vis=False, rpend=0, rbar=True)
                        for pg in pages(tag[0]):
                            o = owner.get(pg)
                            if o is not None and verify:
                                s = regions[o]
                                assert s['rbar'] and s['rpend'] == 0 and s['pend'] == 0 and s['vis'], \
                                    'LDS WAR/WAW: DMA %s over %s %s it=%d: %s' % (tag, o, s, it, ins.text)
                            owner[pg] = tag
                    s = regions[tag]
                    s['pend'] += 1
                    s['vis'] = False
                if ins.kind == 'vst' and ins.lds is not None:
                    if ins.lds[0] == 'flag':
                        s = regions.get(ins.lds[1])
                        if verify:
                            assert s is not None and s['pend'] == 0 and s['vis'], 'flag before data visible: %s %s' % (ins.text, s)
                    else:
                        tag = ins.lds
                        s = regions.setdefault(tag, dict(pend=0, vis=False, rpend=0, rbar=True))
                        s['pend'] += 1
                        s['vis'] = False
                vm.append(dict(regs=set(ins.wr), tag=tag))
            if ins.kind in ('dsr', 'dsw', 'smem'):
                tag = None
                if ins.kind == 'dsr' and ins.lds is not None:
                    tag = (val(ins.lds[0], it), val(ins.lds[1], it))
                    s = regions.get(tag)
                    if verify:
                        assert s is not None and s['vis'] and all(owner.get(pg) == tag for pg in pages(tag[0])), \
                            'LDS RAW: read %s state %s it=%d: %s' % (tag, s, it, ins.text)
                    if s is None:
                        tag = None
                    else:
                        s['rpend'] += 1
                        s['rbar'] = False
                lg.append(dict(regs=set(ins.wr), tag=tag, smem=(ins.kind == 'smem')))
        return changes

    def fix_hazards(self, verbose=False):
        changes = 0
        hist = []
        pos = 0
        for ins, it in self.trace(cap=3):
            extra = (1 if (ins.pre_vm is not None or ins.pre_lgkm is not None) else 0)
            pos += extra
            if ins.kind == 'label':
                continue
            need = 0
            rd, wr = set(ins.rd), set(ins.wr)
            for (p, ppos) in reversed(hist):
                dist = pos + ins.pre_nop - ppos - 1 + 0
                if pos - ppos > 24:
                    break
                req = 0
                pw = set(p.wr)
                if p.kind == 'valu':
                    vw = {r for r in pw if r[0] in 'va' and r != 'vcc'}
                    sw = {r for r in pw if r[0] == 's' or r in ('vcc', 'exec')}
                    if ins.kind == 'mfma' and vw & rd:
                        req = max(req, 2)
                    if ins.kind == 'valu' and 'permlane' in ins.op and vw & rd:
                        req = max(req, 2)
                    if ins.kind == 'valu' and ins.dpp and vw & rd:
                        req = max(req, 2)
                    if ins.kind == 'valu' and ('readlane' in ins.op or 'readfirstlane' in ins.op) and vw & rd:
                        req = max(req, 1)
                    if p.trans and ins.kind == 'valu' and not ins.trans and vw & rd:
                        req = max(req, 1)
                    if p.trans and ins.kind in ('vst', 'dsw', 'vld', 'dsr', 'dma') and vw & rd:
                        req = max(req, 1)
                    if 'sdwa' in p.op and ins.kind == 'valu' and vw & (rd | wr):
                        req = max(req, 1)
                    if ins.kind == 'valu' and sw & rd:
                        req = max(req, 4 if ('readlane' in ins.op or 'writelane' in ins.op or 'div_fmas' in ins.op) else 2)
                    if ins.kind in ('vld', 'vst', 'dma') and sw & rd:
                        req = max(req, 5)
                    if ins.kind in ('salu', 'smem') and sw & rd:
                        req = max(req, 4)
                    if 'exec' in sw and ins.kind in ('mfma',):
                        req = max(req, 4)
                    if 'exec' in sw and ins.kind == 'valu' and (ins.dpp or 'permlane' in ins.op or 'readlane' in ins.op or 'readfirstlane' in ins.op):
                        req = max(req, 5)
                if p.kind == 'mfma':
                    t = {4: (6, 8, 3), 8: (10, 12, 7)}[p.passes]
                    if ins.kind == 'mfma':
                        if pw & set(ins.c):
                            if not (ins.c == p.wr and ins.passes == p.passes):
                                req = max(req, t[0])
                        if pw & (set(ins.a) | set(ins.b)):
                            req = max(req, t[1])
                        if pw & wr and not (pw & set(ins.c)):
                            req = max(req, t[0])
                    elif ins.kind in ('valu', 'vld', 'vst', 'dsr', 'dsw', 'dma'):
                        if pw & (rd | wr):
                            req = max(req, t[1])
                        if ins.kind == 'valu' and set(p.c) & wr:
                            req = max(req, t[2])
                if p.kind == 'salu' and 'm0' in pw and ins.kind == 'dma':
                    req = max(req, 1)
                if p.kind == 'vst' and ('x4' in p.op or 'x3' in p.op) and set(p.data) & wr:
                    req = max(req, 2 if ins.kind == 'valu' else 1)
                if req > dist:
                    need = max(need, req - dist)
            if need > 0:
                if verbose:
                    print('hazard pad %d before: %s' % (need, ins.text))
                ins.pre_nop += need
                changes += 1
            pos += ins.pre_nop
            hist.append((ins, pos))
            pos += ins.states()
            if len(hist) > 40:
                hist.pop(0)
        return changes

    def finalize(self, verbose=False, check=True):
        for _ in range(10):
            if self.auto_waits() == 0:
                break
        if check:
            self.auto_waits(verify=True)
        for _ in range(10):
            if self.fix_hazards(verbose) == 0:
                break

    def text(self):
        out = []
        for ins in self.flat():
            w = []
            if ins.pre_vm is not None:
                w.append('vmcnt(%d)' % ins.pre_vm)
            if ins.pre_lgkm is not None:
                w.append('lgkmcnt(%d)' % ins.pre_lgkm)
            if w:
                out.append(' s_waitcnt ' + ' '.join(w))
            n = ins.pre_nop
            while n > 0:
                k = min(n, 16)
                out.append(' s_nop %d' % (k - 1))
                n -= k
            if ins.text.startswith('; need'):
                continue
            if ins.text.startswith('; raw'):
                out.append(ins.rawtext)
                continue
            if ins.kind == 'label':
                out.append(ins.text)
            else:
                out.append(' ' + ins.text + (('    ; ' + ins.comment) if ins.comment else ''))
        return '\n'.join(out) + '\n'

    def stats(self, items=None):
        from collections import Counter
        c = Counter()
        for ins in self.flat(items):
            c[ins.kind] += 1
            if ins.pre_vm is not None or ins.pre_lgkm is not None:
                c['wait'] += 1
            if ins.pre_nop:
                c['nop'] += 1
        return dict(c)


def wait_ins(*operands):
    i = Ins('; need')
    i.rd = [r for o in operands for r in regs_of(o)]
    return i


def need_ins(*tags):
    i = Ins('; need')
    i.need = list(tags)
    return i


def vr(base, n=1):
    return 'v%d' % base if n == 1 else 'v[%d:%d]' % (base, base + n - 1)


def ar(base, n=1):
    return 'a%d' % base if n == 1 else 'a[%d:%d]' % (base, base + n - 1)


def sr(base, n=1):
    return 's%d' % base if n == 1 else 's[%d:%d]' % (base, base + n - 1)


def kernel_text(name, prog, vgpr, accum, sgpr=102):
    return ('.globl %s\n.p2align 8\n.type %s,@function\n%s:\n' % (name, name, name)) + prog.text()


def descriptor(name, vgpr, accum, sgpr=102):
    return ('.amdhsa_kernel %s\n'
            '  .amdhsa_next_free_vgpr %d\n'
            '  .amdhsa_next_free_sgpr %d\n'
            '  .amdhsa_accum_offset %d\n'
            '  .amdhsa_group_segment_fixed_size 0\n'
            '  .amdhsa_kernarg_size 96\n'
            '  .amdhsa_user_sgpr_count 2\n'
            '  .amdhsa_user_sgpr_kernarg_segment_ptr 1\n'
            '  .amdhsa_system_sgpr_workgroup_id_x 1\n'
            '.end_amdhsa_kernel\n') % (name, vgpr, sgpr, accum)
```

```python
import sys, struct
from collections import deque
from dsl import *

OPT = {}
NAME = 'recurrent_scan__mha_block_cached__glu_gated_swiglu__prompt'
WS_XN = 0
WS_F = 3 << 20
WS_O = 4 << 20
WS_H = 24 << 20
WS_P = 48 << 20
PG = 64 * 16 * 9216
WS_W = 96 << 20
WS_T = 128 << 20
MF = 'v_mfma_f32_16x16x32_bf16'
LOG2E = 1.4426950408889634


def f2u(x):
    return struct.unpack('<I', struct.pack('<f', x))[0]


def srd_ins(srd, ptr, off, size):
    o = []
    if off is None:
        o.append(Ins('s_mov_b32 %s, %s' % (sr(srd), sr(ptr))))
        o.append(Ins('s_mov_b32 %s, %s' % (sr(srd + 1), sr(ptr + 1))))
    else:
        o.append(Ins('s_add_u32 %s, %s, %s' % (sr(srd), sr(ptr), off)))
        o.append(Ins('s_addc_u32 %s, %s, 0' % (sr(srd + 1), sr(ptr + 1))))
    o.append(Ins('s_mov_b32 %s, %s' % (sr(srd + 2), size if isinstance(size, str) else '0x%x' % size)))
    o.append(Ins('s_mov_b32 %s, 0x00020000' % sr(srd + 3)))
    return o


def make_srd(p, srd, ptr, off, size):
    for x in srd_ins(srd, ptr, off, size):
        p.add(x)


def cost(ins):
    if ins.kind == 'valu':
        return 2 if ins.trans else 1
    if ins.kind in ('dsr', 'dsw'):
        return 1
    if ins.kind in ('dma', 'vld', 'vst'):
        return 2
    return 0


class Gaps:
    def __init__(self, p):
        self.p = p
        self.hi = deque()
        self.lo = deque()
        self.n = 0
        self.over = 0
        self.waste = 0
        self.drop = ()
        self.vm_next = 0
        self.st = deque()
        self.st_max = 2
        self.vm_gap = 1

    def emit(self, x):
        if self.drop and x.kind in self.drop:
            return
        self.p.add(x)
        if x.on_emit:
            x.on_emit()

    def gap(self, mfma, sc=(), ld=(), va=(), cap=2):
        if mfma is not None:
            self.p.add(mfma if isinstance(mfma, Ins) else Ins(mfma))
        sc, ld, va = list(sc), list(ld), list(va)
        used = sum(cost(x) for x in ld + va)
        for q in (self.st, self.hi, self.lo):
            pulled = False
            pva = False
            while q:
                x = q[0]
                if x.ready > self.n:
                    break
                c = cost(x)
                if q is self.lo and x.kind == 'vst' and len(self.st) < self.st_max:
                    x.ready = self.n + 1
                    self.st.append(q.popleft())
                    continue
                if c == 0:
                    if sc or pulled:
                        break
                    sc.append(q.popleft())
                    if 'm0' in x.wr:
                        break
                    continue
                if used + c > cap:
                    break
                if x.kind != 'valu':
                    if pva:
                        break
                    if c == 2:
                        if self.n < self.vm_next:
                            break
                        w = 3 if x.kind == 'vst' else (4 if 'buffer_load_dword ' in x.text and 'sc1' not in x.text else 1)
                        self.vm_next = self.n + self.vm_gap * w
                    ld.append(q.popleft())
                else:
                    va.append(q.popleft())
                    pva = True
                used += c
                pulled = True
        for x in sc + ([Ins(mfma)] if isinstance(mfma, str) else []):
            self.check(x)
        self.over += max(0, used - 2)
        if used < 2 and (self.hi or self.lo):
            self.waste += 2 - used
        for x in sc + ld + va:
            self.emit(x)
        self.n += 1

    def check(self, x):
        regs = set(x.rd) if (x.text.startswith('; need') or x.kind == 'mfma') else set()
        tags = [t for t in (x.need or []) if not callable(t[1])]
        for q in (self.st, self.hi, self.lo):
            for y in q:
                if y.kind in ('vld', 'dsr') and set(y.wr) & regs and not getattr(y, 'later', False):
                    raise AssertionError('consumer %s before queued load %s' % (x.text, y.text))
                if y.lds is not None and y.lds in tags:
                    raise AssertionError('need %s before queued %s' % (tags, y.text))

    def flush(self, q=None):
        for qq in ((self.st, self.hi, self.lo) if q is None else (q,)):
            while qq:
                x = qq.popleft()
                self.over += max(1, cost(x))
                self.emit(x)


def rg(t, n=4):
    return (vr if t[0] == 'v' else ar)(t[1], n)


def prefetch_w(p, ptr, srd, soff, rows, stride, lines, rounds, vt, vd):
    t = lambda k: vr(vt + k)
    make_srd(p, srd, ptr, soff, (rows - 1) * stride + lines * 128)
    return t


def gen_ln():
    p = Prog()
    p('s_cmp_ge_u32 s2, 256')
    p('s_cbranch_scc1 L_ln_end')
    p('s_load_dwordx2 s[12:13], s[0:1], 0')
    p('s_load_dwordx2 s[14:15], s[0:1], 88')
    p('s_load_dwordx4 s[32:35], s[0:1], 48')
    p('v_lshrrev_b32 v1, 5, v0')
    p('s_lshl_b32 s3, s2, 3')
    p('v_add_u32 v1, s3, v1')
    p('v_and_b32 v2, 31, v0')
    p('v_lshrrev_b32 v3, 2, v2')
    p('v_and_b32 v4, 3, v2')
    p('v_mul_u32_u24 v5, 1152, v1')
    p('v_lshl_add_u32 v5, v3, 6, v5')
    p('v_lshl_add_u32 v5, v4, 3, v5')
    p('v_cmp_gt_u32 vcc, 8, v2')
    p('s_mov_b64 s[16:17], vcc')
    for r in range(16, 20):
        p('v_mov_b32 v%d, 0' % r)
    p('s_waitcnt lgkmcnt(0)')
    make_srd(p, 4, 12, None, 2048 * 1152)
    for it in range(2):
        p('buffer_load_dwordx2 v[%d:%d], v5, s[4:7], 0 offen offset:%d' % (8 + 4 * it, 9 + 4 * it, it * 512))
        p('buffer_load_dwordx2 v[%d:%d], v5, s[4:7], 0 offen offset:%d' % (10 + 4 * it, 11 + 4 * it, it * 512 + 32))
    p('s_mov_b64 exec, s[16:17]')
    p('buffer_load_dwordx2 v[16:17], v5, s[4:7], 0 offen offset:1024')
    p('buffer_load_dwordx2 v[18:19], v5, s[4:7], 0 offen offset:1056')
    p('s_mov_b64 exec, -1')
    R0 = OPT.get('pf0', 6)
    if R0:
        p('s_lshr_b32 s20, s2, 3')
        p('s_mul_i32 s20, s20, %d' % (R0 * 9216))
        p('s_and_b32 s21, s2, 3')
        p('s_mul_i32 s21, s21, 2304')
        p('s_add_u32 s20, s20, s21')
        make_srd(p, 36, 32, 's20', (R0 - 1) * 9216 + 2304)
        make_srd(p, 40, 34, 's20', (R0 - 1) * 9216 + 2304)
        p('v_mul_u32_u24 v56, 3641, v0')
        p('v_lshrrev_b32 v56, 16, v56')
        p('v_mul_u32_u24 v57, 18, v56')
        p('v_sub_u32 v57, v0, v57')
        p('v_mul_u32_u24 v56, 9216, v56')
        p('v_lshl_add_u32 v56, v57, 7, v56')
        p('buffer_load_dword v58, v56, s[36:39], 0 offen')
        p('buffer_load_dword v59, v56, s[40:43], 0 offen')
    make_srd(p, 8, 14, None, 2048 * 1152)
    p('v_lshrrev_b32 v6, 4, v1')
    p('v_mul_u32_u24 v6, 18, v6')
    p('v_add_u32 v6, v6, v3')
    p('v_lshlrev_b32 v6, 10, v6')
    p('v_lshl_add_u32 v6, v4, 8, v6')
    p('v_and_b32 v7, 15, v1')
    p('v_lshl_add_u32 v6, v7, 4, v6')
    p('s_mov_b32 s20, 0x%x' % WS_F)
    make_srd(p, 24, 14, 's20', 4 * 32768)
    p('s_lshl_b32 s21, s2, 7')
    p('v_lshlrev_b32 v50, 15, v0')
    p('v_mov_b32 v52, 0')
    p('buffer_store_dword v52, v50, s[24:27], s21 offen')
    for d in range(12):
        p('v_lshlrev_b32 v%d, 16, v%d' % (20 + 2 * d, 8 + d))
        p('v_and_b32 v%d, 0xffff0000, v%d' % (21 + 2 * d, 8 + d))

    def reduce32(x, t):
        for k in (8, 4, 2, 1):
            p('v_add_f32_dpp %s, %s, %s row_ror:%d row_mask:0xf bank_mask:0xf' % (x, x, x, k))
        p('v_mov_b32 %s, %s' % (t, x))
        p('v_permlane16_swap_b32 %s, %s' % (x, t))
        p('v_add_f32 %s, %s, %s' % (x, x, t))
    p('v_add_f32 v44, v20, v21')
    p('v_add_f32 v45, v22, v23')
    for e in range(4, 24, 2):
        p('v_add_f32 v44, v44, v%d' % (20 + e))
        p('v_add_f32 v45, v45, v%d' % (21 + e))
    p('v_add_f32 v44, v44, v45')
    reduce32('v44', 'v45')
    p('v_mul_f32 v44, 0x%x, v44' % f2u(1.0 / 576))
    p('v_mov_b32 v46, 0')
    p('v_mov_b32 v47, 0')
    for e in range(16):
        p('v_sub_f32 v48, v%d, v44' % (20 + e))
        p('v_fmac_f32 v%d, v48, v48' % (46 + e % 2))
    p('s_mov_b64 exec, s[16:17]')
    for e in range(16, 24):
        p('v_sub_f32 v48, v%d, v44' % (20 + e))
        p('v_fmac_f32 v%d, v48, v48' % (46 + e % 2))
    p('s_mov_b64 exec, -1')
    p('v_add_f32 v46, v46, v47')
    reduce32('v46', 'v45')
    p('v_mul_f32 v46, 0x%x, v46' % f2u(1.0 / 576))

    def rnd(x):
        p('v_cvt_pk_bf16_f32 %s, %s, %s' % (x, x, x))
        p('v_lshlrev_b32 %s, 16, %s' % (x, x))
    rnd('v44')
    rnd('v46')
    p('v_add_f32 v46, 0x%x, v46' % f2u(1e-5))
    rnd('v46')
    p('v_sqrt_f32 v46, v46')
    rnd('v46')
    p('v_rcp_f32 v46, v46')
    for d in range(12):
        a, b = 20 + 2 * d, 21 + 2 * d
        p('v_sub_f32 v%d, v%d, v44' % (a, a))
        p('v_sub_f32 v%d, v%d, v44' % (b, b))
        p('v_cvt_pk_bf16_f32 v%d, v%d, v%d' % (8 + d, a, b))
        p('v_lshlrev_b32 v%d, 16, v%d' % (a, 8 + d))
        p('v_and_b32 v%d, 0xffff0000, v%d' % (b, 8 + d))
        p('v_mul_f32 v%d, v%d, v46' % (a, a))
        p('v_mul_f32 v%d, v%d, v46' % (b, b))
        p('v_cvt_pk_bf16_f32 v%d, v%d, v%d' % (8 + d, a, b))
    p('s_mov_b32 s18, 8192')
    p('s_mov_b32 s19, 16384')
    p('buffer_store_dwordx4 v[8:11], v6, s[8:11], 0 offen')
    p('buffer_store_dwordx4 v[12:15], v6, s[8:11], s18 offen')
    p('s_mov_b64 exec, s[16:17]')
    p('buffer_store_dwordx4 v[16:19], v6, s[8:11], s19 offen')
    p.label('L_ln_end')
    p('s_endpgm')
    p.finalize()
    return p


S_K, S_V, S_XN, S_WS, S_WQ, S_H, S_O, S_FL, S_A1, S_A2, S_A3, S_A4 = 4, 8, 12, 16, 20, 24, 28, 32, 36, 40, 44, 48
S_DW2, S_DWO, S_DH, S_DO, S_DP, S_DR, S_DX, S_DOUT = 12, 16, 20, 24, 36, 40, 44, 48
(S_W, S_MK, S_MV, S_OFFK, S_OFFV, S_CNT, S_HD, S_QT, S_M1, S_OFFW, S_OFFQ, S_C, S_NL, S_FWG, S_FGR, S_FT,
 S_RO, S_SP, S_TILE) = range(52, 71)
S_HS = 71
S_T0 = 79
S_DG = 90
P_X, P_WO, P_W2, P_OUT, P_WS = 92, 94, 96, 98, 100
T = lambda k: sr(S_T0 + k)

V_L16, V_LANE = 2, 3
V_A1 = 4
V_OW = 8
V_AQ = 8
V_OQ = 20
V_OK, V_OV = 22, 26
V_SW = 28
V_T = 34
V_KA, V_VA, V_L, V_E = 4, 8, 16, 28
V_NM, V_S, V_P, V_Q = 40, 56, 120, 184
V_FST, V_ONE, V_FOFF, V_FV = 252, 253, 254, 255
A_O, A_KF, A_VF = 0, 128, 192
A_A, A_B = 128, 160
X0 = 72
DK, DV = 4, 2
L = vr(V_LANE)
t0, t1, t2, t3 = (vr(V_T + i) for i in range(4))


def LS(n):
    return (n * 16384, 16384)


def PS(c):
    return ((c % 4) * 36864, 36864)


def Sreg(kb, qb):
    return V_S + (kb * 4 + qb) * 4


def Preg(u, qb, ks):
    return V_P + (u & 1) * 32 + qb * 8 + ks * 4


def ktag(u, inloop):
    return (lambda it: ('K', u + 4 * it)) if inloop else ('K', u)


def vtag(u, inloop):
    return (lambda it: ('V', u + 4 * it)) if inloop else ('V', u)


def k_load(u, kb, s, inloop):
    return Ins('ds_read_b128 %s, %s offset:%d' % (ar(A_KF + kb * 16 + s * 4, 4), vr(V_KA + s), (u % 4) * 16384 + kb * 4096),
               lds=(LS(u % 4), ktag(u, inloop)))


def v_load(u, db, ks, j, inloop):
    return Ins('ds_read_b64_tr_b16 %s, %s offset:%d' % (
        ar(A_VF + db * 8 + ks * 4 + 2 * j, 2), vr(V_VA + db), (u % 4) * 16384 + (32 * ks + 16 * j) * 256),
        lds=(LS(4 + u % 4), vtag(u, inloop)))


def dma_unit(kind, u, inloop):
    out = []
    if kind == 'K':
        out.append(Ins('s_add_u32 m0, %s, %d' % (sr(S_MK), (u % 4) * 16384)))
        for cc in range(4):
            out.append(Ins('buffer_load_dwordx4 %s, %s, %s offen offset:%d lds' % (
                vr(V_OK + cc), sr(S_K, 4), sr(S_OFFK), cc * 1024), lds=(LS(u % 4), ktag(u, inloop))))
        out.append(Ins('s_add_u32 %s, %s, 16384' % (sr(S_OFFK), sr(S_OFFK))))
    else:
        out.append(Ins('s_add_u32 m0, %s, %d' % (sr(S_MV), (u % 4) * 16384)))
        for cc in range(4):
            out.append(Ins('buffer_load_dwordx4 %s, %s, %s offen offset:%d lds' % (
                vr(V_OV + cc % 2), sr(S_V, 4), sr(S_OFFV), cc * 1024), lds=(LS(4 + u % 4), vtag(u, inloop))))
        out.append(Ins('s_add_u32 %s, %s, 16384' % (sr(S_OFFV), sr(S_OFFV))))
    return out


def sm_instrs(uu, i):
    n, r = i // 4, i % 4
    kb, qb = n // 4, n % 4
    e = vr(V_E + i % 4)
    ex = Ins('v_exp_f32 %s, %s' % (e, vr(Sreg(kb, qb) + r)))
    ad = Ins('v_add_f32 %s, %s, %s' % (vr(V_L + qb), vr(V_L + qb), e))
    cv = None
    if r % 2 == 1:
        cv = Ins('v_cvt_pk_bf16_f32 %s, %s, %s' % (
            vr(Preg(uu, qb, kb // 2) + (kb % 2) * 2 + r // 2), vr(V_E + (i - 1) % 4), e))
    return ex, ad, cv


def att_slots(p, u, ta, tb, inloop, pv=True, qk=True, sm_cur=True, sm_next=True, vnext=True, dmak=True, dmav=True,
              barrier=True, g=None, cap=2, vearly=False, extra_need=()):
    T0 = -40
    R = range(-128, 256)
    sc = {t: [] for t in R}
    ld = {t: [] for t in R}
    va = {t: [] for t in R}
    for t in range(0, 128, 2):
        if t >= X0:
            uu, i, on = u + 1, (t - X0) // 2, sm_next
        else:
            uu, i, on = u, (t + 128 - X0) // 2, sm_cur
        if on:
            ex, ad, cv = sm_instrs(uu, i)
            va[t].append(ex)
            va[t + 1].append(ad)
            if cv is not None:
                va[t + 1].append(cv)
    pos = [t for t in range(T0, T0 + 128) if t % 8 in (1, 4, 5)]
    n = 0
    m = 0
    for db in range(8):
        for ks in range(2):
            for j in range(2):
                t = pos[n]
                n += 1
                if t >= 0:
                    if pv:
                        ld[t].append(v_load(u - 1, db, ks, j, inloop))
                elif vnext:
                    if vearly:
                        ld[46 + m].append(v_load(u, db, ks, j, inloop))
                        m += 1
                    else:
                        ld[t + 128].append(v_load(u, db, ks, j, inloop))
        t = 8 * db - 1
        sc[t if t >= 0 else t + 128].append(wait_ins(ar(A_VF + db * 8, 8)))
    for kb in range(4):
        for s in range(4):
            t = pos[n]
            n += 1
            if qk:
                ld[t].append(k_load(u + 1, kb, s, inloop))
        if qk:
            sc[64 + 16 * kb - 1].append(wait_ins(ar(A_KF + kb * 16, 16)))
    for on, kind, uu, tt in ((dmav, 'V', u + DV, 2), (dmak, 'K', u + DK, 66)):
        if on:
            lst = dma_unit(kind, uu, inloop)
            sc[tt].append(lst[0])
            ds = OPT.get('dstep', 8)
            for k in range(4):
                ld[tt + ds * k + (4 if k == 0 else 0)].append(lst[1 + k])
            sc[tt + ds * 3 + 1].append(lst[5])
    if barrier:
        nd = [(LS(4 + u % 4), vtag(u, inloop))] + list(extra_need)
        if qk:
            nd.append((LS((u + 1) % 4), ktag(u + 1, inloop)))
        sc[0].append(need_ins(*nd))
        sc[1].append(Ins('s_barrier'))
    g = g or Gaps(p)
    for t in range(ta, tb):
        mf = None
        if t < 64:
            if pv:
                db, qb, ks = t // 8, (t % 8) // 2, t % 2
                o = ar(A_O + (db * 4 + qb) * 4, 4)
                mf = '%s %s, %s, %s, %s' % (MF, o, ar(A_VF + db * 8 + ks * 4, 4), vr(Preg(u - 1, qb, ks), 4), o)
        elif qk:
            tt = t - 64
            kb, qb, s = tt // 16, (tt % 16) // 4, tt % 4
            d = vr(Sreg(kb, qb), 4)
            c = vr(V_NM + qb * 4, 4) if s == 0 else d
            mf = '%s %s, %s, %s, %s' % (MF, d, ar(A_KF + kb * 16 + s * 4, 4), vr(V_Q + (qb * 4 + s) * 4, 4), c)
        assert len(sc[t]) <= 1 and len(ld[t]) <= 1
        if mf is None and not (sc[t] or ld[t] or va[t]):
            continue
        g.gap(mf, sc[t], ld[t], va[t], cap=cap)


def kv_dma_setup():
    o = []
    a = lambda s: o.append(Ins(s))
    a('v_and_b32 %s, 15, %s' % (t0, L))
    a('v_lshrrev_b32 %s, 4, %s' % (t1, L))
    a('v_lshlrev_b32 %s, 8, %s' % (t2, t1))
    a('v_add_u32 %s, %s, %s' % (t2, sr(S_MK), t2))
    a('v_xor_b32 %s, %s, %s' % (t3, t0, t1))
    a('v_lshl_add_u32 %s, %s, 4, %s' % (vr(V_OK), t3, t2))
    for c in range(1, 4):
        a('v_xor_b32 %s, %d, %s' % (vr(V_OK + c), c * 64, vr(V_OK)))
    a('v_lshlrev_b32 %s, 1, %s' % (t3, t1))
    a('v_xor_b32 %s, %s, %s' % (t3, t0, t3))
    a('v_lshl_add_u32 %s, %s, 4, %s' % (vr(V_OV), t3, t2))
    a('v_xor_b32 %s, 128, %s' % (vr(V_OV + 1), vr(V_OV)))
    return o


def k_read_setup():
    o = []
    a = lambda s: o.append(Ins(s))
    a('v_and_b32 %s, 15, %s' % (t0, L))
    a('v_lshrrev_b32 %s, 4, %s' % (t1, L))
    a('v_xor_b32 %s, %s, %s' % (t2, t0, t1))
    a('v_lshlrev_b32 %s, 4, %s' % (t2, t2))
    a('v_lshl_add_u32 %s, %s, 8, %s' % (vr(V_KA), t0, t2))
    for s in range(1, 4):
        a('v_xor_b32 %s, %d, %s' % (vr(V_KA + s), s * 64, vr(V_KA)))
    return o


def v_read_setup():
    o = []
    a = lambda s: o.append(Ins(s))
    a('v_lshrrev_b32 %s, 2, %s' % (t2, L))
    a('v_and_b32 %s, 7, %s' % (t3, t2))
    a('v_lshlrev_b32 %s, 5, %s' % (t3, t3))
    a('v_lshl_add_u32 %s, %s, 8, %s' % (t3, t2, t3))
    a('v_and_b32 %s, 3, %s' % (t2, L))
    a('v_lshl_add_u32 %s, %s, 3, %s' % (t3, t2, t3))
    a('v_add_u32 %s, 0x10000, %s' % (vr(V_VA), t3))
    for d in range(1, 8):
        a('v_xor_b32 %s, %d, %s' % (vr(V_VA + d), d * 32, vr(V_VA)))
    return o


def xlane4(op, xs, ts):
    o = []
    for perm in ('v_permlane32_swap_b32', 'v_permlane16_swap_b32'):
        for x, t in zip(xs, ts):
            o.append(Ins('v_mov_b32 %s, %s' % (t, x)))
        for x, t in zip(xs, ts):
            o.append(Ins('%s %s, %s' % (perm, x, t)))
        for x, t in zip(xs, ts):
            o.append(Ins('%s %s, %s, %s' % (op, x, x, t)))
    return o


def div18(o, n, row, sl):
    o.append(Ins('v_mul_u32_u24 %s, 3641, %s' % (row, n)))
    o.append(Ins('v_lshrrev_b32 %s, 16, %s' % (row, row)))
    o.append(Ins('v_mul_u32_u24 %s, 18, %s' % (sl, row)))
    o.append(Ins('v_sub_u32 %s, %s, %s' % (sl, n, sl)))


def ffn_tiles():
    m, nv, na = {}, 0, 0
    for b in range(9):
        for mat in range(2):
            for qb in range(4):
                if mat == 1 and na < 18:
                    m[(2 * b + mat, qb)] = ('a', na * 4)
                    na += 1
                else:
                    m[(2 * b + mat, qb)] = ('v', 40 + nv * 4)
                    nv += 1
    assert nv == 54 and na == 18
    return m


FT = ffn_tiles()
WQ_SLOT = {8: 9, 7: 3, 6: 4, 5: 5, 4: 6, 3: 7, 2: 8, 1: 9, 0: 3}


def p1_dma(c):
    out = [Ins('s_add_u32 %s, %s, %d' % (T(8), sr(S_OFFW), c * 64 * 9216))]
    for i in range(9):
        if i % 4 == 0:
            out.append(Ins('s_add_u32 m0, %s, %d' % (sr(S_M1), PS(c)[0] + (i // 4) * 4096)))
        out.append(Ins('buffer_load_dwordx4 %s, %s, %s offen offset:%d lds' % (
            vr(V_OW + i), sr(S_WS, 4), T(8), (i % 4) * 1024), lds=(PS(c), ('W', c))))
    return out


def xn_loads(c, buf):
    base = A_B + buf * 32
    out = []
    for qb in range(4):
        out.append(Ins('s_mov_b32 %s, %d' % (T(qb), qb * 18 * 1024 + c * 2048)))
        for ks in range(2):
            out.append(Ins('buffer_load_dwordx4 %s, %s, %s, %s offen offset:%d' % (
                ar(base + (qb * 2 + ks) * 4, 4), vr(V_L16), sr(S_XN, 4), T(qb), ks * 1024)))
    return out


def wq_dma(c):
    sl = WQ_SLOT[c]
    out = []
    for cc in range(4):
        out.append(Ins('s_add_u32 %s, %s, %d' % (T(4 + cc % 2), sr(S_OFFQ), (c * 64 + cc * 4) * 8192)))
        out.append(Ins('s_add_u32 m0, %s, %d' % (sr(S_MK), sl * 16384 + cc * 1024)))
        out.append(Ins('buffer_load_dwordx4 %s, %s, %s offen lds' % (
            vr(V_OQ + cc % 2), sr(S_WQ, 4), T(4 + cc % 2)), lds=(LS(sl), ('Q', c))))
    return out


def p1_reads(c, blk, dst):
    mat, b = blk % 2, blk // 2
    return [Ins('ds_read_b64_tr_b16 %s, %s offset:%d' % (
        ar(dst + ks * 4 + 2 * j, 2), vr(V_A1 + c % 4),
        mat * 18432 + (32 * ks + 16 * j) * 288 + 32 * b), lds=(PS(c), ('W', c)))
        for ks in range(2) for j in range(2)]


def p2_reads(c, bq, dst):
    s, jj = bq // 2, bq % 2
    sl = WQ_SLOT[c]
    return [Ins('ds_read_b64_tr_b16 %s, %s offset:%d' % (
        ar(dst + ks * 4 + 2 * j, 2), vr(V_AQ + (sl // 4) * 4 + s),
        (sl % 4) * 16384 + (32 * ks + 16 * j) * 256 + 8 * jj), lds=(LS(sl), ('Q', c)))
        for ks in range(2) for j in range(2)]


def swiglu_unit(b, qb, ready, pool):
    gt, ut = FT[(2 * b, qb)], FT[(2 * b + 1, qb)]
    pk = FT[(2 * (b - b % 2), qb)][1] + (b % 2) * 2
    o = []
    ta, tb = vr(V_SW), vr(V_SW + 1)
    for r in (0, 2):
        pa, pb = vr(V_SW + 2 + r), vr(V_SW + 3 + r)
        g0, g1 = vr(gt[1] + r), vr(gt[1] + r + 1)
        if ut[0] == 'a':
            o.append(Ins('v_accvgpr_read_b32 %s, %s' % (pa, ar(ut[1] + r))))
            o.append(Ins('v_accvgpr_read_b32 %s, %s' % (pb, ar(ut[1] + r + 1))))
            u0, u1 = pa, pb
        else:
            u0, u1 = vr(ut[1] + r), vr(ut[1] + r + 1)
        o.append(Ins('v_mul_f32 %s, %s, %s' % (ta, sr(S_NL), g0)))
        o.append(Ins('v_mul_f32 %s, %s, %s' % (tb, sr(S_NL), g1)))
        o.append(Ins('v_exp_f32 %s, %s' % (ta, ta)))
        o.append(Ins('v_exp_f32 %s, %s' % (tb, tb)))
        o.append(Ins('v_mul_f32 %s, %s, %s' % (pa, g0, u0)))
        o.append(Ins('v_mul_f32 %s, %s, %s' % (pb, g1, u1)))
        o.append(Ins('v_add_f32 %s, 1.0, %s' % (ta, ta)))
        o.append(Ins('v_add_f32 %s, 1.0, %s' % (tb, tb)))
        o.append(Ins('v_rcp_f32 %s, %s' % (ta, ta)))
        o.append(Ins('v_rcp_f32 %s, %s' % (tb, tb)))
        o.append(Ins('v_mul_f32 %s, %s, %s' % (pa, pa, ta)))
        o.append(Ins('v_mul_f32 %s, %s, %s' % (pb, pb, tb)))
    for r in (0, 2):
        o.append(Ins('v_cvt_pk_bf16_f32 %s, %s, %s' % (vr(pk + r // 2), vr(V_SW + 2 + r), vr(V_SW + 3 + r))))
    rel = [ut] + ([gt] if b % 2 == 1 else [])
    if b % 2 == 1:
        o.append(Ins('buffer_store_dwordx4 %s, %s, %s, %s offen offset:%d sc1' % (
            vr(pk - 2, 4), vr(V_L16), sr(S_H, 4), sr(S_HS + qb), (b // 2) * 1024), lds=('H', 0)))
        if OPT.get('plain_h'):
            o[-1].text = o[-1].text.replace(' sc1', '')
        rel.append(FT[(2 * (b - 1), qb)])
    elif b == 8:
        o.append(Ins('buffer_store_dwordx2 %s, %s, %s, %s offen sc1' % (
            vr(pk, 2), vr(V_L16), sr(S_H, 4), sr(S_HS + 4 + qb)), lds=('H', 0)))
        if OPT.get('plain_h'):
            o[-1].text = o[-1].text.replace(' sc1', '')
    o[0].ready = ready
    o[-1].on_emit = lambda: pool.extend(t for t in rel if not (t[0] == 'v' and t[1] >= V_Q))
    return o


def qcvt_unit(qb, s, QT, ready):
    o = []
    for h in range(2):
        tl = QT[(2 * s + h, qb)]
        tm = [vr(V_SW + e) for e in range(4)]
        for e in range(4):
            if tl[0] == 'a':
                o.append(Ins('v_accvgpr_read_b32 %s, %s' % (tm[e], ar(tl[1] + e))))
        for e in range(4):
            o.append(Ins('v_mul_f32 %s, %s, %s' % (tm[e], sr(S_C), tm[e] if tl[0] == 'a' else vr(tl[1] + e))))
        for e in range(2):
            o.append(Ins('v_cvt_pk_bf16_f32 %s, %s, %s' % (vr(V_Q + (qb * 4 + s) * 4 + 2 * h + e), tm[2 * e], tm[2 * e + 1])))
    o[0].ready = ready
    return o


class GemmSeq:
    def __init__(self, p, g):
        self.p, self.g = p, g
        self.groups = []

    def add(self, reads, nfr, mf, hook=None, bar=None, bwait=None, cap=2):
        self.groups.append(dict(reads=reads, n=nfr, mf=mf, hook=hook, bar=bar, bwait=bwait, cap=cap))

    def run(self):
        G, g, p = self.groups, self.g, self.p
        pos = 0
        for x in G:
            if x['n'] == 16 and pos % 16:
                pos += 8
            x['dst'] = A_A + pos % 32
            pos += x['n']
        for k, x in enumerate(G):
            regs = lambda y: set(range(y['dst'], y['dst'] + y['n']))
            ld = 1
            if k >= 2 and not (regs(x) & regs(G[k - 1])) and not (regs(x) & regs(G[k - 2])) and G[k - 1]['n'] == 8:
                ld = 2
            assert k == 0 or not (regs(x) & regs(G[k - 1]))
            x['at'] = k - ld
        for x in G:
            if x['at'] < 0:
                if x['bar']:
                    p.need(*x['bar'])
                    p('s_barrier')
                for i in x['reads'](x['dst']):
                    p.add(i)
        for k, x in enumerate(G):
            if x['hook']:
                x['hook']()
            todo = [y for y in G if y['at'] == k]
            rd, bar = [], []
            for y in todo:
                rd += y['reads'](y['dst'])
                if y['bar'] is not None:
                    bar += y['bar']
            hasbar = any(y['bar'] is not None for y in todo)
            mfs = x['mf'](x['dst'])
            n = len(mfs)
            st = 3 if hasbar else 0
            step = 2 if (st + 2 * ((len(rd) + 1) // 2) <= n - 1) else 1
            for t in range(n):
                sc, ld = [], []
                if hasbar and t == 1:
                    sc = [need_ins(('lgkm', 'all'), *bar)]
                if hasbar and t == 2:
                    sc = [Ins('s_barrier')]
                if t >= st and (t - st) % step == 0 and rd:
                    ld = rd[:2]
                    rd = rd[2:]
                if t == n - 1 and k + 1 < len(G):
                    y = G[k + 1]
                    bw = y['bwait']() if callable(y['bwait']) else (y['bwait'] or [])
                    w = [ar(y['dst'], y['n'])] + bw
                    sc = [wait_ins(*w)]
                g.gap(mfs[t](), sc, ld, cap=x['cap'])
                if hasbar and t == 2:
                    for y in todo:
                        if y.get('post'):
                            y['post']()
            assert not rd


V_DOWS = [22, 23, 24, 25, 26, 27, 248, 249, 250]
V_DRA = 40
V_DA = 56
V_AC2, V_AC1 = 104, 176
V_PK = 4
A_DB = 128
SPIN_BLOCKS = []


def poll_issue(soff):
    return Ins('buffer_load_dword %s, %s, %s, %s offen sc1' % (vr(V_FV), vr(V_FOFF), sr(S_FL, 4), sr(soff)))


def poll_check(p, name, soff, cmp='v_cmp_eq_u32 vcc, 0'):
    SPIN_BLOCKS.append("""L_spin_%(n)s:
 s_mov_b32 s3, 0
L_spin_%(n)s_l:
 s_sleep 4
 buffer_load_dword %(v)s, %(o)s, %(srd)s, %(so)s offen sc1
 s_add_u32 s3, s3, 1
 s_cmp_gt_u32 s3, 0x40000
 s_cbranch_scc1 L_ok_%(n)s
 s_waitcnt vmcnt(0)
 %(cmp)s, %(v)s
 s_cbranch_vccnz L_spin_%(n)s_l
 s_branch L_ok_%(n)s""" % dict(n=name, v=vr(V_FV), o=vr(V_FOFF), srd=sr(S_FL, 4), so=sr(soff), cmp=cmp))
    p('%s, %s' % (cmp, vr(V_FV)))
    p('s_cbranch_vccnz L_spin_%s' % name)
    p.label('L_ok_%s' % name)


def flag_store(soff, tag):
    return Ins('buffer_store_dword %s, %s, %s, %s offen sc1' % (
        vr(V_ONE), vr(V_FST), sr(S_FL, 4), sr(soff)), lds=('flag', (tag, 0)))


def sadd(r, k):
    return Ins('s_add_u32 %s, %s, %d' % (sr(r), sr(r), k))


def d_dma(c):
    out = []
    for i in range(9):
        if i % 4 == 0:
            out.append(Ins('s_mov_b32 %s, %d' % (T(8), c * 36864 + (i // 4) * 4096)))
            out.append(Ins('s_add_u32 m0, %s, %d' % (sr(S_M1), PS(c)[0] + (i // 4) * 4096)))
        out.append(Ins('buffer_load_dwordx4 %s, %s, %s offen offset:%d sc1 lds' % (
            vr(V_L16), sr(S_DW2, 4), T(8), (i % 4) * 1024), lds=(PS(c), ('D', c))))
    return out


def d_bloads(c):
    srd, loc, rbs = (S_DH, c, 144 * 1024) if c < 9 else (S_DO, c - 9, 128 * 1024)
    out = []
    for rb in range(2):
        out.append(Ins('s_mov_b32 %s, %d' % (T(9 + rb), loc * 4096 + rb * rbs)))
        for ks in range(4):
            out.append(Ins('buffer_load_dwordx4 %s, %s, %s, %s offen offset:%d sc1' % (
                ar(A_DB + (c % 4) * 32 + (rb * 4 + ks) * 4, 4), vr(V_L16), sr(srd, 4), T(9 + rb), ks * 1024)))
    return out


def d_reads(c, nb):
    return [Ins('ds_read_b64_tr_b16 %s, %s offset:%d' % (
        vr(V_DA + (nb % 3) * 16 + ks * 4 + 2 * j, 2), vr(V_DRA + c % 4), (32 * ks + 16 * j) * 288 + 32 * nb),
        lds=(PS(c), ('D', c))) for ks in range(4) for j in range(2)]


def d_pstore(gemm, nb):
    acc = (V_AC2 if gemm else V_AC1) + nb * 8
    pk = V_PK + (nb % 3) * 4
    out = []
    if nb % 4 == 0:
        out.append(Ins('s_mov_b32 %s, %d' % (T(7), gemm * PG + (nb // 4) * 4096)))
    for e in range(4):
        out.append(Ins('v_cvt_pk_bf16_f32 %s, %s, %s' % (vr(pk + e), vr(acc + 2 * e), vr(acc + 2 * e + 1))))
    out.append(Ins('buffer_store_dwordx4 %s, %s, %s, %s offen offset:%d sc1' % (
        vr(pk, 4), vr(V_L16), sr(S_DP, 4), T(7), (nb % 4) * 1024), lds=('PT%d' % gemm, 0)))
    return out


def d_ploads(gemm, base):
    out = []
    for k in range(3):
        for sp in range(4):
            t = T(4 + (k * 4 + sp) % 2)
            out.append(Ins('s_mov_b32 %s, %d' % (t, gemm * PG + sp * 4 * 9216 + k * 4096)))
            out.append(Ins('buffer_load_dwordx4 %s, %s, %s, %s offen sc1' % (
                vr(base + (k * 4 + sp) * 4, 4), vr(V_L16), sr(S_DR, 4), t)))
    return out


def d_sum(base, k, dst, tmp):
    out = []
    for e in range(4):
        for sp in range(4):
            src = vr(base + (k * 4 + sp) * 4 + e)
            lo = vr(dst + 2 * e) if sp == 0 else vr(tmp)
            hi = vr(dst + 2 * e + 1) if sp == 0 else vr(tmp + 1)
            out.append(Ins('v_lshlrev_b32 %s, 16, %s' % (lo, src)))
            out.append(Ins('v_and_b32 %s, 0xffff0000, %s' % (hi, src)))
            if sp:
                out.append(Ins('v_add_f32 %s, %s, %s' % (vr(dst + 2 * e), vr(dst + 2 * e), lo)))
                out.append(Ins('v_add_f32 %s, %s, %s' % (vr(dst + 2 * e + 1), vr(dst + 2 * e + 1), hi)))
    return out


def d_scalar_setup1():
    o = []
    a = lambda s: o.append(Ins(s))
    a('s_mul_i32 %s, %s, 288' % (T(1), sr(S_W)))
    a('s_lshl_b32 %s, %s, 6' % (T(0), sr(S_SP)))
    a('s_add_u32 %s, %s, %s' % (T(0), T(0), sr(S_TILE)))
    a('s_mul_i32 %s, %s, %d' % (T(2), T(0), 18 * 1152))
    a('s_add_u32 %s, %s, %s' % (T(2), T(2), T(1)))
    o += srd_ins(S_A1, P_W2, T(2), 17 * 1152 + 288)
    a('s_mul_i32 %s, %s, %d' % (T(2), T(0), 16 * 1152))
    a('s_add_u32 %s, %s, %s' % (T(2), T(2), T(1)))
    o += srd_ins(S_A2, P_WO, T(2), 15 * 1152 + 288)
    a('s_lshl_b32 %s, %s, 2' % (T(0), sr(S_SP)))
    a('s_add_u32 %s, %s, %s' % (T(1), T(0), sr(S_W)))
    a('s_mul_i32 %s, %s, %d' % (T(1), T(1), 2176 * 288))
    a('s_add_u32 %s, %s, 0x%x' % (T(1), T(1), WS_W))
    a('s_mul_i32 %s, %s, %d' % (T(2), sr(S_TILE), 18 * 288))
    a('s_add_u32 %s, %s, %s' % (T(2), T(2), T(1)))
    o += srd_ins(S_A3, P_WS, T(2), 18 * 288)
    a('s_mul_i32 %s, %s, %d' % (T(2), sr(S_TILE), 16 * 288))
    a('s_add_u32 %s, %s, %s' % (T(2), T(2), T(1)))
    a('s_add_u32 %s, %s, %d' % (T(2), T(2), 1152 * 288))
    o += srd_ins(S_A4, P_WS, T(2), 16 * 288)
    a('s_mov_b32 %s, 0' % sr(S_RO))
    a('s_and_b32 %s, %s, 3' % (T(1), sr(S_TILE)))
    a('s_add_u32 %s, %s, %s' % (T(1), T(0), T(1)))
    a('s_mul_i32 %s, %s, %d' % (T(1), T(1), 2176 * 288))
    a('s_add_u32 %s, %s, %s' % (T(1), T(1), sr(S_M1)))
    a('s_add_u32 %s, %s, 0x%x' % (T(1), T(1), WS_W))
    o += srd_ins(S_DW2, P_WS, T(1), 16 * 36864 + 9216)
    a('s_lshr_b32 %s, %s, 2' % (T(4), sr(S_TILE)))
    a('s_lshl_b32 %s, %s, 2' % (T(5), T(4)))
    a('s_add_u32 %s, %s, %s' % (T(5), T(5), sr(S_W)))
    a('s_mul_i32 %s, %s, %d' % (T(2), T(5), 2 * 144 * 1024))
    a('s_mul_i32 %s, %s, %d' % (T(3), sr(S_SP), 36 * 1024))
    a('s_add_u32 %s, %s, %s' % (T(2), T(2), T(3)))
    a('s_add_u32 %s, %s, 0x%x' % (T(2), T(2), WS_H))
    o += srd_ins(S_DH, P_WS, T(2), 144 * 1024 + 36 * 1024)
    a('s_lshl_b32 %s, %s, 18' % (T(2), T(5)))
    a('s_lshl_b32 %s, %s, 15' % (T(3), sr(S_SP)))
    a('s_add_u32 %s, %s, %s' % (T(2), T(2), T(3)))
    a('s_add_u32 %s, %s, 0x%x' % (T(2), T(2), WS_O))
    o += srd_ins(S_DO, P_WS, T(2), 128 * 1024 + 32 * 1024)
    return o


def d_scalar_setup2():
    o = []
    a = lambda s: o.append(Ins(s))
    a('s_lshl_b32 %s, %s, 2' % (T(2), sr(S_TILE)))
    a('s_add_u32 %s, %s, %s' % (T(2), T(2), sr(S_SP)))
    a('s_lshl_b32 %s, %s, 7' % (sr(S_FT), T(2)))
    a('s_add_u32 %s, %s, 0x10000' % (sr(S_FT), sr(S_FT)))
    a('s_lshl_b32 %s, %s, 2' % (T(2), T(2)))
    a('s_add_u32 %s, %s, %s' % (T(2), T(2), sr(S_W)))
    a('s_mul_i32 %s, %s, 9216' % (T(2), T(2)))
    a('s_add_u32 %s, %s, 0x%x' % (T(2), T(2), WS_P))
    o += srd_ins(S_DP, P_WS, T(2), PG + 9216)
    a('s_lshl_b32 %s, %s, 4' % (T(2), sr(S_TILE)))
    a('s_add_u32 %s, %s, %s' % (T(2), T(2), sr(S_SP)))
    a('s_mul_i32 %s, %s, 9216' % (T(2), T(2)))
    a('s_lshl_b32 %s, %s, 10' % (T(3), sr(S_W)))
    a('s_add_u32 %s, %s, %s' % (T(2), T(2), T(3)))
    a('s_add_u32 %s, %s, 0x%x' % (T(2), T(2), WS_P))
    o += srd_ins(S_DR, P_WS, T(2), PG + 14 * 9216)
    a('s_and_b32 %s, %s, 3' % (T(1), sr(S_TILE)))
    a('s_mul_i32 %s, %s, 288' % (T(1), T(1)))
    a('s_andn2_b32 %s, %s, 3' % (T(2), sr(S_TILE)))
    a('s_add_u32 %s, %s, %s' % (T(2), T(2), sr(S_SP)))
    a('s_mul_i32 %s, %s, %d' % (T(2), T(2), 32 * 1152))
    a('s_add_u32 %s, %s, %s' % (T(2), T(2), T(1)))
    o += srd_ins(S_DX, P_X, T(2), 31 * 1152 + 288)
    o += srd_ins(S_DOUT, P_OUT, T(2), 31 * 1152 + 288)
    a('s_lshl_b32 %s, %s, 19' % (sr(S_HS), sr(S_W)))
    for qb in range(1, 4):
        a('s_add_u32 %s, %s, 0x%x' % (sr(S_HS + qb), sr(S_HS), qb * 0x20000))
    a('s_lshl_b32 %s, %s, 5' % (sr(S_HS + 4), sr(S_W)))
    a('s_add_u32 %s, %s, %d' % (sr(S_HS + 5), sr(S_HS + 4), 16 * 1152))
    a('s_lshl_b32 %s, %s, 20' % (sr(S_HS + 6), sr(S_W)))
    a('s_add_u32 %s, %s, %d' % (sr(S_HS + 7), sr(S_HS + 6), 16 * 1152))
    return o


V_RN, V_RV = 20, 21
V_RQ = (248, 36)


def repack_pat():
    return [Ins('v_mul_u32_u24 %s, 3641, %s' % (vr(V_RV), vr(V_RN))),
            Ins('v_lshrrev_b32 %s, 16, %s' % (vr(V_RV), vr(V_RV))),
            Ins('v_mul_u32_u24 %s, 864, %s' % (vr(V_RV), vr(V_RV))),
            Ins('v_lshl_add_u32 %s, %s, 4, %s' % (vr(V_RV), vr(V_RN), vr(V_RV))),
            Ins('v_add_u32 %s, 64, %s' % (vr(V_RN), vr(V_RN)))]


def o_epilogue_unit(qb, t, n, ready):
    base = 184 + (n % 4) * 12
    o = []
    for r in range(8):
        o.append(Ins('v_accvgpr_read_b32 %s, %s' % (vr(base + r), ar(A_O + ((2 * t + r // 4) * 4 + qb) * 4 + r % 4))))
    for r in range(8):
        o.append(Ins('v_mul_f32 %s, %s, %s' % (vr(base + r), vr(base + r), vr(V_L + qb))))
    for r in range(4):
        o.append(Ins('v_cvt_pk_bf16_f32 %s, %s, %s' % (vr(base + 8 + r), vr(base + 2 * r), vr(base + 2 * r + 1))))
    o.append(Ins('buffer_store_dwordx4 %s, %s, %s, %s offen offset:%d%s' % (
        vr(base + 8, 4), vr(V_L16), sr(S_O, 4), sr(S_HS + qb), t * 1024, '' if OPT.get('plain_o', 1) else ' sc1'), lds=('O', 0)))
    o[0].ready = ready
    return o


def gen_main(diag=False):
    p = Prog()
    del SPIN_BLOCKS[:]

    def stamp(k):
        if diag:
            p('s_memtime %s' % sr(S_DG, 2))
            p('s_waitcnt lgkmcnt(0)')
            p('v_writelane_b32 v1, %s, %d' % (sr(S_DG), k))
            p('s_memrealtime %s' % sr(S_DG, 2))
            p('s_waitcnt lgkmcnt(0)')
            p('v_writelane_b32 v1, %s, %d' % (sr(S_DG), k + 16))

    def addall(lst):
        for x in lst:
            p.add(x)
    p('s_cmp_ge_u32 s2, 256')
    p('s_cbranch_scc1 L_end')
    p('s_load_dwordx4 s[44:47], s[0:1], 48')
    p('s_load_dwordx2 %s, s[0:1], 88' % sr(P_WS, 2))
    p('s_load_dwordx4 s[36:39], s[0:1], 8')
    p('s_load_dwordx2 s[40:41], s[0:1], 24')
    p('s_load_dwordx2 %s, s[0:1], 0' % sr(P_X, 2))
    p('s_load_dwordx2 %s, s[0:1], 32' % sr(P_WO, 2))
    p('s_load_dwordx4 %s, s[0:1], 64' % sr(P_W2, 4))
    stamp(0)
    p('v_and_b32 %s, 63, v0' % L)
    p('v_lshrrev_b32 %s, 6, v0' % t0)
    p('v_readfirstlane_b32 %s, %s' % (sr(S_W), t0))
    p('s_and_b32 %s, s2, 3' % T(0))
    p('s_lshl_b32 %s, %s, 3' % (T(0), T(0)))
    p('s_bfe_u32 %s, s2, 0x30003' % T(1))
    p('s_add_u32 %s, %s, %s' % (sr(S_HD), T(0), T(1)))
    p('s_and_b32 %s, s2, 4' % T(0))
    p('s_lshr_b32 %s, s2, 6' % T(1))
    p('s_add_u32 %s, %s, %s' % (sr(S_QT), T(0), T(1)))
    p('v_lshlrev_b32 %s, 4, %s' % (vr(V_L16), L))
    p('s_and_b32 %s, %s, 1' % (T(2), sr(S_HD)))
    p('s_lshl_b32 %s, %s, 1' % (T(2), T(2)))
    for i in range(9):
        o = [Ins('v_add_u32 %s, %d, %s' % (t0, 64 * i, L))]
        div18(o, t0, t1, t2)
        addall(o)
        p('v_add_u32 %s, %s, %s' % (t2, T(2), t2))
        p('v_subrev_u32 %s, 18, %s' % (t3, t2))
        p('v_min_u32 %s, %s, %s' % (t2, t2, t3))
        p('v_mul_u32_u24 %s, 9216, %s' % (t1, t1))
        p('v_lshl_add_u32 %s, %s, 4, %s' % (t1, t2, t1))
        p('v_subrev_u32 %s, %d, %s' % (vr(V_OW + i), (i % 4) * 1024, t1))
    p('s_mul_i32 %s, %s, 9216' % (sr(S_M1), sr(S_W)))
    p('s_and_b32 %s, %s, 1' % (T(3), sr(S_W)))
    p('s_mul_i32 %s, %s, %d' % (sr(S_OFFW), T(3), 32 * 9216))
    p('s_mul_i32 %s, %s, 288' % (T(2), sr(S_HD)))
    p('s_sub_u32 %s, %d, %s' % (T(3), 576 * 9216, T(2)))
    p('s_lshl_b32 %s, %s, 2' % (T(6), sr(S_QT)))
    p('s_add_u32 %s, %s, %s' % (T(6), T(6), sr(S_W)))
    p('s_mul_i32 %s, %s, %d' % (T(7), T(6), 4 * 18 * 1024))
    p('s_cmp_lt_u32 %s, 2' % sr(S_W))
    p('s_waitcnt lgkmcnt(0)')
    p('s_cselect_b32 s48, s44, s46')
    p('s_cselect_b32 s49, s45, s47')
    make_srd(p, S_WS, 48, T(2), T(3))
    make_srd(p, S_XN, P_WS, T(7), 4 * 18 * 1024)
    addall(p1_dma(0) + xn_loads(0, 0) + p1_dma(1) + xn_loads(1, 1) + p1_dma(2))
    R0 = 32 * OPT.get('pf0', 6)
    nr = (576 - R0) // 32
    assert nr * 18 <= 256
    p('s_lshr_b32 %s, s2, 3' % T(0))
    p('s_and_b32 %s, s2, 3' % T(1))
    p('s_mul_i32 %s, %s, %d' % (T(2), T(0), nr * 9216))
    p('s_mul_i32 %s, %s, 2304' % (T(3), T(1)))
    p('s_add_u32 %s, %s, %s' % (T(2), T(2), T(3)))
    p('s_add_u32 %s, %s, %d' % (T(2), T(2), R0 * 9216))
    p('s_mul_i32 %s, %s, %d' % (T(4), T(0), 18 * 8192))
    p('s_lshl_b32 %s, %s, 11' % (T(3), T(1)))
    p('s_add_u32 %s, %s, %s' % (T(4), T(4), T(3)))
    p('s_lshl_b32 %s, %s, 19' % (T(5), sr(S_HD)))
    make_srd(p, S_K, 36, T(5), 0x80000)
    make_srd(p, S_V, 38, T(5), 0x80000)
    p('s_lshl_b32 %s, %s, 8' % (T(5), sr(S_HD)))
    p('s_sub_u32 %s, %d, %s' % (T(3), 576 * 8192, T(5)))
    make_srd(p, S_WQ, 40, T(5), T(3))
    make_srd(p, S_A4, 40, T(4), 17 * 8192 + 2048)
    make_srd(p, S_A1, 44, T(2), (nr - 1) * 9216 + 2304)
    make_srd(p, S_A2, 46, T(2), (nr - 1) * 9216 + 2304)
    o = []
    div18(o, 'v0', t1, t2)
    addall(o)
    p('v_mul_u32_u24 %s, 9216, %s' % (t1, t1))
    p('v_lshl_add_u32 %s, %s, 7, %s' % (vr(V_SW), t2, t1))
    p('v_lshrrev_b32 %s, 4, v0' % t3)
    p('v_lshlrev_b32 %s, 13, %s' % (t3, t3))
    p('v_and_b32 %s, 15, v0' % t2)
    p('v_lshl_add_u32 %s, %s, 7, %s' % (vr(V_SW + 1), t2, t3))
    p('v_add_u32 %s, %d, %s' % (vr(V_SW + 2), 16 * 8192, vr(V_SW + 1)))
    touch = {0: [Ins('buffer_load_dword %s, %s, %s, 0 offen' % (vr(V_SW + 3), vr(V_SW), sr(S_A1, 4))),
                 Ins('buffer_load_dword %s, %s, %s, 0 offen' % (vr(V_SW + 4), vr(V_SW), sr(S_A2, 4)))],
             1: [Ins('buffer_load_dword %s, %s, %s, 0 offen' % (vr(V_SW + 5), vr(V_SW + 1), sr(S_A4, 4)))],
             2: [Ins('buffer_load_dword %s, %s, %s, 0 offen' % (vr(V_SW + 3), vr(V_SW + 2), sr(S_A4, 4)))]}
    if not OPT.get('pf1', 1):
        touch = {}
    p('s_mov_b32 %s, 0x%x' % (sr(S_C), f2u(LOG2E / 128 ** 0.5)))
    p('s_mov_b32 %s, 0x%x' % (sr(S_NL), f2u(-LOG2E)))
    p('s_lshl_b32 %s, %s, 12' % (sr(S_MK), sr(S_W)))
    p('s_add_u32 %s, %s, 0x10000' % (sr(S_MV), sr(S_MK)))
    p('s_mov_b32 %s, 0' % sr(S_OFFK))
    p('s_mov_b32 %s, 0' % sr(S_OFFV))
    p('v_lshrrev_b32 %s, 2, %s' % (t0, L))
    p('v_mul_u32_u24 %s, 288, %s' % (t1, t0))
    p('v_and_b32 %s, 3, %s' % (t2, L))
    p('v_lshl_add_u32 %s, %s, 3, %s' % (vr(V_A1), t2, t1))
    for k in range(1, 4):
        p('v_add_u32 %s, %d, %s' % (vr(V_A1 + k), k * 36864, vr(V_A1)))
    p('v_and_b32 %s, 15, %s' % (t0, L))
    p('v_lshrrev_b32 %s, 4, %s' % (t1, L))
    p('v_lshlrev_b32 %s, 1, %s' % (t3, t1))
    p('v_xor_b32 %s, %s, %s' % (t3, t0, t3))
    p('v_lshlrev_b32 %s, 4, %s' % (t3, t3))
    p('v_lshl_add_u32 %s, %s, 13, %s' % (vr(V_OQ), t1, t3))
    p('v_xor_b32 %s, 128, %s' % (vr(V_OQ + 1), vr(V_OQ)))
    p('s_lshl_b32 %s, %s, 17' % (sr(S_OFFQ), sr(S_W)))
    addall(kv_dma_setup())
    p('s_mul_i32 %s, %s, %d' % (T(3), T(6), 4 * 144 * 1024))
    p('s_add_u32 %s, %s, 0x%x' % (T(3), T(3), WS_H))
    make_srd(p, S_H, P_WS, T(3), 4 * 144 * 1024)
    p('s_lshl_b32 %s, %s, 21' % (T(3), sr(S_QT)))
    p('s_lshl_b32 %s, %s, 12' % (T(4), sr(S_HD)))
    p('s_add_u32 %s, %s, %s' % (T(3), T(3), T(4)))
    p('s_add_u32 %s, %s, 0x%x' % (T(3), T(3), WS_O))
    p('s_sub_u32 %s, 0x200000, %s' % (T(5), T(4)))
    make_srd(p, S_O, P_WS, T(3), T(5))
    p('s_mov_b32 %s, 0x%x' % (T(3), WS_F))
    make_srd(p, S_FL, P_WS, T(3), 4 * 32768)
    p('s_lshr_b32 %s, %s, 3' % (sr(S_SP), sr(S_HD)))
    p('s_and_b32 %s, %s, 7' % (T(0), sr(S_HD)))
    p('s_lshl_b32 %s, %s, 3' % (sr(S_TILE), sr(S_QT)))
    p('s_add_u32 %s, %s, %s' % (sr(S_TILE), sr(S_TILE), T(0)))
    p('s_lshl_b32 %s, %s, 6' % (T(0), sr(S_SP)))
    p('s_add_u32 %s, %s, %s' % (T(0), T(0), sr(S_TILE)))
    p('s_lshl_b32 %s, %s, 7' % (sr(S_FWG), T(0)))
    p('s_lshl_b32 %s, %s, 13' % (sr(S_FGR), sr(S_SP)))
    p('s_mul_i32 %s, %s, 9' % (T(2), sr(S_HD)))
    p('s_add_u32 %s, %s, 1' % (T(2), T(2)))
    p('s_lshr_b32 %s, %s, 1' % (T(2), T(2)))
    p('s_lshl_b32 %s, %s, 10' % (sr(S_HS), T(2)))
    p('s_bitcmp1_b32 %s, 0' % sr(S_HD))
    p('s_mov_b32 %s, 4096' % T(3))
    p('s_cselect_b32 %s, %d, %s' % (T(3), -1024 + 8, T(3)))
    p('s_add_u32 %s, %s, %s' % (sr(S_HS + 4), sr(S_HS), T(3)))
    for qb in range(1, 4):
        p('s_add_u32 %s, %s, %d' % (sr(S_HS + qb), sr(S_HS), qb * 144 * 1024))
        p('s_add_u32 %s, %s, %d' % (sr(S_HS + 4 + qb), sr(S_HS + 4), qb * 144 * 1024))
    stamp(1)

    if OPT.get('donly'):
        p('s_waitcnt vmcnt(0)')
        addall(d_scalar_setup1() + d_scalar_setup2() + k_read_setup() + v_read_setup())
        p('v_lshlrev_b32 %s, 20, v0' % vr(V_FST))
        p('v_mov_b32 %s, 1' % vr(V_ONE))
        p('v_lshlrev_b32 %s, 7, %s' % (vr(V_FOFF), L))
        p('v_mov_b32 %s, 0' % vr(V_RV))
        p('s_mov_b32 %s, 0' % sr(S_OFFW))
        for k in range(2, 7):
            stamp(k)
        p.raw(' s_branch L_donly')
    g = Gaps(p)
    seq = GemmSeq(p, g)
    pool = deque(('a', 72 + 4 * k) for k in range(14))

    def alloc():
        while not pool:
            x = (g.st or g.lo).popleft()
            g.over += max(1, cost(x))
            g.emit(x)
        for t in pool:
            if t[0] == 'v':
                pool.remove(t)
                return t
        return pool.popleft()

    XB = {}
    ring = lambda buf: [('a', A_B + buf * 32 + 4 * k) for k in range(8)]

    def xn_l(c, tiles):
        out = []
        for qb in range(4):
            out.append(Ins('s_mov_b32 %s, %d' % (T(qb), qb * 18 * 1024 + c * 2048)))
            for ks in range(2):
                out.append(Ins('buffer_load_dwordx4 %s, %s, %s, %s offen offset:%d' % (
                    rg(tiles[qb * 2 + ks]), vr(V_L16), sr(S_XN, 4), T(qb), ks * 1024)))
        return out

    def aq_setup():
        o = []
        a = lambda s: o.append(Ins(s))
        a('v_lshrrev_b32 %s, 2, %s' % (t0, L))
        a('v_and_b32 %s, 7, %s' % (t1, t0))
        a('v_lshlrev_b32 %s, 1, %s' % (t1, t1))
        a('v_and_b32 %s, 3, %s' % (t2, L))
        a('v_xor_b32 %s, %s, %s' % (t1, t1, t2))
        a('v_lshlrev_b32 %s, 4, %s' % (t1, t1))
        a('v_lshl_add_u32 %s, %s, 8, %s' % (vr(V_AQ), t0, t1))
        for s in range(1, 4):
            a('v_xor_b32 %s, %d, %s' % (vr(V_AQ + s), 64 * s, vr(V_AQ)))
        for rgn in range(1, 3):
            for s in range(4):
                a('v_add_u32 %s, 0x%x, %s' % (vr(V_AQ + rgn * 4 + s), rgn * 65536, vr(V_AQ + s)))
        return o

    def mk_mf(acc, chunks, xb, first):
        def mf(dst):
            out = []
            for qb in range(4):
                for ci, c in enumerate(chunks):
                    for ks in range(2):
                        def th(qb=qb, ci=ci, c=c, ks=ks):
                            a = rg(acc(qb))
                            cin = '0' if (first and ci == 0 and ks == 0) else a
                            return '%s %s, %s, %s, %s' % (MF, a, ar(dst + ci * 8 + ks * 4, 4), rg(xb(c)[qb * 2 + ks]), cin)
                        out.append(th)
            return out
        return mf

    for c in range(9):
        XB[c] = ring(c % 3)
    for c in range(7):
        for blk in range(18):
            hook = None
            if blk == 0:
                def hook(c=c):
                    if OPT.get('cst'):
                        p('s_memrealtime %s' % sr(S_DG, 2))
                        p('s_waitcnt lgkmcnt(0)')
                        p('v_writelane_b32 v1, %s, %d' % (sr(S_DG), 32 + c))
                    g.drop = {0: (), 1: ('dma',), 2: ('vld',), 3: ('dma', 'vld'), 4: ('dma', 'vld', 'dsr')}[OPT.get('drop', 0)]
                    g.vm_gap = OPT.get('vg1', 5)
                    g.hi.extend(touch.get(c, []))
                    g.hi.extend(xn_l(c + 2, XB[c + 2]))
                    if c == 0:
                        g.hi.extend(p1_dma(3))
                    if c == 3:
                        g.hi.extend(wq_dma(8))
                    if c == 6:
                        assert not any(y.kind == 'dma' and y.lds[1][0] == 'W' for y in g.hi)
                        g.lo.extend(aq_setup())
            seq.add(lambda dst, c=c, blk=blk: p1_reads(c, blk, dst), 8,
                    mk_mf(lambda qb, blk=blk: FT[(blk, qb)], [c], lambda c: XB[c], c == 0), hook=hook,
                    bar=[(PS(c), ('W', c))] if blk == 0 else None,
                    bwait=[rg(t) for t in XB[c]] if blk == 0 else None)
            if blk == 0 and 1 <= c <= 5:
                seq.groups[-1]['post'] = lambda c=c: g.hi.extend(p1_dma(c + 3))
            if blk == 0 and c == 6:
                seq.groups[-1]['post'] = lambda: g.hi.extend(wq_dma(7))
    CT = OPT.get('cap_t', 2)
    for blk in range(18):
        hook = None
        if blk >= 2 and blk % 2 == 0:
            def hook(b=blk // 2 - 1):
                for qb in range(4):
                    g.lo.extend(swiglu_unit(b, qb, g.n + 3, pool))
        if blk == 0:
            def hook():
                g.drop = ()
                stamp(2)
        seq.add(lambda dst, blk=blk: p1_reads(7, blk, dst) + p1_reads(8, blk, dst + 8), 16,
                mk_mf(lambda qb, blk=blk: FT[(blk, qb)], [7, 8], lambda c: XB[c], False), hook=hook,
                bar=[(PS(7), ('W', 7)), (PS(8), ('W', 8))] if blk == 0 else None,
                bwait=[rg(t) for t in XB[7] + XB[8]] if blk == 0 else None, cap=CT)
        if blk == 0:
            seq.groups[-1]['post'] = lambda: g.hi.extend(wq_dma(6) + wq_dma(5))
    QT = {}

    def qacc(bq, qb):
        if (bq, qb) not in QT:
            QT[(bq, qb)] = alloc()
        return QT[(bq, qb)]
    XQ = {8: XB[8], 7: XB[7], 6: XB[6], 4: ring(1), 3: ring(2), 2: ring(0), 0: ring(1)}
    C2 = OPT.get('cap_p2', 2)
    qn = lambda c: (LS(WQ_SLOT[c]), ('Q', c))
    for bq in range(8):
        hook = None
        if bq == 0:
            def hook():
                stamp(3)
                g.vm_gap = OPT.get('vg2', 3)
                for qb in range(4):
                    g.lo.extend(swiglu_unit(8, qb, g.n + 3, pool))
        if bq == 3:
            def hook():
                XQ[5] = XQ[1] = [alloc() for _ in range(8)]
                g.hi.extend(xn_l(5, XQ[5]))
        seq.add(lambda dst, bq=bq: p2_reads(8, bq, dst) + p2_reads(7, bq, dst + 8), 16,
                mk_mf(lambda qb, bq=bq: qacc(bq, qb), [8, 7], lambda c: XQ[c], True), hook=hook,
                bar=[qn(8), qn(7)] if bq == 0 else None, cap=C2)
        if bq == 0:
            seq.groups[-1]['post'] = lambda: g.hi.extend(
                wq_dma(4) + wq_dma(3) + wq_dma(2))
    for c in (6, 5, 4, 3, 2):
        for bq in range(8):
            hook = None
            if bq == 0:
                def hook(c=c):
                    for cc in {6: (4, 3), 5: (2,), 4: (1,), 3: (0,), 2: ()}[c]:
                        g.hi.extend(xn_l(cc, XQ[cc]))
            seq.add(lambda dst, c=c, bq=bq: p2_reads(c, bq, dst), 8,
                    mk_mf(lambda qb, bq=bq: qacc(bq, qb), [c], lambda c: XQ[c], False), hook=hook,
                    bar=[qn(c)] if bq == 0 else None, cap=C2,
                    bwait=(lambda c=c: [rg(t) for t in XQ[c]]) if bq == 0 else None)
            if bq == 0:
                seq.groups[-1]['lazyb'] = c
                post = {6: lambda: g.hi.extend(wq_dma(1) + wq_dma(0)),
                        3: lambda: g.hi.extend(dma_unit('K', 0, False)),
                        2: lambda: g.hi.extend(dma_unit('K', 1, False) + dma_unit('V', 0, False))}.get(c)
                seq.groups[-1]['post'] = post
    for bq in range(8):
        hook = None
        if bq == 0:
            def hook():
                print('swiglu backlog at last P2 group:', len(g.hi), len(g.lo), 'over', g.over, file=sys.stderr)
                g.hi.extend(dma_unit('K', 2, False) + dma_unit('V', 1, False))
        if bq >= 2 and bq % 2 == 0:
            def hook(s=bq // 2 - 1):
                for qb in range(4):
                    g.lo.extend(qcvt_unit(qb, s, QT, g.n + 3))
        seq.add(lambda dst, bq=bq: p2_reads(1, bq, dst) + p2_reads(0, bq, dst + 8), 16,
                mk_mf(lambda qb, bq=bq: qacc(bq, qb), [1, 0], lambda c: XQ[c], False), hook=hook,
                bar=[qn(1), qn(0)] if bq == 0 else None, cap=C2,
                bwait=(lambda: [rg(t) for t in XQ[1] + XQ[0]]) if bq == 0 else None)
    seq.run()
    stamp(4)
    print('G backlog at end:', len(g.hi), len(g.lo), 'over', g.over, 'waste', g.waste, file=sys.stderr)
    for qb in range(4):
        g.lo.extend(qcvt_unit(qb, 3, QT, 0))
    addall(k_read_setup())
    p.need(('lgkm', 'all'), (LS(0), ('K', 0)))
    p('s_barrier')
    for kb in range(4):
        for s in range(4):
            p.add(k_load(0, kb, s, False))
    g.flush()
    g.vm_gap = 4
    g.hi.extend(dma_unit('K', 3, False))
    g.hi.extend(d_scalar_setup1())
    g.lo.extend(Ins('v_accvgpr_write_b32 %s, 0' % ar(A_O + i)) for i in range(128))
    for kb in range(4):
        for qb in range(4):
            for s in range(4):
                d = vr(Sreg(kb, qb), 4)
                g.gap('%s %s, %s, %s, %s' % (MF, d, ar(A_KF + kb * 16 + s * 4, 4), vr(V_Q + (qb * 4 + s) * 4, 4), '0' if s == 0 else d))
    g.flush()
    addall(v_read_setup())
    for qb in range(4):
        p('v_mov_b32 %s, 0' % vr(V_L + qb))
    p('v_lshlrev_b32 %s, 20, v0' % vr(V_FST))
    p('s_getreg_b32 %s, hwreg(HW_REG_XCC_ID)' % T(0))
    p('s_and_b32 %s, %s, 15' % (T(0), T(0)))
    p('s_add_u32 %s, %s, 1' % (T(0), T(0)))
    p('v_mov_b32 %s, %s' % (vr(V_ONE), T(0)))
    p('v_lshlrev_b32 %s, 7, %s' % (vr(V_FOFF), L))
    p('v_mov_b32 %s, %s' % (vr(V_RN), L))
    addall(repack_pat())
    ms = [vr(V_E + qb) for qb in range(4)]
    for step in range(8):
        for qb in range(4):
            regs = [vr(Sreg(kb, qb) + r) for kb in range(4) for r in range(4)]
            if step == 0:
                p('v_max3_f32 %s, %s, %s, %s' % (ms[qb], regs[0], regs[1], regs[2]))
            elif step < 7:
                p('v_max3_f32 %s, %s, %s, %s' % (ms[qb], ms[qb], regs[2 * step + 1], regs[2 * step + 2]))
            else:
                p('v_max_f32 %s, %s, %s' % (ms[qb], ms[qb], regs[15]))
    addall(xlane4('v_max_f32', ms, [vr(V_T + k) for k in range(4)]))
    for qb in range(4):
        for r in range(4):
            p('v_sub_f32 %s, 0, %s' % (vr(V_NM + qb * 4 + r), ms[qb]))
    for kb in range(4):
        for qb in range(4):
            for r in range(4):
                x = vr(Sreg(kb, qb) + r)
                p('v_add_f32 %s, %s, %s' % (x, x, vr(V_NM + qb * 4)))
    stamp(5)
    def sm_plain(uu, i0, i1):
        prev = []
        for i in range(i0, i1):
            ex, ad, cv = sm_instrs(uu, i)
            p.add(ex)
            addall(prev)
            prev = [ad] + ([cv] if cv else [])
        p('s_nop 0')
        addall(prev)
    sm_plain(0, 0, 28)
    att_slots(p, 0, 0, 64, False, pv=False, sm_cur=False)
    sm_plain(0, 28, 60)
    p('s_mov_b32 %s, 0' % sr(S_CNT))
    p.wait_regs(ar(A_KF, 16))
    lp = p.loop_begin(7, 'att')
    p('.p2align 6')
    p.label('L_att')
    rtag = ('R', 0)
    g.vm_gap = 8

    def rp_loads():
        g.hi.append(Ins('buffer_load_dwordx4 %s, %s, %s, 0 offen nt' % (vr(V_RQ[0], 4), vr(V_RV), sr(S_A1, 4))))
        g.hi.append(Ins('buffer_load_dwordx4 %s, %s, %s, 0 offen nt' % (vr(V_RQ[1], 4), vr(V_RV), sr(S_A2, 4))))

    def rp_stores():
        g.hi.append(Ins('buffer_store_dwordx4 %s, %s, %s, %s offen sc1' % (vr(V_RQ[0], 4), vr(V_L16), sr(S_A3, 4), sr(S_RO)), lds=rtag))
        g.hi.append(Ins('buffer_store_dwordx4 %s, %s, %s, %s offen sc1' % (vr(V_RQ[1], 4), vr(V_L16), sr(S_A4, 4), sr(S_RO)), lds=rtag))
        g.hi.append(Ins('s_add_u32 %s, %s, 1024' % (sr(S_RO), sr(S_RO))))
    att_slots(p, 0, 64, 96, True)
    rp_loads()
    att_slots(p, 0, 96, 128, True, g=g, cap=4)
    assert not g.hi
    att_slots(p, 1, 0, 64, True)
    p('s_add_u32 %s, %s, 1' % (sr(S_CNT), sr(S_CNT)))
    p('s_cmp_eq_u32 %s, 7' % sr(S_CNT))
    p('s_cbranch_scc1 L_att_tail')
    p.loop_mark_exit(lp)
    g.lo.extend(repack_pat())
    att_slots(p, 1, 64, 128, True, g=g, cap=3)
    assert not g.lo
    att_slots(p, 2, 0, 30, True, extra_need=[rtag, ('H', 0)])
    p('s_cmp_eq_u32 %s, 4' % sr(S_CNT))
    p('s_cselect_b32 %s, %s, 0x100000' % (T(0), sr(S_FWG)))
    fl = flag_store(S_T0, 'H')
    g.hi.append(fl)
    g.vm_gap = 3
    rp_stores()
    att_slots(p, 2, 30, 66, True, g=g, cap=4)
    assert not g.hi
    att_slots(p, 2, 66, 96, True)
    g.vm_gap = 8
    rp_loads()
    att_slots(p, 2, 96, 128, True, g=g, cap=4)
    assert not g.hi
    g.lo.extend(repack_pat())
    att_slots(p, 3, 0, 128, True, g=g, cap=3)
    assert not g.lo
    att_slots(p, 4, 0, 30, True)
    g.vm_gap = 3
    rp_stores()
    att_slots(p, 4, 30, 64, True, g=g, cap=4)
    assert not g.hi
    p('s_branch L_att')
    p.loop_end()
    p.label('L_att_tail')
    stamp(6)
    g.vm_gap = 4
    att_slots(p, 25, 64, 96, False)
    g.hi.append(poll_issue(S_FGR))
    tt = []
    a = lambda x: tt.append(Ins(x))
    a('s_lshr_b32 %s, s2, 3' % T(0))
    a('s_lshl_b32 %s, %s, 2' % (T(1), sr(S_SP)))
    a('s_add_u32 %s, %s, %s' % (T(1), T(1), sr(S_W)))
    a('s_mul_i32 %s, %s, %d' % (T(1), T(1), 2176 * 288))
    a('s_mul_i32 %s, %s, 1152' % (T(2), T(0)))
    a('s_add_u32 %s, %s, %s' % (T(1), T(1), T(2)))
    a('s_add_u32 %s, %s, 0x%x' % (T(1), T(1), WS_W))
    tt += srd_ins(S_A1, P_WS, T(1), 16 * 36864 + 1152)
    a('s_and_b32 %s, s2, 4' % T(1))
    a('s_lshl_b32 %s, %s, 3' % (T(1), T(1)))
    a('s_add_u32 %s, %s, %s' % (T(1), T(1), T(0)))
    a('s_lshl_b32 %s, %s, 1' % (T(1), T(1)))
    a('s_and_b32 %s, %s, 1' % (T(2), sr(S_W)))
    a('s_add_u32 %s, %s, %s' % (T(1), T(1), T(2)))
    a('s_mul_i32 %s, %s, %d' % (T(1), T(1), 144 * 1024))
    a('s_mul_i32 %s, %s, %d' % (T(2), sr(S_SP), 36 * 1024))
    a('s_add_u32 %s, %s, %s' % (T(1), T(1), T(2)))
    a('s_add_u32 %s, %s, 0x%x' % (T(1), T(1), WS_H))
    tt += srd_ins(S_A2, P_WS, T(1), 36 * 1024)
    a('s_lshr_b32 %s, %s, 1' % (T(1), sr(S_W)))
    a('s_lshl_b32 %s, %s, 13' % (sr(S_RO), T(1)))
    g.hi.extend(tt)
    g.lo.extend([Ins('v_mul_u32_u24 %s, 7282, %s' % (vr(V_RV), L)),
                 Ins('v_lshrrev_b32 %s, 16, %s' % (vr(V_RV), vr(V_RV))),
                 Ins('v_mul_u32_u24 %s, %d, %s' % (vr(V_RV), 36864 - 1152, vr(V_RV))),
                 Ins('v_lshl_add_u32 %s, %s, 7, %s' % (vr(V_RV), L, vr(V_RV)))])
    att_slots(p, 25, 96, 128, False, g=g, cap=4)
    att_slots(p, 26, 0, 64, False, g=g, cap=3, dmav=False)
    g.flush()
    addall(dma_unit('V', 28, False))
    poll_check(p, 'h', S_FGR, 'v_cmp_eq_u32 vcc, 0')
    p('v_cmp_ne_u32 vcc, %s, %s' % (vr(V_ONE), vr(V_FV)))
    p('s_and_b32 %s, %s, 0x38' % (T(0), sr(S_TILE)))
    p('s_lshr_b64 vcc, vcc, %s' % T(0))
    p('s_and_b32 %s, vcc_lo, 0xff' % sr(S_OFFW))

    def touch_w(k):
        return [Ins('s_mov_b32 %s, %d' % (T(6), k * 7 * 36864)),
                Ins('buffer_load_dword v248, %s, %s, %s offen' % (vr(V_RV), sr(S_A1, 4), T(6)))]

    def touch_h(k):
        return [Ins('s_add_u32 %s, %s, %d' % (T(6), sr(S_RO), k * 16384)),
                Ins('buffer_load_dword v249, %s, %s, %s offen' % (vr(V_FOFF), sr(S_A2, 4), T(6)))]
    TD = OPT.get('touch_d', 1)
    att_slots(p, 26, 64, 96, False)
    if TD:
        g.hi.extend(touch_w(0))
    att_slots(p, 26, 96, 128, False, g=g, cap=4)
    att_slots(p, 27, 0, 32, False)
    if TD:
        g.hi.extend(touch_h(0))
    att_slots(p, 27, 32, 64, False, g=g, cap=4)
    att_slots(p, 27, 64, 96, False)
    if TD:
        g.hi.extend(touch_h(1))
    att_slots(p, 27, 96, 128, False, g=g, cap=4)
    att_slots(p, 28, 0, 32, False, dmak=False)
    if TD > 1:
        g.hi.extend(touch_h(2))
    att_slots(p, 28, 32, 64, False, g=g, cap=4, dmak=False)
    if TD > 1:
        g.hi.extend(touch_w(1))
    att_slots(p, 28, 64, 128, False, g=g, cap=4, dmak=False)
    att_slots(p, 29, 0, 64, False, dmak=False)
    assert not g.hi
    if TD:
        for k in range(4):
            p('s_mov_b32 %s, %s' % (sr(S_DWO + k), sr(S_A1 + k)))
    g.hi.extend(d_scalar_setup2())
    att_slots(p, 29, 64, 128, False, dmak=False, g=g, cap=4)
    g.flush()
    p.label('L_donly')
    att_slots(p, 30, 0, 2, False, dmak=False, dmav=False, g=g)
    g.hi.extend(d_dma(0))
    g.hi.append(sadd(S_FWG, 32768))
    g.hi.append(Ins('s_andn2_b32 %s, %s, 0x3ff' % (sr(S_FGR), sr(S_FWG))))
    g.lo.append(Ins('v_and_b32 %s, 0x380, %s' % (vr(V_FOFF), vr(V_FOFF))))
    att_slots(p, 30, 2, 128, False, dmak=False, dmav=False, g=g, cap=4, barrier=False)
    g.flush()
    g.vm_gap = 2
    att_slots(p, 31, 0, 2, False, qk=False, sm_next=False, dmak=False, dmav=False, g=g, vearly=True)
    g.hi.extend(d_bloads(0) + d_dma(1) + d_bloads(1))
    o = []
    o.append(Ins('v_lshrrev_b32 %s, 2, %s' % (t0, L)))
    o.append(Ins('v_mul_u32_u24 %s, 288, %s' % (t1, t0)))
    o.append(Ins('v_and_b32 %s, 3, %s' % (t2, L)))
    o.append(Ins('v_lshl_add_u32 %s, %s, 3, %s' % (vr(V_DRA), t2, t1)))
    for k in range(1, 4):
        o.append(Ins('v_add_u32 %s, %d, %s' % (vr(V_DRA + k), k * 36864, vr(V_DRA))))
    g.lo.extend(o)
    att_slots(p, 31, 2, 64, False, qk=False, sm_next=False, dmak=False, dmav=False, g=g, cap=4, barrier=False, vearly=True)
    g.flush()
    sm_plain(31, 60, 64)
    ls = [vr(V_L + qb) for qb in range(4)]
    g.lo.extend(xlane4('v_add_f32', ls, [vr(V_T + k) for k in range(4)]))
    g.lo.extend(Ins('v_rcp_f32 %s, %s' % (x, x)) for x in ls)
    n0 = g.n
    n = 0
    for t in range(4):
        for qb in range(4):
            g.lo.extend(o_epilogue_unit(qb, t, n, n0 + 16 * (t + 1) + 3))
            n += 1
    p.wait_regs(ar(A_VF, 8))
    att_slots(p, 32, 0, 2, False, qk=False, sm_cur=False, sm_next=False, vnext=False, dmak=False, dmav=False, g=g, barrier=False)
    p.need(('lgkm', 'all'), (PS(0), ('D', 0)))
    p('s_barrier')
    g.hi.extend(d_dma(2))
    att_slots(p, 32, 2, 48, False, qk=False, sm_cur=False, sm_next=False, vnext=False, dmak=False, dmav=False, g=g, barrier=False)
    g.hi.extend(d_reads(0, 0) + d_reads(0, 1))
    att_slots(p, 32, 48, 64, False, qk=False, sm_cur=False, sm_next=False, vnext=False, dmak=False, dmav=False, g=g, barrier=False)
    g.flush(g.hi)
    stamp(7)
    p.wait_regs(ar(A_DB, 32), vr(V_DA, 16))
    p('s_barrier')
    stamp(8)
    G2, GG = V_AC2, V_AC2 + 48
    xreg = lambda k, rb: 44 + (k * 2 + rb) * 2
    VO = V_T + 5

    def fin_setup():
        o = []
        o.append(Ins('v_and_b32 %s, 0x180, %s' % (vr(V_FOFF), vr(V_FOFF))))
        o.append(Ins('s_andn2_b32 %s, %s, 0x1ff' % (sr(S_FGR), sr(S_FT))))
        o.append(Ins('v_and_b32 %s, 15, %s' % (t0, L)))
        o.append(Ins('v_mul_u32_u24 %s, 1152, %s' % (t0, t0)))
        o.append(Ins('v_lshrrev_b32 %s, 4, %s' % (t1, L)))
        o.append(Ins('v_lshl_add_u32 %s, %s, 3, %s' % (vr(VO), t1, t0)))
        for k in range(3):
            for rb in range(2):
                o.append(Ins('buffer_load_dwordx2 %s, %s, %s, %s offen offset:%d' % (
                    vr(xreg(k, rb), 2), vr(VO), sr(S_DX, 4), sr(S_HS + 4 + rb + (2 if k == 2 else 0)), 128 * k)))
        return o

    def silu_g():
        o = []
        for k in range(3):
            d = GG + 8 * k
            o += d_sum(G2, k, d, V_T)
            for e in range(0, 8, 2):
                ta, tb = vr(V_T), vr(V_T + 1)
                o.append(Ins('v_mul_f32 %s, %s, %s' % (ta, sr(S_NL), vr(d + e))))
                o.append(Ins('v_mul_f32 %s, %s, %s' % (tb, sr(S_NL), vr(d + e + 1))))
                o.append(Ins('v_exp_f32 %s, %s' % (ta, ta)))
                o.append(Ins('v_exp_f32 %s, %s' % (tb, tb)))
                o.append(Ins('v_add_f32 %s, 1.0, %s' % (ta, ta)))
                o.append(Ins('v_add_f32 %s, 1.0, %s' % (tb, tb)))
                o.append(Ins('v_rcp_f32 %s, %s' % (ta, ta)))
                o.append(Ins('v_rcp_f32 %s, %s' % (tb, tb)))
                o.append(Ins('v_mul_f32 %s, %s, %s' % (vr(d + e), vr(d + e), ta)))
                o.append(Ins('v_mul_f32 %s, %s, %s' % (vr(d + e + 1), vr(d + e + 1), tb)))
        return o

    g.vm_gap = 1
    SO = OPT.get('o_done', 2)
    left = []
    for c in range(17):
        acc0 = V_AC2 if c < 9 else V_AC1
        first = c in (0, 9)
        if c == 9:
            stamp(14)
        if OPT.get('dst'):
            p('s_memrealtime %s' % sr(S_DG, 2))
            p('s_waitcnt lgkmcnt(0)')
            p('v_writelane_b32 v1, %s, %d' % (sr(S_DG), 32 + c))
        extra_need = []
        cap = 2
        if c <= SO:
            cap = OPT.get('cap_o', 4)
        if c == SO + 1:
            assert not g.lo and not g.st, len(g.lo)
            extra_need = [('O', 0)]
            g.st_max = 0
        if c == SO + 2:
            if OPT.get('plain_o', 1):
                SPIN_BLOCKS.append('L_wb:\n buffer_wbl2 sc1\n s_waitcnt vmcnt(0)\n s_branch L_wb_done')
                p('s_cmp_lg_u32 %s, 0' % sr(S_OFFW))
                p('s_cbranch_scc1 L_wb')
                p.label('L_wb_done')
            g.hi.append(flag_store(S_FWG, 'O'))
        if OPT.get('touch_d', 1) and c in (1, 4):
            k = {1: 1, 4: 2}[c]
            if not (k == 1 and OPT.get('touch_d', 1) > 1):
                g.hi.extend([Ins('s_mov_b32 %s, %d' % (T(6), k * 7 * 36864)),
                             Ins('buffer_load_dword v248, %s, %s, %s offen' % (vr(V_RV), sr(S_DWO, 4), T(6)))])
        if c == 6:
            g.hi.append(poll_issue(S_FGR))
        if c == 7:
            poll_check(p, 'o', S_FGR)
            g.hi.extend(d_bloads(9))
            cap = 3
        if c == 0:
            g.hi.extend(d_bloads(2))
        if c + 3 < 17:
            g.hi.extend((d_bloads(c + 3) if c != 6 else []) + d_dma(c + 3))
        if c in (9, 10):
            for nb in (range(5) if c == 9 else range(5, 9)):
                g.lo.extend(d_pstore(1, nb))
            cap = 3
        if c == 11:
            assert not g.lo
            extra_need = [('PT1', 0)]
            fs = fin_setup()
            g.lo.extend(fs[:-6])
            cap = 3
        if c == 12:
            g.hi.appendleft(flag_store(S_FT, 'PT1'))
        if c == 14:
            g.hi.append(poll_issue(S_FGR))
            g.hi.extend(fs[-6:])
        if c == 15:
            poll_check(p, 'p2', S_FGR)
            g.hi.extend([sadd(S_FGR, 32768), sadd(S_FT, 32768)])
            g.hi.extend(d_ploads(1, G2))
        for nb in range(9):
            n2 = nb + 2
            Lr = d_reads(c, n2) if n2 < 9 else (d_reads(c + 1, n2 - 9) if c < 16 else [])
            if c == 16 and nb >= 2:
                g.hi.extend(d_pstore(0, nb - 2))
            for t in range(8):
                rb, ks = t // 4, t % 4
                a = vr(acc0 + (nb * 2 + rb) * 4, 4)
                m = '%s %s, %s, %s, %s' % (MF, a, vr(V_DA + (nb % 3) * 16 + ks * 4, 4),
                                           ar(A_DB + (c % 4) * 32 + (rb * 4 + ks) * 4, 4),
                                           '0' if (first and ks == 0) else a)
                sc, ld = [], []
                if nb == 7:
                    if Lr and t >= 4:
                        ld = [Lr[2 * (t - 4)], Lr[2 * (t - 4) + 1]]
                    if t == 2 and c < 16:
                        sc = [need_ins(('lgkm', 'all'), (PS(c + 1), ('D', c + 1)), *extra_need)]
                    if t == 3 and c < 16:
                        sc = [Ins('s_barrier')]
                elif Lr:
                    ld = [Lr[t], Lr[t + 1]] if t % 2 == 0 else []
                if t == 7:
                    w = [vr(V_DA + ((nb + 1) % 3) * 16, 16)]
                    if nb == 8:
                        w.append(ar(A_DB + ((c + 1) % 4) * 32, 32))
                    sc = [wait_ins(*w)]
                g.gap(m, sc, ld, cap=cap)
        if c < 16:
            assert not g.hi, (c, len(g.hi))
    stamp(9)
    g.hi.extend(d_pstore(0, 7) + d_pstore(0, 8))
    g.flush()
    stamp(10)
    sg = silu_g()
    addall(sg[:len(sg) // 2])
    p.need(('PT0', 0))
    p('s_barrier')
    stamp(11)
    p.add(flag_store(S_FT, 'PT0'))
    p.add(poll_issue(S_FGR))
    addall(sg[len(sg) // 2:])
    poll_check(p, 'p1', S_FGR)
    stamp(12)
    addall(d_ploads(0, G2))
    for k in range(3):
        d = V_AC1 + 16 * k
        addall(d_sum(G2, k, d, V_T))
        for rb in range(2):
            xb = xreg(k, rb)
            for e in range(4):
                tx = vr(d + 8 + e)
                if e % 2 == 0:
                    p('v_lshlrev_b32 %s, 16, %s' % (tx, vr(xb + e // 2)))
                else:
                    p('v_and_b32 %s, 0xffff0000, %s' % (tx, vr(xb + e // 2)))
                p('v_fma_f32 %s, %s, %s, %s' % (tx, vr(d + rb * 4 + e), vr(GG + 8 * k + rb * 4 + e), tx))
            o = d + 12 + 2 * rb
            p('v_cvt_pk_bf16_f32 %s, %s, %s' % (vr(o), vr(d + 8), vr(d + 9)))
            p('v_cvt_pk_bf16_f32 %s, %s, %s' % (vr(o + 1), vr(d + 10), vr(d + 11)))
            p('buffer_store_dwordx2 %s, %s, %s, %s offen offset:%d' % (
                vr(o, 2), vr(VO), sr(S_DOUT, 4), sr(S_HS + 4 + rb + (2 if k == 2 else 0)), 128 * k))
    if diag:
        p('s_waitcnt vmcnt(0)')
        stamp(13)
        p('s_mov_b32 %s, 0x%x' % (T(3), WS_T))
        make_srd(p, S_K, P_WS, T(3), 0x100000)
        p('s_lshl_b32 %s, s2, 2' % T(0))
        p('s_add_u32 %s, %s, %s' % (T(0), T(0), sr(S_W)))
        p('s_lshl_b32 %s, %s, 8' % (T(0), T(0)))
        p('v_lshlrev_b32 v4, 2, %s' % L)
        p('buffer_store_dword v1, v4, %s, %s offen' % (sr(S_K, 4), T(0)))
    p.label('L_end')
    p('s_endpgm')
    for t in SPIN_BLOCKS:
        p.raw(t)
    for x in p.flat():
        if OPT.get('kv_nt', 1) and x.kind == 'dma' and ('s[4:7]' in x.text or 's[8:11]' in x.text):
            x.text = x.text.replace(' lds', ' nt lds')
        if OPT.get('w_nt') and x.kind == 'dma' and x.lds and not callable(x.lds[1]) and x.lds[1][0] in 'WQ':
            x.text = x.text.replace(' lds', ' nt lds')
        if OPT.get('st01') and x.kind == 'vst' and 'x4' in x.text:
            x.text = x.text.replace(' sc1', ' sc0 sc1')
        if OPT.get('nost') and x.kind == 'vst' and 'x4' in x.text and x.lds and (x.lds[0] == 'O' or (OPT['nost'] > 1 and x.lds[0] == 'PT1')):
            x.text = 's_nop 0'
            x.kind = 'sopp'; x.op = 's_nop'; x.ops = ['0']; x.rd = []; x.lds = None
        if OPT.get('dplain') and x.kind in ('dma', 'vld') and 'x4' in x.text:
            x.text = x.text.replace(' sc1', '')
    p.finalize(verbose=bool(OPT.get('verbose')), check=not (OPT.get('drop') or OPT.get('nost')))
    print('total overflow slots', g.over, p.stats(), file=sys.stderr)
    return p


def build(diag=False):
    ln, km = gen_ln(), gen_main(diag)
    hdr = open('cdna_kernels/%s.s.ref' % NAME).read().split('; Override launch')[0]
    out = hdr
    if not OPT.get('donly'):
        out += '; @launch kernel=ln_kernel grid=(256,1,1) block=(256,1,1) lds=0\n'
    out += '; @launch kernel=main_kernel grid=(256,1,1) block=(256,1,1) lds=163840\n'
    out += '.amdgcn_target "amdgcn-amd-amdhsa--gfx950"\n.text\n'
    out += kernel_text('ln_kernel', ln, 0, 0) + kernel_text('main_kernel', km, 0, 0)
    out += '.section .rodata,"a"\n'
    for n, nv, acc in (('ln_kernel', 64, 64), ('main_kernel', 512, 256)):
        out += '.p2align 6\n' + descriptor(n, nv, acc)
    return out


if __name__ == '__main__':
    diag = 'diag' in sys.argv[2:]
    for a in sys.argv[2:]:
        if '=' in a:
            k, v = a.split('=')
            OPT[k] = int(v)
    open(sys.argv[1], 'w').write(build(diag))
```

```python
import sys, struct
from collections import deque
from dsl import *

OPT = {}
NAME = 'recurrent_scan__mha_block_cached__glu_gated_swiglu__prompt'
WS_XN = 0
WS_F = 3 << 20
WS_O = 4 << 20
WS_H = 24 << 20
WS_P = 48 << 20
PG = 64 * 16 * 9216
WS_W = 96 << 20
WS_T = 128 << 20
MF = 'v_mfma_f32_16x16x32_bf16'
LOG2E = 1.4426950408889634


def f2u(x):
    return struct.unpack('<I', struct.pack('<f', x))[0]


def srd_ins(srd, ptr, off, size):
    o = []
    if off is None:
        o.append(Ins('s_mov_b32 %s, %s' % (sr(srd), sr(ptr))))
        o.append(Ins('s_mov_b32 %s, %s' % (sr(srd + 1), sr(ptr + 1))))
    else:
        o.append(Ins('s_add_u32 %s, %s, %s' % (sr(srd), sr(ptr), off)))
        o.append(Ins('s_addc_u32 %s, %s, 0' % (sr(srd + 1), sr(ptr + 1))))
    o.append(Ins('s_mov_b32 %s, %s' % (sr(srd + 2), size if isinstance(size, str) else '0x%x' % size)))
    o.append(Ins('s_mov_b32 %s, 0x00020000' % sr(srd + 3)))
    return o


def make_srd(p, srd, ptr, off, size):
    for x in srd_ins(srd, ptr, off, size):
        p.add(x)


def cost(ins):
    if ins.kind == 'valu':
        return 2 if ins.trans else 1
    if ins.kind in ('dsr', 'dsw'):
        return 1
    if ins.kind in ('dma', 'vld', 'vst'):
        return 2
    return 0


class Gaps:
    def __init__(self, p):
        self.p = p
        self.hi = deque()
        self.lo = deque()
        self.n = 0
        self.over = 0
        self.waste = 0
        self.drop = ()
        self.vm_next = 0
        self.st = deque()
        self.st_max = 2
        self.vm_gap = 1

    def emit(self, x):
        if self.drop and x.kind in self.drop:
            return
        self.p.add(x)
        if x.on_emit:
            x.on_emit()

    def gap(self, mfma, sc=(), ld=(), va=(), cap=2):
        if mfma is not None:
            self.p.add(mfma if isinstance(mfma, Ins) else Ins(mfma))
        sc, ld, va = list(sc), list(ld), list(va)
        used = sum(cost(x) for x in ld + va)
        for q in (self.st, self.hi, self.lo):
            pulled = False
            pva = False
            while q:
                x = q[0]
                if x.ready > self.n:
                    break
                c = cost(x)
                if q is self.lo and x.kind == 'vst' and len(self.st) < self.st_max:
                    x.ready = self.n + 1
                    self.st.append(q.popleft())
                    continue
                if c == 0:
                    if sc or pulled:
                        break
                    sc.append(q.popleft())
                    if 'm0' in x.wr:
                        break
                    continue
                if used + c > cap:
                    break
                if x.kind != 'valu':
                    if pva:
                        break
                    if c == 2:
                        if self.n < self.vm_next:
                            break
                        w = 3 if x.kind == 'vst' else (4 if 'buffer_load_dword ' in x.text and 'sc1' not in x.text else 1)
                        self.vm_next = self.n + self.vm_gap * w
                    ld.append(q.popleft())
                else:
                    va.append(q.popleft())
                    pva = True
                used += c
                pulled = True
        for x in sc + ([Ins(mfma)] if isinstance(mfma, str) else []):
            self.check(x)
        self.over += max(0, used - 2)
        if used < 2 and (self.hi or self.lo):
            self.waste += 2 - used
        for x in sc + ld + va:
            self.emit(x)
        self.n += 1

    def check(self, x):
        regs = set(x.rd) if (x.text.startswith('; need') or x.kind == 'mfma') else set()
        tags = [t for t in (x.need or []) if not callable(t[1])]
        for q in (self.st, self.hi, self.lo):
            for y in q:
                if y.kind in ('vld', 'dsr') and set(y.wr) & regs and not getattr(y, 'later', False):
                    raise AssertionError('consumer %s before queued load %s' % (x.text, y.text))
                if y.lds is not None and y.lds in tags:
                    raise AssertionError('need %s before queued %s' % (tags, y.text))

    def flush(self, q=None):
        for qq in ((self.st, self.hi, self.lo) if q is None else (q,)):
            while qq:
                x = qq.popleft()
                self.over += max(1, cost(x))
                self.emit(x)


def rg(t, n=4):
    return (vr if t[0] == 'v' else ar)(t[1], n)


def prefetch_w(p, ptr, srd, soff, rows, stride, lines, rounds, vt, vd):
    t = lambda k: vr(vt + k)
    make_srd(p, srd, ptr, soff, (rows - 1) * stride + lines * 128)
    return t


def gen_ln():
    p = Prog()
    p('s_cmp_ge_u32 s2, 256')
    p('s_cbranch_scc1 L_ln_end')
    p('s_load_dwordx2 s[12:13], s[0:1], 0')
    p('s_load_dwordx2 s[14:15], s[0:1], 88')
    p('s_load_dwordx4 s[32:35], s[0:1], 48')
    p('v_lshrrev_b32 v1, 5, v0')
    p('s_lshl_b32 s3, s2, 3')
    p('v_add_u32 v1, s3, v1')
    p('v_and_b32 v2, 31, v0')
    p('v_lshrrev_b32 v3, 2, v2')
    p('v_and_b32 v4, 3, v2')
    p('v_mul_u32_u24 v5, 1152, v1')
    p('v_lshl_add_u32 v5, v3, 6, v5')
    p('v_lshl_add_u32 v5, v4, 3, v5')
    p('v_cmp_gt_u32 vcc, 8, v2')
    p('s_mov_b64 s[16:17], vcc')
    for r in range(16, 20):
        p('v_mov_b32 v%d, 0' % r)
    p('s_waitcnt lgkmcnt(0)')
    make_srd(p, 4, 12, None, 2048 * 1152)
    for it in range(2):
        p('buffer_load_dwordx2 v[%d:%d], v5, s[4:7], 0 offen offset:%d' % (8 + 4 * it, 9 + 4 * it, it * 512))
        p('buffer_load_dwordx2 v[%d:%d], v5, s[4:7], 0 offen offset:%d' % (10 + 4 * it, 11 + 4 * it, it * 512 + 32))
    p('s_mov_b64 exec, s[16:17]')
    p('buffer_load_dwordx2 v[16:17], v5, s[4:7], 0 offen offset:1024')
    p('buffer_load_dwordx2 v[18:19], v5, s[4:7], 0 offen offset:1056')
    p('s_mov_b64 exec, -1')
    R0 = OPT.get('pf0', 6)
    if R0:
        p('s_lshr_b32 s20, s2, 3')
        p('s_mul_i32 s20, s20, %d' % (R0 * 9216))
        p('s_and_b32 s21, s2, 3')
        p('s_mul_i32 s21, s21, 2304')
        p('s_add_u32 s20, s20, s21')
        make_srd(p, 36, 32, 's20', (R0 - 1) * 9216 + 2304)
        make_srd(p, 40, 34, 's20', (R0 - 1) * 9216 + 2304)
        p('v_mul_u32_u24 v56, 3641, v0')
        p('v_lshrrev_b32 v56, 16, v56')
        p('v_mul_u32_u24 v57, 18, v56')
        p('v_sub_u32 v57, v0, v57')
        p('v_mul_u32_u24 v56, 9216, v56')
        p('v_lshl_add_u32 v56, v57, 7, v56')
        p('buffer_load_dword v58, v56, s[36:39], 0 offen')
        p('buffer_load_dword v59, v56, s[40:43], 0 offen')
    if OPT.get('pfc', 1):
        p('s_getpc_b64 s[44:45]')
        p.label('L_pc')
        p('s_add_u32 s44, s44, main_kernel-L_pc')
        p('s_addc_u32 s45, s45, 0')
        p('s_lshr_b32 s46, s2, 3')
        p('s_lshl_b32 s46, s46, 12')
        p('v_and_b32 v60, 31, v0')
        p('v_lshlrev_b32 v60, 7, v60')
        p('v_add_u32 v60, s46, v60')
        p('v_min_u32 v60, L_code_end-main_kernel-4, v60')
        p('global_load_dword v61, v60, s[44:45]')
    make_srd(p, 8, 14, None, 2048 * 1152)
    p('v_lshrrev_b32 v6, 4, v1')
    p('v_mul_u32_u24 v6, 18, v6')
    p('v_add_u32 v6, v6, v3')
    p('v_lshlrev_b32 v6, 10, v6')
    p('v_lshl_add_u32 v6, v4, 8, v6')
    p('v_and_b32 v7, 15, v1')
    p('v_lshl_add_u32 v6, v7, 4, v6')
    p('s_mov_b32 s20, 0x%x' % WS_F)
    make_srd(p, 24, 14, 's20', 4 * 32768)
    p('s_lshl_b32 s21, s2, 7')
    p('v_lshlrev_b32 v50, 15, v0')
    p('v_mov_b32 v52, 0')
    p('buffer_store_dword v52, v50, s[24:27], s21 offen')
    for d in range(12):
        p('v_lshlrev_b32 v%d, 16, v%d' % (20 + 2 * d, 8 + d))
        p('v_and_b32 v%d, 0xffff0000, v%d' % (21 + 2 * d, 8 + d))

    def reduce32(x, t):
        for k in (8, 4, 2, 1):
            p('v_add_f32_dpp %s, %s, %s row_ror:%d row_mask:0xf bank_mask:0xf' % (x, x, x, k))
        p('v_mov_b32 %s, %s' % (t, x))
        p('v_permlane16_swap_b32 %s, %s' % (x, t))
        p('v_add_f32 %s, %s, %s' % (x, x, t))
    p('v_add_f32 v44, v20, v21')
    p('v_add_f32 v45, v22, v23')
    for e in range(4, 24, 2):
        p('v_add_f32 v44, v44, v%d' % (20 + e))
        p('v_add_f32 v45, v45, v%d' % (21 + e))
    p('v_add_f32 v44, v44, v45')
    reduce32('v44', 'v45')
    p('v_mul_f32 v44, 0x%x, v44' % f2u(1.0 / 576))
    p('v_mov_b32 v46, 0')
    p('v_mov_b32 v47, 0')
    for e in range(16):
        p('v_sub_f32 v48, v%d, v44' % (20 + e))
        p('v_fmac_f32 v%d, v48, v48' % (46 + e % 2))
    p('s_mov_b64 exec, s[16:17]')
    for e in range(16, 24):
        p('v_sub_f32 v48, v%d, v44' % (20 + e))
        p('v_fmac_f32 v%d, v48, v48' % (46 + e % 2))
    p('s_mov_b64 exec, -1')
    p('v_add_f32 v46, v46, v47')
    reduce32('v46', 'v45')
    p('v_mul_f32 v46, 0x%x, v46' % f2u(1.0 / 576))

    def rnd(x):
        p('v_cvt_pk_bf16_f32 %s, %s, %s' % (x, x, x))
        p('v_lshlrev_b32 %s, 16, %s' % (x, x))
    rnd('v44')
    rnd('v46')
    p('v_add_f32 v46, 0x%x, v46' % f2u(1e-5))
    rnd('v46')
    p('v_sqrt_f32 v46, v46')
    rnd('v46')
    p('v_rcp_f32 v46, v46')
    for d in range(12):
        a, b = 20 + 2 * d, 21 + 2 * d
        p('v_sub_f32 v%d, v%d, v44' % (a, a))
        p('v_sub_f32 v%d, v%d, v44' % (b, b))
        p('v_cvt_pk_bf16_f32 v%d, v%d, v%d' % (8 + d, a, b))
        p('v_lshlrev_b32 v%d, 16, v%d' % (a, 8 + d))
        p('v_and_b32 v%d, 0xffff0000, v%d' % (b, 8 + d))
        p('v_mul_f32 v%d, v%d, v46' % (a, a))
        p('v_mul_f32 v%d, v%d, v46' % (b, b))
        p('v_cvt_pk_bf16_f32 v%d, v%d, v%d' % (8 + d, a, b))
    p('s_mov_b32 s18, 8192')
    p('s_mov_b32 s19, 16384')
    p('buffer_store_dwordx4 v[8:11], v6, s[8:11], 0 offen')
    p('buffer_store_dwordx4 v[12:15], v6, s[8:11], s18 offen')
    p('s_mov_b64 exec, s[16:17]')
    p('buffer_store_dwordx4 v[16:19], v6, s[8:11], s19 offen')
    p.label('L_ln_end')
    p('s_endpgm')
    p.finalize()
    return p


S_K, S_V, S_XN, S_WS, S_WQ, S_H, S_O, S_FL, S_A1, S_A2, S_A3, S_A4 = 4, 8, 12, 16, 20, 24, 28, 32, 36, 40, 44, 48
S_DW2, S_DWO, S_DH, S_DO, S_DP, S_DR, S_DX, S_DOUT = 12, 16, 20, 24, 36, 40, 44, 48
(S_W, S_MK, S_MV, S_OFFK, S_OFFV, S_CNT, S_HD, S_QT, S_M1, S_OFFW, S_OFFQ, S_C, S_NL, S_FWG, S_FGR, S_FT,
 S_RO, S_SP, S_TILE) = range(52, 71)
S_HS = 71
S_T0 = 79
S_DG = 90
P_X, P_WO, P_W2, P_OUT, P_WS = 92, 94, 96, 98, 100
T = lambda k: sr(S_T0 + k)

V_L16, V_LANE = 2, 3
V_A1 = 4
V_OW = 8
V_AQ = 8
V_OQ = 20
V_OK, V_OV = 22, 26
V_SW = 28
V_T = 34
V_KA, V_VA, V_L, V_E = 4, 8, 16, 28
V_NM, V_S, V_P, V_Q = 40, 56, 120, 184
V_FST, V_ONE, V_FOFF, V_FV = 252, 253, 254, 255
A_O, A_KF, A_VF = 0, 128, 192
A_A, A_B = 128, 160
X0 = 72
DK, DV = 4, 2
L = vr(V_LANE)
t0, t1, t2, t3 = (vr(V_T + i) for i in range(4))


def LS(n):
    return (n * 16384, 16384)


def PS(c):
    return ((c % 4) * 36864, 36864)


def Sreg(kb, qb):
    return V_S + (kb * 4 + qb) * 4


def Preg(u, qb, ks):
    return V_P + (u & 1) * 32 + qb * 8 + ks * 4


def ktag(u, inloop):
    return (lambda it: ('K', u + 4 * it)) if inloop else ('K', u)


def vtag(u, inloop):
    return (lambda it: ('V', u + 4 * it)) if inloop else ('V', u)


def k_load(u, kb, s, inloop):
    return Ins('ds_read_b128 %s, %s offset:%d' % (ar(A_KF + kb * 16 + s * 4, 4), vr(V_KA + s), (u % 4) * 16384 + kb * 4096),
               lds=(LS(u % 4), ktag(u, inloop)))


def v_load(u, db, ks, j, inloop):
    return Ins('ds_read_b64_tr_b16 %s, %s offset:%d' % (
        ar(A_VF + db * 8 + ks * 4 + 2 * j, 2), vr(V_VA + db), (u % 4) * 16384 + (32 * ks + 16 * j) * 256),
        lds=(LS(4 + u % 4), vtag(u, inloop)))


def dma_unit(kind, u, inloop):
    out = []
    if kind == 'K':
        out.append(Ins('s_add_u32 m0, %s, %d' % (sr(S_MK), (u % 4) * 16384)))
        for cc in range(4):
            out.append(Ins('buffer_load_dwordx4 %s, %s, %s offen offset:%d lds' % (
                vr(V_OK + cc), sr(S_K, 4), sr(S_OFFK), cc * 1024), lds=(LS(u % 4), ktag(u, inloop))))
        out.append(Ins('s_add_u32 %s, %s, 16384' % (sr(S_OFFK), sr(S_OFFK))))
    else:
        out.append(Ins('s_add_u32 m0, %s, %d' % (sr(S_MV), (u % 4) * 16384)))
        for cc in range(4):
            out.append(Ins('buffer_load_dwordx4 %s, %s, %s offen offset:%d lds' % (
                vr(V_OV + cc % 2), sr(S_V, 4), sr(S_OFFV), cc * 1024), lds=(LS(4 + u % 4), vtag(u, inloop))))
        out.append(Ins('s_add_u32 %s, %s, 16384' % (sr(S_OFFV), sr(S_OFFV))))
    return out


def sm_instrs(uu, i):
    n, r = i // 4, i % 4
    kb, qb = n // 4, n % 4
    e = vr(V_E + i % 4)
    ex = Ins('v_exp_f32 %s, %s' % (e, vr(Sreg(kb, qb) + r)))
    ad = Ins('v_add_f32 %s, %s, %s' % (vr(V_L + qb), vr(V_L + qb), e))
    cv = None
    if r % 2 == 1:
        cv = Ins('v_cvt_pk_bf16_f32 %s, %s, %s' % (
            vr(Preg(uu, qb, kb // 2) + (kb % 2) * 2 + r // 2), vr(V_E + (i - 1) % 4), e))
    return ex, ad, cv


def att_slots(p, u, ta, tb, inloop, pv=True, qk=True, sm_cur=True, sm_next=True, vnext=True, dmak=True, dmav=True,
              barrier=True, g=None, cap=2, vearly=False, extra_need=()):
    T0 = -40
    R = range(-128, 256)
    sc = {t: [] for t in R}
    ld = {t: [] for t in R}
    va = {t: [] for t in R}
    for t in range(0, 128, 2):
        if t >= X0:
            uu, i, on = u + 1, (t - X0) // 2, sm_next
        else:
            uu, i, on = u, (t + 128 - X0) // 2, sm_cur
        if on:
            ex, ad, cv = sm_instrs(uu, i)
            va[t].append(ex)
            va[t + 1].append(ad)
            if cv is not None:
                va[t + 1].append(cv)
    pos = [t for t in range(T0, T0 + 128) if t % 8 in (1, 4, 5)]
    n = 0
    m = 0
    for db in range(8):
        for ks in range(2):
            for j in range(2):
                t = pos[n]
                n += 1
                if t >= 0:
                    if pv:
                        ld[t].append(v_load(u - 1, db, ks, j, inloop))
                elif vnext:
                    if vearly:
                        ld[46 + m].append(v_load(u, db, ks, j, inloop))
                        m += 1
                    else:
                        ld[t + 128].append(v_load(u, db, ks, j, inloop))
        t = 8 * db - 1
        sc[t if t >= 0 else t + 128].append(wait_ins(ar(A_VF + db * 8, 8)))
    for kb in range(4):
        for s in range(4):
            t = pos[n]
            n += 1
            if qk:
                ld[t].append(k_load(u + 1, kb, s, inloop))
        if qk:
            sc[64 + 16 * kb - 1].append(wait_ins(ar(A_KF + kb * 16, 16)))
    for on, kind, uu, tt in ((dmav, 'V', u + DV, 2), (dmak, 'K', u + DK, 66)):
        if on:
            lst = dma_unit(kind, uu, inloop)
            sc[tt].append(lst[0])
            ds = OPT.get('dstep', 8)
            for k in range(4):
                ld[tt + ds * k + (4 if k == 0 else 0)].append(lst[1 + k])
            sc[tt + ds * 3 + 1].append(lst[5])
    if barrier:
        nd = [(LS(4 + u % 4), vtag(u, inloop))] + list(extra_need)
        if qk:
            nd.append((LS((u + 1) % 4), ktag(u + 1, inloop)))
        sc[0].append(need_ins(*nd))
        sc[1].append(Ins('s_barrier'))
    g = g or Gaps(p)
    for t in range(ta, tb):
        mf = None
        if t < 64:
            if pv:
                db, qb, ks = t // 8, (t % 8) // 2, t % 2
                o = ar(A_O + (db * 4 + qb) * 4, 4)
                mf = '%s %s, %s, %s, %s' % (MF, o, ar(A_VF + db * 8 + ks * 4, 4), vr(Preg(u - 1, qb, ks), 4), o)
        elif qk:
            tt = t - 64
            kb, qb, s = tt // 16, (tt % 16) // 4, tt % 4
            d = vr(Sreg(kb, qb), 4)
            c = vr(V_NM + qb * 4, 4) if s == 0 else d
            mf = '%s %s, %s, %s, %s' % (MF, d, ar(A_KF + kb * 16 + s * 4, 4), vr(V_Q + (qb * 4 + s) * 4, 4), c)
        assert len(sc[t]) <= 1 and len(ld[t]) <= 1
        if mf is None and not (sc[t] or ld[t] or va[t]):
            continue
        g.gap(mf, sc[t], ld[t], va[t], cap=cap)


def kv_dma_setup():
    o = []
    a = lambda s: o.append(Ins(s))
    a('v_and_b32 %s, 15, %s' % (t0, L))
    a('v_lshrrev_b32 %s, 4, %s' % (t1, L))
    a('v_lshlrev_b32 %s, 8, %s' % (t2, t1))
    a('v_add_u32 %s, %s, %s' % (t2, sr(S_MK), t2))
    a('v_xor_b32 %s, %s, %s' % (t3, t0, t1))
    a('v_lshl_add_u32 %s, %s, 4, %s' % (vr(V_OK), t3, t2))
    for c in range(1, 4):
        a('v_xor_b32 %s, %d, %s' % (vr(V_OK + c), c * 64, vr(V_OK)))
    a('v_lshlrev_b32 %s, 1, %s' % (t3, t1))
    a('v_xor_b32 %s, %s, %s' % (t3, t0, t3))
    a('v_lshl_add_u32 %s, %s, 4, %s' % (vr(V_OV), t3, t2))
    a('v_xor_b32 %s, 128, %s' % (vr(V_OV + 1), vr(V_OV)))
    return o


def k_read_setup():
    o = []
    a = lambda s: o.append(Ins(s))
    a('v_and_b32 %s, 15, %s' % (t0, L))
    a('v_lshrrev_b32 %s, 4, %s' % (t1, L))
    a('v_xor_b32 %s, %s, %s' % (t2, t0, t1))
    a('v_lshlrev_b32 %s, 4, %s' % (t2, t2))
    a('v_lshl_add_u32 %s, %s, 8, %s' % (vr(V_KA), t0, t2))
    for s in range(1, 4):
        a('v_xor_b32 %s, %d, %s' % (vr(V_KA + s), s * 64, vr(V_KA)))
    return o


def v_read_setup():
    o = []
    a = lambda s: o.append(Ins(s))
    a('v_lshrrev_b32 %s, 2, %s' % (t2, L))
    a('v_and_b32 %s, 7, %s' % (t3, t2))
    a('v_lshlrev_b32 %s, 5, %s' % (t3, t3))
    a('v_lshl_add_u32 %s, %s, 8, %s' % (t3, t2, t3))
    a('v_and_b32 %s, 3, %s' % (t2, L))
    a('v_lshl_add_u32 %s, %s, 3, %s' % (t3, t2, t3))
    a('v_add_u32 %s, 0x10000, %s' % (vr(V_VA), t3))
    for d in range(1, 8):
        a('v_xor_b32 %s, %d, %s' % (vr(V_VA + d), d * 32, vr(V_VA)))
    return o


def xlane4(op, xs, ts):
    o = []
    for perm in ('v_permlane32_swap_b32', 'v_permlane16_swap_b32'):
        for x, t in zip(xs, ts):
            o.append(Ins('v_mov_b32 %s, %s' % (t, x)))
        for x, t in zip(xs, ts):
            o.append(Ins('%s %s, %s' % (perm, x, t)))
        for x, t in zip(xs, ts):
            o.append(Ins('%s %s, %s, %s' % (op, x, x, t)))
    return o


def div18(o, n, row, sl):
    o.append(Ins('v_mul_u32_u24 %s, 3641, %s' % (row, n)))
    o.append(Ins('v_lshrrev_b32 %s, 16, %s' % (row, row)))
    o.append(Ins('v_mul_u32_u24 %s, 18, %s' % (sl, row)))
    o.append(Ins('v_sub_u32 %s, %s, %s' % (sl, n, sl)))


def ffn_tiles():
    m, nv, na = {}, 0, 0
    for b in range(9):
        for mat in range(2):
            for qb in range(4):
                if mat == 1 and na < 18:
                    m[(2 * b + mat, qb)] = ('a', na * 4)
                    na += 1
                else:
                    m[(2 * b + mat, qb)] = ('v', 40 + nv * 4)
                    nv += 1
    assert nv == 54 and na == 18
    return m


FT = ffn_tiles()
WQ_SLOT = {8: 9, 7: 3, 6: 4, 5: 5, 4: 6, 3: 7, 2: 8, 1: 9, 0: 3}


def p1_dma(c):
    out = [Ins('s_add_u32 %s, %s, %d' % (T(8), sr(S_OFFW), c * 64 * 9216))]
    for i in range(9):
        if i % 4 == 0:
            out.append(Ins('s_add_u32 m0, %s, %d' % (sr(S_M1), PS(c)[0] + (i // 4) * 4096)))
        out.append(Ins('buffer_load_dwordx4 %s, %s, %s offen offset:%d lds' % (
            vr(V_OW + i), sr(S_WS, 4), T(8), (i % 4) * 1024), lds=(PS(c), ('W', c))))
    return out


def xn_loads(c, buf):
    base = A_B + buf * 32
    out = []
    for qb in range(4):
        out.append(Ins('s_mov_b32 %s, %d' % (T(qb), qb * 18 * 1024 + c * 2048)))
        for ks in range(2):
            out.append(Ins('buffer_load_dwordx4 %s, %s, %s, %s offen offset:%d' % (
                ar(base + (qb * 2 + ks) * 4, 4), vr(V_L16), sr(S_XN, 4), T(qb), ks * 1024)))
    return out


def wq_dma(c):
    sl = WQ_SLOT[c]
    out = []
    for cc in range(4):
        out.append(Ins('s_add_u32 %s, %s, %d' % (T(4 + cc % 2), sr(S_OFFQ), (c * 64 + cc * 4) * 8192)))
        out.append(Ins('s_add_u32 m0, %s, %d' % (sr(S_MK), sl * 16384 + cc * 1024)))
        out.append(Ins('buffer_load_dwordx4 %s, %s, %s offen lds' % (
            vr(V_OQ + cc % 2), sr(S_WQ, 4), T(4 + cc % 2)), lds=(LS(sl), ('Q', c))))
    return out


def p1_reads(c, blk, dst):
    mat, b = blk % 2, blk // 2
    return [Ins('ds_read_b64_tr_b16 %s, %s offset:%d' % (
        ar(dst + ks * 4 + 2 * j, 2), vr(V_A1 + c % 4),
        mat * 18432 + (32 * ks + 16 * j) * 288 + 32 * b), lds=(PS(c), ('W', c)))
        for ks in range(2) for j in range(2)]


def p2_reads(c, bq, dst):
    s, jj = bq // 2, bq % 2
    sl = WQ_SLOT[c]
    return [Ins('ds_read_b64_tr_b16 %s, %s offset:%d' % (
        ar(dst + ks * 4 + 2 * j, 2), vr(V_AQ + (sl // 4) * 4 + s),
        (sl % 4) * 16384 + (32 * ks + 16 * j) * 256 + 8 * jj), lds=(LS(sl), ('Q', c)))
        for ks in range(2) for j in range(2)]


def swiglu_unit(b, qb, ready, pool):
    gt, ut = FT[(2 * b, qb)], FT[(2 * b + 1, qb)]
    pk = FT[(2 * (b - b % 2), qb)][1] + (b % 2) * 2
    o = []
    ta, tb = vr(V_SW), vr(V_SW + 1)
    for r in (0, 2):
        pa, pb = vr(V_SW + 2 + r), vr(V_SW + 3 + r)
        g0, g1 = vr(gt[1] + r), vr(gt[1] + r + 1)
        if ut[0] == 'a':
            o.append(Ins('v_accvgpr_read_b32 %s, %s' % (pa, ar(ut[1] + r))))
            o.append(Ins('v_accvgpr_read_b32 %s, %s' % (pb, ar(ut[1] + r + 1))))
            u0, u1 = pa, pb
        else:
            u0, u1 = vr(ut[1] + r), vr(ut[1] + r + 1)
        o.append(Ins('v_mul_f32 %s, %s, %s' % (ta, sr(S_NL), g0)))
        o.append(Ins('v_mul_f32 %s, %s, %s' % (tb, sr(S_NL), g1)))
        o.append(Ins('v_exp_f32 %s, %s' % (ta, ta)))
        o.append(Ins('v_exp_f32 %s, %s' % (tb, tb)))
        o.append(Ins('v_mul_f32 %s, %s, %s' % (pa, g0, u0)))
        o.append(Ins('v_mul_f32 %s, %s, %s' % (pb, g1, u1)))
        o.append(Ins('v_add_f32 %s, 1.0, %s' % (ta, ta)))
        o.append(Ins('v_add_f32 %s, 1.0, %s' % (tb, tb)))
        o.append(Ins('v_rcp_f32 %s, %s' % (ta, ta)))
        o.append(Ins('v_rcp_f32 %s, %s' % (tb, tb)))
        o.append(Ins('v_mul_f32 %s, %s, %s' % (pa, pa, ta)))
        o.append(Ins('v_mul_f32 %s, %s, %s' % (pb, pb, tb)))
    for r in (0, 2):
        o.append(Ins('v_cvt_pk_bf16_f32 %s, %s, %s' % (vr(pk + r // 2), vr(V_SW + 2 + r), vr(V_SW + 3 + r))))
    rel = [ut] + ([gt] if b % 2 == 1 else [])
    if b % 2 == 1:
        o.append(Ins('buffer_store_dwordx4 %s, %s, %s, %s offen offset:%d sc1' % (
            vr(pk - 2, 4), vr(V_L16), sr(S_H, 4), sr(S_HS + qb), (b // 2) * 1024), lds=('H', 0)))
        if OPT.get('plain_h'):
            o[-1].text = o[-1].text.replace(' sc1', '')
        rel.append(FT[(2 * (b - 1), qb)])
    elif b == 8:
        o.append(Ins('buffer_store_dwordx2 %s, %s, %s, %s offen sc1' % (
            vr(pk, 2), vr(V_L16), sr(S_H, 4), sr(S_HS + 4 + qb)), lds=('H', 0)))
        if OPT.get('plain_h'):
            o[-1].text = o[-1].text.replace(' sc1', '')
    o[0].ready = ready
    o[-1].on_emit = lambda: pool.extend(t for t in rel if not (t[0] == 'v' and t[1] >= V_Q))
    return o


def qcvt_unit(qb, s, QT, ready):
    o = []
    for h in range(2):
        tl = QT[(2 * s + h, qb)]
        tm = [vr(V_SW + e) for e in range(4)]
        for e in range(4):
            if tl[0] == 'a':
                o.append(Ins('v_accvgpr_read_b32 %s, %s' % (tm[e], ar(tl[1] + e))))
        for e in range(4):
            o.append(Ins('v_mul_f32 %s, %s, %s' % (tm[e], sr(S_C), tm[e] if tl[0] == 'a' else vr(tl[1] + e))))
        for e in range(2):
            o.append(Ins('v_cvt_pk_bf16_f32 %s, %s, %s' % (vr(V_Q + (qb * 4 + s) * 4 + 2 * h + e), tm[2 * e], tm[2 * e + 1])))
    o[0].ready = ready
    return o


class GemmSeq:
    def __init__(self, p, g):
        self.p, self.g = p, g
        self.groups = []

    def add(self, reads, nfr, mf, hook=None, bar=None, bwait=None, cap=2):
        self.groups.append(dict(reads=reads, n=nfr, mf=mf, hook=hook, bar=bar, bwait=bwait, cap=cap))

    def run(self):
        G, g, p = self.groups, self.g, self.p
        pos = 0
        for x in G:
            if x['n'] == 16 and pos % 16:
                pos += 8
            x['dst'] = A_A + pos % 32
            pos += x['n']
        for k, x in enumerate(G):
            regs = lambda y: set(range(y['dst'], y['dst'] + y['n']))
            ld = 1
            if k >= 2 and not (regs(x) & regs(G[k - 1])) and not (regs(x) & regs(G[k - 2])) and G[k - 1]['n'] == 8:
                ld = 2
            assert k == 0 or not (regs(x) & regs(G[k - 1]))
            x['at'] = k - ld
        for x in G:
            if x['at'] < 0:
                if x['bar']:
                    p.need(*x['bar'])
                    p('s_barrier')
                for i in x['reads'](x['dst']):
                    p.add(i)
        for k, x in enumerate(G):
            if x['hook']:
                x['hook']()
            todo = [y for y in G if y['at'] == k]
            rd, bar = [], []
            for y in todo:
                rd += y['reads'](y['dst'])
                if y['bar'] is not None:
                    bar += y['bar']
            hasbar = any(y['bar'] is not None for y in todo)
            mfs = x['mf'](x['dst'])
            n = len(mfs)
            st = 3 if hasbar else 0
            step = 2 if (st + 2 * ((len(rd) + 1) // 2) <= n - 1) else 1
            for t in range(n):
                sc, ld = [], []
                if hasbar and t == 1:
                    sc = [need_ins(('lgkm', 'all'), *bar)]
                if hasbar and t == 2:
                    sc = [Ins('s_barrier')]
                if t >= st and (t - st) % step == 0 and rd:
                    ld = rd[:2]
                    rd = rd[2:]
                if t == n - 1 and k + 1 < len(G):
                    y = G[k + 1]
                    bw = y['bwait']() if callable(y['bwait']) else (y['bwait'] or [])
                    w = [ar(y['dst'], y['n'])] + bw
                    sc = [wait_ins(*w)]
                g.gap(mfs[t](), sc, ld, cap=x['cap'])
                if hasbar and t == 2:
                    for y in todo:
                        if y.get('post'):
                            y['post']()
            assert not rd


V_DOWS = [22, 23, 24, 25, 26, 27, 248, 249, 250]
V_DRA = 40
V_DA = 56
V_AC2, V_AC1 = 104, 176
V_PK = 4
A_DB = 128
SPIN_BLOCKS = []


def poll_issue(soff):
    return Ins('buffer_load_dword %s, %s, %s, %s offen sc1' % (vr(V_FV), vr(V_FOFF), sr(S_FL, 4), sr(soff)))


def poll_check(p, name, soff, cmp='v_cmp_eq_u32 vcc, 0'):
    SPIN_BLOCKS.append("""L_spin_%(n)s:
 s_mov_b32 s3, 0
L_spin_%(n)s_l:
 s_sleep 4
 buffer_load_dword %(v)s, %(o)s, %(srd)s, %(so)s offen sc1
 s_add_u32 s3, s3, 1
 s_cmp_gt_u32 s3, 0x40000
 s_cbranch_scc1 L_ok_%(n)s
 s_waitcnt vmcnt(0)
 %(cmp)s, %(v)s
 s_cbranch_vccnz L_spin_%(n)s_l
 s_branch L_ok_%(n)s""" % dict(n=name, v=vr(V_FV), o=vr(V_FOFF), srd=sr(S_FL, 4), so=sr(soff), cmp=cmp))
    p('%s, %s' % (cmp, vr(V_FV)))
    p('s_cbranch_vccnz L_spin_%s' % name)
    p.label('L_ok_%s' % name)


def flag_store(soff, tag):
    return Ins('buffer_store_dword %s, %s, %s, %s offen sc1' % (
        vr(V_ONE), vr(V_FST), sr(S_FL, 4), sr(soff)), lds=('flag', (tag, 0)))


def sadd(r, k):
    return Ins('s_add_u32 %s, %s, %d' % (sr(r), sr(r), k))


def d_dma(c):
    out = []
    for i in range(9):
        if i % 4 == 0:
            out.append(Ins('s_mov_b32 %s, %d' % (T(8), c * 36864 + (i // 4) * 4096)))
            out.append(Ins('s_add_u32 m0, %s, %d' % (sr(S_M1), PS(c)[0] + (i // 4) * 4096)))
        out.append(Ins('buffer_load_dwordx4 %s, %s, %s offen offset:%d sc1 lds' % (
            vr(V_L16), sr(S_DW2, 4), T(8), (i % 4) * 1024), lds=(PS(c), ('D', c))))
    return out


def d_bloads(c):
    srd, loc, rbs = (S_DH, c, 144 * 1024) if c < 9 else (S_DO, c - 9, 128 * 1024)
    out = []
    for rb in range(2):
        out.append(Ins('s_mov_b32 %s, %d' % (T(9 + rb), loc * 4096 + rb * rbs)))
        for ks in range(4):
            out.append(Ins('buffer_load_dwordx4 %s, %s, %s, %s offen offset:%d sc1' % (
                ar(A_DB + (c % 4) * 32 + (rb * 4 + ks) * 4, 4), vr(V_L16), sr(srd, 4), T(9 + rb), ks * 1024)))
    return out


def d_reads(c, nb):
    return [Ins('ds_read_b64_tr_b16 %s, %s offset:%d' % (
        vr(V_DA + (nb % 3) * 16 + ks * 4 + 2 * j, 2), vr(V_DRA + c % 4), (32 * ks + 16 * j) * 288 + 32 * nb),
        lds=(PS(c), ('D', c))) for ks in range(4) for j in range(2)]


def d_pstore(gemm, nb):
    acc = (V_AC2 if gemm else V_AC1) + nb * 8
    pk = V_PK + (nb % 3) * 4
    out = []
    if nb % 4 == 0:
        out.append(Ins('s_mov_b32 %s, %d' % (T(7), gemm * PG + (nb // 4) * 4096)))
    for e in range(4):
        out.append(Ins('v_cvt_pk_bf16_f32 %s, %s, %s' % (vr(pk + e), vr(acc + 2 * e), vr(acc + 2 * e + 1))))
    out.append(Ins('buffer_store_dwordx4 %s, %s, %s, %s offen offset:%d sc1' % (
        vr(pk, 4), vr(V_L16), sr(S_DP, 4), T(7), (nb % 4) * 1024), lds=('PT%d' % gemm, 0)))
    return out


def d_ploads(gemm, base):
    out = []
    for k in range(3):
        for sp in range(4):
            t = T(4 + (k * 4 + sp) % 2)
            out.append(Ins('s_mov_b32 %s, %d' % (t, gemm * PG + sp * 4 * 9216 + k * 4096)))
            out.append(Ins('buffer_load_dwordx4 %s, %s, %s, %s offen sc1' % (
                vr(base + (k * 4 + sp) * 4, 4), vr(V_L16), sr(S_DR, 4), t)))
    return out


def d_sum(base, k, dst, tmp):
    out = []
    for e in range(4):
        for sp in range(4):
            src = vr(base + (k * 4 + sp) * 4 + e)
            lo = vr(dst + 2 * e) if sp == 0 else vr(tmp)
            hi = vr(dst + 2 * e + 1) if sp == 0 else vr(tmp + 1)
            out.append(Ins('v_lshlrev_b32 %s, 16, %s' % (lo, src)))
            out.append(Ins('v_and_b32 %s, 0xffff0000, %s' % (hi, src)))
            if sp:
                out.append(Ins('v_add_f32 %s, %s, %s' % (vr(dst + 2 * e), vr(dst + 2 * e), lo)))
                out.append(Ins('v_add_f32 %s, %s, %s' % (vr(dst + 2 * e + 1), vr(dst + 2 * e + 1), hi)))
    return out


def d_scalar_setup1():
    o = []
    a = lambda s: o.append(Ins(s))
    a('s_mul_i32 %s, %s, 288' % (T(1), sr(S_W)))
    a('s_lshl_b32 %s, %s, 6' % (T(0), sr(S_SP)))
    a('s_add_u32 %s, %s, %s' % (T(0), T(0), sr(S_TILE)))
    a('s_mul_i32 %s, %s, %d' % (T(2), T(0), 18 * 1152))
    a('s_add_u32 %s, %s, %s' % (T(2), T(2), T(1)))
    o += srd_ins(S_A1, P_W2, T(2), 17 * 1152 + 288)
    a('s_mul_i32 %s, %s, %d' % (T(2), T(0), 16 * 1152))
    a('s_add_u32 %s, %s, %s' % (T(2), T(2), T(1)))
    o += srd_ins(S_A2, P_WO, T(2), 15 * 1152 + 288)
    a('s_lshl_b32 %s, %s, 2' % (T(0), sr(S_SP)))
    a('s_add_u32 %s, %s, %s' % (T(1), T(0), sr(S_W)))
    a('s_mul_i32 %s, %s, %d' % (T(1), T(1), 2176 * 288))
    a('s_add_u32 %s, %s, 0x%x' % (T(1), T(1), WS_W))
    a('s_mul_i32 %s, %s, %d' % (T(2), sr(S_TILE), 18 * 288))
    a('s_add_u32 %s, %s, %s' % (T(2), T(2), T(1)))
    o += srd_ins(S_A3, P_WS, T(2), 18 * 288)
    a('s_mul_i32 %s, %s, %d' % (T(2), sr(S_TILE), 16 * 288))
    a('s_add_u32 %s, %s, %s' % (T(2), T(2), T(1)))
    a('s_add_u32 %s, %s, %d' % (T(2), T(2), 1152 * 288))
    o += srd_ins(S_A4, P_WS, T(2), 16 * 288)
    a('s_mov_b32 %s, 0' % sr(S_RO))
    a('s_and_b32 %s, %s, 3' % (T(1), sr(S_TILE)))
    a('s_add_u32 %s, %s, %s' % (T(1), T(0), T(1)))
    a('s_mul_i32 %s, %s, %d' % (T(1), T(1), 2176 * 288))
    a('s_add_u32 %s, %s, %s' % (T(1), T(1), sr(S_M1)))
    a('s_add_u32 %s, %s, 0x%x' % (T(1), T(1), WS_W))
    o += srd_ins(S_DW2, P_WS, T(1), 16 * 36864 + 9216)
    a('s_lshr_b32 %s, %s, 2' % (T(4), sr(S_TILE)))
    a('s_lshl_b32 %s, %s, 2' % (T(5), T(4)))
    a('s_add_u32 %s, %s, %s' % (T(5), T(5), sr(S_W)))
    a('s_mul_i32 %s, %s, %d' % (T(2), T(5), 2 * 144 * 1024))
    a('s_mul_i32 %s, %s, %d' % (T(3), sr(S_SP), 36 * 1024))
    a('s_add_u32 %s, %s, %s' % (T(2), T(2), T(3)))
    a('s_add_u32 %s, %s, 0x%x' % (T(2), T(2), WS_H))
    o += srd_ins(S_DH, P_WS, T(2), 144 * 1024 + 36 * 1024)
    a('s_lshl_b32 %s, %s, 18' % (T(2), T(5)))
    a('s_lshl_b32 %s, %s, 15' % (T(3), sr(S_SP)))
    a('s_add_u32 %s, %s, %s' % (T(2), T(2), T(3)))
    a('s_add_u32 %s, %s, 0x%x' % (T(2), T(2), WS_O))
    o += srd_ins(S_DO, P_WS, T(2), 128 * 1024 + 32 * 1024)
    return o


def d_scalar_setup2():
    o = []
    a = lambda s: o.append(Ins(s))
    a('s_lshl_b32 %s, %s, 2' % (T(2), sr(S_TILE)))
    a('s_add_u32 %s, %s, %s' % (T(2), T(2), sr(S_SP)))
    a('s_lshl_b32 %s, %s, 7' % (sr(S_FT), T(2)))
    a('s_add_u32 %s, %s, 0x10000' % (sr(S_FT), sr(S_FT)))
    a('s_lshl_b32 %s, %s, 2' % (T(2), T(2)))
    a('s_add_u32 %s, %s, %s' % (T(2), T(2), sr(S_W)))
    a('s_mul_i32 %s, %s, 9216' % (T(2), T(2)))
    a('s_add_u32 %s, %s, 0x%x' % (T(2), T(2), WS_P))
    o += srd_ins(S_DP, P_WS, T(2), PG + 9216)
    a('s_lshl_b32 %s, %s, 4' % (T(2), sr(S_TILE)))
    a('s_add_u32 %s, %s, %s' % (T(2), T(2), sr(S_SP)))
    a('s_mul_i32 %s, %s, 9216' % (T(2), T(2)))
    a('s_lshl_b32 %s, %s, 10' % (T(3), sr(S_W)))
    a('s_add_u32 %s, %s, %s' % (T(2), T(2), T(3)))
    a('s_add_u32 %s, %s, 0x%x' % (T(2), T(2), WS_P))
    o += srd_ins(S_DR, P_WS, T(2), PG + 14 * 9216)
    a('s_and_b32 %s, %s, 3' % (T(1), sr(S_TILE)))
    a('s_mul_i32 %s, %s, 288' % (T(1), T(1)))
    a('s_andn2_b32 %s, %s, 3' % (T(2), sr(S_TILE)))
    a('s_add_u32 %s, %s, %s' % (T(2), T(2), sr(S_SP)))
    a('s_mul_i32 %s, %s, %d' % (T(2), T(2), 32 * 1152))
    a('s_add_u32 %s, %s, %s' % (T(2), T(2), T(1)))
    o += srd_ins(S_DX, P_X, T(2), 31 * 1152 + 288)
    o += srd_ins(S_DOUT, P_OUT, T(2), 31 * 1152 + 288)
    a('s_lshl_b32 %s, %s, 19' % (sr(S_HS), sr(S_W)))
    for qb in range(1, 4):
        a('s_add_u32 %s, %s, 0x%x' % (sr(S_HS + qb), sr(S_HS), qb * 0x20000))
    a('s_lshl_b32 %s, %s, 5' % (sr(S_HS + 4), sr(S_W)))
    a('s_add_u32 %s, %s, %d' % (sr(S_HS + 5), sr(S_HS + 4), 16 * 1152))
    a('s_lshl_b32 %s, %s, 20' % (sr(S_HS + 6), sr(S_W)))
    a('s_add_u32 %s, %s, %d' % (sr(S_HS + 7), sr(S_HS + 6), 16 * 1152))
    return o


V_RN, V_RV = 20, 21
V_RQ = (248, 36)


def repack_pat():
    return [Ins('v_mul_u32_u24 %s, 3641, %s' % (vr(V_RV), vr(V_RN))),
            Ins('v_lshrrev_b32 %s, 16, %s' % (vr(V_RV), vr(V_RV))),
            Ins('v_mul_u32_u24 %s, 864, %s' % (vr(V_RV), vr(V_RV))),
            Ins('v_lshl_add_u32 %s, %s, 4, %s' % (vr(V_RV), vr(V_RN), vr(V_RV))),
            Ins('v_add_u32 %s, 64, %s' % (vr(V_RN), vr(V_RN)))]


def o_epilogue_unit(qb, t, n, ready):
    base = 184 + (n % 4) * 12
    o = []
    for r in range(8):
        o.append(Ins('v_accvgpr_read_b32 %s, %s' % (vr(base + r), ar(A_O + ((2 * t + r // 4) * 4 + qb) * 4 + r % 4))))
    for r in range(8):
        o.append(Ins('v_mul_f32 %s, %s, %s' % (vr(base + r), vr(base + r), vr(V_L + qb))))
    for r in range(4):
        o.append(Ins('v_cvt_pk_bf16_f32 %s, %s, %s' % (vr(base + 8 + r), vr(base + 2 * r), vr(base + 2 * r + 1))))
    o.append(Ins('buffer_store_dwordx4 %s, %s, %s, %s offen offset:%d%s' % (
        vr(base + 8, 4), vr(V_L16), sr(S_O, 4), sr(S_HS + qb), t * 1024, '' if OPT.get('plain_o', 1) else ' sc1'), lds=('O', 0)))
    o[0].ready = ready
    return o


def gen_main(diag=False):
    p = Prog()
    del SPIN_BLOCKS[:]

    def stamp(k):
        if diag:
            p('s_memtime %s' % sr(S_DG, 2))
            p('s_waitcnt lgkmcnt(0)')
            p('v_writelane_b32 v1, %s, %d' % (sr(S_DG), k))
            p('s_memrealtime %s' % sr(S_DG, 2))
            p('s_waitcnt lgkmcnt(0)')
            p('v_writelane_b32 v1, %s, %d' % (sr(S_DG), k + 16))

    def addall(lst):
        for x in lst:
            p.add(x)
    p('s_cmp_ge_u32 s2, 256')
    p('s_cbranch_scc1 L_end')
    p('s_load_dwordx4 s[44:47], s[0:1], 48')
    p('s_load_dwordx2 %s, s[0:1], 88' % sr(P_WS, 2))
    p('s_load_dwordx4 s[36:39], s[0:1], 8')
    p('s_load_dwordx2 s[40:41], s[0:1], 24')
    p('s_load_dwordx2 %s, s[0:1], 0' % sr(P_X, 2))
    p('s_load_dwordx2 %s, s[0:1], 32' % sr(P_WO, 2))
    p('s_load_dwordx4 %s, s[0:1], 64' % sr(P_W2, 4))
    stamp(0)
    p('v_and_b32 %s, 63, v0' % L)
    p('v_lshrrev_b32 %s, 6, v0' % t0)
    p('v_readfirstlane_b32 %s, %s' % (sr(S_W), t0))
    p('s_and_b32 %s, s2, 3' % T(0))
    p('s_lshl_b32 %s, %s, 3' % (T(0), T(0)))
    p('s_bfe_u32 %s, s2, 0x30003' % T(1))
    p('s_add_u32 %s, %s, %s' % (sr(S_HD), T(0), T(1)))
    p('s_and_b32 %s, s2, 4' % T(0))
    p('s_lshr_b32 %s, s2, 6' % T(1))
    p('s_add_u32 %s, %s, %s' % (sr(S_QT), T(0), T(1)))
    p('v_lshlrev_b32 %s, 4, %s' % (vr(V_L16), L))
    p('s_and_b32 %s, %s, 1' % (T(2), sr(S_HD)))
    p('s_lshl_b32 %s, %s, 1' % (T(2), T(2)))
    for i in range(9):
        o = [Ins('v_add_u32 %s, %d, %s' % (t0, 64 * i, L))]
        div18(o, t0, t1, t2)
        addall(o)
        p('v_add_u32 %s, %s, %s' % (t2, T(2), t2))
        p('v_subrev_u32 %s, 18, %s' % (t3, t2))
        p('v_min_u32 %s, %s, %s' % (t2, t2, t3))
        p('v_mul_u32_u24 %s, 9216, %s' % (t1, t1))
        p('v_lshl_add_u32 %s, %s, 4, %s' % (t1, t2, t1))
        p('v_subrev_u32 %s, %d, %s' % (vr(V_OW + i), (i % 4) * 1024, t1))
    p('s_mul_i32 %s, %s, 9216' % (sr(S_M1), sr(S_W)))
    p('s_and_b32 %s, %s, 1' % (T(3), sr(S_W)))
    p('s_mul_i32 %s, %s, %d' % (sr(S_OFFW), T(3), 32 * 9216))
    p('s_mul_i32 %s, %s, 288' % (T(2), sr(S_HD)))
    p('s_sub_u32 %s, %d, %s' % (T(3), 576 * 9216, T(2)))
    p('s_lshl_b32 %s, %s, 2' % (T(6), sr(S_QT)))
    p('s_add_u32 %s, %s, %s' % (T(6), T(6), sr(S_W)))
    p('s_mul_i32 %s, %s, %d' % (T(7), T(6), 4 * 18 * 1024))
    p('s_cmp_lt_u32 %s, 2' % sr(S_W))
    p('s_waitcnt lgkmcnt(0)')
    p('s_cselect_b32 s48, s44, s46')
    p('s_cselect_b32 s49, s45, s47')
    make_srd(p, S_WS, 48, T(2), T(3))
    make_srd(p, S_XN, P_WS, T(7), 4 * 18 * 1024)
    addall(p1_dma(0) + xn_loads(0, 0) + p1_dma(1) + xn_loads(1, 1) + p1_dma(2))
    R0 = 32 * OPT.get('pf0', 6)
    nr = (576 - R0) // 32
    assert nr * 18 <= 256
    p('s_lshr_b32 %s, s2, 3' % T(0))
    p('s_and_b32 %s, s2, 3' % T(1))
    p('s_mul_i32 %s, %s, %d' % (T(2), T(0), nr * 9216))
    p('s_mul_i32 %s, %s, 2304' % (T(3), T(1)))
    p('s_add_u32 %s, %s, %s' % (T(2), T(2), T(3)))
    p('s_add_u32 %s, %s, %d' % (T(2), T(2), R0 * 9216))
    p('s_mul_i32 %s, %s, %d' % (T(4), T(0), 18 * 8192))
    p('s_lshl_b32 %s, %s, 11' % (T(3), T(1)))
    p('s_add_u32 %s, %s, %s' % (T(4), T(4), T(3)))
    p('s_lshl_b32 %s, %s, 19' % (T(5), sr(S_HD)))
    make_srd(p, S_K, 36, T(5), 0x80000)
    make_srd(p, S_V, 38, T(5), 0x80000)
    p('s_lshl_b32 %s, %s, 8' % (T(5), sr(S_HD)))
    p('s_sub_u32 %s, %d, %s' % (T(3), 576 * 8192, T(5)))
    make_srd(p, S_WQ, 40, T(5), T(3))
    make_srd(p, S_A4, 40, T(4), 17 * 8192 + 2048)
    make_srd(p, S_A1, 44, T(2), (nr - 1) * 9216 + 2304)
    make_srd(p, S_A2, 46, T(2), (nr - 1) * 9216 + 2304)
    o = []
    div18(o, 'v0', t1, t2)
    addall(o)
    p('v_mul_u32_u24 %s, 9216, %s' % (t1, t1))
    p('v_lshl_add_u32 %s, %s, 7, %s' % (vr(V_SW), t2, t1))
    p('v_lshrrev_b32 %s, 4, v0' % t3)
    p('v_lshlrev_b32 %s, 13, %s' % (t3, t3))
    p('v_and_b32 %s, 15, v0' % t2)
    p('v_lshl_add_u32 %s, %s, 7, %s' % (vr(V_SW + 1), t2, t3))
    p('v_add_u32 %s, %d, %s' % (vr(V_SW + 2), 16 * 8192, vr(V_SW + 1)))
    touch = {0: [Ins('buffer_load_dword %s, %s, %s, 0 offen' % (vr(V_SW + 3), vr(V_SW), sr(S_A1, 4))),
                 Ins('buffer_load_dword %s, %s, %s, 0 offen' % (vr(V_SW + 4), vr(V_SW), sr(S_A2, 4)))],
             1: [Ins('buffer_load_dword %s, %s, %s, 0 offen' % (vr(V_SW + 5), vr(V_SW + 1), sr(S_A4, 4)))],
             2: [Ins('buffer_load_dword %s, %s, %s, 0 offen' % (vr(V_SW + 3), vr(V_SW + 2), sr(S_A4, 4)))]}
    if not OPT.get('pf1', 1):
        touch = {}
    p('s_mov_b32 %s, 0x%x' % (sr(S_C), f2u(LOG2E / 128 ** 0.5)))
    p('s_mov_b32 %s, 0x%x' % (sr(S_NL), f2u(-LOG2E)))
    p('s_lshl_b32 %s, %s, 12' % (sr(S_MK), sr(S_W)))
    p('s_add_u32 %s, %s, 0x10000' % (sr(S_MV), sr(S_MK)))
    p('s_mov_b32 %s, 0' % sr(S_OFFK))
    p('s_mov_b32 %s, 0' % sr(S_OFFV))
    p('v_lshrrev_b32 %s, 2, %s' % (t0, L))
    p('v_mul_u32_u24 %s, 288, %s' % (t1, t0))
    p('v_and_b32 %s, 3, %s' % (t2, L))
    p('v_lshl_add_u32 %s, %s, 3, %s' % (vr(V_A1), t2, t1))
    for k in range(1, 4):
        p('v_add_u32 %s, %d, %s' % (vr(V_A1 + k), k * 36864, vr(V_A1)))
    p('v_and_b32 %s, 15, %s' % (t0, L))
    p('v_lshrrev_b32 %s, 4, %s' % (t1, L))
    p('v_lshlrev_b32 %s, 1, %s' % (t3, t1))
    p('v_xor_b32 %s, %s, %s' % (t3, t0, t3))
    p('v_lshlrev_b32 %s, 4, %s' % (t3, t3))
    p('v_lshl_add_u32 %s, %s, 13, %s' % (vr(V_OQ), t1, t3))
    p('v_xor_b32 %s, 128, %s' % (vr(V_OQ + 1), vr(V_OQ)))
    p('s_lshl_b32 %s, %s, 17' % (sr(S_OFFQ), sr(S_W)))
    addall(kv_dma_setup())
    p('s_mul_i32 %s, %s, %d' % (T(3), T(6), 4 * 144 * 1024))
    p('s_add_u32 %s, %s, 0x%x' % (T(3), T(3), WS_H))
    make_srd(p, S_H, P_WS, T(3), 4 * 144 * 1024)
    p('s_lshl_b32 %s, %s, 21' % (T(3), sr(S_QT)))
    p('s_lshl_b32 %s, %s, 12' % (T(4), sr(S_HD)))
    p('s_add_u32 %s, %s, %s' % (T(3), T(3), T(4)))
    p('s_add_u32 %s, %s, 0x%x' % (T(3), T(3), WS_O))
    p('s_sub_u32 %s, 0x200000, %s' % (T(5), T(4)))
    make_srd(p, S_O, P_WS, T(3), T(5))
    p('s_mov_b32 %s, 0x%x' % (T(3), WS_F))
    make_srd(p, S_FL, P_WS, T(3), 4 * 32768)
    p('s_lshr_b32 %s, %s, 3' % (sr(S_SP), sr(S_HD)))
    p('s_and_b32 %s, %s, 7' % (T(0), sr(S_HD)))
    p('s_lshl_b32 %s, %s, 3' % (sr(S_TILE), sr(S_QT)))
    p('s_add_u32 %s, %s, %s' % (sr(S_TILE), sr(S_TILE), T(0)))
    p('s_lshl_b32 %s, %s, 6' % (T(0), sr(S_SP)))
    p('s_add_u32 %s, %s, %s' % (T(0), T(0), sr(S_TILE)))
    p('s_lshl_b32 %s, %s, 7' % (sr(S_FWG), T(0)))
    p('s_lshl_b32 %s, %s, 13' % (sr(S_FGR), sr(S_SP)))
    p('s_mul_i32 %s, %s, 9' % (T(2), sr(S_HD)))
    p('s_add_u32 %s, %s, 1' % (T(2), T(2)))
    p('s_lshr_b32 %s, %s, 1' % (T(2), T(2)))
    p('s_lshl_b32 %s, %s, 10' % (sr(S_HS), T(2)))
    p('s_bitcmp1_b32 %s, 0' % sr(S_HD))
    p('s_mov_b32 %s, 4096' % T(3))
    p('s_cselect_b32 %s, %d, %s' % (T(3), -1024 + 8, T(3)))
    p('s_add_u32 %s, %s, %s' % (sr(S_HS + 4), sr(S_HS), T(3)))
    for qb in range(1, 4):
        p('s_add_u32 %s, %s, %d' % (sr(S_HS + qb), sr(S_HS), qb * 144 * 1024))
        p('s_add_u32 %s, %s, %d' % (sr(S_HS + 4 + qb), sr(S_HS + 4), qb * 144 * 1024))
    stamp(1)

    if OPT.get('donly'):
        p('s_waitcnt vmcnt(0)')
        addall(d_scalar_setup1() + d_scalar_setup2() + k_read_setup() + v_read_setup())
        p('v_lshlrev_b32 %s, 20, v0' % vr(V_FST))
        p('v_mov_b32 %s, 1' % vr(V_ONE))
        p('v_lshlrev_b32 %s, 7, %s' % (vr(V_FOFF), L))
        p('v_mov_b32 %s, 0' % vr(V_RV))
        p('s_mov_b32 %s, 0' % sr(S_OFFW))
        for k in range(2, 7):
            stamp(k)
        p.raw(' s_branch L_donly')
    g = Gaps(p)
    seq = GemmSeq(p, g)
    pool = deque(('a', 72 + 4 * k) for k in range(14))

    def alloc():
        while not pool:
            x = (g.st or g.lo).popleft()
            g.over += max(1, cost(x))
            g.emit(x)
        for t in pool:
            if t[0] == 'v':
                pool.remove(t)
                return t
        return pool.popleft()

    XB = {}
    ring = lambda buf: [('a', A_B + buf * 32 + 4 * k) for k in range(8)]

    def xn_l(c, tiles):
        out = []
        for qb in range(4):
            out.append(Ins('s_mov_b32 %s, %d' % (T(qb), qb * 18 * 1024 + c * 2048)))
            for ks in range(2):
                out.append(Ins('buffer_load_dwordx4 %s, %s, %s, %s offen offset:%d' % (
                    rg(tiles[qb * 2 + ks]), vr(V_L16), sr(S_XN, 4), T(qb), ks * 1024)))
        return out

    def aq_setup():
        o = []
        a = lambda s: o.append(Ins(s))
        a('v_lshrrev_b32 %s, 2, %s' % (t0, L))
        a('v_and_b32 %s, 7, %s' % (t1, t0))
        a('v_lshlrev_b32 %s, 1, %s' % (t1, t1))
        a('v_and_b32 %s, 3, %s' % (t2, L))
        a('v_xor_b32 %s, %s, %s' % (t1, t1, t2))
        a('v_lshlrev_b32 %s, 4, %s' % (t1, t1))
        a('v_lshl_add_u32 %s, %s, 8, %s' % (vr(V_AQ), t0, t1))
        for s in range(1, 4):
            a('v_xor_b32 %s, %d, %s' % (vr(V_AQ + s), 64 * s, vr(V_AQ)))
        for rgn in range(1, 3):
            for s in range(4):
                a('v_add_u32 %s, 0x%x, %s' % (vr(V_AQ + rgn * 4 + s), rgn * 65536, vr(V_AQ + s)))
        return o

    def mk_mf(acc, chunks, xb, first):
        def mf(dst):
            out = []
            for qb in range(4):
                for ci, c in enumerate(chunks):
                    for ks in range(2):
                        def th(qb=qb, ci=ci, c=c, ks=ks):
                            a = rg(acc(qb))
                            cin = '0' if (first and ci == 0 and ks == 0) else a
                            return '%s %s, %s, %s, %s' % (MF, a, ar(dst + ci * 8 + ks * 4, 4), rg(xb(c)[qb * 2 + ks]), cin)
                        out.append(th)
            return out
        return mf

    for c in range(9):
        XB[c] = ring(c % 3)
    for c in range(7):
        for blk in range(18):
            hook = None
            if blk == 0:
                def hook(c=c):
                    if OPT.get('cst'):
                        p('s_memrealtime %s' % sr(S_DG, 2))
                        p('s_waitcnt lgkmcnt(0)')
                        p('v_writelane_b32 v1, %s, %d' % (sr(S_DG), 32 + c))
                    g.drop = {0: (), 1: ('dma',), 2: ('vld',), 3: ('dma', 'vld'), 4: ('dma', 'vld', 'dsr')}[OPT.get('drop', 0)]
                    g.vm_gap = OPT.get('vg1', 5)
                    g.hi.extend(touch.get(c, []))
                    g.hi.extend(xn_l(c + 2, XB[c + 2]))
                    if c == 0:
                        g.hi.extend(p1_dma(3))
                    if c == 3:
                        g.hi.extend(wq_dma(8))
                    if c == 6:
                        assert not any(y.kind == 'dma' and y.lds[1][0] == 'W' for y in g.hi)
                        g.lo.extend(aq_setup())
            seq.add(lambda dst, c=c, blk=blk: p1_reads(c, blk, dst), 8,
                    mk_mf(lambda qb, blk=blk: FT[(blk, qb)], [c], lambda c: XB[c], c == 0), hook=hook,
                    bar=[(PS(c), ('W', c))] if blk == 0 else None,
                    bwait=[rg(t) for t in XB[c]] if blk == 0 else None)
            if blk == 0 and 1 <= c <= 5:
                seq.groups[-1]['post'] = lambda c=c: g.hi.extend(p1_dma(c + 3))
            if blk == 0 and c == 6:
                seq.groups[-1]['post'] = lambda: g.hi.extend(wq_dma(7))
    CT = OPT.get('cap_t', 2)
    for blk in range(18):
        hook = None
        if blk >= 2 and blk % 2 == 0:
            def hook(b=blk // 2 - 1):
                for qb in range(4):
                    g.lo.extend(swiglu_unit(b, qb, g.n + 3, pool))
        if blk == 0:
            def hook():
                g.drop = ()
                stamp(2)
        seq.add(lambda dst, blk=blk: p1_reads(7, blk, dst) + p1_reads(8, blk, dst + 8), 16,
                mk_mf(lambda qb, blk=blk: FT[(blk, qb)], [7, 8], lambda c: XB[c], False), hook=hook,
                bar=[(PS(7), ('W', 7)), (PS(8), ('W', 8))] if blk == 0 else None,
                bwait=[rg(t) for t in XB[7] + XB[8]] if blk == 0 else None, cap=CT)
        if blk == 0:
            seq.groups[-1]['post'] = lambda: g.hi.extend(wq_dma(6) + wq_dma(5))
    QT = {}

    def qacc(bq, qb):
        if (bq, qb) not in QT:
            QT[(bq, qb)] = alloc()
        return QT[(bq, qb)]
    XQ = {8: XB[8], 7: XB[7], 6: XB[6], 4: ring(1), 3: ring(2), 2: ring(0), 0: ring(1)}
    C2 = OPT.get('cap_p2', 2)
    qn = lambda c: (LS(WQ_SLOT[c]), ('Q', c))
    for bq in range(8):
        hook = None
        if bq == 0:
            def hook():
                stamp(3)
                g.vm_gap = OPT.get('vg2', 3)
                for qb in range(4):
                    g.lo.extend(swiglu_unit(8, qb, g.n + 3, pool))
        if bq == 3:
            def hook():
                XQ[5] = XQ[1] = [alloc() for _ in range(8)]
                g.hi.extend(xn_l(5, XQ[5]))
        seq.add(lambda dst, bq=bq: p2_reads(8, bq, dst) + p2_reads(7, bq, dst + 8), 16,
                mk_mf(lambda qb, bq=bq: qacc(bq, qb), [8, 7], lambda c: XQ[c], True), hook=hook,
                bar=[qn(8), qn(7)] if bq == 0 else None, cap=C2)
        if bq == 0:
            seq.groups[-1]['post'] = lambda: g.hi.extend(
                wq_dma(4) + wq_dma(3) + wq_dma(2))
    for c in (6, 5, 4, 3, 2):
        for bq in range(8):
            hook = None
            if bq == 0:
                def hook(c=c):
                    for cc in {6: (4, 3), 5: (2,), 4: (1,), 3: (0,), 2: ()}[c]:
                        g.hi.extend(xn_l(cc, XQ[cc]))
            seq.add(lambda dst, c=c, bq=bq: p2_reads(c, bq, dst), 8,
                    mk_mf(lambda qb, bq=bq: qacc(bq, qb), [c], lambda c: XQ[c], False), hook=hook,
                    bar=[qn(c)] if bq == 0 else None, cap=C2,
                    bwait=(lambda c=c: [rg(t) for t in XQ[c]]) if bq == 0 else None)
            if bq == 0:
                seq.groups[-1]['lazyb'] = c
                post = {6: lambda: g.hi.extend(wq_dma(1) + wq_dma(0)),
                        3: lambda: g.hi.extend(dma_unit('K', 0, False)),
                        2: lambda: g.hi.extend(dma_unit('K', 1, False) + dma_unit('V', 0, False))}.get(c)
                seq.groups[-1]['post'] = post
    for bq in range(8):
        hook = None
        if bq == 0:
            def hook():
                print('swiglu backlog at last P2 group:', len(g.hi), len(g.lo), 'over', g.over, file=sys.stderr)
                g.hi.extend(dma_unit('K', 2, False) + dma_unit('V', 1, False))
        if bq >= 2 and bq % 2 == 0:
            def hook(s=bq // 2 - 1):
                for qb in range(4):
                    g.lo.extend(qcvt_unit(qb, s, QT, g.n + 3))
        seq.add(lambda dst, bq=bq: p2_reads(1, bq, dst) + p2_reads(0, bq, dst + 8), 16,
                mk_mf(lambda qb, bq=bq: qacc(bq, qb), [1, 0], lambda c: XQ[c], False), hook=hook,
                bar=[qn(1), qn(0)] if bq == 0 else None, cap=C2,
                bwait=(lambda: [rg(t) for t in XQ[1] + XQ[0]]) if bq == 0 else None)
    seq.run()
    stamp(4)
    print('G backlog at end:', len(g.hi), len(g.lo), 'over', g.over, 'waste', g.waste, file=sys.stderr)
    for qb in range(4):
        g.lo.extend(qcvt_unit(qb, 3, QT, 0))
    addall(k_read_setup())
    p.need(('lgkm', 'all'), (LS(0), ('K', 0)))
    p('s_barrier')
    for kb in range(4):
        for s in range(4):
            p.add(k_load(0, kb, s, False))
    g.flush()
    g.vm_gap = 4
    g.hi.extend(dma_unit('K', 3, False))
    g.hi.extend(d_scalar_setup1())
    g.lo.extend(Ins('v_accvgpr_write_b32 %s, 0' % ar(A_O + i)) for i in range(128))
    for kb in range(4):
        for qb in range(4):
            for s in range(4):
                d = vr(Sreg(kb, qb), 4)
                g.gap('%s %s, %s, %s, %s' % (MF, d, ar(A_KF + kb * 16 + s * 4, 4), vr(V_Q + (qb * 4 + s) * 4, 4), '0' if s == 0 else d))
    g.flush()
    addall(v_read_setup())
    for qb in range(4):
        p('v_mov_b32 %s, 0' % vr(V_L + qb))
    p('v_lshlrev_b32 %s, 20, v0' % vr(V_FST))
    p('s_getreg_b32 %s, hwreg(HW_REG_XCC_ID)' % T(0))
    p('s_and_b32 %s, %s, 15' % (T(0), T(0)))
    p('s_add_u32 %s, %s, 1' % (T(0), T(0)))
    p('v_mov_b32 %s, %s' % (vr(V_ONE), T(0)))
    p('v_lshlrev_b32 %s, 7, %s' % (vr(V_FOFF), L))
    p('v_mov_b32 %s, %s' % (vr(V_RN), L))
    addall(repack_pat())
    ms = [vr(V_E + qb) for qb in range(4)]
    for step in range(8):
        for qb in range(4):
            regs = [vr(Sreg(kb, qb) + r) for kb in range(4) for r in range(4)]
            if step == 0:
                p('v_max3_f32 %s, %s, %s, %s' % (ms[qb], regs[0], regs[1], regs[2]))
            elif step < 7:
                p('v_max3_f32 %s, %s, %s, %s' % (ms[qb], ms[qb], regs[2 * step + 1], regs[2 * step + 2]))
            else:
                p('v_max_f32 %s, %s, %s' % (ms[qb], ms[qb], regs[15]))
    addall(xlane4('v_max_f32', ms, [vr(V_T + k) for k in range(4)]))
    for qb in range(4):
        for r in range(4):
            p('v_sub_f32 %s, 0, %s' % (vr(V_NM + qb * 4 + r), ms[qb]))
    for kb in range(4):
        for qb in range(4):
            for r in range(4):
                x = vr(Sreg(kb, qb) + r)
                p('v_add_f32 %s, %s, %s' % (x, x, vr(V_NM + qb * 4)))
    stamp(5)
    def sm_plain(uu, i0, i1):
        prev = []
        for i in range(i0, i1):
            ex, ad, cv = sm_instrs(uu, i)
            p.add(ex)
            addall(prev)
            prev = [ad] + ([cv] if cv else [])
        p('s_nop 0')
        addall(prev)
    sm_plain(0, 0, 28)
    att_slots(p, 0, 0, 64, False, pv=False, sm_cur=False)
    sm_plain(0, 28, 60)
    p('s_mov_b32 %s, 0' % sr(S_CNT))
    p.wait_regs(ar(A_KF, 16))
    lp = p.loop_begin(7, 'att')
    p('.p2align 6')
    p.label('L_att')
    rtag = ('R', 0)
    g.vm_gap = 8

    def rp_loads():
        g.hi.append(Ins('buffer_load_dwordx4 %s, %s, %s, 0 offen nt' % (vr(V_RQ[0], 4), vr(V_RV), sr(S_A1, 4))))
        g.hi.append(Ins('buffer_load_dwordx4 %s, %s, %s, 0 offen nt' % (vr(V_RQ[1], 4), vr(V_RV), sr(S_A2, 4))))

    def rp_stores():
        g.hi.append(Ins('buffer_store_dwordx4 %s, %s, %s, %s offen sc1' % (vr(V_RQ[0], 4), vr(V_L16), sr(S_A3, 4), sr(S_RO)), lds=rtag))
        g.hi.append(Ins('buffer_store_dwordx4 %s, %s, %s, %s offen sc1' % (vr(V_RQ[1], 4), vr(V_L16), sr(S_A4, 4), sr(S_RO)), lds=rtag))
        g.hi.append(Ins('s_add_u32 %s, %s, 1024' % (sr(S_RO), sr(S_RO))))
    att_slots(p, 0, 64, 96, True)
    rp_loads()
    att_slots(p, 0, 96, 128, True, g=g, cap=4)
    assert not g.hi
    att_slots(p, 1, 0, 64, True)
    p('s_add_u32 %s, %s, 1' % (sr(S_CNT), sr(S_CNT)))
    p('s_cmp_eq_u32 %s, 7' % sr(S_CNT))
    p('s_cbranch_scc1 L_att_tail')
    p.loop_mark_exit(lp)
    g.lo.extend(repack_pat())
    att_slots(p, 1, 64, 128, True, g=g, cap=3)
    assert not g.lo
    att_slots(p, 2, 0, 30, True, extra_need=[rtag, ('H', 0)])
    p('s_cmp_eq_u32 %s, 4' % sr(S_CNT))
    p('s_cselect_b32 %s, %s, 0x100000' % (T(0), sr(S_FWG)))
    fl = flag_store(S_T0, 'H')
    g.hi.append(fl)
    g.vm_gap = 3
    rp_stores()
    att_slots(p, 2, 30, 66, True, g=g, cap=4)
    assert not g.hi
    att_slots(p, 2, 66, 96, True)
    g.vm_gap = 8
    rp_loads()
    att_slots(p, 2, 96, 128, True, g=g, cap=4)
    assert not g.hi
    g.lo.extend(repack_pat())
    att_slots(p, 3, 0, 128, True, g=g, cap=3)
    assert not g.lo
    att_slots(p, 4, 0, 30, True)
    g.vm_gap = 3
    rp_stores()
    att_slots(p, 4, 30, 64, True, g=g, cap=4)
    assert not g.hi
    p('s_branch L_att')
    p.loop_end()
    p.label('L_att_tail')
    stamp(6)
    g.vm_gap = 4
    att_slots(p, 25, 64, 96, False)
    g.hi.append(poll_issue(S_FGR))
    tt = []
    a = lambda x: tt.append(Ins(x))
    a('s_lshr_b32 %s, s2, 3' % T(0))
    a('s_lshl_b32 %s, %s, 2' % (T(1), sr(S_SP)))
    a('s_add_u32 %s, %s, %s' % (T(1), T(1), sr(S_W)))
    a('s_mul_i32 %s, %s, %d' % (T(1), T(1), 2176 * 288))
    a('s_mul_i32 %s, %s, 1152' % (T(2), T(0)))
    a('s_add_u32 %s, %s, %s' % (T(1), T(1), T(2)))
    a('s_add_u32 %s, %s, 0x%x' % (T(1), T(1), WS_W))
    tt += srd_ins(S_A1, P_WS, T(1), 16 * 36864 + 1152)
    a('s_and_b32 %s, s2, 4' % T(1))
    a('s_lshl_b32 %s, %s, 3' % (T(1), T(1)))
    a('s_add_u32 %s, %s, %s' % (T(1), T(1), T(0)))
    a('s_lshl_b32 %s, %s, 1' % (T(1), T(1)))
    a('s_and_b32 %s, %s, 1' % (T(2), sr(S_W)))
    a('s_add_u32 %s, %s, %s' % (T(1), T(1), T(2)))
    a('s_mul_i32 %s, %s, %d' % (T(1), T(1), 144 * 1024))
    a('s_mul_i32 %s, %s, %d' % (T(2), sr(S_SP), 36 * 1024))
    a('s_add_u32 %s, %s, %s' % (T(1), T(1), T(2)))
    a('s_add_u32 %s, %s, 0x%x' % (T(1), T(1), WS_H))
    tt += srd_ins(S_A2, P_WS, T(1), 36 * 1024)
    a('s_lshr_b32 %s, %s, 1' % (T(1), sr(S_W)))
    a('s_lshl_b32 %s, %s, 13' % (sr(S_RO), T(1)))
    g.hi.extend(tt)
    g.lo.extend([Ins('v_mul_u32_u24 %s, 7282, %s' % (vr(V_RV), L)),
                 Ins('v_lshrrev_b32 %s, 16, %s' % (vr(V_RV), vr(V_RV))),
                 Ins('v_mul_u32_u24 %s, %d, %s' % (vr(V_RV), 36864 - 1152, vr(V_RV))),
                 Ins('v_lshl_add_u32 %s, %s, 7, %s' % (vr(V_RV), L, vr(V_RV)))])
    att_slots(p, 25, 96, 128, False, g=g, cap=4)
    att_slots(p, 26, 0, 64, False, g=g, cap=3, dmav=False)
    g.flush()
    addall(dma_unit('V', 28, False))
    poll_check(p, 'h', S_FGR, 'v_cmp_eq_u32 vcc, 0')
    p('v_cmp_ne_u32 vcc, %s, %s' % (vr(V_ONE), vr(V_FV)))
    p('s_and_b32 %s, %s, 0x38' % (T(0), sr(S_TILE)))
    p('s_lshr_b64 vcc, vcc, %s' % T(0))
    p('s_and_b32 %s, vcc_lo, 0xff' % sr(S_OFFW))

    def touch_w(k):
        return [Ins('s_mov_b32 %s, %d' % (T(6), k * 7 * 36864)),
                Ins('buffer_load_dword v248, %s, %s, %s offen' % (vr(V_RV), sr(S_A1, 4), T(6)))]

    def touch_h(k):
        return [Ins('s_add_u32 %s, %s, %d' % (T(6), sr(S_RO), k * 16384)),
                Ins('buffer_load_dword v249, %s, %s, %s offen' % (vr(V_FOFF), sr(S_A2, 4), T(6)))]
    TD = OPT.get('touch_d', 1)
    att_slots(p, 26, 64, 96, False)
    if TD:
        g.hi.extend(touch_w(0))
    att_slots(p, 26, 96, 128, False, g=g, cap=4)
    att_slots(p, 27, 0, 32, False)
    if TD:
        g.hi.extend(touch_h(0))
    att_slots(p, 27, 32, 64, False, g=g, cap=4)
    att_slots(p, 27, 64, 96, False)
    if TD:
        g.hi.extend(touch_h(1))
    att_slots(p, 27, 96, 128, False, g=g, cap=4)
    att_slots(p, 28, 0, 32, False, dmak=False)
    if TD > 1:
        g.hi.extend(touch_h(2))
    att_slots(p, 28, 32, 64, False, g=g, cap=4, dmak=False)
    if TD > 1:
        g.hi.extend(touch_w(1))
    att_slots(p, 28, 64, 128, False, g=g, cap=4, dmak=False)
    att_slots(p, 29, 0, 64, False, dmak=False)
    assert not g.hi
    if TD:
        for k in range(4):
            p('s_mov_b32 %s, %s' % (sr(S_DWO + k), sr(S_A1 + k)))
    g.hi.extend(d_scalar_setup2())
    att_slots(p, 29, 64, 128, False, dmak=False, g=g, cap=4)
    g.flush()
    p.label('L_donly')
    att_slots(p, 30, 0, 2, False, dmak=False, dmav=False, g=g)
    g.hi.extend(d_dma(0))
    g.hi.append(sadd(S_FWG, 32768))
    g.hi.append(Ins('s_andn2_b32 %s, %s, 0x3ff' % (sr(S_FGR), sr(S_FWG))))
    g.lo.append(Ins('v_and_b32 %s, 0x380, %s' % (vr(V_FOFF), vr(V_FOFF))))
    att_slots(p, 30, 2, 128, False, dmak=False, dmav=False, g=g, cap=4, barrier=False)
    g.flush()
    g.vm_gap = 2
    att_slots(p, 31, 0, 2, False, qk=False, sm_next=False, dmak=False, dmav=False, g=g, vearly=True)
    g.hi.extend(d_bloads(0) + d_dma(1) + d_bloads(1))
    o = []
    o.append(Ins('v_lshrrev_b32 %s, 2, %s' % (t0, L)))
    o.append(Ins('v_mul_u32_u24 %s, 288, %s' % (t1, t0)))
    o.append(Ins('v_and_b32 %s, 3, %s' % (t2, L)))
    o.append(Ins('v_lshl_add_u32 %s, %s, 3, %s' % (vr(V_DRA), t2, t1)))
    for k in range(1, 4):
        o.append(Ins('v_add_u32 %s, %d, %s' % (vr(V_DRA + k), k * 36864, vr(V_DRA))))
    g.lo.extend(o)
    att_slots(p, 31, 2, 64, False, qk=False, sm_next=False, dmak=False, dmav=False, g=g, cap=4, barrier=False, vearly=True)
    g.flush()
    sm_plain(31, 60, 64)
    ls = [vr(V_L + qb) for qb in range(4)]
    g.lo.extend(xlane4('v_add_f32', ls, [vr(V_T + k) for k in range(4)]))
    g.lo.extend(Ins('v_rcp_f32 %s, %s' % (x, x)) for x in ls)
    n0 = g.n
    n = 0
    for t in range(4):
        for qb in range(4):
            g.lo.extend(o_epilogue_unit(qb, t, n, n0 + 16 * (t + 1) + 3))
            n += 1
    p.wait_regs(ar(A_VF, 8))
    att_slots(p, 32, 0, 2, False, qk=False, sm_cur=False, sm_next=False, vnext=False, dmak=False, dmav=False, g=g, barrier=False)
    p.need(('lgkm', 'all'), (PS(0), ('D', 0)))
    p('s_barrier')
    g.hi.extend(d_dma(2))
    att_slots(p, 32, 2, 48, False, qk=False, sm_cur=False, sm_next=False, vnext=False, dmak=False, dmav=False, g=g, barrier=False)
    g.hi.extend(d_reads(0, 0) + d_reads(0, 1))
    att_slots(p, 32, 48, 64, False, qk=False, sm_cur=False, sm_next=False, vnext=False, dmak=False, dmav=False, g=g, barrier=False)
    g.flush(g.hi)
    stamp(7)
    p.wait_regs(ar(A_DB, 32), vr(V_DA, 16))
    p('s_barrier')
    stamp(8)
    G2, GG = V_AC2, V_AC2 + 48
    xreg = lambda k, rb: 44 + (k * 2 + rb) * 2
    VO = V_T + 5

    def fin_setup():
        o = []
        o.append(Ins('v_and_b32 %s, 0x180, %s' % (vr(V_FOFF), vr(V_FOFF))))
        o.append(Ins('s_andn2_b32 %s, %s, 0x1ff' % (sr(S_FGR), sr(S_FT))))
        o.append(Ins('v_and_b32 %s, 15, %s' % (t0, L)))
        o.append(Ins('v_mul_u32_u24 %s, 1152, %s' % (t0, t0)))
        o.append(Ins('v_lshrrev_b32 %s, 4, %s' % (t1, L)))
        o.append(Ins('v_lshl_add_u32 %s, %s, 3, %s' % (vr(VO), t1, t0)))
        for k in range(3):
            for rb in range(2):
                o.append(Ins('buffer_load_dwordx2 %s, %s, %s, %s offen offset:%d' % (
                    vr(xreg(k, rb), 2), vr(VO), sr(S_DX, 4), sr(S_HS + 4 + rb + (2 if k == 2 else 0)), 128 * k)))
        return o

    def silu_g():
        o = []
        for k in range(3):
            d = GG + 8 * k
            o += d_sum(G2, k, d, V_T)
            for e in range(0, 8, 2):
                ta, tb = vr(V_T), vr(V_T + 1)
                o.append(Ins('v_mul_f32 %s, %s, %s' % (ta, sr(S_NL), vr(d + e))))
                o.append(Ins('v_mul_f32 %s, %s, %s' % (tb, sr(S_NL), vr(d + e + 1))))
                o.append(Ins('v_exp_f32 %s, %s' % (ta, ta)))
                o.append(Ins('v_exp_f32 %s, %s' % (tb, tb)))
                o.append(Ins('v_add_f32 %s, 1.0, %s' % (ta, ta)))
                o.append(Ins('v_add_f32 %s, 1.0, %s' % (tb, tb)))
                o.append(Ins('v_rcp_f32 %s, %s' % (ta, ta)))
                o.append(Ins('v_rcp_f32 %s, %s' % (tb, tb)))
                o.append(Ins('v_mul_f32 %s, %s, %s' % (vr(d + e), vr(d + e), ta)))
                o.append(Ins('v_mul_f32 %s, %s, %s' % (vr(d + e + 1), vr(d + e + 1), tb)))
        return o

    g.vm_gap = 1
    SO = OPT.get('o_done', 2)
    left = []
    for c in range(17):
        acc0 = V_AC2 if c < 9 else V_AC1
        first = c in (0, 9)
        if c == 9:
            stamp(14)
        if OPT.get('dst'):
            p('s_memrealtime %s' % sr(S_DG, 2))
            p('s_waitcnt lgkmcnt(0)')
            p('v_writelane_b32 v1, %s, %d' % (sr(S_DG), 32 + c))
        extra_need = []
        cap = 2
        if c <= SO:
            cap = OPT.get('cap_o', 4)
        if c == SO + 1:
            assert not g.lo and not g.st, len(g.lo)
            extra_need = [('O', 0)]
            g.st_max = 0
        if c == SO + 2:
            if OPT.get('plain_o', 1):
                SPIN_BLOCKS.append('L_wb:\n buffer_wbl2 sc1\n s_waitcnt vmcnt(0)\n s_branch L_wb_done')
                p('s_cmp_lg_u32 %s, 0' % sr(S_OFFW))
                p('s_cbranch_scc1 L_wb')
                p.label('L_wb_done')
            g.hi.append(flag_store(S_FWG, 'O'))
        if OPT.get('touch_d', 1) and c in (1, 4):
            k = {1: 1, 4: 2}[c]
            if not (k == 1 and OPT.get('touch_d', 1) > 1):
                g.hi.extend([Ins('s_mov_b32 %s, %d' % (T(6), k * 7 * 36864)),
                             Ins('buffer_load_dword v248, %s, %s, %s offen' % (vr(V_RV), sr(S_DWO, 4), T(6)))])
        if c == 6:
            g.hi.append(poll_issue(S_FGR))
        if c == 7:
            poll_check(p, 'o', S_FGR)
            g.hi.extend(d_bloads(9))
            cap = 3
        if c == 0:
            g.hi.extend(d_bloads(2))
        if c + 3 < 17:
            g.hi.extend((d_bloads(c + 3) if c != 6 else []) + d_dma(c + 3))
        if c in (9, 10):
            for nb in (range(5) if c == 9 else range(5, 9)):
                g.lo.extend(d_pstore(1, nb))
            cap = 3
        if c == 11:
            assert not g.lo
            extra_need = [('PT1', 0)]
            fs = fin_setup()
            g.lo.extend(fs[:-6])
            cap = 3
        if c == 12:
            g.hi.appendleft(flag_store(S_FT, 'PT1'))
        if c == 14:
            g.hi.append(poll_issue(S_FGR))
            g.hi.extend(fs[-6:])
        if c == 15:
            poll_check(p, 'p2', S_FGR)
            g.hi.extend([sadd(S_FGR, 32768), sadd(S_FT, 32768)])
            g.hi.extend(d_ploads(1, G2))
        for nb in range(9):
            n2 = nb + 2
            Lr = d_reads(c, n2) if n2 < 9 else (d_reads(c + 1, n2 - 9) if c < 16 else [])
            if c == 16 and nb >= 2:
                g.hi.extend(d_pstore(0, nb - 2))
            for t in range(8):
                rb, ks = t // 4, t % 4
                a = vr(acc0 + (nb * 2 + rb) * 4, 4)
                m = '%s %s, %s, %s, %s' % (MF, a, vr(V_DA + (nb % 3) * 16 + ks * 4, 4),
                                           ar(A_DB + (c % 4) * 32 + (rb * 4 + ks) * 4, 4),
                                           '0' if (first and ks == 0) else a)
                sc, ld = [], []
                if nb == 7:
                    if Lr and t >= 4:
                        ld = [Lr[2 * (t - 4)], Lr[2 * (t - 4) + 1]]
                    if t == 2 and c < 16:
                        sc = [need_ins(('lgkm', 'all'), (PS(c + 1), ('D', c + 1)), *extra_need)]
                    if t == 3 and c < 16:
                        sc = [Ins('s_barrier')]
                elif Lr:
                    ld = [Lr[t], Lr[t + 1]] if t % 2 == 0 else []
                if t == 7:
                    w = [vr(V_DA + ((nb + 1) % 3) * 16, 16)]
                    if nb == 8:
                        w.append(ar(A_DB + ((c + 1) % 4) * 32, 32))
                    sc = [wait_ins(*w)]
                g.gap(m, sc, ld, cap=cap)
        if c < 16:
            assert not g.hi, (c, len(g.hi))
    stamp(9)
    g.hi.extend(d_pstore(0, 7) + d_pstore(0, 8))
    g.flush()
    stamp(10)
    sg = silu_g()
    addall(sg[:len(sg) // 2])
    p.need(('PT0', 0))
    p('s_barrier')
    stamp(11)
    p.add(flag_store(S_FT, 'PT0'))
    p.add(poll_issue(S_FGR))
    addall(sg[len(sg) // 2:])
    poll_check(p, 'p1', S_FGR)
    stamp(12)
    addall(d_ploads(0, G2))
    for k in range(3):
        d = V_AC1 + 16 * k
        addall(d_sum(G2, k, d, V_T))
        for rb in range(2):
            xb = xreg(k, rb)
            for e in range(4):
                tx = vr(d + 8 + e)
                if e % 2 == 0:
                    p('v_lshlrev_b32 %s, 16, %s' % (tx, vr(xb + e // 2)))
                else:
                    p('v_and_b32 %s, 0xffff0000, %s' % (tx, vr(xb + e // 2)))
                p('v_fma_f32 %s, %s, %s, %s' % (tx, vr(d + rb * 4 + e), vr(GG + 8 * k + rb * 4 + e), tx))
            o = d + 12 + 2 * rb
            p('v_cvt_pk_bf16_f32 %s, %s, %s' % (vr(o), vr(d + 8), vr(d + 9)))
            p('v_cvt_pk_bf16_f32 %s, %s, %s' % (vr(o + 1), vr(d + 10), vr(d + 11)))
            p('buffer_store_dwordx2 %s, %s, %s, %s offen offset:%d' % (
                vr(o, 2), vr(VO), sr(S_DOUT, 4), sr(S_HS + 4 + rb + (2 if k == 2 else 0)), 128 * k))
    if diag:
        p('s_waitcnt vmcnt(0)')
        stamp(13)
        p('s_mov_b32 %s, 0x%x' % (T(3), WS_T))
        make_srd(p, S_K, P_WS, T(3), 0x100000)
        p('s_lshl_b32 %s, s2, 2' % T(0))
        p('s_add_u32 %s, %s, %s' % (T(0), T(0), sr(S_W)))
        p('s_lshl_b32 %s, %s, 8' % (T(0), T(0)))
        p('v_lshlrev_b32 v4, 2, %s' % L)
        p('buffer_store_dword v1, v4, %s, %s offen' % (sr(S_K, 4), T(0)))
    p.label('L_end')
    p('s_endpgm')
    for t in SPIN_BLOCKS:
        p.raw(t)
    p.raw('L_code_end:')
    for x in p.flat():
        if OPT.get('kv_nt', 1) and x.kind == 'dma' and ('s[4:7]' in x.text or 's[8:11]' in x.text):
            x.text = x.text.replace(' lds', ' nt lds')
        if OPT.get('w_nt') and x.kind == 'dma' and x.lds and not callable(x.lds[1]) and x.lds[1][0] in 'WQ':
            x.text = x.text.replace(' lds', ' nt lds')
        if OPT.get('st01') and x.kind == 'vst' and 'x4' in x.text:
            x.text = x.text.replace(' sc1', ' sc0 sc1')
        if OPT.get('nost') and x.kind == 'vst' and 'x4' in x.text and x.lds and (x.lds[0] == 'O' or (OPT['nost'] > 1 and x.lds[0] == 'PT1')):
            x.text = 's_nop 0'
            x.kind = 'sopp'; x.op = 's_nop'; x.ops = ['0']; x.rd = []; x.lds = None
        if OPT.get('dplain') and x.kind in ('dma', 'vld') and 'x4' in x.text:
            x.text = x.text.replace(' sc1', '')
    p.finalize(verbose=bool(OPT.get('verbose')), check=not (OPT.get('drop') or OPT.get('nost')))
    print('total overflow slots', g.over, p.stats(), file=sys.stderr)
    return p


def build(diag=False):
    ln, km = gen_ln(), gen_main(diag)
    hdr = open('cdna_kernels/%s.s.ref' % NAME).read().split('; Override launch')[0]
    out = hdr
    if not OPT.get('donly'):
        out += '; @launch kernel=ln_kernel grid=(256,1,1) block=(256,1,1) lds=0\n'
    out += '; @launch kernel=main_kernel grid=(256,1,1) block=(256,1,1) lds=163840\n'
    out += '.amdgcn_target "amdgcn-amd-amdhsa--gfx950"\n.text\n'
    out += kernel_text('ln_kernel', ln, 0, 0) + kernel_text('main_kernel', km, 0, 0)
    out += '.section .rodata,"a"\n'
    for n, nv, acc in (('ln_kernel', 64, 64), ('main_kernel', 512, 256)):
        out += '.p2align 6\n' + descriptor(n, nv, acc)
    return out


if __name__ == '__main__':
    diag = 'diag' in sys.argv[2:]
    for a in sys.argv[2:]:
        if '=' in a:
            k, v = a.split('=')
            OPT[k] = int(v)
    open(sys.argv[1], 'w').write(build(diag))
```

```python
import sys, struct
from collections import deque
from dsl import *

OPT = {}
NAME = 'recurrent_scan__mha_block_cached__glu_gated_swiglu__prompt'
WS_XN = 0
WS_F = 3 << 20
WS_O = 4 << 20
WS_H = 24 << 20
WS_P = 48 << 20
PG = 64 * 16 * 9216
WS_W = 96 << 20
WS_T = 128 << 20
MF = 'v_mfma_f32_16x16x32_bf16'
LOG2E = 1.4426950408889634


def f2u(x):
    return struct.unpack('<I', struct.pack('<f', x))[0]


def srd_ins(srd, ptr, off, size):
    o = []
    if off is None:
        o.append(Ins('s_mov_b32 %s, %s' % (sr(srd), sr(ptr))))
        o.append(Ins('s_mov_b32 %s, %s' % (sr(srd + 1), sr(ptr + 1))))
    else:
        o.append(Ins('s_add_u32 %s, %s, %s' % (sr(srd), sr(ptr), off)))
        o.append(Ins('s_addc_u32 %s, %s, 0' % (sr(srd + 1), sr(ptr + 1))))
    o.append(Ins('s_mov_b32 %s, %s' % (sr(srd + 2), size if isinstance(size, str) else '0x%x' % size)))
    o.append(Ins('s_mov_b32 %s, 0x00020000' % sr(srd + 3)))
    return o


def make_srd(p, srd, ptr, off, size):
    for x in srd_ins(srd, ptr, off, size):
        p.add(x)


def cost(ins):
    if ins.kind == 'valu':
        return 2 if ins.trans else 1
    if ins.kind in ('dsr', 'dsw'):
        return 1
    if ins.kind in ('dma', 'vld', 'vst'):
        return 2
    return 0


class Gaps:
    def __init__(self, p):
        self.p = p
        self.hi = deque()
        self.lo = deque()
        self.n = 0
        self.over = 0
        self.waste = 0
        self.drop = ()
        self.vm_next = 0
        self.st = deque()
        self.st_max = 2
        self.vm_gap = 1

    def emit(self, x):
        if self.drop and x.kind in self.drop:
            return
        self.p.add(x)
        if x.on_emit:
            x.on_emit()

    def gap(self, mfma, sc=(), ld=(), va=(), cap=2):
        if mfma is not None:
            self.p.add(mfma if isinstance(mfma, Ins) else Ins(mfma))
        sc, ld, va = list(sc), list(ld), list(va)
        used = sum(cost(x) for x in ld + va)
        for q in (self.st, self.hi, self.lo):
            pulled = False
            pva = False
            while q:
                x = q[0]
                if x.ready > self.n:
                    break
                c = cost(x)
                if q is self.lo and x.kind == 'vst' and len(self.st) < self.st_max:
                    x.ready = self.n + 1
                    self.st.append(q.popleft())
                    continue
                if c == 0:
                    if sc or pulled:
                        break
                    sc.append(q.popleft())
                    if 'm0' in x.wr:
                        break
                    continue
                if used + c > cap:
                    break
                if x.kind != 'valu':
                    if pva:
                        break
                    if c == 2:
                        if self.n < self.vm_next:
                            break
                        w = 3 if x.kind == 'vst' else (4 if 'buffer_load_dword ' in x.text and 'sc1' not in x.text else 1)
                        self.vm_next = self.n + self.vm_gap * w
                    ld.append(q.popleft())
                else:
                    va.append(q.popleft())
                    pva = True
                used += c
                pulled = True
        for x in sc + ([Ins(mfma)] if isinstance(mfma, str) else []):
            self.check(x)
        self.over += max(0, used - 2)
        if used < 2 and (self.hi or self.lo):
            self.waste += 2 - used
        for x in sc + ld + va:
            self.emit(x)
        self.n += 1

    def check(self, x):
        regs = set(x.rd) if (x.text.startswith('; need') or x.kind == 'mfma') else set()
        tags = [t for t in (x.need or []) if not callable(t[1])]
        for q in (self.st, self.hi, self.lo):
            for y in q:
                if y.kind in ('vld', 'dsr') and set(y.wr) & regs and not getattr(y, 'later', False):
                    raise AssertionError('consumer %s before queued load %s' % (x.text, y.text))
                if y.lds is not None and y.lds in tags:
                    raise AssertionError('need %s before queued %s' % (tags, y.text))

    def flush(self, q=None):
        for qq in ((self.st, self.hi, self.lo) if q is None else (q,)):
            while qq:
                x = qq.popleft()
                self.over += max(1, cost(x))
                self.emit(x)


def rg(t, n=4):
    return (vr if t[0] == 'v' else ar)(t[1], n)


def prefetch_w(p, ptr, srd, soff, rows, stride, lines, rounds, vt, vd):
    t = lambda k: vr(vt + k)
    make_srd(p, srd, ptr, soff, (rows - 1) * stride + lines * 128)
    return t


def gen_ln():
    p = Prog()
    p('s_cmp_ge_u32 s2, 256')
    p('s_cbranch_scc1 L_ln_end')
    p('s_load_dwordx2 s[12:13], s[0:1], 0')
    p('s_load_dwordx2 s[14:15], s[0:1], 88')
    p('s_load_dwordx4 s[32:35], s[0:1], 48')
    p('v_lshrrev_b32 v1, 5, v0')
    p('s_lshl_b32 s3, s2, 3')
    p('v_add_u32 v1, s3, v1')
    p('v_and_b32 v2, 31, v0')
    p('v_lshrrev_b32 v3, 2, v2')
    p('v_and_b32 v4, 3, v2')
    p('v_mul_u32_u24 v5, 1152, v1')
    p('v_lshl_add_u32 v5, v3, 6, v5')
    p('v_lshl_add_u32 v5, v4, 3, v5')
    p('v_cmp_gt_u32 vcc, 8, v2')
    p('s_mov_b64 s[16:17], vcc')
    for r in range(16, 20):
        p('v_mov_b32 v%d, 0' % r)
    p('s_waitcnt lgkmcnt(0)')
    make_srd(p, 4, 12, None, 2048 * 1152)
    for it in range(2):
        p('buffer_load_dwordx2 v[%d:%d], v5, s[4:7], 0 offen offset:%d' % (8 + 4 * it, 9 + 4 * it, it * 512))
        p('buffer_load_dwordx2 v[%d:%d], v5, s[4:7], 0 offen offset:%d' % (10 + 4 * it, 11 + 4 * it, it * 512 + 32))
    p('s_mov_b64 exec, s[16:17]')
    p('buffer_load_dwordx2 v[16:17], v5, s[4:7], 0 offen offset:1024')
    p('buffer_load_dwordx2 v[18:19], v5, s[4:7], 0 offen offset:1056')
    p('s_mov_b64 exec, -1')
    R0 = OPT.get('pf0', 6)
    if R0:
        p('s_lshr_b32 s20, s2, 3')
        p('s_mul_i32 s20, s20, %d' % (R0 * 9216))
        p('s_and_b32 s21, s2, 3')
        p('s_mul_i32 s21, s21, 2304')
        p('s_add_u32 s20, s20, s21')
        make_srd(p, 36, 32, 's20', (R0 - 1) * 9216 + 2304)
        make_srd(p, 40, 34, 's20', (R0 - 1) * 9216 + 2304)
        p('v_mul_u32_u24 v56, 3641, v0')
        p('v_lshrrev_b32 v56, 16, v56')
        p('v_mul_u32_u24 v57, 18, v56')
        p('v_sub_u32 v57, v0, v57')
        p('v_mul_u32_u24 v56, 9216, v56')
        p('v_lshl_add_u32 v56, v57, 7, v56')
        p('buffer_load_dword v58, v56, s[36:39], 0 offen')
        p('buffer_load_dword v59, v56, s[40:43], 0 offen')
    if OPT.get('pfc', 1):
        p('s_getpc_b64 s[44:45]')
        p.label('L_pc')
        p('s_add_u32 s44, s44, main_kernel-L_pc')
        p('s_addc_u32 s45, s45, 0')
        p('s_lshr_b32 s46, s2, 3')
        p('s_lshl_b32 s46, s46, 12')
        p('v_and_b32 v60, 31, v0')
        p('v_lshlrev_b32 v60, 7, v60')
        p('v_add_u32 v60, s46, v60')
        p('v_min_u32 v60, L_code_end-main_kernel-4, v60')
        p('global_load_dword v61, v60, s[44:45]')
    make_srd(p, 8, 14, None, 2048 * 1152)
    p('v_lshrrev_b32 v6, 4, v1')
    p('v_mul_u32_u24 v6, 18, v6')
    p('v_add_u32 v6, v6, v3')
    p('v_lshlrev_b32 v6, 10, v6')
    p('v_lshl_add_u32 v6, v4, 8, v6')
    p('v_and_b32 v7, 15, v1')
    p('v_lshl_add_u32 v6, v7, 4, v6')
    p('s_mov_b32 s20, 0x%x' % WS_F)
    make_srd(p, 24, 14, 's20', 4 * 32768)
    p('s_lshl_b32 s21, s2, 7')
    p('v_lshlrev_b32 v50, 15, v0')
    p('v_mov_b32 v52, 0')
    p('buffer_store_dword v52, v50, s[24:27], s21 offen')
    for d in range(12):
        p('v_lshlrev_b32 v%d, 16, v%d' % (20 + 2 * d, 8 + d))
        p('v_and_b32 v%d, 0xffff0000, v%d' % (21 + 2 * d, 8 + d))

    def reduce32(x, t):
        for k in (8, 4, 2, 1):
            p('v_add_f32_dpp %s, %s, %s row_ror:%d row_mask:0xf bank_mask:0xf' % (x, x, x, k))
        p('v_mov_b32 %s, %s' % (t, x))
        p('v_permlane16_swap_b32 %s, %s' % (x, t))
        p('v_add_f32 %s, %s, %s' % (x, x, t))
    p('v_add_f32 v44, v20, v21')
    p('v_add_f32 v45, v22, v23')
    for e in range(4, 24, 2):
        p('v_add_f32 v44, v44, v%d' % (20 + e))
        p('v_add_f32 v45, v45, v%d' % (21 + e))
    p('v_add_f32 v44, v44, v45')
    reduce32('v44', 'v45')
    p('v_mul_f32 v44, 0x%x, v44' % f2u(1.0 / 576))
    p('v_mov_b32 v46, 0')
    p('v_mov_b32 v47, 0')
    for e in range(16):
        p('v_sub_f32 v48, v%d, v44' % (20 + e))
        p('v_fmac_f32 v%d, v48, v48' % (46 + e % 2))
    p('s_mov_b64 exec, s[16:17]')
    for e in range(16, 24):
        p('v_sub_f32 v48, v%d, v44' % (20 + e))
        p('v_fmac_f32 v%d, v48, v48' % (46 + e % 2))
    p('s_mov_b64 exec, -1')
    p('v_add_f32 v46, v46, v47')
    reduce32('v46', 'v45')
    p('v_mul_f32 v46, 0x%x, v46' % f2u(1.0 / 576))

    def rnd(x):
        p('v_cvt_pk_bf16_f32 %s, %s, %s' % (x, x, x))
        p('v_lshlrev_b32 %s, 16, %s' % (x, x))
    rnd('v44')
    rnd('v46')
    p('v_add_f32 v46, 0x%x, v46' % f2u(1e-5))
    rnd('v46')
    p('v_sqrt_f32 v46, v46')
    rnd('v46')
    p('v_rcp_f32 v46, v46')
    for d in range(12):
        a, b = 20 + 2 * d, 21 + 2 * d
        p('v_sub_f32 v%d, v%d, v44' % (a, a))
        p('v_sub_f32 v%d, v%d, v44' % (b, b))
        p('v_cvt_pk_bf16_f32 v%d, v%d, v%d' % (8 + d, a, b))
        p('v_lshlrev_b32 v%d, 16, v%d' % (a, 8 + d))
        p('v_and_b32 v%d, 0xffff0000, v%d' % (b, 8 + d))
        p('v_mul_f32 v%d, v%d, v46' % (a, a))
        p('v_mul_f32 v%d, v%d, v46' % (b, b))
        p('v_cvt_pk_bf16_f32 v%d, v%d, v%d' % (8 + d, a, b))
    p('s_mov_b32 s18, 8192')
    p('s_mov_b32 s19, 16384')
    p('buffer_store_dwordx4 v[8:11], v6, s[8:11], 0 offen')
    p('buffer_store_dwordx4 v[12:15], v6, s[8:11], s18 offen')
    p('s_mov_b64 exec, s[16:17]')
    p('buffer_store_dwordx4 v[16:19], v6, s[8:11], s19 offen')
    p.label('L_ln_end')
    p('s_endpgm')
    p.finalize()
    return p


S_K, S_V, S_XN, S_WS, S_WQ, S_H, S_O, S_FL, S_A1, S_A2, S_A3, S_A4 = 4, 8, 12, 16, 20, 24, 28, 32, 36, 40, 44, 48
S_DW2, S_DWO, S_DH, S_DO, S_DP, S_DR, S_DX, S_DOUT = 12, 16, 20, 24, 36, 40, 44, 48
(S_W, S_MK, S_MV, S_OFFK, S_OFFV, S_CNT, S_HD, S_QT, S_M1, S_OFFW, S_OFFQ, S_C, S_NL, S_FWG, S_FGR, S_FT,
 S_RO, S_SP, S_TILE) = range(52, 71)
S_HS = 71
S_T0 = 79
S_DG = 90
P_X, P_WO, P_W2, P_OUT, P_WS = 92, 94, 96, 98, 100
T = lambda k: sr(S_T0 + k)

V_L16, V_LANE = 2, 3
V_A1 = 4
V_OW = 8
V_AQ = 8
V_OQ = 20
V_OK, V_OV = 22, 26
V_SW = 28
V_T = 34
V_KA, V_VA, V_L, V_E = 4, 8, 16, 28
V_NM, V_S, V_P, V_Q = 40, 56, 120, 184
V_FST, V_ONE, V_FOFF, V_FV = 252, 253, 254, 255
A_O, A_KF, A_VF = 0, 128, 192
A_A, A_B = 128, 160
X0 = 72
DK, DV = 4, 2
L = vr(V_LANE)
t0, t1, t2, t3 = (vr(V_T + i) for i in range(4))


def LS(n):
    return (n * 16384, 16384)


def PS(c):
    return ((c % 4) * 36864, 36864)


def Sreg(kb, qb):
    return V_S + (kb * 4 + qb) * 4


def Preg(u, qb, ks):
    return V_P + (u & 1) * 32 + qb * 8 + ks * 4


def ktag(u, inloop):
    return (lambda it: ('K', u + 4 * it)) if inloop else ('K', u)


def vtag(u, inloop):
    return (lambda it: ('V', u + 4 * it)) if inloop else ('V', u)


def k_load(u, kb, s, inloop):
    return Ins('ds_read_b128 %s, %s offset:%d' % (ar(A_KF + kb * 16 + s * 4, 4), vr(V_KA + s), (u % 4) * 16384 + kb * 4096),
               lds=(LS(u % 4), ktag(u, inloop)))


def v_load(u, db, ks, j, inloop):
    return Ins('ds_read_b64_tr_b16 %s, %s offset:%d' % (
        ar(A_VF + db * 8 + ks * 4 + 2 * j, 2), vr(V_VA + db), (u % 4) * 16384 + (32 * ks + 16 * j) * 256),
        lds=(LS(4 + u % 4), vtag(u, inloop)))


def dma_unit(kind, u, inloop):
    out = []
    if kind == 'K':
        out.append(Ins('s_add_u32 m0, %s, %d' % (sr(S_MK), (u % 4) * 16384)))
        for cc in range(4):
            out.append(Ins('buffer_load_dwordx4 %s, %s, %s offen offset:%d lds' % (
                vr(V_OK + cc), sr(S_K, 4), sr(S_OFFK), cc * 1024), lds=(LS(u % 4), ktag(u, inloop))))
        out.append(Ins('s_add_u32 %s, %s, 16384' % (sr(S_OFFK), sr(S_OFFK))))
    else:
        out.append(Ins('s_add_u32 m0, %s, %d' % (sr(S_MV), (u % 4) * 16384)))
        for cc in range(4):
            out.append(Ins('buffer_load_dwordx4 %s, %s, %s offen offset:%d lds' % (
                vr(V_OV + cc % 2), sr(S_V, 4), sr(S_OFFV), cc * 1024), lds=(LS(4 + u % 4), vtag(u, inloop))))
        out.append(Ins('s_add_u32 %s, %s, 16384' % (sr(S_OFFV), sr(S_OFFV))))
    return out


def sm_instrs(uu, i):
    n, r = i // 4, i % 4
    kb, qb = n // 4, n % 4
    e = vr(V_E + i % 4)
    ex = Ins('v_exp_f32 %s, %s' % (e, vr(Sreg(kb, qb) + r)))
    ad = Ins('v_add_f32 %s, %s, %s' % (vr(V_L + qb), vr(V_L + qb), e))
    cv = None
    if r % 2 == 1:
        cv = Ins('v_cvt_pk_bf16_f32 %s, %s, %s' % (
            vr(Preg(uu, qb, kb // 2) + (kb % 2) * 2 + r // 2), vr(V_E + (i - 1) % 4), e))
    return ex, ad, cv


def att_slots(p, u, ta, tb, inloop, pv=True, qk=True, sm_cur=True, sm_next=True, vnext=True, dmak=True, dmav=True,
              barrier=True, g=None, cap=2, vearly=False, extra_need=()):
    T0 = -40
    R = range(-128, 256)
    sc = {t: [] for t in R}
    ld = {t: [] for t in R}
    va = {t: [] for t in R}
    for t in range(0, 128, 2):
        if t >= X0:
            uu, i, on = u + 1, (t - X0) // 2, sm_next
        else:
            uu, i, on = u, (t + 128 - X0) // 2, sm_cur
        if on:
            ex, ad, cv = sm_instrs(uu, i)
            va[t].append(ex)
            va[t + 1].append(ad)
            if cv is not None:
                va[t + 1].append(cv)
    pos = [t for t in range(T0, T0 + 128) if t % 8 in (1, 4, 5)]
    n = 0
    m = 0
    for db in range(8):
        for ks in range(2):
            for j in range(2):
                t = pos[n]
                n += 1
                if t >= 0:
                    if pv:
                        ld[t].append(v_load(u - 1, db, ks, j, inloop))
                elif vnext:
                    if vearly:
                        ld[46 + m].append(v_load(u, db, ks, j, inloop))
                        m += 1
                    else:
                        ld[t + 128].append(v_load(u, db, ks, j, inloop))
        t = 8 * db - 1
        sc[t if t >= 0 else t + 128].append(wait_ins(ar(A_VF + db * 8, 8)))
    for kb in range(4):
        for s in range(4):
            t = pos[n]
            n += 1
            if qk:
                ld[t].append(k_load(u + 1, kb, s, inloop))
        if qk:
            sc[64 + 16 * kb - 1].append(wait_ins(ar(A_KF + kb * 16, 16)))
    for on, kind, uu, tt in ((dmav, 'V', u + DV, 2), (dmak, 'K', u + DK, 66)):
        if on:
            lst = dma_unit(kind, uu, inloop)
            sc[tt].append(lst[0])
            ds = OPT.get('dstep', 8)
            for k in range(4):
                ld[tt + ds * k + (4 if k == 0 else 0)].append(lst[1 + k])
            sc[tt + ds * 3 + 1].append(lst[5])
    if barrier:
        nd = [(LS(4 + u % 4), vtag(u, inloop))] + list(extra_need)
        if qk:
            nd.append((LS((u + 1) % 4), ktag(u + 1, inloop)))
        sc[0].append(need_ins(*nd))
        sc[1].append(Ins('s_barrier'))
    g = g or Gaps(p)
    for t in range(ta, tb):
        mf = None
        if t < 64:
            if pv:
                db, qb, ks = t // 8, (t % 8) // 2, t % 2
                o = ar(A_O + (db * 4 + qb) * 4, 4)
                mf = '%s %s, %s, %s, %s' % (MF, o, ar(A_VF + db * 8 + ks * 4, 4), vr(Preg(u - 1, qb, ks), 4), o)
        elif qk:
            tt = t - 64
            kb, qb, s = tt // 16, (tt % 16) // 4, tt % 4
            d = vr(Sreg(kb, qb), 4)
            c = vr(V_NM + qb * 4, 4) if s == 0 else d
            mf = '%s %s, %s, %s, %s' % (MF, d, ar(A_KF + kb * 16 + s * 4, 4), vr(V_Q + (qb * 4 + s) * 4, 4), c)
        assert len(sc[t]) <= 1 and len(ld[t]) <= 1
        if mf is None and not (sc[t] or ld[t] or va[t]):
            continue
        g.gap(mf, sc[t], ld[t], va[t], cap=cap)


def kv_dma_setup():
    o = []
    a = lambda s: o.append(Ins(s))
    a('v_and_b32 %s, 15, %s' % (t0, L))
    a('v_lshrrev_b32 %s, 4, %s' % (t1, L))
    a('v_lshlrev_b32 %s, 8, %s' % (t2, t1))
    a('v_add_u32 %s, %s, %s' % (t2, sr(S_MK), t2))
    a('v_xor_b32 %s, %s, %s' % (t3, t0, t1))
    a('v_lshl_add_u32 %s, %s, 4, %s' % (vr(V_OK), t3, t2))
    for c in range(1, 4):
        a('v_xor_b32 %s, %d, %s' % (vr(V_OK + c), c * 64, vr(V_OK)))
    a('v_lshlrev_b32 %s, 1, %s' % (t3, t1))
    a('v_xor_b32 %s, %s, %s' % (t3, t0, t3))
    a('v_lshl_add_u32 %s, %s, 4, %s' % (vr(V_OV), t3, t2))
    a('v_xor_b32 %s, 128, %s' % (vr(V_OV + 1), vr(V_OV)))
    return o


def k_read_setup():
    o = []
    a = lambda s: o.append(Ins(s))
    a('v_and_b32 %s, 15, %s' % (t0, L))
    a('v_lshrrev_b32 %s, 4, %s' % (t1, L))
    a('v_xor_b32 %s, %s, %s' % (t2, t0, t1))
    a('v_lshlrev_b32 %s, 4, %s' % (t2, t2))
    a('v_lshl_add_u32 %s, %s, 8, %s' % (vr(V_KA), t0, t2))
    for s in range(1, 4):
        a('v_xor_b32 %s, %d, %s' % (vr(V_KA + s), s * 64, vr(V_KA)))
    return o


def v_read_setup():
    o = []
    a = lambda s: o.append(Ins(s))
    a('v_lshrrev_b32 %s, 2, %s' % (t2, L))
    a('v_and_b32 %s, 7, %s' % (t3, t2))
    a('v_lshlrev_b32 %s, 5, %s' % (t3, t3))
    a('v_lshl_add_u32 %s, %s, 8, %s' % (t3, t2, t3))
    a('v_and_b32 %s, 3, %s' % (t2, L))
    a('v_lshl_add_u32 %s, %s, 3, %s' % (t3, t2, t3))
    a('v_add_u32 %s, 0x10000, %s' % (vr(V_VA), t3))
    for d in range(1, 8):
        a('v_xor_b32 %s, %d, %s' % (vr(V_VA + d), d * 32, vr(V_VA)))
    return o


def xlane4(op, xs, ts):
    o = []
    for perm in ('v_permlane32_swap_b32', 'v_permlane16_swap_b32'):
        for x, t in zip(xs, ts):
            o.append(Ins('v_mov_b32 %s, %s' % (t, x)))
        for x, t in zip(xs, ts):
            o.append(Ins('%s %s, %s' % (perm, x, t)))
        for x, t in zip(xs, ts):
            o.append(Ins('%s %s, %s, %s' % (op, x, x, t)))
    return o


def div18(o, n, row, sl):
    o.append(Ins('v_mul_u32_u24 %s, 3641, %s' % (row, n)))
    o.append(Ins('v_lshrrev_b32 %s, 16, %s' % (row, row)))
    o.append(Ins('v_mul_u32_u24 %s, 18, %s' % (sl, row)))
    o.append(Ins('v_sub_u32 %s, %s, %s' % (sl, n, sl)))


def ffn_tiles():
    m, nv, na = {}, 0, 0
    for b in range(9):
        for mat in range(2):
            for qb in range(4):
                if mat == 1 and na < 18:
                    m[(2 * b + mat, qb)] = ('a', na * 4)
                    na += 1
                else:
                    m[(2 * b + mat, qb)] = ('v', 40 + nv * 4)
                    nv += 1
    assert nv == 54 and na == 18
    return m


FT = ffn_tiles()
WQ_SLOT = {8: 9, 7: 3, 6: 4, 5: 5, 4: 6, 3: 7, 2: 8, 1: 9, 0: 3}


def p1_dma(c):
    out = [Ins('s_add_u32 %s, %s, %d' % (T(8), sr(S_OFFW), c * 64 * 9216))]
    for i in range(9):
        if i % 4 == 0:
            out.append(Ins('s_add_u32 m0, %s, %d' % (sr(S_M1), PS(c)[0] + (i // 4) * 4096)))
        out.append(Ins('buffer_load_dwordx4 %s, %s, %s offen offset:%d lds' % (
            vr(V_OW + i), sr(S_WS, 4), T(8), (i % 4) * 1024), lds=(PS(c), ('W', c))))
    return out


def xn_loads(c, buf):
    base = A_B + buf * 32
    out = []
    for qb in range(4):
        out.append(Ins('s_mov_b32 %s, %d' % (T(qb), qb * 18 * 1024 + c * 2048)))
        for ks in range(2):
            out.append(Ins('buffer_load_dwordx4 %s, %s, %s, %s offen offset:%d' % (
                ar(base + (qb * 2 + ks) * 4, 4), vr(V_L16), sr(S_XN, 4), T(qb), ks * 1024)))
    return out


def wq_dma(c):
    sl = WQ_SLOT[c]
    out = []
    for cc in range(4):
        out.append(Ins('s_add_u32 %s, %s, %d' % (T(4 + cc % 2), sr(S_OFFQ), (c * 64 + cc * 4) * 8192)))
        out.append(Ins('s_add_u32 m0, %s, %d' % (sr(S_MK), sl * 16384 + cc * 1024)))
        out.append(Ins('buffer_load_dwordx4 %s, %s, %s offen lds' % (
            vr(V_OQ + cc % 2), sr(S_WQ, 4), T(4 + cc % 2)), lds=(LS(sl), ('Q', c))))
    return out


def p1_reads(c, blk, dst):
    mat, b = blk % 2, blk // 2
    return [Ins('ds_read_b64_tr_b16 %s, %s offset:%d' % (
        ar(dst + ks * 4 + 2 * j, 2), vr(V_A1 + c % 4),
        mat * 18432 + (32 * ks + 16 * j) * 288 + 32 * b), lds=(PS(c), ('W', c)))
        for ks in range(2) for j in range(2)]


def p2_reads(c, bq, dst):
    s, jj = bq // 2, bq % 2
    sl = WQ_SLOT[c]
    return [Ins('ds_read_b64_tr_b16 %s, %s offset:%d' % (
        ar(dst + ks * 4 + 2 * j, 2), vr(V_AQ + (sl // 4) * 4 + s),
        (sl % 4) * 16384 + (32 * ks + 16 * j) * 256 + 8 * jj), lds=(LS(sl), ('Q', c)))
        for ks in range(2) for j in range(2)]


def swiglu_unit(b, qb, ready, pool):
    gt, ut = FT[(2 * b, qb)], FT[(2 * b + 1, qb)]
    pk = FT[(2 * (b - b % 2), qb)][1] + (b % 2) * 2
    o = []
    ta, tb = vr(V_SW), vr(V_SW + 1)
    for r in (0, 2):
        pa, pb = vr(V_SW + 2 + r), vr(V_SW + 3 + r)
        g0, g1 = vr(gt[1] + r), vr(gt[1] + r + 1)
        if ut[0] == 'a':
            o.append(Ins('v_accvgpr_read_b32 %s, %s' % (pa, ar(ut[1] + r))))
            o.append(Ins('v_accvgpr_read_b32 %s, %s' % (pb, ar(ut[1] + r + 1))))
            u0, u1 = pa, pb
        else:
            u0, u1 = vr(ut[1] + r), vr(ut[1] + r + 1)
        o.append(Ins('v_mul_f32 %s, %s, %s' % (ta, sr(S_NL), g0)))
        o.append(Ins('v_mul_f32 %s, %s, %s' % (tb, sr(S_NL), g1)))
        o.append(Ins('v_exp_f32 %s, %s' % (ta, ta)))
        o.append(Ins('v_exp_f32 %s, %s' % (tb, tb)))
        o.append(Ins('v_mul_f32 %s, %s, %s' % (pa, g0, u0)))
        o.append(Ins('v_mul_f32 %s, %s, %s' % (pb, g1, u1)))
        o.append(Ins('v_add_f32 %s, 1.0, %s' % (ta, ta)))
        o.append(Ins('v_add_f32 %s, 1.0, %s' % (tb, tb)))
        o.append(Ins('v_rcp_f32 %s, %s' % (ta, ta)))
        o.append(Ins('v_rcp_f32 %s, %s' % (tb, tb)))
        o.append(Ins('v_mul_f32 %s, %s, %s' % (pa, pa, ta)))
        o.append(Ins('v_mul_f32 %s, %s, %s' % (pb, pb, tb)))
    for r in (0, 2):
        o.append(Ins('v_cvt_pk_bf16_f32 %s, %s, %s' % (vr(pk + r // 2), vr(V_SW + 2 + r), vr(V_SW + 3 + r))))
    rel = [ut] + ([gt] if b % 2 == 1 else [])
    if b % 2 == 1:
        o.append(Ins('buffer_store_dwordx4 %s, %s, %s, %s offen offset:%d sc1' % (
            vr(pk - 2, 4), vr(V_L16), sr(S_H, 4), sr(S_HS + qb), (b // 2) * 1024), lds=('H', 0)))
        if OPT.get('plain_h'):
            o[-1].text = o[-1].text.replace(' sc1', '')
        rel.append(FT[(2 * (b - 1), qb)])
    elif b == 8:
        o.append(Ins('buffer_store_dwordx2 %s, %s, %s, %s offen sc1' % (
            vr(pk, 2), vr(V_L16), sr(S_H, 4), sr(S_HS + 4 + qb)), lds=('H', 0)))
        if OPT.get('plain_h'):
            o[-1].text = o[-1].text.replace(' sc1', '')
    o[0].ready = ready
    o[-1].on_emit = lambda: pool.extend(t for t in rel if not (t[0] == 'v' and t[1] >= V_Q))
    return o


def qcvt_unit(qb, s, QT, ready):
    o = []
    for h in range(2):
        tl = QT[(2 * s + h, qb)]
        tm = [vr(V_SW + e) for e in range(4)]
        for e in range(4):
            if tl[0] == 'a':
                o.append(Ins('v_accvgpr_read_b32 %s, %s' % (tm[e], ar(tl[1] + e))))
        for e in range(4):
            o.append(Ins('v_mul_f32 %s, %s, %s' % (tm[e], sr(S_C), tm[e] if tl[0] == 'a' else vr(tl[1] + e))))
        for e in range(2):
            o.append(Ins('v_cvt_pk_bf16_f32 %s, %s, %s' % (vr(V_Q + (qb * 4 + s) * 4 + 2 * h + e), tm[2 * e], tm[2 * e + 1])))
    o[0].ready = ready
    return o


class GemmSeq:
    def __init__(self, p, g):
        self.p, self.g = p, g
        self.groups = []

    def add(self, reads, nfr, mf, hook=None, bar=None, bwait=None, cap=2):
        self.groups.append(dict(reads=reads, n=nfr, mf=mf, hook=hook, bar=bar, bwait=bwait, cap=cap))

    def run(self):
        G, g, p = self.groups, self.g, self.p
        pos = 0
        for x in G:
            if x['n'] == 16 and pos % 16:
                pos += 8
            x['dst'] = A_A + pos % 32
            pos += x['n']
        for k, x in enumerate(G):
            regs = lambda y: set(range(y['dst'], y['dst'] + y['n']))
            ld = 1
            if k >= 2 and not (regs(x) & regs(G[k - 1])) and not (regs(x) & regs(G[k - 2])) and G[k - 1]['n'] == 8:
                ld = 2
            assert k == 0 or not (regs(x) & regs(G[k - 1]))
            x['at'] = k - ld
        for x in G:
            if x['at'] < 0:
                if x['bar']:
                    p.need(*x['bar'])
                    p('s_barrier')
                for i in x['reads'](x['dst']):
                    p.add(i)
        for k, x in enumerate(G):
            if x['hook']:
                x['hook']()
            todo = [y for y in G if y['at'] == k]
            rd, bar = [], []
            for y in todo:
                rd += y['reads'](y['dst'])
                if y['bar'] is not None:
                    bar += y['bar']
            hasbar = any(y['bar'] is not None for y in todo)
            mfs = x['mf'](x['dst'])
            n = len(mfs)
            st = 3 if hasbar else 0
            step = 2 if (st + 2 * ((len(rd) + 1) // 2) <= n - 1) else 1
            for t in range(n):
                sc, ld = [], []
                if hasbar and t == 1:
                    sc = [need_ins(('lgkm', 'all'), *bar)]
                if hasbar and t == 2:
                    sc = [Ins('s_barrier')]
                if t >= st and (t - st) % step == 0 and rd:
                    ld = rd[:2]
                    rd = rd[2:]
                if t == n - 1 and k + 1 < len(G):
                    y = G[k + 1]
                    bw = y['bwait']() if callable(y['bwait']) else (y['bwait'] or [])
                    w = [ar(y['dst'], y['n'])] + bw
                    sc = [wait_ins(*w)]
                g.gap(mfs[t](), sc, ld, cap=x['cap'])
                if hasbar and t == 2:
                    for y in todo:
                        if y.get('post'):
                            y['post']()
            assert not rd


V_DOWS = [22, 23, 24, 25, 26, 27, 248, 249, 250]
V_DRA = 40
V_DA = 56
V_AC2, V_AC1 = 104, 176
V_PK = 4
A_DB = 128
SPIN_BLOCKS = []


def poll_issue(soff):
    return Ins('buffer_load_dword %s, %s, %s, %s offen sc1' % (vr(V_FV), vr(V_FOFF), sr(S_FL, 4), sr(soff)))


def poll_check(p, name, soff, cmp='v_cmp_eq_u32 vcc, 0'):
    SPIN_BLOCKS.append("""L_spin_%(n)s:
 s_mov_b32 s3, 0
L_spin_%(n)s_l:
 s_sleep 4
 buffer_load_dword %(v)s, %(o)s, %(srd)s, %(so)s offen sc1
 s_add_u32 s3, s3, 1
 s_cmp_gt_u32 s3, 0x40000
 s_cbranch_scc1 L_ok_%(n)s
 s_waitcnt vmcnt(0)
 %(cmp)s, %(v)s
 s_cbranch_vccnz L_spin_%(n)s_l
 s_branch L_ok_%(n)s""" % dict(n=name, v=vr(V_FV), o=vr(V_FOFF), srd=sr(S_FL, 4), so=sr(soff), cmp=cmp))
    p('%s, %s' % (cmp, vr(V_FV)))
    p('s_cbranch_vccnz L_spin_%s' % name)
    p.label('L_ok_%s' % name)


def flag_store(soff, tag):
    return Ins('buffer_store_dword %s, %s, %s, %s offen sc1' % (
        vr(V_ONE), vr(V_FST), sr(S_FL, 4), sr(soff)), lds=('flag', (tag, 0)))


_ct = [0]


def code_touch(label, vo, vd, sp):
    _ct[0] += 1
    n = 'L_ct%d' % _ct[0]
    blk = Ins('; raw')
    blk.rawtext = (' s_getpc_b64 %(p)s\n%(n)s:\n s_add_u32 %(lo)s, %(lo)s, %(l)s-%(n)s\n s_addc_u32 %(hi)s, %(hi)s, 0' %
                   dict(p=sr(sp, 2), n=n, lo=sr(sp), hi=sr(sp + 1), l=label))
    return [blk,
            Ins('s_lshr_b32 s3, s2, 3'),
            Ins('s_lshl_b32 s3, s3, 11'),
            Ins('v_and_b32 %s, 15, %s' % (vr(vo), L)),
            Ins('v_lshlrev_b32 %s, 7, %s' % (vr(vo), vr(vo))),
            Ins('v_add_u32 %s, s3, %s' % (vr(vo), vr(vo))),
            Ins('v_min_u32 %s, L_code_end-%s-4, %s' % (vr(vo), label, vr(vo))),
            Ins('global_load_dword %s, %s, %s' % (vr(vd), vr(vo), sr(sp, 2)))]


def sadd(r, k):
    return Ins('s_add_u32 %s, %s, %d' % (sr(r), sr(r), k))


def d_dma(c):
    out = []
    for i in range(9):
        if i % 4 == 0:
            out.append(Ins('s_mov_b32 %s, %d' % (T(8), c * 36864 + (i // 4) * 4096)))
            out.append(Ins('s_add_u32 m0, %s, %d' % (sr(S_M1), PS(c)[0] + (i // 4) * 4096)))
        out.append(Ins('buffer_load_dwordx4 %s, %s, %s offen offset:%d sc1 lds' % (
            vr(V_L16), sr(S_DW2, 4), T(8), (i % 4) * 1024), lds=(PS(c), ('D', c))))
    return out


def d_bloads(c):
    srd, loc, rbs = (S_DH, c, 144 * 1024) if c < 9 else (S_DO, c - 9, 128 * 1024)
    out = []
    for rb in range(2):
        out.append(Ins('s_mov_b32 %s, %d' % (T(9 + rb), loc * 4096 + rb * rbs)))
        for ks in range(4):
            out.append(Ins('buffer_load_dwordx4 %s, %s, %s, %s offen offset:%d sc1' % (
                ar(A_DB + (c % 4) * 32 + (rb * 4 + ks) * 4, 4), vr(V_L16), sr(srd, 4), T(9 + rb), ks * 1024)))
    return out


def d_reads(c, nb):
    return [Ins('ds_read_b64_tr_b16 %s, %s offset:%d' % (
        vr(V_DA + (nb % 3) * 16 + ks * 4 + 2 * j, 2), vr(V_DRA + c % 4), (32 * ks + 16 * j) * 288 + 32 * nb),
        lds=(PS(c), ('D', c))) for ks in range(4) for j in range(2)]


def d_pstore(gemm, nb):
    acc = (V_AC2 if gemm else V_AC1) + nb * 8
    pk = V_PK + (nb % 3) * 4
    out = []
    if nb % 4 == 0:
        out.append(Ins('s_mov_b32 %s, %d' % (T(7), gemm * PG + (nb // 4) * 4096)))
    for e in range(4):
        out.append(Ins('v_cvt_pk_bf16_f32 %s, %s, %s' % (vr(pk + e), vr(acc + 2 * e), vr(acc + 2 * e + 1))))
    out.append(Ins('buffer_store_dwordx4 %s, %s, %s, %s offen offset:%d sc1' % (
        vr(pk, 4), vr(V_L16), sr(S_DP, 4), T(7), (nb % 4) * 1024), lds=('PT%d' % gemm, 0)))
    return out


def d_ploads(gemm, base):
    out = []
    for k in range(3):
        for sp in range(4):
            t = T(4 + (k * 4 + sp) % 2)
            out.append(Ins('s_mov_b32 %s, %d' % (t, gemm * PG + sp * 4 * 9216 + k * 4096)))
            out.append(Ins('buffer_load_dwordx4 %s, %s, %s, %s offen sc1' % (
                vr(base + (k * 4 + sp) * 4, 4), vr(V_L16), sr(S_DR, 4), t)))
    return out


def d_sum(base, k, dst, tmp):
    out = []
    for e in range(4):
        for sp in range(4):
            src = vr(base + (k * 4 + sp) * 4 + e)
            lo = vr(dst + 2 * e) if sp == 0 else vr(tmp)
            hi = vr(dst + 2 * e + 1) if sp == 0 else vr(tmp + 1)
            out.append(Ins('v_lshlrev_b32 %s, 16, %s' % (lo, src)))
            out.append(Ins('v_and_b32 %s, 0xffff0000, %s' % (hi, src)))
            if sp:
                out.append(Ins('v_add_f32 %s, %s, %s' % (vr(dst + 2 * e), vr(dst + 2 * e), lo)))
                out.append(Ins('v_add_f32 %s, %s, %s' % (vr(dst + 2 * e + 1), vr(dst + 2 * e + 1), hi)))
    return out


def d_scalar_setup1():
    o = []
    a = lambda s: o.append(Ins(s))
    a('s_mul_i32 %s, %s, 288' % (T(1), sr(S_W)))
    a('s_lshl_b32 %s, %s, 6' % (T(0), sr(S_SP)))
    a('s_add_u32 %s, %s, %s' % (T(0), T(0), sr(S_TILE)))
    a('s_mul_i32 %s, %s, %d' % (T(2), T(0), 18 * 1152))
    a('s_add_u32 %s, %s, %s' % (T(2), T(2), T(1)))
    o += srd_ins(S_A1, P_W2, T(2), 17 * 1152 + 288)
    a('s_mul_i32 %s, %s, %d' % (T(2), T(0), 16 * 1152))
    a('s_add_u32 %s, %s, %s' % (T(2), T(2), T(1)))
    o += srd_ins(S_A2, P_WO, T(2), 15 * 1152 + 288)
    a('s_lshl_b32 %s, %s, 2' % (T(0), sr(S_SP)))
    a('s_add_u32 %s, %s, %s' % (T(1), T(0), sr(S_W)))
    a('s_mul_i32 %s, %s, %d' % (T(1), T(1), 2176 * 288))
    a('s_add_u32 %s, %s, 0x%x' % (T(1), T(1), WS_W))
    a('s_mul_i32 %s, %s, %d' % (T(2), sr(S_TILE), 18 * 288))
    a('s_add_u32 %s, %s, %s' % (T(2), T(2), T(1)))
    o += srd_ins(S_A3, P_WS, T(2), 18 * 288)
    a('s_mul_i32 %s, %s, %d' % (T(2), sr(S_TILE), 16 * 288))
    a('s_add_u32 %s, %s, %s' % (T(2), T(2), T(1)))
    a('s_add_u32 %s, %s, %d' % (T(2), T(2), 1152 * 288))
    o += srd_ins(S_A4, P_WS, T(2), 16 * 288)
    a('s_mov_b32 %s, 0' % sr(S_RO))
    a('s_and_b32 %s, %s, 3' % (T(1), sr(S_TILE)))
    a('s_add_u32 %s, %s, %s' % (T(1), T(0), T(1)))
    a('s_mul_i32 %s, %s, %d' % (T(1), T(1), 2176 * 288))
    a('s_add_u32 %s, %s, %s' % (T(1), T(1), sr(S_M1)))
    a('s_add_u32 %s, %s, 0x%x' % (T(1), T(1), WS_W))
    o += srd_ins(S_DW2, P_WS, T(1), 16 * 36864 + 9216)
    a('s_lshr_b32 %s, %s, 2' % (T(4), sr(S_TILE)))
    a('s_lshl_b32 %s, %s, 2' % (T(5), T(4)))
    a('s_add_u32 %s, %s, %s' % (T(5), T(5), sr(S_W)))
    a('s_mul_i32 %s, %s, %d' % (T(2), T(5), 2 * 144 * 1024))
    a('s_mul_i32 %s, %s, %d' % (T(3), sr(S_SP), 36 * 1024))
    a('s_add_u32 %s, %s, %s' % (T(2), T(2), T(3)))
    a('s_add_u32 %s, %s, 0x%x' % (T(2), T(2), WS_H))
    o += srd_ins(S_DH, P_WS, T(2), 144 * 1024 + 36 * 1024)
    a('s_lshl_b32 %s, %s, 18' % (T(2), T(5)))
    a('s_lshl_b32 %s, %s, 15' % (T(3), sr(S_SP)))
    a('s_add_u32 %s, %s, %s' % (T(2), T(2), T(3)))
    a('s_add_u32 %s, %s, 0x%x' % (T(2), T(2), WS_O))
    o += srd_ins(S_DO, P_WS, T(2), 128 * 1024 + 32 * 1024)
    return o


def d_scalar_setup2():
    o = []
    a = lambda s: o.append(Ins(s))
    a('s_lshl_b32 %s, %s, 2' % (T(2), sr(S_TILE)))
    a('s_add_u32 %s, %s, %s' % (T(2), T(2), sr(S_SP)))
    a('s_lshl_b32 %s, %s, 7' % (sr(S_FT), T(2)))
    a('s_add_u32 %s, %s, 0x10000' % (sr(S_FT), sr(S_FT)))
    a('s_lshl_b32 %s, %s, 2' % (T(2), T(2)))
    a('s_add_u32 %s, %s, %s' % (T(2), T(2), sr(S_W)))
    a('s_mul_i32 %s, %s, 9216' % (T(2), T(2)))
    a('s_add_u32 %s, %s, 0x%x' % (T(2), T(2), WS_P))
    o += srd_ins(S_DP, P_WS, T(2), PG + 9216)
    a('s_lshl_b32 %s, %s, 4' % (T(2), sr(S_TILE)))
    a('s_add_u32 %s, %s, %s' % (T(2), T(2), sr(S_SP)))
    a('s_mul_i32 %s, %s, 9216' % (T(2), T(2)))
    a('s_lshl_b32 %s, %s, 10' % (T(3), sr(S_W)))
    a('s_add_u32 %s, %s, %s' % (T(2), T(2), T(3)))
    a('s_add_u32 %s, %s, 0x%x' % (T(2), T(2), WS_P))
    o += srd_ins(S_DR, P_WS, T(2), PG + 14 * 9216)
    a('s_and_b32 %s, %s, 3' % (T(1), sr(S_TILE)))
    a('s_mul_i32 %s, %s, 288' % (T(1), T(1)))
    a('s_andn2_b32 %s, %s, 3' % (T(2), sr(S_TILE)))
    a('s_add_u32 %s, %s, %s' % (T(2), T(2), sr(S_SP)))
    a('s_mul_i32 %s, %s, %d' % (T(2), T(2), 32 * 1152))
    a('s_add_u32 %s, %s, %s' % (T(2), T(2), T(1)))
    o += srd_ins(S_DX, P_X, T(2), 31 * 1152 + 288)
    o += srd_ins(S_DOUT, P_OUT, T(2), 31 * 1152 + 288)
    a('s_lshl_b32 %s, %s, 19' % (sr(S_HS), sr(S_W)))
    for qb in range(1, 4):
        a('s_add_u32 %s, %s, 0x%x' % (sr(S_HS + qb), sr(S_HS), qb * 0x20000))
    a('s_lshl_b32 %s, %s, 5' % (sr(S_HS + 4), sr(S_W)))
    a('s_add_u32 %s, %s, %d' % (sr(S_HS + 5), sr(S_HS + 4), 16 * 1152))
    a('s_lshl_b32 %s, %s, 20' % (sr(S_HS + 6), sr(S_W)))
    a('s_add_u32 %s, %s, %d' % (sr(S_HS + 7), sr(S_HS + 6), 16 * 1152))
    return o


V_RN, V_RV = 20, 21
V_RQ = (248, 36)


def repack_pat():
    return [Ins('v_mul_u32_u24 %s, 3641, %s' % (vr(V_RV), vr(V_RN))),
            Ins('v_lshrrev_b32 %s, 16, %s' % (vr(V_RV), vr(V_RV))),
            Ins('v_mul_u32_u24 %s, 864, %s' % (vr(V_RV), vr(V_RV))),
            Ins('v_lshl_add_u32 %s, %s, 4, %s' % (vr(V_RV), vr(V_RN), vr(V_RV))),
            Ins('v_add_u32 %s, 64, %s' % (vr(V_RN), vr(V_RN)))]


def o_epilogue_unit(qb, t, n, ready):
    base = 184 + (n % 4) * 12
    o = []
    for r in range(8):
        o.append(Ins('v_accvgpr_read_b32 %s, %s' % (vr(base + r), ar(A_O + ((2 * t + r // 4) * 4 + qb) * 4 + r % 4))))
    for r in range(8):
        o.append(Ins('v_mul_f32 %s, %s, %s' % (vr(base + r), vr(base + r), vr(V_L + qb))))
    for r in range(4):
        o.append(Ins('v_cvt_pk_bf16_f32 %s, %s, %s' % (vr(base + 8 + r), vr(base + 2 * r), vr(base + 2 * r + 1))))
    o.append(Ins('buffer_store_dwordx4 %s, %s, %s, %s offen offset:%d%s' % (
        vr(base + 8, 4), vr(V_L16), sr(S_O, 4), sr(S_HS + qb), t * 1024, '' if OPT.get('plain_o', 1) else ' sc1'), lds=('O', 0)))
    o[0].ready = ready
    return o


def gen_slow_softmax():
    p = Prog()
    KA, VA, OK, OV, NM, MX = 120, 124, 132, 136, 140, 138
    NM = 44
    NM, OV, MX = 136, 32, 36
    p.label('L_slow')
    p('s_waitcnt vmcnt(0) lgkmcnt(0)')
    p('s_nop 15')
    p('s_lshl_b32 %s, %s, 13' % (T(0), sr(S_W)))
    p('s_add_u32 %s, %s, 0x20000' % (T(0), T(0)))
    p('s_sub_u32 %s, %s, 0x10000' % (T(1), T(0)))
    for k in range(4):
        p('v_add_u32 %s, %s, %s' % (vr(KA + k), T(0), vr(V_KA + k)))
        p('v_subrev_u32 %s, %s, %s' % (vr(OK + k), sr(S_MK), vr(V_OK + k)))
    for k in range(8):
        p('v_add_u32 %s, %s, %s' % (vr(VA + k), T(1), vr(V_VA + k)))
    for k in range(2):
        p('v_subrev_u32 %s, %s, %s' % (vr(OV + k), sr(S_MK), vr(V_OV + k)))

    def load_half(srd, vo, nvo):
        for hf in range(2):
            p('s_add_u32 m0, %s, %d' % (T(0), hf * 4096))
            for cc in range(4):
                p('buffer_load_dwordx4 %s, %s, %s offen offset:%d lds' % (vr(vo + cc % nvo), sr(srd, 4), T(2), cc * 1024))
            p('s_add_u32 %s, %s, 4096' % (T(2), T(2)))
        p('s_waitcnt vmcnt(0)')

    def qk(cin):
        p('s_mov_b32 %s, %s' % (T(2), T(3)))
        for hf in range(2):
            load_half(S_K, OK, 4)
            for k2 in range(2):
                for sx in range(4):
                    p('ds_read_b128 %s, %s offset:%d' % (ar(A_VF + ((hf * 2 + k2) * 4 + sx) * 4, 4), vr(KA + sx), k2 * 4096))
            p('s_waitcnt lgkmcnt(0)')
        for kb in range(4):
            for qb in range(4):
                for sx in range(4):
                    d = vr(Sreg(kb, qb), 4)
                    p('%s %s, %s, %s, %s' % (MF, d, ar(A_VF + (kb * 4 + sx) * 4, 4), vr(V_Q + (qb * 4 + sx) * 4, 4),
                                             cin(qb) if sx == 0 else d))
    for qb in range(4):
        p('v_mov_b32 %s, 0xff7fffff' % vr(MX + qb))
    p('s_mov_b32 %s, 0' % T(3))
    p.loop_begin(2, 's1')
    p.label('L_slow1')
    qk(lambda qb: '0')
    for qb in range(4):
        regs = [vr(Sreg(kb, qb) + r) for kb in range(4) for r in range(4)]
        for k in range(8):
            p('v_max3_f32 %s, %s, %s, %s' % (vr(MX + qb), vr(MX + qb), regs[2 * k], regs[2 * k + 1]))
    p('s_add_u32 %s, %s, 16384' % (T(3), T(3)))
    p('s_cmp_lt_u32 %s, 0x80000' % T(3))
    p('s_cbranch_scc1 L_slow1')
    p.loop_end()
    for x in xlane4('v_max_f32', [vr(MX + k) for k in range(4)], [vr(V_E + k) for k in range(4)]):
        p.add(x)
    for qb in range(4):
        for r in range(4):
            p('v_sub_f32 %s, 0, %s' % (vr(NM + qb * 4 + r), vr(MX + qb)))
        p('v_mov_b32 %s, 0' % vr(V_L + qb))
    for i in range(128):
        p('v_accvgpr_write_b32 %s, 0' % ar(A_O + i))
    p('s_mov_b32 %s, 0' % T(3))
    lp = p.loop_begin(3, 's2')
    p.label('L_slow2')
    qk(lambda qb: vr(NM + qb * 4, 4))
    for i in range(64):
        for x in sm_instrs(1, i):
            if x is not None:
                p.add(x)
    p('s_cmp_eq_u32 %s, 0x7c000' % T(3))
    p('s_cbranch_scc1 L_slow_done')
    p.loop_mark_exit(lp)
    p('s_mov_b32 %s, %s' % (T(2), T(3)))
    for ks in range(2):
        load_half(S_V, OV, 2)
        for db in range(8):
            for j in range(2):
                p('ds_read_b64_tr_b16 %s, %s offset:%d' % (ar(A_VF + db * 8 + ks * 4 + 2 * j, 2), vr(VA + db), 16 * j * 256))
        p('s_waitcnt lgkmcnt(0)')
    for db in range(8):
        for qb in range(4):
            for ks in range(2):
                o = ar(A_O + (db * 4 + qb) * 4, 4)
                p('%s %s, %s, %s, %s' % (MF, o, ar(A_VF + db * 8 + ks * 4, 4), vr(Preg(1, qb, ks), 4), o))
    p('s_add_u32 %s, %s, 16384' % (T(3), T(3)))
    p('s_branch L_slow2')
    p.loop_end()
    p.label('L_slow_done')
    for db in range(4):
        for ks in range(2):
            for j in range(2):
                x = v_load(31, db, ks, j, False)
                x.lds = None
                p.add(x)
    p('s_waitcnt vmcnt(0) lgkmcnt(0)')
    p('s_nop 15')
    p('s_branch L_slow_ret')
    p.finalize()
    return p.text().rstrip('\n')


def gen_main(diag=False):
    p = Prog()
    del SPIN_BLOCKS[:]
    _ct[0] = 0

    def stamp(k):
        if diag:
            p('s_memtime %s' % sr(S_DG, 2))
            p('s_waitcnt lgkmcnt(0)')
            p('v_writelane_b32 v1, %s, %d' % (sr(S_DG), k))
            p('s_memrealtime %s' % sr(S_DG, 2))
            p('s_waitcnt lgkmcnt(0)')
            p('v_writelane_b32 v1, %s, %d' % (sr(S_DG), k + 16))

    def addall(lst):
        for x in lst:
            p.add(x)
    p('s_cmp_ge_u32 s2, 256')
    p('s_cbranch_scc1 L_end')
    p('s_load_dwordx4 s[44:47], s[0:1], 48')
    p('s_load_dwordx2 %s, s[0:1], 88' % sr(P_WS, 2))
    p('s_load_dwordx4 s[36:39], s[0:1], 8')
    p('s_load_dwordx2 s[40:41], s[0:1], 24')
    p('s_load_dwordx2 %s, s[0:1], 0' % sr(P_X, 2))
    p('s_load_dwordx2 %s, s[0:1], 32' % sr(P_WO, 2))
    p('s_load_dwordx4 %s, s[0:1], 64' % sr(P_W2, 4))
    stamp(0)
    p('v_and_b32 %s, 63, v0' % L)
    p('v_lshrrev_b32 %s, 6, v0' % t0)
    p('v_readfirstlane_b32 %s, %s' % (sr(S_W), t0))
    p('s_and_b32 %s, s2, 3' % T(0))
    p('s_lshl_b32 %s, %s, 3' % (T(0), T(0)))
    p('s_bfe_u32 %s, s2, 0x30003' % T(1))
    p('s_add_u32 %s, %s, %s' % (sr(S_HD), T(0), T(1)))
    p('s_and_b32 %s, s2, 4' % T(0))
    p('s_lshr_b32 %s, s2, 6' % T(1))
    p('s_add_u32 %s, %s, %s' % (sr(S_QT), T(0), T(1)))
    p('v_lshlrev_b32 %s, 4, %s' % (vr(V_L16), L))
    p('s_and_b32 %s, %s, 1' % (T(2), sr(S_HD)))
    p('s_lshl_b32 %s, %s, 1' % (T(2), T(2)))
    p('v_add_u32 %s, %s, %s' % (t3, T(2), L))
    p('v_mul_u32_u24 %s, 3641, %s' % (vr(V_T + 4), L))
    p('v_mul_u32_u24 %s, 3641, %s' % (vr(V_T + 5), t3))
    p('s_movk_i32 %s, 9216' % T(9))
    p('s_movk_i32 %s, -288' % T(10))
    vo = []
    for i in range(9):
        o = []
        o.append(Ins('v_add_u32 %s, %d, %s' % (t0, 64 * i * 3641, vr(V_T + 4))))
        o.append(Ins('v_add_u32 %s, %d, %s' % (t1, 64 * i * 3641, vr(V_T + 5))))
        o.append(Ins('v_lshrrev_b32 %s, 16, %s' % (t0, t0)))
        o.append(Ins('v_lshrrev_b32 %s, 16, %s' % (t1, t1)))
        o.append(Ins('v_lshlrev_b32 %s, 4, %s' % (t2, t3)) if i == 0 else Ins('v_add_u32 %s, %d, %s' % (t2, 4096 if i % 4 == 0 else 0, t2)))
        o.append(Ins('v_mad_u32_u24 %s, %s, %s, %s' % (t0, t0, T(9), t2)))
        o.append(Ins('v_mad_i32_i24 %s, %s, %s, %s' % (vr(V_OW + i), t1, T(10), t0)))
        if i % 4:
            del o[4]
        vo.append(o)
    for o in vo[:4]:
        addall(o)
    p('s_mul_i32 %s, %s, 9216' % (sr(S_M1), sr(S_W)))
    p('s_and_b32 %s, %s, 1' % (T(3), sr(S_W)))
    p('s_mul_i32 %s, %s, %d' % (sr(S_OFFW), T(3), 32 * 9216))
    p('s_mul_i32 %s, %s, 288' % (T(2), sr(S_HD)))
    p('s_sub_u32 %s, %d, %s' % (T(3), 576 * 9216, T(2)))
    p('s_lshl_b32 %s, %s, 2' % (T(6), sr(S_QT)))
    p('s_add_u32 %s, %s, %s' % (T(6), T(6), sr(S_W)))
    p('s_mul_i32 %s, %s, %d' % (T(7), T(6), 4 * 18 * 1024))
    p('s_cmp_lt_u32 %s, 2' % sr(S_W))
    p('s_waitcnt lgkmcnt(0)')
    p('s_cselect_b32 s48, s44, s46')
    p('s_cselect_b32 s49, s45, s47')
    make_srd(p, S_WS, 48, T(2), T(3))
    make_srd(p, S_XN, P_WS, T(7), 4 * 18 * 1024)
    d0 = p1_dma(0)
    addall(d0[:6])
    for o in vo[4:]:
        addall(o)
    addall(d0[6:] + xn_loads(0, 0))
    if OPT.get('pro', 1) == 0:
        addall(p1_dma(1) + xn_loads(1, 1) + p1_dma(2))
    R0 = 32 * OPT.get('pf0', 6)
    nr = (576 - R0) // 32
    assert nr * 18 <= 256
    p('s_lshr_b32 %s, s2, 3' % T(0))
    p('s_and_b32 %s, s2, 3' % T(1))
    p('s_mul_i32 %s, %s, %d' % (T(2), T(0), nr * 9216))
    p('s_mul_i32 %s, %s, 2304' % (T(3), T(1)))
    p('s_add_u32 %s, %s, %s' % (T(2), T(2), T(3)))
    p('s_add_u32 %s, %s, %d' % (T(2), T(2), R0 * 9216))
    p('s_mul_i32 %s, %s, %d' % (T(4), T(0), 18 * 8192))
    p('s_lshl_b32 %s, %s, 11' % (T(3), T(1)))
    p('s_add_u32 %s, %s, %s' % (T(4), T(4), T(3)))
    p('s_lshl_b32 %s, %s, 19' % (T(5), sr(S_HD)))
    make_srd(p, S_K, 36, T(5), 0x80000)
    make_srd(p, S_V, 38, T(5), 0x80000)
    p('s_lshl_b32 %s, %s, 8' % (T(5), sr(S_HD)))
    p('s_sub_u32 %s, %d, %s' % (T(3), 576 * 8192, T(5)))
    make_srd(p, S_WQ, 40, T(5), T(3))
    make_srd(p, S_A4, 40, T(4), 17 * 8192 + 2048)
    make_srd(p, S_A1, 44, T(2), (nr - 1) * 9216 + 2304)
    make_srd(p, S_A2, 46, T(2), (nr - 1) * 9216 + 2304)
    o = []
    div18(o, 'v0', t1, t2)
    addall(o)
    p('v_mul_u32_u24 %s, 9216, %s' % (t1, t1))
    p('v_lshl_add_u32 %s, %s, 7, %s' % (vr(V_SW), t2, t1))
    p('v_lshrrev_b32 %s, 4, v0' % t3)
    p('v_lshlrev_b32 %s, 13, %s' % (t3, t3))
    p('v_and_b32 %s, 15, v0' % t2)
    p('v_lshl_add_u32 %s, %s, 7, %s' % (vr(V_SW + 1), t2, t3))
    p('v_add_u32 %s, %d, %s' % (vr(V_SW + 2), 16 * 8192, vr(V_SW + 1)))
    touch = {0: [Ins('buffer_load_dword %s, %s, %s, 0 offen' % (vr(V_SW + 3), vr(V_SW), sr(S_A1, 4))),
                 Ins('buffer_load_dword %s, %s, %s, 0 offen' % (vr(V_SW + 4), vr(V_SW), sr(S_A2, 4)))],
             1: [Ins('buffer_load_dword %s, %s, %s, 0 offen' % (vr(V_SW + 5), vr(V_SW + 1), sr(S_A4, 4)))],
             2: [Ins('buffer_load_dword %s, %s, %s, 0 offen' % (vr(V_SW + 3), vr(V_SW + 2), sr(S_A4, 4)))]}
    if not OPT.get('pf1', 1):
        touch = {}
    p('s_mov_b32 %s, 0x%x' % (sr(S_C), f2u(LOG2E / 128 ** 0.5)))
    p('s_mov_b32 %s, 0x%x' % (sr(S_NL), f2u(-LOG2E)))
    p('s_lshl_b32 %s, %s, 12' % (sr(S_MK), sr(S_W)))
    p('s_add_u32 %s, %s, 0x10000' % (sr(S_MV), sr(S_MK)))
    p('s_mov_b32 %s, 0' % sr(S_OFFK))
    p('s_mov_b32 %s, 0' % sr(S_OFFV))
    p('v_lshrrev_b32 %s, 2, %s' % (t0, L))
    p('v_mul_u32_u24 %s, 288, %s' % (t1, t0))
    p('v_and_b32 %s, 3, %s' % (t2, L))
    p('v_lshl_add_u32 %s, %s, 3, %s' % (vr(V_A1), t2, t1))
    for k in range(1, 4):
        p('v_add_u32 %s, %d, %s' % (vr(V_A1 + k), k * 36864, vr(V_A1)))
    p('v_and_b32 %s, 15, %s' % (t0, L))
    p('v_lshrrev_b32 %s, 4, %s' % (t1, L))
    p('v_lshlrev_b32 %s, 1, %s' % (t3, t1))
    p('v_xor_b32 %s, %s, %s' % (t3, t0, t3))
    p('v_lshlrev_b32 %s, 4, %s' % (t3, t3))
    p('v_lshl_add_u32 %s, %s, 13, %s' % (vr(V_OQ), t1, t3))
    p('v_xor_b32 %s, 128, %s' % (vr(V_OQ + 1), vr(V_OQ)))
    p('s_lshl_b32 %s, %s, 17' % (sr(S_OFFQ), sr(S_W)))
    addall(kv_dma_setup())
    p('s_mul_i32 %s, %s, %d' % (T(3), T(6), 4 * 144 * 1024))
    p('s_add_u32 %s, %s, 0x%x' % (T(3), T(3), WS_H))
    make_srd(p, S_H, P_WS, T(3), 4 * 144 * 1024)
    p('s_lshl_b32 %s, %s, 21' % (T(3), sr(S_QT)))
    p('s_lshl_b32 %s, %s, 12' % (T(4), sr(S_HD)))
    p('s_add_u32 %s, %s, %s' % (T(3), T(3), T(4)))
    p('s_add_u32 %s, %s, 0x%x' % (T(3), T(3), WS_O))
    p('s_sub_u32 %s, 0x200000, %s' % (T(5), T(4)))
    make_srd(p, S_O, P_WS, T(3), T(5))
    p('s_mov_b32 %s, 0x%x' % (T(3), WS_F))
    make_srd(p, S_FL, P_WS, T(3), 4 * 32768)
    p('s_lshr_b32 %s, %s, 3' % (sr(S_SP), sr(S_HD)))
    p('s_and_b32 %s, %s, 7' % (T(0), sr(S_HD)))
    p('s_lshl_b32 %s, %s, 3' % (sr(S_TILE), sr(S_QT)))
    p('s_add_u32 %s, %s, %s' % (sr(S_TILE), sr(S_TILE), T(0)))
    p('s_lshl_b32 %s, %s, 6' % (T(0), sr(S_SP)))
    p('s_add_u32 %s, %s, %s' % (T(0), T(0), sr(S_TILE)))
    p('s_lshl_b32 %s, %s, 7' % (sr(S_FWG), T(0)))
    p('s_lshl_b32 %s, %s, 13' % (sr(S_FGR), sr(S_SP)))
    p('s_mul_i32 %s, %s, 9' % (T(2), sr(S_HD)))
    p('s_add_u32 %s, %s, 1' % (T(2), T(2)))
    p('s_lshr_b32 %s, %s, 1' % (T(2), T(2)))
    p('s_lshl_b32 %s, %s, 10' % (sr(S_HS), T(2)))
    p('s_bitcmp1_b32 %s, 0' % sr(S_HD))
    p('s_mov_b32 %s, 4096' % T(3))
    p('s_cselect_b32 %s, %d, %s' % (T(3), -1024 + 8, T(3)))
    p('s_add_u32 %s, %s, %s' % (sr(S_HS + 4), sr(S_HS), T(3)))
    for qb in range(1, 4):
        p('s_add_u32 %s, %s, %d' % (sr(S_HS + qb), sr(S_HS), qb * 144 * 1024))
        p('s_add_u32 %s, %s, %d' % (sr(S_HS + 4 + qb), sr(S_HS + 4), qb * 144 * 1024))
    if OPT.get('pro', 1) == 1:
        addall(p1_dma(1))
    stamp(1)

    if OPT.get('donly'):
        p('s_waitcnt vmcnt(0)')
        addall(d_scalar_setup1() + d_scalar_setup2() + k_read_setup() + v_read_setup())
        p('v_lshlrev_b32 %s, 20, v0' % vr(V_FST))
        p('v_mov_b32 %s, 1' % vr(V_ONE))
        p('v_lshlrev_b32 %s, 7, %s' % (vr(V_FOFF), L))
        p('v_mov_b32 %s, 0' % vr(V_RV))
        p('s_mov_b32 %s, 0' % sr(S_OFFW))
        for k in range(2, 7):
            stamp(k)
        p.raw(' s_branch L_donly')
    g = Gaps(p)
    seq = GemmSeq(p, g)
    pool = deque(('a', 72 + 4 * k) for k in range(14))

    def alloc():
        while not pool:
            x = (g.st or g.lo).popleft()
            g.over += max(1, cost(x))
            g.emit(x)
        for t in pool:
            if t[0] == 'v':
                pool.remove(t)
                return t
        return pool.popleft()

    XB = {}
    ring = lambda buf: [('a', A_B + buf * 32 + 4 * k) for k in range(8)]

    def xn_l(c, tiles):
        out = []
        for qb in range(4):
            out.append(Ins('s_mov_b32 %s, %d' % (T(qb), qb * 18 * 1024 + c * 2048)))
            for ks in range(2):
                out.append(Ins('buffer_load_dwordx4 %s, %s, %s, %s offen offset:%d' % (
                    rg(tiles[qb * 2 + ks]), vr(V_L16), sr(S_XN, 4), T(qb), ks * 1024)))
        return out

    def aq_setup():
        o = []
        a = lambda s: o.append(Ins(s))
        a('v_lshrrev_b32 %s, 2, %s' % (t0, L))
        a('v_and_b32 %s, 7, %s' % (t1, t0))
        a('v_lshlrev_b32 %s, 1, %s' % (t1, t1))
        a('v_and_b32 %s, 3, %s' % (t2, L))
        a('v_xor_b32 %s, %s, %s' % (t1, t1, t2))
        a('v_lshlrev_b32 %s, 4, %s' % (t1, t1))
        a('v_lshl_add_u32 %s, %s, 8, %s' % (vr(V_AQ), t0, t1))
        for s in range(1, 4):
            a('v_xor_b32 %s, %d, %s' % (vr(V_AQ + s), 64 * s, vr(V_AQ)))
        for rgn in range(1, 3):
            for s in range(4):
                a('v_add_u32 %s, 0x%x, %s' % (vr(V_AQ + rgn * 4 + s), rgn * 65536, vr(V_AQ + s)))
        return o

    def mk_mf(acc, chunks, xb, first):
        def mf(dst):
            out = []
            for qb in range(4):
                for ci, c in enumerate(chunks):
                    for ks in range(2):
                        def th(qb=qb, ci=ci, c=c, ks=ks):
                            a = rg(acc(qb))
                            cin = '0' if (first and ci == 0 and ks == 0) else a
                            return '%s %s, %s, %s, %s' % (MF, a, ar(dst + ci * 8 + ks * 4, 4), rg(xb(c)[qb * 2 + ks]), cin)
                        out.append(th)
            return out
        return mf

    for c in range(9):
        XB[c] = ring(c % 3)
    for c in range(7):
        for blk in range(18):
            hook = None
            if blk == 0:
                def hook(c=c):
                    if OPT.get('cst'):
                        p('s_memrealtime %s' % sr(S_DG, 2))
                        p('s_waitcnt lgkmcnt(0)')
                        p('v_writelane_b32 v1, %s, %d' % (sr(S_DG), 32 + c))
                    g.drop = {0: (), 1: ('dma',), 2: ('vld',), 3: ('dma', 'vld'), 4: ('dma', 'vld', 'dsr')}[OPT.get('drop', 0)]
                    g.vm_gap = OPT.get('vg1', 5) if c > 1 else OPT.get('vg0', 4)
                    if c == 0 and OPT.get('pro', 1):
                        g.hi.extend(xn_l(1, XB[1]) + p1_dma(2))
                    g.hi.extend(touch.get(c, []))
                    xl = xn_l(c + 2, XB[c + 2])
                    if c == 0:
                        g.hi.extend(xl + p1_dma(3))
                    else:
                        g.hi.extendleft(reversed(xl)) if OPT.get('xfirst', 0) else g.hi.extend(xl)
                    if c == 3:
                        g.hi.extend(wq_dma(8))
                    if c == 4 and OPT.get('ct1', 1):
                        g.hi.extend(code_touch('L_c1', V_SW, V_SW + 4, S_A3))
                    if c == 6:
                        assert not any(y.kind == 'dma' and y.lds[1][0] == 'W' for y in g.hi)
                        g.lo.extend(aq_setup())
            seq.add(lambda dst, c=c, blk=blk: p1_reads(c, blk, dst), 8,
                    mk_mf(lambda qb, blk=blk: FT[(blk, qb)], [c], lambda c: XB[c], c == 0), hook=hook,
                    bar=[(PS(c), ('W', c))] if blk == 0 else None,
                    bwait=[rg(t) for t in XB[c]] if blk == 0 else None)
            if blk == 0 and 1 <= c <= 5:
                seq.groups[-1]['post'] = lambda c=c: g.hi.extend(p1_dma(c + 3))
            if blk == 0 and c == 6:
                seq.groups[-1]['post'] = lambda: g.hi.extend(wq_dma(7))
    CT = OPT.get('cap_t', 2)
    for blk in range(18):
        hook = None
        if blk >= 2 and blk % 2 == 0:
            def hook(b=blk // 2 - 1):
                for qb in range(4):
                    g.lo.extend(swiglu_unit(b, qb, g.n + 3, pool))
        if blk == 0:
            def hook():
                g.drop = ()
                p.label('L_c1')
                stamp(2)
        seq.add(lambda dst, blk=blk: p1_reads(7, blk, dst) + p1_reads(8, blk, dst + 8), 16,
                mk_mf(lambda qb, blk=blk: FT[(blk, qb)], [7, 8], lambda c: XB[c], False), hook=hook,
                bar=[(PS(7), ('W', 7)), (PS(8), ('W', 8))] if blk == 0 else None,
                bwait=[rg(t) for t in XB[7] + XB[8]] if blk == 0 else None, cap=CT)
        if blk == 0:
            seq.groups[-1]['post'] = lambda: g.hi.extend(wq_dma(6) + wq_dma(5))
    QT = {}

    def qacc(bq, qb):
        if (bq, qb) not in QT:
            QT[(bq, qb)] = alloc()
        return QT[(bq, qb)]
    XQ = {8: XB[8], 7: XB[7], 6: XB[6], 4: ring(1), 3: ring(2), 2: ring(0), 0: ring(1)}
    C2 = OPT.get('cap_p2', 2)
    qn = lambda c: (LS(WQ_SLOT[c]), ('Q', c))
    for bq in range(8):
        hook = None
        if bq == 0:
            def hook():
                stamp(3)
                g.vm_gap = OPT.get('vg2', 3)
                for qb in range(4):
                    g.lo.extend(swiglu_unit(8, qb, g.n + 3, pool))
        if bq == 3:
            def hook():
                XQ[5] = XQ[1] = [alloc() for _ in range(8)]
                g.hi.extend(xn_l(5, XQ[5]))
        seq.add(lambda dst, bq=bq: p2_reads(8, bq, dst) + p2_reads(7, bq, dst + 8), 16,
                mk_mf(lambda qb, bq=bq: qacc(bq, qb), [8, 7], lambda c: XQ[c], True), hook=hook,
                bar=[qn(8), qn(7)] if bq == 0 else None, cap=C2)
        if bq == 0:
            seq.groups[-1]['post'] = lambda: g.hi.extend(
                wq_dma(4) + wq_dma(3) + wq_dma(2))
    for c in (6, 5, 4, 3, 2):
        for bq in range(8):
            hook = None
            if bq == 0:
                def hook(c=c):
                    for cc in {6: (4, 3), 5: (2,), 4: (1,), 3: (0,), 2: ()}[c]:
                        g.hi.extend(xn_l(cc, XQ[cc]))
            seq.add(lambda dst, c=c, bq=bq: p2_reads(c, bq, dst), 8,
                    mk_mf(lambda qb, bq=bq: qacc(bq, qb), [c], lambda c: XQ[c], False), hook=hook,
                    bar=[qn(c)] if bq == 0 else None, cap=C2,
                    bwait=(lambda c=c: [rg(t) for t in XQ[c]]) if bq == 0 else None)
            if bq == 0:
                seq.groups[-1]['lazyb'] = c
                post = {6: lambda: g.hi.extend(wq_dma(1) + wq_dma(0)),
                        3: lambda: g.hi.extend(dma_unit('K', 0, False)),
                        2: lambda: g.hi.extend(dma_unit('K', 1, False) + dma_unit('V', 0, False))}.get(c)
                seq.groups[-1]['post'] = post
    for bq in range(8):
        hook = None
        if bq == 0:
            def hook():
                print('swiglu backlog at last P2 group:', len(g.hi), len(g.lo), 'over', g.over, file=sys.stderr)
                g.hi.extend(dma_unit('K', 2, False) + dma_unit('V', 1, False))
        if bq >= 2 and bq % 2 == 0:
            def hook(s=bq // 2 - 1):
                for qb in range(4):
                    g.lo.extend(qcvt_unit(qb, s, QT, g.n + 3))
        seq.add(lambda dst, bq=bq: p2_reads(1, bq, dst) + p2_reads(0, bq, dst + 8), 16,
                mk_mf(lambda qb, bq=bq: qacc(bq, qb), [1, 0], lambda c: XQ[c], False), hook=hook,
                bar=[qn(1), qn(0)] if bq == 0 else None, cap=C2,
                bwait=(lambda: [rg(t) for t in XQ[1] + XQ[0]]) if bq == 0 else None)
    seq.run()
    stamp(4)
    print('G backlog at end:', len(g.hi), len(g.lo), 'over', g.over, 'waste', g.waste, file=sys.stderr)
    for qb in range(4):
        g.lo.extend(qcvt_unit(qb, 3, QT, 0))
    addall(k_read_setup())
    p.need(('lgkm', 'all'), (LS(0), ('K', 0)))
    p('s_barrier')
    for kb in range(4):
        for s in range(4):
            p.add(k_load(0, kb, s, False))
    g.flush()
    g.vm_gap = 4
    g.hi.extend(dma_unit('K', 3, False))
    g.hi.extend(d_scalar_setup1())
    g.lo.extend(Ins('v_accvgpr_write_b32 %s, 0' % ar(A_O + i)) for i in range(128))
    for kb in range(4):
        for qb in range(4):
            for s in range(4):
                d = vr(Sreg(kb, qb), 4)
                g.gap('%s %s, %s, %s, %s' % (MF, d, ar(A_KF + kb * 16 + s * 4, 4), vr(V_Q + (qb * 4 + s) * 4, 4), '0' if s == 0 else d))
    g.flush()
    addall(v_read_setup())
    for qb in range(4):
        p('v_mov_b32 %s, 0' % vr(V_L + qb))
    p('v_lshlrev_b32 %s, 20, v0' % vr(V_FST))
    p('s_getreg_b32 %s, hwreg(HW_REG_XCC_ID)' % T(0))
    p('s_and_b32 %s, %s, 15' % (T(0), T(0)))
    p('s_add_u32 %s, %s, 1' % (T(0), T(0)))
    p('v_mov_b32 %s, %s' % (vr(V_ONE), T(0)))
    p('v_lshlrev_b32 %s, 7, %s' % (vr(V_FOFF), L))
    addall(code_touch('L_att_tail', 32, 33, S_DWO)[:-1])
    p('v_mov_b32 %s, %s' % (vr(V_RN), L))
    addall(repack_pat())
    ms = [vr(V_E + qb) for qb in range(4)]
    for step in range(8):
        for qb in range(4):
            regs = [vr(Sreg(kb, qb) + r) for kb in range(4) for r in range(4)]
            if step == 0:
                p('v_max3_f32 %s, %s, %s, %s' % (ms[qb], regs[0], regs[1], regs[2]))
            elif step < 7:
                p('v_max3_f32 %s, %s, %s, %s' % (ms[qb], ms[qb], regs[2 * step + 1], regs[2 * step + 2]))
            else:
                p('v_max_f32 %s, %s, %s' % (ms[qb], ms[qb], regs[15]))
    addall(xlane4('v_max_f32', ms, [vr(V_T + k) for k in range(4)]))
    for qb in range(4):
        for r in range(4):
            p('v_sub_f32 %s, 0, %s' % (vr(V_NM + qb * 4 + r), ms[qb]))
    for kb in range(4):
        for qb in range(4):
            for r in range(4):
                x = vr(Sreg(kb, qb) + r)
                p('v_add_f32 %s, %s, %s' % (x, x, vr(V_NM + qb * 4)))
    stamp(5)
    def sm_plain(uu, i0, i1):
        prev = []
        for i in range(i0, i1):
            ex, ad, cv = sm_instrs(uu, i)
            p.add(ex)
            addall(prev)
            prev = [ad] + ([cv] if cv else [])
        p('s_nop 0')
        addall(prev)
    sm_plain(0, 0, 28)
    att_slots(p, 0, 0, 64, False, pv=False, sm_cur=False)
    sm_plain(0, 28, 60)
    p('s_mov_b32 %s, 0' % sr(S_CNT))
    p.wait_regs(ar(A_KF, 16))
    lp = p.loop_begin(7, 'att')
    p('.p2align 6')
    p.label('L_att')
    rtag = ('R', 0)
    g.vm_gap = 8

    def rp_loads():
        g.hi.append(Ins('buffer_load_dwordx4 %s, %s, %s, 0 offen nt' % (vr(V_RQ[0], 4), vr(V_RV), sr(S_A1, 4))))
        g.hi.append(Ins('buffer_load_dwordx4 %s, %s, %s, 0 offen nt' % (vr(V_RQ[1], 4), vr(V_RV), sr(S_A2, 4))))

    def rp_stores():
        g.hi.append(Ins('buffer_store_dwordx4 %s, %s, %s, %s offen sc1' % (vr(V_RQ[0], 4), vr(V_L16), sr(S_A3, 4), sr(S_RO)), lds=rtag))
        g.hi.append(Ins('buffer_store_dwordx4 %s, %s, %s, %s offen sc1' % (vr(V_RQ[1], 4), vr(V_L16), sr(S_A4, 4), sr(S_RO)), lds=rtag))
        g.hi.append(Ins('s_add_u32 %s, %s, 1024' % (sr(S_RO), sr(S_RO))))
    att_slots(p, 0, 64, 96, True)
    rp_loads()
    att_slots(p, 0, 96, 128, True, g=g, cap=4)
    assert not g.hi
    att_slots(p, 1, 0, 64, True)
    p('s_add_u32 %s, %s, 1' % (sr(S_CNT), sr(S_CNT)))
    p('s_cmp_eq_u32 %s, 7' % sr(S_CNT))
    p('s_cbranch_scc1 L_att_tail')
    p.loop_mark_exit(lp)
    g.lo.extend(repack_pat())
    att_slots(p, 1, 64, 128, True, g=g, cap=3)
    assert not g.lo
    att_slots(p, 2, 0, 30, True, extra_need=[rtag, ('H', 0)])
    p('s_cmp_eq_u32 %s, 4' % sr(S_CNT))
    p('s_cselect_b32 %s, %s, 0x100000' % (T(0), sr(S_FWG)))
    fl = flag_store(S_T0, 'H')
    g.hi.append(fl)
    g.vm_gap = 3
    rp_stores()
    att_slots(p, 2, 30, 66, True, g=g, cap=4)
    assert not g.hi
    att_slots(p, 2, 66, 96, True)
    g.vm_gap = 8
    rp_loads()
    att_slots(p, 2, 96, 128, True, g=g, cap=4)
    assert not g.hi
    g.lo.extend(repack_pat())
    att_slots(p, 3, 0, 96, True, g=g, cap=3)
    assert not g.lo
    if OPT.get('ct2', 1):
        g.hi.append(Ins('global_load_dword v33, v32, %s' % sr(S_DWO, 2)))
    att_slots(p, 3, 96, 128, True, g=g, cap=4)
    assert not g.hi
    att_slots(p, 4, 0, 30, True)
    g.vm_gap = 3
    rp_stores()
    att_slots(p, 4, 30, 64, True, g=g, cap=4)
    assert not g.hi
    p('s_branch L_att')
    p.loop_end()
    p.label('L_att_tail')
    stamp(6)
    g.vm_gap = 4
    att_slots(p, 25, 64, 96, False)
    g.hi.append(poll_issue(S_FGR))
    tt = []
    a = lambda x: tt.append(Ins(x))
    a('s_lshr_b32 %s, s2, 3' % T(0))
    a('s_lshl_b32 %s, %s, 2' % (T(1), sr(S_SP)))
    a('s_add_u32 %s, %s, %s' % (T(1), T(1), sr(S_W)))
    a('s_mul_i32 %s, %s, %d' % (T(1), T(1), 2176 * 288))
    a('s_mul_i32 %s, %s, 1152' % (T(2), T(0)))
    a('s_add_u32 %s, %s, %s' % (T(1), T(1), T(2)))
    a('s_add_u32 %s, %s, 0x%x' % (T(1), T(1), WS_W))
    tt += srd_ins(S_A1, P_WS, T(1), 16 * 36864 + 1152)
    a('s_and_b32 %s, s2, 4' % T(1))
    a('s_lshl_b32 %s, %s, 3' % (T(1), T(1)))
    a('s_add_u32 %s, %s, %s' % (T(1), T(1), T(0)))
    a('s_lshl_b32 %s, %s, 1' % (T(1), T(1)))
    a('s_and_b32 %s, %s, 1' % (T(2), sr(S_W)))
    a('s_add_u32 %s, %s, %s' % (T(1), T(1), T(2)))
    a('s_mul_i32 %s, %s, %d' % (T(1), T(1), 144 * 1024))
    a('s_mul_i32 %s, %s, %d' % (T(2), sr(S_SP), 36 * 1024))
    a('s_add_u32 %s, %s, %s' % (T(1), T(1), T(2)))
    a('s_add_u32 %s, %s, 0x%x' % (T(1), T(1), WS_H))
    tt += srd_ins(S_A2, P_WS, T(1), 36 * 1024)
    a('s_lshr_b32 %s, %s, 1' % (T(1), sr(S_W)))
    a('s_lshl_b32 %s, %s, 13' % (sr(S_RO), T(1)))
    g.hi.extend(tt)
    g.lo.extend([Ins('v_mul_u32_u24 %s, 7282, %s' % (vr(V_RV), L)),
                 Ins('v_lshrrev_b32 %s, 16, %s' % (vr(V_RV), vr(V_RV))),
                 Ins('v_mul_u32_u24 %s, %d, %s' % (vr(V_RV), 36864 - 1152, vr(V_RV))),
                 Ins('v_lshl_add_u32 %s, %s, 7, %s' % (vr(V_RV), L, vr(V_RV)))])
    att_slots(p, 25, 96, 128, False, g=g, cap=4)
    att_slots(p, 26, 0, 64, False, g=g, cap=3, dmav=False)
    g.flush()
    addall(dma_unit('V', 28, False))
    poll_check(p, 'h', S_FGR, 'v_cmp_eq_u32 vcc, 0')
    p('v_cmp_ne_u32 vcc, %s, %s' % (vr(V_ONE), vr(V_FV)))
    p('s_and_b32 %s, %s, 0x38' % (T(0), sr(S_TILE)))
    p('s_lshr_b64 vcc, vcc, %s' % T(0))
    p('s_and_b32 %s, vcc_lo, 0xff' % sr(S_OFFW))

    def touch_w(k):
        return [Ins('s_mov_b32 %s, %d' % (T(6), k * 7 * 36864)),
                Ins('buffer_load_dword v248, %s, %s, %s offen' % (vr(V_RV), sr(S_A1, 4), T(6)))]

    def touch_h(k):
        return [Ins('s_add_u32 %s, %s, %d' % (T(6), sr(S_RO), k * 16384)),
                Ins('buffer_load_dword v249, %s, %s, %s offen' % (vr(V_FOFF), sr(S_A2, 4), T(6)))]
    TD = OPT.get('touch_d', 1)
    att_slots(p, 26, 64, 96, False)
    if TD:
        g.hi.extend(touch_w(0))
    att_slots(p, 26, 96, 128, False, g=g, cap=4)
    att_slots(p, 27, 0, 32, False)
    if TD:
        g.hi.extend(touch_h(0))
    att_slots(p, 27, 32, 64, False, g=g, cap=4)
    att_slots(p, 27, 64, 96, False)
    if TD:
        g.hi.extend(touch_h(1))
    att_slots(p, 27, 96, 128, False, g=g, cap=4)
    att_slots(p, 28, 0, 32, False, dmak=False)
    if TD > 1:
        g.hi.extend(touch_h(2))
    att_slots(p, 28, 32, 64, False, g=g, cap=4, dmak=False)
    if TD > 1:
        g.hi.extend(touch_w(1))
    att_slots(p, 28, 64, 128, False, g=g, cap=4, dmak=False)
    att_slots(p, 29, 0, 64, False, dmak=False)
    assert not g.hi
    if TD:
        for k in range(4):
            p('s_mov_b32 %s, %s' % (sr(S_DWO + k), sr(S_A1 + k)))
    g.hi.extend(d_scalar_setup2())
    att_slots(p, 29, 64, 128, False, dmak=False, g=g, cap=4)
    g.flush()
    p.label('L_donly')
    att_slots(p, 30, 0, 2, False, dmak=False, dmav=False, g=g)
    g.hi.extend(d_dma(0))
    g.hi.append(sadd(S_FWG, 32768))
    g.hi.append(Ins('s_andn2_b32 %s, %s, 0x3ff' % (sr(S_FGR), sr(S_FWG))))
    g.lo.append(Ins('v_and_b32 %s, 0x380, %s' % (vr(V_FOFF), vr(V_FOFF))))
    att_slots(p, 30, 2, 128, False, dmak=False, dmav=False, g=g, cap=4, barrier=False)
    g.flush()
    g.vm_gap = 2
    att_slots(p, 31, 0, 2, False, qk=False, sm_next=False, dmak=False, dmav=False, g=g, vearly=True)
    g.hi.extend(d_bloads(0) + d_dma(1) + d_bloads(1))
    o = []
    o.append(Ins('v_lshrrev_b32 %s, 2, %s' % (t0, L)))
    o.append(Ins('v_mul_u32_u24 %s, 288, %s' % (t1, t0)))
    o.append(Ins('v_and_b32 %s, 3, %s' % (t2, L)))
    o.append(Ins('v_lshl_add_u32 %s, %s, 3, %s' % (vr(V_DRA), t2, t1)))
    for k in range(1, 4):
        o.append(Ins('v_add_u32 %s, %d, %s' % (vr(V_DRA + k), k * 36864, vr(V_DRA))))
    g.lo.extend(o)
    g.lo.append(Ins('v_mov_b32 %s, 0x%x' % (vr(V_RN), f2u(2.0 ** OPT.get('thr', 30)))))
    att_slots(p, 31, 2, 64, False, qk=False, sm_next=False, dmak=False, dmav=False, g=g, cap=4, barrier=False, vearly=True)
    g.flush()
    sm_plain(31, 60, 64)
    p('v_max3_f32 %s, %s, %s, %s' % (t0, vr(V_L), vr(V_L + 1), vr(V_L + 2)))
    p('v_add_f32 %s, %s, %s' % (t0, t0, vr(V_L + 3)))
    p('v_cmp_nlt_f32 vcc, %s, %s' % (t0, vr(V_RN)))
    p('s_cbranch_vccnz L_slow')
    p.label('L_slow_ret')
    SPIN_BLOCKS.append(gen_slow_softmax())
    ls = [vr(V_L + qb) for qb in range(4)]
    g.lo.extend(xlane4('v_add_f32', ls, [vr(V_T + k) for k in range(4)]))
    g.lo.extend(Ins('v_rcp_f32 %s, %s' % (x, x)) for x in ls)
    n0 = g.n
    n = 0
    for t in range(4):
        for qb in range(4):
            g.lo.extend(o_epilogue_unit(qb, t, n, n0 + 16 * (t + 1) + 3))
            n += 1
    p.wait_regs(ar(A_VF, 8))
    att_slots(p, 32, 0, 2, False, qk=False, sm_cur=False, sm_next=False, vnext=False, dmak=False, dmav=False, g=g, barrier=False)
    p.need(('lgkm', 'all'), (PS(0), ('D', 0)))
    p('s_barrier')
    g.hi.extend(d_dma(2))
    att_slots(p, 32, 2, 48, False, qk=False, sm_cur=False, sm_next=False, vnext=False, dmak=False, dmav=False, g=g, barrier=False)
    g.hi.extend(d_reads(0, 0) + d_reads(0, 1))
    att_slots(p, 32, 48, 64, False, qk=False, sm_cur=False, sm_next=False, vnext=False, dmak=False, dmav=False, g=g, barrier=False)
    g.flush(g.hi)
    stamp(7)
    p.wait_regs(ar(A_DB, 32), vr(V_DA, 16))
    p('s_barrier')
    stamp(8)
    G2, GG = V_AC2, V_AC2 + 48
    xreg = lambda k, rb: 44 + (k * 2 + rb) * 2
    VO = V_T + 5

    def fin_setup():
        o = []
        o.append(Ins('v_and_b32 %s, 0x180, %s' % (vr(V_FOFF), vr(V_FOFF))))
        o.append(Ins('s_andn2_b32 %s, %s, 0x1ff' % (sr(S_FGR), sr(S_FT))))
        o.append(Ins('v_and_b32 %s, 15, %s' % (t0, L)))
        o.append(Ins('v_mul_u32_u24 %s, 1152, %s' % (t0, t0)))
        o.append(Ins('v_lshrrev_b32 %s, 4, %s' % (t1, L)))
        o.append(Ins('v_lshl_add_u32 %s, %s, 3, %s' % (vr(VO), t1, t0)))
        for k in range(3):
            for rb in range(2):
                o.append(Ins('buffer_load_dwordx2 %s, %s, %s, %s offen offset:%d' % (
                    vr(xreg(k, rb), 2), vr(VO), sr(S_DX, 4), sr(S_HS + 4 + rb + (2 if k == 2 else 0)), 128 * k)))
        return o

    def silu_g():
        o = []
        for k in range(3):
            d = GG + 8 * k
            o += d_sum(G2, k, d, V_T)
            for e in range(0, 8, 2):
                ta, tb = vr(V_T), vr(V_T + 1)
                o.append(Ins('v_mul_f32 %s, %s, %s' % (ta, sr(S_NL), vr(d + e))))
                o.append(Ins('v_mul_f32 %s, %s, %s' % (tb, sr(S_NL), vr(d + e + 1))))
                o.append(Ins('v_exp_f32 %s, %s' % (ta, ta)))
                o.append(Ins('v_exp_f32 %s, %s' % (tb, tb)))
                o.append(Ins('v_add_f32 %s, 1.0, %s' % (ta, ta)))
                o.append(Ins('v_add_f32 %s, 1.0, %s' % (tb, tb)))
                o.append(Ins('v_rcp_f32 %s, %s' % (ta, ta)))
                o.append(Ins('v_rcp_f32 %s, %s' % (tb, tb)))
                o.append(Ins('v_mul_f32 %s, %s, %s' % (vr(d + e), vr(d + e), ta)))
                o.append(Ins('v_mul_f32 %s, %s, %s' % (vr(d + e + 1), vr(d + e + 1), tb)))
        return o

    g.vm_gap = 1
    SO = OPT.get('o_done', 2)
    left = []
    for c in range(17):
        acc0 = V_AC2 if c < 9 else V_AC1
        first = c in (0, 9)
        if c == 9:
            stamp(14)
        if OPT.get('dst'):
            p('s_memrealtime %s' % sr(S_DG, 2))
            p('s_waitcnt lgkmcnt(0)')
            p('v_writelane_b32 v1, %s, %d' % (sr(S_DG), 32 + c))
        extra_need = []
        cap = 2
        if c <= SO:
            cap = OPT.get('cap_o', 4)
        if c == SO + 1:
            assert not g.lo and not g.st, len(g.lo)
            extra_need = [('O', 0)]
            g.st_max = 0
        if c == SO + 2:
            if OPT.get('plain_o', 1):
                SPIN_BLOCKS.append('L_wb:\n buffer_wbl2 sc1\n s_waitcnt vmcnt(0)\n s_branch L_wb_done')
                p('s_cmp_lg_u32 %s, 0' % sr(S_OFFW))
                p('s_cbranch_scc1 L_wb')
                p.label('L_wb_done')
            g.hi.append(flag_store(S_FWG, 'O'))
        if OPT.get('touch_d', 1) and c in (1, 4):
            k = {1: 1, 4: 2}[c]
            if not (k == 1 and OPT.get('touch_d', 1) > 1):
                g.hi.extend([Ins('s_mov_b32 %s, %d' % (T(6), k * 7 * 36864)),
                             Ins('buffer_load_dword v248, %s, %s, %s offen' % (vr(V_RV), sr(S_DWO, 4), T(6)))])
        if c == 6:
            g.hi.append(poll_issue(S_FGR))
        if c == 7:
            poll_check(p, 'o', S_FGR)
            g.hi.extend(d_bloads(9))
            cap = 3
        if c == 0:
            g.hi.extend(d_bloads(2))
        if c + 3 < 17:
            g.hi.extend((d_bloads(c + 3) if c != 6 else []) + d_dma(c + 3))
        if c in (9, 10):
            for nb in (range(5) if c == 9 else range(5, 9)):
                g.lo.extend(d_pstore(1, nb))
            cap = 3
        if c == 11:
            assert not g.lo
            extra_need = [('PT1', 0)]
            fs = fin_setup()
            g.lo.extend(fs[:-6])
            cap = 3
        if c == 12:
            g.hi.appendleft(flag_store(S_FT, 'PT1'))
        if c == 14:
            g.hi.append(poll_issue(S_FGR))
            g.hi.extend(fs[-6:])
        if c == 15:
            poll_check(p, 'p2', S_FGR)
            g.hi.extend([sadd(S_FGR, 32768), sadd(S_FT, 32768)])
            g.hi.extend(d_ploads(1, G2))
        for nb in range(9):
            n2 = nb + 2
            Lr = d_reads(c, n2) if n2 < 9 else (d_reads(c + 1, n2 - 9) if c < 16 else [])
            if c == 16 and nb >= 2:
                g.hi.extend(d_pstore(0, nb - 2))
            for t in range(8):
                rb, ks = t // 4, t % 4
                a = vr(acc0 + (nb * 2 + rb) * 4, 4)
                m = '%s %s, %s, %s, %s' % (MF, a, vr(V_DA + (nb % 3) * 16 + ks * 4, 4),
                                           ar(A_DB + (c % 4) * 32 + (rb * 4 + ks) * 4, 4),
                                           '0' if (first and ks == 0) else a)
                sc, ld = [], []
                if nb == 7:
                    if Lr and t >= 4:
                        ld = [Lr[2 * (t - 4)], Lr[2 * (t - 4) + 1]]
                    if t == 2 and c < 16:
                        sc = [need_ins(('lgkm', 'all'), (PS(c + 1), ('D', c + 1)), *extra_need)]
                    if t == 3 and c < 16:
                        sc = [Ins('s_barrier')]
                elif Lr:
                    ld = [Lr[t], Lr[t + 1]] if t % 2 == 0 else []
                if t == 7:
                    w = [vr(V_DA + ((nb + 1) % 3) * 16, 16)]
                    if nb == 8:
                        w.append(ar(A_DB + ((c + 1) % 4) * 32, 32))
                    sc = [wait_ins(*w)]
                g.gap(m, sc, ld, cap=cap)
        if c < 16:
            assert not g.hi, (c, len(g.hi))
    stamp(9)
    g.hi.extend(d_pstore(0, 7) + d_pstore(0, 8))
    g.flush()
    stamp(10)
    sg = silu_g()
    addall(sg[:len(sg) // 2])
    p.need(('PT0', 0))
    p('s_barrier')
    stamp(11)
    p.add(flag_store(S_FT, 'PT0'))
    p.add(poll_issue(S_FGR))
    addall(sg[len(sg) // 2:])
    poll_check(p, 'p1', S_FGR)
    stamp(12)
    addall(d_ploads(0, G2))
    for k in range(3):
        d = V_AC1 + 16 * k
        addall(d_sum(G2, k, d, V_T))
        for rb in range(2):
            xb = xreg(k, rb)
            for e in range(4):
                tx = vr(d + 8 + e)
                if e % 2 == 0:
                    p('v_lshlrev_b32 %s, 16, %s' % (tx, vr(xb + e // 2)))
                else:
                    p('v_and_b32 %s, 0xffff0000, %s' % (tx, vr(xb + e // 2)))
                p('v_fma_f32 %s, %s, %s, %s' % (tx, vr(d + rb * 4 + e), vr(GG + 8 * k + rb * 4 + e), tx))
            o = d + 12 + 2 * rb
            p('v_cvt_pk_bf16_f32 %s, %s, %s' % (vr(o), vr(d + 8), vr(d + 9)))
            p('v_cvt_pk_bf16_f32 %s, %s, %s' % (vr(o + 1), vr(d + 10), vr(d + 11)))
            p('buffer_store_dwordx2 %s, %s, %s, %s offen offset:%d' % (
                vr(o, 2), vr(VO), sr(S_DOUT, 4), sr(S_HS + 4 + rb + (2 if k == 2 else 0)), 128 * k))
    if diag:
        p('s_waitcnt vmcnt(0)')
        stamp(13)
        p('s_mov_b32 %s, 0x%x' % (T(3), WS_T))
        make_srd(p, S_K, P_WS, T(3), 0x100000)
        p('s_lshl_b32 %s, s2, 2' % T(0))
        p('s_add_u32 %s, %s, %s' % (T(0), T(0), sr(S_W)))
        p('s_lshl_b32 %s, %s, 8' % (T(0), T(0)))
        p('v_lshlrev_b32 v4, 2, %s' % L)
        p('buffer_store_dword v1, v4, %s, %s offen' % (sr(S_K, 4), T(0)))
    p.label('L_end')
    p('s_endpgm')
    for t in SPIN_BLOCKS:
        p.raw(t)
    p.raw('L_code_end:')
    for x in p.flat():
        if OPT.get('kv_nt', 1) and x.kind == 'dma' and ('s[4:7]' in x.text or 's[8:11]' in x.text):
            x.text = x.text.replace(' lds', ' nt lds')
        if OPT.get('w_nt') and x.kind == 'dma' and x.lds and not callable(x.lds[1]) and x.lds[1][0] in 'WQ':
            x.text = x.text.replace(' lds', ' nt lds')
        if OPT.get('st01') and x.kind == 'vst' and 'x4' in x.text:
            x.text = x.text.replace(' sc1', ' sc0 sc1')
        if OPT.get('nost') and x.kind == 'vst' and 'x4' in x.text and x.lds and (x.lds[0] == 'O' or (OPT['nost'] > 1 and x.lds[0] == 'PT1')):
            x.text = 's_nop 0'
            x.kind = 'sopp'; x.op = 's_nop'; x.ops = ['0']; x.rd = []; x.lds = None
        if OPT.get('dplain') and x.kind in ('dma', 'vld') and 'x4' in x.text:
            x.text = x.text.replace(' sc1', '')
    p.finalize(verbose=bool(OPT.get('verbose')), check=not (OPT.get('drop') or OPT.get('nost')))
    print('total overflow slots', g.over, p.stats(), file=sys.stderr)
    return p


def build(diag=False):
    ln, km = gen_ln(), gen_main(diag)
    hdr = open('cdna_kernels/%s.s.ref' % NAME).read().split('; Override launch')[0]
    out = hdr
    if not OPT.get('donly'):
        out += '; @launch kernel=ln_kernel grid=(256,1,1) block=(256,1,1) lds=0\n'
    out += '; @launch kernel=main_kernel grid=(256,1,1) block=(256,1,1) lds=163840\n'
    out += '.amdgcn_target "amdgcn-amd-amdhsa--gfx950"\n.text\n'
    out += kernel_text('ln_kernel', ln, 0, 0) + kernel_text('main_kernel', km, 0, 0)
    out += '.section .rodata,"a"\n'
    for n, nv, acc in (('ln_kernel', 64, 64), ('main_kernel', 512, 256)):
        out += '.p2align 6\n' + descriptor(n, nv, acc)
    return out


if __name__ == '__main__':
    diag = 'diag' in sys.argv[2:]
    for a in sys.argv[2:]:
        if '=' in a:
            k, v = a.split('=')
            OPT[k] = int(v)
    open(sys.argv[1], 'w').write(build(diag))
```

```python
import sys, struct
from collections import deque
from dsl import *

OPT = {}
NAME = 'recurrent_scan__mha_block_cached__glu_gated_swiglu__prompt'
WS_XN = 0
WS_F = 3 << 20
WS_O = 4 << 20
WS_H = 24 << 20
WS_P = 48 << 20
PG = 64 * 16 * 9216
WS_W = 96 << 20
WS_T = 128 << 20
MF = 'v_mfma_f32_16x16x32_bf16'
LOG2E = 1.4426950408889634


def f2u(x):
    return struct.unpack('<I', struct.pack('<f', x))[0]


def srd_ins(srd, ptr, off, size):
    o = []
    if off is None:
        o.append(Ins('s_mov_b32 %s, %s' % (sr(srd), sr(ptr))))
        o.append(Ins('s_mov_b32 %s, %s' % (sr(srd + 1), sr(ptr + 1))))
    else:
        o.append(Ins('s_add_u32 %s, %s, %s' % (sr(srd), sr(ptr), off)))
        o.append(Ins('s_addc_u32 %s, %s, 0' % (sr(srd + 1), sr(ptr + 1))))
    o.append(Ins('s_mov_b32 %s, %s' % (sr(srd + 2), size if isinstance(size, str) else '0x%x' % size)))
    o.append(Ins('s_mov_b32 %s, 0x00020000' % sr(srd + 3)))
    return o


def make_srd(p, srd, ptr, off, size):
    for x in srd_ins(srd, ptr, off, size):
        p.add(x)


def cost(ins):
    if ins.kind == 'valu':
        return 2 if ins.trans else 1
    if ins.kind in ('dsr', 'dsw'):
        return 1
    if ins.kind in ('dma', 'vld', 'vst'):
        return 2
    return 0


class Gaps:
    def __init__(self, p):
        self.p = p
        self.hi = deque()
        self.lo = deque()
        self.n = 0
        self.over = 0
        self.waste = 0
        self.drop = ()
        self.vm_next = 0
        self.st = deque()
        self.st_max = 2
        self.vm_gap = 1

    def emit(self, x):
        if self.drop and x.kind in self.drop:
            return
        self.p.add(x)
        if x.on_emit:
            x.on_emit()

    def gap(self, mfma, sc=(), ld=(), va=(), cap=2):
        if mfma is not None:
            self.p.add(mfma if isinstance(mfma, Ins) else Ins(mfma))
        sc, ld, va = list(sc), list(ld), list(va)
        used = sum(cost(x) for x in ld + va)
        for q in (self.st, self.hi, self.lo):
            pulled = False
            pva = False
            while q:
                x = q[0]
                if x.ready > self.n:
                    break
                c = cost(x)
                if q is self.lo and x.kind == 'vst' and len(self.st) < self.st_max:
                    x.ready = self.n + 1
                    self.st.append(q.popleft())
                    continue
                if c == 0:
                    if sc or pulled:
                        break
                    sc.append(q.popleft())
                    if 'm0' in x.wr:
                        break
                    continue
                if used + c > cap:
                    break
                if x.kind != 'valu':
                    if pva:
                        break
                    if c == 2:
                        if self.n < self.vm_next:
                            break
                        w = 3 if x.kind == 'vst' else (4 if 'buffer_load_dword ' in x.text and 'sc' not in x.text else 1)
                        self.vm_next = self.n + self.vm_gap * w
                    ld.append(q.popleft())
                else:
                    va.append(q.popleft())
                    pva = True
                used += c
                pulled = True
        for x in sc + ([Ins(mfma)] if isinstance(mfma, str) else []):
            self.check(x)
        self.over += max(0, used - 2)
        if used < 2 and (self.hi or self.lo):
            self.waste += 2 - used
        for x in sc + ld + va:
            self.emit(x)
        self.n += 1

    def check(self, x):
        regs = set(x.rd) if (x.text.startswith('; need') or x.kind == 'mfma') else set()
        tags = [t for t in (x.need or []) if not callable(t[1])]
        for q in (self.st, self.hi, self.lo):
            for y in q:
                if y.kind in ('vld', 'dsr') and set(y.wr) & regs and not getattr(y, 'later', False):
                    raise AssertionError('consumer %s before queued load %s' % (x.text, y.text))
                if y.lds is not None and y.lds in tags:
                    raise AssertionError('need %s before queued %s' % (tags, y.text))

    def flush(self, q=None):
        for qq in ((self.st, self.hi, self.lo) if q is None else (q,)):
            while qq:
                x = qq.popleft()
                self.over += max(1, cost(x))
                self.emit(x)


def rg(t, n=4):
    return (vr if t[0] == 'v' else ar)(t[1], n)


def prefetch_w(p, ptr, srd, soff, rows, stride, lines, rounds, vt, vd):
    t = lambda k: vr(vt + k)
    make_srd(p, srd, ptr, soff, (rows - 1) * stride + lines * 128)
    return t


def gen_ln():
    p = Prog()
    p('s_cmp_ge_u32 s2, 256')
    p('s_cbranch_scc1 L_ln_end')
    p('s_load_dwordx2 s[12:13], s[0:1], 0')
    p('s_load_dwordx2 s[14:15], s[0:1], 88')
    p('s_load_dwordx4 s[32:35], s[0:1], 48')
    p('v_lshrrev_b32 v1, 5, v0')
    p('s_lshl_b32 s3, s2, 3')
    p('v_add_u32 v1, s3, v1')
    p('v_and_b32 v2, 31, v0')
    p('v_lshrrev_b32 v3, 2, v2')
    p('v_and_b32 v4, 3, v2')
    p('v_mul_u32_u24 v5, 1152, v1')
    p('v_lshl_add_u32 v5, v3, 6, v5')
    p('v_lshl_add_u32 v5, v4, 3, v5')
    p('v_cmp_gt_u32 vcc, 8, v2')
    p('s_mov_b64 s[16:17], vcc')
    for r in range(16, 20):
        p('v_mov_b32 v%d, 0' % r)
    p('s_waitcnt lgkmcnt(0)')
    make_srd(p, 4, 12, None, 2048 * 1152)
    for it in range(2):
        p('buffer_load_dwordx2 v[%d:%d], v5, s[4:7], 0 offen offset:%d' % (8 + 4 * it, 9 + 4 * it, it * 512))
        p('buffer_load_dwordx2 v[%d:%d], v5, s[4:7], 0 offen offset:%d' % (10 + 4 * it, 11 + 4 * it, it * 512 + 32))
    p('s_mov_b64 exec, s[16:17]')
    p('buffer_load_dwordx2 v[16:17], v5, s[4:7], 0 offen offset:1024')
    p('buffer_load_dwordx2 v[18:19], v5, s[4:7], 0 offen offset:1056')
    p('s_mov_b64 exec, -1')
    R0 = OPT.get('pf0', 10)
    if R0:
        p('s_lshr_b32 s20, s2, 3')
        p('s_mul_i32 s20, s20, %d' % (R0 * 9216))
        p('s_and_b32 s21, s2, 3')
        p('s_mul_i32 s21, s21, 2304')
        p('s_add_u32 s20, s20, s21')
        make_srd(p, 36, 32, 's20', (R0 - 1) * 9216 + 2304)
        make_srd(p, 40, 34, 's20', (R0 - 1) * 9216 + 2304)
        p('v_mul_u32_u24 v56, 3641, v0')
        p('v_lshrrev_b32 v56, 16, v56')
        p('v_mul_u32_u24 v57, 18, v56')
        p('v_sub_u32 v57, v0, v57')
        p('v_mul_u32_u24 v56, 9216, v56')
        p('v_lshl_add_u32 v56, v57, 7, v56')
        if OPT.get('pfh'):
            p('s_bitcmp1_b32 s2, 2')
            p('s_cselect_b32 s36, s40, s36')
            p('s_cselect_b32 s37, s41, s37')
            p('buffer_load_dword v58, v56, s[36:39], 0 offen')
        else:
            p('buffer_load_dword v58, v56, s[36:39], 0 offen')
            p('buffer_load_dword v59, v56, s[40:43], 0 offen')
    if OPT.get('pfc', 1):
        p('s_getpc_b64 s[44:45]')
        p.label('L_pc')
        p('s_add_u32 s44, s44, main_kernel-L_pc')
        p('s_addc_u32 s45, s45, 0')
        p('s_lshr_b32 s46, s2, 3')
        p('s_lshl_b32 s46, s46, 12')
        p('v_and_b32 v60, 31, v0')
        p('v_lshlrev_b32 v60, 7, v60')
        p('v_add_u32 v60, s46, v60')
        p('v_min_u32 v60, L_code_end-main_kernel-4, v60')
        p('global_load_dword v61, v60, s[44:45]')
    make_srd(p, 8, 14, None, 2048 * 1152)
    p('v_lshrrev_b32 v6, 4, v1')
    p('v_mul_u32_u24 v6, 18, v6')
    p('v_add_u32 v6, v6, v3')
    p('v_lshlrev_b32 v6, 10, v6')
    p('v_lshl_add_u32 v6, v4, 8, v6')
    p('v_and_b32 v7, 15, v1')
    p('v_lshl_add_u32 v6, v7, 4, v6')
    p('s_mov_b32 s20, 0x%x' % WS_F)
    make_srd(p, 24, 14, 's20', 4 * 32768)
    p('s_lshl_b32 s21, s2, 7')
    p('v_lshlrev_b32 v50, 15, v0')
    p('v_mov_b32 v52, 0')
    p('buffer_store_dword v52, v50, s[24:27], s21 offen')
    for d in range(12):
        p('v_lshlrev_b32 v%d, 16, v%d' % (20 + 2 * d, 8 + d))
        p('v_and_b32 v%d, 0xffff0000, v%d' % (21 + 2 * d, 8 + d))

    def reduce32(x, t):
        for k in (8, 4, 2, 1):
            p('v_add_f32_dpp %s, %s, %s row_ror:%d row_mask:0xf bank_mask:0xf' % (x, x, x, k))
        p('v_mov_b32 %s, %s' % (t, x))
        p('v_permlane16_swap_b32 %s, %s' % (x, t))
        p('v_add_f32 %s, %s, %s' % (x, x, t))
    p('v_add_f32 v44, v20, v21')
    p('v_add_f32 v45, v22, v23')
    for e in range(4, 24, 2):
        p('v_add_f32 v44, v44, v%d' % (20 + e))
        p('v_add_f32 v45, v45, v%d' % (21 + e))
    p('v_add_f32 v44, v44, v45')
    reduce32('v44', 'v45')
    p('v_mul_f32 v44, 0x%x, v44' % f2u(1.0 / 576))
    p('v_mov_b32 v46, 0')
    p('v_mov_b32 v47, 0')
    for e in range(16):
        p('v_sub_f32 v48, v%d, v44' % (20 + e))
        p('v_fmac_f32 v%d, v48, v48' % (46 + e % 2))
    p('s_mov_b64 exec, s[16:17]')
    for e in range(16, 24):
        p('v_sub_f32 v48, v%d, v44' % (20 + e))
        p('v_fmac_f32 v%d, v48, v48' % (46 + e % 2))
    p('s_mov_b64 exec, -1')
    p('v_add_f32 v46, v46, v47')
    reduce32('v46', 'v45')
    p('v_mul_f32 v46, 0x%x, v46' % f2u(1.0 / 576))

    def rnd(x):
        p('v_cvt_pk_bf16_f32 %s, %s, %s' % (x, x, x))
        p('v_lshlrev_b32 %s, 16, %s' % (x, x))
    rnd('v44')
    rnd('v46')
    p('v_add_f32 v46, 0x%x, v46' % f2u(1e-5))
    rnd('v46')
    p('v_sqrt_f32 v46, v46')
    rnd('v46')
    p('v_rcp_f32 v46, v46')
    if OPT.get('fold', 1):
        p('v_mul_f32 v46, 0x%x, v46' % f2u(-LOG2E))
    for d in range(12):
        a, b = 20 + 2 * d, 21 + 2 * d
        p('v_sub_f32 v%d, v%d, v44' % (a, a))
        p('v_sub_f32 v%d, v%d, v44' % (b, b))
        p('v_cvt_pk_bf16_f32 v%d, v%d, v%d' % (8 + d, a, b))
        p('v_lshlrev_b32 v%d, 16, v%d' % (a, 8 + d))
        p('v_and_b32 v%d, 0xffff0000, v%d' % (b, 8 + d))
        p('v_mul_f32 v%d, v%d, v46' % (a, a))
        p('v_mul_f32 v%d, v%d, v46' % (b, b))
        p('v_cvt_pk_bf16_f32 v%d, v%d, v%d' % (8 + d, a, b))
    p('s_mov_b32 s18, 8192')
    p('s_mov_b32 s19, 16384')
    p('buffer_store_dwordx4 v[8:11], v6, s[8:11], 0 offen')
    p('buffer_store_dwordx4 v[12:15], v6, s[8:11], s18 offen')
    p('s_mov_b64 exec, s[16:17]')
    p('buffer_store_dwordx4 v[16:19], v6, s[8:11], s19 offen')
    p.label('L_ln_end')
    p('s_endpgm')
    p.finalize()
    return p


S_K, S_V, S_XN, S_WS, S_WQ, S_H, S_O, S_FL, S_A1, S_A2, S_A3, S_A4 = 4, 8, 12, 16, 20, 24, 28, 32, 36, 40, 44, 48
S_DW2, S_DWO, S_DH, S_DO, S_DP, S_DR, S_DX, S_DOUT = 12, 16, 20, 24, 36, 40, 44, 48
(S_W, S_MK, S_MV, S_OFFK, S_OFFV, S_CNT, S_HD, S_QT, S_M1, S_OFFW, S_OFFQ, S_C, S_NL, S_FWG, S_FGR, S_FT,
 S_RO, S_SP, S_TILE) = range(52, 71)
S_HS = 71
S_T0 = 79
S_DG = 90
P_X, P_WO, P_W2, P_OUT, P_WS = 92, 94, 96, 98, 100
T = lambda k: sr(S_T0 + k)

V_L16, V_LANE = 2, 3
V_A1 = 4
V_OW = 8
V_AQ = 8
V_OQ = 20
V_OK, V_OV = 22, 26
V_SW = 28
V_T = 34
V_KA, V_VA, V_L, V_E = 4, 8, 16, 28
V_NM, V_S, V_P, V_Q = 40, 56, 120, 184
V_FST, V_ONE, V_FOFF, V_FV = 252, 253, 254, 255
A_O, A_KF, A_VF = 0, 128, 192
A_A, A_B = 128, 160
X0 = 72
DK, DV = 4, 2
L = vr(V_LANE)
t0, t1, t2, t3 = (vr(V_T + i) for i in range(4))


def LS(n):
    return (n * 16384, 16384)


def PS(c):
    return ((c % 4) * 36864, 36864)


def Sreg(kb, qb):
    return V_S + (kb * 4 + qb) * 4


def Preg(u, qb, ks):
    return V_P + (u & 1) * 32 + qb * 8 + ks * 4


def ktag(u, inloop):
    return (lambda it: ('K', u + 4 * it)) if inloop else ('K', u)


def vtag(u, inloop):
    return (lambda it: ('V', u + 4 * it)) if inloop else ('V', u)


def k_load(u, kb, s, inloop):
    return Ins('ds_read_b128 %s, %s offset:%d' % (ar(A_KF + kb * 16 + s * 4, 4), vr(V_KA + s), (u % 4) * 16384 + kb * 4096),
               lds=(LS(u % 4), ktag(u, inloop)))


def v_load(u, db, ks, j, inloop):
    return Ins('ds_read_b64_tr_b16 %s, %s offset:%d' % (
        ar(A_VF + db * 8 + ks * 4 + 2 * j, 2), vr(V_VA + db), (u % 4) * 16384 + (32 * ks + 16 * j) * 256),
        lds=(LS(4 + u % 4), vtag(u, inloop)))


def dma_unit(kind, u, inloop):
    out = []
    if kind == 'K':
        out.append(Ins('s_add_u32 m0, %s, %d' % (sr(S_MK), (u % 4) * 16384)))
        for cc in range(4):
            out.append(Ins('buffer_load_dwordx4 %s, %s, %s offen offset:%d lds' % (
                vr(V_OK + cc), sr(S_K, 4), sr(S_OFFK), cc * 1024), lds=(LS(u % 4), ktag(u, inloop))))
        out.append(Ins('s_add_u32 %s, %s, 16384' % (sr(S_OFFK), sr(S_OFFK))))
    else:
        out.append(Ins('s_add_u32 m0, %s, %d' % (sr(S_MV), (u % 4) * 16384)))
        for cc in range(4):
            out.append(Ins('buffer_load_dwordx4 %s, %s, %s offen offset:%d lds' % (
                vr(V_OV + cc % 2), sr(S_V, 4), sr(S_OFFV), cc * 1024), lds=(LS(4 + u % 4), vtag(u, inloop))))
        out.append(Ins('s_add_u32 %s, %s, 16384' % (sr(S_OFFV), sr(S_OFFV))))
    return out


def sm_instrs(uu, i):
    n, r = i // 4, i % 4
    kb, qb = n // 4, n % 4
    e = vr(V_E + i % 4)
    ex = Ins('v_exp_f32 %s, %s' % (e, vr(Sreg(kb, qb) + r)))
    ad = Ins('v_add_f32 %s, %s, %s' % (vr(V_L + qb), vr(V_L + qb), e))
    cv = None
    if r % 2 == 1:
        cv = Ins('v_cvt_pk_bf16_f32 %s, %s, %s' % (
            vr(Preg(uu, qb, kb // 2) + (kb % 2) * 2 + r // 2), vr(V_E + (i - 1) % 4), e))
    return ex, ad, cv


def att_slots(p, u, ta, tb, inloop, pv=True, qk=True, sm_cur=True, sm_next=True, vnext=True, dmak=True, dmav=True,
              barrier=True, g=None, cap=2, vearly=False, extra_need=()):
    T0 = -40
    R = range(-128, 256)
    sc = {t: [] for t in R}
    ld = {t: [] for t in R}
    va = {t: [] for t in R}
    for t in range(0, 128, 2):
        if t >= X0:
            uu, i, on = u + 1, (t - X0) // 2, sm_next
        else:
            uu, i, on = u, (t + 128 - X0) // 2, sm_cur
        if on:
            ex, ad, cv = sm_instrs(uu, i)
            va[t].append(ex)
            va[t + 1].append(ad)
            if cv is not None:
                va[t + 1].append(cv)
    pos = [t for t in range(T0, T0 + 128) if t % 8 in (1, 4, 5)]
    n = 0
    m = 0
    for db in range(8):
        for ks in range(2):
            for j in range(2):
                t = pos[n]
                n += 1
                if t >= 0:
                    if pv:
                        ld[t].append(v_load(u - 1, db, ks, j, inloop))
                elif vnext:
                    if vearly:
                        ld[46 + m].append(v_load(u, db, ks, j, inloop))
                        m += 1
                    else:
                        ld[t + 128].append(v_load(u, db, ks, j, inloop))
        t = 8 * db - 1
        sc[t if t >= 0 else t + 128].append(wait_ins(ar(A_VF + db * 8, 8)))
    for kb in range(4):
        for s in range(4):
            t = pos[n]
            n += 1
            if qk:
                ld[t].append(k_load(u + 1, kb, s, inloop))
        if qk:
            sc[64 + 16 * kb - 1].append(wait_ins(ar(A_KF + kb * 16, 16)))
    for on, kind, uu, tt in ((dmav, 'V', u + DV, 2), (dmak, 'K', u + DK, 66)):
        if on:
            lst = dma_unit(kind, uu, inloop)
            sc[tt].append(lst[0])
            ds = OPT.get('dstep', 8)
            for k in range(4):
                ld[tt + ds * k + (4 if k == 0 else 0)].append(lst[1 + k])
            sc[tt + ds * 3 + 1].append(lst[5])
    if barrier:
        nd = [(LS(4 + u % 4), vtag(u, inloop))] + list(extra_need)
        if qk:
            nd.append((LS((u + 1) % 4), ktag(u + 1, inloop)))
        sc[0].append(need_ins(*nd))
        sc[1].append(Ins('s_barrier'))
    g = g or Gaps(p)
    for t in range(ta, tb):
        mf = None
        if t < 64:
            if pv:
                db, qb, ks = t // 8, (t % 8) // 2, t % 2
                o = ar(A_O + (db * 4 + qb) * 4, 4)
                mf = '%s %s, %s, %s, %s' % (MF, o, ar(A_VF + db * 8 + ks * 4, 4), vr(Preg(u - 1, qb, ks), 4), o)
        elif qk:
            tt = t - 64
            kb, qb, s = tt // 16, (tt % 16) // 4, tt % 4
            d = vr(Sreg(kb, qb), 4)
            c = vr(V_NM + qb * 4, 4) if s == 0 else d
            mf = '%s %s, %s, %s, %s' % (MF, d, ar(A_KF + kb * 16 + s * 4, 4), vr(V_Q + (qb * 4 + s) * 4, 4), c)
        assert len(sc[t]) <= 1 and len(ld[t]) <= 1
        if mf is None and not (sc[t] or ld[t] or va[t]):
            continue
        g.gap(mf, sc[t], ld[t], va[t], cap=cap)


def kv_dma_setup():
    o = []
    a = lambda s: o.append(Ins(s))
    a('v_and_b32 %s, 15, %s' % (t0, L))
    a('v_lshrrev_b32 %s, 4, %s' % (t1, L))
    a('v_lshlrev_b32 %s, 8, %s' % (t2, t1))
    a('v_add_u32 %s, %s, %s' % (t2, sr(S_MK), t2))
    a('v_xor_b32 %s, %s, %s' % (t3, t0, t1))
    a('v_lshl_add_u32 %s, %s, 4, %s' % (vr(V_OK), t3, t2))
    for c in range(1, 4):
        a('v_xor_b32 %s, %d, %s' % (vr(V_OK + c), c * 64, vr(V_OK)))
    a('v_lshlrev_b32 %s, 1, %s' % (t3, t1))
    a('v_xor_b32 %s, %s, %s' % (t3, t0, t3))
    a('v_lshl_add_u32 %s, %s, 4, %s' % (vr(V_OV), t3, t2))
    a('v_xor_b32 %s, 128, %s' % (vr(V_OV + 1), vr(V_OV)))
    return o


def k_read_setup():
    o = []
    a = lambda s: o.append(Ins(s))
    a('v_and_b32 %s, 15, %s' % (t0, L))
    a('v_lshrrev_b32 %s, 4, %s' % (t1, L))
    a('v_xor_b32 %s, %s, %s' % (t2, t0, t1))
    a('v_lshlrev_b32 %s, 4, %s' % (t2, t2))
    a('v_lshl_add_u32 %s, %s, 8, %s' % (vr(V_KA), t0, t2))
    for s in range(1, 4):
        a('v_xor_b32 %s, %d, %s' % (vr(V_KA + s), s * 64, vr(V_KA)))
    return o


def v_read_setup():
    o = []
    a = lambda s: o.append(Ins(s))
    a('v_lshrrev_b32 %s, 2, %s' % (t2, L))
    a('v_and_b32 %s, 7, %s' % (t3, t2))
    a('v_lshlrev_b32 %s, 5, %s' % (t3, t3))
    a('v_lshl_add_u32 %s, %s, 8, %s' % (t3, t2, t3))
    a('v_and_b32 %s, 3, %s' % (t2, L))
    a('v_lshl_add_u32 %s, %s, 3, %s' % (t3, t2, t3))
    a('v_add_u32 %s, 0x10000, %s' % (vr(V_VA), t3))
    for d in range(1, 8):
        a('v_xor_b32 %s, %d, %s' % (vr(V_VA + d), d * 32, vr(V_VA)))
    return o


def xlane4(op, xs, ts):
    o = []
    for perm in ('v_permlane32_swap_b32', 'v_permlane16_swap_b32'):
        for x, t in zip(xs, ts):
            o.append(Ins('v_mov_b32 %s, %s' % (t, x)))
        for x, t in zip(xs, ts):
            o.append(Ins('%s %s, %s' % (perm, x, t)))
        for x, t in zip(xs, ts):
            o.append(Ins('%s %s, %s, %s' % (op, x, x, t)))
    return o


def div18(o, n, row, sl):
    o.append(Ins('v_mul_u32_u24 %s, 3641, %s' % (row, n)))
    o.append(Ins('v_lshrrev_b32 %s, 16, %s' % (row, row)))
    o.append(Ins('v_mul_u32_u24 %s, 18, %s' % (sl, row)))
    o.append(Ins('v_sub_u32 %s, %s, %s' % (sl, n, sl)))


def ffn_tiles():
    m, nv, na = {}, 0, 0
    for b in range(9):
        for mat in range(2):
            for qb in range(4):
                if mat == 1 and na < 18:
                    m[(2 * b + mat, qb)] = ('a', na * 4)
                    na += 1
                else:
                    m[(2 * b + mat, qb)] = ('v', 40 + nv * 4)
                    nv += 1
    assert nv == 54 and na == 18
    return m


FT = ffn_tiles()
WQ_SLOT = {8: 9, 7: 3, 6: 4, 5: 5, 4: 6, 3: 7, 2: 8, 1: 9, 0: 3}


def p1_dma(c):
    out = [Ins('s_add_u32 %s, %s, %d' % (T(8), sr(S_OFFW), c * 64 * 9216))]
    for i in range(9):
        if i % 4 == 0:
            out.append(Ins('s_add_u32 m0, %s, %d' % (sr(S_M1), PS(c)[0] + (i // 4) * 4096)))
        out.append(Ins('buffer_load_dwordx4 %s, %s, %s offen offset:%d lds' % (
            vr(V_OW + i), sr(S_WS, 4), T(8), (i % 4) * 1024), lds=(PS(c), ('W', c))))
    return out


def xn_loads(c, buf):
    base = A_B + buf * 32
    out = []
    for qb in range(4):
        out.append(Ins('s_mov_b32 %s, %d' % (T(qb), qb * 18 * 1024 + c * 2048)))
        for ks in range(2):
            out.append(Ins('buffer_load_dwordx4 %s, %s, %s, %s offen offset:%d' % (
                ar(base + (qb * 2 + ks) * 4, 4), vr(V_L16), sr(S_XN, 4), T(qb), ks * 1024)))
    return out


def wq_dma(c):
    sl = WQ_SLOT[c]
    out = []
    for cc in range(4):
        out.append(Ins('s_add_u32 %s, %s, %d' % (T(4 + cc % 2), sr(S_OFFQ), (c * 64 + cc * 4) * 8192)))
        out.append(Ins('s_add_u32 m0, %s, %d' % (sr(S_MK), sl * 16384 + cc * 1024)))
        out.append(Ins('buffer_load_dwordx4 %s, %s, %s offen lds' % (
            vr(V_OQ + cc % 2), sr(S_WQ, 4), T(4 + cc % 2)), lds=(LS(sl), ('Q', c))))
    return out


def p1_reads(c, blk, dst):
    mat, b = blk % 2, blk // 2
    return [Ins('ds_read_b64_tr_b16 %s, %s offset:%d' % (
        ar(dst + ks * 4 + 2 * j, 2), vr(V_A1 + c % 4),
        mat * 18432 + (32 * ks + 16 * j) * 288 + 32 * b), lds=(PS(c), ('W', c)))
        for ks in range(2) for j in range(2)]


def p2_reads(c, bq, dst):
    s, jj = bq // 2, bq % 2
    sl = WQ_SLOT[c]
    return [Ins('ds_read_b64_tr_b16 %s, %s offset:%d' % (
        ar(dst + ks * 4 + 2 * j, 2), vr(V_AQ + (sl // 4) * 4 + s),
        (sl % 4) * 16384 + (32 * ks + 16 * j) * 256 + 8 * jj), lds=(LS(sl), ('Q', c)))
        for ks in range(2) for j in range(2)]


def swiglu_unit(b, qb, ready, pool):
    gt, ut = FT[(2 * b, qb)], FT[(2 * b + 1, qb)]
    pk = FT[(2 * (b - b % 2), qb)][1] + (b % 2) * 2
    o = []
    ta, tb = vr(V_SW), vr(V_SW + 1)
    for r in (0, 2):
        pa, pb = vr(V_SW + 2 + r), vr(V_SW + 3 + r)
        g0, g1 = vr(gt[1] + r), vr(gt[1] + r + 1)
        if ut[0] == 'a':
            o.append(Ins('v_accvgpr_read_b32 %s, %s' % (pa, ar(ut[1] + r))))
            o.append(Ins('v_accvgpr_read_b32 %s, %s' % (pb, ar(ut[1] + r + 1))))
            u0, u1 = pa, pb
        else:
            u0, u1 = vr(ut[1] + r), vr(ut[1] + r + 1)
        if OPT.get('fold', 1):
            o.append(Ins('v_exp_f32 %s, %s' % (ta, g0)))
            o.append(Ins('v_exp_f32 %s, %s' % (tb, g1)))
        else:
            o.append(Ins('v_mul_f32 %s, %s, %s' % (ta, sr(S_NL), g0)))
            o.append(Ins('v_mul_f32 %s, %s, %s' % (tb, sr(S_NL), g1)))
            o.append(Ins('v_exp_f32 %s, %s' % (ta, ta)))
            o.append(Ins('v_exp_f32 %s, %s' % (tb, tb)))
        o.append(Ins('v_mul_f32 %s, %s, %s' % (pa, g0, u0)))
        o.append(Ins('v_mul_f32 %s, %s, %s' % (pb, g1, u1)))
        o.append(Ins('v_add_f32 %s, 1.0, %s' % (ta, ta)))
        o.append(Ins('v_add_f32 %s, 1.0, %s' % (tb, tb)))
        o.append(Ins('v_rcp_f32 %s, %s' % (ta, ta)))
        o.append(Ins('v_rcp_f32 %s, %s' % (tb, tb)))
        o.append(Ins('v_mul_f32 %s, %s, %s' % (pa, pa, ta)))
        o.append(Ins('v_mul_f32 %s, %s, %s' % (pb, pb, tb)))
    for r in (0, 2):
        o.append(Ins('v_cvt_pk_bf16_f32 %s, %s, %s' % (vr(pk + r // 2), vr(V_SW + 2 + r), vr(V_SW + 3 + r))))
    rel = [ut] + ([gt] if b % 2 == 1 else [])
    if b % 2 == 1:
        o.append(Ins('buffer_store_dwordx4 %s, %s, %s, %s offen offset:%d sc1' % (
            vr(pk - 2, 4), vr(V_L16), sr(S_H, 4), sr(S_HS + qb), (b // 2) * 1024), lds=('H', 0)))
        if OPT.get('plain_h'):
            o[-1].text = o[-1].text.replace(' sc1', '')
        rel.append(FT[(2 * (b - 1), qb)])
    elif b == 8:
        o.append(Ins('buffer_store_dwordx2 %s, %s, %s, %s offen sc1' % (
            vr(pk, 2), vr(V_L16), sr(S_H, 4), sr(S_HS + 4 + qb)), lds=('H', 0)))
        if OPT.get('plain_h'):
            o[-1].text = o[-1].text.replace(' sc1', '')
    o[0].ready = ready
    o[-1].on_emit = lambda: pool.extend(t for t in rel if not (t[0] == 'v' and t[1] >= V_Q))
    return o


def qcvt_unit(qb, s, QT, ready):
    o = []
    for h in range(2):
        tl = QT[(2 * s + h, qb)]
        tm = [vr(V_SW + e) for e in range(4)]
        for e in range(4):
            if tl[0] == 'a':
                o.append(Ins('v_accvgpr_read_b32 %s, %s' % (tm[e], ar(tl[1] + e))))
        for e in range(4):
            o.append(Ins('v_mul_f32 %s, %s, %s' % (tm[e], sr(S_C), tm[e] if tl[0] == 'a' else vr(tl[1] + e))))
        for e in range(2):
            o.append(Ins('v_cvt_pk_bf16_f32 %s, %s, %s' % (vr(V_Q + (qb * 4 + s) * 4 + 2 * h + e), tm[2 * e], tm[2 * e + 1])))
    o[0].ready = ready
    return o


class GemmSeq:
    def __init__(self, p, g):
        self.p, self.g = p, g
        self.groups = []

    def add(self, reads, nfr, mf, hook=None, bar=None, bwait=None, cap=2):
        self.groups.append(dict(reads=reads, n=nfr, mf=mf, hook=hook, bar=bar, bwait=bwait, cap=cap))

    def run(self):
        G, g, p = self.groups, self.g, self.p
        pos = 0
        for x in G:
            if x['n'] == 16 and pos % 16:
                pos += 8
            x['dst'] = A_A + pos % 32
            pos += x['n']
        for k, x in enumerate(G):
            regs = lambda y: set(range(y['dst'], y['dst'] + y['n']))
            ld = 1
            if k >= 2 and not (regs(x) & regs(G[k - 1])) and not (regs(x) & regs(G[k - 2])) and G[k - 1]['n'] == 8:
                ld = 2
            assert k == 0 or not (regs(x) & regs(G[k - 1]))
            x['at'] = k - ld
        for x in G:
            if x['at'] < 0:
                if x['bar']:
                    p.need(*x['bar'])
                    p('s_barrier')
                for i in x['reads'](x['dst']):
                    p.add(i)
        for k, x in enumerate(G):
            if x['hook']:
                x['hook']()
            todo = [y for y in G if y['at'] == k]
            rd, bar = [], []
            for y in todo:
                rd += y['reads'](y['dst'])
                if y['bar'] is not None:
                    bar += y['bar']
            hasbar = any(y['bar'] is not None for y in todo)
            mfs = x['mf'](x['dst'])
            n = len(mfs)
            st = 3 if hasbar else 0
            step = 2 if (st + 2 * ((len(rd) + 1) // 2) <= n - 1) else 1
            for t in range(n):
                sc, ld = [], []
                if hasbar and t == 1:
                    sc = [need_ins(('lgkm', 'all'), *bar)]
                if hasbar and t == 2:
                    sc = [Ins('s_barrier')]
                if t >= st and (t - st) % step == 0 and rd:
                    ld = rd[:2]
                    rd = rd[2:]
                if t == n - 1 and k + 1 < len(G):
                    y = G[k + 1]
                    bw = y['bwait']() if callable(y['bwait']) else (y['bwait'] or [])
                    w = [ar(y['dst'], y['n'])] + bw
                    sc = [wait_ins(*w)]
                g.gap(mfs[t](), sc, ld, cap=x['cap'])
                if hasbar and t == 2:
                    for y in todo:
                        if y.get('post'):
                            y['post']()
            assert not rd


V_DOWS = [22, 23, 24, 25, 26, 27, 248, 249, 250]
V_DRA = 40
V_DA = 56
V_AC2, V_AC1 = 104, 176
V_PK = 4
A_DB = 128
SPIN_BLOCKS = []


def poll_issue(soff):
    return Ins('buffer_load_dword %s, %s, %s, %s offen sc1' % (vr(V_FV), vr(V_FOFF), sr(S_FL, 4), sr(soff)))


def poll_check(p, name, soff, cmp='v_cmp_eq_u32 vcc, 0'):
    SPIN_BLOCKS.append("""L_spin_%(n)s:
 s_mov_b32 s3, 0
L_spin_%(n)s_l:
 s_sleep 4
 buffer_load_dword %(v)s, %(o)s, %(srd)s, %(so)s offen sc1
 s_add_u32 s3, s3, 1
 s_cmp_gt_u32 s3, 0x40000
 s_cbranch_scc1 L_ok_%(n)s
 s_waitcnt vmcnt(0)
 %(cmp)s, %(v)s
 s_cbranch_vccnz L_spin_%(n)s_l
 s_branch L_ok_%(n)s""" % dict(n=name, v=vr(V_FV), o=vr(V_FOFF), srd=sr(S_FL, 4), so=sr(soff), cmp=cmp))
    p('%s, %s' % (cmp, vr(V_FV)))
    p('s_cbranch_vccnz L_spin_%s' % name)
    p.label('L_ok_%s' % name)


def flag_store(soff, tag):
    return Ins('buffer_store_dword %s, %s, %s, %s offen sc1' % (
        vr(V_ONE), vr(V_FST), sr(S_FL, 4), sr(soff)), lds=('flag', (tag, 0)))


_ct = [0]


def code_touch(label, vo, vd, sp):
    _ct[0] += 1
    n = 'L_ct%d' % _ct[0]
    blk = Ins('; raw')
    blk.rawtext = (' s_getpc_b64 %(p)s\n%(n)s:\n s_add_u32 %(lo)s, %(lo)s, %(l)s-%(n)s\n s_addc_u32 %(hi)s, %(hi)s, 0' %
                   dict(p=sr(sp, 2), n=n, lo=sr(sp), hi=sr(sp + 1), l=label))
    return [blk,
            Ins('s_lshr_b32 s3, s2, 3'),
            Ins('s_lshl_b32 s3, s3, 11'),
            Ins('v_and_b32 %s, 15, %s' % (vr(vo), L)),
            Ins('v_lshlrev_b32 %s, 7, %s' % (vr(vo), vr(vo))),
            Ins('v_add_u32 %s, s3, %s' % (vr(vo), vr(vo))),
            Ins('v_min_u32 %s, L_code_end-%s-4, %s' % (vr(vo), label, vr(vo))),
            Ins('global_load_dword %s, %s, %s' % (vr(vd), vr(vo), sr(sp, 2)))]


def sadd(r, k):
    return Ins('s_add_u32 %s, %s, %d' % (sr(r), sr(r), k))


def d_dma(c):
    out = []
    for i in range(9):
        if i % 4 == 0:
            out.append(Ins('s_mov_b32 %s, %d' % (T(8), c * 36864 + (i // 4) * 4096)))
            out.append(Ins('s_add_u32 m0, %s, %d' % (sr(S_M1), PS(c)[0] + (i // 4) * 4096)))
        out.append(Ins('buffer_load_dwordx4 %s, %s, %s offen offset:%d sc1 lds' % (
            vr(V_L16), sr(S_DW2, 4), T(8), (i % 4) * 1024), lds=(PS(c), ('D', c))))
    return out


def d_bloads(c):
    srd, loc, rbs = (S_DH, c, 144 * 1024) if c < 9 else (S_DO, c - 9, 128 * 1024)
    out = []
    for rb in range(2):
        out.append(Ins('s_mov_b32 %s, %d' % (T(9 + rb), loc * 4096 + rb * rbs)))
        for ks in range(4):
            out.append(Ins('buffer_load_dwordx4 %s, %s, %s, %s offen offset:%d sc1' % (
                ar(A_DB + (c % 4) * 32 + (rb * 4 + ks) * 4, 4), vr(V_L16), sr(srd, 4), T(9 + rb), ks * 1024)))
    return out


def d_reads(c, nb):
    return [Ins('ds_read_b64_tr_b16 %s, %s offset:%d' % (
        vr(V_DA + (nb % 3) * 16 + ks * 4 + 2 * j, 2), vr(V_DRA + c % 4), (32 * ks + 16 * j) * 288 + 32 * nb),
        lds=(PS(c), ('D', c))) for ks in range(4) for j in range(2)]


def d_pstore(gemm, nb):
    acc = (V_AC2 if gemm else V_AC1) + nb * 8
    pk = V_PK + (nb % 3) * 4
    out = []
    if nb % 4 == 0:
        out.append(Ins('s_mov_b32 %s, %d' % (T(7), gemm * PG + (nb // 4) * 4096)))
    for e in range(4):
        out.append(Ins('v_cvt_pk_bf16_f32 %s, %s, %s' % (vr(pk + e), vr(acc + 2 * e), vr(acc + 2 * e + 1))))
    out.append(Ins('buffer_store_dwordx4 %s, %s, %s, %s offen offset:%d sc1' % (
        vr(pk, 4), vr(V_L16), sr(S_DP, 4), T(7), (nb % 4) * 1024), lds=('PT%d' % gemm, 0)))
    return out


def d_ploads(gemm, base):
    out = []
    for k in range(3):
        for sp in range(4):
            t = T(4 + (k * 4 + sp) % 2)
            if k < 2:
                out.append(Ins('s_mov_b32 %s, %d' % (t, gemm * PG + sp * 4 * 9216 + k * 4096)))
            else:
                out.append(Ins('s_add_u32 %s, %s, %d' % (t, sr(S_OFFQ), gemm * PG + sp * 4 * 9216 + k * 4096)))
            out.append(Ins('buffer_load_dwordx4 %s, %s, %s, %s offen sc1' % (
                vr(base + (k * 4 + sp) * 4, 4), vr(V_L16), sr(S_DR, 4), t)))
    return out


def d_sum(base, k, dst, tmp):
    out = []
    for e in range(4):
        for sp in range(4):
            src = vr(base + (k * 4 + sp) * 4 + e)
            lo = vr(dst + 2 * e) if sp == 0 else vr(tmp)
            hi = vr(dst + 2 * e + 1) if sp == 0 else vr(tmp + 1)
            out.append(Ins('v_lshlrev_b32 %s, 16, %s' % (lo, src)))
            out.append(Ins('v_and_b32 %s, 0xffff0000, %s' % (hi, src)))
            if sp:
                out.append(Ins('v_add_f32 %s, %s, %s' % (vr(dst + 2 * e), vr(dst + 2 * e), lo)))
                out.append(Ins('v_add_f32 %s, %s, %s' % (vr(dst + 2 * e + 1), vr(dst + 2 * e + 1), hi)))
    return out


def d_scalar_setup1():
    o = []
    a = lambda s: o.append(Ins(s))
    a('s_mul_i32 %s, %s, 288' % (T(1), sr(S_W)))
    a('s_lshl_b32 %s, %s, 6' % (T(0), sr(S_SP)))
    a('s_add_u32 %s, %s, %s' % (T(0), T(0), sr(S_TILE)))
    a('s_mul_i32 %s, %s, %d' % (T(2), T(0), 18 * 1152))
    a('s_add_u32 %s, %s, %s' % (T(2), T(2), T(1)))
    o += srd_ins(S_A1, P_W2, T(2), 17 * 1152 + 288)
    a('s_mul_i32 %s, %s, %d' % (T(2), T(0), 16 * 1152))
    a('s_add_u32 %s, %s, %s' % (T(2), T(2), T(1)))
    o += srd_ins(S_A2, P_WO, T(2), 15 * 1152 + 288)
    a('s_lshl_b32 %s, %s, 2' % (T(0), sr(S_SP)))
    a('s_add_u32 %s, %s, %s' % (T(1), T(0), sr(S_W)))
    a('s_mul_i32 %s, %s, %d' % (T(1), T(1), 2176 * 288))
    a('s_add_u32 %s, %s, 0x%x' % (T(1), T(1), WS_W))
    a('s_mul_i32 %s, %s, %d' % (T(2), sr(S_TILE), 18 * 288))
    a('s_add_u32 %s, %s, %s' % (T(2), T(2), T(1)))
    o += srd_ins(S_A3, P_WS, T(2), 18 * 288)
    a('s_mul_i32 %s, %s, %d' % (T(2), sr(S_TILE), 16 * 288))
    a('s_add_u32 %s, %s, %s' % (T(2), T(2), T(1)))
    a('s_add_u32 %s, %s, %d' % (T(2), T(2), 1152 * 288))
    o += srd_ins(S_A4, P_WS, T(2), 16 * 288)
    a('s_mov_b32 %s, 0' % sr(S_RO))
    a('s_and_b32 %s, %s, 3' % (T(1), sr(S_TILE)))
    a('s_add_u32 %s, %s, %s' % (T(1), T(0), T(1)))
    a('s_mul_i32 %s, %s, %d' % (T(1), T(1), 2176 * 288))
    a('s_add_u32 %s, %s, %s' % (T(1), T(1), sr(S_M1)))
    a('s_add_u32 %s, %s, 0x%x' % (T(1), T(1), WS_W))
    o += srd_ins(S_DW2, P_WS, T(1), 16 * 36864 + 9216)
    a('s_lshr_b32 %s, %s, 2' % (T(4), sr(S_TILE)))
    a('s_lshl_b32 %s, %s, 2' % (T(5), T(4)))
    a('s_add_u32 %s, %s, %s' % (T(5), T(5), sr(S_W)))
    a('s_mul_i32 %s, %s, %d' % (T(2), T(5), 2 * 144 * 1024))
    a('s_mul_i32 %s, %s, %d' % (T(3), sr(S_SP), 36 * 1024))
    a('s_add_u32 %s, %s, %s' % (T(2), T(2), T(3)))
    a('s_add_u32 %s, %s, 0x%x' % (T(2), T(2), WS_H))
    o += srd_ins(S_DH, P_WS, T(2), 144 * 1024 + 36 * 1024)
    a('s_lshl_b32 %s, %s, 18' % (T(2), T(5)))
    a('s_lshl_b32 %s, %s, 15' % (T(3), sr(S_SP)))
    a('s_add_u32 %s, %s, %s' % (T(2), T(2), T(3)))
    a('s_add_u32 %s, %s, 0x%x' % (T(2), T(2), WS_O))
    o += srd_ins(S_DO, P_WS, T(2), 128 * 1024 + 32 * 1024)
    return o


def d_scalar_setup2():
    o = []
    a = lambda s: o.append(Ins(s))
    a('s_lshl_b32 %s, %s, 2' % (T(2), sr(S_TILE)))
    a('s_add_u32 %s, %s, %s' % (T(2), T(2), sr(S_SP)))
    a('s_lshl_b32 %s, %s, 7' % (sr(S_FT), T(2)))
    a('s_add_u32 %s, %s, 0x10000' % (sr(S_FT), sr(S_FT)))
    a('s_lshl_b32 %s, %s, 2' % (T(2), T(2)))
    a('s_add_u32 %s, %s, %s' % (T(2), T(2), sr(S_W)))
    a('s_mul_i32 %s, %s, 9216' % (T(2), T(2)))
    a('s_add_u32 %s, %s, 0x%x' % (T(2), T(2), WS_P))
    o += srd_ins(S_DP, P_WS, T(2), PG + 9216)
    a('s_lshl_b32 %s, %s, 4' % (T(2), sr(S_TILE)))
    a('s_add_u32 %s, %s, %s' % (T(2), T(2), sr(S_SP)))
    a('s_mul_i32 %s, %s, 9216' % (T(2), T(2)))
    a('s_lshl_b32 %s, %s, 10' % (T(3), sr(S_W)))
    a('s_add_u32 %s, %s, %s' % (T(2), T(2), T(3)))
    a('s_add_u32 %s, %s, 0x%x' % (T(2), T(2), WS_P))
    o += srd_ins(S_DR, P_WS, T(2), PG + 14 * 9216)
    a('s_and_b32 %s, %s, 3' % (T(1), sr(S_TILE)))
    a('s_mul_i32 %s, %s, 288' % (T(1), T(1)))
    a('s_andn2_b32 %s, %s, 3' % (T(2), sr(S_TILE)))
    a('s_add_u32 %s, %s, %s' % (T(2), T(2), sr(S_SP)))
    a('s_mul_i32 %s, %s, %d' % (T(2), T(2), 32 * 1152))
    a('s_add_u32 %s, %s, %s' % (T(2), T(2), T(1)))
    o += srd_ins(S_DX, P_X, T(2), 31 * 1152 + 288)
    o += srd_ins(S_DOUT, P_OUT, T(2), 31 * 1152 + 288)
    a('s_lshl_b32 %s, %s, 28' % (sr(S_OFFQ), sr(S_W)))
    a('s_mov_b32 %s, 0x%x' % (sr(S_C), f2u(LOG2E * LOG2E)))
    a('s_lshl_b32 %s, %s, 19' % (sr(S_HS), sr(S_W)))
    for qb in range(1, 4):
        a('s_add_u32 %s, %s, 0x%x' % (sr(S_HS + qb), sr(S_HS), qb * 0x20000))
    a('s_lshl_b32 %s, %s, 5' % (sr(S_HS + 4), sr(S_W)))
    a('s_add_u32 %s, %s, %d' % (sr(S_HS + 5), sr(S_HS + 4), 16 * 1152))
    a('s_lshl_b32 %s, %s, 20' % (sr(S_HS + 6), sr(S_W)))
    a('s_add_u32 %s, %s, %d' % (sr(S_HS + 7), sr(S_HS + 6), 16 * 1152))
    return o


V_RN, V_RV = 20, 21
V_RQ = (248, 36)


def repack_pat():
    return [Ins('v_mul_u32_u24 %s, 3641, %s' % (vr(V_RV), vr(V_RN))),
            Ins('v_lshrrev_b32 %s, 16, %s' % (vr(V_RV), vr(V_RV))),
            Ins('v_mul_u32_u24 %s, 864, %s' % (vr(V_RV), vr(V_RV))),
            Ins('v_lshl_add_u32 %s, %s, 4, %s' % (vr(V_RV), vr(V_RN), vr(V_RV))),
            Ins('v_add_u32 %s, 64, %s' % (vr(V_RN), vr(V_RN)))]


def o_epilogue_unit(qb, t, n, ready):
    base = 184 + (n % 4) * 12
    o = []
    for r in range(8):
        o.append(Ins('v_accvgpr_read_b32 %s, %s' % (vr(base + r), ar(A_O + ((2 * t + r // 4) * 4 + qb) * 4 + r % 4))))
    for r in range(8):
        o.append(Ins('v_mul_f32 %s, %s, %s' % (vr(base + r), vr(base + r), vr(V_L + qb))))
    for r in range(4):
        o.append(Ins('v_cvt_pk_bf16_f32 %s, %s, %s' % (vr(base + 8 + r), vr(base + 2 * r), vr(base + 2 * r + 1))))
    o.append(Ins('buffer_store_dwordx4 %s, %s, %s, %s offen offset:%d%s' % (
        vr(base + 8, 4), vr(V_L16), sr(S_O, 4), sr(S_HS + qb), t * 1024, '' if OPT.get('plain_o', 0) else ' sc1'), lds=('O', 0)))
    o[0].ready = ready
    return o


def gen_slow_softmax():
    p = Prog()
    KA, VA, OK, OV, NM, MX = 120, 124, 132, 136, 140, 138
    NM = 44
    NM, OV, MX = 136, 32, 36
    p.label('L_slow')
    p('s_waitcnt vmcnt(0) lgkmcnt(0)')
    p('s_nop 15')
    p('s_lshl_b32 %s, %s, 13' % (T(0), sr(S_W)))
    p('s_add_u32 %s, %s, 0x20000' % (T(0), T(0)))
    p('s_sub_u32 %s, %s, 0x10000' % (T(1), T(0)))
    for k in range(4):
        p('v_add_u32 %s, %s, %s' % (vr(KA + k), T(0), vr(V_KA + k)))
        p('v_subrev_u32 %s, %s, %s' % (vr(OK + k), sr(S_MK), vr(V_OK + k)))
    for k in range(8):
        p('v_add_u32 %s, %s, %s' % (vr(VA + k), T(1), vr(V_VA + k)))
    for k in range(2):
        p('v_subrev_u32 %s, %s, %s' % (vr(OV + k), sr(S_MK), vr(V_OV + k)))

    def load_half(srd, vo, nvo):
        for hf in range(2):
            p('s_add_u32 m0, %s, %d' % (T(0), hf * 4096))
            for cc in range(4):
                p('buffer_load_dwordx4 %s, %s, %s offen offset:%d lds' % (vr(vo + cc % nvo), sr(srd, 4), T(2), cc * 1024))
            p('s_add_u32 %s, %s, 4096' % (T(2), T(2)))
        p('s_waitcnt vmcnt(0)')

    def qk(cin):
        p('s_mov_b32 %s, %s' % (T(2), T(3)))
        for hf in range(2):
            load_half(S_K, OK, 4)
            for k2 in range(2):
                for sx in range(4):
                    p('ds_read_b128 %s, %s offset:%d' % (ar(A_VF + ((hf * 2 + k2) * 4 + sx) * 4, 4), vr(KA + sx), k2 * 4096))
            p('s_waitcnt lgkmcnt(0)')
        for kb in range(4):
            for qb in range(4):
                for sx in range(4):
                    d = vr(Sreg(kb, qb), 4)
                    p('%s %s, %s, %s, %s' % (MF, d, ar(A_VF + (kb * 4 + sx) * 4, 4), vr(V_Q + (qb * 4 + sx) * 4, 4),
                                             cin(qb) if sx == 0 else d))
    for qb in range(4):
        p('v_mov_b32 %s, 0xff7fffff' % vr(MX + qb))
    p('s_mov_b32 %s, 0' % T(3))
    p.loop_begin(2, 's1')
    p.label('L_slow1')
    qk(lambda qb: '0')
    for qb in range(4):
        regs = [vr(Sreg(kb, qb) + r) for kb in range(4) for r in range(4)]
        for k in range(8):
            p('v_max3_f32 %s, %s, %s, %s' % (vr(MX + qb), vr(MX + qb), regs[2 * k], regs[2 * k + 1]))
    p('s_add_u32 %s, %s, 16384' % (T(3), T(3)))
    p('s_cmp_lt_u32 %s, 0x80000' % T(3))
    p('s_cbranch_scc1 L_slow1')
    p.loop_end()
    for x in xlane4('v_max_f32', [vr(MX + k) for k in range(4)], [vr(V_E + k) for k in range(4)]):
        p.add(x)
    for qb in range(4):
        for r in range(4):
            p('v_sub_f32 %s, 0, %s' % (vr(NM + qb * 4 + r), vr(MX + qb)))
        p('v_mov_b32 %s, 0' % vr(V_L + qb))
    for i in range(128):
        p('v_accvgpr_write_b32 %s, 0' % ar(A_O + i))
    p('s_mov_b32 %s, 0' % T(3))
    lp = p.loop_begin(3, 's2')
    p.label('L_slow2')
    qk(lambda qb: vr(NM + qb * 4, 4))
    for i in range(64):
        for x in sm_instrs(1, i):
            if x is not None:
                p.add(x)
    p('s_cmp_eq_u32 %s, 0x7c000' % T(3))
    p('s_cbranch_scc1 L_slow_done')
    p.loop_mark_exit(lp)
    p('s_mov_b32 %s, %s' % (T(2), T(3)))
    for ks in range(2):
        load_half(S_V, OV, 2)
        for db in range(8):
            for j in range(2):
                p('ds_read_b64_tr_b16 %s, %s offset:%d' % (ar(A_VF + db * 8 + ks * 4 + 2 * j, 2), vr(VA + db), 16 * j * 256))
        p('s_waitcnt lgkmcnt(0)')
    for db in range(8):
        for qb in range(4):
            for ks in range(2):
                o = ar(A_O + (db * 4 + qb) * 4, 4)
                p('%s %s, %s, %s, %s' % (MF, o, ar(A_VF + db * 8 + ks * 4, 4), vr(Preg(1, qb, ks), 4), o))
    p('s_add_u32 %s, %s, 16384' % (T(3), T(3)))
    p('s_branch L_slow2')
    p.loop_end()
    p.label('L_slow_done')
    for db in range(4):
        for ks in range(2):
            for j in range(2):
                x = v_load(31, db, ks, j, False)
                x.lds = None
                p.add(x)
    p('s_waitcnt vmcnt(0) lgkmcnt(0)')
    p('s_nop 15')
    p('s_branch L_slow_ret')
    p.finalize()
    return p.text().rstrip('\n')


def gen_main(diag=False):
    p = Prog()
    del SPIN_BLOCKS[:]
    _ct[0] = 0

    def stamp(k):
        if diag:
            p('s_memtime %s' % sr(S_DG, 2))
            p('s_waitcnt lgkmcnt(0)')
            p('v_writelane_b32 v1, %s, %d' % (sr(S_DG), k))
            p('s_memrealtime %s' % sr(S_DG, 2))
            p('s_waitcnt lgkmcnt(0)')
            p('v_writelane_b32 v1, %s, %d' % (sr(S_DG), k + 16))

    def addall(lst):
        for x in lst:
            p.add(x)
    p('s_cmp_ge_u32 s2, 256')
    p('s_cbranch_scc1 L_end')
    p('s_load_dwordx4 s[44:47], s[0:1], 48')
    p('s_load_dwordx2 %s, s[0:1], 88' % sr(P_WS, 2))
    p('s_load_dwordx4 s[36:39], s[0:1], 8')
    p('s_load_dwordx2 s[40:41], s[0:1], 24')
    p('s_load_dwordx2 %s, s[0:1], 0' % sr(P_X, 2))
    p('s_load_dwordx2 %s, s[0:1], 32' % sr(P_WO, 2))
    p('s_load_dwordx4 %s, s[0:1], 64' % sr(P_W2, 4))
    stamp(0)
    p('v_and_b32 %s, 63, v0' % L)
    p('v_lshrrev_b32 %s, 6, v0' % t0)
    p('v_readfirstlane_b32 %s, %s' % (sr(S_W), t0))
    p('s_and_b32 %s, s2, 3' % T(0))
    p('s_lshl_b32 %s, %s, 3' % (T(0), T(0)))
    p('s_bfe_u32 %s, s2, 0x30003' % T(1))
    p('s_add_u32 %s, %s, %s' % (sr(S_HD), T(0), T(1)))
    p('s_and_b32 %s, s2, 4' % T(0))
    p('s_lshr_b32 %s, s2, 6' % T(1))
    p('s_add_u32 %s, %s, %s' % (sr(S_QT), T(0), T(1)))
    p('v_lshlrev_b32 %s, 4, %s' % (vr(V_L16), L))
    p('s_and_b32 %s, %s, 1' % (T(2), sr(S_HD)))
    p('s_lshl_b32 %s, %s, 1' % (T(2), T(2)))
    p('v_add_u32 %s, %s, %s' % (t3, T(2), L))
    p('v_mul_u32_u24 %s, 3641, %s' % (vr(V_T + 4), L))
    p('v_mul_u32_u24 %s, 3641, %s' % (vr(V_T + 5), t3))
    p('s_movk_i32 %s, 9216' % T(9))
    p('s_movk_i32 %s, -288' % T(10))
    vo = []
    for i in range(9):
        o = []
        o.append(Ins('v_add_u32 %s, %d, %s' % (t0, 64 * i * 3641, vr(V_T + 4))))
        o.append(Ins('v_add_u32 %s, %d, %s' % (t1, 64 * i * 3641, vr(V_T + 5))))
        o.append(Ins('v_lshrrev_b32 %s, 16, %s' % (t0, t0)))
        o.append(Ins('v_lshrrev_b32 %s, 16, %s' % (t1, t1)))
        o.append(Ins('v_lshlrev_b32 %s, 4, %s' % (t2, t3)) if i == 0 else Ins('v_add_u32 %s, %d, %s' % (t2, 4096 if i % 4 == 0 else 0, t2)))
        o.append(Ins('v_mad_u32_u24 %s, %s, %s, %s' % (t0, t0, T(9), t2)))
        o.append(Ins('v_mad_i32_i24 %s, %s, %s, %s' % (vr(V_OW + i), t1, T(10), t0)))
        if i % 4:
            del o[4]
        vo.append(o)
    for o in vo[:4]:
        addall(o)
    p('s_mul_i32 %s, %s, 9216' % (sr(S_M1), sr(S_W)))
    p('s_and_b32 %s, %s, 1' % (T(3), sr(S_W)))
    p('s_mul_i32 %s, %s, %d' % (sr(S_OFFW), T(3), 32 * 9216))
    p('s_mul_i32 %s, %s, 288' % (T(2), sr(S_HD)))
    p('s_sub_u32 %s, %d, %s' % (T(3), 576 * 9216, T(2)))
    p('s_lshl_b32 %s, %s, 2' % (T(6), sr(S_QT)))
    p('s_add_u32 %s, %s, %s' % (T(6), T(6), sr(S_W)))
    p('s_mul_i32 %s, %s, %d' % (T(7), T(6), 4 * 18 * 1024))
    p('s_cmp_lt_u32 %s, 2' % sr(S_W))
    p('s_waitcnt lgkmcnt(0)')
    p('s_cselect_b32 s48, s44, s46')
    p('s_cselect_b32 s49, s45, s47')
    make_srd(p, S_WS, 48, T(2), T(3))
    make_srd(p, S_XN, P_WS, T(7), 4 * 18 * 1024)
    d0 = p1_dma(0)
    addall(d0[:6])
    for o in vo[4:]:
        addall(o)
    addall(d0[6:] + xn_loads(0, 0))
    if OPT.get('pro', 1) == 0:
        addall(p1_dma(1) + xn_loads(1, 1) + p1_dma(2))
    PF0 = OPT.get('pf0', 10)
    assert PF0 % 2 == 0
    p('s_lshr_b32 %s, s2, 3' % T(0))
    p('s_and_b32 %s, s2, 3' % T(1))
    p('s_lshl_b32 %s, %s, 1' % (T(2), T(0)))
    p('s_and_b32 %s, %s, 1' % (T(3), sr(S_W)))
    p('s_add_u32 %s, %s, %s' % (T(2), T(2), T(3)))
    p('s_mul_i32 %s, %s, 9216' % (T(2), T(2)))
    p('s_mul_i32 %s, %s, 2304' % (T(3), T(1)))
    p('s_add_u32 %s, %s, %s' % (T(2), T(2), T(3)))
    p('s_sub_u32 %s, %d, %s' % (T(9), 576 * 9216, T(2)))
    p('s_lshl_b32 %s, %s, 2' % (T(4), T(0)))
    p('s_add_u32 %s, %s, %s' % (T(4), T(4), sr(S_W)))
    p('s_lshl_b32 %s, %s, 13' % (T(4), T(4)))
    p('s_lshl_b32 %s, %s, 11' % (T(3), T(1)))
    p('s_add_u32 %s, %s, %s' % (T(4), T(4), T(3)))
    p('s_sub_u32 %s, %d, %s' % (T(10), 576 * 8192, T(4)))
    p('s_lshl_b32 %s, %s, 19' % (T(5), sr(S_HD)))
    make_srd(p, S_K, 36, T(5), 0x80000)
    make_srd(p, S_V, 38, T(5), 0x80000)
    p('s_lshl_b32 %s, %s, 8' % (T(5), sr(S_HD)))
    p('s_sub_u32 %s, %d, %s' % (T(3), 576 * 8192, T(5)))
    make_srd(p, S_WQ, 40, T(5), T(3))
    make_srd(p, S_A1, 48, T(2), T(9))
    make_srd(p, S_A2, 40, T(4), T(10))
    p('v_lshlrev_b32 %s, 7, %s' % (t1, L))
    p('v_mov_b32 %s, 0x7f000000' % t2)
    p('v_cmp_gt_u32 vcc, 18, %s' % L)
    p('v_cndmask_b32 %s, %s, %s, vcc' % (vr(V_SW), t2, t1))
    p('v_cmp_gt_u32 vcc, 16, %s' % L)
    p('v_cndmask_b32 %s, %s, %s, vcc' % (vr(V_SW + 1), t2, t1))
    tw = lambda c: [Ins('s_mov_b32 %s, %d' % (T(7), c * 64 * 9216)),
                    Ins('buffer_load_dword %s, %s, %s, %s offen sc0' % (vr(V_SW + 2), vr(V_SW), sr(S_A1, 4), T(7)))]
    tq = lambda k: [Ins('s_mov_b32 %s, %d' % (T(7), k * 128 * 8192)),
                    Ins('buffer_load_dword %s, %s, %s, %s offen sc0' % (vr(V_SW + 3), vr(V_SW + 1), sr(S_A2, 4), T(7)))]
    touch = {c: [] for c in range(7)}
    for k, c in enumerate(range(PF0 // 2, 9)):
        touch[min(k, 6)] += tw(c)
    for k in range(5):
        touch[k + OPT.get('tq0', 0)] += tq(4 - k)
    for c in touch:
        for x in touch[c]:
            x.wr = [r for r in x.wr if r[0] != 'v']
    if not OPT.get('pf1', 1):
        touch = {}
    if OPT.get('fold', 1):
        p('s_mov_b32 %s, 0x%x' % (sr(S_C), f2u(-1.0 / 128 ** 0.5)))
        p('s_mov_b32 %s, 0x%x' % (sr(S_NL), f2u(-1.0 / LOG2E)))
    else:
        p('s_mov_b32 %s, 0x%x' % (sr(S_C), f2u(LOG2E / 128 ** 0.5)))
        p('s_mov_b32 %s, 0x%x' % (sr(S_NL), f2u(-LOG2E)))
    p('s_lshl_b32 %s, %s, 12' % (sr(S_MK), sr(S_W)))
    p('s_add_u32 %s, %s, 0x10000' % (sr(S_MV), sr(S_MK)))
    p('s_mov_b32 %s, 0' % sr(S_OFFK))
    p('s_mov_b32 %s, 0' % sr(S_OFFV))
    p('v_lshrrev_b32 %s, 2, %s' % (t0, L))
    p('v_mul_u32_u24 %s, 288, %s' % (t1, t0))
    p('v_and_b32 %s, 3, %s' % (t2, L))
    p('v_lshl_add_u32 %s, %s, 3, %s' % (vr(V_A1), t2, t1))
    for k in range(1, 4):
        p('v_add_u32 %s, %d, %s' % (vr(V_A1 + k), k * 36864, vr(V_A1)))
    p('v_and_b32 %s, 15, %s' % (t0, L))
    p('v_lshrrev_b32 %s, 4, %s' % (t1, L))
    p('v_lshlrev_b32 %s, 1, %s' % (t3, t1))
    p('v_xor_b32 %s, %s, %s' % (t3, t0, t3))
    p('v_lshlrev_b32 %s, 4, %s' % (t3, t3))
    p('v_lshl_add_u32 %s, %s, 13, %s' % (vr(V_OQ), t1, t3))
    p('v_xor_b32 %s, 128, %s' % (vr(V_OQ + 1), vr(V_OQ)))
    p('s_lshl_b32 %s, %s, 17' % (sr(S_OFFQ), sr(S_W)))
    addall(kv_dma_setup())
    p('s_mul_i32 %s, %s, %d' % (T(3), T(6), 4 * 144 * 1024))
    p('s_add_u32 %s, %s, 0x%x' % (T(3), T(3), WS_H))
    make_srd(p, S_H, P_WS, T(3), 4 * 144 * 1024)
    p('s_lshl_b32 %s, %s, 21' % (T(3), sr(S_QT)))
    p('s_lshl_b32 %s, %s, 12' % (T(4), sr(S_HD)))
    p('s_add_u32 %s, %s, %s' % (T(3), T(3), T(4)))
    p('s_add_u32 %s, %s, 0x%x' % (T(3), T(3), WS_O))
    p('s_sub_u32 %s, 0x200000, %s' % (T(5), T(4)))
    make_srd(p, S_O, P_WS, T(3), T(5))
    p('s_mov_b32 %s, 0x%x' % (T(3), WS_F))
    make_srd(p, S_FL, P_WS, T(3), 4 * 32768)
    p('s_lshr_b32 %s, %s, 3' % (sr(S_SP), sr(S_HD)))
    p('s_and_b32 %s, %s, 7' % (T(0), sr(S_HD)))
    p('s_lshl_b32 %s, %s, 3' % (sr(S_TILE), sr(S_QT)))
    p('s_add_u32 %s, %s, %s' % (sr(S_TILE), sr(S_TILE), T(0)))
    p('s_lshl_b32 %s, %s, 6' % (T(0), sr(S_SP)))
    p('s_add_u32 %s, %s, %s' % (T(0), T(0), sr(S_TILE)))
    p('s_lshl_b32 %s, %s, 7' % (sr(S_FWG), T(0)))
    p('s_lshl_b32 %s, %s, 13' % (sr(S_FGR), sr(S_SP)))
    p('s_mul_i32 %s, %s, 9' % (T(2), sr(S_HD)))
    p('s_add_u32 %s, %s, 1' % (T(2), T(2)))
    p('s_lshr_b32 %s, %s, 1' % (T(2), T(2)))
    p('s_lshl_b32 %s, %s, 10' % (sr(S_HS), T(2)))
    p('s_bitcmp1_b32 %s, 0' % sr(S_HD))
    p('s_mov_b32 %s, 4096' % T(3))
    p('s_cselect_b32 %s, %d, %s' % (T(3), -1024 + 8, T(3)))
    p('s_add_u32 %s, %s, %s' % (sr(S_HS + 4), sr(S_HS), T(3)))
    for qb in range(1, 4):
        p('s_add_u32 %s, %s, %d' % (sr(S_HS + qb), sr(S_HS), qb * 144 * 1024))
        p('s_add_u32 %s, %s, %d' % (sr(S_HS + 4 + qb), sr(S_HS + 4), qb * 144 * 1024))
    if OPT.get('pro', 1) == 1:
        addall(p1_dma(1))
    stamp(1)

    if OPT.get('donly'):
        p('s_waitcnt vmcnt(0)')
        addall(d_scalar_setup1() + d_scalar_setup2() + k_read_setup() + v_read_setup())
        p('v_lshlrev_b32 %s, 20, v0' % vr(V_FST))
        p('v_mov_b32 %s, 1' % vr(V_ONE))
        p('v_lshlrev_b32 %s, 7, %s' % (vr(V_FOFF), L))
        p('v_mov_b32 %s, 0' % vr(V_RV))
        p('s_mov_b32 %s, 0' % sr(S_OFFW))
        for k in range(2, 7):
            stamp(k)
        p.raw(' s_branch L_donly')
    g = Gaps(p)
    seq = GemmSeq(p, g)
    pool = deque(('a', 72 + 4 * k) for k in range(14))

    def alloc():
        while not pool:
            x = (g.st or g.lo).popleft()
            g.over += max(1, cost(x))
            g.emit(x)
        for t in pool:
            if t[0] == 'v':
                pool.remove(t)
                return t
        return pool.popleft()

    XB = {}
    ring = lambda buf: [('a', A_B + buf * 32 + 4 * k) for k in range(8)]

    def xn_l(c, tiles):
        out = []
        for qb in range(4):
            out.append(Ins('s_mov_b32 %s, %d' % (T(qb), qb * 18 * 1024 + c * 2048)))
            for ks in range(2):
                out.append(Ins('buffer_load_dwordx4 %s, %s, %s, %s offen offset:%d' % (
                    rg(tiles[qb * 2 + ks]), vr(V_L16), sr(S_XN, 4), T(qb), ks * 1024)))
        return out

    def aq_setup():
        o = []
        a = lambda s: o.append(Ins(s))
        a('v_lshrrev_b32 %s, 2, %s' % (t0, L))
        a('v_and_b32 %s, 7, %s' % (t1, t0))
        a('v_lshlrev_b32 %s, 1, %s' % (t1, t1))
        a('v_and_b32 %s, 3, %s' % (t2, L))
        a('v_xor_b32 %s, %s, %s' % (t1, t1, t2))
        a('v_lshlrev_b32 %s, 4, %s' % (t1, t1))
        a('v_lshl_add_u32 %s, %s, 8, %s' % (vr(V_AQ), t0, t1))
        for s in range(1, 4):
            a('v_xor_b32 %s, %d, %s' % (vr(V_AQ + s), 64 * s, vr(V_AQ)))
        for rgn in range(1, 3):
            for s in range(4):
                a('v_add_u32 %s, 0x%x, %s' % (vr(V_AQ + rgn * 4 + s), rgn * 65536, vr(V_AQ + s)))
        return o

    def mk_mf(acc, chunks, xb, first):
        def mf(dst):
            out = []
            for qb in range(4):
                for ci, c in enumerate(chunks):
                    for ks in range(2):
                        def th(qb=qb, ci=ci, c=c, ks=ks):
                            a = rg(acc(qb))
                            cin = '0' if (first and ci == 0 and ks == 0) else a
                            return '%s %s, %s, %s, %s' % (MF, a, ar(dst + ci * 8 + ks * 4, 4), rg(xb(c)[qb * 2 + ks]), cin)
                        out.append(th)
            return out
        return mf

    for c in range(9):
        XB[c] = ring(c % 3)
    for c in range(7):
        for blk in range(18):
            hook = None
            if blk == 0:
                def hook(c=c):
                    if OPT.get('cst'):
                        p('s_memrealtime %s' % sr(S_DG, 2))
                        p('s_waitcnt lgkmcnt(0)')
                        p('v_writelane_b32 v1, %s, %d' % (sr(S_DG), 32 + c))
                    g.drop = {0: (), 1: ('dma',), 2: ('vld',), 3: ('dma', 'vld'), 4: ('dma', 'vld', 'dsr')}[OPT.get('drop', 0)]
                    g.vm_gap = OPT.get('vg1', 5) if c > 1 else OPT.get('vg0', 5)
                    if c == 0 and OPT.get('pro', 1):
                        g.hi.extend(xn_l(1, XB[1]) + p1_dma(2))
                    g.hi.extend(touch.get(c, []))
                    xl = xn_l(c + 2, XB[c + 2])
                    if c == 0:
                        g.hi.extend(xl + p1_dma(3))
                    else:
                        g.hi.extendleft(reversed(xl)) if OPT.get('xfirst', 0) else g.hi.extend(xl)
                    if c == 4:
                        g.hi.extend(wq_dma(8))
                    if c == 4 and OPT.get('ct1', 1):
                        g.hi.extend(code_touch('L_c1', V_SW + 4, V_SW + 5, S_A3))
                    if c == 6:
                        assert not any(y.kind == 'dma' and y.lds[1][0] == 'W' for y in g.hi)
                        g.lo.extend(aq_setup())
            seq.add(lambda dst, c=c, blk=blk: p1_reads(c, blk, dst), 8,
                    mk_mf(lambda qb, blk=blk: FT[(blk, qb)], [c], lambda c: XB[c], c == 0), hook=hook,
                    bar=[(PS(c), ('W', c))] if blk == 0 else None,
                    bwait=[rg(t) for t in XB[c]] if blk == 0 else None)
            if blk == 0 and 1 <= c <= 5:
                seq.groups[-1]['post'] = lambda c=c: g.hi.extend(p1_dma(c + 3))
            if blk == 0 and c == 6:
                seq.groups[-1]['post'] = lambda: g.hi.extend(wq_dma(7))
    CT = OPT.get('cap_t', 2)
    for blk in range(18):
        hook = None
        if blk >= 2 and blk % 2 == 0:
            def hook(b=blk // 2 - 1):
                for qb in range(4):
                    g.lo.extend(swiglu_unit(b, qb, g.n + 3, pool))
        if blk == 0:
            def hook():
                g.drop = ()
                p.label('L_c1')
                stamp(2)
        seq.add(lambda dst, blk=blk: p1_reads(7, blk, dst) + p1_reads(8, blk, dst + 8), 16,
                mk_mf(lambda qb, blk=blk: FT[(blk, qb)], [7, 8], lambda c: XB[c], False), hook=hook,
                bar=[(PS(7), ('W', 7)), (PS(8), ('W', 8))] if blk == 0 else None,
                bwait=[rg(t) for t in XB[7] + XB[8]] if blk == 0 else None, cap=CT)
        if blk == 0:
            seq.groups[-1]['post'] = lambda: g.hi.extend(wq_dma(6) + wq_dma(5))
    QT = {}

    def qacc(bq, qb):
        if (bq, qb) not in QT:
            QT[(bq, qb)] = alloc()
        return QT[(bq, qb)]
    XQ = {8: XB[8], 7: XB[7], 6: XB[6], 4: ring(1), 3: ring(2), 2: ring(0), 0: ring(1)}
    C2 = OPT.get('cap_p2', 2)
    qn = lambda c: (LS(WQ_SLOT[c]), ('Q', c))
    for bq in range(8):
        hook = None
        if bq == 0:
            def hook():
                stamp(3)
                g.vm_gap = OPT.get('vg2', 3)
                for qb in range(4):
                    g.lo.extend(swiglu_unit(8, qb, g.n + 3, pool))
        if bq == 3:
            def hook():
                XQ[5] = XQ[1] = [alloc() for _ in range(8)]
                g.hi.extend(xn_l(5, XQ[5]))
        seq.add(lambda dst, bq=bq: p2_reads(8, bq, dst) + p2_reads(7, bq, dst + 8), 16,
                mk_mf(lambda qb, bq=bq: qacc(bq, qb), [8, 7], lambda c: XQ[c], True), hook=hook,
                bar=[qn(8), qn(7)] if bq == 0 else None, cap=C2)
        if bq == 0:
            seq.groups[-1]['post'] = lambda: g.hi.extend(
                wq_dma(4) + wq_dma(3) + wq_dma(2))
    for c in (6, 5, 4, 3, 2):
        for bq in range(8):
            hook = None
            if bq == 0:
                def hook(c=c):
                    for cc in {6: (4, 3), 5: (2,), 4: (1,), 3: (0,), 2: ()}[c]:
                        g.hi.extend(xn_l(cc, XQ[cc]))
            seq.add(lambda dst, c=c, bq=bq: p2_reads(c, bq, dst), 8,
                    mk_mf(lambda qb, bq=bq: qacc(bq, qb), [c], lambda c: XQ[c], False), hook=hook,
                    bar=[qn(c)] if bq == 0 else None, cap=C2,
                    bwait=(lambda c=c: [rg(t) for t in XQ[c]]) if bq == 0 else None)
            if bq == 0:
                seq.groups[-1]['lazyb'] = c
                post = {6: lambda: g.hi.extend(wq_dma(1) + wq_dma(0)),
                        3: lambda: g.hi.extend(dma_unit('K', 0, False)),
                        2: lambda: g.hi.extend(dma_unit('K', 1, False) + dma_unit('V', 0, False))}.get(c)
                seq.groups[-1]['post'] = post
    for bq in range(8):
        hook = None
        if bq == 0:
            def hook():
                print('swiglu backlog at last P2 group:', len(g.hi), len(g.lo), 'over', g.over, file=sys.stderr)
                g.hi.extend(dma_unit('K', 2, False) + dma_unit('V', 1, False))
        if bq >= 2 and bq % 2 == 0:
            def hook(s=bq // 2 - 1):
                for qb in range(4):
                    g.lo.extend(qcvt_unit(qb, s, QT, g.n + 3))
        seq.add(lambda dst, bq=bq: p2_reads(1, bq, dst) + p2_reads(0, bq, dst + 8), 16,
                mk_mf(lambda qb, bq=bq: qacc(bq, qb), [1, 0], lambda c: XQ[c], False), hook=hook,
                bar=[qn(1), qn(0)] if bq == 0 else None, cap=C2,
                bwait=(lambda: [rg(t) for t in XQ[1] + XQ[0]]) if bq == 0 else None)
    seq.run()
    stamp(4)
    print('G backlog at end:', len(g.hi), len(g.lo), 'over', g.over, 'waste', g.waste, file=sys.stderr)
    for qb in range(4):
        g.lo.extend(qcvt_unit(qb, 3, QT, 0))
    addall(k_read_setup())
    p.need(('lgkm', 'all'), (LS(0), ('K', 0)))
    p('s_barrier')
    for kb in range(4):
        for s in range(4):
            p.add(k_load(0, kb, s, False))
    g.flush()
    g.vm_gap = 4
    g.hi.extend(dma_unit('K', 3, False))
    g.hi.extend(d_scalar_setup1())
    g.lo.extend(Ins('v_accvgpr_write_b32 %s, 0' % ar(A_O + i)) for i in range(128))
    for kb in range(4):
        for qb in range(4):
            for s in range(4):
                d = vr(Sreg(kb, qb), 4)
                g.gap('%s %s, %s, %s, %s' % (MF, d, ar(A_KF + kb * 16 + s * 4, 4), vr(V_Q + (qb * 4 + s) * 4, 4), '0' if s == 0 else d))
    g.flush()
    addall(v_read_setup())
    for qb in range(4):
        p('v_mov_b32 %s, 0' % vr(V_L + qb))
    p('v_lshlrev_b32 %s, 20, v0' % vr(V_FST))
    p('s_getreg_b32 %s, hwreg(HW_REG_XCC_ID)' % T(0))
    p('s_and_b32 %s, %s, 15' % (T(0), T(0)))
    p('s_add_u32 %s, %s, 1' % (T(0), T(0)))
    p('v_mov_b32 %s, %s' % (vr(V_ONE), T(0)))
    p('v_lshlrev_b32 %s, 7, %s' % (vr(V_FOFF), L))
    addall(code_touch('L_att_tail', 32, 33, S_DWO)[:-1])
    p('v_mov_b32 %s, %s' % (vr(V_RN), L))
    addall(repack_pat())
    ms = [vr(V_E + qb) for qb in range(4)]
    for step in range(8):
        for qb in range(4):
            regs = [vr(Sreg(kb, qb) + r) for kb in range(4) for r in range(4)]
            if step == 0:
                p('v_max3_f32 %s, %s, %s, %s' % (ms[qb], regs[0], regs[1], regs[2]))
            elif step < 7:
                p('v_max3_f32 %s, %s, %s, %s' % (ms[qb], ms[qb], regs[2 * step + 1], regs[2 * step + 2]))
            else:
                p('v_max_f32 %s, %s, %s' % (ms[qb], ms[qb], regs[15]))
    addall(xlane4('v_max_f32', ms, [vr(V_T + k) for k in range(4)]))
    for qb in range(4):
        for r in range(4):
            p('v_sub_f32 %s, 0, %s' % (vr(V_NM + qb * 4 + r), ms[qb]))
    for kb in range(4):
        for qb in range(4):
            for r in range(4):
                x = vr(Sreg(kb, qb) + r)
                p('v_add_f32 %s, %s, %s' % (x, x, vr(V_NM + qb * 4)))
    stamp(5)
    def sm_plain(uu, i0, i1):
        prev = []
        for i in range(i0, i1):
            ex, ad, cv = sm_instrs(uu, i)
            p.add(ex)
            addall(prev)
            prev = [ad] + ([cv] if cv else [])
        p('s_nop 0')
        addall(prev)
    sm_plain(0, 0, 28)
    att_slots(p, 0, 0, 64, False, pv=False, sm_cur=False)
    sm_plain(0, 28, 60)
    p('s_mov_b32 %s, 0' % sr(S_CNT))
    p('s_lshl_b32 %s, %s, 4' % (sr(S_OFFQ), sr(S_W)))
    p('s_add_u32 %s, %s, 2' % (sr(S_OFFQ), sr(S_OFFQ)))
    p.wait_regs(ar(A_KF, 16))
    lp = p.loop_begin(7, 'att')
    p('.p2align 6')
    p.label('L_att')
    rtag = ('R', 0)
    g.vm_gap = 8

    def rp_loads():
        g.hi.append(Ins('buffer_load_dwordx4 %s, %s, %s, 0 offen nt' % (vr(V_RQ[0], 4), vr(V_RV), sr(S_A1, 4))))
        g.hi.append(Ins('buffer_load_dwordx4 %s, %s, %s, 0 offen nt' % (vr(V_RQ[1], 4), vr(V_RV), sr(S_A2, 4))))

    def rp_stores():
        g.hi.append(Ins('buffer_store_dwordx4 %s, %s, %s, %s offen sc1' % (vr(V_RQ[0], 4), vr(V_L16), sr(S_A3, 4), sr(S_RO)), lds=rtag))
        g.hi.append(Ins('buffer_store_dwordx4 %s, %s, %s, %s offen sc1' % (vr(V_RQ[1], 4), vr(V_L16), sr(S_A4, 4), sr(S_RO)), lds=rtag))
        g.hi.append(Ins('s_add_u32 %s, %s, 1024' % (sr(S_RO), sr(S_RO))))
    att_slots(p, 0, 64, 96, True)
    rp_loads()
    att_slots(p, 0, 96, 128, True, g=g, cap=4)
    assert not g.hi
    att_slots(p, 1, 0, 64, True)
    p('s_add_u32 %s, %s, 1' % (sr(S_CNT), sr(S_CNT)))
    p('s_cmp_eq_u32 %s, 7' % sr(S_CNT))
    p('s_cbranch_scc1 L_att_tail')
    p.loop_mark_exit(lp)
    g.lo.extend(repack_pat())
    att_slots(p, 1, 64, 128, True, g=g, cap=3)
    assert not g.lo
    att_slots(p, 2, 0, 30, True, extra_need=[rtag, ('H', 0)])
    if OPT.get('plain_h'):
        SPIN_BLOCKS.append('L_wbh:\n buffer_wbl2 sc1\n s_branch L_wbh_done')
        p('s_cmp_eq_u32 %s, %s' % (sr(S_CNT), sr(S_OFFQ)))
        p('s_cbranch_scc1 L_wbh')
        p.label('L_wbh_done')
    p('s_cmp_eq_u32 %s, 4' % sr(S_CNT))
    p('s_cselect_b32 %s, %s, 0x100000' % (T(0), sr(S_FWG)))
    fl = flag_store(S_T0, 'H')
    g.hi.append(fl)
    g.vm_gap = 3
    rp_stores()
    att_slots(p, 2, 30, 66, True, g=g, cap=4)
    assert not g.hi
    att_slots(p, 2, 66, 96, True)
    g.vm_gap = 8
    rp_loads()
    att_slots(p, 2, 96, 128, True, g=g, cap=4)
    assert not g.hi
    g.lo.extend(repack_pat())
    att_slots(p, 3, 0, 96, True, g=g, cap=3)
    assert not g.lo
    if OPT.get('ct2', 1):
        g.hi.append(Ins('global_load_dword v33, v32, %s' % sr(S_DWO, 2)))
    att_slots(p, 3, 96, 128, True, g=g, cap=4)
    assert not g.hi
    att_slots(p, 4, 0, 30, True)
    g.vm_gap = 3
    rp_stores()
    att_slots(p, 4, 30, 64, True, g=g, cap=4)
    assert not g.hi
    p('s_branch L_att')
    p.loop_end()
    p.label('L_att_tail')
    stamp(6)
    g.vm_gap = 4
    att_slots(p, 25, 64, 96, False)
    g.hi.append(poll_issue(S_FGR))
    tt = []
    a = lambda x: tt.append(Ins(x))
    a('s_lshr_b32 %s, s2, 3' % T(0))
    a('s_lshl_b32 %s, %s, 2' % (T(1), sr(S_SP)))
    a('s_add_u32 %s, %s, %s' % (T(1), T(1), sr(S_W)))
    a('s_mul_i32 %s, %s, %d' % (T(1), T(1), 2176 * 288))
    a('s_mul_i32 %s, %s, 1152' % (T(2), T(0)))
    a('s_add_u32 %s, %s, %s' % (T(1), T(1), T(2)))
    a('s_add_u32 %s, %s, 0x%x' % (T(1), T(1), WS_W))
    tt += srd_ins(S_A1, P_WS, T(1), 16 * 36864 + 1152)
    a('s_and_b32 %s, s2, 4' % T(1))
    a('s_lshl_b32 %s, %s, 3' % (T(1), T(1)))
    a('s_add_u32 %s, %s, %s' % (T(1), T(1), T(0)))
    a('s_lshl_b32 %s, %s, 1' % (T(1), T(1)))
    a('s_and_b32 %s, %s, 1' % (T(2), sr(S_W)))
    a('s_add_u32 %s, %s, %s' % (T(1), T(1), T(2)))
    a('s_mul_i32 %s, %s, %d' % (T(1), T(1), 144 * 1024))
    a('s_mul_i32 %s, %s, %d' % (T(2), sr(S_SP), 36 * 1024))
    a('s_add_u32 %s, %s, %s' % (T(1), T(1), T(2)))
    a('s_add_u32 %s, %s, 0x%x' % (T(1), T(1), WS_H))
    tt += srd_ins(S_A2, P_WS, T(1), 36 * 1024)
    a('s_lshr_b32 %s, %s, 1' % (T(1), sr(S_W)))
    a('s_lshl_b32 %s, %s, 12' % (sr(S_RO), T(1)))
    g.hi.extend(tt)
    g.lo.extend([Ins('v_mul_u32_u24 %s, 7282, %s' % (vr(V_RV), L)),
                 Ins('v_lshrrev_b32 %s, 16, %s' % (vr(V_RV), vr(V_RV))),
                 Ins('v_mul_u32_u24 %s, %d, %s' % (vr(V_RV), 36864 - 1152, vr(V_RV))),
                 Ins('v_lshl_add_u32 %s, %s, 7, %s' % (vr(V_RV), L, vr(V_RV))),
                 Ins('v_mov_b32 v251, 0x7f000000'),
                 Ins('v_cmp_gt_u32 vcc, 18, %s' % L),
                 Ins('v_cndmask_b32 %s, v251, %s, vcc' % (vr(V_RV), vr(V_RV))),
                 Ins('v_cmp_gt_u32 vcc, 32, %s' % L),
                 Ins('v_cndmask_b32 v250, v251, %s, vcc' % vr(V_FOFF))])
    att_slots(p, 25, 96, 128, False, g=g, cap=4)
    att_slots(p, 26, 0, 64, False, g=g, cap=3, dmav=False)
    g.flush()
    addall(dma_unit('V', 28, False))
    poll_check(p, 'h', S_FGR, 'v_cmp_eq_u32 vcc, 0')
    p('v_cmp_ne_u32 vcc, %s, %s' % (vr(V_ONE), vr(V_FV)))
    p('s_and_b32 %s, %s, 0x38' % (T(0), sr(S_TILE)))
    p('s_lshr_b64 vcc, vcc, %s' % T(0))
    p('s_and_b32 %s, vcc_lo, 0xff' % sr(S_OFFW))

    def nowr(l):
        for x in l:
            x.wr = [r for r in x.wr if r[0] != 'v']
        return l

    def touch_w(c, srd=S_A1):
        return nowr([Ins('s_mov_b32 %s, %d' % (T(6), c * 36864)),
                     Ins('buffer_load_dword v248, %s, %s, %s offen sc0' % (vr(V_RV), sr(srd, 4), T(6)))])

    def touch_h(k):
        return nowr([Ins('s_add_u32 %s, %s, %d' % (T(6), sr(S_RO), k * 8192)),
                     Ins('buffer_load_dword v249, v250, %s, %s offen sc0' % (sr(S_A2, 4), T(6)))])
    TD = OPT.get('touch_d', 1)
    tl = []
    if TD:
        for k in range(5):
            tl += [touch_w(2 * k), touch_h(k)]
    for u in (26, 27, 28, 29):
        for (ta, tb, on) in ((0, 32, 0), (32, 48, 1), (48, 64, 1), (64, 96, 0), (96, 112, 1), (112, 128, 1)):
            if (u == 26 and ta < 64) or (u == 29 and ta >= 64):
                continue
            if on and tl:
                g.hi.extend(tl.pop(0))
            att_slots(p, u, ta, tb, False, g=g if on else None, cap=4, dmak=(u + DK < 32))
            assert not g.hi
    assert not tl
    for k in range(4):
        p('s_mov_b32 %s, %s' % (sr(S_DWO + k), sr(S_A1 + k)))
    g.hi.extend(d_scalar_setup2())
    att_slots(p, 29, 64, 128, False, dmak=False, g=g, cap=4)
    g.flush()
    p.label('L_donly')
    att_slots(p, 30, 0, 2, False, dmak=False, dmav=False, g=g)
    g.hi.extend(d_dma(0))
    g.hi.append(sadd(S_FWG, 32768))
    g.hi.append(Ins('s_andn2_b32 %s, %s, 0x3ff' % (sr(S_FGR), sr(S_FWG))))
    g.lo.append(Ins('v_and_b32 %s, 0x380, %s' % (vr(V_FOFF), vr(V_FOFF))))
    att_slots(p, 30, 2, 128, False, dmak=False, dmav=False, g=g, cap=4, barrier=False)
    g.flush()
    g.vm_gap = 2
    att_slots(p, 31, 0, 2, False, qk=False, sm_next=False, dmak=False, dmav=False, g=g, vearly=True)
    g.hi.extend(d_bloads(0) + d_dma(1) + d_bloads(1))
    o = []
    o.append(Ins('v_lshrrev_b32 %s, 2, %s' % (t0, L)))
    o.append(Ins('v_mul_u32_u24 %s, 288, %s' % (t1, t0)))
    o.append(Ins('v_and_b32 %s, 3, %s' % (t2, L)))
    o.append(Ins('v_lshl_add_u32 %s, %s, 3, %s' % (vr(V_DRA), t2, t1)))
    for k in range(1, 4):
        o.append(Ins('v_add_u32 %s, %d, %s' % (vr(V_DRA + k), k * 36864, vr(V_DRA))))
    g.lo.extend(o)
    g.lo.append(Ins('v_mov_b32 %s, 0x%x' % (vr(V_RN), f2u(2.0 ** OPT.get('thr', 30)))))
    att_slots(p, 31, 2, 64, False, qk=False, sm_next=False, dmak=False, dmav=False, g=g, cap=4, barrier=False, vearly=True)
    g.flush()
    sm_plain(31, 60, 64)
    p('v_max3_f32 %s, %s, %s, %s' % (t0, vr(V_L), vr(V_L + 1), vr(V_L + 2)))
    p('v_add_f32 %s, %s, %s' % (t0, t0, vr(V_L + 3)))
    p('v_cmp_nlt_f32 vcc, %s, %s' % (t0, vr(V_RN)))
    p('s_cbranch_vccnz L_slow')
    p.label('L_slow_ret')
    SPIN_BLOCKS.append(gen_slow_softmax())
    ls = [vr(V_L + qb) for qb in range(4)]
    g.lo.extend(xlane4('v_add_f32', ls, [vr(V_T + k) for k in range(4)]))
    g.lo.extend(Ins('v_rcp_f32 %s, %s' % (x, x)) for x in ls)
    n0 = g.n
    n = 0
    for t in range(4):
        for qb in range(4):
            g.lo.extend(o_epilogue_unit(qb, t, n, n0 + 16 * (t + 1) + 3))
            n += 1
    p.wait_regs(ar(A_VF, 8))
    att_slots(p, 32, 0, 2, False, qk=False, sm_cur=False, sm_next=False, vnext=False, dmak=False, dmav=False, g=g, barrier=False)
    p.need(('lgkm', 'all'), (PS(0), ('D', 0)))
    p('s_barrier')
    g.hi.extend(d_dma(2))
    att_slots(p, 32, 2, 48, False, qk=False, sm_cur=False, sm_next=False, vnext=False, dmak=False, dmav=False, g=g, barrier=False)
    g.hi.extend(d_reads(0, 0) + d_reads(0, 1))
    att_slots(p, 32, 48, 64, False, qk=False, sm_cur=False, sm_next=False, vnext=False, dmak=False, dmav=False, g=g, barrier=False)
    g.flush(g.hi)
    stamp(7)
    p.wait_regs(ar(A_DB, 32), vr(V_DA, 16))
    p('s_barrier')
    stamp(8)
    G2, GG = V_AC2, V_AC2 + 48
    xreg = lambda k, rb: 44 + (k * 2 + rb) * 2
    VO = V_T + 5

    def fin_setup():
        o = []
        o.append(Ins('v_and_b32 %s, 0x180, %s' % (vr(V_FOFF), vr(V_FOFF))))
        o.append(Ins('s_andn2_b32 %s, %s, 0x1ff' % (sr(S_FGR), sr(S_FT))))
        o.append(Ins('v_and_b32 %s, 15, %s' % (t0, L)))
        o.append(Ins('v_mul_u32_u24 %s, 1152, %s' % (t0, t0)))
        o.append(Ins('v_lshrrev_b32 %s, 4, %s' % (t1, L)))
        o.append(Ins('v_lshl_add_u32 %s, %s, 3, %s' % (vr(VO), t1, t0)))
        for k in range(3):
            for rb in range(2):
                o.append(Ins('buffer_load_dwordx2 %s, %s, %s, %s offen offset:%d' % (
                    vr(xreg(k, rb), 2), vr(VO), sr(S_DX, 4), sr(S_HS + 4 + rb + (2 if k == 2 else 0)), 128 * k)))
        return o

    def silu_g():
        o = []
        for k in range(3):
            d = GG + 8 * k
            o += d_sum(G2, k, d, V_T)
            for e in range(0, 8, 2):
                ta, tb = vr(V_T), vr(V_T + 1)
                o.append(Ins('v_mul_f32 %s, %s, %s' % (ta, sr(S_NL), vr(d + e))))
                o.append(Ins('v_mul_f32 %s, %s, %s' % (tb, sr(S_NL), vr(d + e + 1))))
                o.append(Ins('v_exp_f32 %s, %s' % (ta, ta)))
                o.append(Ins('v_exp_f32 %s, %s' % (tb, tb)))
                if OPT.get('fold', 1):
                    o.append(Ins('v_fma_f32 %s, %s, %s, %s' % (ta, ta, sr(S_C), sr(S_C))))
                    o.append(Ins('v_fma_f32 %s, %s, %s, %s' % (tb, tb, sr(S_C), sr(S_C))))
                else:
                    o.append(Ins('v_add_f32 %s, 1.0, %s' % (ta, ta)))
                    o.append(Ins('v_add_f32 %s, 1.0, %s' % (tb, tb)))
                o.append(Ins('v_rcp_f32 %s, %s' % (ta, ta)))
                o.append(Ins('v_rcp_f32 %s, %s' % (tb, tb)))
                o.append(Ins('v_mul_f32 %s, %s, %s' % (vr(d + e), vr(d + e), ta)))
                o.append(Ins('v_mul_f32 %s, %s, %s' % (vr(d + e + 1), vr(d + e + 1), tb)))
        return o

    g.vm_gap = 1
    SO = OPT.get('o_done', 2)
    left = []
    for c in range(17):
        acc0 = V_AC2 if c < 9 else V_AC1
        first = c in (0, 9)
        if c == 9:
            stamp(14)
        if OPT.get('dst'):
            p('s_memrealtime %s' % sr(S_DG, 2))
            p('s_waitcnt lgkmcnt(0)')
            p('v_writelane_b32 v1, %s, %d' % (sr(S_DG), 32 + c))
        extra_need = []
        cap = 2
        if c <= SO:
            cap = OPT.get('cap_o', 4)
        if c == SO + 1:
            assert not g.lo and not g.st, len(g.lo)
            extra_need = [('O', 0)]
            g.st_max = 0
        if c == SO + 2:
            if OPT.get('plain_o', 0):
                SPIN_BLOCKS.append('L_wb:\n buffer_wbl2 sc1\n s_waitcnt vmcnt(0)\n s_branch L_wb_done')
                p('s_cmp_lg_u32 %s, 0' % sr(S_OFFW))
                p('s_cbranch_scc1 L_wb')
                p.label('L_wb_done')
            g.hi.append(flag_store(S_FWG, 'O'))
        if TD and c in (2, 3, 4, 5):
            g.hi.extend(touch_w(10 + 2 * (c - 2), S_DWO))
        if c == 6:
            g.hi.append(poll_issue(S_FGR))
        if c == 7:
            poll_check(p, 'o', S_FGR)
            g.hi.extend(d_bloads(9))
            cap = 3
        if c == 0:
            g.hi.extend(d_bloads(2))
        if c + 3 < 17:
            g.hi.extend((d_bloads(c + 3) if c != 6 else []) + d_dma(c + 3))
        if c in (9, 10):
            for nb in (range(5) if c == 9 else range(5, 9)):
                g.lo.extend(d_pstore(1, nb))
            cap = 3
        if c == 11:
            assert not g.lo
            extra_need = [('PT1', 0)]
            fs = fin_setup()
            g.lo.extend(fs[:-6])
            cap = 3
        if c == 12:
            g.hi.appendleft(flag_store(S_FT, 'PT1'))
        if c == 14:
            g.hi.append(poll_issue(S_FGR))
            g.hi.extend(fs[-6:])
        if c == 15:
            poll_check(p, 'p2', S_FGR)
            g.hi.extend([sadd(S_FGR, 32768), sadd(S_FT, 32768)])
            g.hi.extend(d_ploads(1, G2))
        for nb in range(9):
            n2 = nb + 2
            Lr = d_reads(c, n2) if n2 < 9 else (d_reads(c + 1, n2 - 9) if c < 16 else [])
            if c == 16 and nb >= 2:
                g.hi.extend(d_pstore(0, nb - 2))
            for t in range(8):
                rb, ks = t // 4, t % 4
                a = vr(acc0 + (nb * 2 + rb) * 4, 4)
                m = '%s %s, %s, %s, %s' % (MF, a, vr(V_DA + (nb % 3) * 16 + ks * 4, 4),
                                           ar(A_DB + (c % 4) * 32 + (rb * 4 + ks) * 4, 4),
                                           '0' if (first and ks == 0) else a)
                sc, ld = [], []
                if nb == 7:
                    if Lr and t >= 4:
                        ld = [Lr[2 * (t - 4)], Lr[2 * (t - 4) + 1]]
                    if t == 2 and c < 16:
                        sc = [need_ins(('lgkm', 'all'), (PS(c + 1), ('D', c + 1)), *extra_need)]
                    if t == 3 and c < 16:
                        sc = [Ins('s_barrier')]
                elif Lr:
                    ld = [Lr[t], Lr[t + 1]] if t % 2 == 0 else []
                if t == 7:
                    w = [vr(V_DA + ((nb + 1) % 3) * 16, 16)]
                    if nb == 8:
                        w.append(ar(A_DB + ((c + 1) % 4) * 32, 32))
                    sc = [wait_ins(*w)]
                g.gap(m, sc, ld, cap=cap)
        if c < 16:
            assert not g.hi, (c, len(g.hi))
    stamp(9)
    g.hi.extend(d_pstore(0, 7) + d_pstore(0, 8))
    g.flush()
    stamp(10)
    sg = silu_g()
    addall(sg[:len(sg) // 2])
    p.need(('PT0', 0))
    p('s_barrier')
    stamp(11)
    p.add(flag_store(S_FT, 'PT0'))
    p.add(poll_issue(S_FGR))
    addall(sg[len(sg) // 2:])
    poll_check(p, 'p1', S_FGR)
    stamp(12)
    addall(d_ploads(0, G2))
    for k in range(3):
        d = V_AC1 + 16 * k
        addall(d_sum(G2, k, d, V_T))
        for rb in range(2):
            xb = xreg(k, rb)
            for e in range(4):
                tx = vr(d + 8 + e)
                if e % 2 == 0:
                    p('v_lshlrev_b32 %s, 16, %s' % (tx, vr(xb + e // 2)))
                else:
                    p('v_and_b32 %s, 0xffff0000, %s' % (tx, vr(xb + e // 2)))
                p('v_fma_f32 %s, %s, %s, %s' % (tx, vr(d + rb * 4 + e), vr(GG + 8 * k + rb * 4 + e), tx))
            o = d + 12 + 2 * rb
            p('v_cvt_pk_bf16_f32 %s, %s, %s' % (vr(o), vr(d + 8), vr(d + 9)))
            p('v_cvt_pk_bf16_f32 %s, %s, %s' % (vr(o + 1), vr(d + 10), vr(d + 11)))
            p('buffer_store_dwordx2 %s, %s, %s, %s offen offset:%d' % (
                vr(o, 2), vr(VO), sr(S_DOUT, 4), sr(S_HS + 4 + rb + (2 if k == 2 else 0)), 128 * k))
    if diag:
        p('s_waitcnt vmcnt(0)')
        stamp(13)
        p('s_mov_b32 %s, 0x%x' % (T(3), WS_T))
        make_srd(p, S_K, P_WS, T(3), 0x100000)
        p('s_lshl_b32 %s, s2, 2' % T(0))
        p('s_add_u32 %s, %s, %s' % (T(0), T(0), sr(S_W)))
        p('s_lshl_b32 %s, %s, 8' % (T(0), T(0)))
        p('v_lshlrev_b32 v4, 2, %s' % L)
        p('buffer_store_dword v1, v4, %s, %s offen' % (sr(S_K, 4), T(0)))
    p.label('L_end')
    p('s_endpgm')
    for t in SPIN_BLOCKS:
        p.raw(t)
    p.raw('L_code_end:')
    for x in p.flat():
        if OPT.get('kv_nt', 1) and x.kind == 'dma' and ('s[4:7]' in x.text or 's[8:11]' in x.text):
            x.text = x.text.replace(' lds', ' nt lds')
        if OPT.get('w_nt') and x.kind == 'dma' and x.lds and not callable(x.lds[1]) and x.lds[1][0] in 'WQ':
            x.text = x.text.replace(' lds', ' nt lds')
        if OPT.get('st01') and x.kind == 'vst' and 'x4' in x.text:
            x.text = x.text.replace(' sc1', ' sc0 sc1')
        if OPT.get('nost') and x.kind == 'vst' and 'x4' in x.text and x.lds and (x.lds[0] == 'O' or (OPT['nost'] > 1 and x.lds[0] == 'PT1')):
            x.text = 's_nop 0'
            x.kind = 'sopp'; x.op = 's_nop'; x.ops = ['0']; x.rd = []; x.lds = None
        if OPT.get('dplain') and x.kind in ('dma', 'vld') and 'x4' in x.text:
            x.text = x.text.replace(' sc1', '')
    p.finalize(verbose=bool(OPT.get('verbose')), check=not (OPT.get('drop') or OPT.get('nost')))
    print('total overflow slots', g.over, p.stats(), file=sys.stderr)
    return p


def build(diag=False):
    ln, km = gen_ln(), gen_main(diag)
    hdr = open('cdna_kernels/%s.s.ref' % NAME).read().split('; Override launch')[0]
    out = hdr
    if not OPT.get('donly'):
        out += '; @launch kernel=ln_kernel grid=(256,1,1) block=(256,1,1) lds=0\n'
    out += '; @launch kernel=main_kernel grid=(256,1,1) block=(256,1,1) lds=163840\n'
    out += '.amdgcn_target "amdgcn-amd-amdhsa--gfx950"\n.text\n'
    out += kernel_text('ln_kernel', ln, 0, 0) + kernel_text('main_kernel', km, 0, 0)
    out += '.section .rodata,"a"\n'
    for n, nv, acc in (('ln_kernel', 64, 64), ('main_kernel', 512, 256)):
        out += '.p2align 6\n' + descriptor(n, nv, acc)
    return out


if __name__ == '__main__':
    diag = 'diag' in sys.argv[2:]
    for a in sys.argv[2:]:
        if '=' in a:
            k, v = a.split('=')
            OPT[k] = int(v)
    open(sys.argv[1], 'w').write(build(diag))
```

```python
import sys, struct
from collections import deque
from dsl import *

OPT = {}
NAME = 'recurrent_scan__mha_block_cached__glu_gated_swiglu__prompt'
WS_XN = 0
WS_F = 3 << 20
WS_O = 4 << 20
WS_H = 24 << 20
WS_P = 48 << 20
PG = 64 * 16 * 9216
WS_W = 96 << 20
WS_T = 128 << 20
MF = 'v_mfma_f32_16x16x32_bf16'
LOG2E = 1.4426950408889634


def HS():
    return 144 * 1024 + OPT.get('pad', 1280)


def OS():
    return 128 * 1024 + OPT.get('pad', 1280)


def f2u(x):
    return struct.unpack('<I', struct.pack('<f', x))[0]


def srd_ins(srd, ptr, off, size):
    o = []
    if off is None:
        o.append(Ins('s_mov_b32 %s, %s' % (sr(srd), sr(ptr))))
        o.append(Ins('s_mov_b32 %s, %s' % (sr(srd + 1), sr(ptr + 1))))
    else:
        o.append(Ins('s_add_u32 %s, %s, %s' % (sr(srd), sr(ptr), off)))
        o.append(Ins('s_addc_u32 %s, %s, 0' % (sr(srd + 1), sr(ptr + 1))))
    o.append(Ins('s_mov_b32 %s, %s' % (sr(srd + 2), size if isinstance(size, str) else '0x%x' % size)))
    o.append(Ins('s_mov_b32 %s, 0x00020000' % sr(srd + 3)))
    return o


def make_srd(p, srd, ptr, off, size):
    for x in srd_ins(srd, ptr, off, size):
        p.add(x)


def cost(ins):
    if ins.kind == 'valu':
        return 2 if ins.trans else 1
    if ins.kind in ('dsr', 'dsw'):
        return 1
    if ins.kind in ('dma', 'vld', 'vst'):
        return 2
    return 0


class Gaps:
    def __init__(self, p):
        self.p = p
        self.hi = deque()
        self.lo = deque()
        self.n = 0
        self.over = 0
        self.waste = 0
        self.drop = ()
        self.vm_next = 0
        self.st = deque()
        self.st_max = 2
        self.st_w = 3
        self.vm_gap = 1

    def emit(self, x):
        if self.drop and x.kind in self.drop:
            return
        self.p.add(x)
        if x.on_emit:
            x.on_emit()

    def gap(self, mfma, sc=(), ld=(), va=(), cap=2):
        if mfma is not None:
            self.p.add(mfma if isinstance(mfma, Ins) else Ins(mfma))
        sc, ld, va = list(sc), list(ld), list(va)
        used = sum(cost(x) for x in ld + va)
        for q in (self.st, self.hi, self.lo):
            pulled = False
            pva = False
            while q:
                x = q[0]
                if x.ready > self.n:
                    break
                c = cost(x)
                if q is self.lo and x.kind == 'vst' and len(self.st) < self.st_max:
                    x.ready = self.n + 1
                    self.st.append(q.popleft())
                    continue
                if c == 0:
                    if sc or pulled:
                        break
                    sc.append(q.popleft())
                    if 'm0' in x.wr:
                        break
                    continue
                if used + c > cap:
                    break
                if x.kind != 'valu':
                    if pva:
                        break
                    if c == 2:
                        if self.n < self.vm_next:
                            break
                        w = (self.st_w if 'x4' in x.text else 1) if x.kind == 'vst' else (4 if 'buffer_load_dword ' in x.text and 'sc' not in x.text else 1)
                        self.vm_next = self.n + self.vm_gap * w
                    ld.append(q.popleft())
                else:
                    va.append(q.popleft())
                    pva = True
                used += c
                pulled = True
        for x in sc + ([Ins(mfma)] if isinstance(mfma, str) else []):
            self.check(x)
        self.over += max(0, used - 2)
        if used < 2 and (self.hi or self.lo):
            self.waste += 2 - used
        for x in sc + ld + va:
            self.emit(x)
        self.n += 1

    def check(self, x):
        regs = set(x.rd) if (x.text.startswith('; need') or x.kind == 'mfma') else set()
        tags = [t for t in (x.need or []) if not callable(t[1])]
        for q in (self.st, self.hi, self.lo):
            for y in q:
                if y.kind in ('vld', 'dsr') and set(y.wr) & regs and not getattr(y, 'later', False):
                    raise AssertionError('consumer %s before queued load %s' % (x.text, y.text))
                if y.lds is not None and y.lds in tags:
                    raise AssertionError('need %s before queued %s' % (tags, y.text))

    def flush(self, q=None):
        for qq in ((self.st, self.hi, self.lo) if q is None else (q,)):
            while qq:
                x = qq.popleft()
                self.over += max(1, cost(x))
                self.emit(x)


def rg(t, n=4):
    return (vr if t[0] == 'v' else ar)(t[1], n)


def prefetch_w(p, ptr, srd, soff, rows, stride, lines, rounds, vt, vd):
    t = lambda k: vr(vt + k)
    make_srd(p, srd, ptr, soff, (rows - 1) * stride + lines * 128)
    return t


def gen_ln():
    p = Prog()
    p('s_cmp_ge_u32 s2, 256')
    p('s_cbranch_scc1 L_ln_end')
    p('s_load_dwordx2 s[12:13], s[0:1], 0')
    p('s_load_dwordx2 s[14:15], s[0:1], 88')
    p('s_load_dwordx4 s[32:35], s[0:1], 48')
    p('v_lshrrev_b32 v1, 5, v0')
    p('s_lshl_b32 s3, s2, 3')
    p('v_add_u32 v1, s3, v1')
    p('v_and_b32 v2, 31, v0')
    p('v_lshrrev_b32 v3, 2, v2')
    p('v_and_b32 v4, 3, v2')
    p('v_mul_u32_u24 v5, 1152, v1')
    p('v_lshl_add_u32 v5, v3, 6, v5')
    p('v_lshl_add_u32 v5, v4, 3, v5')
    p('v_cmp_gt_u32 vcc, 8, v2')
    p('s_mov_b64 s[16:17], vcc')
    for r in range(16, 20):
        p('v_mov_b32 v%d, 0' % r)
    p('s_waitcnt lgkmcnt(0)')
    make_srd(p, 4, 12, None, 2048 * 1152)
    for it in range(2):
        p('buffer_load_dwordx2 v[%d:%d], v5, s[4:7], 0 offen offset:%d' % (8 + 4 * it, 9 + 4 * it, it * 512))
        p('buffer_load_dwordx2 v[%d:%d], v5, s[4:7], 0 offen offset:%d' % (10 + 4 * it, 11 + 4 * it, it * 512 + 32))
    p('s_mov_b64 exec, s[16:17]')
    p('buffer_load_dwordx2 v[16:17], v5, s[4:7], 0 offen offset:1024')
    p('buffer_load_dwordx2 v[18:19], v5, s[4:7], 0 offen offset:1056')
    p('s_mov_b64 exec, -1')
    R0 = OPT.get('pf0', 12)
    if R0:
        p('s_lshr_b32 s20, s2, 3')
        p('s_mul_i32 s20, s20, %d' % (R0 * 9216))
        p('s_and_b32 s21, s2, 3')
        p('s_mul_i32 s21, s21, 2304')
        p('s_add_u32 s20, s20, s21')
        make_srd(p, 36, 32, 's20', (R0 - 1) * 9216 + 2304)
        make_srd(p, 40, 34, 's20', (R0 - 1) * 9216 + 2304)
        p('v_mul_u32_u24 v56, 3641, v0')
        p('v_lshrrev_b32 v56, 16, v56')
        p('v_mul_u32_u24 v57, 18, v56')
        p('v_sub_u32 v57, v0, v57')
        p('v_mul_u32_u24 v56, 9216, v56')
        p('v_lshl_add_u32 v56, v57, 7, v56')
        if OPT.get('pfh', 1):
            p('s_bitcmp1_b32 s2, 2')
            p('s_cselect_b32 s36, s40, s36')
            p('s_cselect_b32 s37, s41, s37')
            p('buffer_load_dword v58, v56, s[36:39], 0 offen')
        else:
            p('buffer_load_dword v58, v56, s[36:39], 0 offen')
            p('buffer_load_dword v59, v56, s[40:43], 0 offen')
    if OPT.get('pfc', 1):
        p('s_getpc_b64 s[44:45]')
        p.label('L_pc')
        p('s_add_u32 s44, s44, main_kernel-L_pc')
        p('s_addc_u32 s45, s45, 0')
        p('s_lshr_b32 s46, s2, 3')
        p('s_lshl_b32 s46, s46, 12')
        p('v_and_b32 v60, 31, v0')
        p('v_lshlrev_b32 v60, 7, v60')
        p('v_add_u32 v60, s46, v60')
        p('v_min_u32 v60, L_code_end-main_kernel-4, v60')
        p('global_load_dword v61, v60, s[44:45]')
    make_srd(p, 8, 14, None, 2048 * 1152)
    p('v_lshrrev_b32 v6, 4, v1')
    p('v_mul_u32_u24 v6, 18, v6')
    p('v_add_u32 v6, v6, v3')
    p('v_lshlrev_b32 v6, 10, v6')
    p('v_lshl_add_u32 v6, v4, 8, v6')
    p('v_and_b32 v7, 15, v1')
    p('v_lshl_add_u32 v6, v7, 4, v6')
    p('s_mov_b32 s20, 0x%x' % WS_F)
    make_srd(p, 24, 14, 's20', 4 * 32768)
    p('s_lshl_b32 s21, s2, 7')
    p('v_lshlrev_b32 v50, 15, v0')
    p('v_mov_b32 v52, 0')
    p('buffer_store_dword v52, v50, s[24:27], s21 offen')
    for d in range(12):
        p('v_lshlrev_b32 v%d, 16, v%d' % (20 + 2 * d, 8 + d))
        p('v_and_b32 v%d, 0xffff0000, v%d' % (21 + 2 * d, 8 + d))

    def reduce32(x, t):
        for k in (8, 4, 2, 1):
            p('v_add_f32_dpp %s, %s, %s row_ror:%d row_mask:0xf bank_mask:0xf' % (x, x, x, k))
        p('v_mov_b32 %s, %s' % (t, x))
        p('v_permlane16_swap_b32 %s, %s' % (x, t))
        p('v_add_f32 %s, %s, %s' % (x, x, t))
    p('v_add_f32 v44, v20, v21')
    p('v_add_f32 v45, v22, v23')
    for e in range(4, 24, 2):
        p('v_add_f32 v44, v44, v%d' % (20 + e))
        p('v_add_f32 v45, v45, v%d' % (21 + e))
    p('v_add_f32 v44, v44, v45')
    reduce32('v44', 'v45')
    p('v_mul_f32 v44, 0x%x, v44' % f2u(1.0 / 576))
    p('v_mov_b32 v46, 0')
    p('v_mov_b32 v47, 0')
    for e in range(16):
        p('v_sub_f32 v48, v%d, v44' % (20 + e))
        p('v_fmac_f32 v%d, v48, v48' % (46 + e % 2))
    p('s_mov_b64 exec, s[16:17]')
    for e in range(16, 24):
        p('v_sub_f32 v48, v%d, v44' % (20 + e))
        p('v_fmac_f32 v%d, v48, v48' % (46 + e % 2))
    p('s_mov_b64 exec, -1')
    p('v_add_f32 v46, v46, v47')
    reduce32('v46', 'v45')
    p('v_mul_f32 v46, 0x%x, v46' % f2u(1.0 / 576))

    def rnd(x):
        p('v_cvt_pk_bf16_f32 %s, %s, %s' % (x, x, x))
        p('v_lshlrev_b32 %s, 16, %s' % (x, x))
    rnd('v44')
    rnd('v46')
    p('v_add_f32 v46, 0x%x, v46' % f2u(1e-5))
    rnd('v46')
    p('v_sqrt_f32 v46, v46')
    rnd('v46')
    p('v_rcp_f32 v46, v46')
    if OPT.get('fold', 0):
        p('v_mul_f32 v46, 0x%x, v46' % f2u(-LOG2E))
    for d in range(12):
        a, b = 20 + 2 * d, 21 + 2 * d
        p('v_sub_f32 v%d, v%d, v44' % (a, a))
        p('v_sub_f32 v%d, v%d, v44' % (b, b))
        p('v_cvt_pk_bf16_f32 v%d, v%d, v%d' % (8 + d, a, b))
        p('v_lshlrev_b32 v%d, 16, v%d' % (a, 8 + d))
        p('v_and_b32 v%d, 0xffff0000, v%d' % (b, 8 + d))
        p('v_mul_f32 v%d, v%d, v46' % (a, a))
        p('v_mul_f32 v%d, v%d, v46' % (b, b))
        p('v_cvt_pk_bf16_f32 v%d, v%d, v%d' % (8 + d, a, b))
    p('s_mov_b32 s18, 8192')
    p('s_mov_b32 s19, 16384')
    p('buffer_store_dwordx4 v[8:11], v6, s[8:11], 0 offen')
    p('buffer_store_dwordx4 v[12:15], v6, s[8:11], s18 offen')
    p('s_mov_b64 exec, s[16:17]')
    p('buffer_store_dwordx4 v[16:19], v6, s[8:11], s19 offen')
    p.label('L_ln_end')
    p('s_endpgm')
    p.finalize()
    return p


S_K, S_V, S_XN, S_WS, S_WQ, S_H, S_O, S_FL, S_A1, S_A2, S_A3, S_A4 = 4, 8, 12, 16, 20, 24, 28, 32, 36, 40, 44, 48
S_DW2, S_DWO, S_DH, S_DO, S_DP, S_DR, S_DX, S_DOUT = 12, 16, 20, 24, 36, 40, 44, 48
(S_W, S_MK, S_MV, S_OFFK, S_OFFV, S_CNT, S_HD, S_QT, S_M1, S_OFFW, S_OFFQ, S_C, S_NL, S_FWG, S_FGR, S_FT,
 S_RO, S_SP, S_TILE) = range(52, 71)
S_HS = 71
S_T0 = 79
S_DG = 90
P_X, P_WO, P_W2, P_OUT, P_WS = 92, 94, 96, 98, 100
T = lambda k: sr(S_T0 + k)

V_L16, V_LANE = 2, 3
V_A1 = 4
V_OW = 8
V_AQ = 8
V_OQ = 20
V_OK, V_OV = 22, 26
V_SW = 28
V_T = 34
V_KA, V_VA, V_L, V_E = 4, 8, 16, 28
V_NM, V_S, V_P, V_Q = 40, 56, 120, 184
V_FST, V_ONE, V_FOFF, V_FV = 252, 253, 254, 255
A_O, A_KF, A_VF = 0, 128, 192
A_A, A_B = 128, 160
X0 = 72
DK, DV = 4, 2
L = vr(V_LANE)
t0, t1, t2, t3 = (vr(V_T + i) for i in range(4))


def LS(n):
    return (n * 16384, 16384)


def VP(u):
    return (u + 3) % 4


DBASE = [0, 126976, 36864, 73728]


def DS(c):
    return (DBASE[c % 4], 36864)


def PS(c):
    return ((c % 4) * 36864, 36864)


def Sreg(kb, qb):
    return V_S + (kb * 4 + qb) * 4


def Preg(u, qb, ks):
    return V_P + (u & 1) * 32 + qb * 8 + ks * 4


def ktag(u, inloop):
    return (lambda it: ('K', u + 4 * it)) if inloop else ('K', u)


def vtag(u, inloop):
    return (lambda it: ('V', u + 4 * it)) if inloop else ('V', u)


def k_load(u, kb, s, inloop):
    return Ins('ds_read_b128 %s, %s offset:%d' % (ar(A_KF + kb * 16 + s * 4, 4), vr(V_KA + s), (u % 4) * 16384 + kb * 4096),
               lds=(LS(u % 4), ktag(u, inloop)))


def v_load(u, db, ks, j, inloop):
    return Ins('ds_read_b64_tr_b16 %s, %s offset:%d' % (
        ar(A_VF + db * 8 + ks * 4 + 2 * j, 2), vr(V_VA + db), VP(u) * 16384 + (32 * ks + 16 * j) * 256),
        lds=(LS(4 + VP(u)), vtag(u, inloop)))


def dma_unit(kind, u, inloop):
    out = []
    if kind == 'K':
        out.append(Ins('s_add_u32 m0, %s, %d' % (sr(S_MK), (u % 4) * 16384)))
        for cc in range(4):
            out.append(Ins('buffer_load_dwordx4 %s, %s, %s offen offset:%d lds' % (
                vr(V_OK + cc), sr(S_K, 4), sr(S_OFFK), cc * 1024), lds=(LS(u % 4), ktag(u, inloop))))
        out.append(Ins('s_add_u32 %s, %s, 16384' % (sr(S_OFFK), sr(S_OFFK))))
    else:
        out.append(Ins('s_add_u32 m0, %s, %d' % (sr(S_MV), VP(u) * 16384)))
        for cc in range(4):
            out.append(Ins('buffer_load_dwordx4 %s, %s, %s offen offset:%d lds' % (
                vr(V_OV + cc % 2), sr(S_V, 4), sr(S_OFFV), cc * 1024), lds=(LS(4 + VP(u)), vtag(u, inloop))))
        out.append(Ins('s_add_u32 %s, %s, 16384' % (sr(S_OFFV), sr(S_OFFV))))
    return out


def sm_instrs(uu, i):
    n, r = i // 4, i % 4
    kb, qb = n // 4, n % 4
    e = vr(V_E + i % 4)
    ex = Ins('v_exp_f32 %s, %s' % (e, vr(Sreg(kb, qb) + r)))
    ad = Ins('v_add_f32 %s, %s, %s' % (vr(V_L + qb), vr(V_L + qb), e))
    cv = None
    if r % 2 == 1:
        cv = Ins('v_cvt_pk_bf16_f32 %s, %s, %s' % (
            vr(Preg(uu, qb, kb // 2) + (kb % 2) * 2 + r // 2), vr(V_E + (i - 1) % 4), e))
    return ex, ad, cv


def att_slots(p, u, ta, tb, inloop, pv=True, qk=True, sm_cur=True, sm_next=True, vnext=True, dmak=True, dmav=True,
              barrier=True, g=None, cap=2, vearly=False, extra_need=()):
    T0 = -40
    R = range(-128, 256)
    sc = {t: [] for t in R}
    ld = {t: [] for t in R}
    va = {t: [] for t in R}
    for t in range(0, 128, 2):
        if t >= X0:
            uu, i, on = u + 1, (t - X0) // 2, sm_next
        else:
            uu, i, on = u, (t + 128 - X0) // 2, sm_cur
        if on:
            ex, ad, cv = sm_instrs(uu, i)
            va[t].append(ex)
            va[t + 1].append(ad)
            if cv is not None:
                va[t + 1].append(cv)
    pos = [t for t in range(T0, T0 + 128) if t % 8 in (1, 4, 5)]
    n = 0
    m = 0
    for db in range(8):
        for ks in range(2):
            for j in range(2):
                t = pos[n]
                n += 1
                if t >= 0:
                    if pv:
                        ld[t].append(v_load(u - 1, db, ks, j, inloop))
                elif vnext:
                    if vearly:
                        ld[46 + m].append(v_load(u, db, ks, j, inloop))
                        m += 1
                    else:
                        ld[t + 128].append(v_load(u, db, ks, j, inloop))
        t = 8 * db - 1
        sc[t if t >= 0 else t + 128].append(wait_ins(ar(A_VF + db * 8, 8)))
    for kb in range(4):
        for s in range(4):
            t = pos[n]
            n += 1
            if qk:
                ld[t].append(k_load(u + 1, kb, s, inloop))
        if qk:
            sc[64 + 16 * kb - 1].append(wait_ins(ar(A_KF + kb * 16, 16)))
    for on, kind, uu, tt in ((dmav, 'V', u + DV, 2), (dmak, 'K', u + DK, 66)):
        if on:
            lst = dma_unit(kind, uu, inloop)
            sc[tt].append(lst[0])
            ds = OPT.get('dstep', 8)
            for k in range(4):
                ld[tt + ds * k + (4 if k == 0 else 0)].append(lst[1 + k])
            sc[tt + ds * 3 + 1].append(lst[5])
    if barrier:
        nd = [(LS(4 + VP(u)), vtag(u, inloop))] + list(extra_need)
        if qk:
            nd.append((LS((u + 1) % 4), ktag(u + 1, inloop)))
        sc[0].append(need_ins(*nd))
        sc[1].append(Ins('s_barrier'))
    g = g or Gaps(p)
    for t in range(ta, tb):
        mf = None
        if t < 64:
            if pv:
                db, qb, ks = t // 8, (t % 8) // 2, t % 2
                o = ar(A_O + (db * 4 + qb) * 4, 4)
                mf = '%s %s, %s, %s, %s' % (MF, o, ar(A_VF + db * 8 + ks * 4, 4), vr(Preg(u - 1, qb, ks), 4), o)
        elif qk:
            tt = t - 64
            kb, qb, s = tt // 16, (tt % 16) // 4, tt % 4
            d = vr(Sreg(kb, qb), 4)
            c = vr(V_NM + qb * 4, 4) if s == 0 else d
            mf = '%s %s, %s, %s, %s' % (MF, d, ar(A_KF + kb * 16 + s * 4, 4), vr(V_Q + (qb * 4 + s) * 4, 4), c)
        assert len(sc[t]) <= 1 and len(ld[t]) <= 1
        if mf is None and not (sc[t] or ld[t] or va[t]):
            continue
        g.gap(mf, sc[t], ld[t], va[t], cap=cap)


def kv_dma_setup():
    o = []
    a = lambda s: o.append(Ins(s))
    a('v_and_b32 %s, 15, %s' % (t0, L))
    a('v_lshrrev_b32 %s, 4, %s' % (t1, L))
    a('v_lshlrev_b32 %s, 8, %s' % (t2, t1))
    a('v_add_u32 %s, %s, %s' % (t2, sr(S_MK), t2))
    a('v_xor_b32 %s, %s, %s' % (t3, t0, t1))
    a('v_lshl_add_u32 %s, %s, 4, %s' % (vr(V_OK), t3, t2))
    for c in range(1, 4):
        a('v_xor_b32 %s, %d, %s' % (vr(V_OK + c), c * 64, vr(V_OK)))
    a('v_lshlrev_b32 %s, 1, %s' % (t3, t1))
    a('v_xor_b32 %s, %s, %s' % (t3, t0, t3))
    a('v_lshl_add_u32 %s, %s, 4, %s' % (vr(V_OV), t3, t2))
    a('v_xor_b32 %s, 128, %s' % (vr(V_OV + 1), vr(V_OV)))
    return o


def k_read_setup():
    o = []
    a = lambda s: o.append(Ins(s))
    a('v_and_b32 %s, 15, %s' % (t0, L))
    a('v_lshrrev_b32 %s, 4, %s' % (t1, L))
    a('v_xor_b32 %s, %s, %s' % (t2, t0, t1))
    a('v_lshlrev_b32 %s, 4, %s' % (t2, t2))
    a('v_lshl_add_u32 %s, %s, 8, %s' % (vr(V_KA), t0, t2))
    for s in range(1, 4):
        a('v_xor_b32 %s, %d, %s' % (vr(V_KA + s), s * 64, vr(V_KA)))
    return o


def v_read_setup():
    o = []
    a = lambda s: o.append(Ins(s))
    a('v_lshrrev_b32 %s, 2, %s' % (t2, L))
    a('v_and_b32 %s, 7, %s' % (t3, t2))
    a('v_lshlrev_b32 %s, 5, %s' % (t3, t3))
    a('v_lshl_add_u32 %s, %s, 8, %s' % (t3, t2, t3))
    a('v_and_b32 %s, 3, %s' % (t2, L))
    a('v_lshl_add_u32 %s, %s, 3, %s' % (t3, t2, t3))
    a('v_add_u32 %s, 0x10000, %s' % (vr(V_VA), t3))
    for d in range(1, 8):
        a('v_xor_b32 %s, %d, %s' % (vr(V_VA + d), d * 32, vr(V_VA)))
    return o


def xlane4(op, xs, ts):
    o = []
    for perm in ('v_permlane32_swap_b32', 'v_permlane16_swap_b32'):
        for x, t in zip(xs, ts):
            o.append(Ins('v_mov_b32 %s, %s' % (t, x)))
        for x, t in zip(xs, ts):
            o.append(Ins('%s %s, %s' % (perm, x, t)))
        for x, t in zip(xs, ts):
            o.append(Ins('%s %s, %s, %s' % (op, x, x, t)))
    return o


def div18(o, n, row, sl):
    o.append(Ins('v_mul_u32_u24 %s, 3641, %s' % (row, n)))
    o.append(Ins('v_lshrrev_b32 %s, 16, %s' % (row, row)))
    o.append(Ins('v_mul_u32_u24 %s, 18, %s' % (sl, row)))
    o.append(Ins('v_sub_u32 %s, %s, %s' % (sl, n, sl)))


def ffn_tiles():
    m, nv, na = {}, 0, 0
    for b in range(9):
        for mat in range(2):
            for qb in range(4):
                if mat == 1 and na < 18:
                    m[(2 * b + mat, qb)] = ('a', na * 4)
                    na += 1
                else:
                    m[(2 * b + mat, qb)] = ('v', 40 + nv * 4)
                    nv += 1
    assert nv == 54 and na == 18
    return m


FT = ffn_tiles()
WQ_SLOT = {8: 9, 7: 3, 6: 4, 5: 5, 4: 6, 3: 7, 2: 8, 1: 9, 0: 3}


def p1_dma(c):
    out = [Ins('s_add_u32 %s, %s, %d' % (T(8), sr(S_OFFW), c * 64 * 9216))]
    for i in range(9):
        if i % 4 == 0:
            out.append(Ins('s_add_u32 m0, %s, %d' % (sr(S_M1), PS(c)[0] + (i // 4) * 4096)))
        out.append(Ins('buffer_load_dwordx4 %s, %s, %s offen offset:%d lds' % (
            vr(V_OW + i), sr(S_WS, 4), T(8), (i % 4) * 1024), lds=(PS(c), ('W', c))))
    return out


def xn_loads(c, buf):
    base = A_B + buf * 32
    out = []
    for qb in range(4):
        out.append(Ins('s_mov_b32 %s, %d' % (T(qb), qb * 18 * 1024 + c * 2048)))
        for ks in range(2):
            out.append(Ins('buffer_load_dwordx4 %s, %s, %s, %s offen offset:%d' % (
                ar(base + (qb * 2 + ks) * 4, 4), vr(V_L16), sr(S_XN, 4), T(qb), ks * 1024)))
    return out


def wq_dma(c):
    sl = WQ_SLOT[c]
    out = []
    for cc in range(4):
        out.append(Ins('s_add_u32 %s, %s, %d' % (T(4 + cc % 2), sr(S_OFFQ), (c * 64 + cc * 4) * 8192)))
        out.append(Ins('s_add_u32 m0, %s, %d' % (sr(S_MK), sl * 16384 + cc * 1024)))
        out.append(Ins('buffer_load_dwordx4 %s, %s, %s offen lds' % (
            vr(V_OQ + cc % 2), sr(S_WQ, 4), T(4 + cc % 2)), lds=(LS(sl), ('Q', c))))
    return out


def p1_reads(c, blk, dst):
    mat, b = blk % 2, blk // 2
    return [Ins('ds_read_b64_tr_b16 %s, %s offset:%d' % (
        ar(dst + ks * 4 + 2 * j, 2), vr(V_A1 + c % 4),
        mat * 18432 + (32 * ks + 16 * j) * 288 + 32 * b), lds=(PS(c), ('W', c)))
        for ks in range(2) for j in range(2)]


def p2_reads(c, bq, dst):
    s, jj = bq // 2, bq % 2
    sl = WQ_SLOT[c]
    return [Ins('ds_read_b64_tr_b16 %s, %s offset:%d' % (
        ar(dst + ks * 4 + 2 * j, 2), vr(V_AQ + (sl // 4) * 4 + s),
        (sl % 4) * 16384 + (32 * ks + 16 * j) * 256 + 8 * jj), lds=(LS(sl), ('Q', c)))
        for ks in range(2) for j in range(2)]


def swiglu_unit(b, qb, ready, pool):
    gt, ut = FT[(2 * b, qb)], FT[(2 * b + 1, qb)]
    pk = FT[(2 * (b - b % 2), qb)][1] + (b % 2) * 2
    o = []
    ta, tb = vr(V_SW), vr(V_SW + 1)
    for r in (0, 2):
        pa, pb = vr(V_SW + 2 + r), vr(V_SW + 3 + r)
        g0, g1 = vr(gt[1] + r), vr(gt[1] + r + 1)
        if ut[0] == 'a':
            o.append(Ins('v_accvgpr_read_b32 %s, %s' % (pa, ar(ut[1] + r))))
            o.append(Ins('v_accvgpr_read_b32 %s, %s' % (pb, ar(ut[1] + r + 1))))
            u0, u1 = pa, pb
        else:
            u0, u1 = vr(ut[1] + r), vr(ut[1] + r + 1)
        if OPT.get('fold', 0):
            o.append(Ins('v_exp_f32 %s, %s' % (ta, g0)))
            o.append(Ins('v_exp_f32 %s, %s' % (tb, g1)))
        else:
            o.append(Ins('v_mul_f32 %s, %s, %s' % (ta, sr(S_NL), g0)))
            o.append(Ins('v_mul_f32 %s, %s, %s' % (tb, sr(S_NL), g1)))
            o.append(Ins('v_exp_f32 %s, %s' % (ta, ta)))
            o.append(Ins('v_exp_f32 %s, %s' % (tb, tb)))
        o.append(Ins('v_mul_f32 %s, %s, %s' % (pa, g0, u0)))
        o.append(Ins('v_mul_f32 %s, %s, %s' % (pb, g1, u1)))
        o.append(Ins('v_add_f32 %s, 1.0, %s' % (ta, ta)))
        o.append(Ins('v_add_f32 %s, 1.0, %s' % (tb, tb)))
        o.append(Ins('v_rcp_f32 %s, %s' % (ta, ta)))
        o.append(Ins('v_rcp_f32 %s, %s' % (tb, tb)))
        o.append(Ins('v_mul_f32 %s, %s, %s' % (pa, pa, ta)))
        o.append(Ins('v_mul_f32 %s, %s, %s' % (pb, pb, tb)))
    for r in (0, 2):
        o.append(Ins('v_cvt_pk_bf16_f32 %s, %s, %s' % (vr(pk + r // 2), vr(V_SW + 2 + r), vr(V_SW + 3 + r))))
    rel = [ut] + ([gt] if b % 2 == 1 else [])
    if b % 2 == 1:
        o.append(Ins('buffer_store_dwordx4 %s, %s, %s, %s offen offset:%d sc1' % (
            vr(pk - 2, 4), vr(V_L16), sr(S_H, 4), sr(S_HS + qb), (b // 2) * 1024), lds=('H', 0)))
        if OPT.get('plain_h'):
            o[-1].text = o[-1].text.replace(' sc1', '')
        rel.append(FT[(2 * (b - 1), qb)])
    elif b == 8:
        o.append(Ins('buffer_store_dwordx2 %s, %s, %s, %s offen sc1' % (
            vr(pk, 2), vr(V_L16), sr(S_H, 4), sr(S_HS + 4 + qb)), lds=('H', 0)))
        if OPT.get('plain_h'):
            o[-1].text = o[-1].text.replace(' sc1', '')
    o[0].ready = ready
    o[-1].on_emit = lambda: pool.extend(t for t in rel if not (t[0] == 'v' and t[1] >= V_Q))
    return o


def qcvt_unit(qb, s, QT, ready):
    o = []
    for h in range(2):
        tl = QT[(2 * s + h, qb)]
        tm = [vr(V_SW + e) for e in range(4)]
        for e in range(4):
            if tl[0] == 'a':
                o.append(Ins('v_accvgpr_read_b32 %s, %s' % (tm[e], ar(tl[1] + e))))
        for e in range(4):
            o.append(Ins('v_mul_f32 %s, %s, %s' % (tm[e], sr(S_C), tm[e] if tl[0] == 'a' else vr(tl[1] + e))))
        for e in range(2):
            o.append(Ins('v_cvt_pk_bf16_f32 %s, %s, %s' % (vr(V_Q + (qb * 4 + s) * 4 + 2 * h + e), tm[2 * e], tm[2 * e + 1])))
    o[0].ready = ready
    return o


class GemmSeq:
    def __init__(self, p, g):
        self.p, self.g = p, g
        self.groups = []

    def add(self, reads, nfr, mf, hook=None, bar=None, bwait=None, cap=2):
        self.groups.append(dict(reads=reads, n=nfr, mf=mf, hook=hook, bar=bar, bwait=bwait, cap=cap))

    def run(self):
        G, g, p = self.groups, self.g, self.p
        pos = 0
        for x in G:
            if x['n'] == 16 and pos % 16:
                pos += 8
            x['dst'] = A_A + pos % 32
            pos += x['n']
        for k, x in enumerate(G):
            regs = lambda y: set(range(y['dst'], y['dst'] + y['n']))
            ld = 1
            if k >= 2 and not (regs(x) & regs(G[k - 1])) and not (regs(x) & regs(G[k - 2])) and G[k - 1]['n'] == 8:
                ld = 2
            assert k == 0 or not (regs(x) & regs(G[k - 1]))
            x['at'] = k - ld
        for x in G:
            if x['at'] < 0:
                if x['bar']:
                    p.need(*x['bar'])
                    p('s_barrier')
                for i in x['reads'](x['dst']):
                    p.add(i)
        for k, x in enumerate(G):
            if x['hook']:
                x['hook']()
            todo = [y for y in G if y['at'] == k]
            rd, bar = [], []
            for y in todo:
                rd += y['reads'](y['dst'])
                if y['bar'] is not None:
                    bar += y['bar']
            hasbar = any(y['bar'] is not None for y in todo)
            mfs = x['mf'](x['dst'])
            n = len(mfs)
            st = 3 if hasbar else 0
            step = 2 if (st + 2 * ((len(rd) + 1) // 2) <= n - 1) else 1
            for t in range(n):
                sc, ld = [], []
                if hasbar and t == 1:
                    sc = [need_ins(('lgkm', 'all'), *bar)]
                if hasbar and t == 2:
                    sc = [Ins('s_barrier')]
                if t >= st and (t - st) % step == 0 and rd:
                    ld = rd[:2]
                    rd = rd[2:]
                if t == n - 1 and k + 1 < len(G):
                    y = G[k + 1]
                    bw = y['bwait']() if callable(y['bwait']) else (y['bwait'] or [])
                    w = [ar(y['dst'], y['n'])] + bw
                    sc = [wait_ins(*w)]
                g.gap(mfs[t](), sc, ld, cap=x['cap'])
                if hasbar and t == 2:
                    for y in todo:
                        if y.get('post'):
                            y['post']()
            assert not rd


V_DOWS = [22, 23, 24, 25, 26, 27, 248, 249, 250]
V_DRA = 40
V_DA = 56
V_AC2, V_AC1 = 104, 176
V_PK = 4
A_DB = 128
SPIN_BLOCKS = []


def poll_issue(soff):
    return Ins('buffer_load_dword %s, %s, %s, %s offen sc1' % (vr(V_FV), vr(V_FOFF), sr(S_FL, 4), sr(soff)))


def poll_check(p, name, soff, cmp='v_cmp_eq_u32 vcc, 0'):
    SPIN_BLOCKS.append("""L_spin_%(n)s:
 s_mov_b32 s3, 0
L_spin_%(n)s_l:
 s_sleep 4
 buffer_load_dword %(v)s, %(o)s, %(srd)s, %(so)s offen sc1
 s_add_u32 s3, s3, 1
 s_cmp_gt_u32 s3, 0x40000
 s_cbranch_scc1 L_ok_%(n)s
 s_waitcnt vmcnt(0)
 %(cmp)s, %(v)s
 s_cbranch_vccnz L_spin_%(n)s_l
 s_branch L_ok_%(n)s""" % dict(n=name, v=vr(V_FV), o=vr(V_FOFF), srd=sr(S_FL, 4), so=sr(soff), cmp=cmp))
    p('%s, %s' % (cmp, vr(V_FV)))
    p('s_cbranch_vccnz L_spin_%s' % name)
    p.label('L_ok_%s' % name)


def flag_store(soff, tag):
    return Ins('buffer_store_dword %s, %s, %s, %s offen sc1' % (
        vr(V_ONE), vr(V_FST), sr(S_FL, 4), sr(soff)), lds=('flag', (tag, 0)))


_ct = [0]


def code_touch(label, vo, vd, sp):
    _ct[0] += 1
    n = 'L_ct%d' % _ct[0]
    blk = Ins('; raw')
    blk.rawtext = (' s_getpc_b64 %(p)s\n%(n)s:\n s_add_u32 %(lo)s, %(lo)s, %(l)s-%(n)s\n s_addc_u32 %(hi)s, %(hi)s, 0' %
                   dict(p=sr(sp, 2), n=n, lo=sr(sp), hi=sr(sp + 1), l=label))
    return [blk,
            Ins('s_lshr_b32 s3, s2, 3'),
            Ins('s_lshl_b32 s3, s3, 11'),
            Ins('v_and_b32 %s, 15, %s' % (vr(vo), L)),
            Ins('v_lshlrev_b32 %s, 7, %s' % (vr(vo), vr(vo))),
            Ins('v_add_u32 %s, s3, %s' % (vr(vo), vr(vo))),
            Ins('v_min_u32 %s, L_code_end-%s-4, %s' % (vr(vo), label, vr(vo))),
            Ins('global_load_dword %s, %s, %s' % (vr(vd), vr(vo), sr(sp, 2)))]


def sadd(r, k):
    return Ins('s_add_u32 %s, %s, %d' % (sr(r), sr(r), k))


def d_dma(c):
    out = []
    for i in range(9):
        if i % 4 == 0:
            out.append(Ins('s_mov_b32 %s, %d' % (T(8), c * 36864 + (i // 4) * 4096)))
            out.append(Ins('s_add_u32 m0, %s, %d' % (sr(S_M1), DS(c)[0] + (i // 4) * 4096)))
        out.append(Ins('buffer_load_dwordx4 %s, %s, %s offen offset:%d sc1 lds' % (
            vr(V_L16), sr(S_DW2, 4), T(8), (i % 4) * 1024), lds=(DS(c), ('D', c))))
    return out


def d_bloads(c):
    srd, loc, rbs = (S_DH, c, HS()) if c < 9 else (S_DO, c - 9, OS())
    out = []
    for rb in range(2):
        out.append(Ins('s_mov_b32 %s, %d' % (T(9 + rb), loc * 4096 + rb * rbs)))
        for ks in range(4):
            out.append(Ins('buffer_load_dwordx4 %s, %s, %s, %s offen offset:%d sc1' % (
                ar(A_DB + (c % 4) * 32 + (rb * 4 + ks) * 4, 4), vr(V_L16), sr(srd, 4), T(9 + rb), ks * 1024)))
    return out


def d_reads(c, nb):
    return [Ins('ds_read_b64_tr_b16 %s, %s offset:%d' % (
        vr(V_DA + (nb % 3) * 16 + ks * 4 + 2 * j, 2), vr(V_DRA + c % 4), (32 * ks + 16 * j) * 288 + 32 * nb),
        lds=(DS(c), ('D', c))) for ks in range(4) for j in range(2)]


def d_pstore(gemm, nb):
    acc = (V_AC2 if gemm else V_AC1) + nb * 8
    pk = V_PK + (nb % 3) * 4
    out = []
    if nb % 4 == 0:
        out.append(Ins('s_mov_b32 %s, %d' % (T(nb // 4), gemm * PG + (nb // 4) * 4096)))
    for e in range(4):
        out.append(Ins('v_cvt_pk_bf16_f32 %s, %s, %s' % (vr(pk + e), vr(acc + 2 * e), vr(acc + 2 * e + 1))))
    out.append(Ins('buffer_store_dwordx4 %s, %s, %s, %s offen offset:%d sc1' % (
        vr(pk, 4), vr(V_L16), sr(S_DP, 4), T(nb // 4), (nb % 4) * 1024), lds=('PT%d' % gemm, 0)))
    return out


def d_ploads(gemm, base):
    out = []
    for k in range(3):
        for sp in range(4):
            t = T(4 + (k * 4 + sp) % 2)
            if k < 2:
                out.append(Ins('s_mov_b32 %s, %d' % (t, gemm * PG + sp * 4 * 9216 + k * 4096)))
            else:
                out.append(Ins('s_add_u32 %s, %s, %d' % (t, sr(S_OFFQ), gemm * PG + sp * 4 * 9216 + k * 4096)))
            out.append(Ins('buffer_load_dwordx4 %s, %s, %s, %s offen sc1' % (
                vr(base + (k * 4 + sp) * 4, 4), vr(V_L16), sr(S_DR, 4), t)))
    return out


def d_sum(base, k, dst, tmp):
    out = []
    for e in range(4):
        for sp in range(4):
            src = vr(base + (k * 4 + sp) * 4 + e)
            lo = vr(dst + 2 * e) if sp == 0 else vr(tmp)
            hi = vr(dst + 2 * e + 1) if sp == 0 else vr(tmp + 1)
            out.append(Ins('v_lshlrev_b32 %s, 16, %s' % (lo, src)))
            out.append(Ins('v_and_b32 %s, 0xffff0000, %s' % (hi, src)))
            if sp:
                out.append(Ins('v_add_f32 %s, %s, %s' % (vr(dst + 2 * e), vr(dst + 2 * e), lo)))
                out.append(Ins('v_add_f32 %s, %s, %s' % (vr(dst + 2 * e + 1), vr(dst + 2 * e + 1), hi)))
    return out


def d_scalar_setup1():
    o = []
    a = lambda s: o.append(Ins(s))
    a('s_mul_i32 %s, %s, 288' % (T(1), sr(S_W)))
    a('s_lshl_b32 %s, %s, 6' % (T(0), sr(S_SP)))
    a('s_add_u32 %s, %s, %s' % (T(0), T(0), sr(S_TILE)))
    a('s_mul_i32 %s, %s, %d' % (T(2), T(0), 18 * 1152))
    a('s_add_u32 %s, %s, %s' % (T(2), T(2), T(1)))
    o += srd_ins(S_A1, P_W2, T(2), 17 * 1152 + 288)
    a('s_mul_i32 %s, %s, %d' % (T(2), T(0), 16 * 1152))
    a('s_add_u32 %s, %s, %s' % (T(2), T(2), T(1)))
    o += srd_ins(S_A2, P_WO, T(2), 15 * 1152 + 288)
    a('s_lshl_b32 %s, %s, 2' % (T(0), sr(S_SP)))
    a('s_add_u32 %s, %s, %s' % (T(1), T(0), sr(S_W)))
    a('s_mul_i32 %s, %s, %d' % (T(1), T(1), 2176 * 288))
    a('s_add_u32 %s, %s, 0x%x' % (T(1), T(1), WS_W))
    a('s_mul_i32 %s, %s, %d' % (T(2), sr(S_TILE), 18 * 288))
    a('s_add_u32 %s, %s, %s' % (T(2), T(2), T(1)))
    o += srd_ins(S_A3, P_WS, T(2), 18 * 288)
    a('s_mul_i32 %s, %s, %d' % (T(2), sr(S_TILE), 16 * 288))
    a('s_add_u32 %s, %s, %s' % (T(2), T(2), T(1)))
    a('s_add_u32 %s, %s, %d' % (T(2), T(2), 1152 * 288))
    o += srd_ins(S_A4, P_WS, T(2), 16 * 288)
    a('s_mov_b32 %s, 0' % sr(S_RO))
    a('s_and_b32 %s, %s, 3' % (T(1), sr(S_TILE)))
    a('s_add_u32 %s, %s, %s' % (T(1), T(0), T(1)))
    a('s_mul_i32 %s, %s, %d' % (T(1), T(1), 2176 * 288))
    a('s_add_u32 %s, %s, %s' % (T(1), T(1), sr(S_M1)))
    a('s_add_u32 %s, %s, 0x%x' % (T(1), T(1), WS_W))
    o += srd_ins(S_DW2, P_WS, T(1), 16 * 36864 + 9216)
    a('s_lshr_b32 %s, %s, 2' % (T(4), sr(S_TILE)))
    a('s_lshl_b32 %s, %s, 2' % (T(5), T(4)))
    a('s_add_u32 %s, %s, %s' % (T(5), T(5), sr(S_W)))
    a('s_mul_i32 %s, %s, %d' % (T(2), T(5), 2 * HS()))
    a('s_mul_i32 %s, %s, %d' % (T(3), sr(S_SP), 36 * 1024))
    a('s_add_u32 %s, %s, %s' % (T(2), T(2), T(3)))
    a('s_add_u32 %s, %s, 0x%x' % (T(2), T(2), WS_H))
    o += srd_ins(S_DH, P_WS, T(2), HS() + 36 * 1024)
    a('s_mul_i32 %s, %s, %d' % (T(2), T(5), 2 * OS()))
    a('s_lshl_b32 %s, %s, 15' % (T(3), sr(S_SP)))
    a('s_add_u32 %s, %s, %s' % (T(2), T(2), T(3)))
    a('s_add_u32 %s, %s, 0x%x' % (T(2), T(2), WS_O))
    o += srd_ins(S_DO, P_WS, T(2), OS() + 32 * 1024)
    return o


def d_scalar_setup2():
    o = []
    a = lambda s: o.append(Ins(s))
    a('s_lshl_b32 %s, %s, 2' % (T(2), sr(S_TILE)))
    a('s_add_u32 %s, %s, %s' % (T(2), T(2), sr(S_SP)))
    a('s_lshl_b32 %s, %s, 7' % (sr(S_FT), T(2)))
    a('s_add_u32 %s, %s, 0x10000' % (sr(S_FT), sr(S_FT)))
    a('s_lshl_b32 %s, %s, 2' % (T(2), T(2)))
    a('s_add_u32 %s, %s, %s' % (T(2), T(2), sr(S_W)))
    a('s_mul_i32 %s, %s, 9216' % (T(2), T(2)))
    a('s_add_u32 %s, %s, 0x%x' % (T(2), T(2), WS_P))
    o += srd_ins(S_DP, P_WS, T(2), PG + 9216)
    a('s_lshl_b32 %s, %s, 4' % (T(2), sr(S_TILE)))
    a('s_add_u32 %s, %s, %s' % (T(2), T(2), sr(S_SP)))
    a('s_mul_i32 %s, %s, 9216' % (T(2), T(2)))
    a('s_lshl_b32 %s, %s, 10' % (T(3), sr(S_W)))
    a('s_add_u32 %s, %s, %s' % (T(2), T(2), T(3)))
    a('s_add_u32 %s, %s, 0x%x' % (T(2), T(2), WS_P))
    o += srd_ins(S_DR, P_WS, T(2), PG + 14 * 9216)
    a('s_and_b32 %s, %s, 3' % (T(1), sr(S_TILE)))
    a('s_mul_i32 %s, %s, 288' % (T(1), T(1)))
    a('s_andn2_b32 %s, %s, 3' % (T(2), sr(S_TILE)))
    a('s_add_u32 %s, %s, %s' % (T(2), T(2), sr(S_SP)))
    a('s_mul_i32 %s, %s, %d' % (T(2), T(2), 32 * 1152))
    a('s_add_u32 %s, %s, %s' % (T(2), T(2), T(1)))
    o += srd_ins(S_DX, P_X, T(2), 31 * 1152 + 288)
    o += srd_ins(S_DOUT, P_OUT, T(2), 31 * 1152 + 288)
    a('s_lshl_b32 %s, %s, 28' % (sr(S_OFFQ), sr(S_W)))
    a('s_mov_b32 %s, 0x%x' % (sr(S_C), f2u(LOG2E * LOG2E)))
    a('s_mul_i32 %s, %s, %d' % (sr(S_HS), sr(S_W), 4 * OS()))
    for qb in range(1, 4):
        a('s_add_u32 %s, %s, 0x%x' % (sr(S_HS + qb), sr(S_HS), qb * OS()))
    a('s_lshl_b32 %s, %s, 5' % (sr(S_HS + 4), sr(S_W)))
    a('s_add_u32 %s, %s, %d' % (sr(S_HS + 5), sr(S_HS + 4), 16 * 1152))
    a('s_lshl_b32 %s, %s, 20' % (sr(S_HS + 6), sr(S_W)))
    a('s_add_u32 %s, %s, %d' % (sr(S_HS + 7), sr(S_HS + 6), 16 * 1152))
    return o


V_RN, V_RV = 20, 21
V_RQ = (248, 36)


def repack_pat():
    return [Ins('v_mul_u32_u24 %s, 3641, %s' % (vr(V_RV), vr(V_RN))),
            Ins('v_lshrrev_b32 %s, 16, %s' % (vr(V_RV), vr(V_RV))),
            Ins('v_mul_u32_u24 %s, 864, %s' % (vr(V_RV), vr(V_RV))),
            Ins('v_lshl_add_u32 %s, %s, 4, %s' % (vr(V_RV), vr(V_RN), vr(V_RV))),
            Ins('v_add_u32 %s, 64, %s' % (vr(V_RN), vr(V_RN)))]


def o_epilogue_unit(qb, t, n, ready):
    base = 184 + (n % 4) * 12
    o = []
    for r in range(8):
        o.append(Ins('v_accvgpr_read_b32 %s, %s' % (vr(base + r), ar(A_O + ((2 * t + r // 4) * 4 + qb) * 4 + r % 4))))
    for r in range(8):
        o.append(Ins('v_mul_f32 %s, %s, %s' % (vr(base + r), vr(base + r), vr(V_L + qb))))
    for r in range(4):
        o.append(Ins('v_cvt_pk_bf16_f32 %s, %s, %s' % (vr(base + 8 + r), vr(base + 2 * r), vr(base + 2 * r + 1))))
    o.append(Ins('buffer_store_dwordx4 %s, %s, %s, %s offen offset:%d%s' % (
        vr(base + 8, 4), vr(V_L16), sr(S_O, 4), sr(S_HS + qb), t * 1024, '' if OPT.get('plain_o', 0) else ' sc1'), lds=('O', 0)))
    o[0].ready = ready
    return o


def gen_slow_softmax():
    p = Prog()
    KA, VA, OK, OV, NM, MX = 120, 124, 132, 136, 140, 138
    NM = 44
    NM, OV, MX = 136, 32, 36
    p.label('L_slow')
    p('s_waitcnt vmcnt(0) lgkmcnt(0)')
    p('s_nop 15')
    p('s_add_u32 %s, %s, %d' % (T(0), sr(S_MK), 112 * 1024))
    p('s_cmp_eq_u32 %s, 3' % sr(S_W))
    p('s_cselect_b32 %s, %d, %s' % (T(0), 72 * 1024, T(0)))
    p('s_sub_u32 %s, %s, 0x10000' % (T(1), T(0)))
    for k in range(4):
        p('v_add_u32 %s, %s, %s' % (vr(KA + k), T(0), vr(V_KA + k)))
        p('v_subrev_u32 %s, %s, %s' % (vr(OK + k), sr(S_MK), vr(V_OK + k)))
    for k in range(8):
        p('v_add_u32 %s, %s, %s' % (vr(VA + k), T(1), vr(V_VA + k)))
    for k in range(2):
        p('v_subrev_u32 %s, %s, %s' % (vr(OV + k), sr(S_MK), vr(V_OV + k)))

    def load16(srd, vo, nvo):
        p('s_mov_b32 m0, %s' % T(0))
        for cc in range(4):
            p('buffer_load_dwordx4 %s, %s, %s offen offset:%d lds' % (vr(vo + cc % nvo), sr(srd, 4), T(2), cc * 1024))
        p('s_add_u32 %s, %s, 4096' % (T(2), T(2)))
        p('s_waitcnt vmcnt(0)')

    def qk(cin):
        p('s_mov_b32 %s, %s' % (T(2), T(3)))
        for kb in range(4):
            load16(S_K, OK, 4)
            for sx in range(4):
                p('ds_read_b128 %s, %s' % (ar(A_VF + (kb * 4 + sx) * 4, 4), vr(KA + sx)))
            p('s_waitcnt lgkmcnt(0)')
        for kb in range(4):
            for qb in range(4):
                for sx in range(4):
                    d = vr(Sreg(kb, qb), 4)
                    p('%s %s, %s, %s, %s' % (MF, d, ar(A_VF + (kb * 4 + sx) * 4, 4), vr(V_Q + (qb * 4 + sx) * 4, 4),
                                             cin(qb) if sx == 0 else d))
    for qb in range(4):
        p('v_mov_b32 %s, 0xff7fffff' % vr(MX + qb))
    p('s_mov_b32 %s, 0' % T(3))
    p.loop_begin(2, 's1')
    p.label('L_slow1')
    qk(lambda qb: '0')
    for qb in range(4):
        regs = [vr(Sreg(kb, qb) + r) for kb in range(4) for r in range(4)]
        for k in range(8):
            p('v_max3_f32 %s, %s, %s, %s' % (vr(MX + qb), vr(MX + qb), regs[2 * k], regs[2 * k + 1]))
    p('s_add_u32 %s, %s, 16384' % (T(3), T(3)))
    p('s_cmp_lt_u32 %s, 0x80000' % T(3))
    p('s_cbranch_scc1 L_slow1')
    p.loop_end()
    for x in xlane4('v_max_f32', [vr(MX + k) for k in range(4)], [vr(V_E + k) for k in range(4)]):
        p.add(x)
    for qb in range(4):
        for r in range(4):
            p('v_sub_f32 %s, 0, %s' % (vr(NM + qb * 4 + r), vr(MX + qb)))
        p('v_mov_b32 %s, 0' % vr(V_L + qb))
    for i in range(128):
        p('v_accvgpr_write_b32 %s, 0' % ar(A_O + i))
    p('s_mov_b32 %s, 0' % T(3))
    lp = p.loop_begin(3, 's2')
    p.label('L_slow2')
    qk(lambda qb: vr(NM + qb * 4, 4))
    for i in range(64):
        for x in sm_instrs(1, i):
            if x is not None:
                p.add(x)
    p('s_cmp_eq_u32 %s, 0x7c000' % T(3))
    p('s_cbranch_scc1 L_slow_done')
    p.loop_mark_exit(lp)
    p('s_mov_b32 %s, %s' % (T(2), T(3)))
    for ks in range(2):
        for j in range(2):
            load16(S_V, OV, 2)
            for db in range(8):
                p('ds_read_b64_tr_b16 %s, %s' % (ar(A_VF + db * 8 + ks * 4 + 2 * j, 2), vr(VA + db)))
            p('s_waitcnt lgkmcnt(0)')
    for db in range(8):
        for qb in range(4):
            for ks in range(2):
                o = ar(A_O + (db * 4 + qb) * 4, 4)
                p('%s %s, %s, %s, %s' % (MF, o, ar(A_VF + db * 8 + ks * 4, 4), vr(Preg(1, qb, ks), 4), o))
    p('s_add_u32 %s, %s, 16384' % (T(3), T(3)))
    p('s_branch L_slow2')
    p.loop_end()
    p.label('L_slow_done')
    for db in range(4):
        for ks in range(2):
            for j in range(2):
                x = v_load(31, db, ks, j, False)
                x.lds = None
                p.add(x)
    p('s_waitcnt vmcnt(0) lgkmcnt(0)')
    p('s_nop 15')
    p('s_branch L_slow_ret')
    p.finalize()
    return p.text().rstrip('\n')


def gen_main(diag=False):
    p = Prog()
    del SPIN_BLOCKS[:]
    _ct[0] = 0

    def stamp(k):
        if diag:
            p('s_memtime %s' % sr(S_DG, 2))
            p('s_waitcnt lgkmcnt(0)')
            p('v_writelane_b32 v1, %s, %d' % (sr(S_DG), k))
            p('s_memrealtime %s' % sr(S_DG, 2))
            p('s_waitcnt lgkmcnt(0)')
            p('v_writelane_b32 v1, %s, %d' % (sr(S_DG), k + 16))

    def addall(lst):
        for x in lst:
            p.add(x)
    p('s_cmp_ge_u32 s2, 256')
    p('s_cbranch_scc1 L_end')
    p('s_load_dwordx4 s[44:47], s[0:1], 48')
    p('s_load_dwordx2 %s, s[0:1], 88' % sr(P_WS, 2))
    p('s_load_dwordx4 s[36:39], s[0:1], 8')
    p('s_load_dwordx2 s[40:41], s[0:1], 24')
    p('s_load_dwordx2 %s, s[0:1], 0' % sr(P_X, 2))
    p('s_load_dwordx2 %s, s[0:1], 32' % sr(P_WO, 2))
    p('s_load_dwordx4 %s, s[0:1], 64' % sr(P_W2, 4))
    stamp(0)
    p('v_and_b32 %s, 63, v0' % L)
    p('v_lshrrev_b32 %s, 6, v0' % t0)
    p('v_readfirstlane_b32 %s, %s' % (sr(S_W), t0))
    p('s_and_b32 %s, s2, 3' % T(0))
    p('s_lshl_b32 %s, %s, 3' % (T(0), T(0)))
    p('s_bfe_u32 %s, s2, 0x30003' % T(1))
    p('s_add_u32 %s, %s, %s' % (sr(S_HD), T(0), T(1)))
    p('s_and_b32 %s, s2, 4' % T(0))
    p('s_lshr_b32 %s, s2, 6' % T(1))
    p('s_add_u32 %s, %s, %s' % (sr(S_QT), T(0), T(1)))
    p('v_lshlrev_b32 %s, 4, %s' % (vr(V_L16), L))
    p('s_and_b32 %s, %s, 1' % (T(2), sr(S_HD)))
    p('s_lshl_b32 %s, %s, 1' % (T(2), T(2)))
    p('v_add_u32 %s, %s, %s' % (t3, T(2), L))
    p('v_mul_u32_u24 %s, 3641, %s' % (vr(V_T + 4), L))
    p('v_mul_u32_u24 %s, 3641, %s' % (vr(V_T + 5), t3))
    p('s_movk_i32 %s, 9216' % T(9))
    p('s_movk_i32 %s, -288' % T(10))
    vo = []
    for i in range(9):
        o = []
        o.append(Ins('v_add_u32 %s, %d, %s' % (t0, 64 * i * 3641, vr(V_T + 4))))
        o.append(Ins('v_add_u32 %s, %d, %s' % (t1, 64 * i * 3641, vr(V_T + 5))))
        o.append(Ins('v_lshrrev_b32 %s, 16, %s' % (t0, t0)))
        o.append(Ins('v_lshrrev_b32 %s, 16, %s' % (t1, t1)))
        o.append(Ins('v_lshlrev_b32 %s, 4, %s' % (t2, t3)) if i == 0 else Ins('v_add_u32 %s, %d, %s' % (t2, 4096 if i % 4 == 0 else 0, t2)))
        o.append(Ins('v_mad_u32_u24 %s, %s, %s, %s' % (t0, t0, T(9), t2)))
        o.append(Ins('v_mad_i32_i24 %s, %s, %s, %s' % (vr(V_OW + i), t1, T(10), t0)))
        if i % 4:
            del o[4]
        vo.append(o)
    for o in vo[:4]:
        addall(o)
    p('s_mul_i32 %s, %s, 9216' % (sr(S_M1), sr(S_W)))
    p('s_and_b32 %s, %s, 1' % (T(3), sr(S_W)))
    p('s_mul_i32 %s, %s, %d' % (sr(S_OFFW), T(3), 32 * 9216))
    p('s_mul_i32 %s, %s, 288' % (T(2), sr(S_HD)))
    p('s_sub_u32 %s, %d, %s' % (T(3), 576 * 9216, T(2)))
    p('s_lshl_b32 %s, %s, 2' % (T(6), sr(S_QT)))
    p('s_add_u32 %s, %s, %s' % (T(6), T(6), sr(S_W)))
    p('s_mul_i32 %s, %s, %d' % (T(7), T(6), 4 * 18 * 1024))
    p('s_cmp_lt_u32 %s, 2' % sr(S_W))
    p('s_waitcnt lgkmcnt(0)')
    p('s_cselect_b32 s48, s44, s46')
    p('s_cselect_b32 s49, s45, s47')
    make_srd(p, S_WS, 48, T(2), T(3))
    make_srd(p, S_XN, P_WS, T(7), 4 * 18 * 1024)
    d0 = p1_dma(0)
    addall(d0[:6])
    for o in vo[4:]:
        addall(o)
    addall(d0[6:] + xn_loads(0, 0))
    if OPT.get('pro', 1) == 0:
        addall(p1_dma(1) + xn_loads(1, 1) + p1_dma(2))
    PF0 = OPT.get('pf0', 12)
    assert PF0 % 2 == 0
    p('s_lshr_b32 %s, s2, 3' % T(0))
    p('s_and_b32 %s, s2, 3' % T(1))
    p('s_lshl_b32 %s, %s, 1' % (T(2), T(0)))
    p('s_and_b32 %s, %s, 1' % (T(3), sr(S_W)))
    p('s_add_u32 %s, %s, %s' % (T(2), T(2), T(3)))
    p('s_mul_i32 %s, %s, 9216' % (T(2), T(2)))
    p('s_mul_i32 %s, %s, 2304' % (T(3), T(1)))
    p('s_add_u32 %s, %s, %s' % (T(2), T(2), T(3)))
    p('s_sub_u32 %s, %d, %s' % (T(9), 576 * 9216, T(2)))
    p('s_lshl_b32 %s, %s, 2' % (T(4), T(0)))
    p('s_add_u32 %s, %s, %s' % (T(4), T(4), sr(S_W)))
    p('s_lshl_b32 %s, %s, 13' % (T(4), T(4)))
    p('s_lshl_b32 %s, %s, 11' % (T(3), T(1)))
    p('s_add_u32 %s, %s, %s' % (T(4), T(4), T(3)))
    p('s_sub_u32 %s, %d, %s' % (T(10), 576 * 8192, T(4)))
    p('s_lshl_b32 %s, %s, 19' % (T(5), sr(S_HD)))
    make_srd(p, S_K, 36, T(5), 0x80000)
    make_srd(p, S_V, 38, T(5), 0x80000)
    p('s_lshl_b32 %s, %s, 8' % (T(5), sr(S_HD)))
    p('s_sub_u32 %s, %d, %s' % (T(3), 576 * 8192, T(5)))
    make_srd(p, S_WQ, 40, T(5), T(3))
    make_srd(p, S_A1, 48, T(2), T(9))
    make_srd(p, S_A2, 40, T(4), T(10))
    p('v_lshlrev_b32 %s, 7, %s' % (t1, L))
    p('v_mov_b32 %s, 0x7f000000' % t2)
    p('v_cmp_gt_u32 vcc, 18, %s' % L)
    p('v_cndmask_b32 %s, %s, %s, vcc' % (vr(V_SW), t2, t1))
    p('v_cmp_gt_u32 vcc, 16, %s' % L)
    p('v_cndmask_b32 %s, %s, %s, vcc' % (vr(V_SW + 1), t2, t1))
    tw = lambda c: [Ins('s_mov_b32 %s, %d' % (T(7), c * 64 * 9216)),
                    Ins('buffer_load_dword %s, %s, %s, %s offen sc0' % (vr(V_SW + 2), vr(V_SW), sr(S_A1, 4), T(7)))]
    tq = lambda k: [Ins('s_mov_b32 %s, %d' % (T(7), k * 128 * 8192)),
                    Ins('buffer_load_dword %s, %s, %s, %s offen sc0' % (vr(V_SW + 3), vr(V_SW + 1), sr(S_A2, 4), T(7)))]
    touch = {c: [] for c in range(7)}
    for k, c in enumerate(range(PF0 // 2, 9)):
        touch[min(k, 6)] += tw(c)
    for k in range(5):
        touch[k + OPT.get('tq0', 0)] += tq(4 - k)
    for c in touch:
        for x in touch[c]:
            x.wr = [r for r in x.wr if r[0] != 'v']
    if not OPT.get('pf1', 1):
        touch = {}
    if OPT.get('fold', 0):
        p('s_mov_b32 %s, 0x%x' % (sr(S_C), f2u(-1.0 / 128 ** 0.5)))
        p('s_mov_b32 %s, 0x%x' % (sr(S_NL), f2u(-1.0 / LOG2E)))
    else:
        p('s_mov_b32 %s, 0x%x' % (sr(S_C), f2u(LOG2E / 128 ** 0.5)))
        p('s_mov_b32 %s, 0x%x' % (sr(S_NL), f2u(-LOG2E)))
    p('s_lshl_b32 %s, %s, 12' % (sr(S_MK), sr(S_W)))
    p('s_add_u32 %s, %s, 0x10000' % (sr(S_MV), sr(S_MK)))
    p('s_mov_b32 %s, 0' % sr(S_OFFK))
    p('s_mov_b32 %s, 0' % sr(S_OFFV))
    p('v_lshrrev_b32 %s, 2, %s' % (t0, L))
    p('v_mul_u32_u24 %s, 288, %s' % (t1, t0))
    p('v_and_b32 %s, 3, %s' % (t2, L))
    p('v_lshl_add_u32 %s, %s, 3, %s' % (vr(V_A1), t2, t1))
    for k in range(1, 4):
        p('v_add_u32 %s, %d, %s' % (vr(V_A1 + k), k * 36864, vr(V_A1)))
    p('v_and_b32 %s, 15, %s' % (t0, L))
    p('v_lshrrev_b32 %s, 4, %s' % (t1, L))
    p('v_lshlrev_b32 %s, 1, %s' % (t3, t1))
    p('v_xor_b32 %s, %s, %s' % (t3, t0, t3))
    p('v_lshlrev_b32 %s, 4, %s' % (t3, t3))
    p('v_lshl_add_u32 %s, %s, 13, %s' % (vr(V_OQ), t1, t3))
    p('v_xor_b32 %s, 128, %s' % (vr(V_OQ + 1), vr(V_OQ)))
    p('s_lshl_b32 %s, %s, 17' % (sr(S_OFFQ), sr(S_W)))
    addall(kv_dma_setup())
    p('s_mul_i32 %s, %s, %d' % (T(3), T(6), 4 * HS()))
    p('s_add_u32 %s, %s, 0x%x' % (T(3), T(3), WS_H))
    make_srd(p, S_H, P_WS, T(3), 4 * HS())
    p('s_mul_i32 %s, %s, %d' % (T(3), sr(S_QT), 16 * OS()))
    p('s_lshl_b32 %s, %s, 12' % (T(4), sr(S_HD)))
    p('s_add_u32 %s, %s, %s' % (T(3), T(3), T(4)))
    p('s_add_u32 %s, %s, 0x%x' % (T(3), T(3), WS_O))
    p('s_sub_u32 %s, %d, %s' % (T(5), 16 * OS(), T(4)))
    make_srd(p, S_O, P_WS, T(3), T(5))
    p('s_mov_b32 %s, 0x%x' % (T(3), WS_F))
    make_srd(p, S_FL, P_WS, T(3), 4 * 32768)
    p('s_lshr_b32 %s, %s, 3' % (sr(S_SP), sr(S_HD)))
    p('s_and_b32 %s, %s, 7' % (T(0), sr(S_HD)))
    p('s_lshl_b32 %s, %s, 3' % (sr(S_TILE), sr(S_QT)))
    p('s_add_u32 %s, %s, %s' % (sr(S_TILE), sr(S_TILE), T(0)))
    p('s_lshl_b32 %s, %s, 6' % (T(0), sr(S_SP)))
    p('s_add_u32 %s, %s, %s' % (T(0), T(0), sr(S_TILE)))
    p('s_lshl_b32 %s, %s, 7' % (sr(S_FWG), T(0)))
    p('s_lshl_b32 %s, %s, 13' % (sr(S_FGR), sr(S_SP)))
    p('s_mul_i32 %s, %s, 9' % (T(2), sr(S_HD)))
    p('s_add_u32 %s, %s, 1' % (T(2), T(2)))
    p('s_lshr_b32 %s, %s, 1' % (T(2), T(2)))
    p('s_lshl_b32 %s, %s, 10' % (sr(S_HS), T(2)))
    p('s_bitcmp1_b32 %s, 0' % sr(S_HD))
    p('s_mov_b32 %s, 4096' % T(3))
    p('s_cselect_b32 %s, %d, %s' % (T(3), -1024 + 8, T(3)))
    p('s_add_u32 %s, %s, %s' % (sr(S_HS + 4), sr(S_HS), T(3)))
    for qb in range(1, 4):
        p('s_add_u32 %s, %s, %d' % (sr(S_HS + qb), sr(S_HS), qb * HS()))
        p('s_add_u32 %s, %s, %d' % (sr(S_HS + 4 + qb), sr(S_HS + 4), qb * HS()))
    if OPT.get('pro', 1) == 1:
        addall(p1_dma(1))
    stamp(1)

    if OPT.get('donly'):
        p('s_waitcnt vmcnt(0)')
        addall(d_scalar_setup1() + d_scalar_setup2() + k_read_setup() + v_read_setup())
        p('v_lshlrev_b32 %s, 20, v0' % vr(V_FST))
        p('v_mov_b32 %s, 1' % vr(V_ONE))
        p('v_lshlrev_b32 %s, 7, %s' % (vr(V_FOFF), L))
        p('v_mov_b32 %s, 0' % vr(V_RV))
        p('s_mov_b32 %s, 0' % sr(S_OFFW))
        for k in range(2, 7):
            stamp(k)
        p.raw(' s_branch L_donly')
    g = Gaps(p)
    seq = GemmSeq(p, g)
    pool = deque(('a', 72 + 4 * k) for k in range(14))

    def alloc():
        while not pool:
            x = (g.st or g.lo).popleft()
            g.over += max(1, cost(x))
            g.emit(x)
        for t in pool:
            if t[0] == 'v':
                pool.remove(t)
                return t
        return pool.popleft()

    XB = {}
    ring = lambda buf: [('a', A_B + buf * 32 + 4 * k) for k in range(8)]

    def xn_l(c, tiles):
        out = []
        for qb in range(4):
            out.append(Ins('s_mov_b32 %s, %d' % (T(qb), qb * 18 * 1024 + c * 2048)))
            for ks in range(2):
                out.append(Ins('buffer_load_dwordx4 %s, %s, %s, %s offen offset:%d' % (
                    rg(tiles[qb * 2 + ks]), vr(V_L16), sr(S_XN, 4), T(qb), ks * 1024)))
        return out

    def aq_setup():
        o = []
        a = lambda s: o.append(Ins(s))
        a('v_lshrrev_b32 %s, 2, %s' % (t0, L))
        a('v_and_b32 %s, 7, %s' % (t1, t0))
        a('v_lshlrev_b32 %s, 1, %s' % (t1, t1))
        a('v_and_b32 %s, 3, %s' % (t2, L))
        a('v_xor_b32 %s, %s, %s' % (t1, t1, t2))
        a('v_lshlrev_b32 %s, 4, %s' % (t1, t1))
        a('v_lshl_add_u32 %s, %s, 8, %s' % (vr(V_AQ), t0, t1))
        for s in range(1, 4):
            a('v_xor_b32 %s, %d, %s' % (vr(V_AQ + s), 64 * s, vr(V_AQ)))
        for rgn in range(1, 3):
            for s in range(4):
                a('v_add_u32 %s, 0x%x, %s' % (vr(V_AQ + rgn * 4 + s), rgn * 65536, vr(V_AQ + s)))
        return o

    def mk_mf(acc, chunks, xb, first):
        def mf(dst):
            out = []
            for qb in range(4):
                for ci, c in enumerate(chunks):
                    for ks in range(2):
                        def th(qb=qb, ci=ci, c=c, ks=ks):
                            a = rg(acc(qb))
                            cin = '0' if (first and ci == 0 and ks == 0) else a
                            return '%s %s, %s, %s, %s' % (MF, a, ar(dst + ci * 8 + ks * 4, 4), rg(xb(c)[qb * 2 + ks]), cin)
                        out.append(th)
            return out
        return mf

    for c in range(9):
        XB[c] = ring(c % 3)
    for c in range(7):
        for blk in range(18):
            hook = None
            if blk == 0:
                def hook(c=c):
                    if OPT.get('cst'):
                        p('s_memrealtime %s' % sr(S_DG, 2))
                        p('s_waitcnt lgkmcnt(0)')
                        p('v_writelane_b32 v1, %s, %d' % (sr(S_DG), 32 + c))
                    g.drop = {0: (), 1: ('dma',), 2: ('vld',), 3: ('dma', 'vld'), 4: ('dma', 'vld', 'dsr')}[OPT.get('drop', 0)]
                    g.vm_gap = OPT.get('vg1', 5) if c > 1 else OPT.get('vg0', 5)
                    if c == 0 and OPT.get('pro', 1):
                        g.hi.extend(xn_l(1, XB[1]) + p1_dma(2))
                    g.hi.extend(touch.get(c, []))
                    xl = xn_l(c + 2, XB[c + 2])
                    if c == 0:
                        g.hi.extend(xl + p1_dma(3))
                    else:
                        g.hi.extendleft(reversed(xl)) if OPT.get('xfirst', 0) else g.hi.extend(xl)
                    if c == 4:
                        g.hi.extend(wq_dma(8))
                    if c == 4 and OPT.get('ct1', 1):
                        g.hi.extend(code_touch('L_c1', V_SW + 4, V_SW + 5, S_A3))
                    if c == 6:
                        assert not any(y.kind == 'dma' and y.lds[1][0] == 'W' for y in g.hi)
                        g.lo.extend(aq_setup())
            seq.add(lambda dst, c=c, blk=blk: p1_reads(c, blk, dst), 8,
                    mk_mf(lambda qb, blk=blk: FT[(blk, qb)], [c], lambda c: XB[c], c == 0), hook=hook,
                    bar=[(PS(c), ('W', c))] if blk == 0 else None,
                    bwait=[rg(t) for t in XB[c]] if blk == 0 else None)
            if blk == 0 and 1 <= c <= 5:
                seq.groups[-1]['post'] = lambda c=c: g.hi.extend(p1_dma(c + 3))
            if blk == 0 and c == 6:
                seq.groups[-1]['post'] = lambda: g.hi.extend(wq_dma(7))
    CT = OPT.get('cap_t', 3)
    for blk in range(18):
        hook = None
        if blk >= 2 and blk % 2 == 0:
            def hook(b=blk // 2 - 1):
                for qb in range(4):
                    g.lo.extend(swiglu_unit(b, qb, g.n + 3, pool))
        if blk == 0:
            def hook():
                g.drop = ()
                p.label('L_c1')
                stamp(2)
        seq.add(lambda dst, blk=blk: p1_reads(7, blk, dst) + p1_reads(8, blk, dst + 8), 16,
                mk_mf(lambda qb, blk=blk: FT[(blk, qb)], [7, 8], lambda c: XB[c], False), hook=hook,
                bar=[(PS(7), ('W', 7)), (PS(8), ('W', 8))] if blk == 0 else None,
                bwait=[rg(t) for t in XB[7] + XB[8]] if blk == 0 else None, cap=CT)
        if blk == 0:
            seq.groups[-1]['post'] = lambda: g.hi.extend(wq_dma(6) + wq_dma(5))
    QT = {}

    def qacc(bq, qb):
        if (bq, qb) not in QT:
            QT[(bq, qb)] = alloc()
        return QT[(bq, qb)]
    XQ = {8: XB[8], 7: XB[7], 6: XB[6], 4: ring(1), 3: ring(2), 2: ring(0), 0: ring(1)}
    C2 = OPT.get('cap_p2', 2)
    qn = lambda c: (LS(WQ_SLOT[c]), ('Q', c))
    for bq in range(8):
        hook = None
        if bq == 0:
            def hook():
                stamp(3)
                g.vm_gap = OPT.get('vg2', 4)
                g.st_w = OPT.get('stw2', 1)
                for qb in range(4):
                    g.lo.extend(swiglu_unit(8, qb, g.n + 3, pool))
        if bq == 3:
            def hook():
                XQ[5] = XQ[1] = [alloc() for _ in range(8)]
                g.hi.extend(xn_l(5, XQ[5]))
        seq.add(lambda dst, bq=bq: p2_reads(8, bq, dst) + p2_reads(7, bq, dst + 8), 16,
                mk_mf(lambda qb, bq=bq: qacc(bq, qb), [8, 7], lambda c: XQ[c], True), hook=hook,
                bar=[qn(8), qn(7)] if bq == 0 else None, cap=C2)
        if bq == 0:
            seq.groups[-1]['post'] = lambda: g.hi.extend(
                wq_dma(4) + wq_dma(3) + wq_dma(2))
    for c in (6, 5, 4, 3, 2):
        for bq in range(8):
            hook = None
            if bq == 0:
                def hook(c=c):
                    for cc in {6: (4, 3), 5: (2,), 4: (1,), 3: (0,), 2: ()}[c]:
                        g.hi.extend(xn_l(cc, XQ[cc]))
            seq.add(lambda dst, c=c, bq=bq: p2_reads(c, bq, dst), 8,
                    mk_mf(lambda qb, bq=bq: qacc(bq, qb), [c], lambda c: XQ[c], False), hook=hook,
                    bar=[qn(c)] if bq == 0 else None, cap=C2,
                    bwait=(lambda c=c: [rg(t) for t in XQ[c]]) if bq == 0 else None)
            if bq == 0:
                seq.groups[-1]['lazyb'] = c
                post = {6: lambda: g.hi.extend(wq_dma(1) + wq_dma(0)),
                        3: lambda: g.hi.extend(dma_unit('K', 0, False)),
                        2: lambda: g.hi.extend(dma_unit('K', 1, False) + dma_unit('V', 0, False))}.get(c)
                seq.groups[-1]['post'] = post
    for bq in range(8):
        hook = None
        if bq == 0:
            def hook():
                print('swiglu backlog at last P2 group:', len(g.hi), len(g.lo), 'over', g.over, file=sys.stderr)
                g.hi.extend(dma_unit('K', 2, False) + dma_unit('V', 1, False))
        if bq >= 2 and bq % 2 == 0:
            def hook(s=bq // 2 - 1):
                for qb in range(4):
                    g.lo.extend(qcvt_unit(qb, s, QT, g.n + 3))
        seq.add(lambda dst, bq=bq: p2_reads(1, bq, dst) + p2_reads(0, bq, dst + 8), 16,
                mk_mf(lambda qb, bq=bq: qacc(bq, qb), [1, 0], lambda c: XQ[c], False), hook=hook,
                bar=[qn(1), qn(0)] if bq == 0 else None, cap=C2,
                bwait=(lambda: [rg(t) for t in XQ[1] + XQ[0]]) if bq == 0 else None)
    seq.run()
    stamp(4)
    print('G backlog at end:', len(g.hi), len(g.lo), 'over', g.over, 'waste', g.waste, file=sys.stderr)
    for qb in range(4):
        g.lo.extend(qcvt_unit(qb, 3, QT, 0))
    addall(k_read_setup())
    p.need(('lgkm', 'all'), (LS(0), ('K', 0)))
    p('s_barrier')
    for kb in range(4):
        for s in range(4):
            p.add(k_load(0, kb, s, False))
    g.flush()
    g.vm_gap = 4
    g.hi.extend(dma_unit('K', 3, False))
    g.hi.extend(d_scalar_setup1())
    g.lo.extend(Ins('v_accvgpr_write_b32 %s, 0' % ar(A_O + i)) for i in range(128))
    for kb in range(4):
        for qb in range(4):
            for s in range(4):
                d = vr(Sreg(kb, qb), 4)
                g.gap('%s %s, %s, %s, %s' % (MF, d, ar(A_KF + kb * 16 + s * 4, 4), vr(V_Q + (qb * 4 + s) * 4, 4), '0' if s == 0 else d))
    g.flush()
    addall(v_read_setup())
    for qb in range(4):
        p('v_mov_b32 %s, 0' % vr(V_L + qb))
    p('v_lshlrev_b32 %s, 20, v0' % vr(V_FST))
    p('s_getreg_b32 %s, hwreg(HW_REG_XCC_ID)' % T(0))
    p('s_and_b32 %s, %s, 15' % (T(0), T(0)))
    p('s_add_u32 %s, %s, 1' % (T(0), T(0)))
    p('v_mov_b32 %s, %s' % (vr(V_ONE), T(0)))
    p('v_lshlrev_b32 %s, 7, %s' % (vr(V_FOFF), L))
    addall(code_touch('L_att_tail', 32, 33, S_DWO)[:-1])
    p('v_mov_b32 %s, %s' % (vr(V_RN), L))
    addall(repack_pat())
    ms = [vr(V_E + qb) for qb in range(4)]
    for step in range(8):
        for qb in range(4):
            regs = [vr(Sreg(kb, qb) + r) for kb in range(4) for r in range(4)]
            if step == 0:
                p('v_max3_f32 %s, %s, %s, %s' % (ms[qb], regs[0], regs[1], regs[2]))
            elif step < 7:
                p('v_max3_f32 %s, %s, %s, %s' % (ms[qb], ms[qb], regs[2 * step + 1], regs[2 * step + 2]))
            else:
                p('v_max_f32 %s, %s, %s' % (ms[qb], ms[qb], regs[15]))
    addall(xlane4('v_max_f32', ms, [vr(V_T + k) for k in range(4)]))
    for qb in range(4):
        for r in range(4):
            p('v_sub_f32 %s, 0, %s' % (vr(V_NM + qb * 4 + r), ms[qb]))
    for kb in range(4):
        for qb in range(4):
            for r in range(4):
                x = vr(Sreg(kb, qb) + r)
                p('v_add_f32 %s, %s, %s' % (x, x, vr(V_NM + qb * 4)))
    stamp(5)
    def sm_plain(uu, i0, i1):
        prev = []
        for i in range(i0, i1):
            ex, ad, cv = sm_instrs(uu, i)
            p.add(ex)
            addall(prev)
            prev = [ad] + ([cv] if cv else [])
        p('s_nop 0')
        addall(prev)
    sm_plain(0, 0, 28)
    att_slots(p, 0, 0, 64, False, pv=False, sm_cur=False)
    sm_plain(0, 28, 60)
    p('s_mov_b32 %s, 0' % sr(S_CNT))
    p('s_lshl_b32 %s, %s, 4' % (sr(S_OFFQ), sr(S_W)))
    p('s_add_u32 %s, %s, 2' % (sr(S_OFFQ), sr(S_OFFQ)))
    p.wait_regs(ar(A_KF, 16))
    lp = p.loop_begin(7, 'att')
    p('.p2align 6')
    p.label('L_att')
    rtag = ('R', 0)
    g.vm_gap = 8

    def rp_loads():
        g.hi.append(Ins('buffer_load_dwordx4 %s, %s, %s, 0 offen nt' % (vr(V_RQ[0], 4), vr(V_RV), sr(S_A1, 4))))
        g.hi.append(Ins('buffer_load_dwordx4 %s, %s, %s, 0 offen nt' % (vr(V_RQ[1], 4), vr(V_RV), sr(S_A2, 4))))

    def rp_stores():
        g.hi.append(Ins('buffer_store_dwordx4 %s, %s, %s, %s offen sc1' % (vr(V_RQ[0], 4), vr(V_L16), sr(S_A3, 4), sr(S_RO)), lds=rtag))
        g.hi.append(Ins('buffer_store_dwordx4 %s, %s, %s, %s offen sc1' % (vr(V_RQ[1], 4), vr(V_L16), sr(S_A4, 4), sr(S_RO)), lds=rtag))
        g.hi.append(Ins('s_add_u32 %s, %s, 1024' % (sr(S_RO), sr(S_RO))))
    att_slots(p, 0, 64, 96, True)
    rp_loads()
    att_slots(p, 0, 96, 128, True, g=g, cap=4)
    assert not g.hi
    att_slots(p, 1, 0, 64, True)
    p('s_add_u32 %s, %s, 1' % (sr(S_CNT), sr(S_CNT)))
    p('s_cmp_eq_u32 %s, 7' % sr(S_CNT))
    p('s_cbranch_scc1 L_att_tail')
    p.loop_mark_exit(lp)
    g.lo.extend(repack_pat())
    att_slots(p, 1, 64, 128, True, g=g, cap=3)
    assert not g.lo
    att_slots(p, 2, 0, 30, True, extra_need=[rtag, ('H', 0)])
    if OPT.get('plain_h'):
        SPIN_BLOCKS.append('L_wbh:\n buffer_wbl2 sc1\n s_branch L_wbh_done')
        p('s_cmp_eq_u32 %s, %s' % (sr(S_CNT), sr(S_OFFQ)))
        p('s_cbranch_scc1 L_wbh')
        p.label('L_wbh_done')
    p('s_cmp_eq_u32 %s, 4' % sr(S_CNT))
    p('s_cselect_b32 %s, %s, 0x100000' % (T(0), sr(S_FWG)))
    fl = flag_store(S_T0, 'H')
    g.hi.append(fl)
    g.vm_gap = 3
    rp_stores()
    att_slots(p, 2, 30, 66, True, g=g, cap=4)
    assert not g.hi
    att_slots(p, 2, 66, 96, True)
    g.vm_gap = 8
    rp_loads()
    att_slots(p, 2, 96, 128, True, g=g, cap=4)
    assert not g.hi
    g.lo.extend(repack_pat())
    att_slots(p, 3, 0, 96, True, g=g, cap=3)
    assert not g.lo
    if OPT.get('ct2', 1):
        g.hi.append(Ins('global_load_dword v33, v32, %s' % sr(S_DWO, 2)))
    att_slots(p, 3, 96, 128, True, g=g, cap=4)
    assert not g.hi
    att_slots(p, 4, 0, 30, True)
    g.vm_gap = 3
    rp_stores()
    att_slots(p, 4, 30, 64, True, g=g, cap=4)
    assert not g.hi
    p('s_branch L_att')
    p.loop_end()
    p.label('L_att_tail')
    stamp(6)
    g.vm_gap = 4
    att_slots(p, 25, 64, 96, False)
    g.hi.append(poll_issue(S_FGR))
    tt = []
    a = lambda x: tt.append(Ins(x))
    a('s_lshr_b32 %s, s2, 3' % T(0))
    a('s_lshl_b32 %s, %s, 2' % (T(1), sr(S_SP)))
    a('s_add_u32 %s, %s, %s' % (T(1), T(1), sr(S_W)))
    a('s_mul_i32 %s, %s, %d' % (T(1), T(1), 2176 * 288))
    a('s_mul_i32 %s, %s, 1152' % (T(2), T(0)))
    a('s_add_u32 %s, %s, %s' % (T(1), T(1), T(2)))
    a('s_add_u32 %s, %s, 0x%x' % (T(1), T(1), WS_W))
    tt += srd_ins(S_A1, P_WS, T(1), 16 * 36864 + 1152)
    a('s_and_b32 %s, s2, 4' % T(1))
    a('s_lshl_b32 %s, %s, 3' % (T(1), T(1)))
    a('s_add_u32 %s, %s, %s' % (T(1), T(1), T(0)))
    a('s_lshl_b32 %s, %s, 1' % (T(1), T(1)))
    a('s_and_b32 %s, %s, 1' % (T(2), sr(S_W)))
    a('s_add_u32 %s, %s, %s' % (T(1), T(1), T(2)))
    a('s_mul_i32 %s, %s, %d' % (T(1), T(1), HS()))
    a('s_mul_i32 %s, %s, %d' % (T(2), sr(S_SP), 36 * 1024))
    a('s_add_u32 %s, %s, %s' % (T(1), T(1), T(2)))
    a('s_add_u32 %s, %s, 0x%x' % (T(1), T(1), WS_H))
    tt += srd_ins(S_A2, P_WS, T(1), 36 * 1024)
    a('s_lshr_b32 %s, %s, 1' % (T(1), sr(S_W)))
    a('s_lshl_b32 %s, %s, 12' % (sr(S_RO), T(1)))
    g.hi.extend(tt)
    g.lo.extend([Ins('v_mul_u32_u24 %s, 7282, %s' % (vr(V_RV), L)),
                 Ins('v_lshrrev_b32 %s, 16, %s' % (vr(V_RV), vr(V_RV))),
                 Ins('v_mul_u32_u24 %s, %d, %s' % (vr(V_RV), 36864 - 1152, vr(V_RV))),
                 Ins('v_lshl_add_u32 %s, %s, 7, %s' % (vr(V_RV), L, vr(V_RV))),
                 Ins('v_mov_b32 v251, 0x7f000000'),
                 Ins('v_cmp_gt_u32 vcc, 18, %s' % L),
                 Ins('v_cndmask_b32 %s, v251, %s, vcc' % (vr(V_RV), vr(V_RV))),
                 Ins('v_cmp_gt_u32 vcc, 32, %s' % L),
                 Ins('v_cndmask_b32 v250, v251, %s, vcc' % vr(V_FOFF))])
    att_slots(p, 25, 96, 128, False, g=g, cap=4)
    att_slots(p, 26, 0, 64, False, g=g, cap=3, dmav=False)
    g.flush()
    addall(dma_unit('V', 28, False))
    poll_check(p, 'h', S_FGR, 'v_cmp_eq_u32 vcc, 0')
    p('v_cmp_ne_u32 vcc, %s, %s' % (vr(V_ONE), vr(V_FV)))
    p('s_and_b32 %s, %s, 0x38' % (T(0), sr(S_TILE)))
    p('s_lshr_b64 vcc, vcc, %s' % T(0))
    p('s_and_b32 %s, vcc_lo, 0xff' % sr(S_OFFW))

    def nowr(l):
        for x in l:
            x.wr = [r for r in x.wr if r[0] != 'v']
        return l

    def touch_w(c, srd=S_A1):
        return nowr([Ins('s_mov_b32 %s, %d' % (T(6), c * 36864)),
                     Ins('buffer_load_dword v248, %s, %s, %s offen sc0' % (vr(V_RV), sr(srd, 4), T(6)))])

    def touch_h(k):
        return nowr([Ins('s_add_u32 %s, %s, %d' % (T(6), sr(S_RO), k * 8192)),
                     Ins('buffer_load_dword v249, v250, %s, %s offen sc0' % (sr(S_A2, 4), T(6)))])
    TD = OPT.get('touch_d', 1)
    tl = []
    if TD:
        for k in range(5):
            tl += [touch_w(2 * k), touch_h(k)]
    for u in (26, 27, 28, 29):
        for (ta, tb, on) in ((0, 32, 0), (32, 48, 1), (48, 64, 1), (64, 96, 0), (96, 112, 1), (112, 128, 1)):
            if (u == 26 and ta < 64) or (u == 29 and ta >= 64):
                continue
            if on and tl:
                g.hi.extend(tl.pop(0))
            att_slots(p, u, ta, tb, False, g=g if on else None, cap=4, dmak=(u + DK < 32))
            assert not g.hi
    assert not tl
    for k in range(4):
        p('s_mov_b32 %s, %s' % (sr(S_DWO + k), sr(S_A1 + k)))
    g.hi.extend(d_scalar_setup2())
    att_slots(p, 29, 64, 128, False, dmak=False, g=g, cap=4)
    g.flush()
    p.label('L_donly')
    att_slots(p, 30, 0, 2, False, dmak=False, dmav=False, g=g)
    g.vm_gap = 5
    g.hi.extend(d_dma(0) + d_dma(1))
    g.hi.append(sadd(S_FWG, 32768))
    g.hi.append(Ins('s_andn2_b32 %s, %s, 0x3ff' % (sr(S_FGR), sr(S_FWG))))
    g.lo.append(Ins('v_and_b32 %s, 0x380, %s' % (vr(V_FOFF), vr(V_FOFF))))
    att_slots(p, 30, 2, 97, False, dmak=False, dmav=False, g=g, cap=4, barrier=False)
    g.vm_gap = 4
    g.hi.extend(d_bloads(0))
    att_slots(p, 30, 97, 128, False, dmak=False, dmav=False, g=g, cap=4, barrier=False)
    att_slots(p, 31, 0, 2, False, qk=False, sm_next=False, dmak=False, dmav=False, g=g, vearly=True)
    g.vm_gap = 3
    g.hi.extend(d_bloads(1) + d_dma(2))
    o = []
    o.append(Ins('v_lshrrev_b32 %s, 2, %s' % (t0, L)))
    o.append(Ins('v_mul_u32_u24 %s, 288, %s' % (t1, t0)))
    o.append(Ins('v_and_b32 %s, 3, %s' % (t2, L)))
    o.append(Ins('v_lshl_add_u32 %s, %s, 3, %s' % (vr(V_DRA), t2, t1)))
    for k in range(1, 4):
        o.append(Ins('v_add_u32 %s, %d, %s' % (vr(V_DRA + k), DBASE[k], vr(V_DRA))))
    g.lo.extend(o)
    g.lo.append(Ins('v_mov_b32 %s, 0x%x' % (vr(V_RN), f2u(2.0 ** OPT.get('thr', 30)))))
    att_slots(p, 31, 2, 64, False, qk=False, sm_next=False, dmak=False, dmav=False, g=g, cap=4, barrier=False, vearly=True)
    g.flush()
    sm_plain(31, 60, 64)
    p('v_max3_f32 %s, %s, %s, %s' % (t0, vr(V_L), vr(V_L + 1), vr(V_L + 2)))
    p('v_add_f32 %s, %s, %s' % (t0, t0, vr(V_L + 3)))
    p('v_cmp_nlt_f32 vcc, %s, %s' % (t0, vr(V_RN)))
    p('s_cbranch_vccnz L_slow')
    p.label('L_slow_ret')
    SPIN_BLOCKS.append(gen_slow_softmax())
    ls = [vr(V_L + qb) for qb in range(4)]
    g.lo.extend(xlane4('v_add_f32', ls, [vr(V_T + k) for k in range(4)]))
    g.lo.extend(Ins('v_rcp_f32 %s, %s' % (x, x)) for x in ls)
    n0 = g.n
    n = 0
    for t in range(4):
        for qb in range(4):
            g.lo.extend(o_epilogue_unit(qb, t, n, n0 + 16 * (t + 1) + 3))
            n += 1
    p.wait_regs(ar(A_VF, 8))
    kw = dict(qk=False, sm_cur=False, sm_next=False, vnext=False, dmak=False, dmav=False, g=g, barrier=False)
    att_slots(p, 32, 0, 33, False, **kw)
    g.hi.extend(d_bloads(2))
    att_slots(p, 32, 33, 46, False, **kw)
    p.need(('lgkm', 'all'), (DS(0), ('D', 0)))
    p('s_barrier')
    g.st.extend(d_reads(0, 0) + d_reads(0, 1))
    att_slots(p, 32, 46, 64, False, **kw)
    while g.st and g.st[0].kind == 'dsr':
        g.emit(g.st.popleft())
    assert not any(x.kind == 'dsr' for x in g.st)
    stamp(7)
    p.wait_regs(ar(A_DB, 32), vr(V_DA, 16))
    stamp(8)
    G2, GG = V_AC2, V_AC2 + 48
    xreg = lambda k, rb: 44 + (k * 2 + rb) * 2
    VO = V_T + 5

    def fin_setup():
        o = []
        o.append(Ins('v_and_b32 %s, 0x180, %s' % (vr(V_FOFF), vr(V_FOFF))))
        o.append(Ins('s_andn2_b32 %s, %s, 0x1ff' % (sr(S_FGR), sr(S_FT))))
        o.append(Ins('v_and_b32 %s, 15, %s' % (t0, L)))
        o.append(Ins('v_mul_u32_u24 %s, 1152, %s' % (t0, t0)))
        o.append(Ins('v_lshrrev_b32 %s, 4, %s' % (t1, L)))
        o.append(Ins('v_lshl_add_u32 %s, %s, 3, %s' % (vr(VO), t1, t0)))
        for k in range(3):
            for rb in range(2):
                o.append(Ins('buffer_load_dwordx2 %s, %s, %s, %s offen offset:%d' % (
                    vr(xreg(k, rb), 2), vr(VO), sr(S_DX, 4), sr(S_HS + 4 + rb + (2 if k == 2 else 0)), 128 * k)))
        return o

    def silu_g():
        o = []
        for k in range(3):
            d = GG + 8 * k
            o += d_sum(G2, k, d, V_T)
            for e in range(0, 8, 2):
                ta, tb = vr(V_T), vr(V_T + 1)
                o.append(Ins('v_mul_f32 %s, %s, %s' % (ta, sr(S_NL), vr(d + e))))
                o.append(Ins('v_mul_f32 %s, %s, %s' % (tb, sr(S_NL), vr(d + e + 1))))
                o.append(Ins('v_exp_f32 %s, %s' % (ta, ta)))
                o.append(Ins('v_exp_f32 %s, %s' % (tb, tb)))
                if OPT.get('fold', 0):
                    o.append(Ins('v_fma_f32 %s, %s, %s, %s' % (ta, ta, sr(S_C), sr(S_C))))
                    o.append(Ins('v_fma_f32 %s, %s, %s, %s' % (tb, tb, sr(S_C), sr(S_C))))
                else:
                    o.append(Ins('v_add_f32 %s, 1.0, %s' % (ta, ta)))
                    o.append(Ins('v_add_f32 %s, 1.0, %s' % (tb, tb)))
                o.append(Ins('v_rcp_f32 %s, %s' % (ta, ta)))
                o.append(Ins('v_rcp_f32 %s, %s' % (tb, tb)))
                o.append(Ins('v_mul_f32 %s, %s, %s' % (vr(d + e), vr(d + e), ta)))
                o.append(Ins('v_mul_f32 %s, %s, %s' % (vr(d + e + 1), vr(d + e + 1), tb)))
        return o

    g.vm_gap = 1
    SO = OPT.get('o_done', 2)
    left = []
    for c in range(17):
        acc0 = V_AC2 if c < 9 else V_AC1
        first = c in (0, 9)
        if c == 9:
            stamp(14)
        if OPT.get('dst'):
            p('s_memrealtime %s' % sr(S_DG, 2))
            p('s_waitcnt lgkmcnt(0)')
            p('v_writelane_b32 v1, %s, %d' % (sr(S_DG), 32 + c))
        extra_need = []
        cap = 2
        if c <= SO:
            cap = OPT.get('cap_o', 4)
        if c == SO + 1:
            assert not g.lo and not g.st, len(g.lo)
            extra_need = [('O', 0)]
            g.st_max = 1
        if c == SO + 2:
            if OPT.get('plain_o', 0):
                SPIN_BLOCKS.append('L_wb:\n buffer_wbl2 sc1\n s_waitcnt vmcnt(0)\n s_branch L_wb_done')
                p('s_cmp_lg_u32 %s, 0' % sr(S_OFFW))
                p('s_cbranch_scc1 L_wb')
                p.label('L_wb_done')
            g.st.append(flag_store(S_FWG, 'O'))
        if TD and c in (2, 3, 4, 5):
            g.hi.extend(touch_w(10 + 2 * (c - 2), S_DWO))
        if c == 6:
            g.st.append(poll_issue(S_FGR))
        if c == 7:
            poll_check(p, 'o', S_FGR)
            g.hi.extend(d_bloads(9))
            cap = 3
        if c + 3 < 17:
            g.hi.extend((d_bloads(c + 3) if c != 6 else []) + d_dma(c + 3))
        if c in (9, 10):
            for nb in (range(5) if c == 9 else range(5, 9)):
                g.lo.extend(d_pstore(1, nb))
            cap = 3
        if c == 11:
            assert not g.lo and not g.st
            extra_need = [('PT1', 0)]
            fs = fin_setup()
            g.lo.extend(fs[:-6])
            cap = 3
        if c == 12:
            g.st.append(flag_store(S_FT, 'PT1'))
        if c == 14:
            g.st.append(poll_issue(S_FGR))
            g.hi.extend(fs[-6:])
        if c == 15:
            poll_check(p, 'p2', S_FGR)
            g.hi.extend([sadd(S_FGR, 32768), sadd(S_FT, 32768)])
            g.hi.extend(d_ploads(1, G2))
        nv = sum(1 for x in g.hi if cost(x) == 2)
        g.vm_gap = OPT.get('vgd', 4) if c > SO else OPT.get('vgd2', 3)
        g.st_w = OPT.get('stw', 1)
        if nv > OPT.get('nvmax', 99):
            g.vm_gap = 2
        if c == 16:
            g.vm_gap = 1
        for nb in range(9):
            n2 = nb + 2
            Lr = d_reads(c, n2) if n2 < 9 else (d_reads(c + 1, n2 - 9) if c < 16 else [])
            if c == 16 and nb >= 2:
                g.hi.extend(d_pstore(0, nb - 2))
            for t in range(8):
                rb, ks = t // 4, t % 4
                a = vr(acc0 + (nb * 2 + rb) * 4, 4)
                m = '%s %s, %s, %s, %s' % (MF, a, vr(V_DA + (nb % 3) * 16 + ks * 4, 4),
                                           ar(A_DB + (c % 4) * 32 + (rb * 4 + ks) * 4, 4),
                                           '0' if (first and ks == 0) else a)
                sc, ld = [], []
                if nb == 7:
                    if Lr and t >= 4:
                        ld = [Lr[2 * (t - 4)], Lr[2 * (t - 4) + 1]]
                    if t == 2 and c < 16:
                        sc = [need_ins(('lgkm', 'all'), (DS(c + 1), ('D', c + 1)), *extra_need)]
                    if t == 3 and c < 16:
                        sc = [Ins('s_barrier')]
                elif Lr:
                    ld = [Lr[t], Lr[t + 1]] if t % 2 == 0 else []
                if t == 7:
                    w = [vr(V_DA + ((nb + 1) % 3) * 16, 16)]
                    if nb == 8:
                        w.append(ar(A_DB + ((c + 1) % 4) * 32, 32))
                    sc = [wait_ins(*w)]
                g.gap(m, sc, ld, cap=cap)
    stamp(9)
    g.hi.extend(d_pstore(0, 7) + d_pstore(0, 8))
    g.flush()
    stamp(10)
    sg = silu_g()
    addall(sg[:len(sg) // 2])
    p.need(('PT0', 0))
    p('s_barrier')
    stamp(11)
    p.add(flag_store(S_FT, 'PT0'))
    p.add(poll_issue(S_FGR))
    addall(sg[len(sg) // 2:])
    poll_check(p, 'p1', S_FGR)
    stamp(12)
    addall(d_ploads(0, G2))
    for k in range(3):
        d = V_AC1 + 16 * k
        addall(d_sum(G2, k, d, V_T))
        for rb in range(2):
            xb = xreg(k, rb)
            for e in range(4):
                tx = vr(d + 8 + e)
                if e % 2 == 0:
                    p('v_lshlrev_b32 %s, 16, %s' % (tx, vr(xb + e // 2)))
                else:
                    p('v_and_b32 %s, 0xffff0000, %s' % (tx, vr(xb + e // 2)))
                p('v_fma_f32 %s, %s, %s, %s' % (tx, vr(d + rb * 4 + e), vr(GG + 8 * k + rb * 4 + e), tx))
            o = d + 12 + 2 * rb
            p('v_cvt_pk_bf16_f32 %s, %s, %s' % (vr(o), vr(d + 8), vr(d + 9)))
            p('v_cvt_pk_bf16_f32 %s, %s, %s' % (vr(o + 1), vr(d + 10), vr(d + 11)))
            p('buffer_store_dwordx2 %s, %s, %s, %s offen offset:%d' % (
                vr(o, 2), vr(VO), sr(S_DOUT, 4), sr(S_HS + 4 + rb + (2 if k == 2 else 0)), 128 * k))
    if diag:
        p('s_waitcnt vmcnt(0)')
        stamp(13)
        p('s_mov_b32 %s, 0x%x' % (T(3), WS_T))
        make_srd(p, S_K, P_WS, T(3), 0x100000)
        p('s_lshl_b32 %s, s2, 2' % T(0))
        p('s_add_u32 %s, %s, %s' % (T(0), T(0), sr(S_W)))
        p('s_lshl_b32 %s, %s, 8' % (T(0), T(0)))
        p('v_lshlrev_b32 v4, 2, %s' % L)
        p('buffer_store_dword v1, v4, %s, %s offen' % (sr(S_K, 4), T(0)))
    p.label('L_end')
    p('s_endpgm')
    for t in SPIN_BLOCKS:
        p.raw(t)
    p.raw('L_code_end:')
    for x in p.flat():
        if OPT.get('kv_nt', 1) and x.kind == 'dma' and ('s[4:7]' in x.text or 's[8:11]' in x.text):
            x.text = x.text.replace(' lds', ' nt lds')
        if OPT.get('w_nt') and x.kind == 'dma' and x.lds and not callable(x.lds[1]) and x.lds[1][0] in 'WQ':
            x.text = x.text.replace(' lds', ' nt lds')
        if OPT.get('st01') and x.kind == 'vst' and 'x4' in x.text:
            x.text = x.text.replace(' sc1', ' sc0 sc1')
        if OPT.get('nost') and x.kind == 'vst' and 'x4' in x.text and x.lds and (x.lds[0] == 'O' or (OPT['nost'] > 1 and x.lds[0] == 'PT1')):
            x.text = 's_nop 0'
            x.kind = 'sopp'; x.op = 's_nop'; x.ops = ['0']; x.rd = []; x.lds = None
        if OPT.get('dplain') and x.kind in ('dma', 'vld') and 'x4' in x.text:
            x.text = x.text.replace(' sc1', '')
    p.finalize(verbose=bool(OPT.get('verbose')), check=not (OPT.get('drop') or OPT.get('nost')))
    print('total overflow slots', g.over, p.stats(), file=sys.stderr)
    return p


def build(diag=False):
    ln, km = gen_ln(), gen_main(diag)
    hdr = open('cdna_kernels/%s.s.ref' % NAME).read().split('; Override launch')[0]
    out = hdr
    if not OPT.get('donly'):
        out += '; @launch kernel=ln_kernel grid=(256,1,1) block=(256,1,1) lds=0\n'
    out += '; @launch kernel=main_kernel grid=(256,1,1) block=(256,1,1) lds=163840\n'
    out += '.amdgcn_target "amdgcn-amd-amdhsa--gfx950"\n.text\n'
    out += kernel_text('ln_kernel', ln, 0, 0) + kernel_text('main_kernel', km, 0, 0)
    out += '.section .rodata,"a"\n'
    for n, nv, acc in (('ln_kernel', 64, 64), ('main_kernel', 512, 256)):
        out += '.p2align 6\n' + descriptor(n, nv, acc)
    return out


if __name__ == '__main__':
    diag = 'diag' in sys.argv[2:]
    for a in sys.argv[2:]:
        if '=' in a:
            k, v = a.split('=')
            OPT[k] = int(v)
    open(sys.argv[1], 'w').write(build(diag))
```

```python
import re

_REG_RE = re.compile(r'^(-|\|)?(abs\()?([vas])(\d+|\[(\d+):(\d+)\])\)?\|?$')
TRANS = ('v_exp_f32', 'v_log_f32', 'v_rcp_f32', 'v_rsq_f32', 'v_sqrt_f32', 'v_sin_f32', 'v_cos_f32')


def regs_of(tok):
    tok = tok.strip()
    if tok in ('vcc', 'exec', 'm0', 'scc'):
        return [tok]
    if tok in ('vcc_lo', 'vcc_hi'):
        return ['vcc']
    if tok in ('exec_lo', 'exec_hi'):
        return ['exec']
    m = _REG_RE.match(tok)
    if not m:
        return []
    c = m.group(3)
    if m.group(5) is not None:
        return [c + str(i) for i in range(int(m.group(5)), int(m.group(6)) + 1)]
    return [c + m.group(4)]


def split_ops(s):
    out, depth, cur = [], 0, ''
    for ch in s:
        if ch in '[(':
            depth += 1
        if ch in '])':
            depth -= 1
        if ch == ',' and depth == 0:
            out.append(cur.strip())
            cur = ''
        else:
            cur += ch
    if cur.strip():
        out.append(cur.strip())
    return out


class Ins:
    def __init__(self, text, lds=None, comment=None):
        self.text = text
        self.comment = comment
        self.lds = lds
        self.pre_vm = None
        self.pre_lgkm = None
        self.pre_nop = 0
        self.ready = 0
        self.on_emit = None
        self.need = None
        parts = text.split(None, 1)
        self.op = op = parts[0]
        rest = parts[1] if len(parts) > 1 else ''
        ops = split_ops(rest)
        mods = ''
        if ops:
            sp = ops[-1].split(None, 1)
            if len(sp) > 1:
                ops[-1], mods = sp[0], sp[1]
        self.ops, self.mods = ops, mods
        R = [regs_of(o) for o in ops]
        flat = lambda L: [x for l in L for x in l]
        self.rd, self.wr = [], []
        self.trans = False
        self.dpp = False
        self.passes = 0
        if op.endswith(':') or op.startswith('.') or op.startswith(';'):
            self.kind = 'label'
        elif op.startswith('v_mfma'):
            self.kind = 'mfma'
            self.wr = R[0]
            self.rd = flat(R[1:])
            self.a, self.b, self.c = R[1], R[2], R[3]
            self.passes = 8 if '32x32x16' in op else 4
        elif op.startswith('ds_read'):
            self.kind = 'dsr'
            self.wr, self.rd = R[0], flat(R[1:])
        elif op.startswith('ds_write'):
            self.kind = 'dsw'
            self.rd = flat(R)
        elif op.startswith('ds_'):
            self.kind = 'dsr'
            self.wr, self.rd = R[0], flat(R[1:])
        elif op.startswith('buffer_load') and re.search(r'\blds\b', mods):
            self.kind = 'dma'
            self.rd = flat(R) + ['m0']
        elif op.startswith('buffer_load') or op.startswith('global_load'):
            self.kind = 'vld'
            self.wr, self.rd = R[0], flat(R[1:])
        elif op.startswith('buffer_store') or op.startswith('global_store'):
            self.kind = 'vst'
            self.rd = flat(R)
            self.data = R[0] if op.startswith('buffer') else R[1]
        elif op.startswith('buffer_atomic'):
            self.kind = 'vld' if 'sc0' in mods else 'vst'
            self.rd = flat(R)
            self.wr = R[0] if 'sc0' in mods else []
            self.data = R[0]
        elif op in ('buffer_wbl2', 'buffer_inv'):
            self.kind = 'vst'
            self.data = []
        elif op in ('s_waitcnt', 's_barrier', 's_nop', 's_setprio', 's_sleep', 's_endpgm', 's_branch') \
                or op.startswith('s_cbranch'):
            self.kind = 'sopp'
            if op.startswith('s_cbranch_scc'):
                self.rd = ['scc']
        elif op.startswith('s_load') or op in ('s_memtime', 's_memrealtime'):
            self.kind = 'smem'
            self.wr, self.rd = R[0], flat(R[1:])
        elif op.startswith('s_cmp') or op.startswith('s_bitcmp'):
            self.kind = 'salu'
            self.wr, self.rd = ['scc'], flat(R)
        elif op.startswith('s_'):
            self.kind = 'salu'
            self.wr, self.rd = R[0] + ['scc'], flat(R[1:])
            if 'saveexec' in op:
                self.wr.append('exec')
        elif op.startswith('v_'):
            self.kind = 'valu'
            self.wr, self.rd = list(R[0]), flat(R[1:])
            base = op.replace('_e32', '').replace('_e64', '')
            if base in TRANS:
                self.trans = True
            if 'permlane' in op:
                self.wr = flat(R)
                self.rd = flat(R)
            if base.startswith('v_fmac') or base.startswith('v_dot2c') or base.startswith('v_writelane'):
                self.rd += R[0]
            if '_co_' in op or op.startswith('v_div_scale'):
                self.wr += R[1]
                self.rd = flat(R[2:])
            if op.startswith('v_cndmask') and len(ops) == 3:
                self.rd.append('vcc')
            if op.startswith('v_cmpx'):
                self.wr.append('exec')
            if '_dpp' in op:
                self.dpp = True
                self.rd += R[0]
        else:
            raise ValueError('unknown op ' + text)

    def states(self):
        if self.kind == 'label':
            return 0
        if self.op == 's_nop':
            return int(self.ops[0], 0) + 1
        return 1


MODE = [0]


class Loop:
    def __init__(self, count, body, name):
        self.count, self.body, self.name = count, body, name
        self.exit_at = None


class Prog:
    def __init__(self):
        self.items = []
        self.stack = [self.items]
        self.nlabel = 0

    def __call__(self, text, lds=None, comment=None):
        i = Ins(text, lds, comment)
        self.stack[-1].append(i)
        return i

    def add(self, i):
        self.stack[-1].append(i)
        return i

    def raw(self, text):
        i = Ins('; raw')
        i.rawtext = text
        self.stack[-1].append(i)
        return i

    def label(self, name):
        return self(name + ':')

    def need(self, *tags):
        i = Ins('; need')
        i.need = list(tags)
        self.stack[-1].append(i)
        return i

    def wait_regs(self, *operands):
        i = wait_ins(*operands)
        self.stack[-1].append(i)
        return i

    def loop_begin(self, count, name):
        body = []
        lp = Loop(count, body, name)
        self.stack[-1].append(lp)
        self.stack.append(body)
        return lp

    def loop_mark_exit(self, lp):
        lp.exit_at = len(lp.body)

    def loop_end(self):
        self.stack.pop()

    def trace(self, items=None, it=0, cap=None):
        for x in (self.items if items is None else items):
            if isinstance(x, Loop):
                if x.name == 'opt' and MODE[0]:
                    continue
                n = x.count if cap is None else min(x.count, cap)
                for k in range(n):
                    kk = k if k < n - 1 else x.count - 1
                    body = x.body if (k < n - 1 or x.exit_at is None) else x.body[:x.exit_at]
                    yield from self.trace(body, kk, cap)
            else:
                yield x, it

    def flat(self, items=None):
        for x in (self.items if items is None else items):
            if isinstance(x, Loop):
                yield from self.flat(x.body)
            else:
                yield x

    def auto_waits(self, verify=False):
        changes = 0
        vm = []
        lg = []
        regions = {}
        owner = {}
        val = lambda c, it: c(it) if callable(c) else c

        def pages(sl):
            return range(sl[0] // 1024, (sl[0] + sl[1] + 1023) // 1024)

        def retire_vm(n):
            while len(vm) > n:
                e = vm.pop(0)
                if e['tag'] is not None:
                    regions[e['tag']]['pend'] -= 1

        def retire_lg(n):
            while len(lg) > n:
                e = lg.pop(0)
                if e['tag'] is not None:
                    regions[e['tag']]['rpend'] -= 1

        for ins, it in self.trace():
            touched = set(ins.rd) | set(ins.wr)
            nvm, nlg = None, None
            needs = None
            if ins.need is not None:
                needs = [(val(sl, it), val(c, it)) for (sl, c) in ins.need]
            for k, e in enumerate(vm):
                hit = bool(e['regs'] & touched)
                if needs is not None and (e['tag'] in needs or ('all', 'all') in needs):
                    hit = True
                if hit:
                    nvm = len(vm) - 1 - k
            anysmem = any(e['smem'] for e in lg)
            for k, e in enumerate(lg):
                hit = bool(e['regs'] & touched)
                if needs is not None and ('lgkm', 'all') in needs:
                    hit = True
                if hit:
                    nlg = 0 if anysmem else len(lg) - 1 - k
            if nvm is not None:
                nvm = min(nvm, 63)
                if ins.pre_vm is None or ins.pre_vm > nvm:
                    assert not verify, 'vm wait missing at ' + ins.text
                    ins.pre_vm = nvm
                    changes += 1
            if nlg is not None:
                nlg = min(nlg, 15)
                if ins.pre_lgkm is None or ins.pre_lgkm > nlg:
                    assert not verify, 'lgkm wait missing at ' + ins.text
                    ins.pre_lgkm = nlg
                    changes += 1
            if ins.pre_vm is not None:
                retire_vm(ins.pre_vm)
            if ins.pre_lgkm is not None:
                retire_lg(ins.pre_lgkm)
            if ins.op == 's_waitcnt':
                m = re.search(r'vmcnt\((\d+)\)', ins.text)
                if m:
                    retire_vm(int(m.group(1)))
                m = re.search(r'lgkmcnt\((\d+)\)', ins.text)
                if m:
                    retire_lg(int(m.group(1)))
            if ins.op == 's_barrier':
                for s in regions.values():
                    if s['pend'] == 0:
                        s['vis'] = True
                    if s['rpend'] == 0:
                        s['rbar'] = True
            if ins.kind in ('dma', 'vld', 'vst'):
                tag = None
                if ins.kind == 'dma' and ins.lds is not None:
                    tag = (val(ins.lds[0], it), val(ins.lds[1], it))
                    if tag not in regions:
                        regions[tag] = dict(pend=0, vis=False, rpend=0, rbar=True)
                        for pg in pages(tag[0]):
                            o = owner.get(pg)
                            if o is not None and verify:
                                s = regions[o]
                                assert s['rbar'] and s['rpend'] == 0 and s['pend'] == 0 and s['vis'], \
                                    'LDS WAR/WAW: DMA %s over %s %s it=%d: %s' % (tag, o, s, it, ins.text)
                            owner[pg] = tag
                    s = regions[tag]
                    s['pend'] += 1
                    s['vis'] = False
                if ins.kind == 'vst' and ins.lds is not None:
                    if ins.lds[0] == 'flag':
                        s = regions.get(ins.lds[1])
                        if verify:
                            assert s is not None and s['pend'] == 0 and s['vis'], 'flag before data visible: %s %s' % (ins.text, s)
                    else:
                        tag = ins.lds
                        s = regions.setdefault(tag, dict(pend=0, vis=False, rpend=0, rbar=True))
                        s['pend'] += 1
                        s['vis'] = False
                vm.append(dict(regs=set(ins.wr), tag=tag))
            if ins.kind in ('dsr', 'dsw', 'smem'):
                tag = None
                if ins.kind == 'dsr' and ins.lds is not None:
                    tag = (val(ins.lds[0], it), val(ins.lds[1], it))
                    s = regions.get(tag)
                    if verify:
                        assert s is not None and s['vis'] and all(owner.get(pg) == tag for pg in pages(tag[0])), \
                            'LDS RAW: read %s state %s it=%d: %s' % (tag, s, it, ins.text)
                    if s is None:
                        tag = None
                    else:
                        s['rpend'] += 1
                        s['rbar'] = False
                lg.append(dict(regs=set(ins.wr), tag=tag, smem=(ins.kind == 'smem')))
        return changes

    def fix_hazards(self, verbose=False):
        changes = 0
        hist = []
        pos = 0
        for ins, it in self.trace(cap=3):
            extra = (1 if (ins.pre_vm is not None or ins.pre_lgkm is not None) else 0)
            pos += extra
            if ins.kind == 'label':
                continue
            need = 0
            rd, wr = set(ins.rd), set(ins.wr)
            for (p, ppos) in reversed(hist):
                dist = pos + ins.pre_nop - ppos - 1 + 0
                if pos - ppos > 24:
                    break
                req = 0
                pw = set(p.wr)
                if p.kind == 'valu':
                    vw = {r for r in pw if r[0] in 'va' and r != 'vcc'}
                    sw = {r for r in pw if r[0] == 's' or r in ('vcc', 'exec')}
                    if ins.kind == 'mfma' and vw & rd:
                        req = max(req, 2)
                    if ins.kind == 'valu' and 'permlane' in ins.op and vw & rd:
                        req = max(req, 2)
                    if ins.kind == 'valu' and ins.dpp and vw & rd:
                        req = max(req, 2)
                    if ins.kind == 'valu' and ('readlane' in ins.op or 'readfirstlane' in ins.op) and vw & rd:
                        req = max(req, 1)
                    if p.trans and ins.kind == 'valu' and not ins.trans and vw & rd:
                        req = max(req, 1)
                    if p.trans and ins.kind in ('vst', 'dsw', 'vld', 'dsr', 'dma') and vw & rd:
                        req = max(req, 1)
                    if 'sdwa' in p.op and ins.kind == 'valu' and vw & (rd | wr):
                        req = max(req, 1)
                    if ins.kind == 'valu' and sw & rd:
                        req = max(req, 4 if ('readlane' in ins.op or 'writelane' in ins.op or 'div_fmas' in ins.op) else 2)
                    if ins.kind in ('vld', 'vst', 'dma') and sw & rd:
                        req = max(req, 5)
                    if ins.kind in ('salu', 'smem') and sw & rd:
                        req = max(req, 4)
                    if 'exec' in sw and ins.kind in ('mfma',):
                        req = max(req, 4)
                    if 'exec' in sw and ins.kind == 'valu' and (ins.dpp or 'permlane' in ins.op or 'readlane' in ins.op or 'readfirstlane' in ins.op):
                        req = max(req, 5)
                if p.kind == 'mfma':
                    t = {4: (6, 8, 3), 8: (10, 12, 7)}[p.passes]
                    if ins.kind == 'mfma':
                        if pw & set(ins.c):
                            if not (ins.c == p.wr and ins.passes == p.passes):
                                req = max(req, t[0])
                        if pw & (set(ins.a) | set(ins.b)):
                            req = max(req, t[1])
                        if pw & wr and not (pw & set(ins.c)):
                            req = max(req, t[0])
                    elif ins.kind in ('valu', 'vld', 'vst', 'dsr', 'dsw', 'dma'):
                        if pw & (rd | wr):
                            req = max(req, t[1])
                        if ins.kind == 'valu' and set(p.c) & wr:
                            req = max(req, t[2])
                if p.kind == 'salu' and 'm0' in pw and ins.kind == 'dma':
                    req = max(req, 1)
                if p.kind == 'vst' and ('x4' in p.op or 'x3' in p.op) and set(p.data) & wr:
                    req = max(req, 2 if ins.kind == 'valu' else 1)
                if req > dist:
                    need = max(need, req - dist)
            if need > 0:
                if verbose:
                    print('hazard pad %d before: %s' % (need, ins.text))
                ins.pre_nop += need
                changes += 1
            pos += ins.pre_nop
            hist.append((ins, pos))
            pos += ins.states()
            if len(hist) > 40:
                hist.pop(0)
        return changes

    def finalize(self, verbose=False, check=True):
        for _ in range(10):
            ch = 0
            for m in (0, 1):
                MODE[0] = m
                ch += self.auto_waits()
            if ch == 0:
                break
        if check:
            for m in (0, 1):
                MODE[0] = m
                self.auto_waits(verify=True)
        for _ in range(10):
            ch = 0
            for m in (0, 1):
                MODE[0] = m
                ch += self.fix_hazards(verbose)
            if ch == 0:
                break
        MODE[0] = 0

    def text(self):
        out = []
        for ins in self.flat():
            w = []
            if ins.pre_vm is not None:
                w.append('vmcnt(%d)' % ins.pre_vm)
            if ins.pre_lgkm is not None:
                w.append('lgkmcnt(%d)' % ins.pre_lgkm)
            if w:
                out.append(' s_waitcnt ' + ' '.join(w))
            n = ins.pre_nop
            while n > 0:
                k = min(n, 16)
                out.append(' s_nop %d' % (k - 1))
                n -= k
            if ins.text.startswith('; need'):
                continue
            if ins.text.startswith('; raw'):
                out.append(ins.rawtext)
                continue
            if ins.kind == 'label':
                out.append(ins.text)
            else:
                out.append(' ' + ins.text + (('    ; ' + ins.comment) if ins.comment else ''))
        return '\n'.join(out) + '\n'

    def stats(self, items=None):
        from collections import Counter
        c = Counter()
        for ins in self.flat(items):
            c[ins.kind] += 1
            if ins.pre_vm is not None or ins.pre_lgkm is not None:
                c['wait'] += 1
            if ins.pre_nop:
                c['nop'] += 1
        return dict(c)


def wait_ins(*operands):
    i = Ins('; need')
    i.rd = [r for o in operands for r in regs_of(o)]
    return i


def need_ins(*tags):
    i = Ins('; need')
    i.need = list(tags)
    return i


def vr(base, n=1):
    return 'v%d' % base if n == 1 else 'v[%d:%d]' % (base, base + n - 1)


def ar(base, n=1):
    return 'a%d' % base if n == 1 else 'a[%d:%d]' % (base, base + n - 1)


def sr(base, n=1):
    return 's%d' % base if n == 1 else 's[%d:%d]' % (base, base + n - 1)


def kernel_text(name, prog, vgpr, accum, sgpr=102):
    return ('.globl %s\n.p2align 8\n.type %s,@function\n%s:\n' % (name, name, name)) + prog.text()


def descriptor(name, vgpr, accum, sgpr=102):
    return ('.amdhsa_kernel %s\n'
            '  .amdhsa_next_free_vgpr %d\n'
            '  .amdhsa_next_free_sgpr %d\n'
            '  .amdhsa_accum_offset %d\n'
            '  .amdhsa_group_segment_fixed_size 0\n'
            '  .amdhsa_kernarg_size 96\n'
            '  .amdhsa_user_sgpr_count 2\n'
            '  .amdhsa_user_sgpr_kernarg_segment_ptr 1\n'
            '  .amdhsa_system_sgpr_workgroup_id_x 1\n'
            '.end_amdhsa_kernel\n') % (name, vgpr, sgpr, accum)
```

```python
import sys, struct
from collections import deque
from dsl import *

OPT = {}
NAME = 'recurrent_scan__mha_block_cached__glu_gated_swiglu__prompt'
WS_XN = 0
WS_F = 3 << 20
WS_O = 4 << 20
WS_H = 24 << 20
WS_P = 48 << 20
PG = 64 * 16 * 9216
WS_W = 96 << 20
WBLK = 2432 * 288
WS_T = 128 << 20
MF = 'v_mfma_f32_16x16x32_bf16'
LOG2E = 1.4426950408889634


def HS():
    return 144 * 1024 + OPT.get('pad', 1280)


def OS():
    return 128 * 1024 + OPT.get('pad', 1280)


def f2u(x):
    return struct.unpack('<I', struct.pack('<f', x))[0]


def srd_ins(srd, ptr, off, size):
    o = []
    if off is None:
        o.append(Ins('s_mov_b32 %s, %s' % (sr(srd), sr(ptr))))
        o.append(Ins('s_mov_b32 %s, %s' % (sr(srd + 1), sr(ptr + 1))))
    else:
        o.append(Ins('s_add_u32 %s, %s, %s' % (sr(srd), sr(ptr), off)))
        o.append(Ins('s_addc_u32 %s, %s, 0' % (sr(srd + 1), sr(ptr + 1))))
    o.append(Ins('s_mov_b32 %s, %s' % (sr(srd + 2), size if isinstance(size, str) else '0x%x' % size)))
    o.append(Ins('s_mov_b32 %s, 0x00020000' % sr(srd + 3)))
    return o


def make_srd(p, srd, ptr, off, size):
    for x in srd_ins(srd, ptr, off, size):
        p.add(x)


def cost(ins):
    if ins.kind == 'valu':
        return 2 if ins.trans else 1
    if ins.kind in ('dsr', 'dsw'):
        return 1
    if ins.kind in ('dma', 'vld', 'vst'):
        return 2
    return 0


class Gaps:
    def __init__(self, p):
        self.p = p
        self.hi = deque()
        self.lo = deque()
        self.n = 0
        self.over = 0
        self.waste = 0
        self.drop = ()
        self.vm_next = 0
        self.st = deque()
        self.st_max = 2
        self.st_w = 3
        self.vm_gap = 1

    def emit(self, x):
        if self.drop and x.kind in self.drop:
            return
        self.p.add(x)
        if x.on_emit:
            x.on_emit()

    def gap(self, mfma, sc=(), ld=(), va=(), cap=2):
        if mfma is not None:
            self.p.add(mfma if isinstance(mfma, Ins) else Ins(mfma))
        sc, ld, va = list(sc), list(ld), list(va)
        used = sum(cost(x) for x in ld + va)
        for q in (self.st, self.hi, self.lo):
            pulled = False
            pva = False
            while q:
                x = q[0]
                if x.ready > self.n:
                    break
                c = cost(x)
                if q is self.lo and x.kind == 'vst' and len(self.st) < self.st_max:
                    x.ready = self.n + 1
                    self.st.append(q.popleft())
                    continue
                if c == 0:
                    if sc or pulled:
                        break
                    sc.append(q.popleft())
                    if 'm0' in x.wr:
                        break
                    continue
                if used + c > cap:
                    break
                if x.kind != 'valu':
                    if pva:
                        break
                    if c == 2:
                        if self.n < self.vm_next:
                            break
                        w = (self.st_w if 'x4' in x.text else 1) if x.kind == 'vst' else (4 if 'buffer_load_dword ' in x.text and 'sc' not in x.text else 1)
                        self.vm_next = self.n + self.vm_gap * w
                    ld.append(q.popleft())
                else:
                    va.append(q.popleft())
                    pva = True
                used += c
                pulled = True
        for x in sc + ([Ins(mfma)] if isinstance(mfma, str) else []):
            self.check(x)
        self.over += max(0, used - 2)
        if used < 2 and (self.hi or self.lo):
            self.waste += 2 - used
        for x in sc + ld + va:
            self.emit(x)
        self.n += 1

    def check(self, x):
        regs = set(x.rd) if (x.text.startswith('; need') or x.kind == 'mfma') else set()
        tags = [t for t in (x.need or []) if not callable(t[1])]
        for q in (self.st, self.hi, self.lo):
            for y in q:
                if y.kind in ('vld', 'dsr') and set(y.wr) & regs and not getattr(y, 'later', False):
                    raise AssertionError('consumer %s before queued load %s' % (x.text, y.text))
                if y.lds is not None and y.lds in tags:
                    raise AssertionError('need %s before queued %s' % (tags, y.text))

    def flush(self, q=None):
        for qq in ((self.st, self.hi, self.lo) if q is None else (q,)):
            while qq:
                x = qq.popleft()
                self.over += max(1, cost(x))
                self.emit(x)


def rg(t, n=4):
    return (vr if t[0] == 'v' else ar)(t[1], n)


def prefetch_w(p, ptr, srd, soff, rows, stride, lines, rounds, vt, vd):
    t = lambda k: vr(vt + k)
    make_srd(p, srd, ptr, soff, (rows - 1) * stride + lines * 128)
    return t


def gen_ln():
    p = Prog()
    p('s_cmp_ge_u32 s2, 256')
    p('s_cbranch_scc1 L_ln_end')
    p('s_load_dwordx2 s[12:13], s[0:1], 0')
    p('s_load_dwordx2 s[14:15], s[0:1], 88')
    p('s_load_dwordx4 s[32:35], s[0:1], 48')
    p('v_lshrrev_b32 v1, 5, v0')
    p('s_lshl_b32 s3, s2, 3')
    p('v_add_u32 v1, s3, v1')
    p('v_and_b32 v2, 31, v0')
    p('v_lshrrev_b32 v3, 2, v2')
    p('v_and_b32 v4, 3, v2')
    p('v_mul_u32_u24 v5, 1152, v1')
    p('v_lshl_add_u32 v5, v3, 6, v5')
    p('v_lshl_add_u32 v5, v4, 3, v5')
    p('v_cmp_gt_u32 vcc, 8, v2')
    p('s_mov_b64 s[16:17], vcc')
    for r in range(16, 20):
        p('v_mov_b32 v%d, 0' % r)
    p('s_waitcnt lgkmcnt(0)')
    make_srd(p, 4, 12, None, 2048 * 1152)
    for it in range(2):
        p('buffer_load_dwordx2 v[%d:%d], v5, s[4:7], 0 offen offset:%d' % (8 + 4 * it, 9 + 4 * it, it * 512))
        p('buffer_load_dwordx2 v[%d:%d], v5, s[4:7], 0 offen offset:%d' % (10 + 4 * it, 11 + 4 * it, it * 512 + 32))
    p('s_mov_b64 exec, s[16:17]')
    p('buffer_load_dwordx2 v[16:17], v5, s[4:7], 0 offen offset:1024')
    p('buffer_load_dwordx2 v[18:19], v5, s[4:7], 0 offen offset:1056')
    p('s_mov_b64 exec, -1')
    R0 = OPT.get('pf0', 12)
    if R0:
        p('s_lshr_b32 s20, s2, 3')
        p('s_mul_i32 s20, s20, %d' % (R0 * 9216))
        p('s_and_b32 s21, s2, 3')
        p('s_mul_i32 s21, s21, 2304')
        p('s_add_u32 s20, s20, s21')
        make_srd(p, 36, 32, 's20', (R0 - 1) * 9216 + 2304)
        make_srd(p, 40, 34, 's20', (R0 - 1) * 9216 + 2304)
        p('v_mul_u32_u24 v56, 3641, v0')
        p('v_lshrrev_b32 v56, 16, v56')
        p('v_mul_u32_u24 v57, 18, v56')
        p('v_sub_u32 v57, v0, v57')
        p('v_mul_u32_u24 v56, 9216, v56')
        p('v_lshl_add_u32 v56, v57, 7, v56')
        if OPT.get('pfh', 1):
            p('s_bitcmp1_b32 s2, 2')
            p('s_cselect_b32 s36, s40, s36')
            p('s_cselect_b32 s37, s41, s37')
            p('buffer_load_dword v58, v56, s[36:39], 0 offen')
        else:
            p('buffer_load_dword v58, v56, s[36:39], 0 offen')
            p('buffer_load_dword v59, v56, s[40:43], 0 offen')
    if OPT.get('pfc', 1):
        p('s_getpc_b64 s[44:45]')
        p.label('L_pc')
        p('s_add_u32 s44, s44, main_kernel-L_pc')
        p('s_addc_u32 s45, s45, 0')
        p('s_lshr_b32 s46, s2, 3')
        p('s_lshl_b32 s46, s46, 12')
        p('v_and_b32 v60, 31, v0')
        p('v_lshlrev_b32 v60, 7, v60')
        p('v_add_u32 v60, s46, v60')
        p('v_min_u32 v60, L_code_end-main_kernel-4, v60')
        p('global_load_dword v61, v60, s[44:45]')
    make_srd(p, 8, 14, None, 2048 * 1152)
    p('v_lshrrev_b32 v6, 4, v1')
    p('v_mul_u32_u24 v6, 18, v6')
    p('v_add_u32 v6, v6, v3')
    p('v_lshlrev_b32 v6, 10, v6')
    p('v_lshl_add_u32 v6, v4, 8, v6')
    p('v_and_b32 v7, 15, v1')
    p('v_lshl_add_u32 v6, v7, 4, v6')
    p('s_mov_b32 s20, 0x%x' % WS_F)
    make_srd(p, 24, 14, 's20', 4 * 32768)
    p('s_lshl_b32 s21, s2, 7')
    p('v_lshlrev_b32 v50, 15, v0')
    p('v_mov_b32 v52, 0')
    p('buffer_store_dword v52, v50, s[24:27], s21 offen')
    for d in range(12):
        p('v_lshlrev_b32 v%d, 16, v%d' % (20 + 2 * d, 8 + d))
        p('v_and_b32 v%d, 0xffff0000, v%d' % (21 + 2 * d, 8 + d))

    def reduce32(x, t):
        for k in (8, 4, 2, 1):
            p('v_add_f32_dpp %s, %s, %s row_ror:%d row_mask:0xf bank_mask:0xf' % (x, x, x, k))
        p('v_mov_b32 %s, %s' % (t, x))
        p('v_permlane16_swap_b32 %s, %s' % (x, t))
        p('v_add_f32 %s, %s, %s' % (x, x, t))
    p('v_add_f32 v44, v20, v21')
    p('v_add_f32 v45, v22, v23')
    for e in range(4, 24, 2):
        p('v_add_f32 v44, v44, v%d' % (20 + e))
        p('v_add_f32 v45, v45, v%d' % (21 + e))
    p('v_add_f32 v44, v44, v45')
    reduce32('v44', 'v45')
    p('v_mul_f32 v44, 0x%x, v44' % f2u(1.0 / 576))
    p('v_mov_b32 v46, 0')
    p('v_mov_b32 v47, 0')
    for e in range(16):
        p('v_sub_f32 v48, v%d, v44' % (20 + e))
        p('v_fmac_f32 v%d, v48, v48' % (46 + e % 2))
    p('s_mov_b64 exec, s[16:17]')
    for e in range(16, 24):
        p('v_sub_f32 v48, v%d, v44' % (20 + e))
        p('v_fmac_f32 v%d, v48, v48' % (46 + e % 2))
    p('s_mov_b64 exec, -1')
    p('v_add_f32 v46, v46, v47')
    reduce32('v46', 'v45')
    p('v_mul_f32 v46, 0x%x, v46' % f2u(1.0 / 576))

    def rnd(x):
        p('v_cvt_pk_bf16_f32 %s, %s, %s' % (x, x, x))
        p('v_lshlrev_b32 %s, 16, %s' % (x, x))
    rnd('v44')
    rnd('v46')
    p('v_add_f32 v46, 0x%x, v46' % f2u(1e-5))
    rnd('v46')
    p('v_sqrt_f32 v46, v46')
    rnd('v46')
    p('v_rcp_f32 v46, v46')
    if OPT.get('fold', 0):
        p('v_mul_f32 v46, 0x%x, v46' % f2u(-LOG2E))
    for d in range(12):
        a, b = 20 + 2 * d, 21 + 2 * d
        p('v_sub_f32 v%d, v%d, v44' % (a, a))
        p('v_sub_f32 v%d, v%d, v44' % (b, b))
        p('v_cvt_pk_bf16_f32 v%d, v%d, v%d' % (8 + d, a, b))
        p('v_lshlrev_b32 v%d, 16, v%d' % (a, 8 + d))
        p('v_and_b32 v%d, 0xffff0000, v%d' % (b, 8 + d))
        p('v_mul_f32 v%d, v%d, v46' % (a, a))
        p('v_mul_f32 v%d, v%d, v46' % (b, b))
        p('v_cvt_pk_bf16_f32 v%d, v%d, v%d' % (8 + d, a, b))
    p('s_mov_b32 s18, 8192')
    p('s_mov_b32 s19, 16384')
    p('buffer_store_dwordx4 v[8:11], v6, s[8:11], 0 offen')
    p('buffer_store_dwordx4 v[12:15], v6, s[8:11], s18 offen')
    p('s_mov_b64 exec, s[16:17]')
    p('buffer_store_dwordx4 v[16:19], v6, s[8:11], s19 offen')
    p.label('L_ln_end')
    p('s_endpgm')
    p.finalize()
    return p


S_K, S_V, S_XN, S_WS, S_WQ, S_H, S_O, S_FL, S_A1, S_A2, S_A3, S_A4 = 4, 8, 12, 16, 20, 24, 28, 32, 36, 40, 44, 48
S_DW2, S_DWO, S_DH, S_DO, S_DP, S_DR, S_DX, S_DOUT = 12, 16, 20, 24, 36, 40, 44, 48
(S_W, S_MK, S_MV, S_OFFK, S_OFFV, S_CNT, S_HD, S_QT, S_M1, S_OFFW, S_OFFQ, S_C, S_NL, S_FWG, S_FGR, S_FT,
 S_RO, S_SP, S_TILE) = range(52, 71)
S_HS = 71
S_T0 = 79
S_DG = 90
P_X, P_WO, P_W2, P_OUT, P_WS = 92, 94, 96, 98, 100
T = lambda k: sr(S_T0 + k)

V_L16, V_LANE = 2, 3
V_A1 = 4
V_OW = 8
V_AQ = 8
V_OQ = 20
V_OK, V_OV = 22, 26
V_SW = 28
V_T = 34
V_KA, V_VA, V_L, V_E = 4, 8, 16, 28
V_NM, V_S, V_P, V_Q = 40, 56, 120, 184
V_FST, V_ONE, V_FOFF, V_FV = 252, 253, 254, 255
A_O, A_KF, A_VF = 0, 128, 192
A_A, A_B = 128, 160
X0 = 72
DK, DV = 4, 2
L = vr(V_LANE)
t0, t1, t2, t3 = (vr(V_T + i) for i in range(4))


def LS(n):
    return (n * 16384, 16384)


def VP(u):
    return (u + 3) % 4


DBASE = [0, 126976, 36864, 73728]


def DS(c):
    return (DBASE[c % 4], 36864)


def PS(c):
    return ((c % 4) * 36864, 36864)


def Sreg(kb, qb):
    return V_S + (kb * 4 + qb) * 4


def Preg(u, qb, ks):
    return V_P + (u & 1) * 32 + qb * 8 + ks * 4


def ktag(u, inloop):
    return (lambda it: ('K', u + 4 * it)) if inloop else ('K', u)


def vtag(u, inloop):
    return (lambda it: ('V', u + 4 * it)) if inloop else ('V', u)


def k_load(u, kb, s, inloop):
    return Ins('ds_read_b128 %s, %s offset:%d' % (ar(A_KF + kb * 16 + s * 4, 4), vr(V_KA + s), (u % 4) * 16384 + kb * 4096),
               lds=(LS(u % 4), ktag(u, inloop)))


def v_load(u, db, ks, j, inloop):
    return Ins('ds_read_b64_tr_b16 %s, %s offset:%d' % (
        ar(A_VF + db * 8 + ks * 4 + 2 * j, 2), vr(V_VA + db), VP(u) * 16384 + (32 * ks + 16 * j) * 256),
        lds=(LS(4 + VP(u)), vtag(u, inloop)))


def dma_unit(kind, u, inloop):
    out = []
    if kind == 'K':
        out.append(Ins('s_add_u32 m0, %s, %d' % (sr(S_MK), (u % 4) * 16384)))
        for cc in range(4):
            out.append(Ins('buffer_load_dwordx4 %s, %s, %s offen offset:%d lds' % (
                vr(V_OK + cc), sr(S_K, 4), sr(S_OFFK), cc * 1024), lds=(LS(u % 4), ktag(u, inloop))))
        out.append(Ins('s_add_u32 %s, %s, 16384' % (sr(S_OFFK), sr(S_OFFK))))
    else:
        out.append(Ins('s_add_u32 m0, %s, %d' % (sr(S_MV), VP(u) * 16384)))
        for cc in range(4):
            out.append(Ins('buffer_load_dwordx4 %s, %s, %s offen offset:%d lds' % (
                vr(V_OV + cc % 2), sr(S_V, 4), sr(S_OFFV), cc * 1024), lds=(LS(4 + VP(u)), vtag(u, inloop))))
        out.append(Ins('s_add_u32 %s, %s, 16384' % (sr(S_OFFV), sr(S_OFFV))))
    return out


def sm_instrs(uu, i):
    n, r = i // 4, i % 4
    kb, qb = n // 4, n % 4
    e = vr(V_E + i % 4)
    ex = Ins('v_exp_f32 %s, %s' % (e, vr(Sreg(kb, qb) + r)))
    ad = Ins('v_add_f32 %s, %s, %s' % (vr(V_L + qb), vr(V_L + qb), e))
    cv = None
    if r % 2 == 1:
        cv = Ins('v_cvt_pk_bf16_f32 %s, %s, %s' % (
            vr(Preg(uu, qb, kb // 2) + (kb % 2) * 2 + r // 2), vr(V_E + (i - 1) % 4), e))
    return ex, ad, cv


def att_slots(p, u, ta, tb, inloop, pv=True, qk=True, sm_cur=True, sm_next=True, vnext=True, dmak=True, dmav=True,
              barrier=True, g=None, cap=2, vearly=False, extra_need=()):
    T0 = -40
    R = range(-128, 256)
    sc = {t: [] for t in R}
    ld = {t: [] for t in R}
    va = {t: [] for t in R}
    for t in range(0, 128, 2):
        if t >= X0:
            uu, i, on = u + 1, (t - X0) // 2, sm_next
        else:
            uu, i, on = u, (t + 128 - X0) // 2, sm_cur
        if on:
            ex, ad, cv = sm_instrs(uu, i)
            va[t].append(ex)
            va[t + 1].append(ad)
            if cv is not None:
                va[t + 1].append(cv)
    pos = [t for t in range(T0, T0 + 128) if t % 8 in (1, 4, 5)]
    n = 0
    m = 0
    for db in range(8):
        for ks in range(2):
            for j in range(2):
                t = pos[n]
                n += 1
                if t >= 0:
                    if pv:
                        ld[t].append(v_load(u - 1, db, ks, j, inloop))
                elif vnext:
                    if vearly:
                        ld[46 + m].append(v_load(u, db, ks, j, inloop))
                        m += 1
                    else:
                        ld[t + 128].append(v_load(u, db, ks, j, inloop))
        t = 8 * db - 1
        sc[t if t >= 0 else t + 128].append(wait_ins(ar(A_VF + db * 8, 8)))
    for kb in range(4):
        for s in range(4):
            t = pos[n]
            n += 1
            if qk:
                ld[t].append(k_load(u + 1, kb, s, inloop))
        if qk:
            sc[64 + 16 * kb - 1].append(wait_ins(ar(A_KF + kb * 16, 16)))
    for on, kind, uu, tt in ((dmav, 'V', u + DV, 2), (dmak, 'K', u + DK, 66)):
        if on:
            lst = dma_unit(kind, uu, inloop)
            sc[tt].append(lst[0])
            ds = OPT.get('dstep', 8)
            for k in range(4):
                ld[tt + ds * k + (4 if k == 0 else 0)].append(lst[1 + k])
            sc[tt + ds * 3 + 1].append(lst[5])
    if barrier:
        nd = [(LS(4 + VP(u)), vtag(u, inloop))] + list(extra_need)
        if qk:
            nd.append((LS((u + 1) % 4), ktag(u + 1, inloop)))
        sc[0].append(need_ins(*nd))
        sc[1].append(Ins('s_barrier'))
    g = g or Gaps(p)
    for t in range(ta, tb):
        mf = None
        if t < 64:
            if pv:
                db, qb, ks = t // 8, (t % 8) // 2, t % 2
                o = ar(A_O + (db * 4 + qb) * 4, 4)
                mf = '%s %s, %s, %s, %s' % (MF, o, ar(A_VF + db * 8 + ks * 4, 4), vr(Preg(u - 1, qb, ks), 4), o)
        elif qk:
            tt = t - 64
            kb, qb, s = tt // 16, (tt % 16) // 4, tt % 4
            d = vr(Sreg(kb, qb), 4)
            c = vr(V_NM + qb * 4, 4) if s == 0 else d
            mf = '%s %s, %s, %s, %s' % (MF, d, ar(A_KF + kb * 16 + s * 4, 4), vr(V_Q + (qb * 4 + s) * 4, 4), c)
        assert len(sc[t]) <= 1 and len(ld[t]) <= 1
        if mf is None and not (sc[t] or ld[t] or va[t]):
            continue
        g.gap(mf, sc[t], ld[t], va[t], cap=cap)


def kv_dma_setup():
    o = []
    a = lambda s: o.append(Ins(s))
    a('v_and_b32 %s, 15, %s' % (t0, L))
    a('v_lshrrev_b32 %s, 4, %s' % (t1, L))
    a('v_lshlrev_b32 %s, 8, %s' % (t2, t1))
    a('v_add_u32 %s, %s, %s' % (t2, sr(S_MK), t2))
    a('v_xor_b32 %s, %s, %s' % (t3, t0, t1))
    a('v_lshl_add_u32 %s, %s, 4, %s' % (vr(V_OK), t3, t2))
    for c in range(1, 4):
        a('v_xor_b32 %s, %d, %s' % (vr(V_OK + c), c * 64, vr(V_OK)))
    a('v_lshlrev_b32 %s, 1, %s' % (t3, t1))
    a('v_xor_b32 %s, %s, %s' % (t3, t0, t3))
    a('v_lshl_add_u32 %s, %s, 4, %s' % (vr(V_OV), t3, t2))
    a('v_xor_b32 %s, 128, %s' % (vr(V_OV + 1), vr(V_OV)))
    return o


def k_read_setup():
    o = []
    a = lambda s: o.append(Ins(s))
    a('v_and_b32 %s, 15, %s' % (t0, L))
    a('v_lshrrev_b32 %s, 4, %s' % (t1, L))
    a('v_xor_b32 %s, %s, %s' % (t2, t0, t1))
    a('v_lshlrev_b32 %s, 4, %s' % (t2, t2))
    a('v_lshl_add_u32 %s, %s, 8, %s' % (vr(V_KA), t0, t2))
    for s in range(1, 4):
        a('v_xor_b32 %s, %d, %s' % (vr(V_KA + s), s * 64, vr(V_KA)))
    return o


def v_read_setup():
    o = []
    a = lambda s: o.append(Ins(s))
    a('v_lshrrev_b32 %s, 2, %s' % (t2, L))
    a('v_and_b32 %s, 7, %s' % (t3, t2))
    a('v_lshlrev_b32 %s, 5, %s' % (t3, t3))
    a('v_lshl_add_u32 %s, %s, 8, %s' % (t3, t2, t3))
    a('v_and_b32 %s, 3, %s' % (t2, L))
    a('v_lshl_add_u32 %s, %s, 3, %s' % (t3, t2, t3))
    a('v_add_u32 %s, 0x10000, %s' % (vr(V_VA), t3))
    for d in range(1, 8):
        a('v_xor_b32 %s, %d, %s' % (vr(V_VA + d), d * 32, vr(V_VA)))
    return o


def xlane4(op, xs, ts):
    o = []
    for perm in ('v_permlane32_swap_b32', 'v_permlane16_swap_b32'):
        for x, t in zip(xs, ts):
            o.append(Ins('v_mov_b32 %s, %s' % (t, x)))
        for x, t in zip(xs, ts):
            o.append(Ins('%s %s, %s' % (perm, x, t)))
        for x, t in zip(xs, ts):
            o.append(Ins('%s %s, %s, %s' % (op, x, x, t)))
    return o


def div18(o, n, row, sl):
    o.append(Ins('v_mul_u32_u24 %s, 3641, %s' % (row, n)))
    o.append(Ins('v_lshrrev_b32 %s, 16, %s' % (row, row)))
    o.append(Ins('v_mul_u32_u24 %s, 18, %s' % (sl, row)))
    o.append(Ins('v_sub_u32 %s, %s, %s' % (sl, n, sl)))


def ffn_tiles():
    m, nv, na = {}, 0, 0
    for b in range(9):
        for mat in range(2):
            for qb in range(4):
                if mat == 1 and na < 18:
                    m[(2 * b + mat, qb)] = ('a', na * 4)
                    na += 1
                else:
                    m[(2 * b + mat, qb)] = ('v', 40 + nv * 4)
                    nv += 1
    assert nv == 54 and na == 18
    return m


FT = ffn_tiles()
WQ_SLOT = {8: 9, 7: 3, 6: 4, 5: 5, 4: 6, 3: 7, 2: 8, 1: 9, 0: 3}


def p1_dma(c):
    out = [Ins('s_add_u32 %s, %s, %d' % (T(8), sr(S_OFFW), c * 64 * 9216))]
    for i in range(9):
        if i % 4 == 0:
            out.append(Ins('s_add_u32 m0, %s, %d' % (sr(S_M1), PS(c)[0] + (i // 4) * 4096)))
        out.append(Ins('buffer_load_dwordx4 %s, %s, %s offen offset:%d lds' % (
            vr(V_OW + i), sr(S_WS, 4), T(8), (i % 4) * 1024), lds=(PS(c), ('W', c))))
    return out


def xn_loads(c, buf):
    base = A_B + buf * 32
    out = []
    for qb in range(4):
        out.append(Ins('s_mov_b32 %s, %d' % (T(qb), qb * 18 * 1024 + c * 2048)))
        for ks in range(2):
            out.append(Ins('buffer_load_dwordx4 %s, %s, %s, %s offen offset:%d' % (
                ar(base + (qb * 2 + ks) * 4, 4), vr(V_L16), sr(S_XN, 4), T(qb), ks * 1024)))
    return out


def wq_dma(c):
    sl = WQ_SLOT[c]
    out = []
    for cc in range(4):
        out.append(Ins('s_add_u32 %s, %s, %d' % (T(4 + cc % 2), sr(S_OFFQ), (c * 64 + cc * 4) * 8192)))
        out.append(Ins('s_add_u32 m0, %s, %d' % (sr(S_MK), sl * 16384 + cc * 1024)))
        out.append(Ins('buffer_load_dwordx4 %s, %s, %s offen lds' % (
            vr(V_OQ + cc % 2), sr(S_WQ, 4), T(4 + cc % 2)), lds=(LS(sl), ('Q', c))))
    return out


def p1_reads(c, blk, dst):
    mat, b = blk % 2, blk // 2
    return [Ins('ds_read_b64_tr_b16 %s, %s offset:%d' % (
        ar(dst + ks * 4 + 2 * j, 2), vr(V_A1 + c % 4),
        mat * 18432 + (32 * ks + 16 * j) * 288 + 32 * b), lds=(PS(c), ('W', c)))
        for ks in range(2) for j in range(2)]


def p2_reads(c, bq, dst):
    s, jj = bq // 2, bq % 2
    sl = WQ_SLOT[c]
    return [Ins('ds_read_b64_tr_b16 %s, %s offset:%d' % (
        ar(dst + ks * 4 + 2 * j, 2), vr(V_AQ + (sl // 4) * 4 + s),
        (sl % 4) * 16384 + (32 * ks + 16 * j) * 256 + 8 * jj), lds=(LS(sl), ('Q', c)))
        for ks in range(2) for j in range(2)]


def swiglu_unit(b, qb, ready, pool):
    gt, ut = FT[(2 * b, qb)], FT[(2 * b + 1, qb)]
    pk = FT[(2 * (b - b % 2), qb)][1] + (b % 2) * 2
    o = []
    ta, tb = vr(V_SW), vr(V_SW + 1)
    for r in (0, 2):
        pa, pb = vr(V_SW + 2 + r), vr(V_SW + 3 + r)
        g0, g1 = vr(gt[1] + r), vr(gt[1] + r + 1)
        if ut[0] == 'a':
            o.append(Ins('v_accvgpr_read_b32 %s, %s' % (pa, ar(ut[1] + r))))
            o.append(Ins('v_accvgpr_read_b32 %s, %s' % (pb, ar(ut[1] + r + 1))))
            u0, u1 = pa, pb
        else:
            u0, u1 = vr(ut[1] + r), vr(ut[1] + r + 1)
        if OPT.get('fold', 0):
            o.append(Ins('v_exp_f32 %s, %s' % (ta, g0)))
            o.append(Ins('v_exp_f32 %s, %s' % (tb, g1)))
        else:
            o.append(Ins('v_mul_f32 %s, %s, %s' % (ta, sr(S_NL), g0)))
            o.append(Ins('v_mul_f32 %s, %s, %s' % (tb, sr(S_NL), g1)))
            o.append(Ins('v_exp_f32 %s, %s' % (ta, ta)))
            o.append(Ins('v_exp_f32 %s, %s' % (tb, tb)))
        o.append(Ins('v_mul_f32 %s, %s, %s' % (pa, g0, u0)))
        o.append(Ins('v_mul_f32 %s, %s, %s' % (pb, g1, u1)))
        o.append(Ins('v_add_f32 %s, 1.0, %s' % (ta, ta)))
        o.append(Ins('v_add_f32 %s, 1.0, %s' % (tb, tb)))
        o.append(Ins('v_rcp_f32 %s, %s' % (ta, ta)))
        o.append(Ins('v_rcp_f32 %s, %s' % (tb, tb)))
        o.append(Ins('v_mul_f32 %s, %s, %s' % (pa, pa, ta)))
        o.append(Ins('v_mul_f32 %s, %s, %s' % (pb, pb, tb)))
    for r in (0, 2):
        o.append(Ins('v_cvt_pk_bf16_f32 %s, %s, %s' % (vr(pk + r // 2), vr(V_SW + 2 + r), vr(V_SW + 3 + r))))
    rel = [ut] + ([gt] if b % 2 == 1 else [])
    if b % 2 == 1:
        o.append(Ins('buffer_store_dwordx4 %s, %s, %s, %s offen offset:%d sc1' % (
            vr(pk - 2, 4), vr(V_L16), sr(S_H, 4), sr(S_HS + qb), (b // 2) * 1024), lds=('H', 0)))
        if OPT.get('plain_h'):
            o[-1].text = o[-1].text.replace(' sc1', '')
        rel.append(FT[(2 * (b - 1), qb)])
    elif b == 8:
        o.append(Ins('buffer_store_dwordx2 %s, %s, %s, %s offen sc1' % (
            vr(pk, 2), vr(V_L16), sr(S_H, 4), sr(S_HS + 4 + qb)), lds=('H', 0)))
        if OPT.get('plain_h'):
            o[-1].text = o[-1].text.replace(' sc1', '')
    o[0].ready = ready
    o[-1].on_emit = lambda: pool.extend(t for t in rel if not (t[0] == 'v' and t[1] >= V_Q))
    return o


def qcvt_unit(qb, s, QT, ready):
    o = []
    for h in range(2):
        tl = QT[(2 * s + h, qb)]
        tm = [vr(V_SW + e) for e in range(4)]
        for e in range(4):
            if tl[0] == 'a':
                o.append(Ins('v_accvgpr_read_b32 %s, %s' % (tm[e], ar(tl[1] + e))))
        for e in range(4):
            o.append(Ins('v_mul_f32 %s, %s, %s' % (tm[e], sr(S_C), tm[e] if tl[0] == 'a' else vr(tl[1] + e))))
        for e in range(2):
            o.append(Ins('v_cvt_pk_bf16_f32 %s, %s, %s' % (vr(V_Q + (qb * 4 + s) * 4 + 2 * h + e), tm[2 * e], tm[2 * e + 1])))
    o[0].ready = ready
    return o


class GemmSeq:
    def __init__(self, p, g):
        self.p, self.g = p, g
        self.groups = []

    def add(self, reads, nfr, mf, hook=None, bar=None, bwait=None, cap=2):
        self.groups.append(dict(reads=reads, n=nfr, mf=mf, hook=hook, bar=bar, bwait=bwait, cap=cap))

    def run(self):
        G, g, p = self.groups, self.g, self.p
        pos = 0
        for x in G:
            if x['n'] == 16 and pos % 16:
                pos += 8
            x['dst'] = A_A + pos % 32
            pos += x['n']
        for k, x in enumerate(G):
            regs = lambda y: set(range(y['dst'], y['dst'] + y['n']))
            ld = 1
            if k >= 2 and not (regs(x) & regs(G[k - 1])) and not (regs(x) & regs(G[k - 2])) and G[k - 1]['n'] == 8:
                ld = 2
            assert k == 0 or not (regs(x) & regs(G[k - 1]))
            x['at'] = k - ld
        for x in G:
            if x['at'] < 0:
                if x['bar']:
                    p.need(*x['bar'])
                    p('s_barrier')
                for i in x['reads'](x['dst']):
                    p.add(i)
        for k, x in enumerate(G):
            if x['hook']:
                x['hook']()
            todo = [y for y in G if y['at'] == k]
            rd, bar = [], []
            for y in todo:
                rd += y['reads'](y['dst'])
                if y['bar'] is not None:
                    bar += y['bar']
            hasbar = any(y['bar'] is not None for y in todo)
            mfs = x['mf'](x['dst'])
            n = len(mfs)
            st = 3 if hasbar else 0
            step = 2 if (st + 2 * ((len(rd) + 1) // 2) <= n - 1) else 1
            for t in range(n):
                sc, ld = [], []
                if hasbar and t == 1:
                    sc = [need_ins(('lgkm', 'all'), *bar)]
                if hasbar and t == 2:
                    sc = [Ins('s_barrier')]
                if t >= st and (t - st) % step == 0 and rd:
                    ld = rd[:2]
                    rd = rd[2:]
                if t == n - 1 and k + 1 < len(G):
                    y = G[k + 1]
                    bw = y['bwait']() if callable(y['bwait']) else (y['bwait'] or [])
                    w = [ar(y['dst'], y['n'])] + bw
                    sc = [wait_ins(*w)]
                g.gap(mfs[t](), sc, ld, cap=x['cap'])
                if hasbar and t == 2:
                    for y in todo:
                        if y.get('post'):
                            y['post']()
            assert not rd


V_DOWS = [22, 23, 24, 25, 26, 27, 248, 249, 250]
V_DRA = 40
V_DA = 56
V_AC2, V_AC1 = 104, 176
V_PK = 4
A_DB = 128
SPIN_BLOCKS = []


def poll_issue(soff):
    return Ins('buffer_load_dword %s, %s, %s, %s offen sc1' % (vr(V_FV), vr(V_FOFF), sr(S_FL, 4), sr(soff)))


def poll_check(p, name, soff, cmp='v_cmp_eq_u32 vcc, 0'):
    SPIN_BLOCKS.append("""L_spin_%(n)s:
 s_mov_b32 s3, 0
L_spin_%(n)s_l:
 s_sleep 4
 buffer_load_dword %(v)s, %(o)s, %(srd)s, %(so)s offen sc1
 s_add_u32 s3, s3, 1
 s_cmp_gt_u32 s3, 0x40000
 s_cbranch_scc1 L_ok_%(n)s
 s_waitcnt vmcnt(0)
 %(cmp)s, %(v)s
 s_cbranch_vccnz L_spin_%(n)s_l
 s_branch L_ok_%(n)s""" % dict(n=name, v=vr(V_FV), o=vr(V_FOFF), srd=sr(S_FL, 4), so=sr(soff), cmp=cmp))
    p('%s, %s' % (cmp, vr(V_FV)))
    p('s_cbranch_vccnz L_spin_%s' % name)
    p.label('L_ok_%s' % name)


def flag_store(soff, tag):
    return Ins('buffer_store_dword %s, %s, %s, %s offen sc1' % (
        vr(V_ONE), vr(V_FST), sr(S_FL, 4), sr(soff)), lds=('flag', (tag, 0)))


_ct = [0]


def code_touch(label, vo, vd, sp):
    _ct[0] += 1
    n = 'L_ct%d' % _ct[0]
    blk = Ins('; raw')
    blk.rawtext = (' s_getpc_b64 %(p)s\n%(n)s:\n s_add_u32 %(lo)s, %(lo)s, %(l)s-%(n)s\n s_addc_u32 %(hi)s, %(hi)s, 0' %
                   dict(p=sr(sp, 2), n=n, lo=sr(sp), hi=sr(sp + 1), l=label))
    return [blk,
            Ins('s_lshr_b32 s3, s2, 3'),
            Ins('s_lshl_b32 s3, s3, 11'),
            Ins('v_and_b32 %s, 15, %s' % (vr(vo), L)),
            Ins('v_lshlrev_b32 %s, 7, %s' % (vr(vo), vr(vo))),
            Ins('v_add_u32 %s, s3, %s' % (vr(vo), vr(vo))),
            Ins('v_min_u32 %s, L_code_end-%s-4, %s' % (vr(vo), label, vr(vo))),
            Ins('global_load_dword %s, %s, %s' % (vr(vd), vr(vo), sr(sp, 2)))]


def sadd(r, k):
    return Ins('s_add_u32 %s, %s, %d' % (sr(r), sr(r), k))


SK0, SK1, NPOS = 12, 16, 19
S_ADJW, S_ADJB = S_OFFK, S_OFFV


def dtag(c, at):
    if at < SK0 <= c:
        return lambda it: ('D', c + 4 if MODE[0] else c)
    return ('D', c)


def d_dma(c, at=0):
    out = []
    for i in range(9):
        if i % 4 == 0:
            if at >= SK1:
                out.append(Ins('s_add_u32 %s, %s, %d' % (T(8), sr(S_ADJW), c * 36864 + (i // 4) * 4096)))
            else:
                out.append(Ins('s_mov_b32 %s, %d' % (T(8), c * 36864 + (i // 4) * 4096)))
            out.append(Ins('s_add_u32 m0, %s, %d' % (sr(S_M1), DS(c)[0] + (i // 4) * 4096)))
        out.append(Ins('buffer_load_dwordx4 %s, %s, %s offen offset:%d sc1 lds' % (
            vr(V_L16), sr(S_DW2, 4), T(8), (i % 4) * 1024), lds=(DS(c), dtag(c, at))))
    return out


def d_bloads(c, at=0):
    srd, loc, rbs = (S_DH, c, HS()) if c < 9 else (S_DO, c - 9, OS())
    out = []
    for rb in range(2):
        if at >= SK1:
            out.append(Ins('s_add_u32 %s, %s, %d' % (T(9 + rb), sr(S_ADJB), loc * 4096 + rb * rbs)))
        else:
            out.append(Ins('s_mov_b32 %s, %d' % (T(9 + rb), loc * 4096 + rb * rbs)))
        for ks in range(4):
            out.append(Ins('buffer_load_dwordx4 %s, %s, %s, %s offen offset:%d sc1' % (
                ar(A_DB + (c % 4) * 32 + (rb * 4 + ks) * 4, 4), vr(V_L16), sr(srd, 4), T(9 + rb), ks * 1024)))
    return out


def d_reads(c, nb, at=None):
    return [Ins('ds_read_b64_tr_b16 %s, %s offset:%d' % (
        vr(V_DA + (nb % 3) * 16 + ks * 4 + 2 * j, 2), vr(V_DRA + c % 4), (32 * ks + 16 * j) * 288 + 32 * nb),
        lds=(DS(c), dtag(c, c if at is None else at))) for ks in range(4) for j in range(2)]


def d_pstore(gemm, nb):
    acc = (V_AC2 if gemm else V_AC1) + nb * 8
    pk = V_PK + (nb % 3) * 4
    out = []
    if nb % 4 == 0:
        out.append(Ins('s_mov_b32 %s, %d' % (T(nb // 4), gemm * PG + (nb // 4) * 4096)))
    for e in range(4):
        out.append(Ins('v_cvt_pk_bf16_f32 %s, %s, %s' % (vr(pk + e), vr(acc + 2 * e), vr(acc + 2 * e + 1))))
    out.append(Ins('buffer_store_dwordx4 %s, %s, %s, %s offen offset:%d sc1' % (
        vr(pk, 4), vr(V_L16), sr(S_DP, 4), T(nb // 4), (nb % 4) * 1024), lds=('PT%d' % gemm, 0)))
    return out


def d_ploads(gemm, base):
    out = []
    for k in range(3):
        for sp in range(4):
            t = T(4 + (k * 4 + sp) % 2)
            if k < 2:
                out.append(Ins('s_mov_b32 %s, %d' % (t, gemm * PG + sp * 4 * 9216 + k * 4096)))
            else:
                out.append(Ins('s_add_u32 %s, %s, %d' % (t, sr(S_OFFQ), gemm * PG + sp * 4 * 9216 + k * 4096)))
            out.append(Ins('buffer_load_dwordx4 %s, %s, %s, %s offen sc1' % (
                vr(base + (k * 4 + sp) * 4, 4), vr(V_L16), sr(S_DR, 4), t)))
    return out


def d_sum(base, k, dst, tmp):
    out = []
    for e in range(4):
        for sp in range(4):
            src = vr(base + (k * 4 + sp) * 4 + e)
            lo = vr(dst + 2 * e) if sp == 0 else vr(tmp)
            hi = vr(dst + 2 * e + 1) if sp == 0 else vr(tmp + 1)
            out.append(Ins('v_lshlrev_b32 %s, 16, %s' % (lo, src)))
            out.append(Ins('v_and_b32 %s, 0xffff0000, %s' % (hi, src)))
            if sp:
                out.append(Ins('v_add_f32 %s, %s, %s' % (vr(dst + 2 * e), vr(dst + 2 * e), lo)))
                out.append(Ins('v_add_f32 %s, %s, %s' % (vr(dst + 2 * e + 1), vr(dst + 2 * e + 1), hi)))
    return out


def d_scalar_setup1():
    o = []
    a = lambda s: o.append(Ins(s))
    a('s_mul_i32 %s, %s, 288' % (T(1), sr(S_W)))
    a('s_lshl_b32 %s, %s, 6' % (T(0), sr(S_SP)))
    a('s_add_u32 %s, %s, %s' % (T(0), T(0), sr(S_TILE)))
    a('s_mul_i32 %s, %s, %d' % (T(2), T(0), 18 * 1152))
    a('s_add_u32 %s, %s, %s' % (T(2), T(2), T(1)))
    o += srd_ins(S_A1, P_W2, T(2), 17 * 1152 + 288)
    a('s_and_b32 %s, %s, 1' % (T(7), sr(S_SP)))
    a('s_lshl_b32 %s, %s, 3' % (T(6), sr(S_SP)))
    a('s_lshl_b32 %s, %s, 1' % (T(3), T(7)))
    a('s_add_u32 %s, %s, %s' % (T(6), T(6), T(3)))
    a('s_lshl_b32 %s, %s, 3' % (T(7), T(7)))
    a('s_sub_u32 %s, 20, %s' % (T(7), T(7)))
    a('s_mul_i32 %s, %s, %s' % (T(9), T(7), sr(S_TILE)))
    a('s_lshl_b32 %s, %s, 7' % (T(2), T(6)))
    a('s_add_u32 %s, %s, %s' % (T(2), T(2), T(9)))
    a('s_mul_i32 %s, %s, 1152' % (T(2), T(2)))
    a('s_add_u32 %s, %s, %s' % (T(2), T(2), T(1)))
    a('s_mul_i32 %s, %s, 1152' % (T(3), T(7)))
    a('s_sub_u32 %s, %s, 864' % (T(3), T(3)))
    o += srd_ins(S_A2, P_WO, T(2), T(3))
    a('s_lshl_b32 %s, %s, 2' % (T(0), sr(S_SP)))
    a('s_add_u32 %s, %s, %s' % (T(1), T(0), sr(S_W)))
    a('s_mul_i32 %s, %s, %d' % (T(1), T(1), WBLK))
    a('s_add_u32 %s, %s, 0x%x' % (T(1), T(1), WS_W))
    a('s_mul_i32 %s, %s, %d' % (T(2), sr(S_TILE), 18 * 288))
    a('s_add_u32 %s, %s, %s' % (T(2), T(2), T(1)))
    o += srd_ins(S_A3, P_WS, T(2), 18 * 288)
    a('s_mul_i32 %s, %s, 288' % (T(2), T(9)))
    a('s_add_u32 %s, %s, %s' % (T(2), T(2), T(1)))
    a('s_add_u32 %s, %s, %d' % (T(2), T(2), 1152 * 288))
    a('s_mul_i32 %s, %s, 288' % (T(3), T(7)))
    o += srd_ins(S_A4, P_WS, T(2), T(3))
    a('s_mov_b32 %s, 0' % sr(S_RO))
    a('s_and_b32 %s, %s, 3' % (T(1), sr(S_TILE)))
    a('s_add_u32 %s, %s, %s' % (T(1), T(0), T(1)))
    a('s_mul_i32 %s, %s, %d' % (T(1), T(1), WBLK))
    a('s_add_u32 %s, %s, %s' % (T(1), T(1), sr(S_M1)))
    a('s_add_u32 %s, %s, 0x%x' % (T(1), T(1), WS_W))
    o += srd_ins(S_DW2, P_WS, T(1), 18 * 36864 + 9216)
    a('s_lshr_b32 %s, %s, 2' % (T(4), sr(S_TILE)))
    a('s_lshl_b32 %s, %s, 2' % (T(5), T(4)))
    a('s_add_u32 %s, %s, %s' % (T(5), T(5), sr(S_W)))
    a('s_mul_i32 %s, %s, %d' % (T(2), T(5), 2 * HS()))
    a('s_mul_i32 %s, %s, %d' % (T(3), sr(S_SP), 36 * 1024))
    a('s_add_u32 %s, %s, %s' % (T(2), T(2), T(3)))
    a('s_add_u32 %s, %s, 0x%x' % (T(2), T(2), WS_H))
    o += srd_ins(S_DH, P_WS, T(2), HS() + 36 * 1024)
    a('s_mul_i32 %s, %s, %d' % (T(2), T(5), 2 * OS()))
    a('s_lshl_b32 %s, %s, 12' % (T(3), T(6)))
    a('s_add_u32 %s, %s, %s' % (T(2), T(2), T(3)))
    a('s_add_u32 %s, %s, 0x%x' % (T(2), T(2), WS_O))
    o += srd_ins(S_DO, P_WS, T(2), OS() + 40 * 1024)
    return o


def d_scalar_setup2():
    o = []
    a = lambda s: o.append(Ins(s))
    a('s_lshl_b32 %s, %s, 2' % (T(2), sr(S_TILE)))
    a('s_add_u32 %s, %s, %s' % (T(2), T(2), sr(S_SP)))
    a('s_lshl_b32 %s, %s, 7' % (sr(S_FT), T(2)))
    a('s_add_u32 %s, %s, 0x10000' % (sr(S_FT), sr(S_FT)))
    a('s_lshl_b32 %s, %s, 2' % (T(2), T(2)))
    a('s_add_u32 %s, %s, %s' % (T(2), T(2), sr(S_W)))
    a('s_mul_i32 %s, %s, 9216' % (T(2), T(2)))
    a('s_add_u32 %s, %s, 0x%x' % (T(2), T(2), WS_P))
    o += srd_ins(S_DP, P_WS, T(2), PG + 9216)
    a('s_lshl_b32 %s, %s, 4' % (T(2), sr(S_TILE)))
    a('s_add_u32 %s, %s, %s' % (T(2), T(2), sr(S_SP)))
    a('s_mul_i32 %s, %s, 9216' % (T(2), T(2)))
    a('s_lshl_b32 %s, %s, 10' % (T(3), sr(S_W)))
    a('s_add_u32 %s, %s, %s' % (T(2), T(2), T(3)))
    a('s_add_u32 %s, %s, 0x%x' % (T(2), T(2), WS_P))
    o += srd_ins(S_DR, P_WS, T(2), PG + 14 * 9216)
    a('s_and_b32 %s, %s, 3' % (T(1), sr(S_TILE)))
    a('s_mul_i32 %s, %s, 288' % (T(1), T(1)))
    a('s_andn2_b32 %s, %s, 3' % (T(2), sr(S_TILE)))
    a('s_add_u32 %s, %s, %s' % (T(2), T(2), sr(S_SP)))
    a('s_mul_i32 %s, %s, %d' % (T(2), T(2), 32 * 1152))
    a('s_add_u32 %s, %s, %s' % (T(2), T(2), T(1)))
    o += srd_ins(S_DX, P_X, T(2), 31 * 1152 + 288)
    o += srd_ins(S_DOUT, P_OUT, T(2), 31 * 1152 + 288)
    a('s_lshl_b32 %s, %s, 28' % (sr(S_OFFQ), sr(S_W)))
    a('s_mov_b32 %s, 0x%x' % (sr(S_C), f2u(LOG2E * LOG2E)))
    a('s_mul_i32 %s, %s, %d' % (sr(S_HS), sr(S_W), 4 * OS()))
    for qb in range(1, 4):
        a('s_add_u32 %s, %s, 0x%x' % (sr(S_HS + qb), sr(S_HS), qb * OS()))
    a('s_lshl_b32 %s, %s, 5' % (sr(S_HS + 4), sr(S_W)))
    a('s_add_u32 %s, %s, %d' % (sr(S_HS + 5), sr(S_HS + 4), 16 * 1152))
    a('s_lshl_b32 %s, %s, 20' % (sr(S_HS + 6), sr(S_W)))
    a('s_add_u32 %s, %s, %d' % (sr(S_HS + 7), sr(S_HS + 6), 16 * 1152))
    return o


V_RN, V_RV = 20, 21
V_RQ = (248, 36)


def repack_pat():
    return [Ins('v_mul_u32_u24 %s, 3641, %s' % (vr(V_RV), vr(V_RN))),
            Ins('v_lshrrev_b32 %s, 16, %s' % (vr(V_RV), vr(V_RV))),
            Ins('v_mul_u32_u24 %s, 864, %s' % (vr(V_RV), vr(V_RV))),
            Ins('v_lshl_add_u32 %s, %s, 4, %s' % (vr(V_RV), vr(V_RN), vr(V_RV))),
            Ins('v_add_u32 %s, 64, %s' % (vr(V_RN), vr(V_RN)))]


def o_epilogue_unit(qb, t, n, ready):
    base = 184 + (n % 4) * 12
    o = []
    for r in range(8):
        o.append(Ins('v_accvgpr_read_b32 %s, %s' % (vr(base + r), ar(A_O + ((2 * t + r // 4) * 4 + qb) * 4 + r % 4))))
    for r in range(8):
        o.append(Ins('v_mul_f32 %s, %s, %s' % (vr(base + r), vr(base + r), vr(V_L + qb))))
    for r in range(4):
        o.append(Ins('v_cvt_pk_bf16_f32 %s, %s, %s' % (vr(base + 8 + r), vr(base + 2 * r), vr(base + 2 * r + 1))))
    o.append(Ins('buffer_store_dwordx4 %s, %s, %s, %s offen offset:%d%s' % (
        vr(base + 8, 4), vr(V_L16), sr(S_O, 4), sr(S_HS + qb), t * 1024, '' if OPT.get('plain_o', 0) else ' sc1'), lds=('O', 0)))
    o[0].ready = ready
    return o


def gen_slow_softmax():
    p = Prog()
    KA, VA, OK, OV, NM, MX = 120, 124, 132, 136, 140, 138
    NM = 44
    NM, OV, MX = 136, 32, 36
    p.label('L_slow')
    p('s_waitcnt vmcnt(0) lgkmcnt(0)')
    p('s_nop 15')
    p('s_add_u32 %s, %s, %d' % (T(0), sr(S_MK), 112 * 1024))
    p('s_cmp_eq_u32 %s, 3' % sr(S_W))
    p('s_cselect_b32 %s, %d, %s' % (T(0), 72 * 1024, T(0)))
    p('s_sub_u32 %s, %s, 0x10000' % (T(1), T(0)))
    for k in range(4):
        p('v_add_u32 %s, %s, %s' % (vr(KA + k), T(0), vr(V_KA + k)))
        p('v_subrev_u32 %s, %s, %s' % (vr(OK + k), sr(S_MK), vr(V_OK + k)))
    for k in range(8):
        p('v_add_u32 %s, %s, %s' % (vr(VA + k), T(1), vr(V_VA + k)))
    for k in range(2):
        p('v_subrev_u32 %s, %s, %s' % (vr(OV + k), sr(S_MK), vr(V_OV + k)))

    def load16(srd, vo, nvo):
        p('s_mov_b32 m0, %s' % T(0))
        for cc in range(4):
            p('buffer_load_dwordx4 %s, %s, %s offen offset:%d lds' % (vr(vo + cc % nvo), sr(srd, 4), T(2), cc * 1024))
        p('s_add_u32 %s, %s, 4096' % (T(2), T(2)))
        p('s_waitcnt vmcnt(0)')

    def qk(cin):
        p('s_mov_b32 %s, %s' % (T(2), T(3)))
        for kb in range(4):
            load16(S_K, OK, 4)
            for sx in range(4):
                p('ds_read_b128 %s, %s' % (ar(A_VF + (kb * 4 + sx) * 4, 4), vr(KA + sx)))
            p('s_waitcnt lgkmcnt(0)')
        for kb in range(4):
            for qb in range(4):
                for sx in range(4):
                    d = vr(Sreg(kb, qb), 4)
                    p('%s %s, %s, %s, %s' % (MF, d, ar(A_VF + (kb * 4 + sx) * 4, 4), vr(V_Q + (qb * 4 + sx) * 4, 4),
                                             cin(qb) if sx == 0 else d))
    for qb in range(4):
        p('v_mov_b32 %s, 0xff7fffff' % vr(MX + qb))
    p('s_mov_b32 %s, 0' % T(3))
    p.loop_begin(2, 's1')
    p.label('L_slow1')
    qk(lambda qb: '0')
    for qb in range(4):
        regs = [vr(Sreg(kb, qb) + r) for kb in range(4) for r in range(4)]
        for k in range(8):
            p('v_max3_f32 %s, %s, %s, %s' % (vr(MX + qb), vr(MX + qb), regs[2 * k], regs[2 * k + 1]))
    p('s_add_u32 %s, %s, 16384' % (T(3), T(3)))
    p('s_cmp_lt_u32 %s, 0x80000' % T(3))
    p('s_cbranch_scc1 L_slow1')
    p.loop_end()
    for x in xlane4('v_max_f32', [vr(MX + k) for k in range(4)], [vr(V_E + k) for k in range(4)]):
        p.add(x)
    for qb in range(4):
        for r in range(4):
            p('v_sub_f32 %s, 0, %s' % (vr(NM + qb * 4 + r), vr(MX + qb)))
        p('v_mov_b32 %s, 0' % vr(V_L + qb))
    for i in range(128):
        p('v_accvgpr_write_b32 %s, 0' % ar(A_O + i))
    p('s_mov_b32 %s, 0' % T(3))
    lp = p.loop_begin(3, 's2')
    p.label('L_slow2')
    qk(lambda qb: vr(NM + qb * 4, 4))
    for i in range(64):
        for x in sm_instrs(1, i):
            if x is not None:
                p.add(x)
    p('s_cmp_eq_u32 %s, 0x7c000' % T(3))
    p('s_cbranch_scc1 L_slow_done')
    p.loop_mark_exit(lp)
    p('s_mov_b32 %s, %s' % (T(2), T(3)))
    for ks in range(2):
        for j in range(2):
            load16(S_V, OV, 2)
            for db in range(8):
                p('ds_read_b64_tr_b16 %s, %s' % (ar(A_VF + db * 8 + ks * 4 + 2 * j, 2), vr(VA + db)))
            p('s_waitcnt lgkmcnt(0)')
    for db in range(8):
        for qb in range(4):
            for ks in range(2):
                o = ar(A_O + (db * 4 + qb) * 4, 4)
                p('%s %s, %s, %s, %s' % (MF, o, ar(A_VF + db * 8 + ks * 4, 4), vr(Preg(1, qb, ks), 4), o))
    p('s_add_u32 %s, %s, 16384' % (T(3), T(3)))
    p('s_branch L_slow2')
    p.loop_end()
    p.label('L_slow_done')
    for db in range(4):
        for ks in range(2):
            for j in range(2):
                x = v_load(31, db, ks, j, False)
                x.lds = None
                p.add(x)
    p('s_waitcnt vmcnt(0) lgkmcnt(0)')
    p('s_nop 15')
    p('s_branch L_slow_ret')
    p.finalize()
    return p.text().rstrip('\n')


def gen_main(diag=False):
    p = Prog()
    del SPIN_BLOCKS[:]
    _ct[0] = 0

    def stamp(k):
        if diag:
            p('s_memtime %s' % sr(S_DG, 2))
            p('s_waitcnt lgkmcnt(0)')
            p('v_writelane_b32 v1, %s, %d' % (sr(S_DG), k))
            p('s_memrealtime %s' % sr(S_DG, 2))
            p('s_waitcnt lgkmcnt(0)')
            p('v_writelane_b32 v1, %s, %d' % (sr(S_DG), k + 16))

    def addall(lst):
        for x in lst:
            p.add(x)
    p('s_cmp_ge_u32 s2, 256')
    p('s_cbranch_scc1 L_end')
    p('s_load_dwordx4 s[44:47], s[0:1], 48')
    p('s_load_dwordx2 %s, s[0:1], 88' % sr(P_WS, 2))
    p('s_load_dwordx4 s[36:39], s[0:1], 8')
    p('s_load_dwordx2 s[40:41], s[0:1], 24')
    p('s_load_dwordx2 %s, s[0:1], 0' % sr(P_X, 2))
    p('s_load_dwordx2 %s, s[0:1], 32' % sr(P_WO, 2))
    p('s_load_dwordx4 %s, s[0:1], 64' % sr(P_W2, 4))
    stamp(0)
    p('v_and_b32 %s, 63, v0' % L)
    p('v_lshrrev_b32 %s, 6, v0' % t0)
    p('v_readfirstlane_b32 %s, %s' % (sr(S_W), t0))
    p('s_and_b32 %s, s2, 3' % T(0))
    p('s_lshl_b32 %s, %s, 3' % (T(0), T(0)))
    p('s_bfe_u32 %s, s2, 0x30003' % T(1))
    p('s_add_u32 %s, %s, %s' % (sr(S_HD), T(0), T(1)))
    p('s_and_b32 %s, s2, 4' % T(0))
    p('s_lshr_b32 %s, s2, 6' % T(1))
    p('s_add_u32 %s, %s, %s' % (sr(S_QT), T(0), T(1)))
    p('v_lshlrev_b32 %s, 4, %s' % (vr(V_L16), L))
    p('s_and_b32 %s, %s, 1' % (T(2), sr(S_HD)))
    p('s_lshl_b32 %s, %s, 1' % (T(2), T(2)))
    p('v_add_u32 %s, %s, %s' % (t3, T(2), L))
    p('v_mul_u32_u24 %s, 3641, %s' % (vr(V_T + 4), L))
    p('v_mul_u32_u24 %s, 3641, %s' % (vr(V_T + 5), t3))
    p('s_movk_i32 %s, 9216' % T(9))
    p('s_movk_i32 %s, -288' % T(10))
    vo = []
    for i in range(9):
        o = []
        o.append(Ins('v_add_u32 %s, %d, %s' % (t0, 64 * i * 3641, vr(V_T + 4))))
        o.append(Ins('v_add_u32 %s, %d, %s' % (t1, 64 * i * 3641, vr(V_T + 5))))
        o.append(Ins('v_lshrrev_b32 %s, 16, %s' % (t0, t0)))
        o.append(Ins('v_lshrrev_b32 %s, 16, %s' % (t1, t1)))
        o.append(Ins('v_lshlrev_b32 %s, 4, %s' % (t2, t3)) if i == 0 else Ins('v_add_u32 %s, %d, %s' % (t2, 4096 if i % 4 == 0 else 0, t2)))
        o.append(Ins('v_mad_u32_u24 %s, %s, %s, %s' % (t0, t0, T(9), t2)))
        o.append(Ins('v_mad_i32_i24 %s, %s, %s, %s' % (vr(V_OW + i), t1, T(10), t0)))
        if i % 4:
            del o[4]
        vo.append(o)
    for o in vo[:4]:
        addall(o)
    p('s_mul_i32 %s, %s, 9216' % (sr(S_M1), sr(S_W)))
    p('s_and_b32 %s, %s, 1' % (T(3), sr(S_W)))
    p('s_mul_i32 %s, %s, %d' % (sr(S_OFFW), T(3), 32 * 9216))
    p('s_mul_i32 %s, %s, 288' % (T(2), sr(S_HD)))
    p('s_sub_u32 %s, %d, %s' % (T(3), 576 * 9216, T(2)))
    p('s_lshl_b32 %s, %s, 2' % (T(6), sr(S_QT)))
    p('s_add_u32 %s, %s, %s' % (T(6), T(6), sr(S_W)))
    p('s_mul_i32 %s, %s, %d' % (T(7), T(6), 4 * 18 * 1024))
    p('s_cmp_lt_u32 %s, 2' % sr(S_W))
    p('s_waitcnt lgkmcnt(0)')
    p('s_cselect_b32 s48, s44, s46')
    p('s_cselect_b32 s49, s45, s47')
    make_srd(p, S_WS, 48, T(2), T(3))
    make_srd(p, S_XN, P_WS, T(7), 4 * 18 * 1024)
    d0 = p1_dma(0)
    addall(d0[:6])
    for o in vo[4:]:
        addall(o)
    addall(d0[6:] + xn_loads(0, 0))
    if OPT.get('pro', 1) == 0:
        addall(p1_dma(1) + xn_loads(1, 1) + p1_dma(2))
    PF0 = OPT.get('pf0', 12)
    assert PF0 % 2 == 0
    p('s_lshr_b32 %s, s2, 3' % T(0))
    p('s_and_b32 %s, s2, 3' % T(1))
    p('s_lshl_b32 %s, %s, 1' % (T(2), T(0)))
    p('s_and_b32 %s, %s, 1' % (T(3), sr(S_W)))
    p('s_add_u32 %s, %s, %s' % (T(2), T(2), T(3)))
    p('s_mul_i32 %s, %s, 9216' % (T(2), T(2)))
    p('s_mul_i32 %s, %s, 2304' % (T(3), T(1)))
    p('s_add_u32 %s, %s, %s' % (T(2), T(2), T(3)))
    p('s_sub_u32 %s, %d, %s' % (T(9), 576 * 9216, T(2)))
    p('s_lshl_b32 %s, %s, 2' % (T(4), T(0)))
    p('s_add_u32 %s, %s, %s' % (T(4), T(4), sr(S_W)))
    p('s_lshl_b32 %s, %s, 13' % (T(4), T(4)))
    p('s_lshl_b32 %s, %s, 11' % (T(3), T(1)))
    p('s_add_u32 %s, %s, %s' % (T(4), T(4), T(3)))
    p('s_sub_u32 %s, %d, %s' % (T(10), 576 * 8192, T(4)))
    p('s_lshl_b32 %s, %s, 19' % (T(5), sr(S_HD)))
    make_srd(p, S_K, 36, T(5), 0x80000)
    make_srd(p, S_V, 38, T(5), 0x80000)
    p('s_lshl_b32 %s, %s, 8' % (T(5), sr(S_HD)))
    p('s_sub_u32 %s, %d, %s' % (T(3), 576 * 8192, T(5)))
    make_srd(p, S_WQ, 40, T(5), T(3))
    make_srd(p, S_A1, 48, T(2), T(9))
    make_srd(p, S_A2, 40, T(4), T(10))
    p('v_lshlrev_b32 %s, 7, %s' % (t1, L))
    p('v_mov_b32 %s, 0x7f000000' % t2)
    p('v_cmp_gt_u32 vcc, 18, %s' % L)
    p('v_cndmask_b32 %s, %s, %s, vcc' % (vr(V_SW), t2, t1))
    p('v_cmp_gt_u32 vcc, 16, %s' % L)
    p('v_cndmask_b32 %s, %s, %s, vcc' % (vr(V_SW + 1), t2, t1))
    tw = lambda c: [Ins('s_mov_b32 %s, %d' % (T(7), c * 64 * 9216)),
                    Ins('buffer_load_dword %s, %s, %s, %s offen sc0' % (vr(V_SW + 2), vr(V_SW), sr(S_A1, 4), T(7)))]
    tq = lambda k: [Ins('s_mov_b32 %s, %d' % (T(7), k * 128 * 8192)),
                    Ins('buffer_load_dword %s, %s, %s, %s offen sc0' % (vr(V_SW + 3), vr(V_SW + 1), sr(S_A2, 4), T(7)))]
    touch = {c: [] for c in range(7)}
    for k, c in enumerate(range(PF0 // 2, 9)):
        touch[min(k, 6)] += tw(c)
    for k in range(5):
        touch[k + OPT.get('tq0', 0)] += tq(4 - k)
    for c in touch:
        for x in touch[c]:
            x.wr = [r for r in x.wr if r[0] != 'v']
    if not OPT.get('pf1', 1):
        touch = {}
    if OPT.get('fold', 0):
        p('s_mov_b32 %s, 0x%x' % (sr(S_C), f2u(-1.0 / 128 ** 0.5)))
        p('s_mov_b32 %s, 0x%x' % (sr(S_NL), f2u(-1.0 / LOG2E)))
    else:
        p('s_mov_b32 %s, 0x%x' % (sr(S_C), f2u(LOG2E / 128 ** 0.5)))
        p('s_mov_b32 %s, 0x%x' % (sr(S_NL), f2u(-LOG2E)))
    p('s_lshl_b32 %s, %s, 12' % (sr(S_MK), sr(S_W)))
    p('s_add_u32 %s, %s, 0x10000' % (sr(S_MV), sr(S_MK)))
    p('s_mov_b32 %s, 0' % sr(S_OFFK))
    p('s_mov_b32 %s, 0' % sr(S_OFFV))
    p('v_lshrrev_b32 %s, 2, %s' % (t0, L))
    p('v_mul_u32_u24 %s, 288, %s' % (t1, t0))
    p('v_and_b32 %s, 3, %s' % (t2, L))
    p('v_lshl_add_u32 %s, %s, 3, %s' % (vr(V_A1), t2, t1))
    for k in range(1, 4):
        p('v_add_u32 %s, %d, %s' % (vr(V_A1 + k), k * 36864, vr(V_A1)))
    p('v_and_b32 %s, 15, %s' % (t0, L))
    p('v_lshrrev_b32 %s, 4, %s' % (t1, L))
    p('v_lshlrev_b32 %s, 1, %s' % (t3, t1))
    p('v_xor_b32 %s, %s, %s' % (t3, t0, t3))
    p('v_lshlrev_b32 %s, 4, %s' % (t3, t3))
    p('v_lshl_add_u32 %s, %s, 13, %s' % (vr(V_OQ), t1, t3))
    p('v_xor_b32 %s, 128, %s' % (vr(V_OQ + 1), vr(V_OQ)))
    p('s_lshl_b32 %s, %s, 17' % (sr(S_OFFQ), sr(S_W)))
    addall(kv_dma_setup())
    p('s_mul_i32 %s, %s, %d' % (T(3), T(6), 4 * HS()))
    p('s_add_u32 %s, %s, 0x%x' % (T(3), T(3), WS_H))
    make_srd(p, S_H, P_WS, T(3), 4 * HS())
    p('s_mul_i32 %s, %s, %d' % (T(3), sr(S_QT), 16 * OS()))
    p('s_lshl_b32 %s, %s, 12' % (T(4), sr(S_HD)))
    p('s_add_u32 %s, %s, %s' % (T(3), T(3), T(4)))
    p('s_add_u32 %s, %s, 0x%x' % (T(3), T(3), WS_O))
    p('s_sub_u32 %s, %d, %s' % (T(5), 16 * OS(), T(4)))
    make_srd(p, S_O, P_WS, T(3), T(5))
    p('s_mov_b32 %s, 0x%x' % (T(3), WS_F))
    make_srd(p, S_FL, P_WS, T(3), 4 * 32768)
    p('s_lshr_b32 %s, %s, 3' % (sr(S_SP), sr(S_HD)))
    p('s_and_b32 %s, %s, 7' % (T(0), sr(S_HD)))
    p('s_lshl_b32 %s, %s, 3' % (sr(S_TILE), sr(S_QT)))
    p('s_add_u32 %s, %s, %s' % (sr(S_TILE), sr(S_TILE), T(0)))
    p('s_lshl_b32 %s, %s, 6' % (T(0), sr(S_SP)))
    p('s_add_u32 %s, %s, %s' % (T(0), T(0), sr(S_TILE)))
    p('s_lshl_b32 %s, %s, 7' % (sr(S_FWG), T(0)))
    p('s_lshl_b32 %s, %s, 13' % (sr(S_FGR), sr(S_SP)))
    p('s_mul_i32 %s, %s, 9' % (T(2), sr(S_HD)))
    p('s_add_u32 %s, %s, 1' % (T(2), T(2)))
    p('s_lshr_b32 %s, %s, 1' % (T(2), T(2)))
    p('s_lshl_b32 %s, %s, 10' % (sr(S_HS), T(2)))
    p('s_bitcmp1_b32 %s, 0' % sr(S_HD))
    p('s_mov_b32 %s, 4096' % T(3))
    p('s_cselect_b32 %s, %d, %s' % (T(3), -1024 + 8, T(3)))
    p('s_add_u32 %s, %s, %s' % (sr(S_HS + 4), sr(S_HS), T(3)))
    for qb in range(1, 4):
        p('s_add_u32 %s, %s, %d' % (sr(S_HS + qb), sr(S_HS), qb * HS()))
        p('s_add_u32 %s, %s, %d' % (sr(S_HS + 4 + qb), sr(S_HS + 4), qb * HS()))
    if OPT.get('pro', 1) == 1:
        addall(p1_dma(1))
    stamp(1)

    if OPT.get('donly'):
        p('s_waitcnt vmcnt(0)')
        addall(d_scalar_setup1() + d_scalar_setup2() + k_read_setup() + v_read_setup())
        p('v_lshlrev_b32 %s, 20, v0' % vr(V_FST))
        p('v_mov_b32 %s, 1' % vr(V_ONE))
        p('v_lshlrev_b32 %s, 7, %s' % (vr(V_FOFF), L))
        p('v_mov_b32 %s, 0' % vr(V_RV))
        p('s_mov_b32 %s, 0' % sr(S_OFFW))
        for k in range(2, 7):
            stamp(k)
        p.raw(' s_branch L_donly')
    g = Gaps(p)
    seq = GemmSeq(p, g)
    pool = deque(('a', 72 + 4 * k) for k in range(14))

    def alloc():
        while not pool:
            x = (g.st or g.lo).popleft()
            g.over += max(1, cost(x))
            g.emit(x)
        for t in pool:
            if t[0] == 'v':
                pool.remove(t)
                return t
        return pool.popleft()

    XB = {}
    ring = lambda buf: [('a', A_B + buf * 32 + 4 * k) for k in range(8)]

    def xn_l(c, tiles):
        out = []
        for qb in range(4):
            out.append(Ins('s_mov_b32 %s, %d' % (T(qb), qb * 18 * 1024 + c * 2048)))
            for ks in range(2):
                out.append(Ins('buffer_load_dwordx4 %s, %s, %s, %s offen offset:%d' % (
                    rg(tiles[qb * 2 + ks]), vr(V_L16), sr(S_XN, 4), T(qb), ks * 1024)))
        return out

    def aq_setup():
        o = []
        a = lambda s: o.append(Ins(s))
        a('v_lshrrev_b32 %s, 2, %s' % (t0, L))
        a('v_and_b32 %s, 7, %s' % (t1, t0))
        a('v_lshlrev_b32 %s, 1, %s' % (t1, t1))
        a('v_and_b32 %s, 3, %s' % (t2, L))
        a('v_xor_b32 %s, %s, %s' % (t1, t1, t2))
        a('v_lshlrev_b32 %s, 4, %s' % (t1, t1))
        a('v_lshl_add_u32 %s, %s, 8, %s' % (vr(V_AQ), t0, t1))
        for s in range(1, 4):
            a('v_xor_b32 %s, %d, %s' % (vr(V_AQ + s), 64 * s, vr(V_AQ)))
        for rgn in range(1, 3):
            for s in range(4):
                a('v_add_u32 %s, 0x%x, %s' % (vr(V_AQ + rgn * 4 + s), rgn * 65536, vr(V_AQ + s)))
        return o

    def mk_mf(acc, chunks, xb, first):
        def mf(dst):
            out = []
            for qb in range(4):
                for ci, c in enumerate(chunks):
                    for ks in range(2):
                        def th(qb=qb, ci=ci, c=c, ks=ks):
                            a = rg(acc(qb))
                            cin = '0' if (first and ci == 0 and ks == 0) else a
                            return '%s %s, %s, %s, %s' % (MF, a, ar(dst + ci * 8 + ks * 4, 4), rg(xb(c)[qb * 2 + ks]), cin)
                        out.append(th)
            return out
        return mf

    for c in range(9):
        XB[c] = ring(c % 3)
    for c in range(7):
        for blk in range(18):
            hook = None
            if blk == 0:
                def hook(c=c):
                    if OPT.get('cst'):
                        p('s_memrealtime %s' % sr(S_DG, 2))
                        p('s_waitcnt lgkmcnt(0)')
                        p('v_writelane_b32 v1, %s, %d' % (sr(S_DG), 32 + c))
                    g.drop = {0: (), 1: ('dma',), 2: ('vld',), 3: ('dma', 'vld'), 4: ('dma', 'vld', 'dsr')}[OPT.get('drop', 0)]
                    g.vm_gap = OPT.get('vg1', 5) if c > 1 else OPT.get('vg0', 5)
                    if c == 0 and OPT.get('pro', 1):
                        g.hi.extend(xn_l(1, XB[1]) + p1_dma(2))
                    g.hi.extend(touch.get(c, []))
                    xl = xn_l(c + 2, XB[c + 2])
                    if c == 0:
                        g.hi.extend(xl + p1_dma(3))
                    else:
                        g.hi.extendleft(reversed(xl)) if OPT.get('xfirst', 0) else g.hi.extend(xl)
                    if c == 4:
                        g.hi.extend(wq_dma(8))
                    if c == 4 and OPT.get('ct1', 1):
                        g.hi.extend(code_touch('L_c1', V_SW + 4, V_SW + 5, S_A3))
                    if c == 6:
                        assert not any(y.kind == 'dma' and y.lds[1][0] == 'W' for y in g.hi)
                        g.lo.extend(aq_setup())
            seq.add(lambda dst, c=c, blk=blk: p1_reads(c, blk, dst), 8,
                    mk_mf(lambda qb, blk=blk: FT[(blk, qb)], [c], lambda c: XB[c], c == 0), hook=hook,
                    bar=[(PS(c), ('W', c))] if blk == 0 else None,
                    bwait=[rg(t) for t in XB[c]] if blk == 0 else None)
            if blk == 0 and 1 <= c <= 5:
                seq.groups[-1]['post'] = lambda c=c: g.hi.extend(p1_dma(c + 3))
            if blk == 0 and c == 6:
                seq.groups[-1]['post'] = lambda: g.hi.extend(wq_dma(7))
    CT = OPT.get('cap_t', 3)
    for blk in range(18):
        hook = None
        if blk >= 2 and blk % 2 == 0:
            def hook(b=blk // 2 - 1):
                for qb in range(4):
                    g.lo.extend(swiglu_unit(b, qb, g.n + 3, pool))
        if blk == 0:
            def hook():
                g.drop = ()
                p.label('L_c1')
                stamp(2)
        seq.add(lambda dst, blk=blk: p1_reads(7, blk, dst) + p1_reads(8, blk, dst + 8), 16,
                mk_mf(lambda qb, blk=blk: FT[(blk, qb)], [7, 8], lambda c: XB[c], False), hook=hook,
                bar=[(PS(7), ('W', 7)), (PS(8), ('W', 8))] if blk == 0 else None,
                bwait=[rg(t) for t in XB[7] + XB[8]] if blk == 0 else None, cap=CT)
        if blk == 0:
            seq.groups[-1]['post'] = lambda: g.hi.extend(wq_dma(6) + wq_dma(5))
    QT = {}

    def qacc(bq, qb):
        if (bq, qb) not in QT:
            QT[(bq, qb)] = alloc()
        return QT[(bq, qb)]
    XQ = {8: XB[8], 7: XB[7], 6: XB[6], 4: ring(1), 3: ring(2), 2: ring(0), 0: ring(1)}
    C2 = OPT.get('cap_p2', 2)
    qn = lambda c: (LS(WQ_SLOT[c]), ('Q', c))
    for bq in range(8):
        hook = None
        if bq == 0:
            def hook():
                stamp(3)
                g.vm_gap = OPT.get('vg2', 4)
                g.st_w = OPT.get('stw2', 1)
                for qb in range(4):
                    g.lo.extend(swiglu_unit(8, qb, g.n + 3, pool))
        if bq == 3:
            def hook():
                XQ[5] = XQ[1] = [alloc() for _ in range(8)]
                g.hi.extend(xn_l(5, XQ[5]))
        seq.add(lambda dst, bq=bq: p2_reads(8, bq, dst) + p2_reads(7, bq, dst + 8), 16,
                mk_mf(lambda qb, bq=bq: qacc(bq, qb), [8, 7], lambda c: XQ[c], True), hook=hook,
                bar=[qn(8), qn(7)] if bq == 0 else None, cap=C2)
        if bq == 0:
            seq.groups[-1]['post'] = lambda: g.hi.extend(
                wq_dma(4) + wq_dma(3) + wq_dma(2))
    for c in (6, 5, 4, 3, 2):
        for bq in range(8):
            hook = None
            if bq == 0:
                def hook(c=c):
                    for cc in {6: (4, 3), 5: (2,), 4: (1,), 3: (0,), 2: ()}[c]:
                        g.hi.extend(xn_l(cc, XQ[cc]))
            seq.add(lambda dst, c=c, bq=bq: p2_reads(c, bq, dst), 8,
                    mk_mf(lambda qb, bq=bq: qacc(bq, qb), [c], lambda c: XQ[c], False), hook=hook,
                    bar=[qn(c)] if bq == 0 else None, cap=C2,
                    bwait=(lambda c=c: [rg(t) for t in XQ[c]]) if bq == 0 else None)
            if bq == 0:
                seq.groups[-1]['lazyb'] = c
                post = {6: lambda: g.hi.extend(wq_dma(1) + wq_dma(0)),
                        3: lambda: g.hi.extend(dma_unit('K', 0, False)),
                        2: lambda: g.hi.extend(dma_unit('K', 1, False) + dma_unit('V', 0, False))}.get(c)
                seq.groups[-1]['post'] = post
    for bq in range(8):
        hook = None
        if bq == 0:
            def hook():
                print('swiglu backlog at last P2 group:', len(g.hi), len(g.lo), 'over', g.over, file=sys.stderr)
                g.hi.extend(dma_unit('K', 2, False) + dma_unit('V', 1, False))
        if bq >= 2 and bq % 2 == 0:
            def hook(s=bq // 2 - 1):
                for qb in range(4):
                    g.lo.extend(qcvt_unit(qb, s, QT, g.n + 3))
        seq.add(lambda dst, bq=bq: p2_reads(1, bq, dst) + p2_reads(0, bq, dst + 8), 16,
                mk_mf(lambda qb, bq=bq: qacc(bq, qb), [1, 0], lambda c: XQ[c], False), hook=hook,
                bar=[qn(1), qn(0)] if bq == 0 else None, cap=C2,
                bwait=(lambda: [rg(t) for t in XQ[1] + XQ[0]]) if bq == 0 else None)
    seq.run()
    stamp(4)
    print('G backlog at end:', len(g.hi), len(g.lo), 'over', g.over, 'waste', g.waste, file=sys.stderr)
    for qb in range(4):
        g.lo.extend(qcvt_unit(qb, 3, QT, 0))
    addall(k_read_setup())
    p.need(('lgkm', 'all'), (LS(0), ('K', 0)))
    p('s_barrier')
    for kb in range(4):
        for s in range(4):
            p.add(k_load(0, kb, s, False))
    g.flush()
    g.vm_gap = 4
    g.hi.extend(dma_unit('K', 3, False))
    g.hi.extend(d_scalar_setup1())
    g.lo.extend(Ins('v_accvgpr_write_b32 %s, 0' % ar(A_O + i)) for i in range(128))
    for kb in range(4):
        for qb in range(4):
            for s in range(4):
                d = vr(Sreg(kb, qb), 4)
                g.gap('%s %s, %s, %s, %s' % (MF, d, ar(A_KF + kb * 16 + s * 4, 4), vr(V_Q + (qb * 4 + s) * 4, 4), '0' if s == 0 else d))
    g.flush()
    addall(v_read_setup())
    for qb in range(4):
        p('v_mov_b32 %s, 0' % vr(V_L + qb))
    p('v_lshlrev_b32 %s, 20, v0' % vr(V_FST))
    p('s_getreg_b32 %s, hwreg(HW_REG_XCC_ID)' % T(0))
    p('s_and_b32 %s, %s, 15' % (T(0), T(0)))
    p('s_add_u32 %s, %s, 1' % (T(0), T(0)))
    p('v_mov_b32 %s, %s' % (vr(V_ONE), T(0)))
    p('v_lshlrev_b32 %s, 7, %s' % (vr(V_FOFF), L))
    addall(code_touch('L_att_tail', 32, 33, S_DWO)[:-1])
    p('v_mov_b32 %s, %s' % (vr(V_RN), L))
    addall(repack_pat())
    ms = [vr(V_E + qb) for qb in range(4)]
    for step in range(8):
        for qb in range(4):
            regs = [vr(Sreg(kb, qb) + r) for kb in range(4) for r in range(4)]
            if step == 0:
                p('v_max3_f32 %s, %s, %s, %s' % (ms[qb], regs[0], regs[1], regs[2]))
            elif step < 7:
                p('v_max3_f32 %s, %s, %s, %s' % (ms[qb], ms[qb], regs[2 * step + 1], regs[2 * step + 2]))
            else:
                p('v_max_f32 %s, %s, %s' % (ms[qb], ms[qb], regs[15]))
    addall(xlane4('v_max_f32', ms, [vr(V_T + k) for k in range(4)]))
    for qb in range(4):
        for r in range(4):
            p('v_sub_f32 %s, 0, %s' % (vr(V_NM + qb * 4 + r), ms[qb]))
    for kb in range(4):
        for qb in range(4):
            for r in range(4):
                x = vr(Sreg(kb, qb) + r)
                p('v_add_f32 %s, %s, %s' % (x, x, vr(V_NM + qb * 4)))
    stamp(5)
    def sm_plain(uu, i0, i1):
        prev = []
        for i in range(i0, i1):
            ex, ad, cv = sm_instrs(uu, i)
            p.add(ex)
            addall(prev)
            prev = [ad] + ([cv] if cv else [])
        p('s_nop 0')
        addall(prev)
    sm_plain(0, 0, 28)
    att_slots(p, 0, 0, 64, False, pv=False, sm_cur=False)
    sm_plain(0, 28, 60)
    p('s_mov_b32 %s, 0' % sr(S_CNT))
    p('s_lshl_b32 %s, %s, 4' % (sr(S_OFFQ), sr(S_W)))
    p('s_add_u32 %s, %s, 2' % (sr(S_OFFQ), sr(S_OFFQ)))
    p.wait_regs(ar(A_KF, 16))
    lp = p.loop_begin(7, 'att')
    p('.p2align 6')
    p.label('L_att')
    rtag = ('R', 0)
    g.vm_gap = 8

    def rp_loads():
        g.hi.append(Ins('buffer_load_dwordx4 %s, %s, %s, 0 offen nt' % (vr(V_RQ[0], 4), vr(V_RV), sr(S_A1, 4))))
        g.hi.append(Ins('buffer_load_dwordx4 %s, %s, %s, 0 offen nt' % (vr(V_RQ[1], 4), vr(V_RV), sr(S_A2, 4))))

    def rp_stores():
        g.hi.append(Ins('buffer_store_dwordx4 %s, %s, %s, %s offen sc1' % (vr(V_RQ[0], 4), vr(V_L16), sr(S_A3, 4), sr(S_RO)), lds=rtag))
        g.hi.append(Ins('buffer_store_dwordx4 %s, %s, %s, %s offen sc1' % (vr(V_RQ[1], 4), vr(V_L16), sr(S_A4, 4), sr(S_RO)), lds=rtag))
        g.hi.append(Ins('s_add_u32 %s, %s, 1024' % (sr(S_RO), sr(S_RO))))
    att_slots(p, 0, 64, 96, True)
    rp_loads()
    att_slots(p, 0, 96, 128, True, g=g, cap=4)
    assert not g.hi
    att_slots(p, 1, 0, 64, True)
    p('s_add_u32 %s, %s, 1' % (sr(S_CNT), sr(S_CNT)))
    p('s_cmp_eq_u32 %s, 7' % sr(S_CNT))
    p('s_cbranch_scc1 L_att_tail')
    p.loop_mark_exit(lp)
    g.lo.extend(repack_pat())
    att_slots(p, 1, 64, 128, True, g=g, cap=3)
    assert not g.lo
    att_slots(p, 2, 0, 30, True, extra_need=[rtag, ('H', 0)])
    if OPT.get('plain_h'):
        SPIN_BLOCKS.append('L_wbh:\n buffer_wbl2 sc1\n s_branch L_wbh_done')
        p('s_cmp_eq_u32 %s, %s' % (sr(S_CNT), sr(S_OFFQ)))
        p('s_cbranch_scc1 L_wbh')
        p.label('L_wbh_done')
    p('s_cmp_eq_u32 %s, 4' % sr(S_CNT))
    p('s_cselect_b32 %s, %s, 0x100000' % (T(0), sr(S_FWG)))
    fl = flag_store(S_T0, 'H')
    g.hi.append(fl)
    g.vm_gap = 3
    rp_stores()
    att_slots(p, 2, 30, 66, True, g=g, cap=4)
    assert not g.hi
    att_slots(p, 2, 66, 96, True)
    g.vm_gap = 8
    rp_loads()
    att_slots(p, 2, 96, 128, True, g=g, cap=4)
    assert not g.hi
    g.lo.extend(repack_pat())
    att_slots(p, 3, 0, 96, True, g=g, cap=3)
    assert not g.lo
    if OPT.get('ct2', 1):
        g.hi.append(Ins('global_load_dword v33, v32, %s' % sr(S_DWO, 2)))
    att_slots(p, 3, 96, 128, True, g=g, cap=4)
    assert not g.hi
    att_slots(p, 4, 0, 30, True)
    g.vm_gap = 3
    rp_stores()
    att_slots(p, 4, 30, 64, True, g=g, cap=4)
    assert not g.hi
    p('s_branch L_att')
    p.loop_end()
    p.label('L_att_tail')
    stamp(6)
    g.vm_gap = 4
    att_slots(p, 25, 64, 96, False)
    g.hi.append(poll_issue(S_FGR))
    tt = []
    a = lambda x: tt.append(Ins(x))
    a('s_lshr_b32 %s, s2, 3' % T(0))
    a('s_lshl_b32 %s, %s, 2' % (T(1), sr(S_SP)))
    a('s_add_u32 %s, %s, %s' % (T(1), T(1), sr(S_W)))
    a('s_mul_i32 %s, %s, %d' % (T(1), T(1), WBLK))
    a('s_mul_i32 %s, %s, 1152' % (T(2), T(0)))
    a('s_add_u32 %s, %s, %s' % (T(1), T(1), T(2)))
    a('s_add_u32 %s, %s, 0x%x' % (T(1), T(1), WS_W))
    tt += srd_ins(S_A1, P_WS, T(1), 18 * 36864 + 1152)
    a('s_and_b32 %s, s2, 4' % T(1))
    a('s_lshl_b32 %s, %s, 3' % (T(1), T(1)))
    a('s_add_u32 %s, %s, %s' % (T(1), T(1), T(0)))
    a('s_lshl_b32 %s, %s, 1' % (T(1), T(1)))
    a('s_and_b32 %s, %s, 1' % (T(2), sr(S_W)))
    a('s_add_u32 %s, %s, %s' % (T(1), T(1), T(2)))
    a('s_mul_i32 %s, %s, %d' % (T(1), T(1), HS()))
    a('s_mul_i32 %s, %s, %d' % (T(2), sr(S_SP), 36 * 1024))
    a('s_add_u32 %s, %s, %s' % (T(1), T(1), T(2)))
    a('s_add_u32 %s, %s, 0x%x' % (T(1), T(1), WS_H))
    tt += srd_ins(S_A2, P_WS, T(1), 36 * 1024)
    a('s_lshr_b32 %s, %s, 1' % (T(1), sr(S_W)))
    a('s_lshl_b32 %s, %s, 12' % (sr(S_RO), T(1)))
    a('s_lshl_b32 %s, %s, 2' % (T(2), sr(S_TILE)))
    a('s_add_u32 %s, %s, %s' % (T(2), T(2), sr(S_SP)))
    a('s_lshl_b32 %s, %s, 2' % (T(2), T(2)))
    a('s_add_u32 %s, %s, %s' % (T(2), T(2), sr(S_W)))
    a('s_mul_i32 %s, %s, 9216' % (T(2), T(2)))
    a('s_add_u32 %s, %s, 0x%x' % (T(2), T(2), WS_P))
    tt += srd_ins(S_A3, P_WS, T(2), 9216)
    g.hi.extend(tt)
    g.lo.extend(Ins('v_mov_b32 v%d, -1' % r) for r in range(36, 40))
    g.lo.extend([Ins('v_mul_u32_u24 %s, 7282, %s' % (vr(V_RV), L)),
                 Ins('v_lshrrev_b32 %s, 16, %s' % (vr(V_RV), vr(V_RV))),
                 Ins('v_mul_u32_u24 %s, %d, %s' % (vr(V_RV), 36864 - 1152, vr(V_RV))),
                 Ins('v_lshl_add_u32 %s, %s, 7, %s' % (vr(V_RV), L, vr(V_RV))),
                 Ins('v_mov_b32 v251, 0x7f000000'),
                 Ins('v_cmp_gt_u32 vcc, 18, %s' % L),
                 Ins('v_cndmask_b32 %s, v251, %s, vcc' % (vr(V_RV), vr(V_RV))),
                 Ins('v_cmp_gt_u32 vcc, 32, %s' % L),
                 Ins('v_cndmask_b32 v250, v251, %s, vcc' % vr(V_FOFF))])
    att_slots(p, 25, 96, 128, False, g=g, cap=4)
    att_slots(p, 26, 0, 64, False, g=g, cap=3, dmav=False)
    g.flush()
    addall(dma_unit('V', 28, False))
    poll_check(p, 'h', S_FGR, 'v_cmp_eq_u32 vcc, 0')

    def nowr(l):
        for x in l:
            x.wr = [r for r in x.wr if r[0] != 'v']
        return l

    def touch_w(c, srd=S_A1):
        return nowr([Ins('s_mov_b32 %s, %d' % (T(6), c * 36864)),
                     Ins('buffer_load_dword v248, %s, %s, %s offen sc0' % (vr(V_RV), sr(srd, 4), T(6)))])

    def touch_h(k):
        return nowr([Ins('s_add_u32 %s, %s, %d' % (T(6), sr(S_RO), k * 8192)),
                     Ins('buffer_load_dword v249, v250, %s, %s offen sc0' % (sr(S_A2, 4), T(6)))])
    TD = OPT.get('touch_d', 0)
    tl = []
    if TD:
        for k in range(5):
            tl += [touch_w(2 * k), touch_h(k)]
    else:
        tl = [[] for _ in range(10)]
    if OPT.get('tagged', 0):
        for k in range(9):
            tl[k] = tl[k] + [Ins('s_mov_b32 %s, %d' % (T(5), k * 1024)),
                             Ins('buffer_store_dwordx4 v[36:39], %s, %s, %s offen sc1' % (vr(V_L16), sr(S_A3, 4), T(5)), lds=('PT1', 0))]
    for u in (26, 27, 28, 29):
        for (ta, tb, on) in ((0, 32, 0), (32, 48, 1), (48, 64, 1), (64, 96, 0), (96, 112, 1), (112, 128, 1)):
            if (u == 26 and ta < 64) or (u == 29 and ta >= 64):
                continue
            if on and tl:
                g.hi.extend(tl.pop(0))
            att_slots(p, u, ta, tb, False, g=g if on else None, cap=4, dmak=(u + DK < 32))
            assert not g.hi
    assert not tl
    for k in range(4):
        p('s_mov_b32 %s, %s' % (sr(S_DWO + k), sr(S_A1 + k)))
    g.hi.extend(d_scalar_setup2())
    att_slots(p, 29, 64, 128, False, dmak=False, g=g, cap=4)
    g.flush()
    p.label('L_donly')
    att_slots(p, 30, 0, 2, False, dmak=False, dmav=False, g=g)
    g.vm_gap = 5
    g.hi.extend(d_dma(0) + d_dma(1))
    g.hi.append(sadd(S_FWG, 32768))
    g.hi.append(Ins('s_andn2_b32 %s, %s, 0x3ff' % (sr(S_FGR), sr(S_FWG))))
    g.hi.append(Ins('s_add_u32 %s, %s, 8192' % (sr(S_OFFW), sr(S_FGR))))
    g.hi.append(Ins('s_and_b32 %s, %s, 1' % (sr(S_ADJB), sr(S_SP))))
    g.hi.append(Ins('s_mul_i32 %s, %s, %d' % (sr(S_ADJW), sr(S_ADJB), -4 * 36864)))
    g.hi.append(Ins('s_mul_i32 %s, %s, %d' % (sr(S_ADJB), sr(S_ADJB), -4 * 4096)))
    g.lo.append(Ins('v_and_b32 %s, 0x380, %s' % (vr(V_FOFF), vr(V_FOFF))))
    att_slots(p, 30, 2, 97, False, dmak=False, dmav=False, g=g, cap=4, barrier=False)
    g.vm_gap = 4
    g.hi.extend(d_bloads(0))
    att_slots(p, 30, 97, 128, False, dmak=False, dmav=False, g=g, cap=4, barrier=False)
    att_slots(p, 31, 0, 2, False, qk=False, sm_next=False, dmak=False, dmav=False, g=g, vearly=True)
    g.vm_gap = 3
    g.hi.extend(d_bloads(1) + d_dma(2))
    o = []
    o.append(Ins('v_lshrrev_b32 %s, 2, %s' % (t0, L)))
    o.append(Ins('v_mul_u32_u24 %s, 288, %s' % (t1, t0)))
    o.append(Ins('v_and_b32 %s, 3, %s' % (t2, L)))
    o.append(Ins('v_lshl_add_u32 %s, %s, 3, %s' % (vr(V_DRA), t2, t1)))
    for k in range(1, 4):
        o.append(Ins('v_add_u32 %s, %d, %s' % (vr(V_DRA + k), DBASE[k], vr(V_DRA))))
    g.lo.extend(o)
    g.lo.append(Ins('v_mov_b32 %s, 0x%x' % (vr(V_RN), f2u(2.0 ** OPT.get('thr', 30)))))
    att_slots(p, 31, 2, 64, False, qk=False, sm_next=False, dmak=False, dmav=False, g=g, cap=4, barrier=False, vearly=True)
    g.flush()
    sm_plain(31, 60, 64)
    p('v_max3_f32 %s, %s, %s, %s' % (t0, vr(V_L), vr(V_L + 1), vr(V_L + 2)))
    p('v_add_f32 %s, %s, %s' % (t0, t0, vr(V_L + 3)))
    p('v_cmp_nlt_f32 vcc, %s, %s' % (t0, vr(V_RN)))
    p('s_cbranch_vccnz L_slow')
    p.label('L_slow_ret')
    SPIN_BLOCKS.append(gen_slow_softmax())
    ls = [vr(V_L + qb) for qb in range(4)]
    g.lo.extend(xlane4('v_add_f32', ls, [vr(V_T + k) for k in range(4)]))
    g.lo.extend(Ins('v_rcp_f32 %s, %s' % (x, x)) for x in ls)
    n0 = g.n
    n = 0
    for t in range(4):
        for qb in range(4):
            g.lo.extend(o_epilogue_unit(qb, t, n, n0 + 16 * (t + 1) + 3))
            n += 1
    p.wait_regs(ar(A_VF, 8))
    kw = dict(qk=False, sm_cur=False, sm_next=False, vnext=False, dmak=False, dmav=False, g=g, barrier=False)
    att_slots(p, 32, 0, 33, False, **kw)
    g.hi.extend(d_bloads(2))
    att_slots(p, 32, 33, 46, False, **kw)
    p.need(('lgkm', 'all'), (DS(0), ('D', 0)))
    p('s_barrier')
    g.st.extend(d_reads(0, 0) + d_reads(0, 1))
    att_slots(p, 32, 46, 64, False, **kw)
    while g.st and g.st[0].kind == 'dsr':
        g.emit(g.st.popleft())
    assert not any(x.kind == 'dsr' for x in g.st)
    stamp(7)
    p.wait_regs(ar(A_DB, 32), vr(V_DA, 16))
    stamp(8)
    G2, GG = V_AC2, V_AC2 + 48
    xreg = lambda k, rb: 44 + (k * 2 + rb) * 2
    VO = V_T + 5

    def fin_setup():
        o = []
        o.append(Ins('v_and_b32 %s, 0x180, %s' % (vr(V_FOFF), vr(V_FOFF))))
        o.append(Ins('s_andn2_b32 %s, %s, 0x1ff' % (sr(S_FGR), sr(S_FT))))
        o.append(Ins('v_and_b32 %s, 15, %s' % (t0, L)))
        o.append(Ins('v_mul_u32_u24 %s, 1152, %s' % (t0, t0)))
        o.append(Ins('v_lshrrev_b32 %s, 4, %s' % (t1, L)))
        o.append(Ins('v_lshl_add_u32 %s, %s, 3, %s' % (vr(VO), t1, t0)))
        for k in range(3):
            for rb in range(2):
                o.append(Ins('buffer_load_dwordx2 %s, %s, %s, %s offen offset:%d' % (
                    vr(xreg(k, rb), 2), vr(VO), sr(S_DX, 4), sr(S_HS + 4 + rb + (2 if k == 2 else 0)), 128 * k)))
        return o

    def silu_g():
        o = []
        for k in range(3):
            d = GG + 8 * k
            o += d_sum(G2, k, d, V_T)
            for e in range(0, 8, 2):
                ta, tb = vr(V_T), vr(V_T + 1)
                o.append(Ins('v_mul_f32 %s, %s, %s' % (ta, sr(S_NL), vr(d + e))))
                o.append(Ins('v_mul_f32 %s, %s, %s' % (tb, sr(S_NL), vr(d + e + 1))))
                o.append(Ins('v_exp_f32 %s, %s' % (ta, ta)))
                o.append(Ins('v_exp_f32 %s, %s' % (tb, tb)))
                if OPT.get('fold', 0):
                    o.append(Ins('v_fma_f32 %s, %s, %s, %s' % (ta, ta, sr(S_C), sr(S_C))))
                    o.append(Ins('v_fma_f32 %s, %s, %s, %s' % (tb, tb, sr(S_C), sr(S_C))))
                else:
                    o.append(Ins('v_add_f32 %s, 1.0, %s' % (ta, ta)))
                    o.append(Ins('v_add_f32 %s, 1.0, %s' % (tb, tb)))
                o.append(Ins('v_rcp_f32 %s, %s' % (ta, ta)))
                o.append(Ins('v_rcp_f32 %s, %s' % (tb, tb)))
                o.append(Ins('v_mul_f32 %s, %s, %s' % (vr(d + e), vr(d + e), ta)))
                o.append(Ins('v_mul_f32 %s, %s, %s' % (vr(d + e + 1), vr(d + e + 1), tb)))
        return o

    g.vm_gap = 1
    SO = OPT.get('o_done', 2)
    LAST = NPOS - 1
    for c in range(NPOS):
        acc0 = V_AC2 if c < 9 else V_AC1
        first = c in (0, 9)
        if c == 9:
            stamp(14)
        if c in (SK0, SK1):
            g.flush()
        if c == SK0:
            p('s_bitcmp1_b32 %s, 0' % sr(S_SP))
            p('s_cbranch_scc1 L_dskip')
            p.loop_begin(1, 'opt')
        if c == SK1:
            p.loop_end()
            p.label('L_dskip')
        if OPT.get('dst'):
            p('s_memrealtime %s' % sr(S_DG, 2))
            p('s_waitcnt lgkmcnt(0)')
            p('v_writelane_b32 v1, %s, %d' % (sr(S_DG), 32 + c))
        extra_need = []
        post = []
        cap = 2
        if c <= SO:
            cap = OPT.get('cap_o', 4)
        if c == SO + 1:
            assert not g.lo and not g.st, len(g.lo)
            extra_need = [('O', 0)]
            post = [flag_store(S_FWG, 'O')]
            g.st_max = 1
            fs = fin_setup()
            g.lo.extend(fs[2:-6])
        if c == 6:
            g.hi.extend(fs[-6:])
        if TD and c in (2, 3, 4, 5, 6):
            g.hi.extend(touch_w(10 + 2 * (c - 2), S_DWO))
        if c == 6:
            g.st.append(poll_issue(S_FGR))
        if c == 7:
            poll_check(p, 'o', S_FGR)
            g.hi.extend(d_bloads(9, c))
            cap = 3
        if c == SK1 - 2:
            g.st.append(poll_issue(S_OFFW))
        if c == SK1 - 1:
            poll_check(p, 'o2', S_OFFW)
        if c <= 8:
            g.hi.extend((d_bloads(c + 3, c) if c != 6 else []) + d_dma(c + 3, c))
        elif 10 <= c <= LAST - 2:
            g.hi.extend(d_dma(c + 2, c) + d_bloads(c + 2, c))
        if c in (9, 10):
            for nb in (range(6) if c == 9 else range(6, 9)):
                g.lo.extend(d_pstore(1, nb))
            cap = 3
        if c == 11:
            assert not g.lo and not g.st
            extra_need = [('PT1', 0)]
            post = [flag_store(S_FT, 'PT1')]
            g.lo.extend(fs[:2])
            cap = 3
        if c == LAST - 2:
            g.st.append(poll_issue(S_FGR))
        if c == LAST - 1:
            poll_check(p, 'p2', S_FGR)
            g.hi.extend([sadd(S_FGR, 32768), sadd(S_FT, 32768)])
            g.hi.extend(d_ploads(1, G2))
        nv = sum(1 for x in g.hi if cost(x) == 2)
        if OPT.get('verbose_d'):
            print('D pos', c, 'queued vmem', nv, file=sys.stderr)
        g.vm_gap = OPT.get('vgd', 4) if c > SO else OPT.get('vgd2', 3)
        g.st_w = OPT.get('stw', 1)
        if c in (10, 11, SK1 - 1):
            g.vm_gap = 3
            cap = 3
        if c == LAST:
            g.vm_gap = 1
        for nb in range(9):
            n2 = nb + 2
            Lr = d_reads(c, n2) if n2 < 9 else (d_reads(c + 1, n2 - 9, c) if c < LAST else [])
            if c == LAST and nb >= 2:
                g.hi.extend(d_pstore(0, nb - 2))
            for t in range(8):
                rb, ks = t // 4, t % 4
                a = vr(acc0 + (nb * 2 + rb) * 4, 4)
                m = '%s %s, %s, %s, %s' % (MF, a, vr(V_DA + (nb % 3) * 16 + ks * 4, 4),
                                           ar(A_DB + (c % 4) * 32 + (rb * 4 + ks) * 4, 4),
                                           '0' if (first and ks == 0) else a)
                sc, ld = [], []
                if nb == 7:
                    if Lr and t >= 4:
                        ld = [Lr[2 * (t - 4)], Lr[2 * (t - 4) + 1]]
                    if t == 2 and c < LAST:
                        assert not any(y.kind == 'dma' and y.lds[0] == DS(c + 1) for y in g.hi), c
                        sc = [need_ins(('lgkm', 'all'), (DS(c + 1), dtag(c + 1, c)), *extra_need)]
                    if t == 3 and c < LAST:
                        sc = [Ins('s_barrier')]
                elif Lr:
                    ld = [Lr[t], Lr[t + 1]] if t % 2 == 0 else []
                if t == 7:
                    w = [vr(V_DA + ((nb + 1) % 3) * 16, 16)]
                    if nb == 8:
                        w.append(ar(A_DB + ((c + 1) % 4) * 32, 32))
                    sc = [wait_ins(*w)]
                g.gap(m, sc, ld, cap=cap)
                if nb == 7 and t == 3:
                    g.st.extend(post)
    stamp(9)
    g.hi.extend(d_pstore(0, 7) + d_pstore(0, 8))
    g.flush()
    stamp(10)
    sg = silu_g()
    if OPT.get('tagged', 0):
        addall(sg)
        stamp(11)

        def chk():
            o = [Ins('v_max3_u32 %s, %s, %s, %s' % (t0, vr(G2), vr(G2 + 1), vr(G2 + 2))),
                 Ins('v_max3_u32 %s, %s, %s, %s' % (t1, vr(G2 + 3), vr(G2 + 4), vr(G2 + 5)))]
            for k in range(6, 48, 2):
                tt_ = t0 if (k // 2) % 2 else t1
                o.append(Ins('v_max3_u32 %s, %s, %s, %s' % (tt_, tt_, vr(G2 + k), vr(G2 + k + 1))))
            o.append(Ins('v_max_u32 %s, %s, %s' % (t0, t0, t1)))
            o.append(Ins('v_cmp_eq_u32 vcc, -1, %s' % t0))
            return o
        addall(d_ploads(0, G2) + chk())
        p('s_cbranch_vccnz L_retry')
        p.label('L_retry_ok')
        SPIN_BLOCKS.append('L_retry:\n s_mov_b32 s3, 0\nL_retry_l:\n s_sleep 2\n' +
                           '\n'.join(' ' + x.text for x in d_ploads(0, G2)) +
                           '\n s_waitcnt vmcnt(0)\n s_add_u32 s3, s3, 1\n s_cmp_gt_u32 s3, 0x20000\n s_cbranch_scc1 L_retry_ok\n' +
                           '\n'.join(' ' + x.text for x in chk()) +
                           '\n s_cbranch_vccnz L_retry_l\n s_branch L_retry_ok')
        stamp(12)
    else:
        addall(sg[:len(sg) // 2])
        p.need(('PT0', 0))
        p('s_barrier')
        stamp(11)
        p.add(flag_store(S_FT, 'PT0'))
        p.add(poll_issue(S_FGR))
        addall(sg[len(sg) // 2:])
        poll_check(p, 'p1', S_FGR)
        stamp(12)
        addall(d_ploads(0, G2))
    for k in range(3):
        d = V_AC1 + 16 * k
        addall(d_sum(G2, k, d, V_T))
        for rb in range(2):
            xb = xreg(k, rb)
            for e in range(4):
                tx = vr(d + 8 + e)
                if e % 2 == 0:
                    p('v_lshlrev_b32 %s, 16, %s' % (tx, vr(xb + e // 2)))
                else:
                    p('v_and_b32 %s, 0xffff0000, %s' % (tx, vr(xb + e // 2)))
                p('v_fma_f32 %s, %s, %s, %s' % (tx, vr(d + rb * 4 + e), vr(GG + 8 * k + rb * 4 + e), tx))
            o = d + 12 + 2 * rb
            p('v_cvt_pk_bf16_f32 %s, %s, %s' % (vr(o), vr(d + 8), vr(d + 9)))
            p('v_cvt_pk_bf16_f32 %s, %s, %s' % (vr(o + 1), vr(d + 10), vr(d + 11)))
            p('buffer_store_dwordx2 %s, %s, %s, %s offen offset:%d' % (
                vr(o, 2), vr(VO), sr(S_DOUT, 4), sr(S_HS + 4 + rb + (2 if k == 2 else 0)), 128 * k))
    if diag:
        p('s_waitcnt vmcnt(0)')
        stamp(13)
        p('s_mov_b32 %s, 0x%x' % (T(3), WS_T))
        make_srd(p, S_K, P_WS, T(3), 0x100000)
        p('s_lshl_b32 %s, s2, 2' % T(0))
        p('s_add_u32 %s, %s, %s' % (T(0), T(0), sr(S_W)))
        p('s_lshl_b32 %s, %s, 8' % (T(0), T(0)))
        p('v_lshlrev_b32 v4, 2, %s' % L)
        p('buffer_store_dword v1, v4, %s, %s offen' % (sr(S_K, 4), T(0)))
    p.label('L_end')
    p('s_endpgm')
    for t in SPIN_BLOCKS:
        p.raw(t)
    p.raw('L_code_end:')
    for x in p.flat():
        if OPT.get('kv_nt', 1) and x.kind == 'dma' and ('s[4:7]' in x.text or 's[8:11]' in x.text):
            x.text = x.text.replace(' lds', ' nt lds')
        if OPT.get('w_nt') and x.kind == 'dma' and x.lds and not callable(x.lds[1]) and x.lds[1][0] in 'WQ':
            x.text = x.text.replace(' lds', ' nt lds')
        if OPT.get('st01') and x.kind == 'vst' and 'x4' in x.text:
            x.text = x.text.replace(' sc1', ' sc0 sc1')
        if OPT.get('nost') and x.kind == 'vst' and 'x4' in x.text and x.lds and (x.lds[0] == 'O' or (OPT['nost'] > 1 and x.lds[0] == 'PT1')):
            x.text = 's_nop 0'
            x.kind = 'sopp'; x.op = 's_nop'; x.ops = ['0']; x.rd = []; x.lds = None
        if OPT.get('dplain') and x.kind in ('dma', 'vld') and 'x4' in x.text:
            x.text = x.text.replace(' sc1', '')
    p.finalize(verbose=bool(OPT.get('verbose')), check=not (OPT.get('drop') or OPT.get('nost')))
    print('total overflow slots', g.over, p.stats(), file=sys.stderr)
    return p


def build(diag=False):
    ln, km = gen_ln(), gen_main(diag)
    hdr = open('cdna_kernels/%s.s.ref' % NAME).read().split('; Override launch')[0]
    out = hdr
    if not OPT.get('donly'):
        out += '; @launch kernel=ln_kernel grid=(256,1,1) block=(256,1,1) lds=0\n'
    out += '; @launch kernel=main_kernel grid=(256,1,1) block=(256,1,1) lds=163840\n'
    out += '.amdgcn_target "amdgcn-amd-amdhsa--gfx950"\n.text\n'
    out += kernel_text('ln_kernel', ln, 0, 0) + kernel_text('main_kernel', km, 0, 0)
    out += '.section .rodata,"a"\n'
    for n, nv, acc in (('ln_kernel', 64, 64), ('main_kernel', 512, 256)):
        out += '.p2align 6\n' + descriptor(n, nv, acc)
    return out


if __name__ == '__main__':
    diag = 'diag' in sys.argv[2:]
    for a in sys.argv[2:]:
        if '=' in a:
            k, v = a.split('=')
            OPT[k] = int(v)
    open(sys.argv[1], 'w').write(build(diag))
```

```python
import sys, struct
from collections import deque
from dsl import *

OPT = {}
NAME = 'recurrent_scan__mha_block_cached__glu_gated_swiglu__prompt'
WS_XN = 0
WS_F = 3 << 20
WS_O = 4 << 20
WS_H = 24 << 20
WS_P = 48 << 20
PG = 64 * 16 * 9216
WS_W = 96 << 20
WBLK = 2432 * 288
WS_T = 128 << 20
MF = 'v_mfma_f32_16x16x32_bf16'
LOG2E = 1.4426950408889634


def HS():
    return 144 * 1024 + OPT.get('pad', 1280)


def OS():
    return 128 * 1024 + OPT.get('pad', 1280)


def f2u(x):
    return struct.unpack('<I', struct.pack('<f', x))[0]


def srd_ins(srd, ptr, off, size):
    o = []
    if off is None:
        o.append(Ins('s_mov_b32 %s, %s' % (sr(srd), sr(ptr))))
        o.append(Ins('s_mov_b32 %s, %s' % (sr(srd + 1), sr(ptr + 1))))
    else:
        o.append(Ins('s_add_u32 %s, %s, %s' % (sr(srd), sr(ptr), off)))
        o.append(Ins('s_addc_u32 %s, %s, 0' % (sr(srd + 1), sr(ptr + 1))))
    o.append(Ins('s_mov_b32 %s, %s' % (sr(srd + 2), size if isinstance(size, str) else '0x%x' % size)))
    o.append(Ins('s_mov_b32 %s, 0x00020000' % sr(srd + 3)))
    return o


def make_srd(p, srd, ptr, off, size):
    for x in srd_ins(srd, ptr, off, size):
        p.add(x)


def cost(ins):
    if ins.kind == 'valu':
        return 2 if ins.trans else 1
    if ins.kind in ('dsr', 'dsw'):
        return 1
    if ins.kind in ('dma', 'vld', 'vst'):
        return 2
    return 0


class Gaps:
    def __init__(self, p):
        self.p = p
        self.hi = deque()
        self.lo = deque()
        self.n = 0
        self.over = 0
        self.waste = 0
        self.drop = ()
        self.vm_next = 0
        self.st = deque()
        self.st_max = 2
        self.st_w = 3
        self.vm_gap = 1

    def emit(self, x):
        if self.drop and x.kind in self.drop:
            return
        self.p.add(x)
        if x.on_emit:
            x.on_emit()

    def gap(self, mfma, sc=(), ld=(), va=(), cap=2):
        if mfma is not None:
            self.p.add(mfma if isinstance(mfma, Ins) else Ins(mfma))
        sc, ld, va = list(sc), list(ld), list(va)
        used = sum(cost(x) for x in ld + va)
        for q in (self.st, self.hi, self.lo):
            pulled = False
            pva = False
            while q:
                x = q[0]
                if x.ready > self.n:
                    break
                c = cost(x)
                if q is self.lo and x.kind == 'vst' and len(self.st) < self.st_max:
                    x.ready = self.n + 1
                    self.st.append(q.popleft())
                    continue
                if c == 0:
                    if sc or pulled:
                        break
                    sc.append(q.popleft())
                    if 'm0' in x.wr:
                        break
                    continue
                if used + c > cap:
                    break
                if x.kind != 'valu':
                    if pva:
                        break
                    if c == 2:
                        if self.n < self.vm_next:
                            break
                        w = (self.st_w if 'x4' in x.text else 1) if x.kind == 'vst' else (4 if 'buffer_load_dword ' in x.text and 'sc' not in x.text else 1)
                        self.vm_next = self.n + self.vm_gap * w
                    ld.append(q.popleft())
                else:
                    va.append(q.popleft())
                    pva = True
                used += c
                pulled = True
        for x in sc + ([Ins(mfma)] if isinstance(mfma, str) else []):
            self.check(x)
        self.over += max(0, used - 2)
        if used < 2 and (self.hi or self.lo):
            self.waste += 2 - used
        for x in sc + ld + va:
            self.emit(x)
        self.n += 1

    def check(self, x):
        regs = set(x.rd) if (x.text.startswith('; need') or x.kind == 'mfma') else set()
        tags = [t for t in (x.need or []) if not callable(t[1])]
        for q in (self.st, self.hi, self.lo):
            for y in q:
                if y.kind in ('vld', 'dsr') and set(y.wr) & regs and not getattr(y, 'later', False):
                    raise AssertionError('consumer %s before queued load %s' % (x.text, y.text))
                if y.lds is not None and y.lds in tags:
                    raise AssertionError('need %s before queued %s' % (tags, y.text))

    def flush(self, q=None):
        for qq in ((self.st, self.hi, self.lo) if q is None else (q,)):
            while qq:
                x = qq.popleft()
                self.over += max(1, cost(x))
                self.emit(x)


def rg(t, n=4):
    return (vr if t[0] == 'v' else ar)(t[1], n)


def prefetch_w(p, ptr, srd, soff, rows, stride, lines, rounds, vt, vd):
    t = lambda k: vr(vt + k)
    make_srd(p, srd, ptr, soff, (rows - 1) * stride + lines * 128)
    return t


def gen_ln():
    p = Prog()
    p('s_cmp_ge_u32 s2, 256')
    p('s_cbranch_scc1 L_ln_end')
    p('s_load_dwordx2 s[12:13], s[0:1], 0')
    p('s_load_dwordx2 s[14:15], s[0:1], 88')
    p('s_load_dwordx4 s[32:35], s[0:1], 48')
    p('v_lshrrev_b32 v1, 5, v0')
    p('s_lshl_b32 s3, s2, 3')
    p('v_add_u32 v1, s3, v1')
    p('v_and_b32 v2, 31, v0')
    p('v_lshrrev_b32 v3, 2, v2')
    p('v_and_b32 v4, 3, v2')
    p('v_mul_u32_u24 v5, 1152, v1')
    p('v_lshl_add_u32 v5, v3, 6, v5')
    p('v_lshl_add_u32 v5, v4, 3, v5')
    p('v_cmp_gt_u32 vcc, 8, v2')
    p('s_mov_b64 s[16:17], vcc')
    for r in range(16, 20):
        p('v_mov_b32 v%d, 0' % r)
    p('s_waitcnt lgkmcnt(0)')
    make_srd(p, 4, 12, None, 2048 * 1152)
    for it in range(2):
        p('buffer_load_dwordx2 v[%d:%d], v5, s[4:7], 0 offen offset:%d' % (8 + 4 * it, 9 + 4 * it, it * 512))
        p('buffer_load_dwordx2 v[%d:%d], v5, s[4:7], 0 offen offset:%d' % (10 + 4 * it, 11 + 4 * it, it * 512 + 32))
    p('s_mov_b64 exec, s[16:17]')
    p('buffer_load_dwordx2 v[16:17], v5, s[4:7], 0 offen offset:1024')
    p('buffer_load_dwordx2 v[18:19], v5, s[4:7], 0 offen offset:1056')
    p('s_mov_b64 exec, -1')
    R0 = OPT.get('pf0', 12)
    if R0:
        p('s_lshr_b32 s20, s2, 3')
        p('s_mul_i32 s20, s20, %d' % (R0 * 9216))
        p('s_and_b32 s21, s2, 3')
        p('s_mul_i32 s21, s21, 2304')
        p('s_add_u32 s20, s20, s21')
        make_srd(p, 36, 32, 's20', (R0 - 1) * 9216 + 2304)
        make_srd(p, 40, 34, 's20', (R0 - 1) * 9216 + 2304)
        p('v_mul_u32_u24 v56, 3641, v0')
        p('v_lshrrev_b32 v56, 16, v56')
        p('v_mul_u32_u24 v57, 18, v56')
        p('v_sub_u32 v57, v0, v57')
        p('v_mul_u32_u24 v56, 9216, v56')
        p('v_lshl_add_u32 v56, v57, 7, v56')
        if OPT.get('pfh', 1):
            p('s_bitcmp1_b32 s2, 2')
            p('s_cselect_b32 s36, s40, s36')
            p('s_cselect_b32 s37, s41, s37')
            p('buffer_load_dword v58, v56, s[36:39], 0 offen')
        else:
            p('buffer_load_dword v58, v56, s[36:39], 0 offen')
            p('buffer_load_dword v59, v56, s[40:43], 0 offen')
    if OPT.get('pfc', 1):
        p('s_getpc_b64 s[44:45]')
        p.label('L_pc')
        p('s_add_u32 s44, s44, main_kernel-L_pc')
        p('s_addc_u32 s45, s45, 0')
        p('s_lshr_b32 s46, s2, 3')
        p('s_lshl_b32 s46, s46, 12')
        p('v_and_b32 v60, 31, v0')
        p('v_lshlrev_b32 v60, 7, v60')
        p('v_add_u32 v60, s46, v60')
        p('v_min_u32 v60, L_code_end-main_kernel-4, v60')
        p('global_load_dword v61, v60, s[44:45]')
    make_srd(p, 8, 14, None, 2048 * 1152)
    p('v_lshrrev_b32 v6, 4, v1')
    p('v_mul_u32_u24 v6, 18, v6')
    p('v_add_u32 v6, v6, v3')
    p('v_lshlrev_b32 v6, 10, v6')
    p('v_lshl_add_u32 v6, v4, 8, v6')
    p('v_and_b32 v7, 15, v1')
    p('v_lshl_add_u32 v6, v7, 4, v6')
    p('s_mov_b32 s20, 0x%x' % WS_F)
    make_srd(p, 24, 14, 's20', 4 * 32768)
    p('s_lshl_b32 s21, s2, 7')
    p('v_lshlrev_b32 v50, 15, v0')
    p('v_mov_b32 v52, 0')
    p('buffer_store_dword v52, v50, s[24:27], s21 offen')
    for d in range(12):
        p('v_lshlrev_b32 v%d, 16, v%d' % (20 + 2 * d, 8 + d))
        p('v_and_b32 v%d, 0xffff0000, v%d' % (21 + 2 * d, 8 + d))

    def reduce32(x, t):
        for k in (8, 4, 2, 1):
            p('v_add_f32_dpp %s, %s, %s row_ror:%d row_mask:0xf bank_mask:0xf' % (x, x, x, k))
        p('v_mov_b32 %s, %s' % (t, x))
        p('v_permlane16_swap_b32 %s, %s' % (x, t))
        p('v_add_f32 %s, %s, %s' % (x, x, t))
    p('v_add_f32 v44, v20, v21')
    p('v_add_f32 v45, v22, v23')
    for e in range(4, 24, 2):
        p('v_add_f32 v44, v44, v%d' % (20 + e))
        p('v_add_f32 v45, v45, v%d' % (21 + e))
    p('v_add_f32 v44, v44, v45')
    reduce32('v44', 'v45')
    p('v_mul_f32 v44, 0x%x, v44' % f2u(1.0 / 576))
    p('v_mov_b32 v46, 0')
    p('v_mov_b32 v47, 0')
    for e in range(16):
        p('v_sub_f32 v48, v%d, v44' % (20 + e))
        p('v_fmac_f32 v%d, v48, v48' % (46 + e % 2))
    p('s_mov_b64 exec, s[16:17]')
    for e in range(16, 24):
        p('v_sub_f32 v48, v%d, v44' % (20 + e))
        p('v_fmac_f32 v%d, v48, v48' % (46 + e % 2))
    p('s_mov_b64 exec, -1')
    p('v_add_f32 v46, v46, v47')
    reduce32('v46', 'v45')
    p('v_mul_f32 v46, 0x%x, v46' % f2u(1.0 / 576))

    def rnd(x):
        p('v_cvt_pk_bf16_f32 %s, %s, %s' % (x, x, x))
        p('v_lshlrev_b32 %s, 16, %s' % (x, x))
    rnd('v44')
    rnd('v46')
    p('v_add_f32 v46, 0x%x, v46' % f2u(1e-5))
    rnd('v46')
    p('v_sqrt_f32 v46, v46')
    rnd('v46')
    p('v_rcp_f32 v46, v46')
    if OPT.get('fold', 0):
        p('v_mul_f32 v46, 0x%x, v46' % f2u(-LOG2E))
    for d in range(12):
        a, b = 20 + 2 * d, 21 + 2 * d
        p('v_sub_f32 v%d, v%d, v44' % (a, a))
        p('v_sub_f32 v%d, v%d, v44' % (b, b))
        p('v_cvt_pk_bf16_f32 v%d, v%d, v%d' % (8 + d, a, b))
        p('v_lshlrev_b32 v%d, 16, v%d' % (a, 8 + d))
        p('v_and_b32 v%d, 0xffff0000, v%d' % (b, 8 + d))
        p('v_mul_f32 v%d, v%d, v46' % (a, a))
        p('v_mul_f32 v%d, v%d, v46' % (b, b))
        p('v_cvt_pk_bf16_f32 v%d, v%d, v%d' % (8 + d, a, b))
    p('s_mov_b32 s18, 8192')
    p('s_mov_b32 s19, 16384')
    p('buffer_store_dwordx4 v[8:11], v6, s[8:11], 0 offen')
    p('buffer_store_dwordx4 v[12:15], v6, s[8:11], s18 offen')
    p('s_mov_b64 exec, s[16:17]')
    p('buffer_store_dwordx4 v[16:19], v6, s[8:11], s19 offen')
    p.label('L_ln_end')
    p('s_endpgm')
    p.finalize()
    return p


S_K, S_V, S_XN, S_WS, S_WQ, S_H, S_O, S_FL, S_A1, S_A2, S_A3, S_A4 = 4, 8, 12, 16, 20, 24, 28, 32, 36, 40, 44, 48
S_DW2, S_DWO, S_DH, S_DO, S_DP, S_DR, S_DX, S_DOUT = 12, 16, 20, 24, 36, 40, 44, 48
(S_W, S_MK, S_EP, S_OFFK, S_OFFV, S_CNT, S_HD, S_QT, S_M1, S_OFFW, S_OFFQ, S_C, S_NL, S_FWG, S_FGR, S_FT,
 S_RO, S_SP, S_TILE) = range(52, 71)
S_HS = 71
S_T0 = 79
S_DG = 90
P_X, P_WO, P_W2, P_OUT, P_WS = 92, 94, 96, 98, 100
T = lambda k: sr(S_T0 + k)

V_L16, V_LANE = 2, 3
V_A1 = 4
V_OW = 8
V_AQ = 8
V_OQ = 20
V_OK, V_OV = 22, 26
V_SW = 28
V_T = 34
V_KA, V_VA, V_L, V_E = 4, 8, 16, 28
V_NM, V_S, V_P, V_Q = 40, 56, 120, 184
V_FST, V_ONE, V_FOFF, V_FV = 252, 253, 254, 255
A_O, A_KF, A_VF = 0, 128, 192
A_A, A_B = 128, 160
X0 = 72
DK, DV = 4, 2
L = vr(V_LANE)
t0, t1, t2, t3 = (vr(V_T + i) for i in range(4))


def LS(n):
    return (n * 16384, 16384)


def VP(u):
    return (u + 3) % 4


DBASE = [0, 126976, 36864, 73728]


def DS(c):
    return (DBASE[c % 4], 36864)


def PS(c):
    return ((c % 4) * 36864, 36864)


def Sreg(kb, qb):
    return V_S + (kb * 4 + qb) * 4


def Preg(u, qb, ks):
    return V_P + (u & 1) * 32 + qb * 8 + ks * 4


def ktag(u, inloop):
    return (lambda it: ('K', u + 4 * it)) if inloop else ('K', u)


def vtag(u, inloop):
    return (lambda it: ('V', u + 4 * it)) if inloop else ('V', u)


def k_load(u, kb, s, inloop):
    return Ins('ds_read_b128 %s, %s offset:%d' % (ar(A_KF + kb * 16 + s * 4, 4), vr(V_KA + s), (u % 4) * 16384 + kb * 4096),
               lds=(LS(u % 4), ktag(u, inloop)))


def v_load(u, db, ks, j, inloop):
    return Ins('ds_read_b64_tr_b16 %s, %s offset:%d' % (
        ar(A_VF + db * 8 + ks * 4 + 2 * j, 2), vr(V_VA + db), VP(u) * 16384 + (32 * ks + 16 * j) * 256),
        lds=(LS(4 + VP(u)), vtag(u, inloop)))


def dma_unit(kind, u, inloop):
    out = []
    if kind == 'K':
        out.append(Ins('s_add_u32 m0, %s, %d' % (sr(S_MK), (u % 4) * 16384)))
        for cc in range(4):
            out.append(Ins('buffer_load_dwordx4 %s, %s, %s offen offset:%d lds' % (
                vr(V_OK + cc), sr(S_K, 4), sr(S_OFFK), cc * 1024), lds=(LS(u % 4), ktag(u, inloop))))
        out.append(Ins('s_add_u32 %s, %s, 16384' % (sr(S_OFFK), sr(S_OFFK))))
    else:
        out.append(Ins('s_add_u32 m0, %s, %d' % (sr(S_MK), 65536 + VP(u) * 16384)))
        for cc in range(4):
            out.append(Ins('buffer_load_dwordx4 %s, %s, %s offen offset:%d lds' % (
                vr(V_OV + cc % 2), sr(S_V, 4), sr(S_OFFV), cc * 1024), lds=(LS(4 + VP(u)), vtag(u, inloop))))
        out.append(Ins('s_add_u32 %s, %s, 16384' % (sr(S_OFFV), sr(S_OFFV))))
    return out


def sm_instrs(uu, i):
    n, r = i // 4, i % 4
    kb, qb = n // 4, n % 4
    e = vr(V_E + i % 4)
    ex = Ins('v_exp_f32 %s, %s' % (e, vr(Sreg(kb, qb) + r)))
    ad = Ins('v_add_f32 %s, %s, %s' % (vr(V_L + qb), vr(V_L + qb), e))
    cv = None
    if r % 2 == 1:
        cv = Ins('v_cvt_pk_bf16_f32 %s, %s, %s' % (
            vr(Preg(uu, qb, kb // 2) + (kb % 2) * 2 + r // 2), vr(V_E + (i - 1) % 4), e))
    return ex, ad, cv


def att_slots(p, u, ta, tb, inloop, pv=True, qk=True, sm_cur=True, sm_next=True, vnext=True, dmak=True, dmav=True,
              barrier=True, g=None, cap=2, vearly=False, extra_need=()):
    T0 = -40
    R = range(-128, 256)
    sc = {t: [] for t in R}
    ld = {t: [] for t in R}
    va = {t: [] for t in R}
    for t in range(0, 128, 2):
        if t >= X0:
            uu, i, on = u + 1, (t - X0) // 2, sm_next
        else:
            uu, i, on = u, (t + 128 - X0) // 2, sm_cur
        if on:
            ex, ad, cv = sm_instrs(uu, i)
            va[t].append(ex)
            va[t + 1].append(ad)
            if cv is not None:
                va[t + 1].append(cv)
    pos = [t for t in range(T0, T0 + 128) if t % 8 in (1, 4, 5)]
    n = 0
    m = 0
    for db in range(8):
        for ks in range(2):
            for j in range(2):
                t = pos[n]
                n += 1
                if t >= 0:
                    if pv:
                        ld[t].append(v_load(u - 1, db, ks, j, inloop))
                elif vnext:
                    if vearly:
                        ld[46 + m].append(v_load(u, db, ks, j, inloop))
                        m += 1
                    else:
                        ld[t + 128].append(v_load(u, db, ks, j, inloop))
        t = 8 * db - 1
        sc[t if t >= 0 else t + 128].append(wait_ins(ar(A_VF + db * 8, 8)))
    for kb in range(4):
        for s in range(4):
            t = pos[n]
            n += 1
            if qk:
                ld[t].append(k_load(u + 1, kb, s, inloop))
        if qk:
            sc[64 + 16 * kb - 1].append(wait_ins(ar(A_KF + kb * 16, 16)))
    for on, kind, uu, tt in ((dmav, 'V', u + DV, 2), (dmak, 'K', u + DK, 66)):
        if on:
            lst = dma_unit(kind, uu, inloop)
            sc[tt].append(lst[0])
            ds = OPT.get('dstep', 8)
            for k in range(4):
                ld[tt + ds * k + (4 if k == 0 else 0)].append(lst[1 + k])
            sc[tt + ds * 3 + 1].append(lst[5])
    if barrier:
        nd = [(LS(4 + VP(u)), vtag(u, inloop))] + list(extra_need)
        if qk:
            nd.append((LS((u + 1) % 4), ktag(u + 1, inloop)))
        sc[0].append(need_ins(*nd))
        sc[1].append(Ins('s_barrier'))
    g = g or Gaps(p)
    for t in range(ta, tb):
        mf = None
        if t < 64:
            if pv:
                db, qb, ks = t // 8, (t % 8) // 2, t % 2
                o = ar(A_O + (db * 4 + qb) * 4, 4)
                mf = '%s %s, %s, %s, %s' % (MF, o, ar(A_VF + db * 8 + ks * 4, 4), vr(Preg(u - 1, qb, ks), 4), o)
        elif qk:
            tt = t - 64
            kb, qb, s = tt // 16, (tt % 16) // 4, tt % 4
            d = vr(Sreg(kb, qb), 4)
            c = vr(V_NM + qb * 4, 4) if s == 0 else d
            mf = '%s %s, %s, %s, %s' % (MF, d, ar(A_KF + kb * 16 + s * 4, 4), vr(V_Q + (qb * 4 + s) * 4, 4), c)
        assert len(sc[t]) <= 1 and len(ld[t]) <= 1
        if mf is None and not (sc[t] or ld[t] or va[t]):
            continue
        g.gap(mf, sc[t], ld[t], va[t], cap=cap)


def kv_dma_setup():
    o = []
    a = lambda s: o.append(Ins(s))
    a('v_and_b32 %s, 15, %s' % (t0, L))
    a('v_lshrrev_b32 %s, 4, %s' % (t1, L))
    a('v_lshlrev_b32 %s, 8, %s' % (t2, t1))
    a('v_add_u32 %s, %s, %s' % (t2, sr(S_MK), t2))
    a('v_xor_b32 %s, %s, %s' % (t3, t0, t1))
    a('v_lshl_add_u32 %s, %s, 4, %s' % (vr(V_OK), t3, t2))
    for c in range(1, 4):
        a('v_xor_b32 %s, %d, %s' % (vr(V_OK + c), c * 64, vr(V_OK)))
    a('v_lshlrev_b32 %s, 1, %s' % (t3, t1))
    a('v_xor_b32 %s, %s, %s' % (t3, t0, t3))
    a('v_lshl_add_u32 %s, %s, 4, %s' % (vr(V_OV), t3, t2))
    a('v_xor_b32 %s, 128, %s' % (vr(V_OV + 1), vr(V_OV)))
    return o


def k_read_setup():
    o = []
    a = lambda s: o.append(Ins(s))
    a('v_and_b32 %s, 15, %s' % (t0, L))
    a('v_lshrrev_b32 %s, 4, %s' % (t1, L))
    a('v_xor_b32 %s, %s, %s' % (t2, t0, t1))
    a('v_lshlrev_b32 %s, 4, %s' % (t2, t2))
    a('v_lshl_add_u32 %s, %s, 8, %s' % (vr(V_KA), t0, t2))
    for s in range(1, 4):
        a('v_xor_b32 %s, %d, %s' % (vr(V_KA + s), s * 64, vr(V_KA)))
    return o


def v_read_setup():
    o = []
    a = lambda s: o.append(Ins(s))
    a('v_lshrrev_b32 %s, 2, %s' % (t2, L))
    a('v_and_b32 %s, 7, %s' % (t3, t2))
    a('v_lshlrev_b32 %s, 5, %s' % (t3, t3))
    a('v_lshl_add_u32 %s, %s, 8, %s' % (t3, t2, t3))
    a('v_and_b32 %s, 3, %s' % (t2, L))
    a('v_lshl_add_u32 %s, %s, 3, %s' % (t3, t2, t3))
    a('v_add_u32 %s, 0x10000, %s' % (vr(V_VA), t3))
    for d in range(1, 8):
        a('v_xor_b32 %s, %d, %s' % (vr(V_VA + d), d * 32, vr(V_VA)))
    return o


def xlane4(op, xs, ts):
    o = []
    for perm in ('v_permlane32_swap_b32', 'v_permlane16_swap_b32'):
        for x, t in zip(xs, ts):
            o.append(Ins('v_mov_b32 %s, %s' % (t, x)))
        for x, t in zip(xs, ts):
            o.append(Ins('%s %s, %s' % (perm, x, t)))
        for x, t in zip(xs, ts):
            o.append(Ins('%s %s, %s, %s' % (op, x, x, t)))
    return o


def div18(o, n, row, sl):
    o.append(Ins('v_mul_u32_u24 %s, 3641, %s' % (row, n)))
    o.append(Ins('v_lshrrev_b32 %s, 16, %s' % (row, row)))
    o.append(Ins('v_mul_u32_u24 %s, 18, %s' % (sl, row)))
    o.append(Ins('v_sub_u32 %s, %s, %s' % (sl, n, sl)))


def ffn_tiles():
    m, nv, na = {}, 0, 0
    for b in range(9):
        for mat in range(2):
            for qb in range(4):
                if mat == 1 and na < 18:
                    m[(2 * b + mat, qb)] = ('a', na * 4)
                    na += 1
                else:
                    m[(2 * b + mat, qb)] = ('v', 40 + nv * 4)
                    nv += 1
    assert nv == 54 and na == 18
    return m


FT = ffn_tiles()
WQ_SLOT = {8: 9, 7: 3, 6: 4, 5: 5, 4: 6, 3: 7, 2: 8, 1: 9, 0: 3}


def p1_dma(c):
    out = [Ins('s_add_u32 %s, %s, %d' % (T(8), sr(S_OFFW), c * 64 * 9216))]
    for i in range(9):
        if i % 4 == 0:
            out.append(Ins('s_add_u32 m0, %s, %d' % (sr(S_M1), PS(c)[0] + (i // 4) * 4096)))
        out.append(Ins('buffer_load_dwordx4 %s, %s, %s offen offset:%d lds' % (
            vr(V_OW + i), sr(S_WS, 4), T(8), (i % 4) * 1024), lds=(PS(c), ('W', c))))
    return out


def xn_loads(c, buf):
    base = A_B + buf * 32
    out = []
    for qb in range(4):
        out.append(Ins('s_mov_b32 %s, %d' % (T(qb), qb * 18 * 1024 + c * 2048)))
        for ks in range(2):
            out.append(Ins('buffer_load_dwordx4 %s, %s, %s, %s offen offset:%d' % (
                ar(base + (qb * 2 + ks) * 4, 4), vr(V_L16), sr(S_XN, 4), T(qb), ks * 1024)))
    return out


def wq_dma(c):
    sl = WQ_SLOT[c]
    out = []
    for cc in range(4):
        out.append(Ins('s_add_u32 %s, %s, %d' % (T(4 + cc % 2), sr(S_OFFQ), (c * 64 + cc * 4) * 8192)))
        out.append(Ins('s_add_u32 m0, %s, %d' % (sr(S_MK), sl * 16384 + cc * 1024)))
        out.append(Ins('buffer_load_dwordx4 %s, %s, %s offen lds' % (
            vr(V_OQ + cc % 2), sr(S_WQ, 4), T(4 + cc % 2)), lds=(LS(sl), ('Q', c))))
    return out


def p1_reads(c, blk, dst):
    mat, b = blk % 2, blk // 2
    return [Ins('ds_read_b64_tr_b16 %s, %s offset:%d' % (
        ar(dst + ks * 4 + 2 * j, 2), vr(V_A1 + c % 4),
        mat * 18432 + (32 * ks + 16 * j) * 288 + 32 * b), lds=(PS(c), ('W', c)))
        for ks in range(2) for j in range(2)]


def p2_reads(c, bq, dst):
    s, jj = bq // 2, bq % 2
    sl = WQ_SLOT[c]
    return [Ins('ds_read_b64_tr_b16 %s, %s offset:%d' % (
        ar(dst + ks * 4 + 2 * j, 2), vr(V_AQ + (sl // 4) * 4 + s),
        (sl % 4) * 16384 + (32 * ks + 16 * j) * 256 + 8 * jj), lds=(LS(sl), ('Q', c)))
        for ks in range(2) for j in range(2)]


def swiglu_unit(b, qb, ready, pool):
    gt, ut = FT[(2 * b, qb)], FT[(2 * b + 1, qb)]
    pk = FT[(2 * (b - b % 2), qb)][1] + (b % 2) * 2
    o = []
    ta, tb = vr(V_SW), vr(V_SW + 1)
    for r in (0, 2):
        pa, pb = vr(V_SW + 2 + r), vr(V_SW + 3 + r)
        g0, g1 = vr(gt[1] + r), vr(gt[1] + r + 1)
        if ut[0] == 'a':
            o.append(Ins('v_accvgpr_read_b32 %s, %s' % (pa, ar(ut[1] + r))))
            o.append(Ins('v_accvgpr_read_b32 %s, %s' % (pb, ar(ut[1] + r + 1))))
            u0, u1 = pa, pb
        else:
            u0, u1 = vr(ut[1] + r), vr(ut[1] + r + 1)
        if OPT.get('fold', 0):
            o.append(Ins('v_exp_f32 %s, %s' % (ta, g0)))
            o.append(Ins('v_exp_f32 %s, %s' % (tb, g1)))
        else:
            o.append(Ins('v_mul_f32 %s, %s, %s' % (ta, sr(S_NL), g0)))
            o.append(Ins('v_mul_f32 %s, %s, %s' % (tb, sr(S_NL), g1)))
            o.append(Ins('v_exp_f32 %s, %s' % (ta, ta)))
            o.append(Ins('v_exp_f32 %s, %s' % (tb, tb)))
        o.append(Ins('v_mul_f32 %s, %s, %s' % (pa, g0, u0)))
        o.append(Ins('v_mul_f32 %s, %s, %s' % (pb, g1, u1)))
        o.append(Ins('v_add_f32 %s, 1.0, %s' % (ta, ta)))
        o.append(Ins('v_add_f32 %s, 1.0, %s' % (tb, tb)))
        o.append(Ins('v_rcp_f32 %s, %s' % (ta, ta)))
        o.append(Ins('v_rcp_f32 %s, %s' % (tb, tb)))
        o.append(Ins('v_mul_f32 %s, %s, %s' % (pa, pa, ta)))
        o.append(Ins('v_mul_f32 %s, %s, %s' % (pb, pb, tb)))
    for r in (0, 2):
        o.append(Ins('v_cvt_pk_bf16_f32 %s, %s, %s' % (vr(pk + r // 2), vr(V_SW + 2 + r), vr(V_SW + 3 + r))))
    rel = [ut] + ([gt] if b % 2 == 1 else [])
    if b % 2 == 1:
        o.append(Ins('buffer_store_dwordx4 %s, %s, %s, %s offen offset:%d sc1' % (
            vr(pk - 2, 4), vr(V_L16), sr(S_H, 4), sr(S_HS + qb), (b // 2) * 1024), lds=('H', 0)))
        if OPT.get('plain_h'):
            o[-1].text = o[-1].text.replace(' sc1', '')
        rel.append(FT[(2 * (b - 1), qb)])
    elif b == 8:
        o.append(Ins('buffer_store_dwordx2 %s, %s, %s, %s offen sc1' % (
            vr(pk, 2), vr(V_L16), sr(S_H, 4), sr(S_HS + 4 + qb)), lds=('H', 0)))
        if OPT.get('plain_h'):
            o[-1].text = o[-1].text.replace(' sc1', '')
    o[0].ready = ready
    o[-1].on_emit = lambda: pool.extend(t for t in rel if not (t[0] == 'v' and t[1] >= V_Q))
    return o


def qcvt_unit(qb, s, QT, ready):
    o = []
    for h in range(2):
        tl = QT[(2 * s + h, qb)]
        tm = [vr(V_SW + e) for e in range(4)]
        for e in range(4):
            if tl[0] == 'a':
                o.append(Ins('v_accvgpr_read_b32 %s, %s' % (tm[e], ar(tl[1] + e))))
        for e in range(4):
            o.append(Ins('v_mul_f32 %s, %s, %s' % (tm[e], sr(S_C), tm[e] if tl[0] == 'a' else vr(tl[1] + e))))
        for e in range(2):
            o.append(Ins('v_cvt_pk_bf16_f32 %s, %s, %s' % (vr(V_Q + (qb * 4 + s) * 4 + 2 * h + e), tm[2 * e], tm[2 * e + 1])))
    o[0].ready = ready
    return o


class GemmSeq:
    def __init__(self, p, g):
        self.p, self.g = p, g
        self.groups = []

    def add(self, reads, nfr, mf, hook=None, bar=None, bwait=None, cap=2):
        self.groups.append(dict(reads=reads, n=nfr, mf=mf, hook=hook, bar=bar, bwait=bwait, cap=cap))

    def run(self):
        G, g, p = self.groups, self.g, self.p
        pos = 0
        for x in G:
            if x['n'] == 16 and pos % 16:
                pos += 8
            x['dst'] = A_A + pos % 32
            pos += x['n']
        for k, x in enumerate(G):
            regs = lambda y: set(range(y['dst'], y['dst'] + y['n']))
            ld = 1
            if k >= 2 and not (regs(x) & regs(G[k - 1])) and not (regs(x) & regs(G[k - 2])) and G[k - 1]['n'] == 8:
                ld = 2
            assert k == 0 or not (regs(x) & regs(G[k - 1]))
            x['at'] = k - ld
        for x in G:
            if x['at'] < 0:
                if x['bar']:
                    p.need(*x['bar'])
                    p('s_barrier')
                for i in x['reads'](x['dst']):
                    p.add(i)
        for k, x in enumerate(G):
            if x['hook']:
                x['hook']()
            todo = [y for y in G if y['at'] == k]
            rd, bar = [], []
            for y in todo:
                rd += y['reads'](y['dst'])
                if y['bar'] is not None:
                    bar += y['bar']
            hasbar = any(y['bar'] is not None for y in todo)
            mfs = x['mf'](x['dst'])
            n = len(mfs)
            st = 3 if hasbar else 0
            step = 2 if (st + 2 * ((len(rd) + 1) // 2) <= n - 1) else 1
            for t in range(n):
                sc, ld = [], []
                if hasbar and t == 1:
                    sc = [need_ins(('lgkm', 'all'), *bar)]
                if hasbar and t == 2:
                    sc = [Ins('s_barrier')]
                if t >= st and (t - st) % step == 0 and rd:
                    ld = rd[:2]
                    rd = rd[2:]
                if t == n - 1 and k + 1 < len(G):
                    y = G[k + 1]
                    bw = y['bwait']() if callable(y['bwait']) else (y['bwait'] or [])
                    w = [ar(y['dst'], y['n'])] + bw
                    sc = [wait_ins(*w)]
                g.gap(mfs[t](), sc, ld, cap=x['cap'])
                if hasbar and t == 2:
                    for y in todo:
                        if y.get('post'):
                            y['post']()
            assert not rd


V_DOWS = [22, 23, 24, 25, 26, 27, 248, 249, 250]
V_DRA = 40
V_DA = 56
V_AC2, V_AC1 = 104, 176
V_PK = 4
A_DB = 128
SPIN_BLOCKS = []


def poll_issue(soff, V_FV=V_FV, V_FOFF=V_FOFF, S_FL=S_FL):
    return Ins('buffer_load_dword %s, %s, %s, %s offen sc1' % (vr(V_FV), vr(V_FOFF), sr(S_FL, 4), sr(soff)))


def poll_check(p, name, soff, cmp='v_cmp_ne_u32 vcc, %s' % sr(S_EP), V_FV=V_FV, V_FOFF=V_FOFF, S_FL=S_FL, sleep=4):
    SPIN_BLOCKS.append("""L_spin_%(n)s:
 s_mov_b32 s3, 0
L_spin_%(n)s_l:
 s_sleep %(sl)d
 buffer_load_dword %(v)s, %(o)s, %(srd)s, %(so)s offen sc1
 s_add_u32 s3, s3, 1
 s_cmp_gt_u32 s3, 0x40000
 s_cbranch_scc1 L_ok_%(n)s
 s_waitcnt vmcnt(0)
 %(cmp)s, %(v)s
 s_cbranch_vccnz L_spin_%(n)s_l
 s_branch L_ok_%(n)s""" % dict(n=name, v=vr(V_FV), o=vr(V_FOFF), srd=sr(S_FL, 4), so=sr(soff), cmp=cmp, sl=sleep))
    p('%s, %s' % (cmp, vr(V_FV)))
    p('s_cbranch_vccnz L_spin_%s' % name)
    p.label('L_ok_%s' % name)


def flag_store(soff, tag):
    return Ins('buffer_store_dword %s, %s, %s, %s offen sc1' % (
        vr(V_ONE), vr(V_FST), sr(S_FL, 4), sr(soff)), lds=('flag', (tag, 0)))


_ct = [0]


def code_touch(label, vo, vd, sp):
    _ct[0] += 1
    n = 'L_ct%d' % _ct[0]
    blk = Ins('; raw')
    blk.rawtext = (' s_getpc_b64 %(p)s\n%(n)s:\n s_add_u32 %(lo)s, %(lo)s, %(l)s-%(n)s\n s_addc_u32 %(hi)s, %(hi)s, 0' %
                   dict(p=sr(sp, 2), n=n, lo=sr(sp), hi=sr(sp + 1), l=label))
    return [blk,
            Ins('s_lshr_b32 s3, s2, 3'),
            Ins('s_lshl_b32 s3, s3, 11'),
            Ins('v_and_b32 %s, 15, %s' % (vr(vo), L)),
            Ins('v_lshlrev_b32 %s, 7, %s' % (vr(vo), vr(vo))),
            Ins('v_add_u32 %s, s3, %s' % (vr(vo), vr(vo))),
            Ins('v_min_u32 %s, L_code_end-%s-4, %s' % (vr(vo), label, vr(vo))),
            Ins('global_load_dword %s, %s, %s' % (vr(vd), vr(vo), sr(sp, 2)))]


def sadd(r, k):
    return Ins('s_add_u32 %s, %s, %d' % (sr(r), sr(r), k))


SK0, SK1, NPOS = 12, 16, 19
S_ADJW, S_ADJB = S_OFFK, S_OFFV


def dtag(c, at):
    if at < SK0 <= c:
        return lambda it: ('D', c + 4 if MODE[0] else c)
    return ('D', c)


def d_dma(c, at=0):
    out = []
    for i in range(9):
        if i % 4 == 0:
            if at >= SK1:
                out.append(Ins('s_add_u32 %s, %s, %d' % (T(8), sr(S_ADJW), c * 36864 + (i // 4) * 4096)))
            else:
                out.append(Ins('s_mov_b32 %s, %d' % (T(8), c * 36864 + (i // 4) * 4096)))
            out.append(Ins('s_add_u32 m0, %s, %d' % (sr(S_M1), DS(c)[0] + (i // 4) * 4096)))
        out.append(Ins('buffer_load_dwordx4 %s, %s, %s offen offset:%d sc1 lds' % (
            vr(V_L16), sr(S_DW2, 4), T(8), (i % 4) * 1024), lds=(DS(c), dtag(c, at))))
    return out


def d_bloads(c, at=0):
    srd, loc, rbs = (S_DH, c, HS()) if c < 9 else (S_DO, c - 9, OS())
    out = []
    for rb in range(2):
        if at >= SK1:
            out.append(Ins('s_add_u32 %s, %s, %d' % (T(9 + rb), sr(S_ADJB), loc * 4096 + rb * rbs)))
        else:
            out.append(Ins('s_mov_b32 %s, %d' % (T(9 + rb), loc * 4096 + rb * rbs)))
        for ks in range(4):
            out.append(Ins('buffer_load_dwordx4 %s, %s, %s, %s offen offset:%d sc1' % (
                ar(A_DB + (c % 4) * 32 + (rb * 4 + ks) * 4, 4), vr(V_L16), sr(srd, 4), T(9 + rb), ks * 1024)))
    return out


def d_reads(c, nb, at=None):
    return [Ins('ds_read_b64_tr_b16 %s, %s offset:%d' % (
        vr(V_DA + (nb % 3) * 16 + ks * 4 + 2 * j, 2), vr(V_DRA + c % 4), (32 * ks + 16 * j) * 288 + 32 * nb),
        lds=(DS(c), dtag(c, c if at is None else at))) for ks in range(4) for j in range(2)]


def d_pstore(gemm, nb):
    acc = (V_AC2 if gemm else V_AC1) + nb * 8
    pk = V_PK + (nb % 3) * 4
    out = []
    if nb % 4 == 0:
        out.append(Ins('s_mov_b32 %s, %d' % (T(nb // 4), gemm * PG + (nb // 4) * 4096)))
    for e in range(4):
        out.append(Ins('v_cvt_pk_bf16_f32 %s, %s, %s' % (vr(pk + e), vr(acc + 2 * e), vr(acc + 2 * e + 1))))
    out.append(Ins('buffer_store_dwordx4 %s, %s, %s, %s offen offset:%d sc1' % (
        vr(pk, 4), vr(V_L16), sr(S_DP, 4), T(nb // 4), (nb % 4) * 1024), lds=('PT%d' % gemm, 0)))
    return out


def d_ploads(gemm, base):
    out = []
    for k in range(3):
        for sp in range(4):
            t = T(4 + (k * 4 + sp) % 2)
            if k < 2:
                out.append(Ins('s_mov_b32 %s, %d' % (t, gemm * PG + sp * 4 * 9216 + k * 4096)))
            else:
                out.append(Ins('s_add_u32 %s, %s, %d' % (t, sr(S_OFFQ), gemm * PG + sp * 4 * 9216 + k * 4096)))
            out.append(Ins('buffer_load_dwordx4 %s, %s, %s, %s offen sc1' % (
                vr(base + (k * 4 + sp) * 4, 4), vr(V_L16), sr(S_DR, 4), t)))
    return out


def d_sum(base, k, dst, tmp):
    out = []
    for e in range(4):
        for sp in range(4):
            src = vr(base + (k * 4 + sp) * 4 + e)
            lo = vr(dst + 2 * e) if sp == 0 else vr(tmp)
            hi = vr(dst + 2 * e + 1) if sp == 0 else vr(tmp + 1)
            out.append(Ins('v_lshlrev_b32 %s, 16, %s' % (lo, src)))
            out.append(Ins('v_and_b32 %s, 0xffff0000, %s' % (hi, src)))
            if sp:
                out.append(Ins('v_add_f32 %s, %s, %s' % (vr(dst + 2 * e), vr(dst + 2 * e), lo)))
                out.append(Ins('v_add_f32 %s, %s, %s' % (vr(dst + 2 * e + 1), vr(dst + 2 * e + 1), hi)))
    return out


def d_scalar_setup1():
    o = []
    a = lambda s: o.append(Ins(s))
    a('s_mul_i32 %s, %s, 288' % (T(1), sr(S_W)))
    a('s_lshl_b32 %s, %s, 6' % (T(0), sr(S_SP)))
    a('s_add_u32 %s, %s, %s' % (T(0), T(0), sr(S_TILE)))
    a('s_mul_i32 %s, %s, %d' % (T(2), T(0), 18 * 1152))
    a('s_add_u32 %s, %s, %s' % (T(2), T(2), T(1)))
    o += srd_ins(S_A1, P_W2, T(2), 17 * 1152 + 288)
    a('s_and_b32 %s, %s, 1' % (T(7), sr(S_SP)))
    a('s_lshl_b32 %s, %s, 3' % (T(6), sr(S_SP)))
    a('s_lshl_b32 %s, %s, 1' % (T(3), T(7)))
    a('s_add_u32 %s, %s, %s' % (T(6), T(6), T(3)))
    a('s_lshl_b32 %s, %s, 3' % (T(7), T(7)))
    a('s_sub_u32 %s, 20, %s' % (T(7), T(7)))
    a('s_mul_i32 %s, %s, %s' % (T(9), T(7), sr(S_TILE)))
    a('s_lshl_b32 %s, %s, 7' % (T(2), T(6)))
    a('s_add_u32 %s, %s, %s' % (T(2), T(2), T(9)))
    a('s_mul_i32 %s, %s, 1152' % (T(2), T(2)))
    a('s_add_u32 %s, %s, %s' % (T(2), T(2), T(1)))
    a('s_mul_i32 %s, %s, 1152' % (T(3), T(7)))
    a('s_sub_u32 %s, %s, 864' % (T(3), T(3)))
    o += srd_ins(S_A2, P_WO, T(2), T(3))
    a('s_lshl_b32 %s, %s, 2' % (T(0), sr(S_SP)))
    a('s_add_u32 %s, %s, %s' % (T(1), T(0), sr(S_W)))
    a('s_mul_i32 %s, %s, %d' % (T(1), T(1), WBLK))
    a('s_add_u32 %s, %s, 0x%x' % (T(1), T(1), WS_W))
    a('s_mul_i32 %s, %s, %d' % (T(2), sr(S_TILE), 18 * 288))
    a('s_add_u32 %s, %s, %s' % (T(2), T(2), T(1)))
    o += srd_ins(S_A3, P_WS, T(2), 18 * 288)
    a('s_mul_i32 %s, %s, 288' % (T(2), T(9)))
    a('s_add_u32 %s, %s, %s' % (T(2), T(2), T(1)))
    a('s_add_u32 %s, %s, %d' % (T(2), T(2), 1152 * 288))
    a('s_mul_i32 %s, %s, 288' % (T(3), T(7)))
    o += srd_ins(S_A4, P_WS, T(2), T(3))
    a('s_mov_b32 %s, 0' % sr(S_RO))
    a('s_and_b32 %s, %s, 3' % (T(1), sr(S_TILE)))
    a('s_add_u32 %s, %s, %s' % (T(1), T(0), T(1)))
    a('s_mul_i32 %s, %s, %d' % (T(1), T(1), WBLK))
    a('s_add_u32 %s, %s, %s' % (T(1), T(1), sr(S_M1)))
    a('s_add_u32 %s, %s, 0x%x' % (T(1), T(1), WS_W))
    o += srd_ins(S_DW2, P_WS, T(1), 18 * 36864 + 9216)
    a('s_lshr_b32 %s, %s, 2' % (T(4), sr(S_TILE)))
    a('s_lshl_b32 %s, %s, 2' % (T(5), T(4)))
    a('s_add_u32 %s, %s, %s' % (T(5), T(5), sr(S_W)))
    a('s_mul_i32 %s, %s, %d' % (T(2), T(5), 2 * HS()))
    a('s_mul_i32 %s, %s, %d' % (T(3), sr(S_SP), 36 * 1024))
    a('s_add_u32 %s, %s, %s' % (T(2), T(2), T(3)))
    a('s_add_u32 %s, %s, 0x%x' % (T(2), T(2), WS_H))
    o += srd_ins(S_DH, P_WS, T(2), HS() + 36 * 1024)
    a('s_mul_i32 %s, %s, %d' % (T(2), T(5), 2 * OS()))
    a('s_lshl_b32 %s, %s, 12' % (T(3), T(6)))
    a('s_add_u32 %s, %s, %s' % (T(2), T(2), T(3)))
    a('s_add_u32 %s, %s, 0x%x' % (T(2), T(2), WS_O))
    o += srd_ins(S_DO, P_WS, T(2), OS() + 40 * 1024)
    return o


def d_scalar_setup2():
    o = []
    a = lambda s: o.append(Ins(s))
    a('s_lshl_b32 %s, %s, 2' % (T(2), sr(S_TILE)))
    a('s_add_u32 %s, %s, %s' % (T(2), T(2), sr(S_SP)))
    a('s_lshl_b32 %s, %s, 7' % (sr(S_FT), T(2)))
    a('s_add_u32 %s, %s, 0x10000' % (sr(S_FT), sr(S_FT)))
    a('s_lshl_b32 %s, %s, 2' % (T(2), T(2)))
    a('s_add_u32 %s, %s, %s' % (T(2), T(2), sr(S_W)))
    a('s_mul_i32 %s, %s, 9216' % (T(2), T(2)))
    a('s_add_u32 %s, %s, 0x%x' % (T(2), T(2), WS_P))
    o += srd_ins(S_DP, P_WS, T(2), PG + 9216)
    a('s_lshl_b32 %s, %s, 4' % (T(2), sr(S_TILE)))
    a('s_add_u32 %s, %s, %s' % (T(2), T(2), sr(S_SP)))
    a('s_mul_i32 %s, %s, 9216' % (T(2), T(2)))
    a('s_lshl_b32 %s, %s, 10' % (T(3), sr(S_W)))
    a('s_add_u32 %s, %s, %s' % (T(2), T(2), T(3)))
    a('s_add_u32 %s, %s, 0x%x' % (T(2), T(2), WS_P))
    o += srd_ins(S_DR, P_WS, T(2), PG + 14 * 9216)
    a('s_and_b32 %s, %s, 3' % (T(1), sr(S_TILE)))
    a('s_mul_i32 %s, %s, 288' % (T(1), T(1)))
    a('s_andn2_b32 %s, %s, 3' % (T(2), sr(S_TILE)))
    a('s_add_u32 %s, %s, %s' % (T(2), T(2), sr(S_SP)))
    a('s_mul_i32 %s, %s, %d' % (T(2), T(2), 32 * 1152))
    a('s_add_u32 %s, %s, %s' % (T(2), T(2), T(1)))
    o += srd_ins(S_DX, P_X, T(2), 31 * 1152 + 288)
    o += srd_ins(S_DOUT, P_OUT, T(2), 31 * 1152 + 288)
    a('s_lshl_b32 %s, %s, 28' % (sr(S_OFFQ), sr(S_W)))
    a('s_mov_b32 %s, 0x%x' % (sr(S_C), f2u(LOG2E * LOG2E)))
    a('s_mul_i32 %s, %s, %d' % (sr(S_HS), sr(S_W), 4 * OS()))
    for qb in range(1, 4):
        a('s_add_u32 %s, %s, 0x%x' % (sr(S_HS + qb), sr(S_HS), qb * OS()))
    a('s_lshl_b32 %s, %s, 5' % (sr(S_HS + 4), sr(S_W)))
    a('s_add_u32 %s, %s, %d' % (sr(S_HS + 5), sr(S_HS + 4), 16 * 1152))
    a('s_lshl_b32 %s, %s, 20' % (sr(S_HS + 6), sr(S_W)))
    a('s_add_u32 %s, %s, %d' % (sr(S_HS + 7), sr(S_HS + 6), 16 * 1152))
    return o


V_RN, V_RV = 20, 21
V_RQ = (248, 36)


def repack_pat():
    return [Ins('v_mul_u32_u24 %s, 3641, %s' % (vr(V_RV), vr(V_RN))),
            Ins('v_lshrrev_b32 %s, 16, %s' % (vr(V_RV), vr(V_RV))),
            Ins('v_mul_u32_u24 %s, 864, %s' % (vr(V_RV), vr(V_RV))),
            Ins('v_lshl_add_u32 %s, %s, 4, %s' % (vr(V_RV), vr(V_RN), vr(V_RV))),
            Ins('v_add_u32 %s, 64, %s' % (vr(V_RN), vr(V_RN)))]


def o_epilogue_unit(qb, t, n, ready):
    base = 184 + (n % 4) * 12
    o = []
    for r in range(8):
        o.append(Ins('v_accvgpr_read_b32 %s, %s' % (vr(base + r), ar(A_O + ((2 * t + r // 4) * 4 + qb) * 4 + r % 4))))
    for r in range(8):
        o.append(Ins('v_mul_f32 %s, %s, %s' % (vr(base + r), vr(base + r), vr(V_L + qb))))
    for r in range(4):
        o.append(Ins('v_cvt_pk_bf16_f32 %s, %s, %s' % (vr(base + 8 + r), vr(base + 2 * r), vr(base + 2 * r + 1))))
    o.append(Ins('buffer_store_dwordx4 %s, %s, %s, %s offen offset:%d%s' % (
        vr(base + 8, 4), vr(V_L16), sr(S_O, 4), sr(S_HS + qb), t * 1024, '' if OPT.get('plain_o', 0) else ' sc1'), lds=('O', 0)))
    o[0].ready = ready
    return o


def ln_parts(B=64):
    v = lambda k, n=1: vr(B + k, n)
    A, Ld, C, St = [], [], [], []
    a = lambda t: A.append(Ins(t))
    a('s_lshl_b32 s3, %s, 5' % sr(S_QT))
    a('s_add_u32 s3, s3, %s' % sr(S_HD))
    a('s_lshl_b32 s3, s3, 3')
    a('v_lshrrev_b32 %s, 5, v0' % v(1))
    a('v_add_u32 %s, s3, %s' % (v(1), v(1)))
    a('v_and_b32 %s, 31, v0' % v(2))
    a('v_lshrrev_b32 %s, 2, %s' % (v(3), v(2)))
    a('v_and_b32 %s, 3, %s' % (v(4), v(2)))
    a('v_mul_u32_u24 %s, 1152, %s' % (v(5), v(1)))
    a('v_lshl_add_u32 %s, %s, 6, %s' % (v(5), v(3), v(5)))
    a('v_lshl_add_u32 %s, %s, 3, %s' % (v(5), v(4), v(5)))
    for r in range(16, 20):
        a('v_mov_b32 %s, 0' % v(r))
    msk = lambda: [Ins('v_cmp_gt_u32 vcc, 8, %s' % v(2)), Ins('s_mov_b64 exec, vcc')]
    Ld += srd_ins(S_O, P_X, None, 2048 * 1152)
    for it in range(3):
        if it == 2:
            Ld += msk()
        Ld.append(Ins('buffer_load_dwordx2 %s, %s, %s, 0 offen offset:%d' % (v(8 + 4 * it, 2), v(5), sr(S_O, 4), it * 512)))
        Ld.append(Ins('buffer_load_dwordx2 %s, %s, %s, 0 offen offset:%d' % (v(10 + 4 * it, 2), v(5), sr(S_O, 4), it * 512 + 32)))
    Ld.append(Ins('s_mov_b64 exec, -1'))
    c = lambda t: C.append(Ins(t))
    c('v_lshrrev_b32 %s, 4, %s' % (v(6), v(1)))
    c('v_mul_u32_u24 %s, 18, %s' % (v(6), v(6)))
    c('v_add_u32 %s, %s, %s' % (v(6), v(6), v(3)))
    c('v_lshlrev_b32 %s, 10, %s' % (v(6), v(6)))
    c('v_lshl_add_u32 %s, %s, 8, %s' % (v(6), v(4), v(6)))
    c('v_and_b32 %s, 15, %s' % (v(7), v(1)))
    c('v_lshl_add_u32 %s, %s, 4, %s' % (v(6), v(7), v(6)))
    for d in range(12):
        c('v_lshlrev_b32 %s, 16, %s' % (v(20 + 2 * d), v(8 + d)))
        c('v_and_b32 %s, 0xffff0000, %s' % (v(21 + 2 * d), v(8 + d)))

    def reduce32(x, t):
        for k in (8, 4, 2, 1):
            c('v_add_f32_dpp %s, %s, %s row_ror:%d row_mask:0xf bank_mask:0xf' % (x, x, x, k))
        c('v_mov_b32 %s, %s' % (t, x))
        c('v_permlane16_swap_b32 %s, %s' % (x, t))
        c('v_add_f32 %s, %s, %s' % (x, x, t))
    c('v_add_f32 %s, %s, %s' % (v(44), v(20), v(21)))
    c('v_add_f32 %s, %s, %s' % (v(45), v(22), v(23)))
    for e in range(4, 24, 2):
        c('v_add_f32 %s, %s, %s' % (v(44), v(44), v(20 + e)))
        c('v_add_f32 %s, %s, %s' % (v(45), v(45), v(21 + e)))
    c('v_add_f32 %s, %s, %s' % (v(44), v(44), v(45)))
    reduce32(v(44), v(45))
    c('v_mul_f32 %s, 0x%x, %s' % (v(44), f2u(1.0 / 576), v(44)))
    c('v_mov_b32 %s, 0' % v(46))
    c('v_mov_b32 %s, 0' % v(47))
    for e in range(24):
        if e == 16:
            C += msk()
        c('v_sub_f32 %s, %s, %s' % (v(48), v(20 + e), v(44)))
        c('v_fmac_f32 %s, %s, %s' % (v(46 + e % 2), v(48), v(48)))
    c('s_mov_b64 exec, -1')
    c('v_add_f32 %s, %s, %s' % (v(46), v(46), v(47)))
    reduce32(v(46), v(45))
    c('v_mul_f32 %s, 0x%x, %s' % (v(46), f2u(1.0 / 576), v(46)))

    def rnd(x):
        c('v_cvt_pk_bf16_f32 %s, %s, %s' % (x, x, x))
        c('v_lshlrev_b32 %s, 16, %s' % (x, x))
    rnd(v(44))
    rnd(v(46))
    c('v_add_f32 %s, 0x%x, %s' % (v(46), f2u(1e-5), v(46)))
    rnd(v(46))
    c('v_sqrt_f32 %s, %s' % (v(46), v(46)))
    rnd(v(46))
    c('v_rcp_f32 %s, %s' % (v(46), v(46)))
    if OPT.get('fold', 0):
        c('v_mul_f32 %s, 0x%x, %s' % (v(46), f2u(-LOG2E), v(46)))
    C += srd_ins(S_XN, P_WS, None, 2048 * 1152)
    c('s_mov_b32 %s, 8192' % T(0))
    c('s_mov_b32 %s, 16384' % T(1))
    for d in range(12):
        x, y = v(20 + 2 * d), v(21 + 2 * d)
        c('v_sub_f32 %s, %s, %s' % (x, x, v(44)))
        c('v_sub_f32 %s, %s, %s' % (y, y, v(44)))
        c('v_cvt_pk_bf16_f32 %s, %s, %s' % (v(8 + d), x, y))
        c('v_lshlrev_b32 %s, 16, %s' % (x, v(8 + d)))
        c('v_and_b32 %s, 0xffff0000, %s' % (y, v(8 + d)))
        c('v_mul_f32 %s, %s, %s' % (x, x, v(46)))
        c('v_mul_f32 %s, %s, %s' % (y, y, v(46)))
        c('v_cvt_pk_bf16_f32 %s, %s, %s' % (v(8 + d), x, y))
        if d % 4 == 3:
            if d == 11:
                C += msk()
            C.append(Ins('buffer_store_dwordx4 %s, %s, %s, %s offen sc1' % (
                v(5 + d, 4), v(6), sr(S_XN, 4), ('0', T(0), T(1))[d // 4]), lds=('XN', 0)))
    c('s_mov_b64 exec, -1')
    return A, Ld, C


def gen_slow_softmax():
    p = Prog()
    KA, VA, OK, OV, NM, MX = 120, 124, 132, 136, 140, 138
    NM = 44
    NM, OV, MX = 136, 32, 36
    p.label('L_slow')
    p('s_waitcnt vmcnt(0) lgkmcnt(0)')
    p('s_nop 15')
    p('s_add_u32 %s, %s, %d' % (T(0), sr(S_MK), 112 * 1024))
    p('s_cmp_eq_u32 %s, 3' % sr(S_W))
    p('s_cselect_b32 %s, %d, %s' % (T(0), 72 * 1024, T(0)))
    p('s_sub_u32 %s, %s, 0x10000' % (T(1), T(0)))
    for k in range(4):
        p('v_add_u32 %s, %s, %s' % (vr(KA + k), T(0), vr(V_KA + k)))
        p('v_subrev_u32 %s, %s, %s' % (vr(OK + k), sr(S_MK), vr(V_OK + k)))
    for k in range(8):
        p('v_add_u32 %s, %s, %s' % (vr(VA + k), T(1), vr(V_VA + k)))
    for k in range(2):
        p('v_subrev_u32 %s, %s, %s' % (vr(OV + k), sr(S_MK), vr(V_OV + k)))

    def load16(srd, vo, nvo):
        p('s_mov_b32 m0, %s' % T(0))
        for cc in range(4):
            p('buffer_load_dwordx4 %s, %s, %s offen offset:%d lds' % (vr(vo + cc % nvo), sr(srd, 4), T(2), cc * 1024))
        p('s_add_u32 %s, %s, 4096' % (T(2), T(2)))
        p('s_waitcnt vmcnt(0)')

    def qk(cin):
        p('s_mov_b32 %s, %s' % (T(2), T(3)))
        for kb in range(4):
            load16(S_K, OK, 4)
            for sx in range(4):
                p('ds_read_b128 %s, %s' % (ar(A_VF + (kb * 4 + sx) * 4, 4), vr(KA + sx)))
            p('s_waitcnt lgkmcnt(0)')
        for kb in range(4):
            for qb in range(4):
                for sx in range(4):
                    d = vr(Sreg(kb, qb), 4)
                    p('%s %s, %s, %s, %s' % (MF, d, ar(A_VF + (kb * 4 + sx) * 4, 4), vr(V_Q + (qb * 4 + sx) * 4, 4),
                                             cin(qb) if sx == 0 else d))
    for qb in range(4):
        p('v_mov_b32 %s, 0xff7fffff' % vr(MX + qb))
    p('s_mov_b32 %s, 0' % T(3))
    p.loop_begin(2, 's1')
    p.label('L_slow1')
    qk(lambda qb: '0')
    for qb in range(4):
        regs = [vr(Sreg(kb, qb) + r) for kb in range(4) for r in range(4)]
        for k in range(8):
            p('v_max3_f32 %s, %s, %s, %s' % (vr(MX + qb), vr(MX + qb), regs[2 * k], regs[2 * k + 1]))
    p('s_add_u32 %s, %s, 16384' % (T(3), T(3)))
    p('s_cmp_lt_u32 %s, 0x80000' % T(3))
    p('s_cbranch_scc1 L_slow1')
    p.loop_end()
    for x in xlane4('v_max_f32', [vr(MX + k) for k in range(4)], [vr(V_E + k) for k in range(4)]):
        p.add(x)
    for qb in range(4):
        for r in range(4):
            p('v_sub_f32 %s, 0, %s' % (vr(NM + qb * 4 + r), vr(MX + qb)))
        p('v_mov_b32 %s, 0' % vr(V_L + qb))
    for i in range(128):
        p('v_accvgpr_write_b32 %s, 0' % ar(A_O + i))
    p('s_mov_b32 %s, 0' % T(3))
    lp = p.loop_begin(3, 's2')
    p.label('L_slow2')
    qk(lambda qb: vr(NM + qb * 4, 4))
    for i in range(64):
        for x in sm_instrs(1, i):
            if x is not None:
                p.add(x)
    p('s_cmp_eq_u32 %s, 0x7c000' % T(3))
    p('s_cbranch_scc1 L_slow_done')
    p.loop_mark_exit(lp)
    p('s_mov_b32 %s, %s' % (T(2), T(3)))
    for ks in range(2):
        for j in range(2):
            load16(S_V, OV, 2)
            for db in range(8):
                p('ds_read_b64_tr_b16 %s, %s' % (ar(A_VF + db * 8 + ks * 4 + 2 * j, 2), vr(VA + db)))
            p('s_waitcnt lgkmcnt(0)')
    for db in range(8):
        for qb in range(4):
            for ks in range(2):
                o = ar(A_O + (db * 4 + qb) * 4, 4)
                p('%s %s, %s, %s, %s' % (MF, o, ar(A_VF + db * 8 + ks * 4, 4), vr(Preg(1, qb, ks), 4), o))
    p('s_add_u32 %s, %s, 16384' % (T(3), T(3)))
    p('s_branch L_slow2')
    p.loop_end()
    p.label('L_slow_done')
    for db in range(4):
        for ks in range(2):
            for j in range(2):
                x = v_load(31, db, ks, j, False)
                x.lds = None
                p.add(x)
    p('s_waitcnt vmcnt(0) lgkmcnt(0)')
    p('s_nop 15')
    p('s_branch L_slow_ret')
    p.finalize()
    return p.text().rstrip('\n')


def gen_main(diag=False):
    p = Prog()
    del SPIN_BLOCKS[:]
    _ct[0] = 0

    def stamp(k):
        if diag:
            p('s_memtime %s' % sr(S_DG, 2))
            p('s_waitcnt lgkmcnt(0)')
            p('v_writelane_b32 v1, %s, %d' % (sr(S_DG), k))
            p('s_memrealtime %s' % sr(S_DG, 2))
            p('s_waitcnt lgkmcnt(0)')
            p('v_writelane_b32 v1, %s, %d' % (sr(S_DG), k + 16))

    def addall(lst):
        for x in lst:
            p.add(x)
    p('s_cmp_ge_u32 s2, 256')
    p('s_cbranch_scc1 L_end')
    p('s_load_dwordx4 s[44:47], s[0:1], 48')
    p('s_load_dwordx2 %s, s[0:1], 88' % sr(P_WS, 2))
    p('s_load_dwordx4 s[36:39], s[0:1], 8')
    p('s_load_dwordx2 s[40:41], s[0:1], 24')
    p('s_load_dwordx2 %s, s[0:1], 0' % sr(P_X, 2))
    p('s_load_dwordx2 %s, s[0:1], 32' % sr(P_WO, 2))
    p('s_load_dwordx4 %s, s[0:1], 64' % sr(P_W2, 4))
    FU = OPT.get('fuse', 1)
    if FU:
        p('s_load_dwordx2 s[50:51], s[0:1], 80')
    stamp(0)
    p('v_and_b32 %s, 63, v0' % L)
    p('v_lshrrev_b32 %s, 6, v0' % t0)
    p('v_readfirstlane_b32 %s, %s' % (sr(S_W), t0))
    p('s_and_b32 %s, s2, 3' % T(0))
    p('s_lshl_b32 %s, %s, 3' % (T(0), T(0)))
    p('s_bfe_u32 %s, s2, 0x30003' % T(1))
    p('s_add_u32 %s, %s, %s' % (sr(S_HD), T(0), T(1)))
    p('s_and_b32 %s, s2, 4' % T(0))
    p('s_lshr_b32 %s, s2, 6' % T(1))
    p('s_add_u32 %s, %s, %s' % (sr(S_QT), T(0), T(1)))
    if FU:
        lnA, lnL, lnC = ln_parts()
        ct = code_touch('L_start', 120, 121, S_FL)
        ct[2] = Ins('s_lshl_b32 s3, s3, 12')
        ct[3] = Ins('v_and_b32 v120, 31, %s' % L)
        addall(ct)
        p.label('L_start')
        addall(lnA)
        p('s_memrealtime s[24:25]')
        p('v_or_b32 v125, s2, v0')
        p('v_min_u32 v125, 1, v125')
        p('v_lshlrev_b32 v125, 20, v125')
        p('s_waitcnt lgkmcnt(0)')
        make_srd(p, S_WQ, 50, None, 256)
        p('s_or_b32 s3, s24, 1')
        p('v_mov_b32 v126, s3')
        p('buffer_store_dword v126, v125, %s, 0 offen sc1' % sr(S_WQ, 4))
        addall(lnL)
    p('v_lshlrev_b32 %s, 4, %s' % (vr(V_L16), L))
    p('s_and_b32 %s, %s, 1' % (T(2), sr(S_HD)))
    p('s_lshl_b32 %s, %s, 1' % (T(2), T(2)))
    p('v_add_u32 %s, %s, %s' % (t3, T(2), L))
    p('v_mul_u32_u24 %s, 3641, %s' % (vr(V_T + 4), L))
    p('v_mul_u32_u24 %s, 3641, %s' % (vr(V_T + 5), t3))
    p('s_movk_i32 %s, 9216' % T(9))
    p('s_movk_i32 %s, -288' % T(10))
    vo = []
    for i in range(9):
        o = []
        o.append(Ins('v_add_u32 %s, %d, %s' % (t0, 64 * i * 3641, vr(V_T + 4))))
        o.append(Ins('v_add_u32 %s, %d, %s' % (t1, 64 * i * 3641, vr(V_T + 5))))
        o.append(Ins('v_lshrrev_b32 %s, 16, %s' % (t0, t0)))
        o.append(Ins('v_lshrrev_b32 %s, 16, %s' % (t1, t1)))
        o.append(Ins('v_lshlrev_b32 %s, 4, %s' % (t2, t3)) if i == 0 else Ins('v_add_u32 %s, %d, %s' % (t2, 4096 if i % 4 == 0 else 0, t2)))
        o.append(Ins('v_mad_u32_u24 %s, %s, %s, %s' % (t0, t0, T(9), t2)))
        o.append(Ins('v_mad_i32_i24 %s, %s, %s, %s' % (vr(V_OW + i), t1, T(10), t0)))
        if i % 4:
            del o[4]
        vo.append(o)
    for o in vo[:4]:
        addall(o)
    p('s_mul_i32 %s, %s, 9216' % (sr(S_M1), sr(S_W)))
    p('s_and_b32 %s, %s, 1' % (T(3), sr(S_W)))
    p('s_mul_i32 %s, %s, %d' % (sr(S_OFFW), T(3), 32 * 9216))
    p('s_mul_i32 %s, %s, 288' % (T(2), sr(S_HD)))
    p('s_sub_u32 %s, %d, %s' % (T(3), 576 * 9216, T(2)))
    p('s_lshl_b32 %s, %s, 2' % (T(6), sr(S_QT)))
    p('s_add_u32 %s, %s, %s' % (T(6), T(6), sr(S_W)))
    p('s_mul_i32 %s, %s, %d' % (T(7), T(6), 4 * 18 * 1024))
    p('s_cmp_lt_u32 %s, 2' % sr(S_W))
    p('s_waitcnt lgkmcnt(0)')
    p('s_cselect_b32 s48, s44, s46')
    p('s_cselect_b32 s49, s45, s47')
    make_srd(p, S_WS, 48, T(2), T(3))
    if FU:
        p('s_mov_b32 %s, %s' % (sr(S_RO), T(7)))
    else:
        make_srd(p, S_XN, P_WS, T(7), 4 * 18 * 1024)
    d0 = p1_dma(0)
    addall(d0[:6])
    for o in vo[4:]:
        addall(o)
    addall(d0[6:] + (xn_loads(0, 0) if not FU else []))
    if FU and OPT.get('pf0', 12):
        R0 = OPT.get('pf0', 12)
        p('s_lshr_b32 %s, s2, 3' % T(0))
        p('s_mul_i32 %s, %s, %d' % (T(0), T(0), R0 * 9216))
        p('s_and_b32 %s, s2, 3' % T(1))
        p('s_mul_i32 %s, %s, 2304' % (T(1), T(1)))
        p('s_add_u32 %s, %s, %s' % (T(0), T(0), T(1)))
        p('s_bitcmp1_b32 s2, 2')
        p('s_cselect_b32 %s, s46, s44' % sr(S_H))
        p('s_cselect_b32 %s, s47, s45' % sr(S_H + 1))
        make_srd(p, S_H, S_H, T(0), (R0 - 1) * 9216 + 2304)
        o = []
        div18(o, 'v0', 'v122', 'v123')
        addall(o)
        p('v_mul_u32_u24 v122, 9216, v122')
        p('v_lshl_add_u32 v122, v123, 7, v122')
        p('buffer_load_dword v124, v122, %s, 0 offen' % sr(S_H, 4))
    if OPT.get('pro', 1) == 0:
        addall(p1_dma(1) + xn_loads(1, 1) + p1_dma(2))
    PF0 = OPT.get('pf0', 12)
    assert PF0 % 2 == 0
    p('s_lshr_b32 %s, s2, 3' % T(0))
    p('s_and_b32 %s, s2, 3' % T(1))
    p('s_lshl_b32 %s, %s, 1' % (T(2), T(0)))
    p('s_and_b32 %s, %s, 1' % (T(3), sr(S_W)))
    p('s_add_u32 %s, %s, %s' % (T(2), T(2), T(3)))
    p('s_mul_i32 %s, %s, 9216' % (T(2), T(2)))
    p('s_mul_i32 %s, %s, 2304' % (T(3), T(1)))
    p('s_add_u32 %s, %s, %s' % (T(2), T(2), T(3)))
    p('s_sub_u32 %s, %d, %s' % (T(9), 576 * 9216, T(2)))
    p('s_lshl_b32 %s, %s, 2' % (T(4), T(0)))
    p('s_add_u32 %s, %s, %s' % (T(4), T(4), sr(S_W)))
    p('s_lshl_b32 %s, %s, 13' % (T(4), T(4)))
    p('s_lshl_b32 %s, %s, 11' % (T(3), T(1)))
    p('s_add_u32 %s, %s, %s' % (T(4), T(4), T(3)))
    p('s_sub_u32 %s, %d, %s' % (T(10), 576 * 8192, T(4)))
    p('s_lshl_b32 %s, %s, 19' % (T(5), sr(S_HD)))
    make_srd(p, S_K, 36, T(5), 0x80000)
    make_srd(p, S_V, 38, T(5), 0x80000)
    p('s_lshl_b32 %s, %s, 8' % (T(5), sr(S_HD)))
    p('s_sub_u32 %s, %d, %s' % (T(3), 576 * 8192, T(5)))
    make_srd(p, S_WQ, 40, T(5), T(3))
    make_srd(p, S_A1, 48, T(2), T(9))
    make_srd(p, S_A2, 40, T(4), T(10))
    p('v_lshlrev_b32 %s, 7, %s' % (t1, L))
    p('v_mov_b32 %s, 0x7f000000' % t2)
    p('v_cmp_gt_u32 vcc, 18, %s' % L)
    p('v_cndmask_b32 %s, %s, %s, vcc' % (vr(V_SW), t2, t1))
    p('v_cmp_gt_u32 vcc, 16, %s' % L)
    p('v_cndmask_b32 %s, %s, %s, vcc' % (vr(V_SW + 1), t2, t1))
    tw = lambda c: [Ins('s_mov_b32 %s, %d' % (T(7), c * 64 * 9216)),
                    Ins('buffer_load_dword %s, %s, %s, %s offen sc0' % (vr(V_SW + 2), vr(V_SW), sr(S_A1, 4), T(7)))]
    tq = lambda k: [Ins('s_mov_b32 %s, %d' % (T(7), k * 128 * 8192)),
                    Ins('buffer_load_dword %s, %s, %s, %s offen sc0' % (vr(V_SW + 3), vr(V_SW + 1), sr(S_A2, 4), T(7)))]
    touch = {c: [] for c in range(7)}
    for k, c in enumerate(range(PF0 // 2, 9)):
        touch[min(k, 6)] += tw(c)
    for k in range(5):
        touch[k + OPT.get('tq0', 0)] += tq(4 - k)
    for c in touch:
        for x in touch[c]:
            x.wr = [r for r in x.wr if r[0] != 'v']
    if not OPT.get('pf1', 1):
        touch = {}
    if OPT.get('fold', 0):
        p('s_mov_b32 %s, 0x%x' % (sr(S_C), f2u(-1.0 / 128 ** 0.5)))
        p('s_mov_b32 %s, 0x%x' % (sr(S_NL), f2u(-1.0 / LOG2E)))
    else:
        p('s_mov_b32 %s, 0x%x' % (sr(S_C), f2u(LOG2E / 128 ** 0.5)))
        p('s_mov_b32 %s, 0x%x' % (sr(S_NL), f2u(-LOG2E)))
    p('s_lshl_b32 %s, %s, 12' % (sr(S_MK), sr(S_W)))
    p('s_mov_b32 %s, 0' % sr(S_OFFK))
    p('s_mov_b32 %s, 0' % sr(S_OFFV))
    p('v_lshrrev_b32 %s, 2, %s' % (t0, L))
    p('v_mul_u32_u24 %s, 288, %s' % (t1, t0))
    p('v_and_b32 %s, 3, %s' % (t2, L))
    p('v_lshl_add_u32 %s, %s, 3, %s' % (vr(V_A1), t2, t1))
    for k in range(1, 4):
        p('v_add_u32 %s, %d, %s' % (vr(V_A1 + k), k * 36864, vr(V_A1)))
    p('v_and_b32 %s, 15, %s' % (t0, L))
    p('v_lshrrev_b32 %s, 4, %s' % (t1, L))
    p('v_lshlrev_b32 %s, 1, %s' % (t3, t1))
    p('v_xor_b32 %s, %s, %s' % (t3, t0, t3))
    p('v_lshlrev_b32 %s, 4, %s' % (t3, t3))
    p('v_lshl_add_u32 %s, %s, 13, %s' % (vr(V_OQ), t1, t3))
    p('v_xor_b32 %s, 128, %s' % (vr(V_OQ + 1), vr(V_OQ)))
    p('s_lshl_b32 %s, %s, 17' % (sr(S_OFFQ), sr(S_W)))
    addall(kv_dma_setup())
    p('s_mul_i32 %s, %s, %d' % (T(3), T(6), 4 * HS()))
    p('s_add_u32 %s, %s, 0x%x' % (T(3), T(3), WS_H))
    make_srd(p, S_H, P_WS, T(3), 4 * HS())
    p('s_mul_i32 %s, %s, %d' % (T(3), sr(S_QT), 16 * OS()))
    p('s_lshl_b32 %s, %s, 12' % (T(4), sr(S_HD)))
    p('s_add_u32 %s, %s, %s' % (T(3), T(3), T(4)))
    p('s_add_u32 %s, %s, 0x%x' % (T(3), T(3), WS_O))
    p('s_sub_u32 %s, %d, %s' % (T(5), 16 * OS(), T(4)))
    make_srd(p, S_O, P_WS, T(3), T(5))
    p('s_mov_b32 %s, 0x%x' % (T(3), WS_F))
    make_srd(p, S_FL, P_WS, T(3), 5 * 32768)
    p('s_lshr_b32 %s, %s, 3' % (sr(S_SP), sr(S_HD)))
    p('s_and_b32 %s, %s, 7' % (T(0), sr(S_HD)))
    p('s_lshl_b32 %s, %s, 3' % (sr(S_TILE), sr(S_QT)))
    p('s_add_u32 %s, %s, %s' % (sr(S_TILE), sr(S_TILE), T(0)))
    p('s_lshl_b32 %s, %s, 6' % (T(0), sr(S_SP)))
    p('s_add_u32 %s, %s, %s' % (T(0), T(0), sr(S_TILE)))
    p('s_lshl_b32 %s, %s, 7' % (sr(S_FWG), T(0)))
    p('s_lshl_b32 %s, %s, 13' % (sr(S_FGR), sr(S_SP)))
    p('s_mul_i32 %s, %s, 9' % (T(2), sr(S_HD)))
    p('s_add_u32 %s, %s, 1' % (T(2), T(2)))
    p('s_lshr_b32 %s, %s, 1' % (T(2), T(2)))
    p('s_lshl_b32 %s, %s, 10' % (sr(S_HS), T(2)))
    p('s_bitcmp1_b32 %s, 0' % sr(S_HD))
    p('s_mov_b32 %s, 4096' % T(3))
    p('s_cselect_b32 %s, %d, %s' % (T(3), -1024 + 8, T(3)))
    p('s_add_u32 %s, %s, %s' % (sr(S_HS + 4), sr(S_HS), T(3)))
    for qb in range(1, 4):
        p('s_add_u32 %s, %s, %d' % (sr(S_HS + qb), sr(S_HS), qb * HS()))
        p('s_add_u32 %s, %s, %d' % (sr(S_HS + 4 + qb), sr(S_HS + 4), qb * HS()))
    if OPT.get('pro', 1) == 1:
        addall(p1_dma(1))
    if FU:
        make_srd(p, S_A4, 50, None, 256)
        p('v_mov_b32 v127, 0')
        p('s_mov_b32 %s, 0' % sr(S_CNT))
        p.add(poll_issue(S_CNT, 128, 127, S_A4))
        addall(lnC)
        make_srd(p, S_XN, P_WS, sr(S_RO), 4 * 18 * 1024)
        p('s_lshl_b32 %s, %s, 12' % (T(2), sr(S_QT)))
        p('s_add_u32 %s, %s, %d' % (T(2), T(2), 4 * 32768))
        p('s_lshl_b32 %s, %s, 7' % (T(3), sr(S_HD)))
        p('s_add_u32 %s, %s, %s' % (T(3), T(3), T(2)))
        p('v_lshlrev_b32 v125, 20, v0')
        p('v_and_b32 v129, 31, %s' % L)
        p('v_lshlrev_b32 v129, 7, v129')
        poll_check(p, 'ep', S_CNT, 'v_cmp_eq_u32 vcc, 0', 128, 127, S_A4, sleep=2)
        p('v_readfirstlane_b32 %s, v128' % sr(S_EP))
        p.need(('XN', 0))
        p('s_barrier')
        p('buffer_store_dword v128, v125, %s, %s offen sc1' % (sr(S_FL, 4), T(3)), lds=('flag', ('XN', 0)))
        if OPT.get('lnpoll', 1) == 1:
            SPIN_BLOCKS.append("""L_lnp:
 s_mov_b32 s3, 0
L_lnp_l:
 buffer_load_dword v130, v129, %s, %s offen sc1
 s_add_u32 s3, s3, 1
 s_cmp_gt_u32 s3, 0x40000
 s_cbranch_scc1 L_lnp_ok
 s_waitcnt vmcnt(0)
 v_cmp_ne_u32 vcc, %s, v130
 s_cbranch_vccz L_lnp_ok
 s_sleep 2
 s_branch L_lnp_l""" % (sr(S_FL, 4), T(2), sr(S_EP)))
            p('s_cmp_eq_u32 %s, 0' % sr(S_W))
            p('s_cbranch_scc1 L_lnp')
            p.label('L_lnp_ok')
            p('s_barrier')
        else:
            p.add(poll_issue(S_T0 + 2, 130, 129))
            poll_check(p, 'ln', S_T0 + 2, 'v_cmp_ne_u32 vcc, %s' % sr(S_EP), 130, 129, sleep=2)
        addall(xn_loads(0, 0))
    stamp(1)

    if OPT.get('donly'):
        p('s_waitcnt vmcnt(0)')
        addall(d_scalar_setup1() + d_scalar_setup2() + k_read_setup() + v_read_setup())
        p('v_lshlrev_b32 %s, 20, v0' % vr(V_FST))
        p('v_mov_b32 %s, 1' % vr(V_ONE))
        p('v_lshlrev_b32 %s, 7, %s' % (vr(V_FOFF), L))
        p('v_mov_b32 %s, 0' % vr(V_RV))
        p('s_mov_b32 %s, 0' % sr(S_OFFW))
        for k in range(2, 7):
            stamp(k)
        p.raw(' s_branch L_donly')
    g = Gaps(p)
    seq = GemmSeq(p, g)
    pool = deque(('a', 72 + 4 * k) for k in range(14))

    def alloc():
        while not pool:
            x = (g.st or g.lo).popleft()
            g.over += max(1, cost(x))
            g.emit(x)
        for t in pool:
            if t[0] == 'v':
                pool.remove(t)
                return t
        return pool.popleft()

    XB = {}
    ring = lambda buf: [('a', A_B + buf * 32 + 4 * k) for k in range(8)]

    def xn_l(c, tiles):
        out = []
        for qb in range(4):
            out.append(Ins('s_mov_b32 %s, %d' % (T(qb), qb * 18 * 1024 + c * 2048)))
            for ks in range(2):
                out.append(Ins('buffer_load_dwordx4 %s, %s, %s, %s offen offset:%d' % (
                    rg(tiles[qb * 2 + ks]), vr(V_L16), sr(S_XN, 4), T(qb), ks * 1024)))
        return out

    def aq_setup():
        o = []
        a = lambda s: o.append(Ins(s))
        a('v_lshrrev_b32 %s, 2, %s' % (t0, L))
        a('v_and_b32 %s, 7, %s' % (t1, t0))
        a('v_lshlrev_b32 %s, 1, %s' % (t1, t1))
        a('v_and_b32 %s, 3, %s' % (t2, L))
        a('v_xor_b32 %s, %s, %s' % (t1, t1, t2))
        a('v_lshlrev_b32 %s, 4, %s' % (t1, t1))
        a('v_lshl_add_u32 %s, %s, 8, %s' % (vr(V_AQ), t0, t1))
        for s in range(1, 4):
            a('v_xor_b32 %s, %d, %s' % (vr(V_AQ + s), 64 * s, vr(V_AQ)))
        for rgn in range(1, 3):
            for s in range(4):
                a('v_add_u32 %s, 0x%x, %s' % (vr(V_AQ + rgn * 4 + s), rgn * 65536, vr(V_AQ + s)))
        return o

    def mk_mf(acc, chunks, xb, first):
        def mf(dst):
            out = []
            for qb in range(4):
                for ci, c in enumerate(chunks):
                    for ks in range(2):
                        def th(qb=qb, ci=ci, c=c, ks=ks):
                            a = rg(acc(qb))
                            cin = '0' if (first and ci == 0 and ks == 0) else a
                            return '%s %s, %s, %s, %s' % (MF, a, ar(dst + ci * 8 + ks * 4, 4), rg(xb(c)[qb * 2 + ks]), cin)
                        out.append(th)
            return out
        return mf

    for c in range(9):
        XB[c] = ring(c % 3)
    for c in range(7):
        for blk in range(18):
            hook = None
            if blk == 0:
                def hook(c=c):
                    if OPT.get('cst'):
                        p('s_memrealtime %s' % sr(S_DG, 2))
                        p('s_waitcnt lgkmcnt(0)')
                        p('v_writelane_b32 v1, %s, %d' % (sr(S_DG), 32 + c))
                    g.drop = {0: (), 1: ('dma',), 2: ('vld',), 3: ('dma', 'vld'), 4: ('dma', 'vld', 'dsr')}[OPT.get('drop', 0)]
                    g.vm_gap = OPT.get('vg1', 5) if c > 1 else OPT.get('vg0', 5)
                    if c == 0 and OPT.get('pro', 1):
                        g.hi.extend(xn_l(1, XB[1]) + p1_dma(2))
                    g.hi.extend(touch.get(c, []))
                    xl = xn_l(c + 2, XB[c + 2])
                    if c == 0:
                        g.hi.extend(xl + p1_dma(3))
                    else:
                        g.hi.extendleft(reversed(xl)) if OPT.get('xfirst', 0) else g.hi.extend(xl)
                    if c == 4:
                        g.hi.extend(wq_dma(8))
                    if c == 4 and OPT.get('ct1', 1):
                        g.hi.extend(code_touch('L_c1', V_SW + 4, V_SW + 5, S_A3))
                    if c == 6:
                        assert not any(y.kind == 'dma' and y.lds[1][0] == 'W' for y in g.hi)
                        g.lo.extend(aq_setup())
            seq.add(lambda dst, c=c, blk=blk: p1_reads(c, blk, dst), 8,
                    mk_mf(lambda qb, blk=blk: FT[(blk, qb)], [c], lambda c: XB[c], c == 0), hook=hook,
                    bar=[(PS(c), ('W', c))] if blk == 0 else None,
                    bwait=[rg(t) for t in XB[c]] if blk == 0 else None)
            if blk == 0 and 1 <= c <= 5:
                seq.groups[-1]['post'] = lambda c=c: g.hi.extend(p1_dma(c + 3))
            if blk == 0 and c == 6:
                seq.groups[-1]['post'] = lambda: g.hi.extend(wq_dma(7))
    CT = OPT.get('cap_t', 3)
    for blk in range(18):
        hook = None
        if blk >= 2 and blk % 2 == 0:
            def hook(b=blk // 2 - 1):
                for qb in range(4):
                    g.lo.extend(swiglu_unit(b, qb, g.n + 3, pool))
        if blk == 0:
            def hook():
                g.drop = ()
                p.label('L_c1')
                stamp(2)
        seq.add(lambda dst, blk=blk: p1_reads(7, blk, dst) + p1_reads(8, blk, dst + 8), 16,
                mk_mf(lambda qb, blk=blk: FT[(blk, qb)], [7, 8], lambda c: XB[c], False), hook=hook,
                bar=[(PS(7), ('W', 7)), (PS(8), ('W', 8))] if blk == 0 else None,
                bwait=[rg(t) for t in XB[7] + XB[8]] if blk == 0 else None, cap=CT)
        if blk == 0:
            seq.groups[-1]['post'] = lambda: g.hi.extend(wq_dma(6) + wq_dma(5))
    QT = {}

    def qacc(bq, qb):
        if (bq, qb) not in QT:
            QT[(bq, qb)] = alloc()
        return QT[(bq, qb)]
    XQ = {8: XB[8], 7: XB[7], 6: XB[6], 4: ring(1), 3: ring(2), 2: ring(0), 0: ring(1)}
    C2 = OPT.get('cap_p2', 2)
    qn = lambda c: (LS(WQ_SLOT[c]), ('Q', c))
    for bq in range(8):
        hook = None
        if bq == 0:
            def hook():
                stamp(3)
                g.vm_gap = OPT.get('vg2', 4)
                g.st_w = OPT.get('stw2', 1)
                for qb in range(4):
                    g.lo.extend(swiglu_unit(8, qb, g.n + 3, pool))
        if bq == 3:
            def hook():
                XQ[5] = XQ[1] = [alloc() for _ in range(8)]
                g.hi.extend(xn_l(5, XQ[5]))
        seq.add(lambda dst, bq=bq: p2_reads(8, bq, dst) + p2_reads(7, bq, dst + 8), 16,
                mk_mf(lambda qb, bq=bq: qacc(bq, qb), [8, 7], lambda c: XQ[c], True), hook=hook,
                bar=[qn(8), qn(7)] if bq == 0 else None, cap=C2)
        if bq == 0:
            seq.groups[-1]['post'] = lambda: g.hi.extend(
                wq_dma(4) + wq_dma(3) + wq_dma(2))
    for c in (6, 5, 4, 3, 2):
        for bq in range(8):
            hook = None
            if bq == 0:
                def hook(c=c):
                    for cc in {6: (4, 3), 5: (2,), 4: (1,), 3: (0,), 2: ()}[c]:
                        g.hi.extend(xn_l(cc, XQ[cc]))
            seq.add(lambda dst, c=c, bq=bq: p2_reads(c, bq, dst), 8,
                    mk_mf(lambda qb, bq=bq: qacc(bq, qb), [c], lambda c: XQ[c], False), hook=hook,
                    bar=[qn(c)] if bq == 0 else None, cap=C2,
                    bwait=(lambda c=c: [rg(t) for t in XQ[c]]) if bq == 0 else None)
            if bq == 0:
                seq.groups[-1]['lazyb'] = c
                post = {6: lambda: g.hi.extend(wq_dma(1) + wq_dma(0)),
                        3: lambda: g.hi.extend(dma_unit('K', 0, False)),
                        2: lambda: g.hi.extend(dma_unit('K', 1, False) + dma_unit('V', 0, False))}.get(c)
                seq.groups[-1]['post'] = post
    for bq in range(8):
        hook = None
        if bq == 0:
            def hook():
                print('swiglu backlog at last P2 group:', len(g.hi), len(g.lo), 'over', g.over, file=sys.stderr)
                g.hi.extend(dma_unit('K', 2, False) + dma_unit('V', 1, False))
        if bq >= 2 and bq % 2 == 0:
            def hook(s=bq // 2 - 1):
                for qb in range(4):
                    g.lo.extend(qcvt_unit(qb, s, QT, g.n + 3))
        seq.add(lambda dst, bq=bq: p2_reads(1, bq, dst) + p2_reads(0, bq, dst + 8), 16,
                mk_mf(lambda qb, bq=bq: qacc(bq, qb), [1, 0], lambda c: XQ[c], False), hook=hook,
                bar=[qn(1), qn(0)] if bq == 0 else None, cap=C2,
                bwait=(lambda: [rg(t) for t in XQ[1] + XQ[0]]) if bq == 0 else None)
    seq.run()
    stamp(4)
    print('G backlog at end:', len(g.hi), len(g.lo), 'over', g.over, 'waste', g.waste, file=sys.stderr)
    for qb in range(4):
        g.lo.extend(qcvt_unit(qb, 3, QT, 0))
    addall(k_read_setup())
    p.need(('lgkm', 'all'), (LS(0), ('K', 0)))
    p('s_barrier')
    for kb in range(4):
        for s in range(4):
            p.add(k_load(0, kb, s, False))
    g.flush()
    g.vm_gap = 4
    g.hi.extend(dma_unit('K', 3, False))
    g.hi.extend(d_scalar_setup1())
    g.lo.extend(Ins('v_accvgpr_write_b32 %s, 0' % ar(A_O + i)) for i in range(128))
    for kb in range(4):
        for qb in range(4):
            for s in range(4):
                d = vr(Sreg(kb, qb), 4)
                g.gap('%s %s, %s, %s, %s' % (MF, d, ar(A_KF + kb * 16 + s * 4, 4), vr(V_Q + (qb * 4 + s) * 4, 4), '0' if s == 0 else d))
    g.flush()
    addall(v_read_setup())
    for qb in range(4):
        p('v_mov_b32 %s, 0' % vr(V_L + qb))
    p('v_lshlrev_b32 %s, 20, v0' % vr(V_FST))
    if not FU:
        p('s_mov_b32 %s, 1' % sr(S_EP))
    p('v_mov_b32 %s, %s' % (vr(V_ONE), sr(S_EP)))
    p('v_lshlrev_b32 %s, 7, %s' % (vr(V_FOFF), L))
    addall(code_touch('L_att_tail', 32, 33, S_DWO)[:-1])
    p('v_mov_b32 %s, %s' % (vr(V_RN), L))
    addall(repack_pat())
    ms = [vr(V_E + qb) for qb in range(4)]
    for step in range(8):
        for qb in range(4):
            regs = [vr(Sreg(kb, qb) + r) for kb in range(4) for r in range(4)]
            if step == 0:
                p('v_max3_f32 %s, %s, %s, %s' % (ms[qb], regs[0], regs[1], regs[2]))
            elif step < 7:
                p('v_max3_f32 %s, %s, %s, %s' % (ms[qb], ms[qb], regs[2 * step + 1], regs[2 * step + 2]))
            else:
                p('v_max_f32 %s, %s, %s' % (ms[qb], ms[qb], regs[15]))
    addall(xlane4('v_max_f32', ms, [vr(V_T + k) for k in range(4)]))
    for qb in range(4):
        for r in range(4):
            p('v_sub_f32 %s, 0, %s' % (vr(V_NM + qb * 4 + r), ms[qb]))
    for kb in range(4):
        for qb in range(4):
            for r in range(4):
                x = vr(Sreg(kb, qb) + r)
                p('v_add_f32 %s, %s, %s' % (x, x, vr(V_NM + qb * 4)))
    stamp(5)
    def sm_plain(uu, i0, i1):
        prev = []
        for i in range(i0, i1):
            ex, ad, cv = sm_instrs(uu, i)
            p.add(ex)
            addall(prev)
            prev = [ad] + ([cv] if cv else [])
        p('s_nop 0')
        addall(prev)
    sm_plain(0, 0, 28)
    att_slots(p, 0, 0, 64, False, pv=False, sm_cur=False)
    sm_plain(0, 28, 60)
    p('s_mov_b32 %s, 0' % sr(S_CNT))
    p('s_lshl_b32 %s, %s, 4' % (sr(S_OFFQ), sr(S_W)))
    p('s_add_u32 %s, %s, 2' % (sr(S_OFFQ), sr(S_OFFQ)))
    p.wait_regs(ar(A_KF, 16))
    lp = p.loop_begin(7, 'att')
    p('.p2align 6')
    p.label('L_att')
    rtag = ('R', 0)
    g.vm_gap = 8

    def rp_loads():
        g.hi.append(Ins('buffer_load_dwordx4 %s, %s, %s, 0 offen nt' % (vr(V_RQ[0], 4), vr(V_RV), sr(S_A1, 4))))
        g.hi.append(Ins('buffer_load_dwordx4 %s, %s, %s, 0 offen nt' % (vr(V_RQ[1], 4), vr(V_RV), sr(S_A2, 4))))

    def rp_stores():
        g.hi.append(Ins('buffer_store_dwordx4 %s, %s, %s, %s offen sc1' % (vr(V_RQ[0], 4), vr(V_L16), sr(S_A3, 4), sr(S_RO)), lds=rtag))
        g.hi.append(Ins('buffer_store_dwordx4 %s, %s, %s, %s offen sc1' % (vr(V_RQ[1], 4), vr(V_L16), sr(S_A4, 4), sr(S_RO)), lds=rtag))
        g.hi.append(Ins('s_add_u32 %s, %s, 1024' % (sr(S_RO), sr(S_RO))))
    att_slots(p, 0, 64, 96, True)
    rp_loads()
    att_slots(p, 0, 96, 128, True, g=g, cap=4)
    assert not g.hi
    att_slots(p, 1, 0, 64, True)
    p('s_add_u32 %s, %s, 1' % (sr(S_CNT), sr(S_CNT)))
    p('s_cmp_eq_u32 %s, 7' % sr(S_CNT))
    p('s_cbranch_scc1 L_att_tail')
    p.loop_mark_exit(lp)
    g.lo.extend(repack_pat())
    att_slots(p, 1, 64, 128, True, g=g, cap=3)
    assert not g.lo
    att_slots(p, 2, 0, 30, True, extra_need=[rtag, ('H', 0)])
    if OPT.get('plain_h'):
        SPIN_BLOCKS.append('L_wbh:\n buffer_wbl2 sc1\n s_branch L_wbh_done')
        p('s_cmp_eq_u32 %s, %s' % (sr(S_CNT), sr(S_OFFQ)))
        p('s_cbranch_scc1 L_wbh')
        p.label('L_wbh_done')
    p('s_cmp_eq_u32 %s, 4' % sr(S_CNT))
    p('s_cselect_b32 %s, %s, 0x100000' % (T(0), sr(S_FWG)))
    fl = flag_store(S_T0, 'H')
    g.hi.append(fl)
    g.vm_gap = 3
    rp_stores()
    att_slots(p, 2, 30, 66, True, g=g, cap=4)
    assert not g.hi
    att_slots(p, 2, 66, 96, True)
    g.vm_gap = 8
    rp_loads()
    att_slots(p, 2, 96, 128, True, g=g, cap=4)
    assert not g.hi
    g.lo.extend(repack_pat())
    att_slots(p, 3, 0, 96, True, g=g, cap=3)
    assert not g.lo
    if OPT.get('ct2', 1):
        g.hi.append(Ins('global_load_dword v33, v32, %s' % sr(S_DWO, 2)))
    att_slots(p, 3, 96, 128, True, g=g, cap=4)
    assert not g.hi
    att_slots(p, 4, 0, 30, True)
    g.vm_gap = 3
    rp_stores()
    att_slots(p, 4, 30, 64, True, g=g, cap=4)
    assert not g.hi
    p('s_branch L_att')
    p.loop_end()
    p.label('L_att_tail')
    stamp(6)
    g.vm_gap = 4
    att_slots(p, 25, 64, 96, False)
    g.hi.append(poll_issue(S_FGR))
    tt = []
    a = lambda x: tt.append(Ins(x))
    a('s_lshr_b32 %s, s2, 3' % T(0))
    a('s_lshl_b32 %s, %s, 2' % (T(1), sr(S_SP)))
    a('s_add_u32 %s, %s, %s' % (T(1), T(1), sr(S_W)))
    a('s_mul_i32 %s, %s, %d' % (T(1), T(1), WBLK))
    a('s_mul_i32 %s, %s, 1152' % (T(2), T(0)))
    a('s_add_u32 %s, %s, %s' % (T(1), T(1), T(2)))
    a('s_add_u32 %s, %s, 0x%x' % (T(1), T(1), WS_W))
    tt += srd_ins(S_A1, P_WS, T(1), 18 * 36864 + 1152)
    a('s_and_b32 %s, s2, 4' % T(1))
    a('s_lshl_b32 %s, %s, 3' % (T(1), T(1)))
    a('s_add_u32 %s, %s, %s' % (T(1), T(1), T(0)))
    a('s_lshl_b32 %s, %s, 1' % (T(1), T(1)))
    a('s_and_b32 %s, %s, 1' % (T(2), sr(S_W)))
    a('s_add_u32 %s, %s, %s' % (T(1), T(1), T(2)))
    a('s_mul_i32 %s, %s, %d' % (T(1), T(1), HS()))
    a('s_mul_i32 %s, %s, %d' % (T(2), sr(S_SP), 36 * 1024))
    a('s_add_u32 %s, %s, %s' % (T(1), T(1), T(2)))
    a('s_add_u32 %s, %s, 0x%x' % (T(1), T(1), WS_H))
    tt += srd_ins(S_A2, P_WS, T(1), 36 * 1024)
    a('s_lshr_b32 %s, %s, 1' % (T(1), sr(S_W)))
    a('s_lshl_b32 %s, %s, 12' % (sr(S_RO), T(1)))
    a('s_lshl_b32 %s, %s, 2' % (T(2), sr(S_TILE)))
    a('s_add_u32 %s, %s, %s' % (T(2), T(2), sr(S_SP)))
    a('s_lshl_b32 %s, %s, 2' % (T(2), T(2)))
    a('s_add_u32 %s, %s, %s' % (T(2), T(2), sr(S_W)))
    a('s_mul_i32 %s, %s, 9216' % (T(2), T(2)))
    a('s_add_u32 %s, %s, 0x%x' % (T(2), T(2), WS_P))
    tt += srd_ins(S_A3, P_WS, T(2), 9216)
    g.hi.extend(tt)
    g.lo.extend(Ins('v_mov_b32 v%d, -1' % r) for r in range(36, 40))
    g.lo.extend([Ins('v_mul_u32_u24 %s, 7282, %s' % (vr(V_RV), L)),
                 Ins('v_lshrrev_b32 %s, 16, %s' % (vr(V_RV), vr(V_RV))),
                 Ins('v_mul_u32_u24 %s, %d, %s' % (vr(V_RV), 36864 - 1152, vr(V_RV))),
                 Ins('v_lshl_add_u32 %s, %s, 7, %s' % (vr(V_RV), L, vr(V_RV))),
                 Ins('v_mov_b32 v251, 0x7f000000'),
                 Ins('v_cmp_gt_u32 vcc, 18, %s' % L),
                 Ins('v_cndmask_b32 %s, v251, %s, vcc' % (vr(V_RV), vr(V_RV))),
                 Ins('v_cmp_gt_u32 vcc, 32, %s' % L),
                 Ins('v_cndmask_b32 v250, v251, %s, vcc' % vr(V_FOFF))])
    att_slots(p, 25, 96, 128, False, g=g, cap=4)
    att_slots(p, 26, 0, 64, False, g=g, cap=3, dmav=False)
    g.flush()
    addall(dma_unit('V', 28, False))
    poll_check(p, 'h', S_FGR)

    def nowr(l):
        for x in l:
            x.wr = [r for r in x.wr if r[0] != 'v']
        return l

    def touch_w(c, srd=S_A1):
        return nowr([Ins('s_mov_b32 %s, %d' % (T(6), c * 36864)),
                     Ins('buffer_load_dword v248, %s, %s, %s offen sc0' % (vr(V_RV), sr(srd, 4), T(6)))])

    def touch_h(k):
        return nowr([Ins('s_add_u32 %s, %s, %d' % (T(6), sr(S_RO), k * 8192)),
                     Ins('buffer_load_dword v249, v250, %s, %s offen sc0' % (sr(S_A2, 4), T(6)))])
    TD = OPT.get('touch_d', 0)
    tl = []
    if TD:
        for k in range(5):
            tl += [touch_w(2 * k), touch_h(k)]
    else:
        tl = [[] for _ in range(10)]
    if OPT.get('tagged', 0):
        for k in range(9):
            tl[k] = tl[k] + [Ins('s_mov_b32 %s, %d' % (T(5), k * 1024)),
                             Ins('buffer_store_dwordx4 v[36:39], %s, %s, %s offen sc1' % (vr(V_L16), sr(S_A3, 4), T(5)), lds=('PT1', 0))]
    for u in (26, 27, 28, 29):
        for (ta, tb, on) in ((0, 32, 0), (32, 48, 1), (48, 64, 1), (64, 96, 0), (96, 112, 1), (112, 128, 1)):
            if (u == 26 and ta < 64) or (u == 29 and ta >= 64):
                continue
            if on and tl:
                g.hi.extend(tl.pop(0))
            att_slots(p, u, ta, tb, False, g=g if on else None, cap=4, dmak=(u + DK < 32))
            assert not g.hi
    assert not tl
    for k in range(4):
        p('s_mov_b32 %s, %s' % (sr(S_DWO + k), sr(S_A1 + k)))
    g.hi.extend(d_scalar_setup2())
    att_slots(p, 29, 64, 128, False, dmak=False, g=g, cap=4)
    g.flush()
    p.label('L_donly')
    att_slots(p, 30, 0, 2, False, dmak=False, dmav=False, g=g)
    g.vm_gap = 5
    g.hi.extend(d_dma(0) + d_dma(1))
    g.hi.append(sadd(S_FWG, 32768))
    g.hi.append(Ins('s_andn2_b32 %s, %s, 0x3ff' % (sr(S_FGR), sr(S_FWG))))
    g.hi.append(Ins('s_add_u32 %s, %s, 8192' % (sr(S_OFFW), sr(S_FGR))))
    g.hi.append(Ins('s_and_b32 %s, %s, 1' % (sr(S_ADJB), sr(S_SP))))
    g.hi.append(Ins('s_mul_i32 %s, %s, %d' % (sr(S_ADJW), sr(S_ADJB), -4 * 36864)))
    g.hi.append(Ins('s_mul_i32 %s, %s, %d' % (sr(S_ADJB), sr(S_ADJB), -4 * 4096)))
    g.lo.append(Ins('v_and_b32 %s, 0x380, %s' % (vr(V_FOFF), vr(V_FOFF))))
    att_slots(p, 30, 2, 97, False, dmak=False, dmav=False, g=g, cap=4, barrier=False)
    g.vm_gap = 4
    g.hi.extend(d_bloads(0))
    att_slots(p, 30, 97, 128, False, dmak=False, dmav=False, g=g, cap=4, barrier=False)
    att_slots(p, 31, 0, 2, False, qk=False, sm_next=False, dmak=False, dmav=False, g=g, vearly=True)
    g.vm_gap = 3
    g.hi.extend(d_bloads(1) + d_dma(2))
    o = []
    o.append(Ins('v_lshrrev_b32 %s, 2, %s' % (t0, L)))
    o.append(Ins('v_mul_u32_u24 %s, 288, %s' % (t1, t0)))
    o.append(Ins('v_and_b32 %s, 3, %s' % (t2, L)))
    o.append(Ins('v_lshl_add_u32 %s, %s, 3, %s' % (vr(V_DRA), t2, t1)))
    for k in range(1, 4):
        o.append(Ins('v_add_u32 %s, %d, %s' % (vr(V_DRA + k), DBASE[k], vr(V_DRA))))
    g.lo.extend(o)
    g.lo.append(Ins('v_mov_b32 %s, 0x%x' % (vr(V_RN), f2u(2.0 ** OPT.get('thr', 30)))))
    att_slots(p, 31, 2, 64, False, qk=False, sm_next=False, dmak=False, dmav=False, g=g, cap=4, barrier=False, vearly=True)
    g.flush()
    sm_plain(31, 60, 64)
    p('v_max3_f32 %s, %s, %s, %s' % (t0, vr(V_L), vr(V_L + 1), vr(V_L + 2)))
    p('v_add_f32 %s, %s, %s' % (t0, t0, vr(V_L + 3)))
    p('v_cmp_nlt_f32 vcc, %s, %s' % (t0, vr(V_RN)))
    p('s_cbranch_vccnz L_slow')
    p.label('L_slow_ret')
    SPIN_BLOCKS.append(gen_slow_softmax())
    ls = [vr(V_L + qb) for qb in range(4)]
    g.lo.extend(xlane4('v_add_f32', ls, [vr(V_T + k) for k in range(4)]))
    g.lo.extend(Ins('v_rcp_f32 %s, %s' % (x, x)) for x in ls)
    n0 = g.n
    n = 0
    for t in range(4):
        for qb in range(4):
            g.lo.extend(o_epilogue_unit(qb, t, n, n0 + 16 * (t + 1) + 3))
            n += 1
    p.wait_regs(ar(A_VF, 8))
    kw = dict(qk=False, sm_cur=False, sm_next=False, vnext=False, dmak=False, dmav=False, g=g, barrier=False)
    att_slots(p, 32, 0, 33, False, **kw)
    g.hi.extend(d_bloads(2))
    att_slots(p, 32, 33, 46, False, **kw)
    p.need(('lgkm', 'all'), (DS(0), ('D', 0)))
    p('s_barrier')
    g.st.extend(d_reads(0, 0) + d_reads(0, 1))
    att_slots(p, 32, 46, 64, False, **kw)
    while g.st and g.st[0].kind == 'dsr':
        g.emit(g.st.popleft())
    assert not any(x.kind == 'dsr' for x in g.st)
    stamp(7)
    p.wait_regs(ar(A_DB, 32), vr(V_DA, 16))
    stamp(8)
    G2, GG = V_AC2, V_AC2 + 48
    xreg = lambda k, rb: 44 + (k * 2 + rb) * 2
    VO = V_T + 5

    def fin_setup():
        o = []
        o.append(Ins('v_and_b32 %s, 0x180, %s' % (vr(V_FOFF), vr(V_FOFF))))
        o.append(Ins('s_andn2_b32 %s, %s, 0x1ff' % (sr(S_FGR), sr(S_FT))))
        o.append(Ins('v_and_b32 %s, 15, %s' % (t0, L)))
        o.append(Ins('v_mul_u32_u24 %s, 1152, %s' % (t0, t0)))
        o.append(Ins('v_lshrrev_b32 %s, 4, %s' % (t1, L)))
        o.append(Ins('v_lshl_add_u32 %s, %s, 3, %s' % (vr(VO), t1, t0)))
        for k in range(3):
            for rb in range(2):
                o.append(Ins('buffer_load_dwordx2 %s, %s, %s, %s offen offset:%d' % (
                    vr(xreg(k, rb), 2), vr(VO), sr(S_DX, 4), sr(S_HS + 4 + rb + (2 if k == 2 else 0)), 128 * k)))
        return o

    def silu_g():
        o = []
        for k in range(3):
            d = GG + 8 * k
            o += d_sum(G2, k, d, V_T)
            for e in range(0, 8, 2):
                ta, tb = vr(V_T), vr(V_T + 1)
                o.append(Ins('v_mul_f32 %s, %s, %s' % (ta, sr(S_NL), vr(d + e))))
                o.append(Ins('v_mul_f32 %s, %s, %s' % (tb, sr(S_NL), vr(d + e + 1))))
                o.append(Ins('v_exp_f32 %s, %s' % (ta, ta)))
                o.append(Ins('v_exp_f32 %s, %s' % (tb, tb)))
                if OPT.get('fold', 0):
                    o.append(Ins('v_fma_f32 %s, %s, %s, %s' % (ta, ta, sr(S_C), sr(S_C))))
                    o.append(Ins('v_fma_f32 %s, %s, %s, %s' % (tb, tb, sr(S_C), sr(S_C))))
                else:
                    o.append(Ins('v_add_f32 %s, 1.0, %s' % (ta, ta)))
                    o.append(Ins('v_add_f32 %s, 1.0, %s' % (tb, tb)))
                o.append(Ins('v_rcp_f32 %s, %s' % (ta, ta)))
                o.append(Ins('v_rcp_f32 %s, %s' % (tb, tb)))
                o.append(Ins('v_mul_f32 %s, %s, %s' % (vr(d + e), vr(d + e), ta)))
                o.append(Ins('v_mul_f32 %s, %s, %s' % (vr(d + e + 1), vr(d + e + 1), tb)))
        return o

    g.vm_gap = 1
    SO = OPT.get('o_done', 2)
    LAST = NPOS - 1
    for c in range(NPOS):
        acc0 = V_AC2 if c < 9 else V_AC1
        first = c in (0, 9)
        if c == 9:
            stamp(14)
        if c in (SK0, SK1):
            g.flush()
        if c == SK0:
            p('s_bitcmp1_b32 %s, 0' % sr(S_SP))
            p('s_cbranch_scc1 L_dskip')
            p.loop_begin(1, 'opt')
        if c == SK1:
            p.loop_end()
            p.label('L_dskip')
        if OPT.get('dst'):
            p('s_memrealtime %s' % sr(S_DG, 2))
            p('s_waitcnt lgkmcnt(0)')
            p('v_writelane_b32 v1, %s, %d' % (sr(S_DG), 32 + c))
        extra_need = []
        post = []
        cap = 2
        if c <= SO:
            cap = OPT.get('cap_o', 4)
        if c == SO + 1:
            assert not g.lo and not g.st, len(g.lo)
            extra_need = [('O', 0)]
            post = [flag_store(S_FWG, 'O')]
            g.st_max = 1
            fs = fin_setup()
            g.lo.extend(fs[2:-6])
        if c == 6:
            g.hi.extend(fs[-6:])
        if TD and c in (2, 3, 4, 5, 6):
            g.hi.extend(touch_w(10 + 2 * (c - 2), S_DWO))
        if c == 6:
            g.st.append(poll_issue(S_FGR))
        if c == 7:
            poll_check(p, 'o', S_FGR)
            g.hi.extend(d_bloads(9, c))
            cap = 3
        if c == SK1 - 2:
            g.st.append(poll_issue(S_OFFW))
        if c == SK1 - 1:
            poll_check(p, 'o2', S_OFFW)
        if c <= 8:
            g.hi.extend((d_bloads(c + 3, c) if c != 6 else []) + d_dma(c + 3, c))
        elif 10 <= c <= LAST - 2:
            g.hi.extend(d_dma(c + 2, c) + d_bloads(c + 2, c))
        if c in (9, 10):
            for nb in (range(6) if c == 9 else range(6, 9)):
                g.lo.extend(d_pstore(1, nb))
            cap = 3
        if c == 11:
            assert not g.lo and not g.st
            extra_need = [('PT1', 0)]
            post = [flag_store(S_FT, 'PT1')]
            g.lo.extend(fs[:2])
            cap = 3
        if c == LAST - 2:
            g.st.append(poll_issue(S_FGR))
        if c == LAST - 1:
            poll_check(p, 'p2', S_FGR)
            g.hi.extend([sadd(S_FGR, 32768), sadd(S_FT, 32768)])
            g.hi.extend(d_ploads(1, G2))
        nv = sum(1 for x in g.hi if cost(x) == 2)
        if OPT.get('verbose_d'):
            print('D pos', c, 'queued vmem', nv, file=sys.stderr)
        g.vm_gap = OPT.get('vgd', 4) if c > SO else OPT.get('vgd2', 3)
        g.st_w = OPT.get('stw', 1)
        if c in (10, 11, SK1 - 1):
            g.vm_gap = 3
            cap = 3
        if c == LAST:
            g.vm_gap = 1
        for nb in range(9):
            n2 = nb + 2
            Lr = d_reads(c, n2) if n2 < 9 else (d_reads(c + 1, n2 - 9, c) if c < LAST else [])
            if c == LAST and nb >= 2:
                g.hi.extend(d_pstore(0, nb - 2))
            for t in range(8):
                rb, ks = t // 4, t % 4
                a = vr(acc0 + (nb * 2 + rb) * 4, 4)
                m = '%s %s, %s, %s, %s' % (MF, a, vr(V_DA + (nb % 3) * 16 + ks * 4, 4),
                                           ar(A_DB + (c % 4) * 32 + (rb * 4 + ks) * 4, 4),
                                           '0' if (first and ks == 0) else a)
                sc, ld = [], []
                if nb == 7:
                    if Lr and t >= 4:
                        ld = [Lr[2 * (t - 4)], Lr[2 * (t - 4) + 1]]
                    if t == 2 and c < LAST:
                        assert not any(y.kind == 'dma' and y.lds[0] == DS(c + 1) for y in g.hi), c
                        sc = [need_ins(('lgkm', 'all'), (DS(c + 1), dtag(c + 1, c)), *extra_need)]
                    if t == 3 and c < LAST:
                        sc = [Ins('s_barrier')]
                elif Lr:
                    ld = [Lr[t], Lr[t + 1]] if t % 2 == 0 else []
                if t == 7:
                    w = [vr(V_DA + ((nb + 1) % 3) * 16, 16)]
                    if nb == 8:
                        w.append(ar(A_DB + ((c + 1) % 4) * 32, 32))
                    sc = [wait_ins(*w)]
                g.gap(m, sc, ld, cap=cap)
                if nb == 7 and t == 3:
                    g.st.extend(post)
    stamp(9)
    g.hi.extend(d_pstore(0, 7) + d_pstore(0, 8))
    g.flush()
    stamp(10)
    sg = silu_g()
    if OPT.get('tagged', 0):
        addall(sg)
        stamp(11)

        def chk():
            o = [Ins('v_max3_u32 %s, %s, %s, %s' % (t0, vr(G2), vr(G2 + 1), vr(G2 + 2))),
                 Ins('v_max3_u32 %s, %s, %s, %s' % (t1, vr(G2 + 3), vr(G2 + 4), vr(G2 + 5)))]
            for k in range(6, 48, 2):
                tt_ = t0 if (k // 2) % 2 else t1
                o.append(Ins('v_max3_u32 %s, %s, %s, %s' % (tt_, tt_, vr(G2 + k), vr(G2 + k + 1))))
            o.append(Ins('v_max_u32 %s, %s, %s' % (t0, t0, t1)))
            o.append(Ins('v_cmp_eq_u32 vcc, -1, %s' % t0))
            return o
        addall(d_ploads(0, G2) + chk())
        p('s_cbranch_vccnz L_retry')
        p.label('L_retry_ok')
        SPIN_BLOCKS.append('L_retry:\n s_mov_b32 s3, 0\nL_retry_l:\n s_sleep 2\n' +
                           '\n'.join(' ' + x.text for x in d_ploads(0, G2)) +
                           '\n s_waitcnt vmcnt(0)\n s_add_u32 s3, s3, 1\n s_cmp_gt_u32 s3, 0x20000\n s_cbranch_scc1 L_retry_ok\n' +
                           '\n'.join(' ' + x.text for x in chk()) +
                           '\n s_cbranch_vccnz L_retry_l\n s_branch L_retry_ok')
        stamp(12)
    else:
        addall(sg[:len(sg) // 2])
        p.need(('PT0', 0))
        p('s_barrier')
        stamp(11)
        p.add(flag_store(S_FT, 'PT0'))
        p.add(poll_issue(S_FGR))
        addall(sg[len(sg) // 2:])
        poll_check(p, 'p1', S_FGR)
        stamp(12)
        addall(d_ploads(0, G2))
    for k in range(3):
        d = V_AC1 + 16 * k
        addall(d_sum(G2, k, d, V_T))
        for rb in range(2):
            xb = xreg(k, rb)
            for e in range(4):
                tx = vr(d + 8 + e)
                if e % 2 == 0:
                    p('v_lshlrev_b32 %s, 16, %s' % (tx, vr(xb + e // 2)))
                else:
                    p('v_and_b32 %s, 0xffff0000, %s' % (tx, vr(xb + e // 2)))
                p('v_fma_f32 %s, %s, %s, %s' % (tx, vr(d + rb * 4 + e), vr(GG + 8 * k + rb * 4 + e), tx))
            o = d + 12 + 2 * rb
            p('v_cvt_pk_bf16_f32 %s, %s, %s' % (vr(o), vr(d + 8), vr(d + 9)))
            p('v_cvt_pk_bf16_f32 %s, %s, %s' % (vr(o + 1), vr(d + 10), vr(d + 11)))
            p('buffer_store_dwordx2 %s, %s, %s, %s offen offset:%d' % (
                vr(o, 2), vr(VO), sr(S_DOUT, 4), sr(S_HS + 4 + rb + (2 if k == 2 else 0)), 128 * k))
    if diag:
        p('s_waitcnt vmcnt(0)')
        stamp(13)
        p('s_mov_b32 %s, 0x%x' % (T(3), WS_T))
        make_srd(p, S_K, P_WS, T(3), 0x100000)
        p('s_lshl_b32 %s, s2, 2' % T(0))
        p('s_add_u32 %s, %s, %s' % (T(0), T(0), sr(S_W)))
        p('s_lshl_b32 %s, %s, 8' % (T(0), T(0)))
        p('v_lshlrev_b32 v4, 2, %s' % L)
        p('buffer_store_dword v1, v4, %s, %s offen' % (sr(S_K, 4), T(0)))
    p.label('L_end')
    p('s_endpgm')
    for t in SPIN_BLOCKS:
        p.raw(t)
    p.raw('L_code_end:')
    for x in p.flat():
        if OPT.get('kv_nt', 1) and x.kind == 'dma' and ('s[4:7]' in x.text or 's[8:11]' in x.text):
            x.text = x.text.replace(' lds', ' nt lds')
        if OPT.get('w_nt') and x.kind == 'dma' and x.lds and not callable(x.lds[1]) and x.lds[1][0] in 'WQ':
            x.text = x.text.replace(' lds', ' nt lds')
        if OPT.get('st01') and x.kind == 'vst' and 'x4' in x.text:
            x.text = x.text.replace(' sc1', ' sc0 sc1')
        if OPT.get('nost') and x.kind == 'vst' and 'x4' in x.text and x.lds and (x.lds[0] == 'O' or (OPT['nost'] > 1 and x.lds[0] == 'PT1')):
            x.text = 's_nop 0'
            x.kind = 'sopp'; x.op = 's_nop'; x.ops = ['0']; x.rd = []; x.lds = None
        if FU and x.kind == 'vld' and sr(S_XN, 4) in x.text and 'sc1' not in x.text:
            x.text += ' sc1'
        if OPT.get('dplain') and x.kind in ('dma', 'vld') and 'x4' in x.text:
            x.text = x.text.replace(' sc1', '')
    p.finalize(verbose=bool(OPT.get('verbose')), check=not (OPT.get('drop') or OPT.get('nost')))
    print('total overflow slots', g.over, p.stats(), file=sys.stderr)
    return p


def build(diag=False):
    hdr = open('cdna_kernels/%s.s.ref' % NAME).read().split('; Override launch')[0]
    out = hdr
    if OPT.get('fuse', 1):
        km = gen_main(diag)
        kn = NAME + '_kernel'
        if OPT.get('aslist', 1):
            out += '; @launch kernel=%s grid=(256,1,1) block=(256,1,1) lds=163840\n' % kn
        else:
            out += '; @launch grid=(256,1,1) block=(256,1,1) lds=163840\n'
        out += '.amdgcn_target "amdgcn-amd-amdhsa--gfx950"\n.text\n'
        out += kernel_text(kn, km, 0, 0)
        out += '.section .rodata,"a"\n.p2align 6\n' + descriptor(kn, 512, 256)
        return out
    ln, km = gen_ln(), gen_main(diag)
    if not OPT.get('donly'):
        out += '; @launch kernel=ln_kernel grid=(256,1,1) block=(256,1,1) lds=0\n'
    out += '; @launch kernel=main_kernel grid=(256,1,1) block=(256,1,1) lds=163840\n'
    out += '.amdgcn_target "amdgcn-amd-amdhsa--gfx950"\n.text\n'
    out += kernel_text('ln_kernel', ln, 0, 0) + kernel_text('main_kernel', km, 0, 0)
    out += '.section .rodata,"a"\n'
    for n, nv, acc in (('ln_kernel', 64, 64), ('main_kernel', 512, 256)):
        out += '.p2align 6\n' + descriptor(n, nv, acc)
    return out


if __name__ == '__main__':
    diag = 'diag' in sys.argv[2:]
    for a in sys.argv[2:]:
        if '=' in a:
            k, v = a.split('=')
            OPT[k] = int(v)
    open(sys.argv[1], 'w').write(build(diag))
```

```python
import sys, struct
from collections import deque
from dsl import *

OPT = {}
NAME = 'recurrent_scan__mha_block_cached__glu_gated_swiglu__prompt'
WS_XN = 0
WS_F = 3 << 20
WS_O = 4 << 20
WS_H = 24 << 20
WS_P = 48 << 20
PG = 64 * 16 * 9216
WS_W = 96 << 20
WBLK = 2432 * 288
WS_T = 128 << 20
MF = 'v_mfma_f32_16x16x32_bf16'
LOG2E = 1.4426950408889634


def HS():
    return 144 * 1024 + OPT.get('pad', 1280)


def OS():
    return 128 * 1024 + OPT.get('pad', 1280)


def f2u(x):
    return struct.unpack('<I', struct.pack('<f', x))[0]


def srd_ins(srd, ptr, off, size):
    o = []
    if off is None:
        o.append(Ins('s_mov_b32 %s, %s' % (sr(srd), sr(ptr))))
        o.append(Ins('s_mov_b32 %s, %s' % (sr(srd + 1), sr(ptr + 1))))
    else:
        o.append(Ins('s_add_u32 %s, %s, %s' % (sr(srd), sr(ptr), off)))
        o.append(Ins('s_addc_u32 %s, %s, 0' % (sr(srd + 1), sr(ptr + 1))))
    o.append(Ins('s_mov_b32 %s, %s' % (sr(srd + 2), size if isinstance(size, str) else '0x%x' % size)))
    o.append(Ins('s_mov_b32 %s, 0x00020000' % sr(srd + 3)))
    return o


def make_srd(p, srd, ptr, off, size):
    for x in srd_ins(srd, ptr, off, size):
        p.add(x)


def cost(ins):
    if ins.kind == 'valu':
        return 2 if ins.trans else 1
    if ins.kind in ('dsr', 'dsw'):
        return 1
    if ins.kind in ('dma', 'vld', 'vst'):
        return 2
    return 0


class Gaps:
    def __init__(self, p):
        self.p = p
        self.hi = deque()
        self.lo = deque()
        self.n = 0
        self.over = 0
        self.waste = 0
        self.drop = ()
        self.vm_next = 0
        self.st = deque()
        self.st_max = 2
        self.st_w = 3
        self.vm_gap = 1

    def emit(self, x):
        if self.drop and x.kind in self.drop:
            return
        self.p.add(x)
        if x.on_emit:
            x.on_emit()

    def gap(self, mfma, sc=(), ld=(), va=(), cap=2):
        if mfma is not None:
            self.p.add(mfma if isinstance(mfma, Ins) else Ins(mfma))
        sc, ld, va = list(sc), list(ld), list(va)
        used = sum(cost(x) for x in ld + va)
        for q in (self.st, self.hi, self.lo):
            pulled = False
            pva = False
            while q:
                x = q[0]
                if x.ready > self.n:
                    break
                c = cost(x)
                if q is self.lo and x.kind == 'vst' and len(self.st) < self.st_max:
                    x.ready = self.n + 1
                    self.st.append(q.popleft())
                    continue
                if c == 0:
                    if sc or pulled:
                        break
                    sc.append(q.popleft())
                    if 'm0' in x.wr:
                        break
                    continue
                if used + c > cap:
                    break
                if x.kind != 'valu':
                    if pva:
                        break
                    if c == 2:
                        if self.n < self.vm_next:
                            break
                        w = (self.st_w if 'x4' in x.text else 1) if x.kind == 'vst' else (4 if 'buffer_load_dword ' in x.text and 'sc' not in x.text else 1)
                        self.vm_next = self.n + self.vm_gap * w
                    ld.append(q.popleft())
                else:
                    va.append(q.popleft())
                    pva = True
                used += c
                pulled = True
        for x in sc + ([Ins(mfma)] if isinstance(mfma, str) else []):
            self.check(x)
        self.over += max(0, used - 2)
        if used < 2 and (self.hi or self.lo):
            self.waste += 2 - used
        for x in sc + ld + va:
            self.emit(x)
        self.n += 1

    def check(self, x):
        regs = set(x.rd) if (x.text.startswith('; need') or x.kind == 'mfma') else set()
        tags = [t for t in (x.need or []) if not callable(t[1])]
        for q in (self.st, self.hi, self.lo):
            for y in q:
                if y.kind in ('vld', 'dsr') and set(y.wr) & regs and not getattr(y, 'later', False):
                    raise AssertionError('consumer %s before queued load %s' % (x.text, y.text))
                if y.lds is not None and y.lds in tags:
                    raise AssertionError('need %s before queued %s' % (tags, y.text))

    def flush(self, q=None):
        for qq in ((self.st, self.hi, self.lo) if q is None else (q,)):
            while qq:
                x = qq.popleft()
                self.over += max(1, cost(x))
                self.emit(x)


def rg(t, n=4):
    return (vr if t[0] == 'v' else ar)(t[1], n)


def prefetch_w(p, ptr, srd, soff, rows, stride, lines, rounds, vt, vd):
    t = lambda k: vr(vt + k)
    make_srd(p, srd, ptr, soff, (rows - 1) * stride + lines * 128)
    return t


def gen_ln():
    p = Prog()
    p('s_cmp_ge_u32 s2, 256')
    p('s_cbranch_scc1 L_ln_end')
    p('s_load_dwordx2 s[12:13], s[0:1], 0')
    p('s_load_dwordx2 s[14:15], s[0:1], 88')
    p('s_load_dwordx4 s[32:35], s[0:1], 48')
    p('v_lshrrev_b32 v1, 5, v0')
    p('s_lshl_b32 s3, s2, 3')
    p('v_add_u32 v1, s3, v1')
    p('v_and_b32 v2, 31, v0')
    p('v_lshrrev_b32 v3, 2, v2')
    p('v_and_b32 v4, 3, v2')
    p('v_mul_u32_u24 v5, 1152, v1')
    p('v_lshl_add_u32 v5, v3, 6, v5')
    p('v_lshl_add_u32 v5, v4, 3, v5')
    p('v_cmp_gt_u32 vcc, 8, v2')
    p('s_mov_b64 s[16:17], vcc')
    for r in range(16, 20):
        p('v_mov_b32 v%d, 0' % r)
    p('s_waitcnt lgkmcnt(0)')
    make_srd(p, 4, 12, None, 2048 * 1152)
    for it in range(2):
        p('buffer_load_dwordx2 v[%d:%d], v5, s[4:7], 0 offen offset:%d' % (8 + 4 * it, 9 + 4 * it, it * 512))
        p('buffer_load_dwordx2 v[%d:%d], v5, s[4:7], 0 offen offset:%d' % (10 + 4 * it, 11 + 4 * it, it * 512 + 32))
    p('s_mov_b64 exec, s[16:17]')
    p('buffer_load_dwordx2 v[16:17], v5, s[4:7], 0 offen offset:1024')
    p('buffer_load_dwordx2 v[18:19], v5, s[4:7], 0 offen offset:1056')
    p('s_mov_b64 exec, -1')
    R0 = OPT.get('pf0', 12)
    if R0:
        p('s_lshr_b32 s20, s2, 3')
        p('s_mul_i32 s20, s20, %d' % (R0 * 9216))
        p('s_and_b32 s21, s2, 3')
        p('s_mul_i32 s21, s21, 2304')
        p('s_add_u32 s20, s20, s21')
        make_srd(p, 36, 32, 's20', (R0 - 1) * 9216 + 2304)
        make_srd(p, 40, 34, 's20', (R0 - 1) * 9216 + 2304)
        p('v_mul_u32_u24 v56, 3641, v0')
        p('v_lshrrev_b32 v56, 16, v56')
        p('v_mul_u32_u24 v57, 18, v56')
        p('v_sub_u32 v57, v0, v57')
        p('v_mul_u32_u24 v56, 9216, v56')
        p('v_lshl_add_u32 v56, v57, 7, v56')
        if OPT.get('pfh', 1):
            p('s_bitcmp1_b32 s2, 2')
            p('s_cselect_b32 s36, s40, s36')
            p('s_cselect_b32 s37, s41, s37')
            p('buffer_load_dword v58, v56, s[36:39], 0 offen')
        else:
            p('buffer_load_dword v58, v56, s[36:39], 0 offen')
            p('buffer_load_dword v59, v56, s[40:43], 0 offen')
    if OPT.get('pfc', 1):
        p('s_getpc_b64 s[44:45]')
        p.label('L_pc')
        p('s_add_u32 s44, s44, main_kernel-L_pc')
        p('s_addc_u32 s45, s45, 0')
        p('s_lshr_b32 s46, s2, 3')
        p('s_lshl_b32 s46, s46, 12')
        p('v_and_b32 v60, 31, v0')
        p('v_lshlrev_b32 v60, 7, v60')
        p('v_add_u32 v60, s46, v60')
        p('v_min_u32 v60, L_code_end-main_kernel-4, v60')
        p('global_load_dword v61, v60, s[44:45]')
    make_srd(p, 8, 14, None, 2048 * 1152)
    p('v_lshrrev_b32 v6, 4, v1')
    p('v_mul_u32_u24 v6, 18, v6')
    p('v_add_u32 v6, v6, v3')
    p('v_lshlrev_b32 v6, 10, v6')
    p('v_lshl_add_u32 v6, v4, 8, v6')
    p('v_and_b32 v7, 15, v1')
    p('v_lshl_add_u32 v6, v7, 4, v6')
    p('s_mov_b32 s20, 0x%x' % WS_F)
    make_srd(p, 24, 14, 's20', 4 * 32768)
    p('s_lshl_b32 s21, s2, 7')
    p('v_lshlrev_b32 v50, 15, v0')
    p('v_mov_b32 v52, 0')
    p('buffer_store_dword v52, v50, s[24:27], s21 offen')
    for d in range(12):
        p('v_lshlrev_b32 v%d, 16, v%d' % (20 + 2 * d, 8 + d))
        p('v_and_b32 v%d, 0xffff0000, v%d' % (21 + 2 * d, 8 + d))

    def reduce32(x, t):
        for k in (8, 4, 2, 1):
            p('v_add_f32_dpp %s, %s, %s row_ror:%d row_mask:0xf bank_mask:0xf' % (x, x, x, k))
        p('v_mov_b32 %s, %s' % (t, x))
        p('v_permlane16_swap_b32 %s, %s' % (x, t))
        p('v_add_f32 %s, %s, %s' % (x, x, t))
    p('v_add_f32 v44, v20, v21')
    p('v_add_f32 v45, v22, v23')
    for e in range(4, 24, 2):
        p('v_add_f32 v44, v44, v%d' % (20 + e))
        p('v_add_f32 v45, v45, v%d' % (21 + e))
    p('v_add_f32 v44, v44, v45')
    reduce32('v44', 'v45')
    p('v_mul_f32 v44, 0x%x, v44' % f2u(1.0 / 576))
    p('v_mov_b32 v46, 0')
    p('v_mov_b32 v47, 0')
    for e in range(16):
        p('v_sub_f32 v48, v%d, v44' % (20 + e))
        p('v_fmac_f32 v%d, v48, v48' % (46 + e % 2))
    p('s_mov_b64 exec, s[16:17]')
    for e in range(16, 24):
        p('v_sub_f32 v48, v%d, v44' % (20 + e))
        p('v_fmac_f32 v%d, v48, v48' % (46 + e % 2))
    p('s_mov_b64 exec, -1')
    p('v_add_f32 v46, v46, v47')
    reduce32('v46', 'v45')
    p('v_mul_f32 v46, 0x%x, v46' % f2u(1.0 / 576))

    def rnd(x):
        p('v_cvt_pk_bf16_f32 %s, %s, %s' % (x, x, x))
        p('v_lshlrev_b32 %s, 16, %s' % (x, x))
    rnd('v44')
    rnd('v46')
    p('v_add_f32 v46, 0x%x, v46' % f2u(1e-5))
    rnd('v46')
    p('v_sqrt_f32 v46, v46')
    rnd('v46')
    p('v_rcp_f32 v46, v46')
    if OPT.get('fold', 0):
        p('v_mul_f32 v46, 0x%x, v46' % f2u(-LOG2E))
    for d in range(12):
        a, b = 20 + 2 * d, 21 + 2 * d
        p('v_sub_f32 v%d, v%d, v44' % (a, a))
        p('v_sub_f32 v%d, v%d, v44' % (b, b))
        p('v_cvt_pk_bf16_f32 v%d, v%d, v%d' % (8 + d, a, b))
        p('v_lshlrev_b32 v%d, 16, v%d' % (a, 8 + d))
        p('v_and_b32 v%d, 0xffff0000, v%d' % (b, 8 + d))
        p('v_mul_f32 v%d, v%d, v46' % (a, a))
        p('v_mul_f32 v%d, v%d, v46' % (b, b))
        p('v_cvt_pk_bf16_f32 v%d, v%d, v%d' % (8 + d, a, b))
    p('s_mov_b32 s18, 8192')
    p('s_mov_b32 s19, 16384')
    p('buffer_store_dwordx4 v[8:11], v6, s[8:11], 0 offen')
    p('buffer_store_dwordx4 v[12:15], v6, s[8:11], s18 offen')
    p('s_mov_b64 exec, s[16:17]')
    p('buffer_store_dwordx4 v[16:19], v6, s[8:11], s19 offen')
    p.label('L_ln_end')
    p('s_endpgm')
    p.finalize()
    return p


S_K, S_V, S_XN, S_WS, S_WQ, S_H, S_O, S_FL, S_A1, S_A2, S_A3, S_A4 = 4, 8, 12, 16, 20, 24, 28, 32, 36, 40, 44, 48
S_DW2, S_DWO, S_DH, S_DO, S_DP, S_DR, S_DX, S_DOUT = 12, 16, 20, 24, 36, 40, 44, 48
(S_W, S_MK, S_EP, S_OFFK, S_OFFV, S_CNT, S_HD, S_QT, S_M1, S_OFFW, S_OFFQ, S_C, S_NL, S_FWG, S_FGR, S_FT,
 S_RO, S_SP, S_TILE) = range(52, 71)
S_HS = 71
S_T0 = 79
S_DG = 90
P_X, P_WO, P_W2, P_OUT, P_WS = 92, 94, 96, 98, 100
T = lambda k: sr(S_T0 + k)

V_L16, V_LANE = 2, 3
V_A1 = 4
V_OW = 8
V_AQ = 8
V_OQ = 20
V_OK, V_OV = 22, 26
V_SW = 28
V_T = 34
V_KA, V_VA, V_L, V_E = 4, 8, 16, 28
V_NM, V_S, V_P, V_Q = 40, 56, 120, 184
V_FST, V_ONE, V_FOFF, V_FV = 252, 253, 254, 255
A_O, A_KF, A_VF = 0, 128, 192
A_A, A_B = 128, 160
X0 = 72
DK, DV = 4, 2
L = vr(V_LANE)
t0, t1, t2, t3 = (vr(V_T + i) for i in range(4))


def LS(n):
    return (n * 16384, 16384)


def VP(u):
    return (u + 3) % 4


DBASE = [0, 126976, 36864, 73728]


def DS(c):
    return (DBASE[c % 4], 36864)


def PS(c):
    return ((c % 4) * 36864, 36864)


def Sreg(kb, qb):
    return V_S + (kb * 4 + qb) * 4


def Preg(u, qb, ks):
    return V_P + (u & 1) * 32 + qb * 8 + ks * 4


def ktag(u, inloop):
    return (lambda it: ('K', u + 4 * it)) if inloop else ('K', u)


def vtag(u, inloop):
    return (lambda it: ('V', u + 4 * it)) if inloop else ('V', u)


def k_load(u, kb, s, inloop):
    return Ins('ds_read_b128 %s, %s offset:%d' % (ar(A_KF + kb * 16 + s * 4, 4), vr(V_KA + s), (u % 4) * 16384 + kb * 4096),
               lds=(LS(u % 4), ktag(u, inloop)))


def v_load(u, db, ks, j, inloop):
    return Ins('ds_read_b64_tr_b16 %s, %s offset:%d' % (
        ar(A_VF + db * 8 + ks * 4 + 2 * j, 2), vr(V_VA + db), VP(u) * 16384 + (32 * ks + 16 * j) * 256),
        lds=(LS(4 + VP(u)), vtag(u, inloop)))


def dma_unit(kind, u, inloop):
    out = []
    if kind == 'K':
        out.append(Ins('s_add_u32 m0, %s, %d' % (sr(S_MK), (u % 4) * 16384)))
        for cc in range(4):
            out.append(Ins('buffer_load_dwordx4 %s, %s, %s offen offset:%d lds' % (
                vr(V_OK + cc), sr(S_K, 4), sr(S_OFFK), cc * 1024), lds=(LS(u % 4), ktag(u, inloop))))
        out.append(Ins('s_add_u32 %s, %s, 16384' % (sr(S_OFFK), sr(S_OFFK))))
    else:
        out.append(Ins('s_add_u32 m0, %s, %d' % (sr(S_MK), 65536 + VP(u) * 16384)))
        for cc in range(4):
            out.append(Ins('buffer_load_dwordx4 %s, %s, %s offen offset:%d lds' % (
                vr(V_OV + cc % 2), sr(S_V, 4), sr(S_OFFV), cc * 1024), lds=(LS(4 + VP(u)), vtag(u, inloop))))
        out.append(Ins('s_add_u32 %s, %s, 16384' % (sr(S_OFFV), sr(S_OFFV))))
    return out


def sm_instrs(uu, i):
    n, r = i // 4, i % 4
    kb, qb = n // 4, n % 4
    e = vr(V_E + i % 4)
    ex = Ins('v_exp_f32 %s, %s' % (e, vr(Sreg(kb, qb) + r)))
    ad = Ins('v_add_f32 %s, %s, %s' % (vr(V_L + qb), vr(V_L + qb), e))
    cv = None
    if r % 2 == 1:
        cv = Ins('v_cvt_pk_bf16_f32 %s, %s, %s' % (
            vr(Preg(uu, qb, kb // 2) + (kb % 2) * 2 + r // 2), vr(V_E + (i - 1) % 4), e))
    return ex, ad, cv


def att_slots(p, u, ta, tb, inloop, pv=True, qk=True, sm_cur=True, sm_next=True, vnext=True, dmak=True, dmav=True,
              barrier=True, g=None, cap=2, vearly=False, extra_need=()):
    T0 = -40
    R = range(-128, 256)
    sc = {t: [] for t in R}
    ld = {t: [] for t in R}
    va = {t: [] for t in R}
    for t in range(0, 128, 2):
        if t >= X0:
            uu, i, on = u + 1, (t - X0) // 2, sm_next
        else:
            uu, i, on = u, (t + 128 - X0) // 2, sm_cur
        if on:
            ex, ad, cv = sm_instrs(uu, i)
            va[t].append(ex)
            va[t + 1].append(ad)
            if cv is not None:
                va[t + 1].append(cv)
    pos = [t for t in range(T0, T0 + 128) if t % 8 in (1, 4, 5)]
    n = 0
    m = 0
    for db in range(8):
        for ks in range(2):
            for j in range(2):
                t = pos[n]
                n += 1
                if t >= 0:
                    if pv:
                        ld[t].append(v_load(u - 1, db, ks, j, inloop))
                elif vnext:
                    if vearly:
                        ld[46 + m].append(v_load(u, db, ks, j, inloop))
                        m += 1
                    else:
                        ld[t + 128].append(v_load(u, db, ks, j, inloop))
        t = 8 * db - 1
        sc[t if t >= 0 else t + 128].append(wait_ins(ar(A_VF + db * 8, 8)))
    for kb in range(4):
        for s in range(4):
            t = pos[n]
            n += 1
            if qk:
                ld[t].append(k_load(u + 1, kb, s, inloop))
        if qk:
            sc[64 + 16 * kb - 1].append(wait_ins(ar(A_KF + kb * 16, 16)))
    for on, kind, uu, tt in ((dmav, 'V', u + DV, 2), (dmak, 'K', u + DK, 66)):
        if on:
            lst = dma_unit(kind, uu, inloop)
            sc[tt].append(lst[0])
            ds = OPT.get('dstep', 8)
            for k in range(4):
                ld[tt + ds * k + (4 if k == 0 else 0)].append(lst[1 + k])
            sc[tt + ds * 3 + 1].append(lst[5])
    if barrier:
        nd = [(LS(4 + VP(u)), vtag(u, inloop))] + list(extra_need)
        if qk:
            nd.append((LS((u + 1) % 4), ktag(u + 1, inloop)))
        sc[0].append(need_ins(*nd))
        sc[1].append(Ins('s_barrier'))
    g = g or Gaps(p)
    for t in range(ta, tb):
        mf = None
        if t < 64:
            if pv:
                db, qb, ks = t // 8, (t % 8) // 2, t % 2
                o = ar(A_O + (db * 4 + qb) * 4, 4)
                mf = '%s %s, %s, %s, %s' % (MF, o, ar(A_VF + db * 8 + ks * 4, 4), vr(Preg(u - 1, qb, ks), 4), o)
        elif qk:
            tt = t - 64
            kb, qb, s = tt // 16, (tt % 16) // 4, tt % 4
            d = vr(Sreg(kb, qb), 4)
            c = vr(V_NM + qb * 4, 4) if s == 0 else d
            mf = '%s %s, %s, %s, %s' % (MF, d, ar(A_KF + kb * 16 + s * 4, 4), vr(V_Q + (qb * 4 + s) * 4, 4), c)
        assert len(sc[t]) <= 1 and len(ld[t]) <= 1
        if mf is None and not (sc[t] or ld[t] or va[t]):
            continue
        g.gap(mf, sc[t], ld[t], va[t], cap=cap)


def kv_dma_setup():
    o = []
    a = lambda s: o.append(Ins(s))
    a('v_and_b32 %s, 15, %s' % (t0, L))
    a('v_lshrrev_b32 %s, 4, %s' % (t1, L))
    a('v_lshlrev_b32 %s, 8, %s' % (t2, t1))
    a('v_add_u32 %s, %s, %s' % (t2, sr(S_MK), t2))
    a('v_xor_b32 %s, %s, %s' % (t3, t0, t1))
    a('v_lshl_add_u32 %s, %s, 4, %s' % (vr(V_OK), t3, t2))
    for c in range(1, 4):
        a('v_xor_b32 %s, %d, %s' % (vr(V_OK + c), c * 64, vr(V_OK)))
    a('v_lshlrev_b32 %s, 1, %s' % (t3, t1))
    a('v_xor_b32 %s, %s, %s' % (t3, t0, t3))
    a('v_lshl_add_u32 %s, %s, 4, %s' % (vr(V_OV), t3, t2))
    a('v_xor_b32 %s, 128, %s' % (vr(V_OV + 1), vr(V_OV)))
    return o


def k_read_setup():
    o = []
    a = lambda s: o.append(Ins(s))
    a('v_and_b32 %s, 15, %s' % (t0, L))
    a('v_lshrrev_b32 %s, 4, %s' % (t1, L))
    a('v_xor_b32 %s, %s, %s' % (t2, t0, t1))
    a('v_lshlrev_b32 %s, 4, %s' % (t2, t2))
    a('v_lshl_add_u32 %s, %s, 8, %s' % (vr(V_KA), t0, t2))
    for s in range(1, 4):
        a('v_xor_b32 %s, %d, %s' % (vr(V_KA + s), s * 64, vr(V_KA)))
    return o


def v_read_setup():
    o = []
    a = lambda s: o.append(Ins(s))
    a('v_lshrrev_b32 %s, 2, %s' % (t2, L))
    a('v_and_b32 %s, 7, %s' % (t3, t2))
    a('v_lshlrev_b32 %s, 5, %s' % (t3, t3))
    a('v_lshl_add_u32 %s, %s, 8, %s' % (t3, t2, t3))
    a('v_and_b32 %s, 3, %s' % (t2, L))
    a('v_lshl_add_u32 %s, %s, 3, %s' % (t3, t2, t3))
    a('v_add_u32 %s, 0x10000, %s' % (vr(V_VA), t3))
    for d in range(1, 8):
        a('v_xor_b32 %s, %d, %s' % (vr(V_VA + d), d * 32, vr(V_VA)))
    return o


def xlane4(op, xs, ts):
    o = []
    for perm in ('v_permlane32_swap_b32', 'v_permlane16_swap_b32'):
        for x, t in zip(xs, ts):
            o.append(Ins('v_mov_b32 %s, %s' % (t, x)))
        for x, t in zip(xs, ts):
            o.append(Ins('%s %s, %s' % (perm, x, t)))
        for x, t in zip(xs, ts):
            o.append(Ins('%s %s, %s, %s' % (op, x, x, t)))
    return o


def div18(o, n, row, sl):
    o.append(Ins('v_mul_u32_u24 %s, 3641, %s' % (row, n)))
    o.append(Ins('v_lshrrev_b32 %s, 16, %s' % (row, row)))
    o.append(Ins('v_mul_u32_u24 %s, 18, %s' % (sl, row)))
    o.append(Ins('v_sub_u32 %s, %s, %s' % (sl, n, sl)))


def ffn_tiles():
    m, nv, na = {}, 0, 0
    for b in range(9):
        for mat in range(2):
            for qb in range(4):
                if mat == 1 and na < 18:
                    m[(2 * b + mat, qb)] = ('a', na * 4)
                    na += 1
                else:
                    m[(2 * b + mat, qb)] = ('v', 40 + nv * 4)
                    nv += 1
    assert nv == 54 and na == 18
    return m


FT = ffn_tiles()
WQ_SLOT = {8: 9, 7: 3, 6: 4, 5: 5, 4: 6, 3: 7, 2: 8, 1: 9, 0: 3}


def p1_dma(c):
    out = [Ins('s_add_u32 %s, %s, %d' % (T(8), sr(S_OFFW), c * 64 * 9216))]
    for i in range(9):
        if i % 4 == 0:
            out.append(Ins('s_add_u32 m0, %s, %d' % (sr(S_M1), PS(c)[0] + (i // 4) * 4096)))
        out.append(Ins('buffer_load_dwordx4 %s, %s, %s offen offset:%d lds' % (
            vr(V_OW + i), sr(S_WS, 4), T(8), (i % 4) * 1024), lds=(PS(c), ('W', c))))
    return out


def xn_loads(c, buf):
    base = A_B + buf * 32
    out = []
    for qb in range(4):
        out.append(Ins('s_mov_b32 %s, %d' % (T(qb), qb * 18 * 1024 + c * 2048)))
        for ks in range(2):
            out.append(Ins('buffer_load_dwordx4 %s, %s, %s, %s offen offset:%d' % (
                ar(base + (qb * 2 + ks) * 4, 4), vr(V_L16), sr(S_XN, 4), T(qb), ks * 1024)))
    return out


def wq_dma(c):
    sl = WQ_SLOT[c]
    out = []
    for cc in range(4):
        out.append(Ins('s_add_u32 %s, %s, %d' % (T(4 + cc % 2), sr(S_OFFQ), (c * 64 + cc * 4) * 8192)))
        out.append(Ins('s_add_u32 m0, %s, %d' % (sr(S_MK), sl * 16384 + cc * 1024)))
        out.append(Ins('buffer_load_dwordx4 %s, %s, %s offen lds' % (
            vr(V_OQ + cc % 2), sr(S_WQ, 4), T(4 + cc % 2)), lds=(LS(sl), ('Q', c))))
    return out


def p1_reads(c, blk, dst):
    mat, b = blk % 2, blk // 2
    return [Ins('ds_read_b64_tr_b16 %s, %s offset:%d' % (
        ar(dst + ks * 4 + 2 * j, 2), vr(V_A1 + c % 4),
        mat * 18432 + (32 * ks + 16 * j) * 288 + 32 * b), lds=(PS(c), ('W', c)))
        for ks in range(2) for j in range(2)]


def p2_reads(c, bq, dst):
    s, jj = bq // 2, bq % 2
    sl = WQ_SLOT[c]
    return [Ins('ds_read_b64_tr_b16 %s, %s offset:%d' % (
        ar(dst + ks * 4 + 2 * j, 2), vr(V_AQ + (sl // 4) * 4 + s),
        (sl % 4) * 16384 + (32 * ks + 16 * j) * 256 + 8 * jj), lds=(LS(sl), ('Q', c)))
        for ks in range(2) for j in range(2)]


def swiglu_unit(b, qb, ready, pool):
    gt, ut = FT[(2 * b, qb)], FT[(2 * b + 1, qb)]
    pk = FT[(2 * (b - b % 2), qb)][1] + (b % 2) * 2
    o = []
    ta, tb = vr(V_SW), vr(V_SW + 1)
    for r in (0, 2):
        pa, pb = vr(V_SW + 2 + r), vr(V_SW + 3 + r)
        g0, g1 = vr(gt[1] + r), vr(gt[1] + r + 1)
        if ut[0] == 'a':
            o.append(Ins('v_accvgpr_read_b32 %s, %s' % (pa, ar(ut[1] + r))))
            o.append(Ins('v_accvgpr_read_b32 %s, %s' % (pb, ar(ut[1] + r + 1))))
            u0, u1 = pa, pb
        else:
            u0, u1 = vr(ut[1] + r), vr(ut[1] + r + 1)
        if OPT.get('fold', 0):
            o.append(Ins('v_exp_f32 %s, %s' % (ta, g0)))
            o.append(Ins('v_exp_f32 %s, %s' % (tb, g1)))
        else:
            o.append(Ins('v_mul_f32 %s, %s, %s' % (ta, sr(S_NL), g0)))
            o.append(Ins('v_mul_f32 %s, %s, %s' % (tb, sr(S_NL), g1)))
            o.append(Ins('v_exp_f32 %s, %s' % (ta, ta)))
            o.append(Ins('v_exp_f32 %s, %s' % (tb, tb)))
        o.append(Ins('v_mul_f32 %s, %s, %s' % (pa, g0, u0)))
        o.append(Ins('v_mul_f32 %s, %s, %s' % (pb, g1, u1)))
        o.append(Ins('v_add_f32 %s, 1.0, %s' % (ta, ta)))
        o.append(Ins('v_add_f32 %s, 1.0, %s' % (tb, tb)))
        o.append(Ins('v_rcp_f32 %s, %s' % (ta, ta)))
        o.append(Ins('v_rcp_f32 %s, %s' % (tb, tb)))
        o.append(Ins('v_mul_f32 %s, %s, %s' % (pa, pa, ta)))
        o.append(Ins('v_mul_f32 %s, %s, %s' % (pb, pb, tb)))
    for r in (0, 2):
        o.append(Ins('v_cvt_pk_bf16_f32 %s, %s, %s' % (vr(pk + r // 2), vr(V_SW + 2 + r), vr(V_SW + 3 + r))))
    rel = [ut] + ([gt] if b % 2 == 1 else [])
    if b % 2 == 1:
        o.append(Ins('buffer_store_dwordx4 %s, %s, %s, %s offen offset:%d sc1' % (
            vr(pk - 2, 4), vr(V_L16), sr(S_H, 4), sr(S_HS + qb), (b // 2) * 1024), lds=('H', 0)))
        if OPT.get('plain_h'):
            o[-1].text = o[-1].text.replace(' sc1', '')
        rel.append(FT[(2 * (b - 1), qb)])
    elif b == 8:
        o.append(Ins('buffer_store_dwordx2 %s, %s, %s, %s offen sc1' % (
            vr(pk, 2), vr(V_L16), sr(S_H, 4), sr(S_HS + 4 + qb)), lds=('H', 0)))
        if OPT.get('plain_h'):
            o[-1].text = o[-1].text.replace(' sc1', '')
    o[0].ready = ready
    o[-1].on_emit = lambda: pool.extend(t for t in rel if not (t[0] == 'v' and t[1] >= V_Q))
    return o


def qcvt_unit(qb, s, QT, ready):
    o = []
    for h in range(2):
        tl = QT[(2 * s + h, qb)]
        tm = [vr(V_SW + e) for e in range(4)]
        for e in range(4):
            if tl[0] == 'a':
                o.append(Ins('v_accvgpr_read_b32 %s, %s' % (tm[e], ar(tl[1] + e))))
        for e in range(4):
            o.append(Ins('v_mul_f32 %s, %s, %s' % (tm[e], sr(S_C), tm[e] if tl[0] == 'a' else vr(tl[1] + e))))
        for e in range(2):
            o.append(Ins('v_cvt_pk_bf16_f32 %s, %s, %s' % (vr(V_Q + (qb * 4 + s) * 4 + 2 * h + e), tm[2 * e], tm[2 * e + 1])))
    o[0].ready = ready
    return o


class GemmSeq:
    def __init__(self, p, g):
        self.p, self.g = p, g
        self.groups = []

    def add(self, reads, nfr, mf, hook=None, bar=None, bwait=None, cap=2):
        self.groups.append(dict(reads=reads, n=nfr, mf=mf, hook=hook, bar=bar, bwait=bwait, cap=cap))

    def run(self):
        G, g, p = self.groups, self.g, self.p
        pos = 0
        for x in G:
            if x['n'] == 16 and pos % 16:
                pos += 8
            x['dst'] = A_A + pos % 32
            pos += x['n']
        for k, x in enumerate(G):
            regs = lambda y: set(range(y['dst'], y['dst'] + y['n']))
            ld = 1
            if k >= 2 and not (regs(x) & regs(G[k - 1])) and not (regs(x) & regs(G[k - 2])) and G[k - 1]['n'] == 8:
                ld = 2
            assert k == 0 or not (regs(x) & regs(G[k - 1]))
            x['at'] = k - ld
        for x in G:
            if x['at'] < 0:
                if x['bar']:
                    p.need(*x['bar'])
                    p('s_barrier')
                for i in x['reads'](x['dst']):
                    p.add(i)
        for k, x in enumerate(G):
            if x['hook']:
                x['hook']()
            todo = [y for y in G if y['at'] == k]
            rd, bar = [], []
            for y in todo:
                rd += y['reads'](y['dst'])
                if y['bar'] is not None:
                    bar += y['bar']
            hasbar = any(y['bar'] is not None for y in todo)
            mfs = x['mf'](x['dst'])
            n = len(mfs)
            st = 3 if hasbar else 0
            step = 2 if (st + 2 * ((len(rd) + 1) // 2) <= n - 1) else 1
            for t in range(n):
                sc, ld = [], []
                if hasbar and t == 1:
                    sc = [need_ins(('lgkm', 'all'), *bar)]
                if hasbar and t == 2:
                    sc = [Ins('s_barrier')]
                if t >= st and (t - st) % step == 0 and rd:
                    ld = rd[:2]
                    rd = rd[2:]
                if t == n - 1 and k + 1 < len(G):
                    y = G[k + 1]
                    bw = y['bwait']() if callable(y['bwait']) else (y['bwait'] or [])
                    w = [ar(y['dst'], y['n'])] + bw
                    sc = [wait_ins(*w)]
                g.gap(mfs[t](), sc, ld, cap=x['cap'])
                if hasbar and t == 2:
                    for y in todo:
                        if y.get('post'):
                            y['post']()
            assert not rd


V_DOWS = [22, 23, 24, 25, 26, 27, 248, 249, 250]
V_DRA = 40
V_DA = 56
V_AC2, V_AC1 = 104, 176
V_PK = 4
A_DB = 128
SPIN_BLOCKS = []


def poll_issue(soff, V_FV=V_FV, V_FOFF=V_FOFF, S_FL=S_FL):
    return Ins('buffer_load_dword %s, %s, %s, %s offen sc1' % (vr(V_FV), vr(V_FOFF), sr(S_FL, 4), sr(soff)))


def poll_check(p, name, soff, cmp='v_cmp_ne_u32 vcc, %s' % sr(S_EP), V_FV=V_FV, V_FOFF=V_FOFF, S_FL=S_FL, sleep=4):
    SPIN_BLOCKS.append("""L_spin_%(n)s:
 s_mov_b32 s3, 0
L_spin_%(n)s_l:
 s_sleep %(sl)d
 buffer_load_dword %(v)s, %(o)s, %(srd)s, %(so)s offen sc1
 s_add_u32 s3, s3, 1
 s_cmp_gt_u32 s3, 0x40000
 s_cbranch_scc1 L_ok_%(n)s
 s_waitcnt vmcnt(0)
 %(cmp)s, %(v)s
 s_cbranch_vccnz L_spin_%(n)s_l
 s_branch L_ok_%(n)s""" % dict(n=name, v=vr(V_FV), o=vr(V_FOFF), srd=sr(S_FL, 4), so=sr(soff), cmp=cmp, sl=sleep))
    p('%s, %s' % (cmp, vr(V_FV)))
    p('s_cbranch_vccnz L_spin_%s' % name)
    p.label('L_ok_%s' % name)


def flag_store(soff, tag):
    return Ins('buffer_store_dword %s, %s, %s, %s offen sc1' % (
        vr(V_ONE), vr(V_FST), sr(S_FL, 4), sr(soff)), lds=('flag', (tag, 0)))


_ct = [0]


def code_touch(label, vo, vd, sp):
    _ct[0] += 1
    n = 'L_ct%d' % _ct[0]
    blk = Ins('; raw')
    blk.rawtext = (' s_getpc_b64 %(p)s\n%(n)s:\n s_add_u32 %(lo)s, %(lo)s, %(l)s-%(n)s\n s_addc_u32 %(hi)s, %(hi)s, 0' %
                   dict(p=sr(sp, 2), n=n, lo=sr(sp), hi=sr(sp + 1), l=label))
    return [blk,
            Ins('s_lshr_b32 s3, s2, 3'),
            Ins('s_lshl_b32 s3, s3, 11'),
            Ins('v_and_b32 %s, 15, %s' % (vr(vo), L)),
            Ins('v_lshlrev_b32 %s, 7, %s' % (vr(vo), vr(vo))),
            Ins('v_add_u32 %s, s3, %s' % (vr(vo), vr(vo))),
            Ins('v_min_u32 %s, L_code_end-%s-4, %s' % (vr(vo), label, vr(vo))),
            Ins('global_load_dword %s, %s, %s' % (vr(vd), vr(vo), sr(sp, 2)))]


def sadd(r, k):
    return Ins('s_add_u32 %s, %s, %d' % (sr(r), sr(r), k))


SK0, SK1, NPOS = 12, 16, 19
S_ADJW, S_ADJB = S_OFFK, S_OFFV


def dtag(c, at):
    if at < SK0 <= c:
        return lambda it: ('D', c + 4 if MODE[0] else c)
    return ('D', c)


def d_dma(c, at=0):
    out = []
    for i in range(9):
        if i % 4 == 0:
            if at >= SK1:
                out.append(Ins('s_add_u32 %s, %s, %d' % (T(8), sr(S_ADJW), c * 36864 + (i // 4) * 4096)))
            else:
                out.append(Ins('s_mov_b32 %s, %d' % (T(8), c * 36864 + (i // 4) * 4096)))
            out.append(Ins('s_add_u32 m0, %s, %d' % (sr(S_M1), DS(c)[0] + (i // 4) * 4096)))
        out.append(Ins('buffer_load_dwordx4 %s, %s, %s offen offset:%d sc1 lds' % (
            vr(V_L16), sr(S_DW2, 4), T(8), (i % 4) * 1024), lds=(DS(c), dtag(c, at))))
    return out


def d_bloads(c, at=0):
    srd, loc, rbs = (S_DH, c, HS()) if c < 9 else (S_DO, c - 9, OS())
    out = []
    for rb in range(2):
        if at >= SK1:
            out.append(Ins('s_add_u32 %s, %s, %d' % (T(9 + rb), sr(S_ADJB), loc * 4096 + rb * rbs)))
        else:
            out.append(Ins('s_mov_b32 %s, %d' % (T(9 + rb), loc * 4096 + rb * rbs)))
        for ks in range(4):
            out.append(Ins('buffer_load_dwordx4 %s, %s, %s, %s offen offset:%d sc1' % (
                ar(A_DB + (c % 4) * 32 + (rb * 4 + ks) * 4, 4), vr(V_L16), sr(srd, 4), T(9 + rb), ks * 1024)))
    return out


def d_reads(c, nb, at=None):
    return [Ins('ds_read_b64_tr_b16 %s, %s offset:%d' % (
        vr(V_DA + (nb % 3) * 16 + ks * 4 + 2 * j, 2), vr(V_DRA + c % 4), (32 * ks + 16 * j) * 288 + 32 * nb),
        lds=(DS(c), dtag(c, c if at is None else at))) for ks in range(4) for j in range(2)]


def d_pstore(gemm, nb):
    acc = (V_AC2 if gemm else V_AC1) + nb * 8
    pk = V_PK + (nb % 3) * 4
    out = []
    if nb % 4 == 0:
        out.append(Ins('s_mov_b32 %s, %d' % (T(nb // 4), gemm * PG + (nb // 4) * 4096)))
    for e in range(4):
        out.append(Ins('v_cvt_pk_bf16_f32 %s, %s, %s' % (vr(pk + e), vr(acc + 2 * e), vr(acc + 2 * e + 1))))
    out.append(Ins('buffer_store_dwordx4 %s, %s, %s, %s offen offset:%d sc1' % (
        vr(pk, 4), vr(V_L16), sr(S_DP, 4), T(nb // 4), (nb % 4) * 1024), lds=('PT%d' % gemm, 0)))
    return out


def d_ploads(gemm, base):
    out = []
    for k in range(3):
        for sp in range(4):
            t = T(4 + (k * 4 + sp) % 2)
            if k < 2:
                out.append(Ins('s_mov_b32 %s, %d' % (t, gemm * PG + sp * 4 * 9216 + k * 4096)))
            else:
                out.append(Ins('s_add_u32 %s, %s, %d' % (t, sr(S_OFFQ), gemm * PG + sp * 4 * 9216 + k * 4096)))
            out.append(Ins('buffer_load_dwordx4 %s, %s, %s, %s offen sc1' % (
                vr(base + (k * 4 + sp) * 4, 4), vr(V_L16), sr(S_DR, 4), t)))
    return out


def d_sum(base, k, dst, tmp):
    out = []
    for e in range(4):
        for sp in range(4):
            src = vr(base + (k * 4 + sp) * 4 + e)
            lo = vr(dst + 2 * e) if sp == 0 else vr(tmp)
            hi = vr(dst + 2 * e + 1) if sp == 0 else vr(tmp + 1)
            out.append(Ins('v_lshlrev_b32 %s, 16, %s' % (lo, src)))
            out.append(Ins('v_and_b32 %s, 0xffff0000, %s' % (hi, src)))
            if sp:
                out.append(Ins('v_add_f32 %s, %s, %s' % (vr(dst + 2 * e), vr(dst + 2 * e), lo)))
                out.append(Ins('v_add_f32 %s, %s, %s' % (vr(dst + 2 * e + 1), vr(dst + 2 * e + 1), hi)))
    return out


def d_scalar_setup1():
    o = []
    a = lambda s: o.append(Ins(s))
    a('s_mul_i32 %s, %s, 288' % (T(1), sr(S_W)))
    a('s_lshl_b32 %s, %s, 6' % (T(0), sr(S_SP)))
    a('s_add_u32 %s, %s, %s' % (T(0), T(0), sr(S_TILE)))
    a('s_mul_i32 %s, %s, %d' % (T(2), T(0), 18 * 1152))
    a('s_add_u32 %s, %s, %s' % (T(2), T(2), T(1)))
    o += srd_ins(S_A1, P_W2, T(2), 17 * 1152 + 288)
    a('s_and_b32 %s, %s, 1' % (T(7), sr(S_SP)))
    a('s_lshl_b32 %s, %s, 3' % (T(6), sr(S_SP)))
    a('s_lshl_b32 %s, %s, 1' % (T(3), T(7)))
    a('s_add_u32 %s, %s, %s' % (T(6), T(6), T(3)))
    a('s_lshl_b32 %s, %s, 3' % (T(7), T(7)))
    a('s_sub_u32 %s, 20, %s' % (T(7), T(7)))
    a('s_mul_i32 %s, %s, %s' % (T(9), T(7), sr(S_TILE)))
    a('s_lshl_b32 %s, %s, 7' % (T(2), T(6)))
    a('s_add_u32 %s, %s, %s' % (T(2), T(2), T(9)))
    a('s_mul_i32 %s, %s, 1152' % (T(2), T(2)))
    a('s_add_u32 %s, %s, %s' % (T(2), T(2), T(1)))
    a('s_mul_i32 %s, %s, 1152' % (T(3), T(7)))
    a('s_sub_u32 %s, %s, 864' % (T(3), T(3)))
    o += srd_ins(S_A2, P_WO, T(2), T(3))
    a('s_lshl_b32 %s, %s, 2' % (T(0), sr(S_SP)))
    a('s_add_u32 %s, %s, %s' % (T(1), T(0), sr(S_W)))
    a('s_mul_i32 %s, %s, %d' % (T(1), T(1), WBLK))
    a('s_add_u32 %s, %s, 0x%x' % (T(1), T(1), WS_W))
    a('s_mul_i32 %s, %s, %d' % (T(2), sr(S_TILE), 18 * 288))
    a('s_add_u32 %s, %s, %s' % (T(2), T(2), T(1)))
    o += srd_ins(S_A3, P_WS, T(2), 18 * 288)
    a('s_mul_i32 %s, %s, 288' % (T(2), T(9)))
    a('s_add_u32 %s, %s, %s' % (T(2), T(2), T(1)))
    a('s_add_u32 %s, %s, %d' % (T(2), T(2), 1152 * 288))
    a('s_mul_i32 %s, %s, 288' % (T(3), T(7)))
    o += srd_ins(S_A4, P_WS, T(2), T(3))
    a('s_mov_b32 %s, 0' % sr(S_RO))
    a('s_and_b32 %s, %s, 3' % (T(1), sr(S_TILE)))
    a('s_add_u32 %s, %s, %s' % (T(1), T(0), T(1)))
    a('s_mul_i32 %s, %s, %d' % (T(1), T(1), WBLK))
    a('s_add_u32 %s, %s, %s' % (T(1), T(1), sr(S_M1)))
    a('s_add_u32 %s, %s, 0x%x' % (T(1), T(1), WS_W))
    o += srd_ins(S_DW2, P_WS, T(1), 18 * 36864 + 9216)
    a('s_lshr_b32 %s, %s, 2' % (T(4), sr(S_TILE)))
    a('s_lshl_b32 %s, %s, 2' % (T(5), T(4)))
    a('s_add_u32 %s, %s, %s' % (T(5), T(5), sr(S_W)))
    a('s_mul_i32 %s, %s, %d' % (T(2), T(5), 2 * HS()))
    a('s_mul_i32 %s, %s, %d' % (T(3), sr(S_SP), 36 * 1024))
    a('s_add_u32 %s, %s, %s' % (T(2), T(2), T(3)))
    a('s_add_u32 %s, %s, 0x%x' % (T(2), T(2), WS_H))
    o += srd_ins(S_DH, P_WS, T(2), HS() + 36 * 1024)
    a('s_mul_i32 %s, %s, %d' % (T(2), T(5), 2 * OS()))
    a('s_lshl_b32 %s, %s, 12' % (T(3), T(6)))
    a('s_add_u32 %s, %s, %s' % (T(2), T(2), T(3)))
    a('s_add_u32 %s, %s, 0x%x' % (T(2), T(2), WS_O))
    o += srd_ins(S_DO, P_WS, T(2), OS() + 40 * 1024)
    return o


def d_scalar_setup2():
    o = []
    a = lambda s: o.append(Ins(s))
    a('s_lshl_b32 %s, %s, 2' % (T(2), sr(S_TILE)))
    a('s_add_u32 %s, %s, %s' % (T(2), T(2), sr(S_SP)))
    a('s_lshl_b32 %s, %s, 7' % (sr(S_FT), T(2)))
    a('s_add_u32 %s, %s, 0x10000' % (sr(S_FT), sr(S_FT)))
    a('s_lshl_b32 %s, %s, 2' % (T(2), T(2)))
    a('s_add_u32 %s, %s, %s' % (T(2), T(2), sr(S_W)))
    a('s_mul_i32 %s, %s, 9216' % (T(2), T(2)))
    a('s_add_u32 %s, %s, 0x%x' % (T(2), T(2), WS_P))
    o += srd_ins(S_DP, P_WS, T(2), PG + 9216)
    a('s_lshl_b32 %s, %s, 4' % (T(2), sr(S_TILE)))
    a('s_add_u32 %s, %s, %s' % (T(2), T(2), sr(S_SP)))
    a('s_mul_i32 %s, %s, 9216' % (T(2), T(2)))
    a('s_lshl_b32 %s, %s, 10' % (T(3), sr(S_W)))
    a('s_add_u32 %s, %s, %s' % (T(2), T(2), T(3)))
    a('s_add_u32 %s, %s, 0x%x' % (T(2), T(2), WS_P))
    o += srd_ins(S_DR, P_WS, T(2), PG + 14 * 9216)
    a('s_and_b32 %s, %s, 3' % (T(1), sr(S_TILE)))
    a('s_mul_i32 %s, %s, 288' % (T(1), T(1)))
    a('s_andn2_b32 %s, %s, 3' % (T(2), sr(S_TILE)))
    a('s_add_u32 %s, %s, %s' % (T(2), T(2), sr(S_SP)))
    a('s_mul_i32 %s, %s, %d' % (T(2), T(2), 32 * 1152))
    a('s_add_u32 %s, %s, %s' % (T(2), T(2), T(1)))
    o += srd_ins(S_DX, P_X, T(2), 31 * 1152 + 288)
    o += srd_ins(S_DOUT, P_OUT, T(2), 31 * 1152 + 288)
    a('s_lshl_b32 %s, %s, 28' % (sr(S_OFFQ), sr(S_W)))
    a('s_mov_b32 %s, 0x%x' % (sr(S_C), f2u(LOG2E * LOG2E)))
    a('s_mul_i32 %s, %s, %d' % (sr(S_HS), sr(S_W), 4 * OS()))
    for qb in range(1, 4):
        a('s_add_u32 %s, %s, 0x%x' % (sr(S_HS + qb), sr(S_HS), qb * OS()))
    a('s_lshl_b32 %s, %s, 5' % (sr(S_HS + 4), sr(S_W)))
    a('s_add_u32 %s, %s, %d' % (sr(S_HS + 5), sr(S_HS + 4), 16 * 1152))
    a('s_lshl_b32 %s, %s, 20' % (sr(S_HS + 6), sr(S_W)))
    a('s_add_u32 %s, %s, %d' % (sr(S_HS + 7), sr(S_HS + 6), 16 * 1152))
    return o


V_RN, V_RV = 20, 21
V_RQ = (248, 36)


def repack_pat():
    return [Ins('v_mul_u32_u24 %s, 3641, %s' % (vr(V_RV), vr(V_RN))),
            Ins('v_lshrrev_b32 %s, 16, %s' % (vr(V_RV), vr(V_RV))),
            Ins('v_mul_u32_u24 %s, 864, %s' % (vr(V_RV), vr(V_RV))),
            Ins('v_lshl_add_u32 %s, %s, 4, %s' % (vr(V_RV), vr(V_RN), vr(V_RV))),
            Ins('v_add_u32 %s, 64, %s' % (vr(V_RN), vr(V_RN)))]


def o_epilogue_unit(qb, t, n, ready):
    base = 184 + (n % 4) * 12
    o = []
    for r in range(8):
        o.append(Ins('v_accvgpr_read_b32 %s, %s' % (vr(base + r), ar(A_O + ((2 * t + r // 4) * 4 + qb) * 4 + r % 4))))
    for r in range(8):
        o.append(Ins('v_mul_f32 %s, %s, %s' % (vr(base + r), vr(base + r), vr(V_L + qb))))
    for r in range(4):
        o.append(Ins('v_cvt_pk_bf16_f32 %s, %s, %s' % (vr(base + 8 + r), vr(base + 2 * r), vr(base + 2 * r + 1))))
    o.append(Ins('buffer_store_dwordx4 %s, %s, %s, %s offen offset:%d%s' % (
        vr(base + 8, 4), vr(V_L16), sr(S_O, 4), sr(S_HS + qb), t * 1024, '' if OPT.get('plain_o', 0) else ' sc1'), lds=('O', 0)))
    o[0].ready = ready
    return o


def ln_parts(B=64):
    v = lambda k, n=1: vr(B + k, n)
    A, Ld, C, St = [], [], [], []
    a = lambda t: A.append(Ins(t))
    a('s_lshl_b32 s3, %s, 5' % sr(S_QT))
    a('s_add_u32 s3, s3, %s' % sr(S_HD))
    a('s_lshl_b32 s3, s3, 3')
    a('v_lshrrev_b32 %s, 5, v0' % v(1))
    a('v_add_u32 %s, s3, %s' % (v(1), v(1)))
    a('v_and_b32 %s, 31, v0' % v(2))
    a('v_lshrrev_b32 %s, 2, %s' % (v(3), v(2)))
    a('v_and_b32 %s, 3, %s' % (v(4), v(2)))
    a('v_mul_u32_u24 %s, 1152, %s' % (v(5), v(1)))
    a('v_lshl_add_u32 %s, %s, 6, %s' % (v(5), v(3), v(5)))
    a('v_lshl_add_u32 %s, %s, 3, %s' % (v(5), v(4), v(5)))
    for r in range(16, 20):
        a('v_mov_b32 %s, 0' % v(r))
    msk = lambda: [Ins('v_cmp_gt_u32 vcc, 8, %s' % v(2)), Ins('s_mov_b64 exec, vcc')]
    Ld += srd_ins(S_O, P_X, None, 2048 * 1152)
    for it in range(3):
        if it == 2:
            Ld += msk()
        Ld.append(Ins('buffer_load_dwordx2 %s, %s, %s, 0 offen offset:%d' % (v(8 + 4 * it, 2), v(5), sr(S_O, 4), it * 512)))
        Ld.append(Ins('buffer_load_dwordx2 %s, %s, %s, 0 offen offset:%d' % (v(10 + 4 * it, 2), v(5), sr(S_O, 4), it * 512 + 32)))
    Ld.append(Ins('s_mov_b64 exec, -1'))
    c = lambda t: C.append(Ins(t))
    c('v_lshrrev_b32 %s, 4, %s' % (v(6), v(1)))
    c('v_mul_u32_u24 %s, 18, %s' % (v(6), v(6)))
    c('v_add_u32 %s, %s, %s' % (v(6), v(6), v(3)))
    c('v_lshlrev_b32 %s, 10, %s' % (v(6), v(6)))
    c('v_lshl_add_u32 %s, %s, 8, %s' % (v(6), v(4), v(6)))
    c('v_and_b32 %s, 15, %s' % (v(7), v(1)))
    c('v_lshl_add_u32 %s, %s, 4, %s' % (v(6), v(7), v(6)))
    for d in range(12):
        c('v_lshlrev_b32 %s, 16, %s' % (v(20 + 2 * d), v(8 + d)))
        c('v_and_b32 %s, 0xffff0000, %s' % (v(21 + 2 * d), v(8 + d)))

    def reduce32(x, t):
        for k in (8, 4, 2, 1):
            c('v_add_f32_dpp %s, %s, %s row_ror:%d row_mask:0xf bank_mask:0xf' % (x, x, x, k))
        c('v_mov_b32 %s, %s' % (t, x))
        c('v_permlane16_swap_b32 %s, %s' % (x, t))
        c('v_add_f32 %s, %s, %s' % (x, x, t))
    c('v_add_f32 %s, %s, %s' % (v(44), v(20), v(21)))
    c('v_add_f32 %s, %s, %s' % (v(45), v(22), v(23)))
    for e in range(4, 24, 2):
        c('v_add_f32 %s, %s, %s' % (v(44), v(44), v(20 + e)))
        c('v_add_f32 %s, %s, %s' % (v(45), v(45), v(21 + e)))
    c('v_add_f32 %s, %s, %s' % (v(44), v(44), v(45)))
    reduce32(v(44), v(45))
    c('v_mul_f32 %s, 0x%x, %s' % (v(44), f2u(1.0 / 576), v(44)))
    c('v_mov_b32 %s, 0' % v(46))
    c('v_mov_b32 %s, 0' % v(47))
    for e in range(24):
        if e == 16:
            C += msk()
        c('v_sub_f32 %s, %s, %s' % (v(48), v(20 + e), v(44)))
        c('v_fmac_f32 %s, %s, %s' % (v(46 + e % 2), v(48), v(48)))
    c('s_mov_b64 exec, -1')
    c('v_add_f32 %s, %s, %s' % (v(46), v(46), v(47)))
    reduce32(v(46), v(45))
    c('v_mul_f32 %s, 0x%x, %s' % (v(46), f2u(1.0 / 576), v(46)))

    def rnd(x):
        c('v_cvt_pk_bf16_f32 %s, %s, %s' % (x, x, x))
        c('v_lshlrev_b32 %s, 16, %s' % (x, x))
    rnd(v(44))
    rnd(v(46))
    c('v_add_f32 %s, 0x%x, %s' % (v(46), f2u(1e-5), v(46)))
    rnd(v(46))
    c('v_sqrt_f32 %s, %s' % (v(46), v(46)))
    rnd(v(46))
    c('v_rcp_f32 %s, %s' % (v(46), v(46)))
    if OPT.get('fold', 0):
        c('v_mul_f32 %s, 0x%x, %s' % (v(46), f2u(-LOG2E), v(46)))
    C += srd_ins(S_XN, P_WS, None, 2048 * 1152)
    c('s_mov_b32 %s, 8192' % T(0))
    c('s_mov_b32 %s, 16384' % T(1))
    for d in range(12):
        x, y = v(20 + 2 * d), v(21 + 2 * d)
        c('v_sub_f32 %s, %s, %s' % (x, x, v(44)))
        c('v_sub_f32 %s, %s, %s' % (y, y, v(44)))
        c('v_cvt_pk_bf16_f32 %s, %s, %s' % (v(8 + d), x, y))
        c('v_lshlrev_b32 %s, 16, %s' % (x, v(8 + d)))
        c('v_and_b32 %s, 0xffff0000, %s' % (y, v(8 + d)))
        c('v_mul_f32 %s, %s, %s' % (x, x, v(46)))
        c('v_mul_f32 %s, %s, %s' % (y, y, v(46)))
        c('v_cvt_pk_bf16_f32 %s, %s, %s' % (v(8 + d), x, y))
        if d % 4 == 3:
            if d == 11:
                C += msk()
            C.append(Ins('buffer_store_dwordx4 %s, %s, %s, %s offen sc1' % (
                v(5 + d, 4), v(6), sr(S_XN, 4), ('0', T(0), T(1))[d // 4]), lds=('XN', 0)))
    c('s_mov_b64 exec, -1')
    return A, Ld, C


def gen_start_roles(diag):
    B = 64
    v = lambda k, n=1: vr(B + k, n)
    p = Prog()
    p('s_cmp_ge_u32 %s, 2' % sr(S_W))
    p('s_cbranch_scc1 L_role_b')
    p('s_lshl_b32 s3, %s, 5' % sr(S_QT))
    p('s_add_u32 s3, s3, %s' % sr(S_HD))
    p('s_lshl_b32 %s, s3, 3' % T(0))
    p('v_lshrrev_b32 %s, 4, v0' % v(1))
    p('v_add_u32 %s, %s, %s' % (v(1), T(0), v(1)))
    p('v_and_b32 %s, 15, v0' % v(2))
    p('v_lshrrev_b32 %s, 2, %s' % (v(3), v(2)))
    p('v_and_b32 %s, 3, %s' % (v(4), v(2)))
    p('v_mul_u32_u24 %s, 1152, %s' % (v(5), v(1)))
    p('v_lshl_add_u32 %s, %s, 6, %s' % (v(5), v(3), v(5)))
    p('v_lshl_add_u32 %s, %s, 3, %s' % (v(5), v(4), v(5)))
    for r in range(24, 28):
        p('v_mov_b32 %s, 0' % v(r))
    p('v_cmp_gt_u32 vcc, 8, %s' % v(2))
    p('v_or_b32 %s, s2, v0' % v(80))
    p('v_min_u32 %s, 1, %s' % (v(80), v(80)))
    p('v_lshlrev_b32 %s, 20, %s' % (v(80), v(80)))
    p('s_mov_b64 s[26:27], vcc')
    p('s_waitcnt lgkmcnt(0)')
    make_srd(p, S_O, P_X, None, 2048 * 1152)
    for it in range(5):
        if it == 4:
            p('s_mov_b64 exec, s[26:27]')
        p('buffer_load_dwordx2 %s, %s, %s, 0 offen offset:%d' % (v(8 + 4 * it, 2), v(5), sr(S_O, 4), it * 256))
        p('buffer_load_dwordx2 %s, %s, %s, 0 offen offset:%d' % (v(10 + 4 * it, 2), v(5), sr(S_O, 4), it * 256 + 32))
    p('s_mov_b64 exec, -1')
    make_srd(p, S_WQ, 50, None, 256)
    p('s_or_b32 %s, s24, 1' % T(1))
    p('v_mov_b32 %s, %s' % (v(81), T(1)))
    p('buffer_store_dword %s, %s, %s, 0 offen sc1' % (v(81), v(80), sr(S_WQ, 4)))
    p('v_lshrrev_b32 %s, 4, %s' % (v(6), v(1)))
    p('v_mul_u32_u24 %s, 18, %s' % (v(6), v(6)))
    p('v_add_u32 %s, %s, %s' % (v(6), v(6), v(3)))
    p('v_lshlrev_b32 %s, 10, %s' % (v(6), v(6)))
    p('v_lshl_add_u32 %s, %s, 8, %s' % (v(6), v(4), v(6)))
    p('v_and_b32 %s, 15, %s' % (v(7), v(1)))
    p('v_lshl_add_u32 %s, %s, 4, %s' % (v(6), v(7), v(6)))
    make_srd(p, S_XN, P_WS, None, 2048 * 1152)
    p('s_mov_b32 %s, 0x%x' % (T(3), WS_F + 4 * 32768))
    make_srd(p, S_FL, P_WS, T(3), 65536)
    p('s_lshl_b32 %s, %s, 13' % (T(2), sr(S_QT)))
    p('s_lshl_b32 %s, s3, 1' % T(3))
    p('s_add_u32 %s, %s, %s' % (T(3), T(3), sr(S_W)))
    p('s_lshl_b32 %s, %s, 7' % (T(3), T(3)))
    p('v_lshlrev_b32 %s, 20, %s' % (v(82), L))
    p('v_lshlrev_b32 %s, 7, %s' % (v(83), L))
    p('v_mov_b32 %s, 0' % v(84))
    for k in range(1, 5):
        p('s_mov_b32 %s, %d' % (T(3 + k), 4096 * k))
    F = 30
    for d in range(20):
        p('v_lshlrev_b32 %s, 16, %s' % (v(F + 2 * d), v(8 + d)))
        p('v_and_b32 %s, 0xffff0000, %s' % (v(F + 1 + 2 * d), v(8 + d)))
    p('buffer_load_dword %s, %s, %s, 0 offen sc1' % (v(85), v(84), sr(S_WQ, 4)))
    m, m2, q, q2, t = v(70), v(71), v(72), v(73), v(74)

    def reduce16(x):
        for k in (8, 4, 2, 1):
            p('v_add_f32_dpp %s, %s, %s row_ror:%d row_mask:0xf bank_mask:0xf' % (x, x, x, k))
    p('v_add_f32 %s, %s, %s' % (m, v(F), v(F + 1)))
    p('v_add_f32 %s, %s, %s' % (m2, v(F + 2), v(F + 3)))
    for e in range(4, 40, 2):
        p('v_add_f32 %s, %s, %s' % (m, m, v(F + e)))
        p('v_add_f32 %s, %s, %s' % (m2, m2, v(F + e + 1)))
    p('v_add_f32 %s, %s, %s' % (m, m, m2))
    reduce16(m)
    p('v_mul_f32 %s, 0x%x, %s' % (m, f2u(1.0 / 576), m))
    p('v_mov_b32 %s, 0' % q)
    p('v_mov_b32 %s, 0' % q2)
    for e in range(40):
        if e == 32:
            p('s_mov_b64 exec, s[26:27]')
        p('v_sub_f32 %s, %s, %s' % (t, v(F + e), m))
        p('v_fmac_f32 %s, %s, %s' % ((q, q2)[e % 2], t, t))
    p('s_mov_b64 exec, -1')
    p('v_add_f32 %s, %s, %s' % (q, q, q2))
    reduce16(q)
    p('v_mul_f32 %s, 0x%x, %s' % (q, f2u(1.0 / 576), q))

    def rnd(x):
        p('v_cvt_pk_bf16_f32 %s, %s, %s' % (x, x, x))
        p('v_lshlrev_b32 %s, 16, %s' % (x, x))
    rnd(m)
    rnd(q)
    p('v_add_f32 %s, 0x%x, %s' % (q, f2u(1e-5), q))
    rnd(q)
    p('v_sqrt_f32 %s, %s' % (q, q))
    rnd(q)
    p('v_rcp_f32 %s, %s' % (q, q))
    for d in range(20):
        x, y = v(F + 2 * d), v(F + 1 + 2 * d)
        p('v_sub_f32 %s, %s, %s' % (x, x, m))
        p('v_sub_f32 %s, %s, %s' % (y, y, m))
        p('v_cvt_pk_bf16_f32 %s, %s, %s' % (v(8 + d), x, y))
        p('v_lshlrev_b32 %s, 16, %s' % (x, v(8 + d)))
        p('v_and_b32 %s, 0xffff0000, %s' % (y, v(8 + d)))
        p('v_mul_f32 %s, %s, %s' % (x, x, q))
        p('v_mul_f32 %s, %s, %s' % (y, y, q))
        p('v_cvt_pk_bf16_f32 %s, %s, %s' % (v(8 + d), x, y))
        if d % 4 == 3:
            if d == 19:
                p('s_mov_b64 exec, s[26:27]')
            p('buffer_store_dwordx4 %s, %s, %s, %s offen sc1' % (v(5 + d, 4), v(6), sr(S_XN, 4), '0' if d == 3 else T(3 + d // 4)))
    p('s_mov_b64 exec, -1')
    p('s_mov_b32 s3, 0')
    p('s_waitcnt vmcnt(0)')
    p.label('L_ep_l')
    p('v_cmp_ne_u32 vcc, 0, %s' % v(85))
    p('s_cbranch_vccnz L_ep_ok')
    p('buffer_load_dword %s, %s, %s, 0 offen sc1' % (v(85), v(84), sr(S_WQ, 4)))
    p('s_add_u32 s3, s3, 1')
    p('s_cmp_lt_u32 s3, 0x40000')
    p('s_waitcnt vmcnt(0)')
    p('s_cbranch_scc1 L_ep_l')
    p.label('L_ep_ok')
    p('buffer_store_dword %s, %s, %s, %s offen sc1' % (v(85), v(82), sr(S_FL, 4), T(3)))
    p('v_mov_b32 %s, 163836' % v(84))
    p('ds_write_b32 %s, %s' % (v(84), v(85)))
    p('s_mov_b32 %s, %s' % (sr(S_CNT), T(2)))
    p('s_branch L_join')
    SPIN_BLOCKS.append("""L_lnp:
 s_mov_b32 s3, 0
L_lnp_l:
 buffer_load_dword %s, %s, %s, %s offen sc1
 s_add_u32 s3, s3, 1
 s_cmp_gt_u32 s3, 0x40000
 s_cbranch_scc1 L_lnp_ok
 s_waitcnt vmcnt(0)
 v_cmp_ne_u32 vcc, %s, %s
 s_cbranch_vccnz L_lnp_l
 s_branch L_lnp_ok""" % (v(86), v(83), sr(S_FL, 4), sr(S_CNT), v(85), v(86)))
    p.label('L_role_b')
    ct = code_touch('L_join', B + 90, B + 91, S_O)
    ct[2] = Ins('s_lshl_b32 s3, s3, 12')
    ct[3] = Ins('v_and_b32 %s, 31, %s' % (v(90), L))
    for x in ct:
        p.add(x)
    R0 = OPT.get('pf0', 12)
    p('s_lshr_b32 %s, s2, 3' % T(0))
    p('s_mul_i32 %s, %s, %d' % (T(0), T(0), R0 * 9216))
    p('s_and_b32 %s, s2, 3' % T(1))
    p('s_mul_i32 %s, %s, 2304' % (T(1), T(1)))
    p('s_add_u32 %s, %s, %s' % (T(0), T(0), T(1)))
    p('s_waitcnt lgkmcnt(0)')
    both = OPT.get('pfh', 1) == 0
    if both:
        p('s_cmp_eq_u32 %s, 3' % sr(S_W))
    else:
        p('s_bitcmp1_b32 s2, 2')
    p('s_cselect_b32 %s, s46, s44' % sr(S_H))
    p('s_cselect_b32 %s, s47, s45' % sr(S_H + 1))
    make_srd(p, S_H, S_H, T(0), (R0 - 1) * 9216 + 2304)
    for k in range(4 if both else 2):
        o = [Ins('v_add_u32 %s, %d, %s' % (v(92), 64 * k, L)) if both else Ins('v_add_u32 %s, %d, v0' % (v(92), 128 * k - 128))]
        div18(o, v(92), v(93), v(94))
        for x in o:
            p.add(x)
        p('v_mul_u32_u24 %s, 9216, %s' % (v(93), v(93)))
        p('v_lshl_add_u32 %s, %s, 7, %s' % (v(93), v(94), v(93)))
        p('buffer_load_dword %s, %s, %s, 0 offen' % (v(95 + k), v(93), sr(S_H, 4)))
    p('s_mov_b32 %s, 0x%x' % (T(3), WS_F + 4 * 32768))
    make_srd(p, S_FL, P_WS, T(3), 65536)
    p('v_lshlrev_b32 %s, 7, %s' % (v(83), L))
    p('s_mov_b32 %s, 0' % sr(S_CNT))
    p.label('L_join')
    p.finalize()
    return p.text().rstrip('\n')


def gen_slow_softmax():
    p = Prog()
    KA, VA, OK, OV, NM, MX = 120, 124, 132, 136, 140, 138
    NM = 44
    NM, OV, MX = 136, 32, 36
    p.label('L_slow')
    p('s_waitcnt vmcnt(0) lgkmcnt(0)')
    p('s_nop 15')
    p('s_add_u32 %s, %s, %d' % (T(0), sr(S_MK), 112 * 1024))
    p('s_cmp_eq_u32 %s, 3' % sr(S_W))
    p('s_cselect_b32 %s, %d, %s' % (T(0), 72 * 1024, T(0)))
    p('s_sub_u32 %s, %s, 0x10000' % (T(1), T(0)))
    for k in range(4):
        p('v_add_u32 %s, %s, %s' % (vr(KA + k), T(0), vr(V_KA + k)))
        p('v_subrev_u32 %s, %s, %s' % (vr(OK + k), sr(S_MK), vr(V_OK + k)))
    for k in range(8):
        p('v_add_u32 %s, %s, %s' % (vr(VA + k), T(1), vr(V_VA + k)))
    for k in range(2):
        p('v_subrev_u32 %s, %s, %s' % (vr(OV + k), sr(S_MK), vr(V_OV + k)))

    def load16(srd, vo, nvo):
        p('s_mov_b32 m0, %s' % T(0))
        for cc in range(4):
            p('buffer_load_dwordx4 %s, %s, %s offen offset:%d lds' % (vr(vo + cc % nvo), sr(srd, 4), T(2), cc * 1024))
        p('s_add_u32 %s, %s, 4096' % (T(2), T(2)))
        p('s_waitcnt vmcnt(0)')

    def qk(cin):
        p('s_mov_b32 %s, %s' % (T(2), T(3)))
        for kb in range(4):
            load16(S_K, OK, 4)
            for sx in range(4):
                p('ds_read_b128 %s, %s' % (ar(A_VF + (kb * 4 + sx) * 4, 4), vr(KA + sx)))
            p('s_waitcnt lgkmcnt(0)')
        for kb in range(4):
            for qb in range(4):
                for sx in range(4):
                    d = vr(Sreg(kb, qb), 4)
                    p('%s %s, %s, %s, %s' % (MF, d, ar(A_VF + (kb * 4 + sx) * 4, 4), vr(V_Q + (qb * 4 + sx) * 4, 4),
                                             cin(qb) if sx == 0 else d))
    for qb in range(4):
        p('v_mov_b32 %s, 0xff7fffff' % vr(MX + qb))
    p('s_mov_b32 %s, 0' % T(3))
    p.loop_begin(2, 's1')
    p.label('L_slow1')
    qk(lambda qb: '0')
    for qb in range(4):
        regs = [vr(Sreg(kb, qb) + r) for kb in range(4) for r in range(4)]
        for k in range(8):
            p('v_max3_f32 %s, %s, %s, %s' % (vr(MX + qb), vr(MX + qb), regs[2 * k], regs[2 * k + 1]))
    p('s_add_u32 %s, %s, 16384' % (T(3), T(3)))
    p('s_cmp_lt_u32 %s, 0x80000' % T(3))
    p('s_cbranch_scc1 L_slow1')
    p.loop_end()
    for x in xlane4('v_max_f32', [vr(MX + k) for k in range(4)], [vr(V_E + k) for k in range(4)]):
        p.add(x)
    for qb in range(4):
        for r in range(4):
            p('v_sub_f32 %s, 0, %s' % (vr(NM + qb * 4 + r), vr(MX + qb)))
        p('v_mov_b32 %s, 0' % vr(V_L + qb))
    for i in range(128):
        p('v_accvgpr_write_b32 %s, 0' % ar(A_O + i))
    p('s_mov_b32 %s, 0' % T(3))
    lp = p.loop_begin(3, 's2')
    p.label('L_slow2')
    qk(lambda qb: vr(NM + qb * 4, 4))
    for i in range(64):
        for x in sm_instrs(1, i):
            if x is not None:
                p.add(x)
    p('s_cmp_eq_u32 %s, 0x7c000' % T(3))
    p('s_cbranch_scc1 L_slow_done')
    p.loop_mark_exit(lp)
    p('s_mov_b32 %s, %s' % (T(2), T(3)))
    for ks in range(2):
        for j in range(2):
            load16(S_V, OV, 2)
            for db in range(8):
                p('ds_read_b64_tr_b16 %s, %s' % (ar(A_VF + db * 8 + ks * 4 + 2 * j, 2), vr(VA + db)))
            p('s_waitcnt lgkmcnt(0)')
    for db in range(8):
        for qb in range(4):
            for ks in range(2):
                o = ar(A_O + (db * 4 + qb) * 4, 4)
                p('%s %s, %s, %s, %s' % (MF, o, ar(A_VF + db * 8 + ks * 4, 4), vr(Preg(1, qb, ks), 4), o))
    p('s_add_u32 %s, %s, 16384' % (T(3), T(3)))
    p('s_branch L_slow2')
    p.loop_end()
    p.label('L_slow_done')
    for db in range(4):
        for ks in range(2):
            for j in range(2):
                x = v_load(31, db, ks, j, False)
                x.lds = None
                p.add(x)
    p('s_waitcnt vmcnt(0) lgkmcnt(0)')
    p('s_nop 15')
    p('s_branch L_slow_ret')
    p.finalize()
    return p.text().rstrip('\n')


def gen_main(diag=False):
    p = Prog()
    del SPIN_BLOCKS[:]
    _ct[0] = 0

    def stamp(k):
        if diag:
            p('s_memtime %s' % sr(S_DG, 2))
            p('s_waitcnt lgkmcnt(0)')
            p('v_writelane_b32 v1, %s, %d' % (sr(S_DG), k))
            p('s_memrealtime %s' % sr(S_DG, 2))
            p('s_waitcnt lgkmcnt(0)')
            p('v_writelane_b32 v1, %s, %d' % (sr(S_DG), k + 16))

    def addall(lst):
        for x in lst:
            p.add(x)

    def rstamp(k):
        if diag and OPT.get('sst'):
            p('s_memrealtime %s' % sr(S_DG, 2))
            p('s_waitcnt lgkmcnt(0)')
            p('v_writelane_b32 v1, %s, %d' % (sr(S_DG), 32 + k))
    p('s_cmp_ge_u32 s2, 256')
    p('s_cbranch_scc1 L_end')
    p('s_load_dwordx4 s[44:47], s[0:1], 48')
    p('s_load_dwordx2 %s, s[0:1], 88' % sr(P_WS, 2))
    p('s_load_dwordx4 s[36:39], s[0:1], 8')
    p('s_load_dwordx2 s[40:41], s[0:1], 24')
    p('s_load_dwordx2 %s, s[0:1], 0' % sr(P_X, 2))
    p('s_load_dwordx2 %s, s[0:1], 32' % sr(P_WO, 2))
    p('s_load_dwordx4 %s, s[0:1], 64' % sr(P_W2, 4))
    FU = OPT.get('fuse', 2)
    if FU:
        p('s_load_dwordx2 s[50:51], s[0:1], 80')
    stamp(0)
    p('v_and_b32 %s, 63, v0' % L)
    p('v_lshrrev_b32 %s, 6, v0' % t0)
    p('v_readfirstlane_b32 %s, %s' % (sr(S_W), t0))
    p('s_and_b32 %s, s2, 3' % T(0))
    p('s_lshl_b32 %s, %s, 3' % (T(0), T(0)))
    p('s_bfe_u32 %s, s2, 0x30003' % T(1))
    p('s_add_u32 %s, %s, %s' % (sr(S_HD), T(0), T(1)))
    p('s_and_b32 %s, s2, 4' % T(0))
    p('s_lshr_b32 %s, s2, 6' % T(1))
    p('s_add_u32 %s, %s, %s' % (sr(S_QT), T(0), T(1)))
    if FU == 2:
        p('s_memrealtime s[24:25]')
        p('s_nop 4')
        p.raw(gen_start_roles(diag))
        rstamp(0)
    if FU == 1:
        lnA, lnL, lnC = ln_parts()
        ct = code_touch('L_start', 120, 121, S_FL)
        ct[2] = Ins('s_lshl_b32 s3, s3, 12')
        ct[3] = Ins('v_and_b32 v120, 31, %s' % L)
        addall(ct)
        p.label('L_start')
        addall(lnA)
        p('s_memrealtime s[24:25]')
        p('v_or_b32 v125, s2, v0')
        p('v_min_u32 v125, 1, v125')
        p('v_lshlrev_b32 v125, 20, v125')
        p('s_waitcnt lgkmcnt(0)')
        make_srd(p, S_WQ, 50, None, 256)
        p('s_or_b32 s3, s24, 1')
        p('v_mov_b32 v126, s3')
        p('buffer_store_dword v126, v125, %s, 0 offen sc1' % sr(S_WQ, 4))
        addall(lnL)
        rstamp(0)
    p('v_lshlrev_b32 %s, 4, %s' % (vr(V_L16), L))
    p('s_and_b32 %s, %s, 1' % (T(2), sr(S_HD)))
    p('s_lshl_b32 %s, %s, 1' % (T(2), T(2)))
    p('v_add_u32 %s, %s, %s' % (t3, T(2), L))
    p('v_mul_u32_u24 %s, 3641, %s' % (vr(V_T + 4), L))
    p('v_mul_u32_u24 %s, 3641, %s' % (vr(V_T + 5), t3))
    p('s_movk_i32 %s, 9216' % T(9))
    p('s_movk_i32 %s, -288' % T(10))
    vo = []
    for i in range(9):
        o = []
        o.append(Ins('v_add_u32 %s, %d, %s' % (t0, 64 * i * 3641, vr(V_T + 4))))
        o.append(Ins('v_add_u32 %s, %d, %s' % (t1, 64 * i * 3641, vr(V_T + 5))))
        o.append(Ins('v_lshrrev_b32 %s, 16, %s' % (t0, t0)))
        o.append(Ins('v_lshrrev_b32 %s, 16, %s' % (t1, t1)))
        o.append(Ins('v_lshlrev_b32 %s, 4, %s' % (t2, t3)) if i == 0 else Ins('v_add_u32 %s, %d, %s' % (t2, 4096 if i % 4 == 0 else 0, t2)))
        o.append(Ins('v_mad_u32_u24 %s, %s, %s, %s' % (t0, t0, T(9), t2)))
        o.append(Ins('v_mad_i32_i24 %s, %s, %s, %s' % (vr(V_OW + i), t1, T(10), t0)))
        if i % 4:
            del o[4]
        vo.append(o)
    for o in vo[:4]:
        addall(o)
    p('s_mul_i32 %s, %s, 9216' % (sr(S_M1), sr(S_W)))
    p('s_and_b32 %s, %s, 1' % (T(3), sr(S_W)))
    p('s_mul_i32 %s, %s, %d' % (sr(S_OFFW), T(3), 32 * 9216))
    p('s_mul_i32 %s, %s, 288' % (T(2), sr(S_HD)))
    p('s_sub_u32 %s, %d, %s' % (T(3), 576 * 9216, T(2)))
    p('s_lshl_b32 %s, %s, 2' % (T(6), sr(S_QT)))
    p('s_add_u32 %s, %s, %s' % (T(6), T(6), sr(S_W)))
    p('s_mul_i32 %s, %s, %d' % (T(7), T(6), 4 * 18 * 1024))
    p('s_cmp_lt_u32 %s, 2' % sr(S_W))
    p('s_waitcnt lgkmcnt(0)')
    p('s_cselect_b32 s48, s44, s46')
    p('s_cselect_b32 s49, s45, s47')
    make_srd(p, S_WS, 48, T(2), T(3))
    def ln_now():
        p('v_mov_b32 v127, 0')
        p('s_mov_b32 %s, 0' % sr(S_CNT))
        rstamp(1)
        p.wait_regs(vr(72, 12))
        p.add(poll_issue(S_CNT, 128, 127, S_WQ))
        rstamp(2)
        addall(lnC)
        rstamp(3)
        poll_check(p, 'ep', S_CNT, 'v_cmp_eq_u32 vcc, 0', 128, 127, S_WQ, sleep=2)
        p('v_readfirstlane_b32 %s, v128' % sr(S_EP))

    def w_touch0():
        R0 = OPT.get('pf0', 12)
        if not R0:
            return
        p('s_lshr_b32 %s, s2, 3' % T(0))
        p('s_mul_i32 %s, %s, %d' % (T(0), T(0), R0 * 9216))
        p('s_and_b32 %s, s2, 3' % T(1))
        p('s_mul_i32 %s, %s, 2304' % (T(1), T(1)))
        p('s_add_u32 %s, %s, %s' % (T(0), T(0), T(1)))
        p('s_bitcmp1_b32 s2, 2')
        p('s_cselect_b32 %s, s46, s44' % sr(S_H))
        p('s_cselect_b32 %s, s47, s45' % sr(S_H + 1))
        make_srd(p, S_H, S_H, T(0), (R0 - 1) * 9216 + 2304)
        o = []
        div18(o, 'v0', 'v122', 'v123')
        addall(o)
        p('v_mul_u32_u24 v122, 9216, v122')
        p('v_lshl_add_u32 v122, v123, 7, v122')
        p('buffer_load_dword v124, v122, %s, 0 offen' % sr(S_H, 4))
    ORD = OPT.get('ord', 1)
    if FU == 2:
        make_srd(p, S_XN, P_WS, T(7), 4 * 18 * 1024)
    elif FU:
        p('s_mov_b32 %s, %s' % (sr(S_RO), T(7)))
        if ORD >= 1:
            if ORD == 1:
                w_touch0()
            for o in vo[4:]:
                addall(o)
            vo = vo[:4]
            ln_now()
            if ORD == 2:
                w_touch0()
    else:
        make_srd(p, S_XN, P_WS, T(7), 4 * 18 * 1024)
    d0 = p1_dma(0)
    addall(d0[:6])
    for o in vo[4:]:
        addall(o)
    addall(d0[6:] + (xn_loads(0, 0) if not FU else []))
    if FU == 2:
        rstamp(1)
        p('s_cmp_eq_u32 %s, 0' % sr(S_W))
        p('s_cbranch_scc1 L_lnp')
        p.label('L_lnp_ok')
        p('s_waitcnt lgkmcnt(0)')
        p('s_barrier')
        rstamp(2)
        addall(xn_loads(0, 0))
        p('v_mov_b32 v64, 163836')
        p('ds_read_b32 v65, v64')
        p('v_readfirstlane_b32 %s, v65' % sr(S_EP))
    if FU == 1 and ORD == 0:
        w_touch0()
        ln_now()
    if OPT.get('pro', 1) == 0:
        addall(p1_dma(1) + xn_loads(1, 1) + p1_dma(2))
    PF0 = OPT.get('pf0', 12)
    assert PF0 % 2 == 0
    p('s_lshr_b32 %s, s2, 3' % T(0))
    p('s_and_b32 %s, s2, 3' % T(1))
    p('s_lshl_b32 %s, %s, 1' % (T(2), T(0)))
    p('s_and_b32 %s, %s, 1' % (T(3), sr(S_W)))
    p('s_add_u32 %s, %s, %s' % (T(2), T(2), T(3)))
    p('s_mul_i32 %s, %s, 9216' % (T(2), T(2)))
    p('s_mul_i32 %s, %s, 2304' % (T(3), T(1)))
    p('s_add_u32 %s, %s, %s' % (T(2), T(2), T(3)))
    p('s_sub_u32 %s, %d, %s' % (T(9), 576 * 9216, T(2)))
    p('s_lshl_b32 %s, %s, 2' % (T(4), T(0)))
    p('s_add_u32 %s, %s, %s' % (T(4), T(4), sr(S_W)))
    p('s_lshl_b32 %s, %s, 13' % (T(4), T(4)))
    p('s_lshl_b32 %s, %s, 11' % (T(3), T(1)))
    p('s_add_u32 %s, %s, %s' % (T(4), T(4), T(3)))
    p('s_sub_u32 %s, %d, %s' % (T(10), 576 * 8192, T(4)))
    p('s_lshl_b32 %s, %s, 19' % (T(5), sr(S_HD)))
    make_srd(p, S_K, 36, T(5), 0x80000)
    make_srd(p, S_V, 38, T(5), 0x80000)
    p('s_lshl_b32 %s, %s, 8' % (T(5), sr(S_HD)))
    p('s_sub_u32 %s, %d, %s' % (T(3), 576 * 8192, T(5)))
    make_srd(p, S_WQ, 40, T(5), T(3))
    make_srd(p, S_A1, 48, T(2), T(9))
    make_srd(p, S_A2, 40, T(4), T(10))
    p('v_lshlrev_b32 %s, 7, %s' % (t1, L))
    p('v_mov_b32 %s, 0x7f000000' % t2)
    p('v_cmp_gt_u32 vcc, 18, %s' % L)
    p('v_cndmask_b32 %s, %s, %s, vcc' % (vr(V_SW), t2, t1))
    p('v_cmp_gt_u32 vcc, 16, %s' % L)
    p('v_cndmask_b32 %s, %s, %s, vcc' % (vr(V_SW + 1), t2, t1))
    tw = lambda c: [Ins('s_mov_b32 %s, %d' % (T(7), c * 64 * 9216)),
                    Ins('buffer_load_dword %s, %s, %s, %s offen sc0' % (vr(V_SW + 2), vr(V_SW), sr(S_A1, 4), T(7)))]
    tq = lambda k: [Ins('s_mov_b32 %s, %d' % (T(7), k * 128 * 8192)),
                    Ins('buffer_load_dword %s, %s, %s, %s offen sc0' % (vr(V_SW + 3), vr(V_SW + 1), sr(S_A2, 4), T(7)))]
    touch = {c: [] for c in range(7)}
    for k, c in enumerate(range(PF0 // 2, 9)):
        touch[min(k, 6)] += tw(c)
    for k in range(5):
        touch[k + OPT.get('tq0', 0)] += tq(4 - k)
    for c in touch:
        for x in touch[c]:
            x.wr = [r for r in x.wr if r[0] != 'v']
    if not OPT.get('pf1', 1):
        touch = {}
    if OPT.get('fold', 0):
        p('s_mov_b32 %s, 0x%x' % (sr(S_C), f2u(-1.0 / 128 ** 0.5)))
        p('s_mov_b32 %s, 0x%x' % (sr(S_NL), f2u(-1.0 / LOG2E)))
    else:
        p('s_mov_b32 %s, 0x%x' % (sr(S_C), f2u(LOG2E / 128 ** 0.5)))
        p('s_mov_b32 %s, 0x%x' % (sr(S_NL), f2u(-LOG2E)))
    p('s_lshl_b32 %s, %s, 12' % (sr(S_MK), sr(S_W)))
    p('s_mov_b32 %s, 0' % sr(S_OFFK))
    p('s_mov_b32 %s, 0' % sr(S_OFFV))
    p('v_lshrrev_b32 %s, 2, %s' % (t0, L))
    p('v_mul_u32_u24 %s, 288, %s' % (t1, t0))
    p('v_and_b32 %s, 3, %s' % (t2, L))
    p('v_lshl_add_u32 %s, %s, 3, %s' % (vr(V_A1), t2, t1))
    for k in range(1, 4):
        p('v_add_u32 %s, %d, %s' % (vr(V_A1 + k), k * 36864, vr(V_A1)))
    p('v_and_b32 %s, 15, %s' % (t0, L))
    p('v_lshrrev_b32 %s, 4, %s' % (t1, L))
    p('v_lshlrev_b32 %s, 1, %s' % (t3, t1))
    p('v_xor_b32 %s, %s, %s' % (t3, t0, t3))
    p('v_lshlrev_b32 %s, 4, %s' % (t3, t3))
    p('v_lshl_add_u32 %s, %s, 13, %s' % (vr(V_OQ), t1, t3))
    p('v_xor_b32 %s, 128, %s' % (vr(V_OQ + 1), vr(V_OQ)))
    p('s_lshl_b32 %s, %s, 17' % (sr(S_OFFQ), sr(S_W)))
    addall(kv_dma_setup())
    p('s_mul_i32 %s, %s, %d' % (T(3), T(6), 4 * HS()))
    p('s_add_u32 %s, %s, 0x%x' % (T(3), T(3), WS_H))
    make_srd(p, S_H, P_WS, T(3), 4 * HS())
    p('s_mul_i32 %s, %s, %d' % (T(3), sr(S_QT), 16 * OS()))
    p('s_lshl_b32 %s, %s, 12' % (T(4), sr(S_HD)))
    p('s_add_u32 %s, %s, %s' % (T(3), T(3), T(4)))
    p('s_add_u32 %s, %s, 0x%x' % (T(3), T(3), WS_O))
    p('s_sub_u32 %s, %d, %s' % (T(5), 16 * OS(), T(4)))
    make_srd(p, S_O, P_WS, T(3), T(5))
    p('s_mov_b32 %s, 0x%x' % (T(3), WS_F))
    make_srd(p, S_FL, P_WS, T(3), 5 * 32768)
    p('s_lshr_b32 %s, %s, 3' % (sr(S_SP), sr(S_HD)))
    p('s_and_b32 %s, %s, 7' % (T(0), sr(S_HD)))
    p('s_lshl_b32 %s, %s, 3' % (sr(S_TILE), sr(S_QT)))
    p('s_add_u32 %s, %s, %s' % (sr(S_TILE), sr(S_TILE), T(0)))
    p('s_lshl_b32 %s, %s, 6' % (T(0), sr(S_SP)))
    p('s_add_u32 %s, %s, %s' % (T(0), T(0), sr(S_TILE)))
    p('s_lshl_b32 %s, %s, 7' % (sr(S_FWG), T(0)))
    p('s_lshl_b32 %s, %s, 13' % (sr(S_FGR), sr(S_SP)))
    p('s_mul_i32 %s, %s, 9' % (T(2), sr(S_HD)))
    p('s_add_u32 %s, %s, 1' % (T(2), T(2)))
    p('s_lshr_b32 %s, %s, 1' % (T(2), T(2)))
    p('s_lshl_b32 %s, %s, 10' % (sr(S_HS), T(2)))
    p('s_bitcmp1_b32 %s, 0' % sr(S_HD))
    p('s_mov_b32 %s, 4096' % T(3))
    p('s_cselect_b32 %s, %d, %s' % (T(3), -1024 + 8, T(3)))
    p('s_add_u32 %s, %s, %s' % (sr(S_HS + 4), sr(S_HS), T(3)))
    for qb in range(1, 4):
        p('s_add_u32 %s, %s, %d' % (sr(S_HS + qb), sr(S_HS), qb * HS()))
        p('s_add_u32 %s, %s, %d' % (sr(S_HS + 4 + qb), sr(S_HS + 4), qb * HS()))
    if OPT.get('pro', 1) == 1:
        addall(p1_dma(1))
    if FU == 1:
        make_srd(p, S_XN, P_WS, sr(S_RO), 4 * 18 * 1024)
        p('s_lshl_b32 %s, %s, 12' % (T(2), sr(S_QT)))
        p('s_add_u32 %s, %s, %d' % (T(2), T(2), 4 * 32768))
        p('s_lshl_b32 %s, %s, 7' % (T(3), sr(S_HD)))
        p('s_add_u32 %s, %s, %s' % (T(3), T(3), T(2)))
        p('v_lshlrev_b32 v125, 20, v0')
        p('v_and_b32 v129, 31, %s' % L)
        p('v_lshlrev_b32 v129, 7, v129')
        rstamp(4)
        p.need(('XN', 0))
        rstamp(5)
        p('s_barrier')
        rstamp(6)
        p('buffer_store_dword v128, v125, %s, %s offen sc1' % (sr(S_FL, 4), T(3)), lds=('flag', ('XN', 0)))
        if OPT.get('lnpoll', 0) == 1:
            SPIN_BLOCKS.append("""L_lnp:
 s_mov_b32 s3, 0
L_lnp_l:
 buffer_load_dword v130, v129, %s, %s offen sc1
 s_add_u32 s3, s3, 1
 s_cmp_gt_u32 s3, 0x40000
 s_cbranch_scc1 L_lnp_ok
 s_waitcnt vmcnt(0)
 v_cmp_ne_u32 vcc, %s, v130
 s_cbranch_vccz L_lnp_ok
 s_sleep 2
 s_branch L_lnp_l""" % (sr(S_FL, 4), T(2), sr(S_EP)))
            p('s_cmp_eq_u32 %s, 0' % sr(S_W))
            p('s_cbranch_scc1 L_lnp')
            p.label('L_lnp_ok')
            p('s_barrier')
        else:
            p.add(poll_issue(S_T0 + 2, 130, 129))
            poll_check(p, 'ln', S_T0 + 2, 'v_cmp_ne_u32 vcc, %s' % sr(S_EP), 130, 129, sleep=2)
        addall(xn_loads(0, 0))
    stamp(1)

    if OPT.get('donly'):
        p('s_waitcnt vmcnt(0)')
        addall(d_scalar_setup1() + d_scalar_setup2() + k_read_setup() + v_read_setup())
        p('v_lshlrev_b32 %s, 20, v0' % vr(V_FST))
        p('v_mov_b32 %s, 1' % vr(V_ONE))
        p('v_lshlrev_b32 %s, 7, %s' % (vr(V_FOFF), L))
        p('v_mov_b32 %s, 0' % vr(V_RV))
        p('s_mov_b32 %s, 0' % sr(S_OFFW))
        for k in range(2, 7):
            stamp(k)
        p.raw(' s_branch L_donly')
    g = Gaps(p)
    seq = GemmSeq(p, g)
    pool = deque(('a', 72 + 4 * k) for k in range(14))

    def alloc():
        while not pool:
            x = (g.st or g.lo).popleft()
            g.over += max(1, cost(x))
            g.emit(x)
        for t in pool:
            if t[0] == 'v':
                pool.remove(t)
                return t
        return pool.popleft()

    XB = {}
    ring = lambda buf: [('a', A_B + buf * 32 + 4 * k) for k in range(8)]

    def xn_l(c, tiles):
        out = []
        for qb in range(4):
            out.append(Ins('s_mov_b32 %s, %d' % (T(qb), qb * 18 * 1024 + c * 2048)))
            for ks in range(2):
                out.append(Ins('buffer_load_dwordx4 %s, %s, %s, %s offen offset:%d' % (
                    rg(tiles[qb * 2 + ks]), vr(V_L16), sr(S_XN, 4), T(qb), ks * 1024)))
        return out

    def aq_setup():
        o = []
        a = lambda s: o.append(Ins(s))
        a('v_lshrrev_b32 %s, 2, %s' % (t0, L))
        a('v_and_b32 %s, 7, %s' % (t1, t0))
        a('v_lshlrev_b32 %s, 1, %s' % (t1, t1))
        a('v_and_b32 %s, 3, %s' % (t2, L))
        a('v_xor_b32 %s, %s, %s' % (t1, t1, t2))
        a('v_lshlrev_b32 %s, 4, %s' % (t1, t1))
        a('v_lshl_add_u32 %s, %s, 8, %s' % (vr(V_AQ), t0, t1))
        for s in range(1, 4):
            a('v_xor_b32 %s, %d, %s' % (vr(V_AQ + s), 64 * s, vr(V_AQ)))
        for rgn in range(1, 3):
            for s in range(4):
                a('v_add_u32 %s, 0x%x, %s' % (vr(V_AQ + rgn * 4 + s), rgn * 65536, vr(V_AQ + s)))
        return o

    def mk_mf(acc, chunks, xb, first):
        def mf(dst):
            out = []
            for qb in range(4):
                for ci, c in enumerate(chunks):
                    for ks in range(2):
                        def th(qb=qb, ci=ci, c=c, ks=ks):
                            a = rg(acc(qb))
                            cin = '0' if (first and ci == 0 and ks == 0) else a
                            return '%s %s, %s, %s, %s' % (MF, a, ar(dst + ci * 8 + ks * 4, 4), rg(xb(c)[qb * 2 + ks]), cin)
                        out.append(th)
            return out
        return mf

    for c in range(9):
        XB[c] = ring(c % 3)
    for c in range(7):
        for blk in range(18):
            hook = None
            if blk == 0:
                def hook(c=c):
                    if OPT.get('cst'):
                        p('s_memrealtime %s' % sr(S_DG, 2))
                        p('s_waitcnt lgkmcnt(0)')
                        p('v_writelane_b32 v1, %s, %d' % (sr(S_DG), 32 + c))
                    g.drop = {0: (), 1: ('dma',), 2: ('vld',), 3: ('dma', 'vld'), 4: ('dma', 'vld', 'dsr')}[OPT.get('drop', 0)]
                    g.vm_gap = OPT.get('vg1', 5) if c > 1 else OPT.get('vg0', 5)
                    if c == 0 and OPT.get('pro', 1):
                        g.hi.extend(xn_l(1, XB[1]) + p1_dma(2))
                    g.hi.extend(touch.get(c, []))
                    xl = xn_l(c + 2, XB[c + 2])
                    if c == 0:
                        g.hi.extend(xl + p1_dma(3))
                    else:
                        g.hi.extendleft(reversed(xl)) if OPT.get('xfirst', 0) else g.hi.extend(xl)
                    if c == 4:
                        g.hi.extend(wq_dma(8))
                    if c == 4 and OPT.get('ct1', 1):
                        g.hi.extend(code_touch('L_c1', V_SW + 4, V_SW + 5, S_A3))
                    if c == 6:
                        assert not any(y.kind == 'dma' and y.lds[1][0] == 'W' for y in g.hi)
                        g.lo.extend(aq_setup())
            seq.add(lambda dst, c=c, blk=blk: p1_reads(c, blk, dst), 8,
                    mk_mf(lambda qb, blk=blk: FT[(blk, qb)], [c], lambda c: XB[c], c == 0), hook=hook,
                    bar=[(PS(c), ('W', c))] if blk == 0 else None,
                    bwait=[rg(t) for t in XB[c]] if blk == 0 else None)
            if blk == 0 and 1 <= c <= 5:
                seq.groups[-1]['post'] = lambda c=c: g.hi.extend(p1_dma(c + 3))
            if blk == 0 and c == 6:
                seq.groups[-1]['post'] = lambda: g.hi.extend(wq_dma(7))
    CT = OPT.get('cap_t', 3)
    for blk in range(18):
        hook = None
        if blk >= 2 and blk % 2 == 0:
            def hook(b=blk // 2 - 1):
                for qb in range(4):
                    g.lo.extend(swiglu_unit(b, qb, g.n + 3, pool))
        if blk == 0:
            def hook():
                g.drop = ()
                p.label('L_c1')
                stamp(2)
        seq.add(lambda dst, blk=blk: p1_reads(7, blk, dst) + p1_reads(8, blk, dst + 8), 16,
                mk_mf(lambda qb, blk=blk: FT[(blk, qb)], [7, 8], lambda c: XB[c], False), hook=hook,
                bar=[(PS(7), ('W', 7)), (PS(8), ('W', 8))] if blk == 0 else None,
                bwait=[rg(t) for t in XB[7] + XB[8]] if blk == 0 else None, cap=CT)
        if blk == 0:
            seq.groups[-1]['post'] = lambda: g.hi.extend(wq_dma(6) + wq_dma(5))
    QT = {}

    def qacc(bq, qb):
        if (bq, qb) not in QT:
            QT[(bq, qb)] = alloc()
        return QT[(bq, qb)]
    XQ = {8: XB[8], 7: XB[7], 6: XB[6], 4: ring(1), 3: ring(2), 2: ring(0), 0: ring(1)}
    C2 = OPT.get('cap_p2', 2)
    qn = lambda c: (LS(WQ_SLOT[c]), ('Q', c))
    for bq in range(8):
        hook = None
        if bq == 0:
            def hook():
                stamp(3)
                g.vm_gap = OPT.get('vg2', 4)
                g.st_w = OPT.get('stw2', 1)
                for qb in range(4):
                    g.lo.extend(swiglu_unit(8, qb, g.n + 3, pool))
        if bq == 3:
            def hook():
                XQ[5] = XQ[1] = [alloc() for _ in range(8)]
                g.hi.extend(xn_l(5, XQ[5]))
        seq.add(lambda dst, bq=bq: p2_reads(8, bq, dst) + p2_reads(7, bq, dst + 8), 16,
                mk_mf(lambda qb, bq=bq: qacc(bq, qb), [8, 7], lambda c: XQ[c], True), hook=hook,
                bar=[qn(8), qn(7)] if bq == 0 else None, cap=C2)
        if bq == 0:
            seq.groups[-1]['post'] = lambda: g.hi.extend(
                wq_dma(4) + wq_dma(3) + wq_dma(2))
    for c in (6, 5, 4, 3, 2):
        for bq in range(8):
            hook = None
            if bq == 0:
                def hook(c=c):
                    for cc in {6: (4, 3), 5: (2,), 4: (1,), 3: (0,), 2: ()}[c]:
                        g.hi.extend(xn_l(cc, XQ[cc]))
            seq.add(lambda dst, c=c, bq=bq: p2_reads(c, bq, dst), 8,
                    mk_mf(lambda qb, bq=bq: qacc(bq, qb), [c], lambda c: XQ[c], False), hook=hook,
                    bar=[qn(c)] if bq == 0 else None, cap=C2,
                    bwait=(lambda c=c: [rg(t) for t in XQ[c]]) if bq == 0 else None)
            if bq == 0:
                seq.groups[-1]['lazyb'] = c
                post = {6: lambda: g.hi.extend(wq_dma(1) + wq_dma(0)),
                        3: lambda: g.hi.extend(dma_unit('K', 0, False)),
                        2: lambda: g.hi.extend(dma_unit('K', 1, False) + dma_unit('V', 0, False))}.get(c)
                seq.groups[-1]['post'] = post
    for bq in range(8):
        hook = None
        if bq == 0:
            def hook():
                print('swiglu backlog at last P2 group:', len(g.hi), len(g.lo), 'over', g.over, file=sys.stderr)
                g.hi.extend(dma_unit('K', 2, False) + dma_unit('V', 1, False))
        if bq >= 2 and bq % 2 == 0:
            def hook(s=bq // 2 - 1):
                for qb in range(4):
                    g.lo.extend(qcvt_unit(qb, s, QT, g.n + 3))
        seq.add(lambda dst, bq=bq: p2_reads(1, bq, dst) + p2_reads(0, bq, dst + 8), 16,
                mk_mf(lambda qb, bq=bq: qacc(bq, qb), [1, 0], lambda c: XQ[c], False), hook=hook,
                bar=[qn(1), qn(0)] if bq == 0 else None, cap=C2,
                bwait=(lambda: [rg(t) for t in XQ[1] + XQ[0]]) if bq == 0 else None)
    seq.run()
    stamp(4)
    print('G backlog at end:', len(g.hi), len(g.lo), 'over', g.over, 'waste', g.waste, file=sys.stderr)
    for qb in range(4):
        g.lo.extend(qcvt_unit(qb, 3, QT, 0))
    addall(k_read_setup())
    p.need(('lgkm', 'all'), (LS(0), ('K', 0)))
    p('s_barrier')
    for kb in range(4):
        for s in range(4):
            p.add(k_load(0, kb, s, False))
    g.flush()
    g.vm_gap = 4
    g.hi.extend(dma_unit('K', 3, False))
    g.hi.extend(d_scalar_setup1())
    g.lo.extend(Ins('v_accvgpr_write_b32 %s, 0' % ar(A_O + i)) for i in range(128))
    for kb in range(4):
        for qb in range(4):
            for s in range(4):
                d = vr(Sreg(kb, qb), 4)
                g.gap('%s %s, %s, %s, %s' % (MF, d, ar(A_KF + kb * 16 + s * 4, 4), vr(V_Q + (qb * 4 + s) * 4, 4), '0' if s == 0 else d))
    g.flush()
    addall(v_read_setup())
    for qb in range(4):
        p('v_mov_b32 %s, 0' % vr(V_L + qb))
    p('v_lshlrev_b32 %s, 20, v0' % vr(V_FST))
    if not FU:
        p('s_mov_b32 %s, 1' % sr(S_EP))
    p('v_mov_b32 %s, %s' % (vr(V_ONE), sr(S_EP)))
    p('v_lshlrev_b32 %s, 7, %s' % (vr(V_FOFF), L))
    addall(code_touch('L_att_tail', 32, 33, S_DWO)[:-1])
    p('v_mov_b32 %s, %s' % (vr(V_RN), L))
    addall(repack_pat())
    ms = [vr(V_E + qb) for qb in range(4)]
    for step in range(8):
        for qb in range(4):
            regs = [vr(Sreg(kb, qb) + r) for kb in range(4) for r in range(4)]
            if step == 0:
                p('v_max3_f32 %s, %s, %s, %s' % (ms[qb], regs[0], regs[1], regs[2]))
            elif step < 7:
                p('v_max3_f32 %s, %s, %s, %s' % (ms[qb], ms[qb], regs[2 * step + 1], regs[2 * step + 2]))
            else:
                p('v_max_f32 %s, %s, %s' % (ms[qb], ms[qb], regs[15]))
    addall(xlane4('v_max_f32', ms, [vr(V_T + k) for k in range(4)]))
    for qb in range(4):
        for r in range(4):
            p('v_sub_f32 %s, 0, %s' % (vr(V_NM + qb * 4 + r), ms[qb]))
    for kb in range(4):
        for qb in range(4):
            for r in range(4):
                x = vr(Sreg(kb, qb) + r)
                p('v_add_f32 %s, %s, %s' % (x, x, vr(V_NM + qb * 4)))
    stamp(5)
    def sm_plain(uu, i0, i1):
        prev = []
        for i in range(i0, i1):
            ex, ad, cv = sm_instrs(uu, i)
            p.add(ex)
            addall(prev)
            prev = [ad] + ([cv] if cv else [])
        p('s_nop 0')
        addall(prev)
    sm_plain(0, 0, 28)
    att_slots(p, 0, 0, 64, False, pv=False, sm_cur=False)
    sm_plain(0, 28, 60)
    p('s_mov_b32 %s, 0' % sr(S_CNT))
    p('s_lshl_b32 %s, %s, 4' % (sr(S_OFFQ), sr(S_W)))
    p('s_add_u32 %s, %s, 2' % (sr(S_OFFQ), sr(S_OFFQ)))
    p.wait_regs(ar(A_KF, 16))
    lp = p.loop_begin(7, 'att')
    p('.p2align 6')
    p.label('L_att')
    rtag = ('R', 0)
    g.vm_gap = 8

    def rp_loads():
        g.hi.append(Ins('buffer_load_dwordx4 %s, %s, %s, 0 offen nt' % (vr(V_RQ[0], 4), vr(V_RV), sr(S_A1, 4))))
        g.hi.append(Ins('buffer_load_dwordx4 %s, %s, %s, 0 offen nt' % (vr(V_RQ[1], 4), vr(V_RV), sr(S_A2, 4))))

    def rp_stores():
        g.hi.append(Ins('buffer_store_dwordx4 %s, %s, %s, %s offen sc1' % (vr(V_RQ[0], 4), vr(V_L16), sr(S_A3, 4), sr(S_RO)), lds=rtag))
        g.hi.append(Ins('buffer_store_dwordx4 %s, %s, %s, %s offen sc1' % (vr(V_RQ[1], 4), vr(V_L16), sr(S_A4, 4), sr(S_RO)), lds=rtag))
        g.hi.append(Ins('s_add_u32 %s, %s, 1024' % (sr(S_RO), sr(S_RO))))
    att_slots(p, 0, 64, 96, True)
    rp_loads()
    att_slots(p, 0, 96, 128, True, g=g, cap=4)
    assert not g.hi
    att_slots(p, 1, 0, 64, True)
    p('s_add_u32 %s, %s, 1' % (sr(S_CNT), sr(S_CNT)))
    p('s_cmp_eq_u32 %s, 7' % sr(S_CNT))
    p('s_cbranch_scc1 L_att_tail')
    p.loop_mark_exit(lp)
    g.lo.extend(repack_pat())
    att_slots(p, 1, 64, 128, True, g=g, cap=3)
    assert not g.lo
    att_slots(p, 2, 0, 30, True, extra_need=[rtag, ('H', 0)])
    if OPT.get('plain_h'):
        SPIN_BLOCKS.append('L_wbh:\n buffer_wbl2 sc1\n s_branch L_wbh_done')
        p('s_cmp_eq_u32 %s, %s' % (sr(S_CNT), sr(S_OFFQ)))
        p('s_cbranch_scc1 L_wbh')
        p.label('L_wbh_done')
    p('s_cmp_eq_u32 %s, 4' % sr(S_CNT))
    p('s_cselect_b32 %s, %s, 0x100000' % (T(0), sr(S_FWG)))
    fl = flag_store(S_T0, 'H')
    g.hi.append(fl)
    g.vm_gap = 3
    rp_stores()
    att_slots(p, 2, 30, 66, True, g=g, cap=4)
    assert not g.hi
    att_slots(p, 2, 66, 96, True)
    g.vm_gap = 8
    rp_loads()
    att_slots(p, 2, 96, 128, True, g=g, cap=4)
    assert not g.hi
    g.lo.extend(repack_pat())
    att_slots(p, 3, 0, 96, True, g=g, cap=3)
    assert not g.lo
    if OPT.get('ct2', 1):
        g.hi.append(Ins('global_load_dword v33, v32, %s' % sr(S_DWO, 2)))
    att_slots(p, 3, 96, 128, True, g=g, cap=4)
    assert not g.hi
    att_slots(p, 4, 0, 30, True)
    g.vm_gap = 3
    rp_stores()
    att_slots(p, 4, 30, 64, True, g=g, cap=4)
    assert not g.hi
    p('s_branch L_att')
    p.loop_end()
    p.label('L_att_tail')
    stamp(6)
    g.vm_gap = 4
    att_slots(p, 25, 64, 96, False)
    g.hi.append(poll_issue(S_FGR))
    tt = []
    a = lambda x: tt.append(Ins(x))
    a('s_lshr_b32 %s, s2, 3' % T(0))
    a('s_lshl_b32 %s, %s, 2' % (T(1), sr(S_SP)))
    a('s_add_u32 %s, %s, %s' % (T(1), T(1), sr(S_W)))
    a('s_mul_i32 %s, %s, %d' % (T(1), T(1), WBLK))
    a('s_mul_i32 %s, %s, 1152' % (T(2), T(0)))
    a('s_add_u32 %s, %s, %s' % (T(1), T(1), T(2)))
    a('s_add_u32 %s, %s, 0x%x' % (T(1), T(1), WS_W))
    tt += srd_ins(S_A1, P_WS, T(1), 18 * 36864 + 1152)
    a('s_and_b32 %s, s2, 4' % T(1))
    a('s_lshl_b32 %s, %s, 3' % (T(1), T(1)))
    a('s_add_u32 %s, %s, %s' % (T(1), T(1), T(0)))
    a('s_lshl_b32 %s, %s, 1' % (T(1), T(1)))
    a('s_and_b32 %s, %s, 1' % (T(2), sr(S_W)))
    a('s_add_u32 %s, %s, %s' % (T(1), T(1), T(2)))
    a('s_mul_i32 %s, %s, %d' % (T(1), T(1), HS()))
    a('s_mul_i32 %s, %s, %d' % (T(2), sr(S_SP), 36 * 1024))
    a('s_add_u32 %s, %s, %s' % (T(1), T(1), T(2)))
    a('s_add_u32 %s, %s, 0x%x' % (T(1), T(1), WS_H))
    tt += srd_ins(S_A2, P_WS, T(1), 36 * 1024)
    a('s_lshr_b32 %s, %s, 1' % (T(1), sr(S_W)))
    a('s_lshl_b32 %s, %s, 12' % (sr(S_RO), T(1)))
    a('s_lshl_b32 %s, %s, 2' % (T(2), sr(S_TILE)))
    a('s_add_u32 %s, %s, %s' % (T(2), T(2), sr(S_SP)))
    a('s_lshl_b32 %s, %s, 2' % (T(2), T(2)))
    a('s_add_u32 %s, %s, %s' % (T(2), T(2), sr(S_W)))
    a('s_mul_i32 %s, %s, 9216' % (T(2), T(2)))
    a('s_add_u32 %s, %s, 0x%x' % (T(2), T(2), WS_P))
    tt += srd_ins(S_A3, P_WS, T(2), 9216)
    g.hi.extend(tt)
    g.lo.extend(Ins('v_mov_b32 v%d, -1' % r) for r in range(36, 40))
    g.lo.extend([Ins('v_mul_u32_u24 %s, 7282, %s' % (vr(V_RV), L)),
                 Ins('v_lshrrev_b32 %s, 16, %s' % (vr(V_RV), vr(V_RV))),
                 Ins('v_mul_u32_u24 %s, %d, %s' % (vr(V_RV), 36864 - 1152, vr(V_RV))),
                 Ins('v_lshl_add_u32 %s, %s, 7, %s' % (vr(V_RV), L, vr(V_RV))),
                 Ins('v_mov_b32 v251, 0x7f000000'),
                 Ins('v_cmp_gt_u32 vcc, 18, %s' % L),
                 Ins('v_cndmask_b32 %s, v251, %s, vcc' % (vr(V_RV), vr(V_RV))),
                 Ins('v_cmp_gt_u32 vcc, 32, %s' % L),
                 Ins('v_cndmask_b32 v250, v251, %s, vcc' % vr(V_FOFF))])
    att_slots(p, 25, 96, 128, False, g=g, cap=4)
    att_slots(p, 26, 0, 64, False, g=g, cap=3, dmav=False)
    g.flush()
    addall(dma_unit('V', 28, False))
    poll_check(p, 'h', S_FGR)

    def nowr(l):
        for x in l:
            x.wr = [r for r in x.wr if r[0] != 'v']
        return l

    def touch_w(c, srd=S_A1):
        return nowr([Ins('s_mov_b32 %s, %d' % (T(6), c * 36864)),
                     Ins('buffer_load_dword v248, %s, %s, %s offen sc0' % (vr(V_RV), sr(srd, 4), T(6)))])

    def touch_h(k):
        return nowr([Ins('s_add_u32 %s, %s, %d' % (T(6), sr(S_RO), k * 8192)),
                     Ins('buffer_load_dword v249, v250, %s, %s offen sc0' % (sr(S_A2, 4), T(6)))])
    TD = OPT.get('touch_d', 0)
    tl = []
    if TD:
        for k in range(5):
            tl += [touch_w(2 * k), touch_h(k)]
    else:
        tl = [[] for _ in range(10)]
    if OPT.get('tagged', 0):
        for k in range(9):
            tl[k] = tl[k] + [Ins('s_mov_b32 %s, %d' % (T(5), k * 1024)),
                             Ins('buffer_store_dwordx4 v[36:39], %s, %s, %s offen sc1' % (vr(V_L16), sr(S_A3, 4), T(5)), lds=('PT1', 0))]
    for u in (26, 27, 28, 29):
        for (ta, tb, on) in ((0, 32, 0), (32, 48, 1), (48, 64, 1), (64, 96, 0), (96, 112, 1), (112, 128, 1)):
            if (u == 26 and ta < 64) or (u == 29 and ta >= 64):
                continue
            if on and tl:
                g.hi.extend(tl.pop(0))
            att_slots(p, u, ta, tb, False, g=g if on else None, cap=4, dmak=(u + DK < 32))
            assert not g.hi
    assert not tl
    for k in range(4):
        p('s_mov_b32 %s, %s' % (sr(S_DWO + k), sr(S_A1 + k)))
    g.hi.extend(d_scalar_setup2())
    att_slots(p, 29, 64, 128, False, dmak=False, g=g, cap=4)
    g.flush()
    p.label('L_donly')
    att_slots(p, 30, 0, 2, False, dmak=False, dmav=False, g=g)
    g.vm_gap = 5
    g.hi.extend(d_dma(0) + d_dma(1))
    g.hi.append(sadd(S_FWG, 32768))
    g.hi.append(Ins('s_andn2_b32 %s, %s, 0x3ff' % (sr(S_FGR), sr(S_FWG))))
    g.hi.append(Ins('s_add_u32 %s, %s, 8192' % (sr(S_OFFW), sr(S_FGR))))
    g.hi.append(Ins('s_and_b32 %s, %s, 1' % (sr(S_ADJB), sr(S_SP))))
    g.hi.append(Ins('s_mul_i32 %s, %s, %d' % (sr(S_ADJW), sr(S_ADJB), -4 * 36864)))
    g.hi.append(Ins('s_mul_i32 %s, %s, %d' % (sr(S_ADJB), sr(S_ADJB), -4 * 4096)))
    g.lo.append(Ins('v_and_b32 %s, 0x380, %s' % (vr(V_FOFF), vr(V_FOFF))))
    att_slots(p, 30, 2, 97, False, dmak=False, dmav=False, g=g, cap=4, barrier=False)
    g.vm_gap = 4
    g.hi.extend(d_bloads(0))
    att_slots(p, 30, 97, 128, False, dmak=False, dmav=False, g=g, cap=4, barrier=False)
    att_slots(p, 31, 0, 2, False, qk=False, sm_next=False, dmak=False, dmav=False, g=g, vearly=True)
    g.vm_gap = 3
    g.hi.extend(d_bloads(1) + d_dma(2))
    o = []
    o.append(Ins('v_lshrrev_b32 %s, 2, %s' % (t0, L)))
    o.append(Ins('v_mul_u32_u24 %s, 288, %s' % (t1, t0)))
    o.append(Ins('v_and_b32 %s, 3, %s' % (t2, L)))
    o.append(Ins('v_lshl_add_u32 %s, %s, 3, %s' % (vr(V_DRA), t2, t1)))
    for k in range(1, 4):
        o.append(Ins('v_add_u32 %s, %d, %s' % (vr(V_DRA + k), DBASE[k], vr(V_DRA))))
    g.lo.extend(o)
    g.lo.append(Ins('v_mov_b32 %s, 0x%x' % (vr(V_RN), f2u(2.0 ** OPT.get('thr', 30)))))
    att_slots(p, 31, 2, 64, False, qk=False, sm_next=False, dmak=False, dmav=False, g=g, cap=4, barrier=False, vearly=True)
    g.flush()
    sm_plain(31, 60, 64)
    p('v_max3_f32 %s, %s, %s, %s' % (t0, vr(V_L), vr(V_L + 1), vr(V_L + 2)))
    p('v_add_f32 %s, %s, %s' % (t0, t0, vr(V_L + 3)))
    p('v_cmp_nlt_f32 vcc, %s, %s' % (t0, vr(V_RN)))
    p('s_cbranch_vccnz L_slow')
    p.label('L_slow_ret')
    SPIN_BLOCKS.append(gen_slow_softmax())
    ls = [vr(V_L + qb) for qb in range(4)]
    g.lo.extend(xlane4('v_add_f32', ls, [vr(V_T + k) for k in range(4)]))
    g.lo.extend(Ins('v_rcp_f32 %s, %s' % (x, x)) for x in ls)
    n0 = g.n
    n = 0
    for t in range(4):
        for qb in range(4):
            g.lo.extend(o_epilogue_unit(qb, t, n, n0 + 16 * (t + 1) + 3))
            n += 1
    p.wait_regs(ar(A_VF, 8))
    kw = dict(qk=False, sm_cur=False, sm_next=False, vnext=False, dmak=False, dmav=False, g=g, barrier=False)
    att_slots(p, 32, 0, 33, False, **kw)
    g.hi.extend(d_bloads(2))
    att_slots(p, 32, 33, 46, False, **kw)
    p.need(('lgkm', 'all'), (DS(0), ('D', 0)))
    p('s_barrier')
    g.st.extend(d_reads(0, 0) + d_reads(0, 1))
    att_slots(p, 32, 46, 64, False, **kw)
    while g.st and g.st[0].kind == 'dsr':
        g.emit(g.st.popleft())
    assert not any(x.kind == 'dsr' for x in g.st)
    stamp(7)
    p.wait_regs(ar(A_DB, 32), vr(V_DA, 16))
    stamp(8)
    G2, GG = V_AC2, V_AC2 + 48
    xreg = lambda k, rb: 44 + (k * 2 + rb) * 2
    VO = V_T + 5

    def fin_setup():
        o = []
        o.append(Ins('v_and_b32 %s, 0x180, %s' % (vr(V_FOFF), vr(V_FOFF))))
        o.append(Ins('s_andn2_b32 %s, %s, 0x1ff' % (sr(S_FGR), sr(S_FT))))
        o.append(Ins('v_and_b32 %s, 15, %s' % (t0, L)))
        o.append(Ins('v_mul_u32_u24 %s, 1152, %s' % (t0, t0)))
        o.append(Ins('v_lshrrev_b32 %s, 4, %s' % (t1, L)))
        o.append(Ins('v_lshl_add_u32 %s, %s, 3, %s' % (vr(VO), t1, t0)))
        for k in range(3):
            for rb in range(2):
                o.append(Ins('buffer_load_dwordx2 %s, %s, %s, %s offen offset:%d' % (
                    vr(xreg(k, rb), 2), vr(VO), sr(S_DX, 4), sr(S_HS + 4 + rb + (2 if k == 2 else 0)), 128 * k)))
        return o

    def silu_g():
        o = []
        for k in range(3):
            d = GG + 8 * k
            o += d_sum(G2, k, d, V_T)
            for e in range(0, 8, 2):
                ta, tb = vr(V_T), vr(V_T + 1)
                o.append(Ins('v_mul_f32 %s, %s, %s' % (ta, sr(S_NL), vr(d + e))))
                o.append(Ins('v_mul_f32 %s, %s, %s' % (tb, sr(S_NL), vr(d + e + 1))))
                o.append(Ins('v_exp_f32 %s, %s' % (ta, ta)))
                o.append(Ins('v_exp_f32 %s, %s' % (tb, tb)))
                if OPT.get('fold', 0):
                    o.append(Ins('v_fma_f32 %s, %s, %s, %s' % (ta, ta, sr(S_C), sr(S_C))))
                    o.append(Ins('v_fma_f32 %s, %s, %s, %s' % (tb, tb, sr(S_C), sr(S_C))))
                else:
                    o.append(Ins('v_add_f32 %s, 1.0, %s' % (ta, ta)))
                    o.append(Ins('v_add_f32 %s, 1.0, %s' % (tb, tb)))
                o.append(Ins('v_rcp_f32 %s, %s' % (ta, ta)))
                o.append(Ins('v_rcp_f32 %s, %s' % (tb, tb)))
                o.append(Ins('v_mul_f32 %s, %s, %s' % (vr(d + e), vr(d + e), ta)))
                o.append(Ins('v_mul_f32 %s, %s, %s' % (vr(d + e + 1), vr(d + e + 1), tb)))
        return o

    g.vm_gap = 1
    SO = OPT.get('o_done', 2)
    LAST = NPOS - 1
    for c in range(NPOS):
        acc0 = V_AC2 if c < 9 else V_AC1
        first = c in (0, 9)
        if c == 9:
            stamp(14)
        if c in (SK0, SK1):
            g.flush()
        if c == SK0:
            p('s_bitcmp1_b32 %s, 0' % sr(S_SP))
            p('s_cbranch_scc1 L_dskip')
            p.loop_begin(1, 'opt')
        if c == SK1:
            p.loop_end()
            p.label('L_dskip')
        if OPT.get('dst'):
            p('s_memrealtime %s' % sr(S_DG, 2))
            p('s_waitcnt lgkmcnt(0)')
            p('v_writelane_b32 v1, %s, %d' % (sr(S_DG), 32 + c))
        extra_need = []
        post = []
        cap = 2
        if c <= SO:
            cap = OPT.get('cap_o', 4)
        if c == SO + 1:
            assert not g.lo and not g.st, len(g.lo)
            extra_need = [('O', 0)]
            post = [flag_store(S_FWG, 'O')]
            g.st_max = 1
            fs = fin_setup()
            g.lo.extend(fs[2:-6])
        if c == 6:
            g.hi.extend(fs[-6:])
        if TD and c in (2, 3, 4, 5, 6):
            g.hi.extend(touch_w(10 + 2 * (c - 2), S_DWO))
        if c == 6:
            g.st.append(poll_issue(S_FGR))
        if c == 7:
            poll_check(p, 'o', S_FGR)
            g.hi.extend(d_bloads(9, c))
            cap = 3
        if c == SK1 - 2:
            g.st.append(poll_issue(S_OFFW))
        if c == SK1 - 1:
            poll_check(p, 'o2', S_OFFW)
        if c <= 8:
            g.hi.extend((d_bloads(c + 3, c) if c != 6 else []) + d_dma(c + 3, c))
        elif 10 <= c <= LAST - 2:
            g.hi.extend(d_dma(c + 2, c) + d_bloads(c + 2, c))
        if c in (9, 10):
            for nb in (range(6) if c == 9 else range(6, 9)):
                g.lo.extend(d_pstore(1, nb))
            cap = 3
        if c == 11:
            assert not g.lo and not g.st
            extra_need = [('PT1', 0)]
            post = [flag_store(S_FT, 'PT1')]
            g.lo.extend(fs[:2])
            cap = 3
        if c == LAST - 2:
            g.st.append(poll_issue(S_FGR))
        if c == LAST - 1:
            poll_check(p, 'p2', S_FGR)
            g.hi.extend([sadd(S_FGR, 32768), sadd(S_FT, 32768)])
            g.hi.extend(d_ploads(1, G2))
        nv = sum(1 for x in g.hi if cost(x) == 2)
        if OPT.get('verbose_d'):
            print('D pos', c, 'queued vmem', nv, file=sys.stderr)
        g.vm_gap = OPT.get('vgd', 4) if c > SO else OPT.get('vgd2', 3)
        g.st_w = OPT.get('stw', 1)
        if c in (10, 11, SK1 - 1):
            g.vm_gap = 3
            cap = 3
        if c == LAST:
            g.vm_gap = 1
        for nb in range(9):
            n2 = nb + 2
            Lr = d_reads(c, n2) if n2 < 9 else (d_reads(c + 1, n2 - 9, c) if c < LAST else [])
            if c == LAST and nb >= 2:
                g.hi.extend(d_pstore(0, nb - 2))
            for t in range(8):
                rb, ks = t // 4, t % 4
                a = vr(acc0 + (nb * 2 + rb) * 4, 4)
                m = '%s %s, %s, %s, %s' % (MF, a, vr(V_DA + (nb % 3) * 16 + ks * 4, 4),
                                           ar(A_DB + (c % 4) * 32 + (rb * 4 + ks) * 4, 4),
                                           '0' if (first and ks == 0) else a)
                sc, ld = [], []
                if nb == 7:
                    if Lr and t >= 4:
                        ld = [Lr[2 * (t - 4)], Lr[2 * (t - 4) + 1]]
                    if t == 2 and c < LAST:
                        assert not any(y.kind == 'dma' and y.lds[0] == DS(c + 1) for y in g.hi), c
                        sc = [need_ins(('lgkm', 'all'), (DS(c + 1), dtag(c + 1, c)), *extra_need)]
                    if t == 3 and c < LAST:
                        sc = [Ins('s_barrier')]
                elif Lr:
                    ld = [Lr[t], Lr[t + 1]] if t % 2 == 0 else []
                if t == 7:
                    w = [vr(V_DA + ((nb + 1) % 3) * 16, 16)]
                    if nb == 8:
                        w.append(ar(A_DB + ((c + 1) % 4) * 32, 32))
                    sc = [wait_ins(*w)]
                g.gap(m, sc, ld, cap=cap)
                if nb == 7 and t == 3:
                    g.st.extend(post)
    stamp(9)
    g.hi.extend(d_pstore(0, 7) + d_pstore(0, 8))
    g.flush()
    stamp(10)
    sg = silu_g()
    if OPT.get('tagged', 0):
        addall(sg)
        stamp(11)

        def chk():
            o = [Ins('v_max3_u32 %s, %s, %s, %s' % (t0, vr(G2), vr(G2 + 1), vr(G2 + 2))),
                 Ins('v_max3_u32 %s, %s, %s, %s' % (t1, vr(G2 + 3), vr(G2 + 4), vr(G2 + 5)))]
            for k in range(6, 48, 2):
                tt_ = t0 if (k // 2) % 2 else t1
                o.append(Ins('v_max3_u32 %s, %s, %s, %s' % (tt_, tt_, vr(G2 + k), vr(G2 + k + 1))))
            o.append(Ins('v_max_u32 %s, %s, %s' % (t0, t0, t1)))
            o.append(Ins('v_cmp_eq_u32 vcc, -1, %s' % t0))
            return o
        addall(d_ploads(0, G2) + chk())
        p('s_cbranch_vccnz L_retry')
        p.label('L_retry_ok')
        SPIN_BLOCKS.append('L_retry:\n s_mov_b32 s3, 0\nL_retry_l:\n s_sleep 2\n' +
                           '\n'.join(' ' + x.text for x in d_ploads(0, G2)) +
                           '\n s_waitcnt vmcnt(0)\n s_add_u32 s3, s3, 1\n s_cmp_gt_u32 s3, 0x20000\n s_cbranch_scc1 L_retry_ok\n' +
                           '\n'.join(' ' + x.text for x in chk()) +
                           '\n s_cbranch_vccnz L_retry_l\n s_branch L_retry_ok')
        stamp(12)
    else:
        addall(sg[:len(sg) // 2])
        p.need(('PT0', 0))
        p('s_barrier')
        stamp(11)
        p.add(flag_store(S_FT, 'PT0'))
        p.add(poll_issue(S_FGR))
        addall(sg[len(sg) // 2:])
        poll_check(p, 'p1', S_FGR)
        stamp(12)
        addall(d_ploads(0, G2))
    for k in range(3):
        d = V_AC1 + 16 * k
        addall(d_sum(G2, k, d, V_T))
        for rb in range(2):
            xb = xreg(k, rb)
            for e in range(4):
                tx = vr(d + 8 + e)
                if e % 2 == 0:
                    p('v_lshlrev_b32 %s, 16, %s' % (tx, vr(xb + e // 2)))
                else:
                    p('v_and_b32 %s, 0xffff0000, %s' % (tx, vr(xb + e // 2)))
                p('v_fma_f32 %s, %s, %s, %s' % (tx, vr(d + rb * 4 + e), vr(GG + 8 * k + rb * 4 + e), tx))
            o = d + 12 + 2 * rb
            p('v_cvt_pk_bf16_f32 %s, %s, %s' % (vr(o), vr(d + 8), vr(d + 9)))
            p('v_cvt_pk_bf16_f32 %s, %s, %s' % (vr(o + 1), vr(d + 10), vr(d + 11)))
            p('buffer_store_dwordx2 %s, %s, %s, %s offen offset:%d' % (
                vr(o, 2), vr(VO), sr(S_DOUT, 4), sr(S_HS + 4 + rb + (2 if k == 2 else 0)), 128 * k))
    if diag:
        p('s_waitcnt vmcnt(0)')
        stamp(13)
        p('s_mov_b32 %s, 0x%x' % (T(3), WS_T))
        make_srd(p, S_K, P_WS, T(3), 0x100000)
        p('s_lshl_b32 %s, s2, 2' % T(0))
        p('s_add_u32 %s, %s, %s' % (T(0), T(0), sr(S_W)))
        p('s_lshl_b32 %s, %s, 8' % (T(0), T(0)))
        p('v_lshlrev_b32 v4, 2, %s' % L)
        p('buffer_store_dword v1, v4, %s, %s offen' % (sr(S_K, 4), T(0)))
    p.label('L_end')
    p('s_endpgm')
    for t in SPIN_BLOCKS:
        p.raw(t)
    p.raw('L_code_end:')
    for x in p.flat():
        if OPT.get('kv_nt', 1) and x.kind == 'dma' and ('s[4:7]' in x.text or 's[8:11]' in x.text):
            x.text = x.text.replace(' lds', ' nt lds')
        if OPT.get('w_nt') and x.kind == 'dma' and x.lds and not callable(x.lds[1]) and x.lds[1][0] in 'WQ':
            x.text = x.text.replace(' lds', ' nt lds')
        if OPT.get('st01') and x.kind == 'vst' and 'x4' in x.text:
            x.text = x.text.replace(' sc1', ' sc0 sc1')
        if OPT.get('nost') and x.kind == 'vst' and 'x4' in x.text and x.lds and (x.lds[0] == 'O' or (OPT['nost'] > 1 and x.lds[0] == 'PT1')):
            x.text = 's_nop 0'
            x.kind = 'sopp'; x.op = 's_nop'; x.ops = ['0']; x.rd = []; x.lds = None
        if FU and x.kind == 'vld' and sr(S_XN, 4) in x.text and 'sc1' not in x.text:
            x.text += ' sc1'
        if OPT.get('dplain') and x.kind in ('dma', 'vld') and 'x4' in x.text:
            x.text = x.text.replace(' sc1', '')
    p.finalize(verbose=bool(OPT.get('verbose')), check=not (OPT.get('drop') or OPT.get('nost')))
    print('total overflow slots', g.over, p.stats(), file=sys.stderr)
    return p


def build(diag=False):
    hdr = open('cdna_kernels/%s.s.ref' % NAME).read().split('; Override launch')[0]
    out = hdr
    if OPT.get('fuse', 2):
        km = gen_main(diag)
        kn = NAME + '_kernel'
        if OPT.get('aslist', 1):
            out += '; @launch kernel=%s grid=(256,1,1) block=(256,1,1) lds=163840\n' % kn
        else:
            out += '; @launch grid=(256,1,1) block=(256,1,1) lds=163840\n'
        out += '.amdgcn_target "amdgcn-amd-amdhsa--gfx950"\n.text\n'
        out += kernel_text(kn, km, 0, 0)
        out += '.section .rodata,"a"\n.p2align 6\n' + descriptor(kn, 512, 256)
        return out
    ln, km = gen_ln(), gen_main(diag)
    if not OPT.get('donly'):
        out += '; @launch kernel=ln_kernel grid=(256,1,1) block=(256,1,1) lds=0\n'
    out += '; @launch kernel=main_kernel grid=(256,1,1) block=(256,1,1) lds=163840\n'
    out += '.amdgcn_target "amdgcn-amd-amdhsa--gfx950"\n.text\n'
    out += kernel_text('ln_kernel', ln, 0, 0) + kernel_text('main_kernel', km, 0, 0)
    out += '.section .rodata,"a"\n'
    for n, nv, acc in (('ln_kernel', 64, 64), ('main_kernel', 512, 256)):
        out += '.p2align 6\n' + descriptor(n, nv, acc)
    return out


if __name__ == '__main__':
    diag = 'diag' in sys.argv[2:]
    for a in sys.argv[2:]:
        if '=' in a:
            k, v = a.split('=')
            OPT[k] = int(v)
    open(sys.argv[1], 'w').write(build(diag))
```

```python
import sys, struct
from collections import deque
from dsl import *

OPT = {}
NAME = 'recurrent_scan__mha_block_cached__glu_gated_swiglu__prompt'
WS_XN = 0
WS_F = 3 << 20
WS_O = 4 << 20
WS_H = 24 << 20
WS_P = 48 << 20
PG = 64 * 16 * 9216
WS_W = 96 << 20
WBLK = 2432 * 288
WS_T = 128 << 20
MF = 'v_mfma_f32_16x16x32_bf16'
LOG2E = 1.4426950408889634


def HS():
    return 144 * 1024 + OPT.get('pad', 1280)


def OS():
    return 128 * 1024 + OPT.get('pad', 1280)


def f2u(x):
    return struct.unpack('<I', struct.pack('<f', x))[0]


def srd_ins(srd, ptr, off, size):
    o = []
    if off is None:
        o.append(Ins('s_mov_b32 %s, %s' % (sr(srd), sr(ptr))))
        o.append(Ins('s_mov_b32 %s, %s' % (sr(srd + 1), sr(ptr + 1))))
    else:
        o.append(Ins('s_add_u32 %s, %s, %s' % (sr(srd), sr(ptr), off)))
        o.append(Ins('s_addc_u32 %s, %s, 0' % (sr(srd + 1), sr(ptr + 1))))
    o.append(Ins('s_mov_b32 %s, %s' % (sr(srd + 2), size if isinstance(size, str) else '0x%x' % size)))
    o.append(Ins('s_mov_b32 %s, 0x00020000' % sr(srd + 3)))
    return o


def make_srd(p, srd, ptr, off, size):
    for x in srd_ins(srd, ptr, off, size):
        p.add(x)


def cost(ins):
    if ins.kind == 'valu':
        return 2 if ins.trans else 1
    if ins.kind in ('dsr', 'dsw'):
        return 1
    if ins.kind in ('dma', 'vld', 'vst'):
        return 2
    return 0


class Gaps:
    def __init__(self, p):
        self.p = p
        self.hi = deque()
        self.lo = deque()
        self.n = 0
        self.over = 0
        self.waste = 0
        self.drop = ()
        self.vm_next = 0
        self.st = deque()
        self.st_max = 2
        self.st_w = 3
        self.vm_gap = 1

    def emit(self, x):
        if self.drop and x.kind in self.drop:
            return
        self.p.add(x)
        if x.on_emit:
            x.on_emit()

    def gap(self, mfma, sc=(), ld=(), va=(), cap=2):
        if mfma is not None:
            self.p.add(mfma if isinstance(mfma, Ins) else Ins(mfma))
        sc, ld, va = list(sc), list(ld), list(va)
        used = sum(cost(x) for x in ld + va)
        for q in (self.st, self.hi, self.lo):
            pulled = False
            pva = False
            while q:
                x = q[0]
                if x.ready > self.n:
                    break
                c = cost(x)
                if q is self.lo and x.kind == 'vst' and len(self.st) < self.st_max:
                    x.ready = self.n + 1
                    self.st.append(q.popleft())
                    continue
                if c == 0:
                    if sc or pulled:
                        break
                    sc.append(q.popleft())
                    if 'm0' in x.wr:
                        break
                    continue
                if used + c > cap:
                    break
                if x.kind != 'valu':
                    if pva:
                        break
                    if c == 2:
                        if self.n < self.vm_next:
                            break
                        w = (self.st_w if 'x4' in x.text else 1) if x.kind == 'vst' else (4 if 'buffer_load_dword ' in x.text and 'sc' not in x.text else 1)
                        self.vm_next = self.n + self.vm_gap * w
                    ld.append(q.popleft())
                else:
                    va.append(q.popleft())
                    pva = True
                used += c
                pulled = True
        for x in sc + ([Ins(mfma)] if isinstance(mfma, str) else []):
            self.check(x)
        self.over += max(0, used - 2)
        if used < 2 and (self.hi or self.lo):
            self.waste += 2 - used
        for x in sc + ld + va:
            self.emit(x)
        self.n += 1

    def check(self, x):
        regs = set(x.rd) if (x.text.startswith('; need') or x.kind == 'mfma') else set()
        tags = [t for t in (x.need or []) if not callable(t[1])]
        for q in (self.st, self.hi, self.lo):
            for y in q:
                if y.kind in ('vld', 'dsr') and set(y.wr) & regs and not getattr(y, 'later', False):
                    raise AssertionError('consumer %s before queued load %s' % (x.text, y.text))
                if y.lds is not None and y.lds in tags:
                    raise AssertionError('need %s before queued %s' % (tags, y.text))

    def flush(self, q=None):
        for qq in ((self.st, self.hi, self.lo) if q is None else (q,)):
            while qq:
                x = qq.popleft()
                self.over += max(1, cost(x))
                self.emit(x)


def rg(t, n=4):
    return (vr if t[0] == 'v' else ar)(t[1], n)


def prefetch_w(p, ptr, srd, soff, rows, stride, lines, rounds, vt, vd):
    t = lambda k: vr(vt + k)
    make_srd(p, srd, ptr, soff, (rows - 1) * stride + lines * 128)
    return t


def gen_ln():
    p = Prog()
    p('s_cmp_ge_u32 s2, 256')
    p('s_cbranch_scc1 L_ln_end')
    p('s_load_dwordx2 s[12:13], s[0:1], 0')
    p('s_load_dwordx2 s[14:15], s[0:1], 88')
    p('s_load_dwordx4 s[32:35], s[0:1], 48')
    p('v_lshrrev_b32 v1, 5, v0')
    p('s_lshl_b32 s3, s2, 3')
    p('v_add_u32 v1, s3, v1')
    p('v_and_b32 v2, 31, v0')
    p('v_lshrrev_b32 v3, 2, v2')
    p('v_and_b32 v4, 3, v2')
    p('v_mul_u32_u24 v5, 1152, v1')
    p('v_lshl_add_u32 v5, v3, 6, v5')
    p('v_lshl_add_u32 v5, v4, 3, v5')
    p('v_cmp_gt_u32 vcc, 8, v2')
    p('s_mov_b64 s[16:17], vcc')
    for r in range(16, 20):
        p('v_mov_b32 v%d, 0' % r)
    p('s_waitcnt lgkmcnt(0)')
    make_srd(p, 4, 12, None, 2048 * 1152)
    for it in range(2):
        p('buffer_load_dwordx2 v[%d:%d], v5, s[4:7], 0 offen offset:%d' % (8 + 4 * it, 9 + 4 * it, it * 512))
        p('buffer_load_dwordx2 v[%d:%d], v5, s[4:7], 0 offen offset:%d' % (10 + 4 * it, 11 + 4 * it, it * 512 + 32))
    p('s_mov_b64 exec, s[16:17]')
    p('buffer_load_dwordx2 v[16:17], v5, s[4:7], 0 offen offset:1024')
    p('buffer_load_dwordx2 v[18:19], v5, s[4:7], 0 offen offset:1056')
    p('s_mov_b64 exec, -1')
    R0 = OPT.get('pf0', 8)
    if R0:
        p('s_lshr_b32 s20, s2, 3')
        p('s_mul_i32 s20, s20, %d' % (R0 * 9216))
        p('s_and_b32 s21, s2, 3')
        p('s_mul_i32 s21, s21, 2304')
        p('s_add_u32 s20, s20, s21')
        make_srd(p, 36, 32, 's20', (R0 - 1) * 9216 + 2304)
        make_srd(p, 40, 34, 's20', (R0 - 1) * 9216 + 2304)
        p('v_mul_u32_u24 v56, 3641, v0')
        p('v_lshrrev_b32 v56, 16, v56')
        p('v_mul_u32_u24 v57, 18, v56')
        p('v_sub_u32 v57, v0, v57')
        p('v_mul_u32_u24 v56, 9216, v56')
        p('v_lshl_add_u32 v56, v57, 7, v56')
        if OPT.get('pfh', 1):
            p('s_bitcmp1_b32 s2, 2')
            p('s_cselect_b32 s36, s40, s36')
            p('s_cselect_b32 s37, s41, s37')
            p('buffer_load_dword v58, v56, s[36:39], 0 offen')
        else:
            p('buffer_load_dword v58, v56, s[36:39], 0 offen')
            p('buffer_load_dword v59, v56, s[40:43], 0 offen')
    if OPT.get('pfc', 1):
        p('s_getpc_b64 s[44:45]')
        p.label('L_pc')
        p('s_add_u32 s44, s44, main_kernel-L_pc')
        p('s_addc_u32 s45, s45, 0')
        p('s_lshr_b32 s46, s2, 3')
        p('s_lshl_b32 s46, s46, 12')
        p('v_and_b32 v60, 31, v0')
        p('v_lshlrev_b32 v60, 7, v60')
        p('v_add_u32 v60, s46, v60')
        p('v_min_u32 v60, L_code_end-main_kernel-4, v60')
        p('global_load_dword v61, v60, s[44:45]')
    make_srd(p, 8, 14, None, 2048 * 1152)
    p('v_lshrrev_b32 v6, 4, v1')
    p('v_mul_u32_u24 v6, 18, v6')
    p('v_add_u32 v6, v6, v3')
    p('v_lshlrev_b32 v6, 10, v6')
    p('v_lshl_add_u32 v6, v4, 8, v6')
    p('v_and_b32 v7, 15, v1')
    p('v_lshl_add_u32 v6, v7, 4, v6')
    p('s_mov_b32 s20, 0x%x' % WS_F)
    make_srd(p, 24, 14, 's20', 4 * 32768)
    p('s_lshl_b32 s21, s2, 7')
    p('v_lshlrev_b32 v50, 15, v0')
    p('v_mov_b32 v52, 0')
    p('buffer_store_dword v52, v50, s[24:27], s21 offen')
    for d in range(12):
        p('v_lshlrev_b32 v%d, 16, v%d' % (20 + 2 * d, 8 + d))
        p('v_and_b32 v%d, 0xffff0000, v%d' % (21 + 2 * d, 8 + d))

    def reduce32(x, t):
        for k in (8, 4, 2, 1):
            p('v_add_f32_dpp %s, %s, %s row_ror:%d row_mask:0xf bank_mask:0xf' % (x, x, x, k))
        p('v_mov_b32 %s, %s' % (t, x))
        p('v_permlane16_swap_b32 %s, %s' % (x, t))
        p('v_add_f32 %s, %s, %s' % (x, x, t))
    p('v_add_f32 v44, v20, v21')
    p('v_add_f32 v45, v22, v23')
    for e in range(4, 24, 2):
        p('v_add_f32 v44, v44, v%d' % (20 + e))
        p('v_add_f32 v45, v45, v%d' % (21 + e))
    p('v_add_f32 v44, v44, v45')
    reduce32('v44', 'v45')
    p('v_mul_f32 v44, 0x%x, v44' % f2u(1.0 / 576))
    p('v_mov_b32 v46, 0')
    p('v_mov_b32 v47, 0')
    for e in range(16):
        p('v_sub_f32 v48, v%d, v44' % (20 + e))
        p('v_fmac_f32 v%d, v48, v48' % (46 + e % 2))
    p('s_mov_b64 exec, s[16:17]')
    for e in range(16, 24):
        p('v_sub_f32 v48, v%d, v44' % (20 + e))
        p('v_fmac_f32 v%d, v48, v48' % (46 + e % 2))
    p('s_mov_b64 exec, -1')
    p('v_add_f32 v46, v46, v47')
    reduce32('v46', 'v45')
    p('v_mul_f32 v46, 0x%x, v46' % f2u(1.0 / 576))

    def rnd(x):
        p('v_cvt_pk_bf16_f32 %s, %s, %s' % (x, x, x))
        p('v_lshlrev_b32 %s, 16, %s' % (x, x))
    rnd('v44')
    rnd('v46')
    p('v_add_f32 v46, 0x%x, v46' % f2u(1e-5))
    rnd('v46')
    p('v_sqrt_f32 v46, v46')
    rnd('v46')
    p('v_rcp_f32 v46, v46')
    if OPT.get('fold', 0):
        p('v_mul_f32 v46, 0x%x, v46' % f2u(-LOG2E))
    for d in range(12):
        a, b = 20 + 2 * d, 21 + 2 * d
        p('v_sub_f32 v%d, v%d, v44' % (a, a))
        p('v_sub_f32 v%d, v%d, v44' % (b, b))
        p('v_cvt_pk_bf16_f32 v%d, v%d, v%d' % (8 + d, a, b))
        p('v_lshlrev_b32 v%d, 16, v%d' % (a, 8 + d))
        p('v_and_b32 v%d, 0xffff0000, v%d' % (b, 8 + d))
        p('v_mul_f32 v%d, v%d, v46' % (a, a))
        p('v_mul_f32 v%d, v%d, v46' % (b, b))
        p('v_cvt_pk_bf16_f32 v%d, v%d, v%d' % (8 + d, a, b))
    p('s_mov_b32 s18, 8192')
    p('s_mov_b32 s19, 16384')
    p('buffer_store_dwordx4 v[8:11], v6, s[8:11], 0 offen')
    p('buffer_store_dwordx4 v[12:15], v6, s[8:11], s18 offen')
    p('s_mov_b64 exec, s[16:17]')
    p('buffer_store_dwordx4 v[16:19], v6, s[8:11], s19 offen')
    p.label('L_ln_end')
    p('s_endpgm')
    p.finalize()
    return p


S_K, S_V, S_XN, S_WS, S_WQ, S_H, S_O, S_FL, S_A1, S_A2, S_A3, S_A4 = 4, 8, 12, 16, 20, 24, 28, 32, 36, 40, 44, 48
S_DW2, S_DWO, S_DH, S_DO, S_DP, S_DR, S_DX, S_DOUT = 12, 16, 20, 24, 36, 40, 44, 48
(S_W, S_MK, S_EP, S_OFFK, S_OFFV, S_CNT, S_HD, S_QT, S_M1, S_OFFW, S_OFFQ, S_C, S_NL, S_FWG, S_FGR, S_FT,
 S_RO, S_SP, S_TILE) = range(52, 71)
S_HS = 71
S_T0 = 79
S_DG = 90
P_X, P_WO, P_W2, P_OUT, P_WS = 92, 94, 96, 98, 100
T = lambda k: sr(S_T0 + k)

V_L16, V_LANE = 2, 3
V_A1 = 4
V_OW = 8
V_AQ = 8
V_OQ = 20
V_OK, V_OV = 22, 26
V_SW = 28
V_T = 34
V_KA, V_VA, V_L, V_E = 4, 8, 16, 28
V_NM, V_S, V_P, V_Q = 40, 56, 120, 184
V_FST, V_ONE, V_FOFF, V_FV = 252, 253, 254, 255
A_O, A_KF, A_VF = 0, 128, 192
A_A, A_B = 128, 160
X0 = 72
DK, DV = 4, 2
L = vr(V_LANE)
t0, t1, t2, t3 = (vr(V_T + i) for i in range(4))


def LS(n):
    return (n * 16384, 16384)


def VP(u):
    return (u + 3) % 4


DBASE = [0, 126976, 36864, 73728]


def DS(c):
    return (DBASE[c % 4], 36864)


def PS(c):
    return ((c % 4) * 36864, 36864)


def Sreg(kb, qb):
    return V_S + (kb * 4 + qb) * 4


def Preg(u, qb, ks):
    return V_P + (u & 1) * 32 + qb * 8 + ks * 4


def ktag(u, inloop):
    return (lambda it: ('K', u + 4 * it)) if inloop else ('K', u)


def vtag(u, inloop):
    return (lambda it: ('V', u + 4 * it)) if inloop else ('V', u)


def k_load(u, kb, s, inloop):
    return Ins('ds_read_b128 %s, %s offset:%d' % (ar(A_KF + kb * 16 + s * 4, 4), vr(V_KA + s), (u % 4) * 16384 + kb * 4096),
               lds=(LS(u % 4), ktag(u, inloop)))


def v_load(u, db, ks, j, inloop):
    return Ins('ds_read_b64_tr_b16 %s, %s offset:%d' % (
        ar(A_VF + db * 8 + ks * 4 + 2 * j, 2), vr(V_VA + db), VP(u) * 16384 + (32 * ks + 16 * j) * 256),
        lds=(LS(4 + VP(u)), vtag(u, inloop)))


def dma_unit(kind, u, inloop):
    out = []
    if kind == 'K':
        out.append(Ins('s_add_u32 m0, %s, %d' % (sr(S_MK), (u % 4) * 16384)))
        for cc in range(4):
            out.append(Ins('buffer_load_dwordx4 %s, %s, %s offen offset:%d lds' % (
                vr(V_OK + cc), sr(S_K, 4), sr(S_OFFK), cc * 1024), lds=(LS(u % 4), ktag(u, inloop))))
        out.append(Ins('s_add_u32 %s, %s, 16384' % (sr(S_OFFK), sr(S_OFFK))))
    else:
        out.append(Ins('s_add_u32 m0, %s, %d' % (sr(S_MK), 65536 + VP(u) * 16384)))
        for cc in range(4):
            out.append(Ins('buffer_load_dwordx4 %s, %s, %s offen offset:%d lds' % (
                vr(V_OV + cc % 2), sr(S_V, 4), sr(S_OFFV), cc * 1024), lds=(LS(4 + VP(u)), vtag(u, inloop))))
        out.append(Ins('s_add_u32 %s, %s, 16384' % (sr(S_OFFV), sr(S_OFFV))))
    return out


def sm_instrs(uu, i):
    n, r = i // 4, i % 4
    kb, qb = n // 4, n % 4
    e = vr(V_E + i % 4)
    ex = Ins('v_exp_f32 %s, %s' % (e, vr(Sreg(kb, qb) + r)))
    ad = Ins('v_add_f32 %s, %s, %s' % (vr(V_L + qb), vr(V_L + qb), e))
    cv = None
    if r % 2 == 1:
        cv = Ins('v_cvt_pk_bf16_f32 %s, %s, %s' % (
            vr(Preg(uu, qb, kb // 2) + (kb % 2) * 2 + r // 2), vr(V_E + (i - 1) % 4), e))
    return ex, ad, cv


def att_slots(p, u, ta, tb, inloop, pv=True, qk=True, sm_cur=True, sm_next=True, vnext=True, dmak=True, dmav=True,
              barrier=True, g=None, cap=2, vearly=False, extra_need=()):
    T0 = -40
    R = range(-128, 256)
    sc = {t: [] for t in R}
    ld = {t: [] for t in R}
    va = {t: [] for t in R}
    for t in range(0, 128, 2):
        if t >= X0:
            uu, i, on = u + 1, (t - X0) // 2, sm_next
        else:
            uu, i, on = u, (t + 128 - X0) // 2, sm_cur
        if on:
            ex, ad, cv = sm_instrs(uu, i)
            va[t].append(ex)
            va[t + 1].append(ad)
            if cv is not None:
                va[t + 1].append(cv)
    pos = [t for t in range(T0, T0 + 128) if t % 8 in (1, 4, 5)]
    n = 0
    m = 0
    for db in range(8):
        for ks in range(2):
            for j in range(2):
                t = pos[n]
                n += 1
                if t >= 0:
                    if pv:
                        ld[t].append(v_load(u - 1, db, ks, j, inloop))
                elif vnext:
                    if vearly:
                        ld[46 + m].append(v_load(u, db, ks, j, inloop))
                        m += 1
                    else:
                        ld[t + 128].append(v_load(u, db, ks, j, inloop))
        t = 8 * db - 1
        sc[t if t >= 0 else t + 128].append(wait_ins(ar(A_VF + db * 8, 8)))
    for kb in range(4):
        for s in range(4):
            t = pos[n]
            n += 1
            if qk:
                ld[t].append(k_load(u + 1, kb, s, inloop))
        if qk:
            sc[64 + 16 * kb - 1].append(wait_ins(ar(A_KF + kb * 16, 16)))
    for on, kind, uu, tt in ((dmav, 'V', u + DV, 2), (dmak, 'K', u + DK, 66)):
        if on:
            lst = dma_unit(kind, uu, inloop)
            sc[tt].append(lst[0])
            ds = OPT.get('dstep', 8)
            for k in range(4):
                ld[tt + ds * k + (4 if k == 0 else 0)].append(lst[1 + k])
            sc[tt + ds * 3 + 1].append(lst[5])
    if barrier:
        nd = [(LS(4 + VP(u)), vtag(u, inloop))] + list(extra_need)
        if qk:
            nd.append((LS((u + 1) % 4), ktag(u + 1, inloop)))
        sc[0].append(need_ins(*nd))
        sc[1].append(Ins('s_barrier'))
    g = g or Gaps(p)
    for t in range(ta, tb):
        mf = None
        if t < 64:
            if pv:
                db, qb, ks = t // 8, (t % 8) // 2, t % 2
                o = ar(A_O + (db * 4 + qb) * 4, 4)
                mf = '%s %s, %s, %s, %s' % (MF, o, ar(A_VF + db * 8 + ks * 4, 4), vr(Preg(u - 1, qb, ks), 4), o)
        elif qk:
            tt = t - 64
            kb, qb, s = tt // 16, (tt % 16) // 4, tt % 4
            d = vr(Sreg(kb, qb), 4)
            c = vr(V_NM + qb * 4, 4) if s == 0 else d
            mf = '%s %s, %s, %s, %s' % (MF, d, ar(A_KF + kb * 16 + s * 4, 4), vr(V_Q + (qb * 4 + s) * 4, 4), c)
        assert len(sc[t]) <= 1 and len(ld[t]) <= 1
        if mf is None and not (sc[t] or ld[t] or va[t]):
            continue
        g.gap(mf, sc[t], ld[t], va[t], cap=cap)


def kv_dma_setup():
    o = []
    a = lambda s: o.append(Ins(s))
    a('v_and_b32 %s, 15, %s' % (t0, L))
    a('v_lshrrev_b32 %s, 4, %s' % (t1, L))
    a('v_lshlrev_b32 %s, 8, %s' % (t2, t1))
    a('v_add_u32 %s, %s, %s' % (t2, sr(S_MK), t2))
    a('v_xor_b32 %s, %s, %s' % (t3, t0, t1))
    a('v_lshl_add_u32 %s, %s, 4, %s' % (vr(V_OK), t3, t2))
    for c in range(1, 4):
        a('v_xor_b32 %s, %d, %s' % (vr(V_OK + c), c * 64, vr(V_OK)))
    a('v_lshlrev_b32 %s, 1, %s' % (t3, t1))
    a('v_xor_b32 %s, %s, %s' % (t3, t0, t3))
    a('v_lshl_add_u32 %s, %s, 4, %s' % (vr(V_OV), t3, t2))
    a('v_xor_b32 %s, 128, %s' % (vr(V_OV + 1), vr(V_OV)))
    return o


def k_read_setup():
    o = []
    a = lambda s: o.append(Ins(s))
    a('v_and_b32 %s, 15, %s' % (t0, L))
    a('v_lshrrev_b32 %s, 4, %s' % (t1, L))
    a('v_xor_b32 %s, %s, %s' % (t2, t0, t1))
    a('v_lshlrev_b32 %s, 4, %s' % (t2, t2))
    a('v_lshl_add_u32 %s, %s, 8, %s' % (vr(V_KA), t0, t2))
    for s in range(1, 4):
        a('v_xor_b32 %s, %d, %s' % (vr(V_KA + s), s * 64, vr(V_KA)))
    return o


def v_read_setup():
    o = []
    a = lambda s: o.append(Ins(s))
    a('v_lshrrev_b32 %s, 2, %s' % (t2, L))
    a('v_and_b32 %s, 7, %s' % (t3, t2))
    a('v_lshlrev_b32 %s, 5, %s' % (t3, t3))
    a('v_lshl_add_u32 %s, %s, 8, %s' % (t3, t2, t3))
    a('v_and_b32 %s, 3, %s' % (t2, L))
    a('v_lshl_add_u32 %s, %s, 3, %s' % (t3, t2, t3))
    a('v_add_u32 %s, 0x10000, %s' % (vr(V_VA), t3))
    for d in range(1, 8):
        a('v_xor_b32 %s, %d, %s' % (vr(V_VA + d), d * 32, vr(V_VA)))
    return o


def xlane4(op, xs, ts):
    o = []
    for perm in ('v_permlane32_swap_b32', 'v_permlane16_swap_b32'):
        for x, t in zip(xs, ts):
            o.append(Ins('v_mov_b32 %s, %s' % (t, x)))
        for x, t in zip(xs, ts):
            o.append(Ins('%s %s, %s' % (perm, x, t)))
        for x, t in zip(xs, ts):
            o.append(Ins('%s %s, %s, %s' % (op, x, x, t)))
    return o


def div18(o, n, row, sl):
    o.append(Ins('v_mul_u32_u24 %s, 3641, %s' % (row, n)))
    o.append(Ins('v_lshrrev_b32 %s, 16, %s' % (row, row)))
    o.append(Ins('v_mul_u32_u24 %s, 18, %s' % (sl, row)))
    o.append(Ins('v_sub_u32 %s, %s, %s' % (sl, n, sl)))


def ffn_tiles():
    m, nv, na = {}, 0, 0
    for b in range(9):
        for mat in range(2):
            for qb in range(4):
                if mat == 1 and na < 18:
                    m[(2 * b + mat, qb)] = ('a', na * 4)
                    na += 1
                else:
                    m[(2 * b + mat, qb)] = ('v', 40 + nv * 4)
                    nv += 1
    assert nv == 54 and na == 18
    return m


FT = ffn_tiles()
WQ_SLOT = {8: 9, 7: 3, 6: 4, 5: 5, 4: 6, 3: 7, 2: 8, 1: 9, 0: 3}


def p1_dma(c):
    out = [Ins('s_add_u32 %s, %s, %d' % (T(8), sr(S_OFFW), c * 64 * 9216))]
    for i in range(9):
        if i % 4 == 0:
            out.append(Ins('s_add_u32 m0, %s, %d' % (sr(S_M1), PS(c)[0] + (i // 4) * 4096)))
        out.append(Ins('buffer_load_dwordx4 %s, %s, %s offen offset:%d lds' % (
            vr(V_OW + i), sr(S_WS, 4), T(8), (i % 4) * 1024), lds=(PS(c), ('W', c))))
    return out


def xn_loads(c, buf):
    base = A_B + buf * 32
    out = []
    for qb in range(4):
        out.append(Ins('s_mov_b32 %s, %d' % (T(qb), qb * 18 * 1024 + c * 2048)))
        for ks in range(2):
            out.append(Ins('buffer_load_dwordx4 %s, %s, %s, %s offen offset:%d' % (
                ar(base + (qb * 2 + ks) * 4, 4), vr(V_L16), sr(S_XN, 4), T(qb), ks * 1024)))
    return out


def wq_dma(c):
    sl = WQ_SLOT[c]
    out = []
    for cc in range(4):
        out.append(Ins('s_add_u32 %s, %s, %d' % (T(4 + cc % 2), sr(S_OFFQ), (c * 64 + cc * 4) * 8192)))
        out.append(Ins('s_add_u32 m0, %s, %d' % (sr(S_MK), sl * 16384 + cc * 1024)))
        out.append(Ins('buffer_load_dwordx4 %s, %s, %s offen lds' % (
            vr(V_OQ + cc % 2), sr(S_WQ, 4), T(4 + cc % 2)), lds=(LS(sl), ('Q', c))))
    return out


def p1_reads(c, blk, dst):
    mat, b = blk % 2, blk // 2
    return [Ins('ds_read_b64_tr_b16 %s, %s offset:%d' % (
        ar(dst + ks * 4 + 2 * j, 2), vr(V_A1 + c % 4),
        mat * 18432 + (32 * ks + 16 * j) * 288 + 32 * b), lds=(PS(c), ('W', c)))
        for ks in range(2) for j in range(2)]


def p2_reads(c, bq, dst):
    s, jj = bq // 2, bq % 2
    sl = WQ_SLOT[c]
    return [Ins('ds_read_b64_tr_b16 %s, %s offset:%d' % (
        ar(dst + ks * 4 + 2 * j, 2), vr(V_AQ + (sl // 4) * 4 + s),
        (sl % 4) * 16384 + (32 * ks + 16 * j) * 256 + 8 * jj), lds=(LS(sl), ('Q', c)))
        for ks in range(2) for j in range(2)]


def swiglu_unit(b, qb, ready, pool):
    gt, ut = FT[(2 * b, qb)], FT[(2 * b + 1, qb)]
    pk = FT[(2 * (b - b % 2), qb)][1] + (b % 2) * 2
    o = []
    ta, tb = vr(V_SW), vr(V_SW + 1)
    for r in (0, 2):
        pa, pb = vr(V_SW + 2 + r), vr(V_SW + 3 + r)
        g0, g1 = vr(gt[1] + r), vr(gt[1] + r + 1)
        if ut[0] == 'a':
            o.append(Ins('v_accvgpr_read_b32 %s, %s' % (pa, ar(ut[1] + r))))
            o.append(Ins('v_accvgpr_read_b32 %s, %s' % (pb, ar(ut[1] + r + 1))))
            u0, u1 = pa, pb
        else:
            u0, u1 = vr(ut[1] + r), vr(ut[1] + r + 1)
        if OPT.get('fold', 0):
            o.append(Ins('v_exp_f32 %s, %s' % (ta, g0)))
            o.append(Ins('v_exp_f32 %s, %s' % (tb, g1)))
        else:
            o.append(Ins('v_mul_f32 %s, %s, %s' % (ta, sr(S_NL), g0)))
            o.append(Ins('v_mul_f32 %s, %s, %s' % (tb, sr(S_NL), g1)))
            o.append(Ins('v_exp_f32 %s, %s' % (ta, ta)))
            o.append(Ins('v_exp_f32 %s, %s' % (tb, tb)))
        o.append(Ins('v_mul_f32 %s, %s, %s' % (pa, g0, u0)))
        o.append(Ins('v_mul_f32 %s, %s, %s' % (pb, g1, u1)))
        o.append(Ins('v_add_f32 %s, 1.0, %s' % (ta, ta)))
        o.append(Ins('v_add_f32 %s, 1.0, %s' % (tb, tb)))
        o.append(Ins('v_rcp_f32 %s, %s' % (ta, ta)))
        o.append(Ins('v_rcp_f32 %s, %s' % (tb, tb)))
        o.append(Ins('v_mul_f32 %s, %s, %s' % (pa, pa, ta)))
        o.append(Ins('v_mul_f32 %s, %s, %s' % (pb, pb, tb)))
    for r in (0, 2):
        o.append(Ins('v_cvt_pk_bf16_f32 %s, %s, %s' % (vr(pk + r // 2), vr(V_SW + 2 + r), vr(V_SW + 3 + r))))
    rel = [ut] + ([gt] if b % 2 == 1 else [])
    if b % 2 == 1:
        o.append(Ins('buffer_store_dwordx4 %s, %s, %s, %s offen offset:%d sc1' % (
            vr(pk - 2, 4), vr(V_L16), sr(S_H, 4), sr(S_HS + qb), (b // 2) * 1024), lds=('H', 0)))
        if OPT.get('plain_h'):
            o[-1].text = o[-1].text.replace(' sc1', '')
        rel.append(FT[(2 * (b - 1), qb)])
    elif b == 8:
        o.append(Ins('buffer_store_dwordx2 %s, %s, %s, %s offen sc1' % (
            vr(pk, 2), vr(V_L16), sr(S_H, 4), sr(S_HS + 4 + qb)), lds=('H', 0)))
        if OPT.get('plain_h'):
            o[-1].text = o[-1].text.replace(' sc1', '')
    o[0].ready = ready
    o[-1].on_emit = lambda: pool.extend(t for t in rel if not (t[0] == 'v' and t[1] >= V_Q))
    return o


def qcvt_unit(qb, s, QT, ready):
    o = []
    for h in range(2):
        tl = QT[(2 * s + h, qb)]
        tm = [vr(V_SW + e) for e in range(4)]
        for e in range(4):
            if tl[0] == 'a':
                o.append(Ins('v_accvgpr_read_b32 %s, %s' % (tm[e], ar(tl[1] + e))))
        for e in range(4):
            o.append(Ins('v_mul_f32 %s, %s, %s' % (tm[e], sr(S_C), tm[e] if tl[0] == 'a' else vr(tl[1] + e))))
        for e in range(2):
            o.append(Ins('v_cvt_pk_bf16_f32 %s, %s, %s' % (vr(V_Q + (qb * 4 + s) * 4 + 2 * h + e), tm[2 * e], tm[2 * e + 1])))
    o[0].ready = ready
    return o


class GemmSeq:
    def __init__(self, p, g):
        self.p, self.g = p, g
        self.groups = []

    def add(self, reads, nfr, mf, hook=None, bar=None, bwait=None, cap=2):
        self.groups.append(dict(reads=reads, n=nfr, mf=mf, hook=hook, bar=bar, bwait=bwait, cap=cap))

    def run(self):
        G, g, p = self.groups, self.g, self.p
        pos = 0
        for x in G:
            if x['n'] == 16 and pos % 16:
                pos += 8
            x['dst'] = A_A + pos % 32
            pos += x['n']
        for k, x in enumerate(G):
            regs = lambda y: set(range(y['dst'], y['dst'] + y['n']))
            ld = 1
            if k >= 2 and not (regs(x) & regs(G[k - 1])) and not (regs(x) & regs(G[k - 2])) and G[k - 1]['n'] == 8:
                ld = 2
            assert k == 0 or not (regs(x) & regs(G[k - 1]))
            x['at'] = k - ld
        for x in G:
            if x['at'] < 0:
                if x['bar']:
                    p.need(*x['bar'])
                    p('s_barrier')
                for i in x['reads'](x['dst']):
                    p.add(i)
        for k, x in enumerate(G):
            if x['hook']:
                x['hook']()
            todo = [y for y in G if y['at'] == k]
            rd, bar = [], []
            for y in todo:
                rd += y['reads'](y['dst'])
                if y['bar'] is not None:
                    bar += y['bar']
            hasbar = any(y['bar'] is not None for y in todo)
            mfs = x['mf'](x['dst'])
            n = len(mfs)
            st = 3 if hasbar else 0
            step = 2 if (st + 2 * ((len(rd) + 1) // 2) <= n - 1) else 1
            for t in range(n):
                sc, ld = [], []
                if hasbar and t == 1:
                    sc = [need_ins(('lgkm', 'all'), *bar)]
                if hasbar and t == 2:
                    sc = [Ins('s_barrier')]
                if t >= st and (t - st) % step == 0 and rd:
                    ld = rd[:2]
                    rd = rd[2:]
                if t == n - 1 and k + 1 < len(G):
                    y = G[k + 1]
                    bw = y['bwait']() if callable(y['bwait']) else (y['bwait'] or [])
                    w = [ar(y['dst'], y['n'])] + bw
                    sc = [wait_ins(*w)]
                g.gap(mfs[t](), sc, ld, cap=x['cap'])
                if hasbar and t == 2:
                    for y in todo:
                        if y.get('post'):
                            y['post']()
            assert not rd


V_DOWS = [22, 23, 24, 25, 26, 27, 248, 249, 250]
V_DRA = 40
V_DA = 56
V_AC2, V_AC1 = 104, 176
V_PK = 4
A_DB = 128
SPIN_BLOCKS = []


def poll_issue(soff, V_FV=V_FV, V_FOFF=V_FOFF, S_FL=S_FL):
    return Ins('buffer_load_dword %s, %s, %s, %s offen sc1' % (vr(V_FV), vr(V_FOFF), sr(S_FL, 4), sr(soff)))


def poll_check(p, name, soff, cmp='v_cmp_ne_u32 vcc, %s' % sr(S_EP), V_FV=V_FV, V_FOFF=V_FOFF, S_FL=S_FL, sleep=4):
    SPIN_BLOCKS.append("""L_spin_%(n)s:
 s_mov_b32 s3, 0
L_spin_%(n)s_l:
 s_sleep %(sl)d
 buffer_load_dword %(v)s, %(o)s, %(srd)s, %(so)s offen sc1
 s_add_u32 s3, s3, 1
 s_cmp_gt_u32 s3, 0x40000
 s_cbranch_scc1 L_ok_%(n)s
 s_waitcnt vmcnt(0)
 %(cmp)s, %(v)s
 s_cbranch_vccnz L_spin_%(n)s_l
 s_branch L_ok_%(n)s""" % dict(n=name, v=vr(V_FV), o=vr(V_FOFF), srd=sr(S_FL, 4), so=sr(soff), cmp=cmp, sl=sleep))
    p('%s, %s' % (cmp, vr(V_FV)))
    p('s_cbranch_vccnz L_spin_%s' % name)
    p.label('L_ok_%s' % name)


def flag_store(soff, tag):
    return Ins('buffer_store_dword %s, %s, %s, %s offen sc1' % (
        vr(V_ONE), vr(V_FST), sr(S_FL, 4), sr(soff)), lds=('flag', (tag, 0)))


_ct = [0]


def code_touch(label, vo, vd, sp):
    _ct[0] += 1
    n = 'L_ct%d' % _ct[0]
    blk = Ins('; raw')
    blk.rawtext = (' s_getpc_b64 %(p)s\n%(n)s:\n s_add_u32 %(lo)s, %(lo)s, %(l)s-%(n)s\n s_addc_u32 %(hi)s, %(hi)s, 0' %
                   dict(p=sr(sp, 2), n=n, lo=sr(sp), hi=sr(sp + 1), l=label))
    return [blk,
            Ins('s_lshr_b32 s3, s2, 3'),
            Ins('s_lshl_b32 s3, s3, 11'),
            Ins('v_and_b32 %s, 15, %s' % (vr(vo), L)),
            Ins('v_lshlrev_b32 %s, 7, %s' % (vr(vo), vr(vo))),
            Ins('v_add_u32 %s, s3, %s' % (vr(vo), vr(vo))),
            Ins('v_min_u32 %s, L_code_end-%s-4, %s' % (vr(vo), label, vr(vo))),
            Ins('global_load_dword %s, %s, %s' % (vr(vd), vr(vo), sr(sp, 2)))]


def sadd(r, k):
    return Ins('s_add_u32 %s, %s, %d' % (sr(r), sr(r), k))


SK0, SK1, NPOS = 12, 16, 19
S_ADJW, S_ADJB = S_OFFK, S_OFFV


def dtag(c, at):
    if at < SK0 <= c:
        return lambda it: ('D', c + 4 if MODE[0] else c)
    return ('D', c)


def d_dma(c, at=0):
    out = []
    for i in range(9):
        if i % 4 == 0:
            if at >= SK1:
                out.append(Ins('s_add_u32 %s, %s, %d' % (T(8), sr(S_ADJW), c * 36864 + (i // 4) * 4096)))
            else:
                out.append(Ins('s_mov_b32 %s, %d' % (T(8), c * 36864 + (i // 4) * 4096)))
            out.append(Ins('s_add_u32 m0, %s, %d' % (sr(S_M1), DS(c)[0] + (i // 4) * 4096)))
        out.append(Ins('buffer_load_dwordx4 %s, %s, %s offen offset:%d sc1 lds' % (
            vr(V_L16), sr(S_DW2, 4), T(8), (i % 4) * 1024), lds=(DS(c), dtag(c, at))))
    return out


def d_bloads(c, at=0):
    srd, loc, rbs = (S_DH, c, HS()) if c < 9 else (S_DO, c - 9, OS())
    out = []
    for rb in range(2):
        if at >= SK1:
            out.append(Ins('s_add_u32 %s, %s, %d' % (T(9 + rb), sr(S_ADJB), loc * 4096 + rb * rbs)))
        else:
            out.append(Ins('s_mov_b32 %s, %d' % (T(9 + rb), loc * 4096 + rb * rbs)))
        for ks in range(4):
            out.append(Ins('buffer_load_dwordx4 %s, %s, %s, %s offen offset:%d sc1' % (
                ar(A_DB + (c % 4) * 32 + (rb * 4 + ks) * 4, 4), vr(V_L16), sr(srd, 4), T(9 + rb), ks * 1024)))
    return out


def d_reads(c, nb, at=None):
    return [Ins('ds_read_b64_tr_b16 %s, %s offset:%d' % (
        vr(V_DA + (nb % 3) * 16 + ks * 4 + 2 * j, 2), vr(V_DRA + c % 4), (32 * ks + 16 * j) * 288 + 32 * nb),
        lds=(DS(c), dtag(c, c if at is None else at))) for ks in range(4) for j in range(2)]


def d_pstore(gemm, nb):
    acc = (V_AC2 if gemm else V_AC1) + nb * 8
    pk = V_PK + (nb % 3) * 4
    out = []
    if nb % 4 == 0:
        out.append(Ins('s_mov_b32 %s, %d' % (T(nb // 4), gemm * PG + (nb // 4) * 4096)))
    for e in range(4):
        out.append(Ins('v_cvt_pk_bf16_f32 %s, %s, %s' % (vr(pk + e), vr(acc + 2 * e), vr(acc + 2 * e + 1))))
    out.append(Ins('buffer_store_dwordx4 %s, %s, %s, %s offen offset:%d sc1' % (
        vr(pk, 4), vr(V_L16), sr(S_DP, 4), T(nb // 4), (nb % 4) * 1024), lds=('PT%d' % gemm, 0)))
    return out


def d_ploads(gemm, base):
    out = []
    for k in range(3):
        for sp in range(4):
            t = T(4 + (k * 4 + sp) % 2)
            if k < 2:
                out.append(Ins('s_mov_b32 %s, %d' % (t, gemm * PG + sp * 4 * 9216 + k * 4096)))
            else:
                out.append(Ins('s_add_u32 %s, %s, %d' % (t, sr(S_OFFQ), gemm * PG + sp * 4 * 9216 + k * 4096)))
            out.append(Ins('buffer_load_dwordx4 %s, %s, %s, %s offen sc1' % (
                vr(base + (k * 4 + sp) * 4, 4), vr(V_L16), sr(S_DR, 4), t)))
    return out


def d_sum(base, k, dst, tmp):
    out = []
    for e in range(4):
        for sp in range(4):
            src = vr(base + (k * 4 + sp) * 4 + e)
            lo = vr(dst + 2 * e) if sp == 0 else vr(tmp)
            hi = vr(dst + 2 * e + 1) if sp == 0 else vr(tmp + 1)
            out.append(Ins('v_lshlrev_b32 %s, 16, %s' % (lo, src)))
            out.append(Ins('v_and_b32 %s, 0xffff0000, %s' % (hi, src)))
            if sp:
                out.append(Ins('v_add_f32 %s, %s, %s' % (vr(dst + 2 * e), vr(dst + 2 * e), lo)))
                out.append(Ins('v_add_f32 %s, %s, %s' % (vr(dst + 2 * e + 1), vr(dst + 2 * e + 1), hi)))
    return out


def d_scalar_setup1():
    o = []
    a = lambda s: o.append(Ins(s))
    a('s_mul_i32 %s, %s, 288' % (T(1), sr(S_W)))
    a('s_lshl_b32 %s, %s, 6' % (T(0), sr(S_SP)))
    a('s_add_u32 %s, %s, %s' % (T(0), T(0), sr(S_TILE)))
    a('s_mul_i32 %s, %s, %d' % (T(2), T(0), 18 * 1152))
    a('s_add_u32 %s, %s, %s' % (T(2), T(2), T(1)))
    o += srd_ins(S_A1, P_W2, T(2), 17 * 1152 + 288)
    a('s_and_b32 %s, %s, 1' % (T(7), sr(S_SP)))
    a('s_lshl_b32 %s, %s, 3' % (T(6), sr(S_SP)))
    a('s_lshl_b32 %s, %s, 1' % (T(3), T(7)))
    a('s_add_u32 %s, %s, %s' % (T(6), T(6), T(3)))
    a('s_lshl_b32 %s, %s, 3' % (T(7), T(7)))
    a('s_sub_u32 %s, 20, %s' % (T(7), T(7)))
    a('s_mul_i32 %s, %s, %s' % (T(9), T(7), sr(S_TILE)))
    a('s_lshl_b32 %s, %s, 7' % (T(2), T(6)))
    a('s_add_u32 %s, %s, %s' % (T(2), T(2), T(9)))
    a('s_mul_i32 %s, %s, 1152' % (T(2), T(2)))
    a('s_add_u32 %s, %s, %s' % (T(2), T(2), T(1)))
    a('s_mul_i32 %s, %s, 1152' % (T(3), T(7)))
    a('s_sub_u32 %s, %s, 864' % (T(3), T(3)))
    o += srd_ins(S_A2, P_WO, T(2), T(3))
    a('s_lshl_b32 %s, %s, 2' % (T(0), sr(S_SP)))
    a('s_add_u32 %s, %s, %s' % (T(1), T(0), sr(S_W)))
    a('s_mul_i32 %s, %s, %d' % (T(1), T(1), WBLK))
    a('s_add_u32 %s, %s, 0x%x' % (T(1), T(1), WS_W))
    a('s_mul_i32 %s, %s, %d' % (T(2), sr(S_TILE), 18 * 288))
    a('s_add_u32 %s, %s, %s' % (T(2), T(2), T(1)))
    o += srd_ins(S_A3, P_WS, T(2), 18 * 288)
    a('s_mul_i32 %s, %s, 288' % (T(2), T(9)))
    a('s_add_u32 %s, %s, %s' % (T(2), T(2), T(1)))
    a('s_add_u32 %s, %s, %d' % (T(2), T(2), 1152 * 288))
    a('s_mul_i32 %s, %s, 288' % (T(3), T(7)))
    o += srd_ins(S_A4, P_WS, T(2), T(3))
    a('s_mov_b32 %s, 0' % sr(S_RO))
    a('s_and_b32 %s, %s, 3' % (T(1), sr(S_TILE)))
    a('s_add_u32 %s, %s, %s' % (T(1), T(0), T(1)))
    a('s_mul_i32 %s, %s, %d' % (T(1), T(1), WBLK))
    a('s_add_u32 %s, %s, %s' % (T(1), T(1), sr(S_M1)))
    a('s_add_u32 %s, %s, 0x%x' % (T(1), T(1), WS_W))
    o += srd_ins(S_DW2, P_WS, T(1), 18 * 36864 + 9216)
    a('s_lshr_b32 %s, %s, 2' % (T(4), sr(S_TILE)))
    a('s_lshl_b32 %s, %s, 2' % (T(5), T(4)))
    a('s_add_u32 %s, %s, %s' % (T(5), T(5), sr(S_W)))
    a('s_mul_i32 %s, %s, %d' % (T(2), T(5), 2 * HS()))
    a('s_mul_i32 %s, %s, %d' % (T(3), sr(S_SP), 36 * 1024))
    a('s_add_u32 %s, %s, %s' % (T(2), T(2), T(3)))
    a('s_add_u32 %s, %s, 0x%x' % (T(2), T(2), WS_H))
    o += srd_ins(S_DH, P_WS, T(2), HS() + 36 * 1024)
    a('s_mul_i32 %s, %s, %d' % (T(2), T(5), 2 * OS()))
    a('s_lshl_b32 %s, %s, 12' % (T(3), T(6)))
    a('s_add_u32 %s, %s, %s' % (T(2), T(2), T(3)))
    a('s_add_u32 %s, %s, 0x%x' % (T(2), T(2), WS_O))
    o += srd_ins(S_DO, P_WS, T(2), OS() + 40 * 1024)
    return o


def d_scalar_setup2():
    o = []
    a = lambda s: o.append(Ins(s))
    a('s_lshl_b32 %s, %s, 2' % (T(2), sr(S_TILE)))
    a('s_add_u32 %s, %s, %s' % (T(2), T(2), sr(S_SP)))
    a('s_lshl_b32 %s, %s, 7' % (sr(S_FT), T(2)))
    a('s_add_u32 %s, %s, 0x10000' % (sr(S_FT), sr(S_FT)))
    a('s_lshl_b32 %s, %s, 2' % (T(2), T(2)))
    a('s_add_u32 %s, %s, %s' % (T(2), T(2), sr(S_W)))
    a('s_mul_i32 %s, %s, 9216' % (T(2), T(2)))
    a('s_add_u32 %s, %s, 0x%x' % (T(2), T(2), WS_P))
    o += srd_ins(S_DP, P_WS, T(2), PG + 9216)
    a('s_lshl_b32 %s, %s, 4' % (T(2), sr(S_TILE)))
    a('s_add_u32 %s, %s, %s' % (T(2), T(2), sr(S_SP)))
    a('s_mul_i32 %s, %s, 9216' % (T(2), T(2)))
    a('s_lshl_b32 %s, %s, 10' % (T(3), sr(S_W)))
    a('s_add_u32 %s, %s, %s' % (T(2), T(2), T(3)))
    a('s_add_u32 %s, %s, 0x%x' % (T(2), T(2), WS_P))
    o += srd_ins(S_DR, P_WS, T(2), PG + 14 * 9216)
    a('s_and_b32 %s, %s, 3' % (T(1), sr(S_TILE)))
    a('s_mul_i32 %s, %s, 288' % (T(1), T(1)))
    a('s_andn2_b32 %s, %s, 3' % (T(2), sr(S_TILE)))
    a('s_add_u32 %s, %s, %s' % (T(2), T(2), sr(S_SP)))
    a('s_mul_i32 %s, %s, %d' % (T(2), T(2), 32 * 1152))
    a('s_add_u32 %s, %s, %s' % (T(2), T(2), T(1)))
    o += srd_ins(S_DX, P_X, T(2), 31 * 1152 + 288)
    o += srd_ins(S_DOUT, P_OUT, T(2), 31 * 1152 + 288)
    a('s_lshl_b32 %s, %s, 28' % (sr(S_OFFQ), sr(S_W)))
    a('s_mov_b32 %s, 0x%x' % (sr(S_C), f2u(LOG2E * LOG2E)))
    a('s_mul_i32 %s, %s, %d' % (sr(S_HS), sr(S_W), 4 * OS()))
    for qb in range(1, 4):
        a('s_add_u32 %s, %s, 0x%x' % (sr(S_HS + qb), sr(S_HS), qb * OS()))
    a('s_lshl_b32 %s, %s, 5' % (sr(S_HS + 4), sr(S_W)))
    a('s_add_u32 %s, %s, %d' % (sr(S_HS + 5), sr(S_HS + 4), 16 * 1152))
    a('s_lshl_b32 %s, %s, 20' % (sr(S_HS + 6), sr(S_W)))
    a('s_add_u32 %s, %s, %d' % (sr(S_HS + 7), sr(S_HS + 6), 16 * 1152))
    return o


V_RN, V_RV = 20, 21
V_RQ = (248, 36)


def repack_pat():
    return [Ins('v_mul_u32_u24 %s, 3641, %s' % (vr(V_RV), vr(V_RN))),
            Ins('v_lshrrev_b32 %s, 16, %s' % (vr(V_RV), vr(V_RV))),
            Ins('v_mul_u32_u24 %s, 864, %s' % (vr(V_RV), vr(V_RV))),
            Ins('v_lshl_add_u32 %s, %s, 4, %s' % (vr(V_RV), vr(V_RN), vr(V_RV))),
            Ins('v_add_u32 %s, 64, %s' % (vr(V_RN), vr(V_RN)))]


def o_epilogue_unit(qb, t, n, ready):
    base = 184 + (n % 4) * 12
    o = []
    for r in range(8):
        o.append(Ins('v_accvgpr_read_b32 %s, %s' % (vr(base + r), ar(A_O + ((2 * t + r // 4) * 4 + qb) * 4 + r % 4))))
    for r in range(8):
        o.append(Ins('v_mul_f32 %s, %s, %s' % (vr(base + r), vr(base + r), vr(V_L + qb))))
    for r in range(4):
        o.append(Ins('v_cvt_pk_bf16_f32 %s, %s, %s' % (vr(base + 8 + r), vr(base + 2 * r), vr(base + 2 * r + 1))))
    o.append(Ins('buffer_store_dwordx4 %s, %s, %s, %s offen offset:%d%s' % (
        vr(base + 8, 4), vr(V_L16), sr(S_O, 4), sr(S_HS + qb), t * 1024, '' if OPT.get('plain_o', 0) else ' sc1'), lds=('O', 0)))
    o[0].ready = ready
    return o


def ln_parts(B=64):
    v = lambda k, n=1: vr(B + k, n)
    A, Ld, C, St = [], [], [], []
    a = lambda t: A.append(Ins(t))
    a('s_lshl_b32 s3, %s, 5' % sr(S_QT))
    a('s_add_u32 s3, s3, %s' % sr(S_HD))
    a('s_lshl_b32 s3, s3, 3')
    a('v_lshrrev_b32 %s, 5, v0' % v(1))
    a('v_add_u32 %s, s3, %s' % (v(1), v(1)))
    a('v_and_b32 %s, 31, v0' % v(2))
    a('v_lshrrev_b32 %s, 2, %s' % (v(3), v(2)))
    a('v_and_b32 %s, 3, %s' % (v(4), v(2)))
    a('v_mul_u32_u24 %s, 1152, %s' % (v(5), v(1)))
    a('v_lshl_add_u32 %s, %s, 6, %s' % (v(5), v(3), v(5)))
    a('v_lshl_add_u32 %s, %s, 3, %s' % (v(5), v(4), v(5)))
    for r in range(16, 20):
        a('v_mov_b32 %s, 0' % v(r))
    msk = lambda: [Ins('v_cmp_gt_u32 vcc, 8, %s' % v(2)), Ins('s_mov_b64 exec, vcc')]
    Ld += srd_ins(S_O, P_X, None, 2048 * 1152)
    for it in range(3):
        if it == 2:
            Ld += msk()
        Ld.append(Ins('buffer_load_dwordx2 %s, %s, %s, 0 offen offset:%d' % (v(8 + 4 * it, 2), v(5), sr(S_O, 4), it * 512)))
        Ld.append(Ins('buffer_load_dwordx2 %s, %s, %s, 0 offen offset:%d' % (v(10 + 4 * it, 2), v(5), sr(S_O, 4), it * 512 + 32)))
    Ld.append(Ins('s_mov_b64 exec, -1'))
    c = lambda t: C.append(Ins(t))
    c('v_lshrrev_b32 %s, 4, %s' % (v(6), v(1)))
    c('v_mul_u32_u24 %s, 18, %s' % (v(6), v(6)))
    c('v_add_u32 %s, %s, %s' % (v(6), v(6), v(3)))
    c('v_lshlrev_b32 %s, 10, %s' % (v(6), v(6)))
    c('v_lshl_add_u32 %s, %s, 8, %s' % (v(6), v(4), v(6)))
    c('v_and_b32 %s, 15, %s' % (v(7), v(1)))
    c('v_lshl_add_u32 %s, %s, 4, %s' % (v(6), v(7), v(6)))
    for d in range(12):
        c('v_lshlrev_b32 %s, 16, %s' % (v(20 + 2 * d), v(8 + d)))
        c('v_and_b32 %s, 0xffff0000, %s' % (v(21 + 2 * d), v(8 + d)))

    def reduce32(x, t):
        for k in (8, 4, 2, 1):
            c('v_add_f32_dpp %s, %s, %s row_ror:%d row_mask:0xf bank_mask:0xf' % (x, x, x, k))
        c('v_mov_b32 %s, %s' % (t, x))
        c('v_permlane16_swap_b32 %s, %s' % (x, t))
        c('v_add_f32 %s, %s, %s' % (x, x, t))
    c('v_add_f32 %s, %s, %s' % (v(44), v(20), v(21)))
    c('v_add_f32 %s, %s, %s' % (v(45), v(22), v(23)))
    for e in range(4, 24, 2):
        c('v_add_f32 %s, %s, %s' % (v(44), v(44), v(20 + e)))
        c('v_add_f32 %s, %s, %s' % (v(45), v(45), v(21 + e)))
    c('v_add_f32 %s, %s, %s' % (v(44), v(44), v(45)))
    reduce32(v(44), v(45))
    c('v_mul_f32 %s, 0x%x, %s' % (v(44), f2u(1.0 / 576), v(44)))
    c('v_mov_b32 %s, 0' % v(46))
    c('v_mov_b32 %s, 0' % v(47))
    for e in range(24):
        if e == 16:
            C += msk()
        c('v_sub_f32 %s, %s, %s' % (v(48), v(20 + e), v(44)))
        c('v_fmac_f32 %s, %s, %s' % (v(46 + e % 2), v(48), v(48)))
    c('s_mov_b64 exec, -1')
    c('v_add_f32 %s, %s, %s' % (v(46), v(46), v(47)))
    reduce32(v(46), v(45))
    c('v_mul_f32 %s, 0x%x, %s' % (v(46), f2u(1.0 / 576), v(46)))

    def rnd(x):
        c('v_cvt_pk_bf16_f32 %s, %s, %s' % (x, x, x))
        c('v_lshlrev_b32 %s, 16, %s' % (x, x))
    rnd(v(44))
    rnd(v(46))
    c('v_add_f32 %s, 0x%x, %s' % (v(46), f2u(1e-5), v(46)))
    rnd(v(46))
    c('v_sqrt_f32 %s, %s' % (v(46), v(46)))
    rnd(v(46))
    c('v_rcp_f32 %s, %s' % (v(46), v(46)))
    if OPT.get('fold', 0):
        c('v_mul_f32 %s, 0x%x, %s' % (v(46), f2u(-LOG2E), v(46)))
    C += srd_ins(S_XN, P_WS, None, 2048 * 1152)
    c('s_mov_b32 %s, 8192' % T(0))
    c('s_mov_b32 %s, 16384' % T(1))
    for d in range(12):
        x, y = v(20 + 2 * d), v(21 + 2 * d)
        c('v_sub_f32 %s, %s, %s' % (x, x, v(44)))
        c('v_sub_f32 %s, %s, %s' % (y, y, v(44)))
        c('v_cvt_pk_bf16_f32 %s, %s, %s' % (v(8 + d), x, y))
        c('v_lshlrev_b32 %s, 16, %s' % (x, v(8 + d)))
        c('v_and_b32 %s, 0xffff0000, %s' % (y, v(8 + d)))
        c('v_mul_f32 %s, %s, %s' % (x, x, v(46)))
        c('v_mul_f32 %s, %s, %s' % (y, y, v(46)))
        c('v_cvt_pk_bf16_f32 %s, %s, %s' % (v(8 + d), x, y))
        if d % 4 == 3:
            if d == 11:
                C += msk()
            C.append(Ins('buffer_store_dwordx4 %s, %s, %s, %s offen sc1' % (
                v(5 + d, 4), v(6), sr(S_XN, 4), ('0', T(0), T(1))[d // 4]), lds=('XN', 0)))
    c('s_mov_b64 exec, -1')
    return A, Ld, C


def gen_start_roles(diag):
    B = 64
    v = lambda k, n=1: vr(B + k, n)
    p = Prog()
    p('s_cmp_ge_u32 %s, 2' % sr(S_W))
    p('s_cbranch_scc1 L_role_b')
    p('s_lshl_b32 s3, %s, 5' % sr(S_QT))
    p('s_add_u32 s3, s3, %s' % sr(S_HD))
    p('s_lshl_b32 %s, s3, 3' % T(0))
    p('v_lshrrev_b32 %s, 4, v0' % v(1))
    p('v_add_u32 %s, %s, %s' % (v(1), T(0), v(1)))
    p('v_and_b32 %s, 15, v0' % v(2))
    p('v_lshrrev_b32 %s, 2, %s' % (v(3), v(2)))
    p('v_and_b32 %s, 3, %s' % (v(4), v(2)))
    p('v_mul_u32_u24 %s, 1152, %s' % (v(5), v(1)))
    p('v_lshl_add_u32 %s, %s, 6, %s' % (v(5), v(3), v(5)))
    p('v_lshl_add_u32 %s, %s, 3, %s' % (v(5), v(4), v(5)))
    for r in range(24, 28):
        p('v_mov_b32 %s, 0' % v(r))
    p('v_cmp_gt_u32 vcc, 8, %s' % v(2))
    p('v_or_b32 %s, s2, v0' % v(80))
    p('v_min_u32 %s, 1, %s' % (v(80), v(80)))
    p('v_lshlrev_b32 %s, 20, %s' % (v(80), v(80)))
    p('s_mov_b64 s[26:27], vcc')
    p('s_waitcnt lgkmcnt(0)')
    make_srd(p, S_O, P_X, None, 2048 * 1152)
    for it in range(5):
        if it == 4:
            p('s_mov_b64 exec, s[26:27]')
        p('buffer_load_dwordx2 %s, %s, %s, 0 offen offset:%d' % (v(8 + 4 * it, 2), v(5), sr(S_O, 4), it * 256))
        p('buffer_load_dwordx2 %s, %s, %s, 0 offen offset:%d' % (v(10 + 4 * it, 2), v(5), sr(S_O, 4), it * 256 + 32))
    p('s_mov_b64 exec, -1')
    make_srd(p, S_WQ, 50, None, 256)
    p('s_or_b32 %s, s24, 1' % T(1))
    p('v_mov_b32 %s, %s' % (v(81), T(1)))
    p('buffer_store_dword %s, %s, %s, 0 offen sc1' % (v(81), v(80), sr(S_WQ, 4)))
    p('v_lshrrev_b32 %s, 4, %s' % (v(6), v(1)))
    p('v_mul_u32_u24 %s, 18, %s' % (v(6), v(6)))
    p('v_add_u32 %s, %s, %s' % (v(6), v(6), v(3)))
    p('v_lshlrev_b32 %s, 10, %s' % (v(6), v(6)))
    p('v_lshl_add_u32 %s, %s, 8, %s' % (v(6), v(4), v(6)))
    p('v_and_b32 %s, 15, %s' % (v(7), v(1)))
    p('v_lshl_add_u32 %s, %s, 4, %s' % (v(6), v(7), v(6)))
    make_srd(p, S_XN, P_WS, None, 2048 * 1152)
    p('s_mov_b32 %s, 0x%x' % (T(3), WS_F + 4 * 32768))
    make_srd(p, S_FL, P_WS, T(3), 65536)
    p('s_lshl_b32 %s, %s, 13' % (T(2), sr(S_QT)))
    p('s_lshl_b32 %s, s3, 1' % T(3))
    p('s_add_u32 %s, %s, %s' % (T(3), T(3), sr(S_W)))
    p('s_lshl_b32 %s, %s, 7' % (T(3), T(3)))
    p('v_lshlrev_b32 %s, 20, %s' % (v(82), L))
    p('v_lshlrev_b32 %s, 7, %s' % (v(83), L))
    p('v_mov_b32 %s, 0' % v(84))
    for k in range(1, 5):
        p('s_mov_b32 %s, %d' % (T(3 + k), 4096 * k))
    F = 30
    for d in range(20):
        p('v_lshlrev_b32 %s, 16, %s' % (v(F + 2 * d), v(8 + d)))
        p('v_and_b32 %s, 0xffff0000, %s' % (v(F + 1 + 2 * d), v(8 + d)))
    p('buffer_load_dword %s, %s, %s, 0 offen sc1' % (v(85), v(84), sr(S_WQ, 4)))
    m, m2, q, q2, t = v(70), v(71), v(72), v(73), v(74)

    def reduce16(x):
        for k in (8, 4, 2, 1):
            p('v_add_f32_dpp %s, %s, %s row_ror:%d row_mask:0xf bank_mask:0xf' % (x, x, x, k))
    p('v_add_f32 %s, %s, %s' % (m, v(F), v(F + 1)))
    p('v_add_f32 %s, %s, %s' % (m2, v(F + 2), v(F + 3)))
    for e in range(4, 40, 2):
        p('v_add_f32 %s, %s, %s' % (m, m, v(F + e)))
        p('v_add_f32 %s, %s, %s' % (m2, m2, v(F + e + 1)))
    p('v_add_f32 %s, %s, %s' % (m, m, m2))
    reduce16(m)
    p('v_mul_f32 %s, 0x%x, %s' % (m, f2u(1.0 / 576), m))
    p('v_mov_b32 %s, 0' % q)
    p('v_mov_b32 %s, 0' % q2)
    for e in range(40):
        if e == 32:
            p('s_mov_b64 exec, s[26:27]')
        p('v_sub_f32 %s, %s, %s' % (t, v(F + e), m))
        p('v_fmac_f32 %s, %s, %s' % ((q, q2)[e % 2], t, t))
    p('s_mov_b64 exec, -1')
    p('v_add_f32 %s, %s, %s' % (q, q, q2))
    reduce16(q)
    p('v_mul_f32 %s, 0x%x, %s' % (q, f2u(1.0 / 576), q))

    def rnd(x):
        p('v_cvt_pk_bf16_f32 %s, %s, %s' % (x, x, x))
        p('v_lshlrev_b32 %s, 16, %s' % (x, x))
    rnd(m)
    rnd(q)
    p('v_add_f32 %s, 0x%x, %s' % (q, f2u(1e-5), q))
    rnd(q)
    p('v_sqrt_f32 %s, %s' % (q, q))
    rnd(q)
    p('v_rcp_f32 %s, %s' % (q, q))
    for d in range(20):
        x, y = v(F + 2 * d), v(F + 1 + 2 * d)
        p('v_sub_f32 %s, %s, %s' % (x, x, m))
        p('v_sub_f32 %s, %s, %s' % (y, y, m))
        p('v_cvt_pk_bf16_f32 %s, %s, %s' % (v(8 + d), x, y))
        p('v_lshlrev_b32 %s, 16, %s' % (x, v(8 + d)))
        p('v_and_b32 %s, 0xffff0000, %s' % (y, v(8 + d)))
        p('v_mul_f32 %s, %s, %s' % (x, x, q))
        p('v_mul_f32 %s, %s, %s' % (y, y, q))
        p('v_cvt_pk_bf16_f32 %s, %s, %s' % (v(8 + d), x, y))
        if d % 4 == 3:
            if d == 19:
                p('s_mov_b64 exec, s[26:27]')
            p('buffer_store_dwordx4 %s, %s, %s, %s offen sc1' % (v(5 + d, 4), v(6), sr(S_XN, 4), '0' if d == 3 else T(3 + d // 4)))
    p('s_mov_b64 exec, -1')
    p('s_mov_b32 s3, 0')
    p.label('L_ep_l')
    p('s_memrealtime s[24:25]')
    p('s_waitcnt vmcnt(0) lgkmcnt(0)')
    p('v_readfirstlane_b32 %s, %s' % (T(0), v(85)))
    p('s_add_u32 %s, s24, 100' % T(1))
    p('s_sub_u32 %s, %s, %s' % (T(1), T(1), T(0)))
    p('s_bitcmp0_b32 %s, 0' % T(0))
    p('s_cselect_b32 %s, -1, %s' % (T(1), T(1)))
    p('s_cmp_lt_u32 %s, 5100' % T(1))
    p('s_cbranch_scc1 L_ep_ok')
    p('s_and_b32 %s, %s, 1' % (T(0), T(0)))
    p('s_mul_i32 %s, %s, 127' % (T(0), T(0)))
    p('s_add_u32 s3, s3, %s' % T(0))
    p('s_add_u32 s3, s3, 1')
    p('s_cmp_gt_u32 s3, 0x40000')
    p('s_cbranch_scc1 L_ep_ok')
    p('buffer_load_dword %s, %s, %s, 0 offen sc1' % (v(85), v(84), sr(S_WQ, 4)))
    p('s_branch L_ep_l')
    p.label('L_ep_ok')
    p('buffer_store_dword %s, %s, %s, %s offen sc1' % (v(85), v(82), sr(S_FL, 4), T(3)))
    p('v_mov_b32 %s, 163836' % v(84))
    p('ds_write_b32 %s, %s' % (v(84), v(85)))
    p('s_mov_b32 %s, %s' % (sr(S_CNT), T(2)))
    p('s_branch L_join')
    SPIN_BLOCKS.append("""L_lnp:
 s_mov_b32 s3, 0
L_lnp_l:
 buffer_load_dword %s, %s, %s, %s offen sc1
 s_add_u32 s3, s3, 1
 s_cmp_gt_u32 s3, 0x40000
 s_cbranch_scc1 L_lnp_ok
 s_waitcnt vmcnt(0)
 v_cmp_ne_u32 vcc, %s, %s
 s_cbranch_vccnz L_lnp_l
 s_branch L_lnp_ok""" % (v(86), v(83), sr(S_FL, 4), sr(S_CNT), v(85), v(86)))
    p.label('L_role_b')
    ct = code_touch('L_join', B + 90, B + 91, S_O)
    ct[2] = Ins('s_lshl_b32 s3, s3, 12')
    ct[3] = Ins('v_and_b32 %s, 31, %s' % (v(90), L))
    for x in ct:
        p.add(x)
    R0 = OPT.get('pf0', 8)
    p('s_lshr_b32 %s, s2, 3' % T(0))
    p('s_mul_i32 %s, %s, %d' % (T(0), T(0), R0 * 9216))
    p('s_and_b32 %s, s2, 3' % T(1))
    p('s_mul_i32 %s, %s, 2304' % (T(1), T(1)))
    p('s_add_u32 %s, %s, %s' % (T(0), T(0), T(1)))
    p('s_waitcnt lgkmcnt(0)')
    both = OPT.get('pfh', 1) == 0
    if both:
        p('s_cmp_eq_u32 %s, 3' % sr(S_W))
    else:
        p('s_bitcmp1_b32 s2, 2')
    p('s_cselect_b32 %s, s46, s44' % sr(S_H))
    p('s_cselect_b32 %s, s47, s45' % sr(S_H + 1))
    make_srd(p, S_H, S_H, T(0), (R0 - 1) * 9216 + 2304)
    for k in range(4 if both else 2):
        o = [Ins('v_add_u32 %s, %d, %s' % (v(92), 64 * k, L)) if both else Ins('v_add_u32 %s, %d, v0' % (v(92), 128 * k - 128))]
        div18(o, v(92), v(93), v(94))
        for x in o:
            p.add(x)
        p('v_mul_u32_u24 %s, 9216, %s' % (v(93), v(93)))
        p('v_lshl_add_u32 %s, %s, 7, %s' % (v(93), v(94), v(93)))
        p('buffer_load_dword %s, %s, %s, 0 offen' % (v(95 + k), v(93), sr(S_H, 4)))
    p('s_mov_b32 %s, 0x%x' % (T(3), WS_F + 4 * 32768))
    make_srd(p, S_FL, P_WS, T(3), 65536)
    p('v_lshlrev_b32 %s, 7, %s' % (v(83), L))
    p('s_mov_b32 %s, 0' % sr(S_CNT))
    p.label('L_join')
    p.finalize()
    return p.text().rstrip('\n')


def gen_slow_softmax():
    p = Prog()
    KA, VA, OK, OV, NM, MX = 120, 124, 132, 136, 140, 138
    NM = 44
    NM, OV, MX = 136, 32, 36
    p.label('L_slow')
    p('s_waitcnt vmcnt(0) lgkmcnt(0)')
    p('s_nop 15')
    p('s_add_u32 %s, %s, %d' % (T(0), sr(S_MK), 112 * 1024))
    p('s_cmp_eq_u32 %s, 3' % sr(S_W))
    p('s_cselect_b32 %s, %d, %s' % (T(0), 72 * 1024, T(0)))
    p('s_sub_u32 %s, %s, 0x10000' % (T(1), T(0)))
    for k in range(4):
        p('v_add_u32 %s, %s, %s' % (vr(KA + k), T(0), vr(V_KA + k)))
        p('v_subrev_u32 %s, %s, %s' % (vr(OK + k), sr(S_MK), vr(V_OK + k)))
    for k in range(8):
        p('v_add_u32 %s, %s, %s' % (vr(VA + k), T(1), vr(V_VA + k)))
    for k in range(2):
        p('v_subrev_u32 %s, %s, %s' % (vr(OV + k), sr(S_MK), vr(V_OV + k)))

    def load16(srd, vo, nvo):
        p('s_mov_b32 m0, %s' % T(0))
        for cc in range(4):
            p('buffer_load_dwordx4 %s, %s, %s offen offset:%d lds' % (vr(vo + cc % nvo), sr(srd, 4), T(2), cc * 1024))
        p('s_add_u32 %s, %s, 4096' % (T(2), T(2)))
        p('s_waitcnt vmcnt(0)')

    def qk(cin):
        p('s_mov_b32 %s, %s' % (T(2), T(3)))
        for kb in range(4):
            load16(S_K, OK, 4)
            for sx in range(4):
                p('ds_read_b128 %s, %s' % (ar(A_VF + (kb * 4 + sx) * 4, 4), vr(KA + sx)))
            p('s_waitcnt lgkmcnt(0)')
        for kb in range(4):
            for qb in range(4):
                for sx in range(4):
                    d = vr(Sreg(kb, qb), 4)
                    p('%s %s, %s, %s, %s' % (MF, d, ar(A_VF + (kb * 4 + sx) * 4, 4), vr(V_Q + (qb * 4 + sx) * 4, 4),
                                             cin(qb) if sx == 0 else d))
    for qb in range(4):
        p('v_mov_b32 %s, 0xff7fffff' % vr(MX + qb))
    p('s_mov_b32 %s, 0' % T(3))
    p.loop_begin(2, 's1')
    p.label('L_slow1')
    qk(lambda qb: '0')
    for qb in range(4):
        regs = [vr(Sreg(kb, qb) + r) for kb in range(4) for r in range(4)]
        for k in range(8):
            p('v_max3_f32 %s, %s, %s, %s' % (vr(MX + qb), vr(MX + qb), regs[2 * k], regs[2 * k + 1]))
    p('s_add_u32 %s, %s, 16384' % (T(3), T(3)))
    p('s_cmp_lt_u32 %s, 0x80000' % T(3))
    p('s_cbranch_scc1 L_slow1')
    p.loop_end()
    for x in xlane4('v_max_f32', [vr(MX + k) for k in range(4)], [vr(V_E + k) for k in range(4)]):
        p.add(x)
    for qb in range(4):
        for r in range(4):
            p('v_sub_f32 %s, 0, %s' % (vr(NM + qb * 4 + r), vr(MX + qb)))
        p('v_mov_b32 %s, 0' % vr(V_L + qb))
    for i in range(128):
        p('v_accvgpr_write_b32 %s, 0' % ar(A_O + i))
    p('s_mov_b32 %s, 0' % T(3))
    lp = p.loop_begin(3, 's2')
    p.label('L_slow2')
    qk(lambda qb: vr(NM + qb * 4, 4))
    for i in range(64):
        for x in sm_instrs(1, i):
            if x is not None:
                p.add(x)
    p('s_cmp_eq_u32 %s, 0x7c000' % T(3))
    p('s_cbranch_scc1 L_slow_done')
    p.loop_mark_exit(lp)
    p('s_mov_b32 %s, %s' % (T(2), T(3)))
    for ks in range(2):
        for j in range(2):
            load16(S_V, OV, 2)
            for db in range(8):
                p('ds_read_b64_tr_b16 %s, %s' % (ar(A_VF + db * 8 + ks * 4 + 2 * j, 2), vr(VA + db)))
            p('s_waitcnt lgkmcnt(0)')
    for db in range(8):
        for qb in range(4):
            for ks in range(2):
                o = ar(A_O + (db * 4 + qb) * 4, 4)
                p('%s %s, %s, %s, %s' % (MF, o, ar(A_VF + db * 8 + ks * 4, 4), vr(Preg(1, qb, ks), 4), o))
    p('s_add_u32 %s, %s, 16384' % (T(3), T(3)))
    p('s_branch L_slow2')
    p.loop_end()
    p.label('L_slow_done')
    for db in range(4):
        for ks in range(2):
            for j in range(2):
                x = v_load(31, db, ks, j, False)
                x.lds = None
                p.add(x)
    p('s_waitcnt vmcnt(0) lgkmcnt(0)')
    p('s_nop 15')
    p('s_branch L_slow_ret')
    p.finalize()
    return p.text().rstrip('\n')


def gen_main(diag=False):
    p = Prog()
    del SPIN_BLOCKS[:]
    _ct[0] = 0

    def stamp(k):
        if diag:
            p('s_memtime %s' % sr(S_DG, 2))
            p('s_waitcnt lgkmcnt(0)')
            p('v_writelane_b32 v1, %s, %d' % (sr(S_DG), k))
            p('s_memrealtime %s' % sr(S_DG, 2))
            p('s_waitcnt lgkmcnt(0)')
            p('v_writelane_b32 v1, %s, %d' % (sr(S_DG), k + 16))

    def addall(lst):
        for x in lst:
            p.add(x)

    def rstamp(k):
        if diag and OPT.get('sst'):
            p('s_memrealtime %s' % sr(S_DG, 2))
            p('s_waitcnt lgkmcnt(0)')
            p('v_writelane_b32 v1, %s, %d' % (sr(S_DG), 32 + k))
    p('s_cmp_ge_u32 s2, 256')
    p('s_cbranch_scc1 L_end')
    p('s_load_dwordx4 s[44:47], s[0:1], 48')
    p('s_load_dwordx2 %s, s[0:1], 88' % sr(P_WS, 2))
    p('s_load_dwordx4 s[36:39], s[0:1], 8')
    p('s_load_dwordx2 s[40:41], s[0:1], 24')
    p('s_load_dwordx2 %s, s[0:1], 0' % sr(P_X, 2))
    p('s_load_dwordx2 %s, s[0:1], 32' % sr(P_WO, 2))
    p('s_load_dwordx4 %s, s[0:1], 64' % sr(P_W2, 4))
    FU = OPT.get('fuse', 2)
    if FU:
        p('s_load_dwordx2 s[50:51], s[0:1], 80')
    stamp(0)
    p('v_and_b32 %s, 63, v0' % L)
    p('v_lshrrev_b32 %s, 6, v0' % t0)
    p('v_readfirstlane_b32 %s, %s' % (sr(S_W), t0))
    p('s_and_b32 %s, s2, 3' % T(0))
    p('s_lshl_b32 %s, %s, 3' % (T(0), T(0)))
    p('s_bfe_u32 %s, s2, 0x30003' % T(1))
    p('s_add_u32 %s, %s, %s' % (sr(S_HD), T(0), T(1)))
    p('s_and_b32 %s, s2, 4' % T(0))
    p('s_lshr_b32 %s, s2, 6' % T(1))
    p('s_add_u32 %s, %s, %s' % (sr(S_QT), T(0), T(1)))
    if FU == 2:
        p('s_memrealtime s[24:25]')
        p('s_nop 4')
        p.raw(gen_start_roles(diag))
        rstamp(0)
    if FU == 1:
        lnA, lnL, lnC = ln_parts()
        ct = code_touch('L_start', 120, 121, S_FL)
        ct[2] = Ins('s_lshl_b32 s3, s3, 12')
        ct[3] = Ins('v_and_b32 v120, 31, %s' % L)
        addall(ct)
        p.label('L_start')
        addall(lnA)
        p('s_memrealtime s[24:25]')
        p('v_or_b32 v125, s2, v0')
        p('v_min_u32 v125, 1, v125')
        p('v_lshlrev_b32 v125, 20, v125')
        p('s_waitcnt lgkmcnt(0)')
        make_srd(p, S_WQ, 50, None, 256)
        p('s_or_b32 s3, s24, 1')
        p('v_mov_b32 v126, s3')
        p('buffer_store_dword v126, v125, %s, 0 offen sc1' % sr(S_WQ, 4))
        addall(lnL)
        rstamp(0)
    p('v_lshlrev_b32 %s, 4, %s' % (vr(V_L16), L))
    p('s_and_b32 %s, %s, 1' % (T(2), sr(S_HD)))
    p('s_lshl_b32 %s, %s, 1' % (T(2), T(2)))
    p('v_add_u32 %s, %s, %s' % (t3, T(2), L))
    p('v_mul_u32_u24 %s, 3641, %s' % (vr(V_T + 4), L))
    p('v_mul_u32_u24 %s, 3641, %s' % (vr(V_T + 5), t3))
    p('s_movk_i32 %s, 9216' % T(9))
    p('s_movk_i32 %s, -288' % T(10))
    vo = []
    for i in range(9):
        o = []
        o.append(Ins('v_add_u32 %s, %d, %s' % (t0, 64 * i * 3641, vr(V_T + 4))))
        o.append(Ins('v_add_u32 %s, %d, %s' % (t1, 64 * i * 3641, vr(V_T + 5))))
        o.append(Ins('v_lshrrev_b32 %s, 16, %s' % (t0, t0)))
        o.append(Ins('v_lshrrev_b32 %s, 16, %s' % (t1, t1)))
        o.append(Ins('v_lshlrev_b32 %s, 4, %s' % (t2, t3)) if i == 0 else Ins('v_add_u32 %s, %d, %s' % (t2, 4096 if i % 4 == 0 else 0, t2)))
        o.append(Ins('v_mad_u32_u24 %s, %s, %s, %s' % (t0, t0, T(9), t2)))
        o.append(Ins('v_mad_i32_i24 %s, %s, %s, %s' % (vr(V_OW + i), t1, T(10), t0)))
        if i % 4:
            del o[4]
        vo.append(o)
    for o in vo[:4]:
        addall(o)
    p('s_mul_i32 %s, %s, 9216' % (sr(S_M1), sr(S_W)))
    p('s_and_b32 %s, %s, 1' % (T(3), sr(S_W)))
    p('s_mul_i32 %s, %s, %d' % (sr(S_OFFW), T(3), 32 * 9216))
    p('s_mul_i32 %s, %s, 288' % (T(2), sr(S_HD)))
    p('s_sub_u32 %s, %d, %s' % (T(3), 576 * 9216, T(2)))
    p('s_lshl_b32 %s, %s, 2' % (T(6), sr(S_QT)))
    p('s_add_u32 %s, %s, %s' % (T(6), T(6), sr(S_W)))
    p('s_mul_i32 %s, %s, %d' % (T(7), T(6), 4 * 18 * 1024))
    p('s_cmp_lt_u32 %s, 2' % sr(S_W))
    p('s_waitcnt lgkmcnt(0)')
    p('s_cselect_b32 s48, s44, s46')
    p('s_cselect_b32 s49, s45, s47')
    make_srd(p, S_WS, 48, T(2), T(3))
    def ln_now():
        p('v_mov_b32 v127, 0')
        p('s_mov_b32 %s, 0' % sr(S_CNT))
        rstamp(1)
        p.wait_regs(vr(72, 12))
        p.add(poll_issue(S_CNT, 128, 127, S_WQ))
        rstamp(2)
        addall(lnC)
        rstamp(3)
        poll_check(p, 'ep', S_CNT, 'v_cmp_eq_u32 vcc, 0', 128, 127, S_WQ, sleep=2)
        p('v_readfirstlane_b32 %s, v128' % sr(S_EP))

    def w_touch0():
        R0 = OPT.get('pf0', 8)
        if not R0:
            return
        p('s_lshr_b32 %s, s2, 3' % T(0))
        p('s_mul_i32 %s, %s, %d' % (T(0), T(0), R0 * 9216))
        p('s_and_b32 %s, s2, 3' % T(1))
        p('s_mul_i32 %s, %s, 2304' % (T(1), T(1)))
        p('s_add_u32 %s, %s, %s' % (T(0), T(0), T(1)))
        p('s_bitcmp1_b32 s2, 2')
        p('s_cselect_b32 %s, s46, s44' % sr(S_H))
        p('s_cselect_b32 %s, s47, s45' % sr(S_H + 1))
        make_srd(p, S_H, S_H, T(0), (R0 - 1) * 9216 + 2304)
        o = []
        div18(o, 'v0', 'v122', 'v123')
        addall(o)
        p('v_mul_u32_u24 v122, 9216, v122')
        p('v_lshl_add_u32 v122, v123, 7, v122')
        p('buffer_load_dword v124, v122, %s, 0 offen' % sr(S_H, 4))
    ORD = OPT.get('ord', 1)
    if FU == 2:
        make_srd(p, S_XN, P_WS, T(7), 4 * 18 * 1024)
    elif FU:
        p('s_mov_b32 %s, %s' % (sr(S_RO), T(7)))
        if ORD >= 1:
            if ORD == 1:
                w_touch0()
            for o in vo[4:]:
                addall(o)
            vo = vo[:4]
            ln_now()
            if ORD == 2:
                w_touch0()
    else:
        make_srd(p, S_XN, P_WS, T(7), 4 * 18 * 1024)
    d0 = p1_dma(0)
    addall(d0[:6])
    for o in vo[4:]:
        addall(o)
    addall(d0[6:] + (xn_loads(0, 0) if not FU else []))
    if FU == 2:
        rstamp(1)
        p('s_cmp_eq_u32 %s, 0' % sr(S_W))
        p('s_cbranch_scc1 L_lnp')
        p.label('L_lnp_ok')
        p('s_waitcnt lgkmcnt(0)')
        p('s_barrier')
        rstamp(2)
        addall(xn_loads(0, 0))
        p('v_mov_b32 v64, 163836')
        p('ds_read_b32 v65, v64')
        p('v_readfirstlane_b32 %s, v65' % sr(S_EP))
    if FU == 1 and ORD == 0:
        w_touch0()
        ln_now()
    if OPT.get('pro', 1) == 0:
        addall(p1_dma(1) + xn_loads(1, 1) + p1_dma(2))
    PF0 = OPT.get('pf0', 8)
    assert PF0 % 2 == 0
    p('s_lshr_b32 %s, s2, 3' % T(0))
    p('s_and_b32 %s, s2, 3' % T(1))
    p('s_lshl_b32 %s, %s, 1' % (T(2), T(0)))
    p('s_and_b32 %s, %s, 1' % (T(3), sr(S_W)))
    p('s_add_u32 %s, %s, %s' % (T(2), T(2), T(3)))
    p('s_mul_i32 %s, %s, 9216' % (T(2), T(2)))
    p('s_mul_i32 %s, %s, 2304' % (T(3), T(1)))
    p('s_add_u32 %s, %s, %s' % (T(2), T(2), T(3)))
    p('s_sub_u32 %s, %d, %s' % (T(9), 576 * 9216, T(2)))
    p('s_lshl_b32 %s, %s, 2' % (T(4), T(0)))
    p('s_add_u32 %s, %s, %s' % (T(4), T(4), sr(S_W)))
    p('s_lshl_b32 %s, %s, 13' % (T(4), T(4)))
    p('s_lshl_b32 %s, %s, 11' % (T(3), T(1)))
    p('s_add_u32 %s, %s, %s' % (T(4), T(4), T(3)))
    p('s_sub_u32 %s, %d, %s' % (T(10), 576 * 8192, T(4)))
    p('s_lshl_b32 %s, %s, 19' % (T(5), sr(S_HD)))
    make_srd(p, S_K, 36, T(5), 0x80000)
    make_srd(p, S_V, 38, T(5), 0x80000)
    p('s_lshl_b32 %s, %s, 8' % (T(5), sr(S_HD)))
    p('s_sub_u32 %s, %d, %s' % (T(3), 576 * 8192, T(5)))
    make_srd(p, S_WQ, 40, T(5), T(3))
    make_srd(p, S_A1, 48, T(2), T(9))
    make_srd(p, S_A2, 40, T(4), T(10))
    p('v_lshlrev_b32 %s, 7, %s' % (t1, L))
    p('v_mov_b32 %s, 0x7f000000' % t2)
    p('v_cmp_gt_u32 vcc, 18, %s' % L)
    p('v_cndmask_b32 %s, %s, %s, vcc' % (vr(V_SW), t2, t1))
    p('v_cmp_gt_u32 vcc, 16, %s' % L)
    p('v_cndmask_b32 %s, %s, %s, vcc' % (vr(V_SW + 1), t2, t1))
    tw = lambda c: [Ins('s_mov_b32 %s, %d' % (T(7), c * 64 * 9216)),
                    Ins('buffer_load_dword %s, %s, %s, %s offen sc0' % (vr(V_SW + 2), vr(V_SW), sr(S_A1, 4), T(7)))]
    tq = lambda k: [Ins('s_mov_b32 %s, %d' % (T(7), k * 128 * 8192)),
                    Ins('buffer_load_dword %s, %s, %s, %s offen sc0' % (vr(V_SW + 3), vr(V_SW + 1), sr(S_A2, 4), T(7)))]
    touch = {c: [] for c in range(7)}
    for k, c in enumerate(range(PF0 // 2, 9)):
        touch[min(k, 6)] += tw(c)
    for k in range(5):
        touch[k + OPT.get('tq0', 0)] += tq(4 - k)
    for c in touch:
        for x in touch[c]:
            x.wr = [r for r in x.wr if r[0] != 'v']
    if not OPT.get('pf1', 1):
        touch = {}
    if OPT.get('fold', 0):
        p('s_mov_b32 %s, 0x%x' % (sr(S_C), f2u(-1.0 / 128 ** 0.5)))
        p('s_mov_b32 %s, 0x%x' % (sr(S_NL), f2u(-1.0 / LOG2E)))
    else:
        p('s_mov_b32 %s, 0x%x' % (sr(S_C), f2u(LOG2E / 128 ** 0.5)))
        p('s_mov_b32 %s, 0x%x' % (sr(S_NL), f2u(-LOG2E)))
    p('s_lshl_b32 %s, %s, 12' % (sr(S_MK), sr(S_W)))
    p('s_mov_b32 %s, 0' % sr(S_OFFK))
    p('s_mov_b32 %s, 0' % sr(S_OFFV))
    p('v_lshrrev_b32 %s, 2, %s' % (t0, L))
    p('v_mul_u32_u24 %s, 288, %s' % (t1, t0))
    p('v_and_b32 %s, 3, %s' % (t2, L))
    p('v_lshl_add_u32 %s, %s, 3, %s' % (vr(V_A1), t2, t1))
    for k in range(1, 4):
        p('v_add_u32 %s, %d, %s' % (vr(V_A1 + k), k * 36864, vr(V_A1)))
    p('v_and_b32 %s, 15, %s' % (t0, L))
    p('v_lshrrev_b32 %s, 4, %s' % (t1, L))
    p('v_lshlrev_b32 %s, 1, %s' % (t3, t1))
    p('v_xor_b32 %s, %s, %s' % (t3, t0, t3))
    p('v_lshlrev_b32 %s, 4, %s' % (t3, t3))
    p('v_lshl_add_u32 %s, %s, 13, %s' % (vr(V_OQ), t1, t3))
    p('v_xor_b32 %s, 128, %s' % (vr(V_OQ + 1), vr(V_OQ)))
    p('s_lshl_b32 %s, %s, 17' % (sr(S_OFFQ), sr(S_W)))
    addall(kv_dma_setup())
    p('s_mul_i32 %s, %s, %d' % (T(3), T(6), 4 * HS()))
    p('s_add_u32 %s, %s, 0x%x' % (T(3), T(3), WS_H))
    make_srd(p, S_H, P_WS, T(3), 4 * HS())
    p('s_mul_i32 %s, %s, %d' % (T(3), sr(S_QT), 16 * OS()))
    p('s_lshl_b32 %s, %s, 12' % (T(4), sr(S_HD)))
    p('s_add_u32 %s, %s, %s' % (T(3), T(3), T(4)))
    p('s_add_u32 %s, %s, 0x%x' % (T(3), T(3), WS_O))
    p('s_sub_u32 %s, %d, %s' % (T(5), 16 * OS(), T(4)))
    make_srd(p, S_O, P_WS, T(3), T(5))
    p('s_mov_b32 %s, 0x%x' % (T(3), WS_F))
    make_srd(p, S_FL, P_WS, T(3), 5 * 32768)
    p('s_lshr_b32 %s, %s, 3' % (sr(S_SP), sr(S_HD)))
    p('s_and_b32 %s, %s, 7' % (T(0), sr(S_HD)))
    p('s_lshl_b32 %s, %s, 3' % (sr(S_TILE), sr(S_QT)))
    p('s_add_u32 %s, %s, %s' % (sr(S_TILE), sr(S_TILE), T(0)))
    p('s_lshl_b32 %s, %s, 6' % (T(0), sr(S_SP)))
    p('s_add_u32 %s, %s, %s' % (T(0), T(0), sr(S_TILE)))
    p('s_lshl_b32 %s, %s, 7' % (sr(S_FWG), T(0)))
    p('s_lshl_b32 %s, %s, 13' % (sr(S_FGR), sr(S_SP)))
    p('s_mul_i32 %s, %s, 9' % (T(2), sr(S_HD)))
    p('s_add_u32 %s, %s, 1' % (T(2), T(2)))
    p('s_lshr_b32 %s, %s, 1' % (T(2), T(2)))
    p('s_lshl_b32 %s, %s, 10' % (sr(S_HS), T(2)))
    p('s_bitcmp1_b32 %s, 0' % sr(S_HD))
    p('s_mov_b32 %s, 4096' % T(3))
    p('s_cselect_b32 %s, %d, %s' % (T(3), -1024 + 8, T(3)))
    p('s_add_u32 %s, %s, %s' % (sr(S_HS + 4), sr(S_HS), T(3)))
    for qb in range(1, 4):
        p('s_add_u32 %s, %s, %d' % (sr(S_HS + qb), sr(S_HS), qb * HS()))
        p('s_add_u32 %s, %s, %d' % (sr(S_HS + 4 + qb), sr(S_HS + 4), qb * HS()))
    if OPT.get('pro', 1) == 1:
        addall(p1_dma(1))
    if FU == 1:
        make_srd(p, S_XN, P_WS, sr(S_RO), 4 * 18 * 1024)
        p('s_lshl_b32 %s, %s, 12' % (T(2), sr(S_QT)))
        p('s_add_u32 %s, %s, %d' % (T(2), T(2), 4 * 32768))
        p('s_lshl_b32 %s, %s, 7' % (T(3), sr(S_HD)))
        p('s_add_u32 %s, %s, %s' % (T(3), T(3), T(2)))
        p('v_lshlrev_b32 v125, 20, v0')
        p('v_and_b32 v129, 31, %s' % L)
        p('v_lshlrev_b32 v129, 7, v129')
        rstamp(4)
        p.need(('XN', 0))
        rstamp(5)
        p('s_barrier')
        rstamp(6)
        p('buffer_store_dword v128, v125, %s, %s offen sc1' % (sr(S_FL, 4), T(3)), lds=('flag', ('XN', 0)))
        if OPT.get('lnpoll', 0) == 1:
            SPIN_BLOCKS.append("""L_lnp:
 s_mov_b32 s3, 0
L_lnp_l:
 buffer_load_dword v130, v129, %s, %s offen sc1
 s_add_u32 s3, s3, 1
 s_cmp_gt_u32 s3, 0x40000
 s_cbranch_scc1 L_lnp_ok
 s_waitcnt vmcnt(0)
 v_cmp_ne_u32 vcc, %s, v130
 s_cbranch_vccz L_lnp_ok
 s_sleep 2
 s_branch L_lnp_l""" % (sr(S_FL, 4), T(2), sr(S_EP)))
            p('s_cmp_eq_u32 %s, 0' % sr(S_W))
            p('s_cbranch_scc1 L_lnp')
            p.label('L_lnp_ok')
            p('s_barrier')
        else:
            p.add(poll_issue(S_T0 + 2, 130, 129))
            poll_check(p, 'ln', S_T0 + 2, 'v_cmp_ne_u32 vcc, %s' % sr(S_EP), 130, 129, sleep=2)
        addall(xn_loads(0, 0))
    stamp(1)

    if OPT.get('donly'):
        p('s_waitcnt vmcnt(0)')
        addall(d_scalar_setup1() + d_scalar_setup2() + k_read_setup() + v_read_setup())
        p('v_lshlrev_b32 %s, 20, v0' % vr(V_FST))
        p('v_mov_b32 %s, 1' % vr(V_ONE))
        p('v_lshlrev_b32 %s, 7, %s' % (vr(V_FOFF), L))
        p('v_mov_b32 %s, 0' % vr(V_RV))
        p('s_mov_b32 %s, 0' % sr(S_OFFW))
        for k in range(2, 7):
            stamp(k)
        p.raw(' s_branch L_donly')
    g = Gaps(p)
    seq = GemmSeq(p, g)
    pool = deque(('a', 72 + 4 * k) for k in range(14))

    def alloc():
        while not pool:
            x = (g.st or g.lo).popleft()
            g.over += max(1, cost(x))
            g.emit(x)
        for t in pool:
            if t[0] == 'v':
                pool.remove(t)
                return t
        return pool.popleft()

    XB = {}
    ring = lambda buf: [('a', A_B + buf * 32 + 4 * k) for k in range(8)]

    def xn_l(c, tiles):
        out = []
        for qb in range(4):
            out.append(Ins('s_mov_b32 %s, %d' % (T(qb), qb * 18 * 1024 + c * 2048)))
            for ks in range(2):
                out.append(Ins('buffer_load_dwordx4 %s, %s, %s, %s offen offset:%d' % (
                    rg(tiles[qb * 2 + ks]), vr(V_L16), sr(S_XN, 4), T(qb), ks * 1024)))
        return out

    def aq_setup():
        o = []
        a = lambda s: o.append(Ins(s))
        a('v_lshrrev_b32 %s, 2, %s' % (t0, L))
        a('v_and_b32 %s, 7, %s' % (t1, t0))
        a('v_lshlrev_b32 %s, 1, %s' % (t1, t1))
        a('v_and_b32 %s, 3, %s' % (t2, L))
        a('v_xor_b32 %s, %s, %s' % (t1, t1, t2))
        a('v_lshlrev_b32 %s, 4, %s' % (t1, t1))
        a('v_lshl_add_u32 %s, %s, 8, %s' % (vr(V_AQ), t0, t1))
        for s in range(1, 4):
            a('v_xor_b32 %s, %d, %s' % (vr(V_AQ + s), 64 * s, vr(V_AQ)))
        for rgn in range(1, 3):
            for s in range(4):
                a('v_add_u32 %s, 0x%x, %s' % (vr(V_AQ + rgn * 4 + s), rgn * 65536, vr(V_AQ + s)))
        return o

    def mk_mf(acc, chunks, xb, first):
        def mf(dst):
            out = []
            for qb in range(4):
                for ci, c in enumerate(chunks):
                    for ks in range(2):
                        def th(qb=qb, ci=ci, c=c, ks=ks):
                            a = rg(acc(qb))
                            cin = '0' if (first and ci == 0 and ks == 0) else a
                            return '%s %s, %s, %s, %s' % (MF, a, ar(dst + ci * 8 + ks * 4, 4), rg(xb(c)[qb * 2 + ks]), cin)
                        out.append(th)
            return out
        return mf

    for c in range(9):
        XB[c] = ring(c % 3)
    for c in range(7):
        for blk in range(18):
            hook = None
            if blk == 0:
                def hook(c=c):
                    if OPT.get('cst'):
                        p('s_memrealtime %s' % sr(S_DG, 2))
                        p('s_waitcnt lgkmcnt(0)')
                        p('v_writelane_b32 v1, %s, %d' % (sr(S_DG), 32 + c))
                    g.drop = {0: (), 1: ('dma',), 2: ('vld',), 3: ('dma', 'vld'), 4: ('dma', 'vld', 'dsr')}[OPT.get('drop', 0)]
                    g.vm_gap = OPT.get('vg1', 5) if c > 1 else OPT.get('vg0', 5)
                    if c == 0 and OPT.get('pro', 1):
                        g.hi.extend(xn_l(1, XB[1]) + p1_dma(2))
                    g.hi.extend(touch.get(c, []))
                    xl = xn_l(c + 2, XB[c + 2])
                    if c == 0:
                        g.hi.extend(xl + p1_dma(3))
                    else:
                        g.hi.extendleft(reversed(xl)) if OPT.get('xfirst', 0) else g.hi.extend(xl)
                    if c == 4:
                        g.hi.extend(wq_dma(8))
                    if c == 4 and OPT.get('ct1', 1):
                        g.hi.extend(code_touch('L_c1', V_SW + 4, V_SW + 5, S_A3))
                    if c == 6:
                        assert not any(y.kind == 'dma' and y.lds[1][0] == 'W' for y in g.hi)
                        g.lo.extend(aq_setup())
            seq.add(lambda dst, c=c, blk=blk: p1_reads(c, blk, dst), 8,
                    mk_mf(lambda qb, blk=blk: FT[(blk, qb)], [c], lambda c: XB[c], c == 0), hook=hook,
                    bar=[(PS(c), ('W', c))] if blk == 0 else None,
                    bwait=[rg(t) for t in XB[c]] if blk == 0 else None)
            if blk == 0 and 1 <= c <= 5:
                seq.groups[-1]['post'] = lambda c=c: g.hi.extend(p1_dma(c + 3))
            if blk == 0 and c == 6:
                seq.groups[-1]['post'] = lambda: g.hi.extend(wq_dma(7))
    CT = OPT.get('cap_t', 3)
    for blk in range(18):
        hook = None
        if blk >= 2 and blk % 2 == 0:
            def hook(b=blk // 2 - 1):
                for qb in range(4):
                    g.lo.extend(swiglu_unit(b, qb, g.n + 3, pool))
        if blk == 0:
            def hook():
                g.drop = ()
                p.label('L_c1')
                stamp(2)
        seq.add(lambda dst, blk=blk: p1_reads(7, blk, dst) + p1_reads(8, blk, dst + 8), 16,
                mk_mf(lambda qb, blk=blk: FT[(blk, qb)], [7, 8], lambda c: XB[c], False), hook=hook,
                bar=[(PS(7), ('W', 7)), (PS(8), ('W', 8))] if blk == 0 else None,
                bwait=[rg(t) for t in XB[7] + XB[8]] if blk == 0 else None, cap=CT)
        if blk == 0:
            seq.groups[-1]['post'] = lambda: g.hi.extend(wq_dma(6) + wq_dma(5))
    QT = {}

    def qacc(bq, qb):
        if (bq, qb) not in QT:
            QT[(bq, qb)] = alloc()
        return QT[(bq, qb)]
    XQ = {8: XB[8], 7: XB[7], 6: XB[6], 4: ring(1), 3: ring(2), 2: ring(0), 0: ring(1)}
    C2 = OPT.get('cap_p2', 2)
    qn = lambda c: (LS(WQ_SLOT[c]), ('Q', c))
    for bq in range(8):
        hook = None
        if bq == 0:
            def hook():
                stamp(3)
                g.vm_gap = OPT.get('vg2', 4)
                g.st_w = OPT.get('stw2', 1)
                for qb in range(4):
                    g.lo.extend(swiglu_unit(8, qb, g.n + 3, pool))
        if bq == 3:
            def hook():
                XQ[5] = XQ[1] = [alloc() for _ in range(8)]
                g.hi.extend(xn_l(5, XQ[5]))
        seq.add(lambda dst, bq=bq: p2_reads(8, bq, dst) + p2_reads(7, bq, dst + 8), 16,
                mk_mf(lambda qb, bq=bq: qacc(bq, qb), [8, 7], lambda c: XQ[c], True), hook=hook,
                bar=[qn(8), qn(7)] if bq == 0 else None, cap=C2)
        if bq == 0:
            seq.groups[-1]['post'] = lambda: g.hi.extend(
                wq_dma(4) + wq_dma(3) + wq_dma(2))
    for c in (6, 5, 4, 3, 2):
        for bq in range(8):
            hook = None
            if bq == 0:
                def hook(c=c):
                    for cc in {6: (4, 3), 5: (2,), 4: (1,), 3: (0,), 2: ()}[c]:
                        g.hi.extend(xn_l(cc, XQ[cc]))
            seq.add(lambda dst, c=c, bq=bq: p2_reads(c, bq, dst), 8,
                    mk_mf(lambda qb, bq=bq: qacc(bq, qb), [c], lambda c: XQ[c], False), hook=hook,
                    bar=[qn(c)] if bq == 0 else None, cap=C2,
                    bwait=(lambda c=c: [rg(t) for t in XQ[c]]) if bq == 0 else None)
            if bq == 0:
                seq.groups[-1]['lazyb'] = c
                post = {6: lambda: g.hi.extend(wq_dma(1) + wq_dma(0)),
                        3: lambda: g.hi.extend(dma_unit('K', 0, False)),
                        2: lambda: g.hi.extend(dma_unit('K', 1, False) + dma_unit('V', 0, False))}.get(c)
                seq.groups[-1]['post'] = post
    for bq in range(8):
        hook = None
        if bq == 0:
            def hook():
                print('swiglu backlog at last P2 group:', len(g.hi), len(g.lo), 'over', g.over, file=sys.stderr)
                g.hi.extend(dma_unit('K', 2, False) + dma_unit('V', 1, False))
        if bq >= 2 and bq % 2 == 0:
            def hook(s=bq // 2 - 1):
                for qb in range(4):
                    g.lo.extend(qcvt_unit(qb, s, QT, g.n + 3))
        seq.add(lambda dst, bq=bq: p2_reads(1, bq, dst) + p2_reads(0, bq, dst + 8), 16,
                mk_mf(lambda qb, bq=bq: qacc(bq, qb), [1, 0], lambda c: XQ[c], False), hook=hook,
                bar=[qn(1), qn(0)] if bq == 0 else None, cap=C2,
                bwait=(lambda: [rg(t) for t in XQ[1] + XQ[0]]) if bq == 0 else None)
    seq.run()
    stamp(4)
    print('G backlog at end:', len(g.hi), len(g.lo), 'over', g.over, 'waste', g.waste, file=sys.stderr)
    for qb in range(4):
        g.lo.extend(qcvt_unit(qb, 3, QT, 0))
    addall(k_read_setup())
    p.need(('lgkm', 'all'), (LS(0), ('K', 0)))
    p('s_barrier')
    for kb in range(4):
        for s in range(4):
            p.add(k_load(0, kb, s, False))
    g.flush()
    g.vm_gap = 4
    g.hi.extend(dma_unit('K', 3, False))
    g.hi.extend(d_scalar_setup1())
    g.lo.extend(Ins('v_accvgpr_write_b32 %s, 0' % ar(A_O + i)) for i in range(128))
    for kb in range(4):
        for qb in range(4):
            for s in range(4):
                d = vr(Sreg(kb, qb), 4)
                g.gap('%s %s, %s, %s, %s' % (MF, d, ar(A_KF + kb * 16 + s * 4, 4), vr(V_Q + (qb * 4 + s) * 4, 4), '0' if s == 0 else d))
    g.flush()
    addall(v_read_setup())
    for qb in range(4):
        p('v_mov_b32 %s, 0' % vr(V_L + qb))
    p('v_lshlrev_b32 %s, 20, v0' % vr(V_FST))
    if not FU:
        p('s_mov_b32 %s, 1' % sr(S_EP))
    p('v_mov_b32 %s, %s' % (vr(V_ONE), sr(S_EP)))
    p('v_lshlrev_b32 %s, 7, %s' % (vr(V_FOFF), L))
    addall(code_touch('L_att_tail', 32, 33, S_DWO)[:-1])
    p('v_mov_b32 %s, %s' % (vr(V_RN), L))
    addall(repack_pat())
    ms = [vr(V_E + qb) for qb in range(4)]
    for step in range(8):
        for qb in range(4):
            regs = [vr(Sreg(kb, qb) + r) for kb in range(4) for r in range(4)]
            if step == 0:
                p('v_max3_f32 %s, %s, %s, %s' % (ms[qb], regs[0], regs[1], regs[2]))
            elif step < 7:
                p('v_max3_f32 %s, %s, %s, %s' % (ms[qb], ms[qb], regs[2 * step + 1], regs[2 * step + 2]))
            else:
                p('v_max_f32 %s, %s, %s' % (ms[qb], ms[qb], regs[15]))
    addall(xlane4('v_max_f32', ms, [vr(V_T + k) for k in range(4)]))
    for qb in range(4):
        for r in range(4):
            p('v_sub_f32 %s, 0, %s' % (vr(V_NM + qb * 4 + r), ms[qb]))
    for kb in range(4):
        for qb in range(4):
            for r in range(4):
                x = vr(Sreg(kb, qb) + r)
                p('v_add_f32 %s, %s, %s' % (x, x, vr(V_NM + qb * 4)))
    stamp(5)
    def sm_plain(uu, i0, i1):
        prev = []
        for i in range(i0, i1):
            ex, ad, cv = sm_instrs(uu, i)
            p.add(ex)
            addall(prev)
            prev = [ad] + ([cv] if cv else [])
        p('s_nop 0')
        addall(prev)
    sm_plain(0, 0, 28)
    att_slots(p, 0, 0, 64, False, pv=False, sm_cur=False)
    sm_plain(0, 28, 60)
    p('s_mov_b32 %s, 0' % sr(S_CNT))
    p('s_lshl_b32 %s, %s, 4' % (sr(S_OFFQ), sr(S_W)))
    p('s_add_u32 %s, %s, 2' % (sr(S_OFFQ), sr(S_OFFQ)))
    p.wait_regs(ar(A_KF, 16))
    lp = p.loop_begin(7, 'att')
    p('.p2align 6')
    p.label('L_att')
    rtag = ('R', 0)
    g.vm_gap = 8

    def rp_loads():
        g.hi.append(Ins('buffer_load_dwordx4 %s, %s, %s, 0 offen nt' % (vr(V_RQ[0], 4), vr(V_RV), sr(S_A1, 4))))
        g.hi.append(Ins('buffer_load_dwordx4 %s, %s, %s, 0 offen nt' % (vr(V_RQ[1], 4), vr(V_RV), sr(S_A2, 4))))

    def rp_stores():
        g.hi.append(Ins('buffer_store_dwordx4 %s, %s, %s, %s offen sc1' % (vr(V_RQ[0], 4), vr(V_L16), sr(S_A3, 4), sr(S_RO)), lds=rtag))
        g.hi.append(Ins('buffer_store_dwordx4 %s, %s, %s, %s offen sc1' % (vr(V_RQ[1], 4), vr(V_L16), sr(S_A4, 4), sr(S_RO)), lds=rtag))
        g.hi.append(Ins('s_add_u32 %s, %s, 1024' % (sr(S_RO), sr(S_RO))))
    att_slots(p, 0, 64, 96, True)
    rp_loads()
    att_slots(p, 0, 96, 128, True, g=g, cap=4)
    assert not g.hi
    att_slots(p, 1, 0, 64, True)
    p('s_add_u32 %s, %s, 1' % (sr(S_CNT), sr(S_CNT)))
    p('s_cmp_eq_u32 %s, 7' % sr(S_CNT))
    p('s_cbranch_scc1 L_att_tail')
    p.loop_mark_exit(lp)
    g.lo.extend(repack_pat())
    att_slots(p, 1, 64, 128, True, g=g, cap=3)
    assert not g.lo
    att_slots(p, 2, 0, 30, True, extra_need=[rtag, ('H', 0)])
    if OPT.get('plain_h'):
        SPIN_BLOCKS.append('L_wbh:\n buffer_wbl2 sc1\n s_branch L_wbh_done')
        p('s_cmp_eq_u32 %s, %s' % (sr(S_CNT), sr(S_OFFQ)))
        p('s_cbranch_scc1 L_wbh')
        p.label('L_wbh_done')
    p('s_cmp_eq_u32 %s, 4' % sr(S_CNT))
    p('s_cselect_b32 %s, %s, 0x100000' % (T(0), sr(S_FWG)))
    fl = flag_store(S_T0, 'H')
    g.hi.append(fl)
    g.vm_gap = 3
    rp_stores()
    att_slots(p, 2, 30, 66, True, g=g, cap=4)
    assert not g.hi
    att_slots(p, 2, 66, 96, True)
    g.vm_gap = 8
    rp_loads()
    att_slots(p, 2, 96, 128, True, g=g, cap=4)
    assert not g.hi
    g.lo.extend(repack_pat())
    att_slots(p, 3, 0, 96, True, g=g, cap=3)
    assert not g.lo
    if OPT.get('ct2', 1):
        g.hi.append(Ins('global_load_dword v33, v32, %s' % sr(S_DWO, 2)))
    att_slots(p, 3, 96, 128, True, g=g, cap=4)
    assert not g.hi
    att_slots(p, 4, 0, 30, True)
    g.vm_gap = 3
    rp_stores()
    att_slots(p, 4, 30, 64, True, g=g, cap=4)
    assert not g.hi
    p('s_branch L_att')
    p.loop_end()
    p.label('L_att_tail')
    stamp(6)
    g.vm_gap = 4
    att_slots(p, 25, 64, 96, False)
    g.hi.append(poll_issue(S_FGR))
    tt = []
    a = lambda x: tt.append(Ins(x))
    a('s_lshr_b32 %s, s2, 3' % T(0))
    a('s_lshl_b32 %s, %s, 2' % (T(1), sr(S_SP)))
    a('s_add_u32 %s, %s, %s' % (T(1), T(1), sr(S_W)))
    a('s_mul_i32 %s, %s, %d' % (T(1), T(1), WBLK))
    a('s_mul_i32 %s, %s, 1152' % (T(2), T(0)))
    a('s_add_u32 %s, %s, %s' % (T(1), T(1), T(2)))
    a('s_add_u32 %s, %s, 0x%x' % (T(1), T(1), WS_W))
    tt += srd_ins(S_A1, P_WS, T(1), 18 * 36864 + 1152)
    a('s_and_b32 %s, s2, 4' % T(1))
    a('s_lshl_b32 %s, %s, 3' % (T(1), T(1)))
    a('s_add_u32 %s, %s, %s' % (T(1), T(1), T(0)))
    a('s_lshl_b32 %s, %s, 1' % (T(1), T(1)))
    a('s_and_b32 %s, %s, 1' % (T(2), sr(S_W)))
    a('s_add_u32 %s, %s, %s' % (T(1), T(1), T(2)))
    a('s_mul_i32 %s, %s, %d' % (T(1), T(1), HS()))
    a('s_mul_i32 %s, %s, %d' % (T(2), sr(S_SP), 36 * 1024))
    a('s_add_u32 %s, %s, %s' % (T(1), T(1), T(2)))
    a('s_add_u32 %s, %s, 0x%x' % (T(1), T(1), WS_H))
    tt += srd_ins(S_A2, P_WS, T(1), 36 * 1024)
    a('s_lshr_b32 %s, %s, 1' % (T(1), sr(S_W)))
    a('s_lshl_b32 %s, %s, 12' % (sr(S_RO), T(1)))
    a('s_lshl_b32 %s, %s, 2' % (T(2), sr(S_TILE)))
    a('s_add_u32 %s, %s, %s' % (T(2), T(2), sr(S_SP)))
    a('s_lshl_b32 %s, %s, 2' % (T(2), T(2)))
    a('s_add_u32 %s, %s, %s' % (T(2), T(2), sr(S_W)))
    a('s_mul_i32 %s, %s, 9216' % (T(2), T(2)))
    a('s_add_u32 %s, %s, 0x%x' % (T(2), T(2), WS_P))
    tt += srd_ins(S_A3, P_WS, T(2), 9216)
    g.hi.extend(tt)
    g.lo.extend(Ins('v_mov_b32 v%d, -1' % r) for r in range(36, 40))
    g.lo.extend([Ins('v_mul_u32_u24 %s, 7282, %s' % (vr(V_RV), L)),
                 Ins('v_lshrrev_b32 %s, 16, %s' % (vr(V_RV), vr(V_RV))),
                 Ins('v_mul_u32_u24 %s, %d, %s' % (vr(V_RV), 36864 - 1152, vr(V_RV))),
                 Ins('v_lshl_add_u32 %s, %s, 7, %s' % (vr(V_RV), L, vr(V_RV))),
                 Ins('v_mov_b32 v251, 0x7f000000'),
                 Ins('v_cmp_gt_u32 vcc, 18, %s' % L),
                 Ins('v_cndmask_b32 %s, v251, %s, vcc' % (vr(V_RV), vr(V_RV))),
                 Ins('v_cmp_gt_u32 vcc, 32, %s' % L),
                 Ins('v_cndmask_b32 v250, v251, %s, vcc' % vr(V_FOFF))])
    att_slots(p, 25, 96, 128, False, g=g, cap=4)
    att_slots(p, 26, 0, 64, False, g=g, cap=3, dmav=False)
    g.flush()
    addall(dma_unit('V', 28, False))
    poll_check(p, 'h', S_FGR)

    def nowr(l):
        for x in l:
            x.wr = [r for r in x.wr if r[0] != 'v']
        return l

    def touch_w(c, srd=S_A1):
        return nowr([Ins('s_mov_b32 %s, %d' % (T(6), c * 36864)),
                     Ins('buffer_load_dword v248, %s, %s, %s offen sc0' % (vr(V_RV), sr(srd, 4), T(6)))])

    def touch_h(k):
        return nowr([Ins('s_add_u32 %s, %s, %d' % (T(6), sr(S_RO), k * 8192)),
                     Ins('buffer_load_dword v249, v250, %s, %s offen sc0' % (sr(S_A2, 4), T(6)))])
    TD = OPT.get('touch_d', 0)
    tl = []
    if TD:
        for k in range(5):
            tl += [touch_w(2 * k), touch_h(k)]
    else:
        tl = [[] for _ in range(10)]
    if OPT.get('tagged', 0):
        for k in range(9):
            tl[k] = tl[k] + [Ins('s_mov_b32 %s, %d' % (T(5), k * 1024)),
                             Ins('buffer_store_dwordx4 v[36:39], %s, %s, %s offen sc1' % (vr(V_L16), sr(S_A3, 4), T(5)), lds=('PT1', 0))]
    for u in (26, 27, 28, 29):
        for (ta, tb, on) in ((0, 32, 0), (32, 48, 1), (48, 64, 1), (64, 96, 0), (96, 112, 1), (112, 128, 1)):
            if (u == 26 and ta < 64) or (u == 29 and ta >= 64):
                continue
            if on and tl:
                g.hi.extend(tl.pop(0))
            att_slots(p, u, ta, tb, False, g=g if on else None, cap=4, dmak=(u + DK < 32))
            assert not g.hi
    assert not tl
    for k in range(4):
        p('s_mov_b32 %s, %s' % (sr(S_DWO + k), sr(S_A1 + k)))
    g.hi.extend(d_scalar_setup2())
    att_slots(p, 29, 64, 128, False, dmak=False, g=g, cap=4)
    g.flush()
    p.label('L_donly')
    att_slots(p, 30, 0, 2, False, dmak=False, dmav=False, g=g)
    g.vm_gap = 5
    g.hi.extend(d_dma(0) + d_dma(1))
    g.hi.append(sadd(S_FWG, 32768))
    g.hi.append(Ins('s_andn2_b32 %s, %s, 0x3ff' % (sr(S_FGR), sr(S_FWG))))
    g.hi.append(Ins('s_add_u32 %s, %s, 8192' % (sr(S_OFFW), sr(S_FGR))))
    g.hi.append(Ins('s_and_b32 %s, %s, 1' % (sr(S_ADJB), sr(S_SP))))
    g.hi.append(Ins('s_mul_i32 %s, %s, %d' % (sr(S_ADJW), sr(S_ADJB), -4 * 36864)))
    g.hi.append(Ins('s_mul_i32 %s, %s, %d' % (sr(S_ADJB), sr(S_ADJB), -4 * 4096)))
    g.lo.append(Ins('v_and_b32 %s, 0x380, %s' % (vr(V_FOFF), vr(V_FOFF))))
    att_slots(p, 30, 2, 97, False, dmak=False, dmav=False, g=g, cap=4, barrier=False)
    g.vm_gap = 4
    g.hi.extend(d_bloads(0))
    att_slots(p, 30, 97, 128, False, dmak=False, dmav=False, g=g, cap=4, barrier=False)
    att_slots(p, 31, 0, 2, False, qk=False, sm_next=False, dmak=False, dmav=False, g=g, vearly=True)
    g.vm_gap = 3
    g.hi.extend(d_bloads(1) + d_dma(2))
    o = []
    o.append(Ins('v_lshrrev_b32 %s, 2, %s' % (t0, L)))
    o.append(Ins('v_mul_u32_u24 %s, 288, %s' % (t1, t0)))
    o.append(Ins('v_and_b32 %s, 3, %s' % (t2, L)))
    o.append(Ins('v_lshl_add_u32 %s, %s, 3, %s' % (vr(V_DRA), t2, t1)))
    for k in range(1, 4):
        o.append(Ins('v_add_u32 %s, %d, %s' % (vr(V_DRA + k), DBASE[k], vr(V_DRA))))
    g.lo.extend(o)
    g.lo.append(Ins('v_mov_b32 %s, 0x%x' % (vr(V_RN), f2u(2.0 ** OPT.get('thr', 30)))))
    att_slots(p, 31, 2, 64, False, qk=False, sm_next=False, dmak=False, dmav=False, g=g, cap=4, barrier=False, vearly=True)
    g.flush()
    sm_plain(31, 60, 64)
    p('v_max3_f32 %s, %s, %s, %s' % (t0, vr(V_L), vr(V_L + 1), vr(V_L + 2)))
    p('v_add_f32 %s, %s, %s' % (t0, t0, vr(V_L + 3)))
    p('v_cmp_nlt_f32 vcc, %s, %s' % (t0, vr(V_RN)))
    p('s_cbranch_vccnz L_slow')
    p.label('L_slow_ret')
    SPIN_BLOCKS.append(gen_slow_softmax())
    ls = [vr(V_L + qb) for qb in range(4)]
    g.lo.extend(xlane4('v_add_f32', ls, [vr(V_T + k) for k in range(4)]))
    g.lo.extend(Ins('v_rcp_f32 %s, %s' % (x, x)) for x in ls)
    n0 = g.n
    n = 0
    for t in range(4):
        for qb in range(4):
            g.lo.extend(o_epilogue_unit(qb, t, n, n0 + 16 * (t + 1) + 3))
            n += 1
    p.wait_regs(ar(A_VF, 8))
    kw = dict(qk=False, sm_cur=False, sm_next=False, vnext=False, dmak=False, dmav=False, g=g, barrier=False)
    att_slots(p, 32, 0, 33, False, **kw)
    g.hi.extend(d_bloads(2))
    att_slots(p, 32, 33, 46, False, **kw)
    p.need(('lgkm', 'all'), (DS(0), ('D', 0)))
    p('s_barrier')
    g.st.extend(d_reads(0, 0) + d_reads(0, 1))
    att_slots(p, 32, 46, 64, False, **kw)
    while g.st and g.st[0].kind == 'dsr':
        g.emit(g.st.popleft())
    assert not any(x.kind == 'dsr' for x in g.st)
    stamp(7)
    p.wait_regs(ar(A_DB, 32), vr(V_DA, 16))
    stamp(8)
    G2, GG = V_AC2, V_AC2 + 48
    xreg = lambda k, rb: 44 + (k * 2 + rb) * 2
    VO = V_T + 5

    def fin_setup():
        o = []
        o.append(Ins('v_and_b32 %s, 0x180, %s' % (vr(V_FOFF), vr(V_FOFF))))
        o.append(Ins('s_andn2_b32 %s, %s, 0x1ff' % (sr(S_FGR), sr(S_FT))))
        o.append(Ins('v_and_b32 %s, 15, %s' % (t0, L)))
        o.append(Ins('v_mul_u32_u24 %s, 1152, %s' % (t0, t0)))
        o.append(Ins('v_lshrrev_b32 %s, 4, %s' % (t1, L)))
        o.append(Ins('v_lshl_add_u32 %s, %s, 3, %s' % (vr(VO), t1, t0)))
        for k in range(3):
            for rb in range(2):
                o.append(Ins('buffer_load_dwordx2 %s, %s, %s, %s offen offset:%d' % (
                    vr(xreg(k, rb), 2), vr(VO), sr(S_DX, 4), sr(S_HS + 4 + rb + (2 if k == 2 else 0)), 128 * k)))
        return o

    def silu_g():
        o = []
        for k in range(3):
            d = GG + 8 * k
            o += d_sum(G2, k, d, V_T)
            for e in range(0, 8, 2):
                ta, tb = vr(V_T), vr(V_T + 1)
                o.append(Ins('v_mul_f32 %s, %s, %s' % (ta, sr(S_NL), vr(d + e))))
                o.append(Ins('v_mul_f32 %s, %s, %s' % (tb, sr(S_NL), vr(d + e + 1))))
                o.append(Ins('v_exp_f32 %s, %s' % (ta, ta)))
                o.append(Ins('v_exp_f32 %s, %s' % (tb, tb)))
                if OPT.get('fold', 0):
                    o.append(Ins('v_fma_f32 %s, %s, %s, %s' % (ta, ta, sr(S_C), sr(S_C))))
                    o.append(Ins('v_fma_f32 %s, %s, %s, %s' % (tb, tb, sr(S_C), sr(S_C))))
                else:
                    o.append(Ins('v_add_f32 %s, 1.0, %s' % (ta, ta)))
                    o.append(Ins('v_add_f32 %s, 1.0, %s' % (tb, tb)))
                o.append(Ins('v_rcp_f32 %s, %s' % (ta, ta)))
                o.append(Ins('v_rcp_f32 %s, %s' % (tb, tb)))
                o.append(Ins('v_mul_f32 %s, %s, %s' % (vr(d + e), vr(d + e), ta)))
                o.append(Ins('v_mul_f32 %s, %s, %s' % (vr(d + e + 1), vr(d + e + 1), tb)))
        return o

    g.vm_gap = 1
    SO = OPT.get('o_done', 2)
    LAST = NPOS - 1
    for c in range(NPOS):
        acc0 = V_AC2 if c < 9 else V_AC1
        first = c in (0, 9)
        if c == 9:
            stamp(14)
        if c in (SK0, SK1):
            g.flush()
        if c == SK0:
            p('s_bitcmp1_b32 %s, 0' % sr(S_SP))
            p('s_cbranch_scc1 L_dskip')
            p.loop_begin(1, 'opt')
        if c == SK1:
            p.loop_end()
            p.label('L_dskip')
        if OPT.get('dst'):
            p('s_memrealtime %s' % sr(S_DG, 2))
            p('s_waitcnt lgkmcnt(0)')
            p('v_writelane_b32 v1, %s, %d' % (sr(S_DG), 32 + c))
        extra_need = []
        post = []
        cap = 2
        if c <= SO:
            cap = OPT.get('cap_o', 4)
        if c == SO + 1:
            assert not g.lo and not g.st, len(g.lo)
            extra_need = [('O', 0)]
            post = [flag_store(S_FWG, 'O')]
            g.st_max = 1
            fs = fin_setup()
            g.lo.extend(fs[2:-6])
        if c == 6:
            g.hi.extend(fs[-6:])
        if TD and c in (2, 3, 4, 5, 6):
            g.hi.extend(touch_w(10 + 2 * (c - 2), S_DWO))
        if c == 6:
            g.st.append(poll_issue(S_FGR))
        if c == 7:
            poll_check(p, 'o', S_FGR)
            g.hi.extend(d_bloads(9, c))
            cap = 3
        if c == SK1 - 2:
            g.st.append(poll_issue(S_OFFW))
        if c == SK1 - 1:
            poll_check(p, 'o2', S_OFFW)
        if c <= 8:
            g.hi.extend((d_bloads(c + 3, c) if c != 6 else []) + d_dma(c + 3, c))
        elif 10 <= c <= LAST - 2:
            g.hi.extend(d_dma(c + 2, c) + d_bloads(c + 2, c))
        if c in (9, 10):
            for nb in (range(6) if c == 9 else range(6, 9)):
                g.lo.extend(d_pstore(1, nb))
            cap = 3
        if c == 11:
            assert not g.lo and not g.st
            extra_need = [('PT1', 0)]
            post = [flag_store(S_FT, 'PT1')]
            g.lo.extend(fs[:2])
            cap = 3
        if c == LAST - 2:
            g.st.append(poll_issue(S_FGR))
        if c == LAST - 1:
            poll_check(p, 'p2', S_FGR)
            g.hi.extend([sadd(S_FGR, 32768), sadd(S_FT, 32768)])
            g.hi.extend(d_ploads(1, G2))
        nv = sum(1 for x in g.hi if cost(x) == 2)
        if OPT.get('verbose_d'):
            print('D pos', c, 'queued vmem', nv, file=sys.stderr)
        g.vm_gap = OPT.get('vgd', 4) if c > SO else OPT.get('vgd2', 3)
        g.st_w = OPT.get('stw', 1)
        if c in (10, 11, SK1 - 1):
            g.vm_gap = 3
            cap = 3
        if c == LAST:
            g.vm_gap = 1
        for nb in range(9):
            n2 = nb + 2
            Lr = d_reads(c, n2) if n2 < 9 else (d_reads(c + 1, n2 - 9, c) if c < LAST else [])
            if c == LAST and nb >= 2:
                g.hi.extend(d_pstore(0, nb - 2))
            for t in range(8):
                rb, ks = t // 4, t % 4
                a = vr(acc0 + (nb * 2 + rb) * 4, 4)
                m = '%s %s, %s, %s, %s' % (MF, a, vr(V_DA + (nb % 3) * 16 + ks * 4, 4),
                                           ar(A_DB + (c % 4) * 32 + (rb * 4 + ks) * 4, 4),
                                           '0' if (first and ks == 0) else a)
                sc, ld = [], []
                if nb == 7:
                    if Lr and t >= 4:
                        ld = [Lr[2 * (t - 4)], Lr[2 * (t - 4) + 1]]
                    if t == 2 and c < LAST:
                        assert not any(y.kind == 'dma' and y.lds[0] == DS(c + 1) for y in g.hi), c
                        sc = [need_ins(('lgkm', 'all'), (DS(c + 1), dtag(c + 1, c)), *extra_need)]
                    if t == 3 and c < LAST:
                        sc = [Ins('s_barrier')]
                elif Lr:
                    ld = [Lr[t], Lr[t + 1]] if t % 2 == 0 else []
                if t == 7:
                    w = [vr(V_DA + ((nb + 1) % 3) * 16, 16)]
                    if nb == 8:
                        w.append(ar(A_DB + ((c + 1) % 4) * 32, 32))
                    sc = [wait_ins(*w)]
                g.gap(m, sc, ld, cap=cap)
                if nb == 7 and t == 3:
                    g.st.extend(post)
    stamp(9)
    g.hi.extend(d_pstore(0, 7) + d_pstore(0, 8))
    g.flush()
    stamp(10)
    sg = silu_g()
    if OPT.get('tagged', 0):
        addall(sg)
        stamp(11)

        def chk():
            o = [Ins('v_max3_u32 %s, %s, %s, %s' % (t0, vr(G2), vr(G2 + 1), vr(G2 + 2))),
                 Ins('v_max3_u32 %s, %s, %s, %s' % (t1, vr(G2 + 3), vr(G2 + 4), vr(G2 + 5)))]
            for k in range(6, 48, 2):
                tt_ = t0 if (k // 2) % 2 else t1
                o.append(Ins('v_max3_u32 %s, %s, %s, %s' % (tt_, tt_, vr(G2 + k), vr(G2 + k + 1))))
            o.append(Ins('v_max_u32 %s, %s, %s' % (t0, t0, t1)))
            o.append(Ins('v_cmp_eq_u32 vcc, -1, %s' % t0))
            return o
        addall(d_ploads(0, G2) + chk())
        p('s_cbranch_vccnz L_retry')
        p.label('L_retry_ok')
        SPIN_BLOCKS.append('L_retry:\n s_mov_b32 s3, 0\nL_retry_l:\n s_sleep 2\n' +
                           '\n'.join(' ' + x.text for x in d_ploads(0, G2)) +
                           '\n s_waitcnt vmcnt(0)\n s_add_u32 s3, s3, 1\n s_cmp_gt_u32 s3, 0x20000\n s_cbranch_scc1 L_retry_ok\n' +
                           '\n'.join(' ' + x.text for x in chk()) +
                           '\n s_cbranch_vccnz L_retry_l\n s_branch L_retry_ok')
        stamp(12)
    else:
        addall(sg[:len(sg) // 2])
        p.need(('PT0', 0))
        p('s_barrier')
        stamp(11)
        p.add(flag_store(S_FT, 'PT0'))
        p.add(poll_issue(S_FGR))
        addall(sg[len(sg) // 2:])
        poll_check(p, 'p1', S_FGR)
        stamp(12)
        addall(d_ploads(0, G2))
    for k in range(3):
        d = V_AC1 + 16 * k
        addall(d_sum(G2, k, d, V_T))
        for rb in range(2):
            xb = xreg(k, rb)
            for e in range(4):
                tx = vr(d + 8 + e)
                if e % 2 == 0:
                    p('v_lshlrev_b32 %s, 16, %s' % (tx, vr(xb + e // 2)))
                else:
                    p('v_and_b32 %s, 0xffff0000, %s' % (tx, vr(xb + e // 2)))
                p('v_fma_f32 %s, %s, %s, %s' % (tx, vr(d + rb * 4 + e), vr(GG + 8 * k + rb * 4 + e), tx))
            o = d + 12 + 2 * rb
            p('v_cvt_pk_bf16_f32 %s, %s, %s' % (vr(o), vr(d + 8), vr(d + 9)))
            p('v_cvt_pk_bf16_f32 %s, %s, %s' % (vr(o + 1), vr(d + 10), vr(d + 11)))
            p('buffer_store_dwordx2 %s, %s, %s, %s offen offset:%d' % (
                vr(o, 2), vr(VO), sr(S_DOUT, 4), sr(S_HS + 4 + rb + (2 if k == 2 else 0)), 128 * k))
    if diag:
        p('s_waitcnt vmcnt(0)')
        stamp(13)
        p('s_mov_b32 %s, 0x%x' % (T(3), WS_T))
        make_srd(p, S_K, P_WS, T(3), 0x100000)
        p('s_lshl_b32 %s, s2, 2' % T(0))
        p('s_add_u32 %s, %s, %s' % (T(0), T(0), sr(S_W)))
        p('s_lshl_b32 %s, %s, 8' % (T(0), T(0)))
        p('v_lshlrev_b32 v4, 2, %s' % L)
        p('buffer_store_dword v1, v4, %s, %s offen' % (sr(S_K, 4), T(0)))
        if OPT.get('dbgout'):
            p('s_load_dwordx2 s[8:9], s[0:1], 80')
            p('v_readlane_b32 s3, v1, 16')
            p('s_waitcnt lgkmcnt(0)')
            p('s_mov_b32 s10, 64')
            p('s_mov_b32 s11, 0x00020000')
            p('v_subrev_u32 v1, s3, v1')
            p('v_subrev_u32 v4, 60, v4')
            p('s_cmp_eq_u32 %s, %d' % (T(0), OPT['dbgout'] * 1024))
            p('s_cselect_b32 s10, s10, 0')
            p('v_cmp_lt_u32 vcc, 15, %s' % L)
            p('s_mov_b64 exec, vcc')
            p('buffer_store_dword v1, v4, s[8:11], 0 offen')
    p.label('L_end')
    p('s_endpgm')
    for t in SPIN_BLOCKS:
        p.raw(t)
    p.raw('L_code_end:')
    for x in p.flat():
        if OPT.get('kv_nt', 1) and x.kind == 'dma' and ('s[4:7]' in x.text or 's[8:11]' in x.text):
            x.text = x.text.replace(' lds', ' nt lds')
        if OPT.get('w_nt') and x.kind == 'dma' and x.lds and not callable(x.lds[1]) and x.lds[1][0] in 'WQ':
            x.text = x.text.replace(' lds', ' nt lds')
        if OPT.get('st01') and x.kind == 'vst' and 'x4' in x.text:
            x.text = x.text.replace(' sc1', ' sc0 sc1')
        if OPT.get('nost') and x.kind == 'vst' and 'x4' in x.text and x.lds and (x.lds[0] == 'O' or (OPT['nost'] > 1 and x.lds[0] == 'PT1')):
            x.text = 's_nop 0'
            x.kind = 'sopp'; x.op = 's_nop'; x.ops = ['0']; x.rd = []; x.lds = None
        if FU and x.kind == 'vld' and sr(S_XN, 4) in x.text and 'sc1' not in x.text:
            x.text += ' sc1'
        if OPT.get('dplain') and x.kind in ('dma', 'vld') and 'x4' in x.text:
            x.text = x.text.replace(' sc1', '')
    p.finalize(verbose=bool(OPT.get('verbose')), check=not (OPT.get('drop') or OPT.get('nost')))
    print('total overflow slots', g.over, p.stats(), file=sys.stderr)
    return p


def build(diag=False):
    hdr = open('cdna_kernels/%s.s.ref' % NAME).read().split('; Override launch')[0]
    out = hdr
    if OPT.get('fuse', 2):
        km = gen_main(diag)
        kn = NAME + '_kernel'
        if OPT.get('aslist', 1):
            out += '; @launch kernel=%s grid=(256,1,1) block=(256,1,1) lds=163840\n' % kn
        else:
            out += '; @launch grid=(256,1,1) block=(256,1,1) lds=163840\n'
        out += '.amdgcn_target "amdgcn-amd-amdhsa--gfx950"\n.text\n'
        out += kernel_text(kn, km, 0, 0)
        out += '.section .rodata,"a"\n.p2align 6\n' + descriptor(kn, 512, 256)
        return out
    ln, km = gen_ln(), gen_main(diag)
    if not OPT.get('donly'):
        out += '; @launch kernel=ln_kernel grid=(256,1,1) block=(256,1,1) lds=0\n'
    out += '; @launch kernel=main_kernel grid=(256,1,1) block=(256,1,1) lds=163840\n'
    out += '.amdgcn_target "amdgcn-amd-amdhsa--gfx950"\n.text\n'
    out += kernel_text('ln_kernel', ln, 0, 0) + kernel_text('main_kernel', km, 0, 0)
    out += '.section .rodata,"a"\n'
    for n, nv, acc in (('ln_kernel', 64, 64), ('main_kernel', 512, 256)):
        out += '.p2align 6\n' + descriptor(n, nv, acc)
    return out


if __name__ == '__main__':
    diag = 'diag' in sys.argv[2:]
    for a in sys.argv[2:]:
        if '=' in a:
            k, v = a.split('=')
            OPT[k] = int(v)
    open(sys.argv[1], 'w').write(build(diag))
```

```python
import sys, struct
from collections import deque
from dsl import *

OPT = {}
NAME = 'recurrent_scan__mha_block_cached__glu_gated_swiglu__prompt'
WS_XN = 0
WS_F = 3 << 20
WS_O = 4 << 20
WS_H = 24 << 20
WS_P = 48 << 20
PG = 64 * 16 * 9216
WS_W = 96 << 20
WBLK = 2432 * 288
WS_T = 128 << 20
MF = 'v_mfma_f32_16x16x32_bf16'
LOG2E = 1.4426950408889634


def HS():
    return 144 * 1024 + OPT.get('pad', 1280)


def OS():
    return 128 * 1024 + OPT.get('pad', 1280)


def f2u(x):
    return struct.unpack('<I', struct.pack('<f', x))[0]


def srd_ins(srd, ptr, off, size):
    o = []
    if off is None:
        o.append(Ins('s_mov_b32 %s, %s' % (sr(srd), sr(ptr))))
        o.append(Ins('s_mov_b32 %s, %s' % (sr(srd + 1), sr(ptr + 1))))
    else:
        o.append(Ins('s_add_u32 %s, %s, %s' % (sr(srd), sr(ptr), off)))
        o.append(Ins('s_addc_u32 %s, %s, 0' % (sr(srd + 1), sr(ptr + 1))))
    o.append(Ins('s_mov_b32 %s, %s' % (sr(srd + 2), size if isinstance(size, str) else '0x%x' % size)))
    o.append(Ins('s_mov_b32 %s, 0x00020000' % sr(srd + 3)))
    return o


def make_srd(p, srd, ptr, off, size):
    for x in srd_ins(srd, ptr, off, size):
        p.add(x)


def cost(ins):
    if ins.kind == 'valu':
        return 2 if ins.trans else 1
    if ins.kind in ('dsr', 'dsw'):
        return 1
    if ins.kind in ('dma', 'vld', 'vst'):
        return 2
    return 0


class Gaps:
    def __init__(self, p):
        self.p = p
        self.hi = deque()
        self.lo = deque()
        self.n = 0
        self.over = 0
        self.waste = 0
        self.drop = ()
        self.vm_next = 0
        self.st = deque()
        self.st_max = 2
        self.st_w = 3
        self.vm_gap = 1

    def emit(self, x):
        if self.drop and x.kind in self.drop:
            return
        self.p.add(x)
        if x.on_emit:
            x.on_emit()

    def gap(self, mfma, sc=(), ld=(), va=(), cap=2):
        if mfma is not None:
            self.p.add(mfma if isinstance(mfma, Ins) else Ins(mfma))
        sc, ld, va = list(sc), list(ld), list(va)
        used = sum(cost(x) for x in ld + va)
        for q in (self.st, self.hi, self.lo):
            pulled = False
            pva = False
            while q:
                x = q[0]
                if x.ready > self.n:
                    break
                c = cost(x)
                if q is self.lo and x.kind == 'vst' and len(self.st) < self.st_max:
                    x.ready = self.n + 1
                    self.st.append(q.popleft())
                    continue
                if c == 0:
                    if sc or pulled:
                        break
                    sc.append(q.popleft())
                    if 'm0' in x.wr:
                        break
                    continue
                if used + c > cap:
                    break
                if x.kind != 'valu':
                    if pva:
                        break
                    if c == 2:
                        if self.n < self.vm_next:
                            break
                        w = (self.st_w if 'x4' in x.text else 1) if x.kind == 'vst' else (4 if 'buffer_load_dword ' in x.text and 'sc' not in x.text else 1)
                        self.vm_next = self.n + self.vm_gap * w
                    ld.append(q.popleft())
                else:
                    va.append(q.popleft())
                    pva = True
                used += c
                pulled = True
        for x in sc + ([Ins(mfma)] if isinstance(mfma, str) else []):
            self.check(x)
        self.over += max(0, used - 2)
        if used < 2 and (self.hi or self.lo):
            self.waste += 2 - used
        for x in sc + ld + va:
            self.emit(x)
        self.n += 1

    def check(self, x):
        regs = set(x.rd) if (x.text.startswith('; need') or x.kind == 'mfma') else set()
        tags = [t for t in (x.need or []) if not callable(t[1])]
        for q in (self.st, self.hi, self.lo):
            for y in q:
                if y.kind in ('vld', 'dsr') and set(y.wr) & regs and not getattr(y, 'later', False):
                    raise AssertionError('consumer %s before queued load %s' % (x.text, y.text))
                if y.lds is not None and y.lds in tags:
                    raise AssertionError('need %s before queued %s' % (tags, y.text))

    def flush(self, q=None):
        for qq in ((self.st, self.hi, self.lo) if q is None else (q,)):
            while qq:
                x = qq.popleft()
                self.over += max(1, cost(x))
                self.emit(x)


def rg(t, n=4):
    return (vr if t[0] == 'v' else ar)(t[1], n)


def prefetch_w(p, ptr, srd, soff, rows, stride, lines, rounds, vt, vd):
    t = lambda k: vr(vt + k)
    make_srd(p, srd, ptr, soff, (rows - 1) * stride + lines * 128)
    return t


def gen_ln():
    p = Prog()
    p('s_cmp_ge_u32 s2, 256')
    p('s_cbranch_scc1 L_ln_end')
    p('s_load_dwordx2 s[12:13], s[0:1], 0')
    p('s_load_dwordx2 s[14:15], s[0:1], 88')
    p('s_load_dwordx4 s[32:35], s[0:1], 48')
    p('v_lshrrev_b32 v1, 5, v0')
    p('s_lshl_b32 s3, s2, 3')
    p('v_add_u32 v1, s3, v1')
    p('v_and_b32 v2, 31, v0')
    p('v_lshrrev_b32 v3, 2, v2')
    p('v_and_b32 v4, 3, v2')
    p('v_mul_u32_u24 v5, 1152, v1')
    p('v_lshl_add_u32 v5, v3, 6, v5')
    p('v_lshl_add_u32 v5, v4, 3, v5')
    p('v_cmp_gt_u32 vcc, 8, v2')
    p('s_mov_b64 s[16:17], vcc')
    for r in range(16, 20):
        p('v_mov_b32 v%d, 0' % r)
    p('s_waitcnt lgkmcnt(0)')
    make_srd(p, 4, 12, None, 2048 * 1152)
    for it in range(2):
        p('buffer_load_dwordx2 v[%d:%d], v5, s[4:7], 0 offen offset:%d' % (8 + 4 * it, 9 + 4 * it, it * 512))
        p('buffer_load_dwordx2 v[%d:%d], v5, s[4:7], 0 offen offset:%d' % (10 + 4 * it, 11 + 4 * it, it * 512 + 32))
    p('s_mov_b64 exec, s[16:17]')
    p('buffer_load_dwordx2 v[16:17], v5, s[4:7], 0 offen offset:1024')
    p('buffer_load_dwordx2 v[18:19], v5, s[4:7], 0 offen offset:1056')
    p('s_mov_b64 exec, -1')
    R0 = OPT.get('pf0', 8)
    if R0:
        p('s_lshr_b32 s20, s2, 3')
        p('s_mul_i32 s20, s20, %d' % (R0 * 9216))
        p('s_and_b32 s21, s2, 3')
        p('s_mul_i32 s21, s21, 2304')
        p('s_add_u32 s20, s20, s21')
        make_srd(p, 36, 32, 's20', (R0 - 1) * 9216 + 2304)
        make_srd(p, 40, 34, 's20', (R0 - 1) * 9216 + 2304)
        p('v_mul_u32_u24 v56, 3641, v0')
        p('v_lshrrev_b32 v56, 16, v56')
        p('v_mul_u32_u24 v57, 18, v56')
        p('v_sub_u32 v57, v0, v57')
        p('v_mul_u32_u24 v56, 9216, v56')
        p('v_lshl_add_u32 v56, v57, 7, v56')
        if OPT.get('pfh', 1):
            p('s_bitcmp1_b32 s2, 2')
            p('s_cselect_b32 s36, s40, s36')
            p('s_cselect_b32 s37, s41, s37')
            p('buffer_load_dword v58, v56, s[36:39], 0 offen')
        else:
            p('buffer_load_dword v58, v56, s[36:39], 0 offen')
            p('buffer_load_dword v59, v56, s[40:43], 0 offen')
    if OPT.get('pfc', 1):
        p('s_getpc_b64 s[44:45]')
        p.label('L_pc')
        p('s_add_u32 s44, s44, main_kernel-L_pc')
        p('s_addc_u32 s45, s45, 0')
        p('s_lshr_b32 s46, s2, 3')
        p('s_lshl_b32 s46, s46, 12')
        p('v_and_b32 v60, 31, v0')
        p('v_lshlrev_b32 v60, 7, v60')
        p('v_add_u32 v60, s46, v60')
        p('v_min_u32 v60, L_code_end-main_kernel-4, v60')
        p('global_load_dword v61, v60, s[44:45]')
    make_srd(p, 8, 14, None, 2048 * 1152)
    p('v_lshrrev_b32 v6, 4, v1')
    p('v_mul_u32_u24 v6, 18, v6')
    p('v_add_u32 v6, v6, v3')
    p('v_lshlrev_b32 v6, 10, v6')
    p('v_lshl_add_u32 v6, v4, 8, v6')
    p('v_and_b32 v7, 15, v1')
    p('v_lshl_add_u32 v6, v7, 4, v6')
    p('s_mov_b32 s20, 0x%x' % WS_F)
    make_srd(p, 24, 14, 's20', 4 * 32768)
    p('s_lshl_b32 s21, s2, 7')
    p('v_lshlrev_b32 v50, 15, v0')
    p('v_mov_b32 v52, 0')
    p('buffer_store_dword v52, v50, s[24:27], s21 offen')
    for d in range(12):
        p('v_lshlrev_b32 v%d, 16, v%d' % (20 + 2 * d, 8 + d))
        p('v_and_b32 v%d, 0xffff0000, v%d' % (21 + 2 * d, 8 + d))

    def reduce32(x, t):
        for k in (8, 4, 2, 1):
            p('v_add_f32_dpp %s, %s, %s row_ror:%d row_mask:0xf bank_mask:0xf' % (x, x, x, k))
        p('v_mov_b32 %s, %s' % (t, x))
        p('v_permlane16_swap_b32 %s, %s' % (x, t))
        p('v_add_f32 %s, %s, %s' % (x, x, t))
    p('v_add_f32 v44, v20, v21')
    p('v_add_f32 v45, v22, v23')
    for e in range(4, 24, 2):
        p('v_add_f32 v44, v44, v%d' % (20 + e))
        p('v_add_f32 v45, v45, v%d' % (21 + e))
    p('v_add_f32 v44, v44, v45')
    reduce32('v44', 'v45')
    p('v_mul_f32 v44, 0x%x, v44' % f2u(1.0 / 576))
    p('v_mov_b32 v46, 0')
    p('v_mov_b32 v47, 0')
    for e in range(16):
        p('v_sub_f32 v48, v%d, v44' % (20 + e))
        p('v_fmac_f32 v%d, v48, v48' % (46 + e % 2))
    p('s_mov_b64 exec, s[16:17]')
    for e in range(16, 24):
        p('v_sub_f32 v48, v%d, v44' % (20 + e))
        p('v_fmac_f32 v%d, v48, v48' % (46 + e % 2))
    p('s_mov_b64 exec, -1')
    p('v_add_f32 v46, v46, v47')
    reduce32('v46', 'v45')
    p('v_mul_f32 v46, 0x%x, v46' % f2u(1.0 / 576))

    def rnd(x):
        p('v_cvt_pk_bf16_f32 %s, %s, %s' % (x, x, x))
        p('v_lshlrev_b32 %s, 16, %s' % (x, x))
    rnd('v44')
    rnd('v46')
    p('v_add_f32 v46, 0x%x, v46' % f2u(1e-5))
    rnd('v46')
    p('v_sqrt_f32 v46, v46')
    rnd('v46')
    p('v_rcp_f32 v46, v46')
    if OPT.get('fold', 0):
        p('v_mul_f32 v46, 0x%x, v46' % f2u(-LOG2E))
    for d in range(12):
        a, b = 20 + 2 * d, 21 + 2 * d
        p('v_sub_f32 v%d, v%d, v44' % (a, a))
        p('v_sub_f32 v%d, v%d, v44' % (b, b))
        p('v_cvt_pk_bf16_f32 v%d, v%d, v%d' % (8 + d, a, b))
        p('v_lshlrev_b32 v%d, 16, v%d' % (a, 8 + d))
        p('v_and_b32 v%d, 0xffff0000, v%d' % (b, 8 + d))
        p('v_mul_f32 v%d, v%d, v46' % (a, a))
        p('v_mul_f32 v%d, v%d, v46' % (b, b))
        p('v_cvt_pk_bf16_f32 v%d, v%d, v%d' % (8 + d, a, b))
    p('s_mov_b32 s18, 8192')
    p('s_mov_b32 s19, 16384')
    p('buffer_store_dwordx4 v[8:11], v6, s[8:11], 0 offen')
    p('buffer_store_dwordx4 v[12:15], v6, s[8:11], s18 offen')
    p('s_mov_b64 exec, s[16:17]')
    p('buffer_store_dwordx4 v[16:19], v6, s[8:11], s19 offen')
    p.label('L_ln_end')
    p('s_endpgm')
    p.finalize()
    return p


S_K, S_V, S_XN, S_WS, S_WQ, S_H, S_O, S_FL, S_A1, S_A2, S_A3, S_A4 = 4, 8, 12, 16, 20, 24, 28, 32, 36, 40, 44, 48
S_DW2, S_DWO, S_DH, S_DO, S_DP, S_DR, S_DX, S_DOUT = 12, 16, 20, 24, 36, 40, 44, 48
(S_W, S_MK, S_EP, S_OFFK, S_OFFV, S_CNT, S_HD, S_QT, S_M1, S_OFFW, S_OFFQ, S_C, S_NL, S_FWG, S_FGR, S_FT,
 S_RO, S_SP, S_TILE) = range(52, 71)
S_HS = 71
S_T0 = 79
S_DG = 90
P_X, P_WO, P_W2, P_OUT, P_WS = 92, 94, 96, 98, 100
T = lambda k: sr(S_T0 + k)

V_L16, V_LANE = 2, 3
V_A1 = 4
V_OW = 8
V_AQ = 8
V_OQ = 20
V_OK, V_OV = 22, 26
V_SW = 28
V_T = 34
V_KA, V_VA, V_L, V_E = 4, 8, 16, 28
V_NM, V_S, V_P, V_Q = 40, 56, 120, 184
V_FST, V_ONE, V_FOFF, V_FV = 252, 253, 254, 255
A_O, A_KF, A_VF = 0, 128, 192
A_A, A_B = 128, 160
X0 = 72
DK, DV = 4, 2
L = vr(V_LANE)
t0, t1, t2, t3 = (vr(V_T + i) for i in range(4))


def LS(n):
    return (n * 16384, 16384)


def VP(u):
    return (u + 3) % 4


DBASE = [0, 126976, 36864, 73728]


def DS(c):
    return (DBASE[c % 4], 36864)


def PS(c):
    return ((c % 4) * 36864, 36864)


def Sreg(kb, qb):
    return V_S + (kb * 4 + qb) * 4


def Preg(u, qb, ks):
    return V_P + (u & 1) * 32 + qb * 8 + ks * 4


def ktag(u, inloop):
    return (lambda it: ('K', u + 4 * it)) if inloop else ('K', u)


def vtag(u, inloop):
    return (lambda it: ('V', u + 4 * it)) if inloop else ('V', u)


def k_load(u, kb, s, inloop):
    return Ins('ds_read_b128 %s, %s offset:%d' % (ar(A_KF + kb * 16 + s * 4, 4), vr(V_KA + s), (u % 4) * 16384 + kb * 4096),
               lds=(LS(u % 4), ktag(u, inloop)))


def v_load(u, db, ks, j, inloop):
    return Ins('ds_read_b64_tr_b16 %s, %s offset:%d' % (
        ar(A_VF + db * 8 + ks * 4 + 2 * j, 2), vr(V_VA + db), VP(u) * 16384 + (32 * ks + 16 * j) * 256),
        lds=(LS(4 + VP(u)), vtag(u, inloop)))


def dma_unit(kind, u, inloop):
    out = []
    if kind == 'K':
        out.append(Ins('s_add_u32 m0, %s, %d' % (sr(S_MK), (u % 4) * 16384)))
        for cc in range(4):
            out.append(Ins('buffer_load_dwordx4 %s, %s, %s offen offset:%d lds' % (
                vr(V_OK + cc), sr(S_K, 4), sr(S_OFFK), cc * 1024), lds=(LS(u % 4), ktag(u, inloop))))
        out.append(Ins('s_add_u32 %s, %s, 16384' % (sr(S_OFFK), sr(S_OFFK))))
    else:
        out.append(Ins('s_add_u32 m0, %s, %d' % (sr(S_MK), 65536 + VP(u) * 16384)))
        for cc in range(4):
            out.append(Ins('buffer_load_dwordx4 %s, %s, %s offen offset:%d lds' % (
                vr(V_OV + cc % 2), sr(S_V, 4), sr(S_OFFV), cc * 1024), lds=(LS(4 + VP(u)), vtag(u, inloop))))
        out.append(Ins('s_add_u32 %s, %s, 16384' % (sr(S_OFFV), sr(S_OFFV))))
    return out


def sm_instrs(uu, i):
    n, r = i // 4, i % 4
    kb, qb = n // 4, n % 4
    e = vr(V_E + i % 4)
    ex = Ins('v_exp_f32 %s, %s' % (e, vr(Sreg(kb, qb) + r)))
    ad = Ins('v_add_f32 %s, %s, %s' % (vr(V_L + qb), vr(V_L + qb), e))
    cv = None
    if r % 2 == 1:
        cv = Ins('v_cvt_pk_bf16_f32 %s, %s, %s' % (
            vr(Preg(uu, qb, kb // 2) + (kb % 2) * 2 + r // 2), vr(V_E + (i - 1) % 4), e))
    return ex, ad, cv


def att_slots(p, u, ta, tb, inloop, pv=True, qk=True, sm_cur=True, sm_next=True, vnext=True, dmak=True, dmav=True,
              barrier=True, g=None, cap=2, vearly=False, extra_need=()):
    T0 = -40
    R = range(-128, 256)
    sc = {t: [] for t in R}
    ld = {t: [] for t in R}
    va = {t: [] for t in R}
    for t in range(0, 128, 2):
        if t >= X0:
            uu, i, on = u + 1, (t - X0) // 2, sm_next
        else:
            uu, i, on = u, (t + 128 - X0) // 2, sm_cur
        if on:
            ex, ad, cv = sm_instrs(uu, i)
            va[t].append(ex)
            va[t + 1].append(ad)
            if cv is not None:
                va[t + 1].append(cv)
    pos = [t for t in range(T0, T0 + 128) if t % 8 in (1, 4, 5)]
    n = 0
    m = 0
    for db in range(8):
        for ks in range(2):
            for j in range(2):
                t = pos[n]
                n += 1
                if t >= 0:
                    if pv:
                        ld[t].append(v_load(u - 1, db, ks, j, inloop))
                elif vnext:
                    if vearly:
                        ld[46 + m].append(v_load(u, db, ks, j, inloop))
                        m += 1
                    else:
                        ld[t + 128].append(v_load(u, db, ks, j, inloop))
        t = 8 * db - 1
        sc[t if t >= 0 else t + 128].append(wait_ins(ar(A_VF + db * 8, 8)))
    for kb in range(4):
        for s in range(4):
            t = pos[n]
            n += 1
            if qk:
                ld[t].append(k_load(u + 1, kb, s, inloop))
        if qk:
            sc[64 + 16 * kb - 1].append(wait_ins(ar(A_KF + kb * 16, 16)))
    for on, kind, uu, tt in ((dmav, 'V', u + DV, 2), (dmak, 'K', u + DK, 66)):
        if on:
            lst = dma_unit(kind, uu, inloop)
            sc[tt].append(lst[0])
            ds = OPT.get('dstep', 8)
            for k in range(4):
                ld[tt + ds * k + (4 if k == 0 else 0)].append(lst[1 + k])
            sc[tt + ds * 3 + 1].append(lst[5])
    if barrier:
        nd = [(LS(4 + VP(u)), vtag(u, inloop))] + list(extra_need)
        if qk:
            nd.append((LS((u + 1) % 4), ktag(u + 1, inloop)))
        sc[0].append(need_ins(*nd))
        sc[1].append(Ins('s_barrier'))
    g = g or Gaps(p)
    for t in range(ta, tb):
        mf = None
        if t < 64:
            if pv:
                db, qb, ks = t // 8, (t % 8) // 2, t % 2
                o = ar(A_O + (db * 4 + qb) * 4, 4)
                mf = '%s %s, %s, %s, %s' % (MF, o, ar(A_VF + db * 8 + ks * 4, 4), vr(Preg(u - 1, qb, ks), 4), o)
        elif qk:
            tt = t - 64
            kb, qb, s = tt // 16, (tt % 16) // 4, tt % 4
            d = vr(Sreg(kb, qb), 4)
            c = vr(V_NM + qb * 4, 4) if s == 0 else d
            mf = '%s %s, %s, %s, %s' % (MF, d, ar(A_KF + kb * 16 + s * 4, 4), vr(V_Q + (qb * 4 + s) * 4, 4), c)
        assert len(sc[t]) <= 1 and len(ld[t]) <= 1
        if mf is None and not (sc[t] or ld[t] or va[t]):
            continue
        g.gap(mf, sc[t], ld[t], va[t], cap=cap)


def kv_dma_setup():
    o = []
    a = lambda s: o.append(Ins(s))
    a('v_and_b32 %s, 15, %s' % (t0, L))
    a('v_lshrrev_b32 %s, 4, %s' % (t1, L))
    a('v_lshlrev_b32 %s, 8, %s' % (t2, t1))
    a('v_add_u32 %s, %s, %s' % (t2, sr(S_MK), t2))
    a('v_xor_b32 %s, %s, %s' % (t3, t0, t1))
    a('v_lshl_add_u32 %s, %s, 4, %s' % (vr(V_OK), t3, t2))
    for c in range(1, 4):
        a('v_xor_b32 %s, %d, %s' % (vr(V_OK + c), c * 64, vr(V_OK)))
    a('v_lshlrev_b32 %s, 1, %s' % (t3, t1))
    a('v_xor_b32 %s, %s, %s' % (t3, t0, t3))
    a('v_lshl_add_u32 %s, %s, 4, %s' % (vr(V_OV), t3, t2))
    a('v_xor_b32 %s, 128, %s' % (vr(V_OV + 1), vr(V_OV)))
    return o


def k_read_setup():
    o = []
    a = lambda s: o.append(Ins(s))
    a('v_and_b32 %s, 15, %s' % (t0, L))
    a('v_lshrrev_b32 %s, 4, %s' % (t1, L))
    a('v_xor_b32 %s, %s, %s' % (t2, t0, t1))
    a('v_lshlrev_b32 %s, 4, %s' % (t2, t2))
    a('v_lshl_add_u32 %s, %s, 8, %s' % (vr(V_KA), t0, t2))
    for s in range(1, 4):
        a('v_xor_b32 %s, %d, %s' % (vr(V_KA + s), s * 64, vr(V_KA)))
    return o


def v_read_setup():
    o = []
    a = lambda s: o.append(Ins(s))
    a('v_lshrrev_b32 %s, 2, %s' % (t2, L))
    a('v_and_b32 %s, 7, %s' % (t3, t2))
    a('v_lshlrev_b32 %s, 5, %s' % (t3, t3))
    a('v_lshl_add_u32 %s, %s, 8, %s' % (t3, t2, t3))
    a('v_and_b32 %s, 3, %s' % (t2, L))
    a('v_lshl_add_u32 %s, %s, 3, %s' % (t3, t2, t3))
    a('v_add_u32 %s, 0x10000, %s' % (vr(V_VA), t3))
    for d in range(1, 8):
        a('v_xor_b32 %s, %d, %s' % (vr(V_VA + d), d * 32, vr(V_VA)))
    return o


def xlane4(op, xs, ts):
    o = []
    for perm in ('v_permlane32_swap_b32', 'v_permlane16_swap_b32'):
        for x, t in zip(xs, ts):
            o.append(Ins('v_mov_b32 %s, %s' % (t, x)))
        for x, t in zip(xs, ts):
            o.append(Ins('%s %s, %s' % (perm, x, t)))
        for x, t in zip(xs, ts):
            o.append(Ins('%s %s, %s, %s' % (op, x, x, t)))
    return o


def div18(o, n, row, sl):
    o.append(Ins('v_mul_u32_u24 %s, 3641, %s' % (row, n)))
    o.append(Ins('v_lshrrev_b32 %s, 16, %s' % (row, row)))
    o.append(Ins('v_mul_u32_u24 %s, 18, %s' % (sl, row)))
    o.append(Ins('v_sub_u32 %s, %s, %s' % (sl, n, sl)))


def ffn_tiles():
    m, nv, na = {}, 0, 0
    for b in range(9):
        for mat in range(2):
            for qb in range(4):
                if mat == 1 and na < 18:
                    m[(2 * b + mat, qb)] = ('a', na * 4)
                    na += 1
                else:
                    m[(2 * b + mat, qb)] = ('v', 40 + nv * 4)
                    nv += 1
    assert nv == 54 and na == 18
    return m


FT = ffn_tiles()
WQ_SLOT = {8: 9, 7: 3, 6: 4, 5: 5, 4: 6, 3: 7, 2: 8, 1: 9, 0: 3}


def p1_dma(c):
    out = [Ins('s_add_u32 %s, %s, %d' % (T(8), sr(S_OFFW), c * 64 * 9216))]
    for i in range(9):
        if i % 4 == 0:
            out.append(Ins('s_add_u32 m0, %s, %d' % (sr(S_M1), PS(c)[0] + (i // 4) * 4096)))
        out.append(Ins('buffer_load_dwordx4 %s, %s, %s offen offset:%d lds' % (
            vr(V_OW + i), sr(S_WS, 4), T(8), (i % 4) * 1024), lds=(PS(c), ('W', c))))
    return out


def xn_loads(c, buf):
    base = A_B + buf * 32
    out = []
    for qb in range(4):
        out.append(Ins('s_mov_b32 %s, %d' % (T(qb), qb * 18 * 1024 + c * 2048)))
        for ks in range(2):
            out.append(Ins('buffer_load_dwordx4 %s, %s, %s, %s offen offset:%d' % (
                ar(base + (qb * 2 + ks) * 4, 4), vr(V_L16), sr(S_XN, 4), T(qb), ks * 1024)))
    return out


def wq_dma(c):
    sl = WQ_SLOT[c]
    out = []
    for cc in range(4):
        out.append(Ins('s_add_u32 %s, %s, %d' % (T(4 + cc % 2), sr(S_OFFQ), (c * 64 + cc * 4) * 8192)))
        out.append(Ins('s_add_u32 m0, %s, %d' % (sr(S_MK), sl * 16384 + cc * 1024)))
        out.append(Ins('buffer_load_dwordx4 %s, %s, %s offen lds' % (
            vr(V_OQ + cc % 2), sr(S_WQ, 4), T(4 + cc % 2)), lds=(LS(sl), ('Q', c))))
    return out


def p1_reads(c, blk, dst):
    mat, b = blk % 2, blk // 2
    return [Ins('ds_read_b64_tr_b16 %s, %s offset:%d' % (
        ar(dst + ks * 4 + 2 * j, 2), vr(V_A1 + c % 4),
        mat * 18432 + (32 * ks + 16 * j) * 288 + 32 * b), lds=(PS(c), ('W', c)))
        for ks in range(2) for j in range(2)]


def p2_reads(c, bq, dst):
    s, jj = bq // 2, bq % 2
    sl = WQ_SLOT[c]
    return [Ins('ds_read_b64_tr_b16 %s, %s offset:%d' % (
        ar(dst + ks * 4 + 2 * j, 2), vr(V_AQ + (sl // 4) * 4 + s),
        (sl % 4) * 16384 + (32 * ks + 16 * j) * 256 + 8 * jj), lds=(LS(sl), ('Q', c)))
        for ks in range(2) for j in range(2)]


def swiglu_unit(b, qb, ready, pool):
    gt, ut = FT[(2 * b, qb)], FT[(2 * b + 1, qb)]
    pk = FT[(2 * (b - b % 2), qb)][1] + (b % 2) * 2
    o = []
    ta, tb = vr(V_SW), vr(V_SW + 1)
    for r in (0, 2):
        pa, pb = vr(V_SW + 2 + r), vr(V_SW + 3 + r)
        g0, g1 = vr(gt[1] + r), vr(gt[1] + r + 1)
        if ut[0] == 'a':
            o.append(Ins('v_accvgpr_read_b32 %s, %s' % (pa, ar(ut[1] + r))))
            o.append(Ins('v_accvgpr_read_b32 %s, %s' % (pb, ar(ut[1] + r + 1))))
            u0, u1 = pa, pb
        else:
            u0, u1 = vr(ut[1] + r), vr(ut[1] + r + 1)
        if OPT.get('fold', 0):
            o.append(Ins('v_exp_f32 %s, %s' % (ta, g0)))
            o.append(Ins('v_exp_f32 %s, %s' % (tb, g1)))
        else:
            o.append(Ins('v_mul_f32 %s, %s, %s' % (ta, sr(S_NL), g0)))
            o.append(Ins('v_mul_f32 %s, %s, %s' % (tb, sr(S_NL), g1)))
            o.append(Ins('v_exp_f32 %s, %s' % (ta, ta)))
            o.append(Ins('v_exp_f32 %s, %s' % (tb, tb)))
        o.append(Ins('v_mul_f32 %s, %s, %s' % (pa, g0, u0)))
        o.append(Ins('v_mul_f32 %s, %s, %s' % (pb, g1, u1)))
        o.append(Ins('v_add_f32 %s, 1.0, %s' % (ta, ta)))
        o.append(Ins('v_add_f32 %s, 1.0, %s' % (tb, tb)))
        o.append(Ins('v_rcp_f32 %s, %s' % (ta, ta)))
        o.append(Ins('v_rcp_f32 %s, %s' % (tb, tb)))
        o.append(Ins('v_mul_f32 %s, %s, %s' % (pa, pa, ta)))
        o.append(Ins('v_mul_f32 %s, %s, %s' % (pb, pb, tb)))
    for r in (0, 2):
        o.append(Ins('v_cvt_pk_bf16_f32 %s, %s, %s' % (vr(pk + r // 2), vr(V_SW + 2 + r), vr(V_SW + 3 + r))))
    rel = [ut] + ([gt] if b % 2 == 1 else [])
    if b % 2 == 1:
        o.append(Ins('buffer_store_dwordx4 %s, %s, %s, %s offen offset:%d sc1' % (
            vr(pk - 2, 4), vr(V_L16), sr(S_H, 4), sr(S_HS + qb), (b // 2) * 1024), lds=('H', 0)))
        if OPT.get('plain_h'):
            o[-1].text = o[-1].text.replace(' sc1', '')
        rel.append(FT[(2 * (b - 1), qb)])
    elif b == 8:
        o.append(Ins('buffer_store_dwordx2 %s, %s, %s, %s offen sc1' % (
            vr(pk, 2), vr(V_L16), sr(S_H, 4), sr(S_HS + 4 + qb)), lds=('H', 0)))
        if OPT.get('plain_h'):
            o[-1].text = o[-1].text.replace(' sc1', '')
    o[0].ready = ready
    o[-1].on_emit = lambda: pool.extend(t for t in rel if not (t[0] == 'v' and t[1] >= V_Q))
    return o


def qcvt_unit(qb, s, QT, ready):
    o = []
    for h in range(2):
        tl = QT[(2 * s + h, qb)]
        tm = [vr(V_SW + e) for e in range(4)]
        for e in range(4):
            if tl[0] == 'a':
                o.append(Ins('v_accvgpr_read_b32 %s, %s' % (tm[e], ar(tl[1] + e))))
        for e in range(4):
            o.append(Ins('v_mul_f32 %s, %s, %s' % (tm[e], sr(S_C), tm[e] if tl[0] == 'a' else vr(tl[1] + e))))
        for e in range(2):
            o.append(Ins('v_cvt_pk_bf16_f32 %s, %s, %s' % (vr(V_Q + (qb * 4 + s) * 4 + 2 * h + e), tm[2 * e], tm[2 * e + 1])))
    o[0].ready = ready
    return o


class GemmSeq:
    def __init__(self, p, g):
        self.p, self.g = p, g
        self.groups = []

    def add(self, reads, nfr, mf, hook=None, bar=None, bwait=None, cap=2):
        self.groups.append(dict(reads=reads, n=nfr, mf=mf, hook=hook, bar=bar, bwait=bwait, cap=cap))

    def run(self):
        G, g, p = self.groups, self.g, self.p
        pos = 0
        for x in G:
            if x['n'] == 16 and pos % 16:
                pos += 8
            x['dst'] = A_A + pos % 32
            pos += x['n']
        for k, x in enumerate(G):
            regs = lambda y: set(range(y['dst'], y['dst'] + y['n']))
            ld = 1
            if k >= 2 and not (regs(x) & regs(G[k - 1])) and not (regs(x) & regs(G[k - 2])) and G[k - 1]['n'] == 8:
                ld = 2
            assert k == 0 or not (regs(x) & regs(G[k - 1]))
            x['at'] = k - ld
        for x in G:
            if x['at'] < 0:
                if x['bar']:
                    p.need(*x['bar'])
                    p('s_barrier')
                for i in x['reads'](x['dst']):
                    p.add(i)
        for k, x in enumerate(G):
            if x['hook']:
                x['hook']()
            todo = [y for y in G if y['at'] == k]
            rd, bar = [], []
            for y in todo:
                rd += y['reads'](y['dst'])
                if y['bar'] is not None:
                    bar += y['bar']
            hasbar = any(y['bar'] is not None for y in todo)
            mfs = x['mf'](x['dst'])
            n = len(mfs)
            st = 3 if hasbar else 0
            step = 2 if (st + 2 * ((len(rd) + 1) // 2) <= n - 1) else 1
            for t in range(n):
                sc, ld = [], []
                if hasbar and t == 1:
                    sc = [need_ins(('lgkm', 'all'), *bar)]
                if hasbar and t == 2:
                    sc = [Ins('s_barrier')]
                if t >= st and (t - st) % step == 0 and rd:
                    ld = rd[:2]
                    rd = rd[2:]
                if t == n - 1 and k + 1 < len(G):
                    y = G[k + 1]
                    bw = y['bwait']() if callable(y['bwait']) else (y['bwait'] or [])
                    w = [ar(y['dst'], y['n'])] + bw
                    sc = [wait_ins(*w)]
                g.gap(mfs[t](), sc, ld, cap=x['cap'])
                if hasbar and t == 2:
                    for y in todo:
                        if y.get('post'):
                            y['post']()
            assert not rd


V_DOWS = [22, 23, 24, 25, 26, 27, 248, 249, 250]
V_DRA = 40
V_DA = 56
V_AC2, V_AC1 = 104, 176
V_PK = 4
A_DB = 128
SPIN_BLOCKS = []


def poll_issue(soff, V_FV=V_FV, V_FOFF=V_FOFF, S_FL=S_FL):
    return Ins('buffer_load_dword %s, %s, %s, %s offen sc1' % (vr(V_FV), vr(V_FOFF), sr(S_FL, 4), sr(soff)))


def poll_check(p, name, soff, cmp='v_cmp_ne_u32 vcc, %s' % sr(S_EP), V_FV=V_FV, V_FOFF=V_FOFF, S_FL=S_FL, sleep=4):
    SPIN_BLOCKS.append("""L_spin_%(n)s:
 s_mov_b32 s3, 0
L_spin_%(n)s_l:
 s_sleep %(sl)d
 buffer_load_dword %(v)s, %(o)s, %(srd)s, %(so)s offen sc1
 s_add_u32 s3, s3, 1
 s_cmp_gt_u32 s3, 0x40000
 s_cbranch_scc1 L_ok_%(n)s
 s_waitcnt vmcnt(0)
 %(cmp)s, %(v)s
 s_cbranch_vccnz L_spin_%(n)s_l
 s_branch L_ok_%(n)s""" % dict(n=name, v=vr(V_FV), o=vr(V_FOFF), srd=sr(S_FL, 4), so=sr(soff), cmp=cmp, sl=sleep))
    p('%s, %s' % (cmp, vr(V_FV)))
    p('s_cbranch_vccnz L_spin_%s' % name)
    p.label('L_ok_%s' % name)


def flag_store(soff, tag):
    return Ins('buffer_store_dword %s, %s, %s, %s offen sc1' % (
        vr(V_ONE), vr(V_FST), sr(S_FL, 4), sr(soff)), lds=('flag', (tag, 0)))


_ct = [0]


def code_touch(label, vo, vd, sp):
    _ct[0] += 1
    n = 'L_ct%d' % _ct[0]
    blk = Ins('; raw')
    blk.rawtext = (' s_getpc_b64 %(p)s\n%(n)s:\n s_add_u32 %(lo)s, %(lo)s, %(l)s-%(n)s\n s_addc_u32 %(hi)s, %(hi)s, 0' %
                   dict(p=sr(sp, 2), n=n, lo=sr(sp), hi=sr(sp + 1), l=label))
    return [blk,
            Ins('s_lshr_b32 s3, s2, 3'),
            Ins('s_lshl_b32 s3, s3, 11'),
            Ins('v_and_b32 %s, 15, %s' % (vr(vo), L)),
            Ins('v_lshlrev_b32 %s, 7, %s' % (vr(vo), vr(vo))),
            Ins('v_add_u32 %s, s3, %s' % (vr(vo), vr(vo))),
            Ins('v_min_u32 %s, L_code_end-%s-4, %s' % (vr(vo), label, vr(vo))),
            Ins('global_load_dword %s, %s, %s' % (vr(vd), vr(vo), sr(sp, 2)))]


def sadd(r, k):
    return Ins('s_add_u32 %s, %s, %d' % (sr(r), sr(r), k))


SK0, SK1, NPOS = 12, 16, 19
S_ADJW, S_ADJB = S_OFFK, S_OFFV


def dtag(c, at):
    if at < SK0 <= c:
        return lambda it: ('D', c + 4 if MODE[0] else c)
    return ('D', c)


def d_dma(c, at=0):
    out = []
    for i in range(9):
        if i % 4 == 0:
            if at >= SK1:
                out.append(Ins('s_add_u32 %s, %s, %d' % (T(8), sr(S_ADJW), c * 36864 + (i // 4) * 4096)))
            else:
                out.append(Ins('s_mov_b32 %s, %d' % (T(8), c * 36864 + (i // 4) * 4096)))
            out.append(Ins('s_add_u32 m0, %s, %d' % (sr(S_M1), DS(c)[0] + (i // 4) * 4096)))
        out.append(Ins('buffer_load_dwordx4 %s, %s, %s offen offset:%d sc1 lds' % (
            vr(V_L16), sr(S_DW2, 4), T(8), (i % 4) * 1024), lds=(DS(c), dtag(c, at))))
    return out


def d_bloads(c, at=0):
    srd, loc, rbs = (S_DH, c, HS()) if c < 9 else (S_DO, c - 9, OS())
    out = []
    for rb in range(2):
        if at >= SK1:
            out.append(Ins('s_add_u32 %s, %s, %d' % (T(9 + rb), sr(S_ADJB), loc * 4096 + rb * rbs)))
        else:
            out.append(Ins('s_mov_b32 %s, %d' % (T(9 + rb), loc * 4096 + rb * rbs)))
        for ks in range(4):
            out.append(Ins('buffer_load_dwordx4 %s, %s, %s, %s offen offset:%d sc1' % (
                ar(A_DB + (c % 4) * 32 + (rb * 4 + ks) * 4, 4), vr(V_L16), sr(srd, 4), T(9 + rb), ks * 1024)))
    return out


def d_reads(c, nb, at=None):
    return [Ins('ds_read_b64_tr_b16 %s, %s offset:%d' % (
        vr(V_DA + (nb % 3) * 16 + ks * 4 + 2 * j, 2), vr(V_DRA + c % 4), (32 * ks + 16 * j) * 288 + 32 * nb),
        lds=(DS(c), dtag(c, c if at is None else at))) for ks in range(4) for j in range(2)]


def d_pstore(gemm, nb):
    acc = (V_AC2 if gemm else V_AC1) + nb * 8
    pk = V_PK + (nb % 3) * 4
    out = []
    if nb % 4 == 0:
        out.append(Ins('s_mov_b32 %s, %d' % (T(nb // 4), gemm * PG + (nb // 4) * 4096)))
    for e in range(4):
        out.append(Ins('v_cvt_pk_bf16_f32 %s, %s, %s' % (vr(pk + e), vr(acc + 2 * e), vr(acc + 2 * e + 1))))
    out.append(Ins('buffer_store_dwordx4 %s, %s, %s, %s offen offset:%d sc1' % (
        vr(pk, 4), vr(V_L16), sr(S_DP, 4), T(nb // 4), (nb % 4) * 1024), lds=('PT%d' % gemm, 0)))
    return out


def d_ploads(gemm, base):
    out = []
    for k in range(3):
        for sp in range(4):
            t = T(4 + (k * 4 + sp) % 2)
            if k < 2:
                out.append(Ins('s_mov_b32 %s, %d' % (t, gemm * PG + sp * 4 * 9216 + k * 4096)))
            else:
                out.append(Ins('s_add_u32 %s, %s, %d' % (t, sr(S_OFFQ), gemm * PG + sp * 4 * 9216 + k * 4096)))
            out.append(Ins('buffer_load_dwordx4 %s, %s, %s, %s offen sc1' % (
                vr(base + (k * 4 + sp) * 4, 4), vr(V_L16), sr(S_DR, 4), t)))
    return out


def d_sum(base, k, dst, tmp):
    out = []
    for e in range(4):
        for sp in range(4):
            src = vr(base + (k * 4 + sp) * 4 + e)
            lo = vr(dst + 2 * e) if sp == 0 else vr(tmp)
            hi = vr(dst + 2 * e + 1) if sp == 0 else vr(tmp + 1)
            out.append(Ins('v_lshlrev_b32 %s, 16, %s' % (lo, src)))
            out.append(Ins('v_and_b32 %s, 0xffff0000, %s' % (hi, src)))
            if sp:
                out.append(Ins('v_add_f32 %s, %s, %s' % (vr(dst + 2 * e), vr(dst + 2 * e), lo)))
                out.append(Ins('v_add_f32 %s, %s, %s' % (vr(dst + 2 * e + 1), vr(dst + 2 * e + 1), hi)))
    return out


def d_scalar_setup1():
    o = []
    a = lambda s: o.append(Ins(s))
    a('s_mul_i32 %s, %s, 288' % (T(1), sr(S_W)))
    a('s_lshl_b32 %s, %s, 6' % (T(0), sr(S_SP)))
    a('s_add_u32 %s, %s, %s' % (T(0), T(0), sr(S_TILE)))
    a('s_mul_i32 %s, %s, %d' % (T(2), T(0), 18 * 1152))
    a('s_add_u32 %s, %s, %s' % (T(2), T(2), T(1)))
    o += srd_ins(S_A1, P_W2, T(2), 17 * 1152 + 288)
    a('s_and_b32 %s, %s, 1' % (T(7), sr(S_SP)))
    a('s_lshl_b32 %s, %s, 3' % (T(6), sr(S_SP)))
    a('s_lshl_b32 %s, %s, 1' % (T(3), T(7)))
    a('s_add_u32 %s, %s, %s' % (T(6), T(6), T(3)))
    a('s_lshl_b32 %s, %s, 3' % (T(7), T(7)))
    a('s_sub_u32 %s, 20, %s' % (T(7), T(7)))
    a('s_mul_i32 %s, %s, %s' % (T(9), T(7), sr(S_TILE)))
    a('s_lshl_b32 %s, %s, 7' % (T(2), T(6)))
    a('s_add_u32 %s, %s, %s' % (T(2), T(2), T(9)))
    a('s_mul_i32 %s, %s, 1152' % (T(2), T(2)))
    a('s_add_u32 %s, %s, %s' % (T(2), T(2), T(1)))
    a('s_mul_i32 %s, %s, 1152' % (T(3), T(7)))
    a('s_sub_u32 %s, %s, 864' % (T(3), T(3)))
    o += srd_ins(S_A2, P_WO, T(2), T(3))
    a('s_lshl_b32 %s, %s, 2' % (T(0), sr(S_SP)))
    a('s_add_u32 %s, %s, %s' % (T(1), T(0), sr(S_W)))
    a('s_mul_i32 %s, %s, %d' % (T(1), T(1), WBLK))
    a('s_add_u32 %s, %s, 0x%x' % (T(1), T(1), WS_W))
    a('s_mul_i32 %s, %s, %d' % (T(2), sr(S_TILE), 18 * 288))
    a('s_add_u32 %s, %s, %s' % (T(2), T(2), T(1)))
    o += srd_ins(S_A3, P_WS, T(2), 18 * 288)
    a('s_mul_i32 %s, %s, 288' % (T(2), T(9)))
    a('s_add_u32 %s, %s, %s' % (T(2), T(2), T(1)))
    a('s_add_u32 %s, %s, %d' % (T(2), T(2), 1152 * 288))
    a('s_mul_i32 %s, %s, 288' % (T(3), T(7)))
    o += srd_ins(S_A4, P_WS, T(2), T(3))
    a('s_mov_b32 %s, 0' % sr(S_RO))
    a('s_and_b32 %s, %s, 3' % (T(1), sr(S_TILE)))
    a('s_add_u32 %s, %s, %s' % (T(1), T(0), T(1)))
    a('s_mul_i32 %s, %s, %d' % (T(1), T(1), WBLK))
    a('s_add_u32 %s, %s, %s' % (T(1), T(1), sr(S_M1)))
    a('s_add_u32 %s, %s, 0x%x' % (T(1), T(1), WS_W))
    o += srd_ins(S_DW2, P_WS, T(1), 18 * 36864 + 9216)
    a('s_lshr_b32 %s, %s, 2' % (T(4), sr(S_TILE)))
    a('s_lshl_b32 %s, %s, 2' % (T(5), T(4)))
    a('s_add_u32 %s, %s, %s' % (T(5), T(5), sr(S_W)))
    a('s_mul_i32 %s, %s, %d' % (T(2), T(5), 2 * HS()))
    a('s_mul_i32 %s, %s, %d' % (T(3), sr(S_SP), 36 * 1024))
    a('s_add_u32 %s, %s, %s' % (T(2), T(2), T(3)))
    a('s_add_u32 %s, %s, 0x%x' % (T(2), T(2), WS_H))
    o += srd_ins(S_DH, P_WS, T(2), HS() + 36 * 1024)
    a('s_mul_i32 %s, %s, %d' % (T(2), T(5), 2 * OS()))
    a('s_lshl_b32 %s, %s, 12' % (T(3), T(6)))
    a('s_add_u32 %s, %s, %s' % (T(2), T(2), T(3)))
    a('s_add_u32 %s, %s, 0x%x' % (T(2), T(2), WS_O))
    o += srd_ins(S_DO, P_WS, T(2), OS() + 40 * 1024)
    return o


def d_scalar_setup2():
    o = []
    a = lambda s: o.append(Ins(s))
    a('s_lshl_b32 %s, %s, 2' % (T(2), sr(S_TILE)))
    a('s_add_u32 %s, %s, %s' % (T(2), T(2), sr(S_SP)))
    a('s_lshl_b32 %s, %s, 7' % (sr(S_FT), T(2)))
    a('s_add_u32 %s, %s, 0x10000' % (sr(S_FT), sr(S_FT)))
    a('s_lshl_b32 %s, %s, 2' % (T(2), T(2)))
    a('s_add_u32 %s, %s, %s' % (T(2), T(2), sr(S_W)))
    a('s_mul_i32 %s, %s, 9216' % (T(2), T(2)))
    a('s_add_u32 %s, %s, 0x%x' % (T(2), T(2), WS_P))
    o += srd_ins(S_DP, P_WS, T(2), PG + 9216)
    a('s_lshl_b32 %s, %s, 4' % (T(2), sr(S_TILE)))
    a('s_add_u32 %s, %s, %s' % (T(2), T(2), sr(S_SP)))
    a('s_mul_i32 %s, %s, 9216' % (T(2), T(2)))
    a('s_lshl_b32 %s, %s, 10' % (T(3), sr(S_W)))
    a('s_add_u32 %s, %s, %s' % (T(2), T(2), T(3)))
    a('s_add_u32 %s, %s, 0x%x' % (T(2), T(2), WS_P))
    o += srd_ins(S_DR, P_WS, T(2), PG + 14 * 9216)
    a('s_and_b32 %s, %s, 3' % (T(1), sr(S_TILE)))
    a('s_mul_i32 %s, %s, 288' % (T(1), T(1)))
    a('s_andn2_b32 %s, %s, 3' % (T(2), sr(S_TILE)))
    a('s_add_u32 %s, %s, %s' % (T(2), T(2), sr(S_SP)))
    a('s_mul_i32 %s, %s, %d' % (T(2), T(2), 32 * 1152))
    a('s_add_u32 %s, %s, %s' % (T(2), T(2), T(1)))
    o += srd_ins(S_DX, P_X, T(2), 31 * 1152 + 288)
    o += srd_ins(S_DOUT, P_OUT, T(2), 31 * 1152 + 288)
    a('s_lshl_b32 %s, %s, 28' % (sr(S_OFFQ), sr(S_W)))
    a('s_mov_b32 %s, 0x%x' % (sr(S_C), f2u(LOG2E * LOG2E)))
    a('s_mul_i32 %s, %s, %d' % (sr(S_HS), sr(S_W), 4 * OS()))
    for qb in range(1, 4):
        a('s_add_u32 %s, %s, 0x%x' % (sr(S_HS + qb), sr(S_HS), qb * OS()))
    a('s_lshl_b32 %s, %s, 5' % (sr(S_HS + 4), sr(S_W)))
    a('s_add_u32 %s, %s, %d' % (sr(S_HS + 5), sr(S_HS + 4), 16 * 1152))
    a('s_lshl_b32 %s, %s, 20' % (sr(S_HS + 6), sr(S_W)))
    a('s_add_u32 %s, %s, %d' % (sr(S_HS + 7), sr(S_HS + 6), 16 * 1152))
    return o


V_RN, V_RV = 20, 21
V_RQ = (248, 36)


def repack_pat():
    return [Ins('v_mul_u32_u24 %s, 3641, %s' % (vr(V_RV), vr(V_RN))),
            Ins('v_lshrrev_b32 %s, 16, %s' % (vr(V_RV), vr(V_RV))),
            Ins('v_mul_u32_u24 %s, 864, %s' % (vr(V_RV), vr(V_RV))),
            Ins('v_lshl_add_u32 %s, %s, 4, %s' % (vr(V_RV), vr(V_RN), vr(V_RV))),
            Ins('v_add_u32 %s, 64, %s' % (vr(V_RN), vr(V_RN)))]


def o_epilogue_unit(qb, t, n, ready):
    base = 184 + (n % 4) * 12
    o = []
    for r in range(8):
        o.append(Ins('v_accvgpr_read_b32 %s, %s' % (vr(base + r), ar(A_O + ((2 * t + r // 4) * 4 + qb) * 4 + r % 4))))
    for r in range(8):
        o.append(Ins('v_mul_f32 %s, %s, %s' % (vr(base + r), vr(base + r), vr(V_L + qb))))
    for r in range(4):
        o.append(Ins('v_cvt_pk_bf16_f32 %s, %s, %s' % (vr(base + 8 + r), vr(base + 2 * r), vr(base + 2 * r + 1))))
    o.append(Ins('buffer_store_dwordx4 %s, %s, %s, %s offen offset:%d%s' % (
        vr(base + 8, 4), vr(V_L16), sr(S_O, 4), sr(S_HS + qb), t * 1024, '' if OPT.get('plain_o', 0) else ' sc1'), lds=('O', 0)))
    o[0].ready = ready
    return o


def ln_parts(B=64):
    v = lambda k, n=1: vr(B + k, n)
    A, Ld, C, St = [], [], [], []
    a = lambda t: A.append(Ins(t))
    a('s_lshl_b32 s3, %s, 5' % sr(S_QT))
    a('s_add_u32 s3, s3, %s' % sr(S_HD))
    a('s_lshl_b32 s3, s3, 3')
    a('v_lshrrev_b32 %s, 5, v0' % v(1))
    a('v_add_u32 %s, s3, %s' % (v(1), v(1)))
    a('v_and_b32 %s, 31, v0' % v(2))
    a('v_lshrrev_b32 %s, 2, %s' % (v(3), v(2)))
    a('v_and_b32 %s, 3, %s' % (v(4), v(2)))
    a('v_mul_u32_u24 %s, 1152, %s' % (v(5), v(1)))
    a('v_lshl_add_u32 %s, %s, 6, %s' % (v(5), v(3), v(5)))
    a('v_lshl_add_u32 %s, %s, 3, %s' % (v(5), v(4), v(5)))
    for r in range(16, 20):
        a('v_mov_b32 %s, 0' % v(r))
    msk = lambda: [Ins('v_cmp_gt_u32 vcc, 8, %s' % v(2)), Ins('s_mov_b64 exec, vcc')]
    Ld += srd_ins(S_O, P_X, None, 2048 * 1152)
    for it in range(3):
        if it == 2:
            Ld += msk()
        Ld.append(Ins('buffer_load_dwordx2 %s, %s, %s, 0 offen offset:%d' % (v(8 + 4 * it, 2), v(5), sr(S_O, 4), it * 512)))
        Ld.append(Ins('buffer_load_dwordx2 %s, %s, %s, 0 offen offset:%d' % (v(10 + 4 * it, 2), v(5), sr(S_O, 4), it * 512 + 32)))
    Ld.append(Ins('s_mov_b64 exec, -1'))
    c = lambda t: C.append(Ins(t))
    c('v_lshrrev_b32 %s, 4, %s' % (v(6), v(1)))
    c('v_mul_u32_u24 %s, 18, %s' % (v(6), v(6)))
    c('v_add_u32 %s, %s, %s' % (v(6), v(6), v(3)))
    c('v_lshlrev_b32 %s, 10, %s' % (v(6), v(6)))
    c('v_lshl_add_u32 %s, %s, 8, %s' % (v(6), v(4), v(6)))
    c('v_and_b32 %s, 15, %s' % (v(7), v(1)))
    c('v_lshl_add_u32 %s, %s, 4, %s' % (v(6), v(7), v(6)))
    for d in range(12):
        c('v_lshlrev_b32 %s, 16, %s' % (v(20 + 2 * d), v(8 + d)))
        c('v_and_b32 %s, 0xffff0000, %s' % (v(21 + 2 * d), v(8 + d)))

    def reduce32(x, t):
        for k in (8, 4, 2, 1):
            c('v_add_f32_dpp %s, %s, %s row_ror:%d row_mask:0xf bank_mask:0xf' % (x, x, x, k))
        c('v_mov_b32 %s, %s' % (t, x))
        c('v_permlane16_swap_b32 %s, %s' % (x, t))
        c('v_add_f32 %s, %s, %s' % (x, x, t))
    c('v_add_f32 %s, %s, %s' % (v(44), v(20), v(21)))
    c('v_add_f32 %s, %s, %s' % (v(45), v(22), v(23)))
    for e in range(4, 24, 2):
        c('v_add_f32 %s, %s, %s' % (v(44), v(44), v(20 + e)))
        c('v_add_f32 %s, %s, %s' % (v(45), v(45), v(21 + e)))
    c('v_add_f32 %s, %s, %s' % (v(44), v(44), v(45)))
    reduce32(v(44), v(45))
    c('v_mul_f32 %s, 0x%x, %s' % (v(44), f2u(1.0 / 576), v(44)))
    c('v_mov_b32 %s, 0' % v(46))
    c('v_mov_b32 %s, 0' % v(47))
    for e in range(24):
        if e == 16:
            C += msk()
        c('v_sub_f32 %s, %s, %s' % (v(48), v(20 + e), v(44)))
        c('v_fmac_f32 %s, %s, %s' % (v(46 + e % 2), v(48), v(48)))
    c('s_mov_b64 exec, -1')
    c('v_add_f32 %s, %s, %s' % (v(46), v(46), v(47)))
    reduce32(v(46), v(45))
    c('v_mul_f32 %s, 0x%x, %s' % (v(46), f2u(1.0 / 576), v(46)))

    def rnd(x):
        c('v_cvt_pk_bf16_f32 %s, %s, %s' % (x, x, x))
        c('v_lshlrev_b32 %s, 16, %s' % (x, x))
    rnd(v(44))
    rnd(v(46))
    c('v_add_f32 %s, 0x%x, %s' % (v(46), f2u(1e-5), v(46)))
    rnd(v(46))
    c('v_sqrt_f32 %s, %s' % (v(46), v(46)))
    rnd(v(46))
    c('v_rcp_f32 %s, %s' % (v(46), v(46)))
    if OPT.get('fold', 0):
        c('v_mul_f32 %s, 0x%x, %s' % (v(46), f2u(-LOG2E), v(46)))
    C += srd_ins(S_XN, P_WS, None, 2048 * 1152)
    c('s_mov_b32 %s, 8192' % T(0))
    c('s_mov_b32 %s, 16384' % T(1))
    for d in range(12):
        x, y = v(20 + 2 * d), v(21 + 2 * d)
        c('v_sub_f32 %s, %s, %s' % (x, x, v(44)))
        c('v_sub_f32 %s, %s, %s' % (y, y, v(44)))
        c('v_cvt_pk_bf16_f32 %s, %s, %s' % (v(8 + d), x, y))
        c('v_lshlrev_b32 %s, 16, %s' % (x, v(8 + d)))
        c('v_and_b32 %s, 0xffff0000, %s' % (y, v(8 + d)))
        c('v_mul_f32 %s, %s, %s' % (x, x, v(46)))
        c('v_mul_f32 %s, %s, %s' % (y, y, v(46)))
        c('v_cvt_pk_bf16_f32 %s, %s, %s' % (v(8 + d), x, y))
        if d % 4 == 3:
            if d == 11:
                C += msk()
            C.append(Ins('buffer_store_dwordx4 %s, %s, %s, %s offen sc1' % (
                v(5 + d, 4), v(6), sr(S_XN, 4), ('0', T(0), T(1))[d // 4]), lds=('XN', 0)))
    c('s_mov_b64 exec, -1')
    return A, Ld, C


def gen_start_roles(diag):
    B = 64
    v = lambda k, n=1: vr(B + k, n)
    p = Prog()
    p('s_cmp_ge_u32 %s, 2' % sr(S_W))
    p('s_cbranch_scc1 L_role_b')
    p('s_lshl_b32 s3, %s, 5' % sr(S_QT))
    p('s_add_u32 s3, s3, %s' % sr(S_HD))
    p('s_lshl_b32 %s, s3, 3' % T(0))
    p('v_lshrrev_b32 %s, 4, v0' % v(1))
    p('v_add_u32 %s, %s, %s' % (v(1), T(0), v(1)))
    p('v_and_b32 %s, 15, v0' % v(2))
    p('v_lshrrev_b32 %s, 2, %s' % (v(3), v(2)))
    p('v_and_b32 %s, 3, %s' % (v(4), v(2)))
    p('v_mul_u32_u24 %s, 1152, %s' % (v(5), v(1)))
    p('v_lshl_add_u32 %s, %s, 6, %s' % (v(5), v(3), v(5)))
    p('v_lshl_add_u32 %s, %s, 3, %s' % (v(5), v(4), v(5)))
    for r in range(24, 28):
        p('v_mov_b32 %s, 0' % v(r))
    p('v_cmp_gt_u32 vcc, 8, %s' % v(2))
    p('v_or_b32 %s, s2, v0' % v(80))
    p('v_min_u32 %s, 1, %s' % (v(80), v(80)))
    p('v_lshlrev_b32 %s, 20, %s' % (v(80), v(80)))
    p('s_mov_b64 s[26:27], vcc')
    p('s_waitcnt lgkmcnt(0)')
    make_srd(p, S_O, P_X, None, 2048 * 1152)
    for it in range(5):
        if it == 4:
            p('s_mov_b64 exec, s[26:27]')
        p('buffer_load_dwordx2 %s, %s, %s, 0 offen offset:%d' % (v(8 + 4 * it, 2), v(5), sr(S_O, 4), it * 256))
        p('buffer_load_dwordx2 %s, %s, %s, 0 offen offset:%d' % (v(10 + 4 * it, 2), v(5), sr(S_O, 4), it * 256 + 32))
    p('s_mov_b64 exec, -1')
    make_srd(p, S_WQ, 50, None, 256)
    p('s_or_b32 %s, s24, 1' % T(1))
    p('v_mov_b32 %s, %s' % (v(81), T(1)))
    p('buffer_store_dword %s, %s, %s, 0 offen sc1' % (v(81), v(80), sr(S_WQ, 4)))
    p('v_lshrrev_b32 %s, 4, %s' % (v(6), v(1)))
    p('v_mul_u32_u24 %s, 18, %s' % (v(6), v(6)))
    p('v_add_u32 %s, %s, %s' % (v(6), v(6), v(3)))
    p('v_lshlrev_b32 %s, 10, %s' % (v(6), v(6)))
    p('v_lshl_add_u32 %s, %s, 8, %s' % (v(6), v(4), v(6)))
    p('v_and_b32 %s, 15, %s' % (v(7), v(1)))
    p('v_lshl_add_u32 %s, %s, 4, %s' % (v(6), v(7), v(6)))
    make_srd(p, S_XN, P_WS, None, 2048 * 1152)
    p('s_mov_b32 %s, 0x%x' % (T(3), WS_F + 4 * 32768))
    make_srd(p, S_FL, P_WS, T(3), 65536)
    p('s_lshl_b32 %s, %s, 13' % (T(2), sr(S_QT)))
    p('s_lshl_b32 %s, s3, 1' % T(3))
    p('s_add_u32 %s, %s, %s' % (T(3), T(3), sr(S_W)))
    p('s_lshl_b32 %s, %s, 7' % (T(3), T(3)))
    p('v_lshlrev_b32 %s, 20, %s' % (v(82), L))
    p('v_lshlrev_b32 %s, 7, %s' % (v(83), L))
    p('v_mov_b32 %s, 0' % v(84))
    for k in range(1, 5):
        p('s_mov_b32 %s, %d' % (T(3 + k), 4096 * k))
    F = 30
    for d in range(20):
        p('v_lshlrev_b32 %s, 16, %s' % (v(F + 2 * d), v(8 + d)))
        p('v_and_b32 %s, 0xffff0000, %s' % (v(F + 1 + 2 * d), v(8 + d)))
    p('buffer_load_dword %s, %s, %s, 0 offen sc1' % (v(85), v(84), sr(S_WQ, 4)))
    m, m2, q, q2, t = v(70), v(71), v(72), v(73), v(74)

    def reduce16(x):
        for k in (8, 4, 2, 1):
            p('v_add_f32_dpp %s, %s, %s row_ror:%d row_mask:0xf bank_mask:0xf' % (x, x, x, k))
    p('v_add_f32 %s, %s, %s' % (m, v(F), v(F + 1)))
    p('v_add_f32 %s, %s, %s' % (m2, v(F + 2), v(F + 3)))
    for e in range(4, 40, 2):
        p('v_add_f32 %s, %s, %s' % (m, m, v(F + e)))
        p('v_add_f32 %s, %s, %s' % (m2, m2, v(F + e + 1)))
    p('v_add_f32 %s, %s, %s' % (m, m, m2))
    reduce16(m)
    p('v_mul_f32 %s, 0x%x, %s' % (m, f2u(1.0 / 576), m))
    p('v_mov_b32 %s, 0' % q)
    p('v_mov_b32 %s, 0' % q2)
    for e in range(40):
        if e == 32:
            p('s_mov_b64 exec, s[26:27]')
        p('v_sub_f32 %s, %s, %s' % (t, v(F + e), m))
        p('v_fmac_f32 %s, %s, %s' % ((q, q2)[e % 2], t, t))
    p('s_mov_b64 exec, -1')
    p('v_add_f32 %s, %s, %s' % (q, q, q2))
    reduce16(q)
    p('v_mul_f32 %s, 0x%x, %s' % (q, f2u(1.0 / 576), q))

    def rnd(x):
        p('v_cvt_pk_bf16_f32 %s, %s, %s' % (x, x, x))
        p('v_lshlrev_b32 %s, 16, %s' % (x, x))
    rnd(m)
    rnd(q)
    p('v_add_f32 %s, 0x%x, %s' % (q, f2u(1e-5), q))
    rnd(q)
    p('v_sqrt_f32 %s, %s' % (q, q))
    rnd(q)
    p('v_rcp_f32 %s, %s' % (q, q))
    for d in range(20):
        x, y = v(F + 2 * d), v(F + 1 + 2 * d)
        p('v_sub_f32 %s, %s, %s' % (x, x, m))
        p('v_sub_f32 %s, %s, %s' % (y, y, m))
        p('v_cvt_pk_bf16_f32 %s, %s, %s' % (v(8 + d), x, y))
        p('v_lshlrev_b32 %s, 16, %s' % (x, v(8 + d)))
        p('v_and_b32 %s, 0xffff0000, %s' % (y, v(8 + d)))
        p('v_mul_f32 %s, %s, %s' % (x, x, q))
        p('v_mul_f32 %s, %s, %s' % (y, y, q))
        p('v_cvt_pk_bf16_f32 %s, %s, %s' % (v(8 + d), x, y))
        if d % 4 == 3:
            if d == 19:
                p('s_mov_b64 exec, s[26:27]')
            p('buffer_store_dwordx4 %s, %s, %s, %s offen sc1' % (v(5 + d, 4), v(6), sr(S_XN, 4), '0' if d == 3 else T(3 + d // 4)))
    p('s_mov_b64 exec, -1')
    p('s_mov_b32 s3, 0')
    p.label('L_ep_l')
    p('s_memrealtime s[24:25]')
    p('s_waitcnt vmcnt(0) lgkmcnt(0)')
    p('v_readfirstlane_b32 %s, %s' % (T(0), v(85)))
    p('s_add_u32 %s, s24, 100' % T(1))
    p('s_sub_u32 %s, %s, %s' % (T(1), T(1), T(0)))
    p('s_bitcmp0_b32 %s, 0' % T(0))
    p('s_cselect_b32 %s, -1, %s' % (T(1), T(1)))
    p('s_cmp_lt_u32 %s, 5100' % T(1))
    p('s_cbranch_scc1 L_ep_ok')
    p('s_and_b32 %s, %s, 1' % (T(0), T(0)))
    p('s_mul_i32 %s, %s, 127' % (T(0), T(0)))
    p('s_add_u32 s3, s3, %s' % T(0))
    p('s_add_u32 s3, s3, 1')
    p('s_cmp_gt_u32 s3, 0x40000')
    p('s_cbranch_scc1 L_ep_ok')
    p('buffer_load_dword %s, %s, %s, 0 offen sc1' % (v(85), v(84), sr(S_WQ, 4)))
    p('s_branch L_ep_l')
    p.label('L_ep_ok')
    p('buffer_store_dword %s, %s, %s, %s offen sc1' % (v(85), v(82), sr(S_FL, 4), T(3)))
    p('v_mov_b32 %s, 163836' % v(84))
    p('ds_write_b32 %s, %s' % (v(84), v(85)))
    p('s_mov_b32 %s, %s' % (sr(S_CNT), T(2)))
    p('s_branch L_join')
    SPIN_BLOCKS.append("""L_lnp:
 s_mov_b32 s3, 0
L_lnp_l:
 buffer_load_dword %s, %s, %s, %s offen sc1
 s_add_u32 s3, s3, 1
 s_cmp_gt_u32 s3, 0x40000
 s_cbranch_scc1 L_lnp_ok
 s_waitcnt vmcnt(0)
 v_cmp_ne_u32 vcc, %s, %s
 s_cbranch_vccnz L_lnp_l
 s_branch L_lnp_ok""" % (v(86), v(83), sr(S_FL, 4), sr(S_CNT), v(85), v(86)))
    p.label('L_role_b')
    ct = code_touch('L_join', B + 90, B + 91, S_O)
    ct[2] = Ins('s_lshl_b32 s3, s3, 12')
    ct[3] = Ins('v_and_b32 %s, 31, %s' % (v(90), L))
    for x in ct:
        p.add(x)
    R0 = OPT.get('pf0', 8)
    p('s_lshr_b32 %s, s2, 3' % T(0))
    p('s_mul_i32 %s, %s, %d' % (T(0), T(0), R0 * 9216))
    p('s_and_b32 %s, s2, 3' % T(1))
    p('s_mul_i32 %s, %s, 2304' % (T(1), T(1)))
    p('s_add_u32 %s, %s, %s' % (T(0), T(0), T(1)))
    p('s_waitcnt lgkmcnt(0)')
    both = OPT.get('pfh', 1) == 0
    if both:
        p('s_cmp_eq_u32 %s, 3' % sr(S_W))
    else:
        p('s_bitcmp1_b32 s2, 2')
    p('s_cselect_b32 %s, s46, s44' % sr(S_H))
    p('s_cselect_b32 %s, s47, s45' % sr(S_H + 1))
    make_srd(p, S_H, S_H, T(0), (R0 - 1) * 9216 + 2304)
    for k in range(4 if both else 2):
        o = [Ins('v_add_u32 %s, %d, %s' % (v(92), 64 * k, L)) if both else Ins('v_add_u32 %s, %d, v0' % (v(92), 128 * k - 128))]
        div18(o, v(92), v(93), v(94))
        for x in o:
            p.add(x)
        p('v_mul_u32_u24 %s, 9216, %s' % (v(93), v(93)))
        p('v_lshl_add_u32 %s, %s, 7, %s' % (v(93), v(94), v(93)))
        p('buffer_load_dword %s, %s, %s, 0 offen' % (v(95 + k), v(93), sr(S_H, 4)))
    p('s_mov_b32 %s, 0x%x' % (T(3), WS_F + 4 * 32768))
    make_srd(p, S_FL, P_WS, T(3), 65536)
    p('v_lshlrev_b32 %s, 7, %s' % (v(83), L))
    p('s_mov_b32 %s, 0' % sr(S_CNT))
    p.label('L_join')
    p.finalize()
    return p.text().rstrip('\n')


def gen_slow_softmax():
    p = Prog()
    KA, VA, OK, OV, NM, MX = 120, 124, 132, 136, 140, 138
    NM = 44
    NM, OV, MX = 136, 32, 36
    p.label('L_slow')
    p('s_waitcnt vmcnt(0) lgkmcnt(0)')
    p('s_nop 15')
    p('s_add_u32 %s, %s, %d' % (T(0), sr(S_MK), 112 * 1024))
    p('s_cmp_eq_u32 %s, 3' % sr(S_W))
    p('s_cselect_b32 %s, %d, %s' % (T(0), 72 * 1024, T(0)))
    p('s_sub_u32 %s, %s, 0x10000' % (T(1), T(0)))
    for k in range(4):
        p('v_add_u32 %s, %s, %s' % (vr(KA + k), T(0), vr(V_KA + k)))
        p('v_subrev_u32 %s, %s, %s' % (vr(OK + k), sr(S_MK), vr(V_OK + k)))
    for k in range(8):
        p('v_add_u32 %s, %s, %s' % (vr(VA + k), T(1), vr(V_VA + k)))
    for k in range(2):
        p('v_subrev_u32 %s, %s, %s' % (vr(OV + k), sr(S_MK), vr(V_OV + k)))

    def load16(srd, vo, nvo):
        p('s_mov_b32 m0, %s' % T(0))
        for cc in range(4):
            p('buffer_load_dwordx4 %s, %s, %s offen offset:%d lds' % (vr(vo + cc % nvo), sr(srd, 4), T(2), cc * 1024))
        p('s_add_u32 %s, %s, 4096' % (T(2), T(2)))
        p('s_waitcnt vmcnt(0)')

    def qk(cin):
        p('s_mov_b32 %s, %s' % (T(2), T(3)))
        for kb in range(4):
            load16(S_K, OK, 4)
            for sx in range(4):
                p('ds_read_b128 %s, %s' % (ar(A_VF + (kb * 4 + sx) * 4, 4), vr(KA + sx)))
            p('s_waitcnt lgkmcnt(0)')
        for kb in range(4):
            for qb in range(4):
                for sx in range(4):
                    d = vr(Sreg(kb, qb), 4)
                    p('%s %s, %s, %s, %s' % (MF, d, ar(A_VF + (kb * 4 + sx) * 4, 4), vr(V_Q + (qb * 4 + sx) * 4, 4),
                                             cin(qb) if sx == 0 else d))
    for qb in range(4):
        p('v_mov_b32 %s, 0xff7fffff' % vr(MX + qb))
    p('s_mov_b32 %s, 0' % T(3))
    p.loop_begin(2, 's1')
    p.label('L_slow1')
    qk(lambda qb: '0')
    for qb in range(4):
        regs = [vr(Sreg(kb, qb) + r) for kb in range(4) for r in range(4)]
        for k in range(8):
            p('v_max3_f32 %s, %s, %s, %s' % (vr(MX + qb), vr(MX + qb), regs[2 * k], regs[2 * k + 1]))
    p('s_add_u32 %s, %s, 16384' % (T(3), T(3)))
    p('s_cmp_lt_u32 %s, 0x80000' % T(3))
    p('s_cbranch_scc1 L_slow1')
    p.loop_end()
    for x in xlane4('v_max_f32', [vr(MX + k) for k in range(4)], [vr(V_E + k) for k in range(4)]):
        p.add(x)
    for qb in range(4):
        for r in range(4):
            p('v_sub_f32 %s, 0, %s' % (vr(NM + qb * 4 + r), vr(MX + qb)))
        p('v_mov_b32 %s, 0' % vr(V_L + qb))
    for i in range(128):
        p('v_accvgpr_write_b32 %s, 0' % ar(A_O + i))
    p('s_mov_b32 %s, 0' % T(3))
    lp = p.loop_begin(3, 's2')
    p.label('L_slow2')
    qk(lambda qb: vr(NM + qb * 4, 4))
    for i in range(64):
        for x in sm_instrs(1, i):
            if x is not None:
                p.add(x)
    p('s_cmp_eq_u32 %s, 0x7c000' % T(3))
    p('s_cbranch_scc1 L_slow_done')
    p.loop_mark_exit(lp)
    p('s_mov_b32 %s, %s' % (T(2), T(3)))
    for ks in range(2):
        for j in range(2):
            load16(S_V, OV, 2)
            for db in range(8):
                p('ds_read_b64_tr_b16 %s, %s' % (ar(A_VF + db * 8 + ks * 4 + 2 * j, 2), vr(VA + db)))
            p('s_waitcnt lgkmcnt(0)')
    for db in range(8):
        for qb in range(4):
            for ks in range(2):
                o = ar(A_O + (db * 4 + qb) * 4, 4)
                p('%s %s, %s, %s, %s' % (MF, o, ar(A_VF + db * 8 + ks * 4, 4), vr(Preg(1, qb, ks), 4), o))
    p('s_add_u32 %s, %s, 16384' % (T(3), T(3)))
    p('s_branch L_slow2')
    p.loop_end()
    p.label('L_slow_done')
    for db in range(4):
        for ks in range(2):
            for j in range(2):
                x = v_load(31, db, ks, j, False)
                x.lds = None
                p.add(x)
    p('s_waitcnt vmcnt(0) lgkmcnt(0)')
    p('s_nop 15')
    p('s_branch L_slow_ret')
    p.finalize()
    return p.text().rstrip('\n')


def gen_main(diag=False):
    p = Prog()
    del SPIN_BLOCKS[:]
    _ct[0] = 0

    def stamp(k):
        if diag:
            p('s_memtime %s' % sr(S_DG, 2))
            p('s_waitcnt lgkmcnt(0)')
            p('v_writelane_b32 v1, %s, %d' % (sr(S_DG), k))
            p('s_memrealtime %s' % sr(S_DG, 2))
            p('s_waitcnt lgkmcnt(0)')
            p('v_writelane_b32 v1, %s, %d' % (sr(S_DG), k + 16))

    def addall(lst):
        for x in lst:
            p.add(x)

    def rstamp(k):
        if diag and OPT.get('sst'):
            p('s_memrealtime %s' % sr(S_DG, 2))
            p('s_waitcnt lgkmcnt(0)')
            p('v_writelane_b32 v1, %s, %d' % (sr(S_DG), 32 + k))
    p('s_cmp_ge_u32 s2, 256')
    p('s_cbranch_scc1 L_end')
    p('s_load_dwordx4 s[44:47], s[0:1], 48')
    p('s_load_dwordx2 %s, s[0:1], 88' % sr(P_WS, 2))
    p('s_load_dwordx4 s[36:39], s[0:1], 8')
    p('s_load_dwordx2 s[40:41], s[0:1], 24')
    p('s_load_dwordx2 %s, s[0:1], 0' % sr(P_X, 2))
    p('s_load_dwordx2 %s, s[0:1], 32' % sr(P_WO, 2))
    p('s_load_dwordx4 %s, s[0:1], 64' % sr(P_W2, 4))
    FU = OPT.get('fuse', 2)
    if FU:
        p('s_load_dwordx2 s[50:51], s[0:1], 80')
    stamp(0)
    p('v_and_b32 %s, 63, v0' % L)
    p('v_lshrrev_b32 %s, 6, v0' % t0)
    p('v_readfirstlane_b32 %s, %s' % (sr(S_W), t0))
    p('s_and_b32 %s, s2, 3' % T(0))
    p('s_lshl_b32 %s, %s, 3' % (T(0), T(0)))
    p('s_bfe_u32 %s, s2, 0x30003' % T(1))
    p('s_add_u32 %s, %s, %s' % (sr(S_HD), T(0), T(1)))
    p('s_and_b32 %s, s2, 4' % T(0))
    p('s_lshr_b32 %s, s2, 6' % T(1))
    p('s_add_u32 %s, %s, %s' % (sr(S_QT), T(0), T(1)))
    if FU == 2:
        p('s_memrealtime s[24:25]')
        p('s_nop 4')
        p.raw(gen_start_roles(diag))
        rstamp(0)
    if FU == 1:
        lnA, lnL, lnC = ln_parts()
        ct = code_touch('L_start', 120, 121, S_FL)
        ct[2] = Ins('s_lshl_b32 s3, s3, 12')
        ct[3] = Ins('v_and_b32 v120, 31, %s' % L)
        addall(ct)
        p.label('L_start')
        addall(lnA)
        p('s_memrealtime s[24:25]')
        p('v_or_b32 v125, s2, v0')
        p('v_min_u32 v125, 1, v125')
        p('v_lshlrev_b32 v125, 20, v125')
        p('s_waitcnt lgkmcnt(0)')
        make_srd(p, S_WQ, 50, None, 256)
        p('s_or_b32 s3, s24, 1')
        p('v_mov_b32 v126, s3')
        p('buffer_store_dword v126, v125, %s, 0 offen sc1' % sr(S_WQ, 4))
        addall(lnL)
        rstamp(0)
    p('v_lshlrev_b32 %s, 4, %s' % (vr(V_L16), L))
    p('s_and_b32 %s, %s, 1' % (T(2), sr(S_HD)))
    p('s_lshl_b32 %s, %s, 1' % (T(2), T(2)))
    p('v_add_u32 %s, %s, %s' % (t3, T(2), L))
    p('v_mul_u32_u24 %s, 3641, %s' % (vr(V_T + 4), L))
    p('v_mul_u32_u24 %s, 3641, %s' % (vr(V_T + 5), t3))
    p('s_movk_i32 %s, 9216' % T(9))
    p('s_movk_i32 %s, -288' % T(10))
    vo = []
    for i in range(9):
        o = []
        o.append(Ins('v_add_u32 %s, %d, %s' % (t0, 64 * i * 3641, vr(V_T + 4))))
        o.append(Ins('v_add_u32 %s, %d, %s' % (t1, 64 * i * 3641, vr(V_T + 5))))
        o.append(Ins('v_lshrrev_b32 %s, 16, %s' % (t0, t0)))
        o.append(Ins('v_lshrrev_b32 %s, 16, %s' % (t1, t1)))
        o.append(Ins('v_lshlrev_b32 %s, 4, %s' % (t2, t3)) if i == 0 else Ins('v_add_u32 %s, %d, %s' % (t2, 4096 if i % 4 == 0 else 0, t2)))
        o.append(Ins('v_mad_u32_u24 %s, %s, %s, %s' % (t0, t0, T(9), t2)))
        o.append(Ins('v_mad_i32_i24 %s, %s, %s, %s' % (vr(V_OW + i), t1, T(10), t0)))
        if i % 4:
            del o[4]
        vo.append(o)
    for o in vo[:4]:
        addall(o)
    p('s_mul_i32 %s, %s, 9216' % (sr(S_M1), sr(S_W)))
    p('s_and_b32 %s, %s, 1' % (T(3), sr(S_W)))
    p('s_mul_i32 %s, %s, %d' % (sr(S_OFFW), T(3), 32 * 9216))
    p('s_mul_i32 %s, %s, 288' % (T(2), sr(S_HD)))
    p('s_sub_u32 %s, %d, %s' % (T(3), 576 * 9216, T(2)))
    p('s_lshl_b32 %s, %s, 2' % (T(6), sr(S_QT)))
    p('s_add_u32 %s, %s, %s' % (T(6), T(6), sr(S_W)))
    p('s_mul_i32 %s, %s, %d' % (T(7), T(6), 4 * 18 * 1024))
    p('s_cmp_lt_u32 %s, 2' % sr(S_W))
    p('s_waitcnt lgkmcnt(0)')
    p('s_cselect_b32 s48, s44, s46')
    p('s_cselect_b32 s49, s45, s47')
    make_srd(p, S_WS, 48, T(2), T(3))
    def ln_now():
        p('v_mov_b32 v127, 0')
        p('s_mov_b32 %s, 0' % sr(S_CNT))
        rstamp(1)
        p.wait_regs(vr(72, 12))
        p.add(poll_issue(S_CNT, 128, 127, S_WQ))
        rstamp(2)
        addall(lnC)
        rstamp(3)
        poll_check(p, 'ep', S_CNT, 'v_cmp_eq_u32 vcc, 0', 128, 127, S_WQ, sleep=2)
        p('v_readfirstlane_b32 %s, v128' % sr(S_EP))

    def w_touch0():
        R0 = OPT.get('pf0', 8)
        if not R0:
            return
        p('s_lshr_b32 %s, s2, 3' % T(0))
        p('s_mul_i32 %s, %s, %d' % (T(0), T(0), R0 * 9216))
        p('s_and_b32 %s, s2, 3' % T(1))
        p('s_mul_i32 %s, %s, 2304' % (T(1), T(1)))
        p('s_add_u32 %s, %s, %s' % (T(0), T(0), T(1)))
        p('s_bitcmp1_b32 s2, 2')
        p('s_cselect_b32 %s, s46, s44' % sr(S_H))
        p('s_cselect_b32 %s, s47, s45' % sr(S_H + 1))
        make_srd(p, S_H, S_H, T(0), (R0 - 1) * 9216 + 2304)
        o = []
        div18(o, 'v0', 'v122', 'v123')
        addall(o)
        p('v_mul_u32_u24 v122, 9216, v122')
        p('v_lshl_add_u32 v122, v123, 7, v122')
        p('buffer_load_dword v124, v122, %s, 0 offen' % sr(S_H, 4))
    ORD = OPT.get('ord', 1)
    if FU == 2:
        make_srd(p, S_XN, P_WS, T(7), 4 * 18 * 1024)
    elif FU:
        p('s_mov_b32 %s, %s' % (sr(S_RO), T(7)))
        if ORD >= 1:
            if ORD == 1:
                w_touch0()
            for o in vo[4:]:
                addall(o)
            vo = vo[:4]
            ln_now()
            if ORD == 2:
                w_touch0()
    else:
        make_srd(p, S_XN, P_WS, T(7), 4 * 18 * 1024)
    d0 = p1_dma(0)
    addall(d0[:6])
    for o in vo[4:]:
        addall(o)
    addall(d0[6:] + (xn_loads(0, 0) if not FU else []))
    if FU == 2:
        rstamp(1)
        p('s_cmp_eq_u32 %s, 0' % sr(S_W))
        p('s_cbranch_scc1 L_lnp')
        p.label('L_lnp_ok')
        p('s_waitcnt lgkmcnt(0)')
        p('s_barrier')
        rstamp(2)
        addall(xn_loads(0, 0))
        p('v_mov_b32 v64, 163836')
        p('ds_read_b32 v65, v64')
        p('v_readfirstlane_b32 %s, v65' % sr(S_EP))
    if FU == 1 and ORD == 0:
        w_touch0()
        ln_now()
    if OPT.get('pro', 1) == 0:
        addall(p1_dma(1) + xn_loads(1, 1) + p1_dma(2))
    PF0 = OPT.get('pf0', 8)
    assert PF0 % 2 == 0
    p('s_lshr_b32 %s, s2, 3' % T(0))
    p('s_and_b32 %s, s2, 3' % T(1))
    p('s_lshl_b32 %s, %s, 1' % (T(2), T(0)))
    p('s_and_b32 %s, %s, 1' % (T(3), sr(S_W)))
    p('s_add_u32 %s, %s, %s' % (T(2), T(2), T(3)))
    p('s_mul_i32 %s, %s, 9216' % (T(2), T(2)))
    p('s_mul_i32 %s, %s, 2304' % (T(3), T(1)))
    p('s_add_u32 %s, %s, %s' % (T(2), T(2), T(3)))
    p('s_sub_u32 %s, %d, %s' % (T(9), 576 * 9216, T(2)))
    p('s_lshl_b32 %s, %s, 2' % (T(4), T(0)))
    p('s_add_u32 %s, %s, %s' % (T(4), T(4), sr(S_W)))
    p('s_lshl_b32 %s, %s, 13' % (T(4), T(4)))
    p('s_lshl_b32 %s, %s, 11' % (T(3), T(1)))
    p('s_add_u32 %s, %s, %s' % (T(4), T(4), T(3)))
    p('s_sub_u32 %s, %d, %s' % (T(10), 576 * 8192, T(4)))
    p('s_lshl_b32 %s, %s, 19' % (T(5), sr(S_HD)))
    make_srd(p, S_K, 36, T(5), 0x80000)
    make_srd(p, S_V, 38, T(5), 0x80000)
    p('s_lshl_b32 %s, %s, 8' % (T(5), sr(S_HD)))
    p('s_sub_u32 %s, %d, %s' % (T(3), 576 * 8192, T(5)))
    make_srd(p, S_WQ, 40, T(5), T(3))
    make_srd(p, S_A1, 48, T(2), T(9))
    make_srd(p, S_A2, 40, T(4), T(10))
    p('v_lshlrev_b32 %s, 7, %s' % (t1, L))
    p('v_mov_b32 %s, 0x7f000000' % t2)
    p('v_cmp_gt_u32 vcc, 18, %s' % L)
    p('v_cndmask_b32 %s, %s, %s, vcc' % (vr(V_SW), t2, t1))
    p('v_cmp_gt_u32 vcc, 16, %s' % L)
    p('v_cndmask_b32 %s, %s, %s, vcc' % (vr(V_SW + 1), t2, t1))
    tw = lambda c: [Ins('s_mov_b32 %s, %d' % (T(7), c * 64 * 9216)),
                    Ins('buffer_load_dword %s, %s, %s, %s offen sc0' % (vr(V_SW + 2), vr(V_SW), sr(S_A1, 4), T(7)))]
    tq = lambda k: [Ins('s_mov_b32 %s, %d' % (T(7), k * 128 * 8192)),
                    Ins('buffer_load_dword %s, %s, %s, %s offen sc0' % (vr(V_SW + 3), vr(V_SW + 1), sr(S_A2, 4), T(7)))]
    touch = {c: [] for c in range(7)}
    for k, c in enumerate(range(PF0 // 2, 9)):
        touch[min(k, 6)] += tw(c)
    for k in range(5):
        touch[k + OPT.get('tq0', 0)] += tq(4 - k)
    for c in touch:
        for x in touch[c]:
            x.wr = [r for r in x.wr if r[0] != 'v']
    if not OPT.get('pf1', 1):
        touch = {}
    if OPT.get('fold', 0):
        p('s_mov_b32 %s, 0x%x' % (sr(S_C), f2u(-1.0 / 128 ** 0.5)))
        p('s_mov_b32 %s, 0x%x' % (sr(S_NL), f2u(-1.0 / LOG2E)))
    else:
        p('s_mov_b32 %s, 0x%x' % (sr(S_C), f2u(LOG2E / 128 ** 0.5)))
        p('s_mov_b32 %s, 0x%x' % (sr(S_NL), f2u(-LOG2E)))
    p('s_lshl_b32 %s, %s, 12' % (sr(S_MK), sr(S_W)))
    p('s_mov_b32 %s, 0' % sr(S_OFFK))
    p('s_mov_b32 %s, 0' % sr(S_OFFV))
    p('v_lshrrev_b32 %s, 2, %s' % (t0, L))
    p('v_mul_u32_u24 %s, 288, %s' % (t1, t0))
    p('v_and_b32 %s, 3, %s' % (t2, L))
    p('v_lshl_add_u32 %s, %s, 3, %s' % (vr(V_A1), t2, t1))
    for k in range(1, 4):
        p('v_add_u32 %s, %d, %s' % (vr(V_A1 + k), k * 36864, vr(V_A1)))
    p('v_and_b32 %s, 15, %s' % (t0, L))
    p('v_lshrrev_b32 %s, 4, %s' % (t1, L))
    p('v_lshlrev_b32 %s, 1, %s' % (t3, t1))
    p('v_xor_b32 %s, %s, %s' % (t3, t0, t3))
    p('v_lshlrev_b32 %s, 4, %s' % (t3, t3))
    p('v_lshl_add_u32 %s, %s, 13, %s' % (vr(V_OQ), t1, t3))
    p('v_xor_b32 %s, 128, %s' % (vr(V_OQ + 1), vr(V_OQ)))
    p('s_lshl_b32 %s, %s, 17' % (sr(S_OFFQ), sr(S_W)))
    addall(kv_dma_setup())
    p('s_mul_i32 %s, %s, %d' % (T(3), T(6), 4 * HS()))
    p('s_add_u32 %s, %s, 0x%x' % (T(3), T(3), WS_H))
    make_srd(p, S_H, P_WS, T(3), 4 * HS())
    p('s_mul_i32 %s, %s, %d' % (T(3), sr(S_QT), 16 * OS()))
    p('s_lshl_b32 %s, %s, 12' % (T(4), sr(S_HD)))
    p('s_add_u32 %s, %s, %s' % (T(3), T(3), T(4)))
    p('s_add_u32 %s, %s, 0x%x' % (T(3), T(3), WS_O))
    p('s_sub_u32 %s, %d, %s' % (T(5), 16 * OS(), T(4)))
    make_srd(p, S_O, P_WS, T(3), T(5))
    p('s_mov_b32 %s, 0x%x' % (T(3), WS_F))
    make_srd(p, S_FL, P_WS, T(3), 5 * 32768)
    p('s_lshr_b32 %s, %s, 3' % (sr(S_SP), sr(S_HD)))
    p('s_and_b32 %s, %s, 7' % (T(0), sr(S_HD)))
    p('s_lshl_b32 %s, %s, 3' % (sr(S_TILE), sr(S_QT)))
    p('s_add_u32 %s, %s, %s' % (sr(S_TILE), sr(S_TILE), T(0)))
    p('s_lshl_b32 %s, %s, 6' % (T(0), sr(S_SP)))
    p('s_add_u32 %s, %s, %s' % (T(0), T(0), sr(S_TILE)))
    p('s_lshl_b32 %s, %s, 7' % (sr(S_FWG), T(0)))
    p('s_lshl_b32 %s, %s, 13' % (sr(S_FGR), sr(S_SP)))
    p('s_mul_i32 %s, %s, 9' % (T(2), sr(S_HD)))
    p('s_add_u32 %s, %s, 1' % (T(2), T(2)))
    p('s_lshr_b32 %s, %s, 1' % (T(2), T(2)))
    p('s_lshl_b32 %s, %s, 10' % (sr(S_HS), T(2)))
    p('s_bitcmp1_b32 %s, 0' % sr(S_HD))
    p('s_mov_b32 %s, 4096' % T(3))
    p('s_cselect_b32 %s, %d, %s' % (T(3), -1024 + 8, T(3)))
    p('s_add_u32 %s, %s, %s' % (sr(S_HS + 4), sr(S_HS), T(3)))
    for qb in range(1, 4):
        p('s_add_u32 %s, %s, %d' % (sr(S_HS + qb), sr(S_HS), qb * HS()))
        p('s_add_u32 %s, %s, %d' % (sr(S_HS + 4 + qb), sr(S_HS + 4), qb * HS()))
    if OPT.get('pro', 1) == 1:
        addall(p1_dma(1))
    if FU == 1:
        make_srd(p, S_XN, P_WS, sr(S_RO), 4 * 18 * 1024)
        p('s_lshl_b32 %s, %s, 12' % (T(2), sr(S_QT)))
        p('s_add_u32 %s, %s, %d' % (T(2), T(2), 4 * 32768))
        p('s_lshl_b32 %s, %s, 7' % (T(3), sr(S_HD)))
        p('s_add_u32 %s, %s, %s' % (T(3), T(3), T(2)))
        p('v_lshlrev_b32 v125, 20, v0')
        p('v_and_b32 v129, 31, %s' % L)
        p('v_lshlrev_b32 v129, 7, v129')
        rstamp(4)
        p.need(('XN', 0))
        rstamp(5)
        p('s_barrier')
        rstamp(6)
        p('buffer_store_dword v128, v125, %s, %s offen sc1' % (sr(S_FL, 4), T(3)), lds=('flag', ('XN', 0)))
        if OPT.get('lnpoll', 0) == 1:
            SPIN_BLOCKS.append("""L_lnp:
 s_mov_b32 s3, 0
L_lnp_l:
 buffer_load_dword v130, v129, %s, %s offen sc1
 s_add_u32 s3, s3, 1
 s_cmp_gt_u32 s3, 0x40000
 s_cbranch_scc1 L_lnp_ok
 s_waitcnt vmcnt(0)
 v_cmp_ne_u32 vcc, %s, v130
 s_cbranch_vccz L_lnp_ok
 s_sleep 2
 s_branch L_lnp_l""" % (sr(S_FL, 4), T(2), sr(S_EP)))
            p('s_cmp_eq_u32 %s, 0' % sr(S_W))
            p('s_cbranch_scc1 L_lnp')
            p.label('L_lnp_ok')
            p('s_barrier')
        else:
            p.add(poll_issue(S_T0 + 2, 130, 129))
            poll_check(p, 'ln', S_T0 + 2, 'v_cmp_ne_u32 vcc, %s' % sr(S_EP), 130, 129, sleep=2)
        addall(xn_loads(0, 0))
    stamp(1)

    if OPT.get('donly'):
        p('s_waitcnt vmcnt(0)')
        addall(d_scalar_setup1() + d_scalar_setup2() + k_read_setup() + v_read_setup())
        p('v_lshlrev_b32 %s, 20, v0' % vr(V_FST))
        p('v_mov_b32 %s, 1' % vr(V_ONE))
        p('v_lshlrev_b32 %s, 7, %s' % (vr(V_FOFF), L))
        p('v_mov_b32 %s, 0' % vr(V_RV))
        p('s_mov_b32 %s, 0' % sr(S_OFFW))
        for k in range(2, 7):
            stamp(k)
        p.raw(' s_branch L_donly')
    g = Gaps(p)
    seq = GemmSeq(p, g)
    pool = deque(('a', 72 + 4 * k) for k in range(14))

    def alloc():
        while not pool:
            x = (g.st or g.lo).popleft()
            g.over += max(1, cost(x))
            g.emit(x)
        for t in pool:
            if t[0] == 'v':
                pool.remove(t)
                return t
        return pool.popleft()

    XB = {}
    ring = lambda buf: [('a', A_B + buf * 32 + 4 * k) for k in range(8)]

    def xn_l(c, tiles):
        out = []
        for qb in range(4):
            out.append(Ins('s_mov_b32 %s, %d' % (T(qb), qb * 18 * 1024 + c * 2048)))
            for ks in range(2):
                out.append(Ins('buffer_load_dwordx4 %s, %s, %s, %s offen offset:%d' % (
                    rg(tiles[qb * 2 + ks]), vr(V_L16), sr(S_XN, 4), T(qb), ks * 1024)))
        return out

    def aq_setup():
        o = []
        a = lambda s: o.append(Ins(s))
        a('v_lshrrev_b32 %s, 2, %s' % (t0, L))
        a('v_and_b32 %s, 7, %s' % (t1, t0))
        a('v_lshlrev_b32 %s, 1, %s' % (t1, t1))
        a('v_and_b32 %s, 3, %s' % (t2, L))
        a('v_xor_b32 %s, %s, %s' % (t1, t1, t2))
        a('v_lshlrev_b32 %s, 4, %s' % (t1, t1))
        a('v_lshl_add_u32 %s, %s, 8, %s' % (vr(V_AQ), t0, t1))
        for s in range(1, 4):
            a('v_xor_b32 %s, %d, %s' % (vr(V_AQ + s), 64 * s, vr(V_AQ)))
        for rgn in range(1, 3):
            for s in range(4):
                a('v_add_u32 %s, 0x%x, %s' % (vr(V_AQ + rgn * 4 + s), rgn * 65536, vr(V_AQ + s)))
        return o

    def mk_mf(acc, chunks, xb, first):
        def mf(dst):
            out = []
            for qb in range(4):
                for ci, c in enumerate(chunks):
                    for ks in range(2):
                        def th(qb=qb, ci=ci, c=c, ks=ks):
                            a = rg(acc(qb))
                            cin = '0' if (first and ci == 0 and ks == 0) else a
                            return '%s %s, %s, %s, %s' % (MF, a, ar(dst + ci * 8 + ks * 4, 4), rg(xb(c)[qb * 2 + ks]), cin)
                        out.append(th)
            return out
        return mf

    for c in range(9):
        XB[c] = ring(c % 3)
    for c in range(7):
        for blk in range(18):
            hook = None
            if blk == 0:
                def hook(c=c):
                    if OPT.get('cst'):
                        p('s_memrealtime %s' % sr(S_DG, 2))
                        p('s_waitcnt lgkmcnt(0)')
                        p('v_writelane_b32 v1, %s, %d' % (sr(S_DG), 32 + c))
                    g.drop = {0: (), 1: ('dma',), 2: ('vld',), 3: ('dma', 'vld'), 4: ('dma', 'vld', 'dsr')}[OPT.get('drop', 0)]
                    g.vm_gap = OPT.get('vg1', 5) if c > 1 else OPT.get('vg0', 5)
                    if c == 0 and OPT.get('pro', 1):
                        g.hi.extend(xn_l(1, XB[1]) + p1_dma(2))
                    g.hi.extend(touch.get(c, []))
                    xl = xn_l(c + 2, XB[c + 2])
                    if c == 0:
                        g.hi.extend(xl + p1_dma(3))
                    else:
                        g.hi.extendleft(reversed(xl)) if OPT.get('xfirst', 0) else g.hi.extend(xl)
                    if c == 4:
                        g.hi.extend(wq_dma(8))
                    if c == 4 and OPT.get('ct1', 1):
                        g.hi.extend(code_touch('L_c1', V_SW + 4, V_SW + 5, S_A3))
                    if c == 6:
                        assert not any(y.kind == 'dma' and y.lds[1][0] == 'W' for y in g.hi)
                        g.lo.extend(aq_setup())
            seq.add(lambda dst, c=c, blk=blk: p1_reads(c, blk, dst), 8,
                    mk_mf(lambda qb, blk=blk: FT[(blk, qb)], [c], lambda c: XB[c], c == 0), hook=hook,
                    bar=[(PS(c), ('W', c))] if blk == 0 else None,
                    bwait=[rg(t) for t in XB[c]] if blk == 0 else None)
            if blk == 0 and 1 <= c <= 5:
                seq.groups[-1]['post'] = lambda c=c: g.hi.extend(p1_dma(c + 3))
            if blk == 0 and c == 6:
                seq.groups[-1]['post'] = lambda: g.hi.extend(wq_dma(7))
    CT = OPT.get('cap_t', 3)
    for blk in range(18):
        hook = None
        if blk >= 2 and blk % 2 == 0:
            def hook(b=blk // 2 - 1):
                for qb in range(4):
                    g.lo.extend(swiglu_unit(b, qb, g.n + 3, pool))
        if blk == 0:
            def hook():
                g.drop = ()
                p.label('L_c1')
                stamp(2)
        seq.add(lambda dst, blk=blk: p1_reads(7, blk, dst) + p1_reads(8, blk, dst + 8), 16,
                mk_mf(lambda qb, blk=blk: FT[(blk, qb)], [7, 8], lambda c: XB[c], False), hook=hook,
                bar=[(PS(7), ('W', 7)), (PS(8), ('W', 8))] if blk == 0 else None,
                bwait=[rg(t) for t in XB[7] + XB[8]] if blk == 0 else None, cap=CT)
        if blk == 0:
            seq.groups[-1]['post'] = lambda: g.hi.extend(wq_dma(6) + wq_dma(5))
    QT = {}

    def qacc(bq, qb):
        if (bq, qb) not in QT:
            QT[(bq, qb)] = alloc()
        return QT[(bq, qb)]
    XQ = {8: XB[8], 7: XB[7], 6: XB[6], 4: ring(1), 3: ring(2), 2: ring(0), 0: ring(1)}
    C2 = OPT.get('cap_p2', 2)
    qn = lambda c: (LS(WQ_SLOT[c]), ('Q', c))
    for bq in range(8):
        hook = None
        if bq == 0:
            def hook():
                stamp(3)
                g.vm_gap = OPT.get('vg2', 4)
                g.st_w = OPT.get('stw2', 1)
                for qb in range(4):
                    g.lo.extend(swiglu_unit(8, qb, g.n + 3, pool))
        if bq == 3:
            def hook():
                XQ[5] = XQ[1] = [alloc() for _ in range(8)]
                g.hi.extend(xn_l(5, XQ[5]))
        seq.add(lambda dst, bq=bq: p2_reads(8, bq, dst) + p2_reads(7, bq, dst + 8), 16,
                mk_mf(lambda qb, bq=bq: qacc(bq, qb), [8, 7], lambda c: XQ[c], True), hook=hook,
                bar=[qn(8), qn(7)] if bq == 0 else None, cap=C2)
        if bq == 0:
            seq.groups[-1]['post'] = lambda: g.hi.extend(
                wq_dma(4) + wq_dma(3) + wq_dma(2))
    for c in (6, 5, 4, 3, 2):
        for bq in range(8):
            hook = None
            if bq == 0:
                def hook(c=c):
                    for cc in {6: (4, 3), 5: (2,), 4: (1,), 3: (0,), 2: ()}[c]:
                        g.hi.extend(xn_l(cc, XQ[cc]))
            seq.add(lambda dst, c=c, bq=bq: p2_reads(c, bq, dst), 8,
                    mk_mf(lambda qb, bq=bq: qacc(bq, qb), [c], lambda c: XQ[c], False), hook=hook,
                    bar=[qn(c)] if bq == 0 else None, cap=C2,
                    bwait=(lambda c=c: [rg(t) for t in XQ[c]]) if bq == 0 else None)
            if bq == 0:
                seq.groups[-1]['lazyb'] = c
                post = {6: lambda: g.hi.extend(wq_dma(1) + wq_dma(0)),
                        3: lambda: g.hi.extend(dma_unit('K', 0, False)),
                        2: lambda: g.hi.extend(dma_unit('K', 1, False) + dma_unit('V', 0, False))}.get(c)
                seq.groups[-1]['post'] = post
    for bq in range(8):
        hook = None
        if bq == 0:
            def hook():
                print('swiglu backlog at last P2 group:', len(g.hi), len(g.lo), 'over', g.over, file=sys.stderr)
                g.hi.extend(dma_unit('K', 2, False) + dma_unit('V', 1, False))
        if bq >= 2 and bq % 2 == 0:
            def hook(s=bq // 2 - 1):
                for qb in range(4):
                    g.lo.extend(qcvt_unit(qb, s, QT, g.n + 3))
        seq.add(lambda dst, bq=bq: p2_reads(1, bq, dst) + p2_reads(0, bq, dst + 8), 16,
                mk_mf(lambda qb, bq=bq: qacc(bq, qb), [1, 0], lambda c: XQ[c], False), hook=hook,
                bar=[qn(1), qn(0)] if bq == 0 else None, cap=C2,
                bwait=(lambda: [rg(t) for t in XQ[1] + XQ[0]]) if bq == 0 else None)
    seq.run()
    stamp(4)
    print('G backlog at end:', len(g.hi), len(g.lo), 'over', g.over, 'waste', g.waste, file=sys.stderr)
    for qb in range(4):
        g.lo.extend(qcvt_unit(qb, 3, QT, 0))
    addall(k_read_setup())
    p.need(('lgkm', 'all'), (LS(0), ('K', 0)))
    p('s_barrier')
    for kb in range(4):
        for s in range(4):
            p.add(k_load(0, kb, s, False))
    g.flush()
    g.vm_gap = 4
    g.hi.extend(dma_unit('K', 3, False))
    g.hi.extend(d_scalar_setup1())
    g.lo.extend(Ins('v_accvgpr_write_b32 %s, 0' % ar(A_O + i)) for i in range(128))
    for kb in range(4):
        for qb in range(4):
            for s in range(4):
                d = vr(Sreg(kb, qb), 4)
                g.gap('%s %s, %s, %s, %s' % (MF, d, ar(A_KF + kb * 16 + s * 4, 4), vr(V_Q + (qb * 4 + s) * 4, 4), '0' if s == 0 else d))
    g.flush()
    addall(v_read_setup())
    for qb in range(4):
        p('v_mov_b32 %s, 0' % vr(V_L + qb))
    p('v_lshlrev_b32 %s, 20, v0' % vr(V_FST))
    if not FU:
        p('s_mov_b32 %s, 1' % sr(S_EP))
    p('v_mov_b32 %s, %s' % (vr(V_ONE), sr(S_EP)))
    p('v_lshlrev_b32 %s, 7, %s' % (vr(V_FOFF), L))
    addall(code_touch('L_att_tail', 32, 33, S_DWO)[:-1])
    p('v_mov_b32 %s, %s' % (vr(V_RN), L))
    addall(repack_pat())
    ms = [vr(V_E + qb) for qb in range(4)]
    for step in range(8):
        for qb in range(4):
            regs = [vr(Sreg(kb, qb) + r) for kb in range(4) for r in range(4)]
            if step == 0:
                p('v_max3_f32 %s, %s, %s, %s' % (ms[qb], regs[0], regs[1], regs[2]))
            elif step < 7:
                p('v_max3_f32 %s, %s, %s, %s' % (ms[qb], ms[qb], regs[2 * step + 1], regs[2 * step + 2]))
            else:
                p('v_max_f32 %s, %s, %s' % (ms[qb], ms[qb], regs[15]))
    addall(xlane4('v_max_f32', ms, [vr(V_T + k) for k in range(4)]))
    for qb in range(4):
        for r in range(4):
            p('v_sub_f32 %s, 0, %s' % (vr(V_NM + qb * 4 + r), ms[qb]))
    for kb in range(4):
        for qb in range(4):
            for r in range(4):
                x = vr(Sreg(kb, qb) + r)
                p('v_add_f32 %s, %s, %s' % (x, x, vr(V_NM + qb * 4)))
    stamp(5)
    def sm_plain(uu, i0, i1):
        prev = []
        for i in range(i0, i1):
            ex, ad, cv = sm_instrs(uu, i)
            p.add(ex)
            addall(prev)
            prev = [ad] + ([cv] if cv else [])
        p('s_nop 0')
        addall(prev)
    sm_plain(0, 0, 28)
    att_slots(p, 0, 0, 64, False, pv=False, sm_cur=False)
    sm_plain(0, 28, 60)
    p('s_mov_b32 %s, 0' % sr(S_CNT))
    p('s_lshl_b32 %s, %s, 4' % (sr(S_OFFQ), sr(S_W)))
    p('s_add_u32 %s, %s, 2' % (sr(S_OFFQ), sr(S_OFFQ)))
    p.wait_regs(ar(A_KF, 16))
    lp = p.loop_begin(7, 'att')
    p('.p2align 6')
    p.label('L_att')
    rtag = ('R', 0)
    g.vm_gap = 8

    def rp_loads():
        g.hi.append(Ins('buffer_load_dwordx4 %s, %s, %s, 0 offen nt' % (vr(V_RQ[0], 4), vr(V_RV), sr(S_A1, 4))))
        g.hi.append(Ins('buffer_load_dwordx4 %s, %s, %s, 0 offen nt' % (vr(V_RQ[1], 4), vr(V_RV), sr(S_A2, 4))))

    def rp_stores():
        g.hi.append(Ins('buffer_store_dwordx4 %s, %s, %s, %s offen sc1' % (vr(V_RQ[0], 4), vr(V_L16), sr(S_A3, 4), sr(S_RO)), lds=rtag))
        g.hi.append(Ins('buffer_store_dwordx4 %s, %s, %s, %s offen sc1' % (vr(V_RQ[1], 4), vr(V_L16), sr(S_A4, 4), sr(S_RO)), lds=rtag))
        g.hi.append(Ins('s_add_u32 %s, %s, 1024' % (sr(S_RO), sr(S_RO))))
    att_slots(p, 0, 64, 96, True)
    rp_loads()
    att_slots(p, 0, 96, 128, True, g=g, cap=4)
    assert not g.hi
    att_slots(p, 1, 0, 64, True)
    p('s_add_u32 %s, %s, 1' % (sr(S_CNT), sr(S_CNT)))
    p('s_cmp_eq_u32 %s, 7' % sr(S_CNT))
    p('s_cbranch_scc1 L_att_tail')
    p.loop_mark_exit(lp)
    g.lo.extend(repack_pat())
    att_slots(p, 1, 64, 128, True, g=g, cap=3)
    assert not g.lo
    att_slots(p, 2, 0, 30, True, extra_need=[rtag, ('H', 0)])
    if OPT.get('plain_h'):
        SPIN_BLOCKS.append('L_wbh:\n buffer_wbl2 sc1\n s_branch L_wbh_done')
        p('s_cmp_eq_u32 %s, %s' % (sr(S_CNT), sr(S_OFFQ)))
        p('s_cbranch_scc1 L_wbh')
        p.label('L_wbh_done')
    p('s_cmp_eq_u32 %s, 4' % sr(S_CNT))
    p('s_cselect_b32 %s, %s, 0x100000' % (T(0), sr(S_FWG)))
    fl = flag_store(S_T0, 'H')
    g.hi.append(fl)
    g.vm_gap = 3
    rp_stores()
    att_slots(p, 2, 30, 66, True, g=g, cap=4)
    assert not g.hi
    att_slots(p, 2, 66, 96, True)
    g.vm_gap = 8
    rp_loads()
    att_slots(p, 2, 96, 128, True, g=g, cap=4)
    assert not g.hi
    g.lo.extend(repack_pat())
    att_slots(p, 3, 0, 96, True, g=g, cap=3)
    assert not g.lo
    if OPT.get('ct2', 1):
        g.hi.append(Ins('global_load_dword v33, v32, %s' % sr(S_DWO, 2)))
    att_slots(p, 3, 96, 128, True, g=g, cap=4)
    assert not g.hi
    att_slots(p, 4, 0, 30, True)
    g.vm_gap = 3
    rp_stores()
    att_slots(p, 4, 30, 64, True, g=g, cap=4)
    assert not g.hi
    p('s_branch L_att')
    p.loop_end()
    p.label('L_att_tail')
    stamp(6)
    g.vm_gap = 4
    att_slots(p, 25, 64, 96, False)
    g.hi.append(poll_issue(S_FGR))
    tt = []
    a = lambda x: tt.append(Ins(x))
    a('s_lshr_b32 %s, s2, 3' % T(0))
    a('s_lshl_b32 %s, %s, 2' % (T(1), sr(S_SP)))
    a('s_add_u32 %s, %s, %s' % (T(1), T(1), sr(S_W)))
    a('s_mul_i32 %s, %s, %d' % (T(1), T(1), WBLK))
    a('s_mul_i32 %s, %s, 1152' % (T(2), T(0)))
    a('s_add_u32 %s, %s, %s' % (T(1), T(1), T(2)))
    a('s_add_u32 %s, %s, 0x%x' % (T(1), T(1), WS_W))
    tt += srd_ins(S_A1, P_WS, T(1), 18 * 36864 + 1152)
    a('s_and_b32 %s, s2, 4' % T(1))
    a('s_lshl_b32 %s, %s, 3' % (T(1), T(1)))
    a('s_add_u32 %s, %s, %s' % (T(1), T(1), T(0)))
    a('s_lshl_b32 %s, %s, 1' % (T(1), T(1)))
    a('s_and_b32 %s, %s, 1' % (T(2), sr(S_W)))
    a('s_add_u32 %s, %s, %s' % (T(1), T(1), T(2)))
    a('s_mul_i32 %s, %s, %d' % (T(1), T(1), HS()))
    a('s_mul_i32 %s, %s, %d' % (T(2), sr(S_SP), 36 * 1024))
    a('s_add_u32 %s, %s, %s' % (T(1), T(1), T(2)))
    a('s_add_u32 %s, %s, 0x%x' % (T(1), T(1), WS_H))
    tt += srd_ins(S_A2, P_WS, T(1), 36 * 1024)
    a('s_lshr_b32 %s, %s, 1' % (T(1), sr(S_W)))
    a('s_lshl_b32 %s, %s, 12' % (sr(S_RO), T(1)))
    a('s_lshl_b32 %s, %s, 2' % (T(2), sr(S_TILE)))
    a('s_add_u32 %s, %s, %s' % (T(2), T(2), sr(S_SP)))
    a('s_lshl_b32 %s, %s, 2' % (T(2), T(2)))
    a('s_add_u32 %s, %s, %s' % (T(2), T(2), sr(S_W)))
    a('s_mul_i32 %s, %s, 9216' % (T(2), T(2)))
    a('s_add_u32 %s, %s, 0x%x' % (T(2), T(2), WS_P))
    tt += srd_ins(S_A3, P_WS, T(2), 9216)
    g.hi.extend(tt)
    g.lo.extend(Ins('v_mov_b32 v%d, -1' % r) for r in range(36, 40))
    g.lo.extend([Ins('v_mul_u32_u24 %s, 7282, %s' % (vr(V_RV), L)),
                 Ins('v_lshrrev_b32 %s, 16, %s' % (vr(V_RV), vr(V_RV))),
                 Ins('v_mul_u32_u24 %s, %d, %s' % (vr(V_RV), 36864 - 1152, vr(V_RV))),
                 Ins('v_lshl_add_u32 %s, %s, 7, %s' % (vr(V_RV), L, vr(V_RV))),
                 Ins('v_mov_b32 v251, 0x7f000000'),
                 Ins('v_cmp_gt_u32 vcc, 18, %s' % L),
                 Ins('v_cndmask_b32 %s, v251, %s, vcc' % (vr(V_RV), vr(V_RV))),
                 Ins('v_cmp_gt_u32 vcc, 32, %s' % L),
                 Ins('v_cndmask_b32 v250, v251, %s, vcc' % vr(V_FOFF))])
    att_slots(p, 25, 96, 128, False, g=g, cap=4)
    att_slots(p, 26, 0, 64, False, g=g, cap=3, dmav=False)
    g.flush()
    addall(dma_unit('V', 28, False))
    poll_check(p, 'h', S_FGR)

    def nowr(l):
        for x in l:
            x.wr = [r for r in x.wr if r[0] != 'v']
        return l

    def touch_w(c, srd=S_A1):
        return nowr([Ins('s_mov_b32 %s, %d' % (T(6), c * 36864)),
                     Ins('buffer_load_dword v248, %s, %s, %s offen sc0' % (vr(V_RV), sr(srd, 4), T(6)))])

    def touch_h(k):
        return nowr([Ins('s_add_u32 %s, %s, %d' % (T(6), sr(S_RO), k * 8192)),
                     Ins('buffer_load_dword v249, v250, %s, %s offen sc0' % (sr(S_A2, 4), T(6)))])
    TD = OPT.get('touch_d', 0)
    tl = []
    if TD:
        for k in range(5):
            tl += [touch_w(2 * k), touch_h(k)]
    else:
        tl = [[] for _ in range(10)]
    if OPT.get('tagged', 0):
        for k in range(9):
            tl[k] = tl[k] + [Ins('s_mov_b32 %s, %d' % (T(5), k * 1024)),
                             Ins('buffer_store_dwordx4 v[36:39], %s, %s, %s offen sc1' % (vr(V_L16), sr(S_A3, 4), T(5)), lds=('PT1', 0))]
    for u in (26, 27, 28, 29):
        for (ta, tb, on) in ((0, 32, 0), (32, 48, 1), (48, 64, 1), (64, 96, 0), (96, 112, 1), (112, 128, 1)):
            if (u == 26 and ta < 64) or (u == 29 and ta >= 64):
                continue
            if on and tl:
                g.hi.extend(tl.pop(0))
            att_slots(p, u, ta, tb, False, g=g if on else None, cap=4, dmak=(u + DK < 32))
            assert not g.hi
    assert not tl
    for k in range(4):
        p('s_mov_b32 %s, %s' % (sr(S_DWO + k), sr(S_A1 + k)))
    g.hi.extend(d_scalar_setup2())
    att_slots(p, 29, 64, 128, False, dmak=False, g=g, cap=4)
    g.flush()
    p.label('L_donly')
    att_slots(p, 30, 0, 2, False, dmak=False, dmav=False, g=g)
    g.vm_gap = 5
    g.hi.extend(d_dma(0) + d_dma(1))
    g.hi.append(sadd(S_FWG, 32768))
    g.hi.append(Ins('s_andn2_b32 %s, %s, 0x3ff' % (sr(S_FGR), sr(S_FWG))))
    g.hi.append(Ins('s_add_u32 %s, %s, 8192' % (sr(S_OFFW), sr(S_FGR))))
    g.hi.append(Ins('s_and_b32 %s, %s, 1' % (sr(S_ADJB), sr(S_SP))))
    g.hi.append(Ins('s_mul_i32 %s, %s, %d' % (sr(S_ADJW), sr(S_ADJB), -4 * 36864)))
    g.hi.append(Ins('s_mul_i32 %s, %s, %d' % (sr(S_ADJB), sr(S_ADJB), -4 * 4096)))
    g.lo.append(Ins('v_and_b32 %s, 0x380, %s' % (vr(V_FOFF), vr(V_FOFF))))
    att_slots(p, 30, 2, 97, False, dmak=False, dmav=False, g=g, cap=4, barrier=False)
    g.vm_gap = 4
    g.hi.extend(d_bloads(0))
    att_slots(p, 30, 97, 128, False, dmak=False, dmav=False, g=g, cap=4, barrier=False)
    att_slots(p, 31, 0, 2, False, qk=False, sm_next=False, dmak=False, dmav=False, g=g, vearly=True)
    g.vm_gap = 3
    g.hi.extend(d_bloads(1) + d_dma(2))
    o = []
    o.append(Ins('v_lshrrev_b32 %s, 2, %s' % (t0, L)))
    o.append(Ins('v_mul_u32_u24 %s, 288, %s' % (t1, t0)))
    o.append(Ins('v_and_b32 %s, 3, %s' % (t2, L)))
    o.append(Ins('v_lshl_add_u32 %s, %s, 3, %s' % (vr(V_DRA), t2, t1)))
    for k in range(1, 4):
        o.append(Ins('v_add_u32 %s, %d, %s' % (vr(V_DRA + k), DBASE[k], vr(V_DRA))))
    g.lo.extend(o)
    g.lo.append(Ins('v_mov_b32 %s, 0x%x' % (vr(V_RN), f2u(2.0 ** OPT.get('thr', 30)))))
    att_slots(p, 31, 2, 64, False, qk=False, sm_next=False, dmak=False, dmav=False, g=g, cap=4, barrier=False, vearly=True)
    g.flush()
    sm_plain(31, 60, 64)
    p('v_max3_f32 %s, %s, %s, %s' % (t0, vr(V_L), vr(V_L + 1), vr(V_L + 2)))
    p('v_add_f32 %s, %s, %s' % (t0, t0, vr(V_L + 3)))
    p('v_cmp_nlt_f32 vcc, %s, %s' % (t0, vr(V_RN)))
    p('s_cbranch_vccnz L_slow')
    p.label('L_slow_ret')
    SPIN_BLOCKS.append(gen_slow_softmax())
    ls = [vr(V_L + qb) for qb in range(4)]
    g.lo.extend(xlane4('v_add_f32', ls, [vr(V_T + k) for k in range(4)]))
    g.lo.extend(Ins('v_rcp_f32 %s, %s' % (x, x)) for x in ls)
    n0 = g.n
    n = 0
    for t in range(4):
        for qb in range(4):
            g.lo.extend(o_epilogue_unit(qb, t, n, n0 + 16 * (t + 1) + 3))
            n += 1
    p.wait_regs(ar(A_VF, 8))
    kw = dict(qk=False, sm_cur=False, sm_next=False, vnext=False, dmak=False, dmav=False, g=g, barrier=False)
    att_slots(p, 32, 0, 33, False, **kw)
    g.hi.extend(d_bloads(2))
    att_slots(p, 32, 33, 46, False, **kw)
    p.need(('lgkm', 'all'), (DS(0), ('D', 0)))
    p('s_barrier')
    g.st.extend(d_reads(0, 0) + d_reads(0, 1))
    att_slots(p, 32, 46, 64, False, **kw)
    while g.st and g.st[0].kind == 'dsr':
        g.emit(g.st.popleft())
    assert not any(x.kind == 'dsr' for x in g.st)
    stamp(7)
    p.wait_regs(ar(A_DB, 32), vr(V_DA, 16))
    stamp(8)
    G2, GG = V_AC2, V_AC2 + 48
    xreg = lambda k, rb: 44 + (k * 2 + rb) * 2
    VO = V_T + 5

    def fin_setup():
        o = []
        o.append(Ins('v_and_b32 %s, 0x180, %s' % (vr(V_FOFF), vr(V_FOFF))))
        o.append(Ins('s_andn2_b32 %s, %s, 0x1ff' % (sr(S_FGR), sr(S_FT))))
        o.append(Ins('v_and_b32 %s, 15, %s' % (t0, L)))
        o.append(Ins('v_mul_u32_u24 %s, 1152, %s' % (t0, t0)))
        o.append(Ins('v_lshrrev_b32 %s, 4, %s' % (t1, L)))
        o.append(Ins('v_lshl_add_u32 %s, %s, 3, %s' % (vr(VO), t1, t0)))
        for k in range(3):
            for rb in range(2):
                o.append(Ins('buffer_load_dwordx2 %s, %s, %s, %s offen offset:%d' % (
                    vr(xreg(k, rb), 2), vr(VO), sr(S_DX, 4), sr(S_HS + 4 + rb + (2 if k == 2 else 0)), 128 * k)))
        return o

    def silu_g():
        o = []
        for k in range(3):
            d = GG + 8 * k
            o += d_sum(G2, k, d, V_T)
            for e in range(0, 8, 2):
                ta, tb = vr(V_T), vr(V_T + 1)
                o.append(Ins('v_mul_f32 %s, %s, %s' % (ta, sr(S_NL), vr(d + e))))
                o.append(Ins('v_mul_f32 %s, %s, %s' % (tb, sr(S_NL), vr(d + e + 1))))
                o.append(Ins('v_exp_f32 %s, %s' % (ta, ta)))
                o.append(Ins('v_exp_f32 %s, %s' % (tb, tb)))
                if OPT.get('fold', 0):
                    o.append(Ins('v_fma_f32 %s, %s, %s, %s' % (ta, ta, sr(S_C), sr(S_C))))
                    o.append(Ins('v_fma_f32 %s, %s, %s, %s' % (tb, tb, sr(S_C), sr(S_C))))
                else:
                    o.append(Ins('v_add_f32 %s, 1.0, %s' % (ta, ta)))
                    o.append(Ins('v_add_f32 %s, 1.0, %s' % (tb, tb)))
                o.append(Ins('v_rcp_f32 %s, %s' % (ta, ta)))
                o.append(Ins('v_rcp_f32 %s, %s' % (tb, tb)))
                o.append(Ins('v_mul_f32 %s, %s, %s' % (vr(d + e), vr(d + e), ta)))
                o.append(Ins('v_mul_f32 %s, %s, %s' % (vr(d + e + 1), vr(d + e + 1), tb)))
        return o

    g.vm_gap = 1
    SO = OPT.get('o_done', 2)
    LAST = NPOS - 1
    for c in range(NPOS):
        acc0 = V_AC2 if c < 9 else V_AC1
        first = c in (0, 9)
        if c == 9:
            stamp(14)
        if c in (SK0, SK1):
            g.flush()
        if c == SK0:
            p('s_bitcmp1_b32 %s, 0' % sr(S_SP))
            p('s_cbranch_scc1 L_dskip')
            p.loop_begin(1, 'opt')
        if c == SK1:
            p.loop_end()
            p.label('L_dskip')
        if OPT.get('dst'):
            p('s_memrealtime %s' % sr(S_DG, 2))
            p('s_waitcnt lgkmcnt(0)')
            p('v_writelane_b32 v1, %s, %d' % (sr(S_DG), 32 + c))
        extra_need = []
        post = []
        cap = 2
        if c <= SO:
            cap = OPT.get('cap_o', 4)
        if c == SO + 1:
            assert not g.lo and not g.st, len(g.lo)
            extra_need = [('O', 0)]
            post = [flag_store(S_FWG, 'O')]
            g.st_max = 1
            fs = fin_setup()
            g.lo.extend(fs[2:-6])
        if c == 6:
            g.hi.extend(fs[-6:])
        if TD and c in (2, 3, 4, 5, 6):
            g.hi.extend(touch_w(10 + 2 * (c - 2), S_DWO))
        if c == 6:
            g.st.append(poll_issue(S_FGR))
        if c == 7:
            poll_check(p, 'o', S_FGR)
            g.hi.extend(d_bloads(9, c))
            cap = 3
        if c == SK1 - 2:
            g.st.append(poll_issue(S_OFFW))
        if c == SK1 - 1:
            poll_check(p, 'o2', S_OFFW)
        if c <= 8:
            g.hi.extend((d_bloads(c + 3, c) if c != 6 else []) + d_dma(c + 3, c))
        elif 10 <= c <= LAST - 2:
            g.hi.extend(d_dma(c + 2, c) + d_bloads(c + 2, c))
        if c in (9, 10):
            for nb in (range(6) if c == 9 else range(6, 9)):
                g.lo.extend(d_pstore(1, nb))
            cap = 3
        if c == 11:
            assert not g.lo and not g.st
            extra_need = [('PT1', 0)]
            post = [flag_store(S_FT, 'PT1')]
            g.lo.extend(fs[:2])
            cap = 3
        if c == LAST - 2:
            g.st.append(poll_issue(S_FGR))
        if c == LAST - 1:
            poll_check(p, 'p2', S_FGR)
            g.hi.extend([sadd(S_FGR, 32768), sadd(S_FT, 32768)])
            g.hi.extend(d_ploads(1, G2))
        nv = sum(1 for x in g.hi if cost(x) == 2)
        if OPT.get('verbose_d'):
            print('D pos', c, 'queued vmem', nv, file=sys.stderr)
        g.vm_gap = OPT.get('vgd', 4) if c > SO else OPT.get('vgd2', 3)
        g.st_w = OPT.get('stw', 1)
        if c in (10, 11, SK1 - 1):
            g.vm_gap = 3
            cap = 3
        if c == LAST:
            g.vm_gap = 1
        for nb in range(9):
            n2 = nb + 2
            Lr = d_reads(c, n2) if n2 < 9 else (d_reads(c + 1, n2 - 9, c) if c < LAST else [])
            if c == LAST and nb >= 2:
                g.hi.extend(d_pstore(0, nb - 2))
            for t in range(8):
                rb, ks = t // 4, t % 4
                a = vr(acc0 + (nb * 2 + rb) * 4, 4)
                m = '%s %s, %s, %s, %s' % (MF, a, vr(V_DA + (nb % 3) * 16 + ks * 4, 4),
                                           ar(A_DB + (c % 4) * 32 + (rb * 4 + ks) * 4, 4),
                                           '0' if (first and ks == 0) else a)
                sc, ld = [], []
                if nb == 7:
                    if Lr and t >= 4:
                        ld = [Lr[2 * (t - 4)], Lr[2 * (t - 4) + 1]]
                    if t == 2 and c < LAST:
                        assert not any(y.kind == 'dma' and y.lds[0] == DS(c + 1) for y in g.hi), c
                        sc = [need_ins(('lgkm', 'all'), (DS(c + 1), dtag(c + 1, c)), *extra_need)]
                    if t == 3 and c < LAST:
                        sc = [Ins('s_barrier')]
                elif Lr:
                    ld = [Lr[t], Lr[t + 1]] if t % 2 == 0 else []
                if t == 7:
                    w = [vr(V_DA + ((nb + 1) % 3) * 16, 16)]
                    if nb == 8:
                        w.append(ar(A_DB + ((c + 1) % 4) * 32, 32))
                    sc = [wait_ins(*w)]
                g.gap(m, sc, ld, cap=cap)
                if nb == 7 and t == 3:
                    g.st.extend(post)
    stamp(9)
    g.hi.extend(d_pstore(0, 7) + d_pstore(0, 8))
    g.flush()
    stamp(10)
    sg = silu_g()
    if OPT.get('tagged', 0):
        addall(sg)
        stamp(11)

        def chk():
            o = [Ins('v_max3_u32 %s, %s, %s, %s' % (t0, vr(G2), vr(G2 + 1), vr(G2 + 2))),
                 Ins('v_max3_u32 %s, %s, %s, %s' % (t1, vr(G2 + 3), vr(G2 + 4), vr(G2 + 5)))]
            for k in range(6, 48, 2):
                tt_ = t0 if (k // 2) % 2 else t1
                o.append(Ins('v_max3_u32 %s, %s, %s, %s' % (tt_, tt_, vr(G2 + k), vr(G2 + k + 1))))
            o.append(Ins('v_max_u32 %s, %s, %s' % (t0, t0, t1)))
            o.append(Ins('v_cmp_eq_u32 vcc, -1, %s' % t0))
            return o
        addall(d_ploads(0, G2) + chk())
        p('s_cbranch_vccnz L_retry')
        p.label('L_retry_ok')
        SPIN_BLOCKS.append('L_retry:\n s_mov_b32 s3, 0\nL_retry_l:\n s_sleep 2\n' +
                           '\n'.join(' ' + x.text for x in d_ploads(0, G2)) +
                           '\n s_waitcnt vmcnt(0)\n s_add_u32 s3, s3, 1\n s_cmp_gt_u32 s3, 0x20000\n s_cbranch_scc1 L_retry_ok\n' +
                           '\n'.join(' ' + x.text for x in chk()) +
                           '\n s_cbranch_vccnz L_retry_l\n s_branch L_retry_ok')
        stamp(12)
    else:
        addall(sg[:len(sg) // 2])
        p.need(('PT0', 0))
        p('s_barrier')
        stamp(11)
        p.add(flag_store(S_FT, 'PT0'))
        p.add(poll_issue(S_FGR))
        addall(sg[len(sg) // 2:])
        poll_check(p, 'p1', S_FGR)
        stamp(12)
        addall(d_ploads(0, G2))
    for k in range(3):
        d = V_AC1 + 16 * k
        addall(d_sum(G2, k, d, V_T))
        for rb in range(2):
            xb = xreg(k, rb)
            for e in range(4):
                tx = vr(d + 8 + e)
                if e % 2 == 0:
                    p('v_lshlrev_b32 %s, 16, %s' % (tx, vr(xb + e // 2)))
                else:
                    p('v_and_b32 %s, 0xffff0000, %s' % (tx, vr(xb + e // 2)))
                p('v_fma_f32 %s, %s, %s, %s' % (tx, vr(d + rb * 4 + e), vr(GG + 8 * k + rb * 4 + e), tx))
            o = d + 12 + 2 * rb
            p('v_cvt_pk_bf16_f32 %s, %s, %s' % (vr(o), vr(d + 8), vr(d + 9)))
            p('v_cvt_pk_bf16_f32 %s, %s, %s' % (vr(o + 1), vr(d + 10), vr(d + 11)))
            p('buffer_store_dwordx2 %s, %s, %s, %s offen offset:%d%s' % (
                vr(o, 2), vr(VO), sr(S_DOUT, 4), sr(S_HS + 4 + rb + (2 if k == 2 else 0)), 128 * k,
                ('', ' sc1', ' nt', ' sc0 sc1')[OPT.get('outpol', 0)]))
    if diag:
        p('s_waitcnt vmcnt(0)')
        stamp(13)
        p('s_mov_b32 %s, 0x%x' % (T(3), WS_T))
        make_srd(p, S_K, P_WS, T(3), 0x100000)
        p('s_lshl_b32 %s, s2, 2' % T(0))
        p('s_add_u32 %s, %s, %s' % (T(0), T(0), sr(S_W)))
        p('s_lshl_b32 %s, %s, 8' % (T(0), T(0)))
        p('v_lshlrev_b32 v4, 2, %s' % L)
        p('buffer_store_dword v1, v4, %s, %s offen' % (sr(S_K, 4), T(0)))
    p.label('L_end')
    p('s_endpgm')
    for t in SPIN_BLOCKS:
        p.raw(t)
    p.raw('L_code_end:')
    for x in p.flat():
        if OPT.get('kv_nt', 1) and x.kind == 'dma' and ('s[4:7]' in x.text or 's[8:11]' in x.text):
            x.text = x.text.replace(' lds', ' nt lds')
        if OPT.get('w_nt') and x.kind == 'dma' and x.lds and not callable(x.lds[1]) and x.lds[1][0] in 'WQ':
            x.text = x.text.replace(' lds', ' nt lds')
        if OPT.get('st01') and x.kind == 'vst' and 'x4' in x.text:
            x.text = x.text.replace(' sc1', ' sc0 sc1')
        if OPT.get('nost') and x.kind == 'vst' and 'x4' in x.text and x.lds and (x.lds[0] == 'O' or (OPT['nost'] > 1 and x.lds[0] == 'PT1')):
            x.text = 's_nop 0'
            x.kind = 'sopp'; x.op = 's_nop'; x.ops = ['0']; x.rd = []; x.lds = None
        if FU and x.kind == 'vld' and sr(S_XN, 4) in x.text and 'sc1' not in x.text:
            x.text += ' sc1'
        if OPT.get('dplain') and x.kind in ('dma', 'vld') and 'x4' in x.text:
            x.text = x.text.replace(' sc1', '')
    p.finalize(verbose=bool(OPT.get('verbose')), check=not (OPT.get('drop') or OPT.get('nost')))
    print('total overflow slots', g.over, p.stats(), file=sys.stderr)
    return p


def build(diag=False):
    hdr = open('cdna_kernels/%s.s.ref' % NAME).read().split('; Override launch')[0]
    out = hdr
    if OPT.get('fuse', 2):
        km = gen_main(diag)
        kn = NAME + '_kernel'
        if OPT.get('aslist', 1):
            out += '; @launch kernel=%s grid=(256,1,1) block=(256,1,1) lds=163840\n' % kn
        else:
            out += '; @launch grid=(256,1,1) block=(256,1,1) lds=163840\n'
        out += '.amdgcn_target "amdgcn-amd-amdhsa--gfx950"\n.text\n'
        out += kernel_text(kn, km, 0, 0)
        out += '.section .rodata,"a"\n.p2align 6\n' + descriptor(kn, 512, 256)
        return out
    ln, km = gen_ln(), gen_main(diag)
    if not OPT.get('donly'):
        out += '; @launch kernel=ln_kernel grid=(256,1,1) block=(256,1,1) lds=0\n'
    out += '; @launch kernel=main_kernel grid=(256,1,1) block=(256,1,1) lds=163840\n'
    out += '.amdgcn_target "amdgcn-amd-amdhsa--gfx950"\n.text\n'
    out += kernel_text('ln_kernel', ln, 0, 0) + kernel_text('main_kernel', km, 0, 0)
    out += '.section .rodata,"a"\n'
    for n, nv, acc in (('ln_kernel', 64, 64), ('main_kernel', 512, 256)):
        out += '.p2align 6\n' + descriptor(n, nv, acc)
    return out


if __name__ == '__main__':
    diag = 'diag' in sys.argv[2:]
    for a in sys.argv[2:]:
        if '=' in a:
            k, v = a.split('=')
            OPT[k] = int(v)
    open(sys.argv[1], 'w').write(build(diag))
```

```python
import sys, struct
from collections import deque
from dsl import *

OPT = {}
NAME = 'recurrent_scan__mha_block_cached__glu_gated_swiglu__prompt'
WS_XN = 0
WS_F = 3 << 20
WS_O = 4 << 20
WS_H = 24 << 20
WS_P = 48 << 20
PG = 64 * 16 * 9216
WS_W = 96 << 20
WBLK = 2432 * 288
WS_T = 128 << 20
MF = 'v_mfma_f32_16x16x32_bf16'
LOG2E = 1.4426950408889634


def HS():
    return 144 * 1024 + OPT.get('pad', 1280)


def OS():
    return 128 * 1024 + OPT.get('pad', 1280)


def f2u(x):
    return struct.unpack('<I', struct.pack('<f', x))[0]


def srd_ins(srd, ptr, off, size):
    o = []
    if off is None:
        o.append(Ins('s_mov_b32 %s, %s' % (sr(srd), sr(ptr))))
        o.append(Ins('s_mov_b32 %s, %s' % (sr(srd + 1), sr(ptr + 1))))
    else:
        o.append(Ins('s_add_u32 %s, %s, %s' % (sr(srd), sr(ptr), off)))
        o.append(Ins('s_addc_u32 %s, %s, 0' % (sr(srd + 1), sr(ptr + 1))))
    o.append(Ins('s_mov_b32 %s, %s' % (sr(srd + 2), size if isinstance(size, str) else '0x%x' % size)))
    o.append(Ins('s_mov_b32 %s, 0x00020000' % sr(srd + 3)))
    return o


def make_srd(p, srd, ptr, off, size):
    for x in srd_ins(srd, ptr, off, size):
        p.add(x)


def cost(ins):
    if ins.kind == 'valu':
        return 2 if ins.trans else 1
    if ins.kind in ('dsr', 'dsw'):
        return 1
    if ins.kind in ('dma', 'vld', 'vst'):
        return 2
    return 0


class Gaps:
    def __init__(self, p):
        self.p = p
        self.hi = deque()
        self.lo = deque()
        self.n = 0
        self.over = 0
        self.waste = 0
        self.drop = ()
        self.vm_next = 0
        self.st = deque()
        self.st_max = 2
        self.st_w = 3
        self.vm_gap = 1

    def emit(self, x):
        if self.drop and x.kind in self.drop:
            return
        self.p.add(x)
        if x.on_emit:
            x.on_emit()

    def gap(self, mfma, sc=(), ld=(), va=(), cap=2):
        if mfma is not None:
            self.p.add(mfma if isinstance(mfma, Ins) else Ins(mfma))
        sc, ld, va = list(sc), list(ld), list(va)
        used = sum(cost(x) for x in ld + va)
        for q in (self.st, self.hi, self.lo):
            pulled = False
            pva = False
            while q:
                x = q[0]
                if x.ready > self.n:
                    break
                c = cost(x)
                if q is self.lo and x.kind == 'vst' and len(self.st) < self.st_max:
                    x.ready = self.n + 1
                    self.st.append(q.popleft())
                    continue
                if c == 0:
                    if sc or pulled:
                        break
                    sc.append(q.popleft())
                    if 'm0' in x.wr:
                        break
                    continue
                if used + c > cap:
                    break
                if x.kind != 'valu':
                    if pva:
                        break
                    if c == 2:
                        if self.n < self.vm_next:
                            break
                        w = (self.st_w if 'x4' in x.text else 1) if x.kind == 'vst' else (4 if 'buffer_load_dword ' in x.text and 'sc' not in x.text else 1)
                        self.vm_next = self.n + self.vm_gap * w
                    ld.append(q.popleft())
                else:
                    va.append(q.popleft())
                    pva = True
                used += c
                pulled = True
        for x in sc + ([Ins(mfma)] if isinstance(mfma, str) else []):
            self.check(x)
        self.over += max(0, used - 2)
        if used < 2 and (self.hi or self.lo):
            self.waste += 2 - used
        for x in sc + ld + va:
            self.emit(x)
        self.n += 1

    def check(self, x):
        regs = set(x.rd) if (x.text.startswith('; need') or x.kind == 'mfma') else set()
        tags = [t for t in (x.need or []) if not callable(t[1])]
        for q in (self.st, self.hi, self.lo):
            for y in q:
                if y.kind in ('vld', 'dsr') and set(y.wr) & regs and not getattr(y, 'later', False):
                    raise AssertionError('consumer %s before queued load %s' % (x.text, y.text))
                if y.lds is not None and y.lds in tags:
                    raise AssertionError('need %s before queued %s' % (tags, y.text))

    def flush(self, q=None):
        for qq in ((self.st, self.hi, self.lo) if q is None else (q,)):
            while qq:
                x = qq.popleft()
                self.over += max(1, cost(x))
                self.emit(x)


def rg(t, n=4):
    return (vr if t[0] == 'v' else ar)(t[1], n)


def prefetch_w(p, ptr, srd, soff, rows, stride, lines, rounds, vt, vd):
    t = lambda k: vr(vt + k)
    make_srd(p, srd, ptr, soff, (rows - 1) * stride + lines * 128)
    return t


def gen_ln():
    p = Prog()
    p('s_cmp_ge_u32 s2, 256')
    p('s_cbranch_scc1 L_ln_end')
    p('s_load_dwordx2 s[12:13], s[0:1], 0')
    p('s_load_dwordx2 s[14:15], s[0:1], 88')
    p('s_load_dwordx4 s[32:35], s[0:1], 48')
    p('v_lshrrev_b32 v1, 5, v0')
    p('s_lshl_b32 s3, s2, 3')
    p('v_add_u32 v1, s3, v1')
    p('v_and_b32 v2, 31, v0')
    p('v_lshrrev_b32 v3, 2, v2')
    p('v_and_b32 v4, 3, v2')
    p('v_mul_u32_u24 v5, 1152, v1')
    p('v_lshl_add_u32 v5, v3, 6, v5')
    p('v_lshl_add_u32 v5, v4, 3, v5')
    p('v_cmp_gt_u32 vcc, 8, v2')
    p('s_mov_b64 s[16:17], vcc')
    for r in range(16, 20):
        p('v_mov_b32 v%d, 0' % r)
    p('s_waitcnt lgkmcnt(0)')
    make_srd(p, 4, 12, None, 2048 * 1152)
    for it in range(2):
        p('buffer_load_dwordx2 v[%d:%d], v5, s[4:7], 0 offen offset:%d' % (8 + 4 * it, 9 + 4 * it, it * 512))
        p('buffer_load_dwordx2 v[%d:%d], v5, s[4:7], 0 offen offset:%d' % (10 + 4 * it, 11 + 4 * it, it * 512 + 32))
    p('s_mov_b64 exec, s[16:17]')
    p('buffer_load_dwordx2 v[16:17], v5, s[4:7], 0 offen offset:1024')
    p('buffer_load_dwordx2 v[18:19], v5, s[4:7], 0 offen offset:1056')
    p('s_mov_b64 exec, -1')
    R0 = OPT.get('pf0', 8)
    if R0:
        p('s_lshr_b32 s20, s2, 3')
        p('s_mul_i32 s20, s20, %d' % (R0 * 9216))
        p('s_and_b32 s21, s2, 3')
        p('s_mul_i32 s21, s21, 2304')
        p('s_add_u32 s20, s20, s21')
        make_srd(p, 36, 32, 's20', (R0 - 1) * 9216 + 2304)
        make_srd(p, 40, 34, 's20', (R0 - 1) * 9216 + 2304)
        p('v_mul_u32_u24 v56, 3641, v0')
        p('v_lshrrev_b32 v56, 16, v56')
        p('v_mul_u32_u24 v57, 18, v56')
        p('v_sub_u32 v57, v0, v57')
        p('v_mul_u32_u24 v56, 9216, v56')
        p('v_lshl_add_u32 v56, v57, 7, v56')
        if OPT.get('pfh', 1):
            p('s_bitcmp1_b32 s2, 2')
            p('s_cselect_b32 s36, s40, s36')
            p('s_cselect_b32 s37, s41, s37')
            p('buffer_load_dword v58, v56, s[36:39], 0 offen')
        else:
            p('buffer_load_dword v58, v56, s[36:39], 0 offen')
            p('buffer_load_dword v59, v56, s[40:43], 0 offen')
    if OPT.get('pfc', 1):
        p('s_getpc_b64 s[44:45]')
        p.label('L_pc')
        p('s_add_u32 s44, s44, main_kernel-L_pc')
        p('s_addc_u32 s45, s45, 0')
        p('s_lshr_b32 s46, s2, 3')
        p('s_lshl_b32 s46, s46, 12')
        p('v_and_b32 v60, 31, v0')
        p('v_lshlrev_b32 v60, 7, v60')
        p('v_add_u32 v60, s46, v60')
        p('v_min_u32 v60, L_code_end-main_kernel-4, v60')
        p('global_load_dword v61, v60, s[44:45]')
    make_srd(p, 8, 14, None, 2048 * 1152)
    p('v_lshrrev_b32 v6, 4, v1')
    p('v_mul_u32_u24 v6, 18, v6')
    p('v_add_u32 v6, v6, v3')
    p('v_lshlrev_b32 v6, 10, v6')
    p('v_lshl_add_u32 v6, v4, 8, v6')
    p('v_and_b32 v7, 15, v1')
    p('v_lshl_add_u32 v6, v7, 4, v6')
    p('s_mov_b32 s20, 0x%x' % WS_F)
    make_srd(p, 24, 14, 's20', 4 * 32768)
    p('s_lshl_b32 s21, s2, 7')
    p('v_lshlrev_b32 v50, 15, v0')
    p('v_mov_b32 v52, 0')
    p('buffer_store_dword v52, v50, s[24:27], s21 offen')
    for d in range(12):
        p('v_lshlrev_b32 v%d, 16, v%d' % (20 + 2 * d, 8 + d))
        p('v_and_b32 v%d, 0xffff0000, v%d' % (21 + 2 * d, 8 + d))

    def reduce32(x, t):
        for k in (8, 4, 2, 1):
            p('v_add_f32_dpp %s, %s, %s row_ror:%d row_mask:0xf bank_mask:0xf' % (x, x, x, k))
        p('v_mov_b32 %s, %s' % (t, x))
        p('v_permlane16_swap_b32 %s, %s' % (x, t))
        p('v_add_f32 %s, %s, %s' % (x, x, t))
    p('v_add_f32 v44, v20, v21')
    p('v_add_f32 v45, v22, v23')
    for e in range(4, 24, 2):
        p('v_add_f32 v44, v44, v%d' % (20 + e))
        p('v_add_f32 v45, v45, v%d' % (21 + e))
    p('v_add_f32 v44, v44, v45')
    reduce32('v44', 'v45')
    p('v_mul_f32 v44, 0x%x, v44' % f2u(1.0 / 576))
    p('v_mov_b32 v46, 0')
    p('v_mov_b32 v47, 0')
    for e in range(16):
        p('v_sub_f32 v48, v%d, v44' % (20 + e))
        p('v_fmac_f32 v%d, v48, v48' % (46 + e % 2))
    p('s_mov_b64 exec, s[16:17]')
    for e in range(16, 24):
        p('v_sub_f32 v48, v%d, v44' % (20 + e))
        p('v_fmac_f32 v%d, v48, v48' % (46 + e % 2))
    p('s_mov_b64 exec, -1')
    p('v_add_f32 v46, v46, v47')
    reduce32('v46', 'v45')
    p('v_mul_f32 v46, 0x%x, v46' % f2u(1.0 / 576))

    def rnd(x):
        p('v_cvt_pk_bf16_f32 %s, %s, %s' % (x, x, x))
        p('v_lshlrev_b32 %s, 16, %s' % (x, x))
    rnd('v44')
    rnd('v46')
    p('v_add_f32 v46, 0x%x, v46' % f2u(1e-5))
    rnd('v46')
    p('v_sqrt_f32 v46, v46')
    rnd('v46')
    p('v_rcp_f32 v46, v46')
    if OPT.get('fold', 0):
        p('v_mul_f32 v46, 0x%x, v46' % f2u(-LOG2E))
    for d in range(12):
        a, b = 20 + 2 * d, 21 + 2 * d
        p('v_sub_f32 v%d, v%d, v44' % (a, a))
        p('v_sub_f32 v%d, v%d, v44' % (b, b))
        p('v_cvt_pk_bf16_f32 v%d, v%d, v%d' % (8 + d, a, b))
        p('v_lshlrev_b32 v%d, 16, v%d' % (a, 8 + d))
        p('v_and_b32 v%d, 0xffff0000, v%d' % (b, 8 + d))
        p('v_mul_f32 v%d, v%d, v46' % (a, a))
        p('v_mul_f32 v%d, v%d, v46' % (b, b))
        p('v_cvt_pk_bf16_f32 v%d, v%d, v%d' % (8 + d, a, b))
    p('s_mov_b32 s18, 8192')
    p('s_mov_b32 s19, 16384')
    p('buffer_store_dwordx4 v[8:11], v6, s[8:11], 0 offen')
    p('buffer_store_dwordx4 v[12:15], v6, s[8:11], s18 offen')
    p('s_mov_b64 exec, s[16:17]')
    p('buffer_store_dwordx4 v[16:19], v6, s[8:11], s19 offen')
    p.label('L_ln_end')
    p('s_endpgm')
    p.finalize()
    return p


S_K, S_V, S_XN, S_WS, S_WQ, S_H, S_O, S_FL, S_A1, S_A2, S_A3, S_A4 = 4, 8, 12, 16, 20, 24, 28, 32, 36, 40, 44, 48
S_DW2, S_DWO, S_DH, S_DO, S_DP, S_DR, S_DX, S_DOUT = 12, 16, 20, 24, 36, 40, 44, 48
(S_W, S_MK, S_EP, S_OFFK, S_OFFV, S_CNT, S_HD, S_QT, S_M1, S_OFFW, S_OFFQ, S_C, S_NL, S_FWG, S_FGR, S_FT,
 S_RO, S_SP, S_TILE) = range(52, 71)
S_HS = 71
S_T0 = 79
S_DG = 90
P_X, P_WO, P_W2, P_OUT, P_WS = 92, 94, 96, 98, 100
T = lambda k: sr(S_T0 + k)

V_L16, V_LANE = 2, 3
V_A1 = 4
V_OW = 8
V_AQ = 8
V_OQ = 20
V_OK, V_OV = 22, 26
V_SW = 28
V_T = 34
V_KA, V_VA, V_L, V_E = 4, 8, 16, 28
V_NM, V_S, V_P, V_Q = 40, 56, 120, 184
V_FST, V_ONE, V_FOFF, V_FV = 252, 253, 254, 255
A_O, A_KF, A_VF = 0, 128, 192
A_A, A_B = 128, 160
X0 = 72
DK, DV = 4, 2
L = vr(V_LANE)
t0, t1, t2, t3 = (vr(V_T + i) for i in range(4))


def LS(n):
    return (n * 16384, 16384)


def VP(u):
    return (u + 3) % 4


DBASE = [0, 126976, 36864, 73728]


def DS(c):
    return (DBASE[c % 4], 36864)


def PS(c):
    return ((c % 4) * 36864, 36864)


def Sreg(kb, qb):
    return V_S + (kb * 4 + qb) * 4


def Preg(u, qb, ks):
    return V_P + (u & 1) * 32 + qb * 8 + ks * 4


def ktag(u, inloop):
    return (lambda it: ('K', u + 4 * it)) if inloop else ('K', u)


def vtag(u, inloop):
    return (lambda it: ('V', u + 4 * it)) if inloop else ('V', u)


def k_load(u, kb, s, inloop):
    return Ins('ds_read_b128 %s, %s offset:%d' % (ar(A_KF + kb * 16 + s * 4, 4), vr(V_KA + s), (u % 4) * 16384 + kb * 4096),
               lds=(LS(u % 4), ktag(u, inloop)))


def v_load(u, db, ks, j, inloop):
    return Ins('ds_read_b64_tr_b16 %s, %s offset:%d' % (
        ar(A_VF + db * 8 + ks * 4 + 2 * j, 2), vr(V_VA + db), VP(u) * 16384 + (32 * ks + 16 * j) * 256),
        lds=(LS(4 + VP(u)), vtag(u, inloop)))


def dma_unit(kind, u, inloop):
    out = []
    if kind == 'K':
        out.append(Ins('s_add_u32 m0, %s, %d' % (sr(S_MK), (u % 4) * 16384)))
        for cc in range(4):
            out.append(Ins('buffer_load_dwordx4 %s, %s, %s offen offset:%d lds' % (
                vr(V_OK + cc), sr(S_K, 4), sr(S_OFFK), cc * 1024), lds=(LS(u % 4), ktag(u, inloop))))
        out.append(Ins('s_add_u32 %s, %s, 16384' % (sr(S_OFFK), sr(S_OFFK))))
    else:
        out.append(Ins('s_add_u32 m0, %s, %d' % (sr(S_MK), 65536 + VP(u) * 16384)))
        for cc in range(4):
            out.append(Ins('buffer_load_dwordx4 %s, %s, %s offen offset:%d lds' % (
                vr(V_OV + cc % 2), sr(S_V, 4), sr(S_OFFV), cc * 1024), lds=(LS(4 + VP(u)), vtag(u, inloop))))
        out.append(Ins('s_add_u32 %s, %s, 16384' % (sr(S_OFFV), sr(S_OFFV))))
    return out


def sm_instrs(uu, i):
    n, r = i // 4, i % 4
    kb, qb = n // 4, n % 4
    e = vr(V_E + i % 4)
    ex = Ins('v_exp_f32 %s, %s' % (e, vr(Sreg(kb, qb) + r)))
    ad = Ins('v_add_f32 %s, %s, %s' % (vr(V_L + qb), vr(V_L + qb), e))
    cv = None
    if r % 2 == 1:
        cv = Ins('v_cvt_pk_bf16_f32 %s, %s, %s' % (
            vr(Preg(uu, qb, kb // 2) + (kb % 2) * 2 + r // 2), vr(V_E + (i - 1) % 4), e))
    return ex, ad, cv


def att_slots(p, u, ta, tb, inloop, pv=True, qk=True, sm_cur=True, sm_next=True, vnext=True, dmak=True, dmav=True,
              barrier=True, g=None, cap=2, vearly=False, extra_need=()):
    T0 = -40
    R = range(-128, 256)
    sc = {t: [] for t in R}
    ld = {t: [] for t in R}
    va = {t: [] for t in R}
    for t in range(0, 128, 2):
        if t >= X0:
            uu, i, on = u + 1, (t - X0) // 2, sm_next
        else:
            uu, i, on = u, (t + 128 - X0) // 2, sm_cur
        if on:
            ex, ad, cv = sm_instrs(uu, i)
            va[t].append(ex)
            va[t + 1].append(ad)
            if cv is not None:
                va[t + 1].append(cv)
    pos = [t for t in range(T0, T0 + 128) if t % 8 in (1, 4, 5)]
    n = 0
    m = 0
    for db in range(8):
        for ks in range(2):
            for j in range(2):
                t = pos[n]
                n += 1
                if t >= 0:
                    if pv:
                        ld[t].append(v_load(u - 1, db, ks, j, inloop))
                elif vnext:
                    if vearly:
                        ld[46 + m].append(v_load(u, db, ks, j, inloop))
                        m += 1
                    else:
                        ld[t + 128].append(v_load(u, db, ks, j, inloop))
        t = 8 * db - 1
        sc[t if t >= 0 else t + 128].append(wait_ins(ar(A_VF + db * 8, 8)))
    for kb in range(4):
        for s in range(4):
            t = pos[n]
            n += 1
            if qk:
                ld[t].append(k_load(u + 1, kb, s, inloop))
        if qk:
            sc[64 + 16 * kb - 1].append(wait_ins(ar(A_KF + kb * 16, 16)))
    for on, kind, uu, tt in ((dmav, 'V', u + DV, 2), (dmak, 'K', u + DK, 66)):
        if on:
            lst = dma_unit(kind, uu, inloop)
            sc[tt].append(lst[0])
            ds = OPT.get('dstep', 8)
            for k in range(4):
                ld[tt + ds * k + (4 if k == 0 else 0)].append(lst[1 + k])
            sc[tt + ds * 3 + 1].append(lst[5])
    if barrier:
        nd = [(LS(4 + VP(u)), vtag(u, inloop))] + list(extra_need)
        if qk:
            nd.append((LS((u + 1) % 4), ktag(u + 1, inloop)))
        sc[0].append(need_ins(*nd))
        sc[1].append(Ins('s_barrier'))
    g = g or Gaps(p)
    for t in range(ta, tb):
        mf = None
        if t < 64:
            if pv:
                db, qb, ks = t // 8, (t % 8) // 2, t % 2
                o = ar(A_O + (db * 4 + qb) * 4, 4)
                mf = '%s %s, %s, %s, %s' % (MF, o, ar(A_VF + db * 8 + ks * 4, 4), vr(Preg(u - 1, qb, ks), 4), o)
        elif qk:
            tt = t - 64
            kb, qb, s = tt // 16, (tt % 16) // 4, tt % 4
            d = vr(Sreg(kb, qb), 4)
            c = vr(V_NM + qb * 4, 4) if s == 0 else d
            mf = '%s %s, %s, %s, %s' % (MF, d, ar(A_KF + kb * 16 + s * 4, 4), vr(V_Q + (qb * 4 + s) * 4, 4), c)
        assert len(sc[t]) <= 1 and len(ld[t]) <= 1
        if mf is None and not (sc[t] or ld[t] or va[t]):
            continue
        g.gap(mf, sc[t], ld[t], va[t], cap=cap)


def kv_dma_setup():
    o = []
    a = lambda s: o.append(Ins(s))
    a('v_and_b32 %s, 15, %s' % (t0, L))
    a('v_lshrrev_b32 %s, 4, %s' % (t1, L))
    a('v_lshlrev_b32 %s, 8, %s' % (t2, t1))
    a('v_add_u32 %s, %s, %s' % (t2, sr(S_MK), t2))
    a('v_xor_b32 %s, %s, %s' % (t3, t0, t1))
    a('v_lshl_add_u32 %s, %s, 4, %s' % (vr(V_OK), t3, t2))
    for c in range(1, 4):
        a('v_xor_b32 %s, %d, %s' % (vr(V_OK + c), c * 64, vr(V_OK)))
    a('v_lshlrev_b32 %s, 1, %s' % (t3, t1))
    a('v_xor_b32 %s, %s, %s' % (t3, t0, t3))
    a('v_lshl_add_u32 %s, %s, 4, %s' % (vr(V_OV), t3, t2))
    a('v_xor_b32 %s, 128, %s' % (vr(V_OV + 1), vr(V_OV)))
    return o


def k_read_setup():
    o = []
    a = lambda s: o.append(Ins(s))
    a('v_and_b32 %s, 15, %s' % (t0, L))
    a('v_lshrrev_b32 %s, 4, %s' % (t1, L))
    a('v_xor_b32 %s, %s, %s' % (t2, t0, t1))
    a('v_lshlrev_b32 %s, 4, %s' % (t2, t2))
    a('v_lshl_add_u32 %s, %s, 8, %s' % (vr(V_KA), t0, t2))
    for s in range(1, 4):
        a('v_xor_b32 %s, %d, %s' % (vr(V_KA + s), s * 64, vr(V_KA)))
    return o


def v_read_setup():
    o = []
    a = lambda s: o.append(Ins(s))
    a('v_lshrrev_b32 %s, 2, %s' % (t2, L))
    a('v_and_b32 %s, 7, %s' % (t3, t2))
    a('v_lshlrev_b32 %s, 5, %s' % (t3, t3))
    a('v_lshl_add_u32 %s, %s, 8, %s' % (t3, t2, t3))
    a('v_and_b32 %s, 3, %s' % (t2, L))
    a('v_lshl_add_u32 %s, %s, 3, %s' % (t3, t2, t3))
    a('v_add_u32 %s, 0x10000, %s' % (vr(V_VA), t3))
    for d in range(1, 8):
        a('v_xor_b32 %s, %d, %s' % (vr(V_VA + d), d * 32, vr(V_VA)))
    return o


def xlane4(op, xs, ts):
    o = []
    for perm in ('v_permlane32_swap_b32', 'v_permlane16_swap_b32'):
        for x, t in zip(xs, ts):
            o.append(Ins('v_mov_b32 %s, %s' % (t, x)))
        for x, t in zip(xs, ts):
            o.append(Ins('%s %s, %s' % (perm, x, t)))
        for x, t in zip(xs, ts):
            o.append(Ins('%s %s, %s, %s' % (op, x, x, t)))
    return o


def div18(o, n, row, sl):
    o.append(Ins('v_mul_u32_u24 %s, 3641, %s' % (row, n)))
    o.append(Ins('v_lshrrev_b32 %s, 16, %s' % (row, row)))
    o.append(Ins('v_mul_u32_u24 %s, 18, %s' % (sl, row)))
    o.append(Ins('v_sub_u32 %s, %s, %s' % (sl, n, sl)))


def ffn_tiles():
    m, nv, na = {}, 0, 0
    for b in range(9):
        for mat in range(2):
            for qb in range(4):
                if mat == 1 and na < 18:
                    m[(2 * b + mat, qb)] = ('a', na * 4)
                    na += 1
                else:
                    m[(2 * b + mat, qb)] = ('v', 40 + nv * 4)
                    nv += 1
    assert nv == 54 and na == 18
    return m


FT = ffn_tiles()
WQ_SLOT = {8: 9, 7: 3, 6: 4, 5: 5, 4: 6, 3: 7, 2: 8, 1: 9, 0: 3}


def p1_dma(c):
    out = [Ins('s_add_u32 %s, %s, %d' % (T(8), sr(S_OFFW), c * 64 * 9216))]
    for i in range(9):
        if i % 4 == 0:
            out.append(Ins('s_add_u32 m0, %s, %d' % (sr(S_M1), PS(c)[0] + (i // 4) * 4096)))
        out.append(Ins('buffer_load_dwordx4 %s, %s, %s offen offset:%d lds' % (
            vr(V_OW + i), sr(S_WS, 4), T(8), (i % 4) * 1024), lds=(PS(c), ('W', c))))
    return out


def xn_loads(c, buf):
    base = A_B + buf * 32
    out = []
    for qb in range(4):
        out.append(Ins('s_mov_b32 %s, %d' % (T(qb), qb * 18 * 1024 + c * 2048)))
        for ks in range(2):
            out.append(Ins('buffer_load_dwordx4 %s, %s, %s, %s offen offset:%d' % (
                ar(base + (qb * 2 + ks) * 4, 4), vr(V_L16), sr(S_XN, 4), T(qb), ks * 1024)))
    return out


def wq_dma(c):
    sl = WQ_SLOT[c]
    out = []
    for cc in range(4):
        out.append(Ins('s_add_u32 %s, %s, %d' % (T(4 + cc % 2), sr(S_OFFQ), (c * 64 + cc * 4) * 8192)))
        out.append(Ins('s_add_u32 m0, %s, %d' % (sr(S_MK), sl * 16384 + cc * 1024)))
        out.append(Ins('buffer_load_dwordx4 %s, %s, %s offen lds' % (
            vr(V_OQ + cc % 2), sr(S_WQ, 4), T(4 + cc % 2)), lds=(LS(sl), ('Q', c))))
    return out


def p1_reads(c, blk, dst):
    mat, b = blk % 2, blk // 2
    return [Ins('ds_read_b64_tr_b16 %s, %s offset:%d' % (
        ar(dst + ks * 4 + 2 * j, 2), vr(V_A1 + c % 4),
        mat * 18432 + (32 * ks + 16 * j) * 288 + 32 * b), lds=(PS(c), ('W', c)))
        for ks in range(2) for j in range(2)]


def p2_reads(c, bq, dst):
    s, jj = bq // 2, bq % 2
    sl = WQ_SLOT[c]
    return [Ins('ds_read_b64_tr_b16 %s, %s offset:%d' % (
        ar(dst + ks * 4 + 2 * j, 2), vr(V_AQ + (sl // 4) * 4 + s),
        (sl % 4) * 16384 + (32 * ks + 16 * j) * 256 + 8 * jj), lds=(LS(sl), ('Q', c)))
        for ks in range(2) for j in range(2)]


def swiglu_unit(b, qb, ready, pool):
    gt, ut = FT[(2 * b, qb)], FT[(2 * b + 1, qb)]
    pk = FT[(2 * (b - b % 2), qb)][1] + (b % 2) * 2
    o = []
    ta, tb = vr(V_SW), vr(V_SW + 1)
    for r in (0, 2):
        pa, pb = vr(V_SW + 2 + r), vr(V_SW + 3 + r)
        g0, g1 = vr(gt[1] + r), vr(gt[1] + r + 1)
        if ut[0] == 'a':
            o.append(Ins('v_accvgpr_read_b32 %s, %s' % (pa, ar(ut[1] + r))))
            o.append(Ins('v_accvgpr_read_b32 %s, %s' % (pb, ar(ut[1] + r + 1))))
            u0, u1 = pa, pb
        else:
            u0, u1 = vr(ut[1] + r), vr(ut[1] + r + 1)
        if OPT.get('fold', 0):
            o.append(Ins('v_exp_f32 %s, %s' % (ta, g0)))
            o.append(Ins('v_exp_f32 %s, %s' % (tb, g1)))
        else:
            o.append(Ins('v_mul_f32 %s, %s, %s' % (ta, sr(S_NL), g0)))
            o.append(Ins('v_mul_f32 %s, %s, %s' % (tb, sr(S_NL), g1)))
            o.append(Ins('v_exp_f32 %s, %s' % (ta, ta)))
            o.append(Ins('v_exp_f32 %s, %s' % (tb, tb)))
        o.append(Ins('v_mul_f32 %s, %s, %s' % (pa, g0, u0)))
        o.append(Ins('v_mul_f32 %s, %s, %s' % (pb, g1, u1)))
        o.append(Ins('v_add_f32 %s, 1.0, %s' % (ta, ta)))
        o.append(Ins('v_add_f32 %s, 1.0, %s' % (tb, tb)))
        o.append(Ins('v_rcp_f32 %s, %s' % (ta, ta)))
        o.append(Ins('v_rcp_f32 %s, %s' % (tb, tb)))
        o.append(Ins('v_mul_f32 %s, %s, %s' % (pa, pa, ta)))
        o.append(Ins('v_mul_f32 %s, %s, %s' % (pb, pb, tb)))
    for r in (0, 2):
        o.append(Ins('v_cvt_pk_bf16_f32 %s, %s, %s' % (vr(pk + r // 2), vr(V_SW + 2 + r), vr(V_SW + 3 + r))))
    rel = [ut] + ([gt] if b % 2 == 1 else [])
    if b % 2 == 1:
        o.append(Ins('buffer_store_dwordx4 %s, %s, %s, %s offen offset:%d sc1' % (
            vr(pk - 2, 4), vr(V_L16), sr(S_H, 4), sr(S_HS + qb), (b // 2) * 1024), lds=('H', 0)))
        if OPT.get('plain_h'):
            o[-1].text = o[-1].text.replace(' sc1', '')
        rel.append(FT[(2 * (b - 1), qb)])
    elif b == 8:
        o.append(Ins('buffer_store_dwordx2 %s, %s, %s, %s offen sc1' % (
            vr(pk, 2), vr(V_L16), sr(S_H, 4), sr(S_HS + 4 + qb)), lds=('H', 0)))
        if OPT.get('plain_h'):
            o[-1].text = o[-1].text.replace(' sc1', '')
    o[0].ready = ready
    o[-1].on_emit = lambda: pool.extend(t for t in rel if not (t[0] == 'v' and t[1] >= V_Q))
    return o


def qcvt_unit(qb, s, QT, ready):
    o = []
    for h in range(2):
        tl = QT[(2 * s + h, qb)]
        tm = [vr(V_SW + e) for e in range(4)]
        for e in range(4):
            if tl[0] == 'a':
                o.append(Ins('v_accvgpr_read_b32 %s, %s' % (tm[e], ar(tl[1] + e))))
        for e in range(4):
            o.append(Ins('v_mul_f32 %s, %s, %s' % (tm[e], sr(S_C), tm[e] if tl[0] == 'a' else vr(tl[1] + e))))
        for e in range(2):
            o.append(Ins('v_cvt_pk_bf16_f32 %s, %s, %s' % (vr(V_Q + (qb * 4 + s) * 4 + 2 * h + e), tm[2 * e], tm[2 * e + 1])))
    o[0].ready = ready
    return o


class GemmSeq:
    def __init__(self, p, g):
        self.p, self.g = p, g
        self.groups = []

    def add(self, reads, nfr, mf, hook=None, bar=None, bwait=None, cap=2):
        self.groups.append(dict(reads=reads, n=nfr, mf=mf, hook=hook, bar=bar, bwait=bwait, cap=cap))

    def run(self):
        G, g, p = self.groups, self.g, self.p
        pos = 0
        for x in G:
            if x['n'] == 16 and pos % 16:
                pos += 8
            x['dst'] = A_A + pos % 32
            pos += x['n']
        for k, x in enumerate(G):
            regs = lambda y: set(range(y['dst'], y['dst'] + y['n']))
            ld = 1
            if k >= 2 and not (regs(x) & regs(G[k - 1])) and not (regs(x) & regs(G[k - 2])) and G[k - 1]['n'] == 8:
                ld = 2
            assert k == 0 or not (regs(x) & regs(G[k - 1]))
            x['at'] = k - ld
        for x in G:
            if x['at'] < 0:
                if x['bar']:
                    p.need(*x['bar'])
                    p('s_barrier')
                for i in x['reads'](x['dst']):
                    p.add(i)
        for k, x in enumerate(G):
            if x['hook']:
                x['hook']()
            todo = [y for y in G if y['at'] == k]
            rd, bar = [], []
            for y in todo:
                rd += y['reads'](y['dst'])
                if y['bar'] is not None:
                    bar += y['bar']
            hasbar = any(y['bar'] is not None for y in todo)
            mfs = x['mf'](x['dst'])
            n = len(mfs)
            st = 3 if hasbar else 0
            step = 2 if (st + 2 * ((len(rd) + 1) // 2) <= n - 1) else 1
            for t in range(n):
                sc, ld = [], []
                if hasbar and t == 1:
                    sc = [need_ins(('lgkm', 'all'), *bar)]
                if hasbar and t == 2:
                    sc = [Ins('s_barrier')]
                if t >= st and (t - st) % step == 0 and rd:
                    ld = rd[:2]
                    rd = rd[2:]
                if t == n - 1 and k + 1 < len(G):
                    y = G[k + 1]
                    bw = y['bwait']() if callable(y['bwait']) else (y['bwait'] or [])
                    w = [ar(y['dst'], y['n'])] + bw
                    sc = [wait_ins(*w)]
                g.gap(mfs[t](), sc, ld, cap=x['cap'])
                if hasbar and t == 2:
                    for y in todo:
                        if y.get('post'):
                            y['post']()
            assert not rd


V_DOWS = [22, 23, 24, 25, 26, 27, 248, 249, 250]
V_DRA = 40
V_DA = 56
V_AC2, V_AC1 = 104, 176
V_PK = 4
A_DB = 128
SPIN_BLOCKS = []


def poll_issue(soff, V_FV=V_FV, V_FOFF=V_FOFF, S_FL=S_FL):
    return Ins('buffer_load_dword %s, %s, %s, %s offen sc1' % (vr(V_FV), vr(V_FOFF), sr(S_FL, 4), sr(soff)))


def poll_check(p, name, soff, cmp='v_cmp_ne_u32 vcc, %s' % sr(S_EP), V_FV=V_FV, V_FOFF=V_FOFF, S_FL=S_FL, sleep=4):
    SPIN_BLOCKS.append("""L_spin_%(n)s:
 s_mov_b32 s3, 0
L_spin_%(n)s_l:
 s_sleep %(sl)d
 buffer_load_dword %(v)s, %(o)s, %(srd)s, %(so)s offen sc1
 s_add_u32 s3, s3, 1
 s_cmp_gt_u32 s3, 0x40000
 s_cbranch_scc1 L_ok_%(n)s
 s_waitcnt vmcnt(0)
 %(cmp)s, %(v)s
 s_cbranch_vccnz L_spin_%(n)s_l
 s_branch L_ok_%(n)s""" % dict(n=name, v=vr(V_FV), o=vr(V_FOFF), srd=sr(S_FL, 4), so=sr(soff), cmp=cmp, sl=sleep))
    p('%s, %s' % (cmp, vr(V_FV)))
    p('s_cbranch_vccnz L_spin_%s' % name)
    p.label('L_ok_%s' % name)


def flag_store(soff, tag):
    return Ins('buffer_store_dword %s, %s, %s, %s offen sc1' % (
        vr(V_ONE), vr(V_FST), sr(S_FL, 4), sr(soff)), lds=('flag', (tag, 0)))


_ct = [0]


def code_touch(label, vo, vd, sp):
    _ct[0] += 1
    n = 'L_ct%d' % _ct[0]
    blk = Ins('; raw')
    blk.rawtext = (' s_getpc_b64 %(p)s\n%(n)s:\n s_add_u32 %(lo)s, %(lo)s, %(l)s-%(n)s\n s_addc_u32 %(hi)s, %(hi)s, 0' %
                   dict(p=sr(sp, 2), n=n, lo=sr(sp), hi=sr(sp + 1), l=label))
    return [blk,
            Ins('s_lshr_b32 s3, s2, 3'),
            Ins('s_lshl_b32 s3, s3, 11'),
            Ins('v_and_b32 %s, 15, %s' % (vr(vo), L)),
            Ins('v_lshlrev_b32 %s, 7, %s' % (vr(vo), vr(vo))),
            Ins('v_add_u32 %s, s3, %s' % (vr(vo), vr(vo))),
            Ins('v_min_u32 %s, L_code_end-%s-4, %s' % (vr(vo), label, vr(vo))),
            Ins('global_load_dword %s, %s, %s' % (vr(vd), vr(vo), sr(sp, 2)))]


def sadd(r, k):
    return Ins('s_add_u32 %s, %s, %d' % (sr(r), sr(r), k))


SK0, SK1, NPOS = 12, 16, 19
S_ADJW, S_ADJB = S_OFFK, S_OFFV


def dtag(c, at):
    if at < SK0 <= c:
        return lambda it: ('D', c + 4 if MODE[0] else c)
    return ('D', c)


def d_dma(c, at=0):
    out = []
    for i in range(9):
        if i % 4 == 0:
            if at >= SK1:
                out.append(Ins('s_add_u32 %s, %s, %d' % (T(8), sr(S_ADJW), c * 36864 + (i // 4) * 4096)))
            else:
                out.append(Ins('s_mov_b32 %s, %d' % (T(8), c * 36864 + (i // 4) * 4096)))
            out.append(Ins('s_add_u32 m0, %s, %d' % (sr(S_M1), DS(c)[0] + (i // 4) * 4096)))
        out.append(Ins('buffer_load_dwordx4 %s, %s, %s offen offset:%d sc1 lds' % (
            vr(V_L16), sr(S_DW2, 4), T(8), (i % 4) * 1024), lds=(DS(c), dtag(c, at))))
    return out


def d_bloads(c, at=0):
    srd, loc, rbs = (S_DH, c, HS()) if c < 9 else (S_DO, c - 9, OS())
    out = []
    for rb in range(2):
        if at >= SK1:
            out.append(Ins('s_add_u32 %s, %s, %d' % (T(9 + rb), sr(S_ADJB), loc * 4096 + rb * rbs)))
        else:
            out.append(Ins('s_mov_b32 %s, %d' % (T(9 + rb), loc * 4096 + rb * rbs)))
        for ks in range(4):
            out.append(Ins('buffer_load_dwordx4 %s, %s, %s, %s offen offset:%d sc1' % (
                ar(A_DB + (c % 4) * 32 + (rb * 4 + ks) * 4, 4), vr(V_L16), sr(srd, 4), T(9 + rb), ks * 1024)))
    return out


def d_reads(c, nb, at=None):
    return [Ins('ds_read_b64_tr_b16 %s, %s offset:%d' % (
        vr(V_DA + (nb % 3) * 16 + ks * 4 + 2 * j, 2), vr(V_DRA + c % 4), (32 * ks + 16 * j) * 288 + 32 * nb),
        lds=(DS(c), dtag(c, c if at is None else at))) for ks in range(4) for j in range(2)]


def d_pstore(gemm, nb):
    acc = (V_AC2 if gemm else V_AC1) + nb * 8
    pk = V_PK + (nb % 3) * 4
    out = []
    if nb % 4 == 0:
        out.append(Ins('s_mov_b32 %s, %d' % (T(nb // 4), gemm * PG + (nb // 4) * 4096)))
    for e in range(4):
        out.append(Ins('v_cvt_pk_bf16_f32 %s, %s, %s' % (vr(pk + e), vr(acc + 2 * e), vr(acc + 2 * e + 1))))
    out.append(Ins('buffer_store_dwordx4 %s, %s, %s, %s offen offset:%d sc1' % (
        vr(pk, 4), vr(V_L16), sr(S_DP, 4), T(nb // 4), (nb % 4) * 1024), lds=('PT%d' % gemm, 0)))
    return out


def d_ploads(gemm, base):
    out = []
    for k in range(3):
        for sp in range(4):
            t = T(4 + (k * 4 + sp) % 2)
            if k < 2:
                out.append(Ins('s_mov_b32 %s, %d' % (t, gemm * PG + sp * 4 * 9216 + k * 4096)))
            else:
                out.append(Ins('s_add_u32 %s, %s, %d' % (t, sr(S_OFFQ), gemm * PG + sp * 4 * 9216 + k * 4096)))
            out.append(Ins('buffer_load_dwordx4 %s, %s, %s, %s offen sc1' % (
                vr(base + (k * 4 + sp) * 4, 4), vr(V_L16), sr(S_DR, 4), t)))
    return out


def d_sum(base, k, dst, tmp):
    out = []
    for e in range(4):
        for sp in range(4):
            src = vr(base + (k * 4 + sp) * 4 + e)
            lo = vr(dst + 2 * e) if sp == 0 else vr(tmp)
            hi = vr(dst + 2 * e + 1) if sp == 0 else vr(tmp + 1)
            out.append(Ins('v_lshlrev_b32 %s, 16, %s' % (lo, src)))
            out.append(Ins('v_and_b32 %s, 0xffff0000, %s' % (hi, src)))
            if sp:
                out.append(Ins('v_add_f32 %s, %s, %s' % (vr(dst + 2 * e), vr(dst + 2 * e), lo)))
                out.append(Ins('v_add_f32 %s, %s, %s' % (vr(dst + 2 * e + 1), vr(dst + 2 * e + 1), hi)))
    return out


def d_scalar_setup1():
    o = []
    a = lambda s: o.append(Ins(s))
    a('s_mul_i32 %s, %s, 288' % (T(1), sr(S_W)))
    a('s_lshl_b32 %s, %s, 6' % (T(0), sr(S_SP)))
    a('s_add_u32 %s, %s, %s' % (T(0), T(0), sr(S_TILE)))
    a('s_mul_i32 %s, %s, %d' % (T(2), T(0), 18 * 1152))
    a('s_add_u32 %s, %s, %s' % (T(2), T(2), T(1)))
    o += srd_ins(S_A1, P_W2, T(2), 17 * 1152 + 288)
    a('s_and_b32 %s, %s, 1' % (T(7), sr(S_SP)))
    a('s_lshl_b32 %s, %s, 3' % (T(6), sr(S_SP)))
    a('s_lshl_b32 %s, %s, 1' % (T(3), T(7)))
    a('s_add_u32 %s, %s, %s' % (T(6), T(6), T(3)))
    a('s_lshl_b32 %s, %s, 3' % (T(7), T(7)))
    a('s_sub_u32 %s, 20, %s' % (T(7), T(7)))
    a('s_mul_i32 %s, %s, %s' % (T(9), T(7), sr(S_TILE)))
    a('s_lshl_b32 %s, %s, 7' % (T(2), T(6)))
    a('s_add_u32 %s, %s, %s' % (T(2), T(2), T(9)))
    a('s_mul_i32 %s, %s, 1152' % (T(2), T(2)))
    a('s_add_u32 %s, %s, %s' % (T(2), T(2), T(1)))
    a('s_mul_i32 %s, %s, 1152' % (T(3), T(7)))
    a('s_sub_u32 %s, %s, 864' % (T(3), T(3)))
    o += srd_ins(S_A2, P_WO, T(2), T(3))
    a('s_lshl_b32 %s, %s, 2' % (T(0), sr(S_SP)))
    a('s_add_u32 %s, %s, %s' % (T(1), T(0), sr(S_W)))
    a('s_mul_i32 %s, %s, %d' % (T(1), T(1), WBLK))
    a('s_add_u32 %s, %s, 0x%x' % (T(1), T(1), WS_W))
    a('s_mul_i32 %s, %s, %d' % (T(2), sr(S_TILE), 18 * 288))
    a('s_add_u32 %s, %s, %s' % (T(2), T(2), T(1)))
    o += srd_ins(S_A3, P_WS, T(2), 18 * 288)
    a('s_mul_i32 %s, %s, 288' % (T(2), T(9)))
    a('s_add_u32 %s, %s, %s' % (T(2), T(2), T(1)))
    a('s_add_u32 %s, %s, %d' % (T(2), T(2), 1152 * 288))
    a('s_mul_i32 %s, %s, 288' % (T(3), T(7)))
    o += srd_ins(S_A4, P_WS, T(2), T(3))
    a('s_mov_b32 %s, 0' % sr(S_RO))
    a('s_and_b32 %s, s2, 3' % sr(S_SP))
    a('s_and_b32 %s, s2, 4' % T(0))
    a('s_lshr_b32 %s, s2, 6' % T(1))
    a('s_add_u32 %s, %s, %s' % (T(0), T(0), T(1)))
    a('s_lshl_b32 %s, %s, 3' % (T(0), T(0)))
    a('s_bfe_u32 %s, s2, 0x30003' % T(1))
    a('s_add_u32 %s, %s, %s' % (sr(S_TILE), T(0), T(1)))
    a('s_lshl_b32 %s, %s, 13' % (sr(S_FGR), sr(S_SP)))
    a('s_and_b32 %s, %s, 1' % (T(3), sr(S_SP)))
    a('s_lshl_b32 %s, %s, 1' % (T(3), T(3)))
    a('s_lshl_b32 %s, %s, 3' % (T(6), sr(S_SP)))
    a('s_add_u32 %s, %s, %s' % (T(6), T(6), T(3)))
    a('s_lshl_b32 %s, %s, 2' % (T(0), sr(S_SP)))
    a('s_and_b32 %s, %s, 3' % (T(1), sr(S_TILE)))
    a('s_add_u32 %s, %s, %s' % (T(1), T(0), T(1)))
    a('s_mul_i32 %s, %s, %d' % (T(1), T(1), WBLK))
    a('s_add_u32 %s, %s, %s' % (T(1), T(1), sr(S_M1)))
    a('s_add_u32 %s, %s, 0x%x' % (T(1), T(1), WS_W))
    o += srd_ins(S_DW2, P_WS, T(1), 18 * 36864 + 9216)
    a('s_lshr_b32 %s, %s, 2' % (T(4), sr(S_TILE)))
    a('s_lshl_b32 %s, %s, 2' % (T(5), T(4)))
    a('s_add_u32 %s, %s, %s' % (T(5), T(5), sr(S_W)))
    a('s_mul_i32 %s, %s, %d' % (T(2), T(5), 2 * HS()))
    a('s_mul_i32 %s, %s, %d' % (T(3), sr(S_SP), 36 * 1024))
    a('s_add_u32 %s, %s, %s' % (T(2), T(2), T(3)))
    a('s_add_u32 %s, %s, 0x%x' % (T(2), T(2), WS_H))
    o += srd_ins(S_DH, P_WS, T(2), HS() + 36 * 1024)
    a('s_mul_i32 %s, %s, %d' % (T(2), T(5), 2 * OS()))
    a('s_lshl_b32 %s, %s, 12' % (T(3), T(6)))
    a('s_add_u32 %s, %s, %s' % (T(2), T(2), T(3)))
    a('s_add_u32 %s, %s, 0x%x' % (T(2), T(2), WS_O))
    o += srd_ins(S_DO, P_WS, T(2), OS() + 40 * 1024)
    return o


def d_scalar_setup2():
    o = []
    a = lambda s: o.append(Ins(s))
    a('s_lshl_b32 %s, %s, 2' % (T(2), sr(S_TILE)))
    a('s_add_u32 %s, %s, %s' % (T(2), T(2), sr(S_SP)))
    a('s_lshl_b32 %s, %s, 7' % (sr(S_FT), T(2)))
    a('s_add_u32 %s, %s, 0x10000' % (sr(S_FT), sr(S_FT)))
    a('s_lshl_b32 %s, %s, 2' % (T(2), T(2)))
    a('s_add_u32 %s, %s, %s' % (T(2), T(2), sr(S_W)))
    a('s_mul_i32 %s, %s, 9216' % (T(2), T(2)))
    a('s_add_u32 %s, %s, 0x%x' % (T(2), T(2), WS_P))
    o += srd_ins(S_DP, P_WS, T(2), PG + 9216)
    a('s_lshl_b32 %s, %s, 4' % (T(2), sr(S_TILE)))
    a('s_add_u32 %s, %s, %s' % (T(2), T(2), sr(S_SP)))
    a('s_mul_i32 %s, %s, 9216' % (T(2), T(2)))
    a('s_lshl_b32 %s, %s, 10' % (T(3), sr(S_W)))
    a('s_add_u32 %s, %s, %s' % (T(2), T(2), T(3)))
    a('s_add_u32 %s, %s, 0x%x' % (T(2), T(2), WS_P))
    o += srd_ins(S_DR, P_WS, T(2), PG + 14 * 9216)
    a('s_and_b32 %s, %s, 3' % (T(1), sr(S_TILE)))
    a('s_mul_i32 %s, %s, 288' % (T(1), T(1)))
    a('s_andn2_b32 %s, %s, 3' % (T(2), sr(S_TILE)))
    a('s_add_u32 %s, %s, %s' % (T(2), T(2), sr(S_SP)))
    a('s_mul_i32 %s, %s, %d' % (T(2), T(2), 32 * 1152))
    a('s_add_u32 %s, %s, %s' % (T(2), T(2), T(1)))
    o += srd_ins(S_DX, P_X, T(2), 31 * 1152 + 288)
    o += srd_ins(S_DOUT, P_OUT, T(2), 31 * 1152 + 288)
    a('s_lshl_b32 %s, %s, 28' % (sr(S_OFFQ), sr(S_W)))
    a('s_mov_b32 %s, 0x%x' % (sr(S_C), f2u(LOG2E * LOG2E)))
    a('s_mul_i32 %s, %s, %d' % (sr(S_HS), sr(S_W), 4 * OS()))
    for qb in range(1, 4):
        a('s_add_u32 %s, %s, 0x%x' % (sr(S_HS + qb), sr(S_HS), qb * OS()))
    a('s_lshl_b32 %s, %s, 5' % (sr(S_HS + 4), sr(S_W)))
    a('s_add_u32 %s, %s, %d' % (sr(S_HS + 5), sr(S_HS + 4), 16 * 1152))
    a('s_lshl_b32 %s, %s, 20' % (sr(S_HS + 6), sr(S_W)))
    a('s_add_u32 %s, %s, %d' % (sr(S_HS + 7), sr(S_HS + 6), 16 * 1152))
    return o


V_RN, V_RV = 20, 21
V_RQ = (248, 36)


def repack_pat():
    return [Ins('v_mul_u32_u24 %s, 3641, %s' % (vr(V_RV), vr(V_RN))),
            Ins('v_lshrrev_b32 %s, 16, %s' % (vr(V_RV), vr(V_RV))),
            Ins('v_mul_u32_u24 %s, 864, %s' % (vr(V_RV), vr(V_RV))),
            Ins('v_lshl_add_u32 %s, %s, 4, %s' % (vr(V_RV), vr(V_RN), vr(V_RV))),
            Ins('v_add_u32 %s, 64, %s' % (vr(V_RN), vr(V_RN)))]


def o_epilogue_unit(qb, t, n, ready):
    base = 184 + (n % 4) * 12
    o = []
    for r in range(8):
        o.append(Ins('v_accvgpr_read_b32 %s, %s' % (vr(base + r), ar(A_O + ((2 * t + r // 4) * 4 + qb) * 4 + r % 4))))
    for r in range(8):
        o.append(Ins('v_mul_f32 %s, %s, %s' % (vr(base + r), vr(base + r), vr(V_L + qb))))
    for r in range(4):
        o.append(Ins('v_cvt_pk_bf16_f32 %s, %s, %s' % (vr(base + 8 + r), vr(base + 2 * r), vr(base + 2 * r + 1))))
    o.append(Ins('buffer_store_dwordx4 %s, %s, %s, %s offen offset:%d%s' % (
        vr(base + 8, 4), vr(V_L16), sr(S_O, 4), sr(S_HS + qb), t * 1024, '' if OPT.get('plain_o', 0) else ' sc1'), lds=('O', 0)))
    o[0].ready = ready
    return o


def ln_parts(B=64):
    v = lambda k, n=1: vr(B + k, n)
    A, Ld, C, St = [], [], [], []
    a = lambda t: A.append(Ins(t))
    a('s_lshl_b32 s3, %s, 5' % sr(S_QT))
    a('s_add_u32 s3, s3, %s' % sr(S_HD))
    a('s_lshl_b32 s3, s3, 3')
    a('v_lshrrev_b32 %s, 5, v0' % v(1))
    a('v_add_u32 %s, s3, %s' % (v(1), v(1)))
    a('v_and_b32 %s, 31, v0' % v(2))
    a('v_lshrrev_b32 %s, 2, %s' % (v(3), v(2)))
    a('v_and_b32 %s, 3, %s' % (v(4), v(2)))
    a('v_mul_u32_u24 %s, 1152, %s' % (v(5), v(1)))
    a('v_lshl_add_u32 %s, %s, 6, %s' % (v(5), v(3), v(5)))
    a('v_lshl_add_u32 %s, %s, 3, %s' % (v(5), v(4), v(5)))
    for r in range(16, 20):
        a('v_mov_b32 %s, 0' % v(r))
    msk = lambda: [Ins('v_cmp_gt_u32 vcc, 8, %s' % v(2)), Ins('s_mov_b64 exec, vcc')]
    Ld += srd_ins(S_O, P_X, None, 2048 * 1152)
    for it in range(3):
        if it == 2:
            Ld += msk()
        Ld.append(Ins('buffer_load_dwordx2 %s, %s, %s, 0 offen offset:%d' % (v(8 + 4 * it, 2), v(5), sr(S_O, 4), it * 512)))
        Ld.append(Ins('buffer_load_dwordx2 %s, %s, %s, 0 offen offset:%d' % (v(10 + 4 * it, 2), v(5), sr(S_O, 4), it * 512 + 32)))
    Ld.append(Ins('s_mov_b64 exec, -1'))
    c = lambda t: C.append(Ins(t))
    c('v_lshrrev_b32 %s, 4, %s' % (v(6), v(1)))
    c('v_mul_u32_u24 %s, 18, %s' % (v(6), v(6)))
    c('v_add_u32 %s, %s, %s' % (v(6), v(6), v(3)))
    c('v_lshlrev_b32 %s, 10, %s' % (v(6), v(6)))
    c('v_lshl_add_u32 %s, %s, 8, %s' % (v(6), v(4), v(6)))
    c('v_and_b32 %s, 15, %s' % (v(7), v(1)))
    c('v_lshl_add_u32 %s, %s, 4, %s' % (v(6), v(7), v(6)))
    for d in range(12):
        c('v_lshlrev_b32 %s, 16, %s' % (v(20 + 2 * d), v(8 + d)))
        c('v_and_b32 %s, 0xffff0000, %s' % (v(21 + 2 * d), v(8 + d)))

    def reduce32(x, t):
        for k in (8, 4, 2, 1):
            c('v_add_f32_dpp %s, %s, %s row_ror:%d row_mask:0xf bank_mask:0xf' % (x, x, x, k))
        c('v_mov_b32 %s, %s' % (t, x))
        c('v_permlane16_swap_b32 %s, %s' % (x, t))
        c('v_add_f32 %s, %s, %s' % (x, x, t))
    c('v_add_f32 %s, %s, %s' % (v(44), v(20), v(21)))
    c('v_add_f32 %s, %s, %s' % (v(45), v(22), v(23)))
    for e in range(4, 24, 2):
        c('v_add_f32 %s, %s, %s' % (v(44), v(44), v(20 + e)))
        c('v_add_f32 %s, %s, %s' % (v(45), v(45), v(21 + e)))
    c('v_add_f32 %s, %s, %s' % (v(44), v(44), v(45)))
    reduce32(v(44), v(45))
    c('v_mul_f32 %s, 0x%x, %s' % (v(44), f2u(1.0 / 576), v(44)))
    c('v_mov_b32 %s, 0' % v(46))
    c('v_mov_b32 %s, 0' % v(47))
    for e in range(24):
        if e == 16:
            C += msk()
        c('v_sub_f32 %s, %s, %s' % (v(48), v(20 + e), v(44)))
        c('v_fmac_f32 %s, %s, %s' % (v(46 + e % 2), v(48), v(48)))
    c('s_mov_b64 exec, -1')
    c('v_add_f32 %s, %s, %s' % (v(46), v(46), v(47)))
    reduce32(v(46), v(45))
    c('v_mul_f32 %s, 0x%x, %s' % (v(46), f2u(1.0 / 576), v(46)))

    def rnd(x):
        c('v_cvt_pk_bf16_f32 %s, %s, %s' % (x, x, x))
        c('v_lshlrev_b32 %s, 16, %s' % (x, x))
    rnd(v(44))
    rnd(v(46))
    c('v_add_f32 %s, 0x%x, %s' % (v(46), f2u(1e-5), v(46)))
    rnd(v(46))
    c('v_sqrt_f32 %s, %s' % (v(46), v(46)))
    rnd(v(46))
    c('v_rcp_f32 %s, %s' % (v(46), v(46)))
    if OPT.get('fold', 0):
        c('v_mul_f32 %s, 0x%x, %s' % (v(46), f2u(-LOG2E), v(46)))
    C += srd_ins(S_XN, P_WS, None, 2048 * 1152)
    c('s_mov_b32 %s, 8192' % T(0))
    c('s_mov_b32 %s, 16384' % T(1))
    for d in range(12):
        x, y = v(20 + 2 * d), v(21 + 2 * d)
        c('v_sub_f32 %s, %s, %s' % (x, x, v(44)))
        c('v_sub_f32 %s, %s, %s' % (y, y, v(44)))
        c('v_cvt_pk_bf16_f32 %s, %s, %s' % (v(8 + d), x, y))
        c('v_lshlrev_b32 %s, 16, %s' % (x, v(8 + d)))
        c('v_and_b32 %s, 0xffff0000, %s' % (y, v(8 + d)))
        c('v_mul_f32 %s, %s, %s' % (x, x, v(46)))
        c('v_mul_f32 %s, %s, %s' % (y, y, v(46)))
        c('v_cvt_pk_bf16_f32 %s, %s, %s' % (v(8 + d), x, y))
        if d % 4 == 3:
            if d == 11:
                C += msk()
            C.append(Ins('buffer_store_dwordx4 %s, %s, %s, %s offen sc1' % (
                v(5 + d, 4), v(6), sr(S_XN, 4), ('0', T(0), T(1))[d // 4]), lds=('XN', 0)))
    c('s_mov_b64 exec, -1')
    return A, Ld, C


def gen_start_roles(diag):
    B = 64
    v = lambda k, n=1: vr(B + k, n)
    p = Prog()
    p('s_cmp_ge_u32 %s, 2' % sr(S_W))
    p('s_cbranch_scc1 L_role_b')
    p('s_lshl_b32 s3, %s, 5' % sr(S_QT))
    p('s_add_u32 s3, s3, %s' % sr(S_HD))
    p('s_lshl_b32 %s, s3, 3' % T(0))
    p('v_lshrrev_b32 %s, 4, v0' % v(1))
    p('v_add_u32 %s, %s, %s' % (v(1), T(0), v(1)))
    p('v_and_b32 %s, 15, v0' % v(2))
    p('v_lshrrev_b32 %s, 2, %s' % (v(3), v(2)))
    p('v_and_b32 %s, 3, %s' % (v(4), v(2)))
    p('v_mul_u32_u24 %s, 1152, %s' % (v(5), v(1)))
    p('v_lshl_add_u32 %s, %s, 6, %s' % (v(5), v(3), v(5)))
    p('v_lshl_add_u32 %s, %s, 3, %s' % (v(5), v(4), v(5)))
    for r in range(24, 28):
        p('v_mov_b32 %s, 0' % v(r))
    p('v_cmp_gt_u32 vcc, 8, %s' % v(2))
    p('v_or_b32 %s, s2, v0' % v(80))
    p('v_min_u32 %s, 1, %s' % (v(80), v(80)))
    p('v_lshlrev_b32 %s, 20, %s' % (v(80), v(80)))
    p('s_mov_b64 s[26:27], vcc')
    p('s_waitcnt lgkmcnt(0)')
    make_srd(p, S_O, P_X, None, 2048 * 1152)
    for it in range(5):
        if it == 4:
            p('s_mov_b64 exec, s[26:27]')
        p('buffer_load_dwordx2 %s, %s, %s, 0 offen offset:%d' % (v(8 + 4 * it, 2), v(5), sr(S_O, 4), it * 256))
        p('buffer_load_dwordx2 %s, %s, %s, 0 offen offset:%d' % (v(10 + 4 * it, 2), v(5), sr(S_O, 4), it * 256 + 32))
    p('s_mov_b64 exec, -1')
    make_srd(p, S_WQ, 50, None, 256)
    p('s_or_b32 %s, s24, 1' % T(1))
    p('v_mov_b32 %s, %s' % (v(81), T(1)))
    p('buffer_store_dword %s, %s, %s, 0 offen sc1' % (v(81), v(80), sr(S_WQ, 4)))
    p('v_lshrrev_b32 %s, 4, %s' % (v(6), v(1)))
    p('v_mul_u32_u24 %s, 18, %s' % (v(6), v(6)))
    p('v_add_u32 %s, %s, %s' % (v(6), v(6), v(3)))
    p('v_lshlrev_b32 %s, 10, %s' % (v(6), v(6)))
    p('v_lshl_add_u32 %s, %s, 8, %s' % (v(6), v(4), v(6)))
    p('v_and_b32 %s, 15, %s' % (v(7), v(1)))
    p('v_lshl_add_u32 %s, %s, 4, %s' % (v(6), v(7), v(6)))
    make_srd(p, S_XN, P_WS, None, 2048 * 1152)
    p('s_mov_b32 %s, 0x%x' % (T(3), WS_F + 4 * 32768))
    make_srd(p, S_FL, P_WS, T(3), 65536)
    p('s_lshl_b32 %s, %s, 13' % (T(2), sr(S_QT)))
    p('s_lshl_b32 %s, s3, 1' % T(3))
    p('s_add_u32 %s, %s, %s' % (T(3), T(3), sr(S_W)))
    p('s_lshl_b32 %s, %s, 7' % (T(3), T(3)))
    p('v_lshlrev_b32 %s, 20, %s' % (v(82), L))
    p('v_lshlrev_b32 %s, 7, %s' % (v(83), L))
    p('v_mov_b32 %s, 0' % v(84))
    for k in range(1, 5):
        p('s_mov_b32 %s, %d' % (T(3 + k), 4096 * k))
    F = 30
    for d in range(20):
        p('v_lshlrev_b32 %s, 16, %s' % (v(F + 2 * d), v(8 + d)))
        p('v_and_b32 %s, 0xffff0000, %s' % (v(F + 1 + 2 * d), v(8 + d)))
    p('buffer_load_dword %s, %s, %s, 0 offen sc1' % (v(85), v(84), sr(S_WQ, 4)))
    m, m2, q, q2, t = v(70), v(71), v(72), v(73), v(74)

    def reduce16(x):
        for k in (8, 4, 2, 1):
            p('v_add_f32_dpp %s, %s, %s row_ror:%d row_mask:0xf bank_mask:0xf' % (x, x, x, k))
    p('v_add_f32 %s, %s, %s' % (m, v(F), v(F + 1)))
    p('v_add_f32 %s, %s, %s' % (m2, v(F + 2), v(F + 3)))
    for e in range(4, 40, 2):
        p('v_add_f32 %s, %s, %s' % (m, m, v(F + e)))
        p('v_add_f32 %s, %s, %s' % (m2, m2, v(F + e + 1)))
    p('v_add_f32 %s, %s, %s' % (m, m, m2))
    reduce16(m)
    p('v_mul_f32 %s, 0x%x, %s' % (m, f2u(1.0 / 576), m))
    p('v_mov_b32 %s, 0' % q)
    p('v_mov_b32 %s, 0' % q2)
    for e in range(40):
        if e == 32:
            p('s_mov_b64 exec, s[26:27]')
        p('v_sub_f32 %s, %s, %s' % (t, v(F + e), m))
        p('v_fmac_f32 %s, %s, %s' % ((q, q2)[e % 2], t, t))
    p('s_mov_b64 exec, -1')
    p('v_add_f32 %s, %s, %s' % (q, q, q2))
    reduce16(q)
    p('v_mul_f32 %s, 0x%x, %s' % (q, f2u(1.0 / 576), q))

    def rnd(x):
        p('v_cvt_pk_bf16_f32 %s, %s, %s' % (x, x, x))
        p('v_lshlrev_b32 %s, 16, %s' % (x, x))
    rnd(m)
    rnd(q)
    p('v_add_f32 %s, 0x%x, %s' % (q, f2u(1e-5), q))
    rnd(q)
    p('v_sqrt_f32 %s, %s' % (q, q))
    rnd(q)
    p('v_rcp_f32 %s, %s' % (q, q))
    for d in range(20):
        x, y = v(F + 2 * d), v(F + 1 + 2 * d)
        p('v_sub_f32 %s, %s, %s' % (x, x, m))
        p('v_sub_f32 %s, %s, %s' % (y, y, m))
        p('v_cvt_pk_bf16_f32 %s, %s, %s' % (v(8 + d), x, y))
        p('v_lshlrev_b32 %s, 16, %s' % (x, v(8 + d)))
        p('v_and_b32 %s, 0xffff0000, %s' % (y, v(8 + d)))
        p('v_mul_f32 %s, %s, %s' % (x, x, q))
        p('v_mul_f32 %s, %s, %s' % (y, y, q))
        p('v_cvt_pk_bf16_f32 %s, %s, %s' % (v(8 + d), x, y))
        if d % 4 == 3:
            if d == 19:
                p('s_mov_b64 exec, s[26:27]')
            p('buffer_store_dwordx4 %s, %s, %s, %s offen sc1' % (v(5 + d, 4), v(6), sr(S_XN, 4), '0' if d == 3 else T(3 + d // 4)))
    p('s_mov_b64 exec, -1')
    p('s_mov_b32 s3, 0')
    p.label('L_ep_l')
    p('s_memrealtime s[24:25]')
    p('s_waitcnt vmcnt(0) lgkmcnt(0)')
    p('v_readfirstlane_b32 %s, %s' % (T(0), v(85)))
    p('s_add_u32 %s, s24, 100' % T(1))
    p('s_sub_u32 %s, %s, %s' % (T(1), T(1), T(0)))
    p('s_bitcmp0_b32 %s, 0' % T(0))
    p('s_cselect_b32 %s, -1, %s' % (T(1), T(1)))
    p('s_cmp_lt_u32 %s, 5100' % T(1))
    p('s_cbranch_scc1 L_ep_ok')
    p('s_and_b32 %s, %s, 1' % (T(0), T(0)))
    p('s_mul_i32 %s, %s, 127' % (T(0), T(0)))
    p('s_add_u32 s3, s3, %s' % T(0))
    p('s_add_u32 s3, s3, 1')
    p('s_cmp_gt_u32 s3, 0x40000')
    p('s_cbranch_scc1 L_ep_ok')
    p('buffer_load_dword %s, %s, %s, 0 offen sc1' % (v(85), v(84), sr(S_WQ, 4)))
    p('s_branch L_ep_l')
    p.label('L_ep_ok')
    p('buffer_store_dword %s, %s, %s, %s offen sc1' % (v(85), v(82), sr(S_FL, 4), T(3)))
    p('v_mov_b32 %s, 163836' % v(84))
    p('ds_write_b32 %s, %s' % (v(84), v(85)))
    p('s_mov_b32 %s, %s' % (sr(S_CNT), T(2)))
    p('s_branch L_join')
    SPIN_BLOCKS.append("""L_lnp:
 s_mov_b32 s3, 0
L_lnp_l:
 buffer_load_dword %s, %s, %s, %s offen sc1
 s_add_u32 s3, s3, 1
 s_cmp_gt_u32 s3, 0x40000
 s_cbranch_scc1 L_lnp_ok
 s_waitcnt vmcnt(0)
 v_cmp_ne_u32 vcc, %s, %s
 s_cbranch_vccnz L_lnp_l
 s_branch L_lnp_ok""" % (v(86), v(83), sr(S_FL, 4), sr(S_CNT), v(85), v(86)))
    p.label('L_role_b')
    ct = code_touch('L_join', B + 90, B + 91, S_O)
    ct[2] = Ins('s_lshl_b32 s3, s3, 12')
    ct[3] = Ins('v_and_b32 %s, 31, %s' % (v(90), L))
    for x in ct:
        p.add(x)
    R0 = OPT.get('pf0', 8)
    p('s_lshr_b32 %s, s2, 3' % T(0))
    p('s_mul_i32 %s, %s, %d' % (T(0), T(0), R0 * 9216))
    if OPT.get('map', 1):
        p('s_and_b32 %s, s2, 7' % T(1))
        p('s_mul_i32 %s, %s, 1152' % (T(1), T(1)))
        p('s_add_u32 %s, %s, %s' % (T(0), T(0), T(1)))
        p('s_waitcnt lgkmcnt(0)')
        p('s_cmp_eq_u32 %s, 3' % sr(S_W))
        p('s_cselect_b32 %s, s46, s44' % sr(S_H))
        p('s_cselect_b32 %s, s47, s45' % sr(S_H + 1))
        make_srd(p, S_H, S_H, T(0), (R0 - 1) * 9216 + 1152)
        for k in range((R0 * 9 + 63) // 64):
            p('v_add_u32 %s, %d, %s' % (v(92), 64 * k, L))
            p('v_mul_u32_u24 %s, 7282, %s' % (v(93), v(92)))
            p('v_lshrrev_b32 %s, 16, %s' % (v(93), v(93)))
            p('v_mul_u32_u24 %s, %d, %s' % (v(93), 9216 - 1152, v(93)))
            p('v_lshl_add_u32 %s, %s, 7, %s' % (v(93), v(92), v(93)))
            p('buffer_load_dword %s, %s, %s, 0 offen' % (v(95 + k), v(93), sr(S_H, 4)))
    else:
        p('s_and_b32 %s, s2, 3' % T(1))
        p('s_mul_i32 %s, %s, 2304' % (T(1), T(1)))
        p('s_add_u32 %s, %s, %s' % (T(0), T(0), T(1)))
        p('s_waitcnt lgkmcnt(0)')
        both = OPT.get('pfh', 1) == 0
        if both:
            p('s_cmp_eq_u32 %s, 3' % sr(S_W))
        else:
            p('s_bitcmp1_b32 s2, 2')
        p('s_cselect_b32 %s, s46, s44' % sr(S_H))
        p('s_cselect_b32 %s, s47, s45' % sr(S_H + 1))
        make_srd(p, S_H, S_H, T(0), (R0 - 1) * 9216 + 2304)
        for k in range(4 if both else 2):
            o = [Ins('v_add_u32 %s, %d, %s' % (v(92), 64 * k, L)) if both else Ins('v_add_u32 %s, %d, v0' % (v(92), 128 * k - 128))]
            div18(o, v(92), v(93), v(94))
            for x in o:
                p.add(x)
            p('v_mul_u32_u24 %s, 9216, %s' % (v(93), v(93)))
            p('v_lshl_add_u32 %s, %s, 7, %s' % (v(93), v(94), v(93)))
            p('buffer_load_dword %s, %s, %s, 0 offen' % (v(95 + k), v(93), sr(S_H, 4)))
    p('s_mov_b32 %s, 0x%x' % (T(3), WS_F + 4 * 32768))
    make_srd(p, S_FL, P_WS, T(3), 65536)
    p('v_lshlrev_b32 %s, 7, %s' % (v(83), L))
    p('s_mov_b32 %s, 0' % sr(S_CNT))
    p.label('L_join')
    p.finalize()
    return p.text().rstrip('\n')


def gen_slow_softmax():
    p = Prog()
    KA, VA, OK, OV, NM, MX = 120, 124, 132, 136, 140, 138
    NM = 44
    NM, OV, MX = 136, 32, 36
    p.label('L_slow')
    p('s_waitcnt vmcnt(0) lgkmcnt(0)')
    p('s_nop 15')
    p('s_add_u32 %s, %s, %d' % (T(0), sr(S_MK), 112 * 1024))
    p('s_cmp_eq_u32 %s, 3' % sr(S_W))
    p('s_cselect_b32 %s, %d, %s' % (T(0), 72 * 1024, T(0)))
    p('s_sub_u32 %s, %s, 0x10000' % (T(1), T(0)))
    for k in range(4):
        p('v_add_u32 %s, %s, %s' % (vr(KA + k), T(0), vr(V_KA + k)))
        p('v_subrev_u32 %s, %s, %s' % (vr(OK + k), sr(S_MK), vr(V_OK + k)))
    for k in range(8):
        p('v_add_u32 %s, %s, %s' % (vr(VA + k), T(1), vr(V_VA + k)))
    for k in range(2):
        p('v_subrev_u32 %s, %s, %s' % (vr(OV + k), sr(S_MK), vr(V_OV + k)))

    def load16(srd, vo, nvo):
        p('s_mov_b32 m0, %s' % T(0))
        for cc in range(4):
            p('buffer_load_dwordx4 %s, %s, %s offen offset:%d lds' % (vr(vo + cc % nvo), sr(srd, 4), T(2), cc * 1024))
        p('s_add_u32 %s, %s, 4096' % (T(2), T(2)))
        p('s_waitcnt vmcnt(0)')

    def qk(cin):
        p('s_mov_b32 %s, %s' % (T(2), T(3)))
        for kb in range(4):
            load16(S_K, OK, 4)
            for sx in range(4):
                p('ds_read_b128 %s, %s' % (ar(A_VF + (kb * 4 + sx) * 4, 4), vr(KA + sx)))
            p('s_waitcnt lgkmcnt(0)')
        for kb in range(4):
            for qb in range(4):
                for sx in range(4):
                    d = vr(Sreg(kb, qb), 4)
                    p('%s %s, %s, %s, %s' % (MF, d, ar(A_VF + (kb * 4 + sx) * 4, 4), vr(V_Q + (qb * 4 + sx) * 4, 4),
                                             cin(qb) if sx == 0 else d))
    for qb in range(4):
        p('v_mov_b32 %s, 0xff7fffff' % vr(MX + qb))
    p('s_mov_b32 %s, 0' % T(3))
    p.loop_begin(2, 's1')
    p.label('L_slow1')
    qk(lambda qb: '0')
    for qb in range(4):
        regs = [vr(Sreg(kb, qb) + r) for kb in range(4) for r in range(4)]
        for k in range(8):
            p('v_max3_f32 %s, %s, %s, %s' % (vr(MX + qb), vr(MX + qb), regs[2 * k], regs[2 * k + 1]))
    p('s_add_u32 %s, %s, 16384' % (T(3), T(3)))
    p('s_cmp_lt_u32 %s, 0x80000' % T(3))
    p('s_cbranch_scc1 L_slow1')
    p.loop_end()
    for x in xlane4('v_max_f32', [vr(MX + k) for k in range(4)], [vr(V_E + k) for k in range(4)]):
        p.add(x)
    for qb in range(4):
        for r in range(4):
            p('v_sub_f32 %s, 0, %s' % (vr(NM + qb * 4 + r), vr(MX + qb)))
        p('v_mov_b32 %s, 0' % vr(V_L + qb))
    for i in range(128):
        p('v_accvgpr_write_b32 %s, 0' % ar(A_O + i))
    p('s_mov_b32 %s, 0' % T(3))
    lp = p.loop_begin(3, 's2')
    p.label('L_slow2')
    qk(lambda qb: vr(NM + qb * 4, 4))
    for i in range(64):
        for x in sm_instrs(1, i):
            if x is not None:
                p.add(x)
    p('s_cmp_eq_u32 %s, 0x7c000' % T(3))
    p('s_cbranch_scc1 L_slow_done')
    p.loop_mark_exit(lp)
    p('s_mov_b32 %s, %s' % (T(2), T(3)))
    for ks in range(2):
        for j in range(2):
            load16(S_V, OV, 2)
            for db in range(8):
                p('ds_read_b64_tr_b16 %s, %s' % (ar(A_VF + db * 8 + ks * 4 + 2 * j, 2), vr(VA + db)))
            p('s_waitcnt lgkmcnt(0)')
    for db in range(8):
        for qb in range(4):
            for ks in range(2):
                o = ar(A_O + (db * 4 + qb) * 4, 4)
                p('%s %s, %s, %s, %s' % (MF, o, ar(A_VF + db * 8 + ks * 4, 4), vr(Preg(1, qb, ks), 4), o))
    p('s_add_u32 %s, %s, 16384' % (T(3), T(3)))
    p('s_branch L_slow2')
    p.loop_end()
    p.label('L_slow_done')
    for db in range(4):
        for ks in range(2):
            for j in range(2):
                x = v_load(31, db, ks, j, False)
                x.lds = None
                p.add(x)
    p('s_waitcnt vmcnt(0) lgkmcnt(0)')
    p('s_nop 15')
    p('s_branch L_slow_ret')
    p.finalize()
    return p.text().rstrip('\n')


def gen_main(diag=False):
    p = Prog()
    del SPIN_BLOCKS[:]
    _ct[0] = 0

    def stamp(k):
        if diag:
            p('s_memtime %s' % sr(S_DG, 2))
            p('s_waitcnt lgkmcnt(0)')
            p('v_writelane_b32 v1, %s, %d' % (sr(S_DG), k))
            p('s_memrealtime %s' % sr(S_DG, 2))
            p('s_waitcnt lgkmcnt(0)')
            p('v_writelane_b32 v1, %s, %d' % (sr(S_DG), k + 16))

    def addall(lst):
        for x in lst:
            p.add(x)

    def rstamp(k):
        if diag and OPT.get('sst'):
            p('s_memrealtime %s' % sr(S_DG, 2))
            p('s_waitcnt lgkmcnt(0)')
            p('v_writelane_b32 v1, %s, %d' % (sr(S_DG), 32 + k))
    p('s_cmp_ge_u32 s2, 256')
    p('s_cbranch_scc1 L_end')
    p('s_load_dwordx4 s[44:47], s[0:1], 48')
    p('s_load_dwordx2 %s, s[0:1], 88' % sr(P_WS, 2))
    p('s_load_dwordx4 s[36:39], s[0:1], 8')
    p('s_load_dwordx2 s[40:41], s[0:1], 24')
    p('s_load_dwordx2 %s, s[0:1], 0' % sr(P_X, 2))
    p('s_load_dwordx2 %s, s[0:1], 32' % sr(P_WO, 2))
    p('s_load_dwordx4 %s, s[0:1], 64' % sr(P_W2, 4))
    FU = OPT.get('fuse', 2)
    if FU:
        p('s_load_dwordx2 s[50:51], s[0:1], 80')
    stamp(0)
    p('v_and_b32 %s, 63, v0' % L)
    p('v_lshrrev_b32 %s, 6, v0' % t0)
    p('v_readfirstlane_b32 %s, %s' % (sr(S_W), t0))
    if OPT.get('map', 1):
        p('s_and_b32 %s, s2, 7' % T(0))
        p('s_lshl_b32 %s, %s, 2' % (T(0), T(0)))
        p('s_bfe_u32 %s, s2, 0x20003' % T(1))
        p('s_add_u32 %s, %s, %s' % (sr(S_HD), T(0), T(1)))
        p('s_lshr_b32 %s, s2, 5' % sr(S_QT))
    else:
        p('s_and_b32 %s, s2, 3' % T(0))
        p('s_lshl_b32 %s, %s, 3' % (T(0), T(0)))
        p('s_bfe_u32 %s, s2, 0x30003' % T(1))
        p('s_add_u32 %s, %s, %s' % (sr(S_HD), T(0), T(1)))
        p('s_and_b32 %s, s2, 4' % T(0))
        p('s_lshr_b32 %s, s2, 6' % T(1))
        p('s_add_u32 %s, %s, %s' % (sr(S_QT), T(0), T(1)))
    if FU == 2:
        p('s_memrealtime s[24:25]')
        p('s_nop 4')
        p.raw(gen_start_roles(diag))
        rstamp(0)
    if FU == 1:
        lnA, lnL, lnC = ln_parts()
        ct = code_touch('L_start', 120, 121, S_FL)
        ct[2] = Ins('s_lshl_b32 s3, s3, 12')
        ct[3] = Ins('v_and_b32 v120, 31, %s' % L)
        addall(ct)
        p.label('L_start')
        addall(lnA)
        p('s_memrealtime s[24:25]')
        p('v_or_b32 v125, s2, v0')
        p('v_min_u32 v125, 1, v125')
        p('v_lshlrev_b32 v125, 20, v125')
        p('s_waitcnt lgkmcnt(0)')
        make_srd(p, S_WQ, 50, None, 256)
        p('s_or_b32 s3, s24, 1')
        p('v_mov_b32 v126, s3')
        p('buffer_store_dword v126, v125, %s, 0 offen sc1' % sr(S_WQ, 4))
        addall(lnL)
        rstamp(0)
    p('v_lshlrev_b32 %s, 4, %s' % (vr(V_L16), L))
    p('s_and_b32 %s, %s, 1' % (T(2), sr(S_HD)))
    p('s_lshl_b32 %s, %s, 1' % (T(2), T(2)))
    p('v_add_u32 %s, %s, %s' % (t3, T(2), L))
    p('v_mul_u32_u24 %s, 3641, %s' % (vr(V_T + 4), L))
    p('v_mul_u32_u24 %s, 3641, %s' % (vr(V_T + 5), t3))
    p('s_movk_i32 %s, 9216' % T(9))
    p('s_movk_i32 %s, -288' % T(10))
    vo = []
    for i in range(9):
        o = []
        o.append(Ins('v_add_u32 %s, %d, %s' % (t0, 64 * i * 3641, vr(V_T + 4))))
        o.append(Ins('v_add_u32 %s, %d, %s' % (t1, 64 * i * 3641, vr(V_T + 5))))
        o.append(Ins('v_lshrrev_b32 %s, 16, %s' % (t0, t0)))
        o.append(Ins('v_lshrrev_b32 %s, 16, %s' % (t1, t1)))
        o.append(Ins('v_lshlrev_b32 %s, 4, %s' % (t2, t3)) if i == 0 else Ins('v_add_u32 %s, %d, %s' % (t2, 4096 if i % 4 == 0 else 0, t2)))
        o.append(Ins('v_mad_u32_u24 %s, %s, %s, %s' % (t0, t0, T(9), t2)))
        o.append(Ins('v_mad_i32_i24 %s, %s, %s, %s' % (vr(V_OW + i), t1, T(10), t0)))
        if i % 4:
            del o[4]
        vo.append(o)
    for o in vo[:4]:
        addall(o)
    p('s_mul_i32 %s, %s, 9216' % (sr(S_M1), sr(S_W)))
    p('s_and_b32 %s, %s, 1' % (T(3), sr(S_W)))
    p('s_mul_i32 %s, %s, %d' % (sr(S_OFFW), T(3), 32 * 9216))
    p('s_mul_i32 %s, %s, 288' % (T(2), sr(S_HD)))
    p('s_sub_u32 %s, %d, %s' % (T(3), 576 * 9216, T(2)))
    p('s_lshl_b32 %s, %s, 2' % (T(6), sr(S_QT)))
    p('s_add_u32 %s, %s, %s' % (T(6), T(6), sr(S_W)))
    p('s_mul_i32 %s, %s, %d' % (T(7), T(6), 4 * 18 * 1024))
    p('s_cmp_lt_u32 %s, 2' % sr(S_W))
    p('s_waitcnt lgkmcnt(0)')
    p('s_cselect_b32 s48, s44, s46')
    p('s_cselect_b32 s49, s45, s47')
    make_srd(p, S_WS, 48, T(2), T(3))
    def ln_now():
        p('v_mov_b32 v127, 0')
        p('s_mov_b32 %s, 0' % sr(S_CNT))
        rstamp(1)
        p.wait_regs(vr(72, 12))
        p.add(poll_issue(S_CNT, 128, 127, S_WQ))
        rstamp(2)
        addall(lnC)
        rstamp(3)
        poll_check(p, 'ep', S_CNT, 'v_cmp_eq_u32 vcc, 0', 128, 127, S_WQ, sleep=2)
        p('v_readfirstlane_b32 %s, v128' % sr(S_EP))

    def w_touch0():
        R0 = OPT.get('pf0', 8)
        if not R0:
            return
        p('s_lshr_b32 %s, s2, 3' % T(0))
        p('s_mul_i32 %s, %s, %d' % (T(0), T(0), R0 * 9216))
        p('s_and_b32 %s, s2, 3' % T(1))
        p('s_mul_i32 %s, %s, 2304' % (T(1), T(1)))
        p('s_add_u32 %s, %s, %s' % (T(0), T(0), T(1)))
        p('s_bitcmp1_b32 s2, 2')
        p('s_cselect_b32 %s, s46, s44' % sr(S_H))
        p('s_cselect_b32 %s, s47, s45' % sr(S_H + 1))
        make_srd(p, S_H, S_H, T(0), (R0 - 1) * 9216 + 2304)
        o = []
        div18(o, 'v0', 'v122', 'v123')
        addall(o)
        p('v_mul_u32_u24 v122, 9216, v122')
        p('v_lshl_add_u32 v122, v123, 7, v122')
        p('buffer_load_dword v124, v122, %s, 0 offen' % sr(S_H, 4))
    ORD = OPT.get('ord', 1)
    if FU == 2:
        make_srd(p, S_XN, P_WS, T(7), 4 * 18 * 1024)
    elif FU:
        p('s_mov_b32 %s, %s' % (sr(S_RO), T(7)))
        if ORD >= 1:
            if ORD == 1:
                w_touch0()
            for o in vo[4:]:
                addall(o)
            vo = vo[:4]
            ln_now()
            if ORD == 2:
                w_touch0()
    else:
        make_srd(p, S_XN, P_WS, T(7), 4 * 18 * 1024)
    d0 = p1_dma(0)
    addall(d0[:6])
    for o in vo[4:]:
        addall(o)
    addall(d0[6:] + (xn_loads(0, 0) if not FU else []))
    if FU == 2:
        rstamp(1)
        p('s_cmp_eq_u32 %s, 0' % sr(S_W))
        p('s_cbranch_scc1 L_lnp')
        p.label('L_lnp_ok')
        p('s_waitcnt lgkmcnt(0)')
        p('s_barrier')
        rstamp(2)
        addall(xn_loads(0, 0))
        p('v_mov_b32 v64, 163836')
        p('ds_read_b32 v65, v64')
        p('v_readfirstlane_b32 %s, v65' % sr(S_EP))
    if FU == 1 and ORD == 0:
        w_touch0()
        ln_now()
    if OPT.get('pro', 1) == 0:
        addall(p1_dma(1) + xn_loads(1, 1) + p1_dma(2))
    PF0 = OPT.get('pf0', 8)
    assert PF0 % 2 == 0
    MP = OPT.get('map', 1)
    p('s_lshr_b32 %s, s2, 3' % T(0))
    p('s_and_b32 %s, s2, %d' % (T(1), 7 if MP else 3))
    p('s_lshl_b32 %s, %s, 1' % (T(2), T(0)))
    p('s_and_b32 %s, %s, 1' % (T(3), sr(S_W)))
    p('s_add_u32 %s, %s, %s' % (T(2), T(2), T(3)))
    p('s_mul_i32 %s, %s, 9216' % (T(2), T(2)))
    p('s_mul_i32 %s, %s, %d' % (T(3), T(1), 1152 if MP else 2304))
    p('s_add_u32 %s, %s, %s' % (T(2), T(2), T(3)))
    p('s_sub_u32 %s, %d, %s' % (T(9), 576 * 9216, T(2)))
    p('s_lshl_b32 %s, %s, 2' % (T(4), T(0)))
    p('s_add_u32 %s, %s, %s' % (T(4), T(4), sr(S_W)))
    p('s_lshl_b32 %s, %s, 13' % (T(4), T(4)))
    p('s_lshl_b32 %s, %s, %d' % (T(3), T(1), 10 if MP else 11))
    p('s_add_u32 %s, %s, %s' % (T(4), T(4), T(3)))
    p('s_sub_u32 %s, %d, %s' % (T(10), 576 * 8192, T(4)))
    p('s_lshl_b32 %s, %s, 19' % (T(5), sr(S_HD)))
    make_srd(p, S_K, 36, T(5), 0x80000)
    make_srd(p, S_V, 38, T(5), 0x80000)
    p('s_lshl_b32 %s, %s, 8' % (T(5), sr(S_HD)))
    p('s_sub_u32 %s, %d, %s' % (T(3), 576 * 8192, T(5)))
    make_srd(p, S_WQ, 40, T(5), T(3))
    make_srd(p, S_A1, 48, T(2), T(9))
    make_srd(p, S_A2, 40, T(4), T(10))
    p('v_lshlrev_b32 %s, 7, %s' % (t1, L))
    p('v_mov_b32 %s, 0x7f000000' % t2)
    p('v_cmp_gt_u32 vcc, %d, %s' % (9 if MP else 18, L))
    p('v_cndmask_b32 %s, %s, %s, vcc' % (vr(V_SW), t2, t1))
    p('v_cmp_gt_u32 vcc, %d, %s' % (8 if MP else 16, L))
    p('v_cndmask_b32 %s, %s, %s, vcc' % (vr(V_SW + 1), t2, t1))
    tw = lambda c: [Ins('s_mov_b32 %s, %d' % (T(7), c * 64 * 9216)),
                    Ins('buffer_load_dword %s, %s, %s, %s offen sc0' % (vr(V_SW + 2), vr(V_SW), sr(S_A1, 4), T(7)))]
    tq = lambda k: [Ins('s_mov_b32 %s, %d' % (T(7), k * 128 * 8192)),
                    Ins('buffer_load_dword %s, %s, %s, %s offen sc0' % (vr(V_SW + 3), vr(V_SW + 1), sr(S_A2, 4), T(7)))]
    touch = {c: [] for c in range(7)}
    for k, c in enumerate(range(PF0 // 2, 9)):
        touch[min(k, 6)] += tw(c)
    for k in range(5):
        touch[k + OPT.get('tq0', 0)] += tq(4 - k)
    for c in touch:
        for x in touch[c]:
            x.wr = [r for r in x.wr if r[0] != 'v']
    if not OPT.get('pf1', 1):
        touch = {}
    if OPT.get('fold', 0):
        p('s_mov_b32 %s, 0x%x' % (sr(S_C), f2u(-1.0 / 128 ** 0.5)))
        p('s_mov_b32 %s, 0x%x' % (sr(S_NL), f2u(-1.0 / LOG2E)))
    else:
        p('s_mov_b32 %s, 0x%x' % (sr(S_C), f2u(LOG2E / 128 ** 0.5)))
        p('s_mov_b32 %s, 0x%x' % (sr(S_NL), f2u(-LOG2E)))
    p('s_lshl_b32 %s, %s, 12' % (sr(S_MK), sr(S_W)))
    p('s_mov_b32 %s, 0' % sr(S_OFFK))
    p('s_mov_b32 %s, 0' % sr(S_OFFV))
    p('v_lshrrev_b32 %s, 2, %s' % (t0, L))
    p('v_mul_u32_u24 %s, 288, %s' % (t1, t0))
    p('v_and_b32 %s, 3, %s' % (t2, L))
    p('v_lshl_add_u32 %s, %s, 3, %s' % (vr(V_A1), t2, t1))
    for k in range(1, 4):
        p('v_add_u32 %s, %d, %s' % (vr(V_A1 + k), k * 36864, vr(V_A1)))
    p('v_and_b32 %s, 15, %s' % (t0, L))
    p('v_lshrrev_b32 %s, 4, %s' % (t1, L))
    p('v_lshlrev_b32 %s, 1, %s' % (t3, t1))
    p('v_xor_b32 %s, %s, %s' % (t3, t0, t3))
    p('v_lshlrev_b32 %s, 4, %s' % (t3, t3))
    p('v_lshl_add_u32 %s, %s, 13, %s' % (vr(V_OQ), t1, t3))
    p('v_xor_b32 %s, 128, %s' % (vr(V_OQ + 1), vr(V_OQ)))
    p('s_lshl_b32 %s, %s, 17' % (sr(S_OFFQ), sr(S_W)))
    addall(kv_dma_setup())
    p('s_mul_i32 %s, %s, %d' % (T(3), T(6), 4 * HS()))
    p('s_add_u32 %s, %s, 0x%x' % (T(3), T(3), WS_H))
    make_srd(p, S_H, P_WS, T(3), 4 * HS())
    p('s_mul_i32 %s, %s, %d' % (T(3), sr(S_QT), 16 * OS()))
    p('s_lshl_b32 %s, %s, 12' % (T(4), sr(S_HD)))
    p('s_add_u32 %s, %s, %s' % (T(3), T(3), T(4)))
    p('s_add_u32 %s, %s, 0x%x' % (T(3), T(3), WS_O))
    p('s_sub_u32 %s, %d, %s' % (T(5), 16 * OS(), T(4)))
    make_srd(p, S_O, P_WS, T(3), T(5))
    p('s_mov_b32 %s, 0x%x' % (T(3), WS_F))
    make_srd(p, S_FL, P_WS, T(3), 5 * 32768)
    p('s_lshr_b32 %s, %s, 3' % (sr(S_SP), sr(S_HD)))
    p('s_and_b32 %s, %s, 7' % (T(0), sr(S_HD)))
    p('s_lshl_b32 %s, %s, 3' % (sr(S_TILE), sr(S_QT)))
    p('s_add_u32 %s, %s, %s' % (sr(S_TILE), sr(S_TILE), T(0)))
    p('s_lshl_b32 %s, %s, 6' % (T(0), sr(S_SP)))
    p('s_add_u32 %s, %s, %s' % (T(0), T(0), sr(S_TILE)))
    p('s_lshl_b32 %s, %s, 7' % (sr(S_FWG), T(0)))
    p('s_lshl_b32 %s, %s, 13' % (sr(S_FGR), sr(S_SP)))
    p('s_mul_i32 %s, %s, 9' % (T(2), sr(S_HD)))
    p('s_add_u32 %s, %s, 1' % (T(2), T(2)))
    p('s_lshr_b32 %s, %s, 1' % (T(2), T(2)))
    p('s_lshl_b32 %s, %s, 10' % (sr(S_HS), T(2)))
    p('s_bitcmp1_b32 %s, 0' % sr(S_HD))
    p('s_mov_b32 %s, 4096' % T(3))
    p('s_cselect_b32 %s, %d, %s' % (T(3), -1024 + 8, T(3)))
    p('s_add_u32 %s, %s, %s' % (sr(S_HS + 4), sr(S_HS), T(3)))
    for qb in range(1, 4):
        p('s_add_u32 %s, %s, %d' % (sr(S_HS + qb), sr(S_HS), qb * HS()))
        p('s_add_u32 %s, %s, %d' % (sr(S_HS + 4 + qb), sr(S_HS + 4), qb * HS()))
    if OPT.get('pro', 1) == 1:
        addall(p1_dma(1))
    if FU == 1:
        make_srd(p, S_XN, P_WS, sr(S_RO), 4 * 18 * 1024)
        p('s_lshl_b32 %s, %s, 12' % (T(2), sr(S_QT)))
        p('s_add_u32 %s, %s, %d' % (T(2), T(2), 4 * 32768))
        p('s_lshl_b32 %s, %s, 7' % (T(3), sr(S_HD)))
        p('s_add_u32 %s, %s, %s' % (T(3), T(3), T(2)))
        p('v_lshlrev_b32 v125, 20, v0')
        p('v_and_b32 v129, 31, %s' % L)
        p('v_lshlrev_b32 v129, 7, v129')
        rstamp(4)
        p.need(('XN', 0))
        rstamp(5)
        p('s_barrier')
        rstamp(6)
        p('buffer_store_dword v128, v125, %s, %s offen sc1' % (sr(S_FL, 4), T(3)), lds=('flag', ('XN', 0)))
        if OPT.get('lnpoll', 0) == 1:
            SPIN_BLOCKS.append("""L_lnp:
 s_mov_b32 s3, 0
L_lnp_l:
 buffer_load_dword v130, v129, %s, %s offen sc1
 s_add_u32 s3, s3, 1
 s_cmp_gt_u32 s3, 0x40000
 s_cbranch_scc1 L_lnp_ok
 s_waitcnt vmcnt(0)
 v_cmp_ne_u32 vcc, %s, v130
 s_cbranch_vccz L_lnp_ok
 s_sleep 2
 s_branch L_lnp_l""" % (sr(S_FL, 4), T(2), sr(S_EP)))
            p('s_cmp_eq_u32 %s, 0' % sr(S_W))
            p('s_cbranch_scc1 L_lnp')
            p.label('L_lnp_ok')
            p('s_barrier')
        else:
            p.add(poll_issue(S_T0 + 2, 130, 129))
            poll_check(p, 'ln', S_T0 + 2, 'v_cmp_ne_u32 vcc, %s' % sr(S_EP), 130, 129, sleep=2)
        addall(xn_loads(0, 0))
    stamp(1)

    if OPT.get('donly'):
        p('s_waitcnt vmcnt(0)')
        addall(d_scalar_setup1() + d_scalar_setup2() + k_read_setup() + v_read_setup())
        p('v_lshlrev_b32 %s, 20, v0' % vr(V_FST))
        p('v_mov_b32 %s, 1' % vr(V_ONE))
        p('v_lshlrev_b32 %s, 7, %s' % (vr(V_FOFF), L))
        p('v_mov_b32 %s, 0' % vr(V_RV))
        p('s_mov_b32 %s, 0' % sr(S_OFFW))
        for k in range(2, 7):
            stamp(k)
        p.raw(' s_branch L_donly')
    g = Gaps(p)
    seq = GemmSeq(p, g)
    pool = deque(('a', 72 + 4 * k) for k in range(14))

    def alloc():
        while not pool:
            x = (g.st or g.lo).popleft()
            g.over += max(1, cost(x))
            g.emit(x)
        for t in pool:
            if t[0] == 'v':
                pool.remove(t)
                return t
        return pool.popleft()

    XB = {}
    ring = lambda buf: [('a', A_B + buf * 32 + 4 * k) for k in range(8)]

    def xn_l(c, tiles):
        out = []
        for qb in range(4):
            out.append(Ins('s_mov_b32 %s, %d' % (T(qb), qb * 18 * 1024 + c * 2048)))
            for ks in range(2):
                out.append(Ins('buffer_load_dwordx4 %s, %s, %s, %s offen offset:%d' % (
                    rg(tiles[qb * 2 + ks]), vr(V_L16), sr(S_XN, 4), T(qb), ks * 1024)))
        return out

    def aq_setup():
        o = []
        a = lambda s: o.append(Ins(s))
        a('v_lshrrev_b32 %s, 2, %s' % (t0, L))
        a('v_and_b32 %s, 7, %s' % (t1, t0))
        a('v_lshlrev_b32 %s, 1, %s' % (t1, t1))
        a('v_and_b32 %s, 3, %s' % (t2, L))
        a('v_xor_b32 %s, %s, %s' % (t1, t1, t2))
        a('v_lshlrev_b32 %s, 4, %s' % (t1, t1))
        a('v_lshl_add_u32 %s, %s, 8, %s' % (vr(V_AQ), t0, t1))
        for s in range(1, 4):
            a('v_xor_b32 %s, %d, %s' % (vr(V_AQ + s), 64 * s, vr(V_AQ)))
        for rgn in range(1, 3):
            for s in range(4):
                a('v_add_u32 %s, 0x%x, %s' % (vr(V_AQ + rgn * 4 + s), rgn * 65536, vr(V_AQ + s)))
        return o

    def mk_mf(acc, chunks, xb, first):
        def mf(dst):
            out = []
            for qb in range(4):
                for ci, c in enumerate(chunks):
                    for ks in range(2):
                        def th(qb=qb, ci=ci, c=c, ks=ks):
                            a = rg(acc(qb))
                            cin = '0' if (first and ci == 0 and ks == 0) else a
                            return '%s %s, %s, %s, %s' % (MF, a, ar(dst + ci * 8 + ks * 4, 4), rg(xb(c)[qb * 2 + ks]), cin)
                        out.append(th)
            return out
        return mf

    for c in range(9):
        XB[c] = ring(c % 3)
    for c in range(7):
        for blk in range(18):
            hook = None
            if blk == 0:
                def hook(c=c):
                    if OPT.get('cst'):
                        p('s_memrealtime %s' % sr(S_DG, 2))
                        p('s_waitcnt lgkmcnt(0)')
                        p('v_writelane_b32 v1, %s, %d' % (sr(S_DG), 32 + c))
                    g.drop = {0: (), 1: ('dma',), 2: ('vld',), 3: ('dma', 'vld'), 4: ('dma', 'vld', 'dsr')}[OPT.get('drop', 0)]
                    g.vm_gap = OPT.get('vg1', 5) if c > 1 else OPT.get('vg0', 5)
                    if c == 0 and OPT.get('pro', 1):
                        g.hi.extend(xn_l(1, XB[1]) + p1_dma(2))
                    g.hi.extend(touch.get(c, []))
                    xl = xn_l(c + 2, XB[c + 2])
                    if c == 0:
                        g.hi.extend(xl + p1_dma(3))
                    else:
                        g.hi.extendleft(reversed(xl)) if OPT.get('xfirst', 0) else g.hi.extend(xl)
                    if c == 4:
                        g.hi.extend(wq_dma(8))
                    if c == 4 and OPT.get('ct1', 1):
                        g.hi.extend(code_touch('L_c1', V_SW + 4, V_SW + 5, S_A3))
                    if c == 6:
                        assert not any(y.kind == 'dma' and y.lds[1][0] == 'W' for y in g.hi)
                        g.lo.extend(aq_setup())
            seq.add(lambda dst, c=c, blk=blk: p1_reads(c, blk, dst), 8,
                    mk_mf(lambda qb, blk=blk: FT[(blk, qb)], [c], lambda c: XB[c], c == 0), hook=hook,
                    bar=[(PS(c), ('W', c))] if blk == 0 else None,
                    bwait=[rg(t) for t in XB[c]] if blk == 0 else None)
            if blk == 0 and 1 <= c <= 5:
                seq.groups[-1]['post'] = lambda c=c: g.hi.extend(p1_dma(c + 3))
            if blk == 0 and c == 6:
                seq.groups[-1]['post'] = lambda: g.hi.extend(wq_dma(7))
    CT = OPT.get('cap_t', 3)
    for blk in range(18):
        hook = None
        if blk >= 2 and blk % 2 == 0:
            def hook(b=blk // 2 - 1):
                for qb in range(4):
                    g.lo.extend(swiglu_unit(b, qb, g.n + 3, pool))
        if blk == 0:
            def hook():
                g.drop = ()
                p.label('L_c1')
                stamp(2)
        seq.add(lambda dst, blk=blk: p1_reads(7, blk, dst) + p1_reads(8, blk, dst + 8), 16,
                mk_mf(lambda qb, blk=blk: FT[(blk, qb)], [7, 8], lambda c: XB[c], False), hook=hook,
                bar=[(PS(7), ('W', 7)), (PS(8), ('W', 8))] if blk == 0 else None,
                bwait=[rg(t) for t in XB[7] + XB[8]] if blk == 0 else None, cap=CT)
        if blk == 0:
            seq.groups[-1]['post'] = lambda: g.hi.extend(wq_dma(6) + wq_dma(5))
    QT = {}

    def qacc(bq, qb):
        if (bq, qb) not in QT:
            QT[(bq, qb)] = alloc()
        return QT[(bq, qb)]
    XQ = {8: XB[8], 7: XB[7], 6: XB[6], 4: ring(1), 3: ring(2), 2: ring(0), 0: ring(1)}
    C2 = OPT.get('cap_p2', 2)
    qn = lambda c: (LS(WQ_SLOT[c]), ('Q', c))
    for bq in range(8):
        hook = None
        if bq == 0:
            def hook():
                stamp(3)
                g.vm_gap = OPT.get('vg2', 4)
                g.st_w = OPT.get('stw2', 1)
                for qb in range(4):
                    g.lo.extend(swiglu_unit(8, qb, g.n + 3, pool))
        if bq == 3:
            def hook():
                XQ[5] = XQ[1] = [alloc() for _ in range(8)]
                g.hi.extend(xn_l(5, XQ[5]))
        seq.add(lambda dst, bq=bq: p2_reads(8, bq, dst) + p2_reads(7, bq, dst + 8), 16,
                mk_mf(lambda qb, bq=bq: qacc(bq, qb), [8, 7], lambda c: XQ[c], True), hook=hook,
                bar=[qn(8), qn(7)] if bq == 0 else None, cap=C2)
        if bq == 0:
            seq.groups[-1]['post'] = lambda: g.hi.extend(
                wq_dma(4) + wq_dma(3) + wq_dma(2))
    for c in (6, 5, 4, 3, 2):
        for bq in range(8):
            hook = None
            if bq == 0:
                def hook(c=c):
                    for cc in {6: (4, 3), 5: (2,), 4: (1,), 3: (0,), 2: ()}[c]:
                        g.hi.extend(xn_l(cc, XQ[cc]))
            seq.add(lambda dst, c=c, bq=bq: p2_reads(c, bq, dst), 8,
                    mk_mf(lambda qb, bq=bq: qacc(bq, qb), [c], lambda c: XQ[c], False), hook=hook,
                    bar=[qn(c)] if bq == 0 else None, cap=C2,
                    bwait=(lambda c=c: [rg(t) for t in XQ[c]]) if bq == 0 else None)
            if bq == 0:
                seq.groups[-1]['lazyb'] = c
                post = {6: lambda: g.hi.extend(wq_dma(1) + wq_dma(0)),
                        3: lambda: g.hi.extend(dma_unit('K', 0, False)),
                        2: lambda: g.hi.extend(dma_unit('K', 1, False) + dma_unit('V', 0, False))}.get(c)
                seq.groups[-1]['post'] = post
    for bq in range(8):
        hook = None
        if bq == 0:
            def hook():
                print('swiglu backlog at last P2 group:', len(g.hi), len(g.lo), 'over', g.over, file=sys.stderr)
                g.hi.extend(dma_unit('K', 2, False) + dma_unit('V', 1, False))
        if bq >= 2 and bq % 2 == 0:
            def hook(s=bq // 2 - 1):
                for qb in range(4):
                    g.lo.extend(qcvt_unit(qb, s, QT, g.n + 3))
        seq.add(lambda dst, bq=bq: p2_reads(1, bq, dst) + p2_reads(0, bq, dst + 8), 16,
                mk_mf(lambda qb, bq=bq: qacc(bq, qb), [1, 0], lambda c: XQ[c], False), hook=hook,
                bar=[qn(1), qn(0)] if bq == 0 else None, cap=C2,
                bwait=(lambda: [rg(t) for t in XQ[1] + XQ[0]]) if bq == 0 else None)
    seq.run()
    stamp(4)
    print('G backlog at end:', len(g.hi), len(g.lo), 'over', g.over, 'waste', g.waste, file=sys.stderr)
    for qb in range(4):
        g.lo.extend(qcvt_unit(qb, 3, QT, 0))
    addall(k_read_setup())
    p.need(('lgkm', 'all'), (LS(0), ('K', 0)))
    p('s_barrier')
    for kb in range(4):
        for s in range(4):
            p.add(k_load(0, kb, s, False))
    g.flush()
    g.vm_gap = 4
    g.hi.extend(dma_unit('K', 3, False))
    g.hi.extend(d_scalar_setup1())
    g.lo.extend(Ins('v_accvgpr_write_b32 %s, 0' % ar(A_O + i)) for i in range(128))
    for kb in range(4):
        for qb in range(4):
            for s in range(4):
                d = vr(Sreg(kb, qb), 4)
                g.gap('%s %s, %s, %s, %s' % (MF, d, ar(A_KF + kb * 16 + s * 4, 4), vr(V_Q + (qb * 4 + s) * 4, 4), '0' if s == 0 else d))
    g.flush()
    addall(v_read_setup())
    for qb in range(4):
        p('v_mov_b32 %s, 0' % vr(V_L + qb))
    p('v_lshlrev_b32 %s, 20, v0' % vr(V_FST))
    if not FU:
        p('s_mov_b32 %s, 1' % sr(S_EP))
    p('v_mov_b32 %s, %s' % (vr(V_ONE), sr(S_EP)))
    p('v_lshlrev_b32 %s, 7, %s' % (vr(V_FOFF), L))
    addall(code_touch('L_att_tail', 32, 33, S_DWO)[:-1])
    p('v_mov_b32 %s, %s' % (vr(V_RN), L))
    addall(repack_pat())
    ms = [vr(V_E + qb) for qb in range(4)]
    for step in range(8):
        for qb in range(4):
            regs = [vr(Sreg(kb, qb) + r) for kb in range(4) for r in range(4)]
            if step == 0:
                p('v_max3_f32 %s, %s, %s, %s' % (ms[qb], regs[0], regs[1], regs[2]))
            elif step < 7:
                p('v_max3_f32 %s, %s, %s, %s' % (ms[qb], ms[qb], regs[2 * step + 1], regs[2 * step + 2]))
            else:
                p('v_max_f32 %s, %s, %s' % (ms[qb], ms[qb], regs[15]))
    addall(xlane4('v_max_f32', ms, [vr(V_T + k) for k in range(4)]))
    for qb in range(4):
        for r in range(4):
            p('v_sub_f32 %s, 0, %s' % (vr(V_NM + qb * 4 + r), ms[qb]))
    for kb in range(4):
        for qb in range(4):
            for r in range(4):
                x = vr(Sreg(kb, qb) + r)
                p('v_add_f32 %s, %s, %s' % (x, x, vr(V_NM + qb * 4)))
    stamp(5)
    def sm_plain(uu, i0, i1):
        prev = []
        for i in range(i0, i1):
            ex, ad, cv = sm_instrs(uu, i)
            p.add(ex)
            addall(prev)
            prev = [ad] + ([cv] if cv else [])
        p('s_nop 0')
        addall(prev)
    sm_plain(0, 0, 28)
    att_slots(p, 0, 0, 64, False, pv=False, sm_cur=False)
    sm_plain(0, 28, 60)
    p('s_mov_b32 %s, 0' % sr(S_CNT))
    p('s_lshl_b32 %s, %s, 4' % (sr(S_OFFQ), sr(S_W)))
    p('s_add_u32 %s, %s, 2' % (sr(S_OFFQ), sr(S_OFFQ)))
    p.wait_regs(ar(A_KF, 16))
    lp = p.loop_begin(7, 'att')
    p('.p2align 6')
    p.label('L_att')
    rtag = ('R', 0)
    g.vm_gap = 8

    def rp_loads():
        g.hi.append(Ins('buffer_load_dwordx4 %s, %s, %s, 0 offen nt' % (vr(V_RQ[0], 4), vr(V_RV), sr(S_A1, 4))))
        g.hi.append(Ins('buffer_load_dwordx4 %s, %s, %s, 0 offen nt' % (vr(V_RQ[1], 4), vr(V_RV), sr(S_A2, 4))))

    def rp_stores():
        g.hi.append(Ins('buffer_store_dwordx4 %s, %s, %s, %s offen sc1' % (vr(V_RQ[0], 4), vr(V_L16), sr(S_A3, 4), sr(S_RO)), lds=rtag))
        g.hi.append(Ins('buffer_store_dwordx4 %s, %s, %s, %s offen sc1' % (vr(V_RQ[1], 4), vr(V_L16), sr(S_A4, 4), sr(S_RO)), lds=rtag))
        g.hi.append(Ins('s_add_u32 %s, %s, 1024' % (sr(S_RO), sr(S_RO))))
    att_slots(p, 0, 64, 96, True)
    rp_loads()
    att_slots(p, 0, 96, 128, True, g=g, cap=4)
    assert not g.hi
    att_slots(p, 1, 0, 64, True)
    p('s_add_u32 %s, %s, 1' % (sr(S_CNT), sr(S_CNT)))
    p('s_cmp_eq_u32 %s, 7' % sr(S_CNT))
    p('s_cbranch_scc1 L_att_tail')
    p.loop_mark_exit(lp)
    g.lo.extend(repack_pat())
    att_slots(p, 1, 64, 128, True, g=g, cap=3)
    assert not g.lo
    att_slots(p, 2, 0, 30, True, extra_need=[rtag, ('H', 0)])
    if OPT.get('plain_h'):
        SPIN_BLOCKS.append('L_wbh:\n buffer_wbl2 sc1\n s_branch L_wbh_done')
        p('s_cmp_eq_u32 %s, %s' % (sr(S_CNT), sr(S_OFFQ)))
        p('s_cbranch_scc1 L_wbh')
        p.label('L_wbh_done')
    p('s_cmp_eq_u32 %s, 4' % sr(S_CNT))
    p('s_cselect_b32 %s, %s, 0x100000' % (T(0), sr(S_FWG)))
    fl = flag_store(S_T0, 'H')
    g.hi.append(fl)
    g.vm_gap = 3
    rp_stores()
    att_slots(p, 2, 30, 66, True, g=g, cap=4)
    assert not g.hi
    att_slots(p, 2, 66, 96, True)
    g.vm_gap = 8
    rp_loads()
    att_slots(p, 2, 96, 128, True, g=g, cap=4)
    assert not g.hi
    g.lo.extend(repack_pat())
    att_slots(p, 3, 0, 96, True, g=g, cap=3)
    assert not g.lo
    if OPT.get('ct2', 1):
        g.hi.append(Ins('global_load_dword v33, v32, %s' % sr(S_DWO, 2)))
    att_slots(p, 3, 96, 128, True, g=g, cap=4)
    assert not g.hi
    att_slots(p, 4, 0, 30, True)
    g.vm_gap = 3
    rp_stores()
    att_slots(p, 4, 30, 64, True, g=g, cap=4)
    assert not g.hi
    p('s_branch L_att')
    p.loop_end()
    p.label('L_att_tail')
    stamp(6)
    g.vm_gap = 4
    att_slots(p, 25, 64, 96, False)
    g.hi.append(poll_issue(S_FGR))
    tt = []
    a = lambda x: tt.append(Ins(x))
    a('s_lshr_b32 %s, s2, 3' % T(0))
    a('s_lshl_b32 %s, %s, 2' % (T(1), sr(S_SP)))
    a('s_add_u32 %s, %s, %s' % (T(1), T(1), sr(S_W)))
    a('s_mul_i32 %s, %s, %d' % (T(1), T(1), WBLK))
    a('s_mul_i32 %s, %s, 1152' % (T(2), T(0)))
    a('s_add_u32 %s, %s, %s' % (T(1), T(1), T(2)))
    a('s_add_u32 %s, %s, 0x%x' % (T(1), T(1), WS_W))
    tt += srd_ins(S_A1, P_WS, T(1), 18 * 36864 + 1152)
    a('s_and_b32 %s, s2, 4' % T(1))
    a('s_lshl_b32 %s, %s, 3' % (T(1), T(1)))
    a('s_add_u32 %s, %s, %s' % (T(1), T(1), T(0)))
    a('s_lshl_b32 %s, %s, 1' % (T(1), T(1)))
    a('s_and_b32 %s, %s, 1' % (T(2), sr(S_W)))
    a('s_add_u32 %s, %s, %s' % (T(1), T(1), T(2)))
    a('s_mul_i32 %s, %s, %d' % (T(1), T(1), HS()))
    a('s_mul_i32 %s, %s, %d' % (T(2), sr(S_SP), 36 * 1024))
    a('s_add_u32 %s, %s, %s' % (T(1), T(1), T(2)))
    a('s_add_u32 %s, %s, 0x%x' % (T(1), T(1), WS_H))
    tt += srd_ins(S_A2, P_WS, T(1), 36 * 1024)
    a('s_lshr_b32 %s, %s, 1' % (T(1), sr(S_W)))
    a('s_lshl_b32 %s, %s, 12' % (sr(S_RO), T(1)))
    a('s_lshl_b32 %s, %s, 2' % (T(2), sr(S_TILE)))
    a('s_add_u32 %s, %s, %s' % (T(2), T(2), sr(S_SP)))
    a('s_lshl_b32 %s, %s, 2' % (T(2), T(2)))
    a('s_add_u32 %s, %s, %s' % (T(2), T(2), sr(S_W)))
    a('s_mul_i32 %s, %s, 9216' % (T(2), T(2)))
    a('s_add_u32 %s, %s, 0x%x' % (T(2), T(2), WS_P))
    tt += srd_ins(S_A3, P_WS, T(2), 9216)
    g.hi.extend(tt)
    g.lo.extend(Ins('v_mov_b32 v%d, -1' % r) for r in range(36, 40))
    g.lo.extend([Ins('v_mul_u32_u24 %s, 7282, %s' % (vr(V_RV), L)),
                 Ins('v_lshrrev_b32 %s, 16, %s' % (vr(V_RV), vr(V_RV))),
                 Ins('v_mul_u32_u24 %s, %d, %s' % (vr(V_RV), 36864 - 1152, vr(V_RV))),
                 Ins('v_lshl_add_u32 %s, %s, 7, %s' % (vr(V_RV), L, vr(V_RV))),
                 Ins('v_mov_b32 v251, 0x7f000000'),
                 Ins('v_cmp_gt_u32 vcc, 18, %s' % L),
                 Ins('v_cndmask_b32 %s, v251, %s, vcc' % (vr(V_RV), vr(V_RV))),
                 Ins('v_cmp_gt_u32 vcc, 32, %s' % L),
                 Ins('v_cndmask_b32 v250, v251, %s, vcc' % vr(V_FOFF))])
    att_slots(p, 25, 96, 128, False, g=g, cap=4)
    att_slots(p, 26, 0, 64, False, g=g, cap=3, dmav=False)
    g.flush()
    addall(dma_unit('V', 28, False))
    poll_check(p, 'h', S_FGR)

    def nowr(l):
        for x in l:
            x.wr = [r for r in x.wr if r[0] != 'v']
        return l

    def touch_w(c, srd=S_A1):
        return nowr([Ins('s_mov_b32 %s, %d' % (T(6), c * 36864)),
                     Ins('buffer_load_dword v248, %s, %s, %s offen sc0' % (vr(V_RV), sr(srd, 4), T(6)))])

    def touch_h(k):
        return nowr([Ins('s_add_u32 %s, %s, %d' % (T(6), sr(S_RO), k * 8192)),
                     Ins('buffer_load_dword v249, v250, %s, %s offen sc0' % (sr(S_A2, 4), T(6)))])
    TD = OPT.get('touch_d', 0)
    tl = []
    if TD:
        for k in range(5):
            tl += [touch_w(2 * k), touch_h(k)]
    else:
        tl = [[] for _ in range(10)]
    if OPT.get('tagged', 0):
        for k in range(9):
            tl[k] = tl[k] + [Ins('s_mov_b32 %s, %d' % (T(5), k * 1024)),
                             Ins('buffer_store_dwordx4 v[36:39], %s, %s, %s offen sc1' % (vr(V_L16), sr(S_A3, 4), T(5)), lds=('PT1', 0))]
    for u in (26, 27, 28, 29):
        for (ta, tb, on) in ((0, 32, 0), (32, 48, 1), (48, 64, 1), (64, 96, 0), (96, 112, 1), (112, 128, 1)):
            if (u == 26 and ta < 64) or (u == 29 and ta >= 64):
                continue
            if on and tl:
                g.hi.extend(tl.pop(0))
            att_slots(p, u, ta, tb, False, g=g if on else None, cap=4, dmak=(u + DK < 32))
            assert not g.hi
    assert not tl
    for k in range(4):
        p('s_mov_b32 %s, %s' % (sr(S_DWO + k), sr(S_A1 + k)))
    g.hi.extend(d_scalar_setup2())
    att_slots(p, 29, 64, 128, False, dmak=False, g=g, cap=4)
    g.flush()
    p.label('L_donly')
    att_slots(p, 30, 0, 2, False, dmak=False, dmav=False, g=g)
    g.vm_gap = 5
    g.hi.extend(d_dma(0) + d_dma(1))
    g.hi.append(sadd(S_FWG, 32768))
    g.hi.append(Ins('s_and_b32 %s, %s, 0x38' % (T(0), sr(S_TILE))))
    g.hi.append(Ins('s_lshl_b32 %s, %s, 7' % (T(0), T(0))))
    g.hi.append(Ins('s_add_u32 %s, %s, %s' % (sr(S_FGR), sr(S_FGR), T(0))))
    g.hi.append(sadd(S_FGR, 32768))
    g.hi.append(Ins('s_add_u32 %s, %s, 8192' % (sr(S_OFFW), sr(S_FGR))))
    g.hi.append(Ins('s_and_b32 %s, %s, 1' % (sr(S_ADJB), sr(S_SP))))
    g.hi.append(Ins('s_lshl_b32 %s, %s, 9' % (T(1), sr(S_ADJB))))
    g.hi.append(Ins('s_or_b32 %s, %s, 0x180' % (T(1), T(1))))
    g.hi.append(Ins('v_and_b32 v250, %s, %s' % (T(1), vr(V_FOFF))))
    g.hi.append(Ins('s_mul_i32 %s, %s, %d' % (sr(S_ADJW), sr(S_ADJB), -4 * 36864)))
    g.hi.append(Ins('s_mul_i32 %s, %s, %d' % (sr(S_ADJB), sr(S_ADJB), -4 * 4096)))
    g.lo.append(Ins('v_and_b32 %s, 0x380, %s' % (vr(V_FOFF), vr(V_FOFF))))
    att_slots(p, 30, 2, 97, False, dmak=False, dmav=False, g=g, cap=4, barrier=False)
    g.vm_gap = 4
    g.hi.extend(d_bloads(0))
    att_slots(p, 30, 97, 128, False, dmak=False, dmav=False, g=g, cap=4, barrier=False)
    att_slots(p, 31, 0, 2, False, qk=False, sm_next=False, dmak=False, dmav=False, g=g, vearly=True)
    g.vm_gap = 3
    g.hi.extend(d_bloads(1) + d_dma(2))
    o = []
    o.append(Ins('v_lshrrev_b32 %s, 2, %s' % (t0, L)))
    o.append(Ins('v_mul_u32_u24 %s, 288, %s' % (t1, t0)))
    o.append(Ins('v_and_b32 %s, 3, %s' % (t2, L)))
    o.append(Ins('v_lshl_add_u32 %s, %s, 3, %s' % (vr(V_DRA), t2, t1)))
    for k in range(1, 4):
        o.append(Ins('v_add_u32 %s, %d, %s' % (vr(V_DRA + k), DBASE[k], vr(V_DRA))))
    g.lo.extend(o)
    g.lo.append(Ins('v_mov_b32 %s, 0x%x' % (vr(V_RN), f2u(2.0 ** OPT.get('thr', 30)))))
    att_slots(p, 31, 2, 64, False, qk=False, sm_next=False, dmak=False, dmav=False, g=g, cap=4, barrier=False, vearly=True)
    g.flush()
    sm_plain(31, 60, 64)
    p('v_max3_f32 %s, %s, %s, %s' % (t0, vr(V_L), vr(V_L + 1), vr(V_L + 2)))
    p('v_add_f32 %s, %s, %s' % (t0, t0, vr(V_L + 3)))
    p('v_cmp_nlt_f32 vcc, %s, %s' % (t0, vr(V_RN)))
    p('s_cbranch_vccnz L_slow')
    p.label('L_slow_ret')
    SPIN_BLOCKS.append(gen_slow_softmax())
    ls = [vr(V_L + qb) for qb in range(4)]
    g.lo.extend(xlane4('v_add_f32', ls, [vr(V_T + k) for k in range(4)]))
    g.lo.extend(Ins('v_rcp_f32 %s, %s' % (x, x)) for x in ls)
    n0 = g.n
    n = 0
    for t in range(4):
        for qb in range(4):
            g.lo.extend(o_epilogue_unit(qb, t, n, n0 + 16 * (t + 1) + 3))
            n += 1
    p.wait_regs(ar(A_VF, 8))
    kw = dict(qk=False, sm_cur=False, sm_next=False, vnext=False, dmak=False, dmav=False, g=g, barrier=False)
    att_slots(p, 32, 0, 33, False, **kw)
    g.hi.extend(d_bloads(2))
    att_slots(p, 32, 33, 46, False, **kw)
    p.need(('lgkm', 'all'), (DS(0), ('D', 0)))
    p('s_barrier')
    g.st.extend(d_reads(0, 0) + d_reads(0, 1))
    att_slots(p, 32, 46, 64, False, **kw)
    while g.st and g.st[0].kind == 'dsr':
        g.emit(g.st.popleft())
    assert not any(x.kind == 'dsr' for x in g.st)
    stamp(7)
    p.wait_regs(ar(A_DB, 32), vr(V_DA, 16))
    stamp(8)
    G2, GG = V_AC2, V_AC2 + 48
    xreg = lambda k, rb: 44 + (k * 2 + rb) * 2
    VO = V_T + 5

    def fin_setup():
        o = []
        o.append(Ins('v_and_b32 %s, 0x180, %s' % (vr(V_FOFF), vr(V_FOFF))))
        o.append(Ins('s_andn2_b32 %s, %s, 0x1ff' % (sr(S_FGR), sr(S_FT))))
        o.append(Ins('v_and_b32 %s, 15, %s' % (t0, L)))
        o.append(Ins('v_mul_u32_u24 %s, 1152, %s' % (t0, t0)))
        o.append(Ins('v_lshrrev_b32 %s, 4, %s' % (t1, L)))
        o.append(Ins('v_lshl_add_u32 %s, %s, 3, %s' % (vr(VO), t1, t0)))
        for k in range(3):
            for rb in range(2):
                o.append(Ins('buffer_load_dwordx2 %s, %s, %s, %s offen offset:%d' % (
                    vr(xreg(k, rb), 2), vr(VO), sr(S_DX, 4), sr(S_HS + 4 + rb + (2 if k == 2 else 0)), 128 * k)))
        return o

    def silu_g():
        o = []
        for k in range(3):
            d = GG + 8 * k
            o += d_sum(G2, k, d, V_T)
            for e in range(0, 8, 2):
                ta, tb = vr(V_T), vr(V_T + 1)
                o.append(Ins('v_mul_f32 %s, %s, %s' % (ta, sr(S_NL), vr(d + e))))
                o.append(Ins('v_mul_f32 %s, %s, %s' % (tb, sr(S_NL), vr(d + e + 1))))
                o.append(Ins('v_exp_f32 %s, %s' % (ta, ta)))
                o.append(Ins('v_exp_f32 %s, %s' % (tb, tb)))
                if OPT.get('fold', 0):
                    o.append(Ins('v_fma_f32 %s, %s, %s, %s' % (ta, ta, sr(S_C), sr(S_C))))
                    o.append(Ins('v_fma_f32 %s, %s, %s, %s' % (tb, tb, sr(S_C), sr(S_C))))
                else:
                    o.append(Ins('v_add_f32 %s, 1.0, %s' % (ta, ta)))
                    o.append(Ins('v_add_f32 %s, 1.0, %s' % (tb, tb)))
                o.append(Ins('v_rcp_f32 %s, %s' % (ta, ta)))
                o.append(Ins('v_rcp_f32 %s, %s' % (tb, tb)))
                o.append(Ins('v_mul_f32 %s, %s, %s' % (vr(d + e), vr(d + e), ta)))
                o.append(Ins('v_mul_f32 %s, %s, %s' % (vr(d + e + 1), vr(d + e + 1), tb)))
        return o

    g.vm_gap = 1
    SO = OPT.get('o_done', 2)
    LAST = NPOS - 1
    for c in range(NPOS):
        acc0 = V_AC2 if c < 9 else V_AC1
        first = c in (0, 9)
        if c == 9:
            stamp(14)
        if c in (SK0, SK1):
            g.flush()
        if c == SK0:
            p('s_bitcmp1_b32 %s, 0' % sr(S_SP))
            p('s_cbranch_scc1 L_dskip')
            p.loop_begin(1, 'opt')
        if c == SK1:
            p.loop_end()
            p.label('L_dskip')
        if OPT.get('dst'):
            p('s_memrealtime %s' % sr(S_DG, 2))
            p('s_waitcnt lgkmcnt(0)')
            p('v_writelane_b32 v1, %s, %d' % (sr(S_DG), 32 + c))
        extra_need = []
        post = []
        cap = 2
        if c <= SO:
            cap = OPT.get('cap_o', 4)
        if c == SO + 1:
            assert not g.lo and not g.st, len(g.lo)
            extra_need = [('O', 0)]
            post = [flag_store(S_FWG, 'O')]
            g.st_max = 1
            fs = fin_setup()
            g.lo.extend(fs[2:-6])
        if c == 6:
            g.hi.extend(fs[-6:])
        if TD and c in (2, 3, 4, 5, 6):
            g.hi.extend(touch_w(10 + 2 * (c - 2), S_DWO))
        if c == 6:
            g.st.append(poll_issue(S_FGR, V_FOFF=250))
        if c == 10:
            g.st.append(poll_issue(S_FGR))
        if c == 11:
            poll_check(p, 'o1', S_FGR)
        if c == 7:
            poll_check(p, 'o', S_FGR, V_FOFF=250)
            g.hi.extend(d_bloads(9, c))
            cap = 3
        if c == SK1 - 2:
            g.st.append(poll_issue(S_OFFW))
        if c == SK1 - 1:
            poll_check(p, 'o2', S_OFFW)
        if c <= 8:
            g.hi.extend((d_bloads(c + 3, c) if c != 6 else []) + d_dma(c + 3, c))
        elif 10 <= c <= LAST - 2:
            g.hi.extend(d_dma(c + 2, c) + d_bloads(c + 2, c))
        if c in (9, 10):
            for nb in (range(6) if c == 9 else range(6, 9)):
                g.lo.extend(d_pstore(1, nb))
            cap = 3
        if c == 11:
            assert not g.lo and not g.st
            extra_need = [('PT1', 0)]
            post = [flag_store(S_FT, 'PT1')]
            g.lo.extend(fs[:2])
            cap = 3
        if c == LAST - 2:
            g.st.append(poll_issue(S_FGR))
        if c == LAST - 1:
            poll_check(p, 'p2', S_FGR)
            g.hi.extend([sadd(S_FGR, 32768), sadd(S_FT, 32768)])
            g.hi.extend(d_ploads(1, G2))
        nv = sum(1 for x in g.hi if cost(x) == 2)
        if OPT.get('verbose_d'):
            print('D pos', c, 'queued vmem', nv, file=sys.stderr)
        g.vm_gap = OPT.get('vgd', 4) if c > SO else OPT.get('vgd2', 3)
        g.st_w = OPT.get('stw', 1)
        if c in (10, 11, SK1 - 1):
            g.vm_gap = 3
            cap = 3
        if c == LAST:
            g.vm_gap = 1
        for nb in range(9):
            n2 = nb + 2
            Lr = d_reads(c, n2) if n2 < 9 else (d_reads(c + 1, n2 - 9, c) if c < LAST else [])
            if c == LAST and nb >= 2:
                g.hi.extend(d_pstore(0, nb - 2))
            for t in range(8):
                rb, ks = t // 4, t % 4
                a = vr(acc0 + (nb * 2 + rb) * 4, 4)
                m = '%s %s, %s, %s, %s' % (MF, a, vr(V_DA + (nb % 3) * 16 + ks * 4, 4),
                                           ar(A_DB + (c % 4) * 32 + (rb * 4 + ks) * 4, 4),
                                           '0' if (first and ks == 0) else a)
                sc, ld = [], []
                if nb == 7:
                    if Lr and t >= 4:
                        ld = [Lr[2 * (t - 4)], Lr[2 * (t - 4) + 1]]
                    if t == 2 and c < LAST:
                        assert not any(y.kind == 'dma' and y.lds[0] == DS(c + 1) for y in g.hi), c
                        sc = [need_ins(('lgkm', 'all'), (DS(c + 1), dtag(c + 1, c)), *extra_need)]
                    if t == 3 and c < LAST:
                        sc = [Ins('s_barrier')]
                elif Lr:
                    ld = [Lr[t], Lr[t + 1]] if t % 2 == 0 else []
                if t == 7:
                    w = [vr(V_DA + ((nb + 1) % 3) * 16, 16)]
                    if nb == 8:
                        w.append(ar(A_DB + ((c + 1) % 4) * 32, 32))
                    sc = [wait_ins(*w)]
                g.gap(m, sc, ld, cap=cap)
                if nb == 7 and t == 3:
                    g.st.extend(post)
    stamp(9)
    g.hi.extend(d_pstore(0, 7) + d_pstore(0, 8))
    g.flush()
    stamp(10)
    sg = silu_g()
    if OPT.get('tagged', 0):
        addall(sg)
        stamp(11)

        def chk():
            o = [Ins('v_max3_u32 %s, %s, %s, %s' % (t0, vr(G2), vr(G2 + 1), vr(G2 + 2))),
                 Ins('v_max3_u32 %s, %s, %s, %s' % (t1, vr(G2 + 3), vr(G2 + 4), vr(G2 + 5)))]
            for k in range(6, 48, 2):
                tt_ = t0 if (k // 2) % 2 else t1
                o.append(Ins('v_max3_u32 %s, %s, %s, %s' % (tt_, tt_, vr(G2 + k), vr(G2 + k + 1))))
            o.append(Ins('v_max_u32 %s, %s, %s' % (t0, t0, t1)))
            o.append(Ins('v_cmp_eq_u32 vcc, -1, %s' % t0))
            return o
        addall(d_ploads(0, G2) + chk())
        p('s_cbranch_vccnz L_retry')
        p.label('L_retry_ok')
        SPIN_BLOCKS.append('L_retry:\n s_mov_b32 s3, 0\nL_retry_l:\n s_sleep 2\n' +
                           '\n'.join(' ' + x.text for x in d_ploads(0, G2)) +
                           '\n s_waitcnt vmcnt(0)\n s_add_u32 s3, s3, 1\n s_cmp_gt_u32 s3, 0x20000\n s_cbranch_scc1 L_retry_ok\n' +
                           '\n'.join(' ' + x.text for x in chk()) +
                           '\n s_cbranch_vccnz L_retry_l\n s_branch L_retry_ok')
        stamp(12)
    else:
        addall(sg[:len(sg) // 2])
        p.need(('PT0', 0))
        p('s_barrier')
        stamp(11)
        p.add(flag_store(S_FT, 'PT0'))
        p.add(poll_issue(S_FGR))
        addall(sg[len(sg) // 2:])
        poll_check(p, 'p1', S_FGR)
        stamp(12)
        addall(d_ploads(0, G2))
    for k in range(3):
        d = V_AC1 + 16 * k
        addall(d_sum(G2, k, d, V_T))
        for rb in range(2):
            xb = xreg(k, rb)
            for e in range(4):
                tx = vr(d + 8 + e)
                if e % 2 == 0:
                    p('v_lshlrev_b32 %s, 16, %s' % (tx, vr(xb + e // 2)))
                else:
                    p('v_and_b32 %s, 0xffff0000, %s' % (tx, vr(xb + e // 2)))
                p('v_fma_f32 %s, %s, %s, %s' % (tx, vr(d + rb * 4 + e), vr(GG + 8 * k + rb * 4 + e), tx))
            o = d + 12 + 2 * rb
            p('v_cvt_pk_bf16_f32 %s, %s, %s' % (vr(o), vr(d + 8), vr(d + 9)))
            p('v_cvt_pk_bf16_f32 %s, %s, %s' % (vr(o + 1), vr(d + 10), vr(d + 11)))
            p('buffer_store_dwordx2 %s, %s, %s, %s offen offset:%d%s' % (
                vr(o, 2), vr(VO), sr(S_DOUT, 4), sr(S_HS + 4 + rb + (2 if k == 2 else 0)), 128 * k,
                ('', ' sc1', ' nt', ' sc0 sc1')[OPT.get('outpol', 0)]))
    if diag:
        p('s_waitcnt vmcnt(0)')
        stamp(13)
        p('s_mov_b32 %s, 0x%x' % (T(3), WS_T))
        make_srd(p, S_K, P_WS, T(3), 0x100000)
        p('s_lshl_b32 %s, s2, 2' % T(0))
        p('s_add_u32 %s, %s, %s' % (T(0), T(0), sr(S_W)))
        p('s_lshl_b32 %s, %s, 8' % (T(0), T(0)))
        p('v_lshlrev_b32 v4, 2, %s' % L)
        p('buffer_store_dword v1, v4, %s, %s offen' % (sr(S_K, 4), T(0)))
    p.label('L_end')
    p('s_endpgm')
    for t in SPIN_BLOCKS:
        p.raw(t)
    p.raw('L_code_end:')
    for x in p.flat():
        if OPT.get('kv_nt', 1) and x.kind == 'dma' and ('s[4:7]' in x.text or 's[8:11]' in x.text):
            x.text = x.text.replace(' lds', ' nt lds')
        if OPT.get('w_nt') and x.kind == 'dma' and x.lds and not callable(x.lds[1]) and x.lds[1][0] in 'WQ':
            x.text = x.text.replace(' lds', ' nt lds')
        if OPT.get('st01') and x.kind == 'vst' and 'x4' in x.text:
            x.text = x.text.replace(' sc1', ' sc0 sc1')
        if OPT.get('nost') and x.kind == 'vst' and 'x4' in x.text and x.lds and (x.lds[0] == 'O' or (OPT['nost'] > 1 and x.lds[0] == 'PT1')):
            x.text = 's_nop 0'
            x.kind = 'sopp'; x.op = 's_nop'; x.ops = ['0']; x.rd = []; x.lds = None
        if FU and x.kind == 'vld' and sr(S_XN, 4) in x.text and 'sc1' not in x.text:
            x.text += ' sc1'
        if OPT.get('dplain') and x.kind in ('dma', 'vld') and 'x4' in x.text:
            x.text = x.text.replace(' sc1', '')
    p.finalize(verbose=bool(OPT.get('verbose')), check=not (OPT.get('drop') or OPT.get('nost')))
    print('total overflow slots', g.over, p.stats(), file=sys.stderr)
    return p


def build(diag=False):
    hdr = open('cdna_kernels/%s.s.ref' % NAME).read().split('; Override launch')[0]
    out = hdr
    if OPT.get('fuse', 2):
        km = gen_main(diag)
        kn = NAME + '_kernel'
        if OPT.get('aslist', 1):
            out += '; @launch kernel=%s grid=(256,1,1) block=(256,1,1) lds=163840\n' % kn
        else:
            out += '; @launch grid=(256,1,1) block=(256,1,1) lds=163840\n'
        out += '.amdgcn_target "amdgcn-amd-amdhsa--gfx950"\n.text\n'
        out += kernel_text(kn, km, 0, 0)
        out += '.section .rodata,"a"\n.p2align 6\n' + descriptor(kn, 512, 256)
        return out
    ln, km = gen_ln(), gen_main(diag)
    if not OPT.get('donly'):
        out += '; @launch kernel=ln_kernel grid=(256,1,1) block=(256,1,1) lds=0\n'
    out += '; @launch kernel=main_kernel grid=(256,1,1) block=(256,1,1) lds=163840\n'
    out += '.amdgcn_target "amdgcn-amd-amdhsa--gfx950"\n.text\n'
    out += kernel_text('ln_kernel', ln, 0, 0) + kernel_text('main_kernel', km, 0, 0)
    out += '.section .rodata,"a"\n'
    for n, nv, acc in (('ln_kernel', 64, 64), ('main_kernel', 512, 256)):
        out += '.p2align 6\n' + descriptor(n, nv, acc)
    return out


if __name__ == '__main__':
    diag = 'diag' in sys.argv[2:]
    for a in sys.argv[2:]:
        if '=' in a:
            k, v = a.split('=')
            OPT[k] = int(v)
    open(sys.argv[1], 'w').write(build(diag))
```

```python
import sys, struct
from collections import deque
from dsl import *

OPT = {}
NAME = 'recurrent_scan__mha_block_cached__glu_gated_swiglu__prompt'
WS_XN = 0
WS_F = 3 << 20
WS_O = 4 << 20
WS_H = 24 << 20
WS_P = 48 << 20
PG = 64 * 16 * 9216
WS_W = 96 << 20
WBLK = 2432 * 288
WS_T = 128 << 20
MF = 'v_mfma_f32_16x16x32_bf16'
LOG2E = 1.4426950408889634


def HS():
    return 144 * 1024 + OPT.get('pad', 1280)


def OS():
    return 128 * 1024 + OPT.get('pad', 1280)


def f2u(x):
    return struct.unpack('<I', struct.pack('<f', x))[0]


def srd_ins(srd, ptr, off, size):
    o = []
    if off is None:
        o.append(Ins('s_mov_b32 %s, %s' % (sr(srd), sr(ptr))))
        o.append(Ins('s_mov_b32 %s, %s' % (sr(srd + 1), sr(ptr + 1))))
    else:
        o.append(Ins('s_add_u32 %s, %s, %s' % (sr(srd), sr(ptr), off)))
        o.append(Ins('s_addc_u32 %s, %s, 0' % (sr(srd + 1), sr(ptr + 1))))
    o.append(Ins('s_mov_b32 %s, %s' % (sr(srd + 2), size if isinstance(size, str) else '0x%x' % size)))
    o.append(Ins('s_mov_b32 %s, 0x00020000' % sr(srd + 3)))
    return o


def make_srd(p, srd, ptr, off, size):
    for x in srd_ins(srd, ptr, off, size):
        p.add(x)


def cost(ins):
    if ins.kind == 'valu':
        return 2 if ins.trans else 1
    if ins.kind in ('dsr', 'dsw'):
        return 1
    if ins.kind in ('dma', 'vld', 'vst'):
        return 2
    return 0


class Gaps:
    def __init__(self, p):
        self.p = p
        self.hi = deque()
        self.lo = deque()
        self.n = 0
        self.over = 0
        self.waste = 0
        self.drop = ()
        self.vm_next = 0
        self.st = deque()
        self.st_max = 2
        self.st_w = 3
        self.vm_gap = 1

    def emit(self, x):
        if self.drop and x.kind in self.drop:
            return
        self.p.add(x)
        if x.on_emit:
            x.on_emit()

    def gap(self, mfma, sc=(), ld=(), va=(), cap=2):
        if mfma is not None:
            self.p.add(mfma if isinstance(mfma, Ins) else Ins(mfma))
        sc, ld, va = list(sc), list(ld), list(va)
        used = sum(cost(x) for x in ld + va)
        for q in (self.st, self.hi, self.lo):
            pulled = False
            pva = False
            while q:
                x = q[0]
                if x.ready > self.n:
                    break
                c = cost(x)
                if q is self.lo and x.kind == 'vst' and len(self.st) < self.st_max:
                    x.ready = self.n + 1
                    self.st.append(q.popleft())
                    continue
                if c == 0:
                    if sc or pulled:
                        break
                    sc.append(q.popleft())
                    if 'm0' in x.wr:
                        break
                    continue
                if used + c > cap:
                    break
                if x.kind != 'valu':
                    if pva:
                        break
                    if c == 2:
                        if self.n < self.vm_next:
                            break
                        w = (self.st_w if 'x4' in x.text else 1) if x.kind == 'vst' else (4 if 'buffer_load_dword ' in x.text and 'sc' not in x.text else 1)
                        self.vm_next = self.n + self.vm_gap * w
                    ld.append(q.popleft())
                else:
                    va.append(q.popleft())
                    pva = True
                used += c
                pulled = True
        for x in sc + ([Ins(mfma)] if isinstance(mfma, str) else []):
            self.check(x)
        self.over += max(0, used - 2)
        if used < 2 and (self.hi or self.lo):
            self.waste += 2 - used
        for x in sc + ld + va:
            self.emit(x)
        self.n += 1

    def check(self, x):
        regs = set(x.rd) if (x.text.startswith('; need') or x.kind == 'mfma') else set()
        tags = [t for t in (x.need or []) if not callable(t[1])]
        for q in (self.st, self.hi, self.lo):
            for y in q:
                if y.kind in ('vld', 'dsr') and set(y.wr) & regs and not getattr(y, 'later', False):
                    raise AssertionError('consumer %s before queued load %s' % (x.text, y.text))
                if y.lds is not None and y.lds in tags:
                    raise AssertionError('need %s before queued %s' % (tags, y.text))

    def flush(self, q=None):
        for qq in ((self.st, self.hi, self.lo) if q is None else (q,)):
            while qq:
                x = qq.popleft()
                self.over += max(1, cost(x))
                self.emit(x)


def rg(t, n=4):
    return (vr if t[0] == 'v' else ar)(t[1], n)


def prefetch_w(p, ptr, srd, soff, rows, stride, lines, rounds, vt, vd):
    t = lambda k: vr(vt + k)
    make_srd(p, srd, ptr, soff, (rows - 1) * stride + lines * 128)
    return t


def gen_ln():
    p = Prog()
    p('s_cmp_ge_u32 s2, 256')
    p('s_cbranch_scc1 L_ln_end')
    p('s_load_dwordx2 s[12:13], s[0:1], 0')
    p('s_load_dwordx2 s[14:15], s[0:1], 88')
    p('s_load_dwordx4 s[32:35], s[0:1], 48')
    p('v_lshrrev_b32 v1, 5, v0')
    p('s_lshl_b32 s3, s2, 3')
    p('v_add_u32 v1, s3, v1')
    p('v_and_b32 v2, 31, v0')
    p('v_lshrrev_b32 v3, 2, v2')
    p('v_and_b32 v4, 3, v2')
    p('v_mul_u32_u24 v5, 1152, v1')
    p('v_lshl_add_u32 v5, v3, 6, v5')
    p('v_lshl_add_u32 v5, v4, 3, v5')
    p('v_cmp_gt_u32 vcc, 8, v2')
    p('s_mov_b64 s[16:17], vcc')
    for r in range(16, 20):
        p('v_mov_b32 v%d, 0' % r)
    p('s_waitcnt lgkmcnt(0)')
    make_srd(p, 4, 12, None, 2048 * 1152)
    for it in range(2):
        p('buffer_load_dwordx2 v[%d:%d], v5, s[4:7], 0 offen offset:%d' % (8 + 4 * it, 9 + 4 * it, it * 512))
        p('buffer_load_dwordx2 v[%d:%d], v5, s[4:7], 0 offen offset:%d' % (10 + 4 * it, 11 + 4 * it, it * 512 + 32))
    p('s_mov_b64 exec, s[16:17]')
    p('buffer_load_dwordx2 v[16:17], v5, s[4:7], 0 offen offset:1024')
    p('buffer_load_dwordx2 v[18:19], v5, s[4:7], 0 offen offset:1056')
    p('s_mov_b64 exec, -1')
    R0 = OPT.get('pf0', 12)
    if R0:
        p('s_lshr_b32 s20, s2, 3')
        p('s_mul_i32 s20, s20, %d' % (R0 * 9216))
        p('s_and_b32 s21, s2, 3')
        p('s_mul_i32 s21, s21, 2304')
        p('s_add_u32 s20, s20, s21')
        make_srd(p, 36, 32, 's20', (R0 - 1) * 9216 + 2304)
        make_srd(p, 40, 34, 's20', (R0 - 1) * 9216 + 2304)
        p('v_mul_u32_u24 v56, 3641, v0')
        p('v_lshrrev_b32 v56, 16, v56')
        p('v_mul_u32_u24 v57, 18, v56')
        p('v_sub_u32 v57, v0, v57')
        p('v_mul_u32_u24 v56, 9216, v56')
        p('v_lshl_add_u32 v56, v57, 7, v56')
        if OPT.get('pfh', 1):
            p('s_bitcmp1_b32 s2, 2')
            p('s_cselect_b32 s36, s40, s36')
            p('s_cselect_b32 s37, s41, s37')
            p('buffer_load_dword v58, v56, s[36:39], 0 offen')
        else:
            p('buffer_load_dword v58, v56, s[36:39], 0 offen')
            p('buffer_load_dword v59, v56, s[40:43], 0 offen')
    if OPT.get('pfc', 1):
        p('s_getpc_b64 s[44:45]')
        p.label('L_pc')
        p('s_add_u32 s44, s44, main_kernel-L_pc')
        p('s_addc_u32 s45, s45, 0')
        p('s_lshr_b32 s46, s2, 3')
        p('s_lshl_b32 s46, s46, 12')
        p('v_and_b32 v60, 31, v0')
        p('v_lshlrev_b32 v60, 7, v60')
        p('v_add_u32 v60, s46, v60')
        p('v_min_u32 v60, L_code_end-main_kernel-4, v60')
        p('global_load_dword v61, v60, s[44:45]')
    make_srd(p, 8, 14, None, 2048 * 1152)
    p('v_lshrrev_b32 v6, 4, v1')
    p('v_mul_u32_u24 v6, 18, v6')
    p('v_add_u32 v6, v6, v3')
    p('v_lshlrev_b32 v6, 10, v6')
    p('v_lshl_add_u32 v6, v4, 8, v6')
    p('v_and_b32 v7, 15, v1')
    p('v_lshl_add_u32 v6, v7, 4, v6')
    p('s_mov_b32 s20, 0x%x' % WS_F)
    make_srd(p, 24, 14, 's20', 4 * 32768)
    p('s_lshl_b32 s21, s2, 7')
    p('v_lshlrev_b32 v50, 15, v0')
    p('v_mov_b32 v52, 0')
    p('buffer_store_dword v52, v50, s[24:27], s21 offen')
    for d in range(12):
        p('v_lshlrev_b32 v%d, 16, v%d' % (20 + 2 * d, 8 + d))
        p('v_and_b32 v%d, 0xffff0000, v%d' % (21 + 2 * d, 8 + d))

    def reduce32(x, t):
        for k in (8, 4, 2, 1):
            p('v_add_f32_dpp %s, %s, %s row_ror:%d row_mask:0xf bank_mask:0xf' % (x, x, x, k))
        p('v_mov_b32 %s, %s' % (t, x))
        p('v_permlane16_swap_b32 %s, %s' % (x, t))
        p('v_add_f32 %s, %s, %s' % (x, x, t))
    p('v_add_f32 v44, v20, v21')
    p('v_add_f32 v45, v22, v23')
    for e in range(4, 24, 2):
        p('v_add_f32 v44, v44, v%d' % (20 + e))
        p('v_add_f32 v45, v45, v%d' % (21 + e))
    p('v_add_f32 v44, v44, v45')
    reduce32('v44', 'v45')
    p('v_mul_f32 v44, 0x%x, v44' % f2u(1.0 / 576))
    p('v_mov_b32 v46, 0')
    p('v_mov_b32 v47, 0')
    for e in range(16):
        p('v_sub_f32 v48, v%d, v44' % (20 + e))
        p('v_fmac_f32 v%d, v48, v48' % (46 + e % 2))
    p('s_mov_b64 exec, s[16:17]')
    for e in range(16, 24):
        p('v_sub_f32 v48, v%d, v44' % (20 + e))
        p('v_fmac_f32 v%d, v48, v48' % (46 + e % 2))
    p('s_mov_b64 exec, -1')
    p('v_add_f32 v46, v46, v47')
    reduce32('v46', 'v45')
    p('v_mul_f32 v46, 0x%x, v46' % f2u(1.0 / 576))

    def rnd(x):
        p('v_cvt_pk_bf16_f32 %s, %s, %s' % (x, x, x))
        p('v_lshlrev_b32 %s, 16, %s' % (x, x))
    rnd('v44')
    rnd('v46')
    p('v_add_f32 v46, 0x%x, v46' % f2u(1e-5))
    rnd('v46')
    p('v_sqrt_f32 v46, v46')
    rnd('v46')
    p('v_rcp_f32 v46, v46')
    if OPT.get('fold', 0):
        p('v_mul_f32 v46, 0x%x, v46' % f2u(-LOG2E))
    for d in range(12):
        a, b = 20 + 2 * d, 21 + 2 * d
        p('v_sub_f32 v%d, v%d, v44' % (a, a))
        p('v_sub_f32 v%d, v%d, v44' % (b, b))
        p('v_cvt_pk_bf16_f32 v%d, v%d, v%d' % (8 + d, a, b))
        p('v_lshlrev_b32 v%d, 16, v%d' % (a, 8 + d))
        p('v_and_b32 v%d, 0xffff0000, v%d' % (b, 8 + d))
        p('v_mul_f32 v%d, v%d, v46' % (a, a))
        p('v_mul_f32 v%d, v%d, v46' % (b, b))
        p('v_cvt_pk_bf16_f32 v%d, v%d, v%d' % (8 + d, a, b))
    p('s_mov_b32 s18, 8192')
    p('s_mov_b32 s19, 16384')
    p('buffer_store_dwordx4 v[8:11], v6, s[8:11], 0 offen')
    p('buffer_store_dwordx4 v[12:15], v6, s[8:11], s18 offen')
    p('s_mov_b64 exec, s[16:17]')
    p('buffer_store_dwordx4 v[16:19], v6, s[8:11], s19 offen')
    p.label('L_ln_end')
    p('s_endpgm')
    p.finalize()
    return p


S_K, S_V, S_XN, S_WS, S_WQ, S_H, S_O, S_FL, S_A1, S_A2, S_A3, S_A4 = 4, 8, 12, 16, 20, 24, 28, 32, 36, 40, 44, 48
S_DW2, S_DWO, S_DH, S_DO, S_DP, S_DR, S_DX, S_DOUT = 12, 16, 20, 24, 36, 40, 44, 48
(S_W, S_MK, S_EP, S_OFFK, S_OFFV, S_CNT, S_HD, S_QT, S_M1, S_OFFW, S_OFFQ, S_C, S_NL, S_FWG, S_FGR, S_FT,
 S_RO, S_SP, S_TILE) = range(52, 71)
S_HS = 71
S_T0 = 79
S_DG = 90
P_X, P_WO, P_W2, P_OUT, P_WS = 92, 94, 96, 98, 100
T = lambda k: sr(S_T0 + k)

V_L16, V_LANE = 2, 3
V_A1 = 4
V_OW = 8
V_AQ = 8
V_OQ = 20
V_OK, V_OV = 22, 26
V_SW = 28
V_T = 34
V_KA, V_VA, V_L, V_E = 4, 8, 16, 28
V_NM, V_S, V_P, V_Q = 40, 56, 120, 184
V_FST, V_ONE, V_FOFF, V_FV = 252, 253, 254, 255
A_O, A_KF, A_VF = 0, 128, 192
A_A, A_B = 128, 160
X0 = 72
DK, DV = 4, 2
L = vr(V_LANE)
t0, t1, t2, t3 = (vr(V_T + i) for i in range(4))


def LS(n):
    return (n * 16384, 16384)


def VP(u):
    return (u + 3) % 4


DBASE = [0, 126976, 36864, 73728]


def DS(c):
    return (DBASE[c % 4], 36864)


def PS(c):
    return ((c % 4) * 36864, 36864)


def Sreg(kb, qb):
    return V_S + (kb * 4 + qb) * 4


def Preg(u, qb, ks):
    return V_P + (u & 1) * 32 + qb * 8 + ks * 4


def ktag(u, inloop):
    return (lambda it: ('K', u + 4 * it)) if inloop else ('K', u)


def vtag(u, inloop):
    return (lambda it: ('V', u + 4 * it)) if inloop else ('V', u)


def k_load(u, kb, s, inloop):
    return Ins('ds_read_b128 %s, %s offset:%d' % (ar(A_KF + kb * 16 + s * 4, 4), vr(V_KA + s), (u % 4) * 16384 + kb * 4096),
               lds=(LS(u % 4), ktag(u, inloop)))


def v_load(u, db, ks, j, inloop):
    return Ins('ds_read_b64_tr_b16 %s, %s offset:%d' % (
        ar(A_VF + db * 8 + ks * 4 + 2 * j, 2), vr(V_VA + db), VP(u) * 16384 + (32 * ks + 16 * j) * 256),
        lds=(LS(4 + VP(u)), vtag(u, inloop)))


def dma_unit(kind, u, inloop):
    out = []
    if kind == 'K':
        out.append(Ins('s_add_u32 m0, %s, %d' % (sr(S_MK), (u % 4) * 16384)))
        for cc in range(4):
            out.append(Ins('buffer_load_dwordx4 %s, %s, %s offen offset:%d lds' % (
                vr(V_OK + cc), sr(S_K, 4), sr(S_OFFK), cc * 1024), lds=(LS(u % 4), ktag(u, inloop))))
        out.append(Ins('s_add_u32 %s, %s, 16384' % (sr(S_OFFK), sr(S_OFFK))))
    else:
        out.append(Ins('s_add_u32 m0, %s, %d' % (sr(S_MK), 65536 + VP(u) * 16384)))
        for cc in range(4):
            out.append(Ins('buffer_load_dwordx4 %s, %s, %s offen offset:%d lds' % (
                vr(V_OV + cc % 2), sr(S_V, 4), sr(S_OFFV), cc * 1024), lds=(LS(4 + VP(u)), vtag(u, inloop))))
        out.append(Ins('s_add_u32 %s, %s, 16384' % (sr(S_OFFV), sr(S_OFFV))))
    return out


def sm_instrs(uu, i):
    n, r = i // 4, i % 4
    kb, qb = n // 4, n % 4
    e = vr(V_E + i % 4)
    ex = Ins('v_exp_f32 %s, %s' % (e, vr(Sreg(kb, qb) + r)))
    ad = Ins('v_add_f32 %s, %s, %s' % (vr(V_L + qb), vr(V_L + qb), e))
    cv = None
    if r % 2 == 1:
        cv = Ins('v_cvt_pk_bf16_f32 %s, %s, %s' % (
            vr(Preg(uu, qb, kb // 2) + (kb % 2) * 2 + r // 2), vr(V_E + (i - 1) % 4), e))
    return ex, ad, cv


def att_slots(p, u, ta, tb, inloop, pv=True, qk=True, sm_cur=True, sm_next=True, vnext=True, dmak=True, dmav=True,
              barrier=True, g=None, cap=2, vearly=False, extra_need=()):
    T0 = -40
    R = range(-128, 256)
    sc = {t: [] for t in R}
    ld = {t: [] for t in R}
    va = {t: [] for t in R}
    for t in range(0, 128, 2):
        if t >= X0:
            uu, i, on = u + 1, (t - X0) // 2, sm_next
        else:
            uu, i, on = u, (t + 128 - X0) // 2, sm_cur
        if on:
            ex, ad, cv = sm_instrs(uu, i)
            va[t].append(ex)
            va[t + 1].append(ad)
            if cv is not None:
                va[t + 1].append(cv)
    pos = [t for t in range(T0, T0 + 128) if t % 8 in (1, 4, 5)]
    n = 0
    m = 0
    for db in range(8):
        for ks in range(2):
            for j in range(2):
                t = pos[n]
                n += 1
                if t >= 0:
                    if pv:
                        ld[t].append(v_load(u - 1, db, ks, j, inloop))
                elif vnext:
                    if vearly:
                        ld[46 + m].append(v_load(u, db, ks, j, inloop))
                        m += 1
                    else:
                        ld[t + 128].append(v_load(u, db, ks, j, inloop))
        t = 8 * db - 1
        sc[t if t >= 0 else t + 128].append(wait_ins(ar(A_VF + db * 8, 8)))
    for kb in range(4):
        for s in range(4):
            t = pos[n]
            n += 1
            if qk:
                ld[t].append(k_load(u + 1, kb, s, inloop))
        if qk:
            sc[64 + 16 * kb - 1].append(wait_ins(ar(A_KF + kb * 16, 16)))
    for on, kind, uu, tt in ((dmav, 'V', u + DV, 2), (dmak, 'K', u + DK, 66)):
        if on:
            lst = dma_unit(kind, uu, inloop)
            sc[tt].append(lst[0])
            ds = OPT.get('dstep', 8)
            for k in range(4):
                ld[tt + ds * k + (4 if k == 0 else 0)].append(lst[1 + k])
            sc[tt + ds * 3 + 1].append(lst[5])
    if barrier:
        nd = [(LS(4 + VP(u)), vtag(u, inloop))] + list(extra_need)
        if qk:
            nd.append((LS((u + 1) % 4), ktag(u + 1, inloop)))
        sc[0].append(need_ins(*nd))
        sc[1].append(Ins('s_barrier'))
    g = g or Gaps(p)
    for t in range(ta, tb):
        mf = None
        if t < 64:
            if pv:
                db, qb, ks = t // 8, (t % 8) // 2, t % 2
                o = ar(A_O + (db * 4 + qb) * 4, 4)
                mf = '%s %s, %s, %s, %s' % (MF, o, ar(A_VF + db * 8 + ks * 4, 4), vr(Preg(u - 1, qb, ks), 4), o)
        elif qk:
            tt = t - 64
            kb, qb, s = tt // 16, (tt % 16) // 4, tt % 4
            d = vr(Sreg(kb, qb), 4)
            c = vr(V_NM + qb * 4, 4) if s == 0 else d
            mf = '%s %s, %s, %s, %s' % (MF, d, ar(A_KF + kb * 16 + s * 4, 4), vr(V_Q + (qb * 4 + s) * 4, 4), c)
        assert len(sc[t]) <= 1 and len(ld[t]) <= 1
        if mf is None and not (sc[t] or ld[t] or va[t]):
            continue
        g.gap(mf, sc[t], ld[t], va[t], cap=cap)


def kv_dma_setup():
    o = []
    a = lambda s: o.append(Ins(s))
    a('v_and_b32 %s, 15, %s' % (t0, L))
    a('v_lshrrev_b32 %s, 4, %s' % (t1, L))
    a('v_lshlrev_b32 %s, 8, %s' % (t2, t1))
    a('v_add_u32 %s, %s, %s' % (t2, sr(S_MK), t2))
    a('v_xor_b32 %s, %s, %s' % (t3, t0, t1))
    a('v_lshl_add_u32 %s, %s, 4, %s' % (vr(V_OK), t3, t2))
    for c in range(1, 4):
        a('v_xor_b32 %s, %d, %s' % (vr(V_OK + c), c * 64, vr(V_OK)))
    a('v_lshlrev_b32 %s, 1, %s' % (t3, t1))
    a('v_xor_b32 %s, %s, %s' % (t3, t0, t3))
    a('v_lshl_add_u32 %s, %s, 4, %s' % (vr(V_OV), t3, t2))
    a('v_xor_b32 %s, 128, %s' % (vr(V_OV + 1), vr(V_OV)))
    return o


def k_read_setup():
    o = []
    a = lambda s: o.append(Ins(s))
    a('v_and_b32 %s, 15, %s' % (t0, L))
    a('v_lshrrev_b32 %s, 4, %s' % (t1, L))
    a('v_xor_b32 %s, %s, %s' % (t2, t0, t1))
    a('v_lshlrev_b32 %s, 4, %s' % (t2, t2))
    a('v_lshl_add_u32 %s, %s, 8, %s' % (vr(V_KA), t0, t2))
    for s in range(1, 4):
        a('v_xor_b32 %s, %d, %s' % (vr(V_KA + s), s * 64, vr(V_KA)))
    return o


def v_read_setup():
    o = []
    a = lambda s: o.append(Ins(s))
    a('v_lshrrev_b32 %s, 2, %s' % (t2, L))
    a('v_and_b32 %s, 7, %s' % (t3, t2))
    a('v_lshlrev_b32 %s, 5, %s' % (t3, t3))
    a('v_lshl_add_u32 %s, %s, 8, %s' % (t3, t2, t3))
    a('v_and_b32 %s, 3, %s' % (t2, L))
    a('v_lshl_add_u32 %s, %s, 3, %s' % (t3, t2, t3))
    a('v_add_u32 %s, 0x10000, %s' % (vr(V_VA), t3))
    for d in range(1, 8):
        a('v_xor_b32 %s, %d, %s' % (vr(V_VA + d), d * 32, vr(V_VA)))
    return o


def xlane4(op, xs, ts):
    o = []
    for perm in ('v_permlane32_swap_b32', 'v_permlane16_swap_b32'):
        for x, t in zip(xs, ts):
            o.append(Ins('v_mov_b32 %s, %s' % (t, x)))
        for x, t in zip(xs, ts):
            o.append(Ins('%s %s, %s' % (perm, x, t)))
        for x, t in zip(xs, ts):
            o.append(Ins('%s %s, %s, %s' % (op, x, x, t)))
    return o


def div18(o, n, row, sl):
    o.append(Ins('v_mul_u32_u24 %s, 3641, %s' % (row, n)))
    o.append(Ins('v_lshrrev_b32 %s, 16, %s' % (row, row)))
    o.append(Ins('v_mul_u32_u24 %s, 18, %s' % (sl, row)))
    o.append(Ins('v_sub_u32 %s, %s, %s' % (sl, n, sl)))


def ffn_tiles():
    m, nv, na = {}, 0, 0
    for b in range(9):
        for mat in range(2):
            for qb in range(4):
                if mat == 1 and na < 18:
                    m[(2 * b + mat, qb)] = ('a', na * 4)
                    na += 1
                else:
                    m[(2 * b + mat, qb)] = ('v', 40 + nv * 4)
                    nv += 1
    assert nv == 54 and na == 18
    return m


FT = ffn_tiles()
WQ_SLOT = {8: 9, 7: 3, 6: 4, 5: 5, 4: 6, 3: 7, 2: 8, 1: 9, 0: 3}


def p1_dma(c):
    out = [Ins('s_add_u32 %s, %s, %d' % (T(8), sr(S_OFFW), c * 64 * 9216))]
    for i in range(9):
        if i % 4 == 0:
            out.append(Ins('s_add_u32 m0, %s, %d' % (sr(S_M1), PS(c)[0] + (i // 4) * 4096)))
        out.append(Ins('buffer_load_dwordx4 %s, %s, %s offen offset:%d lds' % (
            vr(V_OW + i), sr(S_WS, 4), T(8), (i % 4) * 1024), lds=(PS(c), ('W', c))))
    return out


def xn_loads(c, buf):
    base = A_B + buf * 32
    out = []
    for qb in range(4):
        out.append(Ins('s_mov_b32 %s, %d' % (T(qb), qb * 18 * 1024 + c * 2048)))
        for ks in range(2):
            out.append(Ins('buffer_load_dwordx4 %s, %s, %s, %s offen offset:%d' % (
                ar(base + (qb * 2 + ks) * 4, 4), vr(V_L16), sr(S_XN, 4), T(qb), ks * 1024)))
    return out


def wq_dma(c):
    sl = WQ_SLOT[c]
    out = []
    for cc in range(4):
        out.append(Ins('s_add_u32 %s, %s, %d' % (T(4 + cc % 2), sr(S_OFFQ), (c * 64 + cc * 4) * 8192)))
        out.append(Ins('s_add_u32 m0, %s, %d' % (sr(S_MK), sl * 16384 + cc * 1024)))
        out.append(Ins('buffer_load_dwordx4 %s, %s, %s offen lds' % (
            vr(V_OQ + cc % 2), sr(S_WQ, 4), T(4 + cc % 2)), lds=(LS(sl), ('Q', c))))
    return out


def p1_reads(c, blk, dst):
    mat, b = blk % 2, blk // 2
    return [Ins('ds_read_b64_tr_b16 %s, %s offset:%d' % (
        ar(dst + ks * 4 + 2 * j, 2), vr(V_A1 + c % 4),
        mat * 18432 + (32 * ks + 16 * j) * 288 + 32 * b), lds=(PS(c), ('W', c)))
        for ks in range(2) for j in range(2)]


def p2_reads(c, bq, dst):
    s, jj = bq // 2, bq % 2
    sl = WQ_SLOT[c]
    return [Ins('ds_read_b64_tr_b16 %s, %s offset:%d' % (
        ar(dst + ks * 4 + 2 * j, 2), vr(V_AQ + (sl // 4) * 4 + s),
        (sl % 4) * 16384 + (32 * ks + 16 * j) * 256 + 8 * jj), lds=(LS(sl), ('Q', c)))
        for ks in range(2) for j in range(2)]


def swiglu_unit(b, qb, ready, pool):
    gt, ut = FT[(2 * b, qb)], FT[(2 * b + 1, qb)]
    pk = FT[(2 * (b - b % 2), qb)][1] + (b % 2) * 2
    o = []
    ta, tb = vr(V_SW), vr(V_SW + 1)
    for r in (0, 2):
        pa, pb = vr(V_SW + 2 + r), vr(V_SW + 3 + r)
        g0, g1 = vr(gt[1] + r), vr(gt[1] + r + 1)
        if ut[0] == 'a':
            o.append(Ins('v_accvgpr_read_b32 %s, %s' % (pa, ar(ut[1] + r))))
            o.append(Ins('v_accvgpr_read_b32 %s, %s' % (pb, ar(ut[1] + r + 1))))
            u0, u1 = pa, pb
        else:
            u0, u1 = vr(ut[1] + r), vr(ut[1] + r + 1)
        if OPT.get('fold', 0):
            o.append(Ins('v_exp_f32 %s, %s' % (ta, g0)))
            o.append(Ins('v_exp_f32 %s, %s' % (tb, g1)))
        else:
            o.append(Ins('v_mul_f32 %s, %s, %s' % (ta, sr(S_NL), g0)))
            o.append(Ins('v_mul_f32 %s, %s, %s' % (tb, sr(S_NL), g1)))
            o.append(Ins('v_exp_f32 %s, %s' % (ta, ta)))
            o.append(Ins('v_exp_f32 %s, %s' % (tb, tb)))
        o.append(Ins('v_mul_f32 %s, %s, %s' % (pa, g0, u0)))
        o.append(Ins('v_mul_f32 %s, %s, %s' % (pb, g1, u1)))
        o.append(Ins('v_add_f32 %s, 1.0, %s' % (ta, ta)))
        o.append(Ins('v_add_f32 %s, 1.0, %s' % (tb, tb)))
        o.append(Ins('v_rcp_f32 %s, %s' % (ta, ta)))
        o.append(Ins('v_rcp_f32 %s, %s' % (tb, tb)))
        o.append(Ins('v_mul_f32 %s, %s, %s' % (pa, pa, ta)))
        o.append(Ins('v_mul_f32 %s, %s, %s' % (pb, pb, tb)))
    for r in (0, 2):
        o.append(Ins('v_cvt_pk_bf16_f32 %s, %s, %s' % (vr(pk + r // 2), vr(V_SW + 2 + r), vr(V_SW + 3 + r))))
    rel = [ut] + ([gt] if b % 2 == 1 else [])
    if b % 2 == 1:
        o.append(Ins('buffer_store_dwordx4 %s, %s, %s, %s offen offset:%d sc1' % (
            vr(pk - 2, 4), vr(V_L16), sr(S_H, 4), sr(S_HS + qb), (b // 2) * 1024), lds=('H', 0)))
        if OPT.get('plain_h'):
            o[-1].text = o[-1].text.replace(' sc1', '')
        rel.append(FT[(2 * (b - 1), qb)])
    elif b == 8:
        o.append(Ins('buffer_store_dwordx2 %s, %s, %s, %s offen sc1' % (
            vr(pk, 2), vr(V_L16), sr(S_H, 4), sr(S_HS + 4 + qb)), lds=('H', 0)))
        if OPT.get('plain_h'):
            o[-1].text = o[-1].text.replace(' sc1', '')
    o[0].ready = ready
    o[-1].on_emit = lambda: pool.extend(t for t in rel if not (t[0] == 'v' and t[1] >= V_Q))
    return o


def qcvt_unit(qb, s, QT, ready):
    o = []
    for h in range(2):
        tl = QT[(2 * s + h, qb)]
        tm = [vr(V_SW + e) for e in range(4)]
        for e in range(4):
            if tl[0] == 'a':
                o.append(Ins('v_accvgpr_read_b32 %s, %s' % (tm[e], ar(tl[1] + e))))
        for e in range(4):
            o.append(Ins('v_mul_f32 %s, %s, %s' % (tm[e], sr(S_C), tm[e] if tl[0] == 'a' else vr(tl[1] + e))))
        for e in range(2):
            o.append(Ins('v_cvt_pk_bf16_f32 %s, %s, %s' % (vr(V_Q + (qb * 4 + s) * 4 + 2 * h + e), tm[2 * e], tm[2 * e + 1])))
    o[0].ready = ready
    return o


class GemmSeq:
    def __init__(self, p, g):
        self.p, self.g = p, g
        self.groups = []

    def add(self, reads, nfr, mf, hook=None, bar=None, bwait=None, cap=2):
        self.groups.append(dict(reads=reads, n=nfr, mf=mf, hook=hook, bar=bar, bwait=bwait, cap=cap))

    def run(self):
        G, g, p = self.groups, self.g, self.p
        pos = 0
        for x in G:
            if x['n'] == 16 and pos % 16:
                pos += 8
            x['dst'] = A_A + pos % 32
            pos += x['n']
        for k, x in enumerate(G):
            regs = lambda y: set(range(y['dst'], y['dst'] + y['n']))
            ld = 1
            if k >= 2 and not (regs(x) & regs(G[k - 1])) and not (regs(x) & regs(G[k - 2])) and G[k - 1]['n'] == 8:
                ld = 2
            assert k == 0 or not (regs(x) & regs(G[k - 1]))
            x['at'] = k - ld
        for x in G:
            if x['at'] < 0:
                if x['bar']:
                    p.need(*x['bar'])
                    p('s_barrier')
                for i in x['reads'](x['dst']):
                    p.add(i)
        for k, x in enumerate(G):
            if x['hook']:
                x['hook']()
            todo = [y for y in G if y['at'] == k]
            rd, bar = [], []
            for y in todo:
                rd += y['reads'](y['dst'])
                if y['bar'] is not None:
                    bar += y['bar']
            hasbar = any(y['bar'] is not None for y in todo)
            mfs = x['mf'](x['dst'])
            n = len(mfs)
            st = 3 if hasbar else 0
            step = 2 if (st + 2 * ((len(rd) + 1) // 2) <= n - 1) else 1
            for t in range(n):
                sc, ld = [], []
                if hasbar and t == 1:
                    sc = [need_ins(('lgkm', 'all'), *bar)]
                if hasbar and t == 2:
                    sc = [Ins('s_barrier')]
                if t >= st and (t - st) % step == 0 and rd:
                    ld = rd[:2]
                    rd = rd[2:]
                if t == n - 1 and k + 1 < len(G):
                    y = G[k + 1]
                    bw = y['bwait']() if callable(y['bwait']) else (y['bwait'] or [])
                    w = [ar(y['dst'], y['n'])] + bw
                    sc = [wait_ins(*w)]
                g.gap(mfs[t](), sc, ld, cap=x['cap'])
                if hasbar and t == 2:
                    for y in todo:
                        if y.get('post'):
                            y['post']()
            assert not rd


V_DOWS = [22, 23, 24, 25, 26, 27, 248, 249, 250]
V_DRA = 40
V_DA = 56
V_AC2, V_AC1 = 104, 176
V_PK = 4
A_DB = 128
SPIN_BLOCKS = []


def poll_issue(soff, V_FV=V_FV, V_FOFF=V_FOFF, S_FL=S_FL):
    return Ins('buffer_load_dword %s, %s, %s, %s offen sc1' % (vr(V_FV), vr(V_FOFF), sr(S_FL, 4), sr(soff)))


def poll_check(p, name, soff, cmp='v_cmp_ne_u32 vcc, %s' % sr(S_EP), V_FV=V_FV, V_FOFF=V_FOFF, S_FL=S_FL, sleep=4):
    SPIN_BLOCKS.append("""L_spin_%(n)s:
 s_mov_b32 s3, 0
L_spin_%(n)s_l:
 s_sleep %(sl)d
 buffer_load_dword %(v)s, %(o)s, %(srd)s, %(so)s offen sc1
 s_add_u32 s3, s3, 1
 s_cmp_gt_u32 s3, 0x40000
 s_cbranch_scc1 L_ok_%(n)s
 s_waitcnt vmcnt(0)
 %(cmp)s, %(v)s
 s_cbranch_vccnz L_spin_%(n)s_l
 s_branch L_ok_%(n)s""" % dict(n=name, v=vr(V_FV), o=vr(V_FOFF), srd=sr(S_FL, 4), so=sr(soff), cmp=cmp, sl=sleep))
    p('%s, %s' % (cmp, vr(V_FV)))
    p('s_cbranch_vccnz L_spin_%s' % name)
    p.label('L_ok_%s' % name)


def flag_store(soff, tag):
    return Ins('buffer_store_dword %s, %s, %s, %s offen sc1' % (
        vr(V_ONE), vr(V_FST), sr(S_FL, 4), sr(soff)), lds=('flag', (tag, 0)))


_ct = [0]


def code_touch(label, vo, vd, sp):
    _ct[0] += 1
    n = 'L_ct%d' % _ct[0]
    blk = Ins('; raw')
    blk.rawtext = (' s_getpc_b64 %(p)s\n%(n)s:\n s_add_u32 %(lo)s, %(lo)s, %(l)s-%(n)s\n s_addc_u32 %(hi)s, %(hi)s, 0' %
                   dict(p=sr(sp, 2), n=n, lo=sr(sp), hi=sr(sp + 1), l=label))
    return [blk,
            Ins('s_lshr_b32 s3, s2, 3'),
            Ins('s_lshl_b32 s3, s3, 11'),
            Ins('v_and_b32 %s, 15, %s' % (vr(vo), L)),
            Ins('v_lshlrev_b32 %s, 7, %s' % (vr(vo), vr(vo))),
            Ins('v_add_u32 %s, s3, %s' % (vr(vo), vr(vo))),
            Ins('v_min_u32 %s, L_code_end-%s-4, %s' % (vr(vo), label, vr(vo))),
            Ins('global_load_dword %s, %s, %s' % (vr(vd), vr(vo), sr(sp, 2)))]


def sadd(r, k):
    return Ins('s_add_u32 %s, %s, %d' % (sr(r), sr(r), k))


SK0, SK1, NPOS = 12, 16, 19
S_ADJW, S_ADJB = S_OFFK, S_OFFV


def dtag(c, at):
    if at < SK0 <= c:
        return lambda it: ('D', c + 4 if MODE[0] else c)
    return ('D', c)


def d_dma(c, at=0):
    out = []
    for i in range(9):
        if i % 4 == 0:
            if at >= SK1:
                out.append(Ins('s_add_u32 %s, %s, %d' % (T(8), sr(S_ADJW), c * 36864 + (i // 4) * 4096)))
            else:
                out.append(Ins('s_mov_b32 %s, %d' % (T(8), c * 36864 + (i // 4) * 4096)))
            out.append(Ins('s_add_u32 m0, %s, %d' % (sr(S_M1), DS(c)[0] + (i // 4) * 4096)))
        out.append(Ins('buffer_load_dwordx4 %s, %s, %s offen offset:%d sc1 lds' % (
            vr(V_L16), sr(S_DW2, 4), T(8), (i % 4) * 1024), lds=(DS(c), dtag(c, at))))
    return out


def d_bloads(c, at=0):
    srd, loc, rbs = (S_DH, c, HS()) if c < 9 else (S_DO, c - 9, OS())
    out = []
    for rb in range(2):
        if at >= SK1:
            out.append(Ins('s_add_u32 %s, %s, %d' % (T(9 + rb), sr(S_ADJB), loc * 4096 + rb * rbs)))
        else:
            out.append(Ins('s_mov_b32 %s, %d' % (T(9 + rb), loc * 4096 + rb * rbs)))
        for ks in range(4):
            out.append(Ins('buffer_load_dwordx4 %s, %s, %s, %s offen offset:%d sc1' % (
                ar(A_DB + (c % 4) * 32 + (rb * 4 + ks) * 4, 4), vr(V_L16), sr(srd, 4), T(9 + rb), ks * 1024)))
    return out


def d_reads(c, nb, at=None):
    return [Ins('ds_read_b64_tr_b16 %s, %s offset:%d' % (
        vr(V_DA + (nb % 3) * 16 + ks * 4 + 2 * j, 2), vr(V_DRA + c % 4), (32 * ks + 16 * j) * 288 + 32 * nb),
        lds=(DS(c), dtag(c, c if at is None else at))) for ks in range(4) for j in range(2)]


def d_pstore(gemm, nb):
    acc = (V_AC2 if gemm else V_AC1) + nb * 8
    pk = V_PK + (nb % 3) * 4
    out = []
    if nb % 4 == 0:
        out.append(Ins('s_mov_b32 %s, %d' % (T(nb // 4), gemm * PG + (nb // 4) * 4096)))
    for e in range(4):
        out.append(Ins('v_cvt_pk_bf16_f32 %s, %s, %s' % (vr(pk + e), vr(acc + 2 * e), vr(acc + 2 * e + 1))))
    out.append(Ins('buffer_store_dwordx4 %s, %s, %s, %s offen offset:%d sc1' % (
        vr(pk, 4), vr(V_L16), sr(S_DP, 4), T(nb // 4), (nb % 4) * 1024), lds=('PT%d' % gemm, 0)))
    return out


def d_ploads(gemm, base):
    out = []
    for k in range(3):
        for sp in range(4):
            t = T(4 + (k * 4 + sp) % 2)
            if k < 2:
                out.append(Ins('s_mov_b32 %s, %d' % (t, gemm * PG + sp * 4 * 9216 + k * 4096)))
            else:
                out.append(Ins('s_add_u32 %s, %s, %d' % (t, sr(S_OFFQ), gemm * PG + sp * 4 * 9216 + k * 4096)))
            out.append(Ins('buffer_load_dwordx4 %s, %s, %s, %s offen sc1' % (
                vr(base + (k * 4 + sp) * 4, 4), vr(V_L16), sr(S_DR, 4), t)))
    return out


def d_sum(base, k, dst, tmp):
    out = []
    for e in range(4):
        for sp in range(4):
            src = vr(base + (k * 4 + sp) * 4 + e)
            lo = vr(dst + 2 * e) if sp == 0 else vr(tmp)
            hi = vr(dst + 2 * e + 1) if sp == 0 else vr(tmp + 1)
            out.append(Ins('v_lshlrev_b32 %s, 16, %s' % (lo, src)))
            out.append(Ins('v_and_b32 %s, 0xffff0000, %s' % (hi, src)))
            if sp:
                out.append(Ins('v_add_f32 %s, %s, %s' % (vr(dst + 2 * e), vr(dst + 2 * e), lo)))
                out.append(Ins('v_add_f32 %s, %s, %s' % (vr(dst + 2 * e + 1), vr(dst + 2 * e + 1), hi)))
    return out


def d_scalar_setup1():
    o = []
    a = lambda s: o.append(Ins(s))
    a('s_mul_i32 %s, %s, 288' % (T(1), sr(S_W)))
    a('s_lshl_b32 %s, %s, 6' % (T(0), sr(S_SP)))
    a('s_add_u32 %s, %s, %s' % (T(0), T(0), sr(S_TILE)))
    a('s_mul_i32 %s, %s, %d' % (T(2), T(0), 18 * 1152))
    a('s_add_u32 %s, %s, %s' % (T(2), T(2), T(1)))
    o += srd_ins(S_A1, P_W2, T(2), 17 * 1152 + 288)
    a('s_and_b32 %s, %s, 1' % (T(7), sr(S_SP)))
    a('s_lshl_b32 %s, %s, 3' % (T(6), sr(S_SP)))
    a('s_lshl_b32 %s, %s, 1' % (T(3), T(7)))
    a('s_add_u32 %s, %s, %s' % (T(6), T(6), T(3)))
    a('s_lshl_b32 %s, %s, 3' % (T(7), T(7)))
    a('s_sub_u32 %s, 20, %s' % (T(7), T(7)))
    a('s_mul_i32 %s, %s, %s' % (T(9), T(7), sr(S_TILE)))
    a('s_lshl_b32 %s, %s, 7' % (T(2), T(6)))
    a('s_add_u32 %s, %s, %s' % (T(2), T(2), T(9)))
    a('s_mul_i32 %s, %s, 1152' % (T(2), T(2)))
    a('s_add_u32 %s, %s, %s' % (T(2), T(2), T(1)))
    a('s_mul_i32 %s, %s, 1152' % (T(3), T(7)))
    a('s_sub_u32 %s, %s, 864' % (T(3), T(3)))
    o += srd_ins(S_A2, P_WO, T(2), T(3))
    a('s_lshl_b32 %s, %s, 2' % (T(0), sr(S_SP)))
    a('s_add_u32 %s, %s, %s' % (T(1), T(0), sr(S_W)))
    a('s_mul_i32 %s, %s, %d' % (T(1), T(1), WBLK))
    a('s_add_u32 %s, %s, 0x%x' % (T(1), T(1), WS_W))
    a('s_mul_i32 %s, %s, %d' % (T(2), sr(S_TILE), 18 * 288))
    a('s_add_u32 %s, %s, %s' % (T(2), T(2), T(1)))
    o += srd_ins(S_A3, P_WS, T(2), 18 * 288)
    a('s_mul_i32 %s, %s, 288' % (T(2), T(9)))
    a('s_add_u32 %s, %s, %s' % (T(2), T(2), T(1)))
    a('s_add_u32 %s, %s, %d' % (T(2), T(2), 1152 * 288))
    a('s_mul_i32 %s, %s, 288' % (T(3), T(7)))
    o += srd_ins(S_A4, P_WS, T(2), T(3))
    a('s_mov_b32 %s, 0' % sr(S_RO))
    a('s_and_b32 %s, s2, 3' % sr(S_SP))
    a('s_and_b32 %s, s2, 4' % T(0))
    a('s_lshr_b32 %s, s2, 6' % T(1))
    a('s_add_u32 %s, %s, %s' % (T(0), T(0), T(1)))
    a('s_lshl_b32 %s, %s, 3' % (T(0), T(0)))
    a('s_bfe_u32 %s, s2, 0x30003' % T(1))
    a('s_add_u32 %s, %s, %s' % (sr(S_TILE), T(0), T(1)))
    a('s_lshl_b32 %s, %s, 13' % (sr(S_FGR), sr(S_SP)))
    a('s_and_b32 %s, %s, 1' % (T(3), sr(S_SP)))
    a('s_lshl_b32 %s, %s, 1' % (T(3), T(3)))
    a('s_lshl_b32 %s, %s, 3' % (T(6), sr(S_SP)))
    a('s_add_u32 %s, %s, %s' % (T(6), T(6), T(3)))
    a('s_lshl_b32 %s, %s, 2' % (T(0), sr(S_SP)))
    a('s_and_b32 %s, %s, 3' % (T(1), sr(S_TILE)))
    a('s_add_u32 %s, %s, %s' % (T(1), T(0), T(1)))
    a('s_mul_i32 %s, %s, %d' % (T(1), T(1), WBLK))
    a('s_add_u32 %s, %s, %s' % (T(1), T(1), sr(S_M1)))
    a('s_add_u32 %s, %s, 0x%x' % (T(1), T(1), WS_W))
    o += srd_ins(S_DW2, P_WS, T(1), 18 * 36864 + 9216)
    a('s_lshr_b32 %s, %s, 2' % (T(4), sr(S_TILE)))
    a('s_lshl_b32 %s, %s, 2' % (T(5), T(4)))
    a('s_add_u32 %s, %s, %s' % (T(5), T(5), sr(S_W)))
    a('s_mul_i32 %s, %s, %d' % (T(2), T(5), 2 * HS()))
    a('s_mul_i32 %s, %s, %d' % (T(3), sr(S_SP), 36 * 1024))
    a('s_add_u32 %s, %s, %s' % (T(2), T(2), T(3)))
    a('s_add_u32 %s, %s, 0x%x' % (T(2), T(2), WS_H))
    o += srd_ins(S_DH, P_WS, T(2), HS() + 36 * 1024)
    a('s_mul_i32 %s, %s, %d' % (T(2), T(5), 2 * OS()))
    a('s_lshl_b32 %s, %s, 12' % (T(3), T(6)))
    a('s_add_u32 %s, %s, %s' % (T(2), T(2), T(3)))
    a('s_add_u32 %s, %s, 0x%x' % (T(2), T(2), WS_O))
    o += srd_ins(S_DO, P_WS, T(2), OS() + 40 * 1024)
    return o


def d_scalar_setup2():
    o = []
    a = lambda s: o.append(Ins(s))
    a('s_lshl_b32 %s, %s, 2' % (T(2), sr(S_TILE)))
    a('s_add_u32 %s, %s, %s' % (T(2), T(2), sr(S_SP)))
    a('s_lshl_b32 %s, %s, 7' % (sr(S_FT), T(2)))
    a('s_add_u32 %s, %s, 0x10000' % (sr(S_FT), sr(S_FT)))
    a('s_lshl_b32 %s, %s, 2' % (T(2), T(2)))
    a('s_add_u32 %s, %s, %s' % (T(2), T(2), sr(S_W)))
    a('s_mul_i32 %s, %s, 9216' % (T(2), T(2)))
    a('s_add_u32 %s, %s, 0x%x' % (T(2), T(2), WS_P))
    o += srd_ins(S_DP, P_WS, T(2), PG + 9216)
    a('s_lshl_b32 %s, %s, 4' % (T(2), sr(S_TILE)))
    a('s_add_u32 %s, %s, %s' % (T(2), T(2), sr(S_SP)))
    a('s_mul_i32 %s, %s, 9216' % (T(2), T(2)))
    a('s_lshl_b32 %s, %s, 10' % (T(3), sr(S_W)))
    a('s_add_u32 %s, %s, %s' % (T(2), T(2), T(3)))
    a('s_add_u32 %s, %s, 0x%x' % (T(2), T(2), WS_P))
    o += srd_ins(S_DR, P_WS, T(2), PG + 14 * 9216)
    a('s_and_b32 %s, %s, 3' % (T(1), sr(S_TILE)))
    a('s_mul_i32 %s, %s, 288' % (T(1), T(1)))
    a('s_andn2_b32 %s, %s, 3' % (T(2), sr(S_TILE)))
    a('s_add_u32 %s, %s, %s' % (T(2), T(2), sr(S_SP)))
    a('s_mul_i32 %s, %s, %d' % (T(2), T(2), 32 * 1152))
    a('s_add_u32 %s, %s, %s' % (T(2), T(2), T(1)))
    o += srd_ins(S_DX, P_X, T(2), 31 * 1152 + 288)
    o += srd_ins(S_DOUT, P_OUT, T(2), 31 * 1152 + 288)
    a('s_lshl_b32 %s, %s, 28' % (sr(S_OFFQ), sr(S_W)))
    a('s_mov_b32 %s, 0x%x' % (sr(S_C), f2u(LOG2E * LOG2E)))
    a('s_mul_i32 %s, %s, %d' % (sr(S_HS), sr(S_W), 4 * OS()))
    for qb in range(1, 4):
        a('s_add_u32 %s, %s, 0x%x' % (sr(S_HS + qb), sr(S_HS), qb * OS()))
    a('s_lshl_b32 %s, %s, 5' % (sr(S_HS + 4), sr(S_W)))
    a('s_add_u32 %s, %s, %d' % (sr(S_HS + 5), sr(S_HS + 4), 16 * 1152))
    a('s_lshl_b32 %s, %s, 20' % (sr(S_HS + 6), sr(S_W)))
    a('s_add_u32 %s, %s, %d' % (sr(S_HS + 7), sr(S_HS + 6), 16 * 1152))
    return o


V_RN, V_RV = 20, 21
V_RQ = (248, 36)


def repack_pat():
    return [Ins('v_mul_u32_u24 %s, 3641, %s' % (vr(V_RV), vr(V_RN))),
            Ins('v_lshrrev_b32 %s, 16, %s' % (vr(V_RV), vr(V_RV))),
            Ins('v_mul_u32_u24 %s, 864, %s' % (vr(V_RV), vr(V_RV))),
            Ins('v_lshl_add_u32 %s, %s, 4, %s' % (vr(V_RV), vr(V_RN), vr(V_RV))),
            Ins('v_add_u32 %s, 64, %s' % (vr(V_RN), vr(V_RN)))]


def o_epilogue_unit(qb, t, n, ready):
    base = 184 + (n % 4) * 12
    o = []
    for r in range(8):
        o.append(Ins('v_accvgpr_read_b32 %s, %s' % (vr(base + r), ar(A_O + ((2 * t + r // 4) * 4 + qb) * 4 + r % 4))))
    for r in range(8):
        o.append(Ins('v_mul_f32 %s, %s, %s' % (vr(base + r), vr(base + r), vr(V_L + qb))))
    for r in range(4):
        o.append(Ins('v_cvt_pk_bf16_f32 %s, %s, %s' % (vr(base + 8 + r), vr(base + 2 * r), vr(base + 2 * r + 1))))
    o.append(Ins('buffer_store_dwordx4 %s, %s, %s, %s offen offset:%d%s' % (
        vr(base + 8, 4), vr(V_L16), sr(S_O, 4), sr(S_HS + qb), t * 1024, '' if OPT.get('plain_o', 0) else ' sc1'), lds=('O', 0)))
    o[0].ready = ready
    return o


def ln_parts(B=64):
    v = lambda k, n=1: vr(B + k, n)
    A, Ld, C, St = [], [], [], []
    a = lambda t: A.append(Ins(t))
    a('s_lshl_b32 s3, %s, 5' % sr(S_QT))
    a('s_add_u32 s3, s3, %s' % sr(S_HD))
    a('s_lshl_b32 s3, s3, 3')
    a('v_lshrrev_b32 %s, 5, v0' % v(1))
    a('v_add_u32 %s, s3, %s' % (v(1), v(1)))
    a('v_and_b32 %s, 31, v0' % v(2))
    a('v_lshrrev_b32 %s, 2, %s' % (v(3), v(2)))
    a('v_and_b32 %s, 3, %s' % (v(4), v(2)))
    a('v_mul_u32_u24 %s, 1152, %s' % (v(5), v(1)))
    a('v_lshl_add_u32 %s, %s, 6, %s' % (v(5), v(3), v(5)))
    a('v_lshl_add_u32 %s, %s, 3, %s' % (v(5), v(4), v(5)))
    for r in range(16, 20):
        a('v_mov_b32 %s, 0' % v(r))
    msk = lambda: [Ins('v_cmp_gt_u32 vcc, 8, %s' % v(2)), Ins('s_mov_b64 exec, vcc')]
    Ld += srd_ins(S_O, P_X, None, 2048 * 1152)
    for it in range(3):
        if it == 2:
            Ld += msk()
        Ld.append(Ins('buffer_load_dwordx2 %s, %s, %s, 0 offen offset:%d' % (v(8 + 4 * it, 2), v(5), sr(S_O, 4), it * 512)))
        Ld.append(Ins('buffer_load_dwordx2 %s, %s, %s, 0 offen offset:%d' % (v(10 + 4 * it, 2), v(5), sr(S_O, 4), it * 512 + 32)))
    Ld.append(Ins('s_mov_b64 exec, -1'))
    c = lambda t: C.append(Ins(t))
    c('v_lshrrev_b32 %s, 4, %s' % (v(6), v(1)))
    c('v_mul_u32_u24 %s, 18, %s' % (v(6), v(6)))
    c('v_add_u32 %s, %s, %s' % (v(6), v(6), v(3)))
    c('v_lshlrev_b32 %s, 10, %s' % (v(6), v(6)))
    c('v_lshl_add_u32 %s, %s, 8, %s' % (v(6), v(4), v(6)))
    c('v_and_b32 %s, 15, %s' % (v(7), v(1)))
    c('v_lshl_add_u32 %s, %s, 4, %s' % (v(6), v(7), v(6)))
    for d in range(12):
        c('v_lshlrev_b32 %s, 16, %s' % (v(20 + 2 * d), v(8 + d)))
        c('v_and_b32 %s, 0xffff0000, %s' % (v(21 + 2 * d), v(8 + d)))

    def reduce32(x, t):
        for k in (8, 4, 2, 1):
            c('v_add_f32_dpp %s, %s, %s row_ror:%d row_mask:0xf bank_mask:0xf' % (x, x, x, k))
        c('v_mov_b32 %s, %s' % (t, x))
        c('v_permlane16_swap_b32 %s, %s' % (x, t))
        c('v_add_f32 %s, %s, %s' % (x, x, t))
    c('v_add_f32 %s, %s, %s' % (v(44), v(20), v(21)))
    c('v_add_f32 %s, %s, %s' % (v(45), v(22), v(23)))
    for e in range(4, 24, 2):
        c('v_add_f32 %s, %s, %s' % (v(44), v(44), v(20 + e)))
        c('v_add_f32 %s, %s, %s' % (v(45), v(45), v(21 + e)))
    c('v_add_f32 %s, %s, %s' % (v(44), v(44), v(45)))
    reduce32(v(44), v(45))
    c('v_mul_f32 %s, 0x%x, %s' % (v(44), f2u(1.0 / 576), v(44)))
    c('v_mov_b32 %s, 0' % v(46))
    c('v_mov_b32 %s, 0' % v(47))
    for e in range(24):
        if e == 16:
            C += msk()
        c('v_sub_f32 %s, %s, %s' % (v(48), v(20 + e), v(44)))
        c('v_fmac_f32 %s, %s, %s' % (v(46 + e % 2), v(48), v(48)))
    c('s_mov_b64 exec, -1')
    c('v_add_f32 %s, %s, %s' % (v(46), v(46), v(47)))
    reduce32(v(46), v(45))
    c('v_mul_f32 %s, 0x%x, %s' % (v(46), f2u(1.0 / 576), v(46)))

    def rnd(x):
        c('v_cvt_pk_bf16_f32 %s, %s, %s' % (x, x, x))
        c('v_lshlrev_b32 %s, 16, %s' % (x, x))
    rnd(v(44))
    rnd(v(46))
    c('v_add_f32 %s, 0x%x, %s' % (v(46), f2u(1e-5), v(46)))
    rnd(v(46))
    c('v_sqrt_f32 %s, %s' % (v(46), v(46)))
    rnd(v(46))
    c('v_rcp_f32 %s, %s' % (v(46), v(46)))
    if OPT.get('fold', 0):
        c('v_mul_f32 %s, 0x%x, %s' % (v(46), f2u(-LOG2E), v(46)))
    C += srd_ins(S_XN, P_WS, None, 2048 * 1152)
    c('s_mov_b32 %s, 8192' % T(0))
    c('s_mov_b32 %s, 16384' % T(1))
    for d in range(12):
        x, y = v(20 + 2 * d), v(21 + 2 * d)
        c('v_sub_f32 %s, %s, %s' % (x, x, v(44)))
        c('v_sub_f32 %s, %s, %s' % (y, y, v(44)))
        c('v_cvt_pk_bf16_f32 %s, %s, %s' % (v(8 + d), x, y))
        c('v_lshlrev_b32 %s, 16, %s' % (x, v(8 + d)))
        c('v_and_b32 %s, 0xffff0000, %s' % (y, v(8 + d)))
        c('v_mul_f32 %s, %s, %s' % (x, x, v(46)))
        c('v_mul_f32 %s, %s, %s' % (y, y, v(46)))
        c('v_cvt_pk_bf16_f32 %s, %s, %s' % (v(8 + d), x, y))
        if d % 4 == 3:
            if d == 11:
                C += msk()
            C.append(Ins('buffer_store_dwordx4 %s, %s, %s, %s offen sc1' % (
                v(5 + d, 4), v(6), sr(S_XN, 4), ('0', T(0), T(1))[d // 4]), lds=('XN', 0)))
    c('s_mov_b64 exec, -1')
    return A, Ld, C


def gen_start_roles(diag):
    B = 64
    v = lambda k, n=1: vr(B + k, n)
    p = Prog()
    p('s_cmp_ge_u32 %s, 2' % sr(S_W))
    p('s_cbranch_scc1 L_role_b')
    p('s_lshl_b32 s3, %s, 5' % sr(S_QT))
    p('s_add_u32 s3, s3, %s' % sr(S_HD))
    p('s_lshl_b32 %s, s3, 3' % T(0))
    p('v_lshrrev_b32 %s, 4, v0' % v(1))
    p('v_add_u32 %s, %s, %s' % (v(1), T(0), v(1)))
    p('v_and_b32 %s, 15, v0' % v(2))
    p('v_lshrrev_b32 %s, 2, %s' % (v(3), v(2)))
    p('v_and_b32 %s, 3, %s' % (v(4), v(2)))
    p('v_mul_u32_u24 %s, 1152, %s' % (v(5), v(1)))
    p('v_lshl_add_u32 %s, %s, 6, %s' % (v(5), v(3), v(5)))
    p('v_lshl_add_u32 %s, %s, 3, %s' % (v(5), v(4), v(5)))
    for r in range(24, 28):
        p('v_mov_b32 %s, 0' % v(r))
    p('v_cmp_gt_u32 vcc, 8, %s' % v(2))
    p('v_or_b32 %s, s2, v0' % v(80))
    p('v_min_u32 %s, 1, %s' % (v(80), v(80)))
    p('v_lshlrev_b32 %s, 20, %s' % (v(80), v(80)))
    p('s_mov_b64 s[26:27], vcc')
    p('s_waitcnt lgkmcnt(0)')
    make_srd(p, S_O, P_X, None, 2048 * 1152)
    for it in range(5):
        if it == 4:
            p('s_mov_b64 exec, s[26:27]')
        p('buffer_load_dwordx2 %s, %s, %s, 0 offen offset:%d' % (v(8 + 4 * it, 2), v(5), sr(S_O, 4), it * 256))
        p('buffer_load_dwordx2 %s, %s, %s, 0 offen offset:%d' % (v(10 + 4 * it, 2), v(5), sr(S_O, 4), it * 256 + 32))
    p('s_mov_b64 exec, -1')
    make_srd(p, S_WQ, 50, None, 256)
    p('s_or_b32 %s, s24, 1' % T(1))
    p('v_mov_b32 %s, %s' % (v(81), T(1)))
    p('buffer_store_dword %s, %s, %s, 0 offen sc1' % (v(81), v(80), sr(S_WQ, 4)))
    p('v_lshrrev_b32 %s, 4, %s' % (v(6), v(1)))
    p('v_mul_u32_u24 %s, 18, %s' % (v(6), v(6)))
    p('v_add_u32 %s, %s, %s' % (v(6), v(6), v(3)))
    p('v_lshlrev_b32 %s, 10, %s' % (v(6), v(6)))
    p('v_lshl_add_u32 %s, %s, 8, %s' % (v(6), v(4), v(6)))
    p('v_and_b32 %s, 15, %s' % (v(7), v(1)))
    p('v_lshl_add_u32 %s, %s, 4, %s' % (v(6), v(7), v(6)))
    make_srd(p, S_XN, P_WS, None, 2048 * 1152)
    p('s_mov_b32 %s, 0x%x' % (T(3), WS_F + 4 * 32768))
    make_srd(p, S_FL, P_WS, T(3), 65536)
    p('s_lshl_b32 %s, %s, 13' % (T(2), sr(S_QT)))
    p('s_lshl_b32 %s, s3, 1' % T(3))
    p('s_add_u32 %s, %s, %s' % (T(3), T(3), sr(S_W)))
    p('s_lshl_b32 %s, %s, 7' % (T(3), T(3)))
    p('v_lshlrev_b32 %s, 20, %s' % (v(82), L))
    p('v_lshlrev_b32 %s, 7, %s' % (v(83), L))
    p('v_mov_b32 %s, 0' % v(84))
    for k in range(1, 5):
        p('s_mov_b32 %s, %d' % (T(3 + k), 4096 * k))
    F = 30
    for d in range(20):
        p('v_lshlrev_b32 %s, 16, %s' % (v(F + 2 * d), v(8 + d)))
        p('v_and_b32 %s, 0xffff0000, %s' % (v(F + 1 + 2 * d), v(8 + d)))
    p('buffer_load_dword %s, %s, %s, 0 offen sc1' % (v(85), v(84), sr(S_WQ, 4)))
    m, m2, q, q2, t = v(70), v(71), v(72), v(73), v(74)

    def reduce16(x):
        for k in (8, 4, 2, 1):
            p('v_add_f32_dpp %s, %s, %s row_ror:%d row_mask:0xf bank_mask:0xf' % (x, x, x, k))
    p('v_add_f32 %s, %s, %s' % (m, v(F), v(F + 1)))
    p('v_add_f32 %s, %s, %s' % (m2, v(F + 2), v(F + 3)))
    for e in range(4, 40, 2):
        p('v_add_f32 %s, %s, %s' % (m, m, v(F + e)))
        p('v_add_f32 %s, %s, %s' % (m2, m2, v(F + e + 1)))
    p('v_add_f32 %s, %s, %s' % (m, m, m2))
    reduce16(m)
    p('v_mul_f32 %s, 0x%x, %s' % (m, f2u(1.0 / 576), m))
    p('v_mov_b32 %s, 0' % q)
    p('v_mov_b32 %s, 0' % q2)
    for e in range(40):
        if e == 32:
            p('s_mov_b64 exec, s[26:27]')
        p('v_sub_f32 %s, %s, %s' % (t, v(F + e), m))
        p('v_fmac_f32 %s, %s, %s' % ((q, q2)[e % 2], t, t))
    p('s_mov_b64 exec, -1')
    p('v_add_f32 %s, %s, %s' % (q, q, q2))
    reduce16(q)
    p('v_mul_f32 %s, 0x%x, %s' % (q, f2u(1.0 / 576), q))

    def rnd(x):
        p('v_cvt_pk_bf16_f32 %s, %s, %s' % (x, x, x))
        p('v_lshlrev_b32 %s, 16, %s' % (x, x))
    rnd(m)
    rnd(q)
    p('v_add_f32 %s, 0x%x, %s' % (q, f2u(1e-5), q))
    rnd(q)
    p('v_sqrt_f32 %s, %s' % (q, q))
    rnd(q)
    p('v_rcp_f32 %s, %s' % (q, q))
    for d in range(20):
        x, y = v(F + 2 * d), v(F + 1 + 2 * d)
        p('v_sub_f32 %s, %s, %s' % (x, x, m))
        p('v_sub_f32 %s, %s, %s' % (y, y, m))
        p('v_cvt_pk_bf16_f32 %s, %s, %s' % (v(8 + d), x, y))
        p('v_lshlrev_b32 %s, 16, %s' % (x, v(8 + d)))
        p('v_and_b32 %s, 0xffff0000, %s' % (y, v(8 + d)))
        p('v_mul_f32 %s, %s, %s' % (x, x, q))
        p('v_mul_f32 %s, %s, %s' % (y, y, q))
        p('v_cvt_pk_bf16_f32 %s, %s, %s' % (v(8 + d), x, y))
        if d % 4 == 3:
            if d == 19:
                p('s_mov_b64 exec, s[26:27]')
            p('buffer_store_dwordx4 %s, %s, %s, %s offen sc1' % (v(5 + d, 4), v(6), sr(S_XN, 4), '0' if d == 3 else T(3 + d // 4)))
    p('s_mov_b64 exec, -1')
    p('s_mov_b32 s3, 0')
    p.label('L_ep_l')
    p('s_memrealtime s[24:25]')
    p('s_waitcnt vmcnt(0) lgkmcnt(0)')
    p('v_readfirstlane_b32 %s, %s' % (T(0), v(85)))
    p('s_add_u32 %s, s24, 100' % T(1))
    p('s_sub_u32 %s, %s, %s' % (T(1), T(1), T(0)))
    p('s_bitcmp0_b32 %s, 0' % T(0))
    p('s_cselect_b32 %s, -1, %s' % (T(1), T(1)))
    p('s_cmp_lt_u32 %s, 5100' % T(1))
    p('s_cbranch_scc1 L_ep_ok')
    p('s_and_b32 %s, %s, 1' % (T(0), T(0)))
    p('s_mul_i32 %s, %s, 127' % (T(0), T(0)))
    p('s_add_u32 s3, s3, %s' % T(0))
    p('s_add_u32 s3, s3, 1')
    p('s_cmp_gt_u32 s3, 0x40000')
    p('s_cbranch_scc1 L_ep_ok')
    p('buffer_load_dword %s, %s, %s, 0 offen sc1' % (v(85), v(84), sr(S_WQ, 4)))
    p('s_branch L_ep_l')
    p.label('L_ep_ok')
    p('buffer_store_dword %s, %s, %s, %s offen sc1' % (v(85), v(82), sr(S_FL, 4), T(3)))
    p('v_mov_b32 %s, 163836' % v(84))
    p('ds_write_b32 %s, %s' % (v(84), v(85)))
    p('s_mov_b32 %s, %s' % (sr(S_CNT), T(2)))
    p('s_branch L_join')
    SPIN_BLOCKS.append("""L_lnp:
 s_mov_b32 s3, 0
L_lnp_l:
 buffer_load_dword %s, %s, %s, %s offen sc1
 s_add_u32 s3, s3, 1
 s_cmp_gt_u32 s3, 0x40000
 s_cbranch_scc1 L_lnp_ok
 s_waitcnt vmcnt(0)
 v_cmp_ne_u32 vcc, %s, %s
 s_cbranch_vccnz L_lnp_l
 s_branch L_lnp_ok""" % (v(86), v(83), sr(S_FL, 4), sr(S_CNT), v(85), v(86)))
    p.label('L_role_b')
    ct = code_touch('L_join', B + 90, B + 91, S_O)
    ct[2] = Ins('s_lshl_b32 s3, s3, 12')
    ct[3] = Ins('v_and_b32 %s, 31, %s' % (v(90), L))
    for x in ct:
        p.add(x)
    R0 = OPT.get('pf0', 12)
    p('s_lshr_b32 %s, s2, 3' % T(0))
    p('s_mul_i32 %s, %s, %d' % (T(0), T(0), R0 * 9216))
    if OPT.get('map', 1):
        p('s_and_b32 %s, s2, 7' % T(1))
        p('s_mul_i32 %s, %s, 1152' % (T(1), T(1)))
        p('s_add_u32 %s, %s, %s' % (T(0), T(0), T(1)))
        p('s_waitcnt lgkmcnt(0)')
        p('s_cmp_eq_u32 %s, 3' % sr(S_W))
        p('s_cselect_b32 %s, s46, s44' % sr(S_H))
        p('s_cselect_b32 %s, s47, s45' % sr(S_H + 1))
        make_srd(p, S_H, S_H, T(0), (R0 - 1) * 9216 + 1152)
        for k in range((R0 * 9 + 63) // 64):
            p('v_add_u32 %s, %d, %s' % (v(92), 64 * k, L))
            p('v_mul_u32_u24 %s, 7282, %s' % (v(93), v(92)))
            p('v_lshrrev_b32 %s, 16, %s' % (v(93), v(93)))
            p('v_mul_u32_u24 %s, %d, %s' % (v(93), 9216 - 1152, v(93)))
            p('v_lshl_add_u32 %s, %s, 7, %s' % (v(93), v(92), v(93)))
            p('buffer_load_dword %s, %s, %s, 0 offen' % (v(95 + k), v(93), sr(S_H, 4)))
    else:
        p('s_and_b32 %s, s2, 3' % T(1))
        p('s_mul_i32 %s, %s, 2304' % (T(1), T(1)))
        p('s_add_u32 %s, %s, %s' % (T(0), T(0), T(1)))
        p('s_waitcnt lgkmcnt(0)')
        both = OPT.get('pfh', 1) == 0
        if both:
            p('s_cmp_eq_u32 %s, 3' % sr(S_W))
        else:
            p('s_bitcmp1_b32 s2, 2')
        p('s_cselect_b32 %s, s46, s44' % sr(S_H))
        p('s_cselect_b32 %s, s47, s45' % sr(S_H + 1))
        make_srd(p, S_H, S_H, T(0), (R0 - 1) * 9216 + 2304)
        for k in range(4 if both else 2):
            o = [Ins('v_add_u32 %s, %d, %s' % (v(92), 64 * k, L)) if both else Ins('v_add_u32 %s, %d, v0' % (v(92), 128 * k - 128))]
            div18(o, v(92), v(93), v(94))
            for x in o:
                p.add(x)
            p('v_mul_u32_u24 %s, 9216, %s' % (v(93), v(93)))
            p('v_lshl_add_u32 %s, %s, 7, %s' % (v(93), v(94), v(93)))
            p('buffer_load_dword %s, %s, %s, 0 offen' % (v(95 + k), v(93), sr(S_H, 4)))
    p('s_mov_b32 %s, 0x%x' % (T(3), WS_F + 4 * 32768))
    make_srd(p, S_FL, P_WS, T(3), 65536)
    p('v_lshlrev_b32 %s, 7, %s' % (v(83), L))
    p('s_mov_b32 %s, 0' % sr(S_CNT))
    p.label('L_join')
    p.finalize()
    return p.text().rstrip('\n')


def gen_slow_softmax():
    p = Prog()
    KA, VA, OK, OV, NM, MX = 120, 124, 132, 136, 140, 138
    NM = 44
    NM, OV, MX = 136, 32, 36
    p.label('L_slow')
    p('s_waitcnt vmcnt(0) lgkmcnt(0)')
    p('s_nop 15')
    p('s_add_u32 %s, %s, %d' % (T(0), sr(S_MK), 112 * 1024))
    p('s_cmp_eq_u32 %s, 3' % sr(S_W))
    p('s_cselect_b32 %s, %d, %s' % (T(0), 72 * 1024, T(0)))
    p('s_sub_u32 %s, %s, 0x10000' % (T(1), T(0)))
    for k in range(4):
        p('v_add_u32 %s, %s, %s' % (vr(KA + k), T(0), vr(V_KA + k)))
        p('v_subrev_u32 %s, %s, %s' % (vr(OK + k), sr(S_MK), vr(V_OK + k)))
    for k in range(8):
        p('v_add_u32 %s, %s, %s' % (vr(VA + k), T(1), vr(V_VA + k)))
    for k in range(2):
        p('v_subrev_u32 %s, %s, %s' % (vr(OV + k), sr(S_MK), vr(V_OV + k)))

    def load16(srd, vo, nvo):
        p('s_mov_b32 m0, %s' % T(0))
        for cc in range(4):
            p('buffer_load_dwordx4 %s, %s, %s offen offset:%d lds' % (vr(vo + cc % nvo), sr(srd, 4), T(2), cc * 1024))
        p('s_add_u32 %s, %s, 4096' % (T(2), T(2)))
        p('s_waitcnt vmcnt(0)')

    def qk(cin):
        p('s_mov_b32 %s, %s' % (T(2), T(3)))
        for kb in range(4):
            load16(S_K, OK, 4)
            for sx in range(4):
                p('ds_read_b128 %s, %s' % (ar(A_VF + (kb * 4 + sx) * 4, 4), vr(KA + sx)))
            p('s_waitcnt lgkmcnt(0)')
        for kb in range(4):
            for qb in range(4):
                for sx in range(4):
                    d = vr(Sreg(kb, qb), 4)
                    p('%s %s, %s, %s, %s' % (MF, d, ar(A_VF + (kb * 4 + sx) * 4, 4), vr(V_Q + (qb * 4 + sx) * 4, 4),
                                             cin(qb) if sx == 0 else d))
    for qb in range(4):
        p('v_mov_b32 %s, 0xff7fffff' % vr(MX + qb))
    p('s_mov_b32 %s, 0' % T(3))
    p.loop_begin(2, 's1')
    p.label('L_slow1')
    qk(lambda qb: '0')
    for qb in range(4):
        regs = [vr(Sreg(kb, qb) + r) for kb in range(4) for r in range(4)]
        for k in range(8):
            p('v_max3_f32 %s, %s, %s, %s' % (vr(MX + qb), vr(MX + qb), regs[2 * k], regs[2 * k + 1]))
    p('s_add_u32 %s, %s, 16384' % (T(3), T(3)))
    p('s_cmp_lt_u32 %s, 0x80000' % T(3))
    p('s_cbranch_scc1 L_slow1')
    p.loop_end()
    for x in xlane4('v_max_f32', [vr(MX + k) for k in range(4)], [vr(V_E + k) for k in range(4)]):
        p.add(x)
    for qb in range(4):
        for r in range(4):
            p('v_sub_f32 %s, 0, %s' % (vr(NM + qb * 4 + r), vr(MX + qb)))
        p('v_mov_b32 %s, 0' % vr(V_L + qb))
    for i in range(128):
        p('v_accvgpr_write_b32 %s, 0' % ar(A_O + i))
    p('s_mov_b32 %s, 0' % T(3))
    lp = p.loop_begin(3, 's2')
    p.label('L_slow2')
    qk(lambda qb: vr(NM + qb * 4, 4))
    for i in range(64):
        for x in sm_instrs(1, i):
            if x is not None:
                p.add(x)
    p('s_cmp_eq_u32 %s, 0x7c000' % T(3))
    p('s_cbranch_scc1 L_slow_done')
    p.loop_mark_exit(lp)
    p('s_mov_b32 %s, %s' % (T(2), T(3)))
    for ks in range(2):
        for j in range(2):
            load16(S_V, OV, 2)
            for db in range(8):
                p('ds_read_b64_tr_b16 %s, %s' % (ar(A_VF + db * 8 + ks * 4 + 2 * j, 2), vr(VA + db)))
            p('s_waitcnt lgkmcnt(0)')
    for db in range(8):
        for qb in range(4):
            for ks in range(2):
                o = ar(A_O + (db * 4 + qb) * 4, 4)
                p('%s %s, %s, %s, %s' % (MF, o, ar(A_VF + db * 8 + ks * 4, 4), vr(Preg(1, qb, ks), 4), o))
    p('s_add_u32 %s, %s, 16384' % (T(3), T(3)))
    p('s_branch L_slow2')
    p.loop_end()
    p.label('L_slow_done')
    for db in range(4):
        for ks in range(2):
            for j in range(2):
                x = v_load(31, db, ks, j, False)
                x.lds = None
                p.add(x)
    p('s_waitcnt vmcnt(0) lgkmcnt(0)')
    p('s_nop 15')
    p('s_branch L_slow_ret')
    p.finalize()
    return p.text().rstrip('\n')


def gen_main(diag=False):
    p = Prog()
    del SPIN_BLOCKS[:]
    _ct[0] = 0

    def stamp(k):
        if diag:
            p('s_memtime %s' % sr(S_DG, 2))
            p('s_waitcnt lgkmcnt(0)')
            p('v_writelane_b32 v1, %s, %d' % (sr(S_DG), k))
            p('s_memrealtime %s' % sr(S_DG, 2))
            p('s_waitcnt lgkmcnt(0)')
            p('v_writelane_b32 v1, %s, %d' % (sr(S_DG), k + 16))

    def addall(lst):
        for x in lst:
            p.add(x)

    def rstamp(k):
        if diag and OPT.get('sst'):
            p('s_memrealtime %s' % sr(S_DG, 2))
            p('s_waitcnt lgkmcnt(0)')
            p('v_writelane_b32 v1, %s, %d' % (sr(S_DG), 32 + k))
    p('s_cmp_ge_u32 s2, 256')
    p('s_cbranch_scc1 L_end')
    p('s_load_dwordx4 s[44:47], s[0:1], 48')
    p('s_load_dwordx2 %s, s[0:1], 88' % sr(P_WS, 2))
    p('s_load_dwordx4 s[36:39], s[0:1], 8')
    p('s_load_dwordx2 s[40:41], s[0:1], 24')
    p('s_load_dwordx2 %s, s[0:1], 0' % sr(P_X, 2))
    p('s_load_dwordx2 %s, s[0:1], 32' % sr(P_WO, 2))
    p('s_load_dwordx4 %s, s[0:1], 64' % sr(P_W2, 4))
    FU = OPT.get('fuse', 2)
    if FU:
        p('s_load_dwordx2 s[50:51], s[0:1], 80')
    stamp(0)
    p('v_and_b32 %s, 63, v0' % L)
    p('v_lshrrev_b32 %s, 6, v0' % t0)
    p('v_readfirstlane_b32 %s, %s' % (sr(S_W), t0))
    if OPT.get('map', 1):
        p('s_and_b32 %s, s2, 7' % T(0))
        p('s_lshl_b32 %s, %s, 2' % (T(0), T(0)))
        p('s_bfe_u32 %s, s2, 0x20003' % T(1))
        p('s_add_u32 %s, %s, %s' % (sr(S_HD), T(0), T(1)))
        p('s_lshr_b32 %s, s2, 5' % sr(S_QT))
    else:
        p('s_and_b32 %s, s2, 3' % T(0))
        p('s_lshl_b32 %s, %s, 3' % (T(0), T(0)))
        p('s_bfe_u32 %s, s2, 0x30003' % T(1))
        p('s_add_u32 %s, %s, %s' % (sr(S_HD), T(0), T(1)))
        p('s_and_b32 %s, s2, 4' % T(0))
        p('s_lshr_b32 %s, s2, 6' % T(1))
        p('s_add_u32 %s, %s, %s' % (sr(S_QT), T(0), T(1)))
    if FU == 2:
        p('s_memrealtime s[24:25]')
        p('s_nop 4')
        p.raw(gen_start_roles(diag))
        rstamp(0)
    if FU == 1:
        lnA, lnL, lnC = ln_parts()
        ct = code_touch('L_start', 120, 121, S_FL)
        ct[2] = Ins('s_lshl_b32 s3, s3, 12')
        ct[3] = Ins('v_and_b32 v120, 31, %s' % L)
        addall(ct)
        p.label('L_start')
        addall(lnA)
        p('s_memrealtime s[24:25]')
        p('v_or_b32 v125, s2, v0')
        p('v_min_u32 v125, 1, v125')
        p('v_lshlrev_b32 v125, 20, v125')
        p('s_waitcnt lgkmcnt(0)')
        make_srd(p, S_WQ, 50, None, 256)
        p('s_or_b32 s3, s24, 1')
        p('v_mov_b32 v126, s3')
        p('buffer_store_dword v126, v125, %s, 0 offen sc1' % sr(S_WQ, 4))
        addall(lnL)
        rstamp(0)
    p('v_lshlrev_b32 %s, 4, %s' % (vr(V_L16), L))
    p('s_and_b32 %s, %s, 1' % (T(2), sr(S_HD)))
    p('s_lshl_b32 %s, %s, 1' % (T(2), T(2)))
    p('v_add_u32 %s, %s, %s' % (t3, T(2), L))
    p('v_mul_u32_u24 %s, 3641, %s' % (vr(V_T + 4), L))
    p('v_mul_u32_u24 %s, 3641, %s' % (vr(V_T + 5), t3))
    p('s_movk_i32 %s, 9216' % T(9))
    p('s_movk_i32 %s, -288' % T(10))
    vo = []
    for i in range(9):
        o = []
        o.append(Ins('v_add_u32 %s, %d, %s' % (t0, 64 * i * 3641, vr(V_T + 4))))
        o.append(Ins('v_add_u32 %s, %d, %s' % (t1, 64 * i * 3641, vr(V_T + 5))))
        o.append(Ins('v_lshrrev_b32 %s, 16, %s' % (t0, t0)))
        o.append(Ins('v_lshrrev_b32 %s, 16, %s' % (t1, t1)))
        o.append(Ins('v_lshlrev_b32 %s, 4, %s' % (t2, t3)) if i == 0 else Ins('v_add_u32 %s, %d, %s' % (t2, 4096 if i % 4 == 0 else 0, t2)))
        o.append(Ins('v_mad_u32_u24 %s, %s, %s, %s' % (t0, t0, T(9), t2)))
        o.append(Ins('v_mad_i32_i24 %s, %s, %s, %s' % (vr(V_OW + i), t1, T(10), t0)))
        if i % 4:
            del o[4]
        vo.append(o)
    for o in vo[:4]:
        addall(o)
    p('s_mul_i32 %s, %s, 9216' % (sr(S_M1), sr(S_W)))
    p('s_and_b32 %s, %s, 1' % (T(3), sr(S_W)))
    p('s_mul_i32 %s, %s, %d' % (sr(S_OFFW), T(3), 32 * 9216))
    p('s_mul_i32 %s, %s, 288' % (T(2), sr(S_HD)))
    p('s_sub_u32 %s, %d, %s' % (T(3), 576 * 9216, T(2)))
    p('s_lshl_b32 %s, %s, 2' % (T(6), sr(S_QT)))
    p('s_add_u32 %s, %s, %s' % (T(6), T(6), sr(S_W)))
    p('s_mul_i32 %s, %s, %d' % (T(7), T(6), 4 * 18 * 1024))
    p('s_cmp_lt_u32 %s, 2' % sr(S_W))
    p('s_waitcnt lgkmcnt(0)')
    p('s_cselect_b32 s48, s44, s46')
    p('s_cselect_b32 s49, s45, s47')
    make_srd(p, S_WS, 48, T(2), T(3))
    def ln_now():
        p('v_mov_b32 v127, 0')
        p('s_mov_b32 %s, 0' % sr(S_CNT))
        rstamp(1)
        p.wait_regs(vr(72, 12))
        p.add(poll_issue(S_CNT, 128, 127, S_WQ))
        rstamp(2)
        addall(lnC)
        rstamp(3)
        poll_check(p, 'ep', S_CNT, 'v_cmp_eq_u32 vcc, 0', 128, 127, S_WQ, sleep=2)
        p('v_readfirstlane_b32 %s, v128' % sr(S_EP))

    def w_touch0():
        R0 = OPT.get('pf0', 12)
        if not R0:
            return
        p('s_lshr_b32 %s, s2, 3' % T(0))
        p('s_mul_i32 %s, %s, %d' % (T(0), T(0), R0 * 9216))
        p('s_and_b32 %s, s2, 3' % T(1))
        p('s_mul_i32 %s, %s, 2304' % (T(1), T(1)))
        p('s_add_u32 %s, %s, %s' % (T(0), T(0), T(1)))
        p('s_bitcmp1_b32 s2, 2')
        p('s_cselect_b32 %s, s46, s44' % sr(S_H))
        p('s_cselect_b32 %s, s47, s45' % sr(S_H + 1))
        make_srd(p, S_H, S_H, T(0), (R0 - 1) * 9216 + 2304)
        o = []
        div18(o, 'v0', 'v122', 'v123')
        addall(o)
        p('v_mul_u32_u24 v122, 9216, v122')
        p('v_lshl_add_u32 v122, v123, 7, v122')
        p('buffer_load_dword v124, v122, %s, 0 offen' % sr(S_H, 4))
    ORD = OPT.get('ord', 1)
    if FU == 2:
        make_srd(p, S_XN, P_WS, T(7), 4 * 18 * 1024)
    elif FU:
        p('s_mov_b32 %s, %s' % (sr(S_RO), T(7)))
        if ORD >= 1:
            if ORD == 1:
                w_touch0()
            for o in vo[4:]:
                addall(o)
            vo = vo[:4]
            ln_now()
            if ORD == 2:
                w_touch0()
    else:
        make_srd(p, S_XN, P_WS, T(7), 4 * 18 * 1024)
    d0 = p1_dma(0)
    addall(d0[:6])
    for o in vo[4:]:
        addall(o)
    addall(d0[6:] + (xn_loads(0, 0) if not FU else []))
    if FU == 2:
        rstamp(1)
        p('s_cmp_eq_u32 %s, 0' % sr(S_W))
        p('s_cbranch_scc1 L_lnp')
        p.label('L_lnp_ok')
        p('s_waitcnt lgkmcnt(0)')
        p('s_barrier')
        rstamp(2)
        addall(xn_loads(0, 0))
        p('v_mov_b32 v64, 163836')
        p('ds_read_b32 v65, v64')
        p('v_readfirstlane_b32 %s, v65' % sr(S_EP))
    if FU == 1 and ORD == 0:
        w_touch0()
        ln_now()
    if OPT.get('pro', 1) == 0:
        addall(p1_dma(1) + xn_loads(1, 1) + p1_dma(2))
    PF0 = OPT.get('pf0', 12)
    assert PF0 % 2 == 0
    MP = OPT.get('map', 1)
    p('s_lshr_b32 %s, s2, 3' % T(0))
    p('s_and_b32 %s, s2, %d' % (T(1), 7 if MP else 3))
    p('s_lshl_b32 %s, %s, 1' % (T(2), T(0)))
    p('s_and_b32 %s, %s, 1' % (T(3), sr(S_W)))
    p('s_add_u32 %s, %s, %s' % (T(2), T(2), T(3)))
    p('s_mul_i32 %s, %s, 9216' % (T(2), T(2)))
    p('s_mul_i32 %s, %s, %d' % (T(3), T(1), 1152 if MP else 2304))
    p('s_add_u32 %s, %s, %s' % (T(2), T(2), T(3)))
    p('s_sub_u32 %s, %d, %s' % (T(9), 576 * 9216, T(2)))
    p('s_lshl_b32 %s, %s, 2' % (T(4), T(0)))
    p('s_add_u32 %s, %s, %s' % (T(4), T(4), sr(S_W)))
    p('s_lshl_b32 %s, %s, 13' % (T(4), T(4)))
    p('s_lshl_b32 %s, %s, %d' % (T(3), T(1), 10 if MP else 11))
    p('s_add_u32 %s, %s, %s' % (T(4), T(4), T(3)))
    p('s_sub_u32 %s, %d, %s' % (T(10), 576 * 8192, T(4)))
    p('s_lshl_b32 %s, %s, 19' % (T(5), sr(S_HD)))
    make_srd(p, S_K, 36, T(5), 0x80000)
    make_srd(p, S_V, 38, T(5), 0x80000)
    p('s_lshl_b32 %s, %s, 8' % (T(5), sr(S_HD)))
    p('s_sub_u32 %s, %d, %s' % (T(3), 576 * 8192, T(5)))
    make_srd(p, S_WQ, 40, T(5), T(3))
    make_srd(p, S_A1, 48, T(2), T(9))
    make_srd(p, S_A2, 40, T(4), T(10))
    p('v_lshlrev_b32 %s, 7, %s' % (t1, L))
    p('v_mov_b32 %s, 0x7f000000' % t2)
    p('v_cmp_gt_u32 vcc, %d, %s' % (9 if MP else 18, L))
    p('v_cndmask_b32 %s, %s, %s, vcc' % (vr(V_SW), t2, t1))
    p('v_cmp_gt_u32 vcc, %d, %s' % (8 if MP else 16, L))
    p('v_cndmask_b32 %s, %s, %s, vcc' % (vr(V_SW + 1), t2, t1))
    tw = lambda c: [Ins('s_mov_b32 %s, %d' % (T(7), c * 64 * 9216)),
                    Ins('buffer_load_dword %s, %s, %s, %s offen sc0' % (vr(V_SW + 2), vr(V_SW), sr(S_A1, 4), T(7)))]
    tq = lambda k: [Ins('s_mov_b32 %s, %d' % (T(7), k * 128 * 8192)),
                    Ins('buffer_load_dword %s, %s, %s, %s offen sc0' % (vr(V_SW + 3), vr(V_SW + 1), sr(S_A2, 4), T(7)))]
    touch = {c: [] for c in range(7)}
    for k, c in enumerate(range(PF0 // 2, 9)):
        touch[min(k, 6)] += tw(c)
    for k in range(5):
        touch[k + OPT.get('tq0', 0)] += tq(4 - k)
    for c in touch:
        for x in touch[c]:
            x.wr = [r for r in x.wr if r[0] != 'v']
    if not OPT.get('pf1', 1):
        touch = {}
    if OPT.get('fold', 0):
        p('s_mov_b32 %s, 0x%x' % (sr(S_C), f2u(-1.0 / 128 ** 0.5)))
        p('s_mov_b32 %s, 0x%x' % (sr(S_NL), f2u(-1.0 / LOG2E)))
    else:
        p('s_mov_b32 %s, 0x%x' % (sr(S_C), f2u(LOG2E / 128 ** 0.5)))
        p('s_mov_b32 %s, 0x%x' % (sr(S_NL), f2u(-LOG2E)))
    p('s_lshl_b32 %s, %s, 12' % (sr(S_MK), sr(S_W)))
    p('s_mov_b32 %s, 0' % sr(S_OFFK))
    p('s_mov_b32 %s, 0' % sr(S_OFFV))
    p('v_lshrrev_b32 %s, 2, %s' % (t0, L))
    p('v_mul_u32_u24 %s, 288, %s' % (t1, t0))
    p('v_and_b32 %s, 3, %s' % (t2, L))
    p('v_lshl_add_u32 %s, %s, 3, %s' % (vr(V_A1), t2, t1))
    for k in range(1, 4):
        p('v_add_u32 %s, %d, %s' % (vr(V_A1 + k), k * 36864, vr(V_A1)))
    p('v_and_b32 %s, 15, %s' % (t0, L))
    p('v_lshrrev_b32 %s, 4, %s' % (t1, L))
    p('v_lshlrev_b32 %s, 1, %s' % (t3, t1))
    p('v_xor_b32 %s, %s, %s' % (t3, t0, t3))
    p('v_lshlrev_b32 %s, 4, %s' % (t3, t3))
    p('v_lshl_add_u32 %s, %s, 13, %s' % (vr(V_OQ), t1, t3))
    p('v_xor_b32 %s, 128, %s' % (vr(V_OQ + 1), vr(V_OQ)))
    p('s_lshl_b32 %s, %s, 17' % (sr(S_OFFQ), sr(S_W)))
    addall(kv_dma_setup())
    p('s_mul_i32 %s, %s, %d' % (T(3), T(6), 4 * HS()))
    p('s_add_u32 %s, %s, 0x%x' % (T(3), T(3), WS_H))
    make_srd(p, S_H, P_WS, T(3), 4 * HS())
    p('s_mul_i32 %s, %s, %d' % (T(3), sr(S_QT), 16 * OS()))
    p('s_lshl_b32 %s, %s, 12' % (T(4), sr(S_HD)))
    p('s_add_u32 %s, %s, %s' % (T(3), T(3), T(4)))
    p('s_add_u32 %s, %s, 0x%x' % (T(3), T(3), WS_O))
    p('s_sub_u32 %s, %d, %s' % (T(5), 16 * OS(), T(4)))
    make_srd(p, S_O, P_WS, T(3), T(5))
    p('s_mov_b32 %s, 0x%x' % (T(3), WS_F))
    make_srd(p, S_FL, P_WS, T(3), 5 * 32768)
    p('s_lshr_b32 %s, %s, 3' % (sr(S_SP), sr(S_HD)))
    p('s_and_b32 %s, %s, 7' % (T(0), sr(S_HD)))
    p('s_lshl_b32 %s, %s, 3' % (sr(S_TILE), sr(S_QT)))
    p('s_add_u32 %s, %s, %s' % (sr(S_TILE), sr(S_TILE), T(0)))
    p('s_lshl_b32 %s, %s, 6' % (T(0), sr(S_SP)))
    p('s_add_u32 %s, %s, %s' % (T(0), T(0), sr(S_TILE)))
    p('s_lshl_b32 %s, %s, 7' % (sr(S_FWG), T(0)))
    p('s_lshl_b32 %s, %s, 13' % (sr(S_FGR), sr(S_SP)))
    p('s_mul_i32 %s, %s, 9' % (T(2), sr(S_HD)))
    p('s_add_u32 %s, %s, 1' % (T(2), T(2)))
    p('s_lshr_b32 %s, %s, 1' % (T(2), T(2)))
    p('s_lshl_b32 %s, %s, 10' % (sr(S_HS), T(2)))
    p('s_bitcmp1_b32 %s, 0' % sr(S_HD))
    p('s_mov_b32 %s, 4096' % T(3))
    p('s_cselect_b32 %s, %d, %s' % (T(3), -1024 + 8, T(3)))
    p('s_add_u32 %s, %s, %s' % (sr(S_HS + 4), sr(S_HS), T(3)))
    for qb in range(1, 4):
        p('s_add_u32 %s, %s, %d' % (sr(S_HS + qb), sr(S_HS), qb * HS()))
        p('s_add_u32 %s, %s, %d' % (sr(S_HS + 4 + qb), sr(S_HS + 4), qb * HS()))
    if OPT.get('pro', 1) == 1:
        addall(p1_dma(1))
    if FU == 1:
        make_srd(p, S_XN, P_WS, sr(S_RO), 4 * 18 * 1024)
        p('s_lshl_b32 %s, %s, 12' % (T(2), sr(S_QT)))
        p('s_add_u32 %s, %s, %d' % (T(2), T(2), 4 * 32768))
        p('s_lshl_b32 %s, %s, 7' % (T(3), sr(S_HD)))
        p('s_add_u32 %s, %s, %s' % (T(3), T(3), T(2)))
        p('v_lshlrev_b32 v125, 20, v0')
        p('v_and_b32 v129, 31, %s' % L)
        p('v_lshlrev_b32 v129, 7, v129')
        rstamp(4)
        p.need(('XN', 0))
        rstamp(5)
        p('s_barrier')
        rstamp(6)
        p('buffer_store_dword v128, v125, %s, %s offen sc1' % (sr(S_FL, 4), T(3)), lds=('flag', ('XN', 0)))
        if OPT.get('lnpoll', 0) == 1:
            SPIN_BLOCKS.append("""L_lnp:
 s_mov_b32 s3, 0
L_lnp_l:
 buffer_load_dword v130, v129, %s, %s offen sc1
 s_add_u32 s3, s3, 1
 s_cmp_gt_u32 s3, 0x40000
 s_cbranch_scc1 L_lnp_ok
 s_waitcnt vmcnt(0)
 v_cmp_ne_u32 vcc, %s, v130
 s_cbranch_vccz L_lnp_ok
 s_sleep 2
 s_branch L_lnp_l""" % (sr(S_FL, 4), T(2), sr(S_EP)))
            p('s_cmp_eq_u32 %s, 0' % sr(S_W))
            p('s_cbranch_scc1 L_lnp')
            p.label('L_lnp_ok')
            p('s_barrier')
        else:
            p.add(poll_issue(S_T0 + 2, 130, 129))
            poll_check(p, 'ln', S_T0 + 2, 'v_cmp_ne_u32 vcc, %s' % sr(S_EP), 130, 129, sleep=2)
        addall(xn_loads(0, 0))
    stamp(1)

    if OPT.get('donly'):
        p('s_waitcnt vmcnt(0)')
        addall(d_scalar_setup1() + d_scalar_setup2() + k_read_setup() + v_read_setup())
        p('v_lshlrev_b32 %s, 20, v0' % vr(V_FST))
        p('v_mov_b32 %s, 1' % vr(V_ONE))
        p('v_lshlrev_b32 %s, 7, %s' % (vr(V_FOFF), L))
        p('v_mov_b32 %s, 0' % vr(V_RV))
        p('s_mov_b32 %s, 0' % sr(S_OFFW))
        for k in range(2, 7):
            stamp(k)
        p.raw(' s_branch L_donly')
    g = Gaps(p)
    seq = GemmSeq(p, g)
    pool = deque(('a', 72 + 4 * k) for k in range(14))

    def alloc():
        while not pool:
            x = (g.st or g.lo).popleft()
            g.over += max(1, cost(x))
            g.emit(x)
        for t in pool:
            if t[0] == 'v':
                pool.remove(t)
                return t
        return pool.popleft()

    XB = {}
    ring = lambda buf: [('a', A_B + buf * 32 + 4 * k) for k in range(8)]

    def xn_l(c, tiles):
        out = []
        for qb in range(4):
            out.append(Ins('s_mov_b32 %s, %d' % (T(qb), qb * 18 * 1024 + c * 2048)))
            for ks in range(2):
                out.append(Ins('buffer_load_dwordx4 %s, %s, %s, %s offen offset:%d' % (
                    rg(tiles[qb * 2 + ks]), vr(V_L16), sr(S_XN, 4), T(qb), ks * 1024)))
        return out

    def aq_setup():
        o = []
        a = lambda s: o.append(Ins(s))
        a('v_lshrrev_b32 %s, 2, %s' % (t0, L))
        a('v_and_b32 %s, 7, %s' % (t1, t0))
        a('v_lshlrev_b32 %s, 1, %s' % (t1, t1))
        a('v_and_b32 %s, 3, %s' % (t2, L))
        a('v_xor_b32 %s, %s, %s' % (t1, t1, t2))
        a('v_lshlrev_b32 %s, 4, %s' % (t1, t1))
        a('v_lshl_add_u32 %s, %s, 8, %s' % (vr(V_AQ), t0, t1))
        for s in range(1, 4):
            a('v_xor_b32 %s, %d, %s' % (vr(V_AQ + s), 64 * s, vr(V_AQ)))
        for rgn in range(1, 3):
            for s in range(4):
                a('v_add_u32 %s, 0x%x, %s' % (vr(V_AQ + rgn * 4 + s), rgn * 65536, vr(V_AQ + s)))
        return o

    def mk_mf(acc, chunks, xb, first):
        def mf(dst):
            out = []
            for qb in range(4):
                for ci, c in enumerate(chunks):
                    for ks in range(2):
                        def th(qb=qb, ci=ci, c=c, ks=ks):
                            a = rg(acc(qb))
                            cin = '0' if (first and ci == 0 and ks == 0) else a
                            return '%s %s, %s, %s, %s' % (MF, a, ar(dst + ci * 8 + ks * 4, 4), rg(xb(c)[qb * 2 + ks]), cin)
                        out.append(th)
            return out
        return mf

    for c in range(9):
        XB[c] = ring(c % 3)
    for c in range(7):
        for blk in range(18):
            hook = None
            if blk == 0:
                def hook(c=c):
                    if OPT.get('cst'):
                        p('s_memrealtime %s' % sr(S_DG, 2))
                        p('s_waitcnt lgkmcnt(0)')
                        p('v_writelane_b32 v1, %s, %d' % (sr(S_DG), 32 + c))
                    g.drop = {0: (), 1: ('dma',), 2: ('vld',), 3: ('dma', 'vld'), 4: ('dma', 'vld', 'dsr')}[OPT.get('drop', 0)]
                    g.vm_gap = OPT.get('vg1', 5) if c > 1 else OPT.get('vg0', 5)
                    if c == 0 and OPT.get('pro', 1):
                        g.hi.extend(xn_l(1, XB[1]) + p1_dma(2))
                    g.hi.extend(touch.get(c, []))
                    xl = xn_l(c + 2, XB[c + 2])
                    if c == 0:
                        g.hi.extend(xl + p1_dma(3))
                    else:
                        g.hi.extendleft(reversed(xl)) if OPT.get('xfirst', 0) else g.hi.extend(xl)
                    if c == 4:
                        g.hi.extend(wq_dma(8))
                    if c == 4 and OPT.get('ct1', 1):
                        g.hi.extend(code_touch('L_c1', V_SW + 4, V_SW + 5, S_A3))
                    if c == 6:
                        assert not any(y.kind == 'dma' and y.lds[1][0] == 'W' for y in g.hi)
                        g.lo.extend(aq_setup())
            seq.add(lambda dst, c=c, blk=blk: p1_reads(c, blk, dst), 8,
                    mk_mf(lambda qb, blk=blk: FT[(blk, qb)], [c], lambda c: XB[c], c == 0), hook=hook,
                    bar=[(PS(c), ('W', c))] if blk == 0 else None,
                    bwait=[rg(t) for t in XB[c]] if blk == 0 else None)
            if blk == 0 and 1 <= c <= 5:
                seq.groups[-1]['post'] = lambda c=c: g.hi.extend(p1_dma(c + 3))
            if blk == 0 and c == 6:
                seq.groups[-1]['post'] = lambda: g.hi.extend(wq_dma(7))
    CT = OPT.get('cap_t', 3)
    for blk in range(18):
        hook = None
        if blk >= 2 and blk % 2 == 0:
            def hook(b=blk // 2 - 1):
                for qb in range(4):
                    g.lo.extend(swiglu_unit(b, qb, g.n + 3, pool))
        if blk == 0:
            def hook():
                g.drop = ()
                p.label('L_c1')
                stamp(2)
        seq.add(lambda dst, blk=blk: p1_reads(7, blk, dst) + p1_reads(8, blk, dst + 8), 16,
                mk_mf(lambda qb, blk=blk: FT[(blk, qb)], [7, 8], lambda c: XB[c], False), hook=hook,
                bar=[(PS(7), ('W', 7)), (PS(8), ('W', 8))] if blk == 0 else None,
                bwait=[rg(t) for t in XB[7] + XB[8]] if blk == 0 else None, cap=CT)
        if blk == 0:
            seq.groups[-1]['post'] = lambda: g.hi.extend(wq_dma(6) + wq_dma(5))
    QT = {}

    def qacc(bq, qb):
        if (bq, qb) not in QT:
            QT[(bq, qb)] = alloc()
        return QT[(bq, qb)]
    XQ = {8: XB[8], 7: XB[7], 6: XB[6], 4: ring(1), 3: ring(2), 2: ring(0), 0: ring(1)}
    C2 = OPT.get('cap_p2', 2)
    qn = lambda c: (LS(WQ_SLOT[c]), ('Q', c))
    for bq in range(8):
        hook = None
        if bq == 0:
            def hook():
                stamp(3)
                g.vm_gap = OPT.get('vg2', 4)
                g.st_w = OPT.get('stw2', 1)
                for qb in range(4):
                    g.lo.extend(swiglu_unit(8, qb, g.n + 3, pool))
        if bq == 3:
            def hook():
                XQ[5] = XQ[1] = [alloc() for _ in range(8)]
                g.hi.extend(xn_l(5, XQ[5]))
        seq.add(lambda dst, bq=bq: p2_reads(8, bq, dst) + p2_reads(7, bq, dst + 8), 16,
                mk_mf(lambda qb, bq=bq: qacc(bq, qb), [8, 7], lambda c: XQ[c], True), hook=hook,
                bar=[qn(8), qn(7)] if bq == 0 else None, cap=C2)
        if bq == 0:
            seq.groups[-1]['post'] = lambda: g.hi.extend(
                wq_dma(4) + wq_dma(3) + wq_dma(2))
    for c in (6, 5, 4, 3, 2):
        for bq in range(8):
            hook = None
            if bq == 0:
                def hook(c=c):
                    for cc in {6: (4, 3), 5: (2,), 4: (1,), 3: (0,), 2: ()}[c]:
                        g.hi.extend(xn_l(cc, XQ[cc]))
            seq.add(lambda dst, c=c, bq=bq: p2_reads(c, bq, dst), 8,
                    mk_mf(lambda qb, bq=bq: qacc(bq, qb), [c], lambda c: XQ[c], False), hook=hook,
                    bar=[qn(c)] if bq == 0 else None, cap=C2,
                    bwait=(lambda c=c: [rg(t) for t in XQ[c]]) if bq == 0 else None)
            if bq == 0:
                seq.groups[-1]['lazyb'] = c
                post = {6: lambda: g.hi.extend(wq_dma(1) + wq_dma(0)),
                        3: lambda: g.hi.extend(dma_unit('K', 0, False)),
                        2: lambda: g.hi.extend(dma_unit('K', 1, False) + dma_unit('V', 0, False))}.get(c)
                seq.groups[-1]['post'] = post
    for bq in range(8):
        hook = None
        if bq == 0:
            def hook():
                print('swiglu backlog at last P2 group:', len(g.hi), len(g.lo), 'over', g.over, file=sys.stderr)
                g.hi.extend(dma_unit('K', 2, False) + dma_unit('V', 1, False))
        if bq >= 2 and bq % 2 == 0:
            def hook(s=bq // 2 - 1):
                for qb in range(4):
                    g.lo.extend(qcvt_unit(qb, s, QT, g.n + 3))
        seq.add(lambda dst, bq=bq: p2_reads(1, bq, dst) + p2_reads(0, bq, dst + 8), 16,
                mk_mf(lambda qb, bq=bq: qacc(bq, qb), [1, 0], lambda c: XQ[c], False), hook=hook,
                bar=[qn(1), qn(0)] if bq == 0 else None, cap=C2,
                bwait=(lambda: [rg(t) for t in XQ[1] + XQ[0]]) if bq == 0 else None)
    seq.run()
    stamp(4)
    print('G backlog at end:', len(g.hi), len(g.lo), 'over', g.over, 'waste', g.waste, file=sys.stderr)
    for qb in range(4):
        g.lo.extend(qcvt_unit(qb, 3, QT, 0))
    addall(k_read_setup())
    p.need(('lgkm', 'all'), (LS(0), ('K', 0)))
    p('s_barrier')
    for kb in range(4):
        for s in range(4):
            p.add(k_load(0, kb, s, False))
    g.flush()
    g.vm_gap = 4
    g.hi.extend(dma_unit('K', 3, False))
    g.hi.extend(d_scalar_setup1())
    g.lo.extend(Ins('v_accvgpr_write_b32 %s, 0' % ar(A_O + i)) for i in range(128))
    for kb in range(4):
        for qb in range(4):
            for s in range(4):
                d = vr(Sreg(kb, qb), 4)
                g.gap('%s %s, %s, %s, %s' % (MF, d, ar(A_KF + kb * 16 + s * 4, 4), vr(V_Q + (qb * 4 + s) * 4, 4), '0' if s == 0 else d))
    g.flush()
    addall(v_read_setup())
    for qb in range(4):
        p('v_mov_b32 %s, 0' % vr(V_L + qb))
    p('v_lshlrev_b32 %s, 20, v0' % vr(V_FST))
    if not FU:
        p('s_mov_b32 %s, 1' % sr(S_EP))
    p('v_mov_b32 %s, %s' % (vr(V_ONE), sr(S_EP)))
    p('v_lshlrev_b32 %s, 7, %s' % (vr(V_FOFF), L))
    addall(code_touch('L_att_tail', 32, 33, S_DWO)[:-1])
    p('v_mov_b32 %s, %s' % (vr(V_RN), L))
    addall(repack_pat())
    ms = [vr(V_E + qb) for qb in range(4)]
    for step in range(8):
        for qb in range(4):
            regs = [vr(Sreg(kb, qb) + r) for kb in range(4) for r in range(4)]
            if step == 0:
                p('v_max3_f32 %s, %s, %s, %s' % (ms[qb], regs[0], regs[1], regs[2]))
            elif step < 7:
                p('v_max3_f32 %s, %s, %s, %s' % (ms[qb], ms[qb], regs[2 * step + 1], regs[2 * step + 2]))
            else:
                p('v_max_f32 %s, %s, %s' % (ms[qb], ms[qb], regs[15]))
    addall(xlane4('v_max_f32', ms, [vr(V_T + k) for k in range(4)]))
    for qb in range(4):
        for r in range(4):
            p('v_sub_f32 %s, 0, %s' % (vr(V_NM + qb * 4 + r), ms[qb]))
    for kb in range(4):
        for qb in range(4):
            for r in range(4):
                x = vr(Sreg(kb, qb) + r)
                p('v_add_f32 %s, %s, %s' % (x, x, vr(V_NM + qb * 4)))
    stamp(5)
    def sm_plain(uu, i0, i1):
        prev = []
        for i in range(i0, i1):
            ex, ad, cv = sm_instrs(uu, i)
            p.add(ex)
            addall(prev)
            prev = [ad] + ([cv] if cv else [])
        p('s_nop 0')
        addall(prev)
    sm_plain(0, 0, 28)
    att_slots(p, 0, 0, 64, False, pv=False, sm_cur=False)
    sm_plain(0, 28, 60)
    p('s_mov_b32 %s, 0' % sr(S_CNT))
    p('s_lshl_b32 %s, %s, 4' % (sr(S_OFFQ), sr(S_W)))
    p('s_add_u32 %s, %s, 2' % (sr(S_OFFQ), sr(S_OFFQ)))
    p.wait_regs(ar(A_KF, 16))
    NIT = 8 if OPT.get('short', 1) else 7
    lp = p.loop_begin(NIT, 'att')
    p('.p2align 6')
    p.label('L_att')
    rtag = ('R', 0)
    g.vm_gap = 8

    def rp_loads():
        g.hi.append(Ins('buffer_load_dwordx4 %s, %s, %s, 0 offen nt' % (vr(V_RQ[0], 4), vr(V_RV), sr(S_A1, 4))))
        g.hi.append(Ins('buffer_load_dwordx4 %s, %s, %s, 0 offen nt' % (vr(V_RQ[1], 4), vr(V_RV), sr(S_A2, 4))))

    def rp_stores():
        g.hi.append(Ins('buffer_store_dwordx4 %s, %s, %s, %s offen sc1' % (vr(V_RQ[0], 4), vr(V_L16), sr(S_A3, 4), sr(S_RO)), lds=rtag))
        g.hi.append(Ins('buffer_store_dwordx4 %s, %s, %s, %s offen sc1' % (vr(V_RQ[1], 4), vr(V_L16), sr(S_A4, 4), sr(S_RO)), lds=rtag))
        g.hi.append(Ins('s_add_u32 %s, %s, 1024' % (sr(S_RO), sr(S_RO))))
    att_slots(p, 0, 64, 96, True)
    rp_loads()
    att_slots(p, 0, 96, 128, True, g=g, cap=4)
    assert not g.hi
    att_slots(p, 1, 0, 64, True)
    p('s_add_u32 %s, %s, 1' % (sr(S_CNT), sr(S_CNT)))
    p('s_cmp_eq_u32 %s, %d' % (sr(S_CNT), NIT))
    p('s_cbranch_scc1 L_att_tail')
    p.loop_mark_exit(lp)
    g.lo.extend(repack_pat())
    att_slots(p, 1, 64, 128, True, g=g, cap=3)
    assert not g.lo
    att_slots(p, 2, 0, 30, True, extra_need=[rtag, ('H', 0)])
    if OPT.get('plain_h'):
        SPIN_BLOCKS.append('L_wbh:\n buffer_wbl2 sc1\n s_branch L_wbh_done')
        p('s_cmp_eq_u32 %s, %s' % (sr(S_CNT), sr(S_OFFQ)))
        p('s_cbranch_scc1 L_wbh')
        p.label('L_wbh_done')
    p('s_cmp_eq_u32 %s, 4' % sr(S_CNT))
    p('s_cselect_b32 %s, %s, 0x100000' % (T(0), sr(S_FWG)))
    fl = flag_store(S_T0, 'H')
    g.hi.append(fl)
    g.vm_gap = 3
    rp_stores()
    att_slots(p, 2, 30, 66, True, g=g, cap=4)
    assert not g.hi
    att_slots(p, 2, 66, 96, True)
    g.vm_gap = 8
    rp_loads()
    att_slots(p, 2, 96, 128, True, g=g, cap=4)
    assert not g.hi
    g.lo.extend(repack_pat())
    att_slots(p, 3, 0, 96, True, g=g, cap=3)
    assert not g.lo
    if OPT.get('ct2', 1):
        g.hi.append(Ins('global_load_dword v33, v32, %s' % sr(S_DWO, 2)))
    att_slots(p, 3, 96, 128, True, g=g, cap=4)
    assert not g.hi
    att_slots(p, 4, 0, 30, True)
    g.vm_gap = 3
    rp_stores()
    att_slots(p, 4, 30, 64, True, g=g, cap=4)
    assert not g.hi
    p('s_branch L_att')
    p.loop_end()
    p.label('L_att_tail')
    stamp(6)
    g.vm_gap = 4
    def nowr(l):
        for x in l:
            x.wr = [r for r in x.wr if r[0] != 'v']
        return l

    def touch_w(c, srd=S_A1):
        return nowr([Ins('s_mov_b32 %s, %d' % (T(6), c * 36864)),
                     Ins('buffer_load_dword v248, %s, %s, %s offen sc0' % (vr(V_RV), sr(srd, 4), T(6)))])

    def touch_h(k):
        return nowr([Ins('s_add_u32 %s, %s, %d' % (T(6), sr(S_RO), k * 8192)),
                     Ins('buffer_load_dword v249, v250, %s, %s offen sc0' % (sr(S_A2, 4), T(6)))])
    TD = OPT.get('touch_d', 0)
    if NIT == 7:
        att_slots(p, 25, 64, 96, False)
        g.hi.append(poll_issue(S_FGR))
        tt = []
        a = lambda x: tt.append(Ins(x))
        a('s_lshr_b32 %s, s2, 3' % T(0))
        a('s_lshl_b32 %s, %s, 2' % (T(1), sr(S_SP)))
        a('s_add_u32 %s, %s, %s' % (T(1), T(1), sr(S_W)))
        a('s_mul_i32 %s, %s, %d' % (T(1), T(1), WBLK))
        a('s_mul_i32 %s, %s, 1152' % (T(2), T(0)))
        a('s_add_u32 %s, %s, %s' % (T(1), T(1), T(2)))
        a('s_add_u32 %s, %s, 0x%x' % (T(1), T(1), WS_W))
        tt += srd_ins(S_A1, P_WS, T(1), 18 * 36864 + 1152)
        a('s_and_b32 %s, s2, 4' % T(1))
        a('s_lshl_b32 %s, %s, 3' % (T(1), T(1)))
        a('s_add_u32 %s, %s, %s' % (T(1), T(1), T(0)))
        a('s_lshl_b32 %s, %s, 1' % (T(1), T(1)))
        a('s_and_b32 %s, %s, 1' % (T(2), sr(S_W)))
        a('s_add_u32 %s, %s, %s' % (T(1), T(1), T(2)))
        a('s_mul_i32 %s, %s, %d' % (T(1), T(1), HS()))
        a('s_mul_i32 %s, %s, %d' % (T(2), sr(S_SP), 36 * 1024))
        a('s_add_u32 %s, %s, %s' % (T(1), T(1), T(2)))
        a('s_add_u32 %s, %s, 0x%x' % (T(1), T(1), WS_H))
        tt += srd_ins(S_A2, P_WS, T(1), 36 * 1024)
        a('s_lshr_b32 %s, %s, 1' % (T(1), sr(S_W)))
        a('s_lshl_b32 %s, %s, 12' % (sr(S_RO), T(1)))
        a('s_lshl_b32 %s, %s, 2' % (T(2), sr(S_TILE)))
        a('s_add_u32 %s, %s, %s' % (T(2), T(2), sr(S_SP)))
        a('s_lshl_b32 %s, %s, 2' % (T(2), T(2)))
        a('s_add_u32 %s, %s, %s' % (T(2), T(2), sr(S_W)))
        a('s_mul_i32 %s, %s, 9216' % (T(2), T(2)))
        a('s_add_u32 %s, %s, 0x%x' % (T(2), T(2), WS_P))
        tt += srd_ins(S_A3, P_WS, T(2), 9216)
        g.hi.extend(tt)
        g.lo.extend(Ins('v_mov_b32 v%d, -1' % r) for r in range(36, 40))
        g.lo.extend([Ins('v_mul_u32_u24 %s, 7282, %s' % (vr(V_RV), L)),
                     Ins('v_lshrrev_b32 %s, 16, %s' % (vr(V_RV), vr(V_RV))),
                     Ins('v_mul_u32_u24 %s, %d, %s' % (vr(V_RV), 36864 - 1152, vr(V_RV))),
                     Ins('v_lshl_add_u32 %s, %s, 7, %s' % (vr(V_RV), L, vr(V_RV))),
                     Ins('v_mov_b32 v251, 0x7f000000'),
                     Ins('v_cmp_gt_u32 vcc, 18, %s' % L),
                     Ins('v_cndmask_b32 %s, v251, %s, vcc' % (vr(V_RV), vr(V_RV))),
                     Ins('v_cmp_gt_u32 vcc, 32, %s' % L),
                     Ins('v_cndmask_b32 v250, v251, %s, vcc' % vr(V_FOFF))])
        att_slots(p, 25, 96, 128, False, g=g, cap=4)
        att_slots(p, 26, 0, 64, False, g=g, cap=3, dmav=False)
        g.flush()
        addall(dma_unit('V', 28, False))
        poll_check(p, 'h', S_FGR)

        tl = []
        if TD:
            for k in range(5):
                tl += [touch_w(2 * k), touch_h(k)]
        else:
            tl = [[] for _ in range(10)]
        if OPT.get('tagged', 0):
            for k in range(9):
                tl[k] = tl[k] + [Ins('s_mov_b32 %s, %d' % (T(5), k * 1024)),
                                 Ins('buffer_store_dwordx4 v[36:39], %s, %s, %s offen sc1' % (vr(V_L16), sr(S_A3, 4), T(5)), lds=('PT1', 0))]
        for u in (26, 27, 28, 29):
            for (ta, tb, on) in ((0, 32, 0), (32, 48, 1), (48, 64, 1), (64, 96, 0), (96, 112, 1), (112, 128, 1)):
                if (u == 26 and ta < 64) or (u == 29 and ta >= 64):
                    continue
                if on and tl:
                    g.hi.extend(tl.pop(0))
                att_slots(p, u, ta, tb, False, g=g if on else None, cap=4, dmak=(u + DK < 32))
                assert not g.hi
        assert not tl
        for k in range(4):
            p('s_mov_b32 %s, %s' % (sr(S_DWO + k), sr(S_A1 + k)))
    else:
        assert not TD and not OPT.get('tagged', 0)
        g.hi.append(poll_issue(S_FGR))
    g.hi.extend(d_scalar_setup2())
    att_slots(p, 29, 64, 128, False, dmak=False, g=g, cap=4)
    g.flush()
    if NIT == 8:
        poll_check(p, 'h', S_FGR)
    p.label('L_donly')
    att_slots(p, 30, 0, 2, False, dmak=False, dmav=False, g=g)
    g.vm_gap = 5
    g.hi.extend(d_dma(0) + d_dma(1))
    g.hi.append(sadd(S_FWG, 32768))
    g.hi.append(Ins('s_and_b32 %s, %s, 0x38' % (T(0), sr(S_TILE))))
    g.hi.append(Ins('s_lshl_b32 %s, %s, 7' % (T(0), T(0))))
    g.hi.append(Ins('s_add_u32 %s, %s, %s' % (sr(S_FGR), sr(S_FGR), T(0))))
    g.hi.append(sadd(S_FGR, 32768))
    g.hi.append(Ins('s_add_u32 %s, %s, 8192' % (sr(S_OFFW), sr(S_FGR))))
    g.hi.append(Ins('s_and_b32 %s, %s, 1' % (sr(S_ADJB), sr(S_SP))))
    g.hi.append(Ins('s_lshl_b32 %s, %s, 9' % (T(1), sr(S_ADJB))))
    g.hi.append(Ins('s_or_b32 %s, %s, 0x180' % (T(1), T(1))))
    g.hi.append(Ins('v_and_b32 v250, %s, %s' % (T(1), vr(V_FOFF))))
    g.hi.append(Ins('s_mul_i32 %s, %s, %d' % (sr(S_ADJW), sr(S_ADJB), -4 * 36864)))
    g.hi.append(Ins('s_mul_i32 %s, %s, %d' % (sr(S_ADJB), sr(S_ADJB), -4 * 4096)))
    g.lo.append(Ins('v_and_b32 %s, 0x380, %s' % (vr(V_FOFF), vr(V_FOFF))))
    att_slots(p, 30, 2, 97, False, dmak=False, dmav=False, g=g, cap=4, barrier=False)
    g.vm_gap = 4
    g.hi.extend(d_bloads(0))
    att_slots(p, 30, 97, 128, False, dmak=False, dmav=False, g=g, cap=4, barrier=False)
    att_slots(p, 31, 0, 2, False, qk=False, sm_next=False, dmak=False, dmav=False, g=g, vearly=True)
    g.vm_gap = 3
    g.hi.extend(d_bloads(1) + d_dma(2))
    o = []
    o.append(Ins('v_lshrrev_b32 %s, 2, %s' % (t0, L)))
    o.append(Ins('v_mul_u32_u24 %s, 288, %s' % (t1, t0)))
    o.append(Ins('v_and_b32 %s, 3, %s' % (t2, L)))
    o.append(Ins('v_lshl_add_u32 %s, %s, 3, %s' % (vr(V_DRA), t2, t1)))
    for k in range(1, 4):
        o.append(Ins('v_add_u32 %s, %d, %s' % (vr(V_DRA + k), DBASE[k], vr(V_DRA))))
    g.lo.extend(o)
    g.lo.append(Ins('v_mov_b32 %s, 0x%x' % (vr(V_RN), f2u(2.0 ** OPT.get('thr', 30)))))
    att_slots(p, 31, 2, 64, False, qk=False, sm_next=False, dmak=False, dmav=False, g=g, cap=4, barrier=False, vearly=True)
    g.flush()
    sm_plain(31, 60, 64)
    p('v_max3_f32 %s, %s, %s, %s' % (t0, vr(V_L), vr(V_L + 1), vr(V_L + 2)))
    p('v_add_f32 %s, %s, %s' % (t0, t0, vr(V_L + 3)))
    p('v_cmp_nlt_f32 vcc, %s, %s' % (t0, vr(V_RN)))
    p('s_cbranch_vccnz L_slow')
    p.label('L_slow_ret')
    SPIN_BLOCKS.append(gen_slow_softmax())
    ls = [vr(V_L + qb) for qb in range(4)]
    g.lo.extend(xlane4('v_add_f32', ls, [vr(V_T + k) for k in range(4)]))
    g.lo.extend(Ins('v_rcp_f32 %s, %s' % (x, x)) for x in ls)
    n0 = g.n
    n = 0
    for t in range(4):
        for qb in range(4):
            g.lo.extend(o_epilogue_unit(qb, t, n, n0 + 16 * (t + 1) + 3))
            n += 1
    p.wait_regs(ar(A_VF, 8))
    kw = dict(qk=False, sm_cur=False, sm_next=False, vnext=False, dmak=False, dmav=False, g=g, barrier=False)
    att_slots(p, 32, 0, 33, False, **kw)
    g.hi.extend(d_bloads(2))
    att_slots(p, 32, 33, 46, False, **kw)
    p.need(('lgkm', 'all'), (DS(0), ('D', 0)))
    p('s_barrier')
    g.st.extend(d_reads(0, 0) + d_reads(0, 1))
    att_slots(p, 32, 46, 64, False, **kw)
    while g.st and g.st[0].kind == 'dsr':
        g.emit(g.st.popleft())
    assert not any(x.kind == 'dsr' for x in g.st)
    stamp(7)
    p.wait_regs(ar(A_DB, 32), vr(V_DA, 16))
    stamp(8)
    G2, GG = V_AC2, V_AC2 + 48
    xreg = lambda k, rb: 44 + (k * 2 + rb) * 2
    VO = V_T + 5

    def fin_setup():
        o = []
        o.append(Ins('v_and_b32 %s, 0x180, %s' % (vr(V_FOFF), vr(V_FOFF))))
        o.append(Ins('s_andn2_b32 %s, %s, 0x1ff' % (sr(S_FGR), sr(S_FT))))
        o.append(Ins('v_and_b32 %s, 15, %s' % (t0, L)))
        o.append(Ins('v_mul_u32_u24 %s, 1152, %s' % (t0, t0)))
        o.append(Ins('v_lshrrev_b32 %s, 4, %s' % (t1, L)))
        o.append(Ins('v_lshl_add_u32 %s, %s, 3, %s' % (vr(VO), t1, t0)))
        for k in range(3):
            for rb in range(2):
                o.append(Ins('buffer_load_dwordx2 %s, %s, %s, %s offen offset:%d' % (
                    vr(xreg(k, rb), 2), vr(VO), sr(S_DX, 4), sr(S_HS + 4 + rb + (2 if k == 2 else 0)), 128 * k)))
        return o

    def silu_g():
        o = []
        for k in range(3):
            d = GG + 8 * k
            o += d_sum(G2, k, d, V_T)
            for e in range(0, 8, 2):
                ta, tb = vr(V_T), vr(V_T + 1)
                o.append(Ins('v_mul_f32 %s, %s, %s' % (ta, sr(S_NL), vr(d + e))))
                o.append(Ins('v_mul_f32 %s, %s, %s' % (tb, sr(S_NL), vr(d + e + 1))))
                o.append(Ins('v_exp_f32 %s, %s' % (ta, ta)))
                o.append(Ins('v_exp_f32 %s, %s' % (tb, tb)))
                if OPT.get('fold', 0):
                    o.append(Ins('v_fma_f32 %s, %s, %s, %s' % (ta, ta, sr(S_C), sr(S_C))))
                    o.append(Ins('v_fma_f32 %s, %s, %s, %s' % (tb, tb, sr(S_C), sr(S_C))))
                else:
                    o.append(Ins('v_add_f32 %s, 1.0, %s' % (ta, ta)))
                    o.append(Ins('v_add_f32 %s, 1.0, %s' % (tb, tb)))
                o.append(Ins('v_rcp_f32 %s, %s' % (ta, ta)))
                o.append(Ins('v_rcp_f32 %s, %s' % (tb, tb)))
                o.append(Ins('v_mul_f32 %s, %s, %s' % (vr(d + e), vr(d + e), ta)))
                o.append(Ins('v_mul_f32 %s, %s, %s' % (vr(d + e + 1), vr(d + e + 1), tb)))
        return o

    g.vm_gap = 1
    SO = OPT.get('o_done', 2)
    LAST = NPOS - 1
    for c in range(NPOS):
        acc0 = V_AC2 if c < 9 else V_AC1
        first = c in (0, 9)
        if c == 9:
            stamp(14)
        if c in (SK0, SK1):
            g.flush()
        if c == SK0:
            p('s_bitcmp1_b32 %s, 0' % sr(S_SP))
            p('s_cbranch_scc1 L_dskip')
            p.loop_begin(1, 'opt')
        if c == SK1:
            p.loop_end()
            p.label('L_dskip')
        if OPT.get('dst'):
            p('s_memrealtime %s' % sr(S_DG, 2))
            p('s_waitcnt lgkmcnt(0)')
            p('v_writelane_b32 v1, %s, %d' % (sr(S_DG), 32 + c))
        extra_need = []
        post = []
        cap = 2
        if c <= SO:
            cap = OPT.get('cap_o', 4)
        if c == SO + 1:
            assert not g.lo and not g.st, len(g.lo)
            extra_need = [('O', 0)]
            post = [flag_store(S_FWG, 'O')]
            g.st_max = 1
            fs = fin_setup()
            g.lo.extend(fs[2:-6])
        if c == 6:
            g.hi.extend(fs[-6:])
        if TD and c in (2, 3, 4, 5, 6):
            g.hi.extend(touch_w(10 + 2 * (c - 2), S_DWO))
        if c == 6:
            g.st.append(poll_issue(S_FGR, V_FOFF=250))
        if c == 10:
            g.st.append(poll_issue(S_FGR))
        if c == 11:
            poll_check(p, 'o1', S_FGR)
        if c == 7:
            poll_check(p, 'o', S_FGR, V_FOFF=250)
            g.hi.extend(d_bloads(9, c))
            cap = 3
        if c == SK1 - 2:
            g.st.append(poll_issue(S_OFFW))
        if c == SK1 - 1:
            poll_check(p, 'o2', S_OFFW)
        if c <= 8:
            g.hi.extend((d_bloads(c + 3, c) if c != 6 else []) + d_dma(c + 3, c))
        elif 10 <= c <= LAST - 2:
            g.hi.extend(d_dma(c + 2, c) + d_bloads(c + 2, c))
        if c in (9, 10):
            for nb in (range(6) if c == 9 else range(6, 9)):
                g.lo.extend(d_pstore(1, nb))
            cap = 3
        if c == 11:
            assert not g.lo and not g.st
            extra_need = [('PT1', 0)]
            post = [flag_store(S_FT, 'PT1')]
            g.lo.extend(fs[:2])
            cap = 3
        if c == LAST - 2:
            g.st.append(poll_issue(S_FGR))
        if c == LAST - 1:
            poll_check(p, 'p2', S_FGR)
            g.hi.extend([sadd(S_FGR, 32768), sadd(S_FT, 32768)])
            g.hi.extend(d_ploads(1, G2))
        nv = sum(1 for x in g.hi if cost(x) == 2)
        if OPT.get('verbose_d'):
            print('D pos', c, 'queued vmem', nv, file=sys.stderr)
        g.vm_gap = OPT.get('vgd', 4) if c > SO else OPT.get('vgd2', 3)
        g.st_w = OPT.get('stw', 1)
        if c in (10, 11, SK1 - 1):
            g.vm_gap = 3
            cap = 3
        if c == LAST:
            g.vm_gap = 1
        for nb in range(9):
            n2 = nb + 2
            Lr = d_reads(c, n2) if n2 < 9 else (d_reads(c + 1, n2 - 9, c) if c < LAST else [])
            if c == LAST and nb >= 2:
                g.hi.extend(d_pstore(0, nb - 2))
            for t in range(8):
                rb, ks = t // 4, t % 4
                a = vr(acc0 + (nb * 2 + rb) * 4, 4)
                m = '%s %s, %s, %s, %s' % (MF, a, vr(V_DA + (nb % 3) * 16 + ks * 4, 4),
                                           ar(A_DB + (c % 4) * 32 + (rb * 4 + ks) * 4, 4),
                                           '0' if (first and ks == 0) else a)
                sc, ld = [], []
                if nb == 7:
                    if Lr and t >= 4:
                        ld = [Lr[2 * (t - 4)], Lr[2 * (t - 4) + 1]]
                    if t == 2 and c < LAST:
                        assert not any(y.kind == 'dma' and y.lds[0] == DS(c + 1) for y in g.hi), c
                        sc = [need_ins(('lgkm', 'all'), (DS(c + 1), dtag(c + 1, c)), *extra_need)]
                    if t == 3 and c < LAST:
                        sc = [Ins('s_barrier')]
                elif Lr:
                    ld = [Lr[t], Lr[t + 1]] if t % 2 == 0 else []
                if t == 7:
                    w = [vr(V_DA + ((nb + 1) % 3) * 16, 16)]
                    if nb == 8:
                        w.append(ar(A_DB + ((c + 1) % 4) * 32, 32))
                    sc = [wait_ins(*w)]
                g.gap(m, sc, ld, cap=cap)
                if nb == 7 and t == 3:
                    g.st.extend(post)
    stamp(9)
    g.hi.extend(d_pstore(0, 7) + d_pstore(0, 8))
    g.flush()
    stamp(10)
    sg = silu_g()
    if OPT.get('tagged', 0):
        addall(sg)
        stamp(11)

        def chk():
            o = [Ins('v_max3_u32 %s, %s, %s, %s' % (t0, vr(G2), vr(G2 + 1), vr(G2 + 2))),
                 Ins('v_max3_u32 %s, %s, %s, %s' % (t1, vr(G2 + 3), vr(G2 + 4), vr(G2 + 5)))]
            for k in range(6, 48, 2):
                tt_ = t0 if (k // 2) % 2 else t1
                o.append(Ins('v_max3_u32 %s, %s, %s, %s' % (tt_, tt_, vr(G2 + k), vr(G2 + k + 1))))
            o.append(Ins('v_max_u32 %s, %s, %s' % (t0, t0, t1)))
            o.append(Ins('v_cmp_eq_u32 vcc, -1, %s' % t0))
            return o
        addall(d_ploads(0, G2) + chk())
        p('s_cbranch_vccnz L_retry')
        p.label('L_retry_ok')
        SPIN_BLOCKS.append('L_retry:\n s_mov_b32 s3, 0\nL_retry_l:\n s_sleep 2\n' +
                           '\n'.join(' ' + x.text for x in d_ploads(0, G2)) +
                           '\n s_waitcnt vmcnt(0)\n s_add_u32 s3, s3, 1\n s_cmp_gt_u32 s3, 0x20000\n s_cbranch_scc1 L_retry_ok\n' +
                           '\n'.join(' ' + x.text for x in chk()) +
                           '\n s_cbranch_vccnz L_retry_l\n s_branch L_retry_ok')
        stamp(12)
    else:
        addall(sg[:len(sg) // 2])
        p.need(('PT0', 0))
        p('s_barrier')
        stamp(11)
        p.add(flag_store(S_FT, 'PT0'))
        p.add(poll_issue(S_FGR))
        addall(sg[len(sg) // 2:])
        poll_check(p, 'p1', S_FGR)
        stamp(12)
        addall(d_ploads(0, G2))
    for k in range(3):
        d = V_AC1 + 16 * k
        addall(d_sum(G2, k, d, V_T))
        for rb in range(2):
            xb = xreg(k, rb)
            for e in range(4):
                tx = vr(d + 8 + e)
                if e % 2 == 0:
                    p('v_lshlrev_b32 %s, 16, %s' % (tx, vr(xb + e // 2)))
                else:
                    p('v_and_b32 %s, 0xffff0000, %s' % (tx, vr(xb + e // 2)))
                p('v_fma_f32 %s, %s, %s, %s' % (tx, vr(d + rb * 4 + e), vr(GG + 8 * k + rb * 4 + e), tx))
            o = d + 12 + 2 * rb
            p('v_cvt_pk_bf16_f32 %s, %s, %s' % (vr(o), vr(d + 8), vr(d + 9)))
            p('v_cvt_pk_bf16_f32 %s, %s, %s' % (vr(o + 1), vr(d + 10), vr(d + 11)))
            p('buffer_store_dwordx2 %s, %s, %s, %s offen offset:%d%s' % (
                vr(o, 2), vr(VO), sr(S_DOUT, 4), sr(S_HS + 4 + rb + (2 if k == 2 else 0)), 128 * k,
                ('', ' sc1', ' nt', ' sc0 sc1')[OPT.get('outpol', 0)]))
    if diag:
        p('s_waitcnt vmcnt(0)')
        stamp(13)
        p('s_mov_b32 %s, 0x%x' % (T(3), WS_T))
        make_srd(p, S_K, P_WS, T(3), 0x100000)
        p('s_lshl_b32 %s, s2, 2' % T(0))
        p('s_add_u32 %s, %s, %s' % (T(0), T(0), sr(S_W)))
        p('s_lshl_b32 %s, %s, 8' % (T(0), T(0)))
        p('v_lshlrev_b32 v4, 2, %s' % L)
        p('buffer_store_dword v1, v4, %s, %s offen' % (sr(S_K, 4), T(0)))
    p.label('L_end')
    p('s_endpgm')
    for t in SPIN_BLOCKS:
        p.raw(t)
    p.raw('L_code_end:')
    for x in p.flat():
        if OPT.get('kv_nt', 1) and x.kind == 'dma' and ('s[4:7]' in x.text or 's[8:11]' in x.text):
            x.text = x.text.replace(' lds', ' nt lds')
        if OPT.get('w_nt') and x.kind == 'dma' and x.lds and not callable(x.lds[1]) and x.lds[1][0] in 'WQ':
            x.text = x.text.replace(' lds', ' nt lds')
        if OPT.get('st01') and x.kind == 'vst' and 'x4' in x.text:
            x.text = x.text.replace(' sc1', ' sc0 sc1')
        if OPT.get('nost') and x.kind == 'vst' and 'x4' in x.text and x.lds and (x.lds[0] == 'O' or (OPT['nost'] > 1 and x.lds[0] == 'PT1')):
            x.text = 's_nop 0'
            x.kind = 'sopp'; x.op = 's_nop'; x.ops = ['0']; x.rd = []; x.lds = None
        if FU and x.kind == 'vld' and sr(S_XN, 4) in x.text and 'sc1' not in x.text:
            x.text += ' sc1'
        if OPT.get('dplain') and x.kind in ('dma', 'vld') and 'x4' in x.text:
            x.text = x.text.replace(' sc1', '')
    p.finalize(verbose=bool(OPT.get('verbose')), check=not (OPT.get('drop') or OPT.get('nost')))
    print('total overflow slots', g.over, p.stats(), file=sys.stderr)
    return p


def build(diag=False):
    hdr = open('cdna_kernels/%s.s.ref' % NAME).read().split('; Override launch')[0]
    out = hdr
    if OPT.get('fuse', 2):
        km = gen_main(diag)
        kn = NAME + '_kernel'
        if OPT.get('aslist', 1):
            out += '; @launch kernel=%s grid=(256,1,1) block=(256,1,1) lds=163840\n' % kn
        else:
            out += '; @launch grid=(256,1,1) block=(256,1,1) lds=163840\n'
        out += '.amdgcn_target "amdgcn-amd-amdhsa--gfx950"\n.text\n'
        out += kernel_text(kn, km, 0, 0)
        out += '.section .rodata,"a"\n.p2align 6\n' + descriptor(kn, 512, 256)
        return out
    ln, km = gen_ln(), gen_main(diag)
    if not OPT.get('donly'):
        out += '; @launch kernel=ln_kernel grid=(256,1,1) block=(256,1,1) lds=0\n'
    out += '; @launch kernel=main_kernel grid=(256,1,1) block=(256,1,1) lds=163840\n'
    out += '.amdgcn_target "amdgcn-amd-amdhsa--gfx950"\n.text\n'
    out += kernel_text('ln_kernel', ln, 0, 0) + kernel_text('main_kernel', km, 0, 0)
    out += '.section .rodata,"a"\n'
    for n, nv, acc in (('ln_kernel', 64, 64), ('main_kernel', 512, 256)):
        out += '.p2align 6\n' + descriptor(n, nv, acc)
    return out


if __name__ == '__main__':
    diag = 'diag' in sys.argv[2:]
    for a in sys.argv[2:]:
        if '=' in a:
            k, v = a.split('=')
            OPT[k] = int(v)
    open(sys.argv[1], 'w').write(build(diag))
```

```python
import sys, struct
from collections import deque
from dsl import *

OPT = {}
NAME = 'recurrent_scan__mha_block_cached__glu_gated_swiglu__prompt'
WS_XN = 0
WS_F = 3 << 20
WS_O = 4 << 20
WS_H = 24 << 20
WS_P = 48 << 20
PG = 64 * 16 * 9216
WS_W = 96 << 20
WBLK = 2432 * 288
WS_T = 128 << 20
MF = 'v_mfma_f32_16x16x32_bf16'
LOG2E = 1.4426950408889634


def HS():
    return 144 * 1024 + OPT.get('pad', 1280)


def OS():
    return 128 * 1024 + OPT.get('pad', 1280)


def f2u(x):
    return struct.unpack('<I', struct.pack('<f', x))[0]


def srd_ins(srd, ptr, off, size):
    o = []
    if off is None:
        o.append(Ins('s_mov_b32 %s, %s' % (sr(srd), sr(ptr))))
        o.append(Ins('s_mov_b32 %s, %s' % (sr(srd + 1), sr(ptr + 1))))
    else:
        o.append(Ins('s_add_u32 %s, %s, %s' % (sr(srd), sr(ptr), off)))
        o.append(Ins('s_addc_u32 %s, %s, 0' % (sr(srd + 1), sr(ptr + 1))))
    o.append(Ins('s_mov_b32 %s, %s' % (sr(srd + 2), size if isinstance(size, str) else '0x%x' % size)))
    o.append(Ins('s_mov_b32 %s, 0x00020000' % sr(srd + 3)))
    return o


def make_srd(p, srd, ptr, off, size):
    for x in srd_ins(srd, ptr, off, size):
        p.add(x)


def cost(ins):
    if ins.kind == 'valu':
        return 2 if ins.trans else 1
    if ins.kind in ('dsr', 'dsw'):
        return 1
    if ins.kind in ('dma', 'vld', 'vst'):
        return 2
    return 0


class Gaps:
    def __init__(self, p):
        self.p = p
        self.hi = deque()
        self.lo = deque()
        self.n = 0
        self.over = 0
        self.waste = 0
        self.drop = ()
        self.vm_next = 0
        self.st = deque()
        self.st_max = 2
        self.st_w = 3
        self.vm_gap = 1

    def emit(self, x):
        if self.drop and x.kind in self.drop:
            return
        self.p.add(x)
        if x.on_emit:
            x.on_emit()

    def gap(self, mfma, sc=(), ld=(), va=(), cap=2):
        if mfma is not None:
            self.p.add(mfma if isinstance(mfma, Ins) else Ins(mfma))
        sc, ld, va = list(sc), list(ld), list(va)
        used = sum(cost(x) for x in ld + va)
        for q in (self.st, self.hi, self.lo):
            pulled = False
            pva = False
            while q:
                x = q[0]
                if x.ready > self.n:
                    break
                c = cost(x)
                if q is self.lo and x.kind == 'vst' and len(self.st) < self.st_max:
                    x.ready = self.n + 1
                    self.st.append(q.popleft())
                    continue
                if c == 0:
                    if sc or pulled:
                        break
                    sc.append(q.popleft())
                    if 'm0' in x.wr:
                        break
                    continue
                if used + c > cap:
                    break
                if x.kind != 'valu':
                    if pva:
                        break
                    if c == 2:
                        if self.n < self.vm_next:
                            break
                        w = (self.st_w if 'x4' in x.text else 1) if x.kind == 'vst' else (4 if 'buffer_load_dword ' in x.text and 'sc' not in x.text else 1)
                        self.vm_next = self.n + self.vm_gap * w
                    ld.append(q.popleft())
                else:
                    va.append(q.popleft())
                    pva = True
                used += c
                pulled = True
        for x in sc + ([Ins(mfma)] if isinstance(mfma, str) else []):
            self.check(x)
        self.over += max(0, used - 2)
        if used < 2 and (self.hi or self.lo):
            self.waste += 2 - used
        for x in sc + ld + va:
            self.emit(x)
        self.n += 1

    def check(self, x):
        regs = set(x.rd) if (x.text.startswith('; need') or x.kind == 'mfma') else set()
        tags = [t for t in (x.need or []) if not callable(t[1])]
        for q in (self.st, self.hi, self.lo):
            for y in q:
                if y.kind in ('vld', 'dsr') and set(y.wr) & regs and not getattr(y, 'later', False):
                    raise AssertionError('consumer %s before queued load %s' % (x.text, y.text))
                if y.lds is not None and y.lds in tags:
                    raise AssertionError('need %s before queued %s' % (tags, y.text))

    def flush(self, q=None):
        for qq in ((self.st, self.hi, self.lo) if q is None else (q,)):
            while qq:
                x = qq.popleft()
                self.over += max(1, cost(x))
                self.emit(x)


def rg(t, n=4):
    return (vr if t[0] == 'v' else ar)(t[1], n)


def prefetch_w(p, ptr, srd, soff, rows, stride, lines, rounds, vt, vd):
    t = lambda k: vr(vt + k)
    make_srd(p, srd, ptr, soff, (rows - 1) * stride + lines * 128)
    return t


def gen_ln():
    p = Prog()
    p('s_cmp_ge_u32 s2, 256')
    p('s_cbranch_scc1 L_ln_end')
    p('s_load_dwordx2 s[12:13], s[0:1], 0')
    p('s_load_dwordx2 s[14:15], s[0:1], 88')
    p('s_load_dwordx4 s[32:35], s[0:1], 48')
    p('v_lshrrev_b32 v1, 5, v0')
    p('s_lshl_b32 s3, s2, 3')
    p('v_add_u32 v1, s3, v1')
    p('v_and_b32 v2, 31, v0')
    p('v_lshrrev_b32 v3, 2, v2')
    p('v_and_b32 v4, 3, v2')
    p('v_mul_u32_u24 v5, 1152, v1')
    p('v_lshl_add_u32 v5, v3, 6, v5')
    p('v_lshl_add_u32 v5, v4, 3, v5')
    p('v_cmp_gt_u32 vcc, 8, v2')
    p('s_mov_b64 s[16:17], vcc')
    for r in range(16, 20):
        p('v_mov_b32 v%d, 0' % r)
    p('s_waitcnt lgkmcnt(0)')
    make_srd(p, 4, 12, None, 2048 * 1152)
    for it in range(2):
        p('buffer_load_dwordx2 v[%d:%d], v5, s[4:7], 0 offen offset:%d' % (8 + 4 * it, 9 + 4 * it, it * 512))
        p('buffer_load_dwordx2 v[%d:%d], v5, s[4:7], 0 offen offset:%d' % (10 + 4 * it, 11 + 4 * it, it * 512 + 32))
    p('s_mov_b64 exec, s[16:17]')
    p('buffer_load_dwordx2 v[16:17], v5, s[4:7], 0 offen offset:1024')
    p('buffer_load_dwordx2 v[18:19], v5, s[4:7], 0 offen offset:1056')
    p('s_mov_b64 exec, -1')
    R0 = OPT.get('pf0', 12)
    if R0:
        p('s_lshr_b32 s20, s2, 3')
        p('s_mul_i32 s20, s20, %d' % (R0 * 9216))
        p('s_and_b32 s21, s2, 3')
        p('s_mul_i32 s21, s21, 2304')
        p('s_add_u32 s20, s20, s21')
        make_srd(p, 36, 32, 's20', (R0 - 1) * 9216 + 2304)
        make_srd(p, 40, 34, 's20', (R0 - 1) * 9216 + 2304)
        p('v_mul_u32_u24 v56, 3641, v0')
        p('v_lshrrev_b32 v56, 16, v56')
        p('v_mul_u32_u24 v57, 18, v56')
        p('v_sub_u32 v57, v0, v57')
        p('v_mul_u32_u24 v56, 9216, v56')
        p('v_lshl_add_u32 v56, v57, 7, v56')
        if OPT.get('pfh', 1):
            p('s_bitcmp1_b32 s2, 2')
            p('s_cselect_b32 s36, s40, s36')
            p('s_cselect_b32 s37, s41, s37')
            p('buffer_load_dword v58, v56, s[36:39], 0 offen')
        else:
            p('buffer_load_dword v58, v56, s[36:39], 0 offen')
            p('buffer_load_dword v59, v56, s[40:43], 0 offen')
    if OPT.get('pfc', 1):
        p('s_getpc_b64 s[44:45]')
        p.label('L_pc')
        p('s_add_u32 s44, s44, main_kernel-L_pc')
        p('s_addc_u32 s45, s45, 0')
        p('s_lshr_b32 s46, s2, 3')
        p('s_lshl_b32 s46, s46, 12')
        p('v_and_b32 v60, 31, v0')
        p('v_lshlrev_b32 v60, 7, v60')
        p('v_add_u32 v60, s46, v60')
        p('v_min_u32 v60, L_code_end-main_kernel-4, v60')
        p('global_load_dword v61, v60, s[44:45]')
    make_srd(p, 8, 14, None, 2048 * 1152)
    p('v_lshrrev_b32 v6, 4, v1')
    p('v_mul_u32_u24 v6, 18, v6')
    p('v_add_u32 v6, v6, v3')
    p('v_lshlrev_b32 v6, 10, v6')
    p('v_lshl_add_u32 v6, v4, 8, v6')
    p('v_and_b32 v7, 15, v1')
    p('v_lshl_add_u32 v6, v7, 4, v6')
    p('s_mov_b32 s20, 0x%x' % WS_F)
    make_srd(p, 24, 14, 's20', 4 * 32768)
    p('s_lshl_b32 s21, s2, 7')
    p('v_lshlrev_b32 v50, 15, v0')
    p('v_mov_b32 v52, 0')
    p('buffer_store_dword v52, v50, s[24:27], s21 offen')
    for d in range(12):
        p('v_lshlrev_b32 v%d, 16, v%d' % (20 + 2 * d, 8 + d))
        p('v_and_b32 v%d, 0xffff0000, v%d' % (21 + 2 * d, 8 + d))

    def reduce32(x, t):
        for k in (8, 4, 2, 1):
            p('v_add_f32_dpp %s, %s, %s row_ror:%d row_mask:0xf bank_mask:0xf' % (x, x, x, k))
        p('v_mov_b32 %s, %s' % (t, x))
        p('v_permlane16_swap_b32 %s, %s' % (x, t))
        p('v_add_f32 %s, %s, %s' % (x, x, t))
    p('v_add_f32 v44, v20, v21')
    p('v_add_f32 v45, v22, v23')
    for e in range(4, 24, 2):
        p('v_add_f32 v44, v44, v%d' % (20 + e))
        p('v_add_f32 v45, v45, v%d' % (21 + e))
    p('v_add_f32 v44, v44, v45')
    reduce32('v44', 'v45')
    p('v_mul_f32 v44, 0x%x, v44' % f2u(1.0 / 576))
    p('v_mov_b32 v46, 0')
    p('v_mov_b32 v47, 0')
    for e in range(16):
        p('v_sub_f32 v48, v%d, v44' % (20 + e))
        p('v_fmac_f32 v%d, v48, v48' % (46 + e % 2))
    p('s_mov_b64 exec, s[16:17]')
    for e in range(16, 24):
        p('v_sub_f32 v48, v%d, v44' % (20 + e))
        p('v_fmac_f32 v%d, v48, v48' % (46 + e % 2))
    p('s_mov_b64 exec, -1')
    p('v_add_f32 v46, v46, v47')
    reduce32('v46', 'v45')
    p('v_mul_f32 v46, 0x%x, v46' % f2u(1.0 / 576))

    def rnd(x):
        p('v_cvt_pk_bf16_f32 %s, %s, %s' % (x, x, x))
        p('v_lshlrev_b32 %s, 16, %s' % (x, x))
    rnd('v44')
    rnd('v46')
    p('v_add_f32 v46, 0x%x, v46' % f2u(1e-5))
    rnd('v46')
    p('v_sqrt_f32 v46, v46')
    rnd('v46')
    p('v_rcp_f32 v46, v46')
    if OPT.get('fold', 0):
        p('v_mul_f32 v46, 0x%x, v46' % f2u(-LOG2E))
    for d in range(12):
        a, b = 20 + 2 * d, 21 + 2 * d
        p('v_sub_f32 v%d, v%d, v44' % (a, a))
        p('v_sub_f32 v%d, v%d, v44' % (b, b))
        p('v_cvt_pk_bf16_f32 v%d, v%d, v%d' % (8 + d, a, b))
        p('v_lshlrev_b32 v%d, 16, v%d' % (a, 8 + d))
        p('v_and_b32 v%d, 0xffff0000, v%d' % (b, 8 + d))
        p('v_mul_f32 v%d, v%d, v46' % (a, a))
        p('v_mul_f32 v%d, v%d, v46' % (b, b))
        p('v_cvt_pk_bf16_f32 v%d, v%d, v%d' % (8 + d, a, b))
    p('s_mov_b32 s18, 8192')
    p('s_mov_b32 s19, 16384')
    p('buffer_store_dwordx4 v[8:11], v6, s[8:11], 0 offen')
    p('buffer_store_dwordx4 v[12:15], v6, s[8:11], s18 offen')
    p('s_mov_b64 exec, s[16:17]')
    p('buffer_store_dwordx4 v[16:19], v6, s[8:11], s19 offen')
    p.label('L_ln_end')
    p('s_endpgm')
    p.finalize()
    return p


S_K, S_V, S_XN, S_WS, S_WQ, S_H, S_O, S_FL, S_A1, S_A2, S_A3, S_A4 = 4, 8, 12, 16, 20, 24, 28, 32, 36, 40, 44, 48
S_DW2, S_DWO, S_DH, S_DO, S_DP, S_DR, S_DX, S_DOUT = 12, 16, 20, 24, 36, 40, 44, 48
(S_W, S_MK, S_EP, S_OFFK, S_OFFV, S_CNT, S_HD, S_QT, S_M1, S_OFFW, S_OFFQ, S_C, S_NL, S_FWG, S_FGR, S_FT,
 S_RO, S_SP, S_TILE) = range(52, 71)
S_HS = 71
S_T0 = 79
S_DG = 90
P_X, P_WO, P_W2, P_OUT, P_WS = 92, 94, 96, 98, 100
T = lambda k: sr(S_T0 + k)

V_L16, V_LANE = 2, 3
V_A1 = 4
V_OW = 8
V_AQ = 8
V_OQ = 20
V_OK, V_OV = 22, 26
V_SW = 28
V_T = 34
V_KA, V_VA, V_L, V_E = 4, 8, 16, 28
V_NM, V_S, V_P, V_Q = 40, 56, 120, 184
V_FST, V_ONE, V_FOFF, V_FV = 252, 253, 254, 255
A_O, A_KF, A_VF = 0, 128, 192
A_A, A_B = 128, 160
X0 = 72
DK, DV = 4, 2
L = vr(V_LANE)
t0, t1, t2, t3 = (vr(V_T + i) for i in range(4))


def LS(n):
    return (n * 16384, 16384)


def VP(u):
    return (u + 3) % 4


DBASE = [0, 126976, 36864, 73728]


def DS(c):
    return (DBASE[c % 4], 36864)


def PS(c):
    return ((c % 4) * 36864, 36864)


def Sreg(kb, qb):
    return V_S + (kb * 4 + qb) * 4


def Preg(u, qb, ks):
    return V_P + (u & 1) * 32 + qb * 8 + ks * 4


def ktag(u, inloop):
    return (lambda it: ('K', u + 4 * it)) if inloop else ('K', u)


def vtag(u, inloop):
    return (lambda it: ('V', u + 4 * it)) if inloop else ('V', u)


def k_load(u, kb, s, inloop):
    return Ins('ds_read_b128 %s, %s offset:%d' % (ar(A_KF + kb * 16 + s * 4, 4), vr(V_KA + s), (u % 4) * 16384 + kb * 4096),
               lds=(LS(u % 4), ktag(u, inloop)))


def v_load(u, db, ks, j, inloop):
    return Ins('ds_read_b64_tr_b16 %s, %s offset:%d' % (
        ar(A_VF + db * 8 + ks * 4 + 2 * j, 2), vr(V_VA + db), VP(u) * 16384 + (32 * ks + 16 * j) * 256),
        lds=(LS(4 + VP(u)), vtag(u, inloop)))


def dma_unit(kind, u, inloop):
    out = []
    if kind == 'K':
        out.append(Ins('s_add_u32 m0, %s, %d' % (sr(S_MK), (u % 4) * 16384)))
        for cc in range(4):
            out.append(Ins('buffer_load_dwordx4 %s, %s, %s offen offset:%d lds' % (
                vr(V_OK + cc), sr(S_K, 4), sr(S_OFFK), cc * 1024), lds=(LS(u % 4), ktag(u, inloop))))
        out.append(Ins('s_add_u32 %s, %s, 16384' % (sr(S_OFFK), sr(S_OFFK))))
    else:
        out.append(Ins('s_add_u32 m0, %s, %d' % (sr(S_MK), 65536 + VP(u) * 16384)))
        for cc in range(4):
            out.append(Ins('buffer_load_dwordx4 %s, %s, %s offen offset:%d lds' % (
                vr(V_OV + cc % 2), sr(S_V, 4), sr(S_OFFV), cc * 1024), lds=(LS(4 + VP(u)), vtag(u, inloop))))
        out.append(Ins('s_add_u32 %s, %s, 16384' % (sr(S_OFFV), sr(S_OFFV))))
    return out


def sm_instrs(uu, i):
    n, r = i // 4, i % 4
    kb, qb = n // 4, n % 4
    e = vr(V_E + i % 4)
    ex = Ins('v_exp_f32 %s, %s' % (e, vr(Sreg(kb, qb) + r)))
    ad = Ins('v_add_f32 %s, %s, %s' % (vr(V_L + qb), vr(V_L + qb), e))
    cv = None
    if r % 2 == 1:
        cv = Ins('v_cvt_pk_bf16_f32 %s, %s, %s' % (
            vr(Preg(uu, qb, kb // 2) + (kb % 2) * 2 + r // 2), vr(V_E + (i - 1) % 4), e))
    return ex, ad, cv


def att_slots(p, u, ta, tb, inloop, pv=True, qk=True, sm_cur=True, sm_next=True, vnext=True, dmak=True, dmav=True,
              barrier=True, g=None, cap=2, vearly=False, extra_need=()):
    T0 = -40
    R = range(-128, 256)
    sc = {t: [] for t in R}
    ld = {t: [] for t in R}
    va = {t: [] for t in R}
    for t in range(0, 128, 2):
        if t >= X0:
            uu, i, on = u + 1, (t - X0) // 2, sm_next
        else:
            uu, i, on = u, (t + 128 - X0) // 2, sm_cur
        if on:
            ex, ad, cv = sm_instrs(uu, i)
            va[t].append(ex)
            va[t + 1].append(ad)
            if cv is not None:
                va[t + 1].append(cv)
    pos = [t for t in range(T0, T0 + 128) if t % 8 in (1, 4, 5)]
    n = 0
    m = 0
    for db in range(8):
        for ks in range(2):
            for j in range(2):
                t = pos[n]
                n += 1
                if t >= 0:
                    if pv:
                        ld[t].append(v_load(u - 1, db, ks, j, inloop))
                elif vnext:
                    if vearly:
                        ld[46 + m].append(v_load(u, db, ks, j, inloop))
                        m += 1
                    else:
                        ld[t + 128].append(v_load(u, db, ks, j, inloop))
        t = 8 * db - 1
        sc[t if t >= 0 else t + 128].append(wait_ins(ar(A_VF + db * 8, 8)))
    for kb in range(4):
        for s in range(4):
            t = pos[n]
            n += 1
            if qk:
                ld[t].append(k_load(u + 1, kb, s, inloop))
        if qk:
            sc[64 + 16 * kb - 1].append(wait_ins(ar(A_KF + kb * 16, 16)))
    for on, kind, uu, tt in ((dmav, 'V', u + DV, 2), (dmak, 'K', u + DK, 66)):
        if on:
            lst = dma_unit(kind, uu, inloop)
            sc[tt].append(lst[0])
            ds = OPT.get('dstep', 8)
            for k in range(4):
                ld[tt + ds * k + (4 if k == 0 else 0)].append(lst[1 + k])
            sc[tt + ds * 3 + 1].append(lst[5])
    if barrier:
        nd = [(LS(4 + VP(u)), vtag(u, inloop))] + list(extra_need)
        if qk:
            nd.append((LS((u + 1) % 4), ktag(u + 1, inloop)))
        sc[0].append(need_ins(*nd))
        sc[1].append(Ins('s_barrier'))
    g = g or Gaps(p)
    for t in range(ta, tb):
        mf = None
        if t < 64:
            if pv:
                db, qb, ks = t // 8, (t % 8) // 2, t % 2
                o = ar(A_O + (db * 4 + qb) * 4, 4)
                mf = '%s %s, %s, %s, %s' % (MF, o, ar(A_VF + db * 8 + ks * 4, 4), vr(Preg(u - 1, qb, ks), 4), o)
        elif qk:
            tt = t - 64
            kb, qb, s = tt // 16, (tt % 16) // 4, tt % 4
            d = vr(Sreg(kb, qb), 4)
            c = vr(V_NM + qb * 4, 4) if s == 0 else d
            mf = '%s %s, %s, %s, %s' % (MF, d, ar(A_KF + kb * 16 + s * 4, 4), vr(V_Q + (qb * 4 + s) * 4, 4), c)
        assert len(sc[t]) <= 1 and len(ld[t]) <= 1
        if mf is None and not (sc[t] or ld[t] or va[t]):
            continue
        g.gap(mf, sc[t], ld[t], va[t], cap=cap)


def kv_dma_setup():
    o = []
    a = lambda s: o.append(Ins(s))
    a('v_and_b32 %s, 15, %s' % (t0, L))
    a('v_lshrrev_b32 %s, 4, %s' % (t1, L))
    a('v_lshlrev_b32 %s, 8, %s' % (t2, t1))
    a('v_add_u32 %s, %s, %s' % (t2, sr(S_MK), t2))
    a('v_xor_b32 %s, %s, %s' % (t3, t0, t1))
    a('v_lshl_add_u32 %s, %s, 4, %s' % (vr(V_OK), t3, t2))
    for c in range(1, 4):
        a('v_xor_b32 %s, %d, %s' % (vr(V_OK + c), c * 64, vr(V_OK)))
    a('v_lshlrev_b32 %s, 1, %s' % (t3, t1))
    a('v_xor_b32 %s, %s, %s' % (t3, t0, t3))
    a('v_lshl_add_u32 %s, %s, 4, %s' % (vr(V_OV), t3, t2))
    a('v_xor_b32 %s, 128, %s' % (vr(V_OV + 1), vr(V_OV)))
    return o


def k_read_setup():
    o = []
    a = lambda s: o.append(Ins(s))
    a('v_and_b32 %s, 15, %s' % (t0, L))
    a('v_lshrrev_b32 %s, 4, %s' % (t1, L))
    a('v_xor_b32 %s, %s, %s' % (t2, t0, t1))
    a('v_lshlrev_b32 %s, 4, %s' % (t2, t2))
    a('v_lshl_add_u32 %s, %s, 8, %s' % (vr(V_KA), t0, t2))
    for s in range(1, 4):
        a('v_xor_b32 %s, %d, %s' % (vr(V_KA + s), s * 64, vr(V_KA)))
    return o


def v_read_setup():
    o = []
    a = lambda s: o.append(Ins(s))
    a('v_lshrrev_b32 %s, 2, %s' % (t2, L))
    a('v_and_b32 %s, 7, %s' % (t3, t2))
    a('v_lshlrev_b32 %s, 5, %s' % (t3, t3))
    a('v_lshl_add_u32 %s, %s, 8, %s' % (t3, t2, t3))
    a('v_and_b32 %s, 3, %s' % (t2, L))
    a('v_lshl_add_u32 %s, %s, 3, %s' % (t3, t2, t3))
    a('v_add_u32 %s, 0x10000, %s' % (vr(V_VA), t3))
    for d in range(1, 8):
        a('v_xor_b32 %s, %d, %s' % (vr(V_VA + d), d * 32, vr(V_VA)))
    return o


def xlane4(op, xs, ts):
    o = []
    for perm in ('v_permlane32_swap_b32', 'v_permlane16_swap_b32'):
        for x, t in zip(xs, ts):
            o.append(Ins('v_mov_b32 %s, %s' % (t, x)))
        for x, t in zip(xs, ts):
            o.append(Ins('%s %s, %s' % (perm, x, t)))
        for x, t in zip(xs, ts):
            o.append(Ins('%s %s, %s, %s' % (op, x, x, t)))
    return o


def div18(o, n, row, sl):
    o.append(Ins('v_mul_u32_u24 %s, 3641, %s' % (row, n)))
    o.append(Ins('v_lshrrev_b32 %s, 16, %s' % (row, row)))
    o.append(Ins('v_mul_u32_u24 %s, 18, %s' % (sl, row)))
    o.append(Ins('v_sub_u32 %s, %s, %s' % (sl, n, sl)))


def ffn_tiles():
    m, nv, na = {}, 0, 0
    for b in range(9):
        for mat in range(2):
            for qb in range(4):
                if mat == 1 and na < 18:
                    m[(2 * b + mat, qb)] = ('a', na * 4)
                    na += 1
                else:
                    m[(2 * b + mat, qb)] = ('v', 40 + nv * 4)
                    nv += 1
    assert nv == 54 and na == 18
    return m


FT = ffn_tiles()
WQ_SLOT = {8: 9, 7: 3, 6: 4, 5: 5, 4: 6, 3: 7, 2: 8, 1: 9, 0: 3}


def p1_dma(c):
    out = [Ins('s_add_u32 %s, %s, %d' % (T(8), sr(S_OFFW), c * 64 * 9216))]
    for i in range(9):
        if i % 4 == 0:
            out.append(Ins('s_add_u32 m0, %s, %d' % (sr(S_M1), PS(c)[0] + (i // 4) * 4096)))
        out.append(Ins('buffer_load_dwordx4 %s, %s, %s offen offset:%d lds' % (
            vr(V_OW + i), sr(S_WS, 4), T(8), (i % 4) * 1024), lds=(PS(c), ('W', c))))
    return out


def xn_loads(c, buf):
    base = A_B + buf * 32
    out = []
    for qb in range(4):
        out.append(Ins('s_mov_b32 %s, %d' % (T(qb), qb * 18 * 1024 + c * 2048)))
        for ks in range(2):
            out.append(Ins('buffer_load_dwordx4 %s, %s, %s, %s offen offset:%d' % (
                ar(base + (qb * 2 + ks) * 4, 4), vr(V_L16), sr(S_XN, 4), T(qb), ks * 1024)))
    return out


def wq_dma(c):
    sl = WQ_SLOT[c]
    out = []
    for cc in range(4):
        out.append(Ins('s_add_u32 %s, %s, %d' % (T(4 + cc % 2), sr(S_OFFQ), (c * 64 + cc * 4) * 8192)))
        out.append(Ins('s_add_u32 m0, %s, %d' % (sr(S_MK), sl * 16384 + cc * 1024)))
        out.append(Ins('buffer_load_dwordx4 %s, %s, %s offen lds' % (
            vr(V_OQ + cc % 2), sr(S_WQ, 4), T(4 + cc % 2)), lds=(LS(sl), ('Q', c))))
    return out


def p1_reads(c, blk, dst):
    mat, b = blk % 2, blk // 2
    return [Ins('ds_read_b64_tr_b16 %s, %s offset:%d' % (
        ar(dst + ks * 4 + 2 * j, 2), vr(V_A1 + c % 4),
        mat * 18432 + (32 * ks + 16 * j) * 288 + 32 * b), lds=(PS(c), ('W', c)))
        for ks in range(2) for j in range(2)]


def p2_reads(c, bq, dst):
    s, jj = bq // 2, bq % 2
    sl = WQ_SLOT[c]
    return [Ins('ds_read_b64_tr_b16 %s, %s offset:%d' % (
        ar(dst + ks * 4 + 2 * j, 2), vr(V_AQ + (sl // 4) * 4 + s),
        (sl % 4) * 16384 + (32 * ks + 16 * j) * 256 + 8 * jj), lds=(LS(sl), ('Q', c)))
        for ks in range(2) for j in range(2)]


def swiglu_unit(b, qb, ready, pool):
    gt, ut = FT[(2 * b, qb)], FT[(2 * b + 1, qb)]
    pk = FT[(2 * (b - b % 2), qb)][1] + (b % 2) * 2
    o = []
    ta, tb = vr(V_SW), vr(V_SW + 1)
    for r in (0, 2):
        pa, pb = vr(V_SW + 2 + r), vr(V_SW + 3 + r)
        g0, g1 = vr(gt[1] + r), vr(gt[1] + r + 1)
        if ut[0] == 'a':
            o.append(Ins('v_accvgpr_read_b32 %s, %s' % (pa, ar(ut[1] + r))))
            o.append(Ins('v_accvgpr_read_b32 %s, %s' % (pb, ar(ut[1] + r + 1))))
            u0, u1 = pa, pb
        else:
            u0, u1 = vr(ut[1] + r), vr(ut[1] + r + 1)
        if OPT.get('fold', 0):
            o.append(Ins('v_exp_f32 %s, %s' % (ta, g0)))
            o.append(Ins('v_exp_f32 %s, %s' % (tb, g1)))
        else:
            o.append(Ins('v_mul_f32 %s, %s, %s' % (ta, sr(S_NL), g0)))
            o.append(Ins('v_mul_f32 %s, %s, %s' % (tb, sr(S_NL), g1)))
            o.append(Ins('v_exp_f32 %s, %s' % (ta, ta)))
            o.append(Ins('v_exp_f32 %s, %s' % (tb, tb)))
        o.append(Ins('v_mul_f32 %s, %s, %s' % (pa, g0, u0)))
        o.append(Ins('v_mul_f32 %s, %s, %s' % (pb, g1, u1)))
        o.append(Ins('v_add_f32 %s, 1.0, %s' % (ta, ta)))
        o.append(Ins('v_add_f32 %s, 1.0, %s' % (tb, tb)))
        o.append(Ins('v_rcp_f32 %s, %s' % (ta, ta)))
        o.append(Ins('v_rcp_f32 %s, %s' % (tb, tb)))
        o.append(Ins('v_mul_f32 %s, %s, %s' % (pa, pa, ta)))
        o.append(Ins('v_mul_f32 %s, %s, %s' % (pb, pb, tb)))
    for r in (0, 2):
        o.append(Ins('v_cvt_pk_bf16_f32 %s, %s, %s' % (vr(pk + r // 2), vr(V_SW + 2 + r), vr(V_SW + 3 + r))))
    rel = [ut] + ([gt] if b % 2 == 1 else [])
    if b % 2 == 1:
        o.append(Ins('buffer_store_dwordx4 %s, %s, %s, %s offen offset:%d sc1' % (
            vr(pk - 2, 4), vr(V_L16), sr(S_H, 4), sr(S_HS + qb), (b // 2) * 1024), lds=('H', 0)))
        if OPT.get('plain_h'):
            o[-1].text = o[-1].text.replace(' sc1', '')
        rel.append(FT[(2 * (b - 1), qb)])
    elif b == 8:
        o.append(Ins('buffer_store_dwordx2 %s, %s, %s, %s offen sc1' % (
            vr(pk, 2), vr(V_L16), sr(S_H, 4), sr(S_HS + 4 + qb)), lds=('H', 0)))
        if OPT.get('plain_h'):
            o[-1].text = o[-1].text.replace(' sc1', '')
    o[0].ready = ready
    o[-1].on_emit = lambda: pool.extend(t for t in rel if not (t[0] == 'v' and t[1] >= V_Q))
    return o


def qcvt_unit(qb, s, QT, ready):
    o = []
    for h in range(2):
        tl = QT[(2 * s + h, qb)]
        tm = [vr(V_SW + e) for e in range(4)]
        for e in range(4):
            if tl[0] == 'a':
                o.append(Ins('v_accvgpr_read_b32 %s, %s' % (tm[e], ar(tl[1] + e))))
        for e in range(4):
            o.append(Ins('v_mul_f32 %s, %s, %s' % (tm[e], sr(S_C), tm[e] if tl[0] == 'a' else vr(tl[1] + e))))
        for e in range(2):
            o.append(Ins('v_cvt_pk_bf16_f32 %s, %s, %s' % (vr(V_Q + (qb * 4 + s) * 4 + 2 * h + e), tm[2 * e], tm[2 * e + 1])))
    o[0].ready = ready
    return o


class GemmSeq:
    def __init__(self, p, g):
        self.p, self.g = p, g
        self.groups = []

    def add(self, reads, nfr, mf, hook=None, bar=None, bwait=None, cap=2):
        self.groups.append(dict(reads=reads, n=nfr, mf=mf, hook=hook, bar=bar, bwait=bwait, cap=cap))

    def run(self):
        G, g, p = self.groups, self.g, self.p
        pos = 0
        for x in G:
            if x['n'] == 16 and pos % 16:
                pos += 8
            x['dst'] = A_A + pos % 32
            pos += x['n']
        for k, x in enumerate(G):
            regs = lambda y: set(range(y['dst'], y['dst'] + y['n']))
            ld = 1
            if k >= 2 and not (regs(x) & regs(G[k - 1])) and not (regs(x) & regs(G[k - 2])) and G[k - 1]['n'] == 8:
                ld = 2
            assert k == 0 or not (regs(x) & regs(G[k - 1]))
            x['at'] = k - ld
        for x in G:
            if x['at'] < 0:
                if x['bar']:
                    p.need(*x['bar'])
                    p('s_barrier')
                for i in x['reads'](x['dst']):
                    p.add(i)
        for k, x in enumerate(G):
            if x['hook']:
                x['hook']()
            todo = [y for y in G if y['at'] == k]
            rd, bar = [], []
            for y in todo:
                rd += y['reads'](y['dst'])
                if y['bar'] is not None:
                    bar += y['bar']
            hasbar = any(y['bar'] is not None for y in todo)
            mfs = x['mf'](x['dst'])
            n = len(mfs)
            st = 3 if hasbar else 0
            step = 2 if (st + 2 * ((len(rd) + 1) // 2) <= n - 1) else 1
            for t in range(n):
                sc, ld = [], []
                if hasbar and t == 1:
                    sc = [need_ins(('lgkm', 'all'), *bar)]
                if hasbar and t == 2:
                    sc = [Ins('s_barrier')]
                if t >= st and (t - st) % step == 0 and rd:
                    ld = rd[:2]
                    rd = rd[2:]
                if t == n - 1 and k + 1 < len(G):
                    y = G[k + 1]
                    bw = y['bwait']() if callable(y['bwait']) else (y['bwait'] or [])
                    w = [ar(y['dst'], y['n'])] + bw
                    sc = [wait_ins(*w)]
                g.gap(mfs[t](), sc, ld, cap=x['cap'])
                if hasbar and t == 2:
                    for y in todo:
                        if y.get('post'):
                            y['post']()
            assert not rd


V_DOWS = [22, 23, 24, 25, 26, 27, 248, 249, 250]
V_DRA = 40
V_DA = 56
V_AC2, V_AC1 = 104, 176
V_PK = 4
A_DB = 128
SPIN_BLOCKS = []


def poll_issue(soff, V_FV=V_FV, V_FOFF=V_FOFF, S_FL=S_FL):
    return Ins('buffer_load_dword %s, %s, %s, %s offen sc1' % (vr(V_FV), vr(V_FOFF), sr(S_FL, 4), sr(soff)))


def poll_check(p, name, soff, cmp='v_cmp_ne_u32 vcc, %s' % sr(S_EP), V_FV=V_FV, V_FOFF=V_FOFF, S_FL=S_FL, sleep=4):
    SPIN_BLOCKS.append("""L_spin_%(n)s:
 s_mov_b32 s3, 0
L_spin_%(n)s_l:
 s_sleep %(sl)d
 buffer_load_dword %(v)s, %(o)s, %(srd)s, %(so)s offen sc1
 s_add_u32 s3, s3, 1
 s_cmp_gt_u32 s3, 0x40000
 s_cbranch_scc1 L_ok_%(n)s
 s_waitcnt vmcnt(0)
 %(cmp)s, %(v)s
 s_cbranch_vccnz L_spin_%(n)s_l
 s_branch L_ok_%(n)s""" % dict(n=name, v=vr(V_FV), o=vr(V_FOFF), srd=sr(S_FL, 4), so=sr(soff), cmp=cmp, sl=sleep))
    p('%s, %s' % (cmp, vr(V_FV)))
    p('s_cbranch_vccnz L_spin_%s' % name)
    p.label('L_ok_%s' % name)


def flag_store(soff, tag):
    return Ins('buffer_store_dword %s, %s, %s, %s offen sc1' % (
        vr(V_ONE), vr(V_FST), sr(S_FL, 4), sr(soff)), lds=('flag', (tag, 0)))


_ct = [0]


def code_touch(label, vo, vd, sp):
    _ct[0] += 1
    n = 'L_ct%d' % _ct[0]
    blk = Ins('; raw')
    blk.rawtext = (' s_getpc_b64 %(p)s\n%(n)s:\n s_add_u32 %(lo)s, %(lo)s, %(l)s-%(n)s\n s_addc_u32 %(hi)s, %(hi)s, 0' %
                   dict(p=sr(sp, 2), n=n, lo=sr(sp), hi=sr(sp + 1), l=label))
    return [blk,
            Ins('s_lshr_b32 s3, s2, 3'),
            Ins('s_lshl_b32 s3, s3, 11'),
            Ins('v_and_b32 %s, 15, %s' % (vr(vo), L)),
            Ins('v_lshlrev_b32 %s, 7, %s' % (vr(vo), vr(vo))),
            Ins('v_add_u32 %s, s3, %s' % (vr(vo), vr(vo))),
            Ins('v_min_u32 %s, L_code_end-%s-4, %s' % (vr(vo), label, vr(vo))),
            Ins('global_load_dword %s, %s, %s' % (vr(vd), vr(vo), sr(sp, 2)))]


def sadd(r, k):
    return Ins('s_add_u32 %s, %s, %d' % (sr(r), sr(r), k))


SK0, SK1, NPOS = 12, 16, 19
S_ADJW, S_ADJB = S_OFFK, S_OFFV


def dtag(c, at):
    if at < SK0 <= c:
        return lambda it: ('D', c + 4 if MODE[0] else c)
    return ('D', c)


def d_dma(c, at=0):
    out = []
    for i in range(9):
        if i % 4 == 0:
            if at >= SK1:
                out.append(Ins('s_add_u32 %s, %s, %d' % (T(8), sr(S_ADJW), c * 36864 + (i // 4) * 4096)))
            else:
                out.append(Ins('s_mov_b32 %s, %d' % (T(8), c * 36864 + (i // 4) * 4096)))
            out.append(Ins('s_add_u32 m0, %s, %d' % (sr(S_M1), DS(c)[0] + (i // 4) * 4096)))
        out.append(Ins('buffer_load_dwordx4 %s, %s, %s offen offset:%d sc1 lds' % (
            vr(V_L16), sr(S_DW2, 4), T(8), (i % 4) * 1024), lds=(DS(c), dtag(c, at))))
    return out


def d_bloads(c, at=0):
    srd, loc, rbs = (S_DH, c, HS()) if c < 9 else (S_DO, c - 9, OS())
    out = []
    for rb in range(2):
        if at >= SK1:
            out.append(Ins('s_add_u32 %s, %s, %d' % (T(9 + rb), sr(S_ADJB), loc * 4096 + rb * rbs)))
        else:
            out.append(Ins('s_mov_b32 %s, %d' % (T(9 + rb), loc * 4096 + rb * rbs)))
        for ks in range(4):
            out.append(Ins('buffer_load_dwordx4 %s, %s, %s, %s offen offset:%d sc1' % (
                ar(A_DB + (c % 4) * 32 + (rb * 4 + ks) * 4, 4), vr(V_L16), sr(srd, 4), T(9 + rb), ks * 1024)))
    return out


def d_reads(c, nb, at=None):
    return [Ins('ds_read_b64_tr_b16 %s, %s offset:%d' % (
        vr(V_DA + (nb % 3) * 16 + ks * 4 + 2 * j, 2), vr(V_DRA + c % 4), (32 * ks + 16 * j) * 288 + 32 * nb),
        lds=(DS(c), dtag(c, c if at is None else at))) for ks in range(4) for j in range(2)]


def d_pstore(gemm, nb):
    acc = (V_AC2 if gemm else V_AC1) + nb * 8
    pk = V_PK + (nb % 3) * 4
    out = []
    if nb % 4 == 0:
        out.append(Ins('s_mov_b32 %s, %d' % (T(nb // 4), gemm * PG + (nb // 4) * 4096)))
    for e in range(4):
        out.append(Ins('v_cvt_pk_bf16_f32 %s, %s, %s' % (vr(pk + e), vr(acc + 2 * e), vr(acc + 2 * e + 1))))
    out.append(Ins('buffer_store_dwordx4 %s, %s, %s, %s offen offset:%d sc1' % (
        vr(pk, 4), vr(V_L16), sr(S_DP, 4), T(nb // 4), (nb % 4) * 1024), lds=('PT%d' % gemm, 0)))
    return out


def d_ploads(gemm, base):
    out = []
    for k in range(3):
        for sp in range(4):
            t = T(4 + (k * 4 + sp) % 2)
            if k < 2:
                out.append(Ins('s_mov_b32 %s, %d' % (t, gemm * PG + sp * 4 * 9216 + k * 4096)))
            else:
                out.append(Ins('s_add_u32 %s, %s, %d' % (t, sr(S_OFFQ), gemm * PG + sp * 4 * 9216 + k * 4096)))
            out.append(Ins('buffer_load_dwordx4 %s, %s, %s, %s offen sc1' % (
                vr(base + (k * 4 + sp) * 4, 4), vr(V_L16), sr(S_DR, 4), t)))
    return out


def d_sum(base, k, dst, tmp):
    out = []
    for e in range(4):
        for sp in range(4):
            src = vr(base + (k * 4 + sp) * 4 + e)
            lo = vr(dst + 2 * e) if sp == 0 else vr(tmp)
            hi = vr(dst + 2 * e + 1) if sp == 0 else vr(tmp + 1)
            out.append(Ins('v_lshlrev_b32 %s, 16, %s' % (lo, src)))
            out.append(Ins('v_and_b32 %s, 0xffff0000, %s' % (hi, src)))
            if sp:
                out.append(Ins('v_add_f32 %s, %s, %s' % (vr(dst + 2 * e), vr(dst + 2 * e), lo)))
                out.append(Ins('v_add_f32 %s, %s, %s' % (vr(dst + 2 * e + 1), vr(dst + 2 * e + 1), hi)))
    return out


def d_scalar_setup1():
    o = []
    a = lambda s: o.append(Ins(s))
    a('s_mul_i32 %s, %s, 288' % (T(1), sr(S_W)))
    a('s_lshl_b32 %s, %s, 6' % (T(0), sr(S_SP)))
    a('s_add_u32 %s, %s, %s' % (T(0), T(0), sr(S_TILE)))
    a('s_mul_i32 %s, %s, %d' % (T(2), T(0), 18 * 1152))
    a('s_add_u32 %s, %s, %s' % (T(2), T(2), T(1)))
    o += srd_ins(S_A1, P_W2, T(2), 17 * 1152 + 288)
    a('s_and_b32 %s, %s, 1' % (T(7), sr(S_SP)))
    a('s_lshl_b32 %s, %s, 3' % (T(6), sr(S_SP)))
    a('s_lshl_b32 %s, %s, 1' % (T(3), T(7)))
    a('s_add_u32 %s, %s, %s' % (T(6), T(6), T(3)))
    a('s_lshl_b32 %s, %s, 3' % (T(7), T(7)))
    a('s_sub_u32 %s, 20, %s' % (T(7), T(7)))
    a('s_mul_i32 %s, %s, %s' % (T(9), T(7), sr(S_TILE)))
    a('s_lshl_b32 %s, %s, 7' % (T(2), T(6)))
    a('s_add_u32 %s, %s, %s' % (T(2), T(2), T(9)))
    a('s_mul_i32 %s, %s, 1152' % (T(2), T(2)))
    a('s_add_u32 %s, %s, %s' % (T(2), T(2), T(1)))
    a('s_mul_i32 %s, %s, 1152' % (T(3), T(7)))
    a('s_sub_u32 %s, %s, 864' % (T(3), T(3)))
    o += srd_ins(S_A2, P_WO, T(2), T(3))
    a('s_lshl_b32 %s, %s, 2' % (T(0), sr(S_SP)))
    a('s_add_u32 %s, %s, %s' % (T(1), T(0), sr(S_W)))
    a('s_mul_i32 %s, %s, %d' % (T(1), T(1), WBLK))
    a('s_add_u32 %s, %s, 0x%x' % (T(1), T(1), WS_W))
    a('s_mul_i32 %s, %s, %d' % (T(2), sr(S_TILE), 18 * 288))
    a('s_add_u32 %s, %s, %s' % (T(2), T(2), T(1)))
    o += srd_ins(S_A3, P_WS, T(2), 18 * 288)
    a('s_mul_i32 %s, %s, 288' % (T(2), T(9)))
    a('s_add_u32 %s, %s, %s' % (T(2), T(2), T(1)))
    a('s_add_u32 %s, %s, %d' % (T(2), T(2), 1152 * 288))
    a('s_mul_i32 %s, %s, 288' % (T(3), T(7)))
    o += srd_ins(S_A4, P_WS, T(2), T(3))
    a('s_mov_b32 %s, 0' % sr(S_RO))
    a('s_and_b32 %s, s2, 3' % sr(S_SP))
    a('s_and_b32 %s, s2, 4' % T(0))
    a('s_lshr_b32 %s, s2, 6' % T(1))
    a('s_add_u32 %s, %s, %s' % (T(0), T(0), T(1)))
    a('s_lshl_b32 %s, %s, 3' % (T(0), T(0)))
    a('s_bfe_u32 %s, s2, 0x30003' % T(1))
    a('s_add_u32 %s, %s, %s' % (sr(S_TILE), T(0), T(1)))
    a('s_lshl_b32 %s, %s, 13' % (sr(S_FGR), sr(S_SP)))
    a('s_and_b32 %s, %s, 1' % (T(3), sr(S_SP)))
    a('s_lshl_b32 %s, %s, 1' % (T(3), T(3)))
    a('s_lshl_b32 %s, %s, 3' % (T(6), sr(S_SP)))
    a('s_add_u32 %s, %s, %s' % (T(6), T(6), T(3)))
    a('s_lshl_b32 %s, %s, 2' % (T(0), sr(S_SP)))
    a('s_and_b32 %s, %s, 3' % (T(1), sr(S_TILE)))
    a('s_add_u32 %s, %s, %s' % (T(1), T(0), T(1)))
    a('s_mul_i32 %s, %s, %d' % (T(1), T(1), WBLK))
    a('s_add_u32 %s, %s, %s' % (T(1), T(1), sr(S_M1)))
    a('s_add_u32 %s, %s, 0x%x' % (T(1), T(1), WS_W))
    o += srd_ins(S_DW2, P_WS, T(1), 18 * 36864 + 9216)
    a('s_lshr_b32 %s, %s, 2' % (T(4), sr(S_TILE)))
    a('s_lshl_b32 %s, %s, 2' % (T(5), T(4)))
    a('s_add_u32 %s, %s, %s' % (T(5), T(5), sr(S_W)))
    a('s_mul_i32 %s, %s, %d' % (T(2), T(5), 2 * HS()))
    a('s_mul_i32 %s, %s, %d' % (T(3), sr(S_SP), 36 * 1024))
    a('s_add_u32 %s, %s, %s' % (T(2), T(2), T(3)))
    a('s_add_u32 %s, %s, 0x%x' % (T(2), T(2), WS_H))
    o += srd_ins(S_DH, P_WS, T(2), HS() + 36 * 1024)
    a('s_mul_i32 %s, %s, %d' % (T(2), T(5), 2 * OS()))
    a('s_lshl_b32 %s, %s, 12' % (T(3), T(6)))
    a('s_add_u32 %s, %s, %s' % (T(2), T(2), T(3)))
    a('s_add_u32 %s, %s, 0x%x' % (T(2), T(2), WS_O))
    o += srd_ins(S_DO, P_WS, T(2), OS() + 40 * 1024)
    return o


def d_scalar_setup2():
    o = []
    a = lambda s: o.append(Ins(s))
    a('s_lshl_b32 %s, %s, 2' % (T(2), sr(S_TILE)))
    a('s_add_u32 %s, %s, %s' % (T(2), T(2), sr(S_SP)))
    a('s_lshl_b32 %s, %s, 7' % (sr(S_FT), T(2)))
    a('s_add_u32 %s, %s, 0x10000' % (sr(S_FT), sr(S_FT)))
    a('s_lshl_b32 %s, %s, 2' % (T(2), T(2)))
    a('s_add_u32 %s, %s, %s' % (T(2), T(2), sr(S_W)))
    a('s_mul_i32 %s, %s, 9216' % (T(2), T(2)))
    a('s_add_u32 %s, %s, 0x%x' % (T(2), T(2), WS_P))
    o += srd_ins(S_DP, P_WS, T(2), PG + 9216)
    a('s_lshl_b32 %s, %s, 4' % (T(2), sr(S_TILE)))
    a('s_add_u32 %s, %s, %s' % (T(2), T(2), sr(S_SP)))
    a('s_mul_i32 %s, %s, 9216' % (T(2), T(2)))
    a('s_lshl_b32 %s, %s, 10' % (T(3), sr(S_W)))
    a('s_add_u32 %s, %s, %s' % (T(2), T(2), T(3)))
    a('s_add_u32 %s, %s, 0x%x' % (T(2), T(2), WS_P))
    o += srd_ins(S_DR, P_WS, T(2), PG + 14 * 9216)
    a('s_and_b32 %s, %s, 3' % (T(1), sr(S_TILE)))
    a('s_mul_i32 %s, %s, 288' % (T(1), T(1)))
    a('s_andn2_b32 %s, %s, 3' % (T(2), sr(S_TILE)))
    a('s_add_u32 %s, %s, %s' % (T(2), T(2), sr(S_SP)))
    a('s_mul_i32 %s, %s, %d' % (T(2), T(2), 32 * 1152))
    a('s_add_u32 %s, %s, %s' % (T(2), T(2), T(1)))
    o += srd_ins(S_DX, P_X, T(2), 31 * 1152 + 288)
    o += srd_ins(S_DOUT, P_OUT, T(2), 31 * 1152 + 288)
    a('s_lshl_b32 %s, %s, 28' % (sr(S_OFFQ), sr(S_W)))
    a('s_mov_b32 %s, 0x%x' % (sr(S_C), f2u(LOG2E * LOG2E)))
    a('s_mul_i32 %s, %s, %d' % (sr(S_HS), sr(S_W), 4 * OS()))
    for qb in range(1, 4):
        a('s_add_u32 %s, %s, 0x%x' % (sr(S_HS + qb), sr(S_HS), qb * OS()))
    a('s_lshl_b32 %s, %s, 5' % (sr(S_HS + 4), sr(S_W)))
    a('s_add_u32 %s, %s, %d' % (sr(S_HS + 5), sr(S_HS + 4), 16 * 1152))
    a('s_lshl_b32 %s, %s, 20' % (sr(S_HS + 6), sr(S_W)))
    a('s_add_u32 %s, %s, %d' % (sr(S_HS + 7), sr(S_HS + 6), 16 * 1152))
    return o


V_RN, V_RV = 20, 21
V_RQ = (248, 36)


def repack_pat():
    return [Ins('v_mul_u32_u24 %s, 3641, %s' % (vr(V_RV), vr(V_RN))),
            Ins('v_lshrrev_b32 %s, 16, %s' % (vr(V_RV), vr(V_RV))),
            Ins('v_mul_u32_u24 %s, 864, %s' % (vr(V_RV), vr(V_RV))),
            Ins('v_lshl_add_u32 %s, %s, 4, %s' % (vr(V_RV), vr(V_RN), vr(V_RV))),
            Ins('v_add_u32 %s, 64, %s' % (vr(V_RN), vr(V_RN)))]


def o_epilogue_unit(qb, t, n, ready):
    base = 184 + (n % 4) * 12
    o = []
    for r in range(8):
        o.append(Ins('v_accvgpr_read_b32 %s, %s' % (vr(base + r), ar(A_O + ((2 * t + r // 4) * 4 + qb) * 4 + r % 4))))
    for r in range(8):
        o.append(Ins('v_mul_f32 %s, %s, %s' % (vr(base + r), vr(base + r), vr(V_L + qb))))
    for r in range(4):
        o.append(Ins('v_cvt_pk_bf16_f32 %s, %s, %s' % (vr(base + 8 + r), vr(base + 2 * r), vr(base + 2 * r + 1))))
    o.append(Ins('buffer_store_dwordx4 %s, %s, %s, %s offen offset:%d%s' % (
        vr(base + 8, 4), vr(V_L16), sr(S_O, 4), sr(S_HS + qb), t * 1024, '' if OPT.get('plain_o', 0) else ' sc1'), lds=('O', 0)))
    o[0].ready = ready
    return o


def ln_parts(B=64):
    v = lambda k, n=1: vr(B + k, n)
    A, Ld, C, St = [], [], [], []
    a = lambda t: A.append(Ins(t))
    a('s_lshl_b32 s3, %s, 5' % sr(S_QT))
    a('s_add_u32 s3, s3, %s' % sr(S_HD))
    a('s_lshl_b32 s3, s3, 3')
    a('v_lshrrev_b32 %s, 5, v0' % v(1))
    a('v_add_u32 %s, s3, %s' % (v(1), v(1)))
    a('v_and_b32 %s, 31, v0' % v(2))
    a('v_lshrrev_b32 %s, 2, %s' % (v(3), v(2)))
    a('v_and_b32 %s, 3, %s' % (v(4), v(2)))
    a('v_mul_u32_u24 %s, 1152, %s' % (v(5), v(1)))
    a('v_lshl_add_u32 %s, %s, 6, %s' % (v(5), v(3), v(5)))
    a('v_lshl_add_u32 %s, %s, 3, %s' % (v(5), v(4), v(5)))
    for r in range(16, 20):
        a('v_mov_b32 %s, 0' % v(r))
    msk = lambda: [Ins('v_cmp_gt_u32 vcc, 8, %s' % v(2)), Ins('s_mov_b64 exec, vcc')]
    Ld += srd_ins(S_O, P_X, None, 2048 * 1152)
    for it in range(3):
        if it == 2:
            Ld += msk()
        Ld.append(Ins('buffer_load_dwordx2 %s, %s, %s, 0 offen offset:%d' % (v(8 + 4 * it, 2), v(5), sr(S_O, 4), it * 512)))
        Ld.append(Ins('buffer_load_dwordx2 %s, %s, %s, 0 offen offset:%d' % (v(10 + 4 * it, 2), v(5), sr(S_O, 4), it * 512 + 32)))
    Ld.append(Ins('s_mov_b64 exec, -1'))
    c = lambda t: C.append(Ins(t))
    c('v_lshrrev_b32 %s, 4, %s' % (v(6), v(1)))
    c('v_mul_u32_u24 %s, 18, %s' % (v(6), v(6)))
    c('v_add_u32 %s, %s, %s' % (v(6), v(6), v(3)))
    c('v_lshlrev_b32 %s, 10, %s' % (v(6), v(6)))
    c('v_lshl_add_u32 %s, %s, 8, %s' % (v(6), v(4), v(6)))
    c('v_and_b32 %s, 15, %s' % (v(7), v(1)))
    c('v_lshl_add_u32 %s, %s, 4, %s' % (v(6), v(7), v(6)))
    for d in range(12):
        c('v_lshlrev_b32 %s, 16, %s' % (v(20 + 2 * d), v(8 + d)))
        c('v_and_b32 %s, 0xffff0000, %s' % (v(21 + 2 * d), v(8 + d)))

    def reduce32(x, t):
        for k in (8, 4, 2, 1):
            c('v_add_f32_dpp %s, %s, %s row_ror:%d row_mask:0xf bank_mask:0xf' % (x, x, x, k))
        c('v_mov_b32 %s, %s' % (t, x))
        c('v_permlane16_swap_b32 %s, %s' % (x, t))
        c('v_add_f32 %s, %s, %s' % (x, x, t))
    c('v_add_f32 %s, %s, %s' % (v(44), v(20), v(21)))
    c('v_add_f32 %s, %s, %s' % (v(45), v(22), v(23)))
    for e in range(4, 24, 2):
        c('v_add_f32 %s, %s, %s' % (v(44), v(44), v(20 + e)))
        c('v_add_f32 %s, %s, %s' % (v(45), v(45), v(21 + e)))
    c('v_add_f32 %s, %s, %s' % (v(44), v(44), v(45)))
    reduce32(v(44), v(45))
    c('v_mul_f32 %s, 0x%x, %s' % (v(44), f2u(1.0 / 576), v(44)))
    c('v_mov_b32 %s, 0' % v(46))
    c('v_mov_b32 %s, 0' % v(47))
    for e in range(24):
        if e == 16:
            C += msk()
        c('v_sub_f32 %s, %s, %s' % (v(48), v(20 + e), v(44)))
        c('v_fmac_f32 %s, %s, %s' % (v(46 + e % 2), v(48), v(48)))
    c('s_mov_b64 exec, -1')
    c('v_add_f32 %s, %s, %s' % (v(46), v(46), v(47)))
    reduce32(v(46), v(45))
    c('v_mul_f32 %s, 0x%x, %s' % (v(46), f2u(1.0 / 576), v(46)))

    def rnd(x):
        c('v_cvt_pk_bf16_f32 %s, %s, %s' % (x, x, x))
        c('v_lshlrev_b32 %s, 16, %s' % (x, x))
    rnd(v(44))
    rnd(v(46))
    c('v_add_f32 %s, 0x%x, %s' % (v(46), f2u(1e-5), v(46)))
    rnd(v(46))
    c('v_sqrt_f32 %s, %s' % (v(46), v(46)))
    rnd(v(46))
    c('v_rcp_f32 %s, %s' % (v(46), v(46)))
    if OPT.get('fold', 0):
        c('v_mul_f32 %s, 0x%x, %s' % (v(46), f2u(-LOG2E), v(46)))
    C += srd_ins(S_XN, P_WS, None, 2048 * 1152)
    c('s_mov_b32 %s, 8192' % T(0))
    c('s_mov_b32 %s, 16384' % T(1))
    for d in range(12):
        x, y = v(20 + 2 * d), v(21 + 2 * d)
        c('v_sub_f32 %s, %s, %s' % (x, x, v(44)))
        c('v_sub_f32 %s, %s, %s' % (y, y, v(44)))
        c('v_cvt_pk_bf16_f32 %s, %s, %s' % (v(8 + d), x, y))
        c('v_lshlrev_b32 %s, 16, %s' % (x, v(8 + d)))
        c('v_and_b32 %s, 0xffff0000, %s' % (y, v(8 + d)))
        c('v_mul_f32 %s, %s, %s' % (x, x, v(46)))
        c('v_mul_f32 %s, %s, %s' % (y, y, v(46)))
        c('v_cvt_pk_bf16_f32 %s, %s, %s' % (v(8 + d), x, y))
        if d % 4 == 3:
            if d == 11:
                C += msk()
            C.append(Ins('buffer_store_dwordx4 %s, %s, %s, %s offen sc1' % (
                v(5 + d, 4), v(6), sr(S_XN, 4), ('0', T(0), T(1))[d // 4]), lds=('XN', 0)))
    c('s_mov_b64 exec, -1')
    return A, Ld, C


def gen_start_roles(diag):
    B = 64
    v = lambda k, n=1: vr(B + k, n)
    p = Prog()

    def rs(k):
        if diag and OPT.get('sst'):
            p('s_memrealtime %s' % sr(S_DG, 2))
            p('s_waitcnt lgkmcnt(0)')
            p('v_writelane_b32 v1, %s, %d' % (sr(S_DG), 32 + k))
    p('s_cmp_ge_u32 %s, 2' % sr(S_W))
    p('s_cbranch_scc1 L_role_b')
    p('s_lshl_b32 s3, %s, 5' % sr(S_QT))
    p('s_add_u32 s3, s3, %s' % sr(S_HD))
    p('s_lshl_b32 %s, s3, 3' % T(0))
    p('v_lshrrev_b32 %s, 4, v0' % v(1))
    p('v_add_u32 %s, %s, %s' % (v(1), T(0), v(1)))
    p('v_and_b32 %s, 15, v0' % v(2))
    p('v_lshrrev_b32 %s, 2, %s' % (v(3), v(2)))
    p('v_and_b32 %s, 3, %s' % (v(4), v(2)))
    p('v_mul_u32_u24 %s, 1152, %s' % (v(5), v(1)))
    p('v_lshl_add_u32 %s, %s, 6, %s' % (v(5), v(3), v(5)))
    p('v_lshl_add_u32 %s, %s, 3, %s' % (v(5), v(4), v(5)))
    for r in range(24, 28):
        p('v_mov_b32 %s, 0' % v(r))
    p('v_cmp_gt_u32 vcc, 8, %s' % v(2))
    p('v_or_b32 %s, s2, v0' % v(80))
    p('v_min_u32 %s, 1, %s' % (v(80), v(80)))
    p('v_lshlrev_b32 %s, 20, %s' % (v(80), v(80)))
    p('s_mov_b64 s[26:27], vcc')
    p('s_waitcnt lgkmcnt(0)')
    make_srd(p, S_O, P_X, None, 2048 * 1152)
    for it in range(5):
        if it == 4:
            p('s_mov_b64 exec, s[26:27]')
        p('buffer_load_dwordx2 %s, %s, %s, 0 offen offset:%d' % (v(8 + 4 * it, 2), v(5), sr(S_O, 4), it * 256))
        p('buffer_load_dwordx2 %s, %s, %s, 0 offen offset:%d' % (v(10 + 4 * it, 2), v(5), sr(S_O, 4), it * 256 + 32))
    p('s_mov_b64 exec, -1')
    make_srd(p, S_WQ, 50, None, 256)
    p('s_or_b32 %s, s24, 1' % T(1))
    p('v_mov_b32 %s, %s' % (v(81), T(1)))
    p('buffer_store_dword %s, %s, %s, 0 offen sc1' % (v(81), v(80), sr(S_WQ, 4)))
    p('v_lshrrev_b32 %s, 4, %s' % (v(6), v(1)))
    p('v_mul_u32_u24 %s, 18, %s' % (v(6), v(6)))
    p('v_add_u32 %s, %s, %s' % (v(6), v(6), v(3)))
    p('v_lshlrev_b32 %s, 10, %s' % (v(6), v(6)))
    p('v_lshl_add_u32 %s, %s, 8, %s' % (v(6), v(4), v(6)))
    p('v_and_b32 %s, 15, %s' % (v(7), v(1)))
    p('v_lshl_add_u32 %s, %s, 4, %s' % (v(6), v(7), v(6)))
    make_srd(p, S_XN, P_WS, None, 2048 * 1152)
    p('s_mov_b32 %s, 0x%x' % (T(3), WS_F + 4 * 32768))
    make_srd(p, S_FL, P_WS, T(3), 65536)
    p('s_lshl_b32 %s, %s, 13' % (T(2), sr(S_QT)))
    p('s_lshl_b32 %s, s3, 1' % T(3))
    p('s_add_u32 %s, %s, %s' % (T(3), T(3), sr(S_W)))
    p('s_lshl_b32 %s, %s, 7' % (T(3), T(3)))
    p('v_lshlrev_b32 %s, 20, %s' % (v(82), L))
    p('v_lshlrev_b32 %s, 7, %s' % (v(83), L))
    p('v_mov_b32 %s, 0' % v(84))
    for k in range(1, 5):
        p('s_mov_b32 %s, %d' % (T(3 + k), 4096 * k))
    F = 30
    rs(3)
    p.wait_regs(v(8, 20))
    rs(4)
    for d in range(20):
        p('v_lshlrev_b32 %s, 16, %s' % (v(F + 2 * d), v(8 + d)))
        p('v_and_b32 %s, 0xffff0000, %s' % (v(F + 1 + 2 * d), v(8 + d)))
    p('buffer_load_dword %s, %s, %s, 0 offen sc1' % (v(85), v(84), sr(S_WQ, 4)))
    m, m2, q, q2, t = v(70), v(71), v(72), v(73), v(74)

    def reduce16(x):
        for k in (8, 4, 2, 1):
            p('v_add_f32_dpp %s, %s, %s row_ror:%d row_mask:0xf bank_mask:0xf' % (x, x, x, k))
    p('v_add_f32 %s, %s, %s' % (m, v(F), v(F + 1)))
    p('v_add_f32 %s, %s, %s' % (m2, v(F + 2), v(F + 3)))
    for e in range(4, 40, 2):
        p('v_add_f32 %s, %s, %s' % (m, m, v(F + e)))
        p('v_add_f32 %s, %s, %s' % (m2, m2, v(F + e + 1)))
    p('v_add_f32 %s, %s, %s' % (m, m, m2))
    reduce16(m)
    p('v_mul_f32 %s, 0x%x, %s' % (m, f2u(1.0 / 576), m))
    p('v_mov_b32 %s, 0' % q)
    p('v_mov_b32 %s, 0' % q2)
    for e in range(40):
        if e == 32:
            p('s_mov_b64 exec, s[26:27]')
        p('v_sub_f32 %s, %s, %s' % (t, v(F + e), m))
        p('v_fmac_f32 %s, %s, %s' % ((q, q2)[e % 2], t, t))
    p('s_mov_b64 exec, -1')
    p('v_add_f32 %s, %s, %s' % (q, q, q2))
    reduce16(q)
    p('v_mul_f32 %s, 0x%x, %s' % (q, f2u(1.0 / 576), q))

    def rnd(x):
        p('v_cvt_pk_bf16_f32 %s, %s, %s' % (x, x, x))
        p('v_lshlrev_b32 %s, 16, %s' % (x, x))
    rnd(m)
    rnd(q)
    p('v_add_f32 %s, 0x%x, %s' % (q, f2u(1e-5), q))
    rnd(q)
    p('v_sqrt_f32 %s, %s' % (q, q))
    rnd(q)
    p('v_rcp_f32 %s, %s' % (q, q))
    for d in range(20):
        x, y = v(F + 2 * d), v(F + 1 + 2 * d)
        p('v_sub_f32 %s, %s, %s' % (x, x, m))
        p('v_sub_f32 %s, %s, %s' % (y, y, m))
        p('v_cvt_pk_bf16_f32 %s, %s, %s' % (v(8 + d), x, y))
        p('v_lshlrev_b32 %s, 16, %s' % (x, v(8 + d)))
        p('v_and_b32 %s, 0xffff0000, %s' % (y, v(8 + d)))
        p('v_mul_f32 %s, %s, %s' % (x, x, q))
        p('v_mul_f32 %s, %s, %s' % (y, y, q))
        p('v_cvt_pk_bf16_f32 %s, %s, %s' % (v(8 + d), x, y))
        if d % 4 == 3:
            if d == 19:
                p('s_mov_b64 exec, s[26:27]')
            p('buffer_store_dwordx4 %s, %s, %s, %s offen sc1' % (v(5 + d, 4), v(6), sr(S_XN, 4), '0' if d == 3 else T(3 + d // 4)))
    p('s_mov_b64 exec, -1')
    rs(5)
    p('s_mov_b32 s3, 0')
    p.label('L_ep_l')
    p('s_memrealtime s[24:25]')
    p('s_waitcnt vmcnt(0) lgkmcnt(0)')
    p('v_readfirstlane_b32 %s, %s' % (T(0), v(85)))
    p('s_add_u32 %s, s24, 100' % T(1))
    p('s_sub_u32 %s, %s, %s' % (T(1), T(1), T(0)))
    p('s_bitcmp0_b32 %s, 0' % T(0))
    p('s_cselect_b32 %s, -1, %s' % (T(1), T(1)))
    p('s_cmp_lt_u32 %s, 5100' % T(1))
    p('s_cbranch_scc1 L_ep_ok')
    p('s_and_b32 %s, %s, 1' % (T(0), T(0)))
    p('s_mul_i32 %s, %s, 127' % (T(0), T(0)))
    p('s_add_u32 s3, s3, %s' % T(0))
    p('s_add_u32 s3, s3, 1')
    p('s_cmp_gt_u32 s3, 0x40000')
    p('s_cbranch_scc1 L_ep_ok')
    p('buffer_load_dword %s, %s, %s, 0 offen sc1' % (v(85), v(84), sr(S_WQ, 4)))
    p('s_branch L_ep_l')
    p.label('L_ep_ok')
    rs(6)
    p('buffer_store_dword %s, %s, %s, %s offen sc1' % (v(85), v(82), sr(S_FL, 4), T(3)))
    p('v_mov_b32 %s, 163836' % v(84))
    p('ds_write_b32 %s, %s' % (v(84), v(85)))
    p('s_mov_b32 %s, %s' % (sr(S_CNT), T(2)))
    p('s_branch L_join')
    SPIN_BLOCKS.append("""L_lnp:
 s_mov_b32 s3, 0
L_lnp_l:
 buffer_load_dword %s, %s, %s, %s offen sc1
 s_add_u32 s3, s3, 1
 s_cmp_gt_u32 s3, 0x40000
 s_cbranch_scc1 L_lnp_ok
 s_waitcnt vmcnt(0)
 v_cmp_ne_u32 vcc, %s, %s
 s_cbranch_vccnz L_lnp_l
 s_branch L_lnp_ok""" % (v(86), v(83), sr(S_FL, 4), sr(S_CNT), v(85), v(86)))
    p.label('L_role_b')
    R0 = OPT.get('pf0', 12)
    p('s_lshr_b32 %s, s2, 3' % T(0))
    p('s_mul_i32 %s, %s, %d' % (T(0), T(0), R0 * 9216))
    if OPT.get('map', 1):
        p('s_and_b32 %s, s2, 7' % T(1))
        p('s_mul_i32 %s, %s, 1152' % (T(1), T(1)))
        p('s_add_u32 %s, %s, %s' % (T(0), T(0), T(1)))
        p('s_waitcnt lgkmcnt(0)')
        p('s_cmp_eq_u32 %s, 3' % sr(S_W))
        p('s_cselect_b32 %s, s46, s44' % sr(S_H))
        p('s_cselect_b32 %s, s47, s45' % sr(S_H + 1))
        make_srd(p, S_H, S_H, T(0), (R0 - 1) * 9216 + 1152)
        if OPT.get('bdelay', 0):
            p('s_waitcnt vmcnt(0)')
        for k in range((R0 * 9 + 63) // 64):
            p('v_add_u32 %s, %d, %s' % (v(92), 64 * k, L))
            p('v_mul_u32_u24 %s, 7282, %s' % (v(93), v(92)))
            p('v_lshrrev_b32 %s, 16, %s' % (v(93), v(93)))
            p('v_mul_u32_u24 %s, %d, %s' % (v(93), 9216 - 1152, v(93)))
            p('v_lshl_add_u32 %s, %s, 7, %s' % (v(93), v(92), v(93)))
            p('buffer_load_dword %s, %s, %s, 0 offen' % (v(95 + k), v(93), sr(S_H, 4)))
    else:
        p('s_and_b32 %s, s2, 3' % T(1))
        p('s_mul_i32 %s, %s, 2304' % (T(1), T(1)))
        p('s_add_u32 %s, %s, %s' % (T(0), T(0), T(1)))
        p('s_waitcnt lgkmcnt(0)')
        both = OPT.get('pfh', 1) == 0
        if both:
            p('s_cmp_eq_u32 %s, 3' % sr(S_W))
        else:
            p('s_bitcmp1_b32 s2, 2')
        p('s_cselect_b32 %s, s46, s44' % sr(S_H))
        p('s_cselect_b32 %s, s47, s45' % sr(S_H + 1))
        make_srd(p, S_H, S_H, T(0), (R0 - 1) * 9216 + 2304)
        for k in range(4 if both else 2):
            o = [Ins('v_add_u32 %s, %d, %s' % (v(92), 64 * k, L)) if both else Ins('v_add_u32 %s, %d, v0' % (v(92), 128 * k - 128))]
            div18(o, v(92), v(93), v(94))
            for x in o:
                p.add(x)
            p('v_mul_u32_u24 %s, 9216, %s' % (v(93), v(93)))
            p('v_lshl_add_u32 %s, %s, 7, %s' % (v(93), v(94), v(93)))
            p('buffer_load_dword %s, %s, %s, 0 offen' % (v(95 + k), v(93), sr(S_H, 4)))
    p('s_mov_b32 %s, 0x%x' % (T(3), WS_F + 4 * 32768))
    make_srd(p, S_FL, P_WS, T(3), 65536)
    p('v_lshlrev_b32 %s, 7, %s' % (v(83), L))
    p('s_mov_b32 %s, 0' % sr(S_CNT))
    if OPT.get('bwait', 1):
        p('s_waitcnt vmcnt(0)')
    p.label('L_join')
    p.finalize()
    return p.text().rstrip('\n')


def gen_slow_softmax():
    p = Prog()
    KA, VA, OK, OV, NM, MX = 120, 124, 132, 136, 140, 138
    NM = 44
    NM, OV, MX = 136, 32, 36
    p.label('L_slow')
    p('s_waitcnt vmcnt(0) lgkmcnt(0)')
    p('s_nop 15')
    p('s_add_u32 %s, %s, %d' % (T(0), sr(S_MK), 112 * 1024))
    p('s_cmp_eq_u32 %s, 3' % sr(S_W))
    p('s_cselect_b32 %s, %d, %s' % (T(0), 72 * 1024, T(0)))
    p('s_sub_u32 %s, %s, 0x10000' % (T(1), T(0)))
    for k in range(4):
        p('v_add_u32 %s, %s, %s' % (vr(KA + k), T(0), vr(V_KA + k)))
        p('v_subrev_u32 %s, %s, %s' % (vr(OK + k), sr(S_MK), vr(V_OK + k)))
    for k in range(8):
        p('v_add_u32 %s, %s, %s' % (vr(VA + k), T(1), vr(V_VA + k)))
    for k in range(2):
        p('v_subrev_u32 %s, %s, %s' % (vr(OV + k), sr(S_MK), vr(V_OV + k)))

    def load16(srd, vo, nvo):
        p('s_mov_b32 m0, %s' % T(0))
        for cc in range(4):
            p('buffer_load_dwordx4 %s, %s, %s offen offset:%d lds' % (vr(vo + cc % nvo), sr(srd, 4), T(2), cc * 1024))
        p('s_add_u32 %s, %s, 4096' % (T(2), T(2)))
        p('s_waitcnt vmcnt(0)')

    def qk(cin):
        p('s_mov_b32 %s, %s' % (T(2), T(3)))
        for kb in range(4):
            load16(S_K, OK, 4)
            for sx in range(4):
                p('ds_read_b128 %s, %s' % (ar(A_VF + (kb * 4 + sx) * 4, 4), vr(KA + sx)))
            p('s_waitcnt lgkmcnt(0)')
        for kb in range(4):
            for qb in range(4):
                for sx in range(4):
                    d = vr(Sreg(kb, qb), 4)
                    p('%s %s, %s, %s, %s' % (MF, d, ar(A_VF + (kb * 4 + sx) * 4, 4), vr(V_Q + (qb * 4 + sx) * 4, 4),
                                             cin(qb) if sx == 0 else d))
    for qb in range(4):
        p('v_mov_b32 %s, 0xff7fffff' % vr(MX + qb))
    p('s_mov_b32 %s, 0' % T(3))
    p.loop_begin(2, 's1')
    p.label('L_slow1')
    qk(lambda qb: '0')
    for qb in range(4):
        regs = [vr(Sreg(kb, qb) + r) for kb in range(4) for r in range(4)]
        for k in range(8):
            p('v_max3_f32 %s, %s, %s, %s' % (vr(MX + qb), vr(MX + qb), regs[2 * k], regs[2 * k + 1]))
    p('s_add_u32 %s, %s, 16384' % (T(3), T(3)))
    p('s_cmp_lt_u32 %s, 0x80000' % T(3))
    p('s_cbranch_scc1 L_slow1')
    p.loop_end()
    for x in xlane4('v_max_f32', [vr(MX + k) for k in range(4)], [vr(V_E + k) for k in range(4)]):
        p.add(x)
    for qb in range(4):
        for r in range(4):
            p('v_sub_f32 %s, 0, %s' % (vr(NM + qb * 4 + r), vr(MX + qb)))
        p('v_mov_b32 %s, 0' % vr(V_L + qb))
    for i in range(128):
        p('v_accvgpr_write_b32 %s, 0' % ar(A_O + i))
    p('s_mov_b32 %s, 0' % T(3))
    lp = p.loop_begin(3, 's2')
    p.label('L_slow2')
    qk(lambda qb: vr(NM + qb * 4, 4))
    for i in range(64):
        for x in sm_instrs(1, i):
            if x is not None:
                p.add(x)
    p('s_cmp_eq_u32 %s, 0x7c000' % T(3))
    p('s_cbranch_scc1 L_slow_done')
    p.loop_mark_exit(lp)
    p('s_mov_b32 %s, %s' % (T(2), T(3)))
    for ks in range(2):
        for j in range(2):
            load16(S_V, OV, 2)
            for db in range(8):
                p('ds_read_b64_tr_b16 %s, %s' % (ar(A_VF + db * 8 + ks * 4 + 2 * j, 2), vr(VA + db)))
            p('s_waitcnt lgkmcnt(0)')
    for db in range(8):
        for qb in range(4):
            for ks in range(2):
                o = ar(A_O + (db * 4 + qb) * 4, 4)
                p('%s %s, %s, %s, %s' % (MF, o, ar(A_VF + db * 8 + ks * 4, 4), vr(Preg(1, qb, ks), 4), o))
    p('s_add_u32 %s, %s, 16384' % (T(3), T(3)))
    p('s_branch L_slow2')
    p.loop_end()
    p.label('L_slow_done')
    for db in range(4):
        for ks in range(2):
            for j in range(2):
                x = v_load(31, db, ks, j, False)
                x.lds = None
                p.add(x)
    p('s_waitcnt vmcnt(0) lgkmcnt(0)')
    p('s_nop 15')
    p('s_branch L_slow_ret')
    p.finalize()
    return p.text().rstrip('\n')


def gen_main(diag=False):
    p = Prog()
    del SPIN_BLOCKS[:]
    _ct[0] = 0

    def stamp(k):
        if diag:
            p('s_memtime %s' % sr(S_DG, 2))
            p('s_waitcnt lgkmcnt(0)')
            p('v_writelane_b32 v1, %s, %d' % (sr(S_DG), k))
            p('s_memrealtime %s' % sr(S_DG, 2))
            p('s_waitcnt lgkmcnt(0)')
            p('v_writelane_b32 v1, %s, %d' % (sr(S_DG), k + 16))

    def addall(lst):
        for x in lst:
            p.add(x)

    def rstamp(k):
        if diag and OPT.get('sst'):
            p('s_memrealtime %s' % sr(S_DG, 2))
            p('s_waitcnt lgkmcnt(0)')
            p('v_writelane_b32 v1, %s, %d' % (sr(S_DG), 32 + k))
    p('s_cmp_ge_u32 s2, 256')
    p('s_cbranch_scc1 L_end')
    if OPT.get('fuse', 2) == 2:
        p('s_getpc_b64 s[28:29]')
        p.label('L_top')
        p('s_lshr_b32 s3, s2, 3')
        p('s_lshl_b32 s3, s3, 5')
        p('v_and_b32 v154, 31, v0')
        p('v_mov_b32 v155, s3')
        p('v_cmp_gt_u32 vcc, 32, v0')
        p('v_cndmask_b32 v155, 0, v155, vcc')
        p('v_add_lshl_u32 v154, v154, v155, 7')
        p('v_min_u32 v154, L_code_end-L_top-4, v154')
        x = p('global_load_dword v155, v154, s[28:29]')
        x.wr = []
    p('s_load_dwordx4 s[44:47], s[0:1], 48')
    p('s_load_dwordx2 %s, s[0:1], 88' % sr(P_WS, 2))
    p('s_load_dwordx4 s[36:39], s[0:1], 8')
    p('s_load_dwordx2 s[40:41], s[0:1], 24')
    p('s_load_dwordx2 %s, s[0:1], 0' % sr(P_X, 2))
    p('s_load_dwordx2 %s, s[0:1], 32' % sr(P_WO, 2))
    p('s_load_dwordx4 %s, s[0:1], 64' % sr(P_W2, 4))
    FU = OPT.get('fuse', 2)
    if FU:
        p('s_load_dwordx2 s[50:51], s[0:1], 80')
    stamp(0)
    p('v_and_b32 %s, 63, v0' % L)
    p('v_lshrrev_b32 %s, 6, v0' % t0)
    p('v_readfirstlane_b32 %s, %s' % (sr(S_W), t0))
    if OPT.get('map', 1):
        p('s_and_b32 %s, s2, 7' % T(0))
        p('s_lshl_b32 %s, %s, 2' % (T(0), T(0)))
        p('s_bfe_u32 %s, s2, 0x20003' % T(1))
        p('s_add_u32 %s, %s, %s' % (sr(S_HD), T(0), T(1)))
        p('s_lshr_b32 %s, s2, 5' % sr(S_QT))
    else:
        p('s_and_b32 %s, s2, 3' % T(0))
        p('s_lshl_b32 %s, %s, 3' % (T(0), T(0)))
        p('s_bfe_u32 %s, s2, 0x30003' % T(1))
        p('s_add_u32 %s, %s, %s' % (sr(S_HD), T(0), T(1)))
        p('s_and_b32 %s, s2, 4' % T(0))
        p('s_lshr_b32 %s, s2, 6' % T(1))
        p('s_add_u32 %s, %s, %s' % (sr(S_QT), T(0), T(1)))
    if FU == 2:
        p('s_memrealtime s[24:25]')
        p('s_nop 4')
        p.raw(gen_start_roles(diag))
        rstamp(0)
    if FU == 1:
        lnA, lnL, lnC = ln_parts()
        ct = code_touch('L_start', 120, 121, S_FL)
        ct[2] = Ins('s_lshl_b32 s3, s3, 12')
        ct[3] = Ins('v_and_b32 v120, 31, %s' % L)
        addall(ct)
        p.label('L_start')
        addall(lnA)
        p('s_memrealtime s[24:25]')
        p('v_or_b32 v125, s2, v0')
        p('v_min_u32 v125, 1, v125')
        p('v_lshlrev_b32 v125, 20, v125')
        p('s_waitcnt lgkmcnt(0)')
        make_srd(p, S_WQ, 50, None, 256)
        p('s_or_b32 s3, s24, 1')
        p('v_mov_b32 v126, s3')
        p('buffer_store_dword v126, v125, %s, 0 offen sc1' % sr(S_WQ, 4))
        addall(lnL)
        rstamp(0)
    p('v_lshlrev_b32 %s, 4, %s' % (vr(V_L16), L))
    p('s_and_b32 %s, %s, 1' % (T(2), sr(S_HD)))
    p('s_lshl_b32 %s, %s, 1' % (T(2), T(2)))
    p('v_add_u32 %s, %s, %s' % (t3, T(2), L))
    p('v_mul_u32_u24 %s, 3641, %s' % (vr(V_T + 4), L))
    p('v_mul_u32_u24 %s, 3641, %s' % (vr(V_T + 5), t3))
    p('s_movk_i32 %s, 9216' % T(9))
    p('s_movk_i32 %s, -288' % T(10))
    vo = []
    for i in range(9):
        o = []
        o.append(Ins('v_add_u32 %s, %d, %s' % (t0, 64 * i * 3641, vr(V_T + 4))))
        o.append(Ins('v_add_u32 %s, %d, %s' % (t1, 64 * i * 3641, vr(V_T + 5))))
        o.append(Ins('v_lshrrev_b32 %s, 16, %s' % (t0, t0)))
        o.append(Ins('v_lshrrev_b32 %s, 16, %s' % (t1, t1)))
        o.append(Ins('v_lshlrev_b32 %s, 4, %s' % (t2, t3)) if i == 0 else Ins('v_add_u32 %s, %d, %s' % (t2, 4096 if i % 4 == 0 else 0, t2)))
        o.append(Ins('v_mad_u32_u24 %s, %s, %s, %s' % (t0, t0, T(9), t2)))
        o.append(Ins('v_mad_i32_i24 %s, %s, %s, %s' % (vr(V_OW + i), t1, T(10), t0)))
        if i % 4:
            del o[4]
        vo.append(o)
    for o in vo[:4]:
        addall(o)
    p('s_mul_i32 %s, %s, 9216' % (sr(S_M1), sr(S_W)))
    p('s_and_b32 %s, %s, 1' % (T(3), sr(S_W)))
    p('s_mul_i32 %s, %s, %d' % (sr(S_OFFW), T(3), 32 * 9216))
    p('s_mul_i32 %s, %s, 288' % (T(2), sr(S_HD)))
    p('s_sub_u32 %s, %d, %s' % (T(3), 576 * 9216, T(2)))
    p('s_lshl_b32 %s, %s, 2' % (T(6), sr(S_QT)))
    p('s_add_u32 %s, %s, %s' % (T(6), T(6), sr(S_W)))
    p('s_mul_i32 %s, %s, %d' % (T(7), T(6), 4 * 18 * 1024))
    p('s_cmp_lt_u32 %s, 2' % sr(S_W))
    p('s_waitcnt lgkmcnt(0)')
    p('s_cselect_b32 s48, s44, s46')
    p('s_cselect_b32 s49, s45, s47')
    make_srd(p, S_WS, 48, T(2), T(3))
    def ln_now():
        p('v_mov_b32 v127, 0')
        p('s_mov_b32 %s, 0' % sr(S_CNT))
        rstamp(1)
        p.wait_regs(vr(72, 12))
        p.add(poll_issue(S_CNT, 128, 127, S_WQ))
        rstamp(2)
        addall(lnC)
        rstamp(3)
        poll_check(p, 'ep', S_CNT, 'v_cmp_eq_u32 vcc, 0', 128, 127, S_WQ, sleep=2)
        p('v_readfirstlane_b32 %s, v128' % sr(S_EP))

    def w_touch0():
        R0 = OPT.get('pf0', 12)
        if not R0:
            return
        p('s_lshr_b32 %s, s2, 3' % T(0))
        p('s_mul_i32 %s, %s, %d' % (T(0), T(0), R0 * 9216))
        p('s_and_b32 %s, s2, 3' % T(1))
        p('s_mul_i32 %s, %s, 2304' % (T(1), T(1)))
        p('s_add_u32 %s, %s, %s' % (T(0), T(0), T(1)))
        p('s_bitcmp1_b32 s2, 2')
        p('s_cselect_b32 %s, s46, s44' % sr(S_H))
        p('s_cselect_b32 %s, s47, s45' % sr(S_H + 1))
        make_srd(p, S_H, S_H, T(0), (R0 - 1) * 9216 + 2304)
        o = []
        div18(o, 'v0', 'v122', 'v123')
        addall(o)
        p('v_mul_u32_u24 v122, 9216, v122')
        p('v_lshl_add_u32 v122, v123, 7, v122')
        p('buffer_load_dword v124, v122, %s, 0 offen' % sr(S_H, 4))
    ORD = OPT.get('ord', 1)
    if FU == 2:
        make_srd(p, S_XN, P_WS, T(7), 4 * 18 * 1024)
    elif FU:
        p('s_mov_b32 %s, %s' % (sr(S_RO), T(7)))
        if ORD >= 1:
            if ORD == 1:
                w_touch0()
            for o in vo[4:]:
                addall(o)
            vo = vo[:4]
            ln_now()
            if ORD == 2:
                w_touch0()
    else:
        make_srd(p, S_XN, P_WS, T(7), 4 * 18 * 1024)
    d0 = p1_dma(0)
    addall(d0[:6])
    for o in vo[4:]:
        addall(o)
    addall(d0[6:] + (xn_loads(0, 0) if not FU else []))
    if FU == 2:
        rstamp(1)
        p('s_cmp_eq_u32 %s, 0' % sr(S_W))
        p('s_cbranch_scc1 L_lnp')
        p.label('L_lnp_ok')
        p('s_waitcnt lgkmcnt(0)')
        p('s_barrier')
        rstamp(2)
        addall(xn_loads(0, 0))
        p('v_mov_b32 v64, 163836')
        p('ds_read_b32 v65, v64')
        p('v_readfirstlane_b32 %s, v65' % sr(S_EP))
    if FU == 1 and ORD == 0:
        w_touch0()
        ln_now()
    if OPT.get('pro', 1) == 0:
        addall(p1_dma(1) + xn_loads(1, 1) + p1_dma(2))
    PF0 = OPT.get('pf0', 12)
    assert PF0 % 2 == 0
    MP = OPT.get('map', 1)
    p('s_lshr_b32 %s, s2, 3' % T(0))
    p('s_and_b32 %s, s2, %d' % (T(1), 7 if MP else 3))
    p('s_lshl_b32 %s, %s, 1' % (T(2), T(0)))
    p('s_and_b32 %s, %s, 1' % (T(3), sr(S_W)))
    p('s_add_u32 %s, %s, %s' % (T(2), T(2), T(3)))
    p('s_mul_i32 %s, %s, 9216' % (T(2), T(2)))
    p('s_mul_i32 %s, %s, %d' % (T(3), T(1), 1152 if MP else 2304))
    p('s_add_u32 %s, %s, %s' % (T(2), T(2), T(3)))
    p('s_sub_u32 %s, %d, %s' % (T(9), 576 * 9216, T(2)))
    p('s_lshl_b32 %s, %s, 2' % (T(4), T(0)))
    p('s_add_u32 %s, %s, %s' % (T(4), T(4), sr(S_W)))
    p('s_lshl_b32 %s, %s, 13' % (T(4), T(4)))
    p('s_lshl_b32 %s, %s, %d' % (T(3), T(1), 10 if MP else 11))
    p('s_add_u32 %s, %s, %s' % (T(4), T(4), T(3)))
    p('s_sub_u32 %s, %d, %s' % (T(10), 576 * 8192, T(4)))
    p('s_lshl_b32 %s, %s, 19' % (T(5), sr(S_HD)))
    make_srd(p, S_K, 36, T(5), 0x80000)
    make_srd(p, S_V, 38, T(5), 0x80000)
    p('s_lshl_b32 %s, %s, 8' % (T(5), sr(S_HD)))
    p('s_sub_u32 %s, %d, %s' % (T(3), 576 * 8192, T(5)))
    make_srd(p, S_WQ, 40, T(5), T(3))
    make_srd(p, S_A1, 48, T(2), T(9))
    make_srd(p, S_A2, 40, T(4), T(10))
    p('v_lshlrev_b32 %s, 7, %s' % (t1, L))
    p('v_mov_b32 %s, 0x7f000000' % t2)
    p('v_cmp_gt_u32 vcc, %d, %s' % (9 if MP else 18, L))
    p('v_cndmask_b32 %s, %s, %s, vcc' % (vr(V_SW), t2, t1))
    p('v_cmp_gt_u32 vcc, %d, %s' % (8 if MP else 16, L))
    p('v_cndmask_b32 %s, %s, %s, vcc' % (vr(V_SW + 1), t2, t1))
    tw = lambda c: [Ins('s_mov_b32 %s, %d' % (T(7), c * 64 * 9216)),
                    Ins('buffer_load_dword %s, %s, %s, %s offen sc0' % (vr(V_SW + 2), vr(V_SW), sr(S_A1, 4), T(7)))]
    tq = lambda k: [Ins('s_mov_b32 %s, %d' % (T(7), k * 128 * 8192)),
                    Ins('buffer_load_dword %s, %s, %s, %s offen sc0' % (vr(V_SW + 3), vr(V_SW + 1), sr(S_A2, 4), T(7)))]
    touch = {c: [] for c in range(7)}
    for k, c in enumerate(range(PF0 // 2, 9)):
        touch[min(k, 6)] += tw(c)
    for k in range(5):
        touch[k + OPT.get('tq0', 0)] += tq(4 - k)
    for c in touch:
        for x in touch[c]:
            x.wr = [r for r in x.wr if r[0] != 'v']
    if not OPT.get('pf1', 1):
        touch = {}
    if OPT.get('fold', 0):
        p('s_mov_b32 %s, 0x%x' % (sr(S_C), f2u(-1.0 / 128 ** 0.5)))
        p('s_mov_b32 %s, 0x%x' % (sr(S_NL), f2u(-1.0 / LOG2E)))
    else:
        p('s_mov_b32 %s, 0x%x' % (sr(S_C), f2u(LOG2E / 128 ** 0.5)))
        p('s_mov_b32 %s, 0x%x' % (sr(S_NL), f2u(-LOG2E)))
    p('s_lshl_b32 %s, %s, 12' % (sr(S_MK), sr(S_W)))
    p('s_mov_b32 %s, 0' % sr(S_OFFK))
    p('s_mov_b32 %s, 0' % sr(S_OFFV))
    p('v_lshrrev_b32 %s, 2, %s' % (t0, L))
    p('v_mul_u32_u24 %s, 288, %s' % (t1, t0))
    p('v_and_b32 %s, 3, %s' % (t2, L))
    p('v_lshl_add_u32 %s, %s, 3, %s' % (vr(V_A1), t2, t1))
    for k in range(1, 4):
        p('v_add_u32 %s, %d, %s' % (vr(V_A1 + k), k * 36864, vr(V_A1)))
    p('v_and_b32 %s, 15, %s' % (t0, L))
    p('v_lshrrev_b32 %s, 4, %s' % (t1, L))
    p('v_lshlrev_b32 %s, 1, %s' % (t3, t1))
    p('v_xor_b32 %s, %s, %s' % (t3, t0, t3))
    p('v_lshlrev_b32 %s, 4, %s' % (t3, t3))
    p('v_lshl_add_u32 %s, %s, 13, %s' % (vr(V_OQ), t1, t3))
    p('v_xor_b32 %s, 128, %s' % (vr(V_OQ + 1), vr(V_OQ)))
    p('s_lshl_b32 %s, %s, 17' % (sr(S_OFFQ), sr(S_W)))
    addall(kv_dma_setup())
    p('s_mul_i32 %s, %s, %d' % (T(3), T(6), 4 * HS()))
    p('s_add_u32 %s, %s, 0x%x' % (T(3), T(3), WS_H))
    make_srd(p, S_H, P_WS, T(3), 4 * HS())
    p('s_mul_i32 %s, %s, %d' % (T(3), sr(S_QT), 16 * OS()))
    p('s_lshl_b32 %s, %s, 12' % (T(4), sr(S_HD)))
    p('s_add_u32 %s, %s, %s' % (T(3), T(3), T(4)))
    p('s_add_u32 %s, %s, 0x%x' % (T(3), T(3), WS_O))
    p('s_sub_u32 %s, %d, %s' % (T(5), 16 * OS(), T(4)))
    make_srd(p, S_O, P_WS, T(3), T(5))
    p('s_mov_b32 %s, 0x%x' % (T(3), WS_F))
    make_srd(p, S_FL, P_WS, T(3), 5 * 32768)
    p('s_lshr_b32 %s, %s, 3' % (sr(S_SP), sr(S_HD)))
    p('s_and_b32 %s, %s, 7' % (T(0), sr(S_HD)))
    p('s_lshl_b32 %s, %s, 3' % (sr(S_TILE), sr(S_QT)))
    p('s_add_u32 %s, %s, %s' % (sr(S_TILE), sr(S_TILE), T(0)))
    p('s_lshl_b32 %s, %s, 6' % (T(0), sr(S_SP)))
    p('s_add_u32 %s, %s, %s' % (T(0), T(0), sr(S_TILE)))
    p('s_lshl_b32 %s, %s, 7' % (sr(S_FWG), T(0)))
    p('s_lshl_b32 %s, %s, 13' % (sr(S_FGR), sr(S_SP)))
    p('s_mul_i32 %s, %s, 9' % (T(2), sr(S_HD)))
    p('s_add_u32 %s, %s, 1' % (T(2), T(2)))
    p('s_lshr_b32 %s, %s, 1' % (T(2), T(2)))
    p('s_lshl_b32 %s, %s, 10' % (sr(S_HS), T(2)))
    p('s_bitcmp1_b32 %s, 0' % sr(S_HD))
    p('s_mov_b32 %s, 4096' % T(3))
    p('s_cselect_b32 %s, %d, %s' % (T(3), -1024 + 8, T(3)))
    p('s_add_u32 %s, %s, %s' % (sr(S_HS + 4), sr(S_HS), T(3)))
    for qb in range(1, 4):
        p('s_add_u32 %s, %s, %d' % (sr(S_HS + qb), sr(S_HS), qb * HS()))
        p('s_add_u32 %s, %s, %d' % (sr(S_HS + 4 + qb), sr(S_HS + 4), qb * HS()))
    if OPT.get('pro', 1) == 1:
        addall(p1_dma(1))
    if FU == 1:
        make_srd(p, S_XN, P_WS, sr(S_RO), 4 * 18 * 1024)
        p('s_lshl_b32 %s, %s, 12' % (T(2), sr(S_QT)))
        p('s_add_u32 %s, %s, %d' % (T(2), T(2), 4 * 32768))
        p('s_lshl_b32 %s, %s, 7' % (T(3), sr(S_HD)))
        p('s_add_u32 %s, %s, %s' % (T(3), T(3), T(2)))
        p('v_lshlrev_b32 v125, 20, v0')
        p('v_and_b32 v129, 31, %s' % L)
        p('v_lshlrev_b32 v129, 7, v129')
        rstamp(4)
        p.need(('XN', 0))
        rstamp(5)
        p('s_barrier')
        rstamp(6)
        p('buffer_store_dword v128, v125, %s, %s offen sc1' % (sr(S_FL, 4), T(3)), lds=('flag', ('XN', 0)))
        if OPT.get('lnpoll', 0) == 1:
            SPIN_BLOCKS.append("""L_lnp:
 s_mov_b32 s3, 0
L_lnp_l:
 buffer_load_dword v130, v129, %s, %s offen sc1
 s_add_u32 s3, s3, 1
 s_cmp_gt_u32 s3, 0x40000
 s_cbranch_scc1 L_lnp_ok
 s_waitcnt vmcnt(0)
 v_cmp_ne_u32 vcc, %s, v130
 s_cbranch_vccz L_lnp_ok
 s_sleep 2
 s_branch L_lnp_l""" % (sr(S_FL, 4), T(2), sr(S_EP)))
            p('s_cmp_eq_u32 %s, 0' % sr(S_W))
            p('s_cbranch_scc1 L_lnp')
            p.label('L_lnp_ok')
            p('s_barrier')
        else:
            p.add(poll_issue(S_T0 + 2, 130, 129))
            poll_check(p, 'ln', S_T0 + 2, 'v_cmp_ne_u32 vcc, %s' % sr(S_EP), 130, 129, sleep=2)
        addall(xn_loads(0, 0))
    stamp(1)

    if OPT.get('donly'):
        p('s_waitcnt vmcnt(0)')
        addall(d_scalar_setup1() + d_scalar_setup2() + k_read_setup() + v_read_setup())
        p('v_lshlrev_b32 %s, 20, v0' % vr(V_FST))
        p('v_mov_b32 %s, 1' % vr(V_ONE))
        p('v_lshlrev_b32 %s, 7, %s' % (vr(V_FOFF), L))
        p('v_mov_b32 %s, 0' % vr(V_RV))
        p('s_mov_b32 %s, 0' % sr(S_OFFW))
        for k in range(2, 7):
            stamp(k)
        p.raw(' s_branch L_donly')
    g = Gaps(p)
    seq = GemmSeq(p, g)
    pool = deque(('a', 72 + 4 * k) for k in range(14))

    def alloc():
        while not pool:
            x = (g.st or g.lo).popleft()
            g.over += max(1, cost(x))
            g.emit(x)
        for t in pool:
            if t[0] == 'v':
                pool.remove(t)
                return t
        return pool.popleft()

    XB = {}
    ring = lambda buf: [('a', A_B + buf * 32 + 4 * k) for k in range(8)]

    def xn_l(c, tiles):
        out = []
        for qb in range(4):
            out.append(Ins('s_mov_b32 %s, %d' % (T(qb), qb * 18 * 1024 + c * 2048)))
            for ks in range(2):
                out.append(Ins('buffer_load_dwordx4 %s, %s, %s, %s offen offset:%d' % (
                    rg(tiles[qb * 2 + ks]), vr(V_L16), sr(S_XN, 4), T(qb), ks * 1024)))
        return out

    def aq_setup():
        o = []
        a = lambda s: o.append(Ins(s))
        a('v_lshrrev_b32 %s, 2, %s' % (t0, L))
        a('v_and_b32 %s, 7, %s' % (t1, t0))
        a('v_lshlrev_b32 %s, 1, %s' % (t1, t1))
        a('v_and_b32 %s, 3, %s' % (t2, L))
        a('v_xor_b32 %s, %s, %s' % (t1, t1, t2))
        a('v_lshlrev_b32 %s, 4, %s' % (t1, t1))
        a('v_lshl_add_u32 %s, %s, 8, %s' % (vr(V_AQ), t0, t1))
        for s in range(1, 4):
            a('v_xor_b32 %s, %d, %s' % (vr(V_AQ + s), 64 * s, vr(V_AQ)))
        for rgn in range(1, 3):
            for s in range(4):
                a('v_add_u32 %s, 0x%x, %s' % (vr(V_AQ + rgn * 4 + s), rgn * 65536, vr(V_AQ + s)))
        return o

    def mk_mf(acc, chunks, xb, first):
        def mf(dst):
            out = []
            for qb in range(4):
                for ci, c in enumerate(chunks):
                    for ks in range(2):
                        def th(qb=qb, ci=ci, c=c, ks=ks):
                            a = rg(acc(qb))
                            cin = '0' if (first and ci == 0 and ks == 0) else a
                            return '%s %s, %s, %s, %s' % (MF, a, ar(dst + ci * 8 + ks * 4, 4), rg(xb(c)[qb * 2 + ks]), cin)
                        out.append(th)
            return out
        return mf

    for c in range(9):
        XB[c] = ring(c % 3)
    for c in range(7):
        for blk in range(18):
            hook = None
            if blk == 0:
                def hook(c=c):
                    if OPT.get('cst'):
                        p('s_memrealtime %s' % sr(S_DG, 2))
                        p('s_waitcnt lgkmcnt(0)')
                        p('v_writelane_b32 v1, %s, %d' % (sr(S_DG), 32 + c))
                    g.drop = {0: (), 1: ('dma',), 2: ('vld',), 3: ('dma', 'vld'), 4: ('dma', 'vld', 'dsr')}[OPT.get('drop', 0)]
                    g.vm_gap = OPT.get('vg1', 5) if c > 1 else OPT.get('vg0', 5)
                    if c == 0 and OPT.get('pro', 1):
                        g.hi.extend(xn_l(1, XB[1]) + p1_dma(2))
                    g.hi.extend(touch.get(c, []))
                    xl = xn_l(c + 2, XB[c + 2])
                    if c == 0:
                        g.hi.extend(xl + p1_dma(3))
                    else:
                        g.hi.extendleft(reversed(xl)) if OPT.get('xfirst', 0) else g.hi.extend(xl)
                    if c == 4:
                        g.hi.extend(wq_dma(8))
                    if c == 4 and OPT.get('ct1', 1):
                        g.hi.extend(code_touch('L_c1', V_SW + 4, V_SW + 5, S_A3))
                    if c == 6:
                        assert not any(y.kind == 'dma' and y.lds[1][0] == 'W' for y in g.hi)
                        g.lo.extend(aq_setup())
            seq.add(lambda dst, c=c, blk=blk: p1_reads(c, blk, dst), 8,
                    mk_mf(lambda qb, blk=blk: FT[(blk, qb)], [c], lambda c: XB[c], c == 0), hook=hook,
                    bar=[(PS(c), ('W', c))] if blk == 0 else None,
                    bwait=[rg(t) for t in XB[c]] if blk == 0 else None)
            if blk == 0 and 1 <= c <= 5:
                seq.groups[-1]['post'] = lambda c=c: g.hi.extend(p1_dma(c + 3))
            if blk == 0 and c == 6:
                seq.groups[-1]['post'] = lambda: g.hi.extend(wq_dma(7))
    CT = OPT.get('cap_t', 3)
    for blk in range(18):
        hook = None
        if blk >= 2 and blk % 2 == 0:
            def hook(b=blk // 2 - 1):
                for qb in range(4):
                    g.lo.extend(swiglu_unit(b, qb, g.n + 3, pool))
        if blk == 0:
            def hook():
                g.drop = ()
                p.label('L_c1')
                stamp(2)
        seq.add(lambda dst, blk=blk: p1_reads(7, blk, dst) + p1_reads(8, blk, dst + 8), 16,
                mk_mf(lambda qb, blk=blk: FT[(blk, qb)], [7, 8], lambda c: XB[c], False), hook=hook,
                bar=[(PS(7), ('W', 7)), (PS(8), ('W', 8))] if blk == 0 else None,
                bwait=[rg(t) for t in XB[7] + XB[8]] if blk == 0 else None, cap=CT)
        if blk == 0:
            seq.groups[-1]['post'] = lambda: g.hi.extend(wq_dma(6) + wq_dma(5))
    QT = {}

    def qacc(bq, qb):
        if (bq, qb) not in QT:
            QT[(bq, qb)] = alloc()
        return QT[(bq, qb)]
    XQ = {8: XB[8], 7: XB[7], 6: XB[6], 4: ring(1), 3: ring(2), 2: ring(0), 0: ring(1)}
    C2 = OPT.get('cap_p2', 2)
    qn = lambda c: (LS(WQ_SLOT[c]), ('Q', c))
    for bq in range(8):
        hook = None
        if bq == 0:
            def hook():
                stamp(3)
                g.vm_gap = OPT.get('vg2', 4)
                g.st_w = OPT.get('stw2', 1)
                for qb in range(4):
                    g.lo.extend(swiglu_unit(8, qb, g.n + 3, pool))
        if bq == 3:
            def hook():
                XQ[5] = XQ[1] = [alloc() for _ in range(8)]
                g.hi.extend(xn_l(5, XQ[5]))
        seq.add(lambda dst, bq=bq: p2_reads(8, bq, dst) + p2_reads(7, bq, dst + 8), 16,
                mk_mf(lambda qb, bq=bq: qacc(bq, qb), [8, 7], lambda c: XQ[c], True), hook=hook,
                bar=[qn(8), qn(7)] if bq == 0 else None, cap=C2)
        if bq == 0:
            seq.groups[-1]['post'] = lambda: g.hi.extend(
                wq_dma(4) + wq_dma(3) + wq_dma(2))
    for c in (6, 5, 4, 3, 2):
        for bq in range(8):
            hook = None
            if bq == 0:
                def hook(c=c):
                    for cc in {6: (4, 3), 5: (2,), 4: (1,), 3: (0,), 2: ()}[c]:
                        g.hi.extend(xn_l(cc, XQ[cc]))
            seq.add(lambda dst, c=c, bq=bq: p2_reads(c, bq, dst), 8,
                    mk_mf(lambda qb, bq=bq: qacc(bq, qb), [c], lambda c: XQ[c], False), hook=hook,
                    bar=[qn(c)] if bq == 0 else None, cap=C2,
                    bwait=(lambda c=c: [rg(t) for t in XQ[c]]) if bq == 0 else None)
            if bq == 0:
                seq.groups[-1]['lazyb'] = c
                post = {6: lambda: g.hi.extend(wq_dma(1) + wq_dma(0)),
                        3: lambda: g.hi.extend(dma_unit('K', 0, False)),
                        2: lambda: g.hi.extend(dma_unit('K', 1, False) + dma_unit('V', 0, False))}.get(c)
                seq.groups[-1]['post'] = post
    for bq in range(8):
        hook = None
        if bq == 0:
            def hook():
                print('swiglu backlog at last P2 group:', len(g.hi), len(g.lo), 'over', g.over, file=sys.stderr)
                g.hi.extend(dma_unit('K', 2, False) + dma_unit('V', 1, False))
        if bq >= 2 and bq % 2 == 0:
            def hook(s=bq // 2 - 1):
                for qb in range(4):
                    g.lo.extend(qcvt_unit(qb, s, QT, g.n + 3))
        seq.add(lambda dst, bq=bq: p2_reads(1, bq, dst) + p2_reads(0, bq, dst + 8), 16,
                mk_mf(lambda qb, bq=bq: qacc(bq, qb), [1, 0], lambda c: XQ[c], False), hook=hook,
                bar=[qn(1), qn(0)] if bq == 0 else None, cap=C2,
                bwait=(lambda: [rg(t) for t in XQ[1] + XQ[0]]) if bq == 0 else None)
    seq.run()
    stamp(4)
    print('G backlog at end:', len(g.hi), len(g.lo), 'over', g.over, 'waste', g.waste, file=sys.stderr)
    for qb in range(4):
        g.lo.extend(qcvt_unit(qb, 3, QT, 0))
    addall(k_read_setup())
    p.need(('lgkm', 'all'), (LS(0), ('K', 0)))
    p('s_barrier')
    for kb in range(4):
        for s in range(4):
            p.add(k_load(0, kb, s, False))
    g.flush()
    g.vm_gap = 4
    g.hi.extend(dma_unit('K', 3, False))
    g.hi.extend(d_scalar_setup1())
    g.lo.extend(Ins('v_accvgpr_write_b32 %s, 0' % ar(A_O + i)) for i in range(128))
    for kb in range(4):
        for qb in range(4):
            for s in range(4):
                d = vr(Sreg(kb, qb), 4)
                g.gap('%s %s, %s, %s, %s' % (MF, d, ar(A_KF + kb * 16 + s * 4, 4), vr(V_Q + (qb * 4 + s) * 4, 4), '0' if s == 0 else d))
    g.flush()
    addall(v_read_setup())
    for qb in range(4):
        p('v_mov_b32 %s, 0' % vr(V_L + qb))
    p('v_lshlrev_b32 %s, 20, v0' % vr(V_FST))
    if not FU:
        p('s_mov_b32 %s, 1' % sr(S_EP))
    p('v_mov_b32 %s, %s' % (vr(V_ONE), sr(S_EP)))
    p('v_lshlrev_b32 %s, 7, %s' % (vr(V_FOFF), L))
    addall(code_touch('L_att_tail', 32, 33, S_DWO)[:-1])
    p('v_mov_b32 %s, %s' % (vr(V_RN), L))
    addall(repack_pat())
    ms = [vr(V_E + qb) for qb in range(4)]
    for step in range(8):
        for qb in range(4):
            regs = [vr(Sreg(kb, qb) + r) for kb in range(4) for r in range(4)]
            if step == 0:
                p('v_max3_f32 %s, %s, %s, %s' % (ms[qb], regs[0], regs[1], regs[2]))
            elif step < 7:
                p('v_max3_f32 %s, %s, %s, %s' % (ms[qb], ms[qb], regs[2 * step + 1], regs[2 * step + 2]))
            else:
                p('v_max_f32 %s, %s, %s' % (ms[qb], ms[qb], regs[15]))
    addall(xlane4('v_max_f32', ms, [vr(V_T + k) for k in range(4)]))
    for qb in range(4):
        for r in range(4):
            p('v_sub_f32 %s, 0, %s' % (vr(V_NM + qb * 4 + r), ms[qb]))
    for kb in range(4):
        for qb in range(4):
            for r in range(4):
                x = vr(Sreg(kb, qb) + r)
                p('v_add_f32 %s, %s, %s' % (x, x, vr(V_NM + qb * 4)))
    stamp(5)
    def sm_plain(uu, i0, i1):
        prev = []
        for i in range(i0, i1):
            ex, ad, cv = sm_instrs(uu, i)
            p.add(ex)
            addall(prev)
            prev = [ad] + ([cv] if cv else [])
        p('s_nop 0')
        addall(prev)
    sm_plain(0, 0, 28)
    att_slots(p, 0, 0, 64, False, pv=False, sm_cur=False)
    sm_plain(0, 28, 60)
    p('s_mov_b32 %s, 0' % sr(S_CNT))
    p('s_lshl_b32 %s, %s, 4' % (sr(S_OFFQ), sr(S_W)))
    p('s_add_u32 %s, %s, 2' % (sr(S_OFFQ), sr(S_OFFQ)))
    p.wait_regs(ar(A_KF, 16))
    NIT = 8 if OPT.get('short', 1) else 7
    lp = p.loop_begin(NIT, 'att')
    p('.p2align 6')
    p.label('L_att')
    rtag = ('R', 0)
    g.vm_gap = 8

    def rp_loads():
        g.hi.append(Ins('buffer_load_dwordx4 %s, %s, %s, 0 offen nt' % (vr(V_RQ[0], 4), vr(V_RV), sr(S_A1, 4))))
        g.hi.append(Ins('buffer_load_dwordx4 %s, %s, %s, 0 offen nt' % (vr(V_RQ[1], 4), vr(V_RV), sr(S_A2, 4))))

    def rp_stores():
        g.hi.append(Ins('buffer_store_dwordx4 %s, %s, %s, %s offen sc1' % (vr(V_RQ[0], 4), vr(V_L16), sr(S_A3, 4), sr(S_RO)), lds=rtag))
        g.hi.append(Ins('buffer_store_dwordx4 %s, %s, %s, %s offen sc1' % (vr(V_RQ[1], 4), vr(V_L16), sr(S_A4, 4), sr(S_RO)), lds=rtag))
        g.hi.append(Ins('s_add_u32 %s, %s, 1024' % (sr(S_RO), sr(S_RO))))
    att_slots(p, 0, 64, 96, True)
    rp_loads()
    att_slots(p, 0, 96, 128, True, g=g, cap=4)
    assert not g.hi
    att_slots(p, 1, 0, 64, True)
    p('s_add_u32 %s, %s, 1' % (sr(S_CNT), sr(S_CNT)))
    p('s_cmp_eq_u32 %s, %d' % (sr(S_CNT), NIT))
    p('s_cbranch_scc1 L_att_tail')
    p.loop_mark_exit(lp)
    g.lo.extend(repack_pat())
    att_slots(p, 1, 64, 128, True, g=g, cap=3)
    assert not g.lo
    att_slots(p, 2, 0, 30, True, extra_need=[rtag, ('H', 0)])
    if OPT.get('plain_h'):
        SPIN_BLOCKS.append('L_wbh:\n buffer_wbl2 sc1\n s_branch L_wbh_done')
        p('s_cmp_eq_u32 %s, %s' % (sr(S_CNT), sr(S_OFFQ)))
        p('s_cbranch_scc1 L_wbh')
        p.label('L_wbh_done')
    p('s_cmp_eq_u32 %s, 4' % sr(S_CNT))
    p('s_cselect_b32 %s, %s, 0x100000' % (T(0), sr(S_FWG)))
    fl = flag_store(S_T0, 'H')
    g.hi.append(fl)
    g.vm_gap = 3
    rp_stores()
    att_slots(p, 2, 30, 66, True, g=g, cap=4)
    assert not g.hi
    att_slots(p, 2, 66, 96, True)
    g.vm_gap = 8
    rp_loads()
    att_slots(p, 2, 96, 128, True, g=g, cap=4)
    assert not g.hi
    g.lo.extend(repack_pat())
    att_slots(p, 3, 0, 96, True, g=g, cap=3)
    assert not g.lo
    if OPT.get('ct2', 1):
        g.hi.append(Ins('global_load_dword v33, v32, %s' % sr(S_DWO, 2)))
    att_slots(p, 3, 96, 128, True, g=g, cap=4)
    assert not g.hi
    att_slots(p, 4, 0, 30, True)
    g.vm_gap = 3
    rp_stores()
    att_slots(p, 4, 30, 64, True, g=g, cap=4)
    assert not g.hi
    p('s_branch L_att')
    p.loop_end()
    p.label('L_att_tail')
    stamp(6)
    g.vm_gap = 4
    def nowr(l):
        for x in l:
            x.wr = [r for r in x.wr if r[0] != 'v']
        return l

    def touch_w(c, srd=S_A1):
        return nowr([Ins('s_mov_b32 %s, %d' % (T(6), c * 36864)),
                     Ins('buffer_load_dword v248, %s, %s, %s offen sc0' % (vr(V_RV), sr(srd, 4), T(6)))])

    def touch_h(k):
        return nowr([Ins('s_add_u32 %s, %s, %d' % (T(6), sr(S_RO), k * 8192)),
                     Ins('buffer_load_dword v249, v250, %s, %s offen sc0' % (sr(S_A2, 4), T(6)))])
    TD = OPT.get('touch_d', 0)
    if NIT == 7:
        att_slots(p, 25, 64, 96, False)
        g.hi.append(poll_issue(S_FGR))
        tt = []
        a = lambda x: tt.append(Ins(x))
        a('s_lshr_b32 %s, s2, 3' % T(0))
        a('s_lshl_b32 %s, %s, 2' % (T(1), sr(S_SP)))
        a('s_add_u32 %s, %s, %s' % (T(1), T(1), sr(S_W)))
        a('s_mul_i32 %s, %s, %d' % (T(1), T(1), WBLK))
        a('s_mul_i32 %s, %s, 1152' % (T(2), T(0)))
        a('s_add_u32 %s, %s, %s' % (T(1), T(1), T(2)))
        a('s_add_u32 %s, %s, 0x%x' % (T(1), T(1), WS_W))
        tt += srd_ins(S_A1, P_WS, T(1), 18 * 36864 + 1152)
        a('s_and_b32 %s, s2, 4' % T(1))
        a('s_lshl_b32 %s, %s, 3' % (T(1), T(1)))
        a('s_add_u32 %s, %s, %s' % (T(1), T(1), T(0)))
        a('s_lshl_b32 %s, %s, 1' % (T(1), T(1)))
        a('s_and_b32 %s, %s, 1' % (T(2), sr(S_W)))
        a('s_add_u32 %s, %s, %s' % (T(1), T(1), T(2)))
        a('s_mul_i32 %s, %s, %d' % (T(1), T(1), HS()))
        a('s_mul_i32 %s, %s, %d' % (T(2), sr(S_SP), 36 * 1024))
        a('s_add_u32 %s, %s, %s' % (T(1), T(1), T(2)))
        a('s_add_u32 %s, %s, 0x%x' % (T(1), T(1), WS_H))
        tt += srd_ins(S_A2, P_WS, T(1), 36 * 1024)
        a('s_lshr_b32 %s, %s, 1' % (T(1), sr(S_W)))
        a('s_lshl_b32 %s, %s, 12' % (sr(S_RO), T(1)))
        a('s_lshl_b32 %s, %s, 2' % (T(2), sr(S_TILE)))
        a('s_add_u32 %s, %s, %s' % (T(2), T(2), sr(S_SP)))
        a('s_lshl_b32 %s, %s, 2' % (T(2), T(2)))
        a('s_add_u32 %s, %s, %s' % (T(2), T(2), sr(S_W)))
        a('s_mul_i32 %s, %s, 9216' % (T(2), T(2)))
        a('s_add_u32 %s, %s, 0x%x' % (T(2), T(2), WS_P))
        tt += srd_ins(S_A3, P_WS, T(2), 9216)
        g.hi.extend(tt)
        g.lo.extend(Ins('v_mov_b32 v%d, -1' % r) for r in range(36, 40))
        g.lo.extend([Ins('v_mul_u32_u24 %s, 7282, %s' % (vr(V_RV), L)),
                     Ins('v_lshrrev_b32 %s, 16, %s' % (vr(V_RV), vr(V_RV))),
                     Ins('v_mul_u32_u24 %s, %d, %s' % (vr(V_RV), 36864 - 1152, vr(V_RV))),
                     Ins('v_lshl_add_u32 %s, %s, 7, %s' % (vr(V_RV), L, vr(V_RV))),
                     Ins('v_mov_b32 v251, 0x7f000000'),
                     Ins('v_cmp_gt_u32 vcc, 18, %s' % L),
                     Ins('v_cndmask_b32 %s, v251, %s, vcc' % (vr(V_RV), vr(V_RV))),
                     Ins('v_cmp_gt_u32 vcc, 32, %s' % L),
                     Ins('v_cndmask_b32 v250, v251, %s, vcc' % vr(V_FOFF))])
        att_slots(p, 25, 96, 128, False, g=g, cap=4)
        att_slots(p, 26, 0, 64, False, g=g, cap=3, dmav=False)
        g.flush()
        addall(dma_unit('V', 28, False))
        poll_check(p, 'h', S_FGR)

        tl = []
        if TD:
            for k in range(5):
                tl += [touch_w(2 * k), touch_h(k)]
        else:
            tl = [[] for _ in range(10)]
        if OPT.get('tagged', 0):
            for k in range(9):
                tl[k] = tl[k] + [Ins('s_mov_b32 %s, %d' % (T(5), k * 1024)),
                                 Ins('buffer_store_dwordx4 v[36:39], %s, %s, %s offen sc1' % (vr(V_L16), sr(S_A3, 4), T(5)), lds=('PT1', 0))]
        for u in (26, 27, 28, 29):
            for (ta, tb, on) in ((0, 32, 0), (32, 48, 1), (48, 64, 1), (64, 96, 0), (96, 112, 1), (112, 128, 1)):
                if (u == 26 and ta < 64) or (u == 29 and ta >= 64):
                    continue
                if on and tl:
                    g.hi.extend(tl.pop(0))
                att_slots(p, u, ta, tb, False, g=g if on else None, cap=4, dmak=(u + DK < 32))
                assert not g.hi
        assert not tl
        for k in range(4):
            p('s_mov_b32 %s, %s' % (sr(S_DWO + k), sr(S_A1 + k)))
    else:
        assert not TD and not OPT.get('tagged', 0)
        g.hi.append(poll_issue(S_FGR))
    g.hi.extend(d_scalar_setup2())
    att_slots(p, 29, 64, 128, False, dmak=False, g=g, cap=4)
    g.flush()
    if NIT == 8:
        poll_check(p, 'h', S_FGR)
    p.label('L_donly')
    att_slots(p, 30, 0, 2, False, dmak=False, dmav=False, g=g)
    g.vm_gap = 5
    g.hi.extend(d_dma(0) + d_dma(1))
    g.hi.append(sadd(S_FWG, 32768))
    g.hi.append(Ins('s_and_b32 %s, %s, 0x38' % (T(0), sr(S_TILE))))
    g.hi.append(Ins('s_lshl_b32 %s, %s, 7' % (T(0), T(0))))
    g.hi.append(Ins('s_add_u32 %s, %s, %s' % (sr(S_FGR), sr(S_FGR), T(0))))
    g.hi.append(sadd(S_FGR, 32768))
    g.hi.append(Ins('s_add_u32 %s, %s, 8192' % (sr(S_OFFW), sr(S_FGR))))
    g.hi.append(Ins('s_and_b32 %s, %s, 1' % (sr(S_ADJB), sr(S_SP))))
    g.hi.append(Ins('s_lshl_b32 %s, %s, 9' % (T(1), sr(S_ADJB))))
    g.hi.append(Ins('s_or_b32 %s, %s, 0x180' % (T(1), T(1))))
    g.hi.append(Ins('v_and_b32 v250, %s, %s' % (T(1), vr(V_FOFF))))
    g.hi.append(Ins('s_mul_i32 %s, %s, %d' % (sr(S_ADJW), sr(S_ADJB), -4 * 36864)))
    g.hi.append(Ins('s_mul_i32 %s, %s, %d' % (sr(S_ADJB), sr(S_ADJB), -4 * 4096)))
    g.lo.append(Ins('v_and_b32 %s, 0x380, %s' % (vr(V_FOFF), vr(V_FOFF))))
    att_slots(p, 30, 2, 97, False, dmak=False, dmav=False, g=g, cap=4, barrier=False)
    g.vm_gap = 4
    g.hi.extend(d_bloads(0))
    att_slots(p, 30, 97, 128, False, dmak=False, dmav=False, g=g, cap=4, barrier=False)
    att_slots(p, 31, 0, 2, False, qk=False, sm_next=False, dmak=False, dmav=False, g=g, vearly=True)
    g.vm_gap = 3
    g.hi.extend(d_bloads(1) + d_dma(2))
    o = []
    o.append(Ins('v_lshrrev_b32 %s, 2, %s' % (t0, L)))
    o.append(Ins('v_mul_u32_u24 %s, 288, %s' % (t1, t0)))
    o.append(Ins('v_and_b32 %s, 3, %s' % (t2, L)))
    o.append(Ins('v_lshl_add_u32 %s, %s, 3, %s' % (vr(V_DRA), t2, t1)))
    for k in range(1, 4):
        o.append(Ins('v_add_u32 %s, %d, %s' % (vr(V_DRA + k), DBASE[k], vr(V_DRA))))
    g.lo.extend(o)
    g.lo.append(Ins('v_mov_b32 %s, 0x%x' % (vr(V_RN), f2u(2.0 ** OPT.get('thr', 30)))))
    att_slots(p, 31, 2, 64, False, qk=False, sm_next=False, dmak=False, dmav=False, g=g, cap=4, barrier=False, vearly=True)
    g.flush()
    sm_plain(31, 60, 64)
    p('v_max3_f32 %s, %s, %s, %s' % (t0, vr(V_L), vr(V_L + 1), vr(V_L + 2)))
    p('v_add_f32 %s, %s, %s' % (t0, t0, vr(V_L + 3)))
    p('v_cmp_nlt_f32 vcc, %s, %s' % (t0, vr(V_RN)))
    p('s_cbranch_vccnz L_slow')
    p.label('L_slow_ret')
    SPIN_BLOCKS.append(gen_slow_softmax())
    ls = [vr(V_L + qb) for qb in range(4)]
    g.lo.extend(xlane4('v_add_f32', ls, [vr(V_T + k) for k in range(4)]))
    g.lo.extend(Ins('v_rcp_f32 %s, %s' % (x, x)) for x in ls)
    n0 = g.n
    n = 0
    for t in range(4):
        for qb in range(4):
            g.lo.extend(o_epilogue_unit(qb, t, n, n0 + 16 * (t + 1) + 3))
            n += 1
    p.wait_regs(ar(A_VF, 8))
    kw = dict(qk=False, sm_cur=False, sm_next=False, vnext=False, dmak=False, dmav=False, g=g, barrier=False)
    att_slots(p, 32, 0, 33, False, **kw)
    g.hi.extend(d_bloads(2))
    att_slots(p, 32, 33, 46, False, **kw)
    p.need(('lgkm', 'all'), (DS(0), ('D', 0)))
    p('s_barrier')
    g.st.extend(d_reads(0, 0) + d_reads(0, 1))
    att_slots(p, 32, 46, 64, False, **kw)
    while g.st and g.st[0].kind == 'dsr':
        g.emit(g.st.popleft())
    assert not any(x.kind == 'dsr' for x in g.st)
    stamp(7)
    p.wait_regs(ar(A_DB, 32), vr(V_DA, 16))
    stamp(8)
    G2, GG = V_AC2, V_AC2 + 48
    xreg = lambda k, rb: 44 + (k * 2 + rb) * 2
    VO = V_T + 5

    def fin_setup():
        o = []
        o.append(Ins('v_and_b32 %s, 0x180, %s' % (vr(V_FOFF), vr(V_FOFF))))
        o.append(Ins('s_andn2_b32 %s, %s, 0x1ff' % (sr(S_FGR), sr(S_FT))))
        o.append(Ins('v_and_b32 %s, 15, %s' % (t0, L)))
        o.append(Ins('v_mul_u32_u24 %s, 1152, %s' % (t0, t0)))
        o.append(Ins('v_lshrrev_b32 %s, 4, %s' % (t1, L)))
        o.append(Ins('v_lshl_add_u32 %s, %s, 3, %s' % (vr(VO), t1, t0)))
        for k in range(3):
            for rb in range(2):
                o.append(Ins('buffer_load_dwordx2 %s, %s, %s, %s offen offset:%d' % (
                    vr(xreg(k, rb), 2), vr(VO), sr(S_DX, 4), sr(S_HS + 4 + rb + (2 if k == 2 else 0)), 128 * k)))
        return o

    def silu_g():
        o = []
        for k in range(3):
            d = GG + 8 * k
            o += d_sum(G2, k, d, V_T)
            for e in range(0, 8, 2):
                ta, tb = vr(V_T), vr(V_T + 1)
                o.append(Ins('v_mul_f32 %s, %s, %s' % (ta, sr(S_NL), vr(d + e))))
                o.append(Ins('v_mul_f32 %s, %s, %s' % (tb, sr(S_NL), vr(d + e + 1))))
                o.append(Ins('v_exp_f32 %s, %s' % (ta, ta)))
                o.append(Ins('v_exp_f32 %s, %s' % (tb, tb)))
                if OPT.get('fold', 0):
                    o.append(Ins('v_fma_f32 %s, %s, %s, %s' % (ta, ta, sr(S_C), sr(S_C))))
                    o.append(Ins('v_fma_f32 %s, %s, %s, %s' % (tb, tb, sr(S_C), sr(S_C))))
                else:
                    o.append(Ins('v_add_f32 %s, 1.0, %s' % (ta, ta)))
                    o.append(Ins('v_add_f32 %s, 1.0, %s' % (tb, tb)))
                o.append(Ins('v_rcp_f32 %s, %s' % (ta, ta)))
                o.append(Ins('v_rcp_f32 %s, %s' % (tb, tb)))
                o.append(Ins('v_mul_f32 %s, %s, %s' % (vr(d + e), vr(d + e), ta)))
                o.append(Ins('v_mul_f32 %s, %s, %s' % (vr(d + e + 1), vr(d + e + 1), tb)))
        return o

    g.vm_gap = 1
    SO = OPT.get('o_done', 2)
    LAST = NPOS - 1
    for c in range(NPOS):
        acc0 = V_AC2 if c < 9 else V_AC1
        first = c in (0, 9)
        if c == 9:
            stamp(14)
        if c in (SK0, SK1):
            g.flush()
        if c == SK0:
            p('s_bitcmp1_b32 %s, 0' % sr(S_SP))
            p('s_cbranch_scc1 L_dskip')
            p.loop_begin(1, 'opt')
        if c == SK1:
            p.loop_end()
            p.label('L_dskip')
        if OPT.get('dst'):
            p('s_memrealtime %s' % sr(S_DG, 2))
            p('s_waitcnt lgkmcnt(0)')
            p('v_writelane_b32 v1, %s, %d' % (sr(S_DG), 32 + c))
        extra_need = []
        post = []
        cap = 2
        if c <= SO:
            cap = OPT.get('cap_o', 4)
        if c == SO + 1:
            assert not g.lo and not g.st, len(g.lo)
            extra_need = [('O', 0)]
            post = [flag_store(S_FWG, 'O')]
            g.st_max = 1
            fs = fin_setup()
            g.lo.extend(fs[2:-6])
        if c == 6:
            g.hi.extend(fs[-6:])
        if TD and c in (2, 3, 4, 5, 6):
            g.hi.extend(touch_w(10 + 2 * (c - 2), S_DWO))
        if c == 6:
            g.st.append(poll_issue(S_FGR, V_FOFF=250))
        if c == 10:
            g.st.append(poll_issue(S_FGR))
        if c == 11:
            poll_check(p, 'o1', S_FGR)
        if c == 7:
            poll_check(p, 'o', S_FGR, V_FOFF=250)
            g.hi.extend(d_bloads(9, c))
            cap = 3
        if c == SK1 - 2:
            g.st.append(poll_issue(S_OFFW))
        if c == SK1 - 1:
            poll_check(p, 'o2', S_OFFW)
        if c <= 8:
            g.hi.extend((d_bloads(c + 3, c) if c != 6 else []) + d_dma(c + 3, c))
        elif 10 <= c <= LAST - 2:
            g.hi.extend(d_dma(c + 2, c) + d_bloads(c + 2, c))
        if c in (9, 10):
            for nb in (range(6) if c == 9 else range(6, 9)):
                g.lo.extend(d_pstore(1, nb))
            cap = 3
        if c == 11:
            assert not g.lo and not g.st
            extra_need = [('PT1', 0)]
            post = [flag_store(S_FT, 'PT1')]
            g.lo.extend(fs[:2])
            cap = 3
        if c == LAST - 2:
            g.st.append(poll_issue(S_FGR))
        if c == LAST - 1:
            poll_check(p, 'p2', S_FGR)
            g.hi.extend([sadd(S_FGR, 32768), sadd(S_FT, 32768)])
            g.hi.extend(d_ploads(1, G2))
        nv = sum(1 for x in g.hi if cost(x) == 2)
        if OPT.get('verbose_d'):
            print('D pos', c, 'queued vmem', nv, file=sys.stderr)
        g.vm_gap = OPT.get('vgd', 4) if c > SO else OPT.get('vgd2', 3)
        g.st_w = OPT.get('stw', 1)
        if c in (10, 11, SK1 - 1):
            g.vm_gap = 3
            cap = 3
        if c == LAST:
            g.vm_gap = 1
        for nb in range(9):
            n2 = nb + 2
            Lr = d_reads(c, n2) if n2 < 9 else (d_reads(c + 1, n2 - 9, c) if c < LAST else [])
            if c == LAST and nb >= 2:
                g.hi.extend(d_pstore(0, nb - 2))
            for t in range(8):
                rb, ks = t // 4, t % 4
                a = vr(acc0 + (nb * 2 + rb) * 4, 4)
                m = '%s %s, %s, %s, %s' % (MF, a, vr(V_DA + (nb % 3) * 16 + ks * 4, 4),
                                           ar(A_DB + (c % 4) * 32 + (rb * 4 + ks) * 4, 4),
                                           '0' if (first and ks == 0) else a)
                sc, ld = [], []
                if nb == 7:
                    if Lr and t >= 4:
                        ld = [Lr[2 * (t - 4)], Lr[2 * (t - 4) + 1]]
                    if t == 2 and c < LAST:
                        assert not any(y.kind == 'dma' and y.lds[0] == DS(c + 1) for y in g.hi), c
                        sc = [need_ins(('lgkm', 'all'), (DS(c + 1), dtag(c + 1, c)), *extra_need)]
                    if t == 3 and c < LAST:
                        sc = [Ins('s_barrier')]
                elif Lr:
                    ld = [Lr[t], Lr[t + 1]] if t % 2 == 0 else []
                if t == 7:
                    w = [vr(V_DA + ((nb + 1) % 3) * 16, 16)]
                    if nb == 8:
                        w.append(ar(A_DB + ((c + 1) % 4) * 32, 32))
                    sc = [wait_ins(*w)]
                g.gap(m, sc, ld, cap=cap)
                if nb == 7 and t == 3:
                    g.st.extend(post)
    stamp(9)
    g.hi.extend(d_pstore(0, 7) + d_pstore(0, 8))
    g.flush()
    stamp(10)
    sg = silu_g()
    if OPT.get('tagged', 0):
        addall(sg)
        stamp(11)

        def chk():
            o = [Ins('v_max3_u32 %s, %s, %s, %s' % (t0, vr(G2), vr(G2 + 1), vr(G2 + 2))),
                 Ins('v_max3_u32 %s, %s, %s, %s' % (t1, vr(G2 + 3), vr(G2 + 4), vr(G2 + 5)))]
            for k in range(6, 48, 2):
                tt_ = t0 if (k // 2) % 2 else t1
                o.append(Ins('v_max3_u32 %s, %s, %s, %s' % (tt_, tt_, vr(G2 + k), vr(G2 + k + 1))))
            o.append(Ins('v_max_u32 %s, %s, %s' % (t0, t0, t1)))
            o.append(Ins('v_cmp_eq_u32 vcc, -1, %s' % t0))
            return o
        addall(d_ploads(0, G2) + chk())
        p('s_cbranch_vccnz L_retry')
        p.label('L_retry_ok')
        SPIN_BLOCKS.append('L_retry:\n s_mov_b32 s3, 0\nL_retry_l:\n s_sleep 2\n' +
                           '\n'.join(' ' + x.text for x in d_ploads(0, G2)) +
                           '\n s_waitcnt vmcnt(0)\n s_add_u32 s3, s3, 1\n s_cmp_gt_u32 s3, 0x20000\n s_cbranch_scc1 L_retry_ok\n' +
                           '\n'.join(' ' + x.text for x in chk()) +
                           '\n s_cbranch_vccnz L_retry_l\n s_branch L_retry_ok')
        stamp(12)
    else:
        addall(sg[:len(sg) // 2])
        p.need(('PT0', 0))
        p('s_barrier')
        stamp(11)
        p.add(flag_store(S_FT, 'PT0'))
        p.add(poll_issue(S_FGR))
        addall(sg[len(sg) // 2:])
        poll_check(p, 'p1', S_FGR)
        stamp(12)
        addall(d_ploads(0, G2))
    for k in range(3):
        d = V_AC1 + 16 * k
        addall(d_sum(G2, k, d, V_T))
        for rb in range(2):
            xb = xreg(k, rb)
            for e in range(4):
                tx = vr(d + 8 + e)
                if e % 2 == 0:
                    p('v_lshlrev_b32 %s, 16, %s' % (tx, vr(xb + e // 2)))
                else:
                    p('v_and_b32 %s, 0xffff0000, %s' % (tx, vr(xb + e // 2)))
                p('v_fma_f32 %s, %s, %s, %s' % (tx, vr(d + rb * 4 + e), vr(GG + 8 * k + rb * 4 + e), tx))
            o = d + 12 + 2 * rb
            p('v_cvt_pk_bf16_f32 %s, %s, %s' % (vr(o), vr(d + 8), vr(d + 9)))
            p('v_cvt_pk_bf16_f32 %s, %s, %s' % (vr(o + 1), vr(d + 10), vr(d + 11)))
            p('buffer_store_dwordx2 %s, %s, %s, %s offen offset:%d%s' % (
                vr(o, 2), vr(VO), sr(S_DOUT, 4), sr(S_HS + 4 + rb + (2 if k == 2 else 0)), 128 * k,
                ('', ' sc1', ' nt', ' sc0 sc1')[OPT.get('outpol', 0)]))
    if diag:
        p('s_waitcnt vmcnt(0)')
        stamp(13)
        p('s_mov_b32 %s, 0x%x' % (T(3), WS_T))
        make_srd(p, S_K, P_WS, T(3), 0x100000)
        p('s_lshl_b32 %s, s2, 2' % T(0))
        p('s_add_u32 %s, %s, %s' % (T(0), T(0), sr(S_W)))
        p('s_lshl_b32 %s, %s, 8' % (T(0), T(0)))
        p('v_lshlrev_b32 v4, 2, %s' % L)
        p('buffer_store_dword v1, v4, %s, %s offen' % (sr(S_K, 4), T(0)))
    p.label('L_end')
    p('s_endpgm')
    for t in SPIN_BLOCKS:
        p.raw(t)
    p.raw('L_code_end:')
    for x in p.flat():
        if OPT.get('kv_nt', 1) and x.kind == 'dma' and ('s[4:7]' in x.text or 's[8:11]' in x.text):
            x.text = x.text.replace(' lds', ' nt lds')
        if OPT.get('w_nt') and x.kind == 'dma' and x.lds and not callable(x.lds[1]) and x.lds[1][0] in 'WQ':
            x.text = x.text.replace(' lds', ' nt lds')
        if OPT.get('st01') and x.kind == 'vst' and 'x4' in x.text:
            x.text = x.text.replace(' sc1', ' sc0 sc1')
        if OPT.get('nost') and x.kind == 'vst' and 'x4' in x.text and x.lds and (x.lds[0] == 'O' or (OPT['nost'] > 1 and x.lds[0] == 'PT1')):
            x.text = 's_nop 0'
            x.kind = 'sopp'; x.op = 's_nop'; x.ops = ['0']; x.rd = []; x.lds = None
        if FU and x.kind == 'vld' and sr(S_XN, 4) in x.text and 'sc1' not in x.text:
            x.text += ' sc1'
        if OPT.get('dplain') and x.kind in ('dma', 'vld') and 'x4' in x.text:
            x.text = x.text.replace(' sc1', '')
    p.finalize(verbose=bool(OPT.get('verbose')), check=not (OPT.get('drop') or OPT.get('nost')))
    print('total overflow slots', g.over, p.stats(), file=sys.stderr)
    return p


def build(diag=False):
    hdr = open('cdna_kernels/%s.s.ref' % NAME).read().split('; Override launch')[0]
    out = hdr
    if OPT.get('fuse', 2):
        km = gen_main(diag)
        kn = NAME + '_kernel'
        if OPT.get('aslist', 1):
            out += '; @launch kernel=%s grid=(256,1,1) block=(256,1,1) lds=163840\n' % kn
        else:
            out += '; @launch grid=(256,1,1) block=(256,1,1) lds=163840\n'
        out += '.amdgcn_target "amdgcn-amd-amdhsa--gfx950"\n.text\n'
        out += kernel_text(kn, km, 0, 0)
        out += '.section .rodata,"a"\n.p2align 6\n' + descriptor(kn, 512, 256)
        return out
    ln, km = gen_ln(), gen_main(diag)
    if not OPT.get('donly'):
        out += '; @launch kernel=ln_kernel grid=(256,1,1) block=(256,1,1) lds=0\n'
    out += '; @launch kernel=main_kernel grid=(256,1,1) block=(256,1,1) lds=163840\n'
    out += '.amdgcn_target "amdgcn-amd-amdhsa--gfx950"\n.text\n'
    out += kernel_text('ln_kernel', ln, 0, 0) + kernel_text('main_kernel', km, 0, 0)
    out += '.section .rodata,"a"\n'
    for n, nv, acc in (('ln_kernel', 64, 64), ('main_kernel', 512, 256)):
        out += '.p2align 6\n' + descriptor(n, nv, acc)
    return out


if __name__ == '__main__':
    diag = 'diag' in sys.argv[2:]
    for a in sys.argv[2:]:
        if '=' in a:
            k, v = a.split('=')
            OPT[k] = int(v)
    open(sys.argv[1], 'w').write(build(diag))
```

```python
import sys, struct
from collections import deque
from dsl import *

OPT = {}
NAME = 'recurrent_scan__mha_block_cached__glu_gated_swiglu__prompt'
WS_XN = 0
WS_F = 3 << 20
WS_O = 4 << 20
WS_H = 24 << 20
WS_P = 48 << 20
PG = 64 * 16 * 9216
WS_W = 96 << 20
WBLK = 2432 * 288
WS_T = 128 << 20
MF = 'v_mfma_f32_16x16x32_bf16'
LOG2E = 1.4426950408889634


def HS():
    return 144 * 1024 + OPT.get('pad', 1280)


def OS():
    return 128 * 1024 + OPT.get('pad', 1280)


def f2u(x):
    return struct.unpack('<I', struct.pack('<f', x))[0]


def srd_ins(srd, ptr, off, size):
    o = []
    if off is None:
        o.append(Ins('s_mov_b32 %s, %s' % (sr(srd), sr(ptr))))
        o.append(Ins('s_mov_b32 %s, %s' % (sr(srd + 1), sr(ptr + 1))))
    else:
        o.append(Ins('s_add_u32 %s, %s, %s' % (sr(srd), sr(ptr), off)))
        o.append(Ins('s_addc_u32 %s, %s, 0' % (sr(srd + 1), sr(ptr + 1))))
    o.append(Ins('s_mov_b32 %s, %s' % (sr(srd + 2), size if isinstance(size, str) else '0x%x' % size)))
    o.append(Ins('s_mov_b32 %s, 0x00020000' % sr(srd + 3)))
    return o


def make_srd(p, srd, ptr, off, size):
    for x in srd_ins(srd, ptr, off, size):
        p.add(x)


def cost(ins):
    if ins.kind == 'valu':
        return 2 if ins.trans else 1
    if ins.kind in ('dsr', 'dsw'):
        return 1
    if ins.kind in ('dma', 'vld', 'vst'):
        return 2
    return 0


class Gaps:
    def __init__(self, p):
        self.p = p
        self.hi = deque()
        self.lo = deque()
        self.n = 0
        self.over = 0
        self.waste = 0
        self.drop = ()
        self.vm_next = 0
        self.st = deque()
        self.st_max = 2
        self.st_w = 3
        self.vm_gap = 1

    def emit(self, x):
        if self.drop and x.kind in self.drop:
            return
        self.p.add(x)
        if x.on_emit:
            x.on_emit()

    def gap(self, mfma, sc=(), ld=(), va=(), cap=2):
        if mfma is not None:
            self.p.add(mfma if isinstance(mfma, Ins) else Ins(mfma))
        sc, ld, va = list(sc), list(ld), list(va)
        used = sum(cost(x) for x in ld + va)
        for q in (self.st, self.hi, self.lo):
            pulled = False
            pva = False
            while q:
                x = q[0]
                if x.ready > self.n:
                    break
                c = cost(x)
                if q is self.lo and x.kind == 'vst' and len(self.st) < self.st_max:
                    x.ready = self.n + 1
                    self.st.append(q.popleft())
                    continue
                if c == 0:
                    if sc or pulled:
                        break
                    sc.append(q.popleft())
                    if 'm0' in x.wr:
                        break
                    continue
                if used + c > cap:
                    break
                if x.kind != 'valu':
                    if pva:
                        break
                    if c == 2:
                        if self.n < self.vm_next:
                            break
                        w = (self.st_w if 'x4' in x.text else 1) if x.kind == 'vst' else (4 if 'buffer_load_dword ' in x.text and 'sc' not in x.text else 1)
                        self.vm_next = self.n + self.vm_gap * w
                    ld.append(q.popleft())
                else:
                    va.append(q.popleft())
                    pva = True
                used += c
                pulled = True
        for x in sc + ([Ins(mfma)] if isinstance(mfma, str) else []):
            self.check(x)
        self.over += max(0, used - 2)
        if used < 2 and (self.hi or self.lo):
            self.waste += 2 - used
        for x in sc + ld + va:
            self.emit(x)
        self.n += 1

    def check(self, x):
        regs = set(x.rd) if (x.text.startswith('; need') or x.kind == 'mfma') else set()
        tags = [t for t in (x.need or []) if not callable(t[1])]
        for q in (self.st, self.hi, self.lo):
            for y in q:
                if y.kind in ('vld', 'dsr') and set(y.wr) & regs and not getattr(y, 'later', False):
                    raise AssertionError('consumer %s before queued load %s' % (x.text, y.text))
                if y.lds is not None and y.lds in tags:
                    raise AssertionError('need %s before queued %s' % (tags, y.text))

    def flush(self, q=None):
        for qq in ((self.st, self.hi, self.lo) if q is None else (q,)):
            while qq:
                x = qq.popleft()
                self.over += max(1, cost(x))
                self.emit(x)


def rg(t, n=4):
    return (vr if t[0] == 'v' else ar)(t[1], n)


def prefetch_w(p, ptr, srd, soff, rows, stride, lines, rounds, vt, vd):
    t = lambda k: vr(vt + k)
    make_srd(p, srd, ptr, soff, (rows - 1) * stride + lines * 128)
    return t


def gen_ln():
    p = Prog()
    p('s_cmp_ge_u32 s2, 256')
    p('s_cbranch_scc1 L_ln_end')
    p('s_load_dwordx2 s[12:13], s[0:1], 0')
    p('s_load_dwordx2 s[14:15], s[0:1], 88')
    p('s_load_dwordx4 s[32:35], s[0:1], 48')
    p('v_lshrrev_b32 v1, 5, v0')
    p('s_lshl_b32 s3, s2, 3')
    p('v_add_u32 v1, s3, v1')
    p('v_and_b32 v2, 31, v0')
    p('v_lshrrev_b32 v3, 2, v2')
    p('v_and_b32 v4, 3, v2')
    p('v_mul_u32_u24 v5, 1152, v1')
    p('v_lshl_add_u32 v5, v3, 6, v5')
    p('v_lshl_add_u32 v5, v4, 3, v5')
    p('v_cmp_gt_u32 vcc, 8, v2')
    p('s_mov_b64 s[16:17], vcc')
    for r in range(16, 20):
        p('v_mov_b32 v%d, 0' % r)
    p('s_waitcnt lgkmcnt(0)')
    make_srd(p, 4, 12, None, 2048 * 1152)
    for it in range(2):
        p('buffer_load_dwordx2 v[%d:%d], v5, s[4:7], 0 offen offset:%d' % (8 + 4 * it, 9 + 4 * it, it * 512))
        p('buffer_load_dwordx2 v[%d:%d], v5, s[4:7], 0 offen offset:%d' % (10 + 4 * it, 11 + 4 * it, it * 512 + 32))
    p('s_mov_b64 exec, s[16:17]')
    p('buffer_load_dwordx2 v[16:17], v5, s[4:7], 0 offen offset:1024')
    p('buffer_load_dwordx2 v[18:19], v5, s[4:7], 0 offen offset:1056')
    p('s_mov_b64 exec, -1')
    R0 = OPT.get('pf0', 12)
    if R0:
        p('s_lshr_b32 s20, s2, 3')
        p('s_mul_i32 s20, s20, %d' % (R0 * 9216))
        p('s_and_b32 s21, s2, 3')
        p('s_mul_i32 s21, s21, 2304')
        p('s_add_u32 s20, s20, s21')
        make_srd(p, 36, 32, 's20', (R0 - 1) * 9216 + 2304)
        make_srd(p, 40, 34, 's20', (R0 - 1) * 9216 + 2304)
        p('v_mul_u32_u24 v56, 3641, v0')
        p('v_lshrrev_b32 v56, 16, v56')
        p('v_mul_u32_u24 v57, 18, v56')
        p('v_sub_u32 v57, v0, v57')
        p('v_mul_u32_u24 v56, 9216, v56')
        p('v_lshl_add_u32 v56, v57, 7, v56')
        if OPT.get('pfh', 1):
            p('s_bitcmp1_b32 s2, 2')
            p('s_cselect_b32 s36, s40, s36')
            p('s_cselect_b32 s37, s41, s37')
            p('buffer_load_dword v58, v56, s[36:39], 0 offen')
        else:
            p('buffer_load_dword v58, v56, s[36:39], 0 offen')
            p('buffer_load_dword v59, v56, s[40:43], 0 offen')
    if OPT.get('pfc', 1):
        p('s_getpc_b64 s[44:45]')
        p.label('L_pc')
        p('s_add_u32 s44, s44, main_kernel-L_pc')
        p('s_addc_u32 s45, s45, 0')
        p('s_lshr_b32 s46, s2, 3')
        p('s_lshl_b32 s46, s46, 12')
        p('v_and_b32 v60, 31, v0')
        p('v_lshlrev_b32 v60, 7, v60')
        p('v_add_u32 v60, s46, v60')
        p('v_min_u32 v60, L_code_end-main_kernel-4, v60')
        p('global_load_dword v61, v60, s[44:45]')
    make_srd(p, 8, 14, None, 2048 * 1152)
    p('v_lshrrev_b32 v6, 4, v1')
    p('v_mul_u32_u24 v6, 18, v6')
    p('v_add_u32 v6, v6, v3')
    p('v_lshlrev_b32 v6, 10, v6')
    p('v_lshl_add_u32 v6, v4, 8, v6')
    p('v_and_b32 v7, 15, v1')
    p('v_lshl_add_u32 v6, v7, 4, v6')
    p('s_mov_b32 s20, 0x%x' % WS_F)
    make_srd(p, 24, 14, 's20', 4 * 32768)
    p('s_lshl_b32 s21, s2, 7')
    p('v_lshlrev_b32 v50, 15, v0')
    p('v_mov_b32 v52, 0')
    p('buffer_store_dword v52, v50, s[24:27], s21 offen')
    for d in range(12):
        p('v_lshlrev_b32 v%d, 16, v%d' % (20 + 2 * d, 8 + d))
        p('v_and_b32 v%d, 0xffff0000, v%d' % (21 + 2 * d, 8 + d))

    def reduce32(x, t):
        for k in (8, 4, 2, 1):
            p('v_add_f32_dpp %s, %s, %s row_ror:%d row_mask:0xf bank_mask:0xf' % (x, x, x, k))
        p('v_mov_b32 %s, %s' % (t, x))
        p('v_permlane16_swap_b32 %s, %s' % (x, t))
        p('v_add_f32 %s, %s, %s' % (x, x, t))
    p('v_add_f32 v44, v20, v21')
    p('v_add_f32 v45, v22, v23')
    for e in range(4, 24, 2):
        p('v_add_f32 v44, v44, v%d' % (20 + e))
        p('v_add_f32 v45, v45, v%d' % (21 + e))
    p('v_add_f32 v44, v44, v45')
    reduce32('v44', 'v45')
    p('v_mul_f32 v44, 0x%x, v44' % f2u(1.0 / 576))
    p('v_mov_b32 v46, 0')
    p('v_mov_b32 v47, 0')
    for e in range(16):
        p('v_sub_f32 v48, v%d, v44' % (20 + e))
        p('v_fmac_f32 v%d, v48, v48' % (46 + e % 2))
    p('s_mov_b64 exec, s[16:17]')
    for e in range(16, 24):
        p('v_sub_f32 v48, v%d, v44' % (20 + e))
        p('v_fmac_f32 v%d, v48, v48' % (46 + e % 2))
    p('s_mov_b64 exec, -1')
    p('v_add_f32 v46, v46, v47')
    reduce32('v46', 'v45')
    p('v_mul_f32 v46, 0x%x, v46' % f2u(1.0 / 576))

    def rnd(x):
        p('v_cvt_pk_bf16_f32 %s, %s, %s' % (x, x, x))
        p('v_lshlrev_b32 %s, 16, %s' % (x, x))
    rnd('v44')
    rnd('v46')
    p('v_add_f32 v46, 0x%x, v46' % f2u(1e-5))
    rnd('v46')
    p('v_sqrt_f32 v46, v46')
    rnd('v46')
    p('v_rcp_f32 v46, v46')
    if OPT.get('fold', 0):
        p('v_mul_f32 v46, 0x%x, v46' % f2u(-LOG2E))
    for d in range(12):
        a, b = 20 + 2 * d, 21 + 2 * d
        p('v_sub_f32 v%d, v%d, v44' % (a, a))
        p('v_sub_f32 v%d, v%d, v44' % (b, b))
        p('v_cvt_pk_bf16_f32 v%d, v%d, v%d' % (8 + d, a, b))
        p('v_lshlrev_b32 v%d, 16, v%d' % (a, 8 + d))
        p('v_and_b32 v%d, 0xffff0000, v%d' % (b, 8 + d))
        p('v_mul_f32 v%d, v%d, v46' % (a, a))
        p('v_mul_f32 v%d, v%d, v46' % (b, b))
        p('v_cvt_pk_bf16_f32 v%d, v%d, v%d' % (8 + d, a, b))
    p('s_mov_b32 s18, 8192')
    p('s_mov_b32 s19, 16384')
    p('buffer_store_dwordx4 v[8:11], v6, s[8:11], 0 offen')
    p('buffer_store_dwordx4 v[12:15], v6, s[8:11], s18 offen')
    p('s_mov_b64 exec, s[16:17]')
    p('buffer_store_dwordx4 v[16:19], v6, s[8:11], s19 offen')
    p.label('L_ln_end')
    p('s_endpgm')
    p.finalize()
    return p


S_K, S_V, S_XN, S_WS, S_WQ, S_H, S_O, S_FL, S_A1, S_A2, S_A3, S_A4 = 4, 8, 12, 16, 20, 24, 28, 32, 36, 40, 44, 48
S_DW2, S_DWO, S_DH, S_DO, S_DP, S_DR, S_DX, S_DOUT = 12, 16, 20, 24, 36, 40, 44, 48
(S_W, S_MK, S_EP, S_OFFK, S_OFFV, S_CNT, S_HD, S_QT, S_M1, S_OFFW, S_OFFQ, S_C, S_NL, S_FWG, S_FGR, S_FT,
 S_RO, S_SP, S_TILE) = range(52, 71)
S_HS = 71
S_T0 = 79
S_DG = 90
P_X, P_WO, P_W2, P_OUT, P_WS = 92, 94, 96, 98, 100
T = lambda k: sr(S_T0 + k)

V_L16, V_LANE = 2, 3
V_A1 = 4
V_OW = 8
V_AQ = 8
V_OQ = 20
V_OK, V_OV = 22, 26
V_SW = 28
V_T = 34
V_KA, V_VA, V_L, V_E = 4, 8, 16, 28
V_NM, V_S, V_P, V_Q = 40, 56, 120, 184
V_FST, V_ONE, V_FOFF, V_FV = 252, 253, 254, 255
A_O, A_KF, A_VF = 0, 128, 192
A_A, A_B = 128, 160
X0 = 72
DK, DV = 4, 2
L = vr(V_LANE)
t0, t1, t2, t3 = (vr(V_T + i) for i in range(4))


def LS(n):
    return (n * 16384, 16384)


def VP(u):
    return (u + 3) % 4


DBASE = [0, 126976, 36864, 73728]


def DS(c):
    return (DBASE[c % 4], 36864)


def PS(c):
    return ((c % 4) * 36864, 36864)


def Sreg(kb, qb):
    return V_S + (kb * 4 + qb) * 4


def Preg(u, qb, ks):
    return V_P + (u & 1) * 32 + qb * 8 + ks * 4


def ktag(u, inloop):
    return (lambda it: ('K', u + 4 * it)) if inloop else ('K', u)


def vtag(u, inloop):
    return (lambda it: ('V', u + 4 * it)) if inloop else ('V', u)


def k_load(u, kb, s, inloop):
    return Ins('ds_read_b128 %s, %s offset:%d' % (ar(A_KF + kb * 16 + s * 4, 4), vr(V_KA + s), (u % 4) * 16384 + kb * 4096),
               lds=(LS(u % 4), ktag(u, inloop)))


def v_load(u, db, ks, j, inloop):
    return Ins('ds_read_b64_tr_b16 %s, %s offset:%d' % (
        ar(A_VF + db * 8 + ks * 4 + 2 * j, 2), vr(V_VA + db), VP(u) * 16384 + (32 * ks + 16 * j) * 256),
        lds=(LS(4 + VP(u)), vtag(u, inloop)))


def dma_unit(kind, u, inloop):
    out = []
    if kind == 'K':
        out.append(Ins('s_add_u32 m0, %s, %d' % (sr(S_MK), (u % 4) * 16384)))
        for cc in range(4):
            out.append(Ins('buffer_load_dwordx4 %s, %s, %s offen offset:%d lds' % (
                vr(V_OK + cc), sr(S_K, 4), sr(S_OFFK), cc * 1024), lds=(LS(u % 4), ktag(u, inloop))))
        out.append(Ins('s_add_u32 %s, %s, 16384' % (sr(S_OFFK), sr(S_OFFK))))
    else:
        out.append(Ins('s_add_u32 m0, %s, %d' % (sr(S_MK), 65536 + VP(u) * 16384)))
        for cc in range(4):
            out.append(Ins('buffer_load_dwordx4 %s, %s, %s offen offset:%d lds' % (
                vr(V_OV + cc % 2), sr(S_V, 4), sr(S_OFFV), cc * 1024), lds=(LS(4 + VP(u)), vtag(u, inloop))))
        out.append(Ins('s_add_u32 %s, %s, 16384' % (sr(S_OFFV), sr(S_OFFV))))
    return out


def sm_instrs(uu, i):
    n, r = i // 4, i % 4
    kb, qb = n // 4, n % 4
    e = vr(V_E + i % 4)
    ex = Ins('v_exp_f32 %s, %s' % (e, vr(Sreg(kb, qb) + r)))
    ad = Ins('v_add_f32 %s, %s, %s' % (vr(V_L + qb), vr(V_L + qb), e))
    cv = None
    if r % 2 == 1:
        cv = Ins('v_cvt_pk_bf16_f32 %s, %s, %s' % (
            vr(Preg(uu, qb, kb // 2) + (kb % 2) * 2 + r // 2), vr(V_E + (i - 1) % 4), e))
    return ex, ad, cv


def att_slots(p, u, ta, tb, inloop, pv=True, qk=True, sm_cur=True, sm_next=True, vnext=True, dmak=True, dmav=True,
              barrier=True, g=None, cap=2, vearly=False, extra_need=(), pv0=False):
    T0 = -40
    R = range(-128, 256)
    sc = {t: [] for t in R}
    ld = {t: [] for t in R}
    va = {t: [] for t in R}
    for t in range(0, 128, 2):
        if t >= X0:
            uu, i, on = u + 1, (t - X0) // 2, sm_next
        else:
            uu, i, on = u, (t + 128 - X0) // 2, sm_cur
        if on:
            ex, ad, cv = sm_instrs(uu, i)
            va[t].append(ex)
            va[t + 1].append(ad)
            if cv is not None:
                va[t + 1].append(cv)
    pos = [t for t in range(T0, T0 + 128) if t % 8 in (1, 4, 5)]
    n = 0
    m = 0
    for db in range(8):
        for ks in range(2):
            for j in range(2):
                t = pos[n]
                n += 1
                if t >= 0:
                    if pv:
                        ld[t].append(v_load(u - 1, db, ks, j, inloop))
                elif vnext:
                    if vearly:
                        ld[46 + m].append(v_load(u, db, ks, j, inloop))
                        m += 1
                    else:
                        ld[t + 128].append(v_load(u, db, ks, j, inloop))
        t = 8 * db - 1
        sc[t if t >= 0 else t + 128].append(wait_ins(ar(A_VF + db * 8, 8)))
    for kb in range(4):
        for s in range(4):
            t = pos[n]
            n += 1
            if qk:
                ld[t].append(k_load(u + 1, kb, s, inloop))
        if qk:
            sc[64 + 16 * kb - 1].append(wait_ins(ar(A_KF + kb * 16, 16)))
    for on, kind, uu, tt in ((dmav, 'V', u + DV, 2), (dmak, 'K', u + DK, 66)):
        if on:
            lst = dma_unit(kind, uu, inloop)
            sc[tt].append(lst[0])
            ds = OPT.get('dstep', 8)
            for k in range(4):
                ld[tt + ds * k + (4 if k == 0 else 0)].append(lst[1 + k])
            sc[tt + ds * 3 + 1].append(lst[5])
    if barrier:
        nd = [(LS(4 + VP(u)), vtag(u, inloop))] + list(extra_need)
        if qk:
            nd.append((LS((u + 1) % 4), ktag(u + 1, inloop)))
        sc[0].append(need_ins(*nd))
        sc[1].append(Ins('s_barrier'))
    g = g or Gaps(p)
    for t in range(ta, tb):
        mf = None
        if t < 64:
            if pv:
                db, qb, ks = t // 8, (t % 8) // 2, t % 2
                o = ar(A_O + (db * 4 + qb) * 4, 4)
                mf = '%s %s, %s, %s, %s' % (MF, o, ar(A_VF + db * 8 + ks * 4, 4), vr(Preg(u - 1, qb, ks), 4),
                                            '0' if (pv0 and ks == 0) else o)
        elif qk:
            tt = t - 64
            kb, qb, s = tt // 16, (tt % 16) // 4, tt % 4
            d = vr(Sreg(kb, qb), 4)
            c = vr(V_NM + qb * 4, 4) if s == 0 else d
            mf = '%s %s, %s, %s, %s' % (MF, d, ar(A_KF + kb * 16 + s * 4, 4), vr(V_Q + (qb * 4 + s) * 4, 4), c)
        assert len(sc[t]) <= 1 and len(ld[t]) <= 1
        if mf is None and not (sc[t] or ld[t] or va[t]):
            continue
        g.gap(mf, sc[t], ld[t], va[t], cap=cap)


def kv_dma_setup():
    o = []
    a = lambda s: o.append(Ins(s))
    a('v_and_b32 %s, 15, %s' % (t0, L))
    a('v_lshrrev_b32 %s, 4, %s' % (t1, L))
    a('v_lshlrev_b32 %s, 8, %s' % (t2, t1))
    a('v_add_u32 %s, %s, %s' % (t2, sr(S_MK), t2))
    a('v_xor_b32 %s, %s, %s' % (t3, t0, t1))
    a('v_lshl_add_u32 %s, %s, 4, %s' % (vr(V_OK), t3, t2))
    for c in range(1, 4):
        a('v_xor_b32 %s, %d, %s' % (vr(V_OK + c), c * 64, vr(V_OK)))
    a('v_lshlrev_b32 %s, 1, %s' % (t3, t1))
    a('v_xor_b32 %s, %s, %s' % (t3, t0, t3))
    a('v_lshl_add_u32 %s, %s, 4, %s' % (vr(V_OV), t3, t2))
    a('v_xor_b32 %s, 128, %s' % (vr(V_OV + 1), vr(V_OV)))
    return o


def k_read_setup():
    o = []
    a = lambda s: o.append(Ins(s))
    a('v_and_b32 %s, 15, %s' % (t0, L))
    a('v_lshrrev_b32 %s, 4, %s' % (t1, L))
    a('v_xor_b32 %s, %s, %s' % (t2, t0, t1))
    a('v_lshlrev_b32 %s, 4, %s' % (t2, t2))
    a('v_lshl_add_u32 %s, %s, 8, %s' % (vr(V_KA), t0, t2))
    for s in range(1, 4):
        a('v_xor_b32 %s, %d, %s' % (vr(V_KA + s), s * 64, vr(V_KA)))
    return o


def v_read_setup():
    o = []
    a = lambda s: o.append(Ins(s))
    a('v_lshrrev_b32 %s, 2, %s' % (t2, L))
    a('v_and_b32 %s, 7, %s' % (t3, t2))
    a('v_lshlrev_b32 %s, 5, %s' % (t3, t3))
    a('v_lshl_add_u32 %s, %s, 8, %s' % (t3, t2, t3))
    a('v_and_b32 %s, 3, %s' % (t2, L))
    a('v_lshl_add_u32 %s, %s, 3, %s' % (t3, t2, t3))
    a('v_add_u32 %s, 0x10000, %s' % (vr(V_VA), t3))
    for d in range(1, 8):
        a('v_xor_b32 %s, %d, %s' % (vr(V_VA + d), d * 32, vr(V_VA)))
    return o


def xlane4(op, xs, ts):
    o = []
    for perm in ('v_permlane32_swap_b32', 'v_permlane16_swap_b32'):
        for x, t in zip(xs, ts):
            o.append(Ins('v_mov_b32 %s, %s' % (t, x)))
        for x, t in zip(xs, ts):
            o.append(Ins('%s %s, %s' % (perm, x, t)))
        for x, t in zip(xs, ts):
            o.append(Ins('%s %s, %s, %s' % (op, x, x, t)))
    return o


def div18(o, n, row, sl):
    o.append(Ins('v_mul_u32_u24 %s, 3641, %s' % (row, n)))
    o.append(Ins('v_lshrrev_b32 %s, 16, %s' % (row, row)))
    o.append(Ins('v_mul_u32_u24 %s, 18, %s' % (sl, row)))
    o.append(Ins('v_sub_u32 %s, %s, %s' % (sl, n, sl)))


def ffn_tiles():
    order = list(range(40, 120, 4)) + list(range(184, 256, 4)) + list(range(120, 184, 4))
    m, nv, na = {}, 0, 0
    for b in range(9):
        for mat in range(2):
            for qb in range(4):
                if mat == 1 and na < 18:
                    m[(2 * b + mat, qb)] = ('a', na * 4)
                    na += 1
                else:
                    m[(2 * b + mat, qb)] = ('v', order[nv])
                    nv += 1
    assert nv == 54 and na == 18
    return m


FT = ffn_tiles()
WQ_SLOT = {8: 9, 7: 3, 6: 4, 5: 5, 4: 6, 3: 7, 2: 8, 1: 9, 0: 3}


def p1_dma(c):
    out = [Ins('s_add_u32 %s, %s, %d' % (T(8), sr(S_OFFW), c * 64 * 9216))]
    for i in range(9):
        if i % 4 == 0:
            out.append(Ins('s_add_u32 m0, %s, %d' % (sr(S_M1), PS(c)[0] + (i // 4) * 4096)))
        out.append(Ins('buffer_load_dwordx4 %s, %s, %s offen offset:%d lds' % (
            vr(V_OW + i), sr(S_WS, 4), T(8), (i % 4) * 1024), lds=(PS(c), ('W', c))))
    return out


def xn_loads(c, buf):
    base = A_B + buf * 32
    out = []
    for qb in range(4):
        out.append(Ins('s_mov_b32 %s, %d' % (T(qb), qb * 18 * 1024 + c * 2048)))
        for ks in range(2):
            out.append(Ins('buffer_load_dwordx4 %s, %s, %s, %s offen offset:%d' % (
                ar(base + (qb * 2 + ks) * 4, 4), vr(V_L16), sr(S_XN, 4), T(qb), ks * 1024)))
    return out


def wq_dma(c):
    sl = WQ_SLOT[c]
    out = []
    for cc in range(4):
        out.append(Ins('s_add_u32 %s, %s, %d' % (T(4 + cc % 2), sr(S_OFFQ), (c * 64 + cc * 4) * 8192)))
        out.append(Ins('s_add_u32 m0, %s, %d' % (sr(S_MK), sl * 16384 + cc * 1024)))
        out.append(Ins('buffer_load_dwordx4 %s, %s, %s offen lds' % (
            vr(V_OQ + cc % 2), sr(S_WQ, 4), T(4 + cc % 2)), lds=(LS(sl), ('Q', c))))
    return out


def p1_reads(c, blk, dst):
    mat, b = blk % 2, blk // 2
    return [Ins('ds_read_b64_tr_b16 %s, %s offset:%d' % (
        ar(dst + ks * 4 + 2 * j, 2), vr(V_A1 + c % 4),
        mat * 18432 + (32 * ks + 16 * j) * 288 + 32 * b), lds=(PS(c), ('W', c)))
        for ks in range(2) for j in range(2)]


def p2_reads(c, bq, dst):
    s, jj = bq // 2, bq % 2
    sl = WQ_SLOT[c]
    return [Ins('ds_read_b64_tr_b16 %s, %s offset:%d' % (
        ar(dst + ks * 4 + 2 * j, 2), vr(V_AQ + (sl // 4) * 4 + s),
        (sl % 4) * 16384 + (32 * ks + 16 * j) * 256 + 8 * jj), lds=(LS(sl), ('Q', c)))
        for ks in range(2) for j in range(2)]


def swiglu_unit(b, qb, ready, pool):
    gt, ut = FT[(2 * b, qb)], FT[(2 * b + 1, qb)]
    pk = FT[(2 * (b - b % 2), qb)][1] + (b % 2) * 2
    o = []
    ta, tb = vr(V_SW), vr(V_SW + 1)
    for r in (0, 2):
        pa, pb = vr(V_SW + 2 + r), vr(V_SW + 3 + r)
        g0, g1 = vr(gt[1] + r), vr(gt[1] + r + 1)
        if ut[0] == 'a':
            o.append(Ins('v_accvgpr_read_b32 %s, %s' % (pa, ar(ut[1] + r))))
            o.append(Ins('v_accvgpr_read_b32 %s, %s' % (pb, ar(ut[1] + r + 1))))
            u0, u1 = pa, pb
        else:
            u0, u1 = vr(ut[1] + r), vr(ut[1] + r + 1)
        if OPT.get('fold', 0):
            o.append(Ins('v_exp_f32 %s, %s' % (ta, g0)))
            o.append(Ins('v_exp_f32 %s, %s' % (tb, g1)))
        else:
            o.append(Ins('v_mul_f32 %s, %s, %s' % (ta, sr(S_NL), g0)))
            o.append(Ins('v_mul_f32 %s, %s, %s' % (tb, sr(S_NL), g1)))
            o.append(Ins('v_exp_f32 %s, %s' % (ta, ta)))
            o.append(Ins('v_exp_f32 %s, %s' % (tb, tb)))
        o.append(Ins('v_mul_f32 %s, %s, %s' % (pa, g0, u0)))
        o.append(Ins('v_mul_f32 %s, %s, %s' % (pb, g1, u1)))
        o.append(Ins('v_add_f32 %s, 1.0, %s' % (ta, ta)))
        o.append(Ins('v_add_f32 %s, 1.0, %s' % (tb, tb)))
        o.append(Ins('v_rcp_f32 %s, %s' % (ta, ta)))
        o.append(Ins('v_rcp_f32 %s, %s' % (tb, tb)))
        o.append(Ins('v_mul_f32 %s, %s, %s' % (pa, pa, ta)))
        o.append(Ins('v_mul_f32 %s, %s, %s' % (pb, pb, tb)))
    for r in (0, 2):
        o.append(Ins('v_cvt_pk_bf16_f32 %s, %s, %s' % (vr(pk + r // 2), vr(V_SW + 2 + r), vr(V_SW + 3 + r))))
    rel = [ut] + ([gt] if b % 2 == 1 else [])
    if b % 2 == 1:
        o.append(Ins('buffer_store_dwordx4 %s, %s, %s, %s offen offset:%d sc1' % (
            vr(pk - 2, 4), vr(V_L16), sr(S_H, 4), sr(S_HS + qb), (b // 2) * 1024), lds=('H', 0)))
        if OPT.get('plain_h'):
            o[-1].text = o[-1].text.replace(' sc1', '')
        rel.append(FT[(2 * (b - 1), qb)])
    elif b == 8:
        o.append(Ins('buffer_store_dwordx2 %s, %s, %s, %s offen sc1' % (
            vr(pk, 2), vr(V_L16), sr(S_H, 4), sr(S_HS + 4 + qb)), lds=('H', 0)))
        if OPT.get('plain_h'):
            o[-1].text = o[-1].text.replace(' sc1', '')
    o[0].ready = ready
    o[-1].on_emit = lambda: pool.extend(t for t in rel if not (t[0] == 'v' and t[1] >= V_P))
    return o


def qcvt_unit(qb, s, QT, ready):
    o = []
    for h in range(2):
        tl = QT[(2 * s + h, qb)]
        tm = [vr(V_SW + e) for e in range(4)]
        for e in range(4):
            if tl[0] == 'a':
                o.append(Ins('v_accvgpr_read_b32 %s, %s' % (tm[e], ar(tl[1] + e))))
        for e in range(4):
            o.append(Ins('v_mul_f32 %s, %s, %s' % (tm[e], sr(S_C), tm[e] if tl[0] == 'a' else vr(tl[1] + e))))
        for e in range(2):
            o.append(Ins('v_cvt_pk_bf16_f32 %s, %s, %s' % (vr(V_Q + (qb * 4 + s) * 4 + 2 * h + e), tm[2 * e], tm[2 * e + 1])))
    o[0].ready = ready
    return o


class GemmSeq:
    def __init__(self, p, g):
        self.p, self.g = p, g
        self.groups = []

    def add(self, reads, nfr, mf, hook=None, bar=None, bwait=None, cap=2):
        self.groups.append(dict(reads=reads, n=nfr, mf=mf, hook=hook, bar=bar, bwait=bwait, cap=cap))

    def run(self):
        G, g, p = self.groups, self.g, self.p
        pos = 0
        for x in G:
            if x['n'] == 16 and pos % 16:
                pos += 8
            x['dst'] = A_A + pos % 32
            pos += x['n']
        for k, x in enumerate(G):
            regs = lambda y: set(range(y['dst'], y['dst'] + y['n']))
            ld = 1
            if k >= 2 and not (regs(x) & regs(G[k - 1])) and not (regs(x) & regs(G[k - 2])) and G[k - 1]['n'] == 8:
                ld = 2
            assert k == 0 or not (regs(x) & regs(G[k - 1]))
            x['at'] = k - ld
        for x in G:
            if x['at'] < 0:
                if x['bar']:
                    p.need(*x['bar'])
                    p('s_barrier')
                for i in x['reads'](x['dst']):
                    p.add(i)
        for k, x in enumerate(G):
            if x['hook']:
                x['hook']()
            todo = [y for y in G if y['at'] == k]
            rd, bar = [], []
            for y in todo:
                rd += y['reads'](y['dst'])
                if y['bar'] is not None:
                    bar += y['bar']
            hasbar = any(y['bar'] is not None for y in todo)
            mfs = x['mf'](x['dst'])
            n = len(mfs)
            st = 3 if hasbar else 0
            step = 2 if (st + 2 * ((len(rd) + 1) // 2) <= n - 1) else 1
            for t in range(n):
                sc, ld = [], []
                if hasbar and t == 1:
                    sc = [need_ins(('lgkm', 'all'), *bar)]
                if hasbar and t == 2:
                    sc = [Ins('s_barrier')]
                if t >= st and (t - st) % step == 0 and rd:
                    ld = rd[:2]
                    rd = rd[2:]
                if t == n - 1 and k + 1 < len(G):
                    y = G[k + 1]
                    bw = y['bwait']() if callable(y['bwait']) else (y['bwait'] or [])
                    w = [ar(y['dst'], y['n'])] + bw
                    sc = [wait_ins(*w)]
                g.gap(mfs[t](), sc, ld, cap=x['cap'])
                if hasbar and t == 2:
                    for y in todo:
                        if y.get('post'):
                            y['post']()
            assert not rd


V_DOWS = [22, 23, 24, 25, 26, 27, 248, 249, 250]
V_DRA = 40
V_DA = 56
V_AC2, V_AC1 = 104, 176
V_PK = 4
A_DB = 128
SPIN_BLOCKS = []


def poll_issue(soff, V_FV=V_FV, V_FOFF=V_FOFF, S_FL=S_FL):
    return Ins('buffer_load_dword %s, %s, %s, %s offen sc1' % (vr(V_FV), vr(V_FOFF), sr(S_FL, 4), sr(soff)))


def poll_check(p, name, soff, cmp='v_cmp_ne_u32 vcc, %s' % sr(S_EP), V_FV=V_FV, V_FOFF=V_FOFF, S_FL=S_FL, sleep=4):
    SPIN_BLOCKS.append("""L_spin_%(n)s:
 s_mov_b32 s3, 0
L_spin_%(n)s_l:
 s_sleep %(sl)d
 buffer_load_dword %(v)s, %(o)s, %(srd)s, %(so)s offen sc1
 s_add_u32 s3, s3, 1
 s_cmp_gt_u32 s3, 0x40000
 s_cbranch_scc1 L_ok_%(n)s
 s_waitcnt vmcnt(0)
 %(cmp)s, %(v)s
 s_cbranch_vccnz L_spin_%(n)s_l
 s_branch L_ok_%(n)s""" % dict(n=name, v=vr(V_FV), o=vr(V_FOFF), srd=sr(S_FL, 4), so=sr(soff), cmp=cmp, sl=sleep))
    p('%s, %s' % (cmp, vr(V_FV)))
    p('s_cbranch_vccnz L_spin_%s' % name)
    p.label('L_ok_%s' % name)


def flag_store(soff, tag):
    return Ins('buffer_store_dword %s, %s, %s, %s offen sc1' % (
        vr(V_ONE), vr(V_FST), sr(S_FL, 4), sr(soff)), lds=('flag', (tag, 0)))


_ct = [0]


def code_touch(label, vo, vd, sp):
    _ct[0] += 1
    n = 'L_ct%d' % _ct[0]
    blk = Ins('; raw')
    blk.rawtext = (' s_getpc_b64 %(p)s\n%(n)s:\n s_add_u32 %(lo)s, %(lo)s, %(l)s-%(n)s\n s_addc_u32 %(hi)s, %(hi)s, 0' %
                   dict(p=sr(sp, 2), n=n, lo=sr(sp), hi=sr(sp + 1), l=label))
    return [blk,
            Ins('s_lshr_b32 s3, s2, 3'),
            Ins('s_lshl_b32 s3, s3, 11'),
            Ins('v_and_b32 %s, 15, %s' % (vr(vo), L)),
            Ins('v_lshlrev_b32 %s, 7, %s' % (vr(vo), vr(vo))),
            Ins('v_add_u32 %s, s3, %s' % (vr(vo), vr(vo))),
            Ins('v_min_u32 %s, L_code_end-%s-4, %s' % (vr(vo), label, vr(vo))),
            Ins('global_load_dword %s, %s, %s' % (vr(vd), vr(vo), sr(sp, 2)))]


def sadd(r, k):
    return Ins('s_add_u32 %s, %s, %d' % (sr(r), sr(r), k))


SK0, SK1, NPOS = 12, 16, 19
S_ADJW, S_ADJB = S_OFFK, S_OFFV


def dtag(c, at):
    if at < SK0 <= c:
        return lambda it: ('D', c + 4 if MODE[0] else c)
    return ('D', c)


def d_dma(c, at=0):
    out = []
    for i in range(9):
        if i % 4 == 0:
            if at >= SK1:
                out.append(Ins('s_add_u32 %s, %s, %d' % (T(8), sr(S_ADJW), c * 36864 + (i // 4) * 4096)))
            else:
                out.append(Ins('s_mov_b32 %s, %d' % (T(8), c * 36864 + (i // 4) * 4096)))
            out.append(Ins('s_add_u32 m0, %s, %d' % (sr(S_M1), DS(c)[0] + (i // 4) * 4096)))
        out.append(Ins('buffer_load_dwordx4 %s, %s, %s offen offset:%d sc1 lds' % (
            vr(V_L16), sr(S_DW2, 4), T(8), (i % 4) * 1024), lds=(DS(c), dtag(c, at))))
    return out


def d_bloads(c, at=0):
    srd, loc, rbs = (S_DH, c, HS()) if c < 9 else (S_DO, c - 9, OS())
    out = []
    for rb in range(2):
        if at >= SK1:
            out.append(Ins('s_add_u32 %s, %s, %d' % (T(9 + rb), sr(S_ADJB), loc * 4096 + rb * rbs)))
        else:
            out.append(Ins('s_mov_b32 %s, %d' % (T(9 + rb), loc * 4096 + rb * rbs)))
        for ks in range(4):
            out.append(Ins('buffer_load_dwordx4 %s, %s, %s, %s offen offset:%d sc1' % (
                ar(A_DB + (c % 4) * 32 + (rb * 4 + ks) * 4, 4), vr(V_L16), sr(srd, 4), T(9 + rb), ks * 1024)))
    return out


def d_reads(c, nb, at=None):
    return [Ins('ds_read_b64_tr_b16 %s, %s offset:%d' % (
        vr(V_DA + (nb % 3) * 16 + ks * 4 + 2 * j, 2), vr(V_DRA + c % 4), (32 * ks + 16 * j) * 288 + 32 * nb),
        lds=(DS(c), dtag(c, c if at is None else at))) for ks in range(4) for j in range(2)]


def d_pstore(gemm, nb):
    acc = (V_AC2 if gemm else V_AC1) + nb * 8
    pk = V_PK + (nb % 3) * 4
    out = []
    if nb % 4 == 0:
        out.append(Ins('s_mov_b32 %s, %d' % (T(nb // 4), gemm * PG + (nb // 4) * 4096)))
    for e in range(4):
        out.append(Ins('v_cvt_pk_bf16_f32 %s, %s, %s' % (vr(pk + e), vr(acc + 2 * e), vr(acc + 2 * e + 1))))
    out.append(Ins('buffer_store_dwordx4 %s, %s, %s, %s offen offset:%d sc1' % (
        vr(pk, 4), vr(V_L16), sr(S_DP, 4), T(nb // 4), (nb % 4) * 1024), lds=('PT%d' % gemm, 0)))
    return out


def d_ploads(gemm, base):
    out = []
    for k in range(3):
        for sp in range(4):
            t = T(4 + (k * 4 + sp) % 2)
            if k < 2:
                out.append(Ins('s_mov_b32 %s, %d' % (t, gemm * PG + sp * 4 * 9216 + k * 4096)))
            else:
                out.append(Ins('s_add_u32 %s, %s, %d' % (t, sr(S_OFFQ), gemm * PG + sp * 4 * 9216 + k * 4096)))
            out.append(Ins('buffer_load_dwordx4 %s, %s, %s, %s offen sc1' % (
                vr(base + (k * 4 + sp) * 4, 4), vr(V_L16), sr(S_DR, 4), t)))
    return out


def d_sum(base, k, dst, tmp):
    out = []
    for e in range(4):
        for sp in range(4):
            src = vr(base + (k * 4 + sp) * 4 + e)
            lo = vr(dst + 2 * e) if sp == 0 else vr(tmp)
            hi = vr(dst + 2 * e + 1) if sp == 0 else vr(tmp + 1)
            out.append(Ins('v_lshlrev_b32 %s, 16, %s' % (lo, src)))
            out.append(Ins('v_and_b32 %s, 0xffff0000, %s' % (hi, src)))
            if sp:
                out.append(Ins('v_add_f32 %s, %s, %s' % (vr(dst + 2 * e), vr(dst + 2 * e), lo)))
                out.append(Ins('v_add_f32 %s, %s, %s' % (vr(dst + 2 * e + 1), vr(dst + 2 * e + 1), hi)))
    return out


def d_scalar_setup1():
    o = []
    a = lambda s: o.append(Ins(s))
    a('s_mul_i32 %s, %s, 288' % (T(1), sr(S_W)))
    a('s_lshl_b32 %s, %s, 6' % (T(0), sr(S_SP)))
    a('s_add_u32 %s, %s, %s' % (T(0), T(0), sr(S_TILE)))
    a('s_mul_i32 %s, %s, %d' % (T(2), T(0), 18 * 1152))
    a('s_add_u32 %s, %s, %s' % (T(2), T(2), T(1)))
    o += srd_ins(S_A1, P_W2, T(2), 17 * 1152 + 288)
    a('s_and_b32 %s, %s, 1' % (T(7), sr(S_SP)))
    a('s_lshl_b32 %s, %s, 3' % (T(6), sr(S_SP)))
    a('s_lshl_b32 %s, %s, 1' % (T(3), T(7)))
    a('s_add_u32 %s, %s, %s' % (T(6), T(6), T(3)))
    a('s_lshl_b32 %s, %s, 3' % (T(7), T(7)))
    a('s_sub_u32 %s, 20, %s' % (T(7), T(7)))
    a('s_mul_i32 %s, %s, %s' % (T(9), T(7), sr(S_TILE)))
    a('s_lshl_b32 %s, %s, 7' % (T(2), T(6)))
    a('s_add_u32 %s, %s, %s' % (T(2), T(2), T(9)))
    a('s_mul_i32 %s, %s, 1152' % (T(2), T(2)))
    a('s_add_u32 %s, %s, %s' % (T(2), T(2), T(1)))
    a('s_mul_i32 %s, %s, 1152' % (T(3), T(7)))
    a('s_sub_u32 %s, %s, 864' % (T(3), T(3)))
    o += srd_ins(S_A2, P_WO, T(2), T(3))
    a('s_lshl_b32 %s, %s, 2' % (T(0), sr(S_SP)))
    a('s_add_u32 %s, %s, %s' % (T(1), T(0), sr(S_W)))
    a('s_mul_i32 %s, %s, %d' % (T(1), T(1), WBLK))
    a('s_add_u32 %s, %s, 0x%x' % (T(1), T(1), WS_W))
    a('s_mul_i32 %s, %s, %d' % (T(2), sr(S_TILE), 18 * 288))
    a('s_add_u32 %s, %s, %s' % (T(2), T(2), T(1)))
    o += srd_ins(S_A3, P_WS, T(2), 18 * 288)
    a('s_mul_i32 %s, %s, 288' % (T(2), T(9)))
    a('s_add_u32 %s, %s, %s' % (T(2), T(2), T(1)))
    a('s_add_u32 %s, %s, %d' % (T(2), T(2), 1152 * 288))
    a('s_mul_i32 %s, %s, 288' % (T(3), T(7)))
    o += srd_ins(S_A4, P_WS, T(2), T(3))
    a('s_mov_b32 %s, 0' % sr(S_RO))
    a('s_and_b32 %s, s2, 3' % T(0))
    a('s_lshl_b32 %s, %s, 13' % (sr(S_FGR), T(0)))
    return o


def d_scalar_setup2():
    o = []
    a = lambda s: o.append(Ins(s))
    a('s_and_b32 %s, s2, 3' % sr(S_SP))
    a('s_and_b32 %s, s2, 4' % T(0))
    a('s_lshr_b32 %s, s2, 6' % T(1))
    a('s_add_u32 %s, %s, %s' % (T(0), T(0), T(1)))
    a('s_lshl_b32 %s, %s, 3' % (T(0), T(0)))
    a('s_bfe_u32 %s, s2, 0x30003' % T(1))
    a('s_add_u32 %s, %s, %s' % (sr(S_TILE), T(0), T(1)))
    a('s_and_b32 %s, %s, 1' % (T(3), sr(S_SP)))
    a('s_lshl_b32 %s, %s, 1' % (T(3), T(3)))
    a('s_lshl_b32 %s, %s, 3' % (T(6), sr(S_SP)))
    a('s_add_u32 %s, %s, %s' % (T(6), T(6), T(3)))
    a('s_lshl_b32 %s, %s, 2' % (T(0), sr(S_SP)))
    a('s_and_b32 %s, %s, 3' % (T(1), sr(S_TILE)))
    a('s_add_u32 %s, %s, %s' % (T(1), T(0), T(1)))
    a('s_mul_i32 %s, %s, %d' % (T(1), T(1), WBLK))
    a('s_add_u32 %s, %s, %s' % (T(1), T(1), sr(S_M1)))
    a('s_add_u32 %s, %s, 0x%x' % (T(1), T(1), WS_W))
    o += srd_ins(S_DW2, P_WS, T(1), 18 * 36864 + 9216)
    a('s_lshr_b32 %s, %s, 2' % (T(4), sr(S_TILE)))
    a('s_lshl_b32 %s, %s, 2' % (T(5), T(4)))
    a('s_add_u32 %s, %s, %s' % (T(5), T(5), sr(S_W)))
    a('s_mul_i32 %s, %s, %d' % (T(2), T(5), 2 * HS()))
    a('s_mul_i32 %s, %s, %d' % (T(3), sr(S_SP), 36 * 1024))
    a('s_add_u32 %s, %s, %s' % (T(2), T(2), T(3)))
    a('s_add_u32 %s, %s, 0x%x' % (T(2), T(2), WS_H))
    o += srd_ins(S_DH, P_WS, T(2), HS() + 36 * 1024)
    a('s_mul_i32 %s, %s, %d' % (T(2), T(5), 2 * OS()))
    a('s_lshl_b32 %s, %s, 12' % (T(3), T(6)))
    a('s_add_u32 %s, %s, %s' % (T(2), T(2), T(3)))
    a('s_add_u32 %s, %s, 0x%x' % (T(2), T(2), WS_O))
    o += srd_ins(S_DO, P_WS, T(2), OS() + 40 * 1024)
    a('s_lshl_b32 %s, %s, 2' % (T(2), sr(S_TILE)))
    a('s_add_u32 %s, %s, %s' % (T(2), T(2), sr(S_SP)))
    a('s_lshl_b32 %s, %s, 7' % (sr(S_FT), T(2)))
    a('s_add_u32 %s, %s, 0x10000' % (sr(S_FT), sr(S_FT)))
    a('s_lshl_b32 %s, %s, 2' % (T(2), T(2)))
    a('s_add_u32 %s, %s, %s' % (T(2), T(2), sr(S_W)))
    a('s_mul_i32 %s, %s, 9216' % (T(2), T(2)))
    a('s_add_u32 %s, %s, 0x%x' % (T(2), T(2), WS_P))
    o += srd_ins(S_DP, P_WS, T(2), PG + 9216)
    a('s_lshl_b32 %s, %s, 4' % (T(2), sr(S_TILE)))
    a('s_add_u32 %s, %s, %s' % (T(2), T(2), sr(S_SP)))
    a('s_mul_i32 %s, %s, 9216' % (T(2), T(2)))
    a('s_lshl_b32 %s, %s, 10' % (T(3), sr(S_W)))
    a('s_add_u32 %s, %s, %s' % (T(2), T(2), T(3)))
    a('s_add_u32 %s, %s, 0x%x' % (T(2), T(2), WS_P))
    o += srd_ins(S_DR, P_WS, T(2), PG + 14 * 9216)
    a('s_and_b32 %s, %s, 3' % (T(1), sr(S_TILE)))
    a('s_mul_i32 %s, %s, 288' % (T(1), T(1)))
    a('s_andn2_b32 %s, %s, 3' % (T(2), sr(S_TILE)))
    a('s_add_u32 %s, %s, %s' % (T(2), T(2), sr(S_SP)))
    a('s_mul_i32 %s, %s, %d' % (T(2), T(2), 32 * 1152))
    a('s_add_u32 %s, %s, %s' % (T(2), T(2), T(1)))
    o += srd_ins(S_DX, P_X, T(2), 31 * 1152 + 288)
    o += srd_ins(S_DOUT, P_OUT, T(2), 31 * 1152 + 288)
    a('s_lshl_b32 %s, %s, 28' % (sr(S_OFFQ), sr(S_W)))
    a('s_mov_b32 %s, 0x%x' % (sr(S_C), f2u(LOG2E * LOG2E)))
    a('s_mul_i32 %s, %s, %d' % (sr(S_HS), sr(S_W), 4 * OS()))
    for qb in range(1, 4):
        a('s_add_u32 %s, %s, 0x%x' % (sr(S_HS + qb), sr(S_HS), qb * OS()))
    a('s_lshl_b32 %s, %s, 5' % (sr(S_HS + 4), sr(S_W)))
    a('s_add_u32 %s, %s, %d' % (sr(S_HS + 5), sr(S_HS + 4), 16 * 1152))
    a('s_lshl_b32 %s, %s, 20' % (sr(S_HS + 6), sr(S_W)))
    a('s_add_u32 %s, %s, %d' % (sr(S_HS + 7), sr(S_HS + 6), 16 * 1152))
    return o


V_RN, V_RV = 20, 21
V_RQ = (248, 36)


def repack_pat():
    return [Ins('v_mul_u32_u24 %s, 3641, %s' % (vr(V_RV), vr(V_RN))),
            Ins('v_lshrrev_b32 %s, 16, %s' % (vr(V_RV), vr(V_RV))),
            Ins('v_mul_u32_u24 %s, 864, %s' % (vr(V_RV), vr(V_RV))),
            Ins('v_lshl_add_u32 %s, %s, 4, %s' % (vr(V_RV), vr(V_RN), vr(V_RV))),
            Ins('v_add_u32 %s, 64, %s' % (vr(V_RN), vr(V_RN)))]


def o_epilogue_unit(qb, t, n, ready):
    base = 184 + (n % 4) * 12
    o = []
    for r in range(8):
        o.append(Ins('v_accvgpr_read_b32 %s, %s' % (vr(base + r), ar(A_O + ((2 * t + r // 4) * 4 + qb) * 4 + r % 4))))
    for r in range(8):
        o.append(Ins('v_mul_f32 %s, %s, %s' % (vr(base + r), vr(base + r), vr(V_L + qb))))
    for r in range(4):
        o.append(Ins('v_cvt_pk_bf16_f32 %s, %s, %s' % (vr(base + 8 + r), vr(base + 2 * r), vr(base + 2 * r + 1))))
    o.append(Ins('buffer_store_dwordx4 %s, %s, %s, %s offen offset:%d%s' % (
        vr(base + 8, 4), vr(V_L16), sr(S_O, 4), sr(S_HS + qb), t * 1024, '' if OPT.get('plain_o', 0) else ' sc1'), lds=('O', 0)))
    o[0].ready = ready
    return o


def ln_parts(B=64):
    v = lambda k, n=1: vr(B + k, n)
    A, Ld, C, St = [], [], [], []
    a = lambda t: A.append(Ins(t))
    a('s_lshl_b32 s3, %s, 5' % sr(S_QT))
    a('s_add_u32 s3, s3, %s' % sr(S_HD))
    a('s_lshl_b32 s3, s3, 3')
    a('v_lshrrev_b32 %s, 5, v0' % v(1))
    a('v_add_u32 %s, s3, %s' % (v(1), v(1)))
    a('v_and_b32 %s, 31, v0' % v(2))
    a('v_lshrrev_b32 %s, 2, %s' % (v(3), v(2)))
    a('v_and_b32 %s, 3, %s' % (v(4), v(2)))
    a('v_mul_u32_u24 %s, 1152, %s' % (v(5), v(1)))
    a('v_lshl_add_u32 %s, %s, 6, %s' % (v(5), v(3), v(5)))
    a('v_lshl_add_u32 %s, %s, 3, %s' % (v(5), v(4), v(5)))
    for r in range(16, 20):
        a('v_mov_b32 %s, 0' % v(r))
    msk = lambda: [Ins('v_cmp_gt_u32 vcc, 8, %s' % v(2)), Ins('s_mov_b64 exec, vcc')]
    Ld += srd_ins(S_O, P_X, None, 2048 * 1152)
    for it in range(3):
        if it == 2:
            Ld += msk()
        Ld.append(Ins('buffer_load_dwordx2 %s, %s, %s, 0 offen offset:%d' % (v(8 + 4 * it, 2), v(5), sr(S_O, 4), it * 512)))
        Ld.append(Ins('buffer_load_dwordx2 %s, %s, %s, 0 offen offset:%d' % (v(10 + 4 * it, 2), v(5), sr(S_O, 4), it * 512 + 32)))
    Ld.append(Ins('s_mov_b64 exec, -1'))
    c = lambda t: C.append(Ins(t))
    c('v_lshrrev_b32 %s, 4, %s' % (v(6), v(1)))
    c('v_mul_u32_u24 %s, 18, %s' % (v(6), v(6)))
    c('v_add_u32 %s, %s, %s' % (v(6), v(6), v(3)))
    c('v_lshlrev_b32 %s, 10, %s' % (v(6), v(6)))
    c('v_lshl_add_u32 %s, %s, 8, %s' % (v(6), v(4), v(6)))
    c('v_and_b32 %s, 15, %s' % (v(7), v(1)))
    c('v_lshl_add_u32 %s, %s, 4, %s' % (v(6), v(7), v(6)))
    for d in range(12):
        c('v_lshlrev_b32 %s, 16, %s' % (v(20 + 2 * d), v(8 + d)))
        c('v_and_b32 %s, 0xffff0000, %s' % (v(21 + 2 * d), v(8 + d)))

    def reduce32(x, t):
        for k in (8, 4, 2, 1):
            c('v_add_f32_dpp %s, %s, %s row_ror:%d row_mask:0xf bank_mask:0xf' % (x, x, x, k))
        c('v_mov_b32 %s, %s' % (t, x))
        c('v_permlane16_swap_b32 %s, %s' % (x, t))
        c('v_add_f32 %s, %s, %s' % (x, x, t))
    c('v_add_f32 %s, %s, %s' % (v(44), v(20), v(21)))
    c('v_add_f32 %s, %s, %s' % (v(45), v(22), v(23)))
    for e in range(4, 24, 2):
        c('v_add_f32 %s, %s, %s' % (v(44), v(44), v(20 + e)))
        c('v_add_f32 %s, %s, %s' % (v(45), v(45), v(21 + e)))
    c('v_add_f32 %s, %s, %s' % (v(44), v(44), v(45)))
    reduce32(v(44), v(45))
    c('v_mul_f32 %s, 0x%x, %s' % (v(44), f2u(1.0 / 576), v(44)))
    c('v_mov_b32 %s, 0' % v(46))
    c('v_mov_b32 %s, 0' % v(47))
    for e in range(24):
        if e == 16:
            C += msk()
        c('v_sub_f32 %s, %s, %s' % (v(48), v(20 + e), v(44)))
        c('v_fmac_f32 %s, %s, %s' % (v(46 + e % 2), v(48), v(48)))
    c('s_mov_b64 exec, -1')
    c('v_add_f32 %s, %s, %s' % (v(46), v(46), v(47)))
    reduce32(v(46), v(45))
    c('v_mul_f32 %s, 0x%x, %s' % (v(46), f2u(1.0 / 576), v(46)))

    def rnd(x):
        c('v_cvt_pk_bf16_f32 %s, %s, %s' % (x, x, x))
        c('v_lshlrev_b32 %s, 16, %s' % (x, x))
    rnd(v(44))
    rnd(v(46))
    c('v_add_f32 %s, 0x%x, %s' % (v(46), f2u(1e-5), v(46)))
    rnd(v(46))
    c('v_sqrt_f32 %s, %s' % (v(46), v(46)))
    rnd(v(46))
    c('v_rcp_f32 %s, %s' % (v(46), v(46)))
    if OPT.get('fold', 0):
        c('v_mul_f32 %s, 0x%x, %s' % (v(46), f2u(-LOG2E), v(46)))
    C += srd_ins(S_XN, P_WS, None, 2048 * 1152)
    c('s_mov_b32 %s, 8192' % T(0))
    c('s_mov_b32 %s, 16384' % T(1))
    for d in range(12):
        x, y = v(20 + 2 * d), v(21 + 2 * d)
        c('v_sub_f32 %s, %s, %s' % (x, x, v(44)))
        c('v_sub_f32 %s, %s, %s' % (y, y, v(44)))
        c('v_cvt_pk_bf16_f32 %s, %s, %s' % (v(8 + d), x, y))
        c('v_lshlrev_b32 %s, 16, %s' % (x, v(8 + d)))
        c('v_and_b32 %s, 0xffff0000, %s' % (y, v(8 + d)))
        c('v_mul_f32 %s, %s, %s' % (x, x, v(46)))
        c('v_mul_f32 %s, %s, %s' % (y, y, v(46)))
        c('v_cvt_pk_bf16_f32 %s, %s, %s' % (v(8 + d), x, y))
        if d % 4 == 3:
            if d == 11:
                C += msk()
            C.append(Ins('buffer_store_dwordx4 %s, %s, %s, %s offen sc1' % (
                v(5 + d, 4), v(6), sr(S_XN, 4), ('0', T(0), T(1))[d // 4]), lds=('XN', 0)))
    c('s_mov_b64 exec, -1')
    return A, Ld, C


def gen_start_roles(diag):
    B = 64
    v = lambda k, n=1: vr(B + k, n)
    p = Prog()

    def rs(k):
        if diag and OPT.get('sst'):
            p('s_memrealtime %s' % sr(S_DG, 2))
            p('s_waitcnt lgkmcnt(0)')
            p('v_writelane_b32 v1, %s, %d' % (sr(S_DG), 32 + k))
    p('s_cmp_ge_u32 %s, 2' % sr(S_W))
    p('s_cbranch_scc1 L_role_b')
    p('s_lshl_b32 s3, %s, 5' % sr(S_QT))
    p('s_add_u32 s3, s3, %s' % sr(S_HD))
    p('s_lshl_b32 %s, s3, 3' % T(0))
    p('v_lshrrev_b32 %s, 4, v0' % v(1))
    p('v_add_u32 %s, %s, %s' % (v(1), T(0), v(1)))
    p('v_and_b32 %s, 15, v0' % v(2))
    p('v_lshrrev_b32 %s, 2, %s' % (v(3), v(2)))
    p('v_and_b32 %s, 3, %s' % (v(4), v(2)))
    p('v_mul_u32_u24 %s, 1152, %s' % (v(5), v(1)))
    p('v_lshl_add_u32 %s, %s, 6, %s' % (v(5), v(3), v(5)))
    p('v_lshl_add_u32 %s, %s, 3, %s' % (v(5), v(4), v(5)))
    for r in range(24, 28):
        p('v_mov_b32 %s, 0' % v(r))
    p('v_cmp_gt_u32 vcc, 8, %s' % v(2))
    p('v_or_b32 %s, s2, v0' % v(80))
    p('v_min_u32 %s, 1, %s' % (v(80), v(80)))
    p('v_lshlrev_b32 %s, 20, %s' % (v(80), v(80)))
    p('s_mov_b64 s[26:27], vcc')
    p('s_waitcnt lgkmcnt(0)')
    make_srd(p, S_O, P_X, None, 2048 * 1152)
    for it in range(5):
        if it == 4:
            p('s_mov_b64 exec, s[26:27]')
        p('buffer_load_dwordx2 %s, %s, %s, 0 offen offset:%d' % (v(8 + 4 * it, 2), v(5), sr(S_O, 4), it * 256))
        p('buffer_load_dwordx2 %s, %s, %s, 0 offen offset:%d' % (v(10 + 4 * it, 2), v(5), sr(S_O, 4), it * 256 + 32))
    p('s_mov_b64 exec, -1')
    make_srd(p, S_WQ, 50, None, 256)
    p('s_or_b32 %s, s24, 1' % T(1))
    p('v_mov_b32 %s, %s' % (v(81), T(1)))
    p('buffer_store_dword %s, %s, %s, 0 offen sc1' % (v(81), v(80), sr(S_WQ, 4)))
    p('v_lshrrev_b32 %s, 4, %s' % (v(6), v(1)))
    p('v_mul_u32_u24 %s, 18, %s' % (v(6), v(6)))
    p('v_add_u32 %s, %s, %s' % (v(6), v(6), v(3)))
    p('v_lshlrev_b32 %s, 10, %s' % (v(6), v(6)))
    p('v_lshl_add_u32 %s, %s, 8, %s' % (v(6), v(4), v(6)))
    p('v_and_b32 %s, 15, %s' % (v(7), v(1)))
    p('v_lshl_add_u32 %s, %s, 4, %s' % (v(6), v(7), v(6)))
    make_srd(p, S_XN, P_WS, None, 2048 * 1152)
    p('s_mov_b32 %s, 0x%x' % (T(3), WS_F + 4 * 32768))
    make_srd(p, S_FL, P_WS, T(3), 65536)
    p('s_lshl_b32 %s, %s, 13' % (T(2), sr(S_QT)))
    p('s_lshl_b32 %s, s3, 1' % T(3))
    p('s_add_u32 %s, %s, %s' % (T(3), T(3), sr(S_W)))
    p('s_lshl_b32 %s, %s, 7' % (T(3), T(3)))
    p('v_lshlrev_b32 %s, 20, %s' % (v(82), L))
    p('v_lshlrev_b32 %s, 7, %s' % (v(83), L))
    p('v_mov_b32 %s, 0' % v(84))
    for k in range(1, 5):
        p('s_mov_b32 %s, %d' % (T(3 + k), 4096 * k))
    F = 30
    rs(3)
    p.wait_regs(v(8, 20))
    rs(4)
    for d in range(20):
        p('v_lshlrev_b32 %s, 16, %s' % (v(F + 2 * d), v(8 + d)))
        p('v_and_b32 %s, 0xffff0000, %s' % (v(F + 1 + 2 * d), v(8 + d)))
    p('buffer_load_dword %s, %s, %s, 0 offen sc1' % (v(85), v(84), sr(S_WQ, 4)))
    m, m2, q, q2, t = v(70), v(71), v(72), v(73), v(74)

    def reduce16(x):
        for k in (8, 4, 2, 1):
            p('v_add_f32_dpp %s, %s, %s row_ror:%d row_mask:0xf bank_mask:0xf' % (x, x, x, k))
    p('v_add_f32 %s, %s, %s' % (m, v(F), v(F + 1)))
    p('v_add_f32 %s, %s, %s' % (m2, v(F + 2), v(F + 3)))
    for e in range(4, 40, 2):
        p('v_add_f32 %s, %s, %s' % (m, m, v(F + e)))
        p('v_add_f32 %s, %s, %s' % (m2, m2, v(F + e + 1)))
    p('v_add_f32 %s, %s, %s' % (m, m, m2))
    reduce16(m)
    p('v_mul_f32 %s, 0x%x, %s' % (m, f2u(1.0 / 576), m))
    p('v_mov_b32 %s, 0' % q)
    p('v_mov_b32 %s, 0' % q2)
    for e in range(40):
        if e == 32:
            p('s_mov_b64 exec, s[26:27]')
        p('v_sub_f32 %s, %s, %s' % (t, v(F + e), m))
        p('v_fmac_f32 %s, %s, %s' % ((q, q2)[e % 2], t, t))
    p('s_mov_b64 exec, -1')
    p('v_add_f32 %s, %s, %s' % (q, q, q2))
    reduce16(q)
    p('v_mul_f32 %s, 0x%x, %s' % (q, f2u(1.0 / 576), q))

    def rnd(x):
        p('v_cvt_pk_bf16_f32 %s, %s, %s' % (x, x, x))
        p('v_lshlrev_b32 %s, 16, %s' % (x, x))
    rnd(m)
    rnd(q)
    p('v_add_f32 %s, 0x%x, %s' % (q, f2u(1e-5), q))
    rnd(q)
    p('v_sqrt_f32 %s, %s' % (q, q))
    rnd(q)
    p('v_rcp_f32 %s, %s' % (q, q))
    for d in range(20):
        x, y = v(F + 2 * d), v(F + 1 + 2 * d)
        p('v_sub_f32 %s, %s, %s' % (x, x, m))
        p('v_sub_f32 %s, %s, %s' % (y, y, m))
        p('v_cvt_pk_bf16_f32 %s, %s, %s' % (v(8 + d), x, y))
        p('v_lshlrev_b32 %s, 16, %s' % (x, v(8 + d)))
        p('v_and_b32 %s, 0xffff0000, %s' % (y, v(8 + d)))
        p('v_mul_f32 %s, %s, %s' % (x, x, q))
        p('v_mul_f32 %s, %s, %s' % (y, y, q))
        p('v_cvt_pk_bf16_f32 %s, %s, %s' % (v(8 + d), x, y))
        if d % 4 == 3:
            if d == 19:
                p('s_mov_b64 exec, s[26:27]')
            p('buffer_store_dwordx4 %s, %s, %s, %s offen sc1' % (v(5 + d, 4), v(6), sr(S_XN, 4), '0' if d == 3 else T(3 + d // 4)))
    p('s_mov_b64 exec, -1')
    rs(5)
    p('s_mov_b32 s3, 0')
    p.label('L_ep_l')
    p('s_memrealtime s[24:25]')
    p('s_waitcnt vmcnt(0) lgkmcnt(0)')
    p('v_readfirstlane_b32 %s, %s' % (T(0), v(85)))
    p('s_add_u32 %s, s24, 100' % T(1))
    p('s_sub_u32 %s, %s, %s' % (T(1), T(1), T(0)))
    p('s_bitcmp0_b32 %s, 0' % T(0))
    p('s_cselect_b32 %s, -1, %s' % (T(1), T(1)))
    p('s_cmp_lt_u32 %s, 5100' % T(1))
    p('s_cbranch_scc1 L_ep_ok')
    p('s_and_b32 %s, %s, 1' % (T(0), T(0)))
    p('s_mul_i32 %s, %s, 127' % (T(0), T(0)))
    p('s_add_u32 s3, s3, %s' % T(0))
    p('s_add_u32 s3, s3, 1')
    p('s_cmp_gt_u32 s3, 0x40000')
    p('s_cbranch_scc1 L_ep_ok')
    p('buffer_load_dword %s, %s, %s, 0 offen sc1' % (v(85), v(84), sr(S_WQ, 4)))
    p('s_branch L_ep_l')
    p.label('L_ep_ok')
    rs(6)
    p('buffer_store_dword %s, %s, %s, %s offen sc1' % (v(85), v(82), sr(S_FL, 4), T(3)))
    p('v_mov_b32 %s, 163836' % v(84))
    p('ds_write_b32 %s, %s' % (v(84), v(85)))
    p('s_mov_b32 %s, %s' % (sr(S_CNT), T(2)))
    p('s_branch L_join')
    SPIN_BLOCKS.append("""L_lnp:
 s_mov_b32 s3, 0
L_lnp_l:
 buffer_load_dword %s, %s, %s, %s offen sc1
 s_add_u32 s3, s3, 1
 s_cmp_gt_u32 s3, 0x40000
 s_cbranch_scc1 L_lnp_ok
 s_waitcnt vmcnt(0)
 v_cmp_ne_u32 vcc, %s, %s
 s_cbranch_vccnz L_lnp_l
 s_branch L_lnp_ok""" % (v(86), v(83), sr(S_FL, 4), sr(S_CNT), v(85), v(86)))
    p.label('L_role_b')
    R0 = OPT.get('pf0', 12)
    p('s_lshr_b32 %s, s2, 3' % T(0))
    p('s_mul_i32 %s, %s, %d' % (T(0), T(0), R0 * 9216))
    if OPT.get('map', 1):
        p('s_and_b32 %s, s2, 7' % T(1))
        p('s_mul_i32 %s, %s, 1152' % (T(1), T(1)))
        p('s_add_u32 %s, %s, %s' % (T(0), T(0), T(1)))
        p('s_waitcnt lgkmcnt(0)')
        p('s_cmp_eq_u32 %s, 3' % sr(S_W))
        p('s_cselect_b32 %s, s46, s44' % sr(S_H))
        p('s_cselect_b32 %s, s47, s45' % sr(S_H + 1))
        make_srd(p, S_H, S_H, T(0), (R0 - 1) * 9216 + 1152)
        if OPT.get('bdelay', 0):
            p('s_waitcnt vmcnt(0)')
        for k in range((R0 * 9 + 63) // 64):
            p('v_add_u32 %s, %d, %s' % (v(92), 64 * k, L))
            p('v_mul_u32_u24 %s, 7282, %s' % (v(93), v(92)))
            p('v_lshrrev_b32 %s, 16, %s' % (v(93), v(93)))
            p('v_mul_u32_u24 %s, %d, %s' % (v(93), 9216 - 1152, v(93)))
            p('v_lshl_add_u32 %s, %s, 7, %s' % (v(93), v(92), v(93)))
            p('buffer_load_dword %s, %s, %s, 0 offen' % (v(95 + k), v(93), sr(S_H, 4)))
    else:
        p('s_and_b32 %s, s2, 3' % T(1))
        p('s_mul_i32 %s, %s, 2304' % (T(1), T(1)))
        p('s_add_u32 %s, %s, %s' % (T(0), T(0), T(1)))
        p('s_waitcnt lgkmcnt(0)')
        both = OPT.get('pfh', 1) == 0
        if both:
            p('s_cmp_eq_u32 %s, 3' % sr(S_W))
        else:
            p('s_bitcmp1_b32 s2, 2')
        p('s_cselect_b32 %s, s46, s44' % sr(S_H))
        p('s_cselect_b32 %s, s47, s45' % sr(S_H + 1))
        make_srd(p, S_H, S_H, T(0), (R0 - 1) * 9216 + 2304)
        for k in range(4 if both else 2):
            o = [Ins('v_add_u32 %s, %d, %s' % (v(92), 64 * k, L)) if both else Ins('v_add_u32 %s, %d, v0' % (v(92), 128 * k - 128))]
            div18(o, v(92), v(93), v(94))
            for x in o:
                p.add(x)
            p('v_mul_u32_u24 %s, 9216, %s' % (v(93), v(93)))
            p('v_lshl_add_u32 %s, %s, 7, %s' % (v(93), v(94), v(93)))
            p('buffer_load_dword %s, %s, %s, 0 offen' % (v(95 + k), v(93), sr(S_H, 4)))
    p('s_mov_b32 %s, 0x%x' % (T(3), WS_F + 4 * 32768))
    make_srd(p, S_FL, P_WS, T(3), 65536)
    p('v_lshlrev_b32 %s, 7, %s' % (v(83), L))
    p('s_mov_b32 %s, 0' % sr(S_CNT))
    if OPT.get('bwait', 1):
        p('s_waitcnt vmcnt(0)')
    p.label('L_join')
    p.finalize()
    return p.text().rstrip('\n')


def gen_slow_softmax():
    p = Prog()
    KA, VA, OK, OV, NM, MX = 120, 124, 132, 136, 140, 138
    NM = 44
    NM, OV, MX = 136, 32, 36
    p.label('L_slow')
    p('s_waitcnt vmcnt(0) lgkmcnt(0)')
    p('s_nop 15')
    p('s_add_u32 %s, %s, %d' % (T(0), sr(S_MK), 112 * 1024))
    p('s_cmp_eq_u32 %s, 3' % sr(S_W))
    p('s_cselect_b32 %s, %d, %s' % (T(0), 72 * 1024, T(0)))
    p('s_sub_u32 %s, %s, 0x10000' % (T(1), T(0)))
    for k in range(4):
        p('v_add_u32 %s, %s, %s' % (vr(KA + k), T(0), vr(V_KA + k)))
        p('v_subrev_u32 %s, %s, %s' % (vr(OK + k), sr(S_MK), vr(V_OK + k)))
    for k in range(8):
        p('v_add_u32 %s, %s, %s' % (vr(VA + k), T(1), vr(V_VA + k)))
    for k in range(2):
        p('v_subrev_u32 %s, %s, %s' % (vr(OV + k), sr(S_MK), vr(V_OV + k)))

    def load16(srd, vo, nvo):
        p('s_mov_b32 m0, %s' % T(0))
        for cc in range(4):
            p('buffer_load_dwordx4 %s, %s, %s offen offset:%d lds' % (vr(vo + cc % nvo), sr(srd, 4), T(2), cc * 1024))
        p('s_add_u32 %s, %s, 4096' % (T(2), T(2)))
        p('s_waitcnt vmcnt(0)')

    def qk(cin):
        p('s_mov_b32 %s, %s' % (T(2), T(3)))
        for kb in range(4):
            load16(S_K, OK, 4)
            for sx in range(4):
                p('ds_read_b128 %s, %s' % (ar(A_VF + (kb * 4 + sx) * 4, 4), vr(KA + sx)))
            p('s_waitcnt lgkmcnt(0)')
        for kb in range(4):
            for qb in range(4):
                for sx in range(4):
                    d = vr(Sreg(kb, qb), 4)
                    p('%s %s, %s, %s, %s' % (MF, d, ar(A_VF + (kb * 4 + sx) * 4, 4), vr(V_Q + (qb * 4 + sx) * 4, 4),
                                             cin(qb) if sx == 0 else d))
    for qb in range(4):
        p('v_mov_b32 %s, 0xff7fffff' % vr(MX + qb))
    p('s_mov_b32 %s, 0' % T(3))
    p.loop_begin(2, 's1')
    p.label('L_slow1')
    qk(lambda qb: '0')
    for qb in range(4):
        regs = [vr(Sreg(kb, qb) + r) for kb in range(4) for r in range(4)]
        for k in range(8):
            p('v_max3_f32 %s, %s, %s, %s' % (vr(MX + qb), vr(MX + qb), regs[2 * k], regs[2 * k + 1]))
    p('s_add_u32 %s, %s, 16384' % (T(3), T(3)))
    p('s_cmp_lt_u32 %s, 0x80000' % T(3))
    p('s_cbranch_scc1 L_slow1')
    p.loop_end()
    for x in xlane4('v_max_f32', [vr(MX + k) for k in range(4)], [vr(V_E + k) for k in range(4)]):
        p.add(x)
    for qb in range(4):
        for r in range(4):
            p('v_sub_f32 %s, 0, %s' % (vr(NM + qb * 4 + r), vr(MX + qb)))
        p('v_mov_b32 %s, 0' % vr(V_L + qb))
    for i in range(128):
        p('v_accvgpr_write_b32 %s, 0' % ar(A_O + i))
    p('s_mov_b32 %s, 0' % T(3))
    lp = p.loop_begin(3, 's2')
    p.label('L_slow2')
    qk(lambda qb: vr(NM + qb * 4, 4))
    for i in range(64):
        for x in sm_instrs(1, i):
            if x is not None:
                p.add(x)
    p('s_cmp_eq_u32 %s, 0x7c000' % T(3))
    p('s_cbranch_scc1 L_slow_done')
    p.loop_mark_exit(lp)
    p('s_mov_b32 %s, %s' % (T(2), T(3)))
    for ks in range(2):
        for j in range(2):
            load16(S_V, OV, 2)
            for db in range(8):
                p('ds_read_b64_tr_b16 %s, %s' % (ar(A_VF + db * 8 + ks * 4 + 2 * j, 2), vr(VA + db)))
            p('s_waitcnt lgkmcnt(0)')
    for db in range(8):
        for qb in range(4):
            for ks in range(2):
                o = ar(A_O + (db * 4 + qb) * 4, 4)
                p('%s %s, %s, %s, %s' % (MF, o, ar(A_VF + db * 8 + ks * 4, 4), vr(Preg(1, qb, ks), 4), o))
    p('s_add_u32 %s, %s, 16384' % (T(3), T(3)))
    p('s_branch L_slow2')
    p.loop_end()
    p.label('L_slow_done')
    for db in range(4):
        for ks in range(2):
            for j in range(2):
                x = v_load(31, db, ks, j, False)
                x.lds = None
                p.add(x)
    p('s_waitcnt vmcnt(0) lgkmcnt(0)')
    p('s_nop 15')
    p('s_branch L_slow_ret')
    p.finalize()
    return p.text().rstrip('\n')


def gen_main(diag=False):
    p = Prog()
    del SPIN_BLOCKS[:]
    _ct[0] = 0

    def stamp(k):
        if diag:
            p('s_memtime %s' % sr(S_DG, 2))
            p('s_waitcnt lgkmcnt(0)')
            p('v_writelane_b32 v1, %s, %d' % (sr(S_DG), k))
            p('s_memrealtime %s' % sr(S_DG, 2))
            p('s_waitcnt lgkmcnt(0)')
            p('v_writelane_b32 v1, %s, %d' % (sr(S_DG), k + 16))

    def addall(lst):
        for x in lst:
            p.add(x)

    def rstamp(k):
        if diag and OPT.get('sst'):
            p('s_memrealtime %s' % sr(S_DG, 2))
            p('s_waitcnt lgkmcnt(0)')
            p('v_writelane_b32 v1, %s, %d' % (sr(S_DG), 32 + k))
    p('s_cmp_ge_u32 s2, 256')
    p('s_cbranch_scc1 L_end')
    if OPT.get('fuse', 2) == 2:
        p('s_getpc_b64 s[28:29]')
        p.label('L_top')
        p('s_lshr_b32 s3, s2, 3')
        p('s_lshl_b32 s3, s3, 5')
        p('v_and_b32 v154, 31, v0')
        p('v_mov_b32 v155, s3')
        p('v_cmp_gt_u32 vcc, 32, v0')
        p('v_cndmask_b32 v155, 0, v155, vcc')
        p('v_add_lshl_u32 v154, v154, v155, 7')
        p('v_min_u32 v154, L_code_end-L_top-4, v154')
        x = p('global_load_dword v155, v154, s[28:29]')
        x.wr = []
    p('s_load_dwordx4 s[44:47], s[0:1], 48')
    p('s_load_dwordx2 %s, s[0:1], 88' % sr(P_WS, 2))
    p('s_load_dwordx4 s[36:39], s[0:1], 8')
    p('s_load_dwordx2 s[40:41], s[0:1], 24')
    p('s_load_dwordx2 %s, s[0:1], 0' % sr(P_X, 2))
    p('s_load_dwordx2 %s, s[0:1], 32' % sr(P_WO, 2))
    p('s_load_dwordx4 %s, s[0:1], 64' % sr(P_W2, 4))
    FU = OPT.get('fuse', 2)
    if FU:
        p('s_load_dwordx2 s[50:51], s[0:1], 80')
    stamp(0)
    p('v_and_b32 %s, 63, v0' % L)
    p('v_lshrrev_b32 %s, 6, v0' % t0)
    p('v_readfirstlane_b32 %s, %s' % (sr(S_W), t0))
    if OPT.get('map', 1):
        p('s_and_b32 %s, s2, 7' % T(0))
        p('s_lshl_b32 %s, %s, 2' % (T(0), T(0)))
        p('s_bfe_u32 %s, s2, 0x20003' % T(1))
        p('s_add_u32 %s, %s, %s' % (sr(S_HD), T(0), T(1)))
        p('s_lshr_b32 %s, s2, 5' % sr(S_QT))
    else:
        p('s_and_b32 %s, s2, 3' % T(0))
        p('s_lshl_b32 %s, %s, 3' % (T(0), T(0)))
        p('s_bfe_u32 %s, s2, 0x30003' % T(1))
        p('s_add_u32 %s, %s, %s' % (sr(S_HD), T(0), T(1)))
        p('s_and_b32 %s, s2, 4' % T(0))
        p('s_lshr_b32 %s, s2, 6' % T(1))
        p('s_add_u32 %s, %s, %s' % (sr(S_QT), T(0), T(1)))
    if FU == 2:
        p('s_memrealtime s[24:25]')
        p('s_nop 4')
        p.raw(gen_start_roles(diag))
        rstamp(0)
    if FU == 1:
        lnA, lnL, lnC = ln_parts()
        ct = code_touch('L_start', 120, 121, S_FL)
        ct[2] = Ins('s_lshl_b32 s3, s3, 12')
        ct[3] = Ins('v_and_b32 v120, 31, %s' % L)
        addall(ct)
        p.label('L_start')
        addall(lnA)
        p('s_memrealtime s[24:25]')
        p('v_or_b32 v125, s2, v0')
        p('v_min_u32 v125, 1, v125')
        p('v_lshlrev_b32 v125, 20, v125')
        p('s_waitcnt lgkmcnt(0)')
        make_srd(p, S_WQ, 50, None, 256)
        p('s_or_b32 s3, s24, 1')
        p('v_mov_b32 v126, s3')
        p('buffer_store_dword v126, v125, %s, 0 offen sc1' % sr(S_WQ, 4))
        addall(lnL)
        rstamp(0)
    p('v_lshlrev_b32 %s, 4, %s' % (vr(V_L16), L))
    p('s_and_b32 %s, %s, 1' % (T(2), sr(S_HD)))
    p('s_lshl_b32 %s, %s, 1' % (T(2), T(2)))
    p('v_add_u32 %s, %s, %s' % (t3, T(2), L))
    p('v_mul_u32_u24 %s, 3641, %s' % (vr(V_T + 4), L))
    p('v_mul_u32_u24 %s, 3641, %s' % (vr(V_T + 5), t3))
    p('s_movk_i32 %s, 9216' % T(9))
    p('s_movk_i32 %s, -288' % T(10))
    vo = []
    for i in range(9):
        o = []
        o.append(Ins('v_add_u32 %s, %d, %s' % (t0, 64 * i * 3641, vr(V_T + 4))))
        o.append(Ins('v_add_u32 %s, %d, %s' % (t1, 64 * i * 3641, vr(V_T + 5))))
        o.append(Ins('v_lshrrev_b32 %s, 16, %s' % (t0, t0)))
        o.append(Ins('v_lshrrev_b32 %s, 16, %s' % (t1, t1)))
        o.append(Ins('v_lshlrev_b32 %s, 4, %s' % (t2, t3)) if i == 0 else Ins('v_add_u32 %s, %d, %s' % (t2, 4096 if i % 4 == 0 else 0, t2)))
        o.append(Ins('v_mad_u32_u24 %s, %s, %s, %s' % (t0, t0, T(9), t2)))
        o.append(Ins('v_mad_i32_i24 %s, %s, %s, %s' % (vr(V_OW + i), t1, T(10), t0)))
        if i % 4:
            del o[4]
        vo.append(o)
    for o in vo[:4]:
        addall(o)
    p('s_mul_i32 %s, %s, 9216' % (sr(S_M1), sr(S_W)))
    p('s_and_b32 %s, %s, 1' % (T(3), sr(S_W)))
    p('s_mul_i32 %s, %s, %d' % (sr(S_OFFW), T(3), 32 * 9216))
    p('s_mul_i32 %s, %s, 288' % (T(2), sr(S_HD)))
    p('s_sub_u32 %s, %d, %s' % (T(3), 576 * 9216, T(2)))
    p('s_lshl_b32 %s, %s, 2' % (T(6), sr(S_QT)))
    p('s_add_u32 %s, %s, %s' % (T(6), T(6), sr(S_W)))
    p('s_mul_i32 %s, %s, %d' % (T(7), T(6), 4 * 18 * 1024))
    p('s_cmp_lt_u32 %s, 2' % sr(S_W))
    p('s_waitcnt lgkmcnt(0)')
    p('s_cselect_b32 s48, s44, s46')
    p('s_cselect_b32 s49, s45, s47')
    make_srd(p, S_WS, 48, T(2), T(3))
    def ln_now():
        p('v_mov_b32 v127, 0')
        p('s_mov_b32 %s, 0' % sr(S_CNT))
        rstamp(1)
        p.wait_regs(vr(72, 12))
        p.add(poll_issue(S_CNT, 128, 127, S_WQ))
        rstamp(2)
        addall(lnC)
        rstamp(3)
        poll_check(p, 'ep', S_CNT, 'v_cmp_eq_u32 vcc, 0', 128, 127, S_WQ, sleep=2)
        p('v_readfirstlane_b32 %s, v128' % sr(S_EP))

    def w_touch0():
        R0 = OPT.get('pf0', 12)
        if not R0:
            return
        p('s_lshr_b32 %s, s2, 3' % T(0))
        p('s_mul_i32 %s, %s, %d' % (T(0), T(0), R0 * 9216))
        p('s_and_b32 %s, s2, 3' % T(1))
        p('s_mul_i32 %s, %s, 2304' % (T(1), T(1)))
        p('s_add_u32 %s, %s, %s' % (T(0), T(0), T(1)))
        p('s_bitcmp1_b32 s2, 2')
        p('s_cselect_b32 %s, s46, s44' % sr(S_H))
        p('s_cselect_b32 %s, s47, s45' % sr(S_H + 1))
        make_srd(p, S_H, S_H, T(0), (R0 - 1) * 9216 + 2304)
        o = []
        div18(o, 'v0', 'v122', 'v123')
        addall(o)
        p('v_mul_u32_u24 v122, 9216, v122')
        p('v_lshl_add_u32 v122, v123, 7, v122')
        p('buffer_load_dword v124, v122, %s, 0 offen' % sr(S_H, 4))
    ORD = OPT.get('ord', 1)
    if FU == 2:
        make_srd(p, S_XN, P_WS, T(7), 4 * 18 * 1024)
    elif FU:
        p('s_mov_b32 %s, %s' % (sr(S_RO), T(7)))
        if ORD >= 1:
            if ORD == 1:
                w_touch0()
            for o in vo[4:]:
                addall(o)
            vo = vo[:4]
            ln_now()
            if ORD == 2:
                w_touch0()
    else:
        make_srd(p, S_XN, P_WS, T(7), 4 * 18 * 1024)
    d0 = p1_dma(0)
    addall(d0[:6])
    for o in vo[4:]:
        addall(o)
    addall(d0[6:] + (xn_loads(0, 0) if not FU else []))
    if FU == 2:
        rstamp(1)
        p('s_cmp_eq_u32 %s, 0' % sr(S_W))
        p('s_cbranch_scc1 L_lnp')
        p.label('L_lnp_ok')
        p('s_waitcnt lgkmcnt(0)')
        p('s_barrier')
        rstamp(2)
        addall(xn_loads(0, 0))
        p('v_mov_b32 v64, 163836')
        p('ds_read_b32 v65, v64')
        p('v_readfirstlane_b32 %s, v65' % sr(S_EP))
    if FU == 1 and ORD == 0:
        w_touch0()
        ln_now()
    if OPT.get('pro', 1) == 0:
        addall(p1_dma(1) + xn_loads(1, 1) + p1_dma(2))
    PF0 = OPT.get('pf0', 12)
    assert PF0 % 2 == 0
    MP = OPT.get('map', 1)
    p('s_lshr_b32 %s, s2, 3' % T(0))
    p('s_and_b32 %s, s2, %d' % (T(1), 7 if MP else 3))
    p('s_lshl_b32 %s, %s, 1' % (T(2), T(0)))
    p('s_and_b32 %s, %s, 1' % (T(3), sr(S_W)))
    p('s_add_u32 %s, %s, %s' % (T(2), T(2), T(3)))
    p('s_mul_i32 %s, %s, 9216' % (T(2), T(2)))
    p('s_mul_i32 %s, %s, %d' % (T(3), T(1), 1152 if MP else 2304))
    p('s_add_u32 %s, %s, %s' % (T(2), T(2), T(3)))
    p('s_sub_u32 %s, %d, %s' % (T(9), 576 * 9216, T(2)))
    p('s_lshl_b32 %s, %s, 2' % (T(4), T(0)))
    p('s_add_u32 %s, %s, %s' % (T(4), T(4), sr(S_W)))
    p('s_lshl_b32 %s, %s, 13' % (T(4), T(4)))
    p('s_lshl_b32 %s, %s, %d' % (T(3), T(1), 10 if MP else 11))
    p('s_add_u32 %s, %s, %s' % (T(4), T(4), T(3)))
    p('s_sub_u32 %s, %d, %s' % (T(10), 576 * 8192, T(4)))
    p('s_lshl_b32 %s, %s, 19' % (T(5), sr(S_HD)))
    make_srd(p, S_K, 36, T(5), 0x80000)
    make_srd(p, S_V, 38, T(5), 0x80000)
    p('s_lshl_b32 %s, %s, 8' % (T(5), sr(S_HD)))
    p('s_sub_u32 %s, %d, %s' % (T(3), 576 * 8192, T(5)))
    make_srd(p, S_WQ, 40, T(5), T(3))
    make_srd(p, S_A1, 48, T(2), T(9))
    make_srd(p, S_A2, 40, T(4), T(10))
    p('v_lshlrev_b32 %s, 7, %s' % (t1, L))
    p('v_mov_b32 %s, 0x7f000000' % t2)
    p('v_cmp_gt_u32 vcc, %d, %s' % (9 if MP else 18, L))
    p('v_cndmask_b32 %s, %s, %s, vcc' % (vr(V_SW), t2, t1))
    p('v_cmp_gt_u32 vcc, %d, %s' % (8 if MP else 16, L))
    p('v_cndmask_b32 %s, %s, %s, vcc' % (vr(V_SW + 1), t2, t1))
    tw = lambda c: [Ins('s_mov_b32 %s, %d' % (T(7), c * 64 * 9216)),
                    Ins('buffer_load_dword %s, %s, %s, %s offen sc0' % (vr(V_SW + 2), vr(V_SW), sr(S_A1, 4), T(7)))]
    tq = lambda k: [Ins('s_mov_b32 %s, %d' % (T(7), k * 128 * 8192)),
                    Ins('buffer_load_dword %s, %s, %s, %s offen sc0' % (vr(V_SW + 3), vr(V_SW + 1), sr(S_A2, 4), T(7)))]
    touch = {c: [] for c in range(7)}
    for k, c in enumerate(range(PF0 // 2, 9)):
        touch[min(k, 6)] += tw(c)
    for k in range(5):
        touch[k + OPT.get('tq0', 0)] += tq(4 - k)
    for c in touch:
        for x in touch[c]:
            x.wr = [r for r in x.wr if r[0] != 'v']
    if not OPT.get('pf1', 1):
        touch = {}
    if OPT.get('fold', 0):
        p('s_mov_b32 %s, 0x%x' % (sr(S_C), f2u(-1.0 / 128 ** 0.5)))
        p('s_mov_b32 %s, 0x%x' % (sr(S_NL), f2u(-1.0 / LOG2E)))
    else:
        p('s_mov_b32 %s, 0x%x' % (sr(S_C), f2u(LOG2E / 128 ** 0.5)))
        p('s_mov_b32 %s, 0x%x' % (sr(S_NL), f2u(-LOG2E)))
    p('s_lshl_b32 %s, %s, 12' % (sr(S_MK), sr(S_W)))
    p('s_mov_b32 %s, 0' % sr(S_OFFK))
    p('s_mov_b32 %s, 0' % sr(S_OFFV))
    p('v_lshrrev_b32 %s, 2, %s' % (t0, L))
    p('v_mul_u32_u24 %s, 288, %s' % (t1, t0))
    p('v_and_b32 %s, 3, %s' % (t2, L))
    p('v_lshl_add_u32 %s, %s, 3, %s' % (vr(V_A1), t2, t1))
    for k in range(1, 4):
        p('v_add_u32 %s, %d, %s' % (vr(V_A1 + k), k * 36864, vr(V_A1)))
    p('v_and_b32 %s, 15, %s' % (t0, L))
    p('v_lshrrev_b32 %s, 4, %s' % (t1, L))
    p('v_lshlrev_b32 %s, 1, %s' % (t3, t1))
    p('v_xor_b32 %s, %s, %s' % (t3, t0, t3))
    p('v_lshlrev_b32 %s, 4, %s' % (t3, t3))
    p('v_lshl_add_u32 %s, %s, 13, %s' % (vr(V_OQ), t1, t3))
    p('v_xor_b32 %s, 128, %s' % (vr(V_OQ + 1), vr(V_OQ)))
    p('s_lshl_b32 %s, %s, 17' % (sr(S_OFFQ), sr(S_W)))
    addall(kv_dma_setup())
    p('s_mul_i32 %s, %s, %d' % (T(3), T(6), 4 * HS()))
    p('s_add_u32 %s, %s, 0x%x' % (T(3), T(3), WS_H))
    make_srd(p, S_H, P_WS, T(3), 4 * HS())
    p('s_mul_i32 %s, %s, %d' % (T(3), sr(S_QT), 16 * OS()))
    p('s_lshl_b32 %s, %s, 12' % (T(4), sr(S_HD)))
    p('s_add_u32 %s, %s, %s' % (T(3), T(3), T(4)))
    p('s_add_u32 %s, %s, 0x%x' % (T(3), T(3), WS_O))
    p('s_sub_u32 %s, %d, %s' % (T(5), 16 * OS(), T(4)))
    make_srd(p, S_O, P_WS, T(3), T(5))
    p('s_mov_b32 %s, 0x%x' % (T(3), WS_F))
    make_srd(p, S_FL, P_WS, T(3), 5 * 32768)
    p('s_lshr_b32 %s, %s, 3' % (sr(S_SP), sr(S_HD)))
    p('s_and_b32 %s, %s, 7' % (T(0), sr(S_HD)))
    p('s_lshl_b32 %s, %s, 3' % (sr(S_TILE), sr(S_QT)))
    p('s_add_u32 %s, %s, %s' % (sr(S_TILE), sr(S_TILE), T(0)))
    p('s_lshl_b32 %s, %s, 6' % (T(0), sr(S_SP)))
    p('s_add_u32 %s, %s, %s' % (T(0), T(0), sr(S_TILE)))
    p('s_lshl_b32 %s, %s, 7' % (sr(S_FWG), T(0)))
    p('s_lshl_b32 %s, %s, 13' % (sr(S_FGR), sr(S_SP)))
    p('s_mul_i32 %s, %s, 9' % (T(2), sr(S_HD)))
    p('s_add_u32 %s, %s, 1' % (T(2), T(2)))
    p('s_lshr_b32 %s, %s, 1' % (T(2), T(2)))
    p('s_lshl_b32 %s, %s, 10' % (sr(S_HS), T(2)))
    p('s_bitcmp1_b32 %s, 0' % sr(S_HD))
    p('s_mov_b32 %s, 4096' % T(3))
    p('s_cselect_b32 %s, %d, %s' % (T(3), -1024 + 8, T(3)))
    p('s_add_u32 %s, %s, %s' % (sr(S_HS + 4), sr(S_HS), T(3)))
    for qb in range(1, 4):
        p('s_add_u32 %s, %s, %d' % (sr(S_HS + qb), sr(S_HS), qb * HS()))
        p('s_add_u32 %s, %s, %d' % (sr(S_HS + 4 + qb), sr(S_HS + 4), qb * HS()))
    if OPT.get('pro', 1) == 1:
        addall(p1_dma(1))
    if FU == 1:
        make_srd(p, S_XN, P_WS, sr(S_RO), 4 * 18 * 1024)
        p('s_lshl_b32 %s, %s, 12' % (T(2), sr(S_QT)))
        p('s_add_u32 %s, %s, %d' % (T(2), T(2), 4 * 32768))
        p('s_lshl_b32 %s, %s, 7' % (T(3), sr(S_HD)))
        p('s_add_u32 %s, %s, %s' % (T(3), T(3), T(2)))
        p('v_lshlrev_b32 v125, 20, v0')
        p('v_and_b32 v129, 31, %s' % L)
        p('v_lshlrev_b32 v129, 7, v129')
        rstamp(4)
        p.need(('XN', 0))
        rstamp(5)
        p('s_barrier')
        rstamp(6)
        p('buffer_store_dword v128, v125, %s, %s offen sc1' % (sr(S_FL, 4), T(3)), lds=('flag', ('XN', 0)))
        if OPT.get('lnpoll', 0) == 1:
            SPIN_BLOCKS.append("""L_lnp:
 s_mov_b32 s3, 0
L_lnp_l:
 buffer_load_dword v130, v129, %s, %s offen sc1
 s_add_u32 s3, s3, 1
 s_cmp_gt_u32 s3, 0x40000
 s_cbranch_scc1 L_lnp_ok
 s_waitcnt vmcnt(0)
 v_cmp_ne_u32 vcc, %s, v130
 s_cbranch_vccz L_lnp_ok
 s_sleep 2
 s_branch L_lnp_l""" % (sr(S_FL, 4), T(2), sr(S_EP)))
            p('s_cmp_eq_u32 %s, 0' % sr(S_W))
            p('s_cbranch_scc1 L_lnp')
            p.label('L_lnp_ok')
            p('s_barrier')
        else:
            p.add(poll_issue(S_T0 + 2, 130, 129))
            poll_check(p, 'ln', S_T0 + 2, 'v_cmp_ne_u32 vcc, %s' % sr(S_EP), 130, 129, sleep=2)
        addall(xn_loads(0, 0))
    stamp(1)

    if OPT.get('donly'):
        p('s_waitcnt vmcnt(0)')
        addall(d_scalar_setup1() + d_scalar_setup2() + k_read_setup() + v_read_setup())
        p('v_lshlrev_b32 %s, 20, v0' % vr(V_FST))
        p('v_mov_b32 %s, 1' % vr(V_ONE))
        p('v_lshlrev_b32 %s, 7, %s' % (vr(V_FOFF), L))
        p('v_mov_b32 %s, 0' % vr(V_RV))
        p('s_mov_b32 %s, 0' % sr(S_OFFW))
        for k in range(2, 7):
            stamp(k)
        p.raw(' s_branch L_donly')
    g = Gaps(p)
    seq = GemmSeq(p, g)
    pool = deque(('a', 72 + 4 * k) for k in range(14))

    def alloc():
        while not pool:
            x = (g.st or g.lo).popleft()
            g.over += max(1, cost(x))
            g.emit(x)
        for t in pool:
            if t[0] == 'v':
                pool.remove(t)
                return t
        return pool.popleft()

    XB = {}
    ring = lambda buf: [('a', A_B + buf * 32 + 4 * k) for k in range(8)]

    def xn_l(c, tiles):
        out = []
        for qb in range(4):
            out.append(Ins('s_mov_b32 %s, %d' % (T(qb), qb * 18 * 1024 + c * 2048)))
            for ks in range(2):
                out.append(Ins('buffer_load_dwordx4 %s, %s, %s, %s offen offset:%d' % (
                    rg(tiles[qb * 2 + ks]), vr(V_L16), sr(S_XN, 4), T(qb), ks * 1024)))
        return out

    def aq_setup():
        o = []
        a = lambda s: o.append(Ins(s))
        a('v_lshrrev_b32 %s, 2, %s' % (t0, L))
        a('v_and_b32 %s, 7, %s' % (t1, t0))
        a('v_lshlrev_b32 %s, 1, %s' % (t1, t1))
        a('v_and_b32 %s, 3, %s' % (t2, L))
        a('v_xor_b32 %s, %s, %s' % (t1, t1, t2))
        a('v_lshlrev_b32 %s, 4, %s' % (t1, t1))
        a('v_lshl_add_u32 %s, %s, 8, %s' % (vr(V_AQ), t0, t1))
        for s in range(1, 4):
            a('v_xor_b32 %s, %d, %s' % (vr(V_AQ + s), 64 * s, vr(V_AQ)))
        for rgn in range(1, 3):
            for s in range(4):
                a('v_add_u32 %s, 0x%x, %s' % (vr(V_AQ + rgn * 4 + s), rgn * 65536, vr(V_AQ + s)))
        return o

    def mk_mf(acc, chunks, xb, first):
        def mf(dst):
            out = []
            for qb in range(4):
                for ci, c in enumerate(chunks):
                    for ks in range(2):
                        def th(qb=qb, ci=ci, c=c, ks=ks):
                            a = rg(acc(qb))
                            cin = '0' if (first and ci == 0 and ks == 0) else a
                            return '%s %s, %s, %s, %s' % (MF, a, ar(dst + ci * 8 + ks * 4, 4), rg(xb(c)[qb * 2 + ks]), cin)
                        out.append(th)
            return out
        return mf

    for c in range(9):
        XB[c] = ring(c % 3)
    for c in range(7):
        for blk in range(18):
            hook = None
            if blk == 0:
                def hook(c=c):
                    if OPT.get('cst'):
                        p('s_memrealtime %s' % sr(S_DG, 2))
                        p('s_waitcnt lgkmcnt(0)')
                        p('v_writelane_b32 v1, %s, %d' % (sr(S_DG), 32 + c))
                    g.drop = {0: (), 1: ('dma',), 2: ('vld',), 3: ('dma', 'vld'), 4: ('dma', 'vld', 'dsr')}[OPT.get('drop', 0)]
                    g.vm_gap = OPT.get('vg1', 5) if c > 1 else OPT.get('vg0', 5)
                    if c == 0 and OPT.get('pro', 1):
                        g.hi.extend(xn_l(1, XB[1]) + p1_dma(2))
                    g.hi.extend(touch.get(c, []))
                    xl = xn_l(c + 2, XB[c + 2])
                    if c == 0:
                        g.hi.extend(xl + p1_dma(3))
                    else:
                        g.hi.extendleft(reversed(xl)) if OPT.get('xfirst', 0) else g.hi.extend(xl)
                    if c == 4:
                        g.hi.extend(wq_dma(8))
                    if c == 4 and OPT.get('ct1', 1):
                        g.hi.extend(code_touch('L_c1', V_SW + 4, V_SW + 5, S_A3))
                    if c == 6:
                        assert not any(y.kind == 'dma' and y.lds[1][0] == 'W' for y in g.hi)
                        g.lo.extend(aq_setup())
            seq.add(lambda dst, c=c, blk=blk: p1_reads(c, blk, dst), 8,
                    mk_mf(lambda qb, blk=blk: FT[(blk, qb)], [c], lambda c: XB[c], c == 0), hook=hook,
                    bar=[(PS(c), ('W', c))] if blk == 0 else None,
                    bwait=[rg(t) for t in XB[c]] if blk == 0 else None)
            if blk == 0 and 1 <= c <= 5:
                seq.groups[-1]['post'] = lambda c=c: g.hi.extend(p1_dma(c + 3))
            if blk == 0 and c == 6:
                seq.groups[-1]['post'] = lambda: g.hi.extend(wq_dma(7))
    CT = OPT.get('cap_t', 3)
    for blk in range(18):
        hook = None
        if blk >= 2 and blk % 2 == 0:
            def hook(b=blk // 2 - 1):
                for qb in range(4):
                    g.lo.extend(swiglu_unit(b, qb, g.n + 3, pool))
        if blk == 0:
            def hook():
                g.drop = ()
                p.label('L_c1')
                stamp(2)
        seq.add(lambda dst, blk=blk: p1_reads(7, blk, dst) + p1_reads(8, blk, dst + 8), 16,
                mk_mf(lambda qb, blk=blk: FT[(blk, qb)], [7, 8], lambda c: XB[c], False), hook=hook,
                bar=[(PS(7), ('W', 7)), (PS(8), ('W', 8))] if blk == 0 else None,
                bwait=[rg(t) for t in XB[7] + XB[8]] if blk == 0 else None, cap=CT)
        if blk == 0:
            seq.groups[-1]['post'] = lambda: g.hi.extend(wq_dma(6) + wq_dma(5))
    QT = {}
    late = []

    def qacc(bq, qb):
        if (bq, qb) not in QT:
            QT[(bq, qb)] = alloc()
        return QT[(bq, qb)]
    XQ = {8: XB[8], 7: XB[7], 6: XB[6], 4: ring(1), 3: ring(2), 2: ring(0), 0: ring(1)}
    C2 = OPT.get('cap_p2', 2)
    qn = lambda c: (LS(WQ_SLOT[c]), ('Q', c))
    for bq in range(8):
        hook = None
        if bq == 0:
            def hook():
                stamp(3)
                g.vm_gap = OPT.get('vg2', 4)
                g.st_w = OPT.get('stw2', 1)
                for qb in range(4):
                    late.extend(swiglu_unit(8, qb, 0, pool))
        if bq == 3:
            def hook():
                XQ[5] = XQ[1] = [alloc() for _ in range(8)]
                g.hi.extend(xn_l(5, XQ[5]))
        seq.add(lambda dst, bq=bq: p2_reads(8, bq, dst) + p2_reads(7, bq, dst + 8), 16,
                mk_mf(lambda qb, bq=bq: qacc(bq, qb), [8, 7], lambda c: XQ[c], True), hook=hook,
                bar=[qn(8), qn(7)] if bq == 0 else None, cap=C2)
        if bq == 0:
            seq.groups[-1]['post'] = lambda: g.hi.extend(
                wq_dma(4) + wq_dma(3) + wq_dma(2))
    for c in (6, 5, 4, 3, 2):
        for bq in range(8):
            hook = None
            if bq == 0:
                def hook(c=c):
                    for cc in {6: (4, 3), 5: (2,), 4: (1,), 3: (0,), 2: ()}[c]:
                        g.hi.extend(xn_l(cc, XQ[cc]))
            seq.add(lambda dst, c=c, bq=bq: p2_reads(c, bq, dst), 8,
                    mk_mf(lambda qb, bq=bq: qacc(bq, qb), [c], lambda c: XQ[c], False), hook=hook,
                    bar=[qn(c)] if bq == 0 else None, cap=C2,
                    bwait=(lambda c=c: [rg(t) for t in XQ[c]]) if bq == 0 else None)
            if bq == 0:
                seq.groups[-1]['lazyb'] = c
                post = {6: lambda: g.hi.extend(wq_dma(1) + wq_dma(0)),
                        3: lambda: g.hi.extend(dma_unit('K', 0, False)),
                        2: lambda: g.hi.extend(dma_unit('K', 1, False) + dma_unit('V', 0, False))}.get(c)
                seq.groups[-1]['post'] = post
    for bq in range(8):
        hook = None
        if bq == 0:
            def hook():
                print('swiglu backlog at last P2 group:', len(g.hi), len(g.lo), 'over', g.over, file=sys.stderr)
                g.hi.extend(dma_unit('K', 2, False) + dma_unit('V', 1, False))
        if bq >= 2 and bq % 2 == 0:
            def hook(s=bq // 2 - 1):
                for qb in range(4):
                    g.lo.extend(qcvt_unit(qb, s, QT, g.n + 3))
        seq.add(lambda dst, bq=bq: p2_reads(1, bq, dst) + p2_reads(0, bq, dst + 8), 16,
                mk_mf(lambda qb, bq=bq: qacc(bq, qb), [1, 0], lambda c: XQ[c], False), hook=hook,
                bar=[qn(1), qn(0)] if bq == 0 else None, cap=C2,
                bwait=(lambda: [rg(t) for t in XQ[1] + XQ[0]]) if bq == 0 else None)
    seq.run()
    stamp(4)
    print('G backlog at end:', len(g.hi), len(g.lo), 'over', g.over, 'waste', g.waste, file=sys.stderr)
    for qb in range(4):
        g.lo.extend(qcvt_unit(qb, 3, QT, 0))
    addall(k_read_setup())
    p.need(('lgkm', 'all'), (LS(0), ('K', 0)))
    p('s_barrier')
    for kb in range(4):
        for s in range(4):
            p.add(k_load(0, kb, s, False))
    g.flush()
    g.vm_gap = 4
    g.hi.extend(dma_unit('K', 3, False))
    g.hi.extend(d_scalar_setup1())
    g.lo.extend(late)
    for kb in range(4):
        for qb in range(4):
            for s in range(4):
                d = vr(Sreg(kb, qb), 4)
                g.gap('%s %s, %s, %s, %s' % (MF, d, ar(A_KF + kb * 16 + s * 4, 4), vr(V_Q + (qb * 4 + s) * 4, 4), '0' if s == 0 else d))
    g.flush()
    addall(v_read_setup())
    for qb in range(4):
        p('v_mov_b32 %s, 0' % vr(V_L + qb))
    p('v_lshlrev_b32 %s, 20, v0' % vr(V_FST))
    if not FU:
        p('s_mov_b32 %s, 1' % sr(S_EP))
    p('v_mov_b32 %s, %s' % (vr(V_ONE), sr(S_EP)))
    p('v_lshlrev_b32 %s, 7, %s' % (vr(V_FOFF), L))
    addall(code_touch('L_att_tail', 32, 33, S_DWO)[:-1])
    p('v_mov_b32 %s, %s' % (vr(V_RN), L))
    addall(repack_pat())
    ms = [vr(V_E + qb) for qb in range(4)]
    for step in range(8):
        for qb in range(4):
            regs = [vr(Sreg(kb, qb) + r) for kb in range(4) for r in range(4)]
            if step == 0:
                p('v_max3_f32 %s, %s, %s, %s' % (ms[qb], regs[0], regs[1], regs[2]))
            elif step < 7:
                p('v_max3_f32 %s, %s, %s, %s' % (ms[qb], ms[qb], regs[2 * step + 1], regs[2 * step + 2]))
            else:
                p('v_max_f32 %s, %s, %s' % (ms[qb], ms[qb], regs[15]))
    addall(xlane4('v_max_f32', ms, [vr(V_T + k) for k in range(4)]))
    for qb in range(4):
        for r in range(4):
            p('v_sub_f32 %s, 0, %s' % (vr(V_NM + qb * 4 + r), ms[qb]))
    for kb in range(4):
        for qb in range(4):
            for r in range(4):
                x = vr(Sreg(kb, qb) + r)
                p('v_add_f32 %s, %s, %s' % (x, x, vr(V_NM + qb * 4)))
    for _ in range(OPT.get('idle', 0)):
        p('s_sleep 38')
    stamp(5)
    def sm_plain(uu, i0, i1):
        prev = []
        for i in range(i0, i1):
            ex, ad, cv = sm_instrs(uu, i)
            p.add(ex)
            addall(prev)
            prev = [ad] + ([cv] if cv else [])
        p('s_nop 0')
        addall(prev)
    sm_plain(0, 0, 28)
    att_slots(p, 0, 0, 64, False, pv=False, sm_cur=False)
    sm_plain(0, 28, 60)
    p('s_mov_b32 %s, 0' % sr(S_CNT))
    p('s_lshl_b32 %s, %s, 4' % (sr(S_OFFQ), sr(S_W)))
    p('s_add_u32 %s, %s, 2' % (sr(S_OFFQ), sr(S_OFFQ)))
    p.wait_regs(ar(A_KF, 16))
    NIT = 8
    rtag = ('R', 0)
    g.vm_gap = 8

    def rp_loads():
        g.vm_gap = 8
        g.hi.append(Ins('buffer_load_dwordx4 %s, %s, %s, 0 offen nt' % (vr(V_RQ[0], 4), vr(V_RV), sr(S_A1, 4))))
        g.hi.append(Ins('buffer_load_dwordx4 %s, %s, %s, 0 offen nt' % (vr(V_RQ[1], 4), vr(V_RV), sr(S_A2, 4))))

    def rp_stores():
        g.vm_gap = 3
        g.hi.append(Ins('buffer_store_dwordx4 %s, %s, %s, %s offen sc1' % (vr(V_RQ[0], 4), vr(V_L16), sr(S_A3, 4), sr(S_RO)), lds=rtag))
        g.hi.append(Ins('buffer_store_dwordx4 %s, %s, %s, %s offen sc1' % (vr(V_RQ[1], 4), vr(V_L16), sr(S_A4, 4), sr(S_RO)), lds=rtag))
        g.hi.append(Ins('s_add_u32 %s, %s, 1024' % (sr(S_RO), sr(S_RO))))

    def seg(u, ta, tb, inloop, work=None, cap=4, **kw):
        if work:
            work()
            att_slots(p, u, ta, tb, inloop, g=g, cap=cap, **kw)
            assert not g.hi and not g.lo
        else:
            att_slots(p, u, ta, tb, inloop, **kw)
    pat = lambda: g.lo.extend(repack_pat())
    seg(0, 64, 96, False)
    seg(0, 96, 128, False, rp_loads)
    seg(1, 0, 64, False, pv0=True)
    p.wait_regs(ar(A_KF, 16))
    p.loop_begin(3, 'attA')
    p('.p2align 6')
    p.label('L_attA')
    seg(1, 64, 128, True, pat, 3)
    seg(2, 0, 30, True)
    seg(2, 30, 66, True, rp_stores)
    seg(2, 66, 96, True)
    seg(2, 96, 128, True, rp_loads)
    seg(3, 0, 128, True, pat, 3)
    seg(4, 0, 30, True)
    seg(4, 30, 66, True, rp_stores)
    seg(4, 66, 96, True)
    seg(4, 96, 128, True, rp_loads)
    seg(5, 0, 64, True)
    p('s_add_u32 %s, %s, 1' % (sr(S_CNT), sr(S_CNT)))
    p('s_cmp_lt_u32 %s, 3' % sr(S_CNT))
    p('s_cbranch_scc1 L_attA')
    p.loop_end()
    p('s_mov_b32 %s, %s' % (T(0), sr(S_FWG)))
    p.loop_begin(4, 'attB')
    p('.p2align 6')
    p.label('L_attB')
    seg(13, 64, 128, True)
    seg(14, 0, 30, True, extra_need=[rtag, ('H', 0)])
    seg(14, 30, 64, True, lambda: g.hi.extend([flag_store(S_T0, 'H'), Ins('s_mov_b32 %s, 0x100000' % T(0))]))
    seg(14, 64, 128, True)
    seg(15, 0, 96, True)
    seg(15, 96, 128, True, lambda: g.hi.append(Ins('global_load_dword v33, v32, %s' % sr(S_DWO, 2))))
    seg(16, 0, 128, True)
    seg(17, 0, 64, True)
    p('s_add_u32 %s, %s, 1' % (sr(S_CNT), sr(S_CNT)))
    p('s_cmp_lt_u32 %s, 7' % sr(S_CNT))
    p('s_cbranch_scc1 L_attB')
    p.loop_end()
    p.label('L_att_tail')
    stamp(6)
    g.vm_gap = 4
    def nowr(l):
        for x in l:
            x.wr = [r for r in x.wr if r[0] != 'v']
        return l

    def touch_w(c, srd=S_A1):
        return nowr([Ins('s_mov_b32 %s, %d' % (T(6), c * 36864)),
                     Ins('buffer_load_dword v248, %s, %s, %s offen sc0' % (vr(V_RV), sr(srd, 4), T(6)))])

    def touch_h(k):
        return nowr([Ins('s_add_u32 %s, %s, %d' % (T(6), sr(S_RO), k * 8192)),
                     Ins('buffer_load_dword v249, v250, %s, %s offen sc0' % (sr(S_A2, 4), T(6)))])
    TD = OPT.get('touch_d', 0)
    if NIT == 7:
        att_slots(p, 25, 64, 96, False)
        g.hi.append(poll_issue(S_FGR))
        tt = []
        a = lambda x: tt.append(Ins(x))
        a('s_lshr_b32 %s, s2, 3' % T(0))
        a('s_lshl_b32 %s, %s, 2' % (T(1), sr(S_SP)))
        a('s_add_u32 %s, %s, %s' % (T(1), T(1), sr(S_W)))
        a('s_mul_i32 %s, %s, %d' % (T(1), T(1), WBLK))
        a('s_mul_i32 %s, %s, 1152' % (T(2), T(0)))
        a('s_add_u32 %s, %s, %s' % (T(1), T(1), T(2)))
        a('s_add_u32 %s, %s, 0x%x' % (T(1), T(1), WS_W))
        tt += srd_ins(S_A1, P_WS, T(1), 18 * 36864 + 1152)
        a('s_and_b32 %s, s2, 4' % T(1))
        a('s_lshl_b32 %s, %s, 3' % (T(1), T(1)))
        a('s_add_u32 %s, %s, %s' % (T(1), T(1), T(0)))
        a('s_lshl_b32 %s, %s, 1' % (T(1), T(1)))
        a('s_and_b32 %s, %s, 1' % (T(2), sr(S_W)))
        a('s_add_u32 %s, %s, %s' % (T(1), T(1), T(2)))
        a('s_mul_i32 %s, %s, %d' % (T(1), T(1), HS()))
        a('s_mul_i32 %s, %s, %d' % (T(2), sr(S_SP), 36 * 1024))
        a('s_add_u32 %s, %s, %s' % (T(1), T(1), T(2)))
        a('s_add_u32 %s, %s, 0x%x' % (T(1), T(1), WS_H))
        tt += srd_ins(S_A2, P_WS, T(1), 36 * 1024)
        a('s_lshr_b32 %s, %s, 1' % (T(1), sr(S_W)))
        a('s_lshl_b32 %s, %s, 12' % (sr(S_RO), T(1)))
        a('s_lshl_b32 %s, %s, 2' % (T(2), sr(S_TILE)))
        a('s_add_u32 %s, %s, %s' % (T(2), T(2), sr(S_SP)))
        a('s_lshl_b32 %s, %s, 2' % (T(2), T(2)))
        a('s_add_u32 %s, %s, %s' % (T(2), T(2), sr(S_W)))
        a('s_mul_i32 %s, %s, 9216' % (T(2), T(2)))
        a('s_add_u32 %s, %s, 0x%x' % (T(2), T(2), WS_P))
        tt += srd_ins(S_A3, P_WS, T(2), 9216)
        g.hi.extend(tt)
        g.lo.extend(Ins('v_mov_b32 v%d, -1' % r) for r in range(36, 40))
        g.lo.extend([Ins('v_mul_u32_u24 %s, 7282, %s' % (vr(V_RV), L)),
                     Ins('v_lshrrev_b32 %s, 16, %s' % (vr(V_RV), vr(V_RV))),
                     Ins('v_mul_u32_u24 %s, %d, %s' % (vr(V_RV), 36864 - 1152, vr(V_RV))),
                     Ins('v_lshl_add_u32 %s, %s, 7, %s' % (vr(V_RV), L, vr(V_RV))),
                     Ins('v_mov_b32 v251, 0x7f000000'),
                     Ins('v_cmp_gt_u32 vcc, 18, %s' % L),
                     Ins('v_cndmask_b32 %s, v251, %s, vcc' % (vr(V_RV), vr(V_RV))),
                     Ins('v_cmp_gt_u32 vcc, 32, %s' % L),
                     Ins('v_cndmask_b32 v250, v251, %s, vcc' % vr(V_FOFF))])
        att_slots(p, 25, 96, 128, False, g=g, cap=4)
        att_slots(p, 26, 0, 64, False, g=g, cap=3, dmav=False)
        g.flush()
        addall(dma_unit('V', 28, False))
        poll_check(p, 'h', S_FGR)

        tl = []
        if TD:
            for k in range(5):
                tl += [touch_w(2 * k), touch_h(k)]
        else:
            tl = [[] for _ in range(10)]
        if OPT.get('tagged', 0):
            for k in range(9):
                tl[k] = tl[k] + [Ins('s_mov_b32 %s, %d' % (T(5), k * 1024)),
                                 Ins('buffer_store_dwordx4 v[36:39], %s, %s, %s offen sc1' % (vr(V_L16), sr(S_A3, 4), T(5)), lds=('PT1', 0))]
        for u in (26, 27, 28, 29):
            for (ta, tb, on) in ((0, 32, 0), (32, 48, 1), (48, 64, 1), (64, 96, 0), (96, 112, 1), (112, 128, 1)):
                if (u == 26 and ta < 64) or (u == 29 and ta >= 64):
                    continue
                if on and tl:
                    g.hi.extend(tl.pop(0))
                att_slots(p, u, ta, tb, False, g=g if on else None, cap=4, dmak=(u + DK < 32))
                assert not g.hi
        assert not tl
        for k in range(4):
            p('s_mov_b32 %s, %s' % (sr(S_DWO + k), sr(S_A1 + k)))
    else:
        assert not TD and not OPT.get('tagged', 0)
        g.hi.append(poll_issue(S_FGR))
    g.hi.extend(d_scalar_setup2())
    att_slots(p, 29, 64, 128, False, dmak=False, g=g, cap=4)
    g.flush()
    if NIT == 8:
        poll_check(p, 'h', S_FGR)
    p.label('L_donly')
    att_slots(p, 30, 0, 2, False, dmak=False, dmav=False, g=g)
    g.vm_gap = 5
    g.hi.extend(d_dma(0) + d_dma(1))
    g.hi.append(sadd(S_FWG, 32768))
    g.hi.append(Ins('s_and_b32 %s, %s, 0x38' % (T(0), sr(S_TILE))))
    g.hi.append(Ins('s_lshl_b32 %s, %s, 7' % (T(0), T(0))))
    g.hi.append(Ins('s_add_u32 %s, %s, %s' % (sr(S_FGR), sr(S_FGR), T(0))))
    g.hi.append(sadd(S_FGR, 32768))
    g.hi.append(Ins('s_add_u32 %s, %s, 8192' % (sr(S_OFFW), sr(S_FGR))))
    g.hi.append(Ins('s_and_b32 %s, %s, 1' % (sr(S_ADJB), sr(S_SP))))
    g.hi.append(Ins('s_lshl_b32 %s, %s, 9' % (T(1), sr(S_ADJB))))
    g.hi.append(Ins('s_or_b32 %s, %s, 0x180' % (T(1), T(1))))
    g.hi.append(Ins('v_and_b32 v250, %s, %s' % (T(1), vr(V_FOFF))))
    g.hi.append(Ins('s_mul_i32 %s, %s, %d' % (sr(S_ADJW), sr(S_ADJB), -4 * 36864)))
    g.hi.append(Ins('s_mul_i32 %s, %s, %d' % (sr(S_ADJB), sr(S_ADJB), -4 * 4096)))
    g.lo.append(Ins('v_and_b32 %s, 0x380, %s' % (vr(V_FOFF), vr(V_FOFF))))
    att_slots(p, 30, 2, 97, False, dmak=False, dmav=False, g=g, cap=4, barrier=False)
    g.vm_gap = 4
    g.hi.extend(d_bloads(0))
    att_slots(p, 30, 97, 128, False, dmak=False, dmav=False, g=g, cap=4, barrier=False)
    att_slots(p, 31, 0, 2, False, qk=False, sm_next=False, dmak=False, dmav=False, g=g, vearly=True)
    g.vm_gap = 3
    g.hi.extend(d_bloads(1) + d_dma(2))
    o = []
    o.append(Ins('v_lshrrev_b32 %s, 2, %s' % (t0, L)))
    o.append(Ins('v_mul_u32_u24 %s, 288, %s' % (t1, t0)))
    o.append(Ins('v_and_b32 %s, 3, %s' % (t2, L)))
    o.append(Ins('v_lshl_add_u32 %s, %s, 3, %s' % (vr(V_DRA), t2, t1)))
    for k in range(1, 4):
        o.append(Ins('v_add_u32 %s, %d, %s' % (vr(V_DRA + k), DBASE[k], vr(V_DRA))))
    g.lo.extend(o)
    g.lo.append(Ins('v_mov_b32 %s, 0x%x' % (vr(V_RN), f2u(2.0 ** OPT.get('thr', 30)))))
    att_slots(p, 31, 2, 64, False, qk=False, sm_next=False, dmak=False, dmav=False, g=g, cap=4, barrier=False, vearly=True)
    g.flush()
    sm_plain(31, 60, 64)
    p('v_max3_f32 %s, %s, %s, %s' % (t0, vr(V_L), vr(V_L + 1), vr(V_L + 2)))
    p('v_add_f32 %s, %s, %s' % (t0, t0, vr(V_L + 3)))
    p('v_cmp_nlt_f32 vcc, %s, %s' % (t0, vr(V_RN)))
    p('s_cbranch_vccnz L_slow')
    p.label('L_slow_ret')
    SPIN_BLOCKS.append(gen_slow_softmax())
    ls = [vr(V_L + qb) for qb in range(4)]
    g.lo.extend(xlane4('v_add_f32', ls, [vr(V_T + k) for k in range(4)]))
    g.lo.extend(Ins('v_rcp_f32 %s, %s' % (x, x)) for x in ls)
    n0 = g.n
    n = 0
    for t in range(4):
        for qb in range(4):
            g.lo.extend(o_epilogue_unit(qb, t, n, n0 + 16 * (t + 1) + 3))
            n += 1
    p.wait_regs(ar(A_VF, 8))
    kw = dict(qk=False, sm_cur=False, sm_next=False, vnext=False, dmak=False, dmav=False, g=g, barrier=False)
    att_slots(p, 32, 0, 33, False, **kw)
    g.hi.extend(d_bloads(2))
    att_slots(p, 32, 33, 46, False, **kw)
    p.need(('lgkm', 'all'), (DS(0), ('D', 0)))
    p('s_barrier')
    g.st.extend(d_reads(0, 0) + d_reads(0, 1))
    att_slots(p, 32, 46, 64, False, **kw)
    while g.st and g.st[0].kind == 'dsr':
        g.emit(g.st.popleft())
    assert not any(x.kind == 'dsr' for x in g.st)
    stamp(7)
    p.wait_regs(ar(A_DB, 32), vr(V_DA, 16))
    stamp(8)
    G2, GG = V_AC2, V_AC2 + 48
    xreg = lambda k, rb: 44 + (k * 2 + rb) * 2
    VO = V_T + 5

    def fin_setup():
        o = []
        o.append(Ins('v_and_b32 %s, 0x180, %s' % (vr(V_FOFF), vr(V_FOFF))))
        o.append(Ins('s_andn2_b32 %s, %s, 0x1ff' % (sr(S_FGR), sr(S_FT))))
        o.append(Ins('v_and_b32 %s, 15, %s' % (t0, L)))
        o.append(Ins('v_mul_u32_u24 %s, 1152, %s' % (t0, t0)))
        o.append(Ins('v_lshrrev_b32 %s, 4, %s' % (t1, L)))
        o.append(Ins('v_lshl_add_u32 %s, %s, 3, %s' % (vr(VO), t1, t0)))
        for k in range(3):
            for rb in range(2):
                o.append(Ins('buffer_load_dwordx2 %s, %s, %s, %s offen offset:%d' % (
                    vr(xreg(k, rb), 2), vr(VO), sr(S_DX, 4), sr(S_HS + 4 + rb + (2 if k == 2 else 0)), 128 * k)))
        return o

    def silu_g():
        o = []
        for k in range(3):
            d = GG + 8 * k
            o += d_sum(G2, k, d, V_T)
            for e in range(0, 8, 2):
                ta, tb = vr(V_T), vr(V_T + 1)
                o.append(Ins('v_mul_f32 %s, %s, %s' % (ta, sr(S_NL), vr(d + e))))
                o.append(Ins('v_mul_f32 %s, %s, %s' % (tb, sr(S_NL), vr(d + e + 1))))
                o.append(Ins('v_exp_f32 %s, %s' % (ta, ta)))
                o.append(Ins('v_exp_f32 %s, %s' % (tb, tb)))
                if OPT.get('fold', 0):
                    o.append(Ins('v_fma_f32 %s, %s, %s, %s' % (ta, ta, sr(S_C), sr(S_C))))
                    o.append(Ins('v_fma_f32 %s, %s, %s, %s' % (tb, tb, sr(S_C), sr(S_C))))
                else:
                    o.append(Ins('v_add_f32 %s, 1.0, %s' % (ta, ta)))
                    o.append(Ins('v_add_f32 %s, 1.0, %s' % (tb, tb)))
                o.append(Ins('v_rcp_f32 %s, %s' % (ta, ta)))
                o.append(Ins('v_rcp_f32 %s, %s' % (tb, tb)))
                o.append(Ins('v_mul_f32 %s, %s, %s' % (vr(d + e), vr(d + e), ta)))
                o.append(Ins('v_mul_f32 %s, %s, %s' % (vr(d + e + 1), vr(d + e + 1), tb)))
        return o

    g.vm_gap = 1
    SO = OPT.get('o_done', 2)
    LAST = NPOS - 1
    for c in range(NPOS):
        acc0 = V_AC2 if c < 9 else V_AC1
        first = c in (0, 9)
        if c == 9:
            stamp(14)
        if c in (SK0, SK1):
            g.flush()
        if c == SK0:
            p('s_bitcmp1_b32 %s, 0' % sr(S_SP))
            p('s_cbranch_scc1 L_dskip')
            p.loop_begin(1, 'opt')
        if c == SK1:
            p.loop_end()
            p.label('L_dskip')
        if OPT.get('dst'):
            p('s_memrealtime %s' % sr(S_DG, 2))
            p('s_waitcnt lgkmcnt(0)')
            p('v_writelane_b32 v1, %s, %d' % (sr(S_DG), 32 + c))
        extra_need = []
        post = []
        cap = 2
        if c <= SO:
            cap = OPT.get('cap_o', 4)
        if c == SO + 1:
            assert not g.lo and not g.st, len(g.lo)
            extra_need = [('O', 0)]
            post = [flag_store(S_FWG, 'O')]
            g.st_max = 1
            fs = fin_setup()
            g.lo.extend(fs[2:-6])
        if c == 6:
            g.hi.extend(fs[-6:])
        if TD and c in (2, 3, 4, 5, 6):
            g.hi.extend(touch_w(10 + 2 * (c - 2), S_DWO))
        if c == 6:
            g.st.append(poll_issue(S_FGR, V_FOFF=250))
        if c == 10:
            g.st.append(poll_issue(S_FGR))
        if c == 11:
            poll_check(p, 'o1', S_FGR)
        if c == 7:
            poll_check(p, 'o', S_FGR, V_FOFF=250)
            g.hi.extend(d_bloads(9, c))
            cap = 3
        if c == SK1 - 2:
            g.st.append(poll_issue(S_OFFW))
        if c == SK1 - 1:
            poll_check(p, 'o2', S_OFFW)
        if c <= 8:
            g.hi.extend((d_bloads(c + 3, c) if c != 6 else []) + d_dma(c + 3, c))
        elif 10 <= c <= LAST - 2:
            g.hi.extend(d_dma(c + 2, c) + d_bloads(c + 2, c))
        if c in (9, 10):
            for nb in (range(6) if c == 9 else range(6, 9)):
                g.lo.extend(d_pstore(1, nb))
            cap = 3
        if c == 11:
            assert not g.lo and not g.st
            extra_need = [('PT1', 0)]
            post = [flag_store(S_FT, 'PT1')]
            g.lo.extend(fs[:2])
            cap = 3
        if c == LAST - 2:
            g.st.append(poll_issue(S_FGR))
        if c == LAST - 1:
            poll_check(p, 'p2', S_FGR)
            g.hi.extend([sadd(S_FGR, 32768), sadd(S_FT, 32768)])
            g.hi.extend(d_ploads(1, G2))
        nv = sum(1 for x in g.hi if cost(x) == 2)
        if OPT.get('verbose_d'):
            print('D pos', c, 'queued vmem', nv, file=sys.stderr)
        g.vm_gap = OPT.get('vgd', 4) if c > SO else OPT.get('vgd2', 3)
        g.st_w = OPT.get('stw', 1)
        if c in (10, 11, SK1 - 1):
            g.vm_gap = 3
            cap = 3
        if c == LAST:
            g.vm_gap = 1
        for nb in range(9):
            n2 = nb + 2
            Lr = d_reads(c, n2) if n2 < 9 else (d_reads(c + 1, n2 - 9, c) if c < LAST else [])
            if c == LAST and nb >= 2:
                g.hi.extend(d_pstore(0, nb - 2))
            for t in range(8):
                rb, ks = t // 4, t % 4
                a = vr(acc0 + (nb * 2 + rb) * 4, 4)
                m = '%s %s, %s, %s, %s' % (MF, a, vr(V_DA + (nb % 3) * 16 + ks * 4, 4),
                                           ar(A_DB + (c % 4) * 32 + (rb * 4 + ks) * 4, 4),
                                           '0' if (first and ks == 0) else a)
                sc, ld = [], []
                if nb == 7:
                    if Lr and t >= 4:
                        ld = [Lr[2 * (t - 4)], Lr[2 * (t - 4) + 1]]
                    if t == 2 and c < LAST:
                        assert not any(y.kind == 'dma' and y.lds[0] == DS(c + 1) for y in g.hi), c
                        sc = [need_ins(('lgkm', 'all'), (DS(c + 1), dtag(c + 1, c)), *extra_need)]
                    if t == 3 and c < LAST:
                        sc = [Ins('s_barrier')]
                elif Lr:
                    ld = [Lr[t], Lr[t + 1]] if t % 2 == 0 else []
                if t == 7:
                    w = [vr(V_DA + ((nb + 1) % 3) * 16, 16)]
                    if nb == 8:
                        w.append(ar(A_DB + ((c + 1) % 4) * 32, 32))
                    sc = [wait_ins(*w)]
                g.gap(m, sc, ld, cap=cap)
                if nb == 7 and t == 3:
                    g.st.extend(post)
    stamp(9)
    g.hi.extend(d_pstore(0, 7) + d_pstore(0, 8))
    g.flush()
    stamp(10)
    sg = silu_g()
    if OPT.get('tagged', 0):
        addall(sg)
        stamp(11)

        def chk():
            o = [Ins('v_max3_u32 %s, %s, %s, %s' % (t0, vr(G2), vr(G2 + 1), vr(G2 + 2))),
                 Ins('v_max3_u32 %s, %s, %s, %s' % (t1, vr(G2 + 3), vr(G2 + 4), vr(G2 + 5)))]
            for k in range(6, 48, 2):
                tt_ = t0 if (k // 2) % 2 else t1
                o.append(Ins('v_max3_u32 %s, %s, %s, %s' % (tt_, tt_, vr(G2 + k), vr(G2 + k + 1))))
            o.append(Ins('v_max_u32 %s, %s, %s' % (t0, t0, t1)))
            o.append(Ins('v_cmp_eq_u32 vcc, -1, %s' % t0))
            return o
        addall(d_ploads(0, G2) + chk())
        p('s_cbranch_vccnz L_retry')
        p.label('L_retry_ok')
        SPIN_BLOCKS.append('L_retry:\n s_mov_b32 s3, 0\nL_retry_l:\n s_sleep 2\n' +
                           '\n'.join(' ' + x.text for x in d_ploads(0, G2)) +
                           '\n s_waitcnt vmcnt(0)\n s_add_u32 s3, s3, 1\n s_cmp_gt_u32 s3, 0x20000\n s_cbranch_scc1 L_retry_ok\n' +
                           '\n'.join(' ' + x.text for x in chk()) +
                           '\n s_cbranch_vccnz L_retry_l\n s_branch L_retry_ok')
        stamp(12)
    else:
        addall(sg[:len(sg) // 2])
        p.need(('PT0', 0))
        p('s_barrier')
        stamp(11)
        p.add(flag_store(S_FT, 'PT0'))
        p.add(poll_issue(S_FGR))
        addall(sg[len(sg) // 2:])
        poll_check(p, 'p1', S_FGR)
        stamp(12)
        addall(d_ploads(0, G2))
    for k in range(3):
        d = V_AC1 + 16 * k
        addall(d_sum(G2, k, d, V_T))
        for rb in range(2):
            xb = xreg(k, rb)
            for e in range(4):
                tx = vr(d + 8 + e)
                if e % 2 == 0:
                    p('v_lshlrev_b32 %s, 16, %s' % (tx, vr(xb + e // 2)))
                else:
                    p('v_and_b32 %s, 0xffff0000, %s' % (tx, vr(xb + e // 2)))
                p('v_fma_f32 %s, %s, %s, %s' % (tx, vr(d + rb * 4 + e), vr(GG + 8 * k + rb * 4 + e), tx))
            o = d + 12 + 2 * rb
            p('v_cvt_pk_bf16_f32 %s, %s, %s' % (vr(o), vr(d + 8), vr(d + 9)))
            p('v_cvt_pk_bf16_f32 %s, %s, %s' % (vr(o + 1), vr(d + 10), vr(d + 11)))
            p('buffer_store_dwordx2 %s, %s, %s, %s offen offset:%d%s' % (
                vr(o, 2), vr(VO), sr(S_DOUT, 4), sr(S_HS + 4 + rb + (2 if k == 2 else 0)), 128 * k,
                ('', ' sc1', ' nt', ' sc0 sc1')[OPT.get('outpol', 0)]))
    if diag:
        p('s_waitcnt vmcnt(0)')
        stamp(13)
        p('s_mov_b32 %s, 0x%x' % (T(3), WS_T))
        make_srd(p, S_K, P_WS, T(3), 0x100000)
        p('s_lshl_b32 %s, s2, 2' % T(0))
        p('s_add_u32 %s, %s, %s' % (T(0), T(0), sr(S_W)))
        p('s_lshl_b32 %s, %s, 8' % (T(0), T(0)))
        p('v_lshlrev_b32 v4, 2, %s' % L)
        p('buffer_store_dword v1, v4, %s, %s offen' % (sr(S_K, 4), T(0)))
    p.label('L_end')
    p('s_endpgm')
    for t in SPIN_BLOCKS:
        p.raw(t)
    p.raw('L_code_end:')
    for x in p.flat():
        if OPT.get('kv_nt', 1) and x.kind == 'dma' and ('s[4:7]' in x.text or 's[8:11]' in x.text):
            x.text = x.text.replace(' lds', ' nt lds')
        if OPT.get('w_nt') and x.kind == 'dma' and x.lds and not callable(x.lds[1]) and x.lds[1][0] in 'WQ':
            x.text = x.text.replace(' lds', ' nt lds')
        if OPT.get('st01') and x.kind == 'vst' and 'x4' in x.text:
            x.text = x.text.replace(' sc1', ' sc0 sc1')
        if OPT.get('nost') and x.kind == 'vst' and 'x4' in x.text and x.lds and (x.lds[0] == 'O' or (OPT['nost'] > 1 and x.lds[0] == 'PT1')):
            x.text = 's_nop 0'
            x.kind = 'sopp'; x.op = 's_nop'; x.ops = ['0']; x.rd = []; x.lds = None
        if FU and x.kind == 'vld' and sr(S_XN, 4) in x.text and 'sc1' not in x.text:
            x.text += ' sc1'
        if OPT.get('dplain') and x.kind in ('dma', 'vld') and 'x4' in x.text:
            x.text = x.text.replace(' sc1', '')
    p.finalize(verbose=bool(OPT.get('verbose')), check=not (OPT.get('drop') or OPT.get('nost')))
    print('total overflow slots', g.over, p.stats(), file=sys.stderr)
    return p


def build(diag=False):
    hdr = open('cdna_kernels/%s.s.ref' % NAME).read().split('; Override launch')[0]
    out = hdr
    if OPT.get('fuse', 2):
        km = gen_main(diag)
        kn = NAME + '_kernel'
        if OPT.get('aslist', 1):
            out += '; @launch kernel=%s grid=(256,1,1) block=(256,1,1) lds=163840\n' % kn
        else:
            out += '; @launch grid=(256,1,1) block=(256,1,1) lds=163840\n'
        out += '.amdgcn_target "amdgcn-amd-amdhsa--gfx950"\n.text\n'
        out += kernel_text(kn, km, 0, 0)
        out += '.section .rodata,"a"\n.p2align 6\n' + descriptor(kn, 512, 256)
        return out
    ln, km = gen_ln(), gen_main(diag)
    if not OPT.get('donly'):
        out += '; @launch kernel=ln_kernel grid=(256,1,1) block=(256,1,1) lds=0\n'
    out += '; @launch kernel=main_kernel grid=(256,1,1) block=(256,1,1) lds=163840\n'
    out += '.amdgcn_target "amdgcn-amd-amdhsa--gfx950"\n.text\n'
    out += kernel_text('ln_kernel', ln, 0, 0) + kernel_text('main_kernel', km, 0, 0)
    out += '.section .rodata,"a"\n'
    for n, nv, acc in (('ln_kernel', 64, 64), ('main_kernel', 512, 256)):
        out += '.p2align 6\n' + descriptor(n, nv, acc)
    return out


if __name__ == '__main__':
    diag = 'diag' in sys.argv[2:]
    for a in sys.argv[2:]:
        if '=' in a:
            k, v = a.split('=')
            OPT[k] = int(v)
    open(sys.argv[1], 'w').write(build(diag))
```

```python
import sys, struct
from collections import deque
from dsl import *

OPT = {}
NAME = 'recurrent_scan__mha_block_cached__glu_gated_swiglu__prompt'
WS_XN = 0
WS_F = 3 << 20
WS_O = 4 << 20
WS_H = 24 << 20
WS_P = 48 << 20
PG = 64 * 16 * 9216
WS_W = 96 << 20
WBLK = 2432 * 288
WS_T = 128 << 20
MF = 'v_mfma_f32_16x16x32_bf16'
LOG2E = 1.4426950408889634


def HS():
    return 144 * 1024 + OPT.get('pad', 1280)


def OS():
    return 128 * 1024 + OPT.get('pad', 1280)


def f2u(x):
    return struct.unpack('<I', struct.pack('<f', x))[0]


def srd_ins(srd, ptr, off, size):
    o = []
    if off is None:
        o.append(Ins('s_mov_b32 %s, %s' % (sr(srd), sr(ptr))))
        o.append(Ins('s_mov_b32 %s, %s' % (sr(srd + 1), sr(ptr + 1))))
    else:
        o.append(Ins('s_add_u32 %s, %s, %s' % (sr(srd), sr(ptr), off)))
        o.append(Ins('s_addc_u32 %s, %s, 0' % (sr(srd + 1), sr(ptr + 1))))
    o.append(Ins('s_mov_b32 %s, %s' % (sr(srd + 2), size if isinstance(size, str) else '0x%x' % size)))
    o.append(Ins('s_mov_b32 %s, 0x00020000' % sr(srd + 3)))
    return o


def make_srd(p, srd, ptr, off, size):
    for x in srd_ins(srd, ptr, off, size):
        p.add(x)


def cost(ins):
    if ins.kind == 'valu':
        return 2 if ins.trans else 1
    if ins.kind in ('dsr', 'dsw'):
        return 1
    if ins.kind in ('dma', 'vld', 'vst'):
        return 2
    return 0


class Gaps:
    def __init__(self, p):
        self.p = p
        self.hi = deque()
        self.lo = deque()
        self.n = 0
        self.over = 0
        self.waste = 0
        self.drop = ()
        self.vm_next = 0
        self.st = deque()
        self.st_max = 2
        self.st_w = 3
        self.vm_gap = 1

    def emit(self, x):
        if self.drop and x.kind in self.drop:
            return
        self.p.add(x)
        if x.on_emit:
            x.on_emit()

    def gap(self, mfma, sc=(), ld=(), va=(), cap=2):
        if mfma is not None:
            self.p.add(mfma if isinstance(mfma, Ins) else Ins(mfma))
        sc, ld, va = list(sc), list(ld), list(va)
        used = sum(cost(x) for x in ld + va)
        for q in (self.st, self.hi, self.lo):
            pulled = False
            pva = False
            while q:
                x = q[0]
                if x.ready > self.n:
                    break
                c = cost(x)
                if q is self.lo and x.kind == 'vst' and len(self.st) < self.st_max:
                    x.ready = self.n + 1
                    self.st.append(q.popleft())
                    continue
                if c == 0:
                    if sc or pulled:
                        break
                    sc.append(q.popleft())
                    if 'm0' in x.wr:
                        break
                    continue
                if used + c > cap:
                    break
                if x.kind != 'valu':
                    if pva:
                        break
                    if c == 2:
                        if self.n < self.vm_next:
                            break
                        w = (self.st_w if 'x4' in x.text else 1) if x.kind == 'vst' else (4 if 'buffer_load_dword ' in x.text and 'sc' not in x.text else 1)
                        self.vm_next = self.n + self.vm_gap * w
                    ld.append(q.popleft())
                else:
                    va.append(q.popleft())
                    pva = True
                used += c
                pulled = True
        for x in sc + ([Ins(mfma)] if isinstance(mfma, str) else []):
            self.check(x)
        self.over += max(0, used - 2)
        if used < 2 and (self.hi or self.lo):
            self.waste += 2 - used
        for x in sc + ld + va:
            self.emit(x)
        self.n += 1

    def check(self, x):
        regs = set(x.rd) if (x.text.startswith('; need') or x.kind == 'mfma') else set()
        tags = [t for t in (x.need or []) if not callable(t[1])]
        for q in (self.st, self.hi, self.lo):
            for y in q:
                if y.kind in ('vld', 'dsr') and set(y.wr) & regs and not getattr(y, 'later', False):
                    raise AssertionError('consumer %s before queued load %s' % (x.text, y.text))
                if y.lds is not None and y.lds in tags:
                    raise AssertionError('need %s before queued %s' % (tags, y.text))

    def flush(self, q=None):
        for qq in ((self.st, self.hi, self.lo) if q is None else (q,)):
            while qq:
                x = qq.popleft()
                self.over += max(1, cost(x))
                self.emit(x)


def rg(t, n=4):
    return (vr if t[0] == 'v' else ar)(t[1], n)


def prefetch_w(p, ptr, srd, soff, rows, stride, lines, rounds, vt, vd):
    t = lambda k: vr(vt + k)
    make_srd(p, srd, ptr, soff, (rows - 1) * stride + lines * 128)
    return t


def gen_ln():
    p = Prog()
    p('s_cmp_ge_u32 s2, 256')
    p('s_cbranch_scc1 L_ln_end')
    p('s_load_dwordx2 s[12:13], s[0:1], 0')
    p('s_load_dwordx2 s[14:15], s[0:1], 88')
    p('s_load_dwordx4 s[32:35], s[0:1], 48')
    p('v_lshrrev_b32 v1, 5, v0')
    p('s_lshl_b32 s3, s2, 3')
    p('v_add_u32 v1, s3, v1')
    p('v_and_b32 v2, 31, v0')
    p('v_lshrrev_b32 v3, 2, v2')
    p('v_and_b32 v4, 3, v2')
    p('v_mul_u32_u24 v5, 1152, v1')
    p('v_lshl_add_u32 v5, v3, 6, v5')
    p('v_lshl_add_u32 v5, v4, 3, v5')
    p('v_cmp_gt_u32 vcc, 8, v2')
    p('s_mov_b64 s[16:17], vcc')
    for r in range(16, 20):
        p('v_mov_b32 v%d, 0' % r)
    p('s_waitcnt lgkmcnt(0)')
    make_srd(p, 4, 12, None, 2048 * 1152)
    for it in range(2):
        p('buffer_load_dwordx2 v[%d:%d], v5, s[4:7], 0 offen offset:%d' % (8 + 4 * it, 9 + 4 * it, it * 512))
        p('buffer_load_dwordx2 v[%d:%d], v5, s[4:7], 0 offen offset:%d' % (10 + 4 * it, 11 + 4 * it, it * 512 + 32))
    p('s_mov_b64 exec, s[16:17]')
    p('buffer_load_dwordx2 v[16:17], v5, s[4:7], 0 offen offset:1024')
    p('buffer_load_dwordx2 v[18:19], v5, s[4:7], 0 offen offset:1056')
    p('s_mov_b64 exec, -1')
    R0 = OPT.get('pf0', 12)
    if R0:
        p('s_lshr_b32 s20, s2, 3')
        p('s_mul_i32 s20, s20, %d' % (R0 * 9216))
        p('s_and_b32 s21, s2, 3')
        p('s_mul_i32 s21, s21, 2304')
        p('s_add_u32 s20, s20, s21')
        make_srd(p, 36, 32, 's20', (R0 - 1) * 9216 + 2304)
        make_srd(p, 40, 34, 's20', (R0 - 1) * 9216 + 2304)
        p('v_mul_u32_u24 v56, 3641, v0')
        p('v_lshrrev_b32 v56, 16, v56')
        p('v_mul_u32_u24 v57, 18, v56')
        p('v_sub_u32 v57, v0, v57')
        p('v_mul_u32_u24 v56, 9216, v56')
        p('v_lshl_add_u32 v56, v57, 7, v56')
        if OPT.get('pfh', 1):
            p('s_bitcmp1_b32 s2, 2')
            p('s_cselect_b32 s36, s40, s36')
            p('s_cselect_b32 s37, s41, s37')
            p('buffer_load_dword v58, v56, s[36:39], 0 offen')
        else:
            p('buffer_load_dword v58, v56, s[36:39], 0 offen')
            p('buffer_load_dword v59, v56, s[40:43], 0 offen')
    if OPT.get('pfc', 1):
        p('s_getpc_b64 s[44:45]')
        p.label('L_pc')
        p('s_add_u32 s44, s44, main_kernel-L_pc')
        p('s_addc_u32 s45, s45, 0')
        p('s_lshr_b32 s46, s2, 3')
        p('s_lshl_b32 s46, s46, 12')
        p('v_and_b32 v60, 31, v0')
        p('v_lshlrev_b32 v60, 7, v60')
        p('v_add_u32 v60, s46, v60')
        p('v_min_u32 v60, L_code_end-main_kernel-4, v60')
        p('global_load_dword v61, v60, s[44:45]')
    make_srd(p, 8, 14, None, 2048 * 1152)
    p('v_lshrrev_b32 v6, 4, v1')
    p('v_mul_u32_u24 v6, 18, v6')
    p('v_add_u32 v6, v6, v3')
    p('v_lshlrev_b32 v6, 10, v6')
    p('v_lshl_add_u32 v6, v4, 8, v6')
    p('v_and_b32 v7, 15, v1')
    p('v_lshl_add_u32 v6, v7, 4, v6')
    p('s_mov_b32 s20, 0x%x' % WS_F)
    make_srd(p, 24, 14, 's20', 4 * 32768)
    p('s_lshl_b32 s21, s2, 7')
    p('v_lshlrev_b32 v50, 15, v0')
    p('v_mov_b32 v52, 0')
    p('buffer_store_dword v52, v50, s[24:27], s21 offen')
    for d in range(12):
        p('v_lshlrev_b32 v%d, 16, v%d' % (20 + 2 * d, 8 + d))
        p('v_and_b32 v%d, 0xffff0000, v%d' % (21 + 2 * d, 8 + d))

    def reduce32(x, t):
        for k in (8, 4, 2, 1):
            p('v_add_f32_dpp %s, %s, %s row_ror:%d row_mask:0xf bank_mask:0xf' % (x, x, x, k))
        p('v_mov_b32 %s, %s' % (t, x))
        p('v_permlane16_swap_b32 %s, %s' % (x, t))
        p('v_add_f32 %s, %s, %s' % (x, x, t))
    p('v_add_f32 v44, v20, v21')
    p('v_add_f32 v45, v22, v23')
    for e in range(4, 24, 2):
        p('v_add_f32 v44, v44, v%d' % (20 + e))
        p('v_add_f32 v45, v45, v%d' % (21 + e))
    p('v_add_f32 v44, v44, v45')
    reduce32('v44', 'v45')
    p('v_mul_f32 v44, 0x%x, v44' % f2u(1.0 / 576))
    p('v_mov_b32 v46, 0')
    p('v_mov_b32 v47, 0')
    for e in range(16):
        p('v_sub_f32 v48, v%d, v44' % (20 + e))
        p('v_fmac_f32 v%d, v48, v48' % (46 + e % 2))
    p('s_mov_b64 exec, s[16:17]')
    for e in range(16, 24):
        p('v_sub_f32 v48, v%d, v44' % (20 + e))
        p('v_fmac_f32 v%d, v48, v48' % (46 + e % 2))
    p('s_mov_b64 exec, -1')
    p('v_add_f32 v46, v46, v47')
    reduce32('v46', 'v45')
    p('v_mul_f32 v46, 0x%x, v46' % f2u(1.0 / 576))

    def rnd(x):
        p('v_cvt_pk_bf16_f32 %s, %s, %s' % (x, x, x))
        p('v_lshlrev_b32 %s, 16, %s' % (x, x))
    rnd('v44')
    rnd('v46')
    p('v_add_f32 v46, 0x%x, v46' % f2u(1e-5))
    rnd('v46')
    p('v_sqrt_f32 v46, v46')
    rnd('v46')
    p('v_rcp_f32 v46, v46')
    if OPT.get('fold', 0):
        p('v_mul_f32 v46, 0x%x, v46' % f2u(-LOG2E))
    for d in range(12):
        a, b = 20 + 2 * d, 21 + 2 * d
        p('v_sub_f32 v%d, v%d, v44' % (a, a))
        p('v_sub_f32 v%d, v%d, v44' % (b, b))
        p('v_cvt_pk_bf16_f32 v%d, v%d, v%d' % (8 + d, a, b))
        p('v_lshlrev_b32 v%d, 16, v%d' % (a, 8 + d))
        p('v_and_b32 v%d, 0xffff0000, v%d' % (b, 8 + d))
        p('v_mul_f32 v%d, v%d, v46' % (a, a))
        p('v_mul_f32 v%d, v%d, v46' % (b, b))
        p('v_cvt_pk_bf16_f32 v%d, v%d, v%d' % (8 + d, a, b))
    p('s_mov_b32 s18, 8192')
    p('s_mov_b32 s19, 16384')
    p('buffer_store_dwordx4 v[8:11], v6, s[8:11], 0 offen')
    p('buffer_store_dwordx4 v[12:15], v6, s[8:11], s18 offen')
    p('s_mov_b64 exec, s[16:17]')
    p('buffer_store_dwordx4 v[16:19], v6, s[8:11], s19 offen')
    p.label('L_ln_end')
    p('s_endpgm')
    p.finalize()
    return p


S_K, S_V, S_XN, S_WS, S_WQ, S_H, S_O, S_FL, S_A1, S_A2, S_A3, S_A4 = 4, 8, 12, 16, 20, 24, 28, 32, 36, 40, 44, 48
S_DW2, S_DWO, S_DH, S_DO, S_DP, S_DR, S_DX, S_DOUT = 12, 16, 20, 24, 36, 40, 44, 48
(S_W, S_MK, S_EP, S_OFFK, S_OFFV, S_CNT, S_HD, S_QT, S_M1, S_OFFW, S_OFFQ, S_C, S_NL, S_FWG, S_FGR, S_FT,
 S_RO, S_SP, S_TILE) = range(52, 71)
S_HS = 71
S_T0 = 79
S_DG = 90
P_X, P_WO, P_W2, P_OUT, P_WS = 92, 94, 96, 98, 100
T = lambda k: sr(S_T0 + k)

V_L16, V_LANE = 2, 3
V_A1 = 4
V_OW = 8
V_AQ = 8
V_OQ = 20
V_OK, V_OV = 22, 26
V_SW = 28
V_T = 34
V_KA, V_VA, V_L, V_E = 4, 8, 16, 28
V_NM, V_S, V_P, V_Q = 40, 56, 120, 184
V_FST, V_ONE, V_FOFF, V_FV = 252, 253, 254, 255
A_O, A_KF, A_VF = 0, 128, 192
A_A, A_B = 128, 160
X0 = 72
DK, DV = 4, 2
L = vr(V_LANE)
t0, t1, t2, t3 = (vr(V_T + i) for i in range(4))


def LS(n):
    return (n * 16384, 16384)


def VP(u):
    return (u + 3) % 4


DBASE = [0, 126976, 36864, 73728]


def DS(c):
    return (DBASE[c % 4], 36864)


def PS(c):
    return ((c % 4) * 36864, 36864)


def Sreg(kb, qb):
    return V_S + (kb * 4 + qb) * 4


def Preg(u, qb, ks):
    return V_P + (u & 1) * 32 + qb * 8 + ks * 4


def ktag(u, inloop):
    return (lambda it: ('K', u + 4 * it)) if inloop else ('K', u)


def vtag(u, inloop):
    return (lambda it: ('V', u + 4 * it)) if inloop else ('V', u)


def k_load(u, kb, s, inloop):
    return Ins('ds_read_b128 %s, %s offset:%d' % (ar(A_KF + kb * 16 + s * 4, 4), vr(V_KA + s), (u % 4) * 16384 + kb * 4096),
               lds=(LS(u % 4), ktag(u, inloop)))


def v_load(u, db, ks, j, inloop):
    return Ins('ds_read_b64_tr_b16 %s, %s offset:%d' % (
        ar(A_VF + db * 8 + ks * 4 + 2 * j, 2), vr(V_VA + db), VP(u) * 16384 + (32 * ks + 16 * j) * 256),
        lds=(LS(4 + VP(u)), vtag(u, inloop)))


def dma_unit(kind, u, inloop):
    out = []
    if kind == 'K':
        out.append(Ins('s_add_u32 m0, %s, %d' % (sr(S_MK), (u % 4) * 16384)))
        for cc in range(4):
            out.append(Ins('buffer_load_dwordx4 %s, %s, %s offen offset:%d lds' % (
                vr(V_OK + cc), sr(S_K, 4), sr(S_OFFK), cc * 1024), lds=(LS(u % 4), ktag(u, inloop))))
        out.append(Ins('s_add_u32 %s, %s, 16384' % (sr(S_OFFK), sr(S_OFFK))))
    else:
        out.append(Ins('s_add_u32 m0, %s, %d' % (sr(S_MK), 65536 + VP(u) * 16384)))
        for cc in range(4):
            out.append(Ins('buffer_load_dwordx4 %s, %s, %s offen offset:%d lds' % (
                vr(V_OV + cc % 2), sr(S_V, 4), sr(S_OFFV), cc * 1024), lds=(LS(4 + VP(u)), vtag(u, inloop))))
        out.append(Ins('s_add_u32 %s, %s, 16384' % (sr(S_OFFV), sr(S_OFFV))))
    return out


def sm_instrs(uu, i):
    n, r = i // 4, i % 4
    kb, qb = n // 4, n % 4
    e = vr(V_E + i % 4)
    ex = Ins('v_exp_f32 %s, %s' % (e, vr(Sreg(kb, qb) + r)))
    ad = Ins('v_add_f32 %s, %s, %s' % (vr(V_L + qb), vr(V_L + qb), e))
    cv = None
    if r % 2 == 1:
        cv = Ins('v_cvt_pk_bf16_f32 %s, %s, %s' % (
            vr(Preg(uu, qb, kb // 2) + (kb % 2) * 2 + r // 2), vr(V_E + (i - 1) % 4), e))
    return ex, ad, cv


def att_slots(p, u, ta, tb, inloop, pv=True, qk=True, sm_cur=True, sm_next=True, vnext=True, dmak=True, dmav=True,
              barrier=True, g=None, cap=2, vearly=False, extra_need=()):
    T0 = -40
    R = range(-128, 256)
    sc = {t: [] for t in R}
    ld = {t: [] for t in R}
    va = {t: [] for t in R}
    for t in range(0, 128, 2):
        if t >= X0:
            uu, i, on = u + 1, (t - X0) // 2, sm_next
        else:
            uu, i, on = u, (t + 128 - X0) // 2, sm_cur
        if on:
            ex, ad, cv = sm_instrs(uu, i)
            va[t].append(ex)
            va[t + 1].append(ad)
            if cv is not None:
                va[t + 1].append(cv)
    pos = [t for t in range(T0, T0 + 128) if t % 8 in (1, 4, 5)]
    n = 0
    m = 0
    for db in range(8):
        for ks in range(2):
            for j in range(2):
                t = pos[n]
                n += 1
                if t >= 0:
                    if pv:
                        ld[t].append(v_load(u - 1, db, ks, j, inloop))
                elif vnext:
                    if vearly:
                        ld[46 + m].append(v_load(u, db, ks, j, inloop))
                        m += 1
                    else:
                        ld[t + 128].append(v_load(u, db, ks, j, inloop))
        t = 8 * db - 1
        sc[t if t >= 0 else t + 128].append(wait_ins(ar(A_VF + db * 8, 8)))
    for kb in range(4):
        for s in range(4):
            t = pos[n]
            n += 1
            if qk:
                ld[t].append(k_load(u + 1, kb, s, inloop))
        if qk:
            sc[64 + 16 * kb - 1].append(wait_ins(ar(A_KF + kb * 16, 16)))
    for on, kind, uu, tt in ((dmav, 'V', u + DV, 2), (dmak, 'K', u + DK, 66)):
        if on:
            lst = dma_unit(kind, uu, inloop)
            sc[tt].append(lst[0])
            ds = OPT.get('dstep', 8)
            for k in range(4):
                ld[tt + ds * k + (4 if k == 0 else 0)].append(lst[1 + k])
            sc[tt + ds * 3 + 1].append(lst[5])
    if barrier:
        nd = [(LS(4 + VP(u)), vtag(u, inloop))] + list(extra_need)
        if qk:
            nd.append((LS((u + 1) % 4), ktag(u + 1, inloop)))
        sc[0].append(need_ins(*nd))
        sc[1].append(Ins('s_barrier'))
    g = g or Gaps(p)
    for t in range(ta, tb):
        mf = None
        if t < 64:
            if pv:
                db, qb, ks = t // 8, (t % 8) // 2, t % 2
                o = ar(A_O + (db * 4 + qb) * 4, 4)
                mf = '%s %s, %s, %s, %s' % (MF, o, ar(A_VF + db * 8 + ks * 4, 4), vr(Preg(u - 1, qb, ks), 4), o)
        elif qk:
            tt = t - 64
            kb, qb, s = tt // 16, (tt % 16) // 4, tt % 4
            d = vr(Sreg(kb, qb), 4)
            c = vr(V_NM + qb * 4, 4) if s == 0 else d
            mf = '%s %s, %s, %s, %s' % (MF, d, ar(A_KF + kb * 16 + s * 4, 4), vr(V_Q + (qb * 4 + s) * 4, 4), c)
        assert len(sc[t]) <= 1 and len(ld[t]) <= 1
        if mf is None and not (sc[t] or ld[t] or va[t]):
            continue
        g.gap(mf, sc[t], ld[t], va[t], cap=cap)


def kv_dma_setup():
    o = []
    a = lambda s: o.append(Ins(s))
    a('v_and_b32 %s, 15, %s' % (t0, L))
    a('v_lshrrev_b32 %s, 4, %s' % (t1, L))
    a('v_lshlrev_b32 %s, 8, %s' % (t2, t1))
    a('v_add_u32 %s, %s, %s' % (t2, sr(S_MK), t2))
    a('v_xor_b32 %s, %s, %s' % (t3, t0, t1))
    a('v_lshl_add_u32 %s, %s, 4, %s' % (vr(V_OK), t3, t2))
    for c in range(1, 4):
        a('v_xor_b32 %s, %d, %s' % (vr(V_OK + c), c * 64, vr(V_OK)))
    a('v_lshlrev_b32 %s, 1, %s' % (t3, t1))
    a('v_xor_b32 %s, %s, %s' % (t3, t0, t3))
    a('v_lshl_add_u32 %s, %s, 4, %s' % (vr(V_OV), t3, t2))
    a('v_xor_b32 %s, 128, %s' % (vr(V_OV + 1), vr(V_OV)))
    return o


def k_read_setup():
    o = []
    a = lambda s: o.append(Ins(s))
    a('v_and_b32 %s, 15, %s' % (t0, L))
    a('v_lshrrev_b32 %s, 4, %s' % (t1, L))
    a('v_xor_b32 %s, %s, %s' % (t2, t0, t1))
    a('v_lshlrev_b32 %s, 4, %s' % (t2, t2))
    a('v_lshl_add_u32 %s, %s, 8, %s' % (vr(V_KA), t0, t2))
    for s in range(1, 4):
        a('v_xor_b32 %s, %d, %s' % (vr(V_KA + s), s * 64, vr(V_KA)))
    return o


def v_read_setup():
    o = []
    a = lambda s: o.append(Ins(s))
    a('v_lshrrev_b32 %s, 2, %s' % (t2, L))
    a('v_and_b32 %s, 7, %s' % (t3, t2))
    a('v_lshlrev_b32 %s, 5, %s' % (t3, t3))
    a('v_lshl_add_u32 %s, %s, 8, %s' % (t3, t2, t3))
    a('v_and_b32 %s, 3, %s' % (t2, L))
    a('v_lshl_add_u32 %s, %s, 3, %s' % (t3, t2, t3))
    a('v_add_u32 %s, 0x10000, %s' % (vr(V_VA), t3))
    for d in range(1, 8):
        a('v_xor_b32 %s, %d, %s' % (vr(V_VA + d), d * 32, vr(V_VA)))
    return o


def xlane4(op, xs, ts):
    o = []
    for perm in ('v_permlane32_swap_b32', 'v_permlane16_swap_b32'):
        for x, t in zip(xs, ts):
            o.append(Ins('v_mov_b32 %s, %s' % (t, x)))
        for x, t in zip(xs, ts):
            o.append(Ins('%s %s, %s' % (perm, x, t)))
        for x, t in zip(xs, ts):
            o.append(Ins('%s %s, %s, %s' % (op, x, x, t)))
    return o


def div18(o, n, row, sl):
    o.append(Ins('v_mul_u32_u24 %s, 3641, %s' % (row, n)))
    o.append(Ins('v_lshrrev_b32 %s, 16, %s' % (row, row)))
    o.append(Ins('v_mul_u32_u24 %s, 18, %s' % (sl, row)))
    o.append(Ins('v_sub_u32 %s, %s, %s' % (sl, n, sl)))


def ffn_tiles():
    m, nv, na = {}, 0, 0
    for b in range(9):
        for mat in range(2):
            for qb in range(4):
                if mat == 1 and na < 18:
                    m[(2 * b + mat, qb)] = ('a', na * 4)
                    na += 1
                else:
                    m[(2 * b + mat, qb)] = ('v', 40 + nv * 4)
                    nv += 1
    assert nv == 54 and na == 18
    return m


FT = ffn_tiles()
WQ_SLOT = {8: 9, 7: 3, 6: 4, 5: 5, 4: 6, 3: 7, 2: 8, 1: 9, 0: 3}


def p1_dma(c):
    out = [Ins('s_add_u32 %s, %s, %d' % (T(8), sr(S_OFFW), c * 64 * 9216))]
    for i in range(9):
        if i % 4 == 0:
            out.append(Ins('s_add_u32 m0, %s, %d' % (sr(S_M1), PS(c)[0] + (i // 4) * 4096)))
        out.append(Ins('buffer_load_dwordx4 %s, %s, %s offen offset:%d lds' % (
            vr(V_OW + i), sr(S_WS, 4), T(8), (i % 4) * 1024), lds=(PS(c), ('W', c))))
    return out


def xn_loads(c, buf):
    base = A_B + buf * 32
    out = []
    for qb in range(4):
        out.append(Ins('s_mov_b32 %s, %d' % (T(qb), qb * 18 * 1024 + c * 2048)))
        for ks in range(2):
            out.append(Ins('buffer_load_dwordx4 %s, %s, %s, %s offen offset:%d' % (
                ar(base + (qb * 2 + ks) * 4, 4), vr(V_L16), sr(S_XN, 4), T(qb), ks * 1024)))
    return out


def wq_dma(c):
    sl = WQ_SLOT[c]
    out = []
    for cc in range(4):
        out.append(Ins('s_add_u32 %s, %s, %d' % (T(4 + cc % 2), sr(S_OFFQ), (c * 64 + cc * 4) * 8192)))
        out.append(Ins('s_add_u32 m0, %s, %d' % (sr(S_MK), sl * 16384 + cc * 1024)))
        out.append(Ins('buffer_load_dwordx4 %s, %s, %s offen lds' % (
            vr(V_OQ + cc % 2), sr(S_WQ, 4), T(4 + cc % 2)), lds=(LS(sl), ('Q', c))))
    return out


def p1_reads(c, blk, dst):
    mat, b = blk % 2, blk // 2
    return [Ins('ds_read_b64_tr_b16 %s, %s offset:%d' % (
        ar(dst + ks * 4 + 2 * j, 2), vr(V_A1 + c % 4),
        mat * 18432 + (32 * ks + 16 * j) * 288 + 32 * b), lds=(PS(c), ('W', c)))
        for ks in range(2) for j in range(2)]


def p2_reads(c, bq, dst):
    s, jj = bq // 2, bq % 2
    sl = WQ_SLOT[c]
    return [Ins('ds_read_b64_tr_b16 %s, %s offset:%d' % (
        ar(dst + ks * 4 + 2 * j, 2), vr(V_AQ + (sl // 4) * 4 + s),
        (sl % 4) * 16384 + (32 * ks + 16 * j) * 256 + 8 * jj), lds=(LS(sl), ('Q', c)))
        for ks in range(2) for j in range(2)]


def swiglu_unit(b, qb, ready, pool):
    gt, ut = FT[(2 * b, qb)], FT[(2 * b + 1, qb)]
    pk = FT[(2 * (b - b % 2), qb)][1] + (b % 2) * 2
    o = []
    ta, tb = vr(V_SW), vr(V_SW + 1)
    for r in (0, 2):
        pa, pb = vr(V_SW + 2 + r), vr(V_SW + 3 + r)
        g0, g1 = vr(gt[1] + r), vr(gt[1] + r + 1)
        if ut[0] == 'a':
            o.append(Ins('v_accvgpr_read_b32 %s, %s' % (pa, ar(ut[1] + r))))
            o.append(Ins('v_accvgpr_read_b32 %s, %s' % (pb, ar(ut[1] + r + 1))))
            u0, u1 = pa, pb
        else:
            u0, u1 = vr(ut[1] + r), vr(ut[1] + r + 1)
        if OPT.get('fold', 0):
            o.append(Ins('v_exp_f32 %s, %s' % (ta, g0)))
            o.append(Ins('v_exp_f32 %s, %s' % (tb, g1)))
        else:
            o.append(Ins('v_mul_f32 %s, %s, %s' % (ta, sr(S_NL), g0)))
            o.append(Ins('v_mul_f32 %s, %s, %s' % (tb, sr(S_NL), g1)))
            o.append(Ins('v_exp_f32 %s, %s' % (ta, ta)))
            o.append(Ins('v_exp_f32 %s, %s' % (tb, tb)))
        o.append(Ins('v_mul_f32 %s, %s, %s' % (pa, g0, u0)))
        o.append(Ins('v_mul_f32 %s, %s, %s' % (pb, g1, u1)))
        o.append(Ins('v_add_f32 %s, 1.0, %s' % (ta, ta)))
        o.append(Ins('v_add_f32 %s, 1.0, %s' % (tb, tb)))
        o.append(Ins('v_rcp_f32 %s, %s' % (ta, ta)))
        o.append(Ins('v_rcp_f32 %s, %s' % (tb, tb)))
        o.append(Ins('v_mul_f32 %s, %s, %s' % (pa, pa, ta)))
        o.append(Ins('v_mul_f32 %s, %s, %s' % (pb, pb, tb)))
    for r in (0, 2):
        o.append(Ins('v_cvt_pk_bf16_f32 %s, %s, %s' % (vr(pk + r // 2), vr(V_SW + 2 + r), vr(V_SW + 3 + r))))
    rel = [ut] + ([gt] if b % 2 == 1 else [])
    if b % 2 == 1:
        o.append(Ins('buffer_store_dwordx4 %s, %s, %s, %s offen offset:%d sc1' % (
            vr(pk - 2, 4), vr(V_L16), sr(S_H, 4), sr(S_HS + qb), (b // 2) * 1024), lds=('H', 0)))
        if OPT.get('plain_h'):
            o[-1].text = o[-1].text.replace(' sc1', '')
        rel.append(FT[(2 * (b - 1), qb)])
    elif b == 8:
        o.append(Ins('buffer_store_dwordx2 %s, %s, %s, %s offen sc1' % (
            vr(pk, 2), vr(V_L16), sr(S_H, 4), sr(S_HS + 4 + qb)), lds=('H', 0)))
        if OPT.get('plain_h'):
            o[-1].text = o[-1].text.replace(' sc1', '')
    o[0].ready = ready
    o[-1].on_emit = lambda: pool.extend(t for t in rel if not (t[0] == 'v' and t[1] >= V_Q))
    return o


def qcvt_unit(qb, s, QT, ready):
    o = []
    for h in range(2):
        tl = QT[(2 * s + h, qb)]
        tm = [vr(V_SW + e) for e in range(4)]
        for e in range(4):
            if tl[0] == 'a':
                o.append(Ins('v_accvgpr_read_b32 %s, %s' % (tm[e], ar(tl[1] + e))))
        for e in range(4):
            o.append(Ins('v_mul_f32 %s, %s, %s' % (tm[e], sr(S_C), tm[e] if tl[0] == 'a' else vr(tl[1] + e))))
        for e in range(2):
            o.append(Ins('v_cvt_pk_bf16_f32 %s, %s, %s' % (vr(V_Q + (qb * 4 + s) * 4 + 2 * h + e), tm[2 * e], tm[2 * e + 1])))
    o[0].ready = ready
    return o


class GemmSeq:
    def __init__(self, p, g):
        self.p, self.g = p, g
        self.groups = []

    def add(self, reads, nfr, mf, hook=None, bar=None, bwait=None, cap=2):
        self.groups.append(dict(reads=reads, n=nfr, mf=mf, hook=hook, bar=bar, bwait=bwait, cap=cap))

    def run(self):
        G, g, p = self.groups, self.g, self.p
        pos = 0
        for x in G:
            if x['n'] == 16 and pos % 16:
                pos += 8
            x['dst'] = A_A + pos % 32
            pos += x['n']
        for k, x in enumerate(G):
            regs = lambda y: set(range(y['dst'], y['dst'] + y['n']))
            ld = 1
            if k >= 2 and not (regs(x) & regs(G[k - 1])) and not (regs(x) & regs(G[k - 2])) and G[k - 1]['n'] == 8:
                ld = 2
            assert k == 0 or not (regs(x) & regs(G[k - 1]))
            x['at'] = k - ld
        for x in G:
            if x['at'] < 0:
                if x['bar']:
                    p.need(*x['bar'])
                    p('s_barrier')
                for i in x['reads'](x['dst']):
                    p.add(i)
        for k, x in enumerate(G):
            if x['hook']:
                x['hook']()
            todo = [y for y in G if y['at'] == k]
            rd, bar = [], []
            for y in todo:
                rd += y['reads'](y['dst'])
                if y['bar'] is not None:
                    bar += y['bar']
            hasbar = any(y['bar'] is not None for y in todo)
            mfs = x['mf'](x['dst'])
            n = len(mfs)
            st = 3 if hasbar else 0
            step = 2 if (st + 2 * ((len(rd) + 1) // 2) <= n - 1) else 1
            for t in range(n):
                sc, ld = [], []
                if hasbar and t == 1:
                    sc = [need_ins(('lgkm', 'all'), *bar)]
                if hasbar and t == 2:
                    sc = [Ins('s_barrier')]
                if t >= st and (t - st) % step == 0 and rd:
                    ld = rd[:2]
                    rd = rd[2:]
                if t == n - 1 and k + 1 < len(G):
                    y = G[k + 1]
                    bw = y['bwait']() if callable(y['bwait']) else (y['bwait'] or [])
                    w = [ar(y['dst'], y['n'])] + bw
                    sc = [wait_ins(*w)]
                g.gap(mfs[t](), sc, ld, cap=x['cap'])
                if hasbar and t == 2:
                    for y in todo:
                        if y.get('post'):
                            y['post']()
            assert not rd


V_DOWS = [22, 23, 24, 25, 26, 27, 248, 249, 250]
V_DRA = 40
V_DA = 56
V_AC2, V_AC1 = 104, 176
V_PK = 4
A_DB = 128
SPIN_BLOCKS = []


def poll_issue(soff, V_FV=V_FV, V_FOFF=V_FOFF, S_FL=S_FL):
    return Ins('buffer_load_dword %s, %s, %s, %s offen sc1' % (vr(V_FV), vr(V_FOFF), sr(S_FL, 4), sr(soff)))


def poll_check(p, name, soff, cmp='v_cmp_ne_u32 vcc, %s' % sr(S_EP), V_FV=V_FV, V_FOFF=V_FOFF, S_FL=S_FL, sleep=4):
    SPIN_BLOCKS.append("""L_spin_%(n)s:
 s_mov_b32 s3, 0
L_spin_%(n)s_l:
 s_sleep %(sl)d
 buffer_load_dword %(v)s, %(o)s, %(srd)s, %(so)s offen sc1
 s_add_u32 s3, s3, 1
 s_cmp_gt_u32 s3, 0x40000
 s_cbranch_scc1 L_ok_%(n)s
 s_waitcnt vmcnt(0)
 %(cmp)s, %(v)s
 s_cbranch_vccnz L_spin_%(n)s_l
 s_branch L_ok_%(n)s""" % dict(n=name, v=vr(V_FV), o=vr(V_FOFF), srd=sr(S_FL, 4), so=sr(soff), cmp=cmp, sl=sleep))
    p('%s, %s' % (cmp, vr(V_FV)))
    p('s_cbranch_vccnz L_spin_%s' % name)
    p.label('L_ok_%s' % name)


def flag_store(soff, tag):
    return Ins('buffer_store_dword %s, %s, %s, %s offen sc1' % (
        vr(V_ONE), vr(V_FST), sr(S_FL, 4), sr(soff)), lds=('flag', (tag, 0)))


_ct = [0]


def code_touch(label, vo, vd, sp):
    _ct[0] += 1
    n = 'L_ct%d' % _ct[0]
    blk = Ins('; raw')
    blk.rawtext = (' s_getpc_b64 %(p)s\n%(n)s:\n s_add_u32 %(lo)s, %(lo)s, %(l)s-%(n)s\n s_addc_u32 %(hi)s, %(hi)s, 0' %
                   dict(p=sr(sp, 2), n=n, lo=sr(sp), hi=sr(sp + 1), l=label))
    return [blk,
            Ins('s_lshr_b32 s3, s2, 3'),
            Ins('s_lshl_b32 s3, s3, 11'),
            Ins('v_and_b32 %s, 15, %s' % (vr(vo), L)),
            Ins('v_lshlrev_b32 %s, 7, %s' % (vr(vo), vr(vo))),
            Ins('v_add_u32 %s, s3, %s' % (vr(vo), vr(vo))),
            Ins('v_min_u32 %s, L_code_end-%s-4, %s' % (vr(vo), label, vr(vo))),
            Ins('v_mov_b32 %s, %s' % (vr(vo + 1), sr(sp + 1))),
            Ins('v_add_co_u32 %s, vcc, %s, %s' % (vr(vo), sr(sp), vr(vo))),
            Ins('v_addc_co_u32 %s, vcc, 0, %s, vcc' % (vr(vo + 1), vr(vo + 1))),
            Ins('global_load_dword %s, %s, off' % (vr(vd), vr(vo, 2)))]


def sadd(r, k):
    return Ins('s_add_u32 %s, %s, %d' % (sr(r), sr(r), k))


SK0, SK1, NPOS = 12, 16, 19
S_ADJW, S_ADJB = S_OFFK, S_OFFV


def dtag(c, at):
    if at < SK0 <= c:
        return lambda it: ('D', c + 4 if MODE[0] else c)
    return ('D', c)


def d_dma(c, at=0):
    out = []
    for i in range(9):
        if i % 4 == 0:
            if at >= SK1:
                out.append(Ins('s_add_u32 %s, %s, %d' % (T(8), sr(S_ADJW), c * 36864 + (i // 4) * 4096)))
            else:
                out.append(Ins('s_mov_b32 %s, %d' % (T(8), c * 36864 + (i // 4) * 4096)))
            out.append(Ins('s_add_u32 m0, %s, %d' % (sr(S_M1), DS(c)[0] + (i // 4) * 4096)))
        out.append(Ins('buffer_load_dwordx4 %s, %s, %s offen offset:%d sc1 lds' % (
            vr(V_L16), sr(S_DW2, 4), T(8), (i % 4) * 1024), lds=(DS(c), dtag(c, at))))
    return out


def d_bloads(c, at=0):
    srd, loc, rbs = (S_DH, c, HS()) if c < 9 else (S_DO, c - 9, OS())
    out = []
    for rb in range(2):
        if at >= SK1:
            out.append(Ins('s_add_u32 %s, %s, %d' % (T(9 + rb), sr(S_ADJB), loc * 4096 + rb * rbs)))
        else:
            out.append(Ins('s_mov_b32 %s, %d' % (T(9 + rb), loc * 4096 + rb * rbs)))
        for ks in range(4):
            out.append(Ins('buffer_load_dwordx4 %s, %s, %s, %s offen offset:%d sc1' % (
                ar(A_DB + (c % 4) * 32 + (rb * 4 + ks) * 4, 4), vr(V_L16), sr(srd, 4), T(9 + rb), ks * 1024)))
    return out


def d_reads(c, nb, at=None):
    return [Ins('ds_read_b64_tr_b16 %s, %s offset:%d' % (
        vr(V_DA + (nb % 3) * 16 + ks * 4 + 2 * j, 2), vr(V_DRA + c % 4), (32 * ks + 16 * j) * 288 + 32 * nb),
        lds=(DS(c), dtag(c, c if at is None else at))) for ks in range(4) for j in range(2)]


def d_pstore(gemm, nb):
    acc = (V_AC2 if gemm else V_AC1) + nb * 8
    pk = V_PK + (nb % 3) * 4
    out = []
    if nb % 4 == 0:
        out.append(Ins('s_mov_b32 %s, %d' % (T(nb // 4), gemm * PG + (nb // 4) * 4096)))
    for e in range(4):
        out.append(Ins('v_cvt_pk_bf16_f32 %s, %s, %s' % (vr(pk + e), vr(acc + 2 * e), vr(acc + 2 * e + 1))))
    out.append(Ins('buffer_store_dwordx4 %s, %s, %s, %s offen offset:%d sc1' % (
        vr(pk, 4), vr(V_L16), sr(S_DP, 4), T(nb // 4), (nb % 4) * 1024), lds=('PT%d' % gemm, 0)))
    return out


def d_ploads(gemm, base):
    out = []
    for k in range(3):
        for sp in range(4):
            t = T(4 + (k * 4 + sp) % 2)
            if k < 2:
                out.append(Ins('s_mov_b32 %s, %d' % (t, gemm * PG + sp * 4 * 9216 + k * 4096)))
            else:
                out.append(Ins('s_add_u32 %s, %s, %d' % (t, sr(S_OFFQ), gemm * PG + sp * 4 * 9216 + k * 4096)))
            out.append(Ins('buffer_load_dwordx4 %s, %s, %s, %s offen sc1' % (
                vr(base + (k * 4 + sp) * 4, 4), vr(V_L16), sr(S_DR, 4), t)))
    return out


def d_sum(base, k, dst, tmp):
    out = []
    for e in range(4):
        for sp in range(4):
            src = vr(base + (k * 4 + sp) * 4 + e)
            lo = vr(dst + 2 * e) if sp == 0 else vr(tmp)
            hi = vr(dst + 2 * e + 1) if sp == 0 else vr(tmp + 1)
            out.append(Ins('v_lshlrev_b32 %s, 16, %s' % (lo, src)))
            out.append(Ins('v_and_b32 %s, 0xffff0000, %s' % (hi, src)))
            if sp:
                out.append(Ins('v_add_f32 %s, %s, %s' % (vr(dst + 2 * e), vr(dst + 2 * e), lo)))
                out.append(Ins('v_add_f32 %s, %s, %s' % (vr(dst + 2 * e + 1), vr(dst + 2 * e + 1), hi)))
    return out


def d_scalar_setup1():
    o = []
    a = lambda s: o.append(Ins(s))
    a('s_mul_i32 %s, %s, 288' % (T(1), sr(S_W)))
    a('s_lshl_b32 %s, %s, 6' % (T(0), sr(S_SP)))
    a('s_add_u32 %s, %s, %s' % (T(0), T(0), sr(S_TILE)))
    a('s_mul_i32 %s, %s, %d' % (T(2), T(0), 18 * 1152))
    a('s_add_u32 %s, %s, %s' % (T(2), T(2), T(1)))
    o += srd_ins(S_A1, P_W2, T(2), 17 * 1152 + 288)
    a('s_and_b32 %s, %s, 1' % (T(7), sr(S_SP)))
    a('s_lshl_b32 %s, %s, 3' % (T(6), sr(S_SP)))
    a('s_lshl_b32 %s, %s, 1' % (T(3), T(7)))
    a('s_add_u32 %s, %s, %s' % (T(6), T(6), T(3)))
    a('s_lshl_b32 %s, %s, 3' % (T(7), T(7)))
    a('s_sub_u32 %s, 20, %s' % (T(7), T(7)))
    a('s_mul_i32 %s, %s, %s' % (T(9), T(7), sr(S_TILE)))
    a('s_lshl_b32 %s, %s, 7' % (T(2), T(6)))
    a('s_add_u32 %s, %s, %s' % (T(2), T(2), T(9)))
    a('s_mul_i32 %s, %s, 1152' % (T(2), T(2)))
    a('s_add_u32 %s, %s, %s' % (T(2), T(2), T(1)))
    a('s_mul_i32 %s, %s, 1152' % (T(3), T(7)))
    a('s_sub_u32 %s, %s, 864' % (T(3), T(3)))
    o += srd_ins(S_A2, P_WO, T(2), T(3))
    a('s_lshl_b32 %s, %s, 2' % (T(0), sr(S_SP)))
    a('s_add_u32 %s, %s, %s' % (T(1), T(0), sr(S_W)))
    a('s_mul_i32 %s, %s, %d' % (T(1), T(1), WBLK))
    a('s_add_u32 %s, %s, 0x%x' % (T(1), T(1), WS_W))
    a('s_mul_i32 %s, %s, %d' % (T(2), sr(S_TILE), 18 * 288))
    a('s_add_u32 %s, %s, %s' % (T(2), T(2), T(1)))
    o += srd_ins(S_A3, P_WS, T(2), 18 * 288)
    a('s_mul_i32 %s, %s, 288' % (T(2), T(9)))
    a('s_add_u32 %s, %s, %s' % (T(2), T(2), T(1)))
    a('s_add_u32 %s, %s, %d' % (T(2), T(2), 1152 * 288))
    a('s_mul_i32 %s, %s, 288' % (T(3), T(7)))
    o += srd_ins(S_A4, P_WS, T(2), T(3))
    a('s_mov_b32 %s, 0' % sr(S_RO))
    a('s_and_b32 %s, s2, 3' % sr(S_SP))
    a('s_and_b32 %s, s2, 4' % T(0))
    a('s_lshr_b32 %s, s2, 6' % T(1))
    a('s_add_u32 %s, %s, %s' % (T(0), T(0), T(1)))
    a('s_lshl_b32 %s, %s, 3' % (T(0), T(0)))
    a('s_bfe_u32 %s, s2, 0x30003' % T(1))
    a('s_add_u32 %s, %s, %s' % (sr(S_TILE), T(0), T(1)))
    a('s_lshl_b32 %s, %s, 13' % (sr(S_FGR), sr(S_SP)))
    a('s_and_b32 %s, %s, 1' % (T(3), sr(S_SP)))
    a('s_lshl_b32 %s, %s, 1' % (T(3), T(3)))
    a('s_lshl_b32 %s, %s, 3' % (T(6), sr(S_SP)))
    a('s_add_u32 %s, %s, %s' % (T(6), T(6), T(3)))
    a('s_lshl_b32 %s, %s, 2' % (T(0), sr(S_SP)))
    a('s_and_b32 %s, %s, 3' % (T(1), sr(S_TILE)))
    a('s_add_u32 %s, %s, %s' % (T(1), T(0), T(1)))
    a('s_mul_i32 %s, %s, %d' % (T(1), T(1), WBLK))
    a('s_add_u32 %s, %s, %s' % (T(1), T(1), sr(S_M1)))
    a('s_add_u32 %s, %s, 0x%x' % (T(1), T(1), WS_W))
    o += srd_ins(S_DW2, P_WS, T(1), 18 * 36864 + 9216)
    a('s_lshr_b32 %s, %s, 2' % (T(4), sr(S_TILE)))
    a('s_lshl_b32 %s, %s, 2' % (T(5), T(4)))
    a('s_add_u32 %s, %s, %s' % (T(5), T(5), sr(S_W)))
    a('s_mul_i32 %s, %s, %d' % (T(2), T(5), 2 * HS()))
    a('s_mul_i32 %s, %s, %d' % (T(3), sr(S_SP), 36 * 1024))
    a('s_add_u32 %s, %s, %s' % (T(2), T(2), T(3)))
    a('s_add_u32 %s, %s, 0x%x' % (T(2), T(2), WS_H))
    o += srd_ins(S_DH, P_WS, T(2), HS() + 36 * 1024)
    a('s_mul_i32 %s, %s, %d' % (T(2), T(5), 2 * OS()))
    a('s_lshl_b32 %s, %s, 12' % (T(3), T(6)))
    a('s_add_u32 %s, %s, %s' % (T(2), T(2), T(3)))
    a('s_add_u32 %s, %s, 0x%x' % (T(2), T(2), WS_O))
    o += srd_ins(S_DO, P_WS, T(2), OS() + 40 * 1024)
    return o


def d_scalar_setup2():
    o = []
    a = lambda s: o.append(Ins(s))
    a('s_lshl_b32 %s, %s, 2' % (T(2), sr(S_TILE)))
    a('s_add_u32 %s, %s, %s' % (T(2), T(2), sr(S_SP)))
    a('s_lshl_b32 %s, %s, 7' % (sr(S_FT), T(2)))
    a('s_add_u32 %s, %s, 0x10000' % (sr(S_FT), sr(S_FT)))
    a('s_lshl_b32 %s, %s, 2' % (T(2), T(2)))
    a('s_add_u32 %s, %s, %s' % (T(2), T(2), sr(S_W)))
    a('s_mul_i32 %s, %s, 9216' % (T(2), T(2)))
    a('s_add_u32 %s, %s, 0x%x' % (T(2), T(2), WS_P))
    o += srd_ins(S_DP, P_WS, T(2), PG + 9216)
    a('s_lshl_b32 %s, %s, 4' % (T(2), sr(S_TILE)))
    a('s_add_u32 %s, %s, %s' % (T(2), T(2), sr(S_SP)))
    a('s_mul_i32 %s, %s, 9216' % (T(2), T(2)))
    a('s_lshl_b32 %s, %s, 10' % (T(3), sr(S_W)))
    a('s_add_u32 %s, %s, %s' % (T(2), T(2), T(3)))
    a('s_add_u32 %s, %s, 0x%x' % (T(2), T(2), WS_P))
    o += srd_ins(S_DR, P_WS, T(2), PG + 14 * 9216)
    a('s_and_b32 %s, %s, 3' % (T(1), sr(S_TILE)))
    a('s_mul_i32 %s, %s, 288' % (T(1), T(1)))
    a('s_andn2_b32 %s, %s, 3' % (T(2), sr(S_TILE)))
    a('s_add_u32 %s, %s, %s' % (T(2), T(2), sr(S_SP)))
    a('s_mul_i32 %s, %s, %d' % (T(2), T(2), 32 * 1152))
    a('s_add_u32 %s, %s, %s' % (T(2), T(2), T(1)))
    o += srd_ins(S_DX, P_X, T(2), 31 * 1152 + 288)
    o += srd_ins(S_DOUT, P_OUT, T(2), 31 * 1152 + 288)
    a('s_lshl_b32 %s, %s, 28' % (sr(S_OFFQ), sr(S_W)))
    a('s_mov_b32 %s, 0x%x' % (sr(S_C), f2u(LOG2E * LOG2E)))
    a('s_mul_i32 %s, %s, %d' % (sr(S_HS), sr(S_W), 4 * OS()))
    for qb in range(1, 4):
        a('s_add_u32 %s, %s, 0x%x' % (sr(S_HS + qb), sr(S_HS), qb * OS()))
    a('s_lshl_b32 %s, %s, 5' % (sr(S_HS + 4), sr(S_W)))
    a('s_add_u32 %s, %s, %d' % (sr(S_HS + 5), sr(S_HS + 4), 16 * 1152))
    a('s_lshl_b32 %s, %s, 20' % (sr(S_HS + 6), sr(S_W)))
    a('s_add_u32 %s, %s, %d' % (sr(S_HS + 7), sr(S_HS + 6), 16 * 1152))
    return o


V_RN, V_RV = 20, 21
V_RQ = (248, 36)


def repack_pat():
    return [Ins('v_mul_u32_u24 %s, 3641, %s' % (vr(V_RV), vr(V_RN))),
            Ins('v_lshrrev_b32 %s, 16, %s' % (vr(V_RV), vr(V_RV))),
            Ins('v_mul_u32_u24 %s, 864, %s' % (vr(V_RV), vr(V_RV))),
            Ins('v_lshl_add_u32 %s, %s, 4, %s' % (vr(V_RV), vr(V_RN), vr(V_RV))),
            Ins('v_add_u32 %s, 64, %s' % (vr(V_RN), vr(V_RN)))]


def o_epilogue_unit(qb, t, n, ready):
    base = 184 + (n % 4) * 12
    o = []
    for r in range(8):
        o.append(Ins('v_accvgpr_read_b32 %s, %s' % (vr(base + r), ar(A_O + ((2 * t + r // 4) * 4 + qb) * 4 + r % 4))))
    for r in range(8):
        o.append(Ins('v_mul_f32 %s, %s, %s' % (vr(base + r), vr(base + r), vr(V_L + qb))))
    for r in range(4):
        o.append(Ins('v_cvt_pk_bf16_f32 %s, %s, %s' % (vr(base + 8 + r), vr(base + 2 * r), vr(base + 2 * r + 1))))
    o.append(Ins('buffer_store_dwordx4 %s, %s, %s, %s offen offset:%d%s' % (
        vr(base + 8, 4), vr(V_L16), sr(S_O, 4), sr(S_HS + qb), t * 1024, '' if OPT.get('plain_o', 0) else ' sc1'), lds=('O', 0)))
    o[0].ready = ready
    return o


def ln_parts(B=64):
    v = lambda k, n=1: vr(B + k, n)
    A, Ld, C, St = [], [], [], []
    a = lambda t: A.append(Ins(t))
    a('s_lshl_b32 s3, %s, 5' % sr(S_QT))
    a('s_add_u32 s3, s3, %s' % sr(S_HD))
    a('s_lshl_b32 s3, s3, 3')
    a('v_lshrrev_b32 %s, 5, v0' % v(1))
    a('v_add_u32 %s, s3, %s' % (v(1), v(1)))
    a('v_and_b32 %s, 31, v0' % v(2))
    a('v_lshrrev_b32 %s, 2, %s' % (v(3), v(2)))
    a('v_and_b32 %s, 3, %s' % (v(4), v(2)))
    a('v_mul_u32_u24 %s, 1152, %s' % (v(5), v(1)))
    a('v_lshl_add_u32 %s, %s, 6, %s' % (v(5), v(3), v(5)))
    a('v_lshl_add_u32 %s, %s, 3, %s' % (v(5), v(4), v(5)))
    for r in range(16, 20):
        a('v_mov_b32 %s, 0' % v(r))
    msk = lambda: [Ins('v_cmp_gt_u32 vcc, 8, %s' % v(2)), Ins('s_mov_b64 exec, vcc')]
    Ld += srd_ins(S_O, P_X, None, 2048 * 1152)
    for it in range(3):
        if it == 2:
            Ld += msk()
        Ld.append(Ins('buffer_load_dwordx2 %s, %s, %s, 0 offen offset:%d' % (v(8 + 4 * it, 2), v(5), sr(S_O, 4), it * 512)))
        Ld.append(Ins('buffer_load_dwordx2 %s, %s, %s, 0 offen offset:%d' % (v(10 + 4 * it, 2), v(5), sr(S_O, 4), it * 512 + 32)))
    Ld.append(Ins('s_mov_b64 exec, -1'))
    c = lambda t: C.append(Ins(t))
    c('v_lshrrev_b32 %s, 4, %s' % (v(6), v(1)))
    c('v_mul_u32_u24 %s, 18, %s' % (v(6), v(6)))
    c('v_add_u32 %s, %s, %s' % (v(6), v(6), v(3)))
    c('v_lshlrev_b32 %s, 10, %s' % (v(6), v(6)))
    c('v_lshl_add_u32 %s, %s, 8, %s' % (v(6), v(4), v(6)))
    c('v_and_b32 %s, 15, %s' % (v(7), v(1)))
    c('v_lshl_add_u32 %s, %s, 4, %s' % (v(6), v(7), v(6)))
    for d in range(12):
        c('v_lshlrev_b32 %s, 16, %s' % (v(20 + 2 * d), v(8 + d)))
        c('v_and_b32 %s, 0xffff0000, %s' % (v(21 + 2 * d), v(8 + d)))

    def reduce32(x, t):
        for k in (8, 4, 2, 1):
            c('v_add_f32_dpp %s, %s, %s row_ror:%d row_mask:0xf bank_mask:0xf' % (x, x, x, k))
        c('v_mov_b32 %s, %s' % (t, x))
        c('v_permlane16_swap_b32 %s, %s' % (x, t))
        c('v_add_f32 %s, %s, %s' % (x, x, t))
    c('v_add_f32 %s, %s, %s' % (v(44), v(20), v(21)))
    c('v_add_f32 %s, %s, %s' % (v(45), v(22), v(23)))
    for e in range(4, 24, 2):
        c('v_add_f32 %s, %s, %s' % (v(44), v(44), v(20 + e)))
        c('v_add_f32 %s, %s, %s' % (v(45), v(45), v(21 + e)))
    c('v_add_f32 %s, %s, %s' % (v(44), v(44), v(45)))
    reduce32(v(44), v(45))
    c('v_mul_f32 %s, 0x%x, %s' % (v(44), f2u(1.0 / 576), v(44)))
    c('v_mov_b32 %s, 0' % v(46))
    c('v_mov_b32 %s, 0' % v(47))
    for e in range(24):
        if e == 16:
            C += msk()
        c('v_sub_f32 %s, %s, %s' % (v(48), v(20 + e), v(44)))
        c('v_fmac_f32 %s, %s, %s' % (v(46 + e % 2), v(48), v(48)))
    c('s_mov_b64 exec, -1')
    c('v_add_f32 %s, %s, %s' % (v(46), v(46), v(47)))
    reduce32(v(46), v(45))
    c('v_mul_f32 %s, 0x%x, %s' % (v(46), f2u(1.0 / 576), v(46)))

    def rnd(x):
        c('v_cvt_pk_bf16_f32 %s, %s, %s' % (x, x, x))
        c('v_lshlrev_b32 %s, 16, %s' % (x, x))
    rnd(v(44))
    rnd(v(46))
    c('v_add_f32 %s, 0x%x, %s' % (v(46), f2u(1e-5), v(46)))
    rnd(v(46))
    c('v_sqrt_f32 %s, %s' % (v(46), v(46)))
    rnd(v(46))
    c('v_rcp_f32 %s, %s' % (v(46), v(46)))
    if OPT.get('fold', 0):
        c('v_mul_f32 %s, 0x%x, %s' % (v(46), f2u(-LOG2E), v(46)))
    C += srd_ins(S_XN, P_WS, None, 2048 * 1152)
    c('s_mov_b32 %s, 8192' % T(0))
    c('s_mov_b32 %s, 16384' % T(1))
    for d in range(12):
        x, y = v(20 + 2 * d), v(21 + 2 * d)
        c('v_sub_f32 %s, %s, %s' % (x, x, v(44)))
        c('v_sub_f32 %s, %s, %s' % (y, y, v(44)))
        c('v_cvt_pk_bf16_f32 %s, %s, %s' % (v(8 + d), x, y))
        c('v_lshlrev_b32 %s, 16, %s' % (x, v(8 + d)))
        c('v_and_b32 %s, 0xffff0000, %s' % (y, v(8 + d)))
        c('v_mul_f32 %s, %s, %s' % (x, x, v(46)))
        c('v_mul_f32 %s, %s, %s' % (y, y, v(46)))
        c('v_cvt_pk_bf16_f32 %s, %s, %s' % (v(8 + d), x, y))
        if d % 4 == 3:
            if d == 11:
                C += msk()
            C.append(Ins('buffer_store_dwordx4 %s, %s, %s, %s offen sc1' % (
                v(5 + d, 4), v(6), sr(S_XN, 4), ('0', T(0), T(1))[d // 4]), lds=('XN', 0)))
    c('s_mov_b64 exec, -1')
    return A, Ld, C


def gen_start_roles(diag):
    B = 64
    v = lambda k, n=1: vr(B + k, n)
    p = Prog()
    p('s_cmp_ge_u32 %s, 2' % sr(S_W))
    p('s_cbranch_scc1 L_role_b')
    p('s_lshl_b32 s3, %s, 5' % sr(S_QT))
    p('s_add_u32 s3, s3, %s' % sr(S_HD))
    p('s_lshl_b32 %s, s3, 3' % T(0))
    p('v_lshrrev_b32 %s, 4, v0' % v(1))
    p('v_add_u32 %s, %s, %s' % (v(1), T(0), v(1)))
    p('v_and_b32 %s, 15, v0' % v(2))
    p('v_lshrrev_b32 %s, 2, %s' % (v(3), v(2)))
    p('v_and_b32 %s, 3, %s' % (v(4), v(2)))
    p('v_mul_u32_u24 %s, 1152, %s' % (v(5), v(1)))
    p('v_lshl_add_u32 %s, %s, 6, %s' % (v(5), v(3), v(5)))
    p('v_lshl_add_u32 %s, %s, 3, %s' % (v(5), v(4), v(5)))
    for r in range(24, 28):
        p('v_mov_b32 %s, 0' % v(r))
    p('v_cmp_gt_u32 vcc, 8, %s' % v(2))
    p('v_or_b32 %s, s2, v0' % v(80))
    p('v_min_u32 %s, 1, %s' % (v(80), v(80)))
    p('v_lshlrev_b32 %s, 20, %s' % (v(80), v(80)))
    p('s_mov_b64 s[26:27], vcc')
    p('s_waitcnt lgkmcnt(0)')
    make_srd(p, S_O, P_X, None, 2048 * 1152)
    for it in range(5):
        if it == 4:
            p('s_mov_b64 exec, s[26:27]')
        p('buffer_load_dwordx2 %s, %s, %s, 0 offen offset:%d' % (v(8 + 4 * it, 2), v(5), sr(S_O, 4), it * 256))
        p('buffer_load_dwordx2 %s, %s, %s, 0 offen offset:%d' % (v(10 + 4 * it, 2), v(5), sr(S_O, 4), it * 256 + 32))
    p('s_mov_b64 exec, -1')
    make_srd(p, S_WQ, 50, None, 256)
    p('s_or_b32 %s, s24, 1' % T(1))
    p('v_mov_b32 %s, %s' % (v(81), T(1)))
    p('buffer_store_dword %s, %s, %s, 0 offen sc1' % (v(81), v(80), sr(S_WQ, 4)))
    p('v_lshrrev_b32 %s, 4, %s' % (v(6), v(1)))
    p('v_mul_u32_u24 %s, 18, %s' % (v(6), v(6)))
    p('v_add_u32 %s, %s, %s' % (v(6), v(6), v(3)))
    p('v_lshlrev_b32 %s, 10, %s' % (v(6), v(6)))
    p('v_lshl_add_u32 %s, %s, 8, %s' % (v(6), v(4), v(6)))
    p('v_and_b32 %s, 15, %s' % (v(7), v(1)))
    p('v_lshl_add_u32 %s, %s, 4, %s' % (v(6), v(7), v(6)))
    make_srd(p, S_XN, P_WS, None, 2048 * 1152)
    p('s_mov_b32 %s, 0x%x' % (T(3), WS_F + 4 * 32768))
    make_srd(p, S_FL, P_WS, T(3), 65536)
    p('s_lshl_b32 %s, %s, 13' % (T(2), sr(S_QT)))
    p('s_lshl_b32 %s, s3, 1' % T(3))
    p('s_add_u32 %s, %s, %s' % (T(3), T(3), sr(S_W)))
    p('s_lshl_b32 %s, %s, 7' % (T(3), T(3)))
    p('v_lshlrev_b32 %s, 20, %s' % (v(82), L))
    p('v_lshlrev_b32 %s, 7, %s' % (v(83), L))
    p('v_mov_b32 %s, 0' % v(84))
    for k in range(1, 5):
        p('s_mov_b32 %s, %d' % (T(3 + k), 4096 * k))
    F = 30
    for d in range(20):
        p('v_lshlrev_b32 %s, 16, %s' % (v(F + 2 * d), v(8 + d)))
        p('v_and_b32 %s, 0xffff0000, %s' % (v(F + 1 + 2 * d), v(8 + d)))
    p('buffer_load_dword %s, %s, %s, 0 offen sc1' % (v(85), v(84), sr(S_WQ, 4)))
    m, m2, q, q2, t = v(70), v(71), v(72), v(73), v(74)

    def reduce16(x):
        for k in (8, 4, 2, 1):
            p('v_add_f32_dpp %s, %s, %s row_ror:%d row_mask:0xf bank_mask:0xf' % (x, x, x, k))
    p('v_add_f32 %s, %s, %s' % (m, v(F), v(F + 1)))
    p('v_add_f32 %s, %s, %s' % (m2, v(F + 2), v(F + 3)))
    for e in range(4, 40, 2):
        p('v_add_f32 %s, %s, %s' % (m, m, v(F + e)))
        p('v_add_f32 %s, %s, %s' % (m2, m2, v(F + e + 1)))
    p('v_add_f32 %s, %s, %s' % (m, m, m2))
    reduce16(m)
    p('v_mul_f32 %s, 0x%x, %s' % (m, f2u(1.0 / 576), m))
    p('v_mov_b32 %s, 0' % q)
    p('v_mov_b32 %s, 0' % q2)
    for e in range(40):
        if e == 32:
            p('s_mov_b64 exec, s[26:27]')
        p('v_sub_f32 %s, %s, %s' % (t, v(F + e), m))
        p('v_fmac_f32 %s, %s, %s' % ((q, q2)[e % 2], t, t))
    p('s_mov_b64 exec, -1')
    p('v_add_f32 %s, %s, %s' % (q, q, q2))
    reduce16(q)
    p('v_mul_f32 %s, 0x%x, %s' % (q, f2u(1.0 / 576), q))

    def rnd(x):
        p('v_cvt_pk_bf16_f32 %s, %s, %s' % (x, x, x))
        p('v_lshlrev_b32 %s, 16, %s' % (x, x))
    rnd(m)
    rnd(q)
    p('v_add_f32 %s, 0x%x, %s' % (q, f2u(1e-5), q))
    rnd(q)
    p('v_sqrt_f32 %s, %s' % (q, q))
    rnd(q)
    p('v_rcp_f32 %s, %s' % (q, q))
    for d in range(20):
        x, y = v(F + 2 * d), v(F + 1 + 2 * d)
        p('v_sub_f32 %s, %s, %s' % (x, x, m))
        p('v_sub_f32 %s, %s, %s' % (y, y, m))
        p('v_cvt_pk_bf16_f32 %s, %s, %s' % (v(8 + d), x, y))
        p('v_lshlrev_b32 %s, 16, %s' % (x, v(8 + d)))
        p('v_and_b32 %s, 0xffff0000, %s' % (y, v(8 + d)))
        p('v_mul_f32 %s, %s, %s' % (x, x, q))
        p('v_mul_f32 %s, %s, %s' % (y, y, q))
        p('v_cvt_pk_bf16_f32 %s, %s, %s' % (v(8 + d), x, y))
        if d % 4 == 3:
            if d == 19:
                p('s_mov_b64 exec, s[26:27]')
            p('buffer_store_dwordx4 %s, %s, %s, %s offen sc1' % (v(5 + d, 4), v(6), sr(S_XN, 4), '0' if d == 3 else T(3 + d // 4)))
    p('s_mov_b64 exec, -1')
    p('s_mov_b32 s3, 0')
    p.label('L_ep_l')
    p('s_memrealtime s[24:25]')
    p('s_waitcnt vmcnt(0) lgkmcnt(0)')
    p('v_readfirstlane_b32 %s, %s' % (T(0), v(85)))
    p('s_add_u32 %s, s24, 100' % T(1))
    p('s_sub_u32 %s, %s, %s' % (T(1), T(1), T(0)))
    p('s_bitcmp0_b32 %s, 0' % T(0))
    p('s_cselect_b32 %s, -1, %s' % (T(1), T(1)))
    p('s_cmp_lt_u32 %s, 5100' % T(1))
    p('s_cbranch_scc1 L_ep_ok')
    p('s_and_b32 %s, %s, 1' % (T(0), T(0)))
    p('s_mul_i32 %s, %s, 127' % (T(0), T(0)))
    p('s_add_u32 s3, s3, %s' % T(0))
    p('s_add_u32 s3, s3, 1')
    p('s_cmp_gt_u32 s3, 0x40000')
    p('s_cbranch_scc1 L_ep_ok')
    p('buffer_load_dword %s, %s, %s, 0 offen sc1' % (v(85), v(84), sr(S_WQ, 4)))
    p('s_branch L_ep_l')
    p.label('L_ep_ok')
    p('buffer_store_dword %s, %s, %s, %s offen sc1' % (v(85), v(82), sr(S_FL, 4), T(3)))
    p('v_mov_b32 %s, 163836' % v(84))
    p('ds_write_b32 %s, %s' % (v(84), v(85)))
    p('s_mov_b32 %s, %s' % (sr(S_CNT), T(2)))
    p('s_branch L_join')
    SPIN_BLOCKS.append("""L_lnp:
 s_mov_b32 s3, 0
L_lnp_l:
 buffer_load_dword %s, %s, %s, %s offen sc1
 s_add_u32 s3, s3, 1
 s_cmp_gt_u32 s3, 0x40000
 s_cbranch_scc1 L_lnp_ok
 s_waitcnt vmcnt(0)
 v_cmp_ne_u32 vcc, %s, %s
 s_cbranch_vccnz L_lnp_l
 s_branch L_lnp_ok""" % (v(86), v(83), sr(S_FL, 4), sr(S_CNT), v(85), v(86)))
    p.label('L_role_b')
    ct = code_touch('L_join', B + 90, B + 89, S_O)
    ct[2] = Ins('s_lshl_b32 s3, s3, 12')
    ct[3] = Ins('v_and_b32 %s, 31, %s' % (v(90), L))
    for x in ct:
        p.add(x)
    R0 = OPT.get('pf0', 12)
    p('s_lshr_b32 %s, s2, 3' % T(0))
    p('s_mul_i32 %s, %s, %d' % (T(0), T(0), R0 * 9216))
    if OPT.get('map', 1):
        p('s_and_b32 %s, s2, 7' % T(1))
        p('s_mul_i32 %s, %s, 1152' % (T(1), T(1)))
        p('s_add_u32 %s, %s, %s' % (T(0), T(0), T(1)))
        p('s_waitcnt lgkmcnt(0)')
        p('s_cmp_eq_u32 %s, 3' % sr(S_W))
        p('s_cselect_b32 %s, s46, s44' % sr(S_H))
        p('s_cselect_b32 %s, s47, s45' % sr(S_H + 1))
        make_srd(p, S_H, S_H, T(0), (R0 - 1) * 9216 + 1152)
        for k in range((R0 * 9 + 63) // 64):
            p('v_add_u32 %s, %d, %s' % (v(92), 64 * k, L))
            p('v_mul_u32_u24 %s, 7282, %s' % (v(93), v(92)))
            p('v_lshrrev_b32 %s, 16, %s' % (v(93), v(93)))
            p('v_mul_u32_u24 %s, %d, %s' % (v(93), 9216 - 1152, v(93)))
            p('v_lshl_add_u32 %s, %s, 7, %s' % (v(93), v(92), v(93)))
            p('buffer_load_dword %s, %s, %s, 0 offen' % (v(95 + k), v(93), sr(S_H, 4)))
    else:
        p('s_and_b32 %s, s2, 3' % T(1))
        p('s_mul_i32 %s, %s, 2304' % (T(1), T(1)))
        p('s_add_u32 %s, %s, %s' % (T(0), T(0), T(1)))
        p('s_waitcnt lgkmcnt(0)')
        both = OPT.get('pfh', 1) == 0
        if both:
            p('s_cmp_eq_u32 %s, 3' % sr(S_W))
        else:
            p('s_bitcmp1_b32 s2, 2')
        p('s_cselect_b32 %s, s46, s44' % sr(S_H))
        p('s_cselect_b32 %s, s47, s45' % sr(S_H + 1))
        make_srd(p, S_H, S_H, T(0), (R0 - 1) * 9216 + 2304)
        for k in range(4 if both else 2):
            o = [Ins('v_add_u32 %s, %d, %s' % (v(92), 64 * k, L)) if both else Ins('v_add_u32 %s, %d, v0' % (v(92), 128 * k - 128))]
            div18(o, v(92), v(93), v(94))
            for x in o:
                p.add(x)
            p('v_mul_u32_u24 %s, 9216, %s' % (v(93), v(93)))
            p('v_lshl_add_u32 %s, %s, 7, %s' % (v(93), v(94), v(93)))
            p('buffer_load_dword %s, %s, %s, 0 offen' % (v(95 + k), v(93), sr(S_H, 4)))
    p('s_mov_b32 %s, 0x%x' % (T(3), WS_F + 4 * 32768))
    make_srd(p, S_FL, P_WS, T(3), 65536)
    p('v_lshlrev_b32 %s, 7, %s' % (v(83), L))
    p('s_mov_b32 %s, 0' % sr(S_CNT))
    p.label('L_join')
    p.finalize()
    return p.text().rstrip('\n')


def gen_slow_softmax():
    p = Prog()
    KA, VA, OK, OV, NM, MX = 120, 124, 132, 136, 140, 138
    NM = 44
    NM, OV, MX = 136, 32, 36
    p.label('L_slow')
    p('s_waitcnt vmcnt(0) lgkmcnt(0)')
    p('s_nop 15')
    p('s_add_u32 %s, %s, %d' % (T(0), sr(S_MK), 112 * 1024))
    p('s_cmp_eq_u32 %s, 3' % sr(S_W))
    p('s_cselect_b32 %s, %d, %s' % (T(0), 72 * 1024, T(0)))
    p('s_sub_u32 %s, %s, 0x10000' % (T(1), T(0)))
    for k in range(4):
        p('v_add_u32 %s, %s, %s' % (vr(KA + k), T(0), vr(V_KA + k)))
        p('v_subrev_u32 %s, %s, %s' % (vr(OK + k), sr(S_MK), vr(V_OK + k)))
    for k in range(8):
        p('v_add_u32 %s, %s, %s' % (vr(VA + k), T(1), vr(V_VA + k)))
    for k in range(2):
        p('v_subrev_u32 %s, %s, %s' % (vr(OV + k), sr(S_MK), vr(V_OV + k)))

    def load16(srd, vo, nvo):
        p('s_mov_b32 m0, %s' % T(0))
        for cc in range(4):
            p('buffer_load_dwordx4 %s, %s, %s offen offset:%d lds' % (vr(vo + cc % nvo), sr(srd, 4), T(2), cc * 1024))
        p('s_add_u32 %s, %s, 4096' % (T(2), T(2)))
        p('s_waitcnt vmcnt(0)')

    def qk(cin):
        p('s_mov_b32 %s, %s' % (T(2), T(3)))
        for kb in range(4):
            load16(S_K, OK, 4)
            for sx in range(4):
                p('ds_read_b128 %s, %s' % (ar(A_VF + (kb * 4 + sx) * 4, 4), vr(KA + sx)))
            p('s_waitcnt lgkmcnt(0)')
        for kb in range(4):
            for qb in range(4):
                for sx in range(4):
                    d = vr(Sreg(kb, qb), 4)
                    p('%s %s, %s, %s, %s' % (MF, d, ar(A_VF + (kb * 4 + sx) * 4, 4), vr(V_Q + (qb * 4 + sx) * 4, 4),
                                             cin(qb) if sx == 0 else d))
    for qb in range(4):
        p('v_mov_b32 %s, 0xff7fffff' % vr(MX + qb))
    p('s_mov_b32 %s, 0' % T(3))
    p.loop_begin(2, 's1')
    p.label('L_slow1')
    qk(lambda qb: '0')
    for qb in range(4):
        regs = [vr(Sreg(kb, qb) + r) for kb in range(4) for r in range(4)]
        for k in range(8):
            p('v_max3_f32 %s, %s, %s, %s' % (vr(MX + qb), vr(MX + qb), regs[2 * k], regs[2 * k + 1]))
    p('s_add_u32 %s, %s, 16384' % (T(3), T(3)))
    p('s_cmp_lt_u32 %s, 0x80000' % T(3))
    p('s_cbranch_scc1 L_slow1')
    p.loop_end()
    for x in xlane4('v_max_f32', [vr(MX + k) for k in range(4)], [vr(V_E + k) for k in range(4)]):
        p.add(x)
    for qb in range(4):
        for r in range(4):
            p('v_sub_f32 %s, 0, %s' % (vr(NM + qb * 4 + r), vr(MX + qb)))
        p('v_mov_b32 %s, 0' % vr(V_L + qb))
    for i in range(128):
        p('v_accvgpr_write_b32 %s, 0' % ar(A_O + i))
    p('s_mov_b32 %s, 0' % T(3))
    lp = p.loop_begin(3, 's2')
    p.label('L_slow2')
    qk(lambda qb: vr(NM + qb * 4, 4))
    for i in range(64):
        for x in sm_instrs(1, i):
            if x is not None:
                p.add(x)
    p('s_cmp_eq_u32 %s, 0x7c000' % T(3))
    p('s_cbranch_scc1 L_slow_done')
    p.loop_mark_exit(lp)
    p('s_mov_b32 %s, %s' % (T(2), T(3)))
    for ks in range(2):
        for j in range(2):
            load16(S_V, OV, 2)
            for db in range(8):
                p('ds_read_b64_tr_b16 %s, %s' % (ar(A_VF + db * 8 + ks * 4 + 2 * j, 2), vr(VA + db)))
            p('s_waitcnt lgkmcnt(0)')
    for db in range(8):
        for qb in range(4):
            for ks in range(2):
                o = ar(A_O + (db * 4 + qb) * 4, 4)
                p('%s %s, %s, %s, %s' % (MF, o, ar(A_VF + db * 8 + ks * 4, 4), vr(Preg(1, qb, ks), 4), o))
    p('s_add_u32 %s, %s, 16384' % (T(3), T(3)))
    p('s_branch L_slow2')
    p.loop_end()
    p.label('L_slow_done')
    for db in range(4):
        for ks in range(2):
            for j in range(2):
                x = v_load(31, db, ks, j, False)
                x.lds = None
                p.add(x)
    p('s_waitcnt vmcnt(0) lgkmcnt(0)')
    p('s_nop 15')
    p('s_branch L_slow_ret')
    p.finalize()
    return p.text().rstrip('\n')


def gen_main(diag=False):
    p = Prog()
    del SPIN_BLOCKS[:]
    _ct[0] = 0

    def stamp(k):
        if diag:
            p('s_memtime %s' % sr(S_DG, 2))
            p('s_waitcnt lgkmcnt(0)')
            p('v_writelane_b32 v1, %s, %d' % (sr(S_DG), k))
            p('s_memrealtime %s' % sr(S_DG, 2))
            p('s_waitcnt lgkmcnt(0)')
            p('v_writelane_b32 v1, %s, %d' % (sr(S_DG), k + 16))

    def addall(lst):
        for x in lst:
            p.add(x)

    def rstamp(k):
        if diag and OPT.get('sst'):
            p('s_memrealtime %s' % sr(S_DG, 2))
            p('s_waitcnt lgkmcnt(0)')
            p('v_writelane_b32 v1, %s, %d' % (sr(S_DG), 32 + k))
    p('s_cmp_ge_u32 s2, 256')
    p('s_cbranch_scc1 L_end')
    p('s_load_dwordx4 s[44:47], s[0:1], 48')
    p('s_load_dwordx2 %s, s[0:1], 88' % sr(P_WS, 2))
    p('s_load_dwordx4 s[36:39], s[0:1], 8')
    p('s_load_dwordx2 s[40:41], s[0:1], 24')
    p('s_load_dwordx2 %s, s[0:1], 0' % sr(P_X, 2))
    p('s_load_dwordx2 %s, s[0:1], 32' % sr(P_WO, 2))
    p('s_load_dwordx4 %s, s[0:1], 64' % sr(P_W2, 4))
    FU = OPT.get('fuse', 2)
    if FU:
        p('s_load_dwordx2 s[50:51], s[0:1], 80')
    stamp(0)
    p('v_and_b32 %s, 63, v0' % L)
    p('v_lshrrev_b32 %s, 6, v0' % t0)
    p('v_readfirstlane_b32 %s, %s' % (sr(S_W), t0))
    if OPT.get('map', 1):
        p('s_and_b32 %s, s2, 7' % T(0))
        p('s_lshl_b32 %s, %s, 2' % (T(0), T(0)))
        p('s_bfe_u32 %s, s2, 0x20003' % T(1))
        p('s_add_u32 %s, %s, %s' % (sr(S_HD), T(0), T(1)))
        p('s_lshr_b32 %s, s2, 5' % sr(S_QT))
    else:
        p('s_and_b32 %s, s2, 3' % T(0))
        p('s_lshl_b32 %s, %s, 3' % (T(0), T(0)))
        p('s_bfe_u32 %s, s2, 0x30003' % T(1))
        p('s_add_u32 %s, %s, %s' % (sr(S_HD), T(0), T(1)))
        p('s_and_b32 %s, s2, 4' % T(0))
        p('s_lshr_b32 %s, s2, 6' % T(1))
        p('s_add_u32 %s, %s, %s' % (sr(S_QT), T(0), T(1)))
    if FU == 2:
        p('s_memrealtime s[24:25]')
        p('s_nop 4')
        p.raw(gen_start_roles(diag))
        rstamp(0)
    if FU == 1:
        lnA, lnL, lnC = ln_parts()
        ct = code_touch('L_start', 120, 119, S_FL)
        ct[2] = Ins('s_lshl_b32 s3, s3, 12')
        ct[3] = Ins('v_and_b32 v120, 31, %s' % L)
        addall(ct)
        p.label('L_start')
        addall(lnA)
        p('s_memrealtime s[24:25]')
        p('v_or_b32 v125, s2, v0')
        p('v_min_u32 v125, 1, v125')
        p('v_lshlrev_b32 v125, 20, v125')
        p('s_waitcnt lgkmcnt(0)')
        make_srd(p, S_WQ, 50, None, 256)
        p('s_or_b32 s3, s24, 1')
        p('v_mov_b32 v126, s3')
        p('buffer_store_dword v126, v125, %s, 0 offen sc1' % sr(S_WQ, 4))
        addall(lnL)
        rstamp(0)
    p('v_lshlrev_b32 %s, 4, %s' % (vr(V_L16), L))
    p('s_and_b32 %s, %s, 1' % (T(2), sr(S_HD)))
    p('s_lshl_b32 %s, %s, 1' % (T(2), T(2)))
    p('v_add_u32 %s, %s, %s' % (t3, T(2), L))
    p('v_mul_u32_u24 %s, 3641, %s' % (vr(V_T + 4), L))
    p('v_mul_u32_u24 %s, 3641, %s' % (vr(V_T + 5), t3))
    p('s_movk_i32 %s, 9216' % T(9))
    p('s_movk_i32 %s, -288' % T(10))
    vo = []
    for i in range(9):
        o = []
        o.append(Ins('v_add_u32 %s, %d, %s' % (t0, 64 * i * 3641, vr(V_T + 4))))
        o.append(Ins('v_add_u32 %s, %d, %s' % (t1, 64 * i * 3641, vr(V_T + 5))))
        o.append(Ins('v_lshrrev_b32 %s, 16, %s' % (t0, t0)))
        o.append(Ins('v_lshrrev_b32 %s, 16, %s' % (t1, t1)))
        o.append(Ins('v_lshlrev_b32 %s, 4, %s' % (t2, t3)) if i == 0 else Ins('v_add_u32 %s, %d, %s' % (t2, 4096 if i % 4 == 0 else 0, t2)))
        o.append(Ins('v_mad_u32_u24 %s, %s, %s, %s' % (t0, t0, T(9), t2)))
        o.append(Ins('v_mad_i32_i24 %s, %s, %s, %s' % (vr(V_OW + i), t1, T(10), t0)))
        if i % 4:
            del o[4]
        vo.append(o)
    for o in vo[:4]:
        addall(o)
    p('s_mul_i32 %s, %s, 9216' % (sr(S_M1), sr(S_W)))
    p('s_and_b32 %s, %s, 1' % (T(3), sr(S_W)))
    p('s_mul_i32 %s, %s, %d' % (sr(S_OFFW), T(3), 32 * 9216))
    p('s_mul_i32 %s, %s, 288' % (T(2), sr(S_HD)))
    p('s_sub_u32 %s, %d, %s' % (T(3), 576 * 9216, T(2)))
    p('s_lshl_b32 %s, %s, 2' % (T(6), sr(S_QT)))
    p('s_add_u32 %s, %s, %s' % (T(6), T(6), sr(S_W)))
    p('s_mul_i32 %s, %s, %d' % (T(7), T(6), 4 * 18 * 1024))
    p('s_cmp_lt_u32 %s, 2' % sr(S_W))
    p('s_waitcnt lgkmcnt(0)')
    p('s_cselect_b32 s48, s44, s46')
    p('s_cselect_b32 s49, s45, s47')
    make_srd(p, S_WS, 48, T(2), T(3))
    def ln_now():
        p('v_mov_b32 v127, 0')
        p('s_mov_b32 %s, 0' % sr(S_CNT))
        rstamp(1)
        p.wait_regs(vr(72, 12))
        p.add(poll_issue(S_CNT, 128, 127, S_WQ))
        rstamp(2)
        addall(lnC)
        rstamp(3)
        poll_check(p, 'ep', S_CNT, 'v_cmp_eq_u32 vcc, 0', 128, 127, S_WQ, sleep=2)
        p('v_readfirstlane_b32 %s, v128' % sr(S_EP))

    def w_touch0():
        R0 = OPT.get('pf0', 12)
        if not R0:
            return
        p('s_lshr_b32 %s, s2, 3' % T(0))
        p('s_mul_i32 %s, %s, %d' % (T(0), T(0), R0 * 9216))
        p('s_and_b32 %s, s2, 3' % T(1))
        p('s_mul_i32 %s, %s, 2304' % (T(1), T(1)))
        p('s_add_u32 %s, %s, %s' % (T(0), T(0), T(1)))
        p('s_bitcmp1_b32 s2, 2')
        p('s_cselect_b32 %s, s46, s44' % sr(S_H))
        p('s_cselect_b32 %s, s47, s45' % sr(S_H + 1))
        make_srd(p, S_H, S_H, T(0), (R0 - 1) * 9216 + 2304)
        o = []
        div18(o, 'v0', 'v122', 'v123')
        addall(o)
        p('v_mul_u32_u24 v122, 9216, v122')
        p('v_lshl_add_u32 v122, v123, 7, v122')
        p('buffer_load_dword v124, v122, %s, 0 offen' % sr(S_H, 4))
    ORD = OPT.get('ord', 1)
    if FU == 2:
        make_srd(p, S_XN, P_WS, T(7), 4 * 18 * 1024)
    elif FU:
        p('s_mov_b32 %s, %s' % (sr(S_RO), T(7)))
        if ORD >= 1:
            if ORD == 1:
                w_touch0()
            for o in vo[4:]:
                addall(o)
            vo = vo[:4]
            ln_now()
            if ORD == 2:
                w_touch0()
    else:
        make_srd(p, S_XN, P_WS, T(7), 4 * 18 * 1024)
    d0 = p1_dma(0)
    addall(d0[:6])
    for o in vo[4:]:
        addall(o)
    addall(d0[6:] + (xn_loads(0, 0) if not FU else []))
    if FU == 2:
        rstamp(1)
        p('s_cmp_eq_u32 %s, 0' % sr(S_W))
        p('s_cbranch_scc1 L_lnp')
        p.label('L_lnp_ok')
        p('s_waitcnt lgkmcnt(0)')
        p('s_barrier')
        rstamp(2)
        addall(xn_loads(0, 0))
        p('v_mov_b32 v64, 163836')
        p('ds_read_b32 v65, v64')
        p('v_readfirstlane_b32 %s, v65' % sr(S_EP))
    if FU == 1 and ORD == 0:
        w_touch0()
        ln_now()
    if OPT.get('pro', 1) == 0:
        addall(p1_dma(1) + xn_loads(1, 1) + p1_dma(2))
    PF0 = OPT.get('pf0', 12)
    assert PF0 % 2 == 0
    MP = OPT.get('map', 1)
    p('s_lshr_b32 %s, s2, 3' % T(0))
    p('s_and_b32 %s, s2, %d' % (T(1), 7 if MP else 3))
    p('s_lshl_b32 %s, %s, 1' % (T(2), T(0)))
    p('s_and_b32 %s, %s, 1' % (T(3), sr(S_W)))
    p('s_add_u32 %s, %s, %s' % (T(2), T(2), T(3)))
    p('s_mul_i32 %s, %s, 9216' % (T(2), T(2)))
    p('s_mul_i32 %s, %s, %d' % (T(3), T(1), 1152 if MP else 2304))
    p('s_add_u32 %s, %s, %s' % (T(2), T(2), T(3)))
    p('s_sub_u32 %s, %d, %s' % (T(9), 576 * 9216, T(2)))
    p('s_lshl_b32 %s, %s, 2' % (T(4), T(0)))
    p('s_add_u32 %s, %s, %s' % (T(4), T(4), sr(S_W)))
    p('s_lshl_b32 %s, %s, 13' % (T(4), T(4)))
    p('s_lshl_b32 %s, %s, %d' % (T(3), T(1), 10 if MP else 11))
    p('s_add_u32 %s, %s, %s' % (T(4), T(4), T(3)))
    p('s_sub_u32 %s, %d, %s' % (T(10), 576 * 8192, T(4)))
    p('s_lshl_b32 %s, %s, 19' % (T(5), sr(S_HD)))
    make_srd(p, S_K, 36, T(5), 0x80000)
    make_srd(p, S_V, 38, T(5), 0x80000)
    p('s_lshl_b32 %s, %s, 8' % (T(5), sr(S_HD)))
    p('s_sub_u32 %s, %d, %s' % (T(3), 576 * 8192, T(5)))
    make_srd(p, S_WQ, 40, T(5), T(3))
    make_srd(p, S_A1, 48, T(2), T(9))
    make_srd(p, S_A2, 40, T(4), T(10))
    p('v_lshlrev_b32 %s, 7, %s' % (t1, L))
    p('v_mov_b32 %s, 0x7f000000' % t2)
    p('v_cmp_gt_u32 vcc, %d, %s' % (9 if MP else 18, L))
    p('v_cndmask_b32 %s, %s, %s, vcc' % (vr(V_SW), t2, t1))
    p('v_cmp_gt_u32 vcc, %d, %s' % (8 if MP else 16, L))
    p('v_cndmask_b32 %s, %s, %s, vcc' % (vr(V_SW + 1), t2, t1))
    tw = lambda c: [Ins('s_mov_b32 %s, %d' % (T(7), c * 64 * 9216)),
                    Ins('buffer_load_dword %s, %s, %s, %s offen sc0' % (vr(V_SW + 2), vr(V_SW), sr(S_A1, 4), T(7)))]
    tq = lambda k: [Ins('s_mov_b32 %s, %d' % (T(7), k * 128 * 8192)),
                    Ins('buffer_load_dword %s, %s, %s, %s offen sc0' % (vr(V_SW + 3), vr(V_SW + 1), sr(S_A2, 4), T(7)))]
    touch = {c: [] for c in range(7)}
    for k, c in enumerate(range(PF0 // 2, 9)):
        touch[min(k, 6)] += tw(c)
    for k in range(5):
        touch[k + OPT.get('tq0', 0)] += tq(4 - k)
    for c in touch:
        for x in touch[c]:
            x.wr = [r for r in x.wr if r[0] != 'v']
    if not OPT.get('pf1', 1):
        touch = {}
    if OPT.get('fold', 0):
        p('s_mov_b32 %s, 0x%x' % (sr(S_C), f2u(-1.0 / 128 ** 0.5)))
        p('s_mov_b32 %s, 0x%x' % (sr(S_NL), f2u(-1.0 / LOG2E)))
    else:
        p('s_mov_b32 %s, 0x%x' % (sr(S_C), f2u(LOG2E / 128 ** 0.5)))
        p('s_mov_b32 %s, 0x%x' % (sr(S_NL), f2u(-LOG2E)))
    p('s_lshl_b32 %s, %s, 12' % (sr(S_MK), sr(S_W)))
    p('s_mov_b32 %s, 0' % sr(S_OFFK))
    p('s_mov_b32 %s, 0' % sr(S_OFFV))
    p('v_lshrrev_b32 %s, 2, %s' % (t0, L))
    p('v_mul_u32_u24 %s, 288, %s' % (t1, t0))
    p('v_and_b32 %s, 3, %s' % (t2, L))
    p('v_lshl_add_u32 %s, %s, 3, %s' % (vr(V_A1), t2, t1))
    for k in range(1, 4):
        p('v_add_u32 %s, %d, %s' % (vr(V_A1 + k), k * 36864, vr(V_A1)))
    p('v_and_b32 %s, 15, %s' % (t0, L))
    p('v_lshrrev_b32 %s, 4, %s' % (t1, L))
    p('v_lshlrev_b32 %s, 1, %s' % (t3, t1))
    p('v_xor_b32 %s, %s, %s' % (t3, t0, t3))
    p('v_lshlrev_b32 %s, 4, %s' % (t3, t3))
    p('v_lshl_add_u32 %s, %s, 13, %s' % (vr(V_OQ), t1, t3))
    p('v_xor_b32 %s, 128, %s' % (vr(V_OQ + 1), vr(V_OQ)))
    p('s_lshl_b32 %s, %s, 17' % (sr(S_OFFQ), sr(S_W)))
    addall(kv_dma_setup())
    p('s_mul_i32 %s, %s, %d' % (T(3), T(6), 4 * HS()))
    p('s_add_u32 %s, %s, 0x%x' % (T(3), T(3), WS_H))
    make_srd(p, S_H, P_WS, T(3), 4 * HS())
    p('s_mul_i32 %s, %s, %d' % (T(3), sr(S_QT), 16 * OS()))
    p('s_lshl_b32 %s, %s, 12' % (T(4), sr(S_HD)))
    p('s_add_u32 %s, %s, %s' % (T(3), T(3), T(4)))
    p('s_add_u32 %s, %s, 0x%x' % (T(3), T(3), WS_O))
    p('s_sub_u32 %s, %d, %s' % (T(5), 16 * OS(), T(4)))
    make_srd(p, S_O, P_WS, T(3), T(5))
    p('s_mov_b32 %s, 0x%x' % (T(3), WS_F))
    make_srd(p, S_FL, P_WS, T(3), 5 * 32768)
    p('s_lshr_b32 %s, %s, 3' % (sr(S_SP), sr(S_HD)))
    p('s_and_b32 %s, %s, 7' % (T(0), sr(S_HD)))
    p('s_lshl_b32 %s, %s, 3' % (sr(S_TILE), sr(S_QT)))
    p('s_add_u32 %s, %s, %s' % (sr(S_TILE), sr(S_TILE), T(0)))
    p('s_lshl_b32 %s, %s, 6' % (T(0), sr(S_SP)))
    p('s_add_u32 %s, %s, %s' % (T(0), T(0), sr(S_TILE)))
    p('s_lshl_b32 %s, %s, 7' % (sr(S_FWG), T(0)))
    p('s_lshl_b32 %s, %s, 13' % (sr(S_FGR), sr(S_SP)))
    p('s_mul_i32 %s, %s, 9' % (T(2), sr(S_HD)))
    p('s_add_u32 %s, %s, 1' % (T(2), T(2)))
    p('s_lshr_b32 %s, %s, 1' % (T(2), T(2)))
    p('s_lshl_b32 %s, %s, 10' % (sr(S_HS), T(2)))
    p('s_bitcmp1_b32 %s, 0' % sr(S_HD))
    p('s_mov_b32 %s, 4096' % T(3))
    p('s_cselect_b32 %s, %d, %s' % (T(3), -1024 + 8, T(3)))
    p('s_add_u32 %s, %s, %s' % (sr(S_HS + 4), sr(S_HS), T(3)))
    for qb in range(1, 4):
        p('s_add_u32 %s, %s, %d' % (sr(S_HS + qb), sr(S_HS), qb * HS()))
        p('s_add_u32 %s, %s, %d' % (sr(S_HS + 4 + qb), sr(S_HS + 4), qb * HS()))
    if OPT.get('pro', 1) == 1:
        addall(p1_dma(1))
    if FU == 1:
        make_srd(p, S_XN, P_WS, sr(S_RO), 4 * 18 * 1024)
        p('s_lshl_b32 %s, %s, 12' % (T(2), sr(S_QT)))
        p('s_add_u32 %s, %s, %d' % (T(2), T(2), 4 * 32768))
        p('s_lshl_b32 %s, %s, 7' % (T(3), sr(S_HD)))
        p('s_add_u32 %s, %s, %s' % (T(3), T(3), T(2)))
        p('v_lshlrev_b32 v125, 20, v0')
        p('v_and_b32 v129, 31, %s' % L)
        p('v_lshlrev_b32 v129, 7, v129')
        rstamp(4)
        p.need(('XN', 0))
        rstamp(5)
        p('s_barrier')
        rstamp(6)
        p('buffer_store_dword v128, v125, %s, %s offen sc1' % (sr(S_FL, 4), T(3)), lds=('flag', ('XN', 0)))
        if OPT.get('lnpoll', 0) == 1:
            SPIN_BLOCKS.append("""L_lnp:
 s_mov_b32 s3, 0
L_lnp_l:
 buffer_load_dword v130, v129, %s, %s offen sc1
 s_add_u32 s3, s3, 1
 s_cmp_gt_u32 s3, 0x40000
 s_cbranch_scc1 L_lnp_ok
 s_waitcnt vmcnt(0)
 v_cmp_ne_u32 vcc, %s, v130
 s_cbranch_vccz L_lnp_ok
 s_sleep 2
 s_branch L_lnp_l""" % (sr(S_FL, 4), T(2), sr(S_EP)))
            p('s_cmp_eq_u32 %s, 0' % sr(S_W))
            p('s_cbranch_scc1 L_lnp')
            p.label('L_lnp_ok')
            p('s_barrier')
        else:
            p.add(poll_issue(S_T0 + 2, 130, 129))
            poll_check(p, 'ln', S_T0 + 2, 'v_cmp_ne_u32 vcc, %s' % sr(S_EP), 130, 129, sleep=2)
        addall(xn_loads(0, 0))
    stamp(1)

    if OPT.get('donly'):
        p('s_waitcnt vmcnt(0)')
        addall(d_scalar_setup1() + d_scalar_setup2() + k_read_setup() + v_read_setup())
        p('v_lshlrev_b32 %s, 20, v0' % vr(V_FST))
        p('v_mov_b32 %s, 1' % vr(V_ONE))
        p('v_lshlrev_b32 %s, 7, %s' % (vr(V_FOFF), L))
        p('v_mov_b32 %s, 0' % vr(V_RV))
        p('s_mov_b32 %s, 0' % sr(S_OFFW))
        for k in range(2, 7):
            stamp(k)
        p.raw(' s_branch L_donly')
    g = Gaps(p)
    seq = GemmSeq(p, g)
    pool = deque(('a', 72 + 4 * k) for k in range(14))

    def alloc():
        while not pool:
            x = (g.st or g.lo).popleft()
            g.over += max(1, cost(x))
            g.emit(x)
        for t in pool:
            if t[0] == 'v':
                pool.remove(t)
                return t
        return pool.popleft()

    XB = {}
    ring = lambda buf: [('a', A_B + buf * 32 + 4 * k) for k in range(8)]

    def xn_l(c, tiles):
        out = []
        for qb in range(4):
            out.append(Ins('s_mov_b32 %s, %d' % (T(qb), qb * 18 * 1024 + c * 2048)))
            for ks in range(2):
                out.append(Ins('buffer_load_dwordx4 %s, %s, %s, %s offen offset:%d' % (
                    rg(tiles[qb * 2 + ks]), vr(V_L16), sr(S_XN, 4), T(qb), ks * 1024)))
        return out

    def aq_setup():
        o = []
        a = lambda s: o.append(Ins(s))
        a('v_lshrrev_b32 %s, 2, %s' % (t0, L))
        a('v_and_b32 %s, 7, %s' % (t1, t0))
        a('v_lshlrev_b32 %s, 1, %s' % (t1, t1))
        a('v_and_b32 %s, 3, %s' % (t2, L))
        a('v_xor_b32 %s, %s, %s' % (t1, t1, t2))
        a('v_lshlrev_b32 %s, 4, %s' % (t1, t1))
        a('v_lshl_add_u32 %s, %s, 8, %s' % (vr(V_AQ), t0, t1))
        for s in range(1, 4):
            a('v_xor_b32 %s, %d, %s' % (vr(V_AQ + s), 64 * s, vr(V_AQ)))
        for rgn in range(1, 3):
            for s in range(4):
                a('v_add_u32 %s, 0x%x, %s' % (vr(V_AQ + rgn * 4 + s), rgn * 65536, vr(V_AQ + s)))
        return o

    def mk_mf(acc, chunks, xb, first):
        def mf(dst):
            out = []
            for qb in range(4):
                for ci, c in enumerate(chunks):
                    for ks in range(2):
                        def th(qb=qb, ci=ci, c=c, ks=ks):
                            a = rg(acc(qb))
                            cin = '0' if (first and ci == 0 and ks == 0) else a
                            return '%s %s, %s, %s, %s' % (MF, a, ar(dst + ci * 8 + ks * 4, 4), rg(xb(c)[qb * 2 + ks]), cin)
                        out.append(th)
            return out
        return mf

    for c in range(9):
        XB[c] = ring(c % 3)
    for c in range(7):
        for blk in range(18):
            hook = None
            if blk == 0:
                def hook(c=c):
                    if OPT.get('cst'):
                        p('s_memrealtime %s' % sr(S_DG, 2))
                        p('s_waitcnt lgkmcnt(0)')
                        p('v_writelane_b32 v1, %s, %d' % (sr(S_DG), 32 + c))
                    g.drop = {0: (), 1: ('dma',), 2: ('vld',), 3: ('dma', 'vld'), 4: ('dma', 'vld', 'dsr')}[OPT.get('drop', 0)]
                    g.vm_gap = OPT.get('vg1', 5) if c > 1 else OPT.get('vg0', 5)
                    if c == 0 and OPT.get('pro', 1):
                        g.hi.extend(xn_l(1, XB[1]) + p1_dma(2))
                    g.hi.extend(touch.get(c, []))
                    xl = xn_l(c + 2, XB[c + 2])
                    if c == 0:
                        g.hi.extend(xl + p1_dma(3))
                    else:
                        g.hi.extendleft(reversed(xl)) if OPT.get('xfirst', 0) else g.hi.extend(xl)
                    if c == 4:
                        g.hi.extend(wq_dma(8))
                    if c == 4 and OPT.get('ct1', 1):
                        g.hi.extend(code_touch('L_c1', V_SW + 4, V_T + 5, S_A3))
                    if c == 6:
                        assert not any(y.kind == 'dma' and y.lds[1][0] == 'W' for y in g.hi)
                        g.lo.extend(aq_setup())
            seq.add(lambda dst, c=c, blk=blk: p1_reads(c, blk, dst), 8,
                    mk_mf(lambda qb, blk=blk: FT[(blk, qb)], [c], lambda c: XB[c], c == 0), hook=hook,
                    bar=[(PS(c), ('W', c))] if blk == 0 else None,
                    bwait=[rg(t) for t in XB[c]] if blk == 0 else None)
            if blk == 0 and 1 <= c <= 5:
                seq.groups[-1]['post'] = lambda c=c: g.hi.extend(p1_dma(c + 3))
            if blk == 0 and c == 6:
                seq.groups[-1]['post'] = lambda: g.hi.extend(wq_dma(7))
    CT = OPT.get('cap_t', 3)
    for blk in range(18):
        hook = None
        if blk >= 2 and blk % 2 == 0:
            def hook(b=blk // 2 - 1):
                for qb in range(4):
                    g.lo.extend(swiglu_unit(b, qb, g.n + 3, pool))
        if blk == 0:
            def hook():
                g.drop = ()
                p.label('L_c1')
                stamp(2)
        seq.add(lambda dst, blk=blk: p1_reads(7, blk, dst) + p1_reads(8, blk, dst + 8), 16,
                mk_mf(lambda qb, blk=blk: FT[(blk, qb)], [7, 8], lambda c: XB[c], False), hook=hook,
                bar=[(PS(7), ('W', 7)), (PS(8), ('W', 8))] if blk == 0 else None,
                bwait=[rg(t) for t in XB[7] + XB[8]] if blk == 0 else None, cap=CT)
        if blk == 0:
            seq.groups[-1]['post'] = lambda: g.hi.extend(wq_dma(6) + wq_dma(5))
    QT = {}

    def qacc(bq, qb):
        if (bq, qb) not in QT:
            QT[(bq, qb)] = alloc()
        return QT[(bq, qb)]
    XQ = {8: XB[8], 7: XB[7], 6: XB[6], 4: ring(1), 3: ring(2), 2: ring(0), 0: ring(1)}
    C2 = OPT.get('cap_p2', 2)
    qn = lambda c: (LS(WQ_SLOT[c]), ('Q', c))
    for bq in range(8):
        hook = None
        if bq == 0:
            def hook():
                stamp(3)
                g.vm_gap = OPT.get('vg2', 4)
                g.st_w = OPT.get('stw2', 1)
                for qb in range(4):
                    g.lo.extend(swiglu_unit(8, qb, g.n + 3, pool))
        if bq == 3:
            def hook():
                XQ[5] = XQ[1] = [alloc() for _ in range(8)]
                g.hi.extend(xn_l(5, XQ[5]))
        seq.add(lambda dst, bq=bq: p2_reads(8, bq, dst) + p2_reads(7, bq, dst + 8), 16,
                mk_mf(lambda qb, bq=bq: qacc(bq, qb), [8, 7], lambda c: XQ[c], True), hook=hook,
                bar=[qn(8), qn(7)] if bq == 0 else None, cap=C2)
        if bq == 0:
            seq.groups[-1]['post'] = lambda: g.hi.extend(
                wq_dma(4) + wq_dma(3) + wq_dma(2))
    for c in (6, 5, 4, 3, 2):
        for bq in range(8):
            hook = None
            if bq == 0:
                def hook(c=c):
                    for cc in {6: (4, 3), 5: (2,), 4: (1,), 3: (0,), 2: ()}[c]:
                        g.hi.extend(xn_l(cc, XQ[cc]))
            seq.add(lambda dst, c=c, bq=bq: p2_reads(c, bq, dst), 8,
                    mk_mf(lambda qb, bq=bq: qacc(bq, qb), [c], lambda c: XQ[c], False), hook=hook,
                    bar=[qn(c)] if bq == 0 else None, cap=C2,
                    bwait=(lambda c=c: [rg(t) for t in XQ[c]]) if bq == 0 else None)
            if bq == 0:
                seq.groups[-1]['lazyb'] = c
                post = {6: lambda: g.hi.extend(wq_dma(1) + wq_dma(0)),
                        3: lambda: g.hi.extend(dma_unit('K', 0, False)),
                        2: lambda: g.hi.extend(dma_unit('K', 1, False) + dma_unit('V', 0, False))}.get(c)
                seq.groups[-1]['post'] = post
    for bq in range(8):
        hook = None
        if bq == 0:
            def hook():
                print('swiglu backlog at last P2 group:', len(g.hi), len(g.lo), 'over', g.over, file=sys.stderr)
                g.hi.extend(dma_unit('K', 2, False) + dma_unit('V', 1, False))
        if bq >= 2 and bq % 2 == 0:
            def hook(s=bq // 2 - 1):
                for qb in range(4):
                    g.lo.extend(qcvt_unit(qb, s, QT, g.n + 3))
        seq.add(lambda dst, bq=bq: p2_reads(1, bq, dst) + p2_reads(0, bq, dst + 8), 16,
                mk_mf(lambda qb, bq=bq: qacc(bq, qb), [1, 0], lambda c: XQ[c], False), hook=hook,
                bar=[qn(1), qn(0)] if bq == 0 else None, cap=C2,
                bwait=(lambda: [rg(t) for t in XQ[1] + XQ[0]]) if bq == 0 else None)
    seq.run()
    stamp(4)
    print('G backlog at end:', len(g.hi), len(g.lo), 'over', g.over, 'waste', g.waste, file=sys.stderr)
    for qb in range(4):
        g.lo.extend(qcvt_unit(qb, 3, QT, 0))
    addall(k_read_setup())
    p.need(('lgkm', 'all'), (LS(0), ('K', 0)))
    p('s_barrier')
    for kb in range(4):
        for s in range(4):
            p.add(k_load(0, kb, s, False))
    g.flush()
    g.vm_gap = 4
    g.hi.extend(dma_unit('K', 3, False))
    g.hi.extend(d_scalar_setup1())
    g.lo.extend(Ins('v_accvgpr_write_b32 %s, 0' % ar(A_O + i)) for i in range(128))
    for kb in range(4):
        for qb in range(4):
            for s in range(4):
                d = vr(Sreg(kb, qb), 4)
                g.gap('%s %s, %s, %s, %s' % (MF, d, ar(A_KF + kb * 16 + s * 4, 4), vr(V_Q + (qb * 4 + s) * 4, 4), '0' if s == 0 else d))
    g.flush()
    addall(v_read_setup())
    for qb in range(4):
        p('v_mov_b32 %s, 0' % vr(V_L + qb))
    p('v_lshlrev_b32 %s, 20, v0' % vr(V_FST))
    if not FU:
        p('s_mov_b32 %s, 1' % sr(S_EP))
    p('v_mov_b32 %s, %s' % (vr(V_ONE), sr(S_EP)))
    p('v_lshlrev_b32 %s, 7, %s' % (vr(V_FOFF), L))
    addall(code_touch('L_att_tail', 32, 34, S_DWO)[:-1])
    p('v_mov_b32 %s, %s' % (vr(V_RN), L))
    addall(repack_pat())
    ms = [vr(V_E + qb) for qb in range(4)]
    for step in range(8):
        for qb in range(4):
            regs = [vr(Sreg(kb, qb) + r) for kb in range(4) for r in range(4)]
            if step == 0:
                p('v_max3_f32 %s, %s, %s, %s' % (ms[qb], regs[0], regs[1], regs[2]))
            elif step < 7:
                p('v_max3_f32 %s, %s, %s, %s' % (ms[qb], ms[qb], regs[2 * step + 1], regs[2 * step + 2]))
            else:
                p('v_max_f32 %s, %s, %s' % (ms[qb], ms[qb], regs[15]))
    addall(xlane4('v_max_f32', ms, [vr(V_T + k) for k in range(4)]))
    for qb in range(4):
        for r in range(4):
            p('v_sub_f32 %s, 0, %s' % (vr(V_NM + qb * 4 + r), ms[qb]))
    for kb in range(4):
        for qb in range(4):
            for r in range(4):
                x = vr(Sreg(kb, qb) + r)
                p('v_add_f32 %s, %s, %s' % (x, x, vr(V_NM + qb * 4)))
    stamp(5)
    def sm_plain(uu, i0, i1):
        prev = []
        for i in range(i0, i1):
            ex, ad, cv = sm_instrs(uu, i)
            p.add(ex)
            addall(prev)
            prev = [ad] + ([cv] if cv else [])
        p('s_nop 0')
        addall(prev)
    sm_plain(0, 0, 28)
    att_slots(p, 0, 0, 64, False, pv=False, sm_cur=False)
    sm_plain(0, 28, 60)
    p('s_mov_b32 %s, 0' % sr(S_CNT))
    p('s_lshl_b32 %s, %s, 4' % (sr(S_OFFQ), sr(S_W)))
    p('s_add_u32 %s, %s, 2' % (sr(S_OFFQ), sr(S_OFFQ)))
    p.wait_regs(ar(A_KF, 16))
    NIT = 8 if OPT.get('short', 1) else 7
    lp = p.loop_begin(NIT, 'att')
    p('.p2align 6')
    p.label('L_att')
    rtag = ('R', 0)
    g.vm_gap = 8

    def rp_loads():
        g.hi.append(Ins('buffer_load_dwordx4 %s, %s, %s, 0 offen nt' % (vr(V_RQ[0], 4), vr(V_RV), sr(S_A1, 4))))
        g.hi.append(Ins('buffer_load_dwordx4 %s, %s, %s, 0 offen nt' % (vr(V_RQ[1], 4), vr(V_RV), sr(S_A2, 4))))

    def rp_stores():
        g.hi.append(Ins('buffer_store_dwordx4 %s, %s, %s, %s offen sc1' % (vr(V_RQ[0], 4), vr(V_L16), sr(S_A3, 4), sr(S_RO)), lds=rtag))
        g.hi.append(Ins('buffer_store_dwordx4 %s, %s, %s, %s offen sc1' % (vr(V_RQ[1], 4), vr(V_L16), sr(S_A4, 4), sr(S_RO)), lds=rtag))
        g.hi.append(Ins('s_add_u32 %s, %s, 1024' % (sr(S_RO), sr(S_RO))))
    att_slots(p, 0, 64, 96, True)
    rp_loads()
    att_slots(p, 0, 96, 128, True, g=g, cap=4)
    assert not g.hi
    att_slots(p, 1, 0, 64, True)
    p('s_add_u32 %s, %s, 1' % (sr(S_CNT), sr(S_CNT)))
    p('s_cmp_eq_u32 %s, %d' % (sr(S_CNT), NIT))
    p('s_cbranch_scc1 L_att_tail')
    p.loop_mark_exit(lp)
    g.lo.extend(repack_pat())
    att_slots(p, 1, 64, 128, True, g=g, cap=3)
    assert not g.lo
    att_slots(p, 2, 0, 30, True, extra_need=[rtag, ('H', 0)])
    if OPT.get('plain_h'):
        SPIN_BLOCKS.append('L_wbh:\n buffer_wbl2 sc1\n s_branch L_wbh_done')
        p('s_cmp_eq_u32 %s, %s' % (sr(S_CNT), sr(S_OFFQ)))
        p('s_cbranch_scc1 L_wbh')
        p.label('L_wbh_done')
    p('s_cmp_eq_u32 %s, 4' % sr(S_CNT))
    p('s_cselect_b32 %s, %s, 0x100000' % (T(0), sr(S_FWG)))
    fl = flag_store(S_T0, 'H')
    g.hi.append(fl)
    g.vm_gap = 3
    rp_stores()
    att_slots(p, 2, 30, 66, True, g=g, cap=4)
    assert not g.hi
    att_slots(p, 2, 66, 96, True)
    g.vm_gap = 8
    rp_loads()
    att_slots(p, 2, 96, 128, True, g=g, cap=4)
    assert not g.hi
    g.lo.extend(repack_pat())
    att_slots(p, 3, 0, 96, True, g=g, cap=3)
    assert not g.lo
    if OPT.get('ct2', 1):
        g.hi.append(Ins('global_load_dword v34, v[32:33], off'))
    att_slots(p, 3, 96, 128, True, g=g, cap=4)
    assert not g.hi
    att_slots(p, 4, 0, 30, True)
    g.vm_gap = 3
    rp_stores()
    att_slots(p, 4, 30, 64, True, g=g, cap=4)
    assert not g.hi
    p('s_branch L_att')
    p.loop_end()
    p.label('L_att_tail')
    stamp(6)
    g.vm_gap = 4
    def nowr(l):
        for x in l:
            x.wr = [r for r in x.wr if r[0] != 'v']
        return l

    def touch_w(c, srd=S_A1):
        return nowr([Ins('s_mov_b32 %s, %d' % (T(6), c * 36864)),
                     Ins('buffer_load_dword v248, %s, %s, %s offen sc0' % (vr(V_RV), sr(srd, 4), T(6)))])

    def touch_h(k):
        return nowr([Ins('s_add_u32 %s, %s, %d' % (T(6), sr(S_RO), k * 8192)),
                     Ins('buffer_load_dword v249, v250, %s, %s offen sc0' % (sr(S_A2, 4), T(6)))])
    TD = OPT.get('touch_d', 0)
    if NIT == 7:
        att_slots(p, 25, 64, 96, False)
        g.hi.append(poll_issue(S_FGR))
        tt = []
        a = lambda x: tt.append(Ins(x))
        a('s_lshr_b32 %s, s2, 3' % T(0))
        a('s_lshl_b32 %s, %s, 2' % (T(1), sr(S_SP)))
        a('s_add_u32 %s, %s, %s' % (T(1), T(1), sr(S_W)))
        a('s_mul_i32 %s, %s, %d' % (T(1), T(1), WBLK))
        a('s_mul_i32 %s, %s, 1152' % (T(2), T(0)))
        a('s_add_u32 %s, %s, %s' % (T(1), T(1), T(2)))
        a('s_add_u32 %s, %s, 0x%x' % (T(1), T(1), WS_W))
        tt += srd_ins(S_A1, P_WS, T(1), 18 * 36864 + 1152)
        a('s_and_b32 %s, s2, 4' % T(1))
        a('s_lshl_b32 %s, %s, 3' % (T(1), T(1)))
        a('s_add_u32 %s, %s, %s' % (T(1), T(1), T(0)))
        a('s_lshl_b32 %s, %s, 1' % (T(1), T(1)))
        a('s_and_b32 %s, %s, 1' % (T(2), sr(S_W)))
        a('s_add_u32 %s, %s, %s' % (T(1), T(1), T(2)))
        a('s_mul_i32 %s, %s, %d' % (T(1), T(1), HS()))
        a('s_mul_i32 %s, %s, %d' % (T(2), sr(S_SP), 36 * 1024))
        a('s_add_u32 %s, %s, %s' % (T(1), T(1), T(2)))
        a('s_add_u32 %s, %s, 0x%x' % (T(1), T(1), WS_H))
        tt += srd_ins(S_A2, P_WS, T(1), 36 * 1024)
        a('s_lshr_b32 %s, %s, 1' % (T(1), sr(S_W)))
        a('s_lshl_b32 %s, %s, 12' % (sr(S_RO), T(1)))
        a('s_lshl_b32 %s, %s, 2' % (T(2), sr(S_TILE)))
        a('s_add_u32 %s, %s, %s' % (T(2), T(2), sr(S_SP)))
        a('s_lshl_b32 %s, %s, 2' % (T(2), T(2)))
        a('s_add_u32 %s, %s, %s' % (T(2), T(2), sr(S_W)))
        a('s_mul_i32 %s, %s, 9216' % (T(2), T(2)))
        a('s_add_u32 %s, %s, 0x%x' % (T(2), T(2), WS_P))
        tt += srd_ins(S_A3, P_WS, T(2), 9216)
        g.hi.extend(tt)
        g.lo.extend(Ins('v_mov_b32 v%d, -1' % r) for r in range(36, 40))
        g.lo.extend([Ins('v_mul_u32_u24 %s, 7282, %s' % (vr(V_RV), L)),
                     Ins('v_lshrrev_b32 %s, 16, %s' % (vr(V_RV), vr(V_RV))),
                     Ins('v_mul_u32_u24 %s, %d, %s' % (vr(V_RV), 36864 - 1152, vr(V_RV))),
                     Ins('v_lshl_add_u32 %s, %s, 7, %s' % (vr(V_RV), L, vr(V_RV))),
                     Ins('v_mov_b32 v251, 0x7f000000'),
                     Ins('v_cmp_gt_u32 vcc, 18, %s' % L),
                     Ins('v_cndmask_b32 %s, v251, %s, vcc' % (vr(V_RV), vr(V_RV))),
                     Ins('v_cmp_gt_u32 vcc, 32, %s' % L),
                     Ins('v_cndmask_b32 v250, v251, %s, vcc' % vr(V_FOFF))])
        att_slots(p, 25, 96, 128, False, g=g, cap=4)
        att_slots(p, 26, 0, 64, False, g=g, cap=3, dmav=False)
        g.flush()
        addall(dma_unit('V', 28, False))
        poll_check(p, 'h', S_FGR)

        tl = []
        if TD:
            for k in range(5):
                tl += [touch_w(2 * k), touch_h(k)]
        else:
            tl = [[] for _ in range(10)]
        if OPT.get('tagged', 0):
            for k in range(9):
                tl[k] = tl[k] + [Ins('s_mov_b32 %s, %d' % (T(5), k * 1024)),
                                 Ins('buffer_store_dwordx4 v[36:39], %s, %s, %s offen sc1' % (vr(V_L16), sr(S_A3, 4), T(5)), lds=('PT1', 0))]
        for u in (26, 27, 28, 29):
            for (ta, tb, on) in ((0, 32, 0), (32, 48, 1), (48, 64, 1), (64, 96, 0), (96, 112, 1), (112, 128, 1)):
                if (u == 26 and ta < 64) or (u == 29 and ta >= 64):
                    continue
                if on and tl:
                    g.hi.extend(tl.pop(0))
                att_slots(p, u, ta, tb, False, g=g if on else None, cap=4, dmak=(u + DK < 32))
                assert not g.hi
        assert not tl
        for k in range(4):
            p('s_mov_b32 %s, %s' % (sr(S_DWO + k), sr(S_A1 + k)))
    else:
        assert not TD and not OPT.get('tagged', 0)
        g.hi.append(poll_issue(S_FGR))
    g.hi.extend(d_scalar_setup2())
    att_slots(p, 29, 64, 128, False, dmak=False, g=g, cap=4)
    g.flush()
    if NIT == 8:
        poll_check(p, 'h', S_FGR)
    p.label('L_donly')
    att_slots(p, 30, 0, 2, False, dmak=False, dmav=False, g=g)
    g.vm_gap = 5
    g.hi.extend(d_dma(0) + d_dma(1))
    g.hi.append(sadd(S_FWG, 32768))
    g.hi.append(Ins('s_and_b32 %s, %s, 0x38' % (T(0), sr(S_TILE))))
    g.hi.append(Ins('s_lshl_b32 %s, %s, 7' % (T(0), T(0))))
    g.hi.append(Ins('s_add_u32 %s, %s, %s' % (sr(S_FGR), sr(S_FGR), T(0))))
    g.hi.append(sadd(S_FGR, 32768))
    g.hi.append(Ins('s_add_u32 %s, %s, 8192' % (sr(S_OFFW), sr(S_FGR))))
    g.hi.append(Ins('s_and_b32 %s, %s, 1' % (sr(S_ADJB), sr(S_SP))))
    g.hi.append(Ins('s_lshl_b32 %s, %s, 9' % (T(1), sr(S_ADJB))))
    g.hi.append(Ins('s_or_b32 %s, %s, 0x180' % (T(1), T(1))))
    g.hi.append(Ins('v_and_b32 v250, %s, %s' % (T(1), vr(V_FOFF))))
    g.hi.append(Ins('s_mul_i32 %s, %s, %d' % (sr(S_ADJW), sr(S_ADJB), -4 * 36864)))
    g.hi.append(Ins('s_mul_i32 %s, %s, %d' % (sr(S_ADJB), sr(S_ADJB), -4 * 4096)))
    g.lo.append(Ins('v_and_b32 %s, 0x380, %s' % (vr(V_FOFF), vr(V_FOFF))))
    att_slots(p, 30, 2, 97, False, dmak=False, dmav=False, g=g, cap=4, barrier=False)
    g.vm_gap = 4
    g.hi.extend(d_bloads(0))
    att_slots(p, 30, 97, 128, False, dmak=False, dmav=False, g=g, cap=4, barrier=False)
    att_slots(p, 31, 0, 2, False, qk=False, sm_next=False, dmak=False, dmav=False, g=g, vearly=True)
    g.vm_gap = 3
    g.hi.extend(d_bloads(1) + d_dma(2))
    o = []
    o.append(Ins('v_lshrrev_b32 %s, 2, %s' % (t0, L)))
    o.append(Ins('v_mul_u32_u24 %s, 288, %s' % (t1, t0)))
    o.append(Ins('v_and_b32 %s, 3, %s' % (t2, L)))
    o.append(Ins('v_lshl_add_u32 %s, %s, 3, %s' % (vr(V_DRA), t2, t1)))
    for k in range(1, 4):
        o.append(Ins('v_add_u32 %s, %d, %s' % (vr(V_DRA + k), DBASE[k], vr(V_DRA))))
    g.lo.extend(o)
    g.lo.append(Ins('v_mov_b32 %s, 0x%x' % (vr(V_RN), f2u(2.0 ** OPT.get('thr', 30)))))
    att_slots(p, 31, 2, 64, False, qk=False, sm_next=False, dmak=False, dmav=False, g=g, cap=4, barrier=False, vearly=True)
    g.flush()
    sm_plain(31, 60, 64)
    p('v_max3_f32 %s, %s, %s, %s' % (t0, vr(V_L), vr(V_L + 1), vr(V_L + 2)))
    p('v_add_f32 %s, %s, %s' % (t0, t0, vr(V_L + 3)))
    p('v_cmp_nlt_f32 vcc, %s, %s' % (t0, vr(V_RN)))
    p('s_cbranch_vccnz L_slow')
    p.label('L_slow_ret')
    SPIN_BLOCKS.append(gen_slow_softmax())
    ls = [vr(V_L + qb) for qb in range(4)]
    g.lo.extend(xlane4('v_add_f32', ls, [vr(V_T + k) for k in range(4)]))
    g.lo.extend(Ins('v_rcp_f32 %s, %s' % (x, x)) for x in ls)
    n0 = g.n
    n = 0
    for t in range(4):
        for qb in range(4):
            g.lo.extend(o_epilogue_unit(qb, t, n, n0 + 16 * (t + 1) + 3))
            n += 1
    p.wait_regs(ar(A_VF, 8))
    kw = dict(qk=False, sm_cur=False, sm_next=False, vnext=False, dmak=False, dmav=False, g=g, barrier=False)
    att_slots(p, 32, 0, 33, False, **kw)
    g.hi.extend(d_bloads(2))
    att_slots(p, 32, 33, 46, False, **kw)
    p.need(('lgkm', 'all'), (DS(0), ('D', 0)))
    p('s_barrier')
    g.st.extend(d_reads(0, 0) + d_reads(0, 1))
    att_slots(p, 32, 46, 64, False, **kw)
    while g.st and g.st[0].kind == 'dsr':
        g.emit(g.st.popleft())
    assert not any(x.kind == 'dsr' for x in g.st)
    stamp(7)
    p.wait_regs(ar(A_DB, 32), vr(V_DA, 16))
    stamp(8)
    G2, GG = V_AC2, V_AC2 + 48
    xreg = lambda k, rb: 44 + (k * 2 + rb) * 2
    VO = V_T + 5

    def fin_setup():
        o = []
        o.append(Ins('v_and_b32 %s, 0x180, %s' % (vr(V_FOFF), vr(V_FOFF))))
        o.append(Ins('s_andn2_b32 %s, %s, 0x1ff' % (sr(S_FGR), sr(S_FT))))
        o.append(Ins('v_and_b32 %s, 15, %s' % (t0, L)))
        o.append(Ins('v_mul_u32_u24 %s, 1152, %s' % (t0, t0)))
        o.append(Ins('v_lshrrev_b32 %s, 4, %s' % (t1, L)))
        o.append(Ins('v_lshl_add_u32 %s, %s, 3, %s' % (vr(VO), t1, t0)))
        for k in range(3):
            for rb in range(2):
                o.append(Ins('buffer_load_dwordx2 %s, %s, %s, %s offen offset:%d' % (
                    vr(xreg(k, rb), 2), vr(VO), sr(S_DX, 4), sr(S_HS + 4 + rb + (2 if k == 2 else 0)), 128 * k)))
        return o

    def silu_g():
        o = []
        for k in range(3):
            d = GG + 8 * k
            o += d_sum(G2, k, d, V_T)
            for e in range(0, 8, 2):
                ta, tb = vr(V_T), vr(V_T + 1)
                o.append(Ins('v_mul_f32 %s, %s, %s' % (ta, sr(S_NL), vr(d + e))))
                o.append(Ins('v_mul_f32 %s, %s, %s' % (tb, sr(S_NL), vr(d + e + 1))))
                o.append(Ins('v_exp_f32 %s, %s' % (ta, ta)))
                o.append(Ins('v_exp_f32 %s, %s' % (tb, tb)))
                if OPT.get('fold', 0):
                    o.append(Ins('v_fma_f32 %s, %s, %s, %s' % (ta, ta, sr(S_C), sr(S_C))))
                    o.append(Ins('v_fma_f32 %s, %s, %s, %s' % (tb, tb, sr(S_C), sr(S_C))))
                else:
                    o.append(Ins('v_add_f32 %s, 1.0, %s' % (ta, ta)))
                    o.append(Ins('v_add_f32 %s, 1.0, %s' % (tb, tb)))
                o.append(Ins('v_rcp_f32 %s, %s' % (ta, ta)))
                o.append(Ins('v_rcp_f32 %s, %s' % (tb, tb)))
                o.append(Ins('v_mul_f32 %s, %s, %s' % (vr(d + e), vr(d + e), ta)))
                o.append(Ins('v_mul_f32 %s, %s, %s' % (vr(d + e + 1), vr(d + e + 1), tb)))
        return o

    g.vm_gap = 1
    SO = OPT.get('o_done', 2)
    LAST = NPOS - 1
    for c in range(NPOS):
        acc0 = V_AC2 if c < 9 else V_AC1
        first = c in (0, 9)
        if c == 9:
            stamp(14)
        if c in (SK0, SK1):
            g.flush()
        if c == SK0:
            p('s_bitcmp1_b32 %s, 0' % sr(S_SP))
            p('s_cbranch_scc1 L_dskip')
            p.loop_begin(1, 'opt')
        if c == SK1:
            p.loop_end()
            p.label('L_dskip')
        if OPT.get('dst'):
            p('s_memrealtime %s' % sr(S_DG, 2))
            p('s_waitcnt lgkmcnt(0)')
            p('v_writelane_b32 v1, %s, %d' % (sr(S_DG), 32 + c))
        extra_need = []
        post = []
        cap = 2
        if c <= SO:
            cap = OPT.get('cap_o', 4)
        if c == SO + 1:
            assert not g.lo and not g.st, len(g.lo)
            extra_need = [('O', 0)]
            post = [flag_store(S_FWG, 'O')]
            g.st_max = 1
            fs = fin_setup()
            g.lo.extend(fs[2:-6])
        if c == 6:
            g.hi.extend(fs[-6:])
        if TD and c in (2, 3, 4, 5, 6):
            g.hi.extend(touch_w(10 + 2 * (c - 2), S_DWO))
        if c == 6:
            g.st.append(poll_issue(S_FGR, V_FOFF=250))
        if c == 10:
            g.st.append(poll_issue(S_FGR))
        if c == 11:
            poll_check(p, 'o1', S_FGR)
        if c == 7:
            poll_check(p, 'o', S_FGR, V_FOFF=250)
            g.hi.extend(d_bloads(9, c))
            cap = 3
        if c == SK1 - 2:
            g.st.append(poll_issue(S_OFFW))
        if c == SK1 - 1:
            poll_check(p, 'o2', S_OFFW)
        if c <= 8:
            g.hi.extend((d_bloads(c + 3, c) if c != 6 else []) + d_dma(c + 3, c))
        elif 10 <= c <= LAST - 2:
            g.hi.extend(d_dma(c + 2, c) + d_bloads(c + 2, c))
        if c in (9, 10):
            for nb in (range(6) if c == 9 else range(6, 9)):
                g.lo.extend(d_pstore(1, nb))
            cap = 3
        if c == 11:
            assert not g.lo and not g.st
            extra_need = [('PT1', 0)]
            post = [flag_store(S_FT, 'PT1')]
            g.lo.extend(fs[:2])
            cap = 3
        if c == LAST - 2:
            g.st.append(poll_issue(S_FGR))
        if c == LAST - 1:
            poll_check(p, 'p2', S_FGR)
            g.hi.extend([sadd(S_FGR, 32768), sadd(S_FT, 32768)])
            g.hi.extend(d_ploads(1, G2))
        nv = sum(1 for x in g.hi if cost(x) == 2)
        if OPT.get('verbose_d'):
            print('D pos', c, 'queued vmem', nv, file=sys.stderr)
        g.vm_gap = OPT.get('vgd', 4) if c > SO else OPT.get('vgd2', 3)
        g.st_w = OPT.get('stw', 1)
        if c in (10, 11, SK1 - 1):
            g.vm_gap = 3
            cap = 3
        if c == LAST:
            g.vm_gap = 1
        for nb in range(9):
            n2 = nb + 2
            Lr = d_reads(c, n2) if n2 < 9 else (d_reads(c + 1, n2 - 9, c) if c < LAST else [])
            if c == LAST and nb >= 2:
                g.hi.extend(d_pstore(0, nb - 2))
            for t in range(8):
                rb, ks = t // 4, t % 4
                a = vr(acc0 + (nb * 2 + rb) * 4, 4)
                m = '%s %s, %s, %s, %s' % (MF, a, vr(V_DA + (nb % 3) * 16 + ks * 4, 4),
                                           ar(A_DB + (c % 4) * 32 + (rb * 4 + ks) * 4, 4),
                                           '0' if (first and ks == 0) else a)
                sc, ld = [], []
                if nb == 7:
                    if Lr and t >= 4:
                        ld = [Lr[2 * (t - 4)], Lr[2 * (t - 4) + 1]]
                    if t == 2 and c < LAST:
                        assert not any(y.kind == 'dma' and y.lds[0] == DS(c + 1) for y in g.hi), c
                        sc = [need_ins(('lgkm', 'all'), (DS(c + 1), dtag(c + 1, c)), *extra_need)]
                    if t == 3 and c < LAST:
                        sc = [Ins('s_barrier')]
                elif Lr:
                    ld = [Lr[t], Lr[t + 1]] if t % 2 == 0 else []
                if t == 7:
                    w = [vr(V_DA + ((nb + 1) % 3) * 16, 16)]
                    if nb == 8:
                        w.append(ar(A_DB + ((c + 1) % 4) * 32, 32))
                    sc = [wait_ins(*w)]
                g.gap(m, sc, ld, cap=cap)
                if nb == 7 and t == 3:
                    g.st.extend(post)
    stamp(9)
    g.hi.extend(d_pstore(0, 7) + d_pstore(0, 8))
    g.flush()
    stamp(10)
    sg = silu_g()
    if OPT.get('tagged', 0):
        addall(sg)
        stamp(11)

        def chk():
            o = [Ins('v_max3_u32 %s, %s, %s, %s' % (t0, vr(G2), vr(G2 + 1), vr(G2 + 2))),
                 Ins('v_max3_u32 %s, %s, %s, %s' % (t1, vr(G2 + 3), vr(G2 + 4), vr(G2 + 5)))]
            for k in range(6, 48, 2):
                tt_ = t0 if (k // 2) % 2 else t1
                o.append(Ins('v_max3_u32 %s, %s, %s, %s' % (tt_, tt_, vr(G2 + k), vr(G2 + k + 1))))
            o.append(Ins('v_max_u32 %s, %s, %s' % (t0, t0, t1)))
            o.append(Ins('v_cmp_eq_u32 vcc, -1, %s' % t0))
            return o
        addall(d_ploads(0, G2) + chk())
        p('s_cbranch_vccnz L_retry')
        p.label('L_retry_ok')
        SPIN_BLOCKS.append('L_retry:\n s_mov_b32 s3, 0\nL_retry_l:\n s_sleep 2\n' +
                           '\n'.join(' ' + x.text for x in d_ploads(0, G2)) +
                           '\n s_waitcnt vmcnt(0)\n s_add_u32 s3, s3, 1\n s_cmp_gt_u32 s3, 0x20000\n s_cbranch_scc1 L_retry_ok\n' +
                           '\n'.join(' ' + x.text for x in chk()) +
                           '\n s_cbranch_vccnz L_retry_l\n s_branch L_retry_ok')
        stamp(12)
    else:
        addall(sg[:len(sg) // 2])
        p.need(('PT0', 0))
        p('s_barrier')
        stamp(11)
        p.add(flag_store(S_FT, 'PT0'))
        p.add(poll_issue(S_FGR))
        addall(sg[len(sg) // 2:])
        poll_check(p, 'p1', S_FGR)
        stamp(12)
        addall(d_ploads(0, G2))
    for k in range(3):
        d = V_AC1 + 16 * k
        addall(d_sum(G2, k, d, V_T))
        for rb in range(2):
            xb = xreg(k, rb)
            for e in range(4):
                tx = vr(d + 8 + e)
                if e % 2 == 0:
                    p('v_lshlrev_b32 %s, 16, %s' % (tx, vr(xb + e // 2)))
                else:
                    p('v_and_b32 %s, 0xffff0000, %s' % (tx, vr(xb + e // 2)))
                p('v_fma_f32 %s, %s, %s, %s' % (tx, vr(d + rb * 4 + e), vr(GG + 8 * k + rb * 4 + e), tx))
            o = d + 12 + 2 * rb
            p('v_cvt_pk_bf16_f32 %s, %s, %s' % (vr(o), vr(d + 8), vr(d + 9)))
            p('v_cvt_pk_bf16_f32 %s, %s, %s' % (vr(o + 1), vr(d + 10), vr(d + 11)))
            p('buffer_store_dwordx2 %s, %s, %s, %s offen offset:%d%s' % (
                vr(o, 2), vr(VO), sr(S_DOUT, 4), sr(S_HS + 4 + rb + (2 if k == 2 else 0)), 128 * k,
                ('', ' sc1', ' nt', ' sc0 sc1')[OPT.get('outpol', 0)]))
    if diag:
        p('s_waitcnt vmcnt(0)')
        stamp(13)
        p('s_mov_b32 %s, 0x%x' % (T(3), WS_T))
        make_srd(p, S_K, P_WS, T(3), 0x100000)
        p('s_lshl_b32 %s, s2, 2' % T(0))
        p('s_add_u32 %s, %s, %s' % (T(0), T(0), sr(S_W)))
        p('s_lshl_b32 %s, %s, 8' % (T(0), T(0)))
        p('v_lshlrev_b32 v4, 2, %s' % L)
        p('buffer_store_dword v1, v4, %s, %s offen' % (sr(S_K, 4), T(0)))
    p.label('L_end')
    p('s_endpgm')
    for t in SPIN_BLOCKS:
        p.raw(t)
    p.raw('L_code_end:')
    for x in p.flat():
        if OPT.get('kv_nt', 1) and x.kind == 'dma' and ('s[4:7]' in x.text or 's[8:11]' in x.text):
            x.text = x.text.replace(' lds', ' nt lds')
        if OPT.get('w_nt') and x.kind == 'dma' and x.lds and not callable(x.lds[1]) and x.lds[1][0] in 'WQ':
            x.text = x.text.replace(' lds', ' nt lds')
        if OPT.get('st01') and x.kind == 'vst' and 'x4' in x.text:
            x.text = x.text.replace(' sc1', ' sc0 sc1')
        if OPT.get('nost') and x.kind == 'vst' and 'x4' in x.text and x.lds and (x.lds[0] == 'O' or (OPT['nost'] > 1 and x.lds[0] == 'PT1')):
            x.text = 's_nop 0'
            x.kind = 'sopp'; x.op = 's_nop'; x.ops = ['0']; x.rd = []; x.lds = None
        if FU and x.kind == 'vld' and sr(S_XN, 4) in x.text and 'sc1' not in x.text:
            x.text += ' sc1'
        if OPT.get('dplain') and x.kind in ('dma', 'vld') and 'x4' in x.text:
            x.text = x.text.replace(' sc1', '')
    p.finalize(verbose=bool(OPT.get('verbose')), check=not (OPT.get('drop') or OPT.get('nost')))
    print('total overflow slots', g.over, p.stats(), file=sys.stderr)
    return p


NOTES = """;
; Generated by a hand-written python scheduler (gen/): phases per workgroup (q tile qt, head / F slice hd):
;   LN of 8 rows -> all-gather inside the q tile | FFN up (gate,up) + SwiGLU -> h | Q projection | flash attention
;   (L_slow) recomputes the wave's rows with the exact global row max whenever that reference was unsafe.
; Hand-offs between workgroups: write-through (sc1) stores, vmcnt wait + barrier, then a flag in d_ws holding
;   ones); consumers poll with sc1 loads (L_spin_* / L_lnp are the bounded retry loops) and read with sc1 loads.
"""


def build(diag=False):
    hdr = open('cdna_kernels/%s.s.ref' % NAME).read().split('; Override launch')[0]
    out = hdr
    if OPT.get('fuse', 2):
        km = gen_main(diag)
        kn = NAME + '_kernel'
        if OPT.get('aslist', 1):
            out += '; @launch kernel=%s grid=(256,1,1) block=(256,1,1) lds=163840\n' % kn
        else:
            out += '; @launch grid=(256,1,1) block=(256,1,1) lds=163840\n'
        out += NOTES
        out += '.amdgcn_target "amdgcn-amd-amdhsa--gfx950"\n.text\n'
        out += kernel_text(kn, km, 0, 0)
        out += '.section .rodata,"a"\n.p2align 6\n' + descriptor(kn, 512, 256)
        return out
    ln, km = gen_ln(), gen_main(diag)
    if not OPT.get('donly'):
        out += '; @launch kernel=ln_kernel grid=(256,1,1) block=(256,1,1) lds=0\n'
    out += '; @launch kernel=main_kernel grid=(256,1,1) block=(256,1,1) lds=163840\n'
    out += '.amdgcn_target "amdgcn-amd-amdhsa--gfx950"\n.text\n'
    out += kernel_text('ln_kernel', ln, 0, 0) + kernel_text('main_kernel', km, 0, 0)
    out += '.section .rodata,"a"\n'
    for n, nv, acc in (('ln_kernel', 64, 64), ('main_kernel', 512, 256)):
        out += '.p2align 6\n' + descriptor(n, nv, acc)
    return out


if __name__ == '__main__':
    diag = 'diag' in sys.argv[2:]
    for a in sys.argv[2:]:
        if '=' in a:
            k, v = a.split('=')
            OPT[k] = int(v)
    open(sys.argv[1], 'w').write(build(diag))
```
